```python
import torch

def _softmax(x, axis=-1):
    return torch.softmax(x, dim=axis)
def _gelu(x):
    return torch.nn.functional.gelu(x, approximate="tanh")
def _silu(x):
    return torch.nn.functional.silu(x)
def _sigmoid(x):
    return torch.sigmoid(x)
def _layernorm(x, axis=-1, eps=1e-5):
    m = x.mean(dim=axis, keepdim=True)
    v = x.var(dim=axis, keepdim=True, unbiased=False)
    return (x - m) / torch.sqrt(v + eps)
def _scatter_add(tgt, idx, src, axis=0):
    return tgt.clone().index_add_(axis, idx, src)
def _segment_sum(src, seg, n):
    out = torch.zeros((n,) + src.shape[1:], dtype=src.dtype)
    return out.index_add_(0, seg, src)
def _pad(x, pw):
    flat = tuple(v for pair in reversed(pw) for v in pair)
    return torch.nn.functional.pad(x, flat)

kernel_name = 'recurrent_scan__ssm_conv_s4__dense_activation_mish__prompt'

def setup_inputs():

    _w = (lambda a: (lambda t: t.to(torch.bfloat16) if t.is_floating_point() else t)(torch.as_tensor(a)))
    def _A_setup():
        B, L, D, N = 1, 2048, 448, 256
        A_re = -(lambda _x: torch.exp(torch.as_tensor(_x)))((lambda *s: torch.randn(*s, dtype=torch.bfloat16) * 3.2)(D, N))
        A_im = torch.pi * (lambda *s: torch.randn(*s, dtype=torch.bfloat16) * 0.2)(D, N)
        B_re = (lambda *s: torch.randn(*s, dtype=torch.bfloat16) * 0.2)(D, N)
        B_im = (lambda *s: torch.randn(*s, dtype=torch.bfloat16) * 0.2)(D, N)
        C_re = (lambda *s: torch.randn(*s, dtype=torch.bfloat16) * 0.2)(D, N)
        C_im = (lambda *s: torch.randn(*s, dtype=torch.bfloat16) * 0.2)(D, N)
        log_dt = (lambda *s: torch.randn(*s, dtype=torch.bfloat16) * 0.2)(D) * 0.5 - 4.0
        Dskip = (lambda *s: torch.randn(*s, dtype=torch.bfloat16) * 0.2)(D)
        return {
            "u": _w((lambda *s: torch.randn(*s, dtype=torch.bfloat16) * 0.05)(B, L, D)),
            "A_re": _w(A_re),
            "A_im": _w(A_im),
            "B_re": _w(B_re),
            "B_im": _w(B_im),
            "C_re": _w(C_re),
            "C_im": _w(C_im),
            "log_dt": _w(log_dt),
            "Dskip": _w(Dskip),
        }
    _A_in = _A_setup()

    def _B_setup():
        B, S, D, F = 1, 2048, 448, 1792
        return {
            "x": _w((lambda *s: torch.randn(*s, dtype=torch.bfloat16) * 0.05)(B, S, D)),
            "w1": _w((lambda *s: torch.randn(*s, dtype=torch.bfloat16) * 0.8)(D, F) * (D ** -0.5)),
            "b1": _w((lambda *s: torch.randn(*s, dtype=torch.bfloat16) * 0.1)(F)),
            "w2": _w((lambda *s: torch.randn(*s, dtype=torch.bfloat16) * 0.1)(F, D) * (F ** -0.5)),
        }
    _B_in = _B_setup()

    return {
        "A_u": _A_in["u"],
        "A_A_re": _A_in["A_re"],
        "A_A_im": _A_in["A_im"],
        "A_B_re": _A_in["B_re"],
        "A_B_im": _A_in["B_im"],
        "A_C_re": _A_in["C_re"],
        "A_C_im": _A_in["C_im"],
        "A_log_dt": _A_in["log_dt"],
        "A_Dskip": _A_in["Dskip"],
        "B_x": _B_in["x"],
        "B_w1": _B_in["w1"],
        "B_b1": _B_in["b1"],
        "B_w2": _B_in["w2"],
    }

def reference(A_u, A_A_re, A_A_im, A_B_re, A_B_im, A_C_re, A_C_im, A_log_dt, A_Dskip, B_x, B_w1, B_b1, B_w2):
    def _A_ref(u, A_re, A_im, B_re, B_im, C_re, C_im, log_dt, Dskip):
        Bsz, L, D = u.shape
        dt = torch.exp(log_dt)[:, None]
        A = A_re + 1j * A_im
        Bc = B_re + 1j * B_im
        Cc = C_re + 1j * C_im
        logdA = dt * A
        dB = dt * Bc
        l = (lambda x, dt: x.to(dt))(torch.arange(L), A_re.dtype)
        P = torch.exp(logdA[:, :, None] * l[None, None, :])
        K = torch.einsum("dn,dnl,dn->dl", Cc, P, dB).real
        L2 = 2 * L
        Kp = _pad(K, ((0, 0), (0, L)))
        up = (lambda x, *d: x.permute(*d))(u, 0, 2, 1)
        up = _pad(up, ((0, 0), (0, 0), (0, L)))
        Kf = (lambda x, axes=(-2,-1): torch.fft.rfft2(x.float(), dim=axes))(Kp[:, None, :], axes=(-2, -1))
        Uf = (lambda x, axes=(-2,-1): torch.fft.rfft2(x.float(), dim=axes))(up[:, :, None, :], axes=(-2, -1))
        Yf = Uf * Kf[None, :, :, :]
        y = (lambda x, s, axes=(-2,-1): torch.fft.irfft2(x, s=s, dim=axes).to(torch.bfloat16))(Yf, (1, L2), axes=(-2, -1))[:, :, 0, :L]
        y = (lambda x, *d: x.permute(*d))(y, 0, 2, 1) + u * Dskip[None, None, :]
        return y

    def _B_ref(x, w1, b1, w2):
        h = torch.einsum("bsd,df->bsf", x, w1) + b1
        sp = torch.log1p(torch.exp(-torch.abs(h))) + torch.where(h > 0, h, torch.zeros_like(h))
        act = h * torch.tanh(sp)
        return torch.einsum("bsf,fd->bsd", act, w2)

    x = A_u
    xn = _layernorm(x, axis=-1)
    s = _A_ref(xn, A_A_re, A_A_im, A_B_re, A_B_im, A_C_re, A_C_im, A_log_dt, A_Dskip)
    g = _silu(_B_ref(xn, B_w1, B_b1, B_w2))
    return x + s * g
```

```python
import re

def v(a, n=1): return f"v{a}" if n == 1 else f"v[{a}:{a+n-1}]"
def s(a, n=1): return f"s{a}" if n == 1 else f"s[{a}:{a+n-1}]"

_REG = re.compile(r"^(-|\|)?(abs\()?([vsa])(?:(\d+)|\[(\d+):(\d+)\])\)?\|?$")

def regs_of(op):
    op = op.strip()
    if op in ("vcc", "vcc_lo", "vcc_hi"): return {"vcc"}
    if op in ("exec", "exec_lo", "exec_hi"): return {"exec"}
    if op == "m0": return {"m0"}
    m = _REG.match(op)
    if not m: return set()
    k = m.group(3)
    if m.group(4) is not None: return {k + m.group(4)}
    return {k + str(i) for i in range(int(m.group(5)), int(m.group(6)) + 1)}

TRANS = ("v_exp_", "v_log_", "v_rcp_", "v_rsq_", "v_sqrt_", "v_sin_", "v_cos_")

class I:
    def __init__(self, text, token=None):
        self.text = text.strip()
        self.token = token
        body = self.text.split(";")[0].strip()
        parts = body.split(None, 1)
        self.mn = parts[0]
        rest = parts[1] if len(parts) > 1 else ""
        ops, depth, cur = [], 0, ""
        for ch in rest:
            if ch in "[(": depth += 1
            if ch in "])": depth -= 1
            if ch == "," and depth == 0:
                ops.append(cur.strip()); cur = ""
            else: cur += ch
        if cur.strip(): ops.append(cur.strip())
        mods = ""
        if ops:
            last = ops[-1].split(None, 1)
            ops[-1] = last[0]
            mods = last[1] if len(last) > 1 else ""
        self.ops, self.mods = ops, mods
        mn = self.mn
        R = [regs_of(o) for o in ops]
        self.w, self.r = set(), set()
        self.kind = "other"
        self.mfma_pass = 0
        self.srcc = set(); self.srcab = set(); self.sdata = set()
        self.dpp = bool(re.search(r"quad_perm|row_|wave_|bank_mask", mods)) or mn.endswith("_dpp")
        self.lds_dma = False
        U = lambda lst: set().union(*lst) if lst else set()
        if mn.startswith("v_mfma"):
            self.kind = "mfma"
            self.w = R[0]; self.srcab = R[1] | R[2]; self.srcc = R[3]; self.r = self.srcab | self.srcc
            self.mfma_pass = 8 if "32x32" in mn else (2 if "4x4" in mn else 4)
        elif mn.startswith("v_"):
            self.kind = "valu"
            if mn.startswith("v_cmpx"): raise ValueError("v_cmpx not modelled")
            if mn.startswith("v_permlane") and "swap" in mn:
                self.w = R[0] | R[1]; self.r = R[0] | R[1]
            elif re.match(r"v_(add|sub|subrev|addc|subb)_co", mn):
                self.w = R[0] | R[1]; self.r = U(R[2:])
            else:
                self.w = R[0]; self.r = U(R[1:])
                if re.match(r"v_(fmac|pk_fmac|dot2c|mac)", mn) or self.dpp or "v_writelane" in mn: self.r |= R[0]
                if mn.startswith("v_cndmask") and len(ops) == 3: self.r |= {"vcc"}
        elif mn.startswith("ds_"):
            self.kind = "ds"
            if re.match(r"ds_(read|bpermute|permute|swizzle)", mn) or "_rtn" in mn:
                self.w = R[0]; self.r = U(R[1:])
            else:
                self.r = U(R)
        elif mn.startswith("buffer_") or mn.startswith("global_"):
            self.kind = "vmem"
            islds = bool(re.search(r"\blds\b", mods)) or "_lds_" in mn
            if "load" in mn and not islds:
                self.w = R[0]; self.r = U(R[1:])
            else:
                self.r = U(R)
                if islds: self.lds_dma = True; self.r |= {"m0"}
                if "store" in mn and re.search(r"x[34]$", mn):
                    self.sdata = R[0] if mn.startswith("buffer_") else R[1]
        elif re.match(r"s_(load|buffer_load|memtime|memrealtime)", mn):
            self.kind = "smem"
            self.w = R[0]; self.r = U(R[1:])
        elif mn.startswith("s_"):
            self.kind = "salu"
            if re.match(r"s_(cmp|cbranch|branch|waitcnt|nop|barrier|endpgm|sleep|setprio|bitcmp|sethalt)", mn):
                self.r = U(R)
            else:
                self.w = R[0] if R else set(); self.r = U(R[1:])
                if "saveexec" in mn: self.w |= {"exec"}; self.r |= {"exec"}
                if re.match(r"s_(addk|mulk|cmov)", mn): self.r |= self.w
        self.trans = mn.startswith(TRANS)
        self.states = 1
        if mn == "s_nop": self.states = int(ops[0], 0) + 1

class Marker:
    def __init__(self, kind, arg=None): self.kind, self.arg = kind, arg

def need_states(p, c):
    n = 0
    isv = lambda S: {x for x in S if x[0] in "va" and x != "vcc"}
    iss = lambda S: {x for x in S if x[0] == "s" or x == "vcc"}
    if p.kind == "valu":
        wv, ws = isv(p.w), iss(p.w)
        if c.kind == "mfma" and wv & c.r: n = max(n, 2)
        if c.kind == "valu":
            if c.dpp and wv & c.r: n = max(n, 2)
            if c.mn.startswith("v_permlane") and wv & c.r: n = max(n, 2)
            if c.mn.startswith(("v_readfirstlane", "v_readlane")) and wv & c.r: n = max(n, 1)
            if p.trans and wv & c.r: n = max(n, 1)
            if ws & c.r: n = max(n, 4 if c.mn.startswith(("v_readlane", "v_writelane")) else 2)
            if p.mn.startswith("v_dot") and wv & (c.r | c.w):
                same_c = c.mn == p.mn and not (wv & set().union(*[regs_of(o) for o in c.ops[1:3]]))
                if not same_c: n = max(n, 3)
            if "op_sel" in p.mods and not p.mn.startswith("v_pk") and wv & c.r: n = max(n, 1)
            if "sdwa" in p.mn and wv & c.r: n = max(n, 1)
        if p.mn.startswith("v_dot") and c.kind in ("ds", "vmem", "mfma") and wv & c.r: n = max(n, 3)
        if p.trans and c.kind in ("ds", "vmem") and wv & c.r: n = max(n, 1)
        if c.kind == "vmem" and ws & c.r: n = max(n, 5)
        if c.kind in ("salu", "smem") and ws & c.r: n = max(n, 4 if c.kind == "smem" else 2)
        if c.mn.startswith("s_cbranch_vcc") and "vcc" in ws: n = max(n, 5)
    elif p.kind == "mfma":
        P = p.mfma_pass
        t_raw = {2: 5, 4: 8, 8: 12}[P]
        if c.kind == "mfma":
            if p.w & c.srcab: n = max(n, t_raw)
            if p.w & c.srcc:
                if p.w == c.srcc and c.mfma_pass == P: n = max(n, 2 if P == 2 else 0)
                else: n = max(n, {2: 4, 4: 6, 8: 10}[P])
            elif p.w & c.w: n = max(n, {2: 4, 4: 6, 8: 10}[P])
        elif c.kind in ("valu", "ds", "vmem"):
            if p.w & (c.r | c.w): n = max(n, t_raw)
            if p.srcc & c.w: n = max(n, {2: 1, 4: 3, 8: 7}[P])
    elif p.kind == "vmem":
        if p.sdata & c.w: n = max(n, 2)
    elif p.kind == "salu":
        if "m0" in p.w and (c.lds_dma or "addtid" in c.mn): n = max(n, 1)
        if "exec" in p.w and c.kind == "valu" and c.dpp: n = max(n, 1)
    return n

_TOK = [0]
class Prog:
    def __init__(self):
        self.items = []
        self._tok = 0
        self._lab = 0
    def __call__(self, text, token=None):
        for line in text.strip().split("\n"):
            line = line.strip()
            if not line or line.startswith(";"):
                if line: self.items.append(Marker("text", line))
                continue
            if line.endswith(":") or line.startswith("."):
                self.items.append(Marker("text", line)); continue
            self.items.append(I(line, token))
        return token
    def tok(self, text):
        _TOK[0] += 1
        t = ("tok", _TOK[0])
        self(text, token=t)
        return t
    def wait(self, token): self.items.append(Marker("wait", token))
    def label(self, name): self.items.append(Marker("text", name + ":"))
    def comment(self, t): self.items.append(Marker("text", "; " + t))
    def reset(self): self.items.append(Marker("reset"))
    def alt_begin(self): self.items.append(Marker("alt_begin"))
    def alt_else(self): self.items.append(Marker("alt_else"))
    def alt_end(self): self.items.append(Marker("alt_end"))
    def extend(self, other): self.items.extend(other.items if isinstance(other, Prog) else other)

    def resolve(self):
        out = []
        vm, lg, hist = [], [], []
        done_tokens = set()
        stack = []
        self.stats = {"nops": 0, "waits": 0, "instrs": 0}
        def after(q, p): return sum(1 for e in q[p + 1:] if e[2])
        def pop(q, n):
            keep = [e for p, e in enumerate(q) if after(q, p) < n]
            q[:] = keep
        def emit(ins):
            nonlocal hist
            need = 0
            for p, d in hist:
                need = max(need, need_states(p, ins) - d)
            if need > 0:
                nop = I(f"s_nop {need-1}")
                out.append(nop); self.stats["nops"] += 1
                hist = [(p, d + need) for p, d in hist]
            out.append(ins); self.stats["instrs"] += 1
            hist = [(p, d + ins.states) for p, d in hist if d + ins.states < 20]
            if ins.kind in ("valu", "mfma", "vmem", "salu"): hist.append((ins, 0))
        def dowait(nv, nl):
            parts = []
            if nv is not None: nv = min(nv, 63); parts.append(f"vmcnt({nv})"); pop(vm, nv)
            if nl is not None:
                nl = min(nl, 15)
                if any(e[3] == "smem" for e in lg): nl = 0
                parts.append(f"lgkmcnt({nl})"); pop(lg, nl)
            if parts:
                emit(I("s_waitcnt " + " ".join(parts))); self.stats["waits"] += 1
        for it in self.items:
            if isinstance(it, Marker):
                if it.kind == "text": out.append(it)
                elif it.kind == "reset": vm, lg, hist = [], [], []
                elif it.kind == "pending":
                    (vm if it.arg[0] == "vmem" else lg).append([it.arg[1], None, True, it.arg[0]])
                elif it.kind == "need":
                    r = {f"v{it.arg}"}
                    nv = [after(vm, p) for p, e in enumerate(vm) if e[0] & r]
                    nl = [after(lg, p) for p, e in enumerate(lg) if e[0] & r]
                    dowait(min(nv) if nv else None, min(nl) if nl else None)
                elif it.kind == "wait":
                    toks = it.arg if isinstance(it.arg, list) else [it.arg]
                    nv = nl = None
                    for t in toks:
                        assert t in done_tokens, f"wait for a token that was never issued: {t}"
                        for p, e in enumerate(vm):
                            if e[1] == t: a = after(vm, p); nv = a if nv is None else min(nv, a)
                        for p, e in enumerate(lg):
                            if e[1] == t: a = after(lg, p); nl = a if nl is None else min(nl, a)
                    dowait(nv, nl)
                elif it.kind == "alt_begin":
                    stack.append({"vm": list(vm), "lg": list(lg), "hist": list(hist), "arm": None})
                elif it.kind == "alt_else":
                    st = stack[-1]; st["arm"] = (vm, lg, hist)
                    vm, lg, hist = list(st["vm"]), list(st["lg"]), list(st["hist"])
                elif it.kind == "alt_end":
                    st = stack.pop()
                    o = st["arm"] if st["arm"] is not None else (st["vm"], st["lg"], st["hist"])
                    def merge(base, a, b):
                        ids = {id(e) for e in base}
                        r = [e for e in base if any(e is x for x in a) or any(e is x for x in b)]
                        for q in (a, b):
                            r += [[e[0], e[1], False, e[3]] for e in q if id(e) not in ids]
                        return r
                    vm, lg = merge(st["vm"], vm, o[0]), merge(st["lg"], lg, o[1])
                    hist = hist + o[2]
                continue
            ins = it
            if ins.mn == "s_waitcnt":
                m = re.search(r"vmcnt\((\d+)\)", ins.text)
                if m: pop(vm, int(m.group(1)))
                m = re.search(r"lgkmcnt\((\d+)\)", ins.text)
                if m:
                    n = int(m.group(1))
                    if n == 0 or not any(e[3] == "smem" for e in lg): pop(lg, n)
                emit(ins); continue
            touch = ins.r | ins.w
            nv = nl = None
            for p, e in enumerate(vm):
                hit = e[0] & (ins.r if ins.kind == "vmem" else touch)
                if hit: a = after(vm, p); nv = a if nv is None else min(nv, a)
            for p, e in enumerate(lg):
                hit = e[0] & (ins.r if (ins.kind == "ds" and e[3] == "ds") else touch)
                if hit: a = after(lg, p); nl = a if nl is None else min(nl, a)
            dowait(nv, nl)
            emit(ins)
            if ins.token is not None: done_tokens.add(ins.token)
            if ins.kind == "vmem": vm.append([ins.w, ins.token, True, "vmem"])
            elif ins.kind == "ds": lg.append([ins.w, ins.token, True, "ds"])
            elif ins.kind == "smem": lg.append([ins.w, ins.token, True, "smem"])
        assert not stack
        self.out = out
        return "\n".join((x.arg if (x.arg.endswith(":") or x.arg.startswith(".")) else "    " + x.arg) if isinstance(x, Marker) else "    " + x.text for x in out) + "\n"

def interleave(main, fill, ratio=None):
    out = []
    n, m = len(main), len(fill)
    j = 0
    for i, it in enumerate(main):
        out.extend(it if isinstance(it, list) else [it])
        upto = (i + 1) * m // n if ratio is None else min(m, int((i + 1) * ratio))
        while j < upto:
            f = fill[j]; out.extend(f if isinstance(f, list) else [f]); j += 1
    while j < m:
        f = fill[j]; out.extend(f if isinstance(f, list) else [f]); j += 1
    return out
```

```python
import sys
from asmgen import *

KNAME = "recurrent_scan__ssm_conv_s4__dense_activation_mish__prompt_kernel"

class Cfg:
    stamps = False
    prefetch_code = True
    mish_pk = True
    prio_b = 1
    def __init__(self, **kw):
        for k, x in kw.items():
            assert hasattr(self, k), k
            setattr(self, k, x)

WS_EPOCH, WS_FX, WS_FA, WS_FS = 0, 0x1000, 0x2000, 0xA000
WS_STAT, WS_CS, WS_XT, WS_ST, WS_ACT, WS_DBG = 0x10000, 0x14000, 0x40000, 0x200000, 0x400000, 0xC00000
WS_SIZE = 0x1000000
TAGC = 0x9E3779B1
SLOT = 32768
L_TAB = 3 * SLOT
L_BR = 4 * SLOT
L_KC = L_BR + 512
L_U = L_BR + 6144
L_STR = L_BR + 15360
L_CNT = L_BR + 24576
L_EX = 2 * SLOT
LDS_BYTES = 163840
P_U, P_ARE, P_AIM, P_BRE, P_BIM, P_CRE, P_CIM, P_LDT = 4, 6, 8, 10, 12, 14, 16, 18
P_DSK, P_BX, P_W1, P_B1, P_W2, P_OUT, P_DBG, P_WS = 20, 22, 24, 26, 28, 30, 32, 34
R_LD, R_2, R_WS, R_PC = 36, 40, 44, 48
S_TAG, S_TAG2, S_WAVE, S_XCD, S_J, S_RT, S_CT, S_CP = 52, 53, 54, 55, 56, 57, 58, 59
S_R2, S_C2 = 60, 61
S_T = 62
S_POLL = 80
S_CNT = 96
S_T0 = 98
LOG2E = 0x3fb8aa3b
POLL_MAX = 1 << 17

def srd(p, r, ptr, size):
    p(f"s_mov_b32 s{r}, s{ptr}\ns_mov_b32 s{r+1}, s{ptr+1}\ns_mov_b32 s{r+2}, {size}\ns_mov_b32 s{r+3}, 0x20000")

class Gen:
    def __init__(self, cfg):
        self.c = cfg
        self.p = Prog()
        self.nlab = 0
        self.stamp_names = {}
    def lab(self, base):
        self.nlab += 1
        return f"L_{base}_{self.nlab}"

    def stamp_begin(self, role):
        self.role = role; self.stamp_names[role] = []
    def stamp(self, name, p=None):
        if not self.c.stamps: return
        p = p or self.p
        n = len(self.stamp_names[self.role]); assert n < 15
        self.stamp_names[self.role].append(name)
        p(f"s_memrealtime {s(4+2*n, 2)}")
    def stamp_flush(self, vt):
        if not self.c.stamps: return
        p = self.p
        n = len(self.stamp_names[self.role])
        p("s_waitcnt vmcnt(0) lgkmcnt(0)\ns_mov_b64 exec, 1")
        p(f"s_lshl_b32 s{S_T}, s2, 3\ns_add_u32 s{S_T}, s{S_T}, s{S_WAVE}\ns_lshl_b32 s{S_T}, s{S_T}, 6\ns_add_u32 s{S_T}, s{S_T}, {WS_DBG}")
        p(f"v_mov_b32 v{vt}, s{S_T0}\nbuffer_store_dword v{vt}, off, {s(R_WS,4)}, s{S_T}")
        for i in range(n):
            p(f"v_mov_b32 v{vt+1+(i&1)}, s{4+2*i}\nbuffer_store_dword v{vt+1+(i&1)}, off, {s(R_WS,4)}, s{S_T} offset:{4+4*i}")
        p("s_waitcnt vmcnt(0)")

    def flag_store(self, soff, vt):
        p = self.p
        p(f"s_mov_b64 exec, 1\nbuffer_store_dword v{vt}, off, {s(R_WS,4)}, s{soff} sc1\ns_mov_b64 exec, -1")
    def poll_flags(self, soff, n):
        p = self.p
        w = 8 if n <= 8 else 16
        l0, l1 = self.lab("poll"), self.lab("polled")
        p(f"s_waitcnt lgkmcnt(0)\ns_mov_b32 s{S_CNT}, 0")
        p.label(l0)
        p(f"s_buffer_load_dwordx{w} {s(S_POLL,w)}, {s(R_WS,4)}, s{soff} glc\ns_add_u32 s{S_CNT}, s{S_CNT}, 1\ns_waitcnt lgkmcnt(0)")
        p(f"s_cmp_gt_u32 s{S_CNT}, {POLL_MAX}\ns_cbranch_scc1 {l1}")
        for i in range(0, n - 1, 2):
            p(f"s_cmp_eq_u64 {s(S_POLL+i,2)}, {s(S_TAG,2)}\ns_cbranch_scc0 {l0}")
        if n & 1:
            p(f"s_cmp_eq_u32 s{S_POLL+n-1}, s{S_TAG}\ns_cbranch_scc0 {l0}")
        p.label(l1)
    def lds_arrive(self, vaddr, vone):
        self.p(f"s_mov_b64 exec, 1\nds_add_u32 v{vaddr}, v{vone}\ns_mov_b64 exec, -1")
    def lds_wait(self, vaddr, vt, target):
        p = self.p
        l0, l1 = self.lab("spin"), self.lab("spun")
        p(f"s_mov_b32 s{S_CNT}, 0")
        p.label(l0)
        p(f"ds_read_b32 v{vt}, v{vaddr}\ns_add_u32 s{S_CNT}, s{S_CNT}, 1\ns_waitcnt lgkmcnt(0)\nv_readfirstlane_b32 s{S_POLL}, v{vt}")
        p(f"s_cmp_gt_u32 s{S_CNT}, {POLL_MAX*8}\ns_cbranch_scc1 {l1}\ns_cmp_lt_u32 s{S_POLL}, {target}\ns_cbranch_scc1 {l0}")
        p.label(l1)
    def tagged_check(self, loads, tagregs, vt):
        p = self.p
        l0, l1 = self.lab("chk"), self.lab("chkd")
        p(f"s_mov_b32 s{S_CNT}, 0")
        for r in reversed(tagregs): p.items.append(Marker("need", r))
        p.label(l0)
        p(f"v_xor_b32 v{vt}, s{S_TAG}, v{tagregs[0]}")
        for r in tagregs[1:]:
            p(f"v_bitop3_b32 v{vt}, v{r}, s{S_TAG}, v{vt} bitop3:0xbe")
        p(f"v_cmp_ne_u32 vcc, 0, v{vt}\ns_add_u32 s{S_CNT}, s{S_CNT}, 1\ns_cbranch_vccz {l1}")
        p(f"s_cmp_gt_u32 s{S_CNT}, {POLL_MAX}\ns_cbranch_scc1 {l1}")
        p.alt_begin()
        p(loads)
        p(f"s_waitcnt vmcnt(0)\ns_branch {l0}")
        p.alt_end()
        p.label(l1)

    def entry(self):
        p, c = self.p, self.c
        p(f"s_cmp_ge_u32 s2, 256\ns_cbranch_scc1 L_exit")
        if c.stamps: p(f"s_memrealtime {s(S_T0,2)}")
        p(f"s_load_dwordx16 s[4:19], s[0:1], 0\ns_load_dwordx16 s[20:35], s[0:1], 64")
        p(f"v_lshrrev_b32 v1, 6, v0\nv_and_b32 v0, 63, v0\nv_readfirstlane_b32 s{S_WAVE}, v1")
        p(f"s_and_b32 s{S_XCD}, s2, 7\ns_lshr_b32 s{S_J}, s2, 3")
        if c.prefetch_code:
            p(f"s_getpc_b64 {s(R_PC,2)}")
            p.label("L_pc")
            p(f"s_mov_b32 s{R_PC+2}, L_end-L_pc\ns_mov_b32 s{R_PC+3}, 0x20000")
            p(f"s_lshl_b32 s{S_T}, s{S_J}, 3\ns_add_u32 s{S_T}, s{S_T}, s{S_WAVE}\ns_lshl_b32 s{S_T}, s{S_T}, 7")
            p(f"buffer_load_dword v255, off, {s(R_PC,4)}, s{S_T}")
        p(f"s_cmp_ge_u32 s{S_J}, 14\ns_cselect_b32 s{S_T}, 1, 0\ns_cselect_b32 s{S_T+1}, 14, 0")
        p(f"s_lshl_b32 s{S_RT}, s{S_XCD}, 1\ns_add_u32 s{S_RT}, s{S_RT}, s{S_T}\ns_sub_u32 s{S_CT}, s{S_J}, s{S_T+1}")
        p(f"s_mul_i32 s{S_CP}, s{S_XCD}, 28\ns_add_u32 s{S_CP}, s{S_CP}, s{S_J}")
        p(f"s_cmp_ge_u32 s{S_CT}, 7\ns_cselect_b32 s{S_T}, 1, 0\ns_cselect_b32 s{S_T+1}, 7, 0")
        p(f"s_lshl_b32 s{S_R2}, s{S_RT}, 1\ns_add_u32 s{S_R2}, s{S_R2}, s{S_T}\ns_sub_u32 s{S_C2}, s{S_CT}, s{S_T+1}")
        p(f"s_waitcnt lgkmcnt(0)")
        p(f"s_load_dword s{S_TAG}, {s(P_WS,2)}, {WS_EPOCH} glc")
        srd(p, R_WS, P_WS, WS_SIZE)
        p(f"s_cmp_ge_u32 s{S_J}, 28\ns_cbranch_scc1 L_helper\ns_cmp_ge_u32 s{S_WAVE}, 4\ns_cbranch_scc1 L_roleB")
    def role_start(self):
        p = self.p
        p.reset()
        p.items.append(Marker("pending", ("smem", {f"s{S_TAG}"})))
        if self.c.prefetch_code: p.items.append(Marker("pending", ("vmem", {"v255"})))
    def make_tag(self):
        self.p(f"s_add_u32 s{S_TAG}, s{S_TAG}, {TAGC}\ns_mov_b32 s{S_TAG2}, s{S_TAG}")

    def role_a(self):
        p, c = self.p, self.c
        self.role_start(); self.stamp_begin("A")
        VD, VXA, VWA, VW2A, VW2D, VL16, VC1, VT = 1, 9, 13, 15, 17, 21, 22, 24
        ACC, FR, W2R, AB = 32, 96, 96, 192
        S_SOFF, S_CSTR, S_CH, S_LDB, S_WT, S_WF, S_W2B, S_ACTW, S_ACTR, S_FAW, S_FAR, S_FXW, S_XTW, S_RING = range(64, 78)
        S_X = 78; S_Y = 79
        T = S_T
        p(f"s_and_b32 s{S_WT}, s{S_WAVE}, 1\ns_lshr_b32 s{S_WF}, s{S_WAVE}, 1")
        p(f"s_lshl_b32 s{T}, s{S_RT}, 1\ns_add_u32 s{T}, s{T}, s{S_WF}\ns_mul_i32 s{T}, s{T}, {64*896}")
        p(f"s_mul_i32 s{T+1}, s{S_WF}, {32*3584}\ns_lshl_b32 s{S_X}, s{S_CT}, 8\ns_add_u32 s{T+1}, s{T+1}, s{S_X}")
        p(f"s_lshr_b32 s{S_CH}, s{S_CT}, 1")
        p(f"v_lshrrev_b32 v{VT}, 3, v0\nv_lshrrev_b32 v{VT+1}, 4, v0")
        p(f"s_cmp_eq_u32 s{S_WT}, 0")
        p(f"s_cselect_b32 s{R_LD}, s{P_U}, s{P_W1}\ns_cselect_b32 s{R_LD+1}, s{P_U+1}, s{P_W1+1}\ns_cselect_b32 s{R_LD+2}, {2048*896}, 0\ns_cselect_b32 s{S_X}, 0, {448*3584}")
        p(f"s_cselect_b32 s{S_SOFF}, s{T}, s{T+1}\ns_cselect_b32 s{S_CSTR}, 1, {64*28}\ns_cselect_b32 s{S_Y}, 1, 2\ns_cselect_b64 vcc, -1, 0")
        p(f"s_add_u32 s{R_LD+2}, s{R_LD+2}, s{S_X}\ns_mov_b32 s{R_LD+3}, 0x20000\ns_lshl_b32 s{S_CSTR}, s{S_CSTR}, 7\ns_mul_i32 s{S_Y}, s{S_Y}, 7168")
        p(f"s_mul_i32 s{T}, s{S_CH}, s{S_CSTR}\ns_add_u32 s{S_SOFF}, s{S_SOFF}, s{T}")
        p(f"s_lshl_b32 s{S_LDB}, s{S_WT}, 14\ns_lshl_b32 s{T}, s{S_WF}, 13\ns_add_u32 s{S_LDB}, s{S_LDB}, s{T}")
        p(f"v_xor_b32 v{VT+2}, v0, v{VT+1}\nv_and_b32 v{VT+2}, 7, v{VT+2}\nv_lshlrev_b32 v{VT+2}, 4, v{VT+2}\nv_mul_u32_u24 v{VT}, 896, v{VT}\nv_add_u32 v{VT}, v{VT}, v{VT+2}")
        p(f"v_lshlrev_b32 v{VT+2}, 2, v{VT+1}\nv_xor_b32 v{VT+2}, v0, v{VT+2}\nv_and_b32 v{VT+2}, 15, v{VT+2}\nv_lshlrev_b32 v{VT+2}, 4, v{VT+2}\nv_mul_u32_u24 v{VT+1}, 3584, v{VT+1}\nv_add_u32 v{VT+1}, v{VT+1}, v{VT+2}")
        p(f"v_cndmask_b32 v{VD}, v{VT+1}, v{VT}, vcc\nv_xor_b32 v{VT}, 64, v{VT}\nv_cndmask_b32 v{VD+1}, v{VT+1}, v{VT}, vcc")
        p(f"s_sub_u32 s{T}, s{S_Y}, 1024\nv_add_u32 v{VD+1}, s{T}, v{VD+1}\ns_lshl_b32 s{T}, s{T}, 1")
        p(f"v_add_u32 v{VD+2}, s{T}, v{VD}\nv_add_u32 v{VD+3}, s{T}, v{VD+1}\ns_lshl_b32 s{T}, s{S_Y}, 2")
        for i in range(4): p(f"v_add_u32 v{VD+4+i}, s{T}, v{VD+i}")
        ctok = {}
        def dma_chunk(n, q=None):
            q = q or p
            for i in range(8):
                if i % 4 == 0: q(f"s_add_u32 m0, s{S_LDB}, {(n%4)*SLOT + (i//4)*4096}")
                ctok[n] = q.tok(f"buffer_load_dwordx4 v{VD+i}, {s(R_LD,4)}, s{S_SOFF} offen offset:{(i%4)*1024} lds")
            if n < 6:
                q(f"s_add_u32 s{S_CH}, s{S_CH}, 1\ns_add_u32 s{S_SOFF}, s{S_SOFF}, s{S_CSTR}\ns_mul_i32 s{T}, s{S_CSTR}, 7")
                q(f"s_cmp_eq_u32 s{S_CH}, 7\ns_cselect_b32 s{T}, s{T}, 0\ns_cselect_b32 s{S_CH}, 0, s{S_CH}\ns_sub_u32 s{S_SOFF}, s{S_SOFF}, s{T}")
        dma_chunk(0); dma_chunk(1)
        srd(p, R_2, P_W2, 1792 * 896)
        VB1 = 30
        p(f"s_lshl_b32 s{T}, s{S_CT}, 1\ns_add_u32 s{T}, s{T}, s{S_WF}\ns_lshl_b32 s{S_X}, s{T}, 7")
        p(f"v_and_b32 v{VT}, 31, v0\nv_lshl_add_u32 v{VT+1}, v{VT}, 1, s{S_X}")
        p(f"global_load_ushort v{VB1}, v{VT+1}, {s(P_B1,2)}\nglobal_load_ushort v{VB1+1}, v{VT+1}, {s(P_B1,2)} offset:64")
        p(f"s_mul_i32 s{S_X}, s{T}, 37\ns_lshr_b32 s{S_X}, s{S_X}, 8")
        p(f"s_mul_i32 s{S_Y}, s{S_X}, 7\ns_sub_u32 s{S_Y}, s{T}, s{S_Y}")
        p(f"s_lshl_b32 s{T+1}, s{S_RT}, 1\ns_add_u32 s{T+1}, s{T+1}, s{S_WT}")
        p(f"s_lshl_b32 s{S_FAW}, s{T+1}, 3\ns_add_u32 s{S_FAW}, s{S_FAW}, s{S_X}\ns_lshl_b32 s{S_FAW}, s{S_FAW}, 5\ns_add_u32 s{S_FAW}, s{S_FAW}, s{S_Y}\ns_lshl_b32 s{S_FAW}, s{S_FAW}, 2\ns_add_u32 s{S_FAW}, s{S_FAW}, {WS_FA}")
        p(f"s_mul_i32 s{S_ACTW}, s{T+1}, 28\ns_add_u32 s{S_ACTW}, s{S_ACTW}, s{T}\ns_lshl_b32 s{S_ACTW}, s{S_ACTW}, 13\ns_add_u32 s{S_ACTW}, s{S_ACTW}, {WS_ACT}")
        p(f"s_lshl_b32 s{S_FAR}, s{S_R2}, 3\ns_add_u32 s{S_FAR}, s{S_FAR}, s{S_WAVE}\ns_lshl_b32 s{S_FAR}, s{S_FAR}, 7\ns_add_u32 s{S_FAR}, s{S_FAR}, {WS_FA}")
        p(f"s_lshl_b32 s{S_ACTR}, s{S_R2}, 2\ns_add_u32 s{S_ACTR}, s{S_ACTR}, s{S_WAVE}\ns_mul_i32 s{S_ACTR}, s{S_ACTR}, {28*2048}\ns_add_u32 s{S_ACTR}, s{S_ACTR}, {WS_ACT}")
        p(f"s_mul_i32 s{S_W2B}, s{S_WAVE}, {448*896}\ns_lshl_b32 s{S_X}, s{S_C2}, 7\ns_add_u32 s{S_W2B}, s{S_W2B}, s{S_X}")
        p(f"s_lshl_b32 s{S_RING}, s{S_WAVE}, 13")
        p(f"s_lshl_b32 s{S_X}, s{S_RT}, 1\ns_add_u32 s{S_X}, s{S_X}, s{S_WF}")
        p(f"s_lshl_b32 s{S_FXW}, s{S_CT}, 5\ns_add_u32 s{S_FXW}, s{S_FXW}, s{S_X}\ns_lshl_b32 s{S_FXW}, s{S_FXW}, 2\ns_add_u32 s{S_FXW}, s{S_FXW}, {WS_FX}")
        p(f"s_lshl_b32 s{S_XTW}, s{S_CT}, 10\ns_add_u32 s{S_XTW}, s{S_XTW}, s{S_X}\ns_lshl_b32 s{S_XTW}, s{S_XTW}, 7\ns_add_u32 s{S_XTW}, s{S_XTW}, {WS_XT}")
        p(f"v_lshlrev_b32 v{VL16}, 4, v0")
        p(f"v_lshrrev_b32 v{VT+1}, 5, v0\nv_bfe_u32 v{VT+2}, v0, 1, 3\nv_xor_b32 v{VT+1}, v{VT+1}, v{VT+2}\nv_lshlrev_b32 v{VT+1}, 4, v{VT+1}")
        p(f"v_lshl_add_u32 v{VT+1}, v{VT}, 7, v{VT+1}\ns_lshl_b32 s{S_X}, s{S_WT}, 13\nv_add_u32 v{VXA}, s{S_X}, v{VT+1}")
        for k in range(1, 4): p(f"v_xor_b32 v{VXA+k}, {32*k}, v{VXA}")
        p(f"v_bfe_u32 v{VT}, v0, 4, 1\nv_lshlrev_b32 v{VT}, 5, v{VT}\nv_and_b32 v{VT+1}, 3, v0\nv_lshl_add_u32 v{VT}, v{VT+1}, 3, v{VT}")
        p(f"v_bfe_u32 v{VT+1}, v0, 2, 2\nv_lshrrev_b32 v{VT+2}, 5, v0")
        p(f"v_lshl_add_u32 v{VT+3}, v{VT+2}, 3, v{VT+1}\nv_lshl_add_u32 v{VT+3}, v{VT+3}, 8, v{VT}")
        p(f"s_lshl_b32 s{S_X}, s{S_WF}, 1\nv_xor_b32 v{VT+4}, s{S_X}, v{VT+1}\nv_lshl_add_u32 v{VWA}, v{VT+4}, 6, v{VT+3}\nv_xor_b32 v{VWA+1}, 64, v{VWA}")
        p(f"v_lshl_add_u32 v{VT+3}, v{VT+2}, 2, v{VT+1}\nv_lshl_add_u32 v{VT+3}, v{VT+3}, 7, v{VT}")
        p(f"v_lshrrev_b32 v{VT+4}, 1, v{VT+1}\nv_lshl_add_u32 v{VT+3}, v{VT+4}, 6, v{VT+3}\nv_add_u32 v{VW2A}, s{S_RING}, v{VT+3}\nv_xor_b32 v{VW2A+1}, 64, v{VW2A}")
        p(f"v_lshrrev_b32 v{VT}, 3, v0\nv_mul_u32_u24 v{VT}, 896, v{VT}\nv_bfe_u32 v{VT+1}, v0, 4, 1\nv_lshlrev_b32 v{VT+1}, 2, v{VT+1}\nv_xor_b32 v{VT+1}, v0, v{VT+1}\nv_and_b32 v{VT+1}, 7, v{VT+1}")
        p(f"v_lshl_add_u32 v{VW2D}, v{VT+1}, 4, v{VT}")
        for i in range(1, 4): p(f"v_add_u32 v{VW2D+i}, {i*(7168-1024)}, v{VW2D}")
        self.make_tag()
        self.stamp("issued01")
        lskip = self.lab("noxt")
        p(f"s_cmp_lg_u32 s{S_WT}, 0\ns_cbranch_scc1 {lskip}")
        p.alt_begin()
        p(f"v_and_b32 v{VT}, 7, v0\nv_lshrrev_b32 v{VT+1}, 4, v0\ns_and_b32 s{S_X}, s{S_CT}, 1\ns_lshl_b32 s{S_X}, s{S_X}, 2")
        p(f"v_and_b32 v{VT+2}, 1, v0\nv_lshlrev_b32 v{VT+2}, 2, v{VT+2}\nv_bitop3_b32 v{VT+1}, v{VT+1}, s{S_X}, v{VT+2} bitop3:0x96\nv_lshlrev_b32 v{VT+1}, 4, v{VT+1}")
        p(f"v_lshl_add_u32 v{VT+1}, v{VT}, 10, v{VT+1}\nv_and_b32 v{VT+2}, 8, v0\ns_lshl_b32 s{S_X}, s{S_WF}, 13\nv_add3_u32 v{VT+1}, v{VT+1}, v{VT+2}, s{S_X}")
        for k in range(1, 4): p(f"v_xor_b32 v{VT+1+k}, {16*k}, v{VT+1}")
        p(f"v_lshrrev_b32 v{VT+5}, 3, v0\nv_lshlrev_b32 v{VT+5}, 14, v{VT+5}\nv_lshl_add_u32 v{VT}, v{VT}, 4, v{VT+5}")
        p(f"s_mov_b32 s{S_X}, 0x05040100\ns_mov_b32 s{S_Y}, 0x07060302")
        p.wait(ctok[0])
        for i in range(8): p(f"ds_read_b64 {v(FR+2*i,2)}, v{VT+1+(i>>1)} offset:{i*128}")
        for e in range(4):
            for j in range(4):
                p(f"v_perm_b32 v{FR+16+4*e+j}, v{FR+2*(2*j+1)+(e>>1)}, v{FR+2*(2*j)+(e>>1)}, s{S_Y if e&1 else S_X}")
            xttok = p.tok(f"buffer_store_dwordx4 {v(FR+16+4*e,4)}, v{VT}, {s(R_WS,4)}, s{S_XTW} offen sc1")
            if e < 3: p(f"s_add_u32 s{S_XTW}, s{S_XTW}, 4096")
        p.alt_end()
        p.label(lskip)
        self.stamp("xt")
        dma_chunk(2); dma_chunk(3)
        p(f"v_mov_b32 v{VT}, s{S_TAG}")
        VGA = 26
        p(f"v_bfe_u32 v{VGA}, v0, 1, 2\nv_lshlrev_b32 v{VGA}, 10, v{VGA}\nv_bfe_u32 v{VGA+1}, v0, 3, 2\nv_lshl_add_u32 v{VGA}, v{VGA+1}, 4, v{VGA}\nv_and_b32 v{VGA+1}, 1, v0\nv_lshl_add_u32 v{VGA}, v{VGA+1}, 3, v{VGA}")
        p(f"s_lshl_b32 s{S_X}, s{S_RT}, 1\ns_add_u32 s{S_X}, s{S_X}, s{S_WT}\ns_lshr_b32 s{S_Y}, s{S_X}, 3\ns_lshl_b32 s{S_Y}, s{S_Y}, 12\ns_and_b32 s{S_X}, s{S_X}, 7\ns_lshl_b32 s{S_X}, s{S_X}, 7")
        p(f"s_add_u32 s{S_X}, s{S_X}, s{S_Y}\ns_add_u32 s{S_X}, s{S_X}, {WS_STAT}\nv_add_u32 v{VGA}, s{S_X}, v{VGA}")
        p(f"s_lshl_b32 s{S_X}, s{S_CT}, 1\ns_add_u32 s{S_X}, s{S_X}, s{S_WF}\ns_lshl_b32 s{S_X}, s{S_X}, 9\ns_add_u32 s{S_X}, s{S_X}, {WS_CS}\nv_and_b32 v{VGA+1}, 31, v0\nv_lshl_add_u32 v{VGA+1}, v{VGA+1}, 3, s{S_X}")
        GR = AB
        gloads = "\n".join([f"buffer_load_dwordx2 {v(GR+2*ti,2)}, v{VGA}, {s(R_WS,4)}, 0 offen offset:{64*ti} sc1" for ti in range(2)] +
                           [f"buffer_load_dwordx2 {v(GR+4+2*fi,2)}, v{VGA+1}, {s(R_WS,4)}, 0 offen offset:{256*fi} sc1" for fi in range(2)])
        wtok = {}
        def dma_w2(pn, q):
            rp = pn % 4
            q(f"s_add_u32 m0, s{S_RING}, {(rp>>1)*SLOT + (rp&1)*4096}")
            q(f"s_add_u32 s{S_X}, s{S_W2B}, {((pn%7)*64 + (pn//7)*32)*896}")
            for i in range(4):
                wtok[pn] = q.tok(f"buffer_load_dwordx4 v{VW2D+i}, {s(R_2,4)}, s{S_X} offen offset:{i*1024} lds")
        rtok = {}
        def read_w2(n, q):
            pn = n >> 1; rp = pn % 4
            if n % 2 == 0: q.wait(wtok[pn])
            for di in range(2):
                for h in range(2):
                    rtok[n] = q.tok(f"ds_read_b64_tr_b16 {v(W2R+8*(n%12)+4*di+2*h,2)}, v{VW2A+di} offset:{(rp>>1)*SLOT + (rp&1)*4096 + (n&1)*2048 + h*1024}")
        def reads1(gs):
            n, k = gs >> 2, gs & 3
            base = FR + 16 * (gs % 3); so = (n & 1) * SLOT
            r = []
            for fi in range(2):
                for h in range(2):
                    r.append(I(f"ds_read_b64_tr_b16 {v(base+4*fi+2*h,2)}, v{VWA+fi} offset:{so+16384+k*4096+h*1024}"))
                r.append(I(f"ds_read_b128 {v(base+8+4*fi,4)}, v{VXA+k} offset:{so+fi*4096}"))
            return r
        def mfma1(gs):
            base = FR + 16 * (gs % 3)
            r = []
            for fi, ti in ((0, 0), (0, 1), (1, 0), (1, 1)):
                a = v(ACC + 32 * fi + 16 * ti, 16)
                r.append(I(f"v_mfma_f32_32x32x16_bf16 {a}, {v(base+4*fi,4)}, {v(base+8+4*ti,4)}, {'0' if gs == 0 else a}"))
            return r
        for n in range(7):
            p.wait(ctok[n])
            if n == 2:
                lk = self.lab("nofx")
                p(f"s_cmp_lg_u32 s{S_WT}, 0\ns_cbranch_scc1 {lk}")
                p.alt_begin(); p.wait(xttok); self.flag_store(S_FXW, VT); p.alt_end(); p.label(lk)
            p("s_waitcnt lgkmcnt(0)\ns_barrier")
            if n in (0, 3, 6): self.stamp(f"bar{n}")
            if n in (2, 4, 6):
                for r in list(range(VXA, VXA + 4)) + [VWA, VWA + 1]: p(f"v_xor_b32 v{r}, 0x10000, v{r}")
            q = Prog()
            if 1 <= n <= 3: dma_chunk(n + 3, q)
            if n == 4: q(gloads)
            if n == 5: dma_w2(0, q); dma_w2(1, q)
            if n == 6: dma_w2(2, q); dma_w2(3, q)
            fill = q.items
            body = []
            for k in range(4):
                gs = 4 * n + k
                rd = reads1(gs)
                if gs == 0: body.append(rd); continue
                mm = mfma1(gs - 1)
                if k == 0: body += [rd, mm[0], mm[1], mm[2], mm[3]]
                else: body += [[mm[0]] + rd[:3], [mm[1]] + rd[3:], mm[2], mm[3]]
            p.extend(interleave(body, fill, ratio=2.0))
        p(f"v_mov_b32 v{VT+1}, {L_CNT}\nv_mov_b32 v{VT+4}, 1")
        self.lds_arrive(VT + 1, VT + 4)
        p.extend(mfma1(27))
        self.tagged_check(gloads, [GR + 1, GR + 3, GR + 5, GR + 7], VT + 1)
        self.stamp("granules")
        FA_, FB_ = AB + 8, AB + 12
        p(f"s_mov_b32 s{S_X}, 0x01000100\ns_mov_b32 s{S_Y}, 0x80008000\nv_cmp_gt_u32 vcc, 32, v0")
        for ti in range(2):
            g = GR + 2 * ti
            p(f"v_perm_b32 v{VT+1}, v{g}, v{g}, s{S_X}\nv_xor_b32 v{VT+1}, s{S_Y}, v{VT+1}\nv_cndmask_b32 v{FB_+2*ti}, 0, v{VT+1}, vcc")
            p(f"v_lshrrev_b32 v{VT+1}, 16, v{g}\nv_cndmask_b32 v{FB_+2*ti+1}, 0, v{VT+1}, vcc")
            p(f"v_and_b32 v{VT+1}, 0xffff0000, v{g}\nv_rcp_f32 v{VT+1}, v{VT+1}\nv_mul_f32 v{VC1+ti}, {LOG2E}, v{VT+1}")
        for fi in range(2):
            g = GR + 4 + 2 * fi
            p(f"v_cvt_pk_bf16_f32 v{VT+1}, v{g}, v{g}\nv_and_b32 v{VT+1}, 0xffff0000, v{VT+1}\nv_sub_f32 v{VT+1}, v{g}, v{VT+1}\nv_cvt_pk_bf16_f32 v{FA_+2*fi}, v{g}, v{VT+1}")
            p(f"v_mov_b32 v{FA_+2*fi+1}, v{VB1+fi}")
        for fi, ti in ((0, 0), (0, 1), (1, 0), (1, 1)):
            a = v(ACC + 32 * fi + 16 * ti, 16)
            p(f"v_mfma_f32_32x32x8_bf16 {a}, {v(FA_+2*fi,2)}, {v(FB_+2*ti,2)}, {a}")
        MT, MO = AB + 16, AB + 48
        def mish_group(a, ti, o, tset):
            t = MT + 16 * tset; u = t + 8
            r = []
            if c.mish_pk:
                sel = f"op_sel:[0,{ti}] op_sel_hi:[1,{ti}]"
                for i in range(0, 8, 2): r.append(f"v_pk_mul_f32 {v(t+i,2)}, {v(a+i,2)}, {v(VC1,2)} {sel}")
                for i in range(8): r.append(f"v_exp_f32 v{t+i}, v{t+i}")
                for i in range(0, 8, 2): r.append(f"v_pk_fma_f32 {v(u+i,2)}, {v(t+i,2)}, 0.5, 1.0 op_sel_hi:[1,0,0]")
                for i in range(0, 8, 2): r.append(f"v_pk_fma_f32 {v(u+i,2)}, {v(t+i,2)}, {v(u+i,2)}, 1.0 op_sel_hi:[1,1,0]")
                for i in range(8): r.append(f"v_rcp_f32 v{u+i}, v{u+i}")
                for i in range(0, 8, 2): r.append(f"v_pk_fma_f32 {v(u+i,2)}, {v(a+i,2)}, {v(u+i,2)}, {v(a+i,2)} neg_lo:[1,0,0] neg_hi:[1,0,0]")
            else:
                for i in range(8): r.append(f"v_mul_f32 v{t+i}, v{a+i}, v{VC1+ti}")
                for i in range(8): r.append(f"v_exp_f32 v{t+i}, v{t+i}")
                for i in range(8): r.append(f"v_fma_f32 v{u+i}, v{t+i}, 0.5, 1.0")
                for i in range(8): r.append(f"v_fma_f32 v{u+i}, v{t+i}, v{u+i}, 1.0")
                for i in range(8): r.append(f"v_rcp_f32 v{u+i}, v{u+i}")
                for i in range(8): r.append(f"v_fma_f32 v{u+i}, -v{a+i}, v{u+i}, v{a+i}")
            for i in range(4): r.append(f"v_cvt_pk_bf16_f32 v{o+i}, v{u+2*i}, v{u+2*i+1}")
            return "\n".join(r)
        stok = {}
        gi = 0
        for fi in range(2):
            for ti in range(2):
                for sh in range(2):
                    o = MO + 4 * (gi % 4)
                    p(mish_group(ACC + 32 * fi + 16 * ti + 8 * sh, ti, o, gi & 1))
                    stok[fi] = p.tok(f"buffer_store_dwordx4 {v(o,4)}, v{VL16}, {s(R_WS,4)}, s{S_ACTW} offen offset:{sh*2048+ti*1024} sc1")
                    if gi < 6: read_w2(2 * gi, p); read_w2(2 * gi + 1, p)
                    if 1 <= gi <= 6: p.wait(rtok[2 * gi - 1]); dma_w2(gi + 3, p)
                    gi += 1
            if fi == 0: p(f"s_add_u32 s{S_ACTW}, s{S_ACTW}, 4096")
        self.stamp("mish")
        p.wait(stok[0]); self.flag_store(S_FAW, VT)
        p(f"s_add_u32 s{S_FAW}, s{S_FAW}, 512")
        p.wait(stok[1]); self.flag_store(S_FAW, VT)
        self.stamp("flagA")
        self.poll_flags(S_FAR, 7)
        self.stamp("act0")
        def load_act(n, q):
            pn = n >> 1
            if n % 2 == 0: q(f"s_add_u32 s{S_Y}, s{S_ACTR}, {((pn%7)*4 + (pn//7)*2)*2048}")
            for ti in range(2):
                q(f"buffer_load_dwordx4 {v(AB+8*(n%8)+4*ti,4)}, v{VL16}, {s(R_WS,4)}, s{S_Y} offen offset:{(n&1)*2048+ti*1024} sc1")
        for n in range(8): load_act(n, p)
        for n in range(28):
            for di, ti in ((0, 0), (1, 0), (0, 1), (1, 1)):
                a = v(ACC + 32 * di + 16 * ti, 16)
                p(f"v_mfma_f32_32x32x16_bf16 {a}, {v(W2R+8*(n%12)+4*di,4)}, {v(AB+8*(n%8)+4*ti,4)}, {'0' if n == 0 else a}")
            if n == 6:
                p(f"s_add_u32 s{S_FAR}, s{S_FAR}, 512"); self.poll_flags(S_FAR, 7); self.stamp("act1")
            if n + 8 < 28: load_act(n + 8, p)
            if n % 2 == 0 and n >= 2 and (n >> 1) + 9 < 14:
                p.wait(rtok[n + 11]); dma_w2((n >> 1) + 9, p)
            if n + 12 < 28: read_w2(n + 12, p)
        self.stamp("gemm2")
        p(f"v_and_b32 v{VT}, 31, v0\nv_lshrrev_b32 v{VT+1}, 5, v0\nv_and_b32 v{VT+2}, 7, v0\nv_xor_b32 v{VT+1}, v{VT+1}, v{VT+2}\nv_bfe_u32 v{VT+2}, v0, 4, 1\nv_lshl_or_b32 v{VT+1}, v{VT+2}, 3, v{VT+1}")
        p(f"v_lshlrev_b32 v{VT+1}, 4, v{VT+1}\nv_lshl_add_u32 v{VT+1}, v{VT}, 8, v{VT+1}\nv_add_u32 v{VD}, s{S_RING}, v{VT+1}")
        for k in range(1, 8): p(f"v_xor_b32 v{VD+k}, {32*k}, v{VD}")
        for ti in range(2):
            for di in range(2):
                for g4 in range(4):
                    p(f"ds_write_b128 v{VD+4*di+g4}, {v(ACC+32*di+16*ti+4*g4,4)} offset:{ti*SLOT}")
        p("s_waitcnt lgkmcnt(0)\ns_barrier")
        self.stamp("barF")
        self.stamp_flush(1)
        p("s_endpgm")

    def role_b(self):
        p, c = self.p, self.c
        p.label("L_roleB")
        self.role_start(); self.stamp_begin("B")
        S_BW, S_CHN, S_MH, S_LDT, S_DSK, S_FXR, S_XTR, S_STW, S_FSW, S_FSR, S_STR, S_XO = range(64, 76)
        S_X, S_Y = 78, 79
        T = S_T
        VP, VSW, VSR, VG, VT = 2, 8, 24, 28, 50
        if c.prio_b: p(f"s_setprio {c.prio_b}")
        p(f"s_sub_u32 s{S_BW}, s{S_WAVE}, 4\ns_lshr_b32 s{S_CHN}, s{S_BW}, 1\ns_and_b32 s{S_MH}, s{S_BW}, 1")
        p(f"s_lshl_b32 s{T}, s{S_CP}, 2\ns_add_u32 s{T+1}, s{T}, s{S_BW}\ns_lshl_b32 s{T+1}, s{T+1}, 8\nv_lshl_add_u32 v1, v0, 2, s{T+1}")
        for i, ptr in enumerate((P_ARE, P_AIM, P_BRE, P_BIM, P_CRE, P_CIM)):
            p(f"global_load_dword v{VP+i}, v1, {s(ptr,2)}")
        p(f"s_load_dword s{S_LDT}, {s(P_LDT,2)}, s{T}\ns_load_dword s{S_DSK}, {s(P_DSK,2)}, s{T}")
        srd(p, R_LD, P_U, 2048 * 896); srd(p, R_2, P_OUT, 2048 * 896)
        p(f"s_lshl_b32 s{T}, s{S_BW}, 13\ns_add_u32 s{T}, s{T}, {L_BR}\nv_lshl_add_u32 v{VSW}, v0, 3, s{T}")
        for r in range(1, 16): p(f"v_xor_b32 v{VSW+r}, {16*r}, v{VSW}")
        p(f"v_and_b32 v{VT}, 15, v0\nv_lshrrev_b32 v{VT+1}, 4, v0\nv_xor_b32 v{VT+2}, v{VT}, v{VT+1}\nv_lshlrev_b32 v{VT+2}, 4, v{VT+2}\nv_lshl_add_u32 v{VT+2}, v{VT}, 9, v{VT+2}\nv_add_u32 v{VSR}, s{T}, v{VT+2}")
        for k in range(1, 4): p(f"v_xor_b32 v{VSR+k}, {64*k}, v{VSR}")
        p(f"s_lshl_b32 s{T}, s{S_MH}, 10\ns_sub_u32 s{T}, 2047, s{T}\nv_lshlrev_b32 v{VT}, 3, v0\nv_sub_u32 v{VT}, s{T}, v{VT}")
        p(f"s_mul_i32 s{T}, s{S_CHN}, 2688\ns_add_u32 s{T}, s{T}, {L_KC+16}\ns_movk_i32 s{T+1}, 128")
        for task in range(2):
            for i in range(11):
                d = VG + 11 * task + i
                p(f"v_subrev_u32 v{d}, {512*task+i}, v{VT}\nv_cvt_f32_i32 v{VT+1}, v{d}\nv_min_i32 v{d}, s{T+1}, v{d}\nv_cvt_pk_bf16_f32 v{VT+1}, v{VT+1}, v{VT+1}")
                p(f"v_ashrrev_i32 v{VT+1}, 16, v{VT+1}\nv_subrev_u32 v{VT+1}, 17024, v{VT+1}\nv_max_i32 v{d}, v{d}, v{VT+1}\nv_lshl_add_u32 v{d}, v{d}, 2, s{T}")
        p(f"s_lshr_b32 s{T}, s{S_CP}, 4\ns_lshl_b32 s{S_FXR}, s{T}, 2\ns_add_u32 s{S_FXR}, s{S_FXR}, s{S_BW}\ns_lshl_b32 s{S_FXR}, s{S_FXR}, 5\ns_add_u32 s{S_FXR}, s{S_FXR}, {WS_FX}")
        p(f"s_lshl_b32 s{S_XTR}, s{S_CP}, 3\ns_add_u32 s{S_XTR}, s{S_XTR}, s{S_BW}\ns_lshl_b32 s{S_XTR}, s{S_XTR}, 10\ns_add_u32 s{S_XTR}, s{S_XTR}, {WS_XT}")
        p(f"s_lshl_b32 s{S_STW}, s{S_CP}, 2\ns_add_u32 s{S_STW}, s{S_STW}, s{S_BW}\ns_lshl_b32 s{S_STW}, s{S_STW}, 11\ns_add_u32 s{S_STW}, s{S_STW}, {WS_ST}")
        p(f"s_mul_i32 s{S_FSW}, s{S_BW}, 14\ns_add_u32 s{S_FSW}, s{S_FSW}, s{T}\ns_lshl_b32 s{S_FSW}, s{S_FSW}, 5\ns_and_b32 s{T+1}, s{S_CP}, 15\ns_add_u32 s{S_FSW}, s{S_FSW}, s{T+1}\ns_lshl_b32 s{S_FSW}, s{S_FSW}, 2\ns_add_u32 s{S_FSW}, s{S_FSW}, {WS_FS}")
        p(f"s_lshl_b32 s{T}, s{S_C2}, 1\ns_add_u32 s{T}, s{T}, s{S_CHN}")
        p(f"s_lshr_b32 s{T+1}, s{S_R2}, 3\ns_mul_i32 s{S_FSR}, s{T+1}, 14\ns_add_u32 s{S_FSR}, s{S_FSR}, s{T}\ns_lshl_b32 s{S_FSR}, s{S_FSR}, 7\ns_add_u32 s{S_FSR}, s{S_FSR}, {WS_FS}")
        p(f"s_lshl_b32 s{S_STR}, s{T}, 9\ns_add_u32 s{S_STR}, s{S_STR}, s{S_R2}\ns_lshl_b32 s{S_STR}, s{S_STR}, 1\ns_add_u32 s{S_STR}, s{S_STR}, s{S_MH}\ns_lshl_b32 s{S_STR}, s{S_STR}, 7\ns_add_u32 s{S_STR}, s{S_STR}, {WS_ST}")
        p(f"s_lshl_b32 s{S_XO}, s{S_R2}, 3\ns_add_u32 s{S_XO}, s{S_XO}, s{S_MH}\ns_mul_i32 s{S_XO}, s{S_XO}, {8*896}\ns_lshl_b32 s{T}, s{T}, 6\ns_add_u32 s{S_XO}, s{S_XO}, s{T}")
        self.make_tag()
        p(f"s_lshl_b32 s{T}, s{S_CHN}, 4\ns_lshr_b32 s{S_LDT}, s{S_LDT}, s{T}\ns_lshl_b32 s{S_LDT}, s{S_LDT}, 16\ns_lshr_b32 s{S_DSK}, s{S_DSK}, s{T}\ns_lshl_b32 s{S_DSK}, s{S_DSK}, 16")
        VDT = 60
        p(f"v_mov_b32 v{VDT}, {LOG2E}\nv_mul_f32 v{VDT}, s{S_LDT}, v{VDT}\nv_exp_f32 v{VDT}, v{VDT}\nv_cvt_pk_bf16_f32 v{VDT}, v{VDT}, v{VDT}\nv_and_b32 v{VDT}, 0xffff0000, v{VDT}")
        self.stamp("pre")
        Z1, Z2, Z4, Z8, Z128, XB, XC, XD, TM, CV = 64, 68, 72, 76, 80, 84, 88, 92, 96, 100
        AL, BE, UB = 108, 110, 112
        YF, XF, KA = 128, 160, 192
        def unpack(d, src): p(f"v_lshlrev_b32 v{d}, 16, v{src}\nv_and_b32 v{d+1}, 0xffff0000, v{src}")
        def cmul(d, a, b):
            p(f"v_pk_mul_f32 {v(TM,2)}, {v(a,2)}, {v(b,2)}\nv_pk_mul_f32 {v(TM+2,2)}, {v(a,2)}, {v(b+2,2)}")
            p(f"v_pk_fma_f32 {v(d,2)}, {v(a+2,2)}, {v(b+2,2)}, {v(TM,2)} neg_lo:[1,0,0] neg_hi:[1,0,0]")
            assert d != b
            p(f"v_pk_fma_f32 {v(d+2,2)}, {v(a+2,2)}, {v(b,2)}, {v(TM+2,2)}")
        cvn = [0]
        def put(row, a, conj):
            o = CV + 2 * (cvn[0] % 4); cvn[0] += 1
            ng = "-" if conj else ""
            p(f"v_cvt_pk_bf16_f32 v{o}, v{a}, {ng}v{a+2}\nv_cvt_pk_bf16_f32 v{o+1}, v{a+1}, {ng}v{a+3}\nds_write_b64 v{VSW+row}, {v(o,2)} offset:{row*512}")
        def getfr(base):
            for fr in range(8): p(f"ds_read_b128 {v(base+4*fr,4)}, v{VSR+(fr&3)} offset:{(fr>>2)*256}")
        def kmfma(tile):
            a = v(KA + 4 * tile, 4)
            for fr in range(8): p(f"v_mfma_f32_16x16x32_bf16 {a}, {v(XF+4*fr,4)}, {v(YF+4*fr,4)}, {'0' if fr == 0 else a}")
        unpack(AL, VP); unpack(BE, VP + 1)
        self.stamp("params")
        dts = "op_sel_hi:[1,0]"
        p(f"v_pk_mul_f32 {v(AL,2)}, {v(AL,2)}, {v(VDT,2)} {dts}\nv_pk_mul_f32 {v(BE,2)}, {v(BE,2)}, {v(VDT,2)} {dts}")
        for m in range(2): p(f"v_mul_f32 v{AL+m}, {LOG2E}, v{AL+m}\nv_mul_f32 v{BE+m}, 0.15915494, v{BE+m}")
        def zpow(d, lg):
            for m in range(2):
                if lg: p(f"v_ldexp_f32 v{TM+m}, v{AL+m}, {lg}\nv_ldexp_f32 v{TM+2+m}, v{BE+m}, {lg}")
                a, b = (TM + m, TM + 2 + m) if lg else (AL + m, BE + m)
                p(f"v_exp_f32 v{TM+m}, v{a}\nv_fract_f32 v{TM+2+m}, v{b}")
            for m in range(2): p(f"v_cos_f32 v{d+m}, v{TM+2+m}\nv_sin_f32 v{d+2+m}, v{TM+2+m}")
            p(f"v_pk_mul_f32 {v(d,2)}, {v(d,2)}, {v(TM,2)}\nv_pk_mul_f32 {v(d+2,2)}, {v(d+2,2)}, {v(TM,2)}")
        zpow(Z8, 3)
        p(f"v_mov_b32 v{CV+6}, 0x3f80\nv_mov_b32 v{CV+7}, 0x3f80\nds_write_b64 v{VSW}, {v(CV+6,2)}")
        put(1, Z8, False)
        prev = Z8
        for r in range(2, 16):
            cmul(XB, prev, Z8); prev = XB; put(r, XB, False)
        getfr(YF)
        zpow(Z1, 0); zpow(Z128, 7)
        unpack(UB, VP + 2); unpack(UB + 2, VP + 3); unpack(UB + 4, VP + 4); unpack(UB + 6, VP + 5)
        cmul(XC, UB, UB + 4)
        p(f"v_pk_mul_f32 {v(XC,2)}, {v(XC,2)}, {v(VDT,2)} {dts}\nv_pk_mul_f32 {v(XC+2,2)}, {v(XC+2,2)}, {v(VDT,2)} {dts}")
        cmul(XB, XC, Z128)
        put(0, XC, True); put(8, XB, True)
        prev = XB
        for r in range(1, 8):
            cmul(XC, XC, Z1); put(r, XC, True)
            cmul(XD, prev, Z1); prev = XD; put(8 + r, XD, True)
        getfr(XF)
        cmul(Z2, Z1, Z1); cmul(Z4, Z2, Z2)
        first = True
        for k in range(2):
            cmul(XB, XB, Z128)
            if first: kmfma(0); first = False
            put(4 * k, XB, True); prev = XB
            for r in range(1, 4): cmul(XC, prev, Z2); prev = XC; put(4 * k + r, XC, True)
        for k in range(4):
            cmul(XB, XB, Z128); put(8 + 2 * k, XB, True)
            cmul(XC, XB, Z4); put(9 + 2 * k, XC, True)
        getfr(XF)
        for k in range(9):
            cmul(XB, XB, Z128)
            if k == 2: kmfma(1)
            put(k, XB, True)
        getfr(XF)
        VK = VSW
        p(f"s_mul_i32 s{T}, s{S_CHN}, 2688\ns_add_u32 s{T}, s{T}, {L_KC+16}\nv_and_b32 v{VT}, 15, v0\nv_lshrrev_b32 v{VT+1}, 4, v0\nv_cmp_gt_u32 vcc, 32, v0")
        p(f"v_bfe_u32 v{VT+2}, v0, 4, 1\nv_lshlrev_b32 v{VT+2}, 2, v{VT+2}\nv_lshl_add_u32 v{VT+2}, v{VT}, 3, v{VT+2}\nv_lshrrev_b32 v{VT+3}, 5, v0\nv_lshl_add_u32 v{VT+2}, v{VT+3}, 7, v{VT+2}\nv_lshl_add_u32 v{VK}, v{VT+2}, 2, s{T}")
        p(f"v_lshlrev_b32 v{VT+2}, 2, v{VT}\nv_lshlrev_b32 v{VT+3}, 1, v{VT}\nv_cndmask_b32 v{VT+2}, v{VT+3}, v{VT+2}, vcc\nv_lshl_add_u32 v{VT+2}, v{VT+1}, 6, v{VT+2}\nv_lshl_add_u32 v{VK+1}, v{VT+2}, 2, s{T}")
        p(f"v_mov_b32 v{VT+3}, 128\nv_cndmask_b32 v{VT+3}, v{VT+3}, 8, vcc\nv_add_u32 v{VK+2}, v{VK+1}, v{VT+3}")
        p(f"v_lshl_add_u32 v{VT+2}, v{VT+1}, 6, v{VT}\nv_lshl_add_u32 v{VK+3}, v{VT+2}, 2, s{T}")
        kmfma(2)
        self.stamp("kgen")
        p("s_waitcnt lgkmcnt(0)\ns_barrier")
        def kscatter(op):
            for r in range(4): p(f"{op} v{VK}, v{KA+r} offset:{4*r}")
            for r in range(4): p(f"{op} v{VK+1+(r>>1)}, v{KA+4+r} offset:{1024+4*(r&1)}")
            p("s_mov_b32 exec_hi, 0")
            for r in range(1, 4): p(f"{op} v{VK+3}, v{KA+8+r} offset:{2048+64*r}")
            p("s_mov_b32 exec_hi, 0xffff")
            p(f"{op} v{VK+3}, v{KA+8} offset:2048")
            p("s_mov_b64 exec, -1")
        VZ = 116
        l0, l1 = self.lab("mh1"), self.lab("mhj")
        for i in range(4): p(f"v_mov_b32 v{VZ+i}, 0")
        p(f"s_cmp_lg_u32 s{S_MH}, 0\ns_cbranch_scc1 {l0}")
        p.alt_begin()
        p(f"v_mov_b32 v{VT}, s{S_DSK}\nv_cmp_eq_u32 vcc, 0, v0\nv_cndmask_b32 v{VT}, 0, v{VT}, vcc\nv_add_f32 v{KA}, v{KA}, v{VT}")
        kscatter("ds_write_b32")
        p("s_waitcnt lgkmcnt(0)\ns_barrier")
        p(f"s_branch {l1}")
        p.alt_else()
        p.label(l0)
        p(f"s_mul_i32 s{T}, s{S_CHN}, 4608\ns_add_u32 s{T}, s{T}, {L_U}\nv_lshl_add_u32 v{VT}, v0, 3, s{T}\nds_write_b64 v{VT}, {v(VZ,2)}")
        p(f"s_mul_i32 s{T}, s{S_CHN}, 2688\ns_add_u32 s{T}, s{T}, {L_KC}\nv_mov_b32 v{VT+1}, s{T}\nv_mov_b32 v{VT+2}, {L_CNT}\nds_write_b128 v{VT+1}, {v(VZ,4)}\nds_write_b32 v{VT+2}, v{VZ}")
        p("s_waitcnt lgkmcnt(0)\ns_barrier")
        kscatter("ds_add_f32")
        p.alt_end()
        p.label(l1)
        p("s_waitcnt lgkmcnt(0)\ns_barrier")
        GV, PK = 64, 128
        for k in range(22): p(f"ds_read_b32 v{GV+k}, v{VG+k}")
        for task in range(2):
            if task == 1: p("s_barrier")
            for cp_ in range(4):
                for j in range(4):
                    a = GV + 11 * task + cp_ + 2 * j
                    p(f"v_cvt_pk_bf16_f32 v{PK+16*task+4*cp_+j}, v{a}, v{a+1}")
        p(f"s_mul_i32 s{T}, s{S_CHN}, 16640\ns_add_u32 s{T}, s{T}, {L_TAB}\ns_lshl_b32 s{T+1}, s{S_MH}, 11\ns_add_u32 s{T+1}, s{T+1}, s{T}\nv_lshl_add_u32 v{VT}, v0, 4, s{T+1}")
        p(f"v_lshrrev_b32 v{VT+1}, 1, v0\nv_mul_u32_u24 v{VT+1}, 4160, v{VT+1}\nv_and_b32 v{VT+2}, 1, v0\nv_lshlrev_b32 v{VT+2}, 4, v{VT+2}\nv_add3_u32 v{VT+1}, v{VT+1}, v{VT+2}, s{T}")
        p("s_barrier")
        for task in range(2):
            for cp_ in range(4):
                p(f"ds_write_b128 v{VT}, {v(PK+16*task+4*cp_,4)} offset:{cp_*4160+task*1024}")
        p(f"s_mov_b64 exec, 0xff\nds_write_b128 v{VT+1}, {v(VZ,4)} offset:4096\ns_mov_b64 exec, -1")
        VL16, SG, SR = 1, 64, 80
        p(f"v_lshlrev_b32 v{VL16}, 4, v0\ns_lshl_b32 s{S_X}, s{S_BW}, 12\ns_add_u32 s{S_X}, s{S_X}, {WS_STAT}")
        sloads = "\n".join(f"buffer_load_dwordx4 {v(SG+4*i,4)}, v{VL16}, {s(R_WS,4)}, s{S_X} offen offset:{1024*i} sc1" for i in range(4))
        p(sloads)
        VTA, VUA, VUW, VCN, VONE, VEXW, VEXR, VTAG = 2, 3, 4, 5, 6, 7, 8, 9
        p(f"v_and_b32 v{VT}, 15, v0\nv_lshrrev_b32 v{VT+1}, 4, v0\nv_sub_u32 v{VT+2}, 3, v{VT}\nv_and_b32 v{VT+2}, 3, v{VT+2}")
        p(f"v_mul_u32_u24 v{VT+3}, {4160-2}, v{VT+2}\nv_lshl_add_u32 v{VT+3}, v{VT+1}, 4, v{VT+3}\nv_lshlrev_b32 v{VT+2}, 1, v{VT}\nv_sub_u32 v{VT+3}, v{VT+3}, v{VT+2}")
        p(f"s_lshl_b32 s{T+1}, s{S_MH}, 8\ns_sub_u32 s{T}, s{T}, s{T+1}\ns_add_u32 s{T}, s{T}, {2*(2031-1792-96)}\nv_add_u32 v{VTA}, s{T}, v{VT+3}")
        p(f"s_mul_i32 s{T}, s{S_CHN}, 4608\ns_sub_u32 s{T}, s{T}, s{T+1}\ns_add_u32 s{T}, s{T}, {L_U+2*(240-96)}\nv_lshlrev_b32 v{VT+2}, 5, v{VT}\nv_lshl_add_u32 v{VT+2}, v{VT+1}, 4, v{VT+2}\nv_add_u32 v{VUA}, s{T}, v{VT+2}")
        p(f"s_lshl_b32 s{T}, s{S_BW}, 10\ns_add_u32 s{T}, s{T}, {L_U+512}\nv_add_u32 v{VUW}, s{T}, v{VL16}")
        p(f"v_mov_b32 v{VCN}, {L_CNT}\nv_mov_b32 v{VONE}, 1\nv_mov_b32 v{VTAG}, s{S_TAG}")
        p(f"s_lshl_b32 s{T}, s{S_BW}, 13\ns_add_u32 s{T}, s{T}, {L_EX}\nv_add_u32 v{VEXW}, s{T}, v{VL16}\ns_lshl_b32 s{T}, s{S_BW}, 11\ns_add_u32 s{T}, s{T}, {L_EX}\nv_add_u32 v{VEXR}, s{T}, v{VL16}")
        p("s_waitcnt lgkmcnt(0)\ns_barrier")
        TF, UF, CA = 96, 160, 224
        def read_t(ph):
            r = []
            for a in range(8):
                for h in range(2):
                    r.append(I(f"ds_read_b64 {v(TF+32*(ph&1)+4*a+2*h,2)}, v{VTA} offset:{2*(256*(7-a)+32*(3-ph))+8*h}"))
            return r
        def read_u(ph):
            return [I(f"ds_read_b128 {v(UF+32*(ph&1)+4*b,4)}, v{VUA} offset:{2*(256*b+32*(3-ph))}") for b in range(8)]
        p.extend(read_t(0))
        p("s_barrier")
        p.extend(read_t(1))
        self.stamp("bar6")
        self.tagged_check(sloads, [SG + 2 * i + 1 for i in range(8)], VT)
        for i in range(8):
            p(f"v_and_b32 v{SR+i}, 0xffff0000, v{SG+2*i}\nv_rcp_f32 v{SR+i}, v{SR+i}\nv_lshlrev_b32 v{SR+8+i}, 16, v{SG+2*i}\nv_mul_f32 v{SR+8+i}, -v{SR+8+i}, v{SR+i}")
        self.stamp("stats")
        self.poll_flags(S_FXR, 8)
        self.stamp("fx")
        XR = 10
        p(f"buffer_load_dwordx4 {v(XR,4)}, v{VL16}, {s(R_WS,4)}, s{S_XTR} offen sc1\ns_add_u32 s{S_XTR}, s{S_XTR}, 4096\nbuffer_load_dwordx4 {v(XR+4,4)}, v{VL16}, {s(R_WS,4)}, s{S_XTR} offen sc1")
        for ch in range(2):
            for j in range(4):
                a = SG + 8 * ch + 2 * j; x = XR + 4 * ch + j
                p(f"v_lshlrev_b32 v{a}, 16, v{x}\nv_and_b32 v{a+1}, 0xffff0000, v{x}\nv_fma_f32 v{a}, v{a}, v{SR+2*j}, v{SR+8+2*j}\nv_fma_f32 v{a+1}, v{a+1}, v{SR+2*j+1}, v{SR+9+2*j}\nv_cvt_pk_bf16_f32 v{x}, v{a}, v{a+1}")
            p(f"ds_write_b128 v{VUW}, {v(XR+4*ch,4)} offset:{4608*ch}")
        self.lds_arrive(VCN, VONE)
        self.lds_wait(VCN, VT, 8)
        self.stamp("u")
        p.extend(read_u(0))
        for ph in range(4):
            mm = []
            for b in range(8):
                for a in range(8 - b):
                    acc = v(CA + 4 * (a + b), 4)
                    mm.append(I(f"v_mfma_f32_16x16x32_bf16 {acc}, {v(UF+32*(ph&1)+4*b,4)}, {v(TF+32*(ph&1)+4*a,4)}, {'0' if (ph == 0 and b == 0) else acc}"))
            fill = []
            if ph < 3: fill = (read_t(ph + 1) if ph >= 1 else []) + read_u(ph + 1)
            p.extend(interleave(mm, fill, ratio=1.0))
        self.stamp("conv")
        for cc in range(8): p(f"ds_write_b128 v{VEXW}, {v(CA+4*cc,4)} offset:{1024*cc}")
        self.lds_arrive(VCN, VONE)
        VXO, VPA, VSA, XI, RG = 10, 11, 13, 16, 24
        p(f"v_bfe_u32 v{VT}, v0, 2, 2\nv_lshrrev_b32 v{VT+1}, 4, v0\nv_and_b32 v{VT+2}, 3, v0")
        p(f"v_lshl_add_u32 v{VT+3}, v{VT}, 4, v{VT+1}\nv_mul_u32_u24 v{VXO}, 896, v{VT+3}\nv_lshl_add_u32 v{VXO}, v{VT+2}, 4, v{VXO}")
        for ps in range(2): p(f"buffer_load_dwordx4 {v(XI+4*ps,4)}, v{VXO}, {s(R_LD,4)}, s{S_XO} offen offset:{ps*4*896}")
        p(f"s_lshr_b32 s{T}, s{S_R2}, 3\ns_lshl_b32 s{T}, s{T}, 12\ns_and_b32 s{T+1}, s{S_R2}, 7\ns_lshl_b32 s{T+1}, s{T+1}, 3\ns_add_u32 s{T+1}, s{T+1}, s{S_MH}\ns_lshl_b32 s{T+1}, s{T+1}, 4\ns_add_u32 s{T}, s{T}, s{T+1}\ns_add_u32 s{S_X}, s{T}, {WS_STAT}")
        p(f"v_lshrrev_b32 v{VT+4}, 5, v0\nv_lshlrev_b32 v{VT+4}, 10, v{VT+4}\nv_lshl_add_u32 v{VT+4}, v{VT}, 5, v{VT+4}\nv_and_b32 v{VT+5}, 1, v{VT+1}\nv_lshl_add_u32 v{VT+4}, v{VT+5}, 3, v{VT+4}")
        for ps in range(2): p(f"buffer_load_dword v{RG+ps}, v{VT+4}, {s(R_WS,4)}, s{S_X} offen offset:{ps*2048} sc1")
        self.lds_wait(VCN, VT + 6, 12)
        EXV = 96
        for k in range(2):
            for w in range(4): p(f"ds_read_b128 {v(EXV+16*k+4*w,4)}, v{VEXR} offset:{8192*w+1024*k}")
        for k in range(2):
            b = EXV + 16 * k
            for r in range(4): p(f"v_add_f32 v{b+r}, v{b+r}, v{b+4+r}\nv_add_f32 v{b+8+r}, v{b+8+r}, v{b+12+r}")
            for r in range(4): p(f"v_cvt_pk_bf16_f32 v{b+4+r}, v{b+r}, v{b+8+r}")
            sttok = p.tok(f"buffer_store_dwordx4 {v(b+4,4)}, v{VL16}, {s(R_WS,4)}, s{S_STW} offen offset:{1024*k} sc1")
        self.stamp("st")
        p(f"s_lshl_b32 s{T}, s{S_MH}, 3\nv_and_b32 v{VT+4}, 1, v{VT}\nv_lshl_add_u32 v{VT+5}, v{VT+4}, 4, v{VT+1}\nv_add_u32 v{VT+5}, s{T}, v{VT+5}\nv_lshlrev_b32 v{VT+5}, 8, v{VT+5}")
        p(f"v_lshrrev_b32 v{VT+6}, 1, v{VT}\nv_lshl_add_u32 v{VT+5}, v{VT+6}, 15, v{VT+5}")
        p(f"v_xor_b32 v{VT+4}, s{S_CHN}, v{VT+4}\nv_lshlrev_b32 v{VT+4}, 3, v{VT+4}\nv_lshl_add_u32 v{VT+4}, v{VT+2}, 1, v{VT+4}\nv_xor_b32 v{VT+4}, v{VT+4}, v{VT+1}\nv_lshl_add_u32 v{VPA}, v{VT+4}, 4, v{VT+5}")
        VP4 = 28
        for ps in range(2):
            for e in range(2): p(f"v_xor_b32 v{VP4+2*ps+e}, {64*ps+16*e}, v{VPA}")
        p(f"s_mul_i32 s{T}, s{S_BW}, 2176\ns_add_u32 s{T}, s{T}, {L_STR}")
        p(f"v_lshrrev_b32 v{VT+4}, 5, v0\nv_lshl_add_u32 v{VT+4}, v{VT+4}, 5, v{VL16}\nv_add_u32 v{VSA}, s{T}, v{VT+4}")
        p(f"v_mul_u32_u24 v{VT+4}, 544, v{VT+2}\nv_and_b32 v{VT+5}, 60, v0\nv_add3_u32 v{VSA+1}, v{VT+4}, v{VT+5}, s{T}")
        p(f"v_lshrrev_b32 v{VT+4}, 3, v0\nv_lshlrev_b32 v{VT+4}, 13, v{VT+4}\nv_and_b32 v{VT+5}, 7, v0\nv_lshl_add_u32 v{VSA+2}, v{VT+5}, 4, v{VT+4}")
        XF32, RR, SV, SRF = 128, 26, 32, 144
        for ps in range(2):
            for j in range(4):
                p(f"v_lshlrev_b32 v{XF32+8*ps+2*j}, 16, v{XI+4*ps+j}\nv_and_b32 v{XF32+8*ps+2*j+1}, 0xffff0000, v{XI+4*ps+j}")
            p(f"v_and_b32 v{RG+ps}, 0xffff0000, v{RG+ps}\nv_rcp_f32 v{RG+ps}, v{RG+ps}\nv_mul_f32 v{RR+ps}, {LOG2E | 0x80000000}, v{RG+ps}")
        p.wait(sttok); self.flag_store(S_FSW, VTAG)
        self.stamp("flagS")
        self.poll_flags(S_FSR, 16)
        self.stamp("fs")
        p(f"buffer_load_dwordx4 {v(SV,4)}, v{VSA+2}, {s(R_WS,4)}, s{S_STR} offen sc1\ns_add_u32 s{S_STR}, s{S_STR}, 65536\nbuffer_load_dwordx4 {v(SV+4,4)}, v{VSA+2}, {s(R_WS,4)}, s{S_STR} offen sc1")
        for j in range(2): p(f"ds_write_b128 v{VSA}, {v(SV+4*j,4)} offset:{1088*j}")
        for ps in range(2):
            for i in range(4): p(f"ds_read_b32 v{SV+8+4*ps+i}, v{VSA+1} offset:{128*i+64*ps}")
        for ps in range(2):
            for i in range(4):
                a = SRF + 8 * ps + 2 * i; x = SV + 8 + 4 * ps + i
                p(f"v_lshlrev_b32 v{a}, 16, v{x}\nv_and_b32 v{a+1}, 0xffff0000, v{x}\nv_mul_f32 v{a}, v{a}, v{RG+ps}\nv_mul_f32 v{a+1}, v{a+1}, v{RG+ps}")
        self.stamp("sready")
        p("s_barrier")
        PV = 160
        for ps in range(2):
            for w in range(4):
                for e in range(2):
                    p(f"ds_read_b128 {v(PV+32*ps+8*w+4*e,4)}, v{VP4+2*ps+e} offset:{8192*w+1024*ps}")
        for ps in range(2):
            b = PV + 32 * ps
            sel = f"op_sel:[0,{ps}] op_sel_hi:[1,{ps}]"
            for i in range(0, 8, 2): p(f"v_pk_add_f32 {v(b+i,2)}, {v(b+i,2)}, {v(b+8+i,2)}")
            for i in range(0, 8, 2): p(f"v_pk_add_f32 {v(b+16+i,2)}, {v(b+16+i,2)}, {v(b+24+i,2)}")
            for i in range(0, 8, 2): p(f"v_pk_add_f32 {v(b+i,2)}, {v(b+i,2)}, {v(b+16+i,2)}")
            for i in range(0, 8, 2): p(f"v_pk_mul_f32 {v(b+8+i,2)}, {v(b+i,2)}, {v(RR,2)} {sel}")
            for i in range(8): p(f"v_exp_f32 v{b+8+i}, v{b+8+i}")
            for i in range(0, 8, 2): p(f"v_pk_mul_f32 {v(b+i,2)}, {v(b+i,2)}, {v(SRF+8*ps+i,2)}")
            for i in range(0, 8, 2): p(f"v_pk_add_f32 {v(b+8+i,2)}, {v(b+8+i,2)}, 1.0 op_sel_hi:[1,0]")
            for i in range(8): p(f"v_rcp_f32 v{b+8+i}, v{b+8+i}")
            for i in range(0, 8, 2): p(f"v_pk_fma_f32 {v(b+i,2)}, {v(b+i,2)}, {v(b+8+i,2)}, {v(XF32+8*ps+i,2)}")
            for i in range(4): p(f"v_cvt_pk_bf16_f32 v{b+16+i}, v{b+2*i}, v{b+2*i+1}")
            p(f"buffer_store_dwordx4 {v(b+16,4)}, v{VXO}, {s(R_2,4)}, s{S_XO} offen offset:{ps*4*896}")
        self.stamp("end")
        self.stamp_flush(1)
        p("s_endpgm")

    def role_h(self):
        p, c = self.p, self.c
        p.label("L_helper")
        self.role_start(); self.stamp_begin("H")
        S_HH, S_X, S_Y, S_ONE, S_LO, S_HI = 64, 65, 66, 67, 68, 69
        T = S_T
        VT, XD, WD, AC = 1, 16, 48, 80
        srd(p, R_LD, P_U, 2048 * 896); srd(p, R_2, P_W1, 448 * 3584)
        p(f"s_lshl_b32 s{S_HH}, s{S_XCD}, 2\ns_add_u32 s{S_HH}, s{S_HH}, s{S_J}\ns_sub_u32 s{S_HH}, s{S_HH}, 28")
        p(f"s_lshl_b32 s{T}, s{S_HH}, 1\ns_and_b32 s{T+1}, s{S_WAVE}, 1\ns_add_u32 s{T}, s{T}, s{T+1}\ns_lshl_b32 s{T}, s{T}, 5\ns_and_b32 s{S_X}, s{S_WAVE}, 6\ns_add_u32 s{T}, s{T}, s{S_X}\ns_mul_i32 s{S_X}, s{T}, 896")
        p(f"v_lshrrev_b32 v{VT}, 4, v0\nv_bfe_u32 v{VT+1}, v0, 3, 1\nv_lshl_add_u32 v{VT}, v{VT}, 3, v{VT+1}\nv_mul_u32_u24 v{VT}, 896, v{VT}\nv_and_b32 v{VT+1}, 7, v0\nv_lshl_add_u32 v{VT}, v{VT+1}, 4, v{VT}")
        for i in range(7): p(f"buffer_load_dwordx4 {v(XD+4*i,4)}, v{VT}, {s(R_LD,4)}, s{S_X} offen offset:{128*i}")
        p(f"s_min_u32 s{T}, s{S_HH}, 27\ns_lshl_b32 s{T}, s{T}, 7\ns_mul_i32 s{S_Y}, s{S_WAVE}, {56*3584}\ns_add_u32 s{S_Y}, s{S_Y}, s{T}")
        p(f"v_lshrrev_b32 v{VT+2}, 3, v0\nv_mul_u32_u24 v{VT+2}, 3584, v{VT+2}\nv_lshl_add_u32 v{VT+2}, v{VT+1}, 4, v{VT+2}")
        for i in range(7):
            p(f"buffer_load_dwordx4 {v(WD+4*i,4)}, v{VT+2}, {s(R_2,4)}, s{S_Y} offen")
            if i < 6: p(f"s_add_u32 s{S_Y}, s{S_Y}, {8*3584}")
        p(f"s_mov_b32 s{S_ONE}, 0x3f803f80\ns_mov_b32 s{S_LO}, 0x00003f80\ns_mov_b32 s{S_HI}, 0x3f800000")
        p(f"s_lshr_b32 s{T}, s{S_HH}, 3\ns_lshl_b32 s{T}, s{T}, 2\ns_lshr_b32 s{S_X}, s{S_WAVE}, 1\ns_add_u32 s{T}, s{T}, s{S_X}\ns_lshl_b32 s{T}, s{T}, 3\ns_and_b32 s{S_X}, s{S_HH}, 7\ns_add_u32 s{T}, s{T}, s{S_X}")
        p(f"s_lshl_b32 s{T}, s{T}, 1\ns_add_u32 s{T}, s{T}, s{T+1}\ns_lshl_b32 s{T}, s{T}, 6\ns_add_u32 s{S_X}, s{T}, {WS_STAT}")
        self.make_tag()
        self.stamp("issued")
        for i in range(4): p(f"v_mov_b32 v{AC+i}, 0")
        for i in range(28):
            p(f"v_dot2_f32_bf16 v{AC+(i&1)}, v{XD+i}, s{S_ONE}, v{AC+(i&1)}\nv_dot2_f32_bf16 v{AC+2+(i&1)}, v{XD+i}, v{XD+i}, v{AC+2+(i&1)}")
        p(f"v_add_f32 v{AC}, v{AC}, v{AC+1}\nv_add_f32 v{AC+1}, v{AC+2}, v{AC+3}")
        for pat in ("quad_perm:[1,0,3,2]", "quad_perm:[2,3,0,1]", "row_half_mirror"):
            for k in range(2): p(f"v_add_f32_dpp v{AC+k}, v{AC+k}, v{AC+k} {pat} row_mask:0xf bank_mask:0xf")
        inv = 0x3b124925
        p(f"v_mul_f32 v{AC}, {inv}, v{AC}\nv_mul_f32 v{AC+1}, {inv}, v{AC+1}\nv_fma_f32 v{AC+1}, -v{AC}, v{AC}, v{AC+1}\nv_max_f32 v{AC+1}, 0, v{AC+1}")
        p(f"v_cvt_pk_bf16_f32 v{AC+1}, v{AC+1}, v{AC+1}\nv_and_b32 v{AC+1}, 0xffff0000, v{AC+1}\nv_add_f32 v{AC+1}, 0x3727c5ac, v{AC+1}")
        p(f"v_cvt_pk_bf16_f32 v{AC+1}, v{AC+1}, v{AC+1}\nv_and_b32 v{AC+1}, 0xffff0000, v{AC+1}\nv_sqrt_f32 v{AC+1}, v{AC+1}")
        p(f"v_mov_b32 v{AC+3}, s{S_TAG}\nv_cvt_pk_bf16_f32 v{AC+2}, v{AC}, v{AC+1}")
        p(f"s_mov_b32 exec_lo, 0x01010101\ns_mov_b32 exec_hi, 0x01010101\nbuffer_store_dwordx2 {v(AC+2,2)}, v0, {s(R_WS,4)}, s{S_X} offen sc1\ns_mov_b64 exec, -1")
        self.stamp("stats")
        p(f"s_cmp_ge_u32 s{S_HH}, 28\ns_cbranch_scc1 L_hnocs")
        CS = 88
        for k in range(8): p(f"v_mov_b32 v{CS+k}, 0")
        for i in range(7):
            for j in range(4):
                p(f"v_dot2_f32_bf16 v{CS+2*j}, v{WD+4*i+j}, s{S_LO}, v{CS+2*j}\nv_dot2_f32_bf16 v{CS+2*j+1}, v{WD+4*i+j}, s{S_HI}, v{CS+2*j+1}")
        for k in range(8): p(f"v_add_f32_dpp v{CS+k}, v{CS+k}, v{CS+k} row_ror:8 row_mask:0xf bank_mask:0xf")
        p(f"v_and_b32 v{VT+3}, 8, v0\nv_cmp_eq_u32 vcc, 0, v{VT+3}\nv_lshlrev_b32 v{VT+3}, 1, v{VT+3}\nv_lshl_add_u32 v{VT+3}, v{VT+1}, 5, v{VT+3}\nv_lshrrev_b32 v{VT+4}, 4, v0\nv_lshl_add_u32 v{VT+3}, v{VT+4}, 8, v{VT+3}")
        p(f"s_lshl_b32 s{T}, s{S_WAVE}, 10\nv_add_u32 v{VT+3}, s{T}, v{VT+3}")
        for k in range(4): p(f"v_cndmask_b32 v{CS+k}, v{CS+4+k}, v{CS+k}, vcc")
        p(f"ds_write_b128 v{VT+3}, {v(CS,4)}\ns_waitcnt lgkmcnt(0)\ns_barrier")
        p(f"s_cmp_lg_u32 s{S_WAVE}, 0\ns_cbranch_scc1 L_hdone")
        p(f"v_lshlrev_b32 v{VT+3}, 2, v0")
        for i in range(16): p(f"ds_read2st64_b32 {v(XD+2*i,2)}, v{VT+3} offset0:{2*i} offset1:{2*i+1}")
        for st in (16, 8, 4, 2):
            for i in range(0, st, 2): p(f"v_pk_add_f32 {v(XD+i,2)}, {v(XD+i,2)}, {v(XD+st+i,2)}")
        p(f"v_add_f32 v{AC+2}, v{XD}, v{XD+1}\nv_lshlrev_b32 v{VT+3}, 3, v0\ns_lshl_b32 s{T}, s{S_HH}, 9\ns_add_u32 s{T}, s{T}, {WS_CS}")
        p(f"buffer_store_dwordx2 {v(AC+2,2)}, v{VT+3}, {s(R_WS,4)}, s{T} offen sc1")
        p.label("L_hdone")
        self.stamp("cs")
        self.stamp_flush(1)
        p("s_endpgm")
        p.label("L_hnocs")
        p(f"s_waitcnt vmcnt(0) lgkmcnt(0)\ns_cmp_lg_u32 s{S_HH}, 31\ns_cbranch_scc1 L_hdone\ns_cmp_lg_u32 s{S_WAVE}, 0\ns_cbranch_scc1 L_hdone")
        p.reset()
        p(f"v_lshrrev_b32 v{VT}, 2, v0\nv_min_u32 v{VT}, 13, v{VT}\nv_lshlrev_b32 v{VT}, 7, v{VT}\nv_and_b32 v{VT+1}, 3, v0\nv_lshl_add_u32 v{VT}, v{VT+1}, 4, v{VT}\ns_mov_b32 s{S_X}, {WS_FS}")
        ld = f"s_sleep 8\nbuffer_load_dwordx4 {v(XD,4)}, v{VT}, {s(R_WS,4)}, s{S_X} offen sc1"
        p(ld)
        self.tagged_check(ld, [XD, XD + 1, XD + 2, XD + 3], VT + 2)
        p(f"s_mov_b32 s{S_X}, {WS_EPOCH}")
        self.flag_store(S_X, AC + 3)
        p("s_branch L_hdone")

    def build(self):
        p = self.p
        self.entry()
        self.role_a(); self.role_b(); self.role_h()
        p.reset()
        p.label("L_exit")
        p("s_endpgm")
        p.label("L_end")
        body = p.resolve()
        head = open("recurrent_scan__ssm_conv_s4__dense_activation_mish__prompt.s.ref").read().split("; Override launch")[0]
        txt = head + f"; @launch grid=(256,1,1) block=(512,1,1) lds={LDS_BYTES}\n"
        txt += f'.amdgcn_target "amdgcn-amd-amdhsa--gfx950"\n.text\n.globl {KNAME}\n.p2align 8\n.type {KNAME},@function\n{KNAME}:\n'
        txt += body
        txt += f""".section .rodata,"a"
.p2align 6
.amdhsa_kernel {KNAME}
  .amdhsa_next_free_vgpr 256
  .amdhsa_next_free_sgpr 102
  .amdhsa_accum_offset 256
  .amdhsa_group_segment_fixed_size 0
  .amdhsa_kernarg_size 128
  .amdhsa_user_sgpr_count 2
  .amdhsa_user_sgpr_kernarg_segment_ptr 1
  .amdhsa_system_sgpr_workgroup_id_x 1
.end_amdhsa_kernel
"""
        return txt

def parse_cfg(args):
    kw = {}
    for a in args:
        k, x = a.split("=")
        kw[k] = eval(x)
    return Cfg(**kw)

if __name__ == "__main__":
    out = sys.argv[1]
    g = Gen(parse_cfg(sys.argv[2:]))
    txt = g.build()
    open(out, "w").write(txt)
    import json
    json.dump(g.stamp_names, open(out + ".stamps.json", "w"))
    print(out, g.p.stats)
```

```python
import sys
from asmgen import *

KNAME = "recurrent_scan__ssm_conv_s4__dense_activation_mish__prompt_kernel"

class Cfg:
    stamps = False
    prefetch_code = True
    mish_pk = True
    prio_b = 1
    vpoll = 'XAS'
    sset = 0
    dma_ratio = 2.0
    def __init__(self, **kw):
        for k, x in kw.items():
            assert hasattr(self, k), k
            setattr(self, k, x)

WS_EPOCH, WS_FX, WS_FA, WS_FS = 0, 0x1000, 0x2000, 0xA000
WS_STAT, WS_CS, WS_XT, WS_ST, WS_ACT, WS_DBG = 0x10000, 0x14000, 0x40000, 0x200000, 0x400000, 0xC00000
WS_SIZE = 0x1000000
TAGC = 0x9E3779B1
SLOT = 32768
L_TAB = 3 * SLOT
L_BR = 4 * SLOT
L_KC = L_BR + 512
L_U = L_BR + 6144
L_STR = L_BR + 15360
L_CNT = L_BR + 24576
L_EX = 2 * SLOT
LDS_BYTES = 163840
P_U, P_ARE, P_AIM, P_BRE, P_BIM, P_CRE, P_CIM, P_LDT = 4, 6, 8, 10, 12, 14, 16, 18
P_DSK, P_BX, P_W1, P_B1, P_W2, P_OUT, P_DBG, P_WS = 20, 22, 24, 26, 28, 30, 32, 34
R_LD, R_2, R_WS, R_PC = 36, 40, 44, 48
S_TAG, S_TAG2, S_WAVE, S_XCD, S_J, S_RT, S_CT, S_CP = 52, 53, 54, 55, 56, 57, 58, 59
S_R2, S_C2 = 60, 61
S_T = 62
S_POLL = 80
S_CNT = 96
S_T0 = 98
LOG2E = 0x3fb8aa3b
POLL_MAX = 1 << 17

def srd(p, r, ptr, size):
    p(f"s_mov_b32 s{r}, s{ptr}\ns_mov_b32 s{r+1}, s{ptr+1}\ns_mov_b32 s{r+2}, {size}\ns_mov_b32 s{r+3}, 0x20000")

class Gen:
    def __init__(self, cfg):
        self.c = cfg
        self.p = Prog()
        self.nlab = 0
        self.stamp_names = {}
    def lab(self, base):
        self.nlab += 1
        return f"L_{base}_{self.nlab}"

    def stamp_begin(self, role):
        self.role = role; self.stamp_names[role] = []
    def stamp(self, name, p=None, sets=(0,)):
        if not self.c.stamps or self.c.sset not in sets: return
        p = p or self.p
        n = len(self.stamp_names[self.role]); assert n < 15
        self.stamp_names[self.role].append(name)
        p(f"s_memrealtime {s(4+2*n, 2)}")
    def stamp_flush(self, vt):
        if not self.c.stamps: return
        p = self.p
        n = len(self.stamp_names[self.role])
        p("s_waitcnt vmcnt(0) lgkmcnt(0)\ns_mov_b64 exec, 1")
        p(f"s_lshl_b32 s{S_T}, s2, 3\ns_add_u32 s{S_T}, s{S_T}, s{S_WAVE}\ns_lshl_b32 s{S_T}, s{S_T}, 6\ns_add_u32 s{S_T}, s{S_T}, {WS_DBG}")
        p(f"v_mov_b32 v{vt}, s{S_T0}\nbuffer_store_dword v{vt}, off, {s(R_WS,4)}, s{S_T}")
        for i in range(n):
            p(f"v_mov_b32 v{vt+1+(i&1)}, s{4+2*i}\nbuffer_store_dword v{vt+1+(i&1)}, off, {s(R_WS,4)}, s{S_T} offset:{4+4*i}")
        p("s_waitcnt vmcnt(0)")

    def flag_store(self, soff, vt):
        p = self.p
        p(f"s_mov_b64 exec, 1\nbuffer_store_dword v{vt}, off, {s(R_WS,4)}, s{soff} sc1\ns_mov_b64 exec, -1")
    def poll_flags(self, soff, n, which, vt):
        p = self.p
        if which in self.c.vpoll:
            l0, l1 = self.lab("poll"), self.lab("polled")
            p(f"v_lshlrev_b32 v{vt}, 2, v0\ns_mov_b32 s{S_CNT}, 0\ns_mov_b64 exec, {(1 << n) - 1}")
            p.label(l0)
            p(f"buffer_load_dword v{vt+1}, v{vt}, {s(R_WS,4)}, s{soff} offen sc1\ns_add_u32 s{S_CNT}, s{S_CNT}, 1\ns_cmp_gt_u32 s{S_CNT}, {POLL_MAX}\ns_cbranch_scc1 {l1}")
            p(f"s_waitcnt vmcnt(0)\nv_cmp_ne_u32 vcc, s{S_TAG}, v{vt+1}\ns_cbranch_vccnz {l0}")
            p.label(l1)
            p("s_mov_b64 exec, -1")
            return
        w = 8 if n <= 8 else 16
        l0, l1 = self.lab("poll"), self.lab("polled")
        p(f"s_waitcnt lgkmcnt(0)\ns_mov_b32 s{S_CNT}, 0")
        p.label(l0)
        p(f"s_buffer_load_dwordx{w} {s(S_POLL,w)}, {s(R_WS,4)}, s{soff} glc\ns_add_u32 s{S_CNT}, s{S_CNT}, 1\ns_waitcnt lgkmcnt(0)")
        p(f"s_cmp_gt_u32 s{S_CNT}, {POLL_MAX}\ns_cbranch_scc1 {l1}")
        for i in range(0, n - 1, 2):
            p(f"s_cmp_eq_u64 {s(S_POLL+i,2)}, {s(S_TAG,2)}\ns_cbranch_scc0 {l0}")
        if n & 1:
            p(f"s_cmp_eq_u32 s{S_POLL+n-1}, s{S_TAG}\ns_cbranch_scc0 {l0}")
        p.label(l1)
    def lds_arrive(self, vaddr, vone):
        self.p(f"s_mov_b64 exec, 1\nds_add_u32 v{vaddr}, v{vone}\ns_mov_b64 exec, -1")
    def lds_wait(self, vaddr, vt, target):
        p = self.p
        l0, l1 = self.lab("spin"), self.lab("spun")
        p(f"s_mov_b32 s{S_CNT}, 0")
        p.label(l0)
        p(f"ds_read_b32 v{vt}, v{vaddr}\ns_add_u32 s{S_CNT}, s{S_CNT}, 1\ns_waitcnt lgkmcnt(0)\nv_readfirstlane_b32 s{S_POLL}, v{vt}")
        p(f"s_cmp_gt_u32 s{S_CNT}, {POLL_MAX*8}\ns_cbranch_scc1 {l1}\ns_cmp_lt_u32 s{S_POLL}, {target}\ns_cbranch_scc1 {l0}")
        p.label(l1)
    def tagged_check(self, loads, tagregs, vt):
        p = self.p
        l0, l1 = self.lab("chk"), self.lab("chkd")
        p(f"s_mov_b32 s{S_CNT}, 0")
        for r in reversed(tagregs): p.items.append(Marker("need", r))
        p.label(l0)
        p(f"v_xor_b32 v{vt}, s{S_TAG}, v{tagregs[0]}")
        for r in tagregs[1:]:
            p(f"v_bitop3_b32 v{vt}, v{r}, s{S_TAG}, v{vt} bitop3:0xbe")
        p(f"v_cmp_ne_u32 vcc, 0, v{vt}\ns_add_u32 s{S_CNT}, s{S_CNT}, 1\ns_cbranch_vccz {l1}")
        p(f"s_cmp_gt_u32 s{S_CNT}, {POLL_MAX}\ns_cbranch_scc1 {l1}")
        p.alt_begin()
        p(loads)
        p(f"s_waitcnt vmcnt(0)\ns_branch {l0}")
        p.alt_end()
        p.label(l1)

    def entry(self):
        p, c = self.p, self.c
        p(f"s_cmp_ge_u32 s2, 256\ns_cbranch_scc1 L_exit")
        if c.stamps: p(f"s_memrealtime {s(S_T0,2)}")
        p(f"s_load_dwordx16 s[4:19], s[0:1], 0\ns_load_dwordx16 s[20:35], s[0:1], 64")
        p(f"v_lshrrev_b32 v1, 6, v0\nv_and_b32 v0, 63, v0\nv_readfirstlane_b32 s{S_WAVE}, v1")
        p(f"s_and_b32 s{S_XCD}, s2, 7\ns_lshr_b32 s{S_J}, s2, 3")
        if c.prefetch_code:
            p(f"s_getpc_b64 {s(R_PC,2)}")
            p.label("L_pc")
            p(f"s_mov_b32 s{R_PC+2}, L_end-L_pc\ns_mov_b32 s{R_PC+3}, 0x20000")
            p(f"s_lshl_b32 s{S_T}, s{S_J}, 3\ns_add_u32 s{S_T}, s{S_T}, s{S_WAVE}\ns_lshl_b32 s{S_T}, s{S_T}, 7")
            p(f"buffer_load_dword v255, off, {s(R_PC,4)}, s{S_T}")
        p(f"s_cmp_ge_u32 s{S_J}, 14\ns_cselect_b32 s{S_T}, 1, 0\ns_cselect_b32 s{S_T+1}, 14, 0")
        p(f"s_lshl_b32 s{S_RT}, s{S_XCD}, 1\ns_add_u32 s{S_RT}, s{S_RT}, s{S_T}\ns_sub_u32 s{S_CT}, s{S_J}, s{S_T+1}")
        p(f"s_mul_i32 s{S_CP}, s{S_XCD}, 28\ns_add_u32 s{S_CP}, s{S_CP}, s{S_J}")
        p(f"s_cmp_ge_u32 s{S_CT}, 7\ns_cselect_b32 s{S_T}, 1, 0\ns_cselect_b32 s{S_T+1}, 7, 0")
        p(f"s_lshl_b32 s{S_R2}, s{S_RT}, 1\ns_add_u32 s{S_R2}, s{S_R2}, s{S_T}\ns_sub_u32 s{S_C2}, s{S_CT}, s{S_T+1}")
        p(f"s_waitcnt lgkmcnt(0)")
        p(f"s_load_dword s{S_TAG}, {s(P_WS,2)}, {WS_EPOCH}")
        srd(p, R_WS, P_WS, WS_SIZE)
        p(f"s_cmp_ge_u32 s{S_J}, 28\ns_cbranch_scc1 L_helper\ns_cmp_ge_u32 s{S_WAVE}, 4\ns_cbranch_scc1 L_roleB")
    def role_start(self):
        p = self.p
        p.reset()
        p.items.append(Marker("pending", ("smem", {f"s{S_TAG}"})))
        if self.c.prefetch_code: p.items.append(Marker("pending", ("vmem", {"v255"})))
    def make_tag(self):
        self.p(f"s_add_u32 s{S_TAG}, s{S_TAG}, {TAGC}\ns_mov_b32 s{S_TAG2}, s{S_TAG}")

    def role_a(self):
        p, c = self.p, self.c
        self.role_start(); self.stamp_begin("A")
        VD, VXA, VWA, VW2A, VW2D, VL16, VC1, VT = 1, 9, 13, 15, 17, 21, 2, 24
        ACC, FR, W2R, AB = 32, 96, 96, 192
        S_SOFF, S_CSTR, S_CH, S_LDB, S_WT, S_WF, S_W2B, S_ACTW, S_ACTR, S_FAW, S_FAR, S_FXW, S_XTW, S_RING = range(64, 78)
        S_X = 78; S_Y = 79
        T = S_T
        p(f"s_and_b32 s{S_WT}, s{S_WAVE}, 1\ns_lshr_b32 s{S_WF}, s{S_WAVE}, 1")
        p(f"s_lshl_b32 s{T}, s{S_RT}, 1\ns_add_u32 s{T}, s{T}, s{S_WF}\ns_mul_i32 s{T}, s{T}, {64*896}")
        p(f"s_mul_i32 s{T+1}, s{S_WF}, {32*3584}\ns_lshl_b32 s{S_X}, s{S_CT}, 8\ns_add_u32 s{T+1}, s{T+1}, s{S_X}")
        p(f"s_lshr_b32 s{S_CH}, s{S_CT}, 1")
        p(f"v_lshrrev_b32 v{VT}, 3, v0\nv_lshrrev_b32 v{VT+1}, 4, v0")
        p(f"s_cmp_eq_u32 s{S_WT}, 0")
        p(f"s_cselect_b32 s{R_LD}, s{P_U}, s{P_W1}\ns_cselect_b32 s{R_LD+1}, s{P_U+1}, s{P_W1+1}\ns_cselect_b32 s{R_LD+2}, {2048*896}, 0\ns_cselect_b32 s{S_X}, 0, {448*3584}")
        p(f"s_cselect_b32 s{S_SOFF}, s{T}, s{T+1}\ns_cselect_b32 s{S_CSTR}, 1, {64*28}\ns_cselect_b32 s{S_Y}, 1, 2\ns_cselect_b64 vcc, -1, 0")
        p(f"s_add_u32 s{R_LD+2}, s{R_LD+2}, s{S_X}\ns_mov_b32 s{R_LD+3}, 0x20000\ns_lshl_b32 s{S_CSTR}, s{S_CSTR}, 7\ns_mul_i32 s{S_Y}, s{S_Y}, 7168")
        p(f"s_mul_i32 s{T}, s{S_CH}, s{S_CSTR}\ns_add_u32 s{S_SOFF}, s{S_SOFF}, s{T}")
        p(f"s_lshl_b32 s{S_LDB}, s{S_WT}, 14\ns_lshl_b32 s{T}, s{S_WF}, 13\ns_add_u32 s{S_LDB}, s{S_LDB}, s{T}")
        p(f"v_xor_b32 v{VT+2}, v0, v{VT+1}\nv_and_b32 v{VT+2}, 7, v{VT+2}\nv_lshlrev_b32 v{VT+2}, 4, v{VT+2}\nv_mul_u32_u24 v{VT}, 896, v{VT}\nv_add_u32 v{VT}, v{VT}, v{VT+2}")
        p(f"v_lshlrev_b32 v{VT+2}, 2, v{VT+1}\nv_xor_b32 v{VT+2}, v0, v{VT+2}\nv_and_b32 v{VT+2}, 15, v{VT+2}\nv_lshlrev_b32 v{VT+2}, 4, v{VT+2}\nv_mul_u32_u24 v{VT+1}, 3584, v{VT+1}\nv_add_u32 v{VT+1}, v{VT+1}, v{VT+2}")
        p(f"v_cndmask_b32 v{VD}, v{VT+1}, v{VT}, vcc\nv_xor_b32 v{VT}, 64, v{VT}\nv_cndmask_b32 v{VD+1}, v{VT+1}, v{VT}, vcc")
        p(f"s_sub_u32 s{T}, s{S_Y}, 1024\nv_add_u32 v{VD+1}, s{T}, v{VD+1}\ns_lshl_b32 s{T}, s{T}, 1")
        p(f"v_add_u32 v{VD+2}, s{T}, v{VD}\nv_add_u32 v{VD+3}, s{T}, v{VD+1}\ns_lshl_b32 s{T}, s{S_Y}, 2")
        for i in range(4): p(f"v_add_u32 v{VD+4+i}, s{T}, v{VD+i}")
        ctok = {}
        def dma_chunk(n, q=None):
            q = q or p
            for i in range(8):
                if i % 4 == 0: q(f"s_add_u32 m0, s{S_LDB}, {(n%4)*SLOT + (i//4)*4096}")
                ctok[n] = q.tok(f"buffer_load_dwordx4 v{VD+i}, {s(R_LD,4)}, s{S_SOFF} offen offset:{(i%4)*1024} lds")
            if n < 6:
                q(f"s_add_u32 s{S_CH}, s{S_CH}, 1\ns_add_u32 s{S_SOFF}, s{S_SOFF}, s{S_CSTR}\ns_mul_i32 s{T}, s{S_CSTR}, 7")
                q(f"s_cmp_eq_u32 s{S_CH}, 7\ns_cselect_b32 s{T}, s{T}, 0\ns_cselect_b32 s{S_CH}, 0, s{S_CH}\ns_sub_u32 s{S_SOFF}, s{S_SOFF}, s{T}")
        self.stamp("dma0", sets=(1,))
        dma_chunk(0); dma_chunk(1)
        self.stamp("dma1", sets=(1,))
        srd(p, R_2, P_W2, 1792 * 896)
        VB1 = 30
        p(f"s_lshl_b32 s{T}, s{S_CT}, 1\ns_add_u32 s{T}, s{T}, s{S_WF}\ns_lshl_b32 s{S_X}, s{T}, 7")
        p(f"v_and_b32 v{VT}, 31, v0\nv_lshl_add_u32 v{VT+1}, v{VT}, 1, s{S_X}")
        p(f"global_load_ushort v{VB1}, v{VT+1}, {s(P_B1,2)}\nglobal_load_ushort v{VB1+1}, v{VT+1}, {s(P_B1,2)} offset:64")
        p(f"s_mul_i32 s{S_X}, s{T}, 37\ns_lshr_b32 s{S_X}, s{S_X}, 8")
        p(f"s_mul_i32 s{S_Y}, s{S_X}, 7\ns_sub_u32 s{S_Y}, s{T}, s{S_Y}")
        p(f"s_lshl_b32 s{T+1}, s{S_RT}, 1\ns_add_u32 s{T+1}, s{T+1}, s{S_WT}")
        p(f"s_lshl_b32 s{S_FAW}, s{T+1}, 3\ns_add_u32 s{S_FAW}, s{S_FAW}, s{S_X}\ns_lshl_b32 s{S_FAW}, s{S_FAW}, 5\ns_add_u32 s{S_FAW}, s{S_FAW}, s{S_Y}\ns_lshl_b32 s{S_FAW}, s{S_FAW}, 2\ns_add_u32 s{S_FAW}, s{S_FAW}, {WS_FA}")
        p(f"s_mul_i32 s{S_ACTW}, s{T+1}, 28\ns_add_u32 s{S_ACTW}, s{S_ACTW}, s{T}\ns_lshl_b32 s{S_ACTW}, s{S_ACTW}, 13\ns_add_u32 s{S_ACTW}, s{S_ACTW}, {WS_ACT}")
        p(f"s_lshl_b32 s{S_FAR}, s{S_R2}, 3\ns_add_u32 s{S_FAR}, s{S_FAR}, s{S_WAVE}\ns_lshl_b32 s{S_FAR}, s{S_FAR}, 7\ns_add_u32 s{S_FAR}, s{S_FAR}, {WS_FA}")
        p(f"s_lshl_b32 s{S_ACTR}, s{S_R2}, 2\ns_add_u32 s{S_ACTR}, s{S_ACTR}, s{S_WAVE}\ns_mul_i32 s{S_ACTR}, s{S_ACTR}, {28*2048}\ns_add_u32 s{S_ACTR}, s{S_ACTR}, {WS_ACT}")
        p(f"s_mul_i32 s{S_W2B}, s{S_WAVE}, {448*896}\ns_lshl_b32 s{S_X}, s{S_C2}, 7\ns_add_u32 s{S_W2B}, s{S_W2B}, s{S_X}")
        p(f"s_lshl_b32 s{S_RING}, s{S_WAVE}, 13")
        p(f"s_lshl_b32 s{S_X}, s{S_RT}, 1\ns_add_u32 s{S_X}, s{S_X}, s{S_WF}")
        p(f"s_lshl_b32 s{S_FXW}, s{S_CT}, 5\ns_add_u32 s{S_FXW}, s{S_FXW}, s{S_X}\ns_lshl_b32 s{S_FXW}, s{S_FXW}, 2\ns_add_u32 s{S_FXW}, s{S_FXW}, {WS_FX}")
        p(f"s_lshl_b32 s{S_XTW}, s{S_CT}, 10\ns_add_u32 s{S_XTW}, s{S_XTW}, s{S_X}\ns_lshl_b32 s{S_XTW}, s{S_XTW}, 7\ns_add_u32 s{S_XTW}, s{S_XTW}, {WS_XT}")
        p(f"v_lshlrev_b32 v{VL16}, 4, v0")
        p(f"v_lshrrev_b32 v{VT+1}, 5, v0\nv_bfe_u32 v{VT+2}, v0, 1, 3\nv_xor_b32 v{VT+1}, v{VT+1}, v{VT+2}\nv_lshlrev_b32 v{VT+1}, 4, v{VT+1}")
        p(f"v_lshl_add_u32 v{VT+1}, v{VT}, 7, v{VT+1}\ns_lshl_b32 s{S_X}, s{S_WT}, 13\nv_add_u32 v{VXA}, s{S_X}, v{VT+1}")
        for k in range(1, 4): p(f"v_xor_b32 v{VXA+k}, {32*k}, v{VXA}")
        p(f"v_bfe_u32 v{VT}, v0, 4, 1\nv_lshlrev_b32 v{VT}, 5, v{VT}\nv_and_b32 v{VT+1}, 3, v0\nv_lshl_add_u32 v{VT}, v{VT+1}, 3, v{VT}")
        p(f"v_bfe_u32 v{VT+1}, v0, 2, 2\nv_lshrrev_b32 v{VT+2}, 5, v0")
        p(f"v_lshl_add_u32 v{VT+3}, v{VT+2}, 3, v{VT+1}\nv_lshl_add_u32 v{VT+3}, v{VT+3}, 8, v{VT}")
        p(f"s_lshl_b32 s{S_X}, s{S_WF}, 1\nv_xor_b32 v{VT+4}, s{S_X}, v{VT+1}\nv_lshl_add_u32 v{VWA}, v{VT+4}, 6, v{VT+3}\nv_xor_b32 v{VWA+1}, 64, v{VWA}")
        p(f"v_lshl_add_u32 v{VT+3}, v{VT+2}, 2, v{VT+1}\nv_lshl_add_u32 v{VT+3}, v{VT+3}, 7, v{VT}")
        p(f"v_lshrrev_b32 v{VT+4}, 1, v{VT+1}\nv_lshl_add_u32 v{VT+3}, v{VT+4}, 6, v{VT+3}\nv_add_u32 v{VW2A}, s{S_RING}, v{VT+3}\nv_xor_b32 v{VW2A+1}, 64, v{VW2A}")
        p(f"v_lshrrev_b32 v{VT}, 3, v0\nv_mul_u32_u24 v{VT}, 896, v{VT}\nv_bfe_u32 v{VT+1}, v0, 4, 1\nv_lshlrev_b32 v{VT+1}, 2, v{VT+1}\nv_xor_b32 v{VT+1}, v0, v{VT+1}\nv_and_b32 v{VT+1}, 7, v{VT+1}")
        p(f"v_lshl_add_u32 v{VW2D}, v{VT+1}, 4, v{VT}")
        for i in range(1, 4): p(f"v_add_u32 v{VW2D+i}, {i*(7168-1024)}, v{VW2D}")
        self.make_tag()
        self.stamp("issued01", sets=(0, 1))
        lskip = self.lab("noxt")
        p(f"s_cmp_lg_u32 s{S_WT}, 0\ns_cbranch_scc1 {lskip}")
        p.alt_begin()
        p(f"v_and_b32 v{VT}, 7, v0\nv_lshrrev_b32 v{VT+1}, 4, v0\ns_and_b32 s{S_X}, s{S_CT}, 1\ns_lshl_b32 s{S_X}, s{S_X}, 2")
        p(f"v_and_b32 v{VT+2}, 1, v0\nv_lshlrev_b32 v{VT+2}, 2, v{VT+2}\nv_bitop3_b32 v{VT+1}, v{VT+1}, s{S_X}, v{VT+2} bitop3:0x96\nv_lshlrev_b32 v{VT+1}, 4, v{VT+1}")
        p(f"v_lshl_add_u32 v{VT+1}, v{VT}, 10, v{VT+1}\nv_and_b32 v{VT+2}, 8, v0\ns_lshl_b32 s{S_X}, s{S_WF}, 13\nv_add3_u32 v{VT+1}, v{VT+1}, v{VT+2}, s{S_X}")
        for k in range(1, 4): p(f"v_xor_b32 v{VT+1+k}, {16*k}, v{VT+1}")
        p(f"v_lshrrev_b32 v{VT+5}, 3, v0\nv_lshlrev_b32 v{VT+5}, 14, v{VT+5}\nv_lshl_add_u32 v{VT}, v{VT}, 4, v{VT+5}")
        p(f"s_mov_b32 s{S_X}, 0x05040100\ns_mov_b32 s{S_Y}, 0x07060302")
        p.wait(ctok[0])
        for i in range(8): p(f"ds_read_b64 {v(FR+2*i,2)}, v{VT+1+(i>>1)} offset:{i*128}")
        for e in range(4):
            for j in range(4):
                p(f"v_perm_b32 v{FR+16+4*e+j}, v{FR+2*(2*j+1)+(e>>1)}, v{FR+2*(2*j)+(e>>1)}, s{S_Y if e&1 else S_X}")
            xttok = p.tok(f"buffer_store_dwordx4 {v(FR+16+4*e,4)}, v{VT}, {s(R_WS,4)}, s{S_XTW} offen sc1")
            if e < 3: p(f"s_add_u32 s{S_XTW}, s{S_XTW}, 4096")
        p.alt_end()
        p.label(lskip)
        self.stamp("xt", sets=(0, 1))
        dma_chunk(2); dma_chunk(3)
        p(f"v_mov_b32 v{VT}, s{S_TAG}")
        VGA = 26
        p(f"v_bfe_u32 v{VGA}, v0, 1, 2\nv_lshlrev_b32 v{VGA}, 10, v{VGA}\nv_bfe_u32 v{VGA+1}, v0, 3, 2\nv_lshl_add_u32 v{VGA}, v{VGA+1}, 4, v{VGA}\nv_and_b32 v{VGA+1}, 1, v0\nv_lshl_add_u32 v{VGA}, v{VGA+1}, 3, v{VGA}")
        p(f"s_lshl_b32 s{S_X}, s{S_RT}, 1\ns_add_u32 s{S_X}, s{S_X}, s{S_WT}\ns_lshr_b32 s{S_Y}, s{S_X}, 3\ns_lshl_b32 s{S_Y}, s{S_Y}, 12\ns_and_b32 s{S_X}, s{S_X}, 7\ns_lshl_b32 s{S_X}, s{S_X}, 7")
        p(f"s_add_u32 s{S_X}, s{S_X}, s{S_Y}\ns_add_u32 s{S_X}, s{S_X}, {WS_STAT}\nv_add_u32 v{VGA}, s{S_X}, v{VGA}")
        p(f"s_lshl_b32 s{S_X}, s{S_CT}, 1\ns_add_u32 s{S_X}, s{S_X}, s{S_WF}\ns_lshl_b32 s{S_X}, s{S_X}, 9\ns_add_u32 s{S_X}, s{S_X}, {WS_CS}\nv_and_b32 v{VGA+1}, 31, v0\nv_lshl_add_u32 v{VGA+1}, v{VGA+1}, 3, s{S_X}")
        GR = AB
        gloads = "\n".join([f"buffer_load_dwordx2 {v(GR+2*ti,2)}, v{VGA}, {s(R_WS,4)}, 0 offen offset:{64*ti} sc1" for ti in range(2)] +
                           [f"buffer_load_dwordx2 {v(GR+4+2*fi,2)}, v{VGA+1}, {s(R_WS,4)}, 0 offen offset:{256*fi} sc1" for fi in range(2)])
        wtok = {}
        def dma_w2(pn, q):
            rp = pn % 4
            q(f"s_add_u32 m0, s{S_RING}, {(rp>>1)*SLOT + (rp&1)*4096}")
            q(f"s_add_u32 s{S_X}, s{S_W2B}, {((pn%7)*64 + (pn//7)*32)*896}")
            for i in range(4):
                wtok[pn] = q.tok(f"buffer_load_dwordx4 v{VW2D+i}, {s(R_2,4)}, s{S_X} offen offset:{i*1024} lds")
        rtok = {}
        def read_w2(n, q):
            pn = n >> 1; rp = pn % 4
            if n % 2 == 0: q.wait(wtok[pn])
            for di in range(2):
                for h in range(2):
                    rtok[n] = q.tok(f"ds_read_b64_tr_b16 {v(W2R+8*(n%12)+4*di+2*h,2)}, v{VW2A+di} offset:{(rp>>1)*SLOT + (rp&1)*4096 + (n&1)*2048 + h*1024}")
        def reads1(gs):
            n, k = gs >> 2, gs & 3
            base = FR + 16 * (gs % 3); so = (n & 1) * SLOT
            r = []
            for fi in range(2):
                for h in range(2):
                    r.append(I(f"ds_read_b64_tr_b16 {v(base+4*fi+2*h,2)}, v{VWA+fi} offset:{so+16384+k*4096+h*1024}"))
                r.append(I(f"ds_read_b128 {v(base+8+4*fi,4)}, v{VXA+k} offset:{so+fi*4096}"))
            return r
        def mfma1(gs):
            base = FR + 16 * (gs % 3)
            r = []
            for fi, ti in ((0, 0), (0, 1), (1, 0), (1, 1)):
                a = v(ACC + 32 * fi + 16 * ti, 16)
                r.append(I(f"v_mfma_f32_32x32x16_bf16 {a}, {v(base+4*fi,4)}, {v(base+8+4*ti,4)}, {'0' if gs == 0 else a}"))
            return r
        self.stamp("dma3", sets=(1,))
        for n in range(7):
            p.wait(ctok[n])
            if n == 0: self.stamp("c0", sets=(1,))
            if n == 2:
                lk = self.lab("nofx")
                p(f"s_cmp_lg_u32 s{S_WT}, 0\ns_cbranch_scc1 {lk}")
                p.alt_begin(); p.wait(xttok); self.flag_store(S_FXW, VT); p.alt_end(); p.label(lk)
            p("s_waitcnt lgkmcnt(0)\ns_barrier")
            self.stamp(f"bar{n}", sets=(0, 1) if n in (0, 3, 6) else (1,))
            if n in (2, 4, 6):
                for r in list(range(VXA, VXA + 4)) + [VWA, VWA + 1]: p(f"v_xor_b32 v{r}, 0x10000, v{r}")
            q = Prog()
            if 1 <= n <= 3: dma_chunk(n + 3, q)
            if n == 4: q(gloads)
            if n == 5: dma_w2(0, q); dma_w2(1, q)
            if n == 6: dma_w2(2, q); dma_w2(3, q)
            fill = q.items
            body = []
            for k in range(4):
                gs = 4 * n + k
                rd = reads1(gs)
                if gs == 0: body.append(rd); continue
                mm = mfma1(gs - 1)
                if k == 0: body += [rd, mm[0], mm[1], mm[2], mm[3]]
                else: body += [[mm[0]] + rd[:3], [mm[1]] + rd[3:], mm[2], mm[3]]
            p.extend(interleave(body, fill, ratio=c.dma_ratio))
        p(f"v_mov_b32 v{VT+1}, {L_CNT}\nv_mov_b32 v{VT+4}, 1")
        self.lds_arrive(VT + 1, VT + 4)
        p.extend(mfma1(27))
        self.tagged_check(gloads, [GR + 1, GR + 3, GR + 5, GR + 7], VT + 1)
        self.stamp("granules", sets=(0, 1))
        FA_, FB_ = AB + 8, AB + 12
        p(f"s_mov_b32 s{S_X}, 0x01000100\ns_mov_b32 s{S_Y}, 0x80008000\nv_cmp_gt_u32 vcc, 32, v0")
        for ti in range(2):
            g = GR + 2 * ti
            p(f"v_perm_b32 v{VT+1}, v{g}, v{g}, s{S_X}\nv_xor_b32 v{VT+1}, s{S_Y}, v{VT+1}\nv_cndmask_b32 v{FB_+2*ti}, 0, v{VT+1}, vcc")
            p(f"v_lshrrev_b32 v{VT+1}, 16, v{g}\nv_cndmask_b32 v{FB_+2*ti+1}, 0, v{VT+1}, vcc")
            p(f"v_and_b32 v{VT+1}, 0xffff0000, v{g}\nv_rcp_f32 v{VT+1}, v{VT+1}\nv_mul_f32 v{VC1+2*ti}, {LOG2E}, v{VT+1}\nv_mul_f32 v{VC1+2*ti+1}, {LOG2E}, v{VT+1}")
        for fi in range(2):
            g = GR + 4 + 2 * fi
            p(f"v_cvt_pk_bf16_f32 v{VT+1}, v{g}, v{g}\nv_and_b32 v{VT+1}, 0xffff0000, v{VT+1}\nv_sub_f32 v{VT+1}, v{g}, v{VT+1}\nv_cvt_pk_bf16_f32 v{FA_+2*fi}, v{g}, v{VT+1}")
            p(f"v_mov_b32 v{FA_+2*fi+1}, v{VB1+fi}")
        for fi, ti in ((0, 0), (0, 1), (1, 0), (1, 1)):
            a = v(ACC + 32 * fi + 16 * ti, 16)
            p(f"v_mfma_f32_32x32x8_bf16 {a}, {v(FA_+2*fi,2)}, {v(FB_+2*ti,2)}, {a}")
        MT, MO = AB + 16, AB + 48
        def mish_group(a, ti, o, tset):
            t = MT + 16 * tset; u = t + 8
            r = []
            if c.mish_pk:
                for i in range(0, 8, 2): r.append(f"v_pk_mul_f32 {v(t+i,2)}, {v(a+i,2)}, {v(VC1+2*ti,2)}")
                for i in range(8): r.append(f"v_exp_f32 v{t+i}, v{t+i}")
                for i in range(0, 8, 2): r.append(f"v_pk_fma_f32 {v(u+i,2)}, {v(t+i,2)}, 0.5, 1.0 op_sel_hi:[1,0,0]")
                for i in range(0, 8, 2): r.append(f"v_pk_fma_f32 {v(u+i,2)}, {v(t+i,2)}, {v(u+i,2)}, 1.0 op_sel_hi:[1,1,0]")
                for i in range(8): r.append(f"v_rcp_f32 v{u+i}, v{u+i}")
                for i in range(0, 8, 2): r.append(f"v_pk_fma_f32 {v(u+i,2)}, {v(a+i,2)}, {v(u+i,2)}, {v(a+i,2)} neg_lo:[1,0,0] neg_hi:[1,0,0]")
            else:
                for i in range(8): r.append(f"v_mul_f32 v{t+i}, v{a+i}, v{VC1+2*ti}")
                for i in range(8): r.append(f"v_exp_f32 v{t+i}, v{t+i}")
                for i in range(8): r.append(f"v_fma_f32 v{u+i}, v{t+i}, 0.5, 1.0")
                for i in range(8): r.append(f"v_fma_f32 v{u+i}, v{t+i}, v{u+i}, 1.0")
                for i in range(8): r.append(f"v_rcp_f32 v{u+i}, v{u+i}")
                for i in range(8): r.append(f"v_fma_f32 v{u+i}, -v{a+i}, v{u+i}, v{a+i}")
            for i in range(4): r.append(f"v_cvt_pk_bf16_f32 v{o+i}, v{u+2*i}, v{u+2*i+1}")
            return "\n".join(r)
        stok = {}
        gi = 0
        for fi in range(2):
            for ti in range(2):
                for sh in range(2):
                    o = MO + 4 * (gi % 4)
                    p(mish_group(ACC + 32 * fi + 16 * ti + 8 * sh, ti, o, gi & 1))
                    stok[fi] = p.tok(f"buffer_store_dwordx4 {v(o,4)}, v{VL16}, {s(R_WS,4)}, s{S_ACTW} offen offset:{sh*2048+ti*1024} sc1")
                    if gi < 6: read_w2(2 * gi, p); read_w2(2 * gi + 1, p)
                    if 1 <= gi <= 6: p.wait(rtok[2 * gi - 1]); dma_w2(gi + 3, p)
                    gi += 1
            if fi == 0: p(f"s_add_u32 s{S_ACTW}, s{S_ACTW}, 4096")
        self.stamp("mish")
        p.wait(stok[0]); self.flag_store(S_FAW, VT)
        p(f"s_add_u32 s{S_FAW}, s{S_FAW}, 512")
        p.wait(stok[1]); self.flag_store(S_FAW, VT)
        self.stamp("flagA")
        self.poll_flags(S_FAR, 7, 'A', VT + 1)
        self.stamp("act0")
        def load_act(n, q):
            pn = n >> 1
            if n % 2 == 0: q(f"s_add_u32 s{S_Y}, s{S_ACTR}, {((pn%7)*4 + (pn//7)*2)*2048}")
            for ti in range(2):
                q(f"buffer_load_dwordx4 {v(AB+8*(n%8)+4*ti,4)}, v{VL16}, {s(R_WS,4)}, s{S_Y} offen offset:{(n&1)*2048+ti*1024} sc1")
        for n in range(8): load_act(n, p)
        for n in range(28):
            for di, ti in ((0, 0), (1, 0), (0, 1), (1, 1)):
                a = v(ACC + 32 * di + 16 * ti, 16)
                p(f"v_mfma_f32_32x32x16_bf16 {a}, {v(W2R+8*(n%12)+4*di,4)}, {v(AB+8*(n%8)+4*ti,4)}, {'0' if n == 0 else a}")
            if n == 6:
                p(f"s_add_u32 s{S_FAR}, s{S_FAR}, 512"); self.poll_flags(S_FAR, 7, 'a', VT + 1); self.stamp("act1")
            if n + 8 < 28: load_act(n + 8, p)
            if n % 2 == 0 and n >= 2 and (n >> 1) + 9 < 14:
                p.wait(rtok[n + 11]); dma_w2((n >> 1) + 9, p)
            if n + 12 < 28: read_w2(n + 12, p)
        self.stamp("gemm2")
        p(f"v_and_b32 v{VT}, 31, v0\nv_lshrrev_b32 v{VT+1}, 5, v0\nv_and_b32 v{VT+2}, 7, v0\nv_xor_b32 v{VT+1}, v{VT+1}, v{VT+2}\nv_bfe_u32 v{VT+2}, v0, 4, 1\nv_lshl_or_b32 v{VT+1}, v{VT+2}, 3, v{VT+1}")
        p(f"v_lshlrev_b32 v{VT+1}, 4, v{VT+1}\nv_lshl_add_u32 v{VT+1}, v{VT}, 8, v{VT+1}\nv_add_u32 v{VD}, s{S_RING}, v{VT+1}")
        for k in range(1, 8): p(f"v_xor_b32 v{VD+k}, {32*k}, v{VD}")
        for ti in range(2):
            for di in range(2):
                for g4 in range(4):
                    p(f"ds_write_b128 v{VD+4*di+g4}, {v(ACC+32*di+16*ti+4*g4,4)} offset:{ti*SLOT}")
        p("s_waitcnt lgkmcnt(0)\ns_barrier")
        self.stamp("barF")
        self.stamp_flush(1)
        p("s_endpgm")

    def role_b(self):
        p, c = self.p, self.c
        p.label("L_roleB")
        self.role_start(); self.stamp_begin("B")
        S_BW, S_CHN, S_MH, S_LDT, S_DSK, S_FXR, S_XTR, S_STW, S_FSW, S_FSR, S_STR, S_XO = range(64, 76)
        S_X, S_Y = 78, 79
        T = S_T
        VP, VSW, VSR, VG, VT = 2, 8, 24, 28, 50
        if c.prio_b: p(f"s_setprio {c.prio_b}")
        p(f"s_sub_u32 s{S_BW}, s{S_WAVE}, 4\ns_lshr_b32 s{S_CHN}, s{S_BW}, 1\ns_and_b32 s{S_MH}, s{S_BW}, 1")
        p(f"s_lshl_b32 s{T}, s{S_CP}, 2\ns_add_u32 s{T+1}, s{T}, s{S_BW}\ns_lshl_b32 s{T+1}, s{T+1}, 8\nv_lshl_add_u32 v1, v0, 2, s{T+1}")
        for i, ptr in enumerate((P_ARE, P_AIM, P_BRE, P_BIM, P_CRE, P_CIM)):
            p(f"global_load_dword v{VP+i}, v1, {s(ptr,2)}")
        p(f"s_load_dword s{S_LDT}, {s(P_LDT,2)}, s{T}\ns_load_dword s{S_DSK}, {s(P_DSK,2)}, s{T}")
        srd(p, R_LD, P_U, 2048 * 896); srd(p, R_2, P_OUT, 2048 * 896)
        p(f"s_lshl_b32 s{T}, s{S_BW}, 13\ns_add_u32 s{T}, s{T}, {L_BR}\nv_lshl_add_u32 v{VSW}, v0, 3, s{T}")
        for r in range(1, 16): p(f"v_xor_b32 v{VSW+r}, {16*r}, v{VSW}")
        p(f"v_and_b32 v{VT}, 15, v0\nv_lshrrev_b32 v{VT+1}, 4, v0\nv_xor_b32 v{VT+2}, v{VT}, v{VT+1}\nv_lshlrev_b32 v{VT+2}, 4, v{VT+2}\nv_lshl_add_u32 v{VT+2}, v{VT}, 9, v{VT+2}\nv_add_u32 v{VSR}, s{T}, v{VT+2}")
        for k in range(1, 4): p(f"v_xor_b32 v{VSR+k}, {64*k}, v{VSR}")
        p(f"s_lshl_b32 s{T}, s{S_MH}, 10\ns_sub_u32 s{T}, 2047, s{T}\nv_lshlrev_b32 v{VT}, 3, v0\nv_sub_u32 v{VT}, s{T}, v{VT}")
        p(f"s_mul_i32 s{T}, s{S_CHN}, 2688\ns_add_u32 s{T}, s{T}, {L_KC+16}\ns_movk_i32 s{T+1}, 128")
        for task in range(2):
            for i in range(11):
                d = VG + 11 * task + i
                p(f"v_subrev_u32 v{d}, {512*task+i}, v{VT}\nv_cvt_f32_i32 v{VT+1}, v{d}\nv_min_i32 v{d}, s{T+1}, v{d}\nv_cvt_pk_bf16_f32 v{VT+1}, v{VT+1}, v{VT+1}")
                p(f"v_ashrrev_i32 v{VT+1}, 16, v{VT+1}\nv_subrev_u32 v{VT+1}, 17024, v{VT+1}\nv_max_i32 v{d}, v{d}, v{VT+1}\nv_lshl_add_u32 v{d}, v{d}, 2, s{T}")
        p(f"s_lshr_b32 s{T}, s{S_CP}, 4\ns_lshl_b32 s{S_FXR}, s{T}, 2\ns_add_u32 s{S_FXR}, s{S_FXR}, s{S_BW}\ns_lshl_b32 s{S_FXR}, s{S_FXR}, 5\ns_add_u32 s{S_FXR}, s{S_FXR}, {WS_FX}")
        p(f"s_lshl_b32 s{S_XTR}, s{S_CP}, 3\ns_add_u32 s{S_XTR}, s{S_XTR}, s{S_BW}\ns_lshl_b32 s{S_XTR}, s{S_XTR}, 10\ns_add_u32 s{S_XTR}, s{S_XTR}, {WS_XT}")
        p(f"s_lshl_b32 s{S_STW}, s{S_CP}, 2\ns_add_u32 s{S_STW}, s{S_STW}, s{S_BW}\ns_lshl_b32 s{S_STW}, s{S_STW}, 11\ns_add_u32 s{S_STW}, s{S_STW}, {WS_ST}")
        p(f"s_mul_i32 s{S_FSW}, s{S_BW}, 14\ns_add_u32 s{S_FSW}, s{S_FSW}, s{T}\ns_lshl_b32 s{S_FSW}, s{S_FSW}, 5\ns_and_b32 s{T+1}, s{S_CP}, 15\ns_add_u32 s{S_FSW}, s{S_FSW}, s{T+1}\ns_lshl_b32 s{S_FSW}, s{S_FSW}, 2\ns_add_u32 s{S_FSW}, s{S_FSW}, {WS_FS}")
        p(f"s_lshl_b32 s{T}, s{S_C2}, 1\ns_add_u32 s{T}, s{T}, s{S_CHN}")
        p(f"s_lshr_b32 s{T+1}, s{S_R2}, 3\ns_mul_i32 s{S_FSR}, s{T+1}, 14\ns_add_u32 s{S_FSR}, s{S_FSR}, s{T}\ns_lshl_b32 s{S_FSR}, s{S_FSR}, 7\ns_add_u32 s{S_FSR}, s{S_FSR}, {WS_FS}")
        p(f"s_lshl_b32 s{S_STR}, s{T}, 9\ns_add_u32 s{S_STR}, s{S_STR}, s{S_R2}\ns_lshl_b32 s{S_STR}, s{S_STR}, 1\ns_add_u32 s{S_STR}, s{S_STR}, s{S_MH}\ns_lshl_b32 s{S_STR}, s{S_STR}, 7\ns_add_u32 s{S_STR}, s{S_STR}, {WS_ST}")
        p(f"s_lshl_b32 s{S_XO}, s{S_R2}, 3\ns_add_u32 s{S_XO}, s{S_XO}, s{S_MH}\ns_mul_i32 s{S_XO}, s{S_XO}, {8*896}\ns_lshl_b32 s{T}, s{T}, 6\ns_add_u32 s{S_XO}, s{S_XO}, s{T}")
        self.make_tag()
        p(f"s_lshl_b32 s{T}, s{S_CHN}, 4\ns_lshr_b32 s{S_LDT}, s{S_LDT}, s{T}\ns_lshl_b32 s{S_LDT}, s{S_LDT}, 16\ns_lshr_b32 s{S_DSK}, s{S_DSK}, s{T}\ns_lshl_b32 s{S_DSK}, s{S_DSK}, 16")
        VDT = 60
        p(f"v_mov_b32 v{VDT}, {LOG2E}\nv_mul_f32 v{VDT}, s{S_LDT}, v{VDT}\nv_exp_f32 v{VDT}, v{VDT}\nv_cvt_pk_bf16_f32 v{VDT}, v{VDT}, v{VDT}\nv_and_b32 v{VDT}, 0xffff0000, v{VDT}\nv_mov_b32 v{VDT+1}, v{VDT}")
        self.stamp("pre", sets=(0, 1))
        Z1, Z2, Z4, Z8, Z128, XB, XC, XD, TM, CV = 64, 68, 72, 76, 80, 84, 88, 92, 96, 100
        AL, BE, UB = 108, 110, 112
        YF, XF, KA = 128, 160, 192
        def unpack(d, src): p(f"v_lshlrev_b32 v{d}, 16, v{src}\nv_and_b32 v{d+1}, 0xffff0000, v{src}")
        def cmul(d, a, b):
            p(f"v_pk_mul_f32 {v(TM,2)}, {v(a,2)}, {v(b,2)}\nv_pk_mul_f32 {v(TM+2,2)}, {v(a,2)}, {v(b+2,2)}")
            p(f"v_pk_fma_f32 {v(d,2)}, {v(a+2,2)}, {v(b+2,2)}, {v(TM,2)} neg_lo:[1,0,0] neg_hi:[1,0,0]")
            assert d != b
            p(f"v_pk_fma_f32 {v(d+2,2)}, {v(a+2,2)}, {v(b,2)}, {v(TM+2,2)}")
        cvn = [0]
        def put(row, a, conj):
            o = CV + 2 * (cvn[0] % 4); cvn[0] += 1
            ng = "-" if conj else ""
            p(f"v_cvt_pk_bf16_f32 v{o}, v{a}, {ng}v{a+2}\nv_cvt_pk_bf16_f32 v{o+1}, v{a+1}, {ng}v{a+3}\nds_write_b64 v{VSW+row}, {v(o,2)} offset:{row*512}")
        def getfr(base):
            for fr in range(8): p(f"ds_read_b128 {v(base+4*fr,4)}, v{VSR+(fr&3)} offset:{(fr>>2)*256}")
        def kmfma(tile):
            a = v(KA + 4 * tile, 4)
            for fr in range(8): p(f"v_mfma_f32_16x16x32_bf16 {a}, {v(XF+4*fr,4)}, {v(YF+4*fr,4)}, {'0' if fr == 0 else a}")
        unpack(AL, VP); unpack(BE, VP + 1)
        self.stamp("params", sets=(0, 1))
        dts = ""
        p(f"v_pk_mul_f32 {v(AL,2)}, {v(AL,2)}, {v(VDT,2)} {dts}\nv_pk_mul_f32 {v(BE,2)}, {v(BE,2)}, {v(VDT,2)} {dts}")
        for m in range(2): p(f"v_mul_f32 v{AL+m}, {LOG2E}, v{AL+m}\nv_mul_f32 v{BE+m}, 0.15915494, v{BE+m}")
        def zpow(d, lg):
            for m in range(2):
                if lg: p(f"v_ldexp_f32 v{TM+m}, v{AL+m}, {lg}\nv_ldexp_f32 v{TM+2+m}, v{BE+m}, {lg}")
                a, b = (TM + m, TM + 2 + m) if lg else (AL + m, BE + m)
                p(f"v_exp_f32 v{TM+m}, v{a}\nv_fract_f32 v{TM+2+m}, v{b}")
            for m in range(2): p(f"v_cos_f32 v{d+m}, v{TM+2+m}\nv_sin_f32 v{d+2+m}, v{TM+2+m}")
            p(f"v_pk_mul_f32 {v(d,2)}, {v(d,2)}, {v(TM,2)}\nv_pk_mul_f32 {v(d+2,2)}, {v(d+2,2)}, {v(TM,2)}")
        zpow(Z8, 3)
        p(f"v_mov_b32 v{CV+6}, 0x3f80\nv_mov_b32 v{CV+7}, 0x3f80\nds_write_b64 v{VSW}, {v(CV+6,2)}")
        put(1, Z8, False)
        prev = Z8
        for r in range(2, 16):
            cmul(XB, prev, Z8); prev = XB; put(r, XB, False)
        getfr(YF)
        self.stamp("Y", sets=(1,))
        zpow(Z1, 0); zpow(Z128, 7)
        unpack(UB, VP + 2); unpack(UB + 2, VP + 3); unpack(UB + 4, VP + 4); unpack(UB + 6, VP + 5)
        cmul(XC, UB, UB + 4)
        p(f"v_pk_mul_f32 {v(XC,2)}, {v(XC,2)}, {v(VDT,2)} {dts}\nv_pk_mul_f32 {v(XC+2,2)}, {v(XC+2,2)}, {v(VDT,2)} {dts}")
        cmul(XB, XC, Z128)
        put(0, XC, True); put(8, XB, True)
        prev = XB
        for r in range(1, 8):
            cmul(XC, XC, Z1); put(r, XC, True)
            cmul(XD, prev, Z1); prev = XD; put(8 + r, XD, True)
        getfr(XF)
        self.stamp("X0", sets=(1,))
        cmul(Z2, Z1, Z1); cmul(Z4, Z2, Z2)
        first = True
        for k in range(2):
            cmul(XB, XB, Z128)
            if first: kmfma(0); first = False
            put(4 * k, XB, True); prev = XB
            for r in range(1, 4): cmul(XC, prev, Z2); prev = XC; put(4 * k + r, XC, True)
        for k in range(4):
            cmul(XB, XB, Z128); put(8 + 2 * k, XB, True)
            cmul(XC, XB, Z4); put(9 + 2 * k, XC, True)
        getfr(XF)
        self.stamp("X1", sets=(1,))
        for k in range(9):
            cmul(XB, XB, Z128)
            if k == 2: kmfma(1)
            put(k, XB, True)
        getfr(XF)
        VK = VSW
        p(f"s_mul_i32 s{T}, s{S_CHN}, 2688\ns_add_u32 s{T}, s{T}, {L_KC+16}\nv_and_b32 v{VT}, 15, v0\nv_lshrrev_b32 v{VT+1}, 4, v0\nv_cmp_gt_u32 vcc, 32, v0")
        p(f"v_bfe_u32 v{VT+2}, v0, 4, 1\nv_lshlrev_b32 v{VT+2}, 2, v{VT+2}\nv_lshl_add_u32 v{VT+2}, v{VT}, 3, v{VT+2}\nv_lshrrev_b32 v{VT+3}, 5, v0\nv_lshl_add_u32 v{VT+2}, v{VT+3}, 7, v{VT+2}\nv_lshl_add_u32 v{VK}, v{VT+2}, 2, s{T}")
        p(f"v_lshlrev_b32 v{VT+2}, 2, v{VT}\nv_lshlrev_b32 v{VT+3}, 1, v{VT}\nv_cndmask_b32 v{VT+2}, v{VT+3}, v{VT+2}, vcc\nv_lshl_add_u32 v{VT+2}, v{VT+1}, 6, v{VT+2}\nv_lshl_add_u32 v{VK+1}, v{VT+2}, 2, s{T}")
        p(f"v_mov_b32 v{VT+3}, 128\nv_cndmask_b32 v{VT+3}, v{VT+3}, 8, vcc\nv_add_u32 v{VK+2}, v{VK+1}, v{VT+3}")
        p(f"v_lshl_add_u32 v{VT+2}, v{VT+1}, 6, v{VT}\nv_lshl_add_u32 v{VK+3}, v{VT+2}, 2, s{T}")
        kmfma(2)
        self.stamp("kgen", sets=(0, 1))
        p("s_waitcnt lgkmcnt(0)\ns_barrier")
        def kscatter(op):
            for r in range(4): p(f"{op} v{VK}, v{KA+r} offset:{4*r}")
            for r in range(4): p(f"{op} v{VK+1+(r>>1)}, v{KA+4+r} offset:{1024+4*(r&1)}")
            p("s_mov_b32 exec_hi, 0")
            for r in range(1, 4): p(f"{op} v{VK+3}, v{KA+8+r} offset:{2048+64*r}")
            p("s_mov_b32 exec_hi, 0xffff")
            p(f"{op} v{VK+3}, v{KA+8} offset:2048")
            p("s_mov_b64 exec, -1")
        VZ = 116
        l0, l1 = self.lab("mh1"), self.lab("mhj")
        for i in range(4): p(f"v_mov_b32 v{VZ+i}, 0")
        p(f"s_cmp_lg_u32 s{S_MH}, 0\ns_cbranch_scc1 {l0}")
        p.alt_begin()
        p(f"v_mov_b32 v{VT}, s{S_DSK}\nv_cmp_eq_u32 vcc, 0, v0\nv_cndmask_b32 v{VT}, 0, v{VT}, vcc\nv_add_f32 v{KA}, v{KA}, v{VT}")
        kscatter("ds_write_b32")
        p("s_waitcnt lgkmcnt(0)\ns_barrier")
        p(f"s_branch {l1}")
        p.alt_else()
        p.label(l0)
        p(f"s_mul_i32 s{T}, s{S_CHN}, 4608\ns_add_u32 s{T}, s{T}, {L_U}\nv_lshl_add_u32 v{VT}, v0, 3, s{T}\nds_write_b64 v{VT}, {v(VZ,2)}")
        p(f"s_mul_i32 s{T}, s{S_CHN}, 2688\ns_add_u32 s{T}, s{T}, {L_KC}\nv_mov_b32 v{VT+1}, s{T}\nv_mov_b32 v{VT+2}, {L_CNT}\nds_write_b128 v{VT+1}, {v(VZ,4)}\nds_write_b32 v{VT+2}, v{VZ}")
        p("s_waitcnt lgkmcnt(0)\ns_barrier")
        kscatter("ds_add_f32")
        p.alt_end()
        p.label(l1)
        p("s_waitcnt lgkmcnt(0)")
        self.stamp("atbar2", sets=(1,))
        p("s_barrier")
        GV, PK = 64, 128
        for k in range(22): p(f"ds_read_b32 v{GV+k}, v{VG+k}")
        for task in range(2):
            if task == 1: self.stamp("atbar3", sets=(1,)); p("s_barrier")
            for cp_ in range(4):
                for j in range(4):
                    a = GV + 11 * task + cp_ + 2 * j
                    p(f"v_cvt_pk_bf16_f32 v{PK+16*task+4*cp_+j}, v{a}, v{a+1}")
        p(f"s_mul_i32 s{T}, s{S_CHN}, 16640\ns_add_u32 s{T}, s{T}, {L_TAB}\ns_lshl_b32 s{T+1}, s{S_MH}, 11\ns_add_u32 s{T+1}, s{T+1}, s{T}\nv_lshl_add_u32 v{VT}, v0, 4, s{T+1}")
        p(f"v_lshrrev_b32 v{VT+1}, 1, v0\nv_mul_u32_u24 v{VT+1}, 4160, v{VT+1}\nv_and_b32 v{VT+2}, 1, v0\nv_lshlrev_b32 v{VT+2}, 4, v{VT+2}\nv_add3_u32 v{VT+1}, v{VT+1}, v{VT+2}, s{T}")
        self.stamp("atbar4", sets=(1,))
        p("s_barrier")
        for task in range(2):
            for cp_ in range(4):
                p(f"ds_write_b128 v{VT}, {v(PK+16*task+4*cp_,4)} offset:{cp_*4160+task*1024}")
        p(f"s_mov_b64 exec, 0xff\nds_write_b128 v{VT+1}, {v(VZ,4)} offset:4096\ns_mov_b64 exec, -1")
        VL16, SG, SR = 1, 64, 80
        p(f"v_lshlrev_b32 v{VL16}, 4, v0\ns_lshl_b32 s{S_X}, s{S_BW}, 12\ns_add_u32 s{S_X}, s{S_X}, {WS_STAT}")
        sloads = "\n".join(f"buffer_load_dwordx4 {v(SG+4*i,4)}, v{VL16}, {s(R_WS,4)}, s{S_X} offen offset:{1024*i} sc1" for i in range(4))
        p(sloads)
        VTA, VUA, VUW, VCN, VONE, VEXW, VEXR, VTAG = 2, 3, 4, 5, 6, 7, 8, 9
        p(f"v_and_b32 v{VT}, 15, v0\nv_lshrrev_b32 v{VT+1}, 4, v0\nv_sub_u32 v{VT+2}, 3, v{VT}\nv_and_b32 v{VT+2}, 3, v{VT+2}")
        p(f"v_mul_u32_u24 v{VT+3}, {4160-2}, v{VT+2}\nv_lshl_add_u32 v{VT+3}, v{VT+1}, 4, v{VT+3}\nv_lshlrev_b32 v{VT+2}, 1, v{VT}\nv_sub_u32 v{VT+3}, v{VT+3}, v{VT+2}")
        p(f"s_lshl_b32 s{T+1}, s{S_MH}, 8\ns_sub_u32 s{T}, s{T}, s{T+1}\ns_add_u32 s{T}, s{T}, {2*(2031-1792-96)}\nv_add_u32 v{VTA}, s{T}, v{VT+3}")
        p(f"s_mul_i32 s{T}, s{S_CHN}, 4608\ns_sub_u32 s{T}, s{T}, s{T+1}\ns_add_u32 s{T}, s{T}, {L_U+2*(240-96)}\nv_lshlrev_b32 v{VT+2}, 5, v{VT}\nv_lshl_add_u32 v{VT+2}, v{VT+1}, 4, v{VT+2}\nv_add_u32 v{VUA}, s{T}, v{VT+2}")
        p(f"s_lshl_b32 s{T}, s{S_BW}, 10\ns_add_u32 s{T}, s{T}, {L_U+512}\nv_add_u32 v{VUW}, s{T}, v{VL16}")
        p(f"v_mov_b32 v{VCN}, {L_CNT}\nv_mov_b32 v{VONE}, 1\nv_mov_b32 v{VTAG}, s{S_TAG}")
        p(f"s_lshl_b32 s{T}, s{S_BW}, 13\ns_add_u32 s{T}, s{T}, {L_EX}\nv_add_u32 v{VEXW}, s{T}, v{VL16}\ns_lshl_b32 s{T}, s{S_BW}, 11\ns_add_u32 s{T}, s{T}, {L_EX}\nv_add_u32 v{VEXR}, s{T}, v{VL16}")
        p("s_waitcnt lgkmcnt(0)")
        self.stamp("atbar5", sets=(1,))
        p("s_barrier")
        TF, UF, CA = 96, 160, 224
        def read_t(ph):
            r = []
            for a in range(8):
                for h in range(2):
                    r.append(I(f"ds_read_b64 {v(TF+32*(ph&1)+4*a+2*h,2)}, v{VTA} offset:{2*(256*(7-a)+32*(3-ph))+8*h}"))
            return r
        def read_u(ph):
            return [I(f"ds_read_b128 {v(UF+32*(ph&1)+4*b,4)}, v{VUA} offset:{2*(256*b+32*(3-ph))}") for b in range(8)]
        p.extend(read_t(0))
        self.stamp("atbar6", sets=(1,))
        p("s_barrier")
        p.extend(read_t(1))
        self.stamp("bar6")
        self.tagged_check(sloads, [SG + 2 * i + 1 for i in range(8)], VT)
        for i in range(8):
            p(f"v_and_b32 v{SR+i}, 0xffff0000, v{SG+2*i}\nv_rcp_f32 v{SR+i}, v{SR+i}\nv_lshlrev_b32 v{SR+8+i}, 16, v{SG+2*i}\nv_mul_f32 v{SR+8+i}, -v{SR+8+i}, v{SR+i}")
        self.stamp("stats")
        self.poll_flags(S_FXR, 8, 'X', VT)
        self.stamp("fx")
        XR = 10
        p(f"buffer_load_dwordx4 {v(XR,4)}, v{VL16}, {s(R_WS,4)}, s{S_XTR} offen sc1\ns_add_u32 s{S_XTR}, s{S_XTR}, 4096\nbuffer_load_dwordx4 {v(XR+4,4)}, v{VL16}, {s(R_WS,4)}, s{S_XTR} offen sc1")
        for ch in range(2):
            for j in range(4):
                a = SG + 8 * ch + 2 * j; x = XR + 4 * ch + j
                p(f"v_lshlrev_b32 v{a}, 16, v{x}\nv_and_b32 v{a+1}, 0xffff0000, v{x}\nv_fma_f32 v{a}, v{a}, v{SR+2*j}, v{SR+8+2*j}\nv_fma_f32 v{a+1}, v{a+1}, v{SR+2*j+1}, v{SR+9+2*j}\nv_cvt_pk_bf16_f32 v{x}, v{a}, v{a+1}")
            p(f"ds_write_b128 v{VUW}, {v(XR+4*ch,4)} offset:{4608*ch}")
        self.lds_arrive(VCN, VONE)
        self.lds_wait(VCN, VT, 8)
        self.stamp("u")
        p.extend(read_u(0))
        for ph in range(4):
            mm = []
            for b in range(8):
                for a in range(8 - b):
                    acc = v(CA + 4 * (a + b), 4)
                    mm.append(I(f"v_mfma_f32_16x16x32_bf16 {acc}, {v(UF+32*(ph&1)+4*b,4)}, {v(TF+32*(ph&1)+4*a,4)}, {'0' if (ph == 0 and b == 0) else acc}"))
            fill = []
            if ph < 3: fill = (read_t(ph + 1) if ph >= 1 else []) + read_u(ph + 1)
            p.extend(interleave(mm, fill, ratio=1.0))
        self.stamp("conv")
        for cc in range(8): p(f"ds_write_b128 v{VEXW}, {v(CA+4*cc,4)} offset:{1024*cc}")
        self.lds_arrive(VCN, VONE)
        VXO, VPA, VSA, XI, RG = 10, 11, 13, 16, 24
        p(f"v_bfe_u32 v{VT}, v0, 2, 2\nv_lshrrev_b32 v{VT+1}, 4, v0\nv_and_b32 v{VT+2}, 3, v0")
        p(f"v_lshl_add_u32 v{VT+3}, v{VT}, 4, v{VT+1}\nv_mul_u32_u24 v{VXO}, 896, v{VT+3}\nv_lshl_add_u32 v{VXO}, v{VT+2}, 4, v{VXO}")
        for ps in range(2): p(f"buffer_load_dwordx4 {v(XI+4*ps,4)}, v{VXO}, {s(R_LD,4)}, s{S_XO} offen offset:{ps*4*896}")
        p(f"s_lshr_b32 s{T}, s{S_R2}, 3\ns_lshl_b32 s{T}, s{T}, 12\ns_and_b32 s{T+1}, s{S_R2}, 7\ns_lshl_b32 s{T+1}, s{T+1}, 3\ns_add_u32 s{T+1}, s{T+1}, s{S_MH}\ns_lshl_b32 s{T+1}, s{T+1}, 4\ns_add_u32 s{T}, s{T}, s{T+1}\ns_add_u32 s{S_X}, s{T}, {WS_STAT}")
        p(f"v_lshrrev_b32 v{VT+4}, 5, v0\nv_lshlrev_b32 v{VT+4}, 10, v{VT+4}\nv_lshl_add_u32 v{VT+4}, v{VT}, 5, v{VT+4}\nv_and_b32 v{VT+5}, 1, v{VT+1}\nv_lshl_add_u32 v{VT+4}, v{VT+5}, 3, v{VT+4}")
        for ps in range(2): p(f"buffer_load_dword v{RG+ps}, v{VT+4}, {s(R_WS,4)}, s{S_X} offen offset:{ps*2048} sc1")
        self.lds_wait(VCN, VT + 6, 12)
        EXV = 96
        for k in range(2):
            for w in range(4): p(f"ds_read_b128 {v(EXV+16*k+4*w,4)}, v{VEXR} offset:{8192*w+1024*k}")
        for k in range(2):
            b = EXV + 16 * k
            for r in range(4): p(f"v_add_f32 v{b+r}, v{b+r}, v{b+4+r}\nv_add_f32 v{b+8+r}, v{b+8+r}, v{b+12+r}")
            for r in range(4): p(f"v_cvt_pk_bf16_f32 v{b+4+r}, v{b+r}, v{b+8+r}")
            sttok = p.tok(f"buffer_store_dwordx4 {v(b+4,4)}, v{VL16}, {s(R_WS,4)}, s{S_STW} offen offset:{1024*k} sc1")
        self.stamp("st")
        p(f"s_lshl_b32 s{T}, s{S_MH}, 3\nv_and_b32 v{VT+4}, 1, v{VT}\nv_lshl_add_u32 v{VT+5}, v{VT+4}, 4, v{VT+1}\nv_add_u32 v{VT+5}, s{T}, v{VT+5}\nv_lshlrev_b32 v{VT+5}, 8, v{VT+5}")
        p(f"v_lshrrev_b32 v{VT+6}, 1, v{VT}\nv_lshl_add_u32 v{VT+5}, v{VT+6}, 15, v{VT+5}")
        p(f"v_xor_b32 v{VT+4}, s{S_CHN}, v{VT+4}\nv_lshlrev_b32 v{VT+4}, 3, v{VT+4}\nv_lshl_add_u32 v{VT+4}, v{VT+2}, 1, v{VT+4}\nv_xor_b32 v{VT+4}, v{VT+4}, v{VT+1}\nv_lshl_add_u32 v{VPA}, v{VT+4}, 4, v{VT+5}")
        VP4 = 28
        for ps in range(2):
            for e in range(2): p(f"v_xor_b32 v{VP4+2*ps+e}, {64*ps+16*e}, v{VPA}")
        p(f"s_mul_i32 s{T}, s{S_BW}, 2176\ns_add_u32 s{T}, s{T}, {L_STR}")
        p(f"v_lshrrev_b32 v{VT+4}, 5, v0\nv_lshl_add_u32 v{VT+4}, v{VT+4}, 5, v{VL16}\nv_add_u32 v{VSA}, s{T}, v{VT+4}")
        p(f"v_mul_u32_u24 v{VT+4}, 544, v{VT+2}\nv_and_b32 v{VT+5}, 60, v0\nv_add3_u32 v{VSA+1}, v{VT+4}, v{VT+5}, s{T}")
        p(f"v_lshrrev_b32 v{VT+4}, 3, v0\nv_lshlrev_b32 v{VT+4}, 13, v{VT+4}\nv_and_b32 v{VT+5}, 7, v0\nv_lshl_add_u32 v{VSA+2}, v{VT+5}, 4, v{VT+4}")
        XF32, RR, SV, SRF = 128, 2, 32, 144
        for ps in range(2):
            for j in range(4):
                p(f"v_lshlrev_b32 v{XF32+8*ps+2*j}, 16, v{XI+4*ps+j}\nv_and_b32 v{XF32+8*ps+2*j+1}, 0xffff0000, v{XI+4*ps+j}")
            p(f"v_and_b32 v{RG+ps}, 0xffff0000, v{RG+ps}\nv_rcp_f32 v{RG+ps}, v{RG+ps}\nv_mul_f32 v{RR+2*ps}, {LOG2E | 0x80000000}, v{RG+ps}\nv_mul_f32 v{RR+2*ps+1}, {LOG2E | 0x80000000}, v{RG+ps}")
        p.wait(sttok); self.flag_store(S_FSW, VTAG)
        self.stamp("flagS")
        self.poll_flags(S_FSR, 16, 'S', VT + 4)
        self.stamp("fs")
        p(f"buffer_load_dwordx4 {v(SV,4)}, v{VSA+2}, {s(R_WS,4)}, s{S_STR} offen sc1\ns_add_u32 s{S_STR}, s{S_STR}, 65536\nbuffer_load_dwordx4 {v(SV+4,4)}, v{VSA+2}, {s(R_WS,4)}, s{S_STR} offen sc1")
        for j in range(2): p(f"ds_write_b128 v{VSA}, {v(SV+4*j,4)} offset:{1088*j}")
        for ps in range(2):
            for i in range(4): p(f"ds_read_b32 v{SV+8+4*ps+i}, v{VSA+1} offset:{128*i+64*ps}")
        for ps in range(2):
            for i in range(4):
                a = SRF + 8 * ps + 2 * i; x = SV + 8 + 4 * ps + i
                p(f"v_lshlrev_b32 v{a}, 16, v{x}\nv_and_b32 v{a+1}, 0xffff0000, v{x}\nv_mul_f32 v{a}, v{a}, v{RG+ps}\nv_mul_f32 v{a+1}, v{a+1}, v{RG+ps}")
        self.stamp("sready")
        p("s_barrier")
        PV = 160
        for ps in range(2):
            for w in range(4):
                for e in range(2):
                    p(f"ds_read_b128 {v(PV+32*ps+8*w+4*e,4)}, v{VP4+2*ps+e} offset:{8192*w+1024*ps}")
        for ps in range(2):
            b = PV + 32 * ps
            for i in range(0, 8, 2): p(f"v_pk_add_f32 {v(b+i,2)}, {v(b+i,2)}, {v(b+8+i,2)}")
            for i in range(0, 8, 2): p(f"v_pk_add_f32 {v(b+16+i,2)}, {v(b+16+i,2)}, {v(b+24+i,2)}")
            for i in range(0, 8, 2): p(f"v_pk_add_f32 {v(b+i,2)}, {v(b+i,2)}, {v(b+16+i,2)}")
            for i in range(0, 8, 2): p(f"v_pk_mul_f32 {v(b+8+i,2)}, {v(b+i,2)}, {v(RR+2*ps,2)}")
            for i in range(8): p(f"v_exp_f32 v{b+8+i}, v{b+8+i}")
            for i in range(0, 8, 2): p(f"v_pk_mul_f32 {v(b+i,2)}, {v(b+i,2)}, {v(SRF+8*ps+i,2)}")
            for i in range(0, 8, 2): p(f"v_pk_add_f32 {v(b+8+i,2)}, {v(b+8+i,2)}, 1.0 op_sel_hi:[1,0]")
            for i in range(8): p(f"v_rcp_f32 v{b+8+i}, v{b+8+i}")
            for i in range(0, 8, 2): p(f"v_pk_fma_f32 {v(b+i,2)}, {v(b+i,2)}, {v(b+8+i,2)}, {v(XF32+8*ps+i,2)}")
            for i in range(4): p(f"v_cvt_pk_bf16_f32 v{b+16+i}, v{b+2*i}, v{b+2*i+1}")
            p(f"buffer_store_dwordx4 {v(b+16,4)}, v{VXO}, {s(R_2,4)}, s{S_XO} offen offset:{ps*4*896}")
        self.stamp("end")
        self.stamp_flush(1)
        p("s_endpgm")

    def role_h(self):
        p, c = self.p, self.c
        p.label("L_helper")
        self.role_start(); self.stamp_begin("H")
        S_HH, S_X, S_Y, S_ONE, S_LO, S_HI = 64, 65, 66, 67, 68, 69
        T = S_T
        VT, XD, WD, AC = 1, 16, 48, 80
        srd(p, R_LD, P_U, 2048 * 896); srd(p, R_2, P_W1, 448 * 3584)
        p(f"s_lshl_b32 s{S_HH}, s{S_XCD}, 2\ns_add_u32 s{S_HH}, s{S_HH}, s{S_J}\ns_sub_u32 s{S_HH}, s{S_HH}, 28")
        p(f"s_lshl_b32 s{T}, s{S_HH}, 1\ns_and_b32 s{T+1}, s{S_WAVE}, 1\ns_add_u32 s{T}, s{T}, s{T+1}\ns_lshl_b32 s{T}, s{T}, 5\ns_and_b32 s{S_X}, s{S_WAVE}, 6\ns_add_u32 s{T}, s{T}, s{S_X}\ns_mul_i32 s{S_X}, s{T}, 896")
        p(f"v_lshrrev_b32 v{VT}, 4, v0\nv_bfe_u32 v{VT+1}, v0, 3, 1\nv_lshl_add_u32 v{VT}, v{VT}, 3, v{VT+1}\nv_mul_u32_u24 v{VT}, 896, v{VT}\nv_and_b32 v{VT+1}, 7, v0\nv_lshl_add_u32 v{VT}, v{VT+1}, 4, v{VT}")
        for i in range(7): p(f"buffer_load_dwordx4 {v(XD+4*i,4)}, v{VT}, {s(R_LD,4)}, s{S_X} offen offset:{128*i}")
        p(f"s_min_u32 s{T}, s{S_HH}, 27\ns_lshl_b32 s{T}, s{T}, 7\ns_mul_i32 s{S_Y}, s{S_WAVE}, {56*3584}\ns_add_u32 s{S_Y}, s{S_Y}, s{T}")
        p(f"v_lshrrev_b32 v{VT+2}, 3, v0\nv_mul_u32_u24 v{VT+2}, 3584, v{VT+2}\nv_lshl_add_u32 v{VT+2}, v{VT+1}, 4, v{VT+2}")
        for i in range(7):
            p(f"buffer_load_dwordx4 {v(WD+4*i,4)}, v{VT+2}, {s(R_2,4)}, s{S_Y} offen")
            if i < 6: p(f"s_add_u32 s{S_Y}, s{S_Y}, {8*3584}")
        p(f"s_mov_b32 s{S_ONE}, 0x3f803f80\ns_mov_b32 s{S_LO}, 0x00003f80\ns_mov_b32 s{S_HI}, 0x3f800000")
        p(f"s_lshr_b32 s{T}, s{S_HH}, 3\ns_lshl_b32 s{T}, s{T}, 2\ns_lshr_b32 s{S_X}, s{S_WAVE}, 1\ns_add_u32 s{T}, s{T}, s{S_X}\ns_lshl_b32 s{T}, s{T}, 3\ns_and_b32 s{S_X}, s{S_HH}, 7\ns_add_u32 s{T}, s{T}, s{S_X}")
        p(f"s_lshl_b32 s{T}, s{T}, 1\ns_add_u32 s{T}, s{T}, s{T+1}\ns_lshl_b32 s{T}, s{T}, 6\ns_add_u32 s{S_X}, s{T}, {WS_STAT}")
        self.make_tag()
        self.stamp("issued")
        for i in range(4): p(f"v_mov_b32 v{AC+i}, 0")
        for i in range(28):
            p(f"v_dot2_f32_bf16 v{AC+(i&1)}, v{XD+i}, s{S_ONE}, v{AC+(i&1)}\nv_dot2_f32_bf16 v{AC+2+(i&1)}, v{XD+i}, v{XD+i}, v{AC+2+(i&1)}")
        p(f"v_add_f32 v{AC}, v{AC}, v{AC+1}\nv_add_f32 v{AC+1}, v{AC+2}, v{AC+3}")
        for pat in ("quad_perm:[1,0,3,2]", "quad_perm:[2,3,0,1]", "row_half_mirror"):
            for k in range(2): p(f"v_add_f32_dpp v{AC+k}, v{AC+k}, v{AC+k} {pat} row_mask:0xf bank_mask:0xf")
        inv = 0x3b124925
        p(f"v_mul_f32 v{AC}, {inv}, v{AC}\nv_mul_f32 v{AC+1}, {inv}, v{AC+1}\nv_fma_f32 v{AC+1}, -v{AC}, v{AC}, v{AC+1}\nv_max_f32 v{AC+1}, 0, v{AC+1}")
        p(f"v_cvt_pk_bf16_f32 v{AC+1}, v{AC+1}, v{AC+1}\nv_and_b32 v{AC+1}, 0xffff0000, v{AC+1}\nv_add_f32 v{AC+1}, 0x3727c5ac, v{AC+1}")
        p(f"v_cvt_pk_bf16_f32 v{AC+1}, v{AC+1}, v{AC+1}\nv_and_b32 v{AC+1}, 0xffff0000, v{AC+1}\nv_sqrt_f32 v{AC+1}, v{AC+1}")
        p(f"v_mov_b32 v{AC+3}, s{S_TAG}\nv_cvt_pk_bf16_f32 v{AC+2}, v{AC}, v{AC+1}")
        p(f"s_mov_b32 exec_lo, 0x01010101\ns_mov_b32 exec_hi, 0x01010101\nbuffer_store_dwordx2 {v(AC+2,2)}, v0, {s(R_WS,4)}, s{S_X} offen sc1\ns_mov_b64 exec, -1")
        self.stamp("stats")
        p(f"s_cmp_ge_u32 s{S_HH}, 28\ns_cbranch_scc1 L_hnocs")
        CS = 88
        for k in range(8): p(f"v_mov_b32 v{CS+k}, 0")
        for i in range(7):
            for j in range(4):
                p(f"v_dot2_f32_bf16 v{CS+2*j}, v{WD+4*i+j}, s{S_LO}, v{CS+2*j}\nv_dot2_f32_bf16 v{CS+2*j+1}, v{WD+4*i+j}, s{S_HI}, v{CS+2*j+1}")
        for k in range(8): p(f"v_add_f32_dpp v{CS+k}, v{CS+k}, v{CS+k} row_ror:8 row_mask:0xf bank_mask:0xf")
        p(f"v_and_b32 v{VT+3}, 8, v0\nv_cmp_eq_u32 vcc, 0, v{VT+3}\nv_lshlrev_b32 v{VT+3}, 1, v{VT+3}\nv_lshl_add_u32 v{VT+3}, v{VT+1}, 5, v{VT+3}\nv_lshrrev_b32 v{VT+4}, 4, v0\nv_lshl_add_u32 v{VT+3}, v{VT+4}, 8, v{VT+3}")
        p(f"s_lshl_b32 s{T}, s{S_WAVE}, 10\nv_add_u32 v{VT+3}, s{T}, v{VT+3}")
        for k in range(4): p(f"v_cndmask_b32 v{CS+k}, v{CS+4+k}, v{CS+k}, vcc")
        p(f"ds_write_b128 v{VT+3}, {v(CS,4)}\ns_waitcnt lgkmcnt(0)\ns_barrier")
        p(f"s_cmp_lg_u32 s{S_WAVE}, 0\ns_cbranch_scc1 L_hdone")
        p(f"v_lshlrev_b32 v{VT+3}, 2, v0")
        for i in range(16): p(f"ds_read2st64_b32 {v(XD+2*i,2)}, v{VT+3} offset0:{2*i} offset1:{2*i+1}")
        for st in (16, 8, 4, 2):
            for i in range(0, st, 2): p(f"v_pk_add_f32 {v(XD+i,2)}, {v(XD+i,2)}, {v(XD+st+i,2)}")
        p(f"v_add_f32 v{AC+2}, v{XD}, v{XD+1}\nv_lshlrev_b32 v{VT+3}, 3, v0\ns_lshl_b32 s{T}, s{S_HH}, 9\ns_add_u32 s{T}, s{T}, {WS_CS}")
        p(f"buffer_store_dwordx2 {v(AC+2,2)}, v{VT+3}, {s(R_WS,4)}, s{T} offen sc1")
        p.label("L_hdone")
        self.stamp("cs")
        self.stamp_flush(1)
        p("s_endpgm")
        p.label("L_hnocs")
        p(f"s_waitcnt vmcnt(0) lgkmcnt(0)\ns_cmp_lg_u32 s{S_HH}, 31\ns_cbranch_scc1 L_hdone\ns_cmp_lg_u32 s{S_WAVE}, 0\ns_cbranch_scc1 L_hdone")
        p.reset()
        p(f"v_lshrrev_b32 v{VT}, 2, v0\nv_min_u32 v{VT}, 13, v{VT}\nv_lshlrev_b32 v{VT}, 7, v{VT}\nv_and_b32 v{VT+1}, 3, v0\nv_lshl_add_u32 v{VT}, v{VT+1}, 4, v{VT}\ns_mov_b32 s{S_X}, {WS_FS}")
        ld = f"s_sleep 8\nbuffer_load_dwordx4 {v(XD,4)}, v{VT}, {s(R_WS,4)}, s{S_X} offen sc1"
        p(ld)
        self.tagged_check(ld, [XD, XD + 1, XD + 2, XD + 3], VT + 2)
        p(f"s_mov_b32 s{S_X}, {WS_EPOCH}")
        self.flag_store(S_X, AC + 3)
        p("s_branch L_hdone")

    def build(self):
        p = self.p
        self.entry()
        self.role_a(); self.role_b(); self.role_h()
        p.reset()
        p.label("L_exit")
        p("s_endpgm")
        p.label("L_end")
        body = p.resolve()
        head = open("recurrent_scan__ssm_conv_s4__dense_activation_mish__prompt.s.ref").read().split("; Override launch")[0]
        txt = head + f"; @launch grid=(256,1,1) block=(512,1,1) lds={LDS_BYTES}\n"
        txt += f'.amdgcn_target "amdgcn-amd-amdhsa--gfx950"\n.text\n.globl {KNAME}\n.p2align 8\n.type {KNAME},@function\n{KNAME}:\n'
        txt += body
        txt += f""".section .rodata,"a"
.p2align 6
.amdhsa_kernel {KNAME}
  .amdhsa_next_free_vgpr 256
  .amdhsa_next_free_sgpr 102
  .amdhsa_accum_offset 256
  .amdhsa_group_segment_fixed_size 0
  .amdhsa_kernarg_size 128
  .amdhsa_user_sgpr_count 2
  .amdhsa_user_sgpr_kernarg_segment_ptr 1
  .amdhsa_system_sgpr_workgroup_id_x 1
.end_amdhsa_kernel
"""
        return txt

def parse_cfg(args):
    kw = {}
    for a in args:
        k, x = a.split("=")
        kw[k] = eval(x)
    return Cfg(**kw)

if __name__ == "__main__":
    out = sys.argv[1]
    g = Gen(parse_cfg(sys.argv[2:]))
    txt = g.build()
    open(out, "w").write(txt)
    import json
    json.dump(g.stamp_names, open(out + ".stamps.json", "w"))
    print(out, g.p.stats)
```

```python
import sys
from asmgen import *

KNAME = "recurrent_scan__ssm_conv_s4__dense_activation_mish__prompt_kernel"

class Cfg:
    stamps = False
    prefetch_code = True
    mish_pk = True
    prio_b = 1
    vpoll = 'XAS'
    sset = 0
    probe = None
    dma_ratio = 2.0
    def __init__(self, **kw):
        for k, x in kw.items():
            assert hasattr(self, k), k
            setattr(self, k, x)

WS_EPOCH, WS_FX, WS_FA, WS_FS = 0, 0x1000, 0x2000, 0xA000
WS_STAT, WS_CS, WS_XT, WS_ST, WS_ACT, WS_DBG = 0x10000, 0x14000, 0x40000, 0x200000, 0x400000, 0xC00000
WS_SIZE = 0x1000000
TAGC = 0x9E3779B1
SLOT = 32768
L_TAB = 3 * SLOT
L_BR = 4 * SLOT
L_KC = L_BR + 512
L_U = L_BR + 6144
L_STR = L_BR + 15360
L_CNT = L_BR + 24576
L_EX = 2 * SLOT
LDS_BYTES = 163840
P_U, P_ARE, P_AIM, P_BRE, P_BIM, P_CRE, P_CIM, P_LDT = 4, 6, 8, 10, 12, 14, 16, 18
P_DSK, P_BX, P_W1, P_B1, P_W2, P_OUT, P_DBG, P_WS = 20, 22, 24, 26, 28, 30, 32, 34
R_LD, R_2, R_WS, R_PC = 36, 40, 44, 48
S_TAG, S_TAG2, S_WAVE, S_XCD, S_J, S_RT, S_CT, S_CP = 52, 53, 54, 55, 56, 57, 58, 59
S_R2, S_C2 = 60, 61
S_T = 62
S_POLL = 80
S_CNT = 96
S_T0 = 98
LOG2E = 0x3fb8aa3b
POLL_MAX = 1 << 17

def srd(p, r, ptr, size):
    p(f"s_mov_b32 s{r}, s{ptr}\ns_mov_b32 s{r+1}, s{ptr+1}\ns_mov_b32 s{r+2}, {size}\ns_mov_b32 s{r+3}, 0x20000")

class Gen:
    def __init__(self, cfg):
        self.c = cfg
        self.p = Prog()
        self.nlab = 0
        self.stamp_names = {}
    def lab(self, base):
        self.nlab += 1
        return f"L_{base}_{self.nlab}"

    def stamp_begin(self, role):
        self.role = role; self.stamp_names[role] = []
    def stamp(self, name, p=None, sets=(0,)):
        if self.c.probe == (self.role, name): (p or self.p)("s_memrealtime s[100:101]")
        if not self.c.stamps or self.c.sset not in sets: return
        p = p or self.p
        n = len(self.stamp_names[self.role]); assert n < 15
        self.stamp_names[self.role].append(name)
        p(f"s_memrealtime {s(4+2*n, 2)}")
    def stamp_flush(self, vt):
        if self.c.probe and self.c.probe[0] == self.role:
            l0 = self.lab("probe")
            self.p("s_waitcnt vmcnt(0) lgkmcnt(0)")
            self.p.label(l0)
            self.p(f"s_memrealtime s[98:99]\ns_waitcnt lgkmcnt(0)\ns_sub_u32 s98, s98, s100\ns_cmp_lt_u32 s98, 6000\ns_cbranch_scc1 {l0}")
        if not self.c.stamps: return
        p = self.p
        n = len(self.stamp_names[self.role])
        p("s_waitcnt vmcnt(0) lgkmcnt(0)\ns_mov_b64 exec, 1")
        p(f"s_lshl_b32 s{S_T}, s2, 3\ns_add_u32 s{S_T}, s{S_T}, s{S_WAVE}\ns_lshl_b32 s{S_T}, s{S_T}, 6\ns_add_u32 s{S_T}, s{S_T}, {WS_DBG}")
        p(f"v_mov_b32 v{vt}, s{S_T0}\nbuffer_store_dword v{vt}, off, {s(R_WS,4)}, s{S_T}")
        for i in range(n):
            p(f"v_mov_b32 v{vt+1+(i&1)}, s{4+2*i}\nbuffer_store_dword v{vt+1+(i&1)}, off, {s(R_WS,4)}, s{S_T} offset:{4+4*i}")
        p("s_waitcnt vmcnt(0)")

    def flag_store(self, soff, vt):
        p = self.p
        p(f"s_mov_b64 exec, 1\nbuffer_store_dword v{vt}, off, {s(R_WS,4)}, s{soff} sc1\ns_mov_b64 exec, -1")
    def poll_flags(self, soff, n, which, vt):
        p = self.p
        if which in self.c.vpoll:
            l0, l1 = self.lab("poll"), self.lab("polled")
            p(f"v_lshlrev_b32 v{vt}, 2, v0\ns_mov_b32 s{S_CNT}, 0\ns_mov_b64 exec, {(1 << n) - 1}")
            p.label(l0)
            p(f"buffer_load_dword v{vt+1}, v{vt}, {s(R_WS,4)}, s{soff} offen sc1\ns_add_u32 s{S_CNT}, s{S_CNT}, 1\ns_cmp_gt_u32 s{S_CNT}, {POLL_MAX}\ns_cbranch_scc1 {l1}")
            p(f"s_waitcnt vmcnt(0)\nv_cmp_ne_u32 vcc, s{S_TAG}, v{vt+1}\ns_cbranch_vccnz {l0}")
            p.label(l1)
            p("s_mov_b64 exec, -1")
            return
        w = 8 if n <= 8 else 16
        l0, l1 = self.lab("poll"), self.lab("polled")
        p(f"s_waitcnt lgkmcnt(0)\ns_mov_b32 s{S_CNT}, 0")
        p.label(l0)
        p(f"s_buffer_load_dwordx{w} {s(S_POLL,w)}, {s(R_WS,4)}, s{soff} glc\ns_add_u32 s{S_CNT}, s{S_CNT}, 1\ns_waitcnt lgkmcnt(0)")
        p(f"s_cmp_gt_u32 s{S_CNT}, {POLL_MAX}\ns_cbranch_scc1 {l1}")
        for i in range(0, n - 1, 2):
            p(f"s_cmp_eq_u64 {s(S_POLL+i,2)}, {s(S_TAG,2)}\ns_cbranch_scc0 {l0}")
        if n & 1:
            p(f"s_cmp_eq_u32 s{S_POLL+n-1}, s{S_TAG}\ns_cbranch_scc0 {l0}")
        p.label(l1)
    def lds_arrive(self, vaddr, vone):
        self.p(f"s_mov_b64 exec, 1\nds_add_u32 v{vaddr}, v{vone}\ns_mov_b64 exec, -1")
    def lds_wait(self, vaddr, vt, target):
        p = self.p
        l0, l1 = self.lab("spin"), self.lab("spun")
        p(f"s_mov_b32 s{S_CNT}, 0")
        p.label(l0)
        p(f"ds_read_b32 v{vt}, v{vaddr}\ns_add_u32 s{S_CNT}, s{S_CNT}, 1\ns_waitcnt lgkmcnt(0)\nv_readfirstlane_b32 s{S_POLL}, v{vt}")
        p(f"s_cmp_gt_u32 s{S_CNT}, {POLL_MAX*8}\ns_cbranch_scc1 {l1}\ns_cmp_lt_u32 s{S_POLL}, {target}\ns_cbranch_scc1 {l0}")
        p.label(l1)
    def tagged_check(self, loads, tagregs, vt):
        p = self.p
        l0, l1 = self.lab("chk"), self.lab("chkd")
        p(f"s_mov_b32 s{S_CNT}, 0")
        for r in reversed(tagregs): p.items.append(Marker("need", r))
        p.label(l0)
        p(f"v_xor_b32 v{vt}, s{S_TAG}, v{tagregs[0]}")
        for r in tagregs[1:]:
            p(f"v_bitop3_b32 v{vt}, v{r}, s{S_TAG}, v{vt} bitop3:0xbe")
        p(f"v_cmp_ne_u32 vcc, 0, v{vt}\ns_add_u32 s{S_CNT}, s{S_CNT}, 1\ns_cbranch_vccz {l1}")
        p(f"s_cmp_gt_u32 s{S_CNT}, {POLL_MAX}\ns_cbranch_scc1 {l1}")
        p.alt_begin()
        p(loads)
        p(f"s_waitcnt vmcnt(0)\ns_branch {l0}")
        p.alt_end()
        p.label(l1)

    def entry(self):
        p, c = self.p, self.c
        p(f"s_cmp_ge_u32 s2, 256\ns_cbranch_scc1 L_exit")
        if c.stamps: p(f"s_memrealtime {s(S_T0,2)}")
        if c.probe and c.probe[1] == "start": p("s_memrealtime s[100:101]")
        p(f"s_load_dwordx16 s[4:19], s[0:1], 0\ns_load_dwordx16 s[20:35], s[0:1], 64")
        p(f"v_lshrrev_b32 v1, 6, v0\nv_and_b32 v0, 63, v0\nv_readfirstlane_b32 s{S_WAVE}, v1")
        p(f"s_and_b32 s{S_XCD}, s2, 7\ns_lshr_b32 s{S_J}, s2, 3")
        if c.prefetch_code:
            p(f"s_getpc_b64 {s(R_PC,2)}")
            p.label("L_pc")
            p(f"s_mov_b32 s{R_PC+2}, L_end-L_pc\ns_mov_b32 s{R_PC+3}, 0x20000")
            p(f"s_lshl_b32 s{S_T}, s{S_J}, 3\ns_add_u32 s{S_T}, s{S_T}, s{S_WAVE}\ns_lshl_b32 s{S_T}, s{S_T}, 7")
            p(f"buffer_load_dword v255, off, {s(R_PC,4)}, s{S_T}")
        p(f"s_cmp_ge_u32 s{S_J}, 14\ns_cselect_b32 s{S_T}, 1, 0\ns_cselect_b32 s{S_T+1}, 14, 0")
        p(f"s_lshl_b32 s{S_RT}, s{S_XCD}, 1\ns_add_u32 s{S_RT}, s{S_RT}, s{S_T}\ns_sub_u32 s{S_CT}, s{S_J}, s{S_T+1}")
        p(f"s_mul_i32 s{S_CP}, s{S_XCD}, 28\ns_add_u32 s{S_CP}, s{S_CP}, s{S_J}")
        p(f"s_cmp_ge_u32 s{S_CT}, 7\ns_cselect_b32 s{S_T}, 1, 0\ns_cselect_b32 s{S_T+1}, 7, 0")
        p(f"s_lshl_b32 s{S_R2}, s{S_RT}, 1\ns_add_u32 s{S_R2}, s{S_R2}, s{S_T}\ns_sub_u32 s{S_C2}, s{S_CT}, s{S_T+1}")
        p(f"s_waitcnt lgkmcnt(0)")
        p(f"s_load_dword s{S_TAG}, {s(P_WS,2)}, {WS_EPOCH}")
        srd(p, R_WS, P_WS, WS_SIZE)
        p(f"s_cmp_ge_u32 s{S_J}, 28\ns_cbranch_scc1 L_helper\ns_cmp_ge_u32 s{S_WAVE}, 4\ns_cbranch_scc1 L_roleB")
    def role_start(self):
        p = self.p
        p.reset()
        p.items.append(Marker("pending", ("smem", {f"s{S_TAG}"})))
        if self.c.prefetch_code: p.items.append(Marker("pending", ("vmem", {"v255"})))
    def make_tag(self):
        self.p(f"s_add_u32 s{S_TAG}, s{S_TAG}, {TAGC}\ns_mov_b32 s{S_TAG2}, s{S_TAG}")

    def role_a(self):
        p, c = self.p, self.c
        self.role_start(); self.stamp_begin("A")
        VD, VXA, VWA, VW2A, VW2D, VL16, VC1, VT = 1, 9, 13, 15, 17, 21, 2, 24
        ACC, FR, W2R, AB = 32, 96, 96, 192
        S_SOFF, S_CSTR, S_CH, S_LDB, S_WT, S_WF, S_W2B, S_ACTW, S_ACTR, S_FAW, S_FAR, S_FXW, S_XTW, S_RING = range(64, 78)
        S_X = 78; S_Y = 79
        T = S_T
        p(f"s_and_b32 s{S_WT}, s{S_WAVE}, 1\ns_lshr_b32 s{S_WF}, s{S_WAVE}, 1")
        p(f"s_lshl_b32 s{T}, s{S_RT}, 1\ns_add_u32 s{T}, s{T}, s{S_WF}\ns_mul_i32 s{T}, s{T}, {64*896}")
        p(f"s_mul_i32 s{T+1}, s{S_WF}, {32*3584}\ns_lshl_b32 s{S_X}, s{S_CT}, 8\ns_add_u32 s{T+1}, s{T+1}, s{S_X}")
        p(f"s_lshr_b32 s{S_CH}, s{S_CT}, 1")
        p(f"v_lshrrev_b32 v{VT}, 3, v0\nv_lshrrev_b32 v{VT+1}, 4, v0")
        p(f"s_cmp_eq_u32 s{S_WT}, 0")
        p(f"s_cselect_b32 s{R_LD}, s{P_U}, s{P_W1}\ns_cselect_b32 s{R_LD+1}, s{P_U+1}, s{P_W1+1}\ns_cselect_b32 s{R_LD+2}, {2048*896}, 0\ns_cselect_b32 s{S_X}, 0, {448*3584}")
        p(f"s_cselect_b32 s{S_SOFF}, s{T}, s{T+1}\ns_cselect_b32 s{S_CSTR}, 1, {64*28}\ns_cselect_b32 s{S_Y}, 1, 2\ns_cselect_b64 vcc, -1, 0")
        p(f"s_add_u32 s{R_LD+2}, s{R_LD+2}, s{S_X}\ns_mov_b32 s{R_LD+3}, 0x20000\ns_lshl_b32 s{S_CSTR}, s{S_CSTR}, 7\ns_mul_i32 s{S_Y}, s{S_Y}, 7168")
        p(f"s_mul_i32 s{T}, s{S_CH}, s{S_CSTR}\ns_add_u32 s{S_SOFF}, s{S_SOFF}, s{T}")
        p(f"s_lshl_b32 s{S_LDB}, s{S_WT}, 14\ns_lshl_b32 s{T}, s{S_WF}, 13\ns_add_u32 s{S_LDB}, s{S_LDB}, s{T}")
        p(f"v_xor_b32 v{VT+2}, v0, v{VT+1}\nv_and_b32 v{VT+2}, 7, v{VT+2}\nv_lshlrev_b32 v{VT+2}, 4, v{VT+2}\nv_mul_u32_u24 v{VT}, 896, v{VT}\nv_add_u32 v{VT}, v{VT}, v{VT+2}")
        p(f"v_lshlrev_b32 v{VT+2}, 2, v{VT+1}\nv_xor_b32 v{VT+2}, v0, v{VT+2}\nv_and_b32 v{VT+2}, 15, v{VT+2}\nv_lshlrev_b32 v{VT+2}, 4, v{VT+2}\nv_mul_u32_u24 v{VT+1}, 3584, v{VT+1}\nv_add_u32 v{VT+1}, v{VT+1}, v{VT+2}")
        p(f"v_cndmask_b32 v{VD}, v{VT+1}, v{VT}, vcc\nv_xor_b32 v{VT}, 64, v{VT}\nv_cndmask_b32 v{VD+1}, v{VT+1}, v{VT}, vcc")
        p(f"s_sub_u32 s{T}, s{S_Y}, 1024\nv_add_u32 v{VD+1}, s{T}, v{VD+1}\ns_lshl_b32 s{T}, s{T}, 1")
        p(f"v_add_u32 v{VD+2}, s{T}, v{VD}\nv_add_u32 v{VD+3}, s{T}, v{VD+1}\ns_lshl_b32 s{T}, s{S_Y}, 2")
        for i in range(4): p(f"v_add_u32 v{VD+4+i}, s{T}, v{VD+i}")
        ctok = {}
        def dma_chunk(n, q=None):
            q = q or p
            for i in range(8):
                if i % 4 == 0: q(f"s_add_u32 m0, s{S_LDB}, {(n%4)*SLOT + (i//4)*4096}")
                ctok[n] = q.tok(f"buffer_load_dwordx4 v{VD+i}, {s(R_LD,4)}, s{S_SOFF} offen offset:{(i%4)*1024} lds")
            if n < 6:
                q(f"s_add_u32 s{S_CH}, s{S_CH}, 1\ns_add_u32 s{S_SOFF}, s{S_SOFF}, s{S_CSTR}\ns_mul_i32 s{T}, s{S_CSTR}, 7")
                q(f"s_cmp_eq_u32 s{S_CH}, 7\ns_cselect_b32 s{T}, s{T}, 0\ns_cselect_b32 s{S_CH}, 0, s{S_CH}\ns_sub_u32 s{S_SOFF}, s{S_SOFF}, s{T}")
        self.stamp("dma0", sets=(1,))
        dma_chunk(0); dma_chunk(1)
        self.stamp("dma1", sets=(1,))
        srd(p, R_2, P_W2, 1792 * 896)
        VB1 = 30
        p(f"s_lshl_b32 s{T}, s{S_CT}, 1\ns_add_u32 s{T}, s{T}, s{S_WF}\ns_lshl_b32 s{S_X}, s{T}, 7")
        p(f"v_and_b32 v{VT}, 31, v0\nv_lshl_add_u32 v{VT+1}, v{VT}, 1, s{S_X}")
        p(f"global_load_ushort v{VB1}, v{VT+1}, {s(P_B1,2)}\nglobal_load_ushort v{VB1+1}, v{VT+1}, {s(P_B1,2)} offset:64")
        p(f"s_mul_i32 s{S_X}, s{T}, 37\ns_lshr_b32 s{S_X}, s{S_X}, 8")
        p(f"s_mul_i32 s{S_Y}, s{S_X}, 7\ns_sub_u32 s{S_Y}, s{T}, s{S_Y}")
        p(f"s_lshl_b32 s{T+1}, s{S_RT}, 1\ns_add_u32 s{T+1}, s{T+1}, s{S_WT}")
        p(f"s_lshl_b32 s{S_FAW}, s{T+1}, 3\ns_add_u32 s{S_FAW}, s{S_FAW}, s{S_X}\ns_lshl_b32 s{S_FAW}, s{S_FAW}, 5\ns_add_u32 s{S_FAW}, s{S_FAW}, s{S_Y}\ns_lshl_b32 s{S_FAW}, s{S_FAW}, 2\ns_add_u32 s{S_FAW}, s{S_FAW}, {WS_FA}")
        p(f"s_mul_i32 s{S_ACTW}, s{T+1}, 28\ns_add_u32 s{S_ACTW}, s{S_ACTW}, s{T}\ns_lshl_b32 s{S_ACTW}, s{S_ACTW}, 13\ns_add_u32 s{S_ACTW}, s{S_ACTW}, {WS_ACT}")
        p(f"s_lshl_b32 s{S_FAR}, s{S_R2}, 3\ns_add_u32 s{S_FAR}, s{S_FAR}, s{S_WAVE}\ns_lshl_b32 s{S_FAR}, s{S_FAR}, 7\ns_add_u32 s{S_FAR}, s{S_FAR}, {WS_FA}")
        p(f"s_lshl_b32 s{S_ACTR}, s{S_R2}, 2\ns_add_u32 s{S_ACTR}, s{S_ACTR}, s{S_WAVE}\ns_mul_i32 s{S_ACTR}, s{S_ACTR}, {28*2048}\ns_add_u32 s{S_ACTR}, s{S_ACTR}, {WS_ACT}")
        p(f"s_mul_i32 s{S_W2B}, s{S_WAVE}, {448*896}\ns_lshl_b32 s{S_X}, s{S_C2}, 7\ns_add_u32 s{S_W2B}, s{S_W2B}, s{S_X}")
        p(f"s_lshl_b32 s{S_RING}, s{S_WAVE}, 13")
        p(f"s_lshl_b32 s{S_X}, s{S_RT}, 1\ns_add_u32 s{S_X}, s{S_X}, s{S_WF}")
        p(f"s_lshl_b32 s{S_FXW}, s{S_CT}, 5\ns_add_u32 s{S_FXW}, s{S_FXW}, s{S_X}\ns_lshl_b32 s{S_FXW}, s{S_FXW}, 2\ns_add_u32 s{S_FXW}, s{S_FXW}, {WS_FX}")
        p(f"s_lshl_b32 s{S_XTW}, s{S_CT}, 10\ns_add_u32 s{S_XTW}, s{S_XTW}, s{S_X}\ns_lshl_b32 s{S_XTW}, s{S_XTW}, 7\ns_add_u32 s{S_XTW}, s{S_XTW}, {WS_XT}")
        p(f"v_lshlrev_b32 v{VL16}, 4, v0")
        p(f"v_lshrrev_b32 v{VT+1}, 5, v0\nv_bfe_u32 v{VT+2}, v0, 1, 3\nv_xor_b32 v{VT+1}, v{VT+1}, v{VT+2}\nv_lshlrev_b32 v{VT+1}, 4, v{VT+1}")
        p(f"v_lshl_add_u32 v{VT+1}, v{VT}, 7, v{VT+1}\ns_lshl_b32 s{S_X}, s{S_WT}, 13\nv_add_u32 v{VXA}, s{S_X}, v{VT+1}")
        for k in range(1, 4): p(f"v_xor_b32 v{VXA+k}, {32*k}, v{VXA}")
        p(f"v_bfe_u32 v{VT}, v0, 4, 1\nv_lshlrev_b32 v{VT}, 5, v{VT}\nv_and_b32 v{VT+1}, 3, v0\nv_lshl_add_u32 v{VT}, v{VT+1}, 3, v{VT}")
        p(f"v_bfe_u32 v{VT+1}, v0, 2, 2\nv_lshrrev_b32 v{VT+2}, 5, v0")
        p(f"v_lshl_add_u32 v{VT+3}, v{VT+2}, 3, v{VT+1}\nv_lshl_add_u32 v{VT+3}, v{VT+3}, 8, v{VT}")
        p(f"s_lshl_b32 s{S_X}, s{S_WF}, 1\nv_xor_b32 v{VT+4}, s{S_X}, v{VT+1}\nv_lshl_add_u32 v{VWA}, v{VT+4}, 6, v{VT+3}\nv_xor_b32 v{VWA+1}, 64, v{VWA}")
        p(f"v_lshl_add_u32 v{VT+3}, v{VT+2}, 2, v{VT+1}\nv_lshl_add_u32 v{VT+3}, v{VT+3}, 7, v{VT}")
        p(f"v_lshrrev_b32 v{VT+4}, 1, v{VT+1}\nv_lshl_add_u32 v{VT+3}, v{VT+4}, 6, v{VT+3}\nv_add_u32 v{VW2A}, s{S_RING}, v{VT+3}\nv_xor_b32 v{VW2A+1}, 64, v{VW2A}")
        p(f"v_lshrrev_b32 v{VT}, 3, v0\nv_mul_u32_u24 v{VT}, 896, v{VT}\nv_bfe_u32 v{VT+1}, v0, 4, 1\nv_lshlrev_b32 v{VT+1}, 2, v{VT+1}\nv_xor_b32 v{VT+1}, v0, v{VT+1}\nv_and_b32 v{VT+1}, 7, v{VT+1}")
        p(f"v_lshl_add_u32 v{VW2D}, v{VT+1}, 4, v{VT}")
        for i in range(1, 4): p(f"v_add_u32 v{VW2D+i}, {i*(7168-1024)}, v{VW2D}")
        self.make_tag()
        self.stamp("issued01", sets=(0, 1))
        lskip = self.lab("noxt")
        p(f"s_cmp_lg_u32 s{S_WT}, 0\ns_cbranch_scc1 {lskip}")
        p.alt_begin()
        p(f"v_and_b32 v{VT}, 7, v0\nv_lshrrev_b32 v{VT+1}, 4, v0\ns_and_b32 s{S_X}, s{S_CT}, 1\ns_lshl_b32 s{S_X}, s{S_X}, 2")
        p(f"v_and_b32 v{VT+2}, 1, v0\nv_lshlrev_b32 v{VT+2}, 2, v{VT+2}\nv_bitop3_b32 v{VT+1}, v{VT+1}, s{S_X}, v{VT+2} bitop3:0x96\nv_lshlrev_b32 v{VT+1}, 4, v{VT+1}")
        p(f"v_lshl_add_u32 v{VT+1}, v{VT}, 10, v{VT+1}\nv_and_b32 v{VT+2}, 8, v0\ns_lshl_b32 s{S_X}, s{S_WF}, 13\nv_add3_u32 v{VT+1}, v{VT+1}, v{VT+2}, s{S_X}")
        for k in range(1, 4): p(f"v_xor_b32 v{VT+1+k}, {16*k}, v{VT+1}")
        p(f"v_lshrrev_b32 v{VT+5}, 3, v0\nv_lshlrev_b32 v{VT+5}, 14, v{VT+5}\nv_lshl_add_u32 v{VT}, v{VT}, 4, v{VT+5}")
        p(f"s_mov_b32 s{S_X}, 0x05040100\ns_mov_b32 s{S_Y}, 0x07060302")
        p.wait(ctok[0])
        for i in range(8): p(f"ds_read_b64 {v(FR+2*i,2)}, v{VT+1+(i>>1)} offset:{i*128}")
        for e in range(4):
            for j in range(4):
                p(f"v_perm_b32 v{FR+16+4*e+j}, v{FR+2*(2*j+1)+(e>>1)}, v{FR+2*(2*j)+(e>>1)}, s{S_Y if e&1 else S_X}")
            xttok = p.tok(f"buffer_store_dwordx4 {v(FR+16+4*e,4)}, v{VT}, {s(R_WS,4)}, s{S_XTW} offen sc1")
            if e < 3: p(f"s_add_u32 s{S_XTW}, s{S_XTW}, 4096")
        p.alt_end()
        p.label(lskip)
        self.stamp("xt", sets=(0, 1))
        dma_chunk(2); dma_chunk(3)
        p(f"v_mov_b32 v{VT}, s{S_TAG}")
        VGA = 26
        p(f"v_bfe_u32 v{VGA}, v0, 1, 2\nv_lshlrev_b32 v{VGA}, 10, v{VGA}\nv_bfe_u32 v{VGA+1}, v0, 3, 2\nv_lshl_add_u32 v{VGA}, v{VGA+1}, 4, v{VGA}\nv_and_b32 v{VGA+1}, 1, v0\nv_lshl_add_u32 v{VGA}, v{VGA+1}, 3, v{VGA}")
        p(f"s_lshl_b32 s{S_X}, s{S_RT}, 1\ns_add_u32 s{S_X}, s{S_X}, s{S_WT}\ns_lshr_b32 s{S_Y}, s{S_X}, 3\ns_lshl_b32 s{S_Y}, s{S_Y}, 12\ns_and_b32 s{S_X}, s{S_X}, 7\ns_lshl_b32 s{S_X}, s{S_X}, 7")
        p(f"s_add_u32 s{S_X}, s{S_X}, s{S_Y}\ns_add_u32 s{S_X}, s{S_X}, {WS_STAT}\nv_add_u32 v{VGA}, s{S_X}, v{VGA}")
        p(f"s_lshl_b32 s{S_X}, s{S_CT}, 1\ns_add_u32 s{S_X}, s{S_X}, s{S_WF}\ns_lshl_b32 s{S_X}, s{S_X}, 9\ns_add_u32 s{S_X}, s{S_X}, {WS_CS}\nv_and_b32 v{VGA+1}, 31, v0\nv_lshl_add_u32 v{VGA+1}, v{VGA+1}, 3, s{S_X}")
        GR = AB
        gloads = "\n".join([f"buffer_load_dwordx2 {v(GR+2*ti,2)}, v{VGA}, {s(R_WS,4)}, 0 offen offset:{64*ti} sc1" for ti in range(2)] +
                           [f"buffer_load_dwordx2 {v(GR+4+2*fi,2)}, v{VGA+1}, {s(R_WS,4)}, 0 offen offset:{256*fi} sc1" for fi in range(2)])
        wtok = {}
        def dma_w2(pn, q):
            rp = pn % 4
            q(f"s_add_u32 m0, s{S_RING}, {(rp>>1)*SLOT + (rp&1)*4096}")
            q(f"s_add_u32 s{S_X}, s{S_W2B}, {((pn%7)*64 + (pn//7)*32)*896}")
            for i in range(4):
                wtok[pn] = q.tok(f"buffer_load_dwordx4 v{VW2D+i}, {s(R_2,4)}, s{S_X} offen offset:{i*1024} lds")
        rtok = {}
        def read_w2(n, q):
            pn = n >> 1; rp = pn % 4
            if n % 2 == 0: q.wait(wtok[pn])
            for di in range(2):
                for h in range(2):
                    rtok[n] = q.tok(f"ds_read_b64_tr_b16 {v(W2R+8*(n%12)+4*di+2*h,2)}, v{VW2A+di} offset:{(rp>>1)*SLOT + (rp&1)*4096 + (n&1)*2048 + h*1024}")
        def reads1(gs):
            n, k = gs >> 2, gs & 3
            base = FR + 16 * (gs % 3); so = (n & 1) * SLOT
            r = []
            for fi in range(2):
                for h in range(2):
                    r.append(I(f"ds_read_b64_tr_b16 {v(base+4*fi+2*h,2)}, v{VWA+fi} offset:{so+16384+k*4096+h*1024}"))
                r.append(I(f"ds_read_b128 {v(base+8+4*fi,4)}, v{VXA+k} offset:{so+fi*4096}"))
            return r
        def mfma1(gs):
            base = FR + 16 * (gs % 3)
            r = []
            for fi, ti in ((0, 0), (0, 1), (1, 0), (1, 1)):
                a = v(ACC + 32 * fi + 16 * ti, 16)
                r.append(I(f"v_mfma_f32_32x32x16_bf16 {a}, {v(base+4*fi,4)}, {v(base+8+4*ti,4)}, {'0' if gs == 0 else a}"))
            return r
        self.stamp("dma3", sets=(1,))
        for n in range(7):
            p.wait(ctok[n])
            if n == 0: self.stamp("c0", sets=(1,))
            if n == 2:
                lk = self.lab("nofx")
                p(f"s_cmp_lg_u32 s{S_WT}, 0\ns_cbranch_scc1 {lk}")
                p.alt_begin(); p.wait(xttok); self.flag_store(S_FXW, VT); p.alt_end(); p.label(lk)
            p("s_waitcnt lgkmcnt(0)\ns_barrier")
            self.stamp(f"bar{n}", sets=(0, 1) if n in (0, 3, 6) else (1,))
            if n in (2, 4, 6):
                for r in list(range(VXA, VXA + 4)) + [VWA, VWA + 1]: p(f"v_xor_b32 v{r}, 0x10000, v{r}")
            q = Prog()
            if 1 <= n <= 3: dma_chunk(n + 3, q)
            if n == 4: q(gloads)
            if n == 5: dma_w2(0, q); dma_w2(1, q)
            if n == 6: dma_w2(2, q); dma_w2(3, q)
            fill = q.items
            body = []
            for k in range(4):
                gs = 4 * n + k
                rd = reads1(gs)
                if gs == 0: body.append(rd); continue
                mm = mfma1(gs - 1)
                if k == 0: body += [rd, mm[0], mm[1], mm[2], mm[3]]
                else: body += [[mm[0]] + rd[:3], [mm[1]] + rd[3:], mm[2], mm[3]]
            p.extend(interleave(body, fill, ratio=c.dma_ratio))
        p(f"v_mov_b32 v{VT+1}, {L_CNT}\nv_mov_b32 v{VT+4}, 1")
        self.lds_arrive(VT + 1, VT + 4)
        p.extend(mfma1(27))
        self.tagged_check(gloads, [GR + 1, GR + 3, GR + 5, GR + 7], VT + 1)
        self.stamp("granules", sets=(0, 1))
        FA_, FB_ = AB + 8, AB + 12
        p(f"s_mov_b32 s{S_X}, 0x01000100\ns_mov_b32 s{S_Y}, 0x80008000\nv_cmp_gt_u32 vcc, 32, v0")
        for ti in range(2):
            g = GR + 2 * ti
            p(f"v_perm_b32 v{VT+1}, v{g}, v{g}, s{S_X}\nv_xor_b32 v{VT+1}, s{S_Y}, v{VT+1}\nv_cndmask_b32 v{FB_+2*ti}, 0, v{VT+1}, vcc")
            p(f"v_lshrrev_b32 v{VT+1}, 16, v{g}\nv_cndmask_b32 v{FB_+2*ti+1}, 0, v{VT+1}, vcc")
            p(f"v_and_b32 v{VT+1}, 0xffff0000, v{g}\nv_rcp_f32 v{VT+1}, v{VT+1}\nv_mul_f32 v{VC1+2*ti}, {LOG2E}, v{VT+1}\nv_mul_f32 v{VC1+2*ti+1}, {LOG2E}, v{VT+1}")
        for fi in range(2):
            g = GR + 4 + 2 * fi
            p(f"v_cvt_pk_bf16_f32 v{VT+1}, v{g}, v{g}\nv_and_b32 v{VT+1}, 0xffff0000, v{VT+1}\nv_sub_f32 v{VT+1}, v{g}, v{VT+1}\nv_cvt_pk_bf16_f32 v{FA_+2*fi}, v{g}, v{VT+1}")
            p(f"v_mov_b32 v{FA_+2*fi+1}, v{VB1+fi}")
        for fi, ti in ((0, 0), (0, 1), (1, 0), (1, 1)):
            a = v(ACC + 32 * fi + 16 * ti, 16)
            p(f"v_mfma_f32_32x32x8_bf16 {a}, {v(FA_+2*fi,2)}, {v(FB_+2*ti,2)}, {a}")
        MT, MO = AB + 16, AB + 48
        def mish_group(a, ti, o, tset):
            t = MT + 16 * tset; u = t + 8
            r = []
            if c.mish_pk:
                for i in range(0, 8, 2): r.append(f"v_pk_mul_f32 {v(t+i,2)}, {v(a+i,2)}, {v(VC1+2*ti,2)}")
                for i in range(8): r.append(f"v_exp_f32 v{t+i}, v{t+i}")
                for i in range(0, 8, 2): r.append(f"v_pk_fma_f32 {v(u+i,2)}, {v(t+i,2)}, 0.5, 1.0 op_sel_hi:[1,0,0]")
                for i in range(0, 8, 2): r.append(f"v_pk_fma_f32 {v(u+i,2)}, {v(t+i,2)}, {v(u+i,2)}, 1.0 op_sel_hi:[1,1,0]")
                for i in range(8): r.append(f"v_rcp_f32 v{u+i}, v{u+i}")
                for i in range(0, 8, 2): r.append(f"v_pk_fma_f32 {v(u+i,2)}, {v(a+i,2)}, {v(u+i,2)}, {v(a+i,2)} neg_lo:[1,0,0] neg_hi:[1,0,0]")
            else:
                for i in range(8): r.append(f"v_mul_f32 v{t+i}, v{a+i}, v{VC1+2*ti}")
                for i in range(8): r.append(f"v_exp_f32 v{t+i}, v{t+i}")
                for i in range(8): r.append(f"v_fma_f32 v{u+i}, v{t+i}, 0.5, 1.0")
                for i in range(8): r.append(f"v_fma_f32 v{u+i}, v{t+i}, v{u+i}, 1.0")
                for i in range(8): r.append(f"v_rcp_f32 v{u+i}, v{u+i}")
                for i in range(8): r.append(f"v_fma_f32 v{u+i}, -v{a+i}, v{u+i}, v{a+i}")
            for i in range(4): r.append(f"v_cvt_pk_bf16_f32 v{o+i}, v{u+2*i}, v{u+2*i+1}")
            return "\n".join(r)
        stok = {}
        gi = 0
        for fi in range(2):
            for ti in range(2):
                for sh in range(2):
                    o = MO + 4 * (gi % 4)
                    p(mish_group(ACC + 32 * fi + 16 * ti + 8 * sh, ti, o, gi & 1))
                    stok[fi] = p.tok(f"buffer_store_dwordx4 {v(o,4)}, v{VL16}, {s(R_WS,4)}, s{S_ACTW} offen offset:{sh*2048+ti*1024} sc1")
                    if gi < 6: read_w2(2 * gi, p); read_w2(2 * gi + 1, p)
                    if 1 <= gi <= 6: p.wait(rtok[2 * gi - 1]); dma_w2(gi + 3, p)
                    gi += 1
            if fi == 0: p(f"s_add_u32 s{S_ACTW}, s{S_ACTW}, 4096")
        self.stamp("mish")
        p.wait(stok[0]); self.flag_store(S_FAW, VT)
        p(f"s_add_u32 s{S_FAW}, s{S_FAW}, 512")
        p.wait(stok[1]); self.flag_store(S_FAW, VT)
        self.stamp("flagA")
        self.poll_flags(S_FAR, 7, 'A', VT + 1)
        self.stamp("act0")
        def load_act(n, q):
            pn = n >> 1
            if n % 2 == 0: q(f"s_add_u32 s{S_Y}, s{S_ACTR}, {((pn%7)*4 + (pn//7)*2)*2048}")
            for ti in range(2):
                q(f"buffer_load_dwordx4 {v(AB+8*(n%8)+4*ti,4)}, v{VL16}, {s(R_WS,4)}, s{S_Y} offen offset:{(n&1)*2048+ti*1024} sc1")
        for n in range(8): load_act(n, p)
        for n in range(28):
            for di, ti in ((0, 0), (1, 0), (0, 1), (1, 1)):
                a = v(ACC + 32 * di + 16 * ti, 16)
                p(f"v_mfma_f32_32x32x16_bf16 {a}, {v(W2R+8*(n%12)+4*di,4)}, {v(AB+8*(n%8)+4*ti,4)}, {'0' if n == 0 else a}")
            if n == 6:
                p(f"s_add_u32 s{S_FAR}, s{S_FAR}, 512"); self.poll_flags(S_FAR, 7, 'a', VT + 1); self.stamp("act1")
            if n + 8 < 28: load_act(n + 8, p)
            if n % 2 == 0 and n >= 2 and (n >> 1) + 9 < 14:
                p.wait(rtok[n + 11]); dma_w2((n >> 1) + 9, p)
            if n + 12 < 28: read_w2(n + 12, p)
        self.stamp("gemm2")
        p(f"v_and_b32 v{VT}, 31, v0\nv_lshrrev_b32 v{VT+1}, 5, v0\nv_and_b32 v{VT+2}, 7, v0\nv_xor_b32 v{VT+1}, v{VT+1}, v{VT+2}\nv_bfe_u32 v{VT+2}, v0, 4, 1\nv_lshl_or_b32 v{VT+1}, v{VT+2}, 3, v{VT+1}")
        p(f"v_lshlrev_b32 v{VT+1}, 4, v{VT+1}\nv_lshl_add_u32 v{VT+1}, v{VT}, 8, v{VT+1}\nv_add_u32 v{VD}, s{S_RING}, v{VT+1}")
        for k in range(1, 8): p(f"v_xor_b32 v{VD+k}, {32*k}, v{VD}")
        for ti in range(2):
            for di in range(2):
                for g4 in range(4):
                    p(f"ds_write_b128 v{VD+4*di+g4}, {v(ACC+32*di+16*ti+4*g4,4)} offset:{ti*SLOT}")
        p("s_waitcnt lgkmcnt(0)\ns_barrier")
        self.stamp("barF")
        self.stamp_flush(1)
        p("s_endpgm")

    def role_b(self):
        p, c = self.p, self.c
        p.label("L_roleB")
        self.role_start(); self.stamp_begin("B")
        S_BW, S_CHN, S_MH, S_LDT, S_DSK, S_FXR, S_XTR, S_STW, S_FSW, S_FSR, S_STR, S_XO = range(64, 76)
        S_X, S_Y = 78, 79
        T = S_T
        VP, VSW, VSR, VG, VT = 2, 8, 24, 28, 50
        if c.prio_b: p(f"s_setprio {c.prio_b}")
        p(f"s_sub_u32 s{S_BW}, s{S_WAVE}, 4\ns_lshr_b32 s{S_CHN}, s{S_BW}, 1\ns_and_b32 s{S_MH}, s{S_BW}, 1")
        p(f"s_lshl_b32 s{T}, s{S_CP}, 2\ns_add_u32 s{T+1}, s{T}, s{S_BW}\ns_lshl_b32 s{T+1}, s{T+1}, 8\nv_lshl_add_u32 v1, v0, 2, s{T+1}")
        for i, ptr in enumerate((P_ARE, P_AIM, P_BRE, P_BIM, P_CRE, P_CIM)):
            p(f"global_load_dword v{VP+i}, v1, {s(ptr,2)}")
        p(f"s_load_dword s{S_LDT}, {s(P_LDT,2)}, s{T}\ns_load_dword s{S_DSK}, {s(P_DSK,2)}, s{T}")
        srd(p, R_LD, P_U, 2048 * 896); srd(p, R_2, P_OUT, 2048 * 896)
        p(f"s_lshl_b32 s{T}, s{S_BW}, 13\ns_add_u32 s{T}, s{T}, {L_BR}\nv_lshl_add_u32 v{VSW}, v0, 3, s{T}")
        for r in range(1, 16): p(f"v_xor_b32 v{VSW+r}, {16*r}, v{VSW}")
        p(f"v_and_b32 v{VT}, 15, v0\nv_lshrrev_b32 v{VT+1}, 4, v0\nv_xor_b32 v{VT+2}, v{VT}, v{VT+1}\nv_lshlrev_b32 v{VT+2}, 4, v{VT+2}\nv_lshl_add_u32 v{VT+2}, v{VT}, 9, v{VT+2}\nv_add_u32 v{VSR}, s{T}, v{VT+2}")
        for k in range(1, 4): p(f"v_xor_b32 v{VSR+k}, {64*k}, v{VSR}")
        p(f"s_lshl_b32 s{T}, s{S_MH}, 10\ns_sub_u32 s{T}, 2047, s{T}\nv_lshlrev_b32 v{VT}, 3, v0\nv_sub_u32 v{VT}, s{T}, v{VT}")
        p(f"s_mul_i32 s{T}, s{S_CHN}, 2688\ns_add_u32 s{T}, s{T}, {L_KC+16}\ns_movk_i32 s{T+1}, 128")
        for task in range(2):
            for i in range(11):
                d = VG + 11 * task + i
                p(f"v_subrev_u32 v{d}, {512*task+i}, v{VT}\nv_cvt_f32_i32 v{VT+1}, v{d}\nv_min_i32 v{d}, s{T+1}, v{d}\nv_cvt_pk_bf16_f32 v{VT+1}, v{VT+1}, v{VT+1}")
                p(f"v_ashrrev_i32 v{VT+1}, 16, v{VT+1}\nv_subrev_u32 v{VT+1}, 17024, v{VT+1}\nv_max_i32 v{d}, v{d}, v{VT+1}\nv_lshl_add_u32 v{d}, v{d}, 2, s{T}")
        p(f"s_lshr_b32 s{T}, s{S_CP}, 4\ns_lshl_b32 s{S_FXR}, s{T}, 2\ns_add_u32 s{S_FXR}, s{S_FXR}, s{S_BW}\ns_lshl_b32 s{S_FXR}, s{S_FXR}, 5\ns_add_u32 s{S_FXR}, s{S_FXR}, {WS_FX}")
        p(f"s_lshl_b32 s{S_XTR}, s{S_CP}, 3\ns_add_u32 s{S_XTR}, s{S_XTR}, s{S_BW}\ns_lshl_b32 s{S_XTR}, s{S_XTR}, 10\ns_add_u32 s{S_XTR}, s{S_XTR}, {WS_XT}")
        p(f"s_lshl_b32 s{S_STW}, s{S_CP}, 2\ns_add_u32 s{S_STW}, s{S_STW}, s{S_BW}\ns_lshl_b32 s{S_STW}, s{S_STW}, 11\ns_add_u32 s{S_STW}, s{S_STW}, {WS_ST}")
        p(f"s_mul_i32 s{S_FSW}, s{S_BW}, 14\ns_add_u32 s{S_FSW}, s{S_FSW}, s{T}\ns_lshl_b32 s{S_FSW}, s{S_FSW}, 5\ns_and_b32 s{T+1}, s{S_CP}, 15\ns_add_u32 s{S_FSW}, s{S_FSW}, s{T+1}\ns_lshl_b32 s{S_FSW}, s{S_FSW}, 2\ns_add_u32 s{S_FSW}, s{S_FSW}, {WS_FS}")
        p(f"s_lshl_b32 s{T}, s{S_C2}, 1\ns_add_u32 s{T}, s{T}, s{S_CHN}")
        p(f"s_lshr_b32 s{T+1}, s{S_R2}, 3\ns_mul_i32 s{S_FSR}, s{T+1}, 14\ns_add_u32 s{S_FSR}, s{S_FSR}, s{T}\ns_lshl_b32 s{S_FSR}, s{S_FSR}, 7\ns_add_u32 s{S_FSR}, s{S_FSR}, {WS_FS}")
        p(f"s_lshl_b32 s{S_STR}, s{T}, 9\ns_add_u32 s{S_STR}, s{S_STR}, s{S_R2}\ns_lshl_b32 s{S_STR}, s{S_STR}, 1\ns_add_u32 s{S_STR}, s{S_STR}, s{S_MH}\ns_lshl_b32 s{S_STR}, s{S_STR}, 7\ns_add_u32 s{S_STR}, s{S_STR}, {WS_ST}")
        p(f"s_lshl_b32 s{S_XO}, s{S_R2}, 3\ns_add_u32 s{S_XO}, s{S_XO}, s{S_MH}\ns_mul_i32 s{S_XO}, s{S_XO}, {8*896}\ns_lshl_b32 s{T}, s{T}, 6\ns_add_u32 s{S_XO}, s{S_XO}, s{T}")
        self.make_tag()
        p(f"s_lshl_b32 s{T}, s{S_CHN}, 4\ns_lshr_b32 s{S_LDT}, s{S_LDT}, s{T}\ns_lshl_b32 s{S_LDT}, s{S_LDT}, 16\ns_lshr_b32 s{S_DSK}, s{S_DSK}, s{T}\ns_lshl_b32 s{S_DSK}, s{S_DSK}, 16")
        VDT = 60
        p(f"v_mov_b32 v{VDT}, {LOG2E}\nv_mul_f32 v{VDT}, s{S_LDT}, v{VDT}\nv_exp_f32 v{VDT}, v{VDT}\nv_cvt_pk_bf16_f32 v{VDT}, v{VDT}, v{VDT}\nv_and_b32 v{VDT}, 0xffff0000, v{VDT}\nv_mov_b32 v{VDT+1}, v{VDT}")
        self.stamp("pre", sets=(0, 1))
        Z1, Z2, Z4, Z8, Z128, XB, XC, XD, TM, CV = 64, 68, 72, 76, 80, 84, 88, 92, 96, 100
        AL, BE, UB = 108, 110, 112
        YF, XF, KA = 128, 160, 192
        def unpack(d, src): p(f"v_lshlrev_b32 v{d}, 16, v{src}\nv_and_b32 v{d+1}, 0xffff0000, v{src}")
        def cmul(d, a, b):
            p(f"v_pk_mul_f32 {v(TM,2)}, {v(a,2)}, {v(b,2)}\nv_pk_mul_f32 {v(TM+2,2)}, {v(a,2)}, {v(b+2,2)}")
            p(f"v_pk_fma_f32 {v(d,2)}, {v(a+2,2)}, {v(b+2,2)}, {v(TM,2)} neg_lo:[1,0,0] neg_hi:[1,0,0]")
            assert d != b
            p(f"v_pk_fma_f32 {v(d+2,2)}, {v(a+2,2)}, {v(b,2)}, {v(TM+2,2)}")
        cvn = [0]
        def put(row, a, conj):
            o = CV + 2 * (cvn[0] % 4); cvn[0] += 1
            ng = "-" if conj else ""
            p(f"v_cvt_pk_bf16_f32 v{o}, v{a}, {ng}v{a+2}\nv_cvt_pk_bf16_f32 v{o+1}, v{a+1}, {ng}v{a+3}\nds_write_b64 v{VSW+row}, {v(o,2)} offset:{row*512}")
        def getfr(base):
            for fr in range(8): p(f"ds_read_b128 {v(base+4*fr,4)}, v{VSR+(fr&3)} offset:{(fr>>2)*256}")
        def kmfma(tile):
            a = v(KA + 4 * tile, 4)
            for fr in range(8): p(f"v_mfma_f32_16x16x32_bf16 {a}, {v(XF+4*fr,4)}, {v(YF+4*fr,4)}, {'0' if fr == 0 else a}")
        unpack(AL, VP); unpack(BE, VP + 1)
        self.stamp("params", sets=(0, 1))
        dts = ""
        p(f"v_pk_mul_f32 {v(AL,2)}, {v(AL,2)}, {v(VDT,2)} {dts}\nv_pk_mul_f32 {v(BE,2)}, {v(BE,2)}, {v(VDT,2)} {dts}")
        for m in range(2): p(f"v_mul_f32 v{AL+m}, {LOG2E}, v{AL+m}\nv_mul_f32 v{BE+m}, 0.15915494, v{BE+m}")
        def zpow(d, lg):
            for m in range(2):
                if lg: p(f"v_ldexp_f32 v{TM+m}, v{AL+m}, {lg}\nv_ldexp_f32 v{TM+2+m}, v{BE+m}, {lg}")
                a, b = (TM + m, TM + 2 + m) if lg else (AL + m, BE + m)
                p(f"v_exp_f32 v{TM+m}, v{a}\nv_fract_f32 v{TM+2+m}, v{b}")
            for m in range(2): p(f"v_cos_f32 v{d+m}, v{TM+2+m}\nv_sin_f32 v{d+2+m}, v{TM+2+m}")
            p(f"v_pk_mul_f32 {v(d,2)}, {v(d,2)}, {v(TM,2)}\nv_pk_mul_f32 {v(d+2,2)}, {v(d+2,2)}, {v(TM,2)}")
        zpow(Z8, 3)
        p(f"v_mov_b32 v{CV+6}, 0x3f80\nv_mov_b32 v{CV+7}, 0x3f80\nds_write_b64 v{VSW}, {v(CV+6,2)}")
        put(1, Z8, False)
        prev = Z8
        for r in range(2, 16):
            cmul(XB, prev, Z8); prev = XB; put(r, XB, False)
        getfr(YF)
        self.stamp("Y", sets=(1,))
        zpow(Z1, 0); zpow(Z128, 7)
        unpack(UB, VP + 2); unpack(UB + 2, VP + 3); unpack(UB + 4, VP + 4); unpack(UB + 6, VP + 5)
        cmul(XC, UB, UB + 4)
        p(f"v_pk_mul_f32 {v(XC,2)}, {v(XC,2)}, {v(VDT,2)} {dts}\nv_pk_mul_f32 {v(XC+2,2)}, {v(XC+2,2)}, {v(VDT,2)} {dts}")
        cmul(XB, XC, Z128)
        put(0, XC, True); put(8, XB, True)
        prev = XB
        for r in range(1, 8):
            cmul(XC, XC, Z1); put(r, XC, True)
            cmul(XD, prev, Z1); prev = XD; put(8 + r, XD, True)
        getfr(XF)
        self.stamp("X0", sets=(1,))
        cmul(Z2, Z1, Z1); cmul(Z4, Z2, Z2)
        first = True
        for k in range(2):
            cmul(XB, XB, Z128)
            if first: kmfma(0); first = False
            put(4 * k, XB, True); prev = XB
            for r in range(1, 4): cmul(XC, prev, Z2); prev = XC; put(4 * k + r, XC, True)
        for k in range(4):
            cmul(XB, XB, Z128); put(8 + 2 * k, XB, True)
            cmul(XC, XB, Z4); put(9 + 2 * k, XC, True)
        getfr(XF)
        self.stamp("X1", sets=(1,))
        for k in range(9):
            cmul(XB, XB, Z128)
            if k == 2: kmfma(1)
            put(k, XB, True)
        getfr(XF)
        VK = VSW
        p(f"s_mul_i32 s{T}, s{S_CHN}, 2688\ns_add_u32 s{T}, s{T}, {L_KC+16}\nv_and_b32 v{VT}, 15, v0\nv_lshrrev_b32 v{VT+1}, 4, v0\nv_cmp_gt_u32 vcc, 32, v0")
        p(f"v_bfe_u32 v{VT+2}, v0, 4, 1\nv_lshlrev_b32 v{VT+2}, 2, v{VT+2}\nv_lshl_add_u32 v{VT+2}, v{VT}, 3, v{VT+2}\nv_lshrrev_b32 v{VT+3}, 5, v0\nv_lshl_add_u32 v{VT+2}, v{VT+3}, 7, v{VT+2}\nv_lshl_add_u32 v{VK}, v{VT+2}, 2, s{T}")
        p(f"v_lshlrev_b32 v{VT+2}, 2, v{VT}\nv_lshlrev_b32 v{VT+3}, 1, v{VT}\nv_cndmask_b32 v{VT+2}, v{VT+3}, v{VT+2}, vcc\nv_lshl_add_u32 v{VT+2}, v{VT+1}, 6, v{VT+2}\nv_lshl_add_u32 v{VK+1}, v{VT+2}, 2, s{T}")
        p(f"v_mov_b32 v{VT+3}, 128\nv_cndmask_b32 v{VT+3}, v{VT+3}, 8, vcc\nv_add_u32 v{VK+2}, v{VK+1}, v{VT+3}")
        p(f"v_lshl_add_u32 v{VT+2}, v{VT+1}, 6, v{VT}\nv_lshl_add_u32 v{VK+3}, v{VT+2}, 2, s{T}")
        kmfma(2)
        self.stamp("kgen", sets=(0, 1))
        p("s_waitcnt lgkmcnt(0)\ns_barrier")
        def kscatter(op):
            for r in range(4): p(f"{op} v{VK}, v{KA+r} offset:{4*r}")
            for r in range(4): p(f"{op} v{VK+1+(r>>1)}, v{KA+4+r} offset:{1024+4*(r&1)}")
            p("s_mov_b32 exec_hi, 0")
            for r in range(1, 4): p(f"{op} v{VK+3}, v{KA+8+r} offset:{2048+64*r}")
            p("s_mov_b32 exec_hi, 0xffff")
            p(f"{op} v{VK+3}, v{KA+8} offset:2048")
            p("s_mov_b64 exec, -1")
        VZ = 116
        l0, l1 = self.lab("mh1"), self.lab("mhj")
        for i in range(4): p(f"v_mov_b32 v{VZ+i}, 0")
        p(f"s_cmp_lg_u32 s{S_MH}, 0\ns_cbranch_scc1 {l0}")
        p.alt_begin()
        p(f"v_mov_b32 v{VT}, s{S_DSK}\nv_cmp_eq_u32 vcc, 0, v0\nv_cndmask_b32 v{VT}, 0, v{VT}, vcc\nv_add_f32 v{KA}, v{KA}, v{VT}")
        kscatter("ds_write_b32")
        p("s_waitcnt lgkmcnt(0)\ns_barrier")
        p(f"s_branch {l1}")
        p.alt_else()
        p.label(l0)
        p(f"s_mul_i32 s{T}, s{S_CHN}, 4608\ns_add_u32 s{T}, s{T}, {L_U}\nv_lshl_add_u32 v{VT}, v0, 3, s{T}\nds_write_b64 v{VT}, {v(VZ,2)}")
        p(f"s_mul_i32 s{T}, s{S_CHN}, 2688\ns_add_u32 s{T}, s{T}, {L_KC}\nv_mov_b32 v{VT+1}, s{T}\nv_mov_b32 v{VT+2}, {L_CNT}\nds_write_b128 v{VT+1}, {v(VZ,4)}\nds_write_b32 v{VT+2}, v{VZ}")
        p("s_waitcnt lgkmcnt(0)\ns_barrier")
        kscatter("ds_add_f32")
        p.alt_end()
        p.label(l1)
        p("s_waitcnt lgkmcnt(0)")
        self.stamp("atbar2", sets=(1,))
        p("s_barrier")
        GV, PK = 64, 128
        for k in range(22): p(f"ds_read_b32 v{GV+k}, v{VG+k}")
        for task in range(2):
            if task == 1: self.stamp("atbar3", sets=(1,)); p("s_barrier")
            for cp_ in range(4):
                for j in range(4):
                    a = GV + 11 * task + cp_ + 2 * j
                    p(f"v_cvt_pk_bf16_f32 v{PK+16*task+4*cp_+j}, v{a}, v{a+1}")
        p(f"s_mul_i32 s{T}, s{S_CHN}, 16640\ns_add_u32 s{T}, s{T}, {L_TAB}\ns_lshl_b32 s{T+1}, s{S_MH}, 11\ns_add_u32 s{T+1}, s{T+1}, s{T}\nv_lshl_add_u32 v{VT}, v0, 4, s{T+1}")
        p(f"v_lshrrev_b32 v{VT+1}, 1, v0\nv_mul_u32_u24 v{VT+1}, 4160, v{VT+1}\nv_and_b32 v{VT+2}, 1, v0\nv_lshlrev_b32 v{VT+2}, 4, v{VT+2}\nv_add3_u32 v{VT+1}, v{VT+1}, v{VT+2}, s{T}")
        self.stamp("atbar4", sets=(1,))
        p("s_barrier")
        for task in range(2):
            for cp_ in range(4):
                p(f"ds_write_b128 v{VT}, {v(PK+16*task+4*cp_,4)} offset:{cp_*4160+task*1024}")
        p(f"s_mov_b64 exec, 0xff\nds_write_b128 v{VT+1}, {v(VZ,4)} offset:4096\ns_mov_b64 exec, -1")
        VL16, SG, SR = 1, 64, 80
        p(f"v_lshlrev_b32 v{VL16}, 4, v0\ns_lshl_b32 s{S_X}, s{S_BW}, 12\ns_add_u32 s{S_X}, s{S_X}, {WS_STAT}")
        sloads = "\n".join(f"buffer_load_dwordx4 {v(SG+4*i,4)}, v{VL16}, {s(R_WS,4)}, s{S_X} offen offset:{1024*i} sc1" for i in range(4))
        p(sloads)
        VTA, VUA, VUW, VCN, VONE, VEXW, VEXR, VTAG = 2, 3, 4, 5, 6, 7, 8, 9
        p(f"v_and_b32 v{VT}, 15, v0\nv_lshrrev_b32 v{VT+1}, 4, v0\nv_sub_u32 v{VT+2}, 3, v{VT}\nv_and_b32 v{VT+2}, 3, v{VT+2}")
        p(f"v_mul_u32_u24 v{VT+3}, {4160-2}, v{VT+2}\nv_lshl_add_u32 v{VT+3}, v{VT+1}, 4, v{VT+3}\nv_lshlrev_b32 v{VT+2}, 1, v{VT}\nv_sub_u32 v{VT+3}, v{VT+3}, v{VT+2}")
        p(f"s_lshl_b32 s{T+1}, s{S_MH}, 8\ns_sub_u32 s{T}, s{T}, s{T+1}\ns_add_u32 s{T}, s{T}, {2*(2031-1792-96)}\nv_add_u32 v{VTA}, s{T}, v{VT+3}")
        p(f"s_mul_i32 s{T}, s{S_CHN}, 4608\ns_sub_u32 s{T}, s{T}, s{T+1}\ns_add_u32 s{T}, s{T}, {L_U+2*(240-96)}\nv_lshlrev_b32 v{VT+2}, 5, v{VT}\nv_lshl_add_u32 v{VT+2}, v{VT+1}, 4, v{VT+2}\nv_add_u32 v{VUA}, s{T}, v{VT+2}")
        p(f"s_lshl_b32 s{T}, s{S_BW}, 10\ns_add_u32 s{T}, s{T}, {L_U+512}\nv_add_u32 v{VUW}, s{T}, v{VL16}")
        p(f"v_mov_b32 v{VCN}, {L_CNT}\nv_mov_b32 v{VONE}, 1\nv_mov_b32 v{VTAG}, s{S_TAG}")
        p(f"s_lshl_b32 s{T}, s{S_BW}, 13\ns_add_u32 s{T}, s{T}, {L_EX}\nv_add_u32 v{VEXW}, s{T}, v{VL16}\ns_lshl_b32 s{T}, s{S_BW}, 11\ns_add_u32 s{T}, s{T}, {L_EX}\nv_add_u32 v{VEXR}, s{T}, v{VL16}")
        p("s_waitcnt lgkmcnt(0)")
        self.stamp("atbar5", sets=(1,))
        p("s_barrier")
        TF, UF, CA = 96, 160, 224
        def read_t(ph):
            r = []
            for a in range(8):
                for h in range(2):
                    r.append(I(f"ds_read_b64 {v(TF+32*(ph&1)+4*a+2*h,2)}, v{VTA} offset:{2*(256*(7-a)+32*(3-ph))+8*h}"))
            return r
        def read_u(ph):
            return [I(f"ds_read_b128 {v(UF+32*(ph&1)+4*b,4)}, v{VUA} offset:{2*(256*b+32*(3-ph))}") for b in range(8)]
        p.extend(read_t(0))
        self.stamp("atbar6", sets=(1,))
        p("s_barrier")
        p.extend(read_t(1))
        self.stamp("bar6")
        self.tagged_check(sloads, [SG + 2 * i + 1 for i in range(8)], VT)
        for i in range(8):
            p(f"v_and_b32 v{SR+i}, 0xffff0000, v{SG+2*i}\nv_rcp_f32 v{SR+i}, v{SR+i}\nv_lshlrev_b32 v{SR+8+i}, 16, v{SG+2*i}\nv_mul_f32 v{SR+8+i}, -v{SR+8+i}, v{SR+i}")
        self.stamp("stats")
        self.poll_flags(S_FXR, 8, 'X', VT)
        self.stamp("fx")
        XR = 10
        p(f"buffer_load_dwordx4 {v(XR,4)}, v{VL16}, {s(R_WS,4)}, s{S_XTR} offen sc1\ns_add_u32 s{S_XTR}, s{S_XTR}, 4096\nbuffer_load_dwordx4 {v(XR+4,4)}, v{VL16}, {s(R_WS,4)}, s{S_XTR} offen sc1")
        for ch in range(2):
            for j in range(4):
                a = SG + 8 * ch + 2 * j; x = XR + 4 * ch + j
                p(f"v_lshlrev_b32 v{a}, 16, v{x}\nv_and_b32 v{a+1}, 0xffff0000, v{x}\nv_fma_f32 v{a}, v{a}, v{SR+2*j}, v{SR+8+2*j}\nv_fma_f32 v{a+1}, v{a+1}, v{SR+2*j+1}, v{SR+9+2*j}\nv_cvt_pk_bf16_f32 v{x}, v{a}, v{a+1}")
            p(f"ds_write_b128 v{VUW}, {v(XR+4*ch,4)} offset:{4608*ch}")
        self.lds_arrive(VCN, VONE)
        self.lds_wait(VCN, VT, 8)
        self.stamp("u")
        p.extend(read_u(0))
        for ph in range(4):
            mm = []
            for b in range(8):
                for a in range(8 - b):
                    acc = v(CA + 4 * (a + b), 4)
                    mm.append(I(f"v_mfma_f32_16x16x32_bf16 {acc}, {v(UF+32*(ph&1)+4*b,4)}, {v(TF+32*(ph&1)+4*a,4)}, {'0' if (ph == 0 and b == 0) else acc}"))
            fill = []
            if ph < 3: fill = (read_t(ph + 1) if ph >= 1 else []) + read_u(ph + 1)
            p.extend(interleave(mm, fill, ratio=1.0))
        self.stamp("conv")
        for cc in range(8): p(f"ds_write_b128 v{VEXW}, {v(CA+4*cc,4)} offset:{1024*cc}")
        self.lds_arrive(VCN, VONE)
        VXO, VPA, VSA, XI, RG = 10, 11, 13, 16, 24
        p(f"v_bfe_u32 v{VT}, v0, 2, 2\nv_lshrrev_b32 v{VT+1}, 4, v0\nv_and_b32 v{VT+2}, 3, v0")
        p(f"v_lshl_add_u32 v{VT+3}, v{VT}, 4, v{VT+1}\nv_mul_u32_u24 v{VXO}, 896, v{VT+3}\nv_lshl_add_u32 v{VXO}, v{VT+2}, 4, v{VXO}")
        for ps in range(2): p(f"buffer_load_dwordx4 {v(XI+4*ps,4)}, v{VXO}, {s(R_LD,4)}, s{S_XO} offen offset:{ps*4*896}")
        p(f"s_lshr_b32 s{T}, s{S_R2}, 3\ns_lshl_b32 s{T}, s{T}, 12\ns_and_b32 s{T+1}, s{S_R2}, 7\ns_lshl_b32 s{T+1}, s{T+1}, 3\ns_add_u32 s{T+1}, s{T+1}, s{S_MH}\ns_lshl_b32 s{T+1}, s{T+1}, 4\ns_add_u32 s{T}, s{T}, s{T+1}\ns_add_u32 s{S_X}, s{T}, {WS_STAT}")
        p(f"v_lshrrev_b32 v{VT+4}, 5, v0\nv_lshlrev_b32 v{VT+4}, 10, v{VT+4}\nv_lshl_add_u32 v{VT+4}, v{VT}, 5, v{VT+4}\nv_and_b32 v{VT+5}, 1, v{VT+1}\nv_lshl_add_u32 v{VT+4}, v{VT+5}, 3, v{VT+4}")
        for ps in range(2): p(f"buffer_load_dword v{RG+ps}, v{VT+4}, {s(R_WS,4)}, s{S_X} offen offset:{ps*2048} sc1")
        self.lds_wait(VCN, VT + 6, 12)
        EXV = 96
        for k in range(2):
            for w in range(4): p(f"ds_read_b128 {v(EXV+16*k+4*w,4)}, v{VEXR} offset:{8192*w+1024*k}")
        for k in range(2):
            b = EXV + 16 * k
            for r in range(4): p(f"v_add_f32 v{b+r}, v{b+r}, v{b+4+r}\nv_add_f32 v{b+8+r}, v{b+8+r}, v{b+12+r}")
            for r in range(4): p(f"v_cvt_pk_bf16_f32 v{b+4+r}, v{b+r}, v{b+8+r}")
            sttok = p.tok(f"buffer_store_dwordx4 {v(b+4,4)}, v{VL16}, {s(R_WS,4)}, s{S_STW} offen offset:{1024*k} sc1")
        self.stamp("st")
        p(f"s_lshl_b32 s{T}, s{S_MH}, 3\nv_and_b32 v{VT+4}, 1, v{VT}\nv_lshl_add_u32 v{VT+5}, v{VT+4}, 4, v{VT+1}\nv_add_u32 v{VT+5}, s{T}, v{VT+5}\nv_lshlrev_b32 v{VT+5}, 8, v{VT+5}")
        p(f"v_lshrrev_b32 v{VT+6}, 1, v{VT}\nv_lshl_add_u32 v{VT+5}, v{VT+6}, 15, v{VT+5}")
        p(f"v_xor_b32 v{VT+4}, s{S_CHN}, v{VT+4}\nv_lshlrev_b32 v{VT+4}, 3, v{VT+4}\nv_lshl_add_u32 v{VT+4}, v{VT+2}, 1, v{VT+4}\nv_xor_b32 v{VT+4}, v{VT+4}, v{VT+1}\nv_lshl_add_u32 v{VPA}, v{VT+4}, 4, v{VT+5}")
        VP4 = 28
        for ps in range(2):
            for e in range(2): p(f"v_xor_b32 v{VP4+2*ps+e}, {64*ps+16*e}, v{VPA}")
        p(f"s_mul_i32 s{T}, s{S_BW}, 2176\ns_add_u32 s{T}, s{T}, {L_STR}")
        p(f"v_lshrrev_b32 v{VT+4}, 5, v0\nv_lshl_add_u32 v{VT+4}, v{VT+4}, 5, v{VL16}\nv_add_u32 v{VSA}, s{T}, v{VT+4}")
        p(f"v_mul_u32_u24 v{VT+4}, 544, v{VT+2}\nv_and_b32 v{VT+5}, 60, v0\nv_add3_u32 v{VSA+1}, v{VT+4}, v{VT+5}, s{T}")
        p(f"v_lshrrev_b32 v{VT+4}, 3, v0\nv_lshlrev_b32 v{VT+4}, 13, v{VT+4}\nv_and_b32 v{VT+5}, 7, v0\nv_lshl_add_u32 v{VSA+2}, v{VT+5}, 4, v{VT+4}")
        XF32, RR, SV, SRF = 128, 2, 32, 144
        for ps in range(2):
            for j in range(4):
                p(f"v_lshlrev_b32 v{XF32+8*ps+2*j}, 16, v{XI+4*ps+j}\nv_and_b32 v{XF32+8*ps+2*j+1}, 0xffff0000, v{XI+4*ps+j}")
            p(f"v_and_b32 v{RG+ps}, 0xffff0000, v{RG+ps}\nv_rcp_f32 v{RG+ps}, v{RG+ps}\nv_mul_f32 v{RR+2*ps}, {LOG2E | 0x80000000}, v{RG+ps}\nv_mul_f32 v{RR+2*ps+1}, {LOG2E | 0x80000000}, v{RG+ps}")
        p.wait(sttok); self.flag_store(S_FSW, VTAG)
        self.stamp("flagS")
        self.poll_flags(S_FSR, 16, 'S', VT + 4)
        self.stamp("fs")
        p(f"buffer_load_dwordx4 {v(SV,4)}, v{VSA+2}, {s(R_WS,4)}, s{S_STR} offen sc1\ns_add_u32 s{S_STR}, s{S_STR}, 65536\nbuffer_load_dwordx4 {v(SV+4,4)}, v{VSA+2}, {s(R_WS,4)}, s{S_STR} offen sc1")
        for j in range(2): p(f"ds_write_b128 v{VSA}, {v(SV+4*j,4)} offset:{1088*j}")
        for ps in range(2):
            for i in range(4): p(f"ds_read_b32 v{SV+8+4*ps+i}, v{VSA+1} offset:{128*i+64*ps}")
        for ps in range(2):
            for i in range(4):
                a = SRF + 8 * ps + 2 * i; x = SV + 8 + 4 * ps + i
                p(f"v_lshlrev_b32 v{a}, 16, v{x}\nv_and_b32 v{a+1}, 0xffff0000, v{x}\nv_mul_f32 v{a}, v{a}, v{RG+ps}\nv_mul_f32 v{a+1}, v{a+1}, v{RG+ps}")
        self.stamp("sready")
        p("s_barrier")
        PV = 160
        for ps in range(2):
            for w in range(4):
                for e in range(2):
                    p(f"ds_read_b128 {v(PV+32*ps+8*w+4*e,4)}, v{VP4+2*ps+e} offset:{8192*w+1024*ps}")
        for ps in range(2):
            b = PV + 32 * ps
            for i in range(0, 8, 2): p(f"v_pk_add_f32 {v(b+i,2)}, {v(b+i,2)}, {v(b+8+i,2)}")
            for i in range(0, 8, 2): p(f"v_pk_add_f32 {v(b+16+i,2)}, {v(b+16+i,2)}, {v(b+24+i,2)}")
            for i in range(0, 8, 2): p(f"v_pk_add_f32 {v(b+i,2)}, {v(b+i,2)}, {v(b+16+i,2)}")
            for i in range(0, 8, 2): p(f"v_pk_mul_f32 {v(b+8+i,2)}, {v(b+i,2)}, {v(RR+2*ps,2)}")
            for i in range(8): p(f"v_exp_f32 v{b+8+i}, v{b+8+i}")
            for i in range(0, 8, 2): p(f"v_pk_mul_f32 {v(b+i,2)}, {v(b+i,2)}, {v(SRF+8*ps+i,2)}")
            for i in range(0, 8, 2): p(f"v_pk_add_f32 {v(b+8+i,2)}, {v(b+8+i,2)}, 1.0 op_sel_hi:[1,0]")
            for i in range(8): p(f"v_rcp_f32 v{b+8+i}, v{b+8+i}")
            for i in range(0, 8, 2): p(f"v_pk_fma_f32 {v(b+i,2)}, {v(b+i,2)}, {v(b+8+i,2)}, {v(XF32+8*ps+i,2)}")
            for i in range(4): p(f"v_cvt_pk_bf16_f32 v{b+16+i}, v{b+2*i}, v{b+2*i+1}")
            p(f"buffer_store_dwordx4 {v(b+16,4)}, v{VXO}, {s(R_2,4)}, s{S_XO} offen offset:{ps*4*896}")
        self.stamp("end")
        self.stamp_flush(1)
        p("s_endpgm")

    def role_h(self):
        p, c = self.p, self.c
        p.label("L_helper")
        self.role_start(); self.stamp_begin("H")
        S_HH, S_X, S_Y, S_ONE, S_LO, S_HI = 64, 65, 66, 67, 68, 69
        T = S_T
        VT, XD, WD, AC = 1, 16, 48, 80
        srd(p, R_LD, P_U, 2048 * 896); srd(p, R_2, P_W1, 448 * 3584)
        p(f"s_lshl_b32 s{S_HH}, s{S_XCD}, 2\ns_add_u32 s{S_HH}, s{S_HH}, s{S_J}\ns_sub_u32 s{S_HH}, s{S_HH}, 28")
        p(f"s_lshl_b32 s{T}, s{S_HH}, 1\ns_and_b32 s{T+1}, s{S_WAVE}, 1\ns_add_u32 s{T}, s{T}, s{T+1}\ns_lshl_b32 s{T}, s{T}, 5\ns_and_b32 s{S_X}, s{S_WAVE}, 6\ns_add_u32 s{T}, s{T}, s{S_X}\ns_mul_i32 s{S_X}, s{T}, 896")
        p(f"v_lshrrev_b32 v{VT}, 4, v0\nv_bfe_u32 v{VT+1}, v0, 3, 1\nv_lshl_add_u32 v{VT}, v{VT}, 3, v{VT+1}\nv_mul_u32_u24 v{VT}, 896, v{VT}\nv_and_b32 v{VT+1}, 7, v0\nv_lshl_add_u32 v{VT}, v{VT+1}, 4, v{VT}")
        for i in range(7): p(f"buffer_load_dwordx4 {v(XD+4*i,4)}, v{VT}, {s(R_LD,4)}, s{S_X} offen offset:{128*i}")
        p(f"s_min_u32 s{T}, s{S_HH}, 27\ns_lshl_b32 s{T}, s{T}, 7\ns_mul_i32 s{S_Y}, s{S_WAVE}, {56*3584}\ns_add_u32 s{S_Y}, s{S_Y}, s{T}")
        p(f"v_lshrrev_b32 v{VT+2}, 3, v0\nv_mul_u32_u24 v{VT+2}, 3584, v{VT+2}\nv_lshl_add_u32 v{VT+2}, v{VT+1}, 4, v{VT+2}")
        for i in range(7):
            p(f"buffer_load_dwordx4 {v(WD+4*i,4)}, v{VT+2}, {s(R_2,4)}, s{S_Y} offen")
            if i < 6: p(f"s_add_u32 s{S_Y}, s{S_Y}, {8*3584}")
        p(f"s_mov_b32 s{S_ONE}, 0x3f803f80\ns_mov_b32 s{S_LO}, 0x00003f80\ns_mov_b32 s{S_HI}, 0x3f800000")
        p(f"s_lshr_b32 s{T}, s{S_HH}, 3\ns_lshl_b32 s{T}, s{T}, 2\ns_lshr_b32 s{S_X}, s{S_WAVE}, 1\ns_add_u32 s{T}, s{T}, s{S_X}\ns_lshl_b32 s{T}, s{T}, 3\ns_and_b32 s{S_X}, s{S_HH}, 7\ns_add_u32 s{T}, s{T}, s{S_X}")
        p(f"s_lshl_b32 s{T}, s{T}, 1\ns_add_u32 s{T}, s{T}, s{T+1}\ns_lshl_b32 s{T}, s{T}, 6\ns_add_u32 s{S_X}, s{T}, {WS_STAT}")
        self.make_tag()
        self.stamp("issued")
        for i in range(4): p(f"v_mov_b32 v{AC+i}, 0")
        for i in range(28):
            p(f"v_dot2_f32_bf16 v{AC+(i&1)}, v{XD+i}, s{S_ONE}, v{AC+(i&1)}\nv_dot2_f32_bf16 v{AC+2+(i&1)}, v{XD+i}, v{XD+i}, v{AC+2+(i&1)}")
        p(f"v_add_f32 v{AC}, v{AC}, v{AC+1}\nv_add_f32 v{AC+1}, v{AC+2}, v{AC+3}")
        for pat in ("quad_perm:[1,0,3,2]", "quad_perm:[2,3,0,1]", "row_half_mirror"):
            for k in range(2): p(f"v_add_f32_dpp v{AC+k}, v{AC+k}, v{AC+k} {pat} row_mask:0xf bank_mask:0xf")
        inv = 0x3b124925
        p(f"v_mul_f32 v{AC}, {inv}, v{AC}\nv_mul_f32 v{AC+1}, {inv}, v{AC+1}\nv_fma_f32 v{AC+1}, -v{AC}, v{AC}, v{AC+1}\nv_max_f32 v{AC+1}, 0, v{AC+1}")
        p(f"v_cvt_pk_bf16_f32 v{AC+1}, v{AC+1}, v{AC+1}\nv_and_b32 v{AC+1}, 0xffff0000, v{AC+1}\nv_add_f32 v{AC+1}, 0x3727c5ac, v{AC+1}")
        p(f"v_cvt_pk_bf16_f32 v{AC+1}, v{AC+1}, v{AC+1}\nv_and_b32 v{AC+1}, 0xffff0000, v{AC+1}\nv_sqrt_f32 v{AC+1}, v{AC+1}")
        p(f"v_mov_b32 v{AC+3}, s{S_TAG}\nv_cvt_pk_bf16_f32 v{AC+2}, v{AC}, v{AC+1}")
        p(f"s_mov_b32 exec_lo, 0x01010101\ns_mov_b32 exec_hi, 0x01010101\nbuffer_store_dwordx2 {v(AC+2,2)}, v0, {s(R_WS,4)}, s{S_X} offen sc1\ns_mov_b64 exec, -1")
        self.stamp("stats")
        p(f"s_cmp_ge_u32 s{S_HH}, 28\ns_cbranch_scc1 L_hnocs")
        CS = 88
        for k in range(8): p(f"v_mov_b32 v{CS+k}, 0")
        for i in range(7):
            for j in range(4):
                p(f"v_dot2_f32_bf16 v{CS+2*j}, v{WD+4*i+j}, s{S_LO}, v{CS+2*j}\nv_dot2_f32_bf16 v{CS+2*j+1}, v{WD+4*i+j}, s{S_HI}, v{CS+2*j+1}")
        for k in range(8): p(f"v_add_f32_dpp v{CS+k}, v{CS+k}, v{CS+k} row_ror:8 row_mask:0xf bank_mask:0xf")
        p(f"v_and_b32 v{VT+3}, 8, v0\nv_cmp_eq_u32 vcc, 0, v{VT+3}\nv_lshlrev_b32 v{VT+3}, 1, v{VT+3}\nv_lshl_add_u32 v{VT+3}, v{VT+1}, 5, v{VT+3}\nv_lshrrev_b32 v{VT+4}, 4, v0\nv_lshl_add_u32 v{VT+3}, v{VT+4}, 8, v{VT+3}")
        p(f"s_lshl_b32 s{T}, s{S_WAVE}, 10\nv_add_u32 v{VT+3}, s{T}, v{VT+3}")
        for k in range(4): p(f"v_cndmask_b32 v{CS+k}, v{CS+4+k}, v{CS+k}, vcc")
        p(f"ds_write_b128 v{VT+3}, {v(CS,4)}\ns_waitcnt lgkmcnt(0)\ns_barrier")
        p(f"s_cmp_lg_u32 s{S_WAVE}, 0\ns_cbranch_scc1 L_hdone")
        p(f"v_lshlrev_b32 v{VT+3}, 2, v0")
        for i in range(16): p(f"ds_read2st64_b32 {v(XD+2*i,2)}, v{VT+3} offset0:{2*i} offset1:{2*i+1}")
        for st in (16, 8, 4, 2):
            for i in range(0, st, 2): p(f"v_pk_add_f32 {v(XD+i,2)}, {v(XD+i,2)}, {v(XD+st+i,2)}")
        p(f"v_add_f32 v{AC+2}, v{XD}, v{XD+1}\nv_lshlrev_b32 v{VT+3}, 3, v0\ns_lshl_b32 s{T}, s{S_HH}, 9\ns_add_u32 s{T}, s{T}, {WS_CS}")
        p(f"buffer_store_dwordx2 {v(AC+2,2)}, v{VT+3}, {s(R_WS,4)}, s{T} offen sc1")
        p.label("L_hdone")
        self.stamp("cs")
        self.stamp_flush(1)
        p("s_endpgm")
        p.label("L_hnocs")
        p(f"s_waitcnt vmcnt(0) lgkmcnt(0)\ns_cmp_lg_u32 s{S_HH}, 31\ns_cbranch_scc1 L_hdone\ns_cmp_lg_u32 s{S_WAVE}, 0\ns_cbranch_scc1 L_hdone")
        p.reset()
        p(f"v_lshrrev_b32 v{VT}, 2, v0\nv_min_u32 v{VT}, 13, v{VT}\nv_lshlrev_b32 v{VT}, 7, v{VT}\nv_and_b32 v{VT+1}, 3, v0\nv_lshl_add_u32 v{VT}, v{VT+1}, 4, v{VT}\ns_mov_b32 s{S_X}, {WS_FS}")
        ld = f"s_sleep 8\nbuffer_load_dwordx4 {v(XD,4)}, v{VT}, {s(R_WS,4)}, s{S_X} offen sc1"
        p(ld)
        self.tagged_check(ld, [XD, XD + 1, XD + 2, XD + 3], VT + 2)
        p(f"s_mov_b32 s{S_X}, {WS_EPOCH}")
        self.flag_store(S_X, AC + 3)
        p("s_branch L_hdone")

    def build(self):
        p = self.p
        self.entry()
        self.role_a(); self.role_b(); self.role_h()
        p.reset()
        p.label("L_exit")
        p("s_endpgm")
        p.label("L_end")
        body = p.resolve()
        head = open("recurrent_scan__ssm_conv_s4__dense_activation_mish__prompt.s.ref").read().split("; Override launch")[0]
        txt = head + f"; @launch grid=(256,1,1) block=(512,1,1) lds={LDS_BYTES}\n"
        txt += f'.amdgcn_target "amdgcn-amd-amdhsa--gfx950"\n.text\n.globl {KNAME}\n.p2align 8\n.type {KNAME},@function\n{KNAME}:\n'
        txt += body
        txt += f""".section .rodata,"a"
.p2align 6
.amdhsa_kernel {KNAME}
  .amdhsa_next_free_vgpr 256
  .amdhsa_next_free_sgpr 102
  .amdhsa_accum_offset 256
  .amdhsa_group_segment_fixed_size 0
  .amdhsa_kernarg_size 128
  .amdhsa_user_sgpr_count 2
  .amdhsa_user_sgpr_kernarg_segment_ptr 1
  .amdhsa_system_sgpr_workgroup_id_x 1
.end_amdhsa_kernel
"""
        return txt

def parse_cfg(args):
    kw = {}
    for a in args:
        k, x = a.split("=")
        kw[k] = eval(x)
    return Cfg(**kw)

if __name__ == "__main__":
    out = sys.argv[1]
    g = Gen(parse_cfg(sys.argv[2:]))
    txt = g.build()
    open(out, "w").write(txt)
    import json
    json.dump(g.stamp_names, open(out + ".stamps.json", "w"))
    print(out, g.p.stats)
```

```python
import sys
from asmgen import *

KNAME = "recurrent_scan__ssm_conv_s4__dense_activation_mish__prompt_kernel"

class Cfg:
    stamps = False
    sset = 0
    cyc = False
    probe = None
    prefetch_code = True
    mapP = True
    rot2 = 0
    g2_mix = True
    act_st = 'sc1'
    act_ld = 'sc1'
    fa_st = 'sc1'
    mish_pk = False
    spoll = 'XAS'
    adepth = 7
    flead = 6
    pre_dma = 24
    dma_per = (8, 8, 8, 8, 8, 8, 8)
    gran_at = 4
    w2_sched = (0, 2, 10, 12)
    mish_skip = 0.0
    w2_lead = 23
    w2_rate = 0.8
    rdepth = 11
    flag_lag = 2
    pf_at = -1
    fx_at = 3
    gt_at = 4
    st_at = 4
    fxr_at = 6
    b_pre = 1.0
    b_w4 = 4
    kg_pre = 380
    kg_ints = 4
    kg_x = 0.6
    prio_xt = 1
    h_pf = (3, 2)
    fs_sleep = 2
    prio_b = 1
    prio_b2 = 0
    prio_b3 = 0
    prio_b4 = 0
    prio_b5 = 1
    prio_b6 = 0
    prio_a1 = 2
    pre_reads = 12
    def __init__(self, **kw):
        for k, x in kw.items():
            assert hasattr(self, k), k
            setattr(self, k, x)

WS_EPOCH, WS_FX, WS_FA, WS_FS = 0, 0x1000, 0x20000, 0x8000
WS_STAT, WS_CS, WS_XT, WS_ST, WS_ACT, WS_DBG = 0x10000, 0x14000, 0x40000, 0x200000, 0x400000, 0xC00000
WS_SIZE = 0x1000000
TAGC = 0x9E3779B1
SLOT = 32768
L_TAB = 3 * SLOT
L_BR = 4 * SLOT
L_RAW = L_BR + 1024
L_U = L_BR + 13312
L_STR = L_BR + 22528
L_CNT = L_BR + 31232
L_EX = L_TAB
LDS_BYTES = 163840
P_U, P_ARE, P_AIM, P_BRE, P_BIM, P_CRE, P_CIM, P_LDT = 4, 6, 8, 10, 12, 14, 16, 18
P_DSK, P_BX, P_W1, P_B1, P_W2, P_OUT, P_DBG, P_WS = 20, 22, 24, 26, 28, 30, 32, 34
R_LD, R_2, R_WS, R_PC = 36, 40, 44, 48
S_TAG, S_TAG2, S_WAVE, S_XCD, S_J, S_RT, S_CT, S_CP = 52, 53, 54, 55, 56, 57, 58, 58
S_R2, S_C2 = 60, 61
S_T = 62
S_SP = 80
S_JR, S_XF = 3, 59
S_POLL = 97
S_CNT = 96
S_T0 = 98
LOG2E = 0x3fb8aa3b
POLL_MAX = 1 << 17

def srd(p, r, ptr, size):
    p(f"s_mov_b32 s{r}, s{ptr}\ns_mov_b32 s{r+1}, s{ptr+1}\ns_mov_b32 s{r+2}, {size}\ns_mov_b32 s{r+3}, 0x20000")

class Gen:
    def __init__(self, cfg):
        self.c = cfg
        self.p = Prog()
        self.nlab = 0
        self.stamp_names = {}
    def lab(self, base):
        self.nlab += 1
        return f"L_{base}_{self.nlab}"

    def stamp_begin(self, role):
        self.role = role; self.stamp_names[role] = []
    def stamp(self, name, p=None, sets=(0,)):
        if self.c.probe == (self.role, name): (p or self.p)("s_memrealtime s[100:101]")
        if not self.c.stamps or self.c.sset not in sets: return
        p = p or self.p
        n = len(self.stamp_names[self.role]); assert n < 15
        self.stamp_names[self.role].append(name)
        p(f"{'s_memtime' if self.c.cyc else 's_memrealtime'} {s(4+2*n, 2)}")
    def stamp_flush(self, vt):
        if self.c.probe and self.c.probe[0] == self.role:
            l0 = self.lab("probe")
            self.p("s_waitcnt vmcnt(0) lgkmcnt(0)")
            self.p.label(l0)
            self.p(f"s_memrealtime s[98:99]\ns_waitcnt lgkmcnt(0)\ns_sub_u32 s98, s98, s100\ns_cmp_lt_u32 s98, 6000\ns_cbranch_scc1 {l0}")
        if not self.c.stamps: return
        p = self.p
        n = len(self.stamp_names[self.role])
        p("s_waitcnt vmcnt(0) lgkmcnt(0)\ns_mov_b64 exec, 1")
        p(f"s_lshl_b32 s{S_T}, s2, 3\ns_add_u32 s{S_T}, s{S_T}, s{S_WAVE}\ns_lshl_b32 s{S_T}, s{S_T}, 6\ns_add_u32 s{S_T}, s{S_T}, {WS_DBG}")
        p(f"v_mov_b32 v{vt}, s{S_T0}\nbuffer_store_dword v{vt}, off, {s(R_WS,4)}, s{S_T}")
        for i in range(n):
            p(f"v_mov_b32 v{vt+1+(i&1)}, s{4+2*i}\nbuffer_store_dword v{vt+1+(i&1)}, off, {s(R_WS,4)}, s{S_T} offset:{4+4*i}")
        p("s_waitcnt vmcnt(0)")

    def flag_store(self, soff, vt):
        p = self.p
        p(f"s_mov_b64 exec, 1\nbuffer_store_dword v{vt}, off, {s(R_WS,4)}, s{soff} sc1\ns_mov_b64 exec, -1")
    def lds_arrive(self, vaddr, vone, off=0, q=None):
        (q or self.p)(f"s_mov_b64 exec, 1\nds_add_u32 v{vaddr}, v{vone} offset:{off}\ns_mov_b64 exec, -1")
    def lds_wait(self, vaddr, vt, target, off=0):
        p = self.p
        l0, l1 = self.lab("spin"), self.lab("spun")
        p(f"s_mov_b32 s{S_CNT}, 0")
        p.label(l0)
        p(f"ds_read_b32 v{vt}, v{vaddr} offset:{off}\ns_add_u32 s{S_CNT}, s{S_CNT}, 1\ns_waitcnt lgkmcnt(0)\nv_readfirstlane_b32 s{S_POLL}, v{vt}")
        p(f"s_cmp_gt_u32 s{S_CNT}, {POLL_MAX*8}\ns_cbranch_scc1 {l1}\ns_cmp_lt_u32 s{S_POLL}, {target}\ns_cbranch_scc1 {l0}")
        p.label(l1)
    def tagged_check(self, loads, tagregs, vt, on_miss=None):
        p = self.p
        l0, l1 = self.lab("chk"), self.lab("chkd")
        p(f"s_mov_b32 s{S_CNT}, 0")
        for r in reversed(tagregs): p.items.append(Marker("need", r))
        p.label(l0)
        p(f"v_xor_b32 v{vt}, s{S_TAG}, v{tagregs[0]}")
        for r in tagregs[1:]:
            p(f"v_bitop3_b32 v{vt}, v{r}, s{S_TAG}, v{vt} bitop3:0xbe")
        p(f"v_cmp_ne_u32 vcc, 0, v{vt}\ns_add_u32 s{S_CNT}, s{S_CNT}, 1\ns_cbranch_vccz {l1}")
        p(f"s_cmp_gt_u32 s{S_CNT}, {POLL_MAX}\ns_cbranch_scc1 {l1}")
        p.alt_begin()
        if on_miss:
            l3 = self.lab("again")
            p(f"s_cmp_lg_u32 s{S_CNT}, 1\ns_cbranch_scc1 {l3}")
            p.alt_begin(); on_miss(); p.alt_end()
            p.label(l3)
        p(loads)
        p(f"s_waitcnt vmcnt(0)\ns_branch {l0}")
        p.alt_end()
        p.label(l1)

    def entry(self):
        p, c = self.p, self.c
        T = S_T
        p(f"s_load_dwordx16 s[4:19], s[0:1], 0\ns_load_dwordx16 s[20:35], s[0:1], 64")
        p(f"s_cmp_ge_u32 s2, 256\ns_cbranch_scc1 L_exit")
        if c.stamps: p(f"{'s_memtime' if c.cyc else 's_memrealtime'} {s(S_T0,2)}")
        if c.probe and c.probe[1] == "start": p("s_memrealtime s[100:101]")
        p(f"v_lshrrev_b32 v1, 6, v0\nv_and_b32 v0, 63, v0\nv_readfirstlane_b32 s{S_WAVE}, v1")
        p(f"s_and_b32 s{S_XCD}, s2, 7\ns_lshr_b32 s{S_J}, s2, 3")
        p(f"s_getpc_b64 {s(R_PC,2)}")
        p.label("L_pc")
        p(f"s_mov_b32 s{R_PC+2}, L_end-L_pc\ns_mov_b32 s{R_PC+3}, 0x20000")
        if c.prefetch_code:
            p(f"s_lshl3_add_u32 s{T}, s{S_J}, s{S_WAVE}\ns_lshl_b32 s{T}, s{T}, 7")
            p(f"buffer_load_dword v255, off, {s(R_PC,4)}, s{T}")
        p(f"s_mov_b32 s{R_WS+2}, {WS_SIZE}\ns_mov_b32 s{R_WS+3}, 0x20000")
        p(f"s_cmp_ge_u32 s{S_J}, 28\ns_cbranch_scc1 L_helper")
        p(f"s_mul_i32 s{S_JR}, s{S_J}, 37\ns_lshr_b32 s{S_JR}, s{S_JR}, 8\ns_mul_i32 s{T}, s{S_JR}, 7\ns_sub_u32 s{S_C2}, s{S_J}, s{T}")
        if c.mapP: p(f"s_lshr_b32 s{S_RT}, s{S_JR}, 1\ns_lshl1_add_u32 s{S_RT}, s{S_XCD}, s{S_RT}\ns_and_b32 s{S_XF}, s{S_JR}, 1")
        else: p(f"s_lshr_b32 s{S_RT}, s{S_XCD}, 1\ns_lshl2_add_u32 s{S_RT}, s{S_RT}, s{S_JR}\ns_and_b32 s{S_XF}, s{S_XCD}, 1")
        p(f"s_cmp_lt_u32 s{S_WAVE}, 4\ns_cbranch_scc1 L_roleA")
        S_BW, S_LDT, S_DSK = 64, 67, 68
        if c.prio_b: p(f"s_setprio {c.prio_b}")
        p(f"s_sub_u32 s{S_BW}, s{S_WAVE}, 4\ns_mul_i32 s{S_CP}, s{S_XCD}, 28\ns_add_u32 s{S_CP}, s{S_CP}, s{S_J}\ns_lshl_b32 s{T}, s{S_CP}, 2")
        p(f"s_add_u32 s{T+1}, s{T}, s{S_BW}\ns_lshl_b32 s{T+1}, s{T+1}, 8\nv_lshl_add_u32 v50, v0, 2, s{T+1}")
        p(f"s_load_dword s{S_LDT}, {s(P_LDT,2)}, s{T}")
        for i, ptr in enumerate((P_ARE, P_AIM, P_BRE, P_BIM, P_CRE, P_CIM)):
            p(f"global_load_dword v{2+i}, v50, {s(ptr,2)}")
        p("s_branch L_roleB")
    def role_start(self, b=False):
        p = self.p
        p.reset()
        if self.c.prefetch_code: p.items.append(Marker("pending", ("vmem", {"v255"})))
        if b:
            p.items.append(Marker("pending", ("smem", {"s67"})))
            for i in range(6): p.items.append(Marker("pending", ("vmem", {f"v{2+i}"})))
        else:
            p.items.append(Marker("pending", ("smem", {f"s{i}" for i in range(4, 36)})))
    def load_epoch(self):
        self.p(f"s_load_dword s{S_TAG}, {s(P_WS,2)}, {WS_EPOCH}\ns_mov_b32 s{R_WS}, s{P_WS}\ns_mov_b32 s{R_WS+1}, s{P_WS+1}")
    def make_tag(self):
        self.p(f"s_add_u32 s{S_TAG}, s{S_TAG}, {TAGC}\ns_mov_b32 s{S_TAG2}, s{S_TAG}")
    def flag_load(self, which, soff, n, va, q=None):
        if which in self.c.spoll:
            w = 8 if n <= 8 else 16
            txt = f"s_buffer_load_dwordx{w} {s(S_SP,w)}, {s(R_WS,4)}, s{soff} glc"
        else:
            txt = f"buffer_load_dword v{va+1}, v{va}, {s(R_WS,4)}, s{soff} offen sc1"
        (q or self.p)(txt)
        return (which, txt, n, va)
    def flag_check(self, fl, vt, sleep=0, on_miss=None):
        which, txt, n, va = fl
        p = self.p
        if sleep: txt = f"s_sleep {sleep}\n" + txt
        if which not in self.c.spoll:
            return self.tagged_check(txt, [va + 1], vt, on_miss)
        l0, l1, l2 = self.lab("chk"), self.lab("retry"), self.lab("chkd")
        p(f"s_mov_b32 s{S_CNT}, 0")
        p.label(l0)
        p("s_waitcnt lgkmcnt(0)")
        for i in range(0, n - 2, 2): p(f"s_cmp_eq_u64 {s(S_SP+i,2)}, {s(S_TAG,2)}\ns_cbranch_scc0 {l1}")
        if n & 1: p(f"s_cmp_eq_u32 s{S_SP+n-1}, s{S_TAG}\ns_cbranch_scc1 {l2}")
        else: p(f"s_cmp_eq_u64 {s(S_SP+n-2,2)}, {s(S_TAG,2)}\ns_cbranch_scc1 {l2}")
        p.alt_begin()
        p.label(l1)
        if on_miss:
            l3 = self.lab("again")
            p(f"s_cmp_lg_u32 s{S_CNT}, 0\ns_cbranch_scc1 {l3}")
            p.alt_begin(); on_miss(); p.alt_end()
            p.label(l3)
        p(txt)
        p(f"s_add_u32 s{S_CNT}, s{S_CNT}, 1\ns_cmp_le_u32 s{S_CNT}, {POLL_MAX}\ns_cbranch_scc1 {l0}\ns_waitcnt lgkmcnt(0)")
        p.alt_end()
        p.label(l2)

    def role_a(self):
        p, c = self.p, self.c
        p.label("L_roleA")
        self.role_start(); self.stamp_begin("A")
        VD, VXA, VWA, VW2A, VW2D, VL16, VFL, VC1, VT = 1, 9, 13, 15, 19, 21, 22, 2, 24
        ACC, FR, W2R, AB = 32, 96, 96, 192
        S_SOFF, S_CSTR, S_LDB, S_WT, S_WF, S_ACTW, S_CW, S_FAW, S_FAR, S_RING, S_ACTR, S_W2B, S_Z = range(64, 77)
        S_X = 78; S_Y = 79
        S_B1 = 0
        T = S_T
        phys = lambda n: n % 4
        p(f"s_and_b32 s{S_WT}, s{S_WAVE}, 1\ns_lshr_b32 s{S_WF}, s{S_WAVE}, 1\ns_mul_i32 s{S_CT}, s{S_XF}, 7\ns_add_u32 s{S_CT}, s{S_CT}, s{S_C2}")
        p(f"s_lshl1_add_u32 s{T}, s{S_RT}, s{S_WF}\ns_mul_i32 s{T}, s{T}, {64*896}")
        p(f"s_mul_i32 s{T+1}, s{S_WF}, {32*14}\ns_add_u32 s{T+1}, s{T+1}, s{S_CT}\ns_lshl_b32 s{T+1}, s{T+1}, 8")
        p(f"s_lshl1_add_u32 s{S_LDB}, s{S_WT}, s{S_WF}\ns_lshl_b32 s{S_LDB}, s{S_LDB}, 13")
        p(f"s_add_u32 s{S_X}, s{S_WT}, 3\nv_lshrrev_b32 v{VT}, s{S_X}, v0\ns_lshl_b32 s{S_X}, s{S_WT}, 1\nv_lshrrev_b32 v{VT+1}, 4, v0\nv_lshlrev_b32 v{VT+1}, s{S_X}, v{VT+1}")
        p(f"s_lshl_b32 s{S_Y}, 896, s{S_X}\nv_xor_b32 v{VT+1}, v0, v{VT+1}\nv_mul_u32_u24 v{VT}, s{S_Y}, v{VT}")
        p(f"s_cmp_eq_u32 s{S_WT}, 0")
        p(f"s_cselect_b32 s{S_SOFF}, s{T}, s{T+1}\ns_cselect_b32 s{S_CSTR}, 1, {64*28}\ns_cselect_b32 s{S_X}, 7, 15\ns_cselect_b32 s{S_Y}, 64, 0\ns_cselect_b32 s{R_LD+2}, 8, 7")
        p(f"v_and_b32 v{VT+1}, s{S_X}, v{VT+1}\nv_lshl_add_u32 v{VD}, v{VT+1}, 4, v{VT}\nv_xor_b32 v{VD+1}, s{S_Y}, v{VD}")
        p(f"s_lshl_b32 s{S_CSTR}, s{S_CSTR}, 7\ns_mul_i32 s{T}, s{S_C2}, s{S_CSTR}\ns_add_u32 s{S_SOFF}, s{S_SOFF}, s{T}\ns_mul_i32 s{S_CW}, s{S_CSTR}, 7")
        p(f"s_mul_i32 s{R_LD+2}, s{R_LD+2}, {256*896}\ns_mov_b32 s{R_LD+3}, 0x20000\ns_lshl_b32 s{S_Y}, 7168, s{S_WT}")
        p(f"s_sub_u32 s{T}, s{S_Y}, 1024\nv_add_u32 v{VD+1}, s{T}, v{VD+1}\ns_lshl_b32 s{T}, s{T}, 1")
        p(f"v_add_u32 v{VD+2}, s{T}, v{VD}\nv_add_u32 v{VD+3}, s{T}, v{VD+1}\ns_lshl_b32 s{T}, s{S_Y}, 2")
        for i in range(4): p(f"v_add_u32 v{VD+4+i}, s{T}, v{VD+i}")
        p(f"s_cmp_eq_u32 s{S_WT}, 0\ns_cselect_b32 s{R_LD}, s{P_U}, s{P_W1}\ns_cselect_b32 s{R_LD+1}, s{P_U+1}, s{P_W1+1}")
        ctok = {}
        def dma_chunk(n):
            r = []
            for i in range(8):
                q = Prog()
                if i % 4 == 0: q(f"s_add_u32 m0, s{S_LDB}, {phys(n)*SLOT + (i//4)*4096}")
                ctok[n] = q.tok(f"buffer_load_dwordx4 v{VD+i}, {s(R_LD,4)}, s{S_SOFF} offen offset:{(i%4)*1024} lds")
                if i == 7 and n < 6:
                    q(f"s_add_u32 s{S_SOFF}, s{S_SOFF}, s{S_CSTR}\ns_cmp_eq_u32 s{S_C2}, {6-n}\ns_cselect_b32 s{T}, s{S_CW}, 0\ns_sub_u32 s{S_SOFF}, s{S_SOFF}, s{T}")
                r.append(q.items)
            return r
        dq = []
        for n in range(7): dq += dma_chunk(n)
        self.stamp("dma0", sets=(1,))
        for it in dq[:8]: p.extend(it)
        self.load_epoch()
        p(f"v_and_b32 v{VT}, 31, v0\nv_lshrrev_b32 v{VT+1}, 5, v0\nv_bfe_u32 v{VT+2}, v0, 1, 3\nv_xor_b32 v{VT+1}, v{VT+1}, v{VT+2}\nv_lshlrev_b32 v{VT+1}, 4, v{VT+1}")
        p(f"v_lshl_add_u32 v{VT+1}, v{VT}, 7, v{VT+1}\ns_lshl_b32 s{S_X}, s{S_WT}, 13\nv_add_u32 v{VXA}, s{S_X}, v{VT+1}")
        for k in range(1, 4): p(f"v_xor_b32 v{VXA+k}, {32*k}, v{VXA}")
        p(f"s_lshl_b32 s{S_RING}, s{S_WAVE}, 13")
        p(f"v_bfe_u32 v{VT}, v0, 4, 1\nv_lshlrev_b32 v{VT}, 5, v{VT}\nv_and_b32 v{VT+1}, 3, v0\nv_lshl_add_u32 v{VT}, v{VT+1}, 3, v{VT}")
        p(f"v_bfe_u32 v{VT+1}, v0, 2, 2\nv_lshrrev_b32 v{VT+2}, 5, v0")
        p(f"v_lshl_add_u32 v{VT+3}, v{VT+2}, 3, v{VT+1}\nv_lshl_add_u32 v{VT+3}, v{VT+3}, 8, v{VT}")
        p(f"s_lshl_b32 s{S_Y}, s{S_WF}, 1\nv_xor_b32 v{VT+4}, s{S_Y}, v{VT+1}\nv_lshl_add_u32 v{VWA}, v{VT+4}, 6, v{VT+3}\nv_xor_b32 v{VWA+1}, 64, v{VWA}")
        p(f"v_lshl_add_u32 v{VT+3}, v{VT+2}, 2, v{VT+1}\nv_lshl_add_u32 v{VT+3}, v{VT+3}, 7, v{VT}")
        p(f"v_lshrrev_b32 v{VT+4}, 1, v{VT+1}\nv_lshl_add_u32 v{VT+3}, v{VT+4}, 6, v{VT+3}\nv_add_u32 v{VW2A}, s{S_RING}, v{VT+3}")
        srd(p, R_2, P_W2, 1792 * 896)
        p(f"s_mov_b32 s{S_B1}, s{P_B1}\ns_mov_b32 s{S_B1+1}, s{P_B1+1}")
        self.stamp("setup", sets=(0, 1))
        for it in dq[8:c.pre_dma]: p.extend(it)
        VB1 = 30
        q = p
        VGA = 26
        q(f"v_xor_b32 v{VW2A+1}, 64, v{VW2A}\nv_add_u32 v{VW2A+2}, 0x10000, v{VW2A}\nv_xor_b32 v{VW2A+3}, 64, v{VW2A+2}")
        q(f"v_bfe_u32 v{VGA}, v0, 1, 2\nv_lshlrev_b32 v{VGA}, 10, v{VGA}\nv_lshrrev_b32 v{VGA+1}, 3, v0\nv_lshl_add_u32 v{VGA}, v{VGA+1}, 4, v{VGA}\nv_and_b32 v{VGA+1}, 1, v0\nv_lshl_add_u32 v{VGA}, v{VGA+1}, 3, v{VGA}")
        late = Prog(); q = late
        q(f"s_lshl1_add_u32 s{T+1}, s{S_RT}, s{S_WT}\ns_lshr_b32 s{S_Y}, s{T+1}, 3\ns_lshl_b32 s{S_Y}, s{S_Y}, 12\ns_and_b32 s{S_X}, s{T+1}, 7\ns_lshl_b32 s{S_X}, s{S_X}, 7")
        q(f"s_add_u32 s{S_X}, s{S_X}, s{S_Y}\ns_add_u32 s{S_X}, s{S_X}, {WS_STAT}\nv_add_u32 v{VGA}, s{S_X}, v{VGA}")
        q(f"s_lshl1_add_u32 s{S_Y}, s{S_CT}, s{S_WF}\ns_lshl_b32 s{S_X}, s{S_Y}, 9\ns_add_u32 s{S_X}, s{S_X}, {WS_CS}\nv_lshl_add_u32 v{VGA+1}, v0, 3, s{S_X}\ns_lshl_b32 s{S_X}, s{S_Y}, 7\nv_lshl_add_u32 v{VB1}, v0, 1, s{S_X}")
        q(f"s_mul_i32 s{S_ACTW}, s{T+1}, 28\ns_add_u32 s{S_ACTW}, s{S_ACTW}, s{S_Y}\ns_lshl_b32 s{S_ACTW}, s{S_ACTW}, 13\ns_add_u32 s{S_ACTW}, s{S_ACTW}, {WS_ACT}")
        q(f"s_mul_i32 s{S_X}, s{S_Y}, 37\ns_lshr_b32 s{S_X}, s{S_X}, 8\ns_mul_i32 s{S_X}, s{S_X}, 25\ns_add_u32 s{S_X}, s{S_X}, s{S_Y}")
        q(f"s_lshl_b32 s{S_FAW}, s{T+1}, 9\ns_add_u32 s{S_FAW}, s{S_FAW}, s{S_X}\ns_lshl2_add_u32 s{S_FAW}, s{S_FAW}, {WS_FA}")
        q(f"s_lshl2_add_u32 s{S_R2}, s{S_XCD}, s{S_JR}")
        q(f"s_lshl4_add_u32 s{S_FAR}, s{S_R2}, s{S_WAVE}\ns_lshl_b32 s{S_FAR}, s{S_FAR}, 7\ns_add_u32 s{S_FAR}, s{S_FAR}, {WS_FA}")
        q(f"v_lshlrev_b32 v{VL16}, 4, v0")
        if "A" not in c.spoll: q(f"v_min_u32 v{VFL}, 6, v0\nv_lshlrev_b32 v{VFL}, 2, v{VFL}")
        q(f"v_lshrrev_b32 v{VT+4}, 3, v0\nv_mul_u32_u24 v{VT+4}, 896, v{VT+4}\nv_bfe_u32 v{VT+1}, v0, 4, 1\nv_lshlrev_b32 v{VT+1}, 2, v{VT+1}\nv_xor_b32 v{VT+1}, v0, v{VT+1}\nv_and_b32 v{VT+1}, 7, v{VT+1}")
        q(f"v_lshl_add_u32 v{VW2D}, v{VT+1}, 4, v{VT+4}\nv_add_u32 v{VW2D+1}, {7168-1024}, v{VW2D}")
        q(f"s_lshl2_add_u32 s{S_ACTR}, s{S_R2}, s{S_WAVE}\ns_mul_i32 s{S_ACTR}, s{S_ACTR}, {28*2048}\ns_add_u32 s{S_ACTR}, s{S_ACTR}, {WS_ACT}")
        q(f"s_mul_i32 s{S_W2B}, s{S_WAVE}, {448*7}\ns_add_u32 s{S_W2B}, s{S_W2B}, s{S_C2}\ns_lshl_b32 s{S_W2B}, s{S_W2B}, 7")
        q(f"v_mov_b32 v{VT+5}, {L_CNT}\nv_mov_b32 v{VT+4}, 1")
        lateg = [[it] for it in late.items]
        S_AO = list(range(88, 95)); S_WO = [34, 35, 48, 49, 50, 51, 77]; S_ROT = 95
        if c.rot2:
            q = Prog()
            if c.rot2 == 1: q(f"s_mov_b32 s{S_ROT}, s{S_C2}")
            else: q(f"s_lshl1_add_u32 s{S_ROT}, s{S_JR}, s{S_C2}\ns_cmp_ge_u32 s{S_ROT}, 7\ns_cselect_b32 s{T+1}, 7, 0\ns_sub_u32 s{S_ROT}, s{S_ROT}, s{T+1}")
            lateg.append(q.items)
            for i in range(7):
                q = Prog()
                q(f"s_cmp_ge_u32 s{S_ROT}, {7-i}\ns_cselect_b32 s{T+1}, {i-7}, {i}\ns_add_u32 s{T+1}, s{T+1}, s{S_ROT}")
                lateg.append(q.items); q = Prog()
                q(f"s_lshl_b32 s{S_AO[i]}, s{T+1}, 13\ns_add_u32 s{S_AO[i]}, s{S_AO[i]}, s{S_ACTR}\ns_mul_i32 s{S_WO[i]}, s{T+1}, {64*896}\ns_add_u32 s{S_WO[i]}, s{S_WO[i]}, s{S_W2B}")
                lateg += [[it] for it in q.items]
        self.make_tag()
        p(f"v_mov_b32 v{VT}, s{S_TAG}")
        GR = AB
        gloads = f"buffer_load_dwordx2 {v(GR,2)}, v{VGA}, {s(R_WS,4)}, 0 offen sc1\nbuffer_load_dwordx2 {v(GR+2,2)}, v{VGA+1}, {s(R_WS,4)}, 0 offen sc1"
        piece = [0, 1, 2, 0, 1, 2, 0]; pred = {3: 0, 4: 1, 5: 2, 6: 3}
        wtok, rtok = {}, {}
        w2reg = lambda n: W2R + 8 * ((n + 6) % 12)
        def dma_w2(n):
            q = Prog(); gi = n >> 2
            if gi in pred: q.wait(rtok[4 * pred[gi] + (n & 3)])
            q(f"s_add_u32 m0, s{S_RING}, {piece[gi]*SLOT + (n&3)*2048}\n" + (f"s_add_u32 s{S_Z}, s{S_WO[n%7]}, {16*(n//7)*896}" if c.rot2 else f"s_add_u32 s{S_Z}, s{S_W2B}, {(64*(n%7) + 16*(n//7))*896}"))
            q(f"buffer_load_dwordx4 v{VW2D}, {s(R_2,4)}, s{S_Z} offen lds")
            q2 = Prog()
            wtok[n] = q2.tok(f"buffer_load_dwordx4 v{VW2D+1}, {s(R_2,4)}, s{S_Z} offen offset:1024 lds")
            return [q.items, q2.items]
        def read_w2(n):
            q = Prog(); pc = piece[n >> 2]
            q.wait(wtok[n])
            for di in range(2):
                for h in range(2):
                    rtok[n] = q.tok(f"ds_read_b64_tr_b16 {v(w2reg(n)+4*di+2*h,2)}, v{VW2A+2*(pc>>1)+di} offset:{(pc&1)*SLOT + (n&3)*2048 + h*1024}")
            return [q.items]
        def slot0_sync():
            keep, self.p = self.p, Prog()
            self.lds_wait(VT + 5, VT + 1, 4)
            q, self.p = self.p, keep
            return [q.items]
        nw = [0, 0]
        def w2_ops(k, maxread):
            r = []
            for _ in range(k):
                n = nw[0]
                if n >= 24: break
                for m in (n, n + 1):
                    if (m >> 2) in pred and m < 24:
                        need = 4 * pred[m >> 2] + (m & 3)
                        assert m > n or need < maxread
                        while nw[1] <= need and nw[1] < maxread: r += read_w2(nw[1]); nw[1] += 1
                if n == 4: r += slot0_sync()
                r += dma_w2(n); nw[0] += 1
            return r
        def reads1(gs):
            n, k = gs >> 2, gs & 3
            base = FR + 16 * (gs % 3); so = (n & 1) * SLOT
            r = []
            for fi in range(2):
                for h in range(2):
                    r.append(I(f"ds_read_b64_tr_b16 {v(base+4*fi+2*h,2)}, v{VWA+fi} offset:{so+16384+k*4096+h*1024}"))
                r.append(I(f"ds_read_b128 {v(base+8+4*fi,4)}, v{VXA+k} offset:{so+fi*4096}"))
            return r
        def mfma1(gs):
            base = FR + 16 * (gs % 3)
            r = []
            for fi, ti in ((0, 0), (0, 1), (1, 0), (1, 1)):
                a = v(ACC + 32 * fi + 16 * ti, 16)
                r.append(I(f"v_mfma_f32_32x32x16_bf16 {a}, {v(base+4*fi,4)}, {v(base+8+4*ti,4)}, {'0' if gs == 0 else a}"))
            return r
        self.stamp("dmapre", sets=(1,))
        nd = c.pre_dma
        nl = (len(lateg) + 3) // 4
        for n in range(7):
            p.wait(ctok[n if n < 5 else 6])
            if n == 0: self.stamp("c0", sets=(1,))
            if n < 6: p("s_waitcnt lgkmcnt(0)\ns_barrier")
            self.stamp(f"bar{n}", sets=(0, 1) if n in (0, 3, 6) else (1,))
            if n in (2, 4, 6):
                for r in list(range(VXA, VXA + 4)) + [VWA, VWA + 1]: p(f"v_xor_b32 v{r}, 0x10000, v{r}")
            upto = min(56, 8 * (n + 4), max(nd + c.dma_per[n], 8 * (n + 2)))
            fill = dq[nd:upto]; nd = upto
            if n == c.gran_at:
                fill = fill + [[I(x)] for x in gloads.split("\n")]
                fill += [[I(f"global_load_ushort v{VB1}, v{VB1}, {s(S_B1,2)}")]]
            if n >= 4: assert nd == 56
            if n >= 5:
                fill = fill + w2_ops(c.w2_sched[n - 5], 0)
                assert nw[0] <= 4
            g0 = 4 * n
            r0, r1, r2, r3 = (reads1(g0 + k) for k in range(4))
            body = []
            if n == 0: body.append(r0 + r1)
            else:
                mm = mfma1(g0 - 1)
                body += [r0, [mm[0]] + r1[:3], [mm[1]] + r1[3:], [mm[2]], [mm[3]]]
            for k, rd in ((0, r2), (1, r3), (2, None)):
                mm = mfma1(g0 + k)
                body += [[mm[0]] + (rd[:3] if rd else []), [mm[1]] + (rd[3:] if rd else []), [mm[2]], [mm[3]]]
            if n == 6:
                q = Prog(); self.lds_arrive(VT + 5, VT + 4, q=q)
                body[-3] = body[-3] + q.items
            merged = []
            j = 0
            for i, it in enumerate(body):
                grp = list(it)
                while j < (i + 1) * len(fill) // len(body): grp += fill[j]; j += 1
                merged.append(grp)
            lt = lateg[nl * n: nl * (n + 1)] if n < 4 else []
            p.extend(interleave(merged, lt))
        mm = mfma1(27)
        p.extend(mm[:1])
        self.tagged_check(gloads, [GR + 1, GR + 3], VT + 1)
        self.stamp("granules", sets=(0, 1, 3))
        FA_, FB_ = AB + 8, AB + 12
        q = Prog()
        q(f"s_mov_b32 s{S_X}, 0x01000100\nv_perm_b32 v{FB_}, v{GR}, v{GR}, s{S_X}\nv_lshrrev_b32 v{FB_+1}, 16, v{GR}\nv_xor_b32 v{FB_}, 0x80008000, v{FB_}")
        q(f"v_cvt_pk_bf16_f32 v{VT+1}, v{GR+2}, v{GR+2}\nv_mov_b32 v{FB_+2}, 0\nv_and_b32 v{VT+1}, 0xffff0000, v{VT+1}\nv_mov_b32 v{FB_+3}, 0\nv_sub_f32 v{VT+1}, v{GR+2}, v{VT+1}")
        q(f"v_mov_b32 v{FA_+1}, v{VB1}\nv_cvt_pk_bf16_f32 v{FA_}, v{GR+2}, v{VT+1}\nv_mov_b32 v{FA_+2}, 0\nv_mov_b32 v{FA_+3}, 0\nv_and_b32 v{VT+1}, 0xffff0000, v{GR}")
        q(f"v_permlane32_swap_b32 v{FB_}, v{FB_+2}\nv_permlane32_swap_b32 v{FB_+1}, v{FB_+3}\nv_permlane32_swap_b32 v{FA_}, v{FA_+2}\nv_permlane32_swap_b32 v{FA_+1}, v{FA_+3}")
        q(f"v_rcp_f32 v{VT+1}, v{VT+1}")
        p.extend(interleave(mm[1:], q.items))
        for fi, ti in ((0, 0), (0, 1), (1, 0), (1, 1)):
            a = v(ACC + 32 * fi + 16 * ti, 16)
            p(f"v_mfma_f32_32x32x8_bf16 {a}, {v(FA_+2*fi,2)}, {v(FB_+2*ti,2)}, {a}")
            if (fi, ti) == (0, 0): p(f"v_mul_f32 v{VC1}, {LOG2E}, v{VT+1}\nv_mul_f32 v{VC1+2}, {LOG2E}, v{VT+1}")
            if (fi, ti) == (0, 1): p(f"v_permlane32_swap_b32 v{VC1}, v{VC1+2}")
            if (fi, ti) == (1, 0) and c.mish_pk: p(f"v_mov_b32 v{VC1+1}, v{VC1}\nv_mov_b32 v{VC1+3}, v{VC1+2}")
        MT, MO = AB + 16, AB + 48
        def mish_group(a, ti, o, tset):
            t = MT + 16 * tset; u = t + 8
            r = []
            if c.mish_pk:
                for i in range(0, 8, 2): r.append(f"v_pk_mul_f32 {v(t+i,2)}, {v(a+i,2)}, {v(VC1+2*ti,2)}")
                for i in range(8): r.append(f"v_exp_f32 v{t+i}, v{t+i}")
                for i in range(0, 8, 2): r.append(f"v_pk_fma_f32 {v(u+i,2)}, {v(t+i,2)}, 0.5, 1.0 op_sel_hi:[1,0,0]")
                for i in range(0, 8, 2): r.append(f"v_pk_fma_f32 {v(u+i,2)}, {v(t+i,2)}, {v(u+i,2)}, 1.0 op_sel_hi:[1,1,0]")
                for i in range(8): r.append(f"v_rcp_f32 v{u+i}, v{u+i}")
                for i in range(0, 8, 2): r.append(f"v_pk_fma_f32 {v(u+i,2)}, {v(a+i,2)}, {v(u+i,2)}, {v(a+i,2)} neg_lo:[1,0,0] neg_hi:[1,0,0]")
            else:
                for i in range(8): r.append(f"v_mul_f32 v{t+i}, v{a+i}, v{VC1+2*ti}")
                for i in range(8): r.append(f"v_exp_f32 v{t+i}, v{t+i}")
                for i in range(8): r.append(f"v_fma_f32 v{u+i}, v{t+i}, 0.5, 1.0")
                for i in range(8): r.append(f"v_fma_f32 v{u+i}, v{t+i}, v{u+i}, 1.0")
                for i in range(8): r.append(f"v_rcp_f32 v{u+i}, v{u+i}")
                for i in range(8): r.append(f"v_fma_f32 v{u+i}, -v{a+i}, v{u+i}, v{a+i}")
            for i in range(4): r.append(f"v_cvt_pk_bf16_f32 v{o+i}, v{u+2*i}, v{u+2*i+1}")
            return [I(x) for x in r]
        stok = {}
        def own_flag(st, q):
            q.wait(stok[st])
            q(f"s_mov_b64 exec, 1\nbuffer_store_dword v{VT}, off, {s(R_WS,4)}, s{S_FAW} offset:{512*st} {c.fa_st}\ns_mov_b64 exec, -1")
        body = []
        gi = 0
        for st in range(4):
            for ti in range(2):
                o = MO + 4 * (gi % 4)
                body += mish_group(ACC + 32 * (st >> 1) + 16 * ti + 8 * (st & 1), ti, o, gi & 1)
                q = Prog()
                stok[st] = q.tok(f"buffer_store_dwordx4 {v(o,4)}, v{VL16}, {s(R_WS,4)}, s{S_ACTW} offen offset:{(st&1)*2048+ti*1024} {c.act_st}")
                if gi == 3: q(f"s_add_u32 s{S_ACTW}, s{S_ACTW}, 4096")
                if ti == 1: self.stamp(f"s{st}", q, sets=(3,))
                if ti == 1 and st >= c.flag_lag: own_flag(st - c.flag_lag, q); self.stamp(f"f{st-c.flag_lag}", q, sets=(3,))
                body.append(q.items)
                gi += 1
        k0 = int(len(body) * c.mish_skip)
        p.extend(interleave(body[:k0], [])); p.extend(interleave(body[k0:], w2_ops(c.w2_sched[2], 12) + [[]]))
        self.stamp("mish")
        rest = list(range(max(0, 4 - c.flag_lag), 4))
        def flags_rest():
            for st in rest: own_flag(st, p)
        if c.prio_a1: p(f"s_setprio {c.prio_a1}")
        r = w2_ops(c.w2_sched[3], 12)
        if r:
            k = len(rest)
            for i in range(k):
                for it in r[i * len(r) // (k + 1):(i + 1) * len(r) // (k + 1)]: p.extend(it)
                own_flag(rest.pop(0), p)
            for it in r[k * len(r) // (k + 1):]: p.extend(it)
        self.stamp("w2pre", sets=(0, 3))
        def load_act(n):
            p(f"s_add_u32 s{S_Y}, s{S_AO[n%7]}, {(n//7)*2048}" if c.rot2 else f"s_add_u32 s{S_Y}, s{S_ACTR}, {(4*(n%7) + n//7)*2048}")
            for ti in range(2):
                p(f"buffer_load_dwordx4 {v(AB+8*(n%8)+4*ti,4)}, v{VL16}, {s(R_WS,4)}, s{S_Y} offen offset:{ti*1024} {c.act_ld}")
        def next_flags():
            f = self.flag_load("A", S_FAR, 7, VFL)
            return f
        D = c.adepth
        fl = next_flags()
        self.flag_check(fl, VT + 1, on_miss=flags_rest if rest else None)
        self.stamp("act0", sets=(0, 2, 3))
        p(f"s_add_u32 s{S_FAR}, s{S_FAR}, 512")
        def reads_upto(m):
            while nw[1] < min(m, 28): p.extend(read_w2(nw[1])[0]); nw[1] += 1
        def dmas_upto(m):
            while nw[0] < min(m, 28):
                if nw[0] == 4: p.extend(slot0_sync()[0])
                if nw[0] >= 12: assert nw[1] > nw[0] - 12
                for it in dma_w2(nw[0]): p.extend(it)
                nw[0] += 1
        for n in range(D):
            dmas_upto(n + 1 + c.w2_lead - D); load_act(n)
        reads_upto(max(c.rdepth, min(c.pre_reads, nw[0])))
        M0 = nw[0]
        fl = None
        lead = c.flead
        if 7 - D - lead < 0: fl = next_flags()
        flags_rest()
        if c.prio_a1: p("s_setprio 0")
        self.stamp("flagA", sets=(0, 2, 3))
        assert D <= 7 and c.rdepth <= 11
        main = p
        for n in range(28):
            mm = []
            for di, ti in ((0, 0), (1, 0), (0, 1), (1, 1)):
                a = v(ACC + 32 * di + 16 * ti, 16)
                mm.append(I(f"v_mfma_f32_32x32x16_bf16 {a}, {v(w2reg(n)+4*di,4)}, {v(AB+8*(n%8)+4*ti,4)}, {'0' if n == 0 else a}"))
            groups = []
            def grab(fn):
                nonlocal p
                p = self.p = Prog(); fn(); its = p.items; p = self.p = main
                return its
            def split(its):
                cur = []
                for it in its:
                    cur.append(it)
                    if isinstance(it, I) and it.kind in ("vmem", "ds", "valu"): groups.append(cur); cur = []
                if cur: groups.append(cur)
            split(grab(lambda: reads_upto(n + 1 + c.rdepth)))
            if n + D < 28:
                if (n + D) % 7 == 0:
                    groups.append(grab(lambda: (self.flag_check(fl, VT + 1), p(f"s_add_u32 s{S_FAR}, s{S_FAR}, 512"), self.stamp(f"act{(n+D)//7}", sets=(0, 2)))))
                split(grab(lambda: load_act(n + D)))
            split(grab(lambda: dmas_upto(min(nw[1] + 11, max(n + 1 + c.w2_lead, M0 + int((n + 1) * c.w2_rate))))))
            if n + D + lead < 28 and (n + D + lead) % 7 == 0:
                def nf():
                    nonlocal fl
                    if "A" in c.spoll: p("s_waitcnt lgkmcnt(0)")
                    fl = next_flags()
                groups.append(grab(nf))
            if n == 22:
                split(grab(lambda: (p(f"v_and_b32 v{VT}, 31, v0\nv_lshrrev_b32 v{VT+1}, 5, v0\nv_and_b32 v{VT+2}, 7, v0\nv_xor_b32 v{VT+1}, v{VT+1}, v{VT+2}\nv_bfe_u32 v{VT+2}, v0, 4, 1\nv_lshl_or_b32 v{VT+1}, v{VT+2}, 3, v{VT+1}"),
                      p(f"v_lshlrev_b32 v{VT+1}, 4, v{VT+1}\nv_lshl_add_u32 v{VT+1}, v{VT}, 8, v{VT+1}\nv_add_u32 v{VD}, s{S_RING}, v{VT+1}"))))
            if n == 23: split(grab(lambda: [p(f"v_xor_b32 v{VD+k}, {32*k}, v{VD}") for k in range(1, 8)]))
            if c.g2_mix:
                isv = lambda gr: any(isinstance(it, I) and it.kind == "vmem" for it in gr)
                ds = [gr for gr in groups if any(isinstance(it, I) and it.mn.startswith("ds_read_b64_tr") for it in gr)]
                rest = [gr for gr in groups if not any(gr is x for x in ds)]
                for k in range(4):
                    p.extend([mm[k]])
                    for gr in ds[k * len(ds) // 4:(k + 1) * len(ds) // 4]: p.extend(gr)
                    for gr in rest[k * len(rest) // 4:(k + 1) * len(rest) // 4]: p.extend(gr)
            else:
                p.extend(mm)
                for gr in groups: p.extend(gr)
            if n in (0, 3, 6, 10, 13, 17, 20, 24): self.stamp(f"n{n}", sets=(2,))
        self.stamp("gemm2", sets=(0, 2, 3))
        for ti in range(2):
            for di in range(2):
                for g4 in range(4):
                    p(f"ds_write_b128 v{VD+4*di+g4}, {v(ACC+32*di+16*ti+4*g4,4)} offset:{ti*SLOT}")
        p("s_waitcnt lgkmcnt(0)\ns_barrier")
        self.stamp("barF")
        self.stamp_flush(1)
        p("s_endpgm")

    def gather_table(self):
        import numpy as np
        def rb(l):
            u = np.array([l], np.float32).view(np.uint32)
            return int((((u + 0x7FFF + ((u >> 16) & 1)) >> 16) << 16).view(np.float32)[0])
        rows = list(range(8)) + list(range(128, 136)) + [256, 258, 260, 262, 384, 386, 388, 390, 512, 516, 640, 644, 768, 772, 896, 900] + [1024 + 128 * k for k in range(9)]
        pos = {}
        for i, a in enumerate(rows):
            tile, row = i >> 4, i & 15
            for col in range(16): pos[a + 8 * col] = tile * 1024 + ((row >> 2) * 16 + col) * 16 + (row & 3) * 4
        zero = 2 * 1024 + 48 * 16
        at = lambda l: zero if l < 0 else pos[rb(l)]
        words = []
        for mh in range(2):
            for half in range(2):
                for lane in range(64):
                    hiA, hiB = 2047 - 8 * (64 * mh + lane), 1023 - 8 * (64 * mh + lane)
                    e = [at(hiA - i) for i in (0, 3, 4, 10)] + [at(hiB - i) for i in range(11)] + [0]
                    e = e[8 * half: 8 * half + 8]
                    words += [e[2 * k] | (e[2 * k + 1] << 16) for k in range(4)]
        return words

    def role_b(self):
        p, c = self.p, self.c
        p.label("L_roleB")
        self.role_start(True); self.stamp_begin("B")
        S_BW, S_CHN, S_MH, S_LDT, S_DSK, S_FXR, S_XTR, S_STW, S_FSW, S_FSR, S_STR, S_XO, S_STA, S_STF = range(64, 78)
        S_X, S_Y = 78, 79
        S_FXW, S_XTW, S_P0, S_P1 = 92, 93, 94, 95
        T = S_T
        VL16, VP, VGT, VG, VSW, VSR, VT = 1, 2, 8, 16, 46, 47, 50
        VRW, VTW, VTZ, VTA, VUA, VUW, VCN, VONE, VEXW, VEXR, VTAG, VUZ, VFL = range(32, 45)
        XA, XS, XD, XO = 100, 104, 16, 24
        p(f"s_load_dword s{S_DSK}, {s(P_DSK,2)}, s{T}")
        self.load_epoch()
        if c.prio_b != c.prio_b2: p(f"s_setprio {c.prio_b2}")
        p(f"s_lshr_b32 s{S_CHN}, s{S_BW}, 1\ns_and_b32 s{S_MH}, s{S_BW}, 1\nv_lshlrev_b32 v{VL16}, 4, v0")
        p(f"s_lshl3_add_u32 s{S_STW}, s{T+1}, {WS_ST}")
        srd(p, R_LD, P_U, 2048 * 896); srd(p, R_2, P_OUT, 2048 * 896)
        if c.pf_at >= 0: p(f"s_mov_b32 s0, s{P_W2}\ns_mov_b32 s1, s{P_W2+1}")
        p(f"s_lshl1_add_u32 s{S_Y}, s{S_XF}, s{S_CHN}\ns_lshl_b32 s{S_X}, s{S_Y}, 1\nv_lshrrev_b32 v{VT+2}, 5, v0\nv_and_b32 v{VT+3}, 1, v0\nv_lshlrev_b32 v{VT+3}, 2, v{VT+3}\nv_bitop3_b32 v{VT+2}, v{VT+2}, s{S_X}, v{VT+3} bitop3:0x96")
        p(f"v_bfe_u32 v{VT+3}, v0, 3, 2\nv_lshl_add_u32 v{VT+2}, v{VT+2}, 2, v{VT+3}\nv_and_b32 v{VT+3}, 7, v0\nv_lshl_add_u32 v{VT+2}, v{VT+3}, 8, v{VT+2}\ns_lshl_b32 s{S_X}, s{S_MH}, 13\nv_lshl_add_u32 v{XA}, v{VT+2}, 2, s{S_X}")
        for k in range(1, 4): p(f"v_xor_b32 v{XA+k}, {16*k}, v{XA}")
        p(f"v_lshrrev_b32 v{VT+2}, 3, v0\nv_lshlrev_b32 v{VT+2}, 13, v{VT+2}\nv_lshl_add_u32 v{XS}, v{VT+3}, 4, v{VT+2}")
        p(f"s_lshl1_add_u32 s{S_X}, s{S_RT}, s{S_MH}\ns_lshl2_add_u32 s{S_Y}, s{S_C2}, s{S_Y}")
        p(f"s_lshl_b32 s{S_XTW}, s{S_Y}, 9\ns_add_u32 s{S_XTW}, s{S_XTW}, s{S_X}\ns_lshl_b32 s{S_XTW}, s{S_XTW}, 7\ns_add_u32 s{S_XTW}, s{S_XTW}, {WS_XT}")
        p(f"s_lshr_b32 s{T}, s{S_X}, 3\ns_lshl2_add_u32 s{S_FXW}, s{S_Y}, s{T}\ns_lshl_b32 s{S_FXW}, s{S_FXW}, 5\ns_and_b32 s{S_X}, s{S_X}, 7\ns_add_u32 s{S_FXW}, s{S_FXW}, s{S_X}\ns_lshl2_add_u32 s{S_FXW}, s{S_FXW}, {WS_FX}")
        p(f"s_mov_b32 s{S_P0}, 0x05040100\ns_mov_b32 s{S_P1}, 0x07060302")
        late = Prog(); q = late
        q(f"s_lshl2_add_u32 s{S_R2}, s{S_XCD}, s{S_JR}")
        q(f"s_lshr_b32 s{T}, s{S_CP}, 3\ns_lshl2_add_u32 s{S_FXR}, s{T}, s{S_BW}\ns_lshl_b32 s{S_FXR}, s{S_FXR}, 7\ns_add_u32 s{S_FXR}, s{S_FXR}, {WS_FX}\ns_lshr_b32 s{T}, s{T}, 1")
        q(f"s_lshl3_add_u32 s{S_XTR}, s{S_CP}, s{S_BW}\ns_lshl_b32 s{S_XTR}, s{S_XTR}, 10\ns_add_u32 s{S_XTR}, s{S_XTR}, {WS_XT}")
        q(f"s_mul_i32 s{S_FSW}, s{S_BW}, 14\ns_add_u32 s{S_FSW}, s{S_FSW}, s{T}\ns_lshl_b32 s{S_FSW}, s{S_FSW}, 7\ns_and_b32 s{T+1}, s{S_CP}, 15\ns_add_u32 s{S_FSW}, s{S_FSW}, s{T+1}\ns_lshl2_add_u32 s{S_FSW}, s{S_FSW}, {WS_FS}")
        q(f"s_lshl1_add_u32 s{T}, s{S_C2}, s{S_CHN}")
        q(f"s_lshr_b32 s{T+1}, s{S_R2}, 3\ns_mul_i32 s{S_FSR}, s{T+1}, 14\ns_add_u32 s{S_FSR}, s{S_FSR}, s{T}\ns_lshl2_add_u32 s{S_FSR}, s{S_FSR}, s{S_JR}\ns_lshl_b32 s{S_FSR}, s{S_FSR}, 7\ns_add_u32 s{S_FSR}, s{S_FSR}, {WS_FS}")
        q(f"s_lshl_b32 s{S_STR}, s{T}, 9\ns_add_u32 s{S_STR}, s{S_STR}, s{S_R2}\ns_lshl1_add_u32 s{S_STR}, s{S_STR}, s{S_MH}\ns_lshl_b32 s{S_STR}, s{S_STR}, 7\ns_add_u32 s{S_STR}, s{S_STR}, {WS_ST}")
        q(f"s_lshl3_add_u32 s{S_XO}, s{S_R2}, s{S_MH}\ns_and_b32 s{S_STF}, s{S_XO}, 63\ns_mul_i32 s{S_XO}, s{S_XO}, {8*896}\ns_lshl_b32 s{T}, s{T}, 6\ns_add_u32 s{S_XO}, s{S_XO}, s{T}")
        q(f"s_lshl_b32 s{T+1}, s{T+1}, 8\ns_add_u32 s{S_STF}, s{S_STF}, s{T+1}\ns_lshl4_add_u32 s{S_STF}, s{S_STF}, {WS_STAT}")
        q(f"s_lshl_b32 s{S_STA}, s{S_BW}, 12\ns_add_u32 s{S_STA}, s{S_STA}, {WS_STAT}")
        q(f"v_and_b32 v{VT}, 15, v0\nv_lshrrev_b32 v{VT+1}, 4, v0")
        q(f"s_mul_i32 s{T}, s{S_BW}, 8448\ns_add_u32 s{T}, s{T}, {L_TAB}\nv_lshl_add_u32 v{VSW}, v0, 3, s{T}\nv_mul_u32_u24 v{VT+2}, 528, v{VT}\nv_and_b32 v{VT+3}, 256, v{VL16}\nv_add3_u32 v{VT+2}, v{VT+2}, v{VT+3}, s{T}\nv_lshrrev_b32 v{VT+3}, 5, v0\nv_lshl_add_u32 v{VSR}, v{VT+3}, 4, v{VT+2}")
        q(f"s_lshl_b32 s{T}, s{S_BW}, 13\ns_add_u32 s{T}, s{T}, {L_EX}\nv_add_u32 v{VEXW}, s{T}, v{VL16}")
        q(f"s_mul_i32 s{T}, s{S_BW}, 3072\ns_add_u32 s{T}, s{T}, {L_RAW}\nv_add_u32 v{VRW}, s{T}, v{VL16}")
        q(f"s_mul_i32 s{T}, s{S_CHN}, 16640\ns_add_u32 s{T}, s{T}, {L_TAB}\ns_lshl_b32 s{T+1}, s{S_MH}, 10\ns_add_u32 s{T+1}, s{T+1}, s{T}\nv_add_u32 v{VTW}, s{T+1}, v{VL16}")
        q(f"v_lshrrev_b32 v{VT+2}, 1, v0\nv_mul_u32_u24 v{VT+2}, 4160, v{VT+2}\nv_and_b32 v{VT+3}, 16, v{VL16}\nv_add3_u32 v{VTZ}, v{VT+2}, v{VT+3}, s{T}")
        q(f"v_sub_u32 v{VT+2}, 3, v{VT}\nv_and_b32 v{VT+2}, 3, v{VT+2}\nv_mul_u32_u24 v{VT+3}, {4160-2}, v{VT+2}\nv_lshl_add_u32 v{VT+3}, v{VT+1}, 4, v{VT+3}\nv_lshlrev_b32 v{VT+2}, 1, v{VT}\nv_sub_u32 v{VT+3}, v{VT+3}, v{VT+2}")
        q(f"s_lshl_b32 s{T+1}, s{S_MH}, 8\ns_sub_u32 s{T}, s{T}, s{T+1}\ns_add_u32 s{T}, s{T}, {2*(2031-1792-96)}\nv_add_u32 v{VTA}, s{T}, v{VT+3}")
        q(f"s_mul_i32 s{S_X}, s{S_CHN}, 4608\ns_sub_u32 s{T}, s{S_X}, s{T+1}\ns_add_u32 s{T}, s{T}, {L_U+2*(240-96)}\nv_lshlrev_b32 v{VT+2}, 5, v{VT}\nv_lshl_add_u32 v{VT+2}, v{VT+1}, 4, v{VT+2}\nv_add_u32 v{VUA}, s{T}, v{VT+2}")
        q(f"s_add_u32 s{S_X}, s{S_X}, s{T+1}\ns_add_u32 s{S_X}, s{S_X}, {L_U}\nv_lshl_add_u32 v{VUZ}, v0, 2, s{S_X}")
        q(f"s_lshl_b32 s{T}, s{S_BW}, 10\ns_add_u32 s{T}, s{T}, {L_U+512}\nv_add_u32 v{VUW}, s{T}, v{VL16}")
        q(f"s_lshl_b32 s{T}, s{S_BW}, 11\ns_add_u32 s{T}, s{T}, {L_EX}\nv_add_u32 v{VEXR}, s{T}, v{VL16}")
        VZ = 56
        for i in range(4): q(f"v_mov_b32 v{VZ+i}, 0")
        q(f"v_mov_b32 v{VCN}, {L_CNT}\nv_mov_b32 v{VONE}, 1")
        if "X" not in c.spoll: q(f"v_min_u32 v{VFL}, 7, v0\nv_lshlrev_b32 v{VFL}, 2, v{VFL}")
        q(f"ds_write_b32 v{VUZ}, v{VZ}\nds_write_b64 v{VCN}, {v(VZ,2)}")
        k = int(len(late.items) * c.b_pre)
        p.extend(late.items[:k]); late.items = late.items[k:]
        T = 90
        self.make_tag()
        p(f"s_lshl_b32 s{T}, s{S_CHN}, 4\ns_lshr_b32 s{S_LDT}, s{S_LDT}, s{T}\ns_lshl_b32 s{S_LDT}, s{S_LDT}, 16\ns_lshr_b32 s{S_DSK}, s{S_DSK}, s{T}\ns_lshl_b32 s{S_DSK}, s{S_DSK}, 16")
        VDT = 60
        p(f"v_mov_b32 v{VDT}, {LOG2E}\nv_mul_f32 v{VDT}, s{S_LDT}, v{VDT}\nv_exp_f32 v{VDT}, v{VDT}\nv_mov_b32 v{VTAG}, s{S_TAG}\nv_cvt_pk_bf16_f32 v{VDT}, v{VDT}, v{VDT}\nv_and_b32 v{VDT}, 0xffff0000, v{VDT}\nv_mov_b32 v{VDT+1}, v{VDT}")
        self.stamp("pre", sets=(0, 1))
        Z1, Z2, Z4, Z8, Z128, XB, XC, XDD, TM = 64, 68, 72, 76, 80, 84, 88, 92, 96
        AL, BE, UB, CV = 108, 110, 112, 120
        YF, XF, KV, KA = 96, 128, 128, 244
        units = []
        def unpack(d, src): p(f"v_lshlrev_b32 v{d}, 16, v{src}\nv_and_b32 v{d+1}, 0xffff0000, v{src}")
        def mul2(d, a, b, pk):
            if pk: p(f"v_pk_mul_f32 {v(d,2)}, {v(a,2)}, {v(b,2)}")
            else: p(f"v_mul_f32 v{d}, v{a}, v{b}\nv_mul_f32 v{d+1}, v{a+1}, v{b+1}")
        def cmul_(d, a, b, pk):
            assert d != b
            mul2(TM, a, b, pk); mul2(TM + 2, a, b + 2, pk)
            if pk:
                p(f"v_pk_fma_f32 {v(d,2)}, {v(a+2,2)}, {v(b+2,2)}, {v(TM,2)} neg_lo:[1,0,0] neg_hi:[1,0,0]")
                p(f"v_pk_fma_f32 {v(d+2,2)}, {v(a+2,2)}, {v(b,2)}, {v(TM+2,2)}")
            else:
                for m in range(2): p(f"v_fma_f32 v{d+m}, -v{a+2+m}, v{b+2+m}, v{TM+m}")
                for m in range(2): p(f"v_fma_f32 v{d+2+m}, v{a+2+m}, v{b+m}, v{TM+2+m}")
        def cmul(d, a, b): units.append((8, lambda pk: cmul_(d, a, b, pk)))
        def put(e, a, conj):
            ng = "-" if conj else ""
            units.append((2, lambda pk: p(f"v_cvt_pk_bf16_f32 v{KV+2*e}, v{a}, {ng}v{a+2}\nv_cvt_pk_bf16_f32 v{KV+2*e+1}, v{a+1}, {ng}v{a+3}")))
        def getfr(base):
            for fr in range(8): p(f"ds_read_b128 {v(base+4*fr,4)}, v{VSR} offset:{fr*32}")
        def kmfma(tile, base):
            a = v(KA + 4 * tile, 4)
            return [I(f"v_mfma_f32_16x16x32_bf16 {a}, {v(base+4*fr,4)}, {v(YF+4*fr,4)}, {'0' if fr == 0 else a}") for fr in range(8)]
        def zpow_(d, lg, pk):
            for m in range(2):
                if lg: p(f"v_ldexp_f32 v{TM+m}, v{AL+m}, {lg}\nv_ldexp_f32 v{TM+2+m}, v{BE+m}, {lg}")
                a, b = (TM + m, TM + 2 + m) if lg else (AL + m, BE + m)
                p(f"v_exp_f32 v{TM+m}, v{a}\nv_fract_f32 v{TM+2+m}, v{b}")
            for m in range(2): p(f"v_cos_f32 v{d+m}, v{TM+2+m}\nv_sin_f32 v{d+2+m}, v{TM+2+m}")
            mul2(d, d, TM, pk); mul2(d + 2, d + 2, TM, pk)
        def zpow(d, lg): units.append((22, lambda pk: zpow_(d, lg, pk)))
        p(f"v_mov_b32 v{KV}, 0x3f80\nv_mov_b32 v{KV+1}, 0x3f80")
        unpack(AL, VP); unpack(BE, VP + 1)
        self.stamp("params", sets=(0, 1))
        mul2(AL, AL, VDT, True); mul2(BE, BE, VDT, True)
        for m in range(2): p(f"v_mul_f32 v{AL+m}, {LOG2E}, v{AL+m}\nv_mul_f32 v{BE+m}, 0.15915494, v{BE+m}")
        early_done = [None]
        zpow(Z8, 3)
        put(1, Z8, False)
        prev = Z8
        for r in range(2, 16): cmul(XB, prev, Z8); prev = XB; put(r, XB, False)
        zpow(Z1, 0); zpow(Z128, 7)
        units.append((8, lambda pk: [unpack(UB + 2 * i, VP + 2 + i) for i in range(4)]))
        cmul(XC, UB, UB + 4)
        units.append((4, lambda pk: (mul2(XC, XC, VDT, pk), mul2(XC + 2, XC + 2, VDT, pk))))
        cmul(XB, XC, Z128)
        put(16, XC, True); put(24, XB, True)
        prev = XB
        for r in range(1, 8):
            cmul(XC, XC, Z1); put(16 + r, XC, True)
            cmul(XDD, prev, Z1); prev = XDD; put(24 + r, XDD, True)
        for it in late.items: units.append((1, lambda pk, it=it: p.extend([it])))
        cmul(Z2, Z1, Z1); cmul(Z4, Z2, Z2)
        for k in range(2):
            cmul(XB, XB, Z128); put(32 + 4 * k, XB, True); prev = XB
            for r in range(1, 4): cmul(XC, prev, Z2); prev = XC; put(32 + 4 * k + r, XC, True)
        for k in range(4):
            cmul(XB, XB, Z128); put(40 + 2 * k, XB, True)
            cmul(XC, XB, Z4); put(41 + 2 * k, XC, True)
        for k in range(9): cmul(XB, XB, Z128); put(48 + k, XB, True)
        total = sum(u[0] for u in units)
        SG, SR = 64, 80
        sloads = "\n".join(f"buffer_load_dwordx4 {v(SG+4*i,4)}, v{VL16}, {s(R_WS,4)}, s{S_STA} offen offset:{1024*i} sc1" for i in range(4))
        cuts = [c.kg_pre] + [c.kg_pre + (total - c.kg_pre) * (i - c.kg_x) / (c.kg_ints - c.kg_x) for i in range(1, 7)]
        done = 0; nb = 0; late_at = []; fx = [None]; xt = [None]; inited = [False]
        def barrier():
            nonlocal nb
            if nb == c.fx_at: p.wait(xt[0]); self.flag_store(S_FXW, VTAG)
            self.stamp(f"atbar{nb}", sets=(0, 1) if nb == 0 else (1,))
            p("s_waitcnt lgkmcnt(0)\ns_barrier" if nb < 5 else "s_barrier")
            if nb == 0:
                if c.prio_xt != c.prio_b2: p(f"s_setprio {c.prio_xt}")
                for i in range(8): p(f"ds_read_b32 v{XD+i}, v{XA+(i>>1)} offset:{i*128}")
                for e in range(2):
                    for j in range(4): p(f"v_perm_b32 v{XO+4*e+j}, v{XD+2*j+1}, v{XD+2*j}, s{S_P1 if e else S_P0}")
                    xt[0] = p.tok(f"buffer_store_dwordx4 {v(XO+4*e,4)}, v{XS}, {s(R_WS,4)}, s{S_XTW} offen sc1")
                    if e == 0: p(f"s_add_u32 s{S_XTW}, s{S_XTW}, 4096")
                if c.prio_xt != c.prio_b2: p(f"s_setprio {c.prio_b2}")
            if nb == c.gt_at:
                p(f"s_lshl_b32 s{T}, s{S_MH}, 11\ns_add_u32 s{T}, s{T}, L_gtab-L_pc")
                for h in range(2): p(f"buffer_load_dwordx4 {v(VGT+4*h,4)}, v{VL16}, {s(R_PC,4)}, s{T} offen offset:{1024*h}")
            if nb == c.st_at:
                assert done == total
                p(sloads)
            if nb == c.pf_at:
                p(f"s_lshl2_add_u32 s{T}, s{S_J}, s{S_BW}\ns_mul_i32 s{T}, s{T}, {112*128}\nv_min_u32 v{VT+2}, 55, v0\nv_lshl_add_u32 v{VT+2}, v{VT+2}, 7, s{T}\nv_add_u32 v{VT+3}, {56*128}, v{VT+2}")
                p(f"global_load_dword v62, v{VT+2}, s[0:1]\nglobal_load_dword v63, v{VT+3}, s[0:1]")
            if nb == c.fxr_at: fx[0] = self.flag_load("X", S_FXR, 8, VFL)
            nb += 1
        for cost, fn in units:
            while nb < 5 and done >= cuts[nb]: barrier()
            fn(nb == 0); done += cost
        while nb < 5: barrier()
        self.stamp("bar4", sets=(0, 3))
        if c.prio_b3 != c.prio_b2: p(f"s_setprio {c.prio_b3}")
        XR, XR2 = 2, 52
        def putrows(e0, n, mm=()):
            w = [I(f"ds_write_b64 v{VSW}, {v(KV+2*(e0+r),2)} offset:{r*528}") for r in range(n)]
            if e0 == 0:
                p.extend(w[:c.b_w4]); barrier(); w = w[c.b_w4:]; n -= c.b_w4
            k = n - len(mm)
            p.extend(w[:k]); p.extend(interleave(w[k:], list(mm)) if mm else [])
        putrows(0, 16); getfr(YF)
        if fx[0] is None: fx[0] = self.flag_load("X", S_FXR, 8, VFL)
        putrows(16, 16); getfr(XF)
        self.flag_check(fx[0], VT)
        self.stamp("fx", sets=(0, 3))
        p(f"buffer_load_dwordx4 {v(XR,4)}, v{VL16}, {s(R_WS,4)}, s{S_XTR} offen sc1\ns_add_u32 s{S_XTR}, s{S_XTR}, 4096\nbuffer_load_dwordx4 {v(XR2,4)}, v{VL16}, {s(R_WS,4)}, s{S_XTR} offen sc1")
        putrows(32, 16, kmfma(0, XF)); getfr(XF + 32)
        putrows(48, 9, kmfma(1, XF + 32)); getfr(XF)
        p(f"s_mul_i32 s{T}, s{S_CHN}, 6144\ns_add_u32 s{T}, s{T}, {L_RAW}\ns_cmp_eq_u32 s{S_MH}, 0\ns_cselect_b32 s{S_DSK}, s{S_DSK}, 0")
        p(f"v_mov_b32 v{VT}, s{S_DSK}\nv_cmp_eq_u32 vcc, 0, v0\nv_mov_b32 v{VT+1}, s{T}\nv_cndmask_b32 v{VT}, 0, v{VT}, vcc\nv_add_f32 v{KA}, v{KA}, v{VT}")
        p(f"ds_write_b128 v{VRW}, {v(KA,4)}\nv_cmp_gt_u32 vcc, 48, v0\nds_write_b128 v{VRW}, {v(KA+4,4)} offset:1024")
        p.extend(kmfma(2, XF))
        T = S_T
        for k in range(15):
            p(f"v_add_u32_sdwa v{VG+k}, v{VT+1}, v{VGT+(k>>1)} dst_sel:DWORD dst_unused:UNUSED_PAD src0_sel:DWORD src1_sel:WORD_{k&1}")
        p(f"v_cndmask_b32 v{KA+8}, 0, v{KA+8}, vcc\nds_write_b128 v{VRW}, {v(KA+8,4)} offset:2048")
        self.lds_arrive(VCN, VONE, 4)
        self.stamp("kgen", sets=(0, 3))
        if c.prio_b4 != c.prio_b3: p(f"s_setprio {c.prio_b4}")
        self.tagged_check(sloads, [SG + 2 * i + 1 for i in range(8)], VT)
        self.lds_wait(VCN, VT, 4, off=4)
        GV, PK = 96, 128
        for k in range(15): p(f"ds_read2st64_b32 {v(GV+2*k,2)}, v{VG+k} offset0:0 offset1:12")
        for i in range(8):
            p(f"v_and_b32 v{SR+i}, 0xffff0000, v{SG+2*i}\nv_rcp_f32 v{SR+i}, v{SR+i}\nv_lshlrev_b32 v{SR+8+i}, 16, v{SG+2*i}\nv_mul_f32 v{SR+8+i}, -v{SR+8+i}, v{SR+i}")
        for k in range(15): p(f"v_add_f32 v{GV+2*k}, v{GV+2*k}, v{GV+2*k+1}")
        seq = [[0, 0, 0, 1, 2, 2, 2, 2, 2, 2, 3], list(range(4, 15))]
        for task in range(2):
            for cp_ in range(4):
                for j in range(4):
                    p(f"v_cvt_pk_bf16_f32 v{PK+16*task+4*cp_+j}, v{GV+2*seq[task][cp_+2*j]}, v{GV+2*seq[task][cp_+2*j+1]}")
                p(f"ds_write_b128 v{VTW}, {v(PK+16*task+4*cp_,4)} offset:{cp_*4160+task*2048}")
        p(f"s_mov_b64 exec, 0xff\nds_write_b128 v{VTZ}, {v(VZ,4)} offset:4096\ns_mov_b64 exec, -1")
        self.stamp("tables", sets=(0, 3))
        for ch in range(2):
            for j in range(4):
                a = SG + 8 * ch + 2 * j; x = (XR2 if ch else XR) + j
                p(f"v_lshlrev_b32 v{a}, 16, v{x}\nv_and_b32 v{a+1}, 0xffff0000, v{x}\nv_fma_f32 v{a}, v{a}, v{SR+2*j}, v{SR+8+2*j}\nv_fma_f32 v{a+1}, v{a+1}, v{SR+2*j+1}, v{SR+9+2*j}\nv_cvt_pk_bf16_f32 v{x}, v{a}, v{a+1}")
            p(f"ds_write_b128 v{VUW}, {v(XR2 if ch else XR,4)} offset:{4608*ch}")
        self.lds_arrive(VCN, VONE, 4)
        self.lds_wait(VCN, VT, 8, off=4)
        self.stamp("u", sets=(0, 3))
        if c.prio_b5 != c.prio_b4: p(f"s_setprio {c.prio_b5}")
        TF, UF, CA = 96, 160, 224
        def read_tu(ph):
            r = [I(f"ds_read_b128 {v(UF+32*(ph&1),4)}, v{VUA} offset:{2*32*(3-ph)}")]
            for a in range(8):
                for h in range(2):
                    r.append(I(f"ds_read_b64 {v(TF+32*(ph&1)+4*a+2*h,2)}, v{VTA} offset:{2*(256*(7-a)+32*(3-ph))+8*h}"))
            return r + [I(f"ds_read_b128 {v(UF+32*(ph&1)+4*b,4)}, v{VUA} offset:{2*(256*b+32*(3-ph))}") for b in range(1, 8)]
        r0 = read_tu(0)
        p.extend(r0[:13])
        for ph in range(4):
            mm = []
            for b in range(8):
                for a in range(8 - b):
                    acc = v(CA + 4 * (a + b), 4)
                    mm.append(I(f"v_mfma_f32_16x16x32_bf16 {acc}, {v(UF+32*(ph&1)+4*b,4)}, {v(TF+32*(ph&1)+4*a,4)}, {'0' if (ph == 0 and b == 0) else acc}"))
            fill = (r0[13:] if ph == 0 else []) + (read_tu(ph + 1) if ph < 3 else [])
            if ph == 3:
                self.lds_arrive(VCN, VONE, 4)
                p.extend(mm[:26])
                if c.prio_b6 != c.prio_b5: p(f"s_setprio {c.prio_b6}")
                self.lds_wait(VCN, VT, 12, off=4); mm = mm[26:]
                fill = [I(f"ds_write_b128 v{VEXW}, {v(CA+4*cc,4)} offset:{1024*cc}") for cc in range(4)]
                p.extend(interleave(mm, fill, ratio=0.5))
            else: p.extend(interleave(mm, fill, ratio=1.0))
        self.stamp("conv", sets=(0, 2, 3))
        for cc in range(4, 8): p(f"ds_write_b128 v{VEXW}, {v(CA+4*cc,4)} offset:{1024*cc}")
        self.lds_arrive(VCN, VONE, 4)
        VXO, VPA, VSA, XI, RG = 10, 11, 13, 16, 24
        p(f"v_bfe_u32 v{VT}, v0, 2, 2\nv_lshrrev_b32 v{VT+1}, 4, v0\nv_and_b32 v{VT+2}, 3, v0")
        p(f"v_lshl_add_u32 v{VT+3}, v{VT}, 4, v{VT+1}\nv_mul_u32_u24 v{VXO}, 896, v{VT+3}\nv_lshl_add_u32 v{VXO}, v{VT+2}, 4, v{VXO}")
        p(f"v_lshrrev_b32 v{VT+4}, 5, v0\nv_lshlrev_b32 v{VT+4}, 10, v{VT+4}\nv_lshl_add_u32 v{VT+4}, v{VT}, 5, v{VT+4}\nv_and_b32 v{VT+5}, 1, v{VT+1}\nv_lshl_add_u32 v{VT+4}, v{VT+5}, 3, v{VT+4}")
        self.lds_wait(VCN, VT + 6, 16, off=4)
        EXV = 96
        for k in range(2):
            for w in range(4): p(f"ds_read_b128 {v(EXV+16*k+4*w,4)}, v{VEXR} offset:{8192*w+1024*k}")
        for k in range(2):
            b = EXV + 16 * k
            for r in range(4): p(f"v_add_f32 v{b+r}, v{b+r}, v{b+4+r}\nv_add_f32 v{b+8+r}, v{b+8+r}, v{b+12+r}")
            for r in range(4): p(f"v_cvt_pk_bf16_f32 v{b+4+r}, v{b+r}, v{b+8+r}")
            sttok = p.tok(f"buffer_store_dwordx4 {v(b+4,4)}, v{VL16}, {s(R_WS,4)}, s{S_STW} offen offset:{1024*k} sc1")
        self.stamp("st", sets=(0, 2, 3))
        for ps in range(2): p(f"buffer_load_dwordx4 {v(XI+4*ps,4)}, v{VXO}, {s(R_LD,4)}, s{S_XO} offen offset:{ps*4*896}")
        for ps in range(2): p(f"buffer_load_dword v{RG+ps}, v{VT+4}, {s(R_WS,4)}, s{S_STF} offen offset:{ps*2048} sc1")
        p(f"s_lshl_b32 s{T}, s{S_MH}, 3\nv_and_b32 v{VT+4}, 1, v{VT}\nv_lshl_add_u32 v{VT+5}, v{VT+4}, 4, v{VT+1}\nv_add_u32 v{VT+5}, s{T}, v{VT+5}\nv_lshlrev_b32 v{VT+5}, 8, v{VT+5}")
        p(f"v_lshrrev_b32 v{VT+6}, 1, v{VT}\nv_lshl_add_u32 v{VT+5}, v{VT+6}, 15, v{VT+5}")
        p(f"v_xor_b32 v{VT+4}, s{S_CHN}, v{VT+4}\nv_lshlrev_b32 v{VT+4}, 3, v{VT+4}\nv_lshl_add_u32 v{VT+4}, v{VT+2}, 1, v{VT+4}\nv_xor_b32 v{VT+4}, v{VT+4}, v{VT+1}\nv_lshl_add_u32 v{VPA}, v{VT+4}, 4, v{VT+5}")
        VP4 = 28
        for ps in range(2):
            for e in range(2): p(f"v_xor_b32 v{VP4+2*ps+e}, {64*ps+16*e}, v{VPA}")
        p(f"s_mul_i32 s{T}, s{S_BW}, 2176\ns_add_u32 s{T}, s{T}, {L_STR}")
        p(f"v_lshrrev_b32 v{VT+4}, 5, v0\nv_lshl_add_u32 v{VT+4}, v{VT+4}, 5, v{VL16}\nv_add_u32 v{VSA}, s{T}, v{VT+4}")
        p(f"v_mul_u32_u24 v{VT+4}, 544, v{VT+2}\nv_and_b32 v{VT+5}, 60, v0\nv_add3_u32 v{VSA+1}, v{VT+4}, v{VT+5}, s{T}")
        p(f"v_lshrrev_b32 v{VT+4}, 3, v0\nv_lshlrev_b32 v{VT+4}, 13, v{VT+4}\nv_and_b32 v{VT+5}, 7, v0\nv_lshl_add_u32 v{VSA+2}, v{VT+5}, 4, v{VT+4}")
        if "S" not in c.spoll: p(f"v_min_u32 v{VFL}, 15, v0\nv_lshlrev_b32 v{VFL}, 2, v{VFL}")
        p(f"v_lshlrev_b32 v{VT+4}, 7, v0")
        p.wait(sttok)
        p(f"s_mov_b64 exec, 15\nbuffer_store_dword v{VTAG}, v{VT+4}, {s(R_WS,4)}, s{S_FSW} offen sc1\ns_mov_b64 exec, -1")
        self.stamp("flagS")
        fs = self.flag_load("S", S_FSR, 16, VFL)
        XF32, RR, SV, SRF = 128, 2, 64, 144
        for ps in range(2):
            for j in range(4):
                p(f"v_lshlrev_b32 v{XF32+8*ps+2*j}, 16, v{XI+4*ps+j}\nv_and_b32 v{XF32+8*ps+2*j+1}, 0xffff0000, v{XI+4*ps+j}")
            p(f"v_and_b32 v{RG+ps}, 0xffff0000, v{RG+ps}\nv_rcp_f32 v{RG+ps}, v{RG+ps}\nv_mul_f32 v{RR+2*ps}, {LOG2E | 0x80000000}, v{RG+ps}\nv_mul_f32 v{RR+2*ps+1}, {LOG2E | 0x80000000}, v{RG+ps}")
        self.flag_check(fs, VT, sleep=c.fs_sleep)
        self.stamp("fs", sets=(0, 2, 3))
        p(f"buffer_load_dwordx4 {v(SV,4)}, v{VSA+2}, {s(R_WS,4)}, s{S_STR} offen sc1\ns_add_u32 s{S_STR}, s{S_STR}, 65536\nbuffer_load_dwordx4 {v(SV+4,4)}, v{VSA+2}, {s(R_WS,4)}, s{S_STR} offen sc1")
        for j in range(2): p(f"ds_write_b128 v{VSA}, {v(SV+4*j,4)} offset:{1088*j}")
        for ps in range(2):
            for i in range(4): p(f"ds_read_b32 v{SV+8+4*ps+i}, v{VSA+1} offset:{128*i+64*ps}")
        for ps in range(2):
            for i in range(4):
                a = SRF + 8 * ps + 2 * i; x = SV + 8 + 4 * ps + i
                p(f"v_lshlrev_b32 v{a}, 16, v{x}\nv_and_b32 v{a+1}, 0xffff0000, v{x}\nv_mul_f32 v{a}, v{a}, v{RG+ps}\nv_mul_f32 v{a+1}, v{a+1}, v{RG+ps}")
        self.stamp("sready", sets=(0, 2, 3))
        p("s_barrier")
        PV = 160
        for ps in range(2):
            for w in range(4):
                for e in range(2):
                    p(f"ds_read_b128 {v(PV+32*ps+8*w+4*e,4)}, v{VP4+2*ps+e} offset:{8192*w+1024*ps}")
        for ps in range(2):
            b = PV + 32 * ps
            for i in range(0, 8, 2): p(f"v_pk_add_f32 {v(b+i,2)}, {v(b+i,2)}, {v(b+8+i,2)}")
            for i in range(0, 8, 2): p(f"v_pk_add_f32 {v(b+16+i,2)}, {v(b+16+i,2)}, {v(b+24+i,2)}")
            for i in range(0, 8, 2): p(f"v_pk_add_f32 {v(b+i,2)}, {v(b+i,2)}, {v(b+16+i,2)}")
            for i in range(0, 8, 2): p(f"v_pk_mul_f32 {v(b+8+i,2)}, {v(b+i,2)}, {v(RR+2*ps,2)}")
            for i in range(8): p(f"v_exp_f32 v{b+8+i}, v{b+8+i}")
            for i in range(0, 8, 2): p(f"v_pk_mul_f32 {v(b+i,2)}, {v(b+i,2)}, {v(SRF+8*ps+i,2)}")
            for i in range(0, 8, 2): p(f"v_pk_add_f32 {v(b+8+i,2)}, {v(b+8+i,2)}, 1.0 op_sel_hi:[1,0]")
            for i in range(8): p(f"v_rcp_f32 v{b+8+i}, v{b+8+i}")
            for i in range(0, 8, 2): p(f"v_pk_fma_f32 {v(b+i,2)}, {v(b+i,2)}, {v(b+8+i,2)}, {v(XF32+8*ps+i,2)}")
            for i in range(4): p(f"v_cvt_pk_bf16_f32 v{b+16+i}, v{b+2*i}, v{b+2*i+1}")
            p(f"buffer_store_dwordx4 {v(b+16,4)}, v{VXO}, {s(R_2,4)}, s{S_XO} offen offset:{ps*4*896}")
        self.stamp("end", sets=(0, 2, 3))
        self.stamp_flush(1)
        p("s_endpgm")

    def role_h(self):
        p, c = self.p, self.c
        p.label("L_helper")
        self.role_start(); self.stamp_begin("H")
        S_HH, S_X, S_Y, S_ONE, S_LO, S_HI, S_Q, S_CG = 64, 65, 66, 67, 68, 69, 70, 71
        T = S_T
        VT, XD, WD, AC = 1, 16, 48, 80
        p(f"s_lshl_b32 s{S_HH}, s{S_XCD}, 2\ns_add_u32 s{S_HH}, s{S_HH}, s{S_J}\ns_sub_u32 s{S_HH}, s{S_HH}, 28")
        p(f"s_lshl_b32 s{T}, s{S_HH}, 1\ns_and_b32 s{T+1}, s{S_WAVE}, 1\ns_add_u32 s{T}, s{T}, s{T+1}\ns_lshl_b32 s{T}, s{T}, 5\ns_and_b32 s{S_X}, s{S_WAVE}, 6\ns_add_u32 s{T}, s{T}, s{S_X}\ns_mul_i32 s{S_X}, s{T}, 896")
        p(f"v_lshrrev_b32 v{VT}, 4, v0\nv_bfe_u32 v{VT+1}, v0, 3, 1\nv_lshl_add_u32 v{VT}, v{VT}, 3, v{VT+1}\nv_mul_u32_u24 v{VT}, 896, v{VT}\nv_and_b32 v{VT+1}, 7, v0\nv_lshl_add_u32 v{VT}, v{VT+1}, 4, v{VT}")
        srd(p, R_LD, P_U, 2048 * 896)
        for i in range(7): p(f"buffer_load_dwordx4 {v(XD+4*i,4)}, v{VT}, {s(R_LD,4)}, s{S_X} offen offset:{128*i}")
        self.load_epoch(); srd(p, R_2, P_W1, 448 * 3584); srd(p, R_PC, P_W2, 1792 * 896)
        p(f"s_lshr_b32 s{S_Q}, s{S_XCD}, 1\ns_lshl2_add_u32 s{S_Q}, s{S_Q}, s{S_J}\ns_sub_u32 s{S_Q}, s{S_Q}, 28\ns_and_b32 s{S_CG}, s{S_XCD}, 1\ns_mul_i32 s{S_CG}, s{S_CG}, 14\ns_min_u32 s{T}, s{S_Q}, 13\ns_add_u32 s{S_CG}, s{S_CG}, s{T}")
        p(f"s_lshl_b32 s{T}, s{S_CG}, 7\ns_mul_i32 s{S_Y}, s{S_WAVE}, {56*3584}\ns_add_u32 s{S_Y}, s{S_Y}, s{T}")
        p(f"v_lshrrev_b32 v{VT+2}, 3, v0\nv_mul_u32_u24 v{VT+2}, 3584, v{VT+2}\nv_lshl_add_u32 v{VT+2}, v{VT+1}, 4, v{VT+2}")
        for i in range(7):
            p(f"buffer_load_dwordx4 {v(WD+4*i,4)}, v{VT+2}, {s(R_2,4)}, s{S_Y} offen")
            if i < 6: p(f"s_add_u32 s{S_Y}, s{S_Y}, {8*3584}")
        p(f"s_mov_b32 s{S_ONE}, 0x3f803f80\ns_mov_b32 s{S_LO}, 0x00003f80\ns_mov_b32 s{S_HI}, 0x3f800000")
        p(f"s_lshr_b32 s{T}, s{S_HH}, 3\ns_lshl_b32 s{T}, s{T}, 2\ns_lshr_b32 s{S_X}, s{S_WAVE}, 1\ns_add_u32 s{T}, s{T}, s{S_X}\ns_lshl_b32 s{T}, s{T}, 3\ns_and_b32 s{S_X}, s{S_HH}, 7\ns_add_u32 s{T}, s{T}, s{S_X}")
        p(f"s_lshl_b32 s{T}, s{T}, 1\ns_add_u32 s{T}, s{T}, s{T+1}\ns_lshl_b32 s{T}, s{T}, 6\ns_add_u32 s{S_X}, s{T}, {WS_STAT}")
        self.make_tag()
        self.stamp("issued")
        for i in range(4): p(f"v_mov_b32 v{AC+i}, 0")
        for i in range(28):
            p(f"v_dot2_f32_bf16 v{AC+(i&1)}, v{XD+i}, s{S_ONE}, v{AC+(i&1)}\nv_dot2_f32_bf16 v{AC+2+(i&1)}, v{XD+i}, v{XD+i}, v{AC+2+(i&1)}")
        p(f"v_add_f32 v{AC}, v{AC}, v{AC+1}\nv_add_f32 v{AC+1}, v{AC+2}, v{AC+3}")
        for pat in ("quad_perm:[1,0,3,2]", "quad_perm:[2,3,0,1]", "row_half_mirror"):
            for k in range(2): p(f"v_add_f32_dpp v{AC+k}, v{AC+k}, v{AC+k} {pat} row_mask:0xf bank_mask:0xf")
        inv = 0x3b124925
        p(f"v_mul_f32 v{AC}, {inv}, v{AC}\nv_mul_f32 v{AC+1}, {inv}, v{AC+1}\nv_fma_f32 v{AC+1}, -v{AC}, v{AC}, v{AC+1}\nv_max_f32 v{AC+1}, 0, v{AC+1}")
        p(f"v_cvt_pk_bf16_f32 v{AC+1}, v{AC+1}, v{AC+1}\nv_and_b32 v{AC+1}, 0xffff0000, v{AC+1}\nv_add_f32 v{AC+1}, 0x3727c5ac, v{AC+1}")
        p(f"v_cvt_pk_bf16_f32 v{AC+1}, v{AC+1}, v{AC+1}\nv_and_b32 v{AC+1}, 0xffff0000, v{AC+1}\nv_sqrt_f32 v{AC+1}, v{AC+1}")
        p(f"v_mov_b32 v{AC+3}, s{S_TAG}\nv_cvt_pk_bf16_f32 v{AC+2}, v{AC}, v{AC+1}")
        p(f"s_mov_b32 exec_lo, 0x01010101\ns_mov_b32 exec_hi, 0x01010101\nbuffer_store_dwordx2 {v(AC+2,2)}, v0, {s(R_WS,4)}, s{S_X} offen sc1\ns_mov_b64 exec, -1")
        self.stamp("stats")
        p(f"s_cmp_ge_u32 s{S_Q}, 14\ns_cbranch_scc1 L_hnocs")
        CS = 88
        for k in range(8): p(f"v_mov_b32 v{CS+k}, 0")
        for i in range(7):
            for j in range(4):
                p(f"v_dot2_f32_bf16 v{CS+2*j}, v{WD+4*i+j}, s{S_LO}, v{CS+2*j}\nv_dot2_f32_bf16 v{CS+2*j+1}, v{WD+4*i+j}, s{S_HI}, v{CS+2*j+1}")
        for k in range(8): p(f"v_add_f32_dpp v{CS+k}, v{CS+k}, v{CS+k} row_ror:8 row_mask:0xf bank_mask:0xf")
        p(f"v_and_b32 v{VT+3}, 8, v0\nv_cmp_eq_u32 vcc, 0, v{VT+3}\nv_lshlrev_b32 v{VT+3}, 1, v{VT+3}\nv_lshl_add_u32 v{VT+3}, v{VT+1}, 5, v{VT+3}\nv_lshrrev_b32 v{VT+4}, 4, v0\nv_lshl_add_u32 v{VT+3}, v{VT+4}, 8, v{VT+3}")
        p(f"s_lshl_b32 s{T}, s{S_WAVE}, 10\nv_add_u32 v{VT+3}, s{T}, v{VT+3}")
        for k in range(4): p(f"v_cndmask_b32 v{CS+k}, v{CS+4+k}, v{CS+k}, vcc")
        p(f"ds_write_b128 v{VT+3}, {v(CS,4)}\ns_waitcnt lgkmcnt(0)\ns_barrier")
        p(f"s_cmp_lg_u32 s{S_WAVE}, 0\ns_cbranch_scc1 L_hcsd")
        p.alt_begin()
        p(f"v_lshlrev_b32 v{VT+3}, 2, v0")
        for i in range(16): p(f"ds_read2st64_b32 {v(XD+2*i,2)}, v{VT+3} offset0:{2*i} offset1:{2*i+1}")
        for st in (16, 8, 4, 2):
            for i in range(0, st, 2): p(f"v_pk_add_f32 {v(XD+i,2)}, {v(XD+i,2)}, {v(XD+st+i,2)}")
        p(f"v_add_f32 v{AC+2}, v{XD}, v{XD+1}\nv_lshlrev_b32 v{VT+3}, 3, v0\ns_lshl_b32 s{T}, s{S_CG}, 9\ns_add_u32 s{T}, s{T}, {WS_CS}")
        p(f"buffer_store_dwordx2 {v(AC+2,2)}, v{VT+3}, {s(R_WS,4)}, s{T} offen sc1")
        p.alt_end()
        p.label("L_hcsd")
        if c.h_pf: p("s_barrier")
        p.label("L_hpf")
        self.stamp("cs")
        if c.h_pf:
            p(f"s_cmp_eq_u32 s{S_WAVE}, 7\ns_cbranch_scc1 L_hdone")
            p(f"s_sub_u32 s{T}, s{S_J}, 28\ns_mul_i32 s{T}, s{T}, 7\ns_add_u32 s{T}, s{T}, s{S_WAVE}\ns_mul_i32 s{T}, s{T}, {64*896}\nv_min_u32 v{VT}, 55, v0\nv_lshlrev_b32 v{VT}, 7, v{VT}")
            for st in c.h_pf:
                for h in range(2):
                    p(f"s_add_u32 s{T+1}, s{T}, {(16*st+8*h)*896}\nbuffer_load_dword v{VT+1}, v{VT}, {s(R_PC,4)}, s{T+1} offen")
            p("s_waitcnt vmcnt(0)")
        p.label("L_hdone")
        self.stamp("pf")
        self.stamp_flush(1)
        p("s_endpgm")
        p.label("L_hnocs")
        if c.h_pf: p("s_barrier")
        p(f"s_waitcnt vmcnt(0) lgkmcnt(0)\ns_cmp_lg_u32 s{S_HH}, 31\ns_cbranch_scc1 L_hpf\ns_cmp_lg_u32 s{S_WAVE}, 7\ns_cbranch_scc1 L_hpf")
        p.reset()
        p(f"v_lshrrev_b32 v{VT}, 2, v0\nv_min_u32 v{VT}, 13, v{VT}\nv_lshlrev_b32 v{VT}, 9, v{VT}\nv_and_b32 v{VT+1}, 3, v0\nv_lshl_add_u32 v{VT}, v{VT+1}, 4, v{VT}\ns_mov_b32 s{S_X}, {WS_FS}")
        ld = f"s_sleep 8\nbuffer_load_dwordx4 {v(XD,4)}, v{VT}, {s(R_WS,4)}, s{S_X} offen sc1"
        p(ld)
        self.tagged_check(ld, [XD, XD + 1, XD + 2, XD + 3], VT + 2)
        p(f"s_mov_b32 s{S_X}, {WS_EPOCH}")
        self.flag_store(S_X, AC + 3)
        p("s_branch L_hpf")

    def build(self):
        p = self.p
        self.entry()
        self.role_a(); self.role_b(); self.role_h()
        p.reset()
        p.label("L_exit")
        p("s_endpgm")
        p(".p2align 7")
        p(".type L_gtab,@object")
        p.label("L_gtab")
        w = self.gather_table()
        for i in range(0, len(w), 8): p(".long " + ", ".join(hex(x) for x in w[i:i+8]))
        p.label("L_end")
        body = p.resolve()
        head = open("recurrent_scan__ssm_conv_s4__dense_activation_mish__prompt.s.ref").read().split("; Override launch")[0]
        txt = head + f"; @launch grid=(256,1,1) block=(512,1,1) lds={LDS_BYTES}\n"
        txt += f'.amdgcn_target "amdgcn-amd-amdhsa--gfx950"\n.text\n.globl {KNAME}\n.p2align 8\n.type {KNAME},@function\n{KNAME}:\n'
        txt += body
        txt += f""".section .rodata,"a"
.p2align 6
.amdhsa_kernel {KNAME}
  .amdhsa_next_free_vgpr 256
  .amdhsa_next_free_sgpr 102
  .amdhsa_accum_offset 256
  .amdhsa_group_segment_fixed_size 0
  .amdhsa_kernarg_size 128
  .amdhsa_user_sgpr_count 2
  .amdhsa_user_sgpr_kernarg_segment_ptr 1
  .amdhsa_system_sgpr_workgroup_id_x 1
.end_amdhsa_kernel
"""
        return txt

def parse_cfg(args):
    kw = {}
    for a in args:
        k, x = a.split("=")
        kw[k] = eval(x)
    return Cfg(**kw)

if __name__ == "__main__":
    out = sys.argv[1]
    g = Gen(parse_cfg(sys.argv[2:]))
    txt = g.build()
    open(out, "w").write(txt)
    import json
    json.dump(g.stamp_names, open(out + ".stamps.json", "w"))
    print(out, g.p.stats)
```

```python
import sys
from asmgen import *

KNAME = "recurrent_scan__ssm_conv_s4__dense_activation_mish__prompt_kernel"

class Cfg:
    stamps = False
    sset = 0
    cyc = False
    probe = None
    prefetch_code = True
    mapP = True
    rot2 = 1
    qperm = True
    h_early = True
    sync5 = True
    warm_w = ''
    warm_t = 0
    g2_mix = True
    act_st = 'sc1'
    act_ld = 'sc1'
    fa_st = 'sc1'
    mish_pk = False
    spoll = 'XAS'
    adepth = 7
    flead = 6
    pre_dma = 24
    dma_per = (8, 8, 8, 8, 8, 8, 8)
    gran_at = 4
    w2_sched = (0, 2, 10, 12)
    mish_skip = 0.0
    w2_lead = 23
    w2_rate = 0.8
    rdepth = 11
    flag_lag = 2
    fx_at = 3
    gt_at = 4
    st_at = 4
    fx_chk = 32
    lds_cut = (0, 0, 0, 0, 0, 4)
    b_pre = 1.0
    kg_pre = 380
    kg_ints = 4
    kg_x = 0.6
    prio_xt = 1
    h_pf = ()
    h_rot = 0
    h_wait = False
    fs_sleep = 2
    prio_b = 1
    prio_b2 = 0
    prio_b3 = 0
    prio_b4 = 0
    prio_b5 = 1
    prio_b6 = 0
    prio_a1 = 2
    pre_loop = 'R8 W L D18 F C A7 F R12 W L D24'
    def __init__(self, **kw):
        for k, x in kw.items():
            assert hasattr(self, k), k
            setattr(self, k, x)

WS_EPOCH, WS_FX, WS_FA, WS_FS = 0, 0x1000, 0x20000, 0x8000
WS_STAT, WS_CS, WS_XT, WS_ST, WS_ACT, WS_DBG = 0x10000, 0x14000, 0x40000, 0x200000, 0x400000, 0xC00000
WS_SIZE = 0x1000000
TAGC = 0x9E3779B1
SLOT = 32768
L_BR = 4 * SLOT
L_TAB = L_BR - 512
L_EX = L_BR
L_RAW = 3 * SLOT
L_U = L_RAW + 12288
L_STR = L_RAW + 21504
L_CNT = L_RAW + 30208
LDS_BYTES = 163840
P_U, P_ARE, P_AIM, P_BRE, P_BIM, P_CRE, P_CIM, P_LDT = 4, 6, 8, 10, 12, 14, 16, 18
P_DSK, P_BX, P_W1, P_B1, P_W2, P_OUT, P_DBG, P_WS = 20, 22, 24, 26, 28, 30, 32, 34
R_LD, R_2, R_WS, R_PC = 36, 40, 44, 48
S_TAG, S_TAG2, S_WAVE, S_XCD, S_J, S_RT, S_CT, S_CP = 52, 53, 54, 55, 56, 57, 58, 58
S_R2, S_C2 = 60, 61
S_T = 62
S_SP = 80
S_JR, S_XF = 3, 59
S_POLL = 97
S_CNT = 96
S_T0 = 98
LOG2E = 0x3fb8aa3b
POLL_MAX = 1 << 17

def srd(p, r, ptr, size):
    p(f"s_mov_b32 s{r}, s{ptr}\ns_mov_b32 s{r+1}, s{ptr+1}\ns_mov_b32 s{r+2}, {size}\ns_mov_b32 s{r+3}, 0x20000")

class Gen:
    def __init__(self, cfg):
        self.c = cfg
        self.p = Prog()
        self.nlab = 0
        self.stamp_names = {}
    def lab(self, base):
        self.nlab += 1
        return f"L_{base}_{self.nlab}"

    def stamp_begin(self, role):
        self.role = role; self.stamp_names[role] = []
    def stamp(self, name, p=None, sets=(0,)):
        if self.c.probe == (self.role, name): (p or self.p)("s_memrealtime s[100:101]")
        if not self.c.stamps or self.c.sset not in sets: return
        p = p or self.p
        n = len(self.stamp_names[self.role]); assert n < 15
        self.stamp_names[self.role].append(name)
        p(f"{'s_memtime' if self.c.cyc else 's_memrealtime'} {s(4+2*n, 2)}")
    def stamp_flush(self, vt):
        if self.c.probe and self.c.probe[0] == self.role:
            l0 = self.lab("probe")
            self.p("s_waitcnt vmcnt(0) lgkmcnt(0)")
            self.p.label(l0)
            self.p(f"s_memrealtime s[98:99]\ns_waitcnt lgkmcnt(0)\ns_sub_u32 s98, s98, s100\ns_cmp_lt_u32 s98, 6000\ns_cbranch_scc1 {l0}")
        if not self.c.stamps: return
        p = self.p
        n = len(self.stamp_names[self.role])
        p("s_waitcnt vmcnt(0) lgkmcnt(0)\ns_mov_b64 exec, 1")
        p(f"s_lshl_b32 s{S_T}, s2, 3\ns_add_u32 s{S_T}, s{S_T}, s{S_WAVE}\ns_lshl_b32 s{S_T}, s{S_T}, 6\ns_add_u32 s{S_T}, s{S_T}, {WS_DBG}")
        p(f"v_mov_b32 v{vt}, s{S_T0}\nbuffer_store_dword v{vt}, off, {s(R_WS,4)}, s{S_T}")
        for i in range(n):
            p(f"v_mov_b32 v{vt+1+(i&1)}, s{4+2*i}\nbuffer_store_dword v{vt+1+(i&1)}, off, {s(R_WS,4)}, s{S_T} offset:{4+4*i}")
        p("s_waitcnt vmcnt(0)")

    def flag_store(self, soff, vt):
        p = self.p
        p(f"s_mov_b64 exec, 1\nbuffer_store_dword v{vt}, off, {s(R_WS,4)}, s{soff} sc1\ns_mov_b64 exec, -1")
    def lds_arrive(self, vaddr, vone, off=0, q=None):
        (q or self.p)(f"s_mov_b64 exec, 1\nds_add_u32 v{vaddr}, v{vone} offset:{off}\ns_mov_b64 exec, -1")
    def lds_wait(self, vaddr, vt, target, off=0):
        p = self.p
        l0, l1 = self.lab("spin"), self.lab("spun")
        p(f"s_mov_b32 s{S_CNT}, 0")
        p.label(l0)
        p(f"ds_read_b32 v{vt}, v{vaddr} offset:{off}\ns_add_u32 s{S_CNT}, s{S_CNT}, 1\ns_waitcnt lgkmcnt(0)\nv_readfirstlane_b32 s{S_POLL}, v{vt}")
        p(f"s_cmp_gt_u32 s{S_CNT}, {POLL_MAX*8}\ns_cbranch_scc1 {l1}\ns_cmp_lt_u32 s{S_POLL}, {target}\ns_cbranch_scc1 {l0}")
        p.label(l1)
    def tagged_check(self, loads, tagregs, vt, on_miss=None):
        p = self.p
        l0, l1 = self.lab("chk"), self.lab("chkd")
        p(f"s_mov_b32 s{S_CNT}, 0")
        for r in reversed(tagregs): p.items.append(Marker("need", r))
        p.label(l0)
        p(f"v_xor_b32 v{vt}, s{S_TAG}, v{tagregs[0]}")
        for r in tagregs[1:]:
            p(f"v_bitop3_b32 v{vt}, v{r}, s{S_TAG}, v{vt} bitop3:0xbe")
        p(f"v_cmp_ne_u32 vcc, 0, v{vt}\ns_add_u32 s{S_CNT}, s{S_CNT}, 1\ns_cbranch_vccz {l1}")
        p(f"s_cmp_gt_u32 s{S_CNT}, {POLL_MAX}\ns_cbranch_scc1 {l1}")
        p.alt_begin()
        if on_miss:
            l3 = self.lab("again")
            p(f"s_cmp_lg_u32 s{S_CNT}, 1\ns_cbranch_scc1 {l3}")
            p.alt_begin(); on_miss(); p.alt_end()
            p.label(l3)
        p(loads)
        p(f"s_waitcnt vmcnt(0)\ns_branch {l0}")
        p.alt_end()
        p.label(l1)

    def entry(self):
        p, c = self.p, self.c
        T = S_T
        p(f"s_load_dwordx16 s[4:19], s[0:1], 0\ns_load_dwordx16 s[20:35], s[0:1], 64")
        p(f"s_cmp_ge_u32 s2, 256\ns_cbranch_scc1 L_exit")
        if c.stamps: p(f"{'s_memtime' if c.cyc else 's_memrealtime'} {s(S_T0,2)}")
        if c.probe and c.probe[1] == "start": p("s_memrealtime s[100:101]")
        p(f"v_lshrrev_b32 v1, 6, v0\nv_and_b32 v0, 63, v0\nv_readfirstlane_b32 s{S_WAVE}, v1")
        p(f"s_and_b32 s{S_XCD}, s2, 7\ns_lshr_b32 s{S_J}, s2, 3")
        p(f"s_getpc_b64 {s(R_PC,2)}")
        p.label("L_pc")
        p(f"s_mov_b32 s{R_PC+2}, L_end-L_pc\ns_mov_b32 s{R_PC+3}, 0x20000")
        if c.prefetch_code:
            p(f"s_lshl3_add_u32 s{T}, s{S_J}, s{S_WAVE}\ns_lshl_b32 s{T}, s{T}, 7")
            p(f"buffer_load_dword v255, off, {s(R_PC,4)}, s{T}")
        p(f"s_mov_b32 s{R_WS+2}, {WS_SIZE}\ns_mov_b32 s{R_WS+3}, 0x20000")
        p(f"s_cmp_ge_u32 s{S_J}, 28\ns_cbranch_scc1 L_helper")
        p(f"s_mul_i32 s{S_JR}, s{S_J}, 37\ns_lshr_b32 s{S_JR}, s{S_JR}, 8\ns_mul_i32 s{T}, s{S_JR}, 7\ns_sub_u32 s{S_C2}, s{S_J}, s{T}")
        if c.mapP: p(f"s_lshr_b32 s{S_RT}, s{S_JR}, 1\ns_lshl1_add_u32 s{S_RT}, s{S_XCD}, s{S_RT}\ns_and_b32 s{S_XF}, s{S_JR}, 1")
        else: p(f"s_lshr_b32 s{S_RT}, s{S_XCD}, 1\ns_lshl2_add_u32 s{S_RT}, s{S_RT}, s{S_JR}\ns_and_b32 s{S_XF}, s{S_XCD}, 1")
        p(f"s_cmp_lt_u32 s{S_WAVE}, 4\ns_cbranch_scc1 L_roleA")
        S_BW, S_LDT, S_DSK = 64, 67, 68
        if c.prio_b: p(f"s_setprio {c.prio_b}")
        p(f"s_sub_u32 s{S_BW}, s{S_WAVE}, 4\ns_mul_i32 s{S_CP}, s{S_XCD}, 28\ns_add_u32 s{S_CP}, s{S_CP}, s{S_J}\ns_lshl_b32 s{T}, s{S_CP}, 2")
        p(f"s_add_u32 s{T+1}, s{T}, s{S_BW}\ns_lshl_b32 s{T+1}, s{T+1}, 8\nv_lshl_add_u32 v50, v0, 2, s{T+1}")
        p(f"s_load_dword s{S_LDT}, {s(P_LDT,2)}, s{T}")
        for i, ptr in enumerate((P_ARE, P_AIM, P_BRE, P_BIM, P_CRE, P_CIM)):
            p(f"global_load_dword v{2+i}, v50, {s(ptr,2)}")
        p("s_branch L_roleB")
    def role_start(self, b=False):
        p = self.p
        p.reset()
        if self.c.prefetch_code: p.items.append(Marker("pending", ("vmem", {"v255"})))
        if b:
            p.items.append(Marker("pending", ("smem", {"s67"})))
            for i in range(6): p.items.append(Marker("pending", ("vmem", {f"v{2+i}"})))
        else:
            p.items.append(Marker("pending", ("smem", {f"s{i}" for i in range(4, 36)})))
    def load_epoch(self):
        self.p(f"s_load_dword s{S_TAG}, {s(P_WS,2)}, {WS_EPOCH}\ns_mov_b32 s{R_WS}, s{P_WS}\ns_mov_b32 s{R_WS+1}, s{P_WS+1}")
    def touch_pages(self, vt, vd):
        p = self.p
        p(f"v_lshlrev_b32 v{vt}, 20, v0\ns_mov_b64 exec, 0xfff\nglobal_load_dword v{vd}, v{vt}, {s(P_WS,2)} offset:2048\ns_mov_b64 exec, 3")
        p(f"global_load_dword v{vd}, v{vt}, {s(P_OUT,2)}\nglobal_load_dword v{vd}, v{vt}, {s(P_W2,2)}\ns_mov_b64 exec, 1\nglobal_load_dword v{vd}, v{vt}, {s(P_B1,2)}\ns_mov_b64 exec, -1")
    def make_tag(self):
        self.p(f"s_add_u32 s{S_TAG}, s{S_TAG}, {TAGC}\ns_mov_b32 s{S_TAG2}, s{S_TAG}")
    def flag_load(self, which, soff, n, va, q=None):
        if which in self.c.spoll:
            w = 8 if n <= 8 else 16
            txt = f"s_buffer_load_dwordx{w} {s(S_SP,w)}, {s(R_WS,4)}, s{soff} glc"
        else:
            txt = f"buffer_load_dword v{va+1}, v{va}, {s(R_WS,4)}, s{soff} offen sc1"
        (q or self.p)(txt)
        return (which, txt, n, va)
    def flag_check(self, fl, vt, sleep=0, on_miss=None):
        which, txt, n, va = fl
        p = self.p
        if sleep: txt = f"s_sleep {sleep}\n" + txt
        if which not in self.c.spoll:
            return self.tagged_check(txt, [va + 1], vt, on_miss)
        l0, l1, l2 = self.lab("chk"), self.lab("retry"), self.lab("chkd")
        p(f"s_mov_b32 s{S_CNT}, 0")
        p.label(l0)
        p("s_waitcnt lgkmcnt(0)")
        for i in range(0, n - 2, 2): p(f"s_cmp_eq_u64 {s(S_SP+i,2)}, {s(S_TAG,2)}\ns_cbranch_scc0 {l1}")
        if n & 1: p(f"s_cmp_eq_u32 s{S_SP+n-1}, s{S_TAG}\ns_cbranch_scc1 {l2}")
        else: p(f"s_cmp_eq_u64 {s(S_SP+n-2,2)}, {s(S_TAG,2)}\ns_cbranch_scc1 {l2}")
        p.alt_begin()
        p.label(l1)
        if on_miss:
            l3 = self.lab("again")
            p(f"s_cmp_lg_u32 s{S_CNT}, 0\ns_cbranch_scc1 {l3}")
            p.alt_begin(); on_miss(); p.alt_end()
            p.label(l3)
        p(txt)
        p(f"s_add_u32 s{S_CNT}, s{S_CNT}, 1\ns_cmp_le_u32 s{S_CNT}, {POLL_MAX}\ns_cbranch_scc1 {l0}\ns_waitcnt lgkmcnt(0)")
        p.alt_end()
        p.label(l2)

    def role_a(self):
        p, c = self.p, self.c
        p.label("L_roleA")
        self.role_start(); self.stamp_begin("A")
        VD, VXA, VWA, VW2A, VW2D, VL16, VFL, VC1, VT = 1, 9, 13, 15, 19, 21, 22, 2, 24
        ACC, FR, W2R, AB = 32, 96, 96, 192
        S_SOFF, S_CSTR, S_LDB, S_WT, S_WF, S_ACTW, S_CW, S_FAW, S_FAR, S_RING, S_ACTR, S_W2B, S_Z = range(64, 77)
        S_X = 78; S_Y = 79
        S_B1 = 0
        T = S_T
        phys = lambda n: n % 4
        p(f"s_and_b32 s{S_WT}, s{S_WAVE}, 1\ns_lshr_b32 s{S_WF}, s{S_WAVE}, 1\ns_mul_i32 s{S_CT}, s{S_XF}, 7\ns_add_u32 s{S_CT}, s{S_CT}, s{S_C2}")
        p(f"s_lshl1_add_u32 s{T}, s{S_RT}, s{S_WF}\ns_mul_i32 s{T}, s{T}, {64*896}")
        p(f"s_mul_i32 s{T+1}, s{S_WF}, {32*14}\ns_add_u32 s{T+1}, s{T+1}, s{S_CT}\ns_lshl_b32 s{T+1}, s{T+1}, 8")
        p(f"s_lshl1_add_u32 s{S_LDB}, s{S_WT}, s{S_WF}\ns_lshl_b32 s{S_LDB}, s{S_LDB}, 13")
        p(f"s_add_u32 s{S_X}, s{S_WT}, 3\nv_lshrrev_b32 v{VT}, s{S_X}, v0\ns_lshl_b32 s{S_X}, s{S_WT}, 1\nv_lshrrev_b32 v{VT+1}, 4, v0\nv_lshlrev_b32 v{VT+1}, s{S_X}, v{VT+1}")
        p(f"s_lshl_b32 s{S_Y}, 896, s{S_X}\nv_xor_b32 v{VT+1}, v0, v{VT+1}\nv_mul_u32_u24 v{VT}, s{S_Y}, v{VT}")
        p(f"s_cmp_eq_u32 s{S_WT}, 0")
        p(f"s_cselect_b32 s{S_SOFF}, s{T}, s{T+1}\ns_cselect_b32 s{S_CSTR}, 1, {64*28}\ns_cselect_b32 s{S_X}, 7, 15\ns_cselect_b32 s{S_Y}, 64, 0\ns_cselect_b32 s{R_LD+2}, 8, 7")
        p(f"v_and_b32 v{VT+1}, s{S_X}, v{VT+1}\nv_lshl_add_u32 v{VD}, v{VT+1}, 4, v{VT}\nv_xor_b32 v{VD+1}, s{S_Y}, v{VD}")
        p(f"s_lshl_b32 s{S_CSTR}, s{S_CSTR}, 7\ns_mul_i32 s{T}, s{S_C2}, s{S_CSTR}\ns_add_u32 s{S_SOFF}, s{S_SOFF}, s{T}\ns_mul_i32 s{S_CW}, s{S_CSTR}, 7")
        p(f"s_mul_i32 s{R_LD+2}, s{R_LD+2}, {256*896}\ns_mov_b32 s{R_LD+3}, 0x20000\ns_lshl_b32 s{S_Y}, 7168, s{S_WT}")
        p(f"s_sub_u32 s{T}, s{S_Y}, 1024\nv_add_u32 v{VD+1}, s{T}, v{VD+1}\ns_lshl_b32 s{T}, s{T}, 1")
        p(f"v_add_u32 v{VD+2}, s{T}, v{VD}\nv_add_u32 v{VD+3}, s{T}, v{VD+1}\ns_lshl_b32 s{T}, s{S_Y}, 2")
        for i in range(4): p(f"v_add_u32 v{VD+4+i}, s{T}, v{VD+i}")
        p(f"s_cmp_eq_u32 s{S_WT}, 0\ns_cselect_b32 s{R_LD}, s{P_U}, s{P_W1}\ns_cselect_b32 s{R_LD+1}, s{P_U+1}, s{P_W1+1}")
        ctok = {}
        def dma_chunk(n):
            r = []
            for i in range(8):
                q = Prog()
                if i % 4 == 0: q(f"s_add_u32 m0, s{S_LDB}, {phys(n)*SLOT + (i//4)*4096}")
                ctok[n] = q.tok(f"buffer_load_dwordx4 v{VD+i}, {s(R_LD,4)}, s{S_SOFF} offen offset:{(i%4)*1024} lds")
                if i == 7 and n < 6:
                    q(f"s_add_u32 s{S_SOFF}, s{S_SOFF}, s{S_CSTR}\ns_cmp_eq_u32 s{S_C2}, {6-n}\ns_cselect_b32 s{T}, s{S_CW}, 0\ns_sub_u32 s{S_SOFF}, s{S_SOFF}, s{T}")
                r.append(q.items)
            return r
        dq = []
        for n in range(7): dq += dma_chunk(n)
        self.stamp("dma0", sets=(1,))
        for it in dq[:8]: p.extend(it)
        self.load_epoch()
        p(f"v_and_b32 v{VT}, 31, v0\nv_lshrrev_b32 v{VT+1}, 5, v0\nv_bfe_u32 v{VT+2}, v0, 1, 3\nv_xor_b32 v{VT+1}, v{VT+1}, v{VT+2}\nv_lshlrev_b32 v{VT+1}, 4, v{VT+1}")
        p(f"v_lshl_add_u32 v{VT+1}, v{VT}, 7, v{VT+1}\ns_lshl_b32 s{S_X}, s{S_WT}, 13\nv_add_u32 v{VXA}, s{S_X}, v{VT+1}")
        for k in range(1, 4): p(f"v_xor_b32 v{VXA+k}, {32*k}, v{VXA}")
        p(f"s_lshl_b32 s{S_RING}, s{S_WAVE}, 13")
        p(f"v_bfe_u32 v{VT}, v0, 4, 1\nv_lshlrev_b32 v{VT}, 5, v{VT}\nv_and_b32 v{VT+1}, 3, v0\nv_lshl_add_u32 v{VT}, v{VT+1}, 3, v{VT}")
        p(f"v_bfe_u32 v{VT+1}, v0, 2, 2\nv_lshrrev_b32 v{VT+2}, 5, v0")
        p(f"v_lshl_add_u32 v{VT+3}, v{VT+2}, 3, v{VT+1}\nv_lshl_add_u32 v{VT+3}, v{VT+3}, 8, v{VT}")
        p(f"s_lshl_b32 s{S_Y}, s{S_WF}, 1\nv_xor_b32 v{VT+4}, s{S_Y}, v{VT+1}\nv_lshl_add_u32 v{VWA}, v{VT+4}, 6, v{VT+3}")
        if c.qperm: p(f"s_lshl1_add_u32 s{S_Z}, s{S_RT}, s{S_WT}\ns_and_b32 s{S_Z}, s{S_Z}, 3\ns_lshl_b32 s{S_Y}, s{S_Z}, 5\nv_xor_b32 v{VWA}, s{S_Y}, v{VWA}\ns_lshl_b32 s{S_Z}, s{S_Z}, 4")
        else: p(f"s_mov_b32 s{S_Z}, 0")
        p(f"v_xor_b32 v{VWA+1}, 64, v{VWA}")
        p(f"v_lshl_add_u32 v{VT+3}, v{VT+2}, 2, v{VT+1}\nv_lshl_add_u32 v{VT+3}, v{VT+3}, 7, v{VT}")
        p(f"v_lshrrev_b32 v{VT+4}, 1, v{VT+1}\nv_lshl_add_u32 v{VT+3}, v{VT+4}, 6, v{VT+3}\nv_add_u32 v{VW2A}, s{S_RING}, v{VT+3}")
        srd(p, R_2, P_W2, 1792 * 896)
        p(f"s_mov_b32 s{S_B1}, s{P_B1}\ns_mov_b32 s{S_B1+1}, s{P_B1+1}")
        self.stamp("setup", sets=(0, 1))
        for it in dq[8:c.pre_dma]: p.extend(it)
        VB1 = 30
        q = p
        VGA = 26
        q(f"v_xor_b32 v{VW2A+1}, 64, v{VW2A}\nv_add_u32 v{VW2A+2}, 0x10000, v{VW2A}\nv_xor_b32 v{VW2A+3}, 64, v{VW2A+2}")
        q(f"v_bfe_u32 v{VGA}, v0, 1, 2\nv_lshlrev_b32 v{VGA}, 10, v{VGA}\nv_lshrrev_b32 v{VGA+1}, 3, v0\nv_lshl_add_u32 v{VGA}, v{VGA+1}, 4, v{VGA}\nv_and_b32 v{VGA+1}, 1, v0\nv_lshl_add_u32 v{VGA}, v{VGA+1}, 3, v{VGA}")
        late = Prog(); q = late
        q(f"s_lshl1_add_u32 s{T+1}, s{S_RT}, s{S_WT}\ns_lshr_b32 s{S_Y}, s{T+1}, 3\ns_lshl_b32 s{S_Y}, s{S_Y}, 12\ns_and_b32 s{S_X}, s{T+1}, 7\ns_lshl_b32 s{S_X}, s{S_X}, 7")
        q(f"s_add_u32 s{S_X}, s{S_X}, s{S_Y}\ns_add_u32 s{S_X}, s{S_X}, {WS_STAT}\nv_add_u32 v{VGA}, s{S_X}, v{VGA}")
        q(f"s_lshl1_add_u32 s{S_Y}, s{S_CT}, s{S_WF}\ns_lshl_b32 s{S_X}, s{S_Y}, 9\ns_add_u32 s{S_X}, s{S_X}, {WS_CS}\nv_xor_b32 v{VB1}, s{S_Z}, v0\nv_lshl_add_u32 v{VGA+1}, v{VB1}, 3, s{S_X}\ns_lshl_b32 s{S_X}, s{S_Y}, 7\nv_lshl_add_u32 v{VB1}, v{VB1}, 1, s{S_X}")
        q(f"s_mul_i32 s{S_ACTW}, s{T+1}, 28\ns_add_u32 s{S_ACTW}, s{S_ACTW}, s{S_Y}\ns_lshl_b32 s{S_ACTW}, s{S_ACTW}, 13\ns_add_u32 s{S_ACTW}, s{S_ACTW}, {WS_ACT}")
        q(f"s_mul_i32 s{S_X}, s{S_Y}, 37\ns_lshr_b32 s{S_X}, s{S_X}, 8\ns_mul_i32 s{S_X}, s{S_X}, 25\ns_add_u32 s{S_X}, s{S_X}, s{S_Y}")
        q(f"s_lshl_b32 s{S_FAW}, s{T+1}, 9\ns_add_u32 s{S_FAW}, s{S_FAW}, s{S_X}\ns_lshl2_add_u32 s{S_FAW}, s{S_FAW}, {WS_FA}")
        q(f"s_lshl2_add_u32 s{S_R2}, s{S_XCD}, s{S_JR}")
        q(f"s_lshl4_add_u32 s{S_FAR}, s{S_R2}, s{S_WAVE}\ns_lshl_b32 s{S_FAR}, s{S_FAR}, 7\ns_add_u32 s{S_FAR}, s{S_FAR}, {WS_FA}")
        q(f"v_lshlrev_b32 v{VL16}, 4, v0")
        if "A" not in c.spoll: q(f"v_min_u32 v{VFL}, 6, v0\nv_lshlrev_b32 v{VFL}, 2, v{VFL}")
        q(f"v_lshrrev_b32 v{VT+4}, 3, v0\nv_mul_u32_u24 v{VT+4}, 896, v{VT+4}\nv_bfe_u32 v{VT+1}, v0, 4, 1\nv_lshlrev_b32 v{VT+1}, 2, v{VT+1}\nv_xor_b32 v{VT+1}, v0, v{VT+1}\nv_and_b32 v{VT+1}, 7, v{VT+1}")
        q(f"v_lshl_add_u32 v{VW2D}, v{VT+1}, 4, v{VT+4}\nv_add_u32 v{VW2D+1}, {7168-1024}, v{VW2D}")
        q(f"s_lshl2_add_u32 s{S_ACTR}, s{S_R2}, s{S_WAVE}\ns_mul_i32 s{S_ACTR}, s{S_ACTR}, {28*2048}\ns_add_u32 s{S_ACTR}, s{S_ACTR}, {WS_ACT}")
        q(f"s_mul_i32 s{S_W2B}, s{S_WAVE}, {448*7}\ns_add_u32 s{S_W2B}, s{S_W2B}, s{S_C2}\ns_lshl_b32 s{S_W2B}, s{S_W2B}, 7")
        q(f"v_mov_b32 v{VT+5}, {L_CNT}\nv_mov_b32 v{VT+4}, 1")
        lateg = [[it] for it in late.items]
        S_AO = list(range(88, 95)); S_WO = [34, 35, 48, 49, 50, 51, 77]; S_ROT = 95
        if c.rot2:
            q = Prog()
            if c.rot2 == 1: q(f"s_mov_b32 s{S_ROT}, s{S_C2}")
            else: q(f"s_lshl1_add_u32 s{S_ROT}, s{S_JR}, s{S_C2}\ns_cmp_ge_u32 s{S_ROT}, 7\ns_cselect_b32 s{T+1}, 7, 0\ns_sub_u32 s{S_ROT}, s{S_ROT}, s{T+1}")
            lateg.append(q.items)
            for i in range(7):
                q = Prog()
                q(f"s_cmp_ge_u32 s{S_ROT}, {7-i}\ns_cselect_b32 s{T+1}, {i-7}, {i}\ns_add_u32 s{T+1}, s{T+1}, s{S_ROT}")
                lateg.append(q.items); q = Prog()
                q(f"s_lshl_b32 s{S_AO[i]}, s{T+1}, 13\ns_add_u32 s{S_AO[i]}, s{S_AO[i]}, s{S_ACTR}\ns_mul_i32 s{S_WO[i]}, s{T+1}, {64*896}\ns_add_u32 s{S_WO[i]}, s{S_WO[i]}, s{S_W2B}")
                lateg += [[it] for it in q.items]
        S_Q = [S_ROT, S_W2B, S_ACTR, S_CT]
        if c.qperm:
            assert c.rot2
            q = Prog()
            for i in range(4): q(f"s_xor_b32 s{S_Q[i]}, s{S_JR}, {i}\ns_mul_i32 s{S_Q[i]}, s{S_Q[i]}, {16*896}")
            lateg += [[it] for it in q.items]
        self.make_tag()
        p(f"v_mov_b32 v{VT}, s{S_TAG}")
        GR = AB
        gloads = f"buffer_load_dwordx2 {v(GR,2)}, v{VGA}, {s(R_WS,4)}, 0 offen sc1\nbuffer_load_dwordx2 {v(GR+2,2)}, v{VGA+1}, {s(R_WS,4)}, 0 offen sc1"
        piece = [0, 1, 2, 0, 1, 2, 0]; pred = {3: 0, 4: 1, 5: 2, 6: 3}
        wtok, rtok = {}, {}
        w2reg = lambda n: W2R + 8 * ((n + 6) % 12)
        def dma_w2(n):
            q = Prog(); gi = n >> 2
            if gi in pred: q.wait(rtok[4 * pred[gi] + (n & 3)])
            q(f"s_add_u32 m0, s{S_RING}, {piece[gi]*SLOT + (n&3)*2048}\n" + (f"s_add_u32 s{S_Z}, s{S_WO[n%7]}, s{S_Q[n//7]}" if c.qperm else f"s_add_u32 s{S_Z}, s{S_WO[n%7]}, {16*(n//7)*896}" if c.rot2 else f"s_add_u32 s{S_Z}, s{S_W2B}, {(64*(n%7) + 16*(n//7))*896}"))
            q(f"buffer_load_dwordx4 v{VW2D}, {s(R_2,4)}, s{S_Z} offen lds")
            q2 = Prog()
            wtok[n] = q2.tok(f"buffer_load_dwordx4 v{VW2D+1}, {s(R_2,4)}, s{S_Z} offen offset:1024 lds")
            return [q.items, q2.items]
        def read_w2(n):
            q = Prog(); pc = piece[n >> 2]
            q.wait(wtok[n])
            for di in range(2):
                for h in range(2):
                    rtok[n] = q.tok(f"ds_read_b64_tr_b16 {v(w2reg(n)+4*di+2*h,2)}, v{VW2A+2*(pc>>1)+di} offset:{(pc&1)*SLOT + (n&3)*2048 + h*1024}")
            return [q.items]
        def slot0_sync(n):
            if not c.sync5 and n != 4: return [[]]
            keep, self.p = self.p, Prog()
            self.lds_wait(VT + 5, VT + 1, n)
            q, self.p = self.p, keep
            return [q.items]
        nw = [0, 0]
        def w2_ops(k, maxread):
            r = []
            for _ in range(k):
                n = nw[0]
                if n >= 24: break
                for m in (n, n + 1):
                    if (m >> 2) in pred and m < 24:
                        need = 4 * pred[m >> 2] + (m & 3)
                        assert m > n or need < maxread
                        while nw[1] <= need and nw[1] < maxread: r += read_w2(nw[1]); nw[1] += 1
                if n in (4, 8): r += slot0_sync(n)
                r += dma_w2(n); nw[0] += 1
            return r
        def reads1(gs):
            n, k = gs >> 2, gs & 3
            base = FR + 16 * (gs % 3); so = (n & 1) * SLOT
            r = []
            for fi in range(2):
                for h in range(2):
                    r.append(I(f"ds_read_b64_tr_b16 {v(base+4*fi+2*h,2)}, v{VWA+fi} offset:{so+16384+k*4096+h*1024}"))
                r.append(I(f"ds_read_b128 {v(base+8+4*fi,4)}, v{VXA+k} offset:{so+fi*4096}"))
            return r
        def mfma1(gs):
            base = FR + 16 * (gs % 3)
            r = []
            for fi, ti in ((0, 0), (0, 1), (1, 0), (1, 1)):
                a = v(ACC + 32 * fi + 16 * ti, 16)
                r.append(I(f"v_mfma_f32_32x32x16_bf16 {a}, {v(base+4*fi,4)}, {v(base+8+4*ti,4)}, {'0' if gs == 0 else a}"))
            return r
        self.stamp("dmapre", sets=(1,))
        nd = c.pre_dma
        nl = (len(lateg) + 3) // 4
        for n in range(7):
            p.wait(ctok[n if n < 5 else 6])
            if n == 0: self.stamp("c0", sets=(1,))
            if n < 6: p("s_waitcnt lgkmcnt(0)\ns_barrier")
            self.stamp(f"bar{n}", sets=(0, 1) if n in (0, 3, 6) else (1,))
            if n in (2, 4, 6):
                for r in list(range(VXA, VXA + 4)) + [VWA, VWA + 1]: p(f"v_xor_b32 v{r}, 0x10000, v{r}")
            upto = min(56, 8 * (n + 4), max(nd + c.dma_per[n], 8 * (n + 2)))
            fill = dq[nd:upto]; nd = upto
            if n == c.gran_at:
                fill = fill + [[I(x)] for x in gloads.split("\n")]
                fill += [[I(f"global_load_ushort v{VB1}, v{VB1}, {s(S_B1,2)}")]]
            if n >= 4: assert nd == 56
            if n >= 5:
                fill = fill + w2_ops(c.w2_sched[n - 5], 0)
                assert nw[0] <= (8 if (n == 6 and c.sync5) else 4)
            g0 = 4 * n
            r0, r1, r2, r3 = (reads1(g0 + k) for k in range(4))
            body = []
            if n == 0: body.append(r0 + r1)
            else:
                mm = mfma1(g0 - 1)
                body += [r0, [mm[0]] + r1[:3], [mm[1]] + r1[3:], [mm[2]], [mm[3]]]
            for k, rd in ((0, r2), (1, r3), (2, None)):
                mm = mfma1(g0 + k)
                body += [[mm[0]] + (rd[:3] if rd else []), [mm[1]] + (rd[3:] if rd else []), [mm[2]], [mm[3]]]
            if n == 6 or (n == 5 and c.sync5):
                q = Prog(); self.lds_arrive(VT + 5, VT + 4, q=q)
                body[-3] = body[-3] + q.items
            merged = []
            j = 0
            for i, it in enumerate(body):
                grp = list(it)
                while j < (i + 1) * len(fill) // len(body): grp += fill[j]; j += 1
                merged.append(grp)
            lt = lateg[nl * n: nl * (n + 1)] if n < 4 else []
            p.extend(interleave(merged, lt))
        mm = mfma1(27)
        p.extend(mm[:1])
        self.tagged_check(gloads, [GR + 1, GR + 3], VT + 1)
        self.stamp("granules", sets=(0, 1, 3))
        FA_, FB_ = AB + 8, AB + 12
        q = Prog()
        q(f"s_mov_b32 s{S_X}, 0x01000100\nv_perm_b32 v{FB_}, v{GR}, v{GR}, s{S_X}\nv_lshrrev_b32 v{FB_+1}, 16, v{GR}\nv_xor_b32 v{FB_}, 0x80008000, v{FB_}")
        q(f"v_cvt_pk_bf16_f32 v{VT+1}, v{GR+2}, v{GR+2}\nv_mov_b32 v{FB_+2}, 0\nv_and_b32 v{VT+1}, 0xffff0000, v{VT+1}\nv_mov_b32 v{FB_+3}, 0\nv_sub_f32 v{VT+1}, v{GR+2}, v{VT+1}")
        q(f"v_mov_b32 v{FA_+1}, v{VB1}\nv_cvt_pk_bf16_f32 v{FA_}, v{GR+2}, v{VT+1}\nv_mov_b32 v{FA_+2}, 0\nv_mov_b32 v{FA_+3}, 0\nv_and_b32 v{VT+1}, 0xffff0000, v{GR}")
        q(f"v_permlane32_swap_b32 v{FB_}, v{FB_+2}\nv_permlane32_swap_b32 v{FB_+1}, v{FB_+3}\nv_permlane32_swap_b32 v{FA_}, v{FA_+2}\nv_permlane32_swap_b32 v{FA_+1}, v{FA_+3}")
        q(f"v_rcp_f32 v{VT+1}, v{VT+1}")
        p.extend(interleave(mm[1:], q.items))
        for fi, ti in ((0, 0), (0, 1), (1, 0), (1, 1)):
            a = v(ACC + 32 * fi + 16 * ti, 16)
            p(f"v_mfma_f32_32x32x8_bf16 {a}, {v(FA_+2*fi,2)}, {v(FB_+2*ti,2)}, {a}")
            if (fi, ti) == (0, 0): p(f"v_mul_f32 v{VC1}, {LOG2E}, v{VT+1}\nv_mul_f32 v{VC1+2}, {LOG2E}, v{VT+1}")
            if (fi, ti) == (0, 1): p(f"v_permlane32_swap_b32 v{VC1}, v{VC1+2}")
            if (fi, ti) == (1, 0) and c.mish_pk: p(f"v_mov_b32 v{VC1+1}, v{VC1}\nv_mov_b32 v{VC1+3}, v{VC1+2}")
        MT, MO = AB + 16, AB + 48
        def mish_group(a, ti, o, tset):
            t = MT + 16 * tset; u = t + 8
            r = []
            if c.mish_pk:
                for i in range(0, 8, 2): r.append(f"v_pk_mul_f32 {v(t+i,2)}, {v(a+i,2)}, {v(VC1+2*ti,2)}")
                for i in range(8): r.append(f"v_exp_f32 v{t+i}, v{t+i}")
                for i in range(0, 8, 2): r.append(f"v_pk_fma_f32 {v(u+i,2)}, {v(t+i,2)}, 0.5, 1.0 op_sel_hi:[1,0,0]")
                for i in range(0, 8, 2): r.append(f"v_pk_fma_f32 {v(u+i,2)}, {v(t+i,2)}, {v(u+i,2)}, 1.0 op_sel_hi:[1,1,0]")
                for i in range(8): r.append(f"v_rcp_f32 v{u+i}, v{u+i}")
                for i in range(0, 8, 2): r.append(f"v_pk_fma_f32 {v(u+i,2)}, {v(a+i,2)}, {v(u+i,2)}, {v(a+i,2)} neg_lo:[1,0,0] neg_hi:[1,0,0]")
            else:
                for i in range(8): r.append(f"v_mul_f32 v{t+i}, v{a+i}, v{VC1+2*ti}")
                for i in range(8): r.append(f"v_exp_f32 v{t+i}, v{t+i}")
                for i in range(8): r.append(f"v_fma_f32 v{u+i}, v{t+i}, 0.5, 1.0")
                for i in range(8): r.append(f"v_fma_f32 v{u+i}, v{t+i}, v{u+i}, 1.0")
                for i in range(8): r.append(f"v_rcp_f32 v{u+i}, v{u+i}")
                for i in range(8): r.append(f"v_fma_f32 v{u+i}, -v{a+i}, v{u+i}, v{a+i}")
            for i in range(4): r.append(f"v_cvt_pk_bf16_f32 v{o+i}, v{u+2*i}, v{u+2*i+1}")
            return [I(x) for x in r]
        stok = {}
        def own_flag(st, q):
            q.wait(stok[st])
            q(f"s_mov_b64 exec, 1\nbuffer_store_dword v{VT}, off, {s(R_WS,4)}, s{S_FAW} offset:{512*st} {c.fa_st}\ns_mov_b64 exec, -1")
        body = []
        gi = 0
        for st in range(4):
            for ti in range(2):
                o = MO + 4 * (gi % 4)
                body += mish_group(ACC + 32 * (st >> 1) + 16 * ti + 8 * (st & 1), ti, o, gi & 1)
                q = Prog()
                stok[st] = q.tok(f"buffer_store_dwordx4 {v(o,4)}, v{VL16}, {s(R_WS,4)}, s{S_ACTW} offen offset:{(st&1)*2048+ti*1024} {c.act_st}")
                if gi == 3: q(f"s_add_u32 s{S_ACTW}, s{S_ACTW}, 4096")
                if ti == 1: self.stamp(f"s{st}", q, sets=(3,))
                if ti == 1 and st >= c.flag_lag: own_flag(st - c.flag_lag, q); self.stamp(f"f{st-c.flag_lag}", q, sets=(3,))
                body.append(q.items)
                gi += 1
        k0 = int(len(body) * c.mish_skip)
        p.extend(interleave(body[:k0], [])); p.extend(interleave(body[k0:], w2_ops(c.w2_sched[2], 12) + [[]]))
        self.stamp("mish", sets=(0, 4))
        rest = list(range(max(0, 4 - c.flag_lag), 4))
        def flags_rest():
            for st in rest: own_flag(st, p)
        if c.prio_a1: p(f"s_setprio {c.prio_a1}")
        def load_act(n):
            p(f"s_add_u32 s{S_Y}, s{S_AO[n%7]}, {(n//7)*2048}" if c.rot2 else f"s_add_u32 s{S_Y}, s{S_ACTR}, {(4*(n%7) + n//7)*2048}")
            for ti in range(2):
                p(f"buffer_load_dwordx4 {v(AB+8*(n%8)+4*ti,4)}, v{VL16}, {s(R_WS,4)}, s{S_Y} offen offset:{ti*1024} {c.act_ld}")
        def next_flags():
            f = self.flag_load("A", S_FAR, 7, VFL)
            return f
        def reads_upto(m):
            while nw[1] < min(m, 28): p.extend(read_w2(nw[1])[0]); nw[1] += 1
        def dmas_upto(m):
            while nw[0] < min(m, 28):
                if nw[0] in (4, 8): p.extend(slot0_sync(nw[0])[0])
                if nw[0] >= 12: assert nw[1] > nw[0] - 12
                for it in dma_w2(nw[0]): p.extend(it)
                nw[0] += 1
        D = c.adepth
        lead = c.flead
        fl = None
        na = 0
        for op in c.pre_loop.split():
            k = int(op[1:]) if len(op) > 1 else 0
            if op[0] == "R": reads_upto(k)
            elif op[0] == "D": dmas_upto(k)
            elif op[0] == "F":
                if rest: own_flag(rest.pop(0), p)
            elif op[0] == "W": p("s_waitcnt lgkmcnt(0)")
            elif op[0] == "L": fl = next_flags()
            elif op[0] == "C":
                self.stamp("w2pre", sets=(0, 3))
                self.flag_check(fl, VT + 1, on_miss=flags_rest if rest else None)
                self.stamp("act0", sets=(0, 2, 3))
                p(f"s_add_u32 s{S_FAR}, s{S_FAR}, 512"); fl = None
            elif op[0] == "A":
                while na < k: load_act(na); na += 1
            elif op[0] == "V": p("s_waitcnt vmcnt(0)")
            if op[0] not in "L": self.stamp(op + "_" + str(len(self.stamp_names["A"])), sets=(4,))
        assert na == D and nw[1] >= c.rdepth and not rest
        M0 = nw[0]
        assert (fl is not None) == (7 - D - lead < 0)
        if c.prio_a1: p("s_setprio 0")
        self.stamp("flagA", sets=(0, 2, 3))
        assert D <= 7 and c.rdepth <= 11
        main = p
        for n in range(28):
            mm = []
            for di, ti in ((0, 0), (1, 0), (0, 1), (1, 1)):
                a = v(ACC + 32 * di + 16 * ti, 16)
                mm.append(I(f"v_mfma_f32_32x32x16_bf16 {a}, {v(w2reg(n)+4*di,4)}, {v(AB+8*(n%8)+4*ti,4)}, {'0' if n == 0 else a}"))
            groups = []
            def grab(fn):
                nonlocal p
                p = self.p = Prog(); fn(); its = p.items; p = self.p = main
                return its
            def split(its):
                cur = []
                for it in its:
                    cur.append(it)
                    if isinstance(it, I) and it.kind in ("vmem", "ds", "valu"): groups.append(cur); cur = []
                if cur: groups.append(cur)
            split(grab(lambda: reads_upto(n + 1 + c.rdepth)))
            if n + D < 28:
                if (n + D) % 7 == 0:
                    groups.append(grab(lambda: (self.flag_check(fl, VT + 1), p(f"s_add_u32 s{S_FAR}, s{S_FAR}, 512"), self.stamp(f"act{(n+D)//7}", sets=(0, 2)))))
                split(grab(lambda: load_act(n + D)))
            split(grab(lambda: dmas_upto(min(nw[1] + 11, max(n + 1 + c.w2_lead, M0 + int((n + 1) * c.w2_rate))))))
            if n + D + lead < 28 and (n + D + lead) % 7 == 0:
                def nf():
                    nonlocal fl
                    if "A" in c.spoll: p("s_waitcnt lgkmcnt(0)")
                    fl = next_flags()
                groups.append(grab(nf))
            if n == 22:
                split(grab(lambda: (p(f"v_and_b32 v{VT}, 31, v0\nv_lshrrev_b32 v{VT+1}, 5, v0\nv_and_b32 v{VT+2}, 7, v0\nv_xor_b32 v{VT+1}, v{VT+1}, v{VT+2}\nv_bfe_u32 v{VT+2}, v0, 4, 1\nv_lshl_or_b32 v{VT+1}, v{VT+2}, 3, v{VT+1}"),
                      p(f"v_lshlrev_b32 v{VT+1}, 4, v{VT+1}\nv_lshl_add_u32 v{VT+1}, v{VT}, 8, v{VT+1}\nv_add_u32 v{VD}, s{S_RING}, v{VT+1}"))))
            if n == 23: split(grab(lambda: [p(f"v_xor_b32 v{VD+k}, {32*k}, v{VD}") for k in range(1, 8)]))
            if c.g2_mix:
                isv = lambda gr: any(isinstance(it, I) and it.kind == "vmem" for it in gr)
                ds = [gr for gr in groups if any(isinstance(it, I) and it.mn.startswith("ds_read_b64_tr") for it in gr)]
                rest = [gr for gr in groups if not any(gr is x for x in ds)]
                for k in range(4):
                    p.extend([mm[k]])
                    for gr in ds[k * len(ds) // 4:(k + 1) * len(ds) // 4]: p.extend(gr)
                    for gr in rest[k * len(rest) // 4:(k + 1) * len(rest) // 4]: p.extend(gr)
            else:
                p.extend(mm)
                for gr in groups: p.extend(gr)
            if n in (0, 3, 6, 10, 13, 17, 20, 24): self.stamp(f"n{n}", sets=(2, 4) if n in (0, 6) else (2,))
        self.stamp("gemm2", sets=(0, 2, 3))
        for ti in range(2):
            for di in range(2):
                for g4 in range(4):
                    p(f"ds_write_b128 v{VD+4*di+g4}, {v(ACC+32*di+16*ti+4*g4,4)} offset:{ti*SLOT}")
        p("s_waitcnt lgkmcnt(0)\ns_barrier")
        self.stamp("barF")
        self.stamp_flush(1)
        p("s_endpgm")

    def gather_table(self):
        import numpy as np
        def rb(l):
            u = np.array([l], np.float32).view(np.uint32)
            return int((((u + 0x7FFF + ((u >> 16) & 1)) >> 16) << 16).view(np.float32)[0])
        rows = list(range(8)) + list(range(128, 136)) + [256, 258, 260, 262, 384, 386, 388, 390, 512, 516, 640, 644, 768, 772, 896, 900] + [1024 + 128 * k for k in range(9)]
        pos = {}
        for i, a in enumerate(rows):
            tile, row = i >> 4, i & 15
            for col in range(16): pos[a + 8 * col] = tile * 1024 + ((row >> 2) * 16 + col) * 16 + (row & 3) * 4
        zero = 2 * 1024 + 48 * 16
        at = lambda l: zero if l < 0 else pos[rb(l)]
        words = []
        for mh in range(2):
            for half in range(2):
                for lane in range(64):
                    hiA, hiB = 2047 - 8 * (64 * mh + lane), 1023 - 8 * (64 * mh + lane)
                    e = [at(hiA - i) for i in (0, 3, 4, 10)] + [at(hiB - i) for i in range(11)] + [0]
                    e = e[8 * half: 8 * half + 8]
                    words += [e[2 * k] | (e[2 * k + 1] << 16) for k in range(4)]
        return words

    def role_b(self):
        p, c = self.p, self.c
        p.label("L_roleB")
        self.role_start(True); self.stamp_begin("B")
        S_BW, S_CHN, S_MH, S_LDT, S_DSK, S_FXR, S_XTR, S_STW, S_FSW, S_FSR, S_STR, S_XO, S_STA, S_STF = range(64, 78)
        S_X, S_Y = 78, 79
        S_FXW, S_XTW, S_P0, S_P1 = 92, 93, 94, 95
        T = S_T
        VL16, VP, VGT, VG, VSW, VSR, VT = 1, 2, 8, 16, 16, 46, 50
        VRW, VTW, VTZ, VTA, VUA, VUW, VCN, VONE, VEXW, VEXR, VTAG, VUZ, VFL = range(32, 45)
        XA, XS, XD, XO = 100, 104, 8, 120
        p(f"s_load_dword s{S_DSK}, {s(P_DSK,2)}, s{T}")
        self.load_epoch()
        if c.warm_w:
            p(f"s_lshr_b32 s{S_X}, s{T+1}, 8\ns_mul_i32 s{S_X}, s{S_X}, {14*128}\nv_min_u32 v{VT}, 13, v0\nv_lshl_add_u32 v{VT}, v{VT}, 7, s{S_X}\ns_mov_b64 exec, 0xffff")
            if "1" in c.warm_w: p(f"global_load_dword v62, v{VT}, {s(P_W1,2)}")
            if "2" in c.warm_w: p(f"global_load_dword v63, v{VT}, {s(P_W2,2)}")
            p("s_mov_b64 exec, -1")
        if c.warm_t == 2:
            lk = self.lab("not")
            p(f"s_cmp_lg_u32 s{S_BW}, 3\ns_cbranch_scc1 {lk}")
            p.alt_begin(); self.touch_pages(VT, 62); p.alt_end(); p.label(lk)
        if c.prio_b != c.prio_b2: p(f"s_setprio {c.prio_b2}")
        p(f"s_lshr_b32 s{S_CHN}, s{S_BW}, 1\ns_and_b32 s{S_MH}, s{S_BW}, 1\nv_lshlrev_b32 v{VL16}, 4, v0")
        p(f"s_lshl3_add_u32 s{S_STW}, s{T+1}, {WS_ST}")
        srd(p, R_LD, P_U, 2048 * 896); srd(p, R_2, P_OUT, 2048 * 896)
        p(f"s_lshl1_add_u32 s{S_Y}, s{S_XF}, s{S_CHN}\ns_lshl_b32 s{S_X}, s{S_Y}, 1\nv_lshrrev_b32 v{VT+2}, 5, v0\nv_and_b32 v{VT+3}, 1, v0\nv_lshlrev_b32 v{VT+3}, 2, v{VT+3}\nv_bitop3_b32 v{VT+2}, v{VT+2}, s{S_X}, v{VT+3} bitop3:0x96")
        p(f"v_bfe_u32 v{VT+3}, v0, 3, 2\nv_lshl_add_u32 v{VT+2}, v{VT+2}, 2, v{VT+3}\nv_and_b32 v{VT+3}, 7, v0\nv_lshl_add_u32 v{VT+2}, v{VT+3}, 8, v{VT+2}\ns_lshl_b32 s{S_X}, s{S_MH}, 13\nv_lshl_add_u32 v{XA}, v{VT+2}, 2, s{S_X}")
        for k in range(1, 4): p(f"v_xor_b32 v{XA+k}, {16*k}, v{XA}")
        p(f"v_lshrrev_b32 v{VT+2}, 3, v0\nv_lshlrev_b32 v{VT+2}, 13, v{VT+2}\nv_lshl_add_u32 v{XS}, v{VT+3}, 4, v{VT+2}")
        p(f"s_lshl1_add_u32 s{S_X}, s{S_RT}, s{S_MH}\ns_lshl2_add_u32 s{S_Y}, s{S_C2}, s{S_Y}")
        p(f"s_lshl_b32 s{S_XTW}, s{S_Y}, 9\ns_add_u32 s{S_XTW}, s{S_XTW}, s{S_X}\ns_lshl_b32 s{S_XTW}, s{S_XTW}, 7\ns_add_u32 s{S_XTW}, s{S_XTW}, {WS_XT}")
        p(f"s_lshr_b32 s{T}, s{S_X}, 3\ns_lshl2_add_u32 s{S_FXW}, s{S_Y}, s{T}\ns_lshl_b32 s{S_FXW}, s{S_FXW}, 5\ns_and_b32 s{S_X}, s{S_X}, 7\ns_add_u32 s{S_FXW}, s{S_FXW}, s{S_X}\ns_lshl2_add_u32 s{S_FXW}, s{S_FXW}, {WS_FX}")
        p(f"s_mov_b32 s{S_P0}, 0x05040100\ns_mov_b32 s{S_P1}, 0x07060302")
        late = Prog(); q = late
        q(f"s_lshl2_add_u32 s{S_R2}, s{S_XCD}, s{S_JR}")
        q(f"s_lshr_b32 s{T}, s{S_CP}, 3\ns_lshl2_add_u32 s{S_FXR}, s{T}, s{S_BW}\ns_lshl_b32 s{S_FXR}, s{S_FXR}, 7\ns_add_u32 s{S_FXR}, s{S_FXR}, {WS_FX}\ns_lshr_b32 s{T}, s{T}, 1")
        q(f"s_lshl3_add_u32 s{S_XTR}, s{S_CP}, s{S_BW}\ns_lshl_b32 s{S_XTR}, s{S_XTR}, 10\ns_add_u32 s{S_XTR}, s{S_XTR}, {WS_XT}")
        q(f"s_mul_i32 s{S_FSW}, s{S_BW}, 14\ns_add_u32 s{S_FSW}, s{S_FSW}, s{T}\ns_lshl_b32 s{S_FSW}, s{S_FSW}, 7\ns_and_b32 s{T+1}, s{S_CP}, 15\ns_add_u32 s{S_FSW}, s{S_FSW}, s{T+1}\ns_lshl2_add_u32 s{S_FSW}, s{S_FSW}, {WS_FS}")
        q(f"s_lshl1_add_u32 s{T}, s{S_C2}, s{S_CHN}")
        q(f"s_lshr_b32 s{T+1}, s{S_R2}, 3\ns_mul_i32 s{S_FSR}, s{T+1}, 14\ns_add_u32 s{S_FSR}, s{S_FSR}, s{T}\ns_lshl2_add_u32 s{S_FSR}, s{S_FSR}, s{S_JR}\ns_lshl_b32 s{S_FSR}, s{S_FSR}, 7\ns_add_u32 s{S_FSR}, s{S_FSR}, {WS_FS}")
        q(f"s_lshl_b32 s{S_STR}, s{T}, 9\ns_add_u32 s{S_STR}, s{S_STR}, s{S_R2}\ns_lshl1_add_u32 s{S_STR}, s{S_STR}, s{S_MH}\ns_lshl_b32 s{S_STR}, s{S_STR}, 7\ns_add_u32 s{S_STR}, s{S_STR}, {WS_ST}")
        q(f"s_lshl3_add_u32 s{S_XO}, s{S_R2}, s{S_MH}\ns_and_b32 s{S_STF}, s{S_XO}, 63\ns_mul_i32 s{S_XO}, s{S_XO}, {8*896}\ns_lshl_b32 s{T}, s{T}, 6\ns_add_u32 s{S_XO}, s{S_XO}, s{T}")
        q(f"s_lshl_b32 s{T+1}, s{T+1}, 8\ns_add_u32 s{S_STF}, s{S_STF}, s{T+1}\ns_lshl4_add_u32 s{S_STF}, s{S_STF}, {WS_STAT}")
        q(f"s_lshl_b32 s{S_STA}, s{S_BW}, 12\ns_add_u32 s{S_STA}, s{S_STA}, {WS_STAT}")
        q(f"v_and_b32 v{VT}, 15, v0\nv_lshrrev_b32 v{VT+1}, 4, v0")
        q(f"s_lshl_b32 s{T}, s{S_BW}, 13\ns_add_u32 s{T}, s{T}, {L_BR}\nv_lshl_add_u32 v{VSW}, v0, 3, s{T}\nv_add_u32 v{VEXW}, s{T}, v{VL16}")
        for r in range(1, 16): q(f"v_xor_b32 v{VSW+r}, {16*r}, v{VSW}")
        q(f"v_xor_b32 v{VT+2}, v{VT}, v{VT+1}\nv_lshlrev_b32 v{VT+2}, 4, v{VT+2}\nv_lshl_add_u32 v{VT+2}, v{VT}, 9, v{VT+2}\nv_add_u32 v{VSR}, s{T}, v{VT+2}")
        for k in range(1, 4): q(f"v_xor_b32 v{VSR+k}, {64*k}, v{VSR}")
        q(f"s_mul_i32 s{T}, s{S_BW}, 3072\ns_add_u32 s{T}, s{T}, {L_RAW}\nv_add_u32 v{VRW}, s{T}, v{VL16}")
        q(f"s_mul_i32 s{T}, s{S_CHN}, 16640\ns_add_u32 s{T}, s{T}, {L_TAB}\ns_lshl_b32 s{T+1}, s{S_MH}, 10\ns_add_u32 s{T+1}, s{T+1}, s{T}\nv_add_u32 v{VTW}, s{T+1}, v{VL16}")
        q(f"v_lshrrev_b32 v{VT+2}, 1, v0\nv_mul_u32_u24 v{VT+2}, 4160, v{VT+2}\nv_and_b32 v{VT+3}, 16, v{VL16}\nv_add3_u32 v{VTZ}, v{VT+2}, v{VT+3}, s{T}")
        q(f"v_sub_u32 v{VT+2}, 3, v{VT}\nv_and_b32 v{VT+2}, 3, v{VT+2}\nv_mul_u32_u24 v{VT+3}, {4160-2}, v{VT+2}\nv_lshl_add_u32 v{VT+3}, v{VT+1}, 4, v{VT+3}\nv_lshlrev_b32 v{VT+2}, 1, v{VT}\nv_sub_u32 v{VT+3}, v{VT+3}, v{VT+2}")
        q(f"s_lshl_b32 s{T+1}, s{S_MH}, 8\ns_sub_u32 s{T}, s{T}, s{T+1}\ns_add_u32 s{T}, s{T}, {2*(2031-1792-96)}\nv_add_u32 v{VTA}, s{T}, v{VT+3}")
        q(f"s_mul_i32 s{S_X}, s{S_CHN}, 4608\ns_sub_u32 s{T}, s{S_X}, s{T+1}\ns_add_u32 s{T}, s{T}, {L_U+2*(240-96)}\nv_lshlrev_b32 v{VT+2}, 5, v{VT}\nv_lshl_add_u32 v{VT+2}, v{VT+1}, 4, v{VT+2}\nv_add_u32 v{VUA}, s{T}, v{VT+2}")
        q(f"s_add_u32 s{S_X}, s{S_X}, s{T+1}\ns_add_u32 s{S_X}, s{S_X}, {L_U}\nv_lshl_add_u32 v{VUZ}, v0, 2, s{S_X}")
        q(f"s_lshl_b32 s{T}, s{S_BW}, 10\ns_add_u32 s{T}, s{T}, {L_U+512}\nv_add_u32 v{VUW}, s{T}, v{VL16}")
        q(f"s_lshl_b32 s{T}, s{S_BW}, 11\ns_add_u32 s{T}, s{T}, {L_EX}\nv_add_u32 v{VEXR}, s{T}, v{VL16}")
        VZ = 56
        for i in range(4): q(f"v_mov_b32 v{VZ+i}, 0")
        q(f"v_mov_b32 v{VCN}, {L_CNT}\nv_mov_b32 v{VONE}, 1")
        if "X" not in c.spoll: q(f"v_min_u32 v{VFL}, 7, v0\nv_lshlrev_b32 v{VFL}, 2, v{VFL}")
        k = int(len(late.items) * c.b_pre)
        p.extend(late.items[:k]); late.items = late.items[k:]
        T = 90
        self.make_tag()
        p(f"s_lshl_b32 s{T}, s{S_CHN}, 4\ns_lshr_b32 s{S_LDT}, s{S_LDT}, s{T}\ns_lshl_b32 s{S_LDT}, s{S_LDT}, 16\ns_lshr_b32 s{S_DSK}, s{S_DSK}, s{T}\ns_lshl_b32 s{S_DSK}, s{S_DSK}, 16")
        VDT = 60
        p(f"v_mov_b32 v{VDT}, {LOG2E}\nv_mul_f32 v{VDT}, s{S_LDT}, v{VDT}\nv_exp_f32 v{VDT}, v{VDT}\nv_mov_b32 v{VTAG}, s{S_TAG}\nv_cvt_pk_bf16_f32 v{VDT}, v{VDT}, v{VDT}\nv_and_b32 v{VDT}, 0xffff0000, v{VDT}\nv_mov_b32 v{VDT+1}, v{VDT}")
        self.stamp("pre", sets=(0, 1))
        Z1, Z2, Z4, Z8, Z128, XB, XC, XDD, TM = 64, 68, 72, 76, 80, 84, 88, 92, 96
        AL, BE, UB, CV = 108, 110, 112, 120
        YF, XF, KV, KA = 128, 160, 128, 244
        units = []
        def unpack(d, src): p(f"v_lshlrev_b32 v{d}, 16, v{src}\nv_and_b32 v{d+1}, 0xffff0000, v{src}")
        def mul2(d, a, b, pk):
            if pk: p(f"v_pk_mul_f32 {v(d,2)}, {v(a,2)}, {v(b,2)}")
            else: p(f"v_mul_f32 v{d}, v{a}, v{b}\nv_mul_f32 v{d+1}, v{a+1}, v{b+1}")
        def cmul_(d, a, b, pk):
            assert d != b
            mul2(TM, a, b, pk); mul2(TM + 2, a, b + 2, pk)
            if pk:
                p(f"v_pk_fma_f32 {v(d,2)}, {v(a+2,2)}, {v(b+2,2)}, {v(TM,2)} neg_lo:[1,0,0] neg_hi:[1,0,0]")
                p(f"v_pk_fma_f32 {v(d+2,2)}, {v(a+2,2)}, {v(b,2)}, {v(TM+2,2)}")
            else:
                for m in range(2): p(f"v_fma_f32 v{d+m}, -v{a+2+m}, v{b+2+m}, v{TM+m}")
                for m in range(2): p(f"v_fma_f32 v{d+2+m}, v{a+2+m}, v{b+m}, v{TM+2+m}")
        def cmul(d, a, b): units.append((8, lambda pk: cmul_(d, a, b, pk)))
        def put(e, a, conj):
            ng = "-" if conj else ""
            units.append((2, lambda pk: (have.add(e), p(f"v_cvt_pk_bf16_f32 v{KV+2*e}, v{a}, {ng}v{a+2}\nv_cvt_pk_bf16_f32 v{KV+2*e+1}, v{a+1}, {ng}v{a+3}"))))
        have = {0}
        def getfr(base):
            return [I(f"ds_read_b128 {v(base+4*fr,4)}, v{VSR+(fr&3)} offset:{(fr>>2)*256}") for fr in range(8)]
        def kmfma(tile, base):
            a = v(KA + 4 * tile, 4)
            return [I(f"v_mfma_f32_16x16x32_bf16 {a}, {v(base+4*fr,4)}, {v(YF+4*fr,4)}, {'0' if fr == 0 else a}") for fr in range(8)]
        def zpow_(d, lg, pk):
            for m in range(2):
                if lg: p(f"v_ldexp_f32 v{TM+m}, v{AL+m}, {lg}\nv_ldexp_f32 v{TM+2+m}, v{BE+m}, {lg}")
                a, b = (TM + m, TM + 2 + m) if lg else (AL + m, BE + m)
                p(f"v_exp_f32 v{TM+m}, v{a}\nv_fract_f32 v{TM+2+m}, v{b}")
            for m in range(2): p(f"v_cos_f32 v{d+m}, v{TM+2+m}\nv_sin_f32 v{d+2+m}, v{TM+2+m}")
            mul2(d, d, TM, pk); mul2(d + 2, d + 2, TM, pk)
        def zpow(d, lg): units.append((22, lambda pk: zpow_(d, lg, pk)))
        p(f"v_mov_b32 v{KV}, 0x3f80\nv_mov_b32 v{KV+1}, 0x3f80")
        unpack(AL, VP); unpack(BE, VP + 1)
        self.stamp("params", sets=(0, 1))
        mul2(AL, AL, VDT, True); mul2(BE, BE, VDT, True)
        for m in range(2): p(f"v_mul_f32 v{AL+m}, {LOG2E}, v{AL+m}\nv_mul_f32 v{BE+m}, 0.15915494, v{BE+m}")
        early_done = [None]
        zpow(Z8, 3)
        put(1, Z8, False)
        prev = Z8
        for r in range(2, 16): cmul(XB, prev, Z8); prev = XB; put(r, XB, False)
        zpow(Z1, 0); zpow(Z128, 7)
        units.append((8, lambda pk: [unpack(UB + 2 * i, VP + 2 + i) for i in range(4)]))
        cmul(XC, UB, UB + 4)
        units.append((4, lambda pk: (mul2(XC, XC, VDT, pk), mul2(XC + 2, XC + 2, VDT, pk))))
        cmul(XB, XC, Z128)
        put(16, XC, True); put(24, XB, True)
        prev = XB
        for r in range(1, 8):
            cmul(XC, XC, Z1); put(16 + r, XC, True)
            cmul(XDD, prev, Z1); prev = XDD; put(24 + r, XDD, True)
        for it in late.items: units.append((1, lambda pk, it=it: p.extend([it])))
        cmul(Z2, Z1, Z1); cmul(Z4, Z2, Z2)
        for k in range(2):
            cmul(XB, XB, Z128); put(32 + 4 * k, XB, True); prev = XB
            for r in range(1, 4): cmul(XC, prev, Z2); prev = XC; put(32 + 4 * k + r, XC, True)
        for k in range(4):
            cmul(XB, XB, Z128); put(40 + 2 * k, XB, True)
            cmul(XC, XB, Z4); put(41 + 2 * k, XC, True)
        for k in range(9): cmul(XB, XB, Z128); put(48 + k, XB, True)
        total = sum(u[0] for u in units)
        SG, SR = 64, 80
        sloads = "\n".join(f"buffer_load_dwordx4 {v(SG+4*i,4)}, v{VL16}, {s(R_WS,4)}, s{S_STA} offen offset:{1024*i} sc1" for i in range(4))
        cuts = [c.kg_pre] + [c.kg_pre + (total - c.kg_pre) * (i - c.kg_x) / (c.kg_ints - c.kg_x) for i in range(1, 7)]
        lops = []
        for e in range(57):
            it = [I(f"ds_write_b64 v{VSW+(e&15)}, {v(KV+2*e,2)} offset:{(e&15)*512}")]
            if 40 <= e < 48: it.append(kmfma(0, XF)[e - 40])
            if e >= 49: it.append(kmfma(1, XF + 32)[e - 49])
            if e in (15, 31, 47, 56): it += getfr({15: YF, 31: XF, 47: XF + 32, 56: XF}[e])
            lops.append(it)
        nl = [0]
        def lds_upto(m):
            while nl[0] < m:
                assert nl[0] in have
                p.extend(lops[nl[0]]); nl[0] += 1
        done = 0; nb = 0; fx = [None]; xt = [None]
        def barrier():
            nonlocal nb
            lds_upto(c.lds_cut[nb])
            if nb == c.fx_at: p.wait(xt[0]); self.flag_store(S_FXW, VTAG)
            self.stamp(f"atbar{nb}", sets=(0, 1) if nb == 0 else (1,))
            if nb == 5: p.wait(init[0])
            p("s_barrier")
            if nb == 0:
                if c.prio_xt != c.prio_b2: p(f"s_setprio {c.prio_xt}")
                for i in range(8): p(f"ds_read_b32 v{XD+i}, v{XA+(i>>1)} offset:{i*128}")
                for e in range(2):
                    for j in range(4): p(f"v_perm_b32 v{XO+4*e+j}, v{XD+2*j+1}, v{XD+2*j}, s{S_P1 if e else S_P0}")
                    xt[0] = p.tok(f"buffer_store_dwordx4 {v(XO+4*e,4)}, v{XS}, {s(R_WS,4)}, s{S_XTW} offen sc1")
                    if e == 0: p(f"s_add_u32 s{S_XTW}, s{S_XTW}, 4096")
                if c.prio_xt != c.prio_b2: p(f"s_setprio {c.prio_b2}")
            if nb == 4:
                p(f"ds_write_b32 v{VUZ}, v{VZ}"); init.append(p.tok(f"ds_write_b64 v{VCN}, {v(VZ,2)}"))
                self.stamp("bar4", sets=(0, 3))
            if nb == c.gt_at:
                p(f"s_lshl_b32 s{T}, s{S_MH}, 11\ns_add_u32 s{T}, s{T}, L_gtab-L_pc")
                for h in range(2): p(f"buffer_load_dwordx4 {v(VGT+4*h,4)}, v{VL16}, {s(R_PC,4)}, s{T} offen offset:{1024*h}")
            if nb == c.st_at:
                assert done == total
                p(sloads)
            nb += 1
        init = []
        for cost, fn in units:
            while nb < 6 and done >= cuts[nb]: barrier()
            fn(nb == 0); done += cost
        while nb < 6: barrier()
        if c.prio_b3 != c.prio_b2: p(f"s_setprio {c.prio_b3}")
        XR, XR2 = 2, 52
        fx = self.flag_load("X", S_FXR, 8, VFL)
        lds_upto(max(nl[0], c.fx_chk))
        self.flag_check(fx, VT)
        self.stamp("fx", sets=(0, 3))
        p(f"buffer_load_dwordx4 {v(XR,4)}, v{VL16}, {s(R_WS,4)}, s{S_XTR} offen sc1\ns_add_u32 s{S_XTR}, s{S_XTR}, 4096\nbuffer_load_dwordx4 {v(XR2,4)}, v{VL16}, {s(R_WS,4)}, s{S_XTR} offen sc1")
        lds_upto(57)
        p(f"s_mul_i32 s{T}, s{S_CHN}, 6144\ns_add_u32 s{T}, s{T}, {L_RAW}\ns_cmp_eq_u32 s{S_MH}, 0\ns_cselect_b32 s{S_DSK}, s{S_DSK}, 0")
        p(f"v_mov_b32 v{VT}, s{S_DSK}\nv_cmp_eq_u32 vcc, 0, v0\nv_mov_b32 v{VT+1}, s{T}\nv_cndmask_b32 v{VT}, 0, v{VT}, vcc\nv_add_f32 v{KA}, v{KA}, v{VT}")
        p(f"ds_write_b128 v{VRW}, {v(KA,4)}\nv_cmp_gt_u32 vcc, 48, v0\nds_write_b128 v{VRW}, {v(KA+4,4)} offset:1024")
        p.extend(kmfma(2, XF))
        T = S_T
        for k in range(15):
            p(f"v_add_u32_sdwa v{VG+k}, v{VT+1}, v{VGT+(k>>1)} dst_sel:DWORD dst_unused:UNUSED_PAD src0_sel:DWORD src1_sel:WORD_{k&1}")
        p(f"v_cndmask_b32 v{KA+8}, 0, v{KA+8}, vcc\nds_write_b128 v{VRW}, {v(KA+8,4)} offset:2048")
        self.lds_arrive(VCN, VONE, 4)
        self.stamp("kgen", sets=(0, 3))
        if c.prio_b4 != c.prio_b3: p(f"s_setprio {c.prio_b4}")
        self.tagged_check(sloads, [SG + 2 * i + 1 for i in range(8)], VT)
        self.lds_wait(VCN, VT, 4, off=4)
        GV, PK = 96, 128
        for k in range(15): p(f"ds_read2st64_b32 {v(GV+2*k,2)}, v{VG+k} offset0:0 offset1:12")
        for i in range(8):
            p(f"v_and_b32 v{SR+i}, 0xffff0000, v{SG+2*i}\nv_rcp_f32 v{SR+i}, v{SR+i}\nv_lshlrev_b32 v{SR+8+i}, 16, v{SG+2*i}\nv_mul_f32 v{SR+8+i}, -v{SR+8+i}, v{SR+i}")
        for k in range(15): p(f"v_add_f32 v{GV+2*k}, v{GV+2*k}, v{GV+2*k+1}")
        seq = [[0, 0, 0, 1, 2, 2, 2, 2, 2, 2, 3], list(range(4, 15))]
        for task in range(2):
            for cp_ in range(4):
                for j in range(4):
                    p(f"v_cvt_pk_bf16_f32 v{PK+16*task+4*cp_+j}, v{GV+2*seq[task][cp_+2*j]}, v{GV+2*seq[task][cp_+2*j+1]}")
                p(f"ds_write_b128 v{VTW}, {v(PK+16*task+4*cp_,4)} offset:{cp_*4160+task*2048}")
        p(f"s_mov_b64 exec, 0xff\nds_write_b128 v{VTZ}, {v(VZ,4)} offset:4096\ns_mov_b64 exec, -1")
        self.stamp("tables", sets=(0, 3, 4))
        for ch in range(2):
            for j in range(4):
                a = SG + 8 * ch + 2 * j; x = (XR2 if ch else XR) + j
                p(f"v_lshlrev_b32 v{a}, 16, v{x}\nv_and_b32 v{a+1}, 0xffff0000, v{x}\nv_fma_f32 v{a}, v{a}, v{SR+2*j}, v{SR+8+2*j}\nv_fma_f32 v{a+1}, v{a+1}, v{SR+2*j+1}, v{SR+9+2*j}\nv_cvt_pk_bf16_f32 v{x}, v{a}, v{a+1}")
            p(f"ds_write_b128 v{VUW}, {v(XR2 if ch else XR,4)} offset:{4608*ch}")
        self.lds_arrive(VCN, VONE, 4)
        self.lds_wait(VCN, VT, 8, off=4)
        self.stamp("u", sets=(0, 3, 4))
        if c.prio_b5 != c.prio_b4: p(f"s_setprio {c.prio_b5}")
        TF, UF, CA = 96, 160, 224
        def read_tu(ph):
            r = [I(f"ds_read_b128 {v(UF+32*(ph&1),4)}, v{VUA} offset:{2*32*(3-ph)}")]
            for a in range(8):
                for h in range(2):
                    r.append(I(f"ds_read_b64 {v(TF+32*(ph&1)+4*a+2*h,2)}, v{VTA} offset:{2*(256*(7-a)+32*(3-ph))+8*h}"))
            return r + [I(f"ds_read_b128 {v(UF+32*(ph&1)+4*b,4)}, v{VUA} offset:{2*(256*b+32*(3-ph))}") for b in range(1, 8)]
        r0 = read_tu(0)
        p.extend(r0[:13])
        for ph in range(4):
            mm = []
            for b in range(8):
                for a in range(8 - b):
                    acc = v(CA + 4 * (a + b), 4)
                    mm.append(I(f"v_mfma_f32_16x16x32_bf16 {acc}, {v(UF+32*(ph&1)+4*b,4)}, {v(TF+32*(ph&1)+4*a,4)}, {'0' if (ph == 0 and b == 0) else acc}"))
            fill = (r0[13:] if ph == 0 else []) + (read_tu(ph + 1) if ph < 3 else [])
            if ph == 3:
                self.lds_arrive(VCN, VONE, 4)
                p.extend(mm[:26])
                if c.prio_b6 != c.prio_b5: p(f"s_setprio {c.prio_b6}")
                self.lds_wait(VCN, VT, 12, off=4); mm = mm[26:]
                fill = [I(f"ds_write_b128 v{VEXW}, {v(CA+4*cc,4)} offset:{1024*cc}") for cc in range(4)]
                p.extend(interleave(mm, fill, ratio=0.5))
            else: p.extend(interleave(mm, fill, ratio=1.0))
        self.stamp("conv", sets=(0, 2, 3, 4))
        for cc in range(4, 8): p(f"ds_write_b128 v{VEXW}, {v(CA+4*cc,4)} offset:{1024*cc}")
        self.lds_arrive(VCN, VONE, 4)
        VXO, VPA, VSA, XI, RG = 10, 11, 13, 16, 24
        p(f"v_bfe_u32 v{VT}, v0, 2, 2\nv_lshrrev_b32 v{VT+1}, 4, v0\nv_and_b32 v{VT+2}, 3, v0")
        p(f"v_lshl_add_u32 v{VT+3}, v{VT}, 4, v{VT+1}\nv_mul_u32_u24 v{VXO}, 896, v{VT+3}\nv_lshl_add_u32 v{VXO}, v{VT+2}, 4, v{VXO}")
        p(f"v_lshrrev_b32 v{VT+4}, 5, v0\nv_lshlrev_b32 v{VT+4}, 10, v{VT+4}\nv_lshl_add_u32 v{VT+4}, v{VT}, 5, v{VT+4}\nv_and_b32 v{VT+5}, 1, v{VT+1}\nv_lshl_add_u32 v{VT+4}, v{VT+5}, 3, v{VT+4}")
        self.lds_wait(VCN, VT + 6, 16, off=4)
        EXV = 96
        for k in range(2):
            for w in range(4): p(f"ds_read_b128 {v(EXV+16*k+4*w,4)}, v{VEXR} offset:{8192*w+1024*k}")
        for k in range(2):
            b = EXV + 16 * k
            for r in range(4): p(f"v_add_f32 v{b+r}, v{b+r}, v{b+4+r}\nv_add_f32 v{b+8+r}, v{b+8+r}, v{b+12+r}")
            for r in range(4): p(f"v_cvt_pk_bf16_f32 v{b+4+r}, v{b+r}, v{b+8+r}")
            sttok = p.tok(f"buffer_store_dwordx4 {v(b+4,4)}, v{VL16}, {s(R_WS,4)}, s{S_STW} offen offset:{1024*k} sc1")
        self.stamp("st", sets=(0, 2, 3, 4))
        for ps in range(2): p(f"buffer_load_dwordx4 {v(XI+4*ps,4)}, v{VXO}, {s(R_LD,4)}, s{S_XO} offen offset:{ps*4*896}")
        for ps in range(2): p(f"buffer_load_dword v{RG+ps}, v{VT+4}, {s(R_WS,4)}, s{S_STF} offen offset:{ps*2048} sc1")
        p(f"s_lshl_b32 s{T}, s{S_MH}, 3\nv_and_b32 v{VT+4}, 1, v{VT}\nv_lshl_add_u32 v{VT+5}, v{VT+4}, 4, v{VT+1}\nv_add_u32 v{VT+5}, s{T}, v{VT+5}\nv_lshlrev_b32 v{VT+5}, 8, v{VT+5}")
        p(f"v_lshrrev_b32 v{VT+6}, 1, v{VT}\nv_lshl_add_u32 v{VT+5}, v{VT+6}, 15, v{VT+5}")
        p(f"v_xor_b32 v{VT+4}, s{S_CHN}, v{VT+4}\nv_lshlrev_b32 v{VT+4}, 3, v{VT+4}\nv_lshl_add_u32 v{VT+4}, v{VT+2}, 1, v{VT+4}\nv_xor_b32 v{VT+4}, v{VT+4}, v{VT+1}\nv_lshl_add_u32 v{VPA}, v{VT+4}, 4, v{VT+5}")
        VP4 = 28
        for ps in range(2):
            for e in range(2): p(f"v_xor_b32 v{VP4+2*ps+e}, {64*ps+16*e}, v{VPA}")
        p(f"s_mul_i32 s{T}, s{S_BW}, 2176\ns_add_u32 s{T}, s{T}, {L_STR}")
        p(f"v_lshrrev_b32 v{VT+4}, 5, v0\nv_lshl_add_u32 v{VT+4}, v{VT+4}, 5, v{VL16}\nv_add_u32 v{VSA}, s{T}, v{VT+4}")
        p(f"v_mul_u32_u24 v{VT+4}, 544, v{VT+2}\nv_and_b32 v{VT+5}, 60, v0\nv_add3_u32 v{VSA+1}, v{VT+4}, v{VT+5}, s{T}")
        p(f"v_lshrrev_b32 v{VT+4}, 3, v0\nv_lshlrev_b32 v{VT+4}, 13, v{VT+4}\nv_and_b32 v{VT+5}, 7, v0\nv_lshl_add_u32 v{VSA+2}, v{VT+5}, 4, v{VT+4}")
        if "S" not in c.spoll: p(f"v_min_u32 v{VFL}, 15, v0\nv_lshlrev_b32 v{VFL}, 2, v{VFL}")
        p(f"v_lshlrev_b32 v{VT+4}, 7, v0")
        p.wait(sttok)
        p(f"s_mov_b64 exec, 15\nbuffer_store_dword v{VTAG}, v{VT+4}, {s(R_WS,4)}, s{S_FSW} offen sc1\ns_mov_b64 exec, -1")
        self.stamp("flagS")
        fs = self.flag_load("S", S_FSR, 16, VFL)
        XF32, RR, SV, SRF = 128, 2, 64, 144
        for ps in range(2):
            for j in range(4):
                p(f"v_lshlrev_b32 v{XF32+8*ps+2*j}, 16, v{XI+4*ps+j}\nv_and_b32 v{XF32+8*ps+2*j+1}, 0xffff0000, v{XI+4*ps+j}")
            p(f"v_and_b32 v{RG+ps}, 0xffff0000, v{RG+ps}\nv_rcp_f32 v{RG+ps}, v{RG+ps}\nv_mul_f32 v{RR+2*ps}, {LOG2E | 0x80000000}, v{RG+ps}\nv_mul_f32 v{RR+2*ps+1}, {LOG2E | 0x80000000}, v{RG+ps}")
        self.flag_check(fs, VT, sleep=c.fs_sleep)
        self.stamp("fs", sets=(0, 2, 3))
        p(f"buffer_load_dwordx4 {v(SV,4)}, v{VSA+2}, {s(R_WS,4)}, s{S_STR} offen sc1\ns_add_u32 s{S_STR}, s{S_STR}, 65536\nbuffer_load_dwordx4 {v(SV+4,4)}, v{VSA+2}, {s(R_WS,4)}, s{S_STR} offen sc1")
        for j in range(2): p(f"ds_write_b128 v{VSA}, {v(SV+4*j,4)} offset:{1088*j}")
        for ps in range(2):
            for i in range(4): p(f"ds_read_b32 v{SV+8+4*ps+i}, v{VSA+1} offset:{128*i+64*ps}")
        for ps in range(2):
            for i in range(4):
                a = SRF + 8 * ps + 2 * i; x = SV + 8 + 4 * ps + i
                p(f"v_lshlrev_b32 v{a}, 16, v{x}\nv_and_b32 v{a+1}, 0xffff0000, v{x}\nv_mul_f32 v{a}, v{a}, v{RG+ps}\nv_mul_f32 v{a+1}, v{a+1}, v{RG+ps}")
        self.stamp("sready", sets=(0, 2, 3))
        p("s_barrier")
        PV = 160
        for ps in range(2):
            for w in range(4):
                for e in range(2):
                    p(f"ds_read_b128 {v(PV+32*ps+8*w+4*e,4)}, v{VP4+2*ps+e} offset:{8192*w+1024*ps}")
        for ps in range(2):
            b = PV + 32 * ps
            for i in range(0, 8, 2): p(f"v_pk_add_f32 {v(b+i,2)}, {v(b+i,2)}, {v(b+8+i,2)}")
            for i in range(0, 8, 2): p(f"v_pk_add_f32 {v(b+16+i,2)}, {v(b+16+i,2)}, {v(b+24+i,2)}")
            for i in range(0, 8, 2): p(f"v_pk_add_f32 {v(b+i,2)}, {v(b+i,2)}, {v(b+16+i,2)}")
            for i in range(0, 8, 2): p(f"v_pk_mul_f32 {v(b+8+i,2)}, {v(b+i,2)}, {v(RR+2*ps,2)}")
            for i in range(8): p(f"v_exp_f32 v{b+8+i}, v{b+8+i}")
            for i in range(0, 8, 2): p(f"v_pk_mul_f32 {v(b+i,2)}, {v(b+i,2)}, {v(SRF+8*ps+i,2)}")
            for i in range(0, 8, 2): p(f"v_pk_add_f32 {v(b+8+i,2)}, {v(b+8+i,2)}, 1.0 op_sel_hi:[1,0]")
            for i in range(8): p(f"v_rcp_f32 v{b+8+i}, v{b+8+i}")
            for i in range(0, 8, 2): p(f"v_pk_fma_f32 {v(b+i,2)}, {v(b+i,2)}, {v(b+8+i,2)}, {v(XF32+8*ps+i,2)}")
            for i in range(4): p(f"v_cvt_pk_bf16_f32 v{b+16+i}, v{b+2*i}, v{b+2*i+1}")
            p(f"buffer_store_dwordx4 {v(b+16,4)}, v{VXO}, {s(R_2,4)}, s{S_XO} offen offset:{ps*4*896}")
        self.stamp("end", sets=(0, 2, 3, 4))
        self.stamp_flush(1)
        p("s_endpgm")

    def role_h(self):
        p, c = self.p, self.c
        p.label("L_helper")
        self.role_start(); self.stamp_begin("H")
        S_HH, S_X, S_Y, S_ONE, S_LO, S_HI, S_Q, S_CG = 64, 65, 66, 67, 68, 69, 70, 71
        T = S_T
        VT, XD, WD, AC = 1, 16, 48, 80
        p(f"s_lshl_b32 s{S_HH}, s{S_XCD}, 2\ns_add_u32 s{S_HH}, s{S_HH}, s{S_J}\ns_sub_u32 s{S_HH}, s{S_HH}, 28")
        p(f"s_lshl_b32 s{T}, s{S_HH}, 1\ns_and_b32 s{T+1}, s{S_WAVE}, 1\ns_add_u32 s{T}, s{T}, s{T+1}\ns_lshl_b32 s{T}, s{T}, 5\ns_and_b32 s{S_X}, s{S_WAVE}, 6\ns_add_u32 s{T}, s{T}, s{S_X}\ns_mul_i32 s{S_X}, s{T}, 896")
        p(f"v_lshrrev_b32 v{VT}, 4, v0\nv_bfe_u32 v{VT+1}, v0, 3, 1\nv_lshl_add_u32 v{VT}, v{VT}, 3, v{VT+1}\nv_mul_u32_u24 v{VT}, 896, v{VT}\nv_and_b32 v{VT+1}, 7, v0\nv_lshl_add_u32 v{VT}, v{VT+1}, 4, v{VT}")
        srd(p, R_LD, P_U, 2048 * 896)
        for i in range(7): p(f"buffer_load_dwordx4 {v(XD+4*i,4)}, v{VT}, {s(R_LD,4)}, s{S_X} offen offset:{128*i}")
        self.load_epoch(); srd(p, R_2, P_W1, 448 * 3584); srd(p, R_PC, P_W2, 1792 * 896)
        p(f"s_lshr_b32 s{S_Q}, s{S_XCD}, 1\ns_lshl2_add_u32 s{S_Q}, s{S_Q}, s{S_J}\ns_sub_u32 s{S_Q}, s{S_Q}, 28\ns_and_b32 s{S_CG}, s{S_XCD}, 1\ns_mul_i32 s{S_CG}, s{S_CG}, 14\ns_min_u32 s{T}, s{S_Q}, 13\ns_add_u32 s{S_CG}, s{S_CG}, s{T}")
        p(f"s_lshl_b32 s{T}, s{S_CG}, 7\ns_mul_i32 s{S_Y}, s{S_WAVE}, {56*3584}\ns_add_u32 s{S_Y}, s{S_Y}, s{T}")
        p(f"v_lshrrev_b32 v{VT+2}, 3, v0\nv_mul_u32_u24 v{VT+2}, 3584, v{VT+2}\nv_lshl_add_u32 v{VT+2}, v{VT+1}, 4, v{VT+2}")
        for i in range(7):
            p(f"buffer_load_dwordx4 {v(WD+4*i,4)}, v{VT+2}, {s(R_2,4)}, s{S_Y} offen")
            if i < 6: p(f"s_add_u32 s{S_Y}, s{S_Y}, {8*3584}")
        if c.h_early:
            p(f"s_sub_u32 s{T}, s{S_J}, 28\ns_mul_i32 s{T}, s{T}, 7\ns_add_u32 s{T}, s{T}, s{S_WAVE}\ns_lshl3_add_u32 s{T}, s{T}, s{S_XCD}\ns_mul_i32 s{T}, s{T}, {8*896}\ns_cmp_eq_u32 s{S_WAVE}, 7\ns_cselect_b32 s{T}, {1792*896}, s{T}")
            p(f"v_min_u32 v100, 55, v0\nv_lshlrev_b32 v100, 7, v100\nbuffer_load_dword v101, v100, {s(R_PC,4)}, s{T} offen")
        if c.warm_t == 1:
            lk = self.lab("not")
            p(f"s_cmp_lg_u32 s{S_WAVE}, 7\ns_cbranch_scc1 {lk}")
            p.alt_begin(); self.touch_pages(100, 101); p.alt_end(); p.label(lk)
        p(f"s_mov_b32 s{S_ONE}, 0x3f803f80\ns_mov_b32 s{S_LO}, 0x00003f80\ns_mov_b32 s{S_HI}, 0x3f800000")
        p(f"s_lshr_b32 s{T}, s{S_HH}, 3\ns_lshl_b32 s{T}, s{T}, 2\ns_lshr_b32 s{S_X}, s{S_WAVE}, 1\ns_add_u32 s{T}, s{T}, s{S_X}\ns_lshl_b32 s{T}, s{T}, 3\ns_and_b32 s{S_X}, s{S_HH}, 7\ns_add_u32 s{T}, s{T}, s{S_X}")
        p(f"s_lshl_b32 s{T}, s{T}, 1\ns_add_u32 s{T}, s{T}, s{T+1}\ns_lshl_b32 s{T}, s{T}, 6\ns_add_u32 s{S_X}, s{T}, {WS_STAT}")
        self.make_tag()
        self.stamp("issued")
        for i in range(4): p(f"v_mov_b32 v{AC+i}, 0")
        for i in range(28):
            p(f"v_dot2_f32_bf16 v{AC+(i&1)}, v{XD+i}, s{S_ONE}, v{AC+(i&1)}\nv_dot2_f32_bf16 v{AC+2+(i&1)}, v{XD+i}, v{XD+i}, v{AC+2+(i&1)}")
        p(f"v_add_f32 v{AC}, v{AC}, v{AC+1}\nv_add_f32 v{AC+1}, v{AC+2}, v{AC+3}")
        for pat in ("quad_perm:[1,0,3,2]", "quad_perm:[2,3,0,1]", "row_half_mirror"):
            for k in range(2): p(f"v_add_f32_dpp v{AC+k}, v{AC+k}, v{AC+k} {pat} row_mask:0xf bank_mask:0xf")
        inv = 0x3b124925
        p(f"v_mul_f32 v{AC}, {inv}, v{AC}\nv_mul_f32 v{AC+1}, {inv}, v{AC+1}\nv_fma_f32 v{AC+1}, -v{AC}, v{AC}, v{AC+1}\nv_max_f32 v{AC+1}, 0, v{AC+1}")
        p(f"v_cvt_pk_bf16_f32 v{AC+1}, v{AC+1}, v{AC+1}\nv_and_b32 v{AC+1}, 0xffff0000, v{AC+1}\nv_add_f32 v{AC+1}, 0x3727c5ac, v{AC+1}")
        p(f"v_cvt_pk_bf16_f32 v{AC+1}, v{AC+1}, v{AC+1}\nv_and_b32 v{AC+1}, 0xffff0000, v{AC+1}\nv_sqrt_f32 v{AC+1}, v{AC+1}")
        p(f"v_mov_b32 v{AC+3}, s{S_TAG}\nv_cvt_pk_bf16_f32 v{AC+2}, v{AC}, v{AC+1}")
        p(f"s_mov_b32 exec_lo, 0x01010101\ns_mov_b32 exec_hi, 0x01010101\nbuffer_store_dwordx2 {v(AC+2,2)}, v0, {s(R_WS,4)}, s{S_X} offen sc1\ns_mov_b64 exec, -1")
        self.stamp("stats")
        p(f"s_cmp_ge_u32 s{S_Q}, 14\ns_cbranch_scc1 L_hnocs")
        CS = 88
        for k in range(8): p(f"v_mov_b32 v{CS+k}, 0")
        for i in range(7):
            for j in range(4):
                p(f"v_dot2_f32_bf16 v{CS+2*j}, v{WD+4*i+j}, s{S_LO}, v{CS+2*j}\nv_dot2_f32_bf16 v{CS+2*j+1}, v{WD+4*i+j}, s{S_HI}, v{CS+2*j+1}")
        for k in range(8): p(f"v_add_f32_dpp v{CS+k}, v{CS+k}, v{CS+k} row_ror:8 row_mask:0xf bank_mask:0xf")
        p(f"v_and_b32 v{VT+3}, 8, v0\nv_cmp_eq_u32 vcc, 0, v{VT+3}\nv_lshlrev_b32 v{VT+3}, 1, v{VT+3}\nv_lshl_add_u32 v{VT+3}, v{VT+1}, 5, v{VT+3}\nv_lshrrev_b32 v{VT+4}, 4, v0\nv_lshl_add_u32 v{VT+3}, v{VT+4}, 8, v{VT+3}")
        p(f"s_lshl_b32 s{T}, s{S_WAVE}, 10\nv_add_u32 v{VT+3}, s{T}, v{VT+3}")
        for k in range(4): p(f"v_cndmask_b32 v{CS+k}, v{CS+4+k}, v{CS+k}, vcc")
        p(f"ds_write_b128 v{VT+3}, {v(CS,4)}\ns_waitcnt lgkmcnt(0)\ns_barrier")
        p(f"s_cmp_lg_u32 s{S_WAVE}, 0\ns_cbranch_scc1 L_hcsd")
        p.alt_begin()
        p(f"v_lshlrev_b32 v{VT+3}, 2, v0")
        for i in range(16): p(f"ds_read2st64_b32 {v(XD+2*i,2)}, v{VT+3} offset0:{2*i} offset1:{2*i+1}")
        for st in (16, 8, 4, 2):
            for i in range(0, st, 2): p(f"v_pk_add_f32 {v(XD+i,2)}, {v(XD+i,2)}, {v(XD+st+i,2)}")
        p(f"v_add_f32 v{AC+2}, v{XD}, v{XD+1}\nv_lshlrev_b32 v{VT+3}, 3, v0\ns_lshl_b32 s{T}, s{S_CG}, 9\ns_add_u32 s{T}, s{T}, {WS_CS}")
        p(f"buffer_store_dwordx2 {v(AC+2,2)}, v{VT+3}, {s(R_WS,4)}, s{T} offen sc1")
        p.alt_end()
        p.label("L_hcsd")
        if c.h_pf: p("s_barrier")
        p.label("L_hpf")
        self.stamp("cs")
        if c.h_pf:
            p(f"s_cmp_eq_u32 s{S_WAVE}, 7\ns_cbranch_scc1 L_hdone")
            p(f"s_sub_u32 s{T}, s{S_J}, 28\ns_mul_i32 s{T}, s{T}, 7\ns_add_u32 s{T}, s{T}, s{S_WAVE}\ns_mul_i32 s{T}, s{T}, {64*896}\nv_min_u32 v{VT}, 55, v0\nv_lshlrev_b32 v{VT}, 7, v{VT}")
            for k in range(c.h_rot):
                p(f"s_add_u32 s{T+1}, s{S_XCD}, {k}\ns_and_b32 s{T+1}, s{T+1}, 7\ns_mul_i32 s{T+1}, s{T+1}, {8*896}\ns_add_u32 s{T+1}, s{T+1}, s{T}\nbuffer_load_dword v{VT+1}, v{VT}, {s(R_PC,4)}, s{T+1} offen")
            if c.h_rot and c.h_wait: p("s_waitcnt vmcnt(0)")
            for st in c.h_pf:
                if st < 0: continue
                for h in range(2):
                    p(f"s_add_u32 s{T+1}, s{T}, {(16*st+8*h)*896}\nbuffer_load_dword v{VT+1}, v{VT}, {s(R_PC,4)}, s{T+1} offen")
            p("s_waitcnt vmcnt(0)")
        p.label("L_hdone")
        self.stamp("pf")
        self.stamp_flush(1)
        p("s_endpgm")
        p.label("L_hnocs")
        if c.h_pf: p("s_barrier")
        p(f"s_waitcnt vmcnt(0) lgkmcnt(0)\ns_cmp_lg_u32 s{S_HH}, 31\ns_cbranch_scc1 L_hpf\ns_cmp_lg_u32 s{S_WAVE}, 7\ns_cbranch_scc1 L_hpf")
        p.reset()
        p(f"v_lshrrev_b32 v{VT}, 2, v0\nv_min_u32 v{VT}, 13, v{VT}\nv_lshlrev_b32 v{VT}, 9, v{VT}\nv_and_b32 v{VT+1}, 3, v0\nv_lshl_add_u32 v{VT}, v{VT+1}, 4, v{VT}\ns_mov_b32 s{S_X}, {WS_FS}")
        ld = f"s_sleep 8\nbuffer_load_dwordx4 {v(XD,4)}, v{VT}, {s(R_WS,4)}, s{S_X} offen sc1"
        p(ld)
        self.tagged_check(ld, [XD, XD + 1, XD + 2, XD + 3], VT + 2)
        p(f"s_mov_b32 s{S_X}, {WS_EPOCH}")
        self.flag_store(S_X, AC + 3)
        p("s_branch L_hpf")

    def build(self):
        p = self.p
        self.entry()
        self.role_a(); self.role_b(); self.role_h()
        p.reset()
        p.label("L_exit")
        p("s_endpgm")
        p(".p2align 7")
        p(".type L_gtab,@object")
        p.label("L_gtab")
        w = self.gather_table()
        for i in range(0, len(w), 8): p(".long " + ", ".join(hex(x) for x in w[i:i+8]))
        p.label("L_end")
        body = p.resolve()
        head = open("recurrent_scan__ssm_conv_s4__dense_activation_mish__prompt.s.ref").read().split("; Override launch")[0]
        txt = head + f"; @launch grid=(256,1,1) block=(512,1,1) lds={LDS_BYTES}\n"
        txt += f'.amdgcn_target "amdgcn-amd-amdhsa--gfx950"\n.text\n.globl {KNAME}\n.p2align 8\n.type {KNAME},@function\n{KNAME}:\n'
        txt += body
        txt += f""".section .rodata,"a"
.p2align 6
.amdhsa_kernel {KNAME}
  .amdhsa_next_free_vgpr 256
  .amdhsa_next_free_sgpr 102
  .amdhsa_accum_offset 256
  .amdhsa_group_segment_fixed_size 0
  .amdhsa_kernarg_size 128
  .amdhsa_user_sgpr_count 2
  .amdhsa_user_sgpr_kernarg_segment_ptr 1
  .amdhsa_system_sgpr_workgroup_id_x 1
.end_amdhsa_kernel
"""
        return txt

def parse_cfg(args):
    kw = {}
    for a in args:
        k, x = a.split("=")
        kw[k] = eval(x)
    return Cfg(**kw)

if __name__ == "__main__":
    out = sys.argv[1]
    g = Gen(parse_cfg(sys.argv[2:]))
    txt = g.build()
    open(out, "w").write(txt)
    import json
    json.dump(g.stamp_names, open(out + ".stamps.json", "w"))
    print(out, g.p.stats)
```

```python
import re

def v(a, n=1): return f"v{a}" if n == 1 else f"v[{a}:{a+n-1}]"
def s(a, n=1): return f"s{a}" if n == 1 else f"s[{a}:{a+n-1}]"

_REG = re.compile(r"^(-|\|)?(abs\()?([vsa])(?:(\d+)|\[(\d+):(\d+)\])\)?\|?$")

def regs_of(op):
    op = op.strip()
    if op in ("vcc", "vcc_lo", "vcc_hi"): return {"vcc"}
    if op in ("exec", "exec_lo", "exec_hi"): return {"exec"}
    if op == "m0": return {"m0"}
    m = _REG.match(op)
    if not m: return set()
    k = m.group(3)
    if m.group(4) is not None: return {k + m.group(4)}
    return {k + str(i) for i in range(int(m.group(5)), int(m.group(6)) + 1)}

TRANS = ("v_exp_", "v_log_", "v_rcp_", "v_rsq_", "v_sqrt_", "v_sin_", "v_cos_")

class I:
    def __init__(self, text, token=None):
        self.text = text.strip()
        self.token = token
        body = self.text.split(";")[0].strip()
        parts = body.split(None, 1)
        self.mn = parts[0]
        rest = parts[1] if len(parts) > 1 else ""
        ops, depth, cur = [], 0, ""
        for ch in rest:
            if ch in "[(": depth += 1
            if ch in "])": depth -= 1
            if ch == "," and depth == 0:
                ops.append(cur.strip()); cur = ""
            else: cur += ch
        if cur.strip(): ops.append(cur.strip())
        mods = ""
        if ops:
            last = ops[-1].split(None, 1)
            ops[-1] = last[0]
            mods = last[1] if len(last) > 1 else ""
        self.ops, self.mods = ops, mods
        mn = self.mn
        R = [regs_of(o) for o in ops]
        self.w, self.r = set(), set()
        self.kind = "other"
        self.mfma_pass = 0
        self.srcc = set(); self.srcab = set(); self.sdata = set()
        self.dpp = bool(re.search(r"quad_perm|row_|wave_|bank_mask", mods)) or mn.endswith("_dpp")
        self.lds_dma = False
        U = lambda lst: set().union(*lst) if lst else set()
        if mn.startswith("v_mfma"):
            self.kind = "mfma"
            self.w = R[0]; self.srcab = R[1] | R[2]; self.srcc = R[3]; self.r = self.srcab | self.srcc
            self.mfma_pass = 8 if "32x32" in mn else (2 if "4x4" in mn else 4)
        elif mn.startswith("v_"):
            self.kind = "valu"
            if mn.startswith("v_cmpx"): raise ValueError("v_cmpx not modelled")
            if mn.startswith("v_permlane") and "swap" in mn:
                self.w = R[0] | R[1]; self.r = R[0] | R[1]
            elif re.match(r"v_(add|sub|subrev|addc|subb)_co", mn):
                self.w = R[0] | R[1]; self.r = U(R[2:])
            else:
                self.w = R[0]; self.r = U(R[1:])
                if re.match(r"v_(fmac|pk_fmac|dot2c|mac)", mn) or self.dpp or "v_writelane" in mn: self.r |= R[0]
                if mn.startswith("v_cndmask") and len(ops) == 3: self.r |= {"vcc"}
        elif mn.startswith("ds_"):
            self.kind = "ds"
            if re.match(r"ds_(read|bpermute|permute|swizzle)", mn) or "_rtn" in mn:
                self.w = R[0]; self.r = U(R[1:])
            else:
                self.r = U(R)
            if "addtid" in mn: self.r |= {"m0"}
        elif mn.startswith("buffer_") or mn.startswith("global_"):
            self.kind = "vmem"
            islds = bool(re.search(r"\blds\b", mods)) or "_lds_" in mn
            if "load" in mn and not islds:
                self.w = R[0]; self.r = U(R[1:])
            else:
                self.r = U(R)
                if islds: self.lds_dma = True; self.r |= {"m0"}
                if "store" in mn and re.search(r"x[34]$", mn):
                    self.sdata = R[0] if mn.startswith("buffer_") else R[1]
        elif re.match(r"s_(load|buffer_load|memtime|memrealtime)", mn):
            self.kind = "smem"
            self.w = R[0]; self.r = U(R[1:])
        elif mn.startswith("s_"):
            self.kind = "salu"
            if re.match(r"s_(cmp|cbranch|branch|waitcnt|nop|barrier|endpgm|sleep|setprio|bitcmp|sethalt)", mn):
                self.r = U(R)
            else:
                self.w = R[0] if R else set(); self.r = U(R[1:])
                if "saveexec" in mn: self.w |= {"exec"}; self.r |= {"exec"}
                if re.match(r"s_(addk|mulk|cmov)", mn): self.r |= self.w
        self.trans = mn.startswith(TRANS)
        self.states = 1
        if mn == "s_nop": self.states = int(ops[0], 0) + 1

class Marker:
    def __init__(self, kind, arg=None): self.kind, self.arg = kind, arg

def need_states(p, c):
    n = 0
    isv = lambda S: {x for x in S if x[0] in "va" and x != "vcc"}
    iss = lambda S: {x for x in S if x[0] == "s" or x == "vcc"}
    if p.kind == "valu":
        wv, ws = isv(p.w), iss(p.w)
        if c.kind == "mfma" and wv & c.r: n = max(n, 2)
        if c.kind == "valu":
            if c.dpp and wv & c.r: n = max(n, 2)
            if c.mn.startswith("v_permlane") and wv & c.r: n = max(n, 2)
            if c.mn.startswith(("v_readfirstlane", "v_readlane")) and wv & c.r: n = max(n, 1)
            if p.trans and wv & c.r: n = max(n, 1)
            if ws & c.r: n = max(n, 4 if c.mn.startswith(("v_readlane", "v_writelane")) else 2)
            if p.mn.startswith("v_dot") and wv & (c.r | c.w):
                same_c = c.mn == p.mn and not (wv & set().union(*[regs_of(o) for o in c.ops[1:3]]))
                if not same_c: n = max(n, 3)
            if "op_sel" in p.mods and not p.mn.startswith("v_pk") and wv & c.r: n = max(n, 1)
            if "sdwa" in p.mn and wv & c.r: n = max(n, 1)
        if p.mn.startswith("v_dot") and c.kind in ("ds", "vmem", "mfma") and wv & c.r: n = max(n, 3)
        if p.trans and c.kind in ("ds", "vmem") and wv & c.r: n = max(n, 1)
        if c.kind == "vmem" and ws & c.r: n = max(n, 5)
        if c.kind in ("salu", "smem") and ws & c.r: n = max(n, 4 if c.kind == "smem" else 2)
        if c.mn.startswith("s_cbranch_vcc") and "vcc" in ws: n = max(n, 5)
    elif p.kind == "mfma":
        P = p.mfma_pass
        t_raw = {2: 5, 4: 8, 8: 12}[P]
        if c.kind == "mfma":
            if p.w & c.srcab: n = max(n, t_raw)
            if p.w & c.srcc:
                if p.w == c.srcc and c.mfma_pass == P: n = max(n, 2 if P == 2 else 0)
                else: n = max(n, {2: 4, 4: 6, 8: 10}[P])
            elif p.w & c.w: n = max(n, {2: 4, 4: 6, 8: 10}[P])
        elif c.kind in ("valu", "ds", "vmem"):
            if p.w & (c.r | c.w): n = max(n, t_raw)
            if p.srcc & c.w: n = max(n, {2: 1, 4: 3, 8: 7}[P])
    elif p.kind == "vmem":
        if p.sdata & c.w: n = max(n, 2)
    elif p.kind == "salu":
        if "m0" in p.w and (c.lds_dma or "addtid" in c.mn): n = max(n, 1)
        if "exec" in p.w and c.kind == "valu" and c.dpp: n = max(n, 1)
    return n

_TOK = [0]
class Prog:
    def __init__(self):
        self.items = []
        self._tok = 0
        self._lab = 0
    def __call__(self, text, token=None):
        for line in text.strip().split("\n"):
            line = line.strip()
            if not line or line.startswith(";"):
                if line: self.items.append(Marker("text", line))
                continue
            if line.endswith(":") or line.startswith("."):
                self.items.append(Marker("text", line)); continue
            self.items.append(I(line, token))
        return token
    def tok(self, text):
        _TOK[0] += 1
        t = ("tok", _TOK[0])
        self(text, token=t)
        return t
    def wait(self, token): self.items.append(Marker("wait", token))
    def label(self, name): self.items.append(Marker("text", name + ":"))
    def comment(self, t): self.items.append(Marker("text", "; " + t))
    def reset(self): self.items.append(Marker("reset"))
    def alt_begin(self): self.items.append(Marker("alt_begin"))
    def alt_else(self): self.items.append(Marker("alt_else"))
    def alt_end(self): self.items.append(Marker("alt_end"))
    def extend(self, other): self.items.extend(other.items if isinstance(other, Prog) else other)

    def resolve(self):
        out = []
        vm, lg, hist = [], [], []
        done_tokens = set()
        stack = []
        self.stats = {"nops": 0, "waits": 0, "instrs": 0}
        def after(q, p): return sum(1 for e in q[p + 1:] if e[2])
        def pop(q, n):
            keep = [e for p, e in enumerate(q) if after(q, p) < n]
            q[:] = keep
        def emit(ins):
            nonlocal hist
            need = 0
            for p, d in hist:
                need = max(need, need_states(p, ins) - d)
            if need > 0:
                nop = I(f"s_nop {need-1}")
                out.append(nop); self.stats["nops"] += 1
                hist = [(p, d + need) for p, d in hist]
            out.append(ins); self.stats["instrs"] += 1
            hist = [(p, d + ins.states) for p, d in hist if d + ins.states < 20]
            if ins.kind in ("valu", "mfma", "vmem", "salu"): hist.append((ins, 0))
        def dowait(nv, nl):
            parts = []
            if nv is not None: nv = min(nv, 63); parts.append(f"vmcnt({nv})"); pop(vm, nv)
            if nl is not None:
                nl = min(nl, 15)
                if any(e[3] == "smem" for e in lg): nl = 0
                parts.append(f"lgkmcnt({nl})"); pop(lg, nl)
            if parts:
                emit(I("s_waitcnt " + " ".join(parts))); self.stats["waits"] += 1
        for it in self.items:
            if isinstance(it, Marker):
                if it.kind == "text": out.append(it)
                elif it.kind == "reset": vm, lg, hist = [], [], []
                elif it.kind == "pending":
                    tk = it.arg[2] if len(it.arg) > 2 else None
                    if tk is not None: done_tokens.add(tk)
                    (vm if it.arg[0] == "vmem" else lg).append([it.arg[1], tk, True, it.arg[0]])
                elif it.kind == "need":
                    r = {f"v{it.arg}"}
                    nv = [after(vm, p) for p, e in enumerate(vm) if e[0] & r]
                    nl = [after(lg, p) for p, e in enumerate(lg) if e[0] & r]
                    dowait(min(nv) if nv else None, min(nl) if nl else None)
                elif it.kind == "wait":
                    toks = it.arg if isinstance(it.arg, list) else [it.arg]
                    nv = nl = None
                    for t in toks:
                        assert t in done_tokens, f"wait for a token that was never issued: {t}"
                        for p, e in enumerate(vm):
                            if e[1] == t: a = after(vm, p); nv = a if nv is None else min(nv, a)
                        for p, e in enumerate(lg):
                            if e[1] == t: a = after(lg, p); nl = a if nl is None else min(nl, a)
                    dowait(nv, nl)
                elif it.kind == "alt_begin":
                    stack.append({"vm": list(vm), "lg": list(lg), "hist": list(hist), "arm": None})
                elif it.kind == "alt_else":
                    st = stack[-1]; st["arm"] = (vm, lg, hist)
                    vm, lg, hist = list(st["vm"]), list(st["lg"]), list(st["hist"])
                elif it.kind == "alt_end":
                    st = stack.pop()
                    o = st["arm"] if st["arm"] is not None else (st["vm"], st["lg"], st["hist"])
                    def merge(base, a, b):
                        ids = {id(e) for e in base}
                        r = [e for e in base if any(e is x for x in a) or any(e is x for x in b)]
                        for q in (a, b):
                            r += [[e[0], e[1], False, e[3]] for e in q if id(e) not in ids]
                        return r
                    vm, lg = merge(st["vm"], vm, o[0]), merge(st["lg"], lg, o[1])
                    hist = hist + o[2]
                continue
            ins = it
            if ins.mn == "s_waitcnt":
                m = re.search(r"vmcnt\((\d+)\)", ins.text)
                if m: pop(vm, int(m.group(1)))
                m = re.search(r"lgkmcnt\((\d+)\)", ins.text)
                if m:
                    n = int(m.group(1))
                    if n == 0 or not any(e[3] == "smem" for e in lg): pop(lg, n)
                emit(ins); continue
            touch = ins.r | ins.w
            nv = nl = None
            for p, e in enumerate(vm):
                hit = e[0] & (ins.r if ins.kind == "vmem" else touch)
                if hit: a = after(vm, p); nv = a if nv is None else min(nv, a)
            for p, e in enumerate(lg):
                hit = e[0] & (ins.r if (ins.kind == "ds" and e[3] == "ds") else touch)
                if hit: a = after(lg, p); nl = a if nl is None else min(nl, a)
            dowait(nv, nl)
            emit(ins)
            if ins.token is not None: done_tokens.add(ins.token)
            if ins.kind == "vmem": vm.append([ins.w, ins.token, True, "vmem"])
            elif ins.kind == "ds": lg.append([ins.w, ins.token, True, "ds"])
            elif ins.kind == "smem": lg.append([ins.w, ins.token, True, "smem"])
        assert not stack
        self.out = out
        return "\n".join((x.arg if (x.arg.endswith(":") or x.arg.startswith(".")) else "    " + x.arg) if isinstance(x, Marker) else "    " + x.text for x in out) + "\n"

def interleave(main, fill, ratio=None):
    out = []
    n, m = len(main), len(fill)
    j = 0
    for i, it in enumerate(main):
        out.extend(it if isinstance(it, list) else [it])
        upto = (i + 1) * m // n if ratio is None else min(m, int((i + 1) * ratio))
        while j < upto:
            f = fill[j]; out.extend(f if isinstance(f, list) else [f]); j += 1
    while j < m:
        f = fill[j]; out.extend(f if isinstance(f, list) else [f]); j += 1
    return out
```

```python
import sys
from asmgen import *

KNAME = "recurrent_scan__ssm_conv_s4__dense_activation_mish__prompt_kernel"

class Cfg:
    stamps = False
    sset = 0
    cyc = False
    probe = None
    prefetch_code = True
    mapP = False
    pf_at = -1
    rot2 = 2
    qperm = False
    h_early = False
    sync5 = True
    warm_w = ''
    warm_t = 0
    g2_mix = True
    act_st = 'sc1'
    act_ld = 'sc1'
    fa_st = 'sc1'
    mish_pk = False
    spoll = 'XAS'
    adepth = 7
    flead = 6
    pre_dma = 24
    nloop = 1
    dma_per = (8, 8, 8, 8, 8, 8, 8)
    gran_at = 4
    w2_sched = (0, 2, 10, 12)
    mish_skip = 0.0
    w2_lead = 23
    w2_rate = 0.8
    rdepth = 11
    flag_lag = 2
    fx_at = 3
    gt_at = 4
    st_at = 4
    fx_chk = 32
    addtid = True
    fuse0 = True
    lds_cut = (0, 0, 0, 0, 0, 4)
    prio_at = 99
    b_pre = 1.0
    kg_pre = 380
    kg_ints = 4
    kg_x = 0.6
    prio_xt = 1
    h_pf = (-1,)
    h_rot = 1
    h_wait = False
    fs_sleep = 2
    prio_b = 1
    prio_b2 = 0
    prio_b3 = 0
    prio_b4 = 0
    prio_b5 = 1
    prio_b6 = 0
    prio_a1 = 2
    pre_loop = 'R8 W L D18 F C A7 F R12 W L D24'
    def __init__(self, **kw):
        for k, x in kw.items():
            assert hasattr(self, k), k
            setattr(self, k, x)

WS_EPOCH, WS_FX, WS_FA, WS_FS = 0, 0x1000, 0x20000, 0x8000
WS_STAT, WS_CS, WS_XT, WS_ST, WS_ACT, WS_DBG = 0x10000, 0x14000, 0x40000, 0x200000, 0x400000, 0xC00000
WS_SIZE = 0x1000000
TAGC = 0x9E3779B1
SLOT = 32768
L_RING = 2 * SLOT
L_STG = 0
L_TAB = 0
L_EX = 0
L_RAW = SLOT + 1024
L_U = L_RAW + 12288
L_STR = L_RAW + 21504
L_CNT = L_RAW + 30208
LDS_BYTES = 163840
P_U, P_ARE, P_AIM, P_BRE, P_BIM, P_CRE, P_CIM, P_LDT = 4, 6, 8, 10, 12, 14, 16, 18
P_DSK, P_BX, P_W1, P_B1, P_W2, P_OUT, P_DBG, P_WS = 20, 22, 24, 26, 28, 30, 32, 34
R_LD, R_2, R_WS, R_PC = 36, 40, 44, 48
S_TAG, S_TAG2, S_WAVE, S_XCD, S_J, S_RT, S_CT, S_CP = 52, 53, 54, 55, 56, 57, 58, 58
S_R2, S_C2 = 60, 61
S_T = 62
S_SP = 80
S_JR, S_XF = 3, 59
S_POLL = 97
S_CNT = 96
S_T0 = 98
LOG2E = 0x3fb8aa3b
POLL_MAX = 1 << 17

def srd(p, r, ptr, size):
    p(f"s_mov_b32 s{r}, s{ptr}\ns_mov_b32 s{r+1}, s{ptr+1}\ns_mov_b32 s{r+2}, {size}\ns_mov_b32 s{r+3}, 0x20000")

class Gen:
    def __init__(self, cfg):
        self.c = cfg
        self.p = Prog()
        self.nlab = 0
        self.stamp_names = {}
    def lab(self, base):
        self.nlab += 1
        return f"L_{base}_{self.nlab}"

    def stamp_begin(self, role):
        self.role = role; self.stamp_names[role] = []
    def stamp(self, name, p=None, sets=(0,)):
        if self.c.probe == (self.role, name): (p or self.p)("s_memrealtime s[100:101]")
        if not self.c.stamps or self.c.sset not in sets: return
        p = p or self.p
        n = len(self.stamp_names[self.role]); assert n < 15
        self.stamp_names[self.role].append(name)
        p(f"{'s_memtime' if self.c.cyc else 's_memrealtime'} {s(4+2*n, 2)}")
    def stamp_flush(self, vt):
        if self.c.probe and self.c.probe[0] == self.role:
            l0 = self.lab("probe")
            self.p("s_waitcnt vmcnt(0) lgkmcnt(0)")
            self.p.label(l0)
            self.p(f"s_memrealtime s[98:99]\ns_waitcnt lgkmcnt(0)\ns_sub_u32 s98, s98, s100\ns_cmp_lt_u32 s98, 6000\ns_cbranch_scc1 {l0}")
        if not self.c.stamps: return
        p = self.p
        n = len(self.stamp_names[self.role])
        p("s_waitcnt vmcnt(0) lgkmcnt(0)\ns_mov_b64 exec, 1")
        p(f"s_lshl_b32 s{S_T}, s2, 3\ns_add_u32 s{S_T}, s{S_T}, s{S_WAVE}\ns_lshl_b32 s{S_T}, s{S_T}, 6\ns_add_u32 s{S_T}, s{S_T}, {WS_DBG}")
        p(f"v_mov_b32 v{vt}, s{S_T0}\nbuffer_store_dword v{vt}, off, {s(R_WS,4)}, s{S_T}")
        for i in range(n):
            p(f"v_mov_b32 v{vt+1+(i&1)}, s{4+2*i}\nbuffer_store_dword v{vt+1+(i&1)}, off, {s(R_WS,4)}, s{S_T} offset:{4+4*i}")
        p("s_waitcnt vmcnt(0)")

    def flag_store(self, soff, vt):
        p = self.p
        p(f"s_mov_b64 exec, 1\nbuffer_store_dword v{vt}, off, {s(R_WS,4)}, s{soff} sc1\ns_mov_b64 exec, -1")
    def lds_arrive(self, vaddr, vone, off=0, q=None):
        (q or self.p)(f"s_mov_b64 exec, 1\nds_add_u32 v{vaddr}, v{vone} offset:{off}\ns_mov_b64 exec, -1")
    def lds_wait(self, vaddr, vt, target, off=0):
        p = self.p
        l0, l1 = self.lab("spin"), self.lab("spun")
        p(f"s_mov_b32 s{S_CNT}, 0")
        p.label(l0)
        p(f"ds_read_b32 v{vt}, v{vaddr} offset:{off}\ns_add_u32 s{S_CNT}, s{S_CNT}, 1\ns_waitcnt lgkmcnt(0)\nv_readfirstlane_b32 s{S_POLL}, v{vt}")
        p(f"s_cmp_gt_u32 s{S_CNT}, {POLL_MAX*8}\ns_cbranch_scc1 {l1}\ns_cmp_lt_u32 s{S_POLL}, {target}\ns_cbranch_scc1 {l0}")
        p.label(l1)
    def tagged_check(self, loads, tagregs, vt, on_miss=None):
        p = self.p
        l0, l1 = self.lab("chk"), self.lab("chkd")
        p(f"s_mov_b32 s{S_CNT}, 0")
        for r in reversed(tagregs): p.items.append(Marker("need", r))
        p.label(l0)
        p(f"v_xor_b32 v{vt}, s{S_TAG}, v{tagregs[0]}")
        for r in tagregs[1:]:
            p(f"v_bitop3_b32 v{vt}, v{r}, s{S_TAG}, v{vt} bitop3:0xbe")
        p(f"v_cmp_ne_u32 vcc, 0, v{vt}\ns_add_u32 s{S_CNT}, s{S_CNT}, 1\ns_cbranch_vccz {l1}")
        p(f"s_cmp_gt_u32 s{S_CNT}, {POLL_MAX}\ns_cbranch_scc1 {l1}")
        p.alt_begin()
        if on_miss:
            l3 = self.lab("again")
            p(f"s_cmp_lg_u32 s{S_CNT}, 1\ns_cbranch_scc1 {l3}")
            p.alt_begin(); on_miss(); p.alt_end()
            p.label(l3)
        p(loads)
        p(f"s_waitcnt vmcnt(0)\ns_branch {l0}")
        p.alt_end()
        p.label(l1)

    def entry(self):
        p, c = self.p, self.c
        T = S_T
        p(f"s_load_dwordx16 s[4:19], s[0:1], 0\ns_load_dwordx16 s[20:35], s[0:1], 64")
        p(f"s_cmp_ge_u32 s2, 256\ns_cbranch_scc1 L_exit")
        if c.stamps: p(f"{'s_memtime' if c.cyc else 's_memrealtime'} {s(S_T0,2)}")
        if c.probe and c.probe[1] == "start": p("s_memrealtime s[100:101]")
        p(f"v_lshrrev_b32 v1, 6, v0\nv_and_b32 v0, 63, v0\nv_readfirstlane_b32 s{S_WAVE}, v1")
        p(f"s_and_b32 s{S_XCD}, s2, 7\ns_lshr_b32 s{S_J}, s2, 3")
        p(f"s_getpc_b64 {s(R_PC,2)}")
        p.label("L_pc")
        p(f"s_mov_b32 s{R_PC+2}, L_end-L_pc\ns_mov_b32 s{R_PC+3}, 0x20000")
        if c.prefetch_code:
            p(f"s_lshl3_add_u32 s{T}, s{S_J}, s{S_WAVE}\ns_lshl_b32 s{T}, s{T}, 7")
            p(f"buffer_load_dword v255, off, {s(R_PC,4)}, s{T}")
        p(f"s_mov_b32 s{R_WS+2}, {WS_SIZE}\ns_mov_b32 s{R_WS+3}, 0x20000")
        p(f"s_cmp_ge_u32 s{S_J}, 28\ns_cbranch_scc1 L_helper")
        p(f"s_mul_i32 s{S_JR}, s{S_J}, 37\ns_lshr_b32 s{S_JR}, s{S_JR}, 8\ns_mul_i32 s{T}, s{S_JR}, 7\ns_sub_u32 s{S_C2}, s{S_J}, s{T}")
        if c.mapP: p(f"s_lshr_b32 s{S_RT}, s{S_JR}, 1\ns_lshl1_add_u32 s{S_RT}, s{S_XCD}, s{S_RT}\ns_and_b32 s{S_XF}, s{S_JR}, 1")
        else: p(f"s_lshr_b32 s{S_RT}, s{S_XCD}, 1\ns_lshl2_add_u32 s{S_RT}, s{S_RT}, s{S_JR}\ns_and_b32 s{S_XF}, s{S_XCD}, 1")
        p(f"s_cmp_ge_u32 s{S_WAVE}, 4\ns_cbranch_scc1 L_roleB")
    def role_start(self, b=False):
        p = self.p
        p.reset()
        if self.c.prefetch_code: p.items.append(Marker("pending", ("vmem", {"v255"})))
        if b:
            p.items.append(Marker("pending", ("smem", {"s67"})))
            for i in range(6): p.items.append(Marker("pending", ("vmem", {f"v{2+i}"})))
        else:
            p.items.append(Marker("pending", ("smem", {f"s{i}" for i in range(4, 36)})))
    def load_epoch(self):
        self.p(f"s_load_dword s{S_TAG}, {s(P_WS,2)}, {WS_EPOCH}\ns_mov_b32 s{R_WS}, s{P_WS}\ns_mov_b32 s{R_WS+1}, s{P_WS+1}")
    def touch_pages(self, vt, vd):
        p = self.p
        p(f"v_lshlrev_b32 v{vt}, 20, v0\ns_mov_b64 exec, 0xfff\nglobal_load_dword v{vd}, v{vt}, {s(P_WS,2)} offset:2048\ns_mov_b64 exec, 3")
        p(f"global_load_dword v{vd}, v{vt}, {s(P_OUT,2)}\nglobal_load_dword v{vd}, v{vt}, {s(P_W2,2)}\ns_mov_b64 exec, 1\nglobal_load_dword v{vd}, v{vt}, {s(P_B1,2)}\ns_mov_b64 exec, -1")
    def make_tag(self):
        self.p(f"s_add_u32 s{S_TAG}, s{S_TAG}, {TAGC}\ns_mov_b32 s{S_TAG2}, s{S_TAG}")
    def flag_load(self, which, soff, n, va, q=None):
        if which in self.c.spoll:
            w = 8 if n <= 8 else 16
            txt = f"s_buffer_load_dwordx{w} {s(S_SP,w)}, {s(R_WS,4)}, s{soff} glc"
        else:
            txt = f"buffer_load_dword v{va+1}, v{va}, {s(R_WS,4)}, s{soff} offen sc1"
        (q or self.p)(txt)
        return (which, txt, n, va)
    def flag_check(self, fl, vt, sleep=0, on_miss=None):
        which, txt, n, va = fl
        p = self.p
        if sleep: txt = f"s_sleep {sleep}\n" + txt
        if which not in self.c.spoll:
            return self.tagged_check(txt, [va + 1], vt, on_miss)
        l0, l1, l2 = self.lab("chk"), self.lab("retry"), self.lab("chkd")
        p(f"s_mov_b32 s{S_CNT}, 0")
        p.label(l0)
        p("s_waitcnt lgkmcnt(0)")
        for i in range(0, n - 2, 2): p(f"s_cmp_eq_u64 {s(S_SP+i,2)}, {s(S_TAG,2)}\ns_cbranch_scc0 {l1}")
        if n & 1: p(f"s_cmp_eq_u32 s{S_SP+n-1}, s{S_TAG}\ns_cbranch_scc1 {l2}")
        else: p(f"s_cmp_eq_u64 {s(S_SP+n-2,2)}, {s(S_TAG,2)}\ns_cbranch_scc1 {l2}")
        p.alt_begin()
        p.label(l1)
        if on_miss:
            l3 = self.lab("again")
            p(f"s_cmp_lg_u32 s{S_CNT}, 0\ns_cbranch_scc1 {l3}")
            p.alt_begin(); on_miss(); p.alt_end()
            p.label(l3)
        p(txt)
        p(f"s_add_u32 s{S_CNT}, s{S_CNT}, 1\ns_cmp_le_u32 s{S_CNT}, {POLL_MAX}\ns_cbranch_scc1 {l0}\ns_waitcnt lgkmcnt(0)")
        p.alt_end()
        p.label(l2)

    def role_a(self):
        p, c = self.p, self.c
        self.role_start(); self.stamp_begin("A")
        VD, VXA, VWA, VW2A, VW2D, VL16, VFL, VC1, VT = 1, 9, 13, 15, 19, 21, 22, 2, 24
        ACC, FR, W2R, AB = 32, 96, 96, 192
        S_SOFF, S_CSTR, S_LDB, S_WT, S_WF, S_ACTW, S_CW, S_FAW, S_FAR, S_RING, S_ACTR, S_W2B, S_Z = range(64, 77)
        S_X = 78; S_Y = 79
        S_B1 = 0
        T = S_T
        phys = lambda n: (2, 3, 4, 1)[n % 4]
        p(f"s_and_b32 s{S_WT}, s{S_WAVE}, 1\ns_lshr_b32 s{S_WF}, s{S_WAVE}, 1\ns_mul_i32 s{S_CT}, s{S_XF}, 7\ns_add_u32 s{S_CT}, s{S_CT}, s{S_C2}")
        p(f"s_lshl1_add_u32 s{T}, s{S_RT}, s{S_WF}\ns_mul_i32 s{T}, s{T}, {64*896}")
        p(f"s_mul_i32 s{T+1}, s{S_WF}, {32*14}\ns_add_u32 s{T+1}, s{T+1}, s{S_CT}\ns_lshl_b32 s{T+1}, s{T+1}, 8")
        p(f"s_lshl1_add_u32 s{S_LDB}, s{S_WT}, s{S_WF}\ns_lshl_b32 s{S_LDB}, s{S_LDB}, 13")
        p(f"s_add_u32 s{S_X}, s{S_WT}, 3\nv_lshrrev_b32 v{VT}, s{S_X}, v0\ns_lshl_b32 s{S_X}, s{S_WT}, 1\nv_lshrrev_b32 v{VT+1}, 4, v0\nv_lshlrev_b32 v{VT+1}, s{S_X}, v{VT+1}")
        p(f"s_lshl_b32 s{S_Y}, 896, s{S_X}\nv_xor_b32 v{VT+1}, v0, v{VT+1}\nv_mul_u32_u24 v{VT}, s{S_Y}, v{VT}")
        p(f"s_cmp_eq_u32 s{S_WT}, 0")
        p(f"s_cselect_b32 s{S_SOFF}, s{T}, s{T+1}\ns_cselect_b32 s{S_CSTR}, 1, {64*28}\ns_cselect_b32 s{S_X}, 7, 15\ns_cselect_b32 s{S_Y}, 64, 0\ns_cselect_b32 s{R_LD+2}, 8, 7")
        p(f"v_and_b32 v{VT+1}, s{S_X}, v{VT+1}\nv_lshl_add_u32 v{VD}, v{VT+1}, 4, v{VT}\nv_xor_b32 v{VD+1}, s{S_Y}, v{VD}")
        p(f"s_lshl_b32 s{S_CSTR}, s{S_CSTR}, 7\ns_mul_i32 s{T}, s{S_C2}, s{S_CSTR}\ns_add_u32 s{S_SOFF}, s{S_SOFF}, s{T}\ns_mul_i32 s{S_CW}, s{S_CSTR}, 7")
        p(f"s_mul_i32 s{R_LD+2}, s{R_LD+2}, {256*896}\ns_mov_b32 s{R_LD+3}, 0x20000\ns_lshl_b32 s{S_Y}, 7168, s{S_WT}")
        p(f"s_sub_u32 s{T}, s{S_Y}, 1024\nv_add_u32 v{VD+1}, s{T}, v{VD+1}\ns_lshl_b32 s{T}, s{T}, 1")
        p(f"v_add_u32 v{VD+2}, s{T}, v{VD}\nv_add_u32 v{VD+3}, s{T}, v{VD+1}\ns_lshl_b32 s{T}, s{S_Y}, 2")
        for i in range(4): p(f"v_add_u32 v{VD+4+i}, s{T}, v{VD+i}")
        p(f"s_cmp_eq_u32 s{S_WT}, 0\ns_cselect_b32 s{R_LD}, s{P_U}, s{P_W1}\ns_cselect_b32 s{R_LD+1}, s{P_U+1}, s{P_W1+1}")
        ctok = {}
        def dma_chunk(n):
            r = []
            for i in range(8):
                q = Prog()
                if i % 4 == 0: q(f"s_add_u32 m0, s{S_LDB}, {phys(n)*SLOT + (i//4)*4096}")
                ctok[n] = q.tok(f"buffer_load_dwordx4 v{VD+i}, {s(R_LD,4)}, s{S_SOFF} offen offset:{(i%4)*1024} lds")
                if i == 7 and n < 6:
                    q(f"s_add_u32 s{S_SOFF}, s{S_SOFF}, s{S_CSTR}\ns_cmp_eq_u32 s{S_C2}, {6-n}\ns_cselect_b32 s{T}, s{S_CW}, 0\ns_sub_u32 s{S_SOFF}, s{S_SOFF}, s{T}")
                r.append(q.items)
            return r
        dq = []
        for n in range(7): dq += dma_chunk(n)
        self.stamp("dma0", sets=(1,))
        self.load_epoch()
        npre = c.nloop
        assert 8 * npre <= c.pre_dma <= 24
        p(f"s_add_u32 m0, s{S_LDB}, {L_RING}\ns_movk_i32 s{S_X}, 6")
        p.label("L_pre")
        for i in range(8):
            if i == 4: p("s_add_u32 m0, m0, 4096")
            p(f"buffer_load_dwordx4 v{VD+i}, {s(R_LD,4)}, s{S_SOFF} offen offset:{(i%4)*1024} lds")
        p(f"s_add_u32 m0, m0, {SLOT-4096}\ns_add_u32 s{S_SOFF}, s{S_SOFF}, s{S_CSTR}\ns_cmp_eq_u32 s{S_C2}, s{S_X}\ns_cselect_b32 s{T}, s{S_CW}, 0\ns_sub_u32 s{S_SOFF}, s{S_SOFF}, s{T}")
        p(f"s_sub_u32 s{S_X}, s{S_X}, 1\ns_cmp_lg_u32 s{S_X}, {6-npre}\ns_cbranch_scc1 L_pre\ns_branch L_bodyA")
        role = self.role
        self.role_b()
        self.role = role
        p.label("L_bodyA")
        p.reset()
        p.items.append(Marker("pending", ("smem", {f"s{S_TAG}"})))
        if c.prefetch_code: p.items.append(Marker("pending", ("vmem", {"v255"})))
        for n in range(npre):
            for i in range(8): p.items.append(Marker("pending", ("vmem", set(), ctok[n] if i == 7 else None)))
        p(f"v_and_b32 v{VT}, 31, v0\nv_lshrrev_b32 v{VT+1}, 5, v0\nv_bfe_u32 v{VT+2}, v0, 1, 3\nv_xor_b32 v{VT+1}, v{VT+1}, v{VT+2}\nv_lshlrev_b32 v{VT+1}, 4, v{VT+1}")
        p(f"v_lshl_add_u32 v{VT+1}, v{VT}, 7, v{VT+1}\ns_add_u32 s{S_X}, s{S_WT}, 8\ns_lshl_b32 s{S_X}, s{S_X}, 13\nv_add_u32 v{VXA}, s{S_X}, v{VT+1}")
        for k in range(1, 4): p(f"v_xor_b32 v{VXA+k}, {32*k}, v{VXA}")
        p(f"s_lshl_b32 s{S_RING}, s{S_WAVE}, 13\ns_add_u32 s{S_RING}, s{S_RING}, {L_RING}")
        p(f"v_bfe_u32 v{VT}, v0, 4, 1\nv_lshlrev_b32 v{VT}, 5, v{VT}\nv_and_b32 v{VT+1}, 3, v0\nv_lshl_add_u32 v{VT}, v{VT+1}, 3, v{VT}")
        p(f"v_bfe_u32 v{VT+1}, v0, 2, 2\nv_lshrrev_b32 v{VT+2}, 5, v0")
        p(f"v_lshl_add_u32 v{VT+3}, v{VT+2}, 3, v{VT+1}\nv_lshl_add_u32 v{VT+3}, v{VT+3}, 8, v{VT}")
        p(f"s_lshl1_add_u32 s{S_Y}, s{S_WF}, 0x400\nv_xor_b32 v{VT+4}, s{S_Y}, v{VT+1}\nv_lshl_add_u32 v{VWA}, v{VT+4}, 6, v{VT+3}")
        if c.qperm: p(f"s_lshl1_add_u32 s{S_Z}, s{S_RT}, s{S_WT}\ns_and_b32 s{S_Z}, s{S_Z}, 3\ns_lshl_b32 s{S_Y}, s{S_Z}, 5\nv_xor_b32 v{VWA}, s{S_Y}, v{VWA}\ns_lshl_b32 s{S_Z}, s{S_Z}, 4")
        else: p(f"s_mov_b32 s{S_Z}, 0")
        p(f"v_xor_b32 v{VWA+1}, 64, v{VWA}")
        p(f"v_lshl_add_u32 v{VT+3}, v{VT+2}, 2, v{VT+1}\nv_lshl_add_u32 v{VT+3}, v{VT+3}, 7, v{VT}")
        p(f"v_lshrrev_b32 v{VT+4}, 1, v{VT+1}\nv_lshl_add_u32 v{VT+3}, v{VT+4}, 6, v{VT+3}\nv_add_u32 v{VW2A}, s{S_RING}, v{VT+3}")
        srd(p, R_2, P_W2, 1792 * 896)
        p(f"s_mov_b32 s{S_B1}, s{P_B1}\ns_mov_b32 s{S_B1+1}, s{P_B1+1}")
        self.stamp("setup", sets=(0, 1))
        for it in dq[8*npre:c.pre_dma]: p.extend(it)
        VB1 = 30
        q = p
        VGA = 26
        q(f"v_xor_b32 v{VW2A+1}, 64, v{VW2A}\nv_add_u32 v{VW2A+2}, 0x10000, v{VW2A}\nv_xor_b32 v{VW2A+3}, 64, v{VW2A+2}")
        q(f"v_bfe_u32 v{VGA}, v0, 1, 2\nv_lshlrev_b32 v{VGA}, 10, v{VGA}\nv_lshrrev_b32 v{VGA+1}, 3, v0\nv_lshl_add_u32 v{VGA}, v{VGA+1}, 4, v{VGA}\nv_and_b32 v{VGA+1}, 1, v0\nv_lshl_add_u32 v{VGA}, v{VGA+1}, 3, v{VGA}")
        late = Prog(); q = late
        q(f"s_lshl1_add_u32 s{T+1}, s{S_RT}, s{S_WT}\ns_lshr_b32 s{S_Y}, s{T+1}, 3\ns_lshl_b32 s{S_Y}, s{S_Y}, 12\ns_and_b32 s{S_X}, s{T+1}, 7\ns_lshl_b32 s{S_X}, s{S_X}, 7")
        q(f"s_add_u32 s{S_X}, s{S_X}, s{S_Y}\ns_add_u32 s{S_X}, s{S_X}, {WS_STAT}\nv_add_u32 v{VGA}, s{S_X}, v{VGA}")
        q(f"s_lshl1_add_u32 s{S_Y}, s{S_CT}, s{S_WF}\ns_lshl_b32 s{S_X}, s{S_Y}, 9\ns_add_u32 s{S_X}, s{S_X}, {WS_CS}\nv_xor_b32 v{VB1}, s{S_Z}, v0\nv_lshl_add_u32 v{VGA+1}, v{VB1}, 3, s{S_X}\ns_lshl_b32 s{S_X}, s{S_Y}, 7\nv_lshl_add_u32 v{VB1}, v{VB1}, 1, s{S_X}")
        q(f"s_mul_i32 s{S_ACTW}, s{T+1}, 28\ns_add_u32 s{S_ACTW}, s{S_ACTW}, s{S_Y}\ns_lshl_b32 s{S_ACTW}, s{S_ACTW}, 13\ns_add_u32 s{S_ACTW}, s{S_ACTW}, {WS_ACT}")
        q(f"s_mul_i32 s{S_X}, s{S_Y}, 37\ns_lshr_b32 s{S_X}, s{S_X}, 8\ns_mul_i32 s{S_X}, s{S_X}, 25\ns_add_u32 s{S_X}, s{S_X}, s{S_Y}")
        q(f"s_lshl_b32 s{S_FAW}, s{T+1}, 9\ns_add_u32 s{S_FAW}, s{S_FAW}, s{S_X}\ns_lshl2_add_u32 s{S_FAW}, s{S_FAW}, {WS_FA}")
        q(f"s_lshl2_add_u32 s{S_R2}, s{S_XCD}, s{S_JR}")
        q(f"s_lshl4_add_u32 s{S_FAR}, s{S_R2}, s{S_WAVE}\ns_lshl_b32 s{S_FAR}, s{S_FAR}, 7\ns_add_u32 s{S_FAR}, s{S_FAR}, {WS_FA}")
        q(f"v_lshlrev_b32 v{VL16}, 4, v0")
        if "A" not in c.spoll: q(f"v_min_u32 v{VFL}, 6, v0\nv_lshlrev_b32 v{VFL}, 2, v{VFL}")
        q(f"v_lshrrev_b32 v{VT+4}, 3, v0\nv_mul_u32_u24 v{VT+4}, 896, v{VT+4}\nv_bfe_u32 v{VT+1}, v0, 4, 1\nv_lshlrev_b32 v{VT+1}, 2, v{VT+1}\nv_xor_b32 v{VT+1}, v0, v{VT+1}\nv_and_b32 v{VT+1}, 7, v{VT+1}")
        q(f"v_lshl_add_u32 v{VW2D}, v{VT+1}, 4, v{VT+4}\nv_add_u32 v{VW2D+1}, {7168-1024}, v{VW2D}")
        q(f"s_lshl2_add_u32 s{S_ACTR}, s{S_R2}, s{S_WAVE}\ns_mul_i32 s{S_ACTR}, s{S_ACTR}, {28*2048}\ns_add_u32 s{S_ACTR}, s{S_ACTR}, {WS_ACT}")
        q(f"s_mul_i32 s{S_W2B}, s{S_WAVE}, {448*7}\ns_add_u32 s{S_W2B}, s{S_W2B}, s{S_C2}\ns_lshl_b32 s{S_W2B}, s{S_W2B}, 7")
        q(f"v_mov_b32 v{VT+5}, {L_CNT}\nv_mov_b32 v{VT+4}, 1")
        lateg = [[it] for it in late.items]
        S_AO = list(range(88, 95)); S_WO = [34, 35, 48, 49, 50, 51, 77]; S_ROT = 95
        if c.rot2:
            q = Prog()
            if c.rot2 == 1: q(f"s_mov_b32 s{S_ROT}, s{S_C2}")
            else: q(f"s_lshl1_add_u32 s{S_ROT}, s{S_JR}, s{S_C2}\ns_cmp_ge_u32 s{S_ROT}, 7\ns_cselect_b32 s{T+1}, 7, 0\ns_sub_u32 s{S_ROT}, s{S_ROT}, s{T+1}")
            lateg.append(q.items)
            for i in range(7):
                q = Prog()
                q(f"s_cmp_ge_u32 s{S_ROT}, {7-i}\ns_cselect_b32 s{T+1}, {i-7}, {i}\ns_add_u32 s{T+1}, s{T+1}, s{S_ROT}")
                lateg.append(q.items); q = Prog()
                q(f"s_lshl_b32 s{S_AO[i]}, s{T+1}, 13\ns_add_u32 s{S_AO[i]}, s{S_AO[i]}, s{S_ACTR}\ns_mul_i32 s{S_WO[i]}, s{T+1}, {64*896}\ns_add_u32 s{S_WO[i]}, s{S_WO[i]}, s{S_W2B}")
                lateg += [[it] for it in q.items]
        S_Q = [S_ROT, S_W2B, S_ACTR, S_CT]
        if c.qperm:
            assert c.rot2
            q = Prog()
            for i in range(4): q(f"s_xor_b32 s{S_Q[i]}, s{S_JR}, {i}\ns_mul_i32 s{S_Q[i]}, s{S_Q[i]}, {16*896}")
            lateg += [[it] for it in q.items]
        self.make_tag()
        p(f"v_mov_b32 v{VT}, s{S_TAG}")
        GR = AB
        gloads = f"buffer_load_dwordx2 {v(GR,2)}, v{VGA}, {s(R_WS,4)}, 0 offen sc1\nbuffer_load_dwordx2 {v(GR+2,2)}, v{VGA+1}, {s(R_WS,4)}, 0 offen sc1"
        piece = [0, 1, 2, 0, 1, 2, 0]; pred = {3: 0, 4: 1, 5: 2, 6: 3}
        wtok, rtok = {}, {}
        w2reg = lambda n: W2R + 8 * ((n + 6) % 12)
        def dma_w2(n):
            q = Prog(); gi = n >> 2
            if gi in pred: q.wait(rtok[4 * pred[gi] + (n & 3)])
            q(f"s_add_u32 m0, s{S_RING}, {piece[gi]*SLOT + (n&3)*2048}\n" + (f"s_add_u32 s{S_Z}, s{S_WO[n%7]}, s{S_Q[n//7]}" if c.qperm else f"s_add_u32 s{S_Z}, s{S_WO[n%7]}, {16*(n//7)*896}" if c.rot2 else f"s_add_u32 s{S_Z}, s{S_W2B}, {(64*(n%7) + 16*(n//7))*896}"))
            q(f"buffer_load_dwordx4 v{VW2D}, {s(R_2,4)}, s{S_Z} offen lds")
            q2 = Prog()
            wtok[n] = q2.tok(f"buffer_load_dwordx4 v{VW2D+1}, {s(R_2,4)}, s{S_Z} offen offset:1024 lds")
            return [q.items, q2.items]
        def read_w2(n):
            q = Prog(); pc = piece[n >> 2]
            q.wait(wtok[n])
            for di in range(2):
                for h in range(2):
                    rtok[n] = q.tok(f"ds_read_b64_tr_b16 {v(w2reg(n)+4*di+2*h,2)}, v{VW2A+2*(pc>>1)+di} offset:{(pc&1)*SLOT + (n&3)*2048 + h*1024}")
            return [q.items]
        def slot0_sync(n):
            if not c.sync5 and n != 4: return [[]]
            keep, self.p = self.p, Prog()
            self.lds_wait(VT + 5, VT + 1, n)
            q, self.p = self.p, keep
            return [q.items]
        nw = [0, 0]
        def w2_ops(k, maxread):
            r = []
            for _ in range(k):
                n = nw[0]
                if n >= 24: break
                for m in (n, n + 1):
                    if (m >> 2) in pred and m < 24:
                        need = 4 * pred[m >> 2] + (m & 3)
                        assert m > n or need < maxread
                        while nw[1] <= need and nw[1] < maxread: r += read_w2(nw[1]); nw[1] += 1
                if n in (4, 8): r += slot0_sync(n)
                r += dma_w2(n); nw[0] += 1
            return r
        def reads1(gs):
            n, k = gs >> 2, gs & 3
            base = FR + 16 * (gs % 3); so = (0, 1, 0, 0, 1, 0, 1)[n] * SLOT
            r = []
            for fi in range(2):
                for h in range(2):
                    r.append(I(f"ds_read_b64_tr_b16 {v(base+4*fi+2*h,2)}, v{VWA+fi} offset:{so+16384+k*4096+h*1024}"))
                r.append(I(f"ds_read_b128 {v(base+8+4*fi,4)}, v{VXA+k} offset:{so+fi*4096}"))
            return r
        def mfma1(gs):
            base = FR + 16 * (gs % 3)
            r = []
            for fi, ti in ((0, 0), (0, 1), (1, 0), (1, 1)):
                a = v(ACC + 32 * fi + 16 * ti, 16)
                r.append(I(f"v_mfma_f32_32x32x16_bf16 {a}, {v(base+4*fi,4)}, {v(base+8+4*ti,4)}, {'0' if gs == 0 else a}"))
            return r
        self.stamp("dmapre", sets=(1,))
        nd = c.pre_dma
        nl = (len(lateg) + 3) // 4
        for n in range(7):
            p.wait(ctok[n if n < 5 else 6])
            if n == 0: self.stamp("c0", sets=(1,))
            if n < 6: p("s_waitcnt lgkmcnt(0)\ns_barrier")
            self.stamp(f"bar{n}", sets=(0, 1) if n in (0, 3, 6) else (1,))
            if n in (2, 3, 5):
                for r in list(range(VXA, VXA + 4)) + [VWA, VWA + 1]: p(f"v_add_u32 v{r}, {-3*SLOT if n == 3 else 2*SLOT}, v{r}")
            upto = min(56, 8 * (n + 4), max(nd + c.dma_per[n], 8 * (n + 2)))
            fill = dq[nd:upto]; nd = upto
            if n == c.gran_at:
                fill = fill + [[I(x)] for x in gloads.split("\n")]
                fill += [[I(f"global_load_ushort v{VB1}, v{VB1}, {s(S_B1,2)}")]]
            if n >= 4: assert nd == 56
            if n >= 5:
                fill = fill + w2_ops(c.w2_sched[n - 5], 0)
                assert nw[0] <= (8 if (n == 6 and c.sync5) else 4)
            g0 = 4 * n
            r0, r1, r2, r3 = (reads1(g0 + k) for k in range(4))
            body = []
            if n == 0: body.append(r0 + r1)
            else:
                mm = mfma1(g0 - 1)
                body += [r0, [mm[0]] + r1[:3], [mm[1]] + r1[3:], [mm[2]], [mm[3]]]
            for k, rd in ((0, r2), (1, r3), (2, None)):
                mm = mfma1(g0 + k)
                body += [[mm[0]] + (rd[:3] if rd else []), [mm[1]] + (rd[3:] if rd else []), [mm[2]], [mm[3]]]
            if n == 6 or (n == 5 and c.sync5):
                q = Prog(); self.lds_arrive(VT + 5, VT + 4, q=q)
                body[-3] = body[-3] + q.items
            merged = []
            j = 0
            for i, it in enumerate(body):
                grp = list(it)
                while j < (i + 1) * len(fill) // len(body): grp += fill[j]; j += 1
                merged.append(grp)
            lt = lateg[nl * n: nl * (n + 1)] if n < 4 else []
            p.extend(interleave(merged, lt))
        mm = mfma1(27)
        p.extend(mm[:1])
        self.tagged_check(gloads, [GR + 1, GR + 3], VT + 1)
        self.stamp("granules", sets=(0, 1, 3))
        FA_, FB_ = AB + 8, AB + 12
        q = Prog()
        q(f"s_mov_b32 s{S_X}, 0x01000100\nv_perm_b32 v{FB_}, v{GR}, v{GR}, s{S_X}\nv_lshrrev_b32 v{FB_+1}, 16, v{GR}\nv_xor_b32 v{FB_}, 0x80008000, v{FB_}")
        q(f"v_cvt_pk_bf16_f32 v{VT+1}, v{GR+2}, v{GR+2}\nv_mov_b32 v{FB_+2}, 0\nv_and_b32 v{VT+1}, 0xffff0000, v{VT+1}\nv_mov_b32 v{FB_+3}, 0\nv_sub_f32 v{VT+1}, v{GR+2}, v{VT+1}")
        q(f"v_mov_b32 v{FA_+1}, v{VB1}\nv_cvt_pk_bf16_f32 v{FA_}, v{GR+2}, v{VT+1}\nv_mov_b32 v{FA_+2}, 0\nv_mov_b32 v{FA_+3}, 0\nv_and_b32 v{VT+1}, 0xffff0000, v{GR}")
        q(f"v_permlane32_swap_b32 v{FB_}, v{FB_+2}\nv_permlane32_swap_b32 v{FB_+1}, v{FB_+3}\nv_permlane32_swap_b32 v{FA_}, v{FA_+2}\nv_permlane32_swap_b32 v{FA_+1}, v{FA_+3}")
        q(f"v_rcp_f32 v{VT+1}, v{VT+1}")
        p.extend(interleave(mm[1:], q.items))
        for fi, ti in ((0, 0), (0, 1), (1, 0), (1, 1)):
            a = v(ACC + 32 * fi + 16 * ti, 16)
            p(f"v_mfma_f32_32x32x8_bf16 {a}, {v(FA_+2*fi,2)}, {v(FB_+2*ti,2)}, {a}")
            if (fi, ti) == (0, 0): p(f"v_mul_f32 v{VC1}, {LOG2E}, v{VT+1}\nv_mul_f32 v{VC1+2}, {LOG2E}, v{VT+1}")
            if (fi, ti) == (0, 1): p(f"v_permlane32_swap_b32 v{VC1}, v{VC1+2}")
            if (fi, ti) == (1, 0) and c.mish_pk: p(f"v_mov_b32 v{VC1+1}, v{VC1}\nv_mov_b32 v{VC1+3}, v{VC1+2}")
        MT, MO = AB + 16, AB + 48
        def mish_group(a, ti, o, tset):
            t = MT + 16 * tset; u = t + 8
            r = []
            if c.mish_pk:
                for i in range(0, 8, 2): r.append(f"v_pk_mul_f32 {v(t+i,2)}, {v(a+i,2)}, {v(VC1+2*ti,2)}")
                for i in range(8): r.append(f"v_exp_f32 v{t+i}, v{t+i}")
                for i in range(0, 8, 2): r.append(f"v_pk_fma_f32 {v(u+i,2)}, {v(t+i,2)}, 0.5, 1.0 op_sel_hi:[1,0,0]")
                for i in range(0, 8, 2): r.append(f"v_pk_fma_f32 {v(u+i,2)}, {v(t+i,2)}, {v(u+i,2)}, 1.0 op_sel_hi:[1,1,0]")
                for i in range(8): r.append(f"v_rcp_f32 v{u+i}, v{u+i}")
                for i in range(0, 8, 2): r.append(f"v_pk_fma_f32 {v(u+i,2)}, {v(a+i,2)}, {v(u+i,2)}, {v(a+i,2)} neg_lo:[1,0,0] neg_hi:[1,0,0]")
            else:
                for i in range(8): r.append(f"v_mul_f32 v{t+i}, v{a+i}, v{VC1+2*ti}")
                for i in range(8): r.append(f"v_exp_f32 v{t+i}, v{t+i}")
                for i in range(8): r.append(f"v_fma_f32 v{u+i}, v{t+i}, 0.5, 1.0")
                for i in range(8): r.append(f"v_fma_f32 v{u+i}, v{t+i}, v{u+i}, 1.0")
                for i in range(8): r.append(f"v_rcp_f32 v{u+i}, v{u+i}")
                for i in range(8): r.append(f"v_fma_f32 v{u+i}, -v{a+i}, v{u+i}, v{a+i}")
            for i in range(4): r.append(f"v_cvt_pk_bf16_f32 v{o+i}, v{u+2*i}, v{u+2*i+1}")
            return [I(x) for x in r]
        stok = {}
        def own_flag(st, q):
            q.wait(stok[st])
            q(f"s_mov_b64 exec, 1\nbuffer_store_dword v{VT}, off, {s(R_WS,4)}, s{S_FAW} offset:{512*st} {c.fa_st}\ns_mov_b64 exec, -1")
        body = []
        gi = 0
        for st in range(4):
            for ti in range(2):
                o = MO + 4 * (gi % 4)
                body += mish_group(ACC + 32 * (st >> 1) + 16 * ti + 8 * (st & 1), ti, o, gi & 1)
                q = Prog()
                stok[st] = q.tok(f"buffer_store_dwordx4 {v(o,4)}, v{VL16}, {s(R_WS,4)}, s{S_ACTW} offen offset:{(st&1)*2048+ti*1024} {c.act_st}")
                if gi == 3: q(f"s_add_u32 s{S_ACTW}, s{S_ACTW}, 4096")
                if ti == 1: self.stamp(f"s{st}", q, sets=(3,))
                if ti == 1 and st >= c.flag_lag: own_flag(st - c.flag_lag, q); self.stamp(f"f{st-c.flag_lag}", q, sets=(3,))
                body.append(q.items)
                gi += 1
        k0 = int(len(body) * c.mish_skip)
        p.extend(interleave(body[:k0], [])); p.extend(interleave(body[k0:], w2_ops(c.w2_sched[2], 12) + [[]]))
        self.stamp("mish", sets=(0, 4))
        rest = list(range(max(0, 4 - c.flag_lag), 4))
        def flags_rest():
            for st in rest: own_flag(st, p)
        if c.prio_a1: p(f"s_setprio {c.prio_a1}")
        def load_act(n):
            p(f"s_add_u32 s{S_Y}, s{S_AO[n%7]}, {(n//7)*2048}" if c.rot2 else f"s_add_u32 s{S_Y}, s{S_ACTR}, {(4*(n%7) + n//7)*2048}")
            for ti in range(2):
                p(f"buffer_load_dwordx4 {v(AB+8*(n%8)+4*ti,4)}, v{VL16}, {s(R_WS,4)}, s{S_Y} offen offset:{ti*1024} {c.act_ld}")
        def next_flags():
            f = self.flag_load("A", S_FAR, 7, VFL)
            return f
        def reads_upto(m):
            while nw[1] < min(m, 28): p.extend(read_w2(nw[1])[0]); nw[1] += 1
        def dmas_upto(m):
            while nw[0] < min(m, 28):
                if nw[0] in (4, 8): p.extend(slot0_sync(nw[0])[0])
                if nw[0] >= 12: assert nw[1] > nw[0] - 12
                for it in dma_w2(nw[0]): p.extend(it)
                nw[0] += 1
        D = c.adepth
        lead = c.flead
        fl = None
        na = 0
        for op in c.pre_loop.split():
            k = int(op[1:]) if len(op) > 1 else 0
            if op[0] == "R": reads_upto(k)
            elif op[0] == "D": dmas_upto(k)
            elif op[0] == "F":
                if rest: own_flag(rest.pop(0), p)
            elif op[0] == "W": p("s_waitcnt lgkmcnt(0)")
            elif op[0] == "L": fl = next_flags()
            elif op[0] == "C":
                self.stamp("w2pre", sets=(0, 3))
                self.flag_check(fl, VT + 1, on_miss=flags_rest if rest else None)
                self.stamp("act0", sets=(0, 2, 3))
                p(f"s_add_u32 s{S_FAR}, s{S_FAR}, 512"); fl = None
            elif op[0] == "A":
                while na < k: load_act(na); na += 1
            elif op[0] == "V": p("s_waitcnt vmcnt(0)")
            if op[0] not in "L": self.stamp(op + "_" + str(len(self.stamp_names["A"])), sets=(4,))
        assert na == D and nw[1] >= c.rdepth and not rest
        M0 = nw[0]
        assert (fl is not None) == (7 - D - lead < 0)
        if c.prio_a1: p("s_setprio 0")
        self.stamp("flagA", sets=(0, 2, 3))
        assert D <= 7 and c.rdepth <= 11
        main = p
        for n in range(28):
            mm = []
            for di, ti in ((0, 0), (1, 0), (0, 1), (1, 1)):
                a = v(ACC + 32 * di + 16 * ti, 16)
                mm.append(I(f"v_mfma_f32_32x32x16_bf16 {a}, {v(w2reg(n)+4*di,4)}, {v(AB+8*(n%8)+4*ti,4)}, {'0' if n == 0 else a}"))
            groups = []
            def grab(fn):
                nonlocal p
                p = self.p = Prog(); fn(); its = p.items; p = self.p = main
                return its
            def split(its):
                cur = []
                for it in its:
                    cur.append(it)
                    if isinstance(it, I) and it.kind in ("vmem", "ds", "valu"): groups.append(cur); cur = []
                if cur: groups.append(cur)
            split(grab(lambda: reads_upto(n + 1 + c.rdepth)))
            if n + D < 28:
                if (n + D) % 7 == 0:
                    groups.append(grab(lambda: (self.flag_check(fl, VT + 1), p(f"s_add_u32 s{S_FAR}, s{S_FAR}, 512"), self.stamp(f"act{(n+D)//7}", sets=(0, 2)))))
                split(grab(lambda: load_act(n + D)))
            split(grab(lambda: dmas_upto(min(nw[1] + 11, max(n + 1 + c.w2_lead, M0 + int((n + 1) * c.w2_rate))))))
            if n + D + lead < 28 and (n + D + lead) % 7 == 0:
                def nf():
                    nonlocal fl
                    if "A" in c.spoll: p("s_waitcnt lgkmcnt(0)")
                    fl = next_flags()
                groups.append(grab(nf))
            if n == 22:
                split(grab(lambda: (p(f"v_and_b32 v{VT}, 31, v0\nv_lshrrev_b32 v{VT+1}, 5, v0\nv_and_b32 v{VT+2}, 7, v0\nv_xor_b32 v{VT+1}, v{VT+1}, v{VT+2}\nv_bfe_u32 v{VT+2}, v0, 4, 1\nv_lshl_or_b32 v{VT+1}, v{VT+2}, 3, v{VT+1}"),
                      p(f"v_lshlrev_b32 v{VT+1}, 4, v{VT+1}\nv_lshl_add_u32 v{VT+1}, v{VT}, 8, v{VT+1}\nv_add_u32 v{VD}, s{S_RING}, v{VT+1}"))))
            if n == 23: split(grab(lambda: [p(f"v_xor_b32 v{VD+k}, {32*k}, v{VD}") for k in range(1, 8)]))
            if c.g2_mix:
                isv = lambda gr: any(isinstance(it, I) and it.kind == "vmem" for it in gr)
                ds = [gr for gr in groups if any(isinstance(it, I) and it.mn.startswith("ds_read_b64_tr") for it in gr)]
                rest = [gr for gr in groups if not any(gr is x for x in ds)]
                for k in range(4):
                    p.extend([mm[k]])
                    for gr in ds[k * len(ds) // 4:(k + 1) * len(ds) // 4]: p.extend(gr)
                    for gr in rest[k * len(rest) // 4:(k + 1) * len(rest) // 4]: p.extend(gr)
            else:
                p.extend(mm)
                for gr in groups: p.extend(gr)
            if n in (0, 3, 6, 10, 13, 17, 20, 24): self.stamp(f"n{n}", sets=(2, 4) if n in (0, 6) else (2,))
        self.stamp("gemm2", sets=(0, 2, 3))
        for ti in range(2):
            for di in range(2):
                for g4 in range(4):
                    p(f"ds_write_b128 v{VD+4*di+g4}, {v(ACC+32*di+16*ti+4*g4,4)} offset:{ti*SLOT}")
        p("s_waitcnt lgkmcnt(0)\ns_barrier")
        self.stamp("barF")
        self.stamp_flush(1)
        p("s_endpgm")

    def gather_table(self):
        import numpy as np
        def rb(l):
            u = np.array([l], np.float32).view(np.uint32)
            return int((((u + 0x7FFF + ((u >> 16) & 1)) >> 16) << 16).view(np.float32)[0])
        rows = list(range(8)) + list(range(128, 136)) + [256, 258, 260, 262, 384, 386, 388, 390, 512, 516, 640, 644, 768, 772, 896, 900] + [1024 + 128 * k for k in range(9)]
        pos = {}
        for i, a in enumerate(rows):
            tile, row = i >> 4, i & 15
            for col in range(16): pos[a + 8 * col] = tile * 1024 + ((row >> 2) * 16 + col) * 16 + (row & 3) * 4
        zero = 2 * 1024 + 48 * 16
        at = lambda l: zero if l < 0 else pos[rb(l)]
        words = []
        for mh in range(2):
            for half in range(2):
                for lane in range(64):
                    hiA, hiB = 2047 - 8 * (64 * mh + lane), 1023 - 8 * (64 * mh + lane)
                    e = [at(hiA - i) for i in (0, 3, 4, 10)] + [at(hiB - i) for i in range(11)] + [0]
                    e = e[8 * half: 8 * half + 8]
                    words += [e[2 * k] | (e[2 * k + 1] << 16) for k in range(4)]
        return words

    def role_b(self):
        p, c = self.p, self.c
        p.label("L_roleB")
        self.role_start(); self.stamp_begin("B")
        S_BW, S_CHN, S_MH, S_LDT, S_DSK, S_FXR, S_XTR, S_STW, S_FSW, S_FSR, S_STR, S_XO, S_STA, S_STF = range(64, 78)
        S_X, S_Y = 78, 79
        S_FXW, S_XTW, S_P0, S_P1 = 92, 93, 94, 95
        T = S_T
        VL16, VP, VGT, VG, VSW, VSR, VT = 1, 2, 8, 16, 46, 47, 50
        VRW, VTW, VTZ, VTA, VUA, VUW, VCN, VONE, VEXW, VEXR, VTAG, VUZ, VFL = range(32, 45)
        XA, XS, XD, XO = 100, 104, 8, 120
        if c.prio_b: p(f"s_setprio {c.prio_b}")
        p(f"s_sub_u32 s{S_BW}, s{S_WAVE}, 4\ns_mul_i32 s{S_CP}, s{S_XCD}, 28\ns_add_u32 s{S_CP}, s{S_CP}, s{S_J}\ns_lshl_b32 s{T}, s{S_CP}, 2")
        p(f"s_add_u32 s{T+1}, s{T}, s{S_BW}\ns_lshl_b32 s{T+1}, s{T+1}, 8\nv_lshl_add_u32 v{VT}, v0, 2, s{T+1}")
        p(f"s_load_dword s{S_LDT}, {s(P_LDT,2)}, s{T}")
        for i, ptr in enumerate((P_ARE, P_AIM, P_BRE, P_BIM, P_CRE, P_CIM)):
            p(f"global_load_dword v{VP+i}, v{VT}, {s(ptr,2)}")
        p(f"s_load_dword s{S_DSK}, {s(P_DSK,2)}, s{T}")
        self.load_epoch()
        if c.warm_w:
            p(f"s_lshr_b32 s{S_X}, s{T+1}, 8\ns_mul_i32 s{S_X}, s{S_X}, {14*128}\nv_min_u32 v{VT}, 13, v0\nv_lshl_add_u32 v{VT}, v{VT}, 7, s{S_X}\ns_mov_b64 exec, 0xffff")
            if "1" in c.warm_w: p(f"global_load_dword v62, v{VT}, {s(P_W1,2)}")
            if "2" in c.warm_w: p(f"global_load_dword v63, v{VT}, {s(P_W2,2)}")
            p("s_mov_b64 exec, -1")
        if c.warm_t == 2:
            lk = self.lab("not")
            p(f"s_cmp_lg_u32 s{S_BW}, 3\ns_cbranch_scc1 {lk}")
            p.alt_begin(); self.touch_pages(VT, 62); p.alt_end(); p.label(lk)
        if c.prio_b != c.prio_b2: p(f"s_setprio {c.prio_b2}")
        p(f"s_lshr_b32 s{S_CHN}, s{S_BW}, 1\ns_and_b32 s{S_MH}, s{S_BW}, 1\nv_lshlrev_b32 v{VL16}, 4, v0")
        p(f"s_lshl3_add_u32 s{S_STW}, s{T+1}, {WS_ST}")
        srd(p, R_LD, P_U, 2048 * 896); srd(p, R_2, P_OUT, 2048 * 896)
        if c.pf_at >= 0: p(f"s_mov_b32 s0, s{P_W2}\ns_mov_b32 s1, s{P_W2+1}")
        p(f"s_lshl1_add_u32 s{S_Y}, s{S_XF}, s{S_CHN}\ns_lshl_b32 s{S_X}, s{S_Y}, 1\nv_lshrrev_b32 v{VT+2}, 5, v0\nv_and_b32 v{VT+3}, 1, v0\nv_lshlrev_b32 v{VT+3}, 2, v{VT+3}\nv_bitop3_b32 v{VT+2}, v{VT+2}, s{S_X}, v{VT+3} bitop3:0x96")
        p(f"v_bfe_u32 v{VT+3}, v0, 3, 2\nv_lshl_add_u32 v{VT+2}, v{VT+2}, 2, v{VT+3}\nv_and_b32 v{VT+3}, 7, v0\nv_lshl_add_u32 v{VT+2}, v{VT+3}, 8, v{VT+2}\ns_add_u32 s{S_X}, s{S_MH}, 8\ns_lshl_b32 s{S_X}, s{S_X}, 13\nv_lshl_add_u32 v{XA}, v{VT+2}, 2, s{S_X}")
        for k in range(1, 4): p(f"v_xor_b32 v{XA+k}, {16*k}, v{XA}")
        p(f"v_lshrrev_b32 v{VT+2}, 3, v0\nv_lshlrev_b32 v{VT+2}, 13, v{VT+2}\nv_lshl_add_u32 v{XS}, v{VT+3}, 4, v{VT+2}")
        p(f"s_lshl1_add_u32 s{S_X}, s{S_RT}, s{S_MH}\ns_lshl2_add_u32 s{S_Y}, s{S_C2}, s{S_Y}")
        p(f"s_lshl_b32 s{S_XTW}, s{S_Y}, 9\ns_add_u32 s{S_XTW}, s{S_XTW}, s{S_X}\ns_lshl_b32 s{S_XTW}, s{S_XTW}, 7\ns_add_u32 s{S_XTW}, s{S_XTW}, {WS_XT}")
        p(f"s_lshr_b32 s{T}, s{S_X}, 3\ns_lshl2_add_u32 s{S_FXW}, s{S_Y}, s{T}\ns_lshl_b32 s{S_FXW}, s{S_FXW}, 5\ns_and_b32 s{S_X}, s{S_X}, 7\ns_add_u32 s{S_FXW}, s{S_FXW}, s{S_X}\ns_lshl2_add_u32 s{S_FXW}, s{S_FXW}, {WS_FX}")
        p(f"s_mov_b32 s{S_P0}, 0x05040100\ns_mov_b32 s{S_P1}, 0x07060302")
        late = Prog(); q = late
        q(f"s_lshl2_add_u32 s{S_R2}, s{S_XCD}, s{S_JR}")
        q(f"s_lshr_b32 s{T}, s{S_CP}, 3\ns_lshl2_add_u32 s{S_FXR}, s{T}, s{S_BW}\ns_lshl_b32 s{S_FXR}, s{S_FXR}, 7\ns_add_u32 s{S_FXR}, s{S_FXR}, {WS_FX}\ns_lshr_b32 s{T}, s{T}, 1")
        q(f"s_lshl3_add_u32 s{S_XTR}, s{S_CP}, s{S_BW}\ns_lshl_b32 s{S_XTR}, s{S_XTR}, 10\ns_add_u32 s{S_XTR}, s{S_XTR}, {WS_XT}")
        q(f"s_mul_i32 s{S_FSW}, s{S_BW}, 14\ns_add_u32 s{S_FSW}, s{S_FSW}, s{T}\ns_lshl_b32 s{S_FSW}, s{S_FSW}, 7\ns_and_b32 s{T+1}, s{S_CP}, 15\ns_add_u32 s{S_FSW}, s{S_FSW}, s{T+1}\ns_lshl2_add_u32 s{S_FSW}, s{S_FSW}, {WS_FS}")
        q(f"s_lshl1_add_u32 s{T}, s{S_C2}, s{S_CHN}")
        q(f"s_lshr_b32 s{T+1}, s{S_R2}, 3\ns_mul_i32 s{S_FSR}, s{T+1}, 14\ns_add_u32 s{S_FSR}, s{S_FSR}, s{T}\ns_lshl2_add_u32 s{S_FSR}, s{S_FSR}, s{S_JR}\ns_lshl_b32 s{S_FSR}, s{S_FSR}, 7\ns_add_u32 s{S_FSR}, s{S_FSR}, {WS_FS}")
        q(f"s_lshl_b32 s{S_STR}, s{T}, 9\ns_add_u32 s{S_STR}, s{S_STR}, s{S_R2}\ns_lshl1_add_u32 s{S_STR}, s{S_STR}, s{S_MH}\ns_lshl_b32 s{S_STR}, s{S_STR}, 7\ns_add_u32 s{S_STR}, s{S_STR}, {WS_ST}")
        q(f"s_lshl3_add_u32 s{S_XO}, s{S_R2}, s{S_MH}\ns_and_b32 s{S_STF}, s{S_XO}, 63\ns_mul_i32 s{S_XO}, s{S_XO}, {8*896}\ns_lshl_b32 s{T}, s{T}, 6\ns_add_u32 s{S_XO}, s{S_XO}, s{T}")
        q(f"s_lshl_b32 s{T+1}, s{T+1}, 8\ns_add_u32 s{S_STF}, s{S_STF}, s{T+1}\ns_lshl4_add_u32 s{S_STF}, s{S_STF}, {WS_STAT}")
        q(f"s_lshl_b32 s{S_STA}, s{S_BW}, 12\ns_add_u32 s{S_STA}, s{S_STA}, {WS_STAT}")
        q(f"v_and_b32 v{VT}, 15, v0\nv_lshrrev_b32 v{VT+1}, 4, v0")
        q(f"s_mul_i32 s{T}, s{S_BW}, 8448\ns_mov_b32 m0, s{T}\nv_mul_u32_u24 v{VT+2}, 528, v{VT}\nv_and_b32 v{VT+3}, 256, v{VL16}\nv_add3_u32 v{VT+2}, v{VT+2}, v{VT+3}, s{T}\nv_lshrrev_b32 v{VT+3}, 5, v0\nv_lshl_add_u32 v{VSR}, v{VT+3}, 4, v{VT+2}")
        if not c.addtid: q(f"v_lshl_add_u32 v{VSW}, v0, 3, s{T}")
        q(f"s_lshl_b32 s{T}, s{S_BW}, 13\nv_add_u32 v{VEXW}, s{T}, v{VL16}")
        q(f"s_mul_i32 s{T}, s{S_BW}, 3072\ns_add_u32 s{T}, s{T}, {L_RAW}\nv_add_u32 v{VRW}, s{T}, v{VL16}")
        q(f"s_mul_i32 s{T}, s{S_CHN}, 16640\ns_add_u32 s{T}, s{T}, {L_TAB}\ns_lshl_b32 s{T+1}, s{S_MH}, 10\ns_add_u32 s{T+1}, s{T+1}, s{T}\nv_add_u32 v{VTW}, s{T+1}, v{VL16}")
        q(f"v_lshrrev_b32 v{VT+2}, 1, v0\nv_mul_u32_u24 v{VT+2}, 4160, v{VT+2}\nv_and_b32 v{VT+3}, 16, v{VL16}\nv_add3_u32 v{VTZ}, v{VT+2}, v{VT+3}, s{T}")
        q(f"v_sub_u32 v{VT+2}, 3, v{VT}\nv_and_b32 v{VT+2}, 3, v{VT+2}\nv_mul_u32_u24 v{VT+3}, {4160-2}, v{VT+2}\nv_lshl_add_u32 v{VT+3}, v{VT+1}, 4, v{VT+3}\nv_lshlrev_b32 v{VT+2}, 1, v{VT}\nv_sub_u32 v{VT+3}, v{VT+3}, v{VT+2}")
        q(f"s_lshl_b32 s{T+1}, s{S_MH}, 8\ns_sub_u32 s{T}, s{T}, s{T+1}\ns_add_u32 s{T}, s{T}, {2*(2031-1792-96)}\nv_add_u32 v{VTA}, s{T}, v{VT+3}")
        q(f"s_mul_i32 s{S_X}, s{S_CHN}, 4608\ns_sub_u32 s{T}, s{S_X}, s{T+1}\ns_add_u32 s{T}, s{T}, {L_U+2*(240-96)}\nv_lshlrev_b32 v{VT+2}, 5, v{VT}\nv_lshl_add_u32 v{VT+2}, v{VT+1}, 4, v{VT+2}\nv_add_u32 v{VUA}, s{T}, v{VT+2}")
        q(f"s_add_u32 s{S_X}, s{S_X}, s{T+1}\ns_add_u32 s{S_X}, s{S_X}, {L_U}\nv_lshl_add_u32 v{VUZ}, v0, 2, s{S_X}")
        q(f"s_lshl_b32 s{T}, s{S_BW}, 10\ns_add_u32 s{T}, s{T}, {L_U+512}\nv_add_u32 v{VUW}, s{T}, v{VL16}")
        q(f"s_lshl_b32 s{T}, s{S_BW}, 11\ns_add_u32 s{T}, s{T}, {L_EX}\nv_add_u32 v{VEXR}, s{T}, v{VL16}")
        VZ = 56
        for i in range(4): q(f"v_mov_b32 v{VZ+i}, 0")
        q(f"v_mov_b32 v{VCN}, {L_CNT}\nv_mov_b32 v{VONE}, 1")
        if "X" not in c.spoll: q(f"v_min_u32 v{VFL}, 7, v0\nv_lshlrev_b32 v{VFL}, 2, v{VFL}")
        k = int(len(late.items) * c.b_pre)
        p.extend(late.items[:k]); late.items = late.items[k:]
        T = 90
        self.make_tag()
        p(f"s_lshl_b32 s{T}, s{S_CHN}, 4\ns_lshr_b32 s{S_LDT}, s{S_LDT}, s{T}\ns_lshl_b32 s{S_LDT}, s{S_LDT}, 16\ns_lshr_b32 s{S_DSK}, s{S_DSK}, s{T}\ns_lshl_b32 s{S_DSK}, s{S_DSK}, 16")
        VDT = 60
        p(f"v_mov_b32 v{VDT}, {LOG2E}\nv_mul_f32 v{VDT}, s{S_LDT}, v{VDT}\nv_exp_f32 v{VDT}, v{VDT}\nv_mov_b32 v{VTAG}, s{S_TAG}\nv_cvt_pk_bf16_f32 v{VDT}, v{VDT}, v{VDT}\nv_and_b32 v{VDT}, 0xffff0000, v{VDT}\nv_mov_b32 v{VDT+1}, v{VDT}")
        self.stamp("pre", sets=(0, 1))
        Z1, Z2, Z4, Z8, Z128, XB, XC, XDD, TM = 64, 68, 72, 76, 80, 84, 88, 92, 96
        AL, BE, UB, CV = 108, 110, 112, 120
        YF, XF, KV, KA = 128, 160, 128, 244
        units = []
        def unpack(d, src): p(f"v_lshlrev_b32 v{d}, 16, v{src}\nv_and_b32 v{d+1}, 0xffff0000, v{src}")
        def mul2(d, a, b, pk):
            if pk: p(f"v_pk_mul_f32 {v(d,2)}, {v(a,2)}, {v(b,2)}")
            else: p(f"v_mul_f32 v{d}, v{a}, v{b}\nv_mul_f32 v{d+1}, v{a+1}, v{b+1}")
        def cmul_(d, a, b, pk):
            assert d != b
            mul2(TM, a, b, pk); mul2(TM + 2, a, b + 2, pk)
            if pk:
                p(f"v_pk_fma_f32 {v(d,2)}, {v(a+2,2)}, {v(b+2,2)}, {v(TM,2)} neg_lo:[1,0,0] neg_hi:[1,0,0]")
                p(f"v_pk_fma_f32 {v(d+2,2)}, {v(a+2,2)}, {v(b,2)}, {v(TM+2,2)}")
            else:
                for m in range(2): p(f"v_fma_f32 v{d+m}, -v{a+2+m}, v{b+2+m}, v{TM+m}")
                for m in range(2): p(f"v_fma_f32 v{d+2+m}, v{a+2+m}, v{b+m}, v{TM+2+m}")
        def cmul(d, a, b): units.append((8, lambda pk: cmul_(d, a, b, pk)))
        def put(e, a, conj):
            ng = "-" if conj else ""
            units.append((2, lambda pk: (have.add(e), p(f"v_cvt_pk_bf16_f32 v{KV+2*e}, v{a}, {ng}v{a+2}\nv_cvt_pk_bf16_f32 v{KV+2*e+1}, v{a+1}, {ng}v{a+3}"))))
        have = {0}
        def getfr(base):
            return [I(f"ds_read_b128 {v(base+4*fr,4)}, v{VSR} offset:{fr*32}") for fr in range(8)]
        def kmfma(tile, base):
            a = v(KA + 4 * tile, 4)
            return [I(f"v_mfma_f32_16x16x32_bf16 {a}, {v(base+4*fr,4)}, {v(YF+4*fr,4)}, {'0' if fr == 0 else a}") for fr in range(8)]
        def zpow_(d, lg, pk):
            for m in range(2):
                if lg: p(f"v_ldexp_f32 v{TM+m}, v{AL+m}, {lg}\nv_ldexp_f32 v{TM+2+m}, v{BE+m}, {lg}")
                a, b = (TM + m, TM + 2 + m) if lg else (AL + m, BE + m)
                p(f"v_exp_f32 v{TM+m}, v{a}\nv_fract_f32 v{TM+2+m}, v{b}")
            for m in range(2): p(f"v_cos_f32 v{d+m}, v{TM+2+m}\nv_sin_f32 v{d+2+m}, v{TM+2+m}")
            mul2(d, d, TM, pk); mul2(d + 2, d + 2, TM, pk)
        def zpow(d, lg): units.append((22, lambda pk: zpow_(d, lg, pk)))
        p(f"v_mov_b32 v{KV}, 0x3f80\nv_mov_b32 v{KV+1}, 0x3f80")
        unpack(AL, VP); unpack(BE, VP + 1)
        self.stamp("params", sets=(0, 1))
        mul2(AL, AL, VDT, True); mul2(BE, BE, VDT, True)
        for m in range(2): p(f"v_mul_f32 v{AL+m}, {LOG2E}, v{AL+m}\nv_mul_f32 v{BE+m}, 0.15915494, v{BE+m}")
        early_done = [None]
        zpow(Z8, 3)
        put(1, Z8, False)
        prev = Z8
        for r in range(2, 16): cmul(XB, prev, Z8); prev = XB; put(r, XB, False)
        zpow(Z1, 0); zpow(Z128, 7)
        units.append((8, lambda pk: [unpack(UB + 2 * i, VP + 2 + i) for i in range(4)]))
        cmul(XC, UB, UB + 4)
        units.append((4, lambda pk: (mul2(XC, XC, VDT, pk), mul2(XC + 2, XC + 2, VDT, pk))))
        cmul(XB, XC, Z128)
        put(16, XC, True); put(24, XB, True)
        prev = XB
        for r in range(1, 8):
            cmul(XC, XC, Z1); put(16 + r, XC, True)
            cmul(XDD, prev, Z1); prev = XDD; put(24 + r, XDD, True)
        for it in late.items: units.append((1, lambda pk, it=it: p.extend([it])))
        cmul(Z2, Z1, Z1); cmul(Z4, Z2, Z2)
        for k in range(2):
            cmul(XB, XB, Z128); put(32 + 4 * k, XB, True); prev = XB
            for r in range(1, 4): cmul(XC, prev, Z2); prev = XC; put(32 + 4 * k + r, XC, True)
        for k in range(4):
            cmul(XB, XB, Z128); put(40 + 2 * k, XB, True)
            cmul(XC, XB, Z4); put(41 + 2 * k, XC, True)
        for k in range(9): cmul(XB, XB, Z128); put(48 + k, XB, True)
        total = sum(u[0] for u in units)
        SG, SR = 64, 80
        sloads = "\n".join(f"buffer_load_dwordx4 {v(SG+4*i,4)}, v{VL16}, {s(R_WS,4)}, s{S_STA} offen offset:{1024*i} sc1" for i in range(4))
        cuts = [c.kg_pre] + [c.kg_pre + (total - c.kg_pre) * (i - c.kg_x) / (c.kg_ints - c.kg_x) for i in range(1, 7)]
        lops = []
        for e in range(57):
            if c.addtid: it = [I(f"ds_write_addtid_b32 v{KV+2*e+m} offset:{(e&15)*528+256*m}") for m in range(2)]
            else: it = [I(f"ds_write_b64 v{VSW}, {v(KV+2*e,2)} offset:{(e&15)*528}")]
            if 40 <= e < 48: it.append(kmfma(0, XF)[e - 40])
            if e >= 49: it.append(kmfma(1, XF + 32)[e - 49])
            if e in (15, 31, 47, 56): it += getfr({15: YF, 31: XF, 47: XF + 32, 56: XF}[e])
            lops.append(it)
        nl = [0]
        def lds_upto(m):
            while nl[0] < m:
                assert nl[0] in have
                p.extend(lops[nl[0]]); nl[0] += 1
        done = 0; nb = 0; fx = [None]; xt = [None]
        def barrier():
            nonlocal nb
            lds_upto(c.lds_cut[nb])
            if nb == 0 and nl[0]: assert nl[0] % 16 == 0; p("s_waitcnt lgkmcnt(0)")
            if 1 <= nb <= 4: assert c.lds_cut[nb] == c.lds_cut[0]
            if nb == c.fx_at: p.wait(xt[0]); self.flag_store(S_FXW, VTAG)
            self.stamp(f"atbar{nb}", sets=(0, 1) if nb == 0 else (1,))
            if nb == 5: p.wait(init[0])
            p("s_barrier")
            if nb == 0:
                if c.prio_xt != c.prio_b2: p(f"s_setprio {c.prio_xt}")
                for i in range(8): p(f"ds_read_b32 v{XD+i}, v{XA+(i>>1)} offset:{i*128}")
                for e in range(2):
                    for j in range(4): p(f"v_perm_b32 v{XO+4*e+j}, v{XD+2*j+1}, v{XD+2*j}, s{S_P1 if e else S_P0}")
                    xt[0] = p.tok(f"buffer_store_dwordx4 {v(XO+4*e,4)}, v{XS}, {s(R_WS,4)}, s{S_XTW} offen sc1")
                    if e == 0: p(f"s_add_u32 s{S_XTW}, s{S_XTW}, 4096")
                if c.prio_xt != c.prio_b2: p(f"s_setprio {c.prio_b2}")
            if nb == 4:
                p(f"ds_write_b32 v{VUZ}, v{VZ}"); init.append(p.tok(f"ds_write_b64 v{VCN}, {v(VZ,2)}"))
                self.stamp("bar4", sets=(0, 3))
            if nb == c.gt_at:
                p(f"s_lshl_b32 s{T}, s{S_MH}, 11\ns_add_u32 s{T}, s{T}, L_gtab-L_pc")
                for h in range(2): p(f"buffer_load_dwordx4 {v(VGT+4*h,4)}, v{VL16}, {s(R_PC,4)}, s{T} offen offset:{1024*h}")
            if nb == c.st_at:
                assert done == total
                p(sloads)
            if nb == c.pf_at:
                p(f"s_lshl2_add_u32 s{T}, s{S_J}, s{S_BW}\ns_mul_i32 s{T}, s{T}, {112*128}\nv_min_u32 v62, 55, v0\nv_lshl_add_u32 v62, v62, 7, s{T}\nv_add_u32 v63, {56*128}, v62")
                p(f"global_load_dword v62, v62, s[0:1]\nglobal_load_dword v63, v63, s[0:1]")
            nb += 1
        init = []
        for cost, fn in units:
            while nb < 6 and done >= cuts[nb]: barrier()
            fn(nb == 0); done += cost
            if nb == 0 and c.fuse0:
                while nl[0] < c.lds_cut[0] and nl[0] in have: lds_upto(nl[0] + 1)
        while nb < 6: barrier()
        if c.prio_b3 != c.prio_b2: p(f"s_setprio {c.prio_b3}")
        XR, XR2 = 2, 52
        fx = self.flag_load("X", S_FXR, 8, VFL)
        if c.prio_at < c.fx_chk: lds_upto(c.prio_at); p(f"s_setprio {c.prio_b4}")
        lds_upto(max(nl[0], c.fx_chk))
        self.flag_check(fx, VT)
        self.stamp("fx", sets=(0, 3))
        p(f"buffer_load_dwordx4 {v(XR,4)}, v{VL16}, {s(R_WS,4)}, s{S_XTR} offen sc1\ns_add_u32 s{S_XTR}, s{S_XTR}, 4096\nbuffer_load_dwordx4 {v(XR2,4)}, v{VL16}, {s(R_WS,4)}, s{S_XTR} offen sc1")
        lds_upto(57)
        p(f"s_mul_i32 s{T}, s{S_CHN}, 6144\ns_add_u32 s{T}, s{T}, {L_RAW}\ns_cmp_eq_u32 s{S_MH}, 0\ns_cselect_b32 s{S_DSK}, s{S_DSK}, 0")
        p(f"v_mov_b32 v{VT}, s{S_DSK}\nv_cmp_eq_u32 vcc, 0, v0\nv_mov_b32 v{VT+1}, s{T}\nv_cndmask_b32 v{VT}, 0, v{VT}, vcc\nv_add_f32 v{KA}, v{KA}, v{VT}")
        p(f"ds_write_b128 v{VRW}, {v(KA,4)}\nv_cmp_gt_u32 vcc, 48, v0\nds_write_b128 v{VRW}, {v(KA+4,4)} offset:1024")
        p.extend(kmfma(2, XF))
        T = S_T
        for k in range(15):
            p(f"v_add_u32_sdwa v{VG+k}, v{VT+1}, v{VGT+(k>>1)} dst_sel:DWORD dst_unused:UNUSED_PAD src0_sel:DWORD src1_sel:WORD_{k&1}")
        p(f"v_cndmask_b32 v{KA+8}, 0, v{KA+8}, vcc\nds_write_b128 v{VRW}, {v(KA+8,4)} offset:2048")
        self.lds_arrive(VCN, VONE, 4)
        self.stamp("kgen", sets=(0, 3))
        if c.prio_b4 != c.prio_b3: p(f"s_setprio {c.prio_b4}")
        self.tagged_check(sloads, [SG + 2 * i + 1 for i in range(8)], VT)
        self.lds_wait(VCN, VT, 4, off=4)
        GV, PK = 96, 128
        for k in range(15): p(f"ds_read2st64_b32 {v(GV+2*k,2)}, v{VG+k} offset0:0 offset1:12")
        for i in range(8):
            p(f"v_and_b32 v{SR+i}, 0xffff0000, v{SG+2*i}\nv_rcp_f32 v{SR+i}, v{SR+i}\nv_lshlrev_b32 v{SR+8+i}, 16, v{SG+2*i}\nv_mul_f32 v{SR+8+i}, -v{SR+8+i}, v{SR+i}")
        for k in range(15): p(f"v_add_f32 v{GV+2*k}, v{GV+2*k}, v{GV+2*k+1}")
        seq = [[0, 0, 0, 1, 2, 2, 2, 2, 2, 2, 3], list(range(4, 15))]
        for task in range(2):
            for cp_ in range(4):
                for j in range(4):
                    p(f"v_cvt_pk_bf16_f32 v{PK+16*task+4*cp_+j}, v{GV+2*seq[task][cp_+2*j]}, v{GV+2*seq[task][cp_+2*j+1]}")
                p(f"ds_write_b128 v{VTW}, {v(PK+16*task+4*cp_,4)} offset:{cp_*4160+task*2048}")
        p(f"s_mov_b64 exec, 0xff\nds_write_b128 v{VTZ}, {v(VZ,4)} offset:4096\ns_mov_b64 exec, -1")
        self.stamp("tables", sets=(0, 3, 4))
        for ch in range(2):
            for j in range(4):
                a = SG + 8 * ch + 2 * j; x = (XR2 if ch else XR) + j
                p(f"v_lshlrev_b32 v{a}, 16, v{x}\nv_and_b32 v{a+1}, 0xffff0000, v{x}\nv_fma_f32 v{a}, v{a}, v{SR+2*j}, v{SR+8+2*j}\nv_fma_f32 v{a+1}, v{a+1}, v{SR+2*j+1}, v{SR+9+2*j}\nv_cvt_pk_bf16_f32 v{x}, v{a}, v{a+1}")
            p(f"ds_write_b128 v{VUW}, {v(XR2 if ch else XR,4)} offset:{4608*ch}")
        self.lds_arrive(VCN, VONE, 4)
        self.lds_wait(VCN, VT, 8, off=4)
        self.stamp("u", sets=(0, 3, 4))
        if c.prio_b5 != c.prio_b4: p(f"s_setprio {c.prio_b5}")
        TF, UF, CA = 96, 160, 224
        def read_tu(ph):
            r = [I(f"ds_read_b128 {v(UF+32*(ph&1),4)}, v{VUA} offset:{2*32*(3-ph)}")]
            for a in range(8):
                for h in range(2):
                    r.append(I(f"ds_read_b64 {v(TF+32*(ph&1)+4*a+2*h,2)}, v{VTA} offset:{2*(256*(7-a)+32*(3-ph))+8*h}"))
            return r + [I(f"ds_read_b128 {v(UF+32*(ph&1)+4*b,4)}, v{VUA} offset:{2*(256*b+32*(3-ph))}") for b in range(1, 8)]
        r0 = read_tu(0)
        p.extend(r0[:13])
        for ph in range(4):
            mm = []
            for b in range(8):
                for a in range(8 - b):
                    acc = v(CA + 4 * (a + b), 4)
                    mm.append(I(f"v_mfma_f32_16x16x32_bf16 {acc}, {v(UF+32*(ph&1)+4*b,4)}, {v(TF+32*(ph&1)+4*a,4)}, {'0' if (ph == 0 and b == 0) else acc}"))
            fill = (r0[13:] if ph == 0 else []) + (read_tu(ph + 1) if ph < 3 else [])
            if ph == 3:
                self.lds_arrive(VCN, VONE, 4)
                p.extend(mm[:26])
                if c.prio_b6 != c.prio_b5: p(f"s_setprio {c.prio_b6}")
                self.lds_wait(VCN, VT, 12, off=4); mm = mm[26:]
                fill = [I(f"ds_write_b128 v{VEXW}, {v(CA+4*cc,4)} offset:{1024*cc}") for cc in range(4)]
                p.extend(interleave(mm, fill, ratio=0.5))
            else: p.extend(interleave(mm, fill, ratio=1.0))
        self.stamp("conv", sets=(0, 2, 3, 4))
        for cc in range(4, 8): p(f"ds_write_b128 v{VEXW}, {v(CA+4*cc,4)} offset:{1024*cc}")
        self.lds_arrive(VCN, VONE, 4)
        VXO, VPA, VSA, XI, RG = 10, 11, 13, 16, 24
        p(f"v_bfe_u32 v{VT}, v0, 2, 2\nv_lshrrev_b32 v{VT+1}, 4, v0\nv_and_b32 v{VT+2}, 3, v0")
        p(f"v_lshl_add_u32 v{VT+3}, v{VT}, 4, v{VT+1}\nv_mul_u32_u24 v{VXO}, 896, v{VT+3}\nv_lshl_add_u32 v{VXO}, v{VT+2}, 4, v{VXO}")
        p(f"v_lshrrev_b32 v{VT+4}, 5, v0\nv_lshlrev_b32 v{VT+4}, 10, v{VT+4}\nv_lshl_add_u32 v{VT+4}, v{VT}, 5, v{VT+4}\nv_and_b32 v{VT+5}, 1, v{VT+1}\nv_lshl_add_u32 v{VT+4}, v{VT+5}, 3, v{VT+4}")
        self.lds_wait(VCN, VT + 6, 16, off=4)
        EXV = 96
        for k in range(2):
            for w in range(4): p(f"ds_read_b128 {v(EXV+16*k+4*w,4)}, v{VEXR} offset:{8192*w+1024*k}")
        for k in range(2):
            b = EXV + 16 * k
            for r in range(4): p(f"v_add_f32 v{b+r}, v{b+r}, v{b+4+r}\nv_add_f32 v{b+8+r}, v{b+8+r}, v{b+12+r}")
            for r in range(4): p(f"v_cvt_pk_bf16_f32 v{b+4+r}, v{b+r}, v{b+8+r}")
            sttok = p.tok(f"buffer_store_dwordx4 {v(b+4,4)}, v{VL16}, {s(R_WS,4)}, s{S_STW} offen offset:{1024*k} sc1")
        self.stamp("st", sets=(0, 2, 3, 4))
        for ps in range(2): p(f"buffer_load_dwordx4 {v(XI+4*ps,4)}, v{VXO}, {s(R_LD,4)}, s{S_XO} offen offset:{ps*4*896}")
        for ps in range(2): p(f"buffer_load_dword v{RG+ps}, v{VT+4}, {s(R_WS,4)}, s{S_STF} offen offset:{ps*2048} sc1")
        p(f"s_lshl3_add_u32 s{T}, s{S_MH}, {L_RING//256}\nv_and_b32 v{VT+4}, 1, v{VT}\nv_lshl_add_u32 v{VT+5}, v{VT+4}, 4, v{VT+1}\nv_add_u32 v{VT+5}, s{T}, v{VT+5}\nv_lshlrev_b32 v{VT+5}, 8, v{VT+5}")
        p(f"v_lshrrev_b32 v{VT+6}, 1, v{VT}\nv_lshl_add_u32 v{VT+5}, v{VT+6}, 15, v{VT+5}")
        p(f"v_xor_b32 v{VT+4}, s{S_CHN}, v{VT+4}\nv_lshlrev_b32 v{VT+4}, 3, v{VT+4}\nv_lshl_add_u32 v{VT+4}, v{VT+2}, 1, v{VT+4}\nv_xor_b32 v{VT+4}, v{VT+4}, v{VT+1}\nv_lshl_add_u32 v{VPA}, v{VT+4}, 4, v{VT+5}")
        VP4 = 28
        for ps in range(2):
            for e in range(2): p(f"v_xor_b32 v{VP4+2*ps+e}, {64*ps+16*e}, v{VPA}")
        p(f"s_mul_i32 s{T}, s{S_BW}, 2176\ns_add_u32 s{T}, s{T}, {L_STR}")
        p(f"v_lshrrev_b32 v{VT+4}, 5, v0\nv_lshl_add_u32 v{VT+4}, v{VT+4}, 5, v{VL16}\nv_add_u32 v{VSA}, s{T}, v{VT+4}")
        p(f"v_mul_u32_u24 v{VT+4}, 544, v{VT+2}\nv_and_b32 v{VT+5}, 60, v0\nv_add3_u32 v{VSA+1}, v{VT+4}, v{VT+5}, s{T}")
        p(f"v_lshrrev_b32 v{VT+4}, 3, v0\nv_lshlrev_b32 v{VT+4}, 13, v{VT+4}\nv_and_b32 v{VT+5}, 7, v0\nv_lshl_add_u32 v{VSA+2}, v{VT+5}, 4, v{VT+4}")
        if "S" not in c.spoll: p(f"v_min_u32 v{VFL}, 15, v0\nv_lshlrev_b32 v{VFL}, 2, v{VFL}")
        p(f"v_lshlrev_b32 v{VT+4}, 7, v0")
        p.wait(sttok)
        p(f"s_mov_b64 exec, 15\nbuffer_store_dword v{VTAG}, v{VT+4}, {s(R_WS,4)}, s{S_FSW} offen sc1\ns_mov_b64 exec, -1")
        self.stamp("flagS")
        fs = self.flag_load("S", S_FSR, 16, VFL)
        XF32, RR, SV, SRF = 128, 2, 64, 144
        for ps in range(2):
            for j in range(4):
                p(f"v_lshlrev_b32 v{XF32+8*ps+2*j}, 16, v{XI+4*ps+j}\nv_and_b32 v{XF32+8*ps+2*j+1}, 0xffff0000, v{XI+4*ps+j}")
            p(f"v_and_b32 v{RG+ps}, 0xffff0000, v{RG+ps}\nv_rcp_f32 v{RG+ps}, v{RG+ps}\nv_mul_f32 v{RR+2*ps}, {LOG2E | 0x80000000}, v{RG+ps}\nv_mul_f32 v{RR+2*ps+1}, {LOG2E | 0x80000000}, v{RG+ps}")
        self.flag_check(fs, VT, sleep=c.fs_sleep)
        self.stamp("fs", sets=(0, 2, 3))
        p(f"buffer_load_dwordx4 {v(SV,4)}, v{VSA+2}, {s(R_WS,4)}, s{S_STR} offen sc1\ns_add_u32 s{S_STR}, s{S_STR}, 65536\nbuffer_load_dwordx4 {v(SV+4,4)}, v{VSA+2}, {s(R_WS,4)}, s{S_STR} offen sc1")
        for j in range(2): p(f"ds_write_b128 v{VSA}, {v(SV+4*j,4)} offset:{1088*j}")
        for ps in range(2):
            for i in range(4): p(f"ds_read_b32 v{SV+8+4*ps+i}, v{VSA+1} offset:{128*i+64*ps}")
        for ps in range(2):
            for i in range(4):
                a = SRF + 8 * ps + 2 * i; x = SV + 8 + 4 * ps + i
                p(f"v_lshlrev_b32 v{a}, 16, v{x}\nv_and_b32 v{a+1}, 0xffff0000, v{x}\nv_mul_f32 v{a}, v{a}, v{RG+ps}\nv_mul_f32 v{a+1}, v{a+1}, v{RG+ps}")
        self.stamp("sready", sets=(0, 2, 3))
        p("s_barrier")
        PV = 160
        for ps in range(2):
            for w in range(4):
                for e in range(2):
                    p(f"ds_read_b128 {v(PV+32*ps+8*w+4*e,4)}, v{VP4+2*ps+e} offset:{8192*w+1024*ps}")
        for ps in range(2):
            b = PV + 32 * ps
            for i in range(0, 8, 2): p(f"v_pk_add_f32 {v(b+i,2)}, {v(b+i,2)}, {v(b+8+i,2)}")
            for i in range(0, 8, 2): p(f"v_pk_add_f32 {v(b+16+i,2)}, {v(b+16+i,2)}, {v(b+24+i,2)}")
            for i in range(0, 8, 2): p(f"v_pk_add_f32 {v(b+i,2)}, {v(b+i,2)}, {v(b+16+i,2)}")
            for i in range(0, 8, 2): p(f"v_pk_mul_f32 {v(b+8+i,2)}, {v(b+i,2)}, {v(RR+2*ps,2)}")
            for i in range(8): p(f"v_exp_f32 v{b+8+i}, v{b+8+i}")
            for i in range(0, 8, 2): p(f"v_pk_mul_f32 {v(b+i,2)}, {v(b+i,2)}, {v(SRF+8*ps+i,2)}")
            for i in range(0, 8, 2): p(f"v_pk_add_f32 {v(b+8+i,2)}, {v(b+8+i,2)}, 1.0 op_sel_hi:[1,0]")
            for i in range(8): p(f"v_rcp_f32 v{b+8+i}, v{b+8+i}")
            for i in range(0, 8, 2): p(f"v_pk_fma_f32 {v(b+i,2)}, {v(b+i,2)}, {v(b+8+i,2)}, {v(XF32+8*ps+i,2)}")
            for i in range(4): p(f"v_cvt_pk_bf16_f32 v{b+16+i}, v{b+2*i}, v{b+2*i+1}")
            p(f"buffer_store_dwordx4 {v(b+16,4)}, v{VXO}, {s(R_2,4)}, s{S_XO} offen offset:{ps*4*896}")
        self.stamp("end", sets=(0, 2, 3, 4))
        self.stamp_flush(1)
        p("s_endpgm")

    def role_h(self):
        p, c = self.p, self.c
        p.label("L_helper")
        self.role_start(); self.stamp_begin("H")
        S_HH, S_X, S_Y, S_ONE, S_LO, S_HI, S_Q, S_CG = 64, 65, 66, 67, 68, 69, 70, 71
        T = S_T
        VT, XD, WD, AC = 1, 16, 48, 80
        p(f"s_lshl_b32 s{S_HH}, s{S_XCD}, 2\ns_add_u32 s{S_HH}, s{S_HH}, s{S_J}\ns_sub_u32 s{S_HH}, s{S_HH}, 28")
        p(f"s_lshl_b32 s{T}, s{S_HH}, 1\ns_and_b32 s{T+1}, s{S_WAVE}, 1\ns_add_u32 s{T}, s{T}, s{T+1}\ns_lshl_b32 s{T}, s{T}, 5\ns_and_b32 s{S_X}, s{S_WAVE}, 6\ns_add_u32 s{T}, s{T}, s{S_X}\ns_mul_i32 s{S_X}, s{T}, 896")
        p(f"v_lshrrev_b32 v{VT}, 4, v0\nv_bfe_u32 v{VT+1}, v0, 3, 1\nv_lshl_add_u32 v{VT}, v{VT}, 3, v{VT+1}\nv_mul_u32_u24 v{VT}, 896, v{VT}\nv_and_b32 v{VT+1}, 7, v0\nv_lshl_add_u32 v{VT}, v{VT+1}, 4, v{VT}")
        srd(p, R_LD, P_U, 2048 * 896)
        for i in range(7): p(f"buffer_load_dwordx4 {v(XD+4*i,4)}, v{VT}, {s(R_LD,4)}, s{S_X} offen offset:{128*i}")
        self.load_epoch(); srd(p, R_2, P_W1, 448 * 3584); srd(p, R_PC, P_W2, 1792 * 896)
        p(f"s_lshr_b32 s{S_Q}, s{S_XCD}, 1\ns_lshl2_add_u32 s{S_Q}, s{S_Q}, s{S_J}\ns_sub_u32 s{S_Q}, s{S_Q}, 28\ns_and_b32 s{S_CG}, s{S_XCD}, 1\ns_mul_i32 s{S_CG}, s{S_CG}, 14\ns_min_u32 s{T}, s{S_Q}, 13\ns_add_u32 s{S_CG}, s{S_CG}, s{T}")
        p(f"s_lshl_b32 s{T}, s{S_CG}, 7\ns_mul_i32 s{S_Y}, s{S_WAVE}, {56*3584}\ns_add_u32 s{S_Y}, s{S_Y}, s{T}")
        p(f"v_lshrrev_b32 v{VT+2}, 3, v0\nv_mul_u32_u24 v{VT+2}, 3584, v{VT+2}\nv_lshl_add_u32 v{VT+2}, v{VT+1}, 4, v{VT+2}")
        for i in range(7):
            p(f"buffer_load_dwordx4 {v(WD+4*i,4)}, v{VT+2}, {s(R_2,4)}, s{S_Y} offen")
            if i < 6: p(f"s_add_u32 s{S_Y}, s{S_Y}, {8*3584}")
        if c.h_early:
            p(f"s_sub_u32 s{T}, s{S_J}, 28\ns_mul_i32 s{T}, s{T}, 7\ns_add_u32 s{T}, s{T}, s{S_WAVE}\ns_lshl3_add_u32 s{T}, s{T}, s{S_XCD}\ns_mul_i32 s{T}, s{T}, {8*896}\ns_cmp_eq_u32 s{S_WAVE}, 7\ns_cselect_b32 s{T}, {1792*896}, s{T}")
            p(f"v_min_u32 v100, 55, v0\nv_lshlrev_b32 v100, 7, v100\nbuffer_load_dword v101, v100, {s(R_PC,4)}, s{T} offen")
        if c.warm_t == 1:
            lk = self.lab("not")
            p(f"s_cmp_lg_u32 s{S_WAVE}, 7\ns_cbranch_scc1 {lk}")
            p.alt_begin(); self.touch_pages(100, 101); p.alt_end(); p.label(lk)
        p(f"s_mov_b32 s{S_ONE}, 0x3f803f80\ns_mov_b32 s{S_LO}, 0x00003f80\ns_mov_b32 s{S_HI}, 0x3f800000")
        p(f"s_lshr_b32 s{T}, s{S_HH}, 3\ns_lshl_b32 s{T}, s{T}, 2\ns_lshr_b32 s{S_X}, s{S_WAVE}, 1\ns_add_u32 s{T}, s{T}, s{S_X}\ns_lshl_b32 s{T}, s{T}, 3\ns_and_b32 s{S_X}, s{S_HH}, 7\ns_add_u32 s{T}, s{T}, s{S_X}")
        p(f"s_lshl_b32 s{T}, s{T}, 1\ns_add_u32 s{T}, s{T}, s{T+1}\ns_lshl_b32 s{T}, s{T}, 6\ns_add_u32 s{S_X}, s{T}, {WS_STAT}")
        self.make_tag()
        self.stamp("issued")
        for i in range(4): p(f"v_mov_b32 v{AC+i}, 0")
        for i in range(28):
            p(f"v_dot2_f32_bf16 v{AC+(i&1)}, v{XD+i}, s{S_ONE}, v{AC+(i&1)}\nv_dot2_f32_bf16 v{AC+2+(i&1)}, v{XD+i}, v{XD+i}, v{AC+2+(i&1)}")
        p(f"v_add_f32 v{AC}, v{AC}, v{AC+1}\nv_add_f32 v{AC+1}, v{AC+2}, v{AC+3}")
        for pat in ("quad_perm:[1,0,3,2]", "quad_perm:[2,3,0,1]", "row_half_mirror"):
            for k in range(2): p(f"v_add_f32_dpp v{AC+k}, v{AC+k}, v{AC+k} {pat} row_mask:0xf bank_mask:0xf")
        inv = 0x3b124925
        p(f"v_mul_f32 v{AC}, {inv}, v{AC}\nv_mul_f32 v{AC+1}, {inv}, v{AC+1}\nv_fma_f32 v{AC+1}, -v{AC}, v{AC}, v{AC+1}\nv_max_f32 v{AC+1}, 0, v{AC+1}")
        p(f"v_cvt_pk_bf16_f32 v{AC+1}, v{AC+1}, v{AC+1}\nv_and_b32 v{AC+1}, 0xffff0000, v{AC+1}\nv_add_f32 v{AC+1}, 0x3727c5ac, v{AC+1}")
        p(f"v_cvt_pk_bf16_f32 v{AC+1}, v{AC+1}, v{AC+1}\nv_and_b32 v{AC+1}, 0xffff0000, v{AC+1}\nv_sqrt_f32 v{AC+1}, v{AC+1}")
        p(f"v_mov_b32 v{AC+3}, s{S_TAG}\nv_cvt_pk_bf16_f32 v{AC+2}, v{AC}, v{AC+1}")
        p(f"s_mov_b32 exec_lo, 0x01010101\ns_mov_b32 exec_hi, 0x01010101\nbuffer_store_dwordx2 {v(AC+2,2)}, v0, {s(R_WS,4)}, s{S_X} offen sc1\ns_mov_b64 exec, -1")
        self.stamp("stats")
        p(f"s_cmp_ge_u32 s{S_Q}, 14\ns_cbranch_scc1 L_hnocs")
        CS = 88
        for k in range(8): p(f"v_mov_b32 v{CS+k}, 0")
        for i in range(7):
            for j in range(4):
                p(f"v_dot2_f32_bf16 v{CS+2*j}, v{WD+4*i+j}, s{S_LO}, v{CS+2*j}\nv_dot2_f32_bf16 v{CS+2*j+1}, v{WD+4*i+j}, s{S_HI}, v{CS+2*j+1}")
        for k in range(8): p(f"v_add_f32_dpp v{CS+k}, v{CS+k}, v{CS+k} row_ror:8 row_mask:0xf bank_mask:0xf")
        p(f"v_and_b32 v{VT+3}, 8, v0\nv_cmp_eq_u32 vcc, 0, v{VT+3}\nv_lshlrev_b32 v{VT+3}, 1, v{VT+3}\nv_lshl_add_u32 v{VT+3}, v{VT+1}, 5, v{VT+3}\nv_lshrrev_b32 v{VT+4}, 4, v0\nv_lshl_add_u32 v{VT+3}, v{VT+4}, 8, v{VT+3}")
        p(f"s_lshl_b32 s{T}, s{S_WAVE}, 10\nv_add_u32 v{VT+3}, s{T}, v{VT+3}")
        for k in range(4): p(f"v_cndmask_b32 v{CS+k}, v{CS+4+k}, v{CS+k}, vcc")
        p(f"ds_write_b128 v{VT+3}, {v(CS,4)}\ns_waitcnt lgkmcnt(0)\ns_barrier")
        p(f"s_cmp_lg_u32 s{S_WAVE}, 0\ns_cbranch_scc1 L_hcsd")
        p.alt_begin()
        p(f"v_lshlrev_b32 v{VT+3}, 2, v0")
        for i in range(16): p(f"ds_read2st64_b32 {v(XD+2*i,2)}, v{VT+3} offset0:{2*i} offset1:{2*i+1}")
        for st in (16, 8, 4, 2):
            for i in range(0, st, 2): p(f"v_pk_add_f32 {v(XD+i,2)}, {v(XD+i,2)}, {v(XD+st+i,2)}")
        p(f"v_add_f32 v{AC+2}, v{XD}, v{XD+1}\nv_lshlrev_b32 v{VT+3}, 3, v0\ns_lshl_b32 s{T}, s{S_CG}, 9\ns_add_u32 s{T}, s{T}, {WS_CS}")
        p(f"buffer_store_dwordx2 {v(AC+2,2)}, v{VT+3}, {s(R_WS,4)}, s{T} offen sc1")
        p.alt_end()
        p.label("L_hcsd")
        if c.h_pf: p("s_barrier")
        p.label("L_hpf")
        self.stamp("cs")
        if c.h_pf:
            p(f"s_cmp_eq_u32 s{S_WAVE}, 7\ns_cbranch_scc1 L_hdone")
            p(f"s_sub_u32 s{T}, s{S_J}, 28\ns_mul_i32 s{T}, s{T}, 7\ns_add_u32 s{T}, s{T}, s{S_WAVE}\ns_mul_i32 s{T}, s{T}, {64*896}\nv_min_u32 v{VT}, 55, v0\nv_lshlrev_b32 v{VT}, 7, v{VT}")
            for k in range(c.h_rot):
                p(f"s_add_u32 s{T+1}, s{S_XCD}, {k}\ns_and_b32 s{T+1}, s{T+1}, 7\ns_mul_i32 s{T+1}, s{T+1}, {8*896}\ns_add_u32 s{T+1}, s{T+1}, s{T}\nbuffer_load_dword v{VT+1}, v{VT}, {s(R_PC,4)}, s{T+1} offen")
            if c.h_rot and c.h_wait: p("s_waitcnt vmcnt(0)")
            for st in c.h_pf:
                if st < 0: continue
                for h in range(2):
                    p(f"s_add_u32 s{T+1}, s{T}, {(16*st+8*h)*896}\nbuffer_load_dword v{VT+1}, v{VT}, {s(R_PC,4)}, s{T+1} offen")
            p("s_waitcnt vmcnt(0)")
        p.label("L_hdone")
        self.stamp("pf")
        self.stamp_flush(1)
        p("s_endpgm")
        p.label("L_hnocs")
        if c.h_pf: p("s_barrier")
        p(f"s_waitcnt vmcnt(0) lgkmcnt(0)\ns_cmp_lg_u32 s{S_HH}, 31\ns_cbranch_scc1 L_hpf\ns_cmp_lg_u32 s{S_WAVE}, 7\ns_cbranch_scc1 L_hpf")
        p.reset()
        p(f"v_lshrrev_b32 v{VT}, 2, v0\nv_min_u32 v{VT}, 13, v{VT}\nv_lshlrev_b32 v{VT}, 9, v{VT}\nv_and_b32 v{VT+1}, 3, v0\nv_lshl_add_u32 v{VT}, v{VT+1}, 4, v{VT}\ns_mov_b32 s{S_X}, {WS_FS}")
        ld = f"s_sleep 8\nbuffer_load_dwordx4 {v(XD,4)}, v{VT}, {s(R_WS,4)}, s{S_X} offen sc1"
        p(ld)
        self.tagged_check(ld, [XD, XD + 1, XD + 2, XD + 3], VT + 2)
        p(f"s_mov_b32 s{S_X}, {WS_EPOCH}")
        self.flag_store(S_X, AC + 3)
        p("s_branch L_hpf")

    def build(self):
        p = self.p
        self.entry()
        self.role_a(); self.role_h()
        p.reset()
        p.label("L_exit")
        p("s_endpgm")
        p(".p2align 7")
        p(".type L_gtab,@object")
        p.label("L_gtab")
        w = self.gather_table()
        for i in range(0, len(w), 8): p(".long " + ", ".join(hex(x) for x in w[i:i+8]))
        p.label("L_end")
        body = p.resolve()
        head = open("recurrent_scan__ssm_conv_s4__dense_activation_mish__prompt.s.ref").read().split("; Override launch")[0]
        txt = head + f"; @launch grid=(256,1,1) block=(512,1,1) lds={LDS_BYTES}\n"
        txt += f'.amdgcn_target "amdgcn-amd-amdhsa--gfx950"\n.text\n.globl {KNAME}\n.p2align 8\n.type {KNAME},@function\n{KNAME}:\n'
        txt += body
        txt += f""".section .rodata,"a"
.p2align 6
.amdhsa_kernel {KNAME}
  .amdhsa_next_free_vgpr 256
  .amdhsa_next_free_sgpr 102
  .amdhsa_accum_offset 256
  .amdhsa_group_segment_fixed_size 0
  .amdhsa_kernarg_size 128
  .amdhsa_user_sgpr_count 2
  .amdhsa_user_sgpr_kernarg_segment_ptr 1
  .amdhsa_system_sgpr_workgroup_id_x 1
.end_amdhsa_kernel
"""
        return txt

def parse_cfg(args):
    kw = {}
    for a in args:
        k, x = a.split("=")
        kw[k] = eval(x)
    return Cfg(**kw)

if __name__ == "__main__":
    out = sys.argv[1]
    g = Gen(parse_cfg(sys.argv[2:]))
    txt = g.build()
    open(out, "w").write(txt)
    import json
    json.dump(g.stamp_names, open(out + ".stamps.json", "w"))
    print(out, g.p.stats)
```

```python
import sys
from asmgen import *

KNAME = "recurrent_scan__ssm_conv_s4__dense_activation_mish__prompt_kernel"

class Cfg:
    stamps = False
    sset = 0
    cyc = False
    probe = None
    prefetch_code = True
    mapP = False
    pf_at = -1
    rot2 = 2
    qperm = False
    h_early = False
    sync5 = True
    warm_w = ''
    warm_t = 0
    g2_mix = True
    act_st = 'sc1'
    act_ld = 'sc1'
    fa_st = 'sc1'
    mish_pk = False
    spoll = 'XAS'
    adepth = 7
    flead = 6
    pre_dma = 24
    nloop = 1
    dma_per = (8, 8, 8, 8, 8, 8, 8)
    gran_at = 4
    w2_sched = (0, 2, 10, 12)
    mish_skip = 0.0
    w2_lead = 23
    w2_rate = 0.8
    rdepth = 11
    flag_lag = 2
    fx_at = 3
    gt_at = 4
    st_at = 4
    fx_chk = 32
    addtid = True
    fuse0 = True
    lds_cut = (0, 0, 0, 0, 0, 4)
    prio_at = 99
    b_pre = 1.0
    kg_pre = 380
    kg_ints = 4
    kg_x = 0.6
    prio_xt = 1
    h_pf = (-1,)
    h_rot = 1
    h_wait = False
    fs_sleep = 2
    prio_b = 1
    prio_b2 = 0
    prio_b3 = 0
    prio_b4 = 0
    prio_b5 = 1
    prio_b6 = 0
    prio_a1 = 2
    pre_loop = 'R8 W L D18 F C A7 F R12 W L D24'
    def __init__(self, **kw):
        for k, x in kw.items():
            assert hasattr(self, k), k
            setattr(self, k, x)

WS_EPOCH, WS_FX, WS_FA, WS_FS = 0, 0x1000, 0x20000, 0x8000
WS_STAT, WS_CS, WS_XT, WS_ST, WS_ACT, WS_DBG = 0x10000, 0x14000, 0x40000, 0x200000, 0x600000, 0xE00000
WS_SIZE = 0x1000000
TAGC = 0x9E3779B1
SLOT = 32768
L_RING = 2 * SLOT
L_STG = 0
L_TAB = 0
L_EX = 0
L_RAW = SLOT + 1024
L_U = L_RAW + 12288
L_STR = L_RAW + 21504
L_CNT = L_RAW + 30208
LDS_BYTES = 163840
P_U, P_ARE, P_AIM, P_BRE, P_BIM, P_CRE, P_CIM, P_LDT = 4, 6, 8, 10, 12, 14, 16, 18
P_DSK, P_BX, P_W1, P_B1, P_W2, P_OUT, P_DBG, P_WS = 20, 22, 24, 26, 28, 30, 32, 34
R_LD, R_2, R_WS, R_PC = 36, 40, 44, 48
S_TAG, S_TAG2, S_WAVE, S_XCD, S_J, S_RT, S_CT, S_CP = 52, 53, 54, 55, 56, 57, 58, 58
S_R2, S_C2 = 60, 61
S_T = 62
S_SP = 80
S_JR, S_XF = 3, 59
S_POLL = 97
S_CNT = 96
S_T0 = 98
LOG2E = 0x3fb8aa3b
POLL_MAX = 1 << 17

def srd(p, r, ptr, size):
    p(f"s_mov_b32 s{r}, s{ptr}\ns_mov_b32 s{r+1}, s{ptr+1}\ns_mov_b32 s{r+2}, {size}\ns_mov_b32 s{r+3}, 0x20000")

class Gen:
    def __init__(self, cfg):
        self.c = cfg
        self.p = Prog()
        self.nlab = 0
        self.stamp_names = {}
    def lab(self, base):
        self.nlab += 1
        return f"L_{base}_{self.nlab}"

    def stamp_begin(self, role):
        self.role = role; self.stamp_names[role] = []
    def stamp(self, name, p=None, sets=(0,)):
        if self.c.probe == (self.role, name): (p or self.p)("s_memrealtime s[100:101]")
        if not self.c.stamps or self.c.sset not in sets: return
        p = p or self.p
        n = len(self.stamp_names[self.role]); assert n < 15
        self.stamp_names[self.role].append(name)
        p(f"{'s_memtime' if self.c.cyc else 's_memrealtime'} {s(4+2*n, 2)}")
    def stamp_flush(self, vt):
        if self.c.probe and self.c.probe[0] == self.role:
            l0 = self.lab("probe")
            self.p("s_waitcnt vmcnt(0) lgkmcnt(0)")
            self.p.label(l0)
            self.p(f"s_memrealtime s[98:99]\ns_waitcnt lgkmcnt(0)\ns_sub_u32 s98, s98, s100\ns_cmp_lt_u32 s98, 6000\ns_cbranch_scc1 {l0}")
        if not self.c.stamps: return
        p = self.p
        n = len(self.stamp_names[self.role])
        p("s_waitcnt vmcnt(0) lgkmcnt(0)\ns_mov_b64 exec, 1")
        p(f"s_lshl_b32 s{S_T}, s2, 3\ns_add_u32 s{S_T}, s{S_T}, s{S_WAVE}\ns_lshl_b32 s{S_T}, s{S_T}, 6\ns_add_u32 s{S_T}, s{S_T}, {WS_DBG}")
        p(f"v_mov_b32 v{vt}, s{S_T0}\nbuffer_store_dword v{vt}, off, {s(R_WS,4)}, s{S_T}")
        for i in range(n):
            p(f"v_mov_b32 v{vt+1+(i&1)}, s{4+2*i}\nbuffer_store_dword v{vt+1+(i&1)}, off, {s(R_WS,4)}, s{S_T} offset:{4+4*i}")
        p("s_waitcnt vmcnt(0)")

    def flag_store(self, soff, vt):
        p = self.p
        p(f"s_mov_b64 exec, 1\nbuffer_store_dword v{vt}, off, {s(R_WS,4)}, s{soff} sc1\ns_mov_b64 exec, -1")
    def lds_arrive(self, vaddr, vone, off=0, q=None):
        (q or self.p)(f"s_mov_b64 exec, 1\nds_add_u32 v{vaddr}, v{vone} offset:{off}\ns_mov_b64 exec, -1")
    def lds_wait(self, vaddr, vt, target, off=0):
        p = self.p
        l0, l1 = self.lab("spin"), self.lab("spun")
        p(f"s_mov_b32 s{S_CNT}, 0")
        p.label(l0)
        p(f"ds_read_b32 v{vt}, v{vaddr} offset:{off}\ns_add_u32 s{S_CNT}, s{S_CNT}, 1\ns_waitcnt lgkmcnt(0)\nv_readfirstlane_b32 s{S_POLL}, v{vt}")
        p(f"s_cmp_gt_u32 s{S_CNT}, {POLL_MAX*8}\ns_cbranch_scc1 {l1}\ns_cmp_lt_u32 s{S_POLL}, {target}\ns_cbranch_scc1 {l0}")
        p.label(l1)
    def tagged_check(self, loads, tagregs, vt, on_miss=None):
        p = self.p
        l0, l1 = self.lab("chk"), self.lab("chkd")
        p(f"s_mov_b32 s{S_CNT}, 0")
        for r in reversed(tagregs): p.items.append(Marker("need", r))
        p.label(l0)
        p(f"v_xor_b32 v{vt}, s{S_TAG}, v{tagregs[0]}")
        for r in tagregs[1:]:
            p(f"v_bitop3_b32 v{vt}, v{r}, s{S_TAG}, v{vt} bitop3:0xbe")
        p(f"v_cmp_ne_u32 vcc, 0, v{vt}\ns_add_u32 s{S_CNT}, s{S_CNT}, 1\ns_cbranch_vccz {l1}")
        p(f"s_cmp_gt_u32 s{S_CNT}, {POLL_MAX}\ns_cbranch_scc1 {l1}")
        p.alt_begin()
        if on_miss:
            l3 = self.lab("again")
            p(f"s_cmp_lg_u32 s{S_CNT}, 1\ns_cbranch_scc1 {l3}")
            p.alt_begin(); on_miss(); p.alt_end()
            p.label(l3)
        p(loads)
        p(f"s_waitcnt vmcnt(0)\ns_branch {l0}")
        p.alt_end()
        p.label(l1)

    def entry(self):
        p, c = self.p, self.c
        T = S_T
        p(f"s_load_dwordx16 s[4:19], s[0:1], 0\ns_load_dwordx16 s[20:35], s[0:1], 64")
        p(f"s_cmp_ge_u32 s2, 256\ns_cbranch_scc1 L_exit")
        if c.stamps: p(f"{'s_memtime' if c.cyc else 's_memrealtime'} {s(S_T0,2)}")
        if c.probe and c.probe[1] == "start": p("s_memrealtime s[100:101]")
        p(f"v_lshrrev_b32 v1, 6, v0\nv_and_b32 v0, 63, v0\nv_readfirstlane_b32 s{S_WAVE}, v1")
        p(f"s_and_b32 s{S_XCD}, s2, 7\ns_lshr_b32 s{S_J}, s2, 3")
        p(f"s_getpc_b64 {s(R_PC,2)}")
        p.label("L_pc")
        p(f"s_mov_b32 s{R_PC+2}, L_end-L_pc\ns_mov_b32 s{R_PC+3}, 0x20000")
        if c.prefetch_code:
            p(f"s_lshl3_add_u32 s{T}, s{S_J}, s{S_WAVE}\ns_lshl_b32 s{T}, s{T}, 7")
            p(f"buffer_load_dword v255, off, {s(R_PC,4)}, s{T}")
        p(f"s_mov_b32 s{R_WS+2}, {WS_SIZE}\ns_mov_b32 s{R_WS+3}, 0x20000")
        p(f"s_cmp_ge_u32 s{S_J}, 28\ns_cbranch_scc1 L_helper")
        p(f"s_mul_i32 s{S_JR}, s{S_J}, 37\ns_lshr_b32 s{S_JR}, s{S_JR}, 8\ns_mul_i32 s{T}, s{S_JR}, 7\ns_sub_u32 s{S_C2}, s{S_J}, s{T}")
        if c.mapP: p(f"s_lshr_b32 s{S_RT}, s{S_JR}, 1\ns_lshl1_add_u32 s{S_RT}, s{S_XCD}, s{S_RT}\ns_and_b32 s{S_XF}, s{S_JR}, 1")
        else: p(f"s_lshr_b32 s{S_RT}, s{S_XCD}, 1\ns_lshl2_add_u32 s{S_RT}, s{S_RT}, s{S_JR}\ns_and_b32 s{S_XF}, s{S_XCD}, 1")
        p(f"s_cmp_ge_u32 s{S_WAVE}, 4\ns_cbranch_scc1 L_roleB")
    def role_start(self, b=False):
        p = self.p
        p.reset()
        if self.c.prefetch_code: p.items.append(Marker("pending", ("vmem", {"v255"})))
        if b:
            p.items.append(Marker("pending", ("smem", {"s67"})))
            for i in range(6): p.items.append(Marker("pending", ("vmem", {f"v{2+i}"})))
        else:
            p.items.append(Marker("pending", ("smem", {f"s{i}" for i in range(4, 36)})))
    def load_epoch(self):
        self.p(f"s_load_dword s{S_TAG}, {s(P_WS,2)}, {WS_EPOCH}\ns_mov_b32 s{R_WS}, s{P_WS}\ns_mov_b32 s{R_WS+1}, s{P_WS+1}")
    def touch_pages(self, vt, vd):
        p = self.p
        p(f"v_lshlrev_b32 v{vt}, 20, v0\ns_mov_b64 exec, 0xfff\nglobal_load_dword v{vd}, v{vt}, {s(P_WS,2)} offset:2048\ns_mov_b64 exec, 3")
        p(f"global_load_dword v{vd}, v{vt}, {s(P_OUT,2)}\nglobal_load_dword v{vd}, v{vt}, {s(P_W2,2)}\ns_mov_b64 exec, 1\nglobal_load_dword v{vd}, v{vt}, {s(P_B1,2)}\ns_mov_b64 exec, -1")
    def make_tag(self):
        self.p(f"s_add_u32 s{S_TAG}, s{S_TAG}, {TAGC}\ns_mov_b32 s{S_TAG2}, s{S_TAG}")
    def flag_load(self, which, soff, n, va, q=None):
        if which in self.c.spoll:
            w = 8 if n <= 8 else 16
            txt = f"s_buffer_load_dwordx{w} {s(S_SP,w)}, {s(R_WS,4)}, s{soff} glc"
        else:
            txt = f"buffer_load_dword v{va+1}, v{va}, {s(R_WS,4)}, s{soff} offen sc1"
        (q or self.p)(txt)
        return (which, txt, n, va)
    def flag_check(self, fl, vt, sleep=0, on_miss=None):
        which, txt, n, va = fl
        p = self.p
        if sleep: txt = f"s_sleep {sleep}\n" + txt
        if which not in self.c.spoll:
            return self.tagged_check(txt, [va + 1], vt, on_miss)
        l0, l1, l2 = self.lab("chk"), self.lab("retry"), self.lab("chkd")
        p(f"s_mov_b32 s{S_CNT}, 0")
        p.label(l0)
        p("s_waitcnt lgkmcnt(0)")
        for i in range(0, n - 2, 2): p(f"s_cmp_eq_u64 {s(S_SP+i,2)}, {s(S_TAG,2)}\ns_cbranch_scc0 {l1}")
        if n & 1: p(f"s_cmp_eq_u32 s{S_SP+n-1}, s{S_TAG}\ns_cbranch_scc1 {l2}")
        else: p(f"s_cmp_eq_u64 {s(S_SP+n-2,2)}, {s(S_TAG,2)}\ns_cbranch_scc1 {l2}")
        p.alt_begin()
        p.label(l1)
        if on_miss:
            l3 = self.lab("again")
            p(f"s_cmp_lg_u32 s{S_CNT}, 0\ns_cbranch_scc1 {l3}")
            p.alt_begin(); on_miss(); p.alt_end()
            p.label(l3)
        p(txt)
        p(f"s_add_u32 s{S_CNT}, s{S_CNT}, 1\ns_cmp_le_u32 s{S_CNT}, {POLL_MAX}\ns_cbranch_scc1 {l0}\ns_waitcnt lgkmcnt(0)")
        p.alt_end()
        p.label(l2)

    def role_a(self):
        p, c = self.p, self.c
        self.role_start(); self.stamp_begin("A")
        VD, VXA, VWA, VW2A, VW2D, VL16, VFL, VC1, VT = 1, 9, 13, 15, 19, 21, 22, 2, 24
        ACC, FR, W2R, AB = 32, 96, 96, 192
        S_SOFF, S_CSTR, S_LDB, S_WT, S_WF, S_ACTW, S_CW, S_FAW, S_FAR, S_RING, S_ACTR, S_W2B, S_Z = range(64, 77)
        S_X = 78; S_Y = 79
        S_B1 = 0
        T = S_T
        phys = lambda n: (2, 3, 4, 1)[n % 4]
        p(f"s_and_b32 s{S_WT}, s{S_WAVE}, 1\ns_lshr_b32 s{S_WF}, s{S_WAVE}, 1\ns_mul_i32 s{S_CT}, s{S_XF}, 7\ns_add_u32 s{S_CT}, s{S_CT}, s{S_C2}")
        p(f"s_lshl1_add_u32 s{T}, s{S_RT}, s{S_WF}\ns_mul_i32 s{T}, s{T}, {64*896}")
        p(f"s_mul_i32 s{T+1}, s{S_WF}, {32*14}\ns_add_u32 s{T+1}, s{T+1}, s{S_CT}\ns_lshl_b32 s{T+1}, s{T+1}, 8")
        p(f"s_lshl1_add_u32 s{S_LDB}, s{S_WT}, s{S_WF}\ns_lshl_b32 s{S_LDB}, s{S_LDB}, 13")
        p(f"s_add_u32 s{S_X}, s{S_WT}, 3\nv_lshrrev_b32 v{VT}, s{S_X}, v0\ns_lshl_b32 s{S_X}, s{S_WT}, 1\nv_lshrrev_b32 v{VT+1}, 4, v0\nv_lshlrev_b32 v{VT+1}, s{S_X}, v{VT+1}")
        p(f"s_lshl_b32 s{S_Y}, 896, s{S_X}\nv_xor_b32 v{VT+1}, v0, v{VT+1}\nv_mul_u32_u24 v{VT}, s{S_Y}, v{VT}")
        p(f"s_cmp_eq_u32 s{S_WT}, 0")
        p(f"s_cselect_b32 s{S_SOFF}, s{T}, s{T+1}\ns_cselect_b32 s{S_CSTR}, 1, {64*28}\ns_cselect_b32 s{S_X}, 7, 15\ns_cselect_b32 s{S_Y}, 64, 0\ns_cselect_b32 s{R_LD+2}, 8, 7")
        p(f"v_and_b32 v{VT+1}, s{S_X}, v{VT+1}\nv_lshl_add_u32 v{VD}, v{VT+1}, 4, v{VT}\nv_xor_b32 v{VD+1}, s{S_Y}, v{VD}")
        p(f"s_lshl_b32 s{S_CSTR}, s{S_CSTR}, 7\ns_mul_i32 s{T}, s{S_C2}, s{S_CSTR}\ns_add_u32 s{S_SOFF}, s{S_SOFF}, s{T}\ns_mul_i32 s{S_CW}, s{S_CSTR}, 7")
        p(f"s_mul_i32 s{R_LD+2}, s{R_LD+2}, {256*896}\ns_mov_b32 s{R_LD+3}, 0x20000\ns_lshl_b32 s{S_Y}, 7168, s{S_WT}")
        p(f"s_sub_u32 s{T}, s{S_Y}, 1024\nv_add_u32 v{VD+1}, s{T}, v{VD+1}\ns_lshl_b32 s{T}, s{T}, 1")
        p(f"v_add_u32 v{VD+2}, s{T}, v{VD}\nv_add_u32 v{VD+3}, s{T}, v{VD+1}\ns_lshl_b32 s{T}, s{S_Y}, 2")
        for i in range(4): p(f"v_add_u32 v{VD+4+i}, s{T}, v{VD+i}")
        p(f"s_cmp_eq_u32 s{S_WT}, 0\ns_cselect_b32 s{R_LD}, s{P_U}, s{P_W1}\ns_cselect_b32 s{R_LD+1}, s{P_U+1}, s{P_W1+1}")
        ctok = {}
        def dma_chunk(n):
            r = []
            for i in range(8):
                q = Prog()
                if i % 4 == 0: q(f"s_add_u32 m0, s{S_LDB}, {phys(n)*SLOT + (i//4)*4096}")
                ctok[n] = q.tok(f"buffer_load_dwordx4 v{VD+i}, {s(R_LD,4)}, s{S_SOFF} offen offset:{(i%4)*1024} lds")
                if i == 7 and n < 6:
                    q(f"s_add_u32 s{S_SOFF}, s{S_SOFF}, s{S_CSTR}\ns_cmp_eq_u32 s{S_C2}, {6-n}\ns_cselect_b32 s{T}, s{S_CW}, 0\ns_sub_u32 s{S_SOFF}, s{S_SOFF}, s{T}")
                r.append(q.items)
            return r
        dq = []
        for n in range(7): dq += dma_chunk(n)
        self.stamp("dma0", sets=(1,))
        self.load_epoch()
        npre = c.nloop
        assert 8 * npre <= c.pre_dma <= 24
        p(f"s_add_u32 m0, s{S_LDB}, {L_RING}\ns_movk_i32 s{S_X}, 6")
        p.label("L_pre")
        for i in range(8):
            if i == 4: p("s_add_u32 m0, m0, 4096")
            p(f"buffer_load_dwordx4 v{VD+i}, {s(R_LD,4)}, s{S_SOFF} offen offset:{(i%4)*1024} lds")
        p(f"s_add_u32 m0, m0, {SLOT-4096}\ns_add_u32 s{S_SOFF}, s{S_SOFF}, s{S_CSTR}\ns_cmp_eq_u32 s{S_C2}, s{S_X}\ns_cselect_b32 s{T}, s{S_CW}, 0\ns_sub_u32 s{S_SOFF}, s{S_SOFF}, s{T}")
        p(f"s_sub_u32 s{S_X}, s{S_X}, 1\ns_cmp_lg_u32 s{S_X}, {6-npre}\ns_cbranch_scc1 L_pre\ns_branch L_bodyA")
        role = self.role
        self.role_b()
        self.role = role
        p.label("L_bodyA")
        p.reset()
        p.items.append(Marker("pending", ("smem", {f"s{S_TAG}"})))
        if c.prefetch_code: p.items.append(Marker("pending", ("vmem", {"v255"})))
        for n in range(npre):
            for i in range(8): p.items.append(Marker("pending", ("vmem", set(), ctok[n] if i == 7 else None)))
        p(f"v_and_b32 v{VT}, 31, v0\nv_lshrrev_b32 v{VT+1}, 5, v0\nv_bfe_u32 v{VT+2}, v0, 1, 3\nv_xor_b32 v{VT+1}, v{VT+1}, v{VT+2}\nv_lshlrev_b32 v{VT+1}, 4, v{VT+1}")
        p(f"v_lshl_add_u32 v{VT+1}, v{VT}, 7, v{VT+1}\ns_add_u32 s{S_X}, s{S_WT}, 8\ns_lshl_b32 s{S_X}, s{S_X}, 13\nv_add_u32 v{VXA}, s{S_X}, v{VT+1}")
        for k in range(1, 4): p(f"v_xor_b32 v{VXA+k}, {32*k}, v{VXA}")
        p(f"s_lshl_b32 s{S_RING}, s{S_WAVE}, 13\ns_add_u32 s{S_RING}, s{S_RING}, {L_RING}")
        p(f"v_bfe_u32 v{VT}, v0, 4, 1\nv_lshlrev_b32 v{VT}, 5, v{VT}\nv_and_b32 v{VT+1}, 3, v0\nv_lshl_add_u32 v{VT}, v{VT+1}, 3, v{VT}")
        p(f"v_bfe_u32 v{VT+1}, v0, 2, 2\nv_lshrrev_b32 v{VT+2}, 5, v0")
        p(f"v_lshl_add_u32 v{VT+3}, v{VT+2}, 3, v{VT+1}\nv_lshl_add_u32 v{VT+3}, v{VT+3}, 8, v{VT}")
        p(f"s_lshl1_add_u32 s{S_Y}, s{S_WF}, 0x400\nv_xor_b32 v{VT+4}, s{S_Y}, v{VT+1}\nv_lshl_add_u32 v{VWA}, v{VT+4}, 6, v{VT+3}")
        if c.qperm: p(f"s_lshl1_add_u32 s{S_Z}, s{S_RT}, s{S_WT}\ns_and_b32 s{S_Z}, s{S_Z}, 3\ns_lshl_b32 s{S_Y}, s{S_Z}, 5\nv_xor_b32 v{VWA}, s{S_Y}, v{VWA}\ns_lshl_b32 s{S_Z}, s{S_Z}, 4")
        else: p(f"s_mov_b32 s{S_Z}, 0")
        p(f"v_xor_b32 v{VWA+1}, 64, v{VWA}")
        p(f"v_lshl_add_u32 v{VT+3}, v{VT+2}, 2, v{VT+1}\nv_lshl_add_u32 v{VT+3}, v{VT+3}, 7, v{VT}")
        p(f"v_lshrrev_b32 v{VT+4}, 1, v{VT+1}\nv_lshl_add_u32 v{VT+3}, v{VT+4}, 6, v{VT+3}\nv_add_u32 v{VW2A}, s{S_RING}, v{VT+3}")
        srd(p, R_2, P_W2, 1792 * 896)
        p(f"s_mov_b32 s{S_B1}, s{P_B1}\ns_mov_b32 s{S_B1+1}, s{P_B1+1}")
        self.stamp("setup", sets=(0, 1))
        for it in dq[8*npre:c.pre_dma]: p.extend(it)
        VB1 = 30
        q = p
        VGA = 26
        q(f"v_xor_b32 v{VW2A+1}, 64, v{VW2A}\nv_add_u32 v{VW2A+2}, 0x10000, v{VW2A}\nv_xor_b32 v{VW2A+3}, 64, v{VW2A+2}")
        q(f"v_bfe_u32 v{VGA}, v0, 1, 2\nv_lshlrev_b32 v{VGA}, 10, v{VGA}\nv_lshrrev_b32 v{VGA+1}, 3, v0\nv_lshl_add_u32 v{VGA}, v{VGA+1}, 4, v{VGA}\nv_and_b32 v{VGA+1}, 1, v0\nv_lshl_add_u32 v{VGA}, v{VGA+1}, 3, v{VGA}")
        late = Prog(); q = late
        q(f"s_lshl1_add_u32 s{T+1}, s{S_RT}, s{S_WT}\ns_lshr_b32 s{S_Y}, s{T+1}, 3\ns_lshl_b32 s{S_Y}, s{S_Y}, 12\ns_and_b32 s{S_X}, s{T+1}, 7\ns_lshl_b32 s{S_X}, s{S_X}, 7")
        q(f"s_add_u32 s{S_X}, s{S_X}, s{S_Y}\ns_add_u32 s{S_X}, s{S_X}, {WS_STAT}\nv_add_u32 v{VGA}, s{S_X}, v{VGA}")
        q(f"s_lshl1_add_u32 s{S_Y}, s{S_CT}, s{S_WF}\ns_lshl_b32 s{S_X}, s{S_Y}, 9\ns_add_u32 s{S_X}, s{S_X}, {WS_CS}\nv_xor_b32 v{VB1}, s{S_Z}, v0\nv_lshl_add_u32 v{VGA+1}, v{VB1}, 3, s{S_X}\ns_lshl_b32 s{S_X}, s{S_Y}, 7\nv_lshl_add_u32 v{VB1}, v{VB1}, 1, s{S_X}")
        q(f"s_mul_i32 s{S_ACTW}, s{T+1}, 28\ns_add_u32 s{S_ACTW}, s{S_ACTW}, s{S_Y}\ns_lshl_b32 s{S_ACTW}, s{S_ACTW}, 13\ns_add_u32 s{S_ACTW}, s{S_ACTW}, {WS_ACT}")
        q(f"s_mul_i32 s{S_X}, s{S_Y}, 37\ns_lshr_b32 s{S_X}, s{S_X}, 8\ns_mul_i32 s{S_X}, s{S_X}, 25\ns_add_u32 s{S_X}, s{S_X}, s{S_Y}")
        q(f"s_lshl_b32 s{S_FAW}, s{T+1}, 9\ns_add_u32 s{S_FAW}, s{S_FAW}, s{S_X}\ns_lshl2_add_u32 s{S_FAW}, s{S_FAW}, {WS_FA}")
        q(f"s_lshl2_add_u32 s{S_R2}, s{S_XCD}, s{S_JR}")
        q(f"s_lshl4_add_u32 s{S_FAR}, s{S_R2}, s{S_WAVE}\ns_lshl_b32 s{S_FAR}, s{S_FAR}, 7\ns_add_u32 s{S_FAR}, s{S_FAR}, {WS_FA}")
        q(f"v_lshlrev_b32 v{VL16}, 4, v0")
        if "A" not in c.spoll: q(f"v_min_u32 v{VFL}, 6, v0\nv_lshlrev_b32 v{VFL}, 2, v{VFL}")
        q(f"v_lshrrev_b32 v{VT+4}, 3, v0\nv_mul_u32_u24 v{VT+4}, 896, v{VT+4}\nv_bfe_u32 v{VT+1}, v0, 4, 1\nv_lshlrev_b32 v{VT+1}, 2, v{VT+1}\nv_xor_b32 v{VT+1}, v0, v{VT+1}\nv_and_b32 v{VT+1}, 7, v{VT+1}")
        q(f"v_lshl_add_u32 v{VW2D}, v{VT+1}, 4, v{VT+4}\nv_add_u32 v{VW2D+1}, {7168-1024}, v{VW2D}")
        q(f"s_lshl2_add_u32 s{S_ACTR}, s{S_R2}, s{S_WAVE}\ns_mul_i32 s{S_ACTR}, s{S_ACTR}, {28*2048}\ns_add_u32 s{S_ACTR}, s{S_ACTR}, {WS_ACT}")
        q(f"s_mul_i32 s{S_W2B}, s{S_WAVE}, {448*7}\ns_add_u32 s{S_W2B}, s{S_W2B}, s{S_C2}\ns_lshl_b32 s{S_W2B}, s{S_W2B}, 7")
        q(f"v_mov_b32 v{VT+5}, {L_CNT}\nv_mov_b32 v{VT+4}, 1")
        lateg = [[it] for it in late.items]
        S_AO = list(range(88, 95)); S_WO = [34, 35, 48, 49, 50, 51, 77]; S_ROT = 95
        if c.rot2:
            q = Prog()
            if c.rot2 == 1: q(f"s_mov_b32 s{S_ROT}, s{S_C2}")
            else: q(f"s_lshl1_add_u32 s{S_ROT}, s{S_JR}, s{S_C2}\ns_cmp_ge_u32 s{S_ROT}, 7\ns_cselect_b32 s{T+1}, 7, 0\ns_sub_u32 s{S_ROT}, s{S_ROT}, s{T+1}")
            lateg.append(q.items)
            for i in range(7):
                q = Prog()
                q(f"s_cmp_ge_u32 s{S_ROT}, {7-i}\ns_cselect_b32 s{T+1}, {i-7}, {i}\ns_add_u32 s{T+1}, s{T+1}, s{S_ROT}")
                lateg.append(q.items); q = Prog()
                q(f"s_lshl_b32 s{S_AO[i]}, s{T+1}, 13\ns_add_u32 s{S_AO[i]}, s{S_AO[i]}, s{S_ACTR}\ns_mul_i32 s{S_WO[i]}, s{T+1}, {64*896}\ns_add_u32 s{S_WO[i]}, s{S_WO[i]}, s{S_W2B}")
                lateg += [[it] for it in q.items]
        S_Q = [S_ROT, S_W2B, S_ACTR, S_CT]
        if c.qperm:
            assert c.rot2
            q = Prog()
            for i in range(4): q(f"s_xor_b32 s{S_Q[i]}, s{S_JR}, {i}\ns_mul_i32 s{S_Q[i]}, s{S_Q[i]}, {16*896}")
            lateg += [[it] for it in q.items]
        self.make_tag()
        p(f"v_mov_b32 v{VT}, s{S_TAG}")
        GR = AB
        gloads = f"buffer_load_dwordx2 {v(GR,2)}, v{VGA}, {s(R_WS,4)}, 0 offen sc1\nbuffer_load_dwordx2 {v(GR+2,2)}, v{VGA+1}, {s(R_WS,4)}, 0 offen sc1"
        piece = [0, 1, 2, 0, 1, 2, 0]; pred = {3: 0, 4: 1, 5: 2, 6: 3}
        wtok, rtok = {}, {}
        w2reg = lambda n: W2R + 8 * ((n + 6) % 12)
        def dma_w2(n):
            q = Prog(); gi = n >> 2
            if gi in pred: q.wait(rtok[4 * pred[gi] + (n & 3)])
            q(f"s_add_u32 m0, s{S_RING}, {piece[gi]*SLOT + (n&3)*2048}\n" + (f"s_add_u32 s{S_Z}, s{S_WO[n%7]}, s{S_Q[n//7]}" if c.qperm else f"s_add_u32 s{S_Z}, s{S_WO[n%7]}, {16*(n//7)*896}" if c.rot2 else f"s_add_u32 s{S_Z}, s{S_W2B}, {(64*(n%7) + 16*(n//7))*896}"))
            q(f"buffer_load_dwordx4 v{VW2D}, {s(R_2,4)}, s{S_Z} offen lds")
            q2 = Prog()
            wtok[n] = q2.tok(f"buffer_load_dwordx4 v{VW2D+1}, {s(R_2,4)}, s{S_Z} offen offset:1024 lds")
            return [q.items, q2.items]
        def read_w2(n):
            q = Prog(); pc = piece[n >> 2]
            q.wait(wtok[n])
            for di in range(2):
                for h in range(2):
                    rtok[n] = q.tok(f"ds_read_b64_tr_b16 {v(w2reg(n)+4*di+2*h,2)}, v{VW2A+2*(pc>>1)+di} offset:{(pc&1)*SLOT + (n&3)*2048 + h*1024}")
            return [q.items]
        def slot0_sync(n):
            if not c.sync5 and n != 4: return [[]]
            keep, self.p = self.p, Prog()
            self.lds_wait(VT + 5, VT + 1, n)
            q, self.p = self.p, keep
            return [q.items]
        nw = [0, 0]
        def w2_ops(k, maxread):
            r = []
            for _ in range(k):
                n = nw[0]
                if n >= 24: break
                for m in (n, n + 1):
                    if (m >> 2) in pred and m < 24:
                        need = 4 * pred[m >> 2] + (m & 3)
                        assert m > n or need < maxread
                        while nw[1] <= need and nw[1] < maxread: r += read_w2(nw[1]); nw[1] += 1
                if n in (4, 8): r += slot0_sync(n)
                r += dma_w2(n); nw[0] += 1
            return r
        def reads1(gs):
            n, k = gs >> 2, gs & 3
            base = FR + 16 * (gs % 3); so = (0, 1, 0, 0, 1, 0, 1)[n] * SLOT
            r = []
            for fi in range(2):
                for h in range(2):
                    r.append(I(f"ds_read_b64_tr_b16 {v(base+4*fi+2*h,2)}, v{VWA+fi} offset:{so+16384+k*4096+h*1024}"))
                r.append(I(f"ds_read_b128 {v(base+8+4*fi,4)}, v{VXA+k} offset:{so+fi*4096}"))
            return r
        def mfma1(gs):
            base = FR + 16 * (gs % 3)
            r = []
            for fi, ti in ((0, 0), (0, 1), (1, 0), (1, 1)):
                a = v(ACC + 32 * fi + 16 * ti, 16)
                r.append(I(f"v_mfma_f32_32x32x16_bf16 {a}, {v(base+4*fi,4)}, {v(base+8+4*ti,4)}, {'0' if gs == 0 else a}"))
            return r
        self.stamp("dmapre", sets=(1,))
        nd = c.pre_dma
        nl = (len(lateg) + 3) // 4
        for n in range(7):
            p.wait(ctok[n if n < 5 else 6])
            if n == 0: self.stamp("c0", sets=(1,))
            if n < 6: p("s_waitcnt lgkmcnt(0)\ns_barrier")
            self.stamp(f"bar{n}", sets=(0, 1) if n in (0, 3, 6) else (1,))
            if n in (2, 3, 5):
                for r in list(range(VXA, VXA + 4)) + [VWA, VWA + 1]: p(f"v_add_u32 v{r}, {-3*SLOT if n == 3 else 2*SLOT}, v{r}")
            upto = min(56, 8 * (n + 4), max(nd + c.dma_per[n], 8 * (n + 2)))
            fill = dq[nd:upto]; nd = upto
            if n == c.gran_at:
                fill = fill + [[I(x)] for x in gloads.split("\n")]
                fill += [[I(f"global_load_ushort v{VB1}, v{VB1}, {s(S_B1,2)}")]]
            if n >= 4: assert nd == 56
            if n >= 5:
                fill = fill + w2_ops(c.w2_sched[n - 5], 0)
                assert nw[0] <= (8 if (n == 6 and c.sync5) else 4)
            g0 = 4 * n
            r0, r1, r2, r3 = (reads1(g0 + k) for k in range(4))
            body = []
            if n == 0: body.append(r0 + r1)
            else:
                mm = mfma1(g0 - 1)
                body += [r0, [mm[0]] + r1[:3], [mm[1]] + r1[3:], [mm[2]], [mm[3]]]
            for k, rd in ((0, r2), (1, r3), (2, None)):
                mm = mfma1(g0 + k)
                body += [[mm[0]] + (rd[:3] if rd else []), [mm[1]] + (rd[3:] if rd else []), [mm[2]], [mm[3]]]
            if n == 6 or (n == 5 and c.sync5):
                q = Prog(); self.lds_arrive(VT + 5, VT + 4, q=q)
                body[-3] = body[-3] + q.items
            merged = []
            j = 0
            for i, it in enumerate(body):
                grp = list(it)
                while j < (i + 1) * len(fill) // len(body): grp += fill[j]; j += 1
                merged.append(grp)
            lt = lateg[nl * n: nl * (n + 1)] if n < 4 else []
            p.extend(interleave(merged, lt))
        mm = mfma1(27)
        p.extend(mm[:1])
        self.tagged_check(gloads, [GR + 1, GR + 3], VT + 1)
        self.stamp("granules", sets=(0, 1, 3))
        FA_, FB_ = AB + 8, AB + 12
        q = Prog()
        q(f"s_mov_b32 s{S_X}, 0x01000100\nv_perm_b32 v{FB_}, v{GR}, v{GR}, s{S_X}\nv_lshrrev_b32 v{FB_+1}, 16, v{GR}\nv_xor_b32 v{FB_}, 0x80008000, v{FB_}")
        q(f"v_cvt_pk_bf16_f32 v{VT+1}, v{GR+2}, v{GR+2}\nv_mov_b32 v{FB_+2}, 0\nv_and_b32 v{VT+1}, 0xffff0000, v{VT+1}\nv_mov_b32 v{FB_+3}, 0\nv_sub_f32 v{VT+1}, v{GR+2}, v{VT+1}")
        q(f"v_mov_b32 v{FA_+1}, v{VB1}\nv_cvt_pk_bf16_f32 v{FA_}, v{GR+2}, v{VT+1}\nv_mov_b32 v{FA_+2}, 0\nv_mov_b32 v{FA_+3}, 0\nv_and_b32 v{VT+1}, 0xffff0000, v{GR}")
        q(f"v_permlane32_swap_b32 v{FB_}, v{FB_+2}\nv_permlane32_swap_b32 v{FB_+1}, v{FB_+3}\nv_permlane32_swap_b32 v{FA_}, v{FA_+2}\nv_permlane32_swap_b32 v{FA_+1}, v{FA_+3}")
        q(f"v_rcp_f32 v{VT+1}, v{VT+1}")
        p.extend(interleave(mm[1:], q.items))
        for fi, ti in ((0, 0), (0, 1), (1, 0), (1, 1)):
            a = v(ACC + 32 * fi + 16 * ti, 16)
            p(f"v_mfma_f32_32x32x8_bf16 {a}, {v(FA_+2*fi,2)}, {v(FB_+2*ti,2)}, {a}")
            if (fi, ti) == (0, 0): p(f"v_mul_f32 v{VC1}, {LOG2E}, v{VT+1}\nv_mul_f32 v{VC1+2}, {LOG2E}, v{VT+1}")
            if (fi, ti) == (0, 1): p(f"v_permlane32_swap_b32 v{VC1}, v{VC1+2}")
            if (fi, ti) == (1, 0) and c.mish_pk: p(f"v_mov_b32 v{VC1+1}, v{VC1}\nv_mov_b32 v{VC1+3}, v{VC1+2}")
        MT, MO = AB + 16, AB + 48
        def mish_group(a, ti, o, tset):
            t = MT + 16 * tset; u = t + 8
            r = []
            if c.mish_pk:
                for i in range(0, 8, 2): r.append(f"v_pk_mul_f32 {v(t+i,2)}, {v(a+i,2)}, {v(VC1+2*ti,2)}")
                for i in range(8): r.append(f"v_exp_f32 v{t+i}, v{t+i}")
                for i in range(0, 8, 2): r.append(f"v_pk_fma_f32 {v(u+i,2)}, {v(t+i,2)}, 0.5, 1.0 op_sel_hi:[1,0,0]")
                for i in range(0, 8, 2): r.append(f"v_pk_fma_f32 {v(u+i,2)}, {v(t+i,2)}, {v(u+i,2)}, 1.0 op_sel_hi:[1,1,0]")
                for i in range(8): r.append(f"v_rcp_f32 v{u+i}, v{u+i}")
                for i in range(0, 8, 2): r.append(f"v_pk_fma_f32 {v(u+i,2)}, {v(a+i,2)}, {v(u+i,2)}, {v(a+i,2)} neg_lo:[1,0,0] neg_hi:[1,0,0]")
            else:
                for i in range(8): r.append(f"v_mul_f32 v{t+i}, v{a+i}, v{VC1+2*ti}")
                for i in range(8): r.append(f"v_exp_f32 v{t+i}, v{t+i}")
                for i in range(8): r.append(f"v_fma_f32 v{u+i}, v{t+i}, 0.5, 1.0")
                for i in range(8): r.append(f"v_fma_f32 v{u+i}, v{t+i}, v{u+i}, 1.0")
                for i in range(8): r.append(f"v_rcp_f32 v{u+i}, v{u+i}")
                for i in range(8): r.append(f"v_fma_f32 v{u+i}, -v{a+i}, v{u+i}, v{a+i}")
            for i in range(4): r.append(f"v_cvt_pk_bf16_f32 v{o+i}, v{u+2*i}, v{u+2*i+1}")
            return [I(x) for x in r]
        stok = {}
        def own_flag(st, q):
            q.wait(stok[st])
            q(f"s_mov_b64 exec, 1\nbuffer_store_dword v{VT}, off, {s(R_WS,4)}, s{S_FAW} offset:{512*st} {c.fa_st}\ns_mov_b64 exec, -1")
        body = []
        gi = 0
        for st in range(4):
            for ti in range(2):
                o = MO + 4 * (gi % 4)
                body += mish_group(ACC + 32 * (st >> 1) + 16 * ti + 8 * (st & 1), ti, o, gi & 1)
                q = Prog()
                stok[st] = q.tok(f"buffer_store_dwordx4 {v(o,4)}, v{VL16}, {s(R_WS,4)}, s{S_ACTW} offen offset:{(st&1)*2048+ti*1024} {c.act_st}")
                if gi == 3: q(f"s_add_u32 s{S_ACTW}, s{S_ACTW}, 4096")
                if ti == 1: self.stamp(f"s{st}", q, sets=(3,))
                if ti == 1 and st >= c.flag_lag: own_flag(st - c.flag_lag, q); self.stamp(f"f{st-c.flag_lag}", q, sets=(3,))
                body.append(q.items)
                gi += 1
        k0 = int(len(body) * c.mish_skip)
        p.extend(interleave(body[:k0], [])); p.extend(interleave(body[k0:], w2_ops(c.w2_sched[2], 12) + [[]]))
        self.stamp("mish", sets=(0, 4))
        rest = list(range(max(0, 4 - c.flag_lag), 4))
        def flags_rest():
            for st in rest: own_flag(st, p)
        if c.prio_a1: p(f"s_setprio {c.prio_a1}")
        def load_act(n):
            p(f"s_add_u32 s{S_Y}, s{S_AO[n%7]}, {(n//7)*2048}" if c.rot2 else f"s_add_u32 s{S_Y}, s{S_ACTR}, {(4*(n%7) + n//7)*2048}")
            for ti in range(2):
                p(f"buffer_load_dwordx4 {v(AB+8*(n%8)+4*ti,4)}, v{VL16}, {s(R_WS,4)}, s{S_Y} offen offset:{ti*1024} {c.act_ld}")
        def next_flags():
            f = self.flag_load("A", S_FAR, 7, VFL)
            return f
        def reads_upto(m):
            while nw[1] < min(m, 28): p.extend(read_w2(nw[1])[0]); nw[1] += 1
        def dmas_upto(m):
            while nw[0] < min(m, 28):
                if nw[0] in (4, 8): p.extend(slot0_sync(nw[0])[0])
                if nw[0] >= 12: assert nw[1] > nw[0] - 12
                for it in dma_w2(nw[0]): p.extend(it)
                nw[0] += 1
        D = c.adepth
        lead = c.flead
        fl = None
        na = 0
        for op in c.pre_loop.split():
            k = int(op[1:]) if len(op) > 1 else 0
            if op[0] == "R": reads_upto(k)
            elif op[0] == "D": dmas_upto(k)
            elif op[0] == "F":
                if rest: own_flag(rest.pop(0), p)
            elif op[0] == "W": p("s_waitcnt lgkmcnt(0)")
            elif op[0] == "L": fl = next_flags()
            elif op[0] == "C":
                self.stamp("w2pre", sets=(0, 3))
                self.flag_check(fl, VT + 1, on_miss=flags_rest if rest else None)
                self.stamp("act0", sets=(0, 2, 3))
                p(f"s_add_u32 s{S_FAR}, s{S_FAR}, 512"); fl = None
            elif op[0] == "A":
                while na < k: load_act(na); na += 1
            elif op[0] == "V": p("s_waitcnt vmcnt(0)")
            if op[0] not in "L": self.stamp(op + "_" + str(len(self.stamp_names["A"])), sets=(4,))
        assert na == D and nw[1] >= c.rdepth and not rest
        M0 = nw[0]
        assert (fl is not None) == (7 - D - lead < 0)
        if c.prio_a1: p("s_setprio 0")
        self.stamp("flagA", sets=(0, 2, 3))
        assert D <= 7 and c.rdepth <= 11
        main = p
        for n in range(28):
            mm = []
            for di, ti in ((0, 0), (1, 0), (0, 1), (1, 1)):
                a = v(ACC + 32 * di + 16 * ti, 16)
                mm.append(I(f"v_mfma_f32_32x32x16_bf16 {a}, {v(w2reg(n)+4*di,4)}, {v(AB+8*(n%8)+4*ti,4)}, {'0' if n == 0 else a}"))
            groups = []
            def grab(fn):
                nonlocal p
                p = self.p = Prog(); fn(); its = p.items; p = self.p = main
                return its
            def split(its):
                cur = []
                for it in its:
                    cur.append(it)
                    if isinstance(it, I) and it.kind in ("vmem", "ds", "valu"): groups.append(cur); cur = []
                if cur: groups.append(cur)
            split(grab(lambda: reads_upto(n + 1 + c.rdepth)))
            if n + D < 28:
                if (n + D) % 7 == 0:
                    groups.append(grab(lambda: (self.flag_check(fl, VT + 1), p(f"s_add_u32 s{S_FAR}, s{S_FAR}, 512"), self.stamp(f"act{(n+D)//7}", sets=(0, 2)))))
                split(grab(lambda: load_act(n + D)))
            split(grab(lambda: dmas_upto(min(nw[1] + 11, max(n + 1 + c.w2_lead, M0 + int((n + 1) * c.w2_rate))))))
            if n + D + lead < 28 and (n + D + lead) % 7 == 0:
                def nf():
                    nonlocal fl
                    if "A" in c.spoll: p("s_waitcnt lgkmcnt(0)")
                    fl = next_flags()
                groups.append(grab(nf))
            if n == 22:
                split(grab(lambda: (p(f"v_and_b32 v{VT}, 31, v0\nv_lshrrev_b32 v{VT+1}, 5, v0\nv_and_b32 v{VT+2}, 7, v0\nv_xor_b32 v{VT+1}, v{VT+1}, v{VT+2}\nv_bfe_u32 v{VT+2}, v0, 4, 1\nv_lshl_or_b32 v{VT+1}, v{VT+2}, 3, v{VT+1}"),
                      p(f"v_lshlrev_b32 v{VT+1}, 4, v{VT+1}\nv_lshl_add_u32 v{VT+1}, v{VT}, 8, v{VT+1}\nv_add_u32 v{VD}, s{S_RING}, v{VT+1}"))))
            if n == 23: split(grab(lambda: [p(f"v_xor_b32 v{VD+k}, {32*k}, v{VD}") for k in range(1, 8)]))
            if c.g2_mix:
                isv = lambda gr: any(isinstance(it, I) and it.kind == "vmem" for it in gr)
                ds = [gr for gr in groups if any(isinstance(it, I) and it.mn.startswith("ds_read_b64_tr") for it in gr)]
                rest = [gr for gr in groups if not any(gr is x for x in ds)]
                for k in range(4):
                    p.extend([mm[k]])
                    for gr in ds[k * len(ds) // 4:(k + 1) * len(ds) // 4]: p.extend(gr)
                    for gr in rest[k * len(rest) // 4:(k + 1) * len(rest) // 4]: p.extend(gr)
            else:
                p.extend(mm)
                for gr in groups: p.extend(gr)
            if n in (0, 3, 6, 10, 13, 17, 20, 24): self.stamp(f"n{n}", sets=(2, 4) if n in (0, 6) else (2,))
        self.stamp("gemm2", sets=(0, 2, 3))
        for ti in range(2):
            for di in range(2):
                for g4 in range(4):
                    p(f"ds_write_b128 v{VD+4*di+g4}, {v(ACC+32*di+16*ti+4*g4,4)} offset:{ti*SLOT}")
        p("s_waitcnt lgkmcnt(0)\ns_barrier")
        self.stamp("barF")
        self.stamp_flush(1)
        p("s_endpgm")

    def gather_table(self):
        import numpy as np
        def rb(l):
            u = np.array([l], np.float32).view(np.uint32)
            return int((((u + 0x7FFF + ((u >> 16) & 1)) >> 16) << 16).view(np.float32)[0])
        rows = list(range(8)) + list(range(128, 136)) + [256, 258, 260, 262, 384, 386, 388, 390, 512, 516, 640, 644, 768, 772, 896, 900] + [1024 + 128 * k for k in range(9)]
        pos = {}
        for i, a in enumerate(rows):
            tile, row = i >> 4, i & 15
            for col in range(16): pos[a + 8 * col] = tile * 1024 + ((row >> 2) * 16 + col) * 16 + (row & 3) * 4
        zero = 2 * 1024 + 48 * 16
        at = lambda l: zero if l < 0 else pos[rb(l)]
        words = []
        for mh in range(2):
            for half in range(2):
                for lane in range(64):
                    hiA, hiB = 2047 - 8 * (64 * mh + lane), 1023 - 8 * (64 * mh + lane)
                    e = [at(hiA - i) for i in (0, 3, 4, 10)] + [at(hiB - i) for i in range(11)] + [0]
                    e = e[8 * half: 8 * half + 8]
                    words += [e[2 * k] | (e[2 * k + 1] << 16) for k in range(4)]
        return words

    def role_b(self):
        p, c = self.p, self.c
        p.label("L_roleB")
        self.role_start(); self.stamp_begin("B")
        S_BW, S_CHN, S_MH, S_LDT, S_DSK, S_FXR, S_XTR, S_STW, S_FSW, S_FSR, S_STR, S_XO, S_STA, S_STF = range(64, 78)
        S_X, S_Y = 78, 79
        S_FXW, S_XTW, S_P0, S_P1 = 92, 93, 94, 95
        T = S_T
        VL16, VP, VGT, VG, VSW, VSR, VT = 1, 2, 8, 16, 46, 47, 50
        VRW, VTW, VTZ, VTA, VUA, VUW, VCN, VONE, VEXW, VEXR, VTAG, VUZ, VFL = range(32, 45)
        XA, XS, XD, XO = 100, 104, 8, 120
        if c.prio_b: p(f"s_setprio {c.prio_b}")
        p(f"s_sub_u32 s{S_BW}, s{S_WAVE}, 4\ns_mul_i32 s{S_CP}, s{S_XCD}, 28\ns_add_u32 s{S_CP}, s{S_CP}, s{S_J}\ns_lshl_b32 s{T}, s{S_CP}, 2")
        p(f"s_add_u32 s{T+1}, s{T}, s{S_BW}\ns_lshl_b32 s{T+1}, s{T+1}, 8\nv_lshl_add_u32 v{VT}, v0, 2, s{T+1}")
        p(f"s_load_dword s{S_LDT}, {s(P_LDT,2)}, s{T}")
        for i, ptr in enumerate((P_ARE, P_AIM, P_BRE, P_BIM, P_CRE, P_CIM)):
            p(f"global_load_dword v{VP+i}, v{VT}, {s(ptr,2)}")
        p(f"s_load_dword s{S_DSK}, {s(P_DSK,2)}, s{T}")
        self.load_epoch()
        if c.warm_w:
            p(f"s_lshr_b32 s{S_X}, s{T+1}, 8\ns_mul_i32 s{S_X}, s{S_X}, {14*128}\nv_min_u32 v{VT}, 13, v0\nv_lshl_add_u32 v{VT}, v{VT}, 7, s{S_X}\ns_mov_b64 exec, 0xffff")
            if "1" in c.warm_w: p(f"global_load_dword v62, v{VT}, {s(P_W1,2)}")
            if "2" in c.warm_w: p(f"global_load_dword v63, v{VT}, {s(P_W2,2)}")
            p("s_mov_b64 exec, -1")
        if c.warm_t == 2:
            lk = self.lab("not")
            p(f"s_cmp_lg_u32 s{S_BW}, 3\ns_cbranch_scc1 {lk}")
            p.alt_begin(); self.touch_pages(VT, 62); p.alt_end(); p.label(lk)
        if c.prio_b != c.prio_b2: p(f"s_setprio {c.prio_b2}")
        p(f"s_lshr_b32 s{S_CHN}, s{S_BW}, 1\ns_and_b32 s{S_MH}, s{S_BW}, 1\nv_lshlrev_b32 v{VL16}, 4, v0")
        p(f"s_lshl3_add_u32 s{S_STW}, s{T+1}, {WS_ST}")
        srd(p, R_LD, P_U, 2048 * 896); srd(p, R_2, P_OUT, 2048 * 896)
        if c.pf_at >= 0: p(f"s_mov_b32 s0, s{P_W2}\ns_mov_b32 s1, s{P_W2+1}")
        p(f"s_lshl1_add_u32 s{S_Y}, s{S_XF}, s{S_CHN}\ns_lshl_b32 s{S_X}, s{S_Y}, 1\nv_lshrrev_b32 v{VT+2}, 5, v0\nv_and_b32 v{VT+3}, 1, v0\nv_lshlrev_b32 v{VT+3}, 2, v{VT+3}\nv_bitop3_b32 v{VT+2}, v{VT+2}, s{S_X}, v{VT+3} bitop3:0x96")
        p(f"v_bfe_u32 v{VT+3}, v0, 3, 2\nv_lshl_add_u32 v{VT+2}, v{VT+2}, 2, v{VT+3}\nv_and_b32 v{VT+3}, 7, v0\nv_lshl_add_u32 v{VT+2}, v{VT+3}, 8, v{VT+2}\ns_add_u32 s{S_X}, s{S_MH}, 8\ns_lshl_b32 s{S_X}, s{S_X}, 13\nv_lshl_add_u32 v{XA}, v{VT+2}, 2, s{S_X}")
        for k in range(1, 4): p(f"v_xor_b32 v{XA+k}, {16*k}, v{XA}")
        p(f"v_lshrrev_b32 v{VT+2}, 3, v0\nv_lshlrev_b32 v{VT+2}, 13, v{VT+2}\nv_lshl_add_u32 v{XS}, v{VT+3}, 4, v{VT+2}")
        p(f"s_lshl1_add_u32 s{S_X}, s{S_RT}, s{S_MH}\ns_lshl2_add_u32 s{S_Y}, s{S_C2}, s{S_Y}")
        p(f"s_lshl_b32 s{S_XTW}, s{S_Y}, 9\ns_add_u32 s{S_XTW}, s{S_XTW}, s{S_X}\ns_lshl_b32 s{S_XTW}, s{S_XTW}, 7\ns_add_u32 s{S_XTW}, s{S_XTW}, {WS_XT}")
        p(f"s_lshr_b32 s{T}, s{S_X}, 3\ns_lshl2_add_u32 s{S_FXW}, s{S_Y}, s{T}\ns_lshl_b32 s{S_FXW}, s{S_FXW}, 5\ns_and_b32 s{S_X}, s{S_X}, 7\ns_add_u32 s{S_FXW}, s{S_FXW}, s{S_X}\ns_lshl2_add_u32 s{S_FXW}, s{S_FXW}, {WS_FX}")
        p(f"s_mov_b32 s{S_P0}, 0x05040100\ns_mov_b32 s{S_P1}, 0x07060302")
        late = Prog(); q = late
        q(f"s_lshl2_add_u32 s{S_R2}, s{S_XCD}, s{S_JR}")
        q(f"s_lshr_b32 s{T}, s{S_CP}, 3\ns_lshl2_add_u32 s{S_FXR}, s{T}, s{S_BW}\ns_lshl_b32 s{S_FXR}, s{S_FXR}, 7\ns_add_u32 s{S_FXR}, s{S_FXR}, {WS_FX}\ns_lshr_b32 s{T}, s{T}, 1")
        q(f"s_lshl3_add_u32 s{S_XTR}, s{S_CP}, s{S_BW}\ns_lshl_b32 s{S_XTR}, s{S_XTR}, 10\ns_add_u32 s{S_XTR}, s{S_XTR}, {WS_XT}")
        q(f"s_mul_i32 s{S_FSW}, s{S_BW}, 14\ns_add_u32 s{S_FSW}, s{S_FSW}, s{T}\ns_lshl_b32 s{S_FSW}, s{S_FSW}, 7\ns_and_b32 s{T+1}, s{S_CP}, 15\ns_add_u32 s{S_FSW}, s{S_FSW}, s{T+1}\ns_lshl2_add_u32 s{S_FSW}, s{S_FSW}, {WS_FS}")
        q(f"s_lshl1_add_u32 s{T}, s{S_C2}, s{S_CHN}")
        q(f"s_lshr_b32 s{T+1}, s{S_R2}, 3\ns_mul_i32 s{S_FSR}, s{T+1}, 14\ns_add_u32 s{S_FSR}, s{S_FSR}, s{T}\ns_lshl2_add_u32 s{S_FSR}, s{S_FSR}, s{S_JR}\ns_lshl_b32 s{S_FSR}, s{S_FSR}, 7\ns_add_u32 s{S_FSR}, s{S_FSR}, {WS_FS}")
        q(f"s_lshl_b32 s{S_STR}, s{T}, 9\ns_add_u32 s{S_STR}, s{S_STR}, s{S_R2}\ns_lshl1_add_u32 s{S_STR}, s{S_STR}, s{S_MH}\ns_lshl_b32 s{S_STR}, s{S_STR}, 7\ns_add_u32 s{S_STR}, s{S_STR}, {WS_ST}")
        q(f"s_lshl3_add_u32 s{S_XO}, s{S_R2}, s{S_MH}\ns_and_b32 s{S_STF}, s{S_XO}, 63\ns_mul_i32 s{S_XO}, s{S_XO}, {8*896}\ns_lshl_b32 s{T}, s{T}, 6\ns_add_u32 s{S_XO}, s{S_XO}, s{T}")
        q(f"s_lshl_b32 s{T+1}, s{T+1}, 8\ns_add_u32 s{S_STF}, s{S_STF}, s{T+1}\ns_lshl4_add_u32 s{S_STF}, s{S_STF}, {WS_STAT}")
        q(f"s_lshl_b32 s{S_STA}, s{S_BW}, 12\ns_add_u32 s{S_STA}, s{S_STA}, {WS_STAT}")
        q(f"v_and_b32 v{VT}, 15, v0\nv_lshrrev_b32 v{VT+1}, 4, v0")
        q(f"s_mul_i32 s{T}, s{S_BW}, 8448\ns_mov_b32 m0, s{T}\nv_mul_u32_u24 v{VT+2}, 528, v{VT}\nv_and_b32 v{VT+3}, 256, v{VL16}\nv_add3_u32 v{VT+2}, v{VT+2}, v{VT+3}, s{T}\nv_lshrrev_b32 v{VT+3}, 5, v0\nv_lshl_add_u32 v{VSR}, v{VT+3}, 4, v{VT+2}")
        if not c.addtid: q(f"v_lshl_add_u32 v{VSW}, v0, 3, s{T}")
        q(f"s_lshl_b32 s{T}, s{S_BW}, 13\nv_add_u32 v{VEXW}, s{T}, v{VL16}")
        q(f"s_mul_i32 s{T}, s{S_BW}, 3072\ns_add_u32 s{T}, s{T}, {L_RAW}\nv_add_u32 v{VRW}, s{T}, v{VL16}")
        q(f"s_mul_i32 s{T}, s{S_CHN}, 16640\ns_add_u32 s{T}, s{T}, {L_TAB}\ns_lshl_b32 s{T+1}, s{S_MH}, 10\ns_add_u32 s{T+1}, s{T+1}, s{T}\nv_add_u32 v{VTW}, s{T+1}, v{VL16}")
        q(f"v_lshrrev_b32 v{VT+2}, 1, v0\nv_mul_u32_u24 v{VT+2}, 4160, v{VT+2}\nv_and_b32 v{VT+3}, 16, v{VL16}\nv_add3_u32 v{VTZ}, v{VT+2}, v{VT+3}, s{T}")
        q(f"v_sub_u32 v{VT+2}, 3, v{VT}\nv_and_b32 v{VT+2}, 3, v{VT+2}\nv_mul_u32_u24 v{VT+3}, {4160-2}, v{VT+2}\nv_lshl_add_u32 v{VT+3}, v{VT+1}, 4, v{VT+3}\nv_lshlrev_b32 v{VT+2}, 1, v{VT}\nv_sub_u32 v{VT+3}, v{VT+3}, v{VT+2}")
        q(f"s_lshl_b32 s{T+1}, s{S_MH}, 8\ns_sub_u32 s{T}, s{T}, s{T+1}\ns_add_u32 s{T}, s{T}, {2*(2031-1792-96)}\nv_add_u32 v{VTA}, s{T}, v{VT+3}")
        q(f"s_mul_i32 s{S_X}, s{S_CHN}, 4608\ns_sub_u32 s{T}, s{S_X}, s{T+1}\ns_add_u32 s{T}, s{T}, {L_U+2*(240-96)}\nv_lshlrev_b32 v{VT+2}, 5, v{VT}\nv_lshl_add_u32 v{VT+2}, v{VT+1}, 4, v{VT+2}\nv_add_u32 v{VUA}, s{T}, v{VT+2}")
        q(f"s_add_u32 s{S_X}, s{S_X}, s{T+1}\ns_add_u32 s{S_X}, s{S_X}, {L_U}\nv_lshl_add_u32 v{VUZ}, v0, 2, s{S_X}")
        q(f"s_lshl_b32 s{T}, s{S_BW}, 10\ns_add_u32 s{T}, s{T}, {L_U+512}\nv_add_u32 v{VUW}, s{T}, v{VL16}")
        q(f"s_lshl_b32 s{T}, s{S_BW}, 11\ns_add_u32 s{T}, s{T}, {L_EX}\nv_add_u32 v{VEXR}, s{T}, v{VL16}")
        VZ = 56
        for i in range(4): q(f"v_mov_b32 v{VZ+i}, 0")
        q(f"v_mov_b32 v{VCN}, {L_CNT}\nv_mov_b32 v{VONE}, 1")
        if "X" not in c.spoll: q(f"v_min_u32 v{VFL}, 7, v0\nv_lshlrev_b32 v{VFL}, 2, v{VFL}")
        k = int(len(late.items) * c.b_pre)
        p.extend(late.items[:k]); late.items = late.items[k:]
        T = 90
        self.make_tag()
        p(f"s_lshl_b32 s{T}, s{S_CHN}, 4\ns_lshr_b32 s{S_LDT}, s{S_LDT}, s{T}\ns_lshl_b32 s{S_LDT}, s{S_LDT}, 16\ns_lshr_b32 s{S_DSK}, s{S_DSK}, s{T}\ns_lshl_b32 s{S_DSK}, s{S_DSK}, 16")
        VDT = 60
        p(f"v_mov_b32 v{VDT}, {LOG2E}\nv_mul_f32 v{VDT}, s{S_LDT}, v{VDT}\nv_exp_f32 v{VDT}, v{VDT}\nv_mov_b32 v{VTAG}, s{S_TAG}\nv_cvt_pk_bf16_f32 v{VDT}, v{VDT}, v{VDT}\nv_and_b32 v{VDT}, 0xffff0000, v{VDT}\nv_mov_b32 v{VDT+1}, v{VDT}")
        self.stamp("pre", sets=(0, 1))
        Z1, Z2, Z4, Z8, Z128, XB, XC, XDD, TM = 64, 68, 72, 76, 80, 84, 88, 92, 96
        AL, BE, UB, CV = 108, 110, 112, 120
        YF, XF, KV, KA = 128, 160, 128, 244
        units = []
        def unpack(d, src): p(f"v_lshlrev_b32 v{d}, 16, v{src}\nv_and_b32 v{d+1}, 0xffff0000, v{src}")
        def mul2(d, a, b, pk):
            if pk: p(f"v_pk_mul_f32 {v(d,2)}, {v(a,2)}, {v(b,2)}")
            else: p(f"v_mul_f32 v{d}, v{a}, v{b}\nv_mul_f32 v{d+1}, v{a+1}, v{b+1}")
        def cmul_(d, a, b, pk):
            assert d != b
            mul2(TM, a, b, pk); mul2(TM + 2, a, b + 2, pk)
            if pk:
                p(f"v_pk_fma_f32 {v(d,2)}, {v(a+2,2)}, {v(b+2,2)}, {v(TM,2)} neg_lo:[1,0,0] neg_hi:[1,0,0]")
                p(f"v_pk_fma_f32 {v(d+2,2)}, {v(a+2,2)}, {v(b,2)}, {v(TM+2,2)}")
            else:
                for m in range(2): p(f"v_fma_f32 v{d+m}, -v{a+2+m}, v{b+2+m}, v{TM+m}")
                for m in range(2): p(f"v_fma_f32 v{d+2+m}, v{a+2+m}, v{b+m}, v{TM+2+m}")
        def cmul(d, a, b): units.append((8, lambda pk: cmul_(d, a, b, pk)))
        def put(e, a, conj):
            ng = "-" if conj else ""
            units.append((2, lambda pk: (have.add(e), p(f"v_cvt_pk_bf16_f32 v{KV+2*e}, v{a}, {ng}v{a+2}\nv_cvt_pk_bf16_f32 v{KV+2*e+1}, v{a+1}, {ng}v{a+3}"))))
        have = {0}
        def getfr(base):
            return [I(f"ds_read_b128 {v(base+4*fr,4)}, v{VSR} offset:{fr*32}") for fr in range(8)]
        def kmfma(tile, base):
            a = v(KA + 4 * tile, 4)
            return [I(f"v_mfma_f32_16x16x32_bf16 {a}, {v(base+4*fr,4)}, {v(YF+4*fr,4)}, {'0' if fr == 0 else a}") for fr in range(8)]
        def zpow_(d, lg, pk):
            for m in range(2):
                if lg: p(f"v_ldexp_f32 v{TM+m}, v{AL+m}, {lg}\nv_ldexp_f32 v{TM+2+m}, v{BE+m}, {lg}")
                a, b = (TM + m, TM + 2 + m) if lg else (AL + m, BE + m)
                p(f"v_exp_f32 v{TM+m}, v{a}\nv_fract_f32 v{TM+2+m}, v{b}")
            for m in range(2): p(f"v_cos_f32 v{d+m}, v{TM+2+m}\nv_sin_f32 v{d+2+m}, v{TM+2+m}")
            mul2(d, d, TM, pk); mul2(d + 2, d + 2, TM, pk)
        def zpow(d, lg): units.append((22, lambda pk: zpow_(d, lg, pk)))
        p(f"v_mov_b32 v{KV}, 0x3f80\nv_mov_b32 v{KV+1}, 0x3f80")
        unpack(AL, VP); unpack(BE, VP + 1)
        self.stamp("params", sets=(0, 1))
        mul2(AL, AL, VDT, True); mul2(BE, BE, VDT, True)
        for m in range(2): p(f"v_mul_f32 v{AL+m}, {LOG2E}, v{AL+m}\nv_mul_f32 v{BE+m}, 0.15915494, v{BE+m}")
        early_done = [None]
        zpow(Z8, 3)
        put(1, Z8, False)
        prev = Z8
        for r in range(2, 16): cmul(XB, prev, Z8); prev = XB; put(r, XB, False)
        zpow(Z1, 0); zpow(Z128, 7)
        units.append((8, lambda pk: [unpack(UB + 2 * i, VP + 2 + i) for i in range(4)]))
        cmul(XC, UB, UB + 4)
        units.append((4, lambda pk: (mul2(XC, XC, VDT, pk), mul2(XC + 2, XC + 2, VDT, pk))))
        cmul(XB, XC, Z128)
        put(16, XC, True); put(24, XB, True)
        prev = XB
        for r in range(1, 8):
            cmul(XC, XC, Z1); put(16 + r, XC, True)
            cmul(XDD, prev, Z1); prev = XDD; put(24 + r, XDD, True)
        for it in late.items: units.append((1, lambda pk, it=it: p.extend([it])))
        cmul(Z2, Z1, Z1); cmul(Z4, Z2, Z2)
        for k in range(2):
            cmul(XB, XB, Z128); put(32 + 4 * k, XB, True); prev = XB
            for r in range(1, 4): cmul(XC, prev, Z2); prev = XC; put(32 + 4 * k + r, XC, True)
        for k in range(4):
            cmul(XB, XB, Z128); put(40 + 2 * k, XB, True)
            cmul(XC, XB, Z4); put(41 + 2 * k, XC, True)
        for k in range(9): cmul(XB, XB, Z128); put(48 + k, XB, True)
        total = sum(u[0] for u in units)
        SG, SR = 64, 80
        sloads = "\n".join(f"buffer_load_dwordx4 {v(SG+4*i,4)}, v{VL16}, {s(R_WS,4)}, s{S_STA} offen offset:{1024*i} sc1" for i in range(4))
        cuts = [c.kg_pre] + [c.kg_pre + (total - c.kg_pre) * (i - c.kg_x) / (c.kg_ints - c.kg_x) for i in range(1, 7)]
        lops = []
        for e in range(57):
            if c.addtid: it = [I(f"ds_write_addtid_b32 v{KV+2*e+m} offset:{(e&15)*528+256*m}") for m in range(2)]
            else: it = [I(f"ds_write_b64 v{VSW}, {v(KV+2*e,2)} offset:{(e&15)*528}")]
            if 40 <= e < 48: it.append(kmfma(0, XF)[e - 40])
            if e >= 49: it.append(kmfma(1, XF + 32)[e - 49])
            if e in (15, 31, 47, 56): it += getfr({15: YF, 31: XF, 47: XF + 32, 56: XF}[e])
            lops.append(it)
        nl = [0]
        def lds_upto(m):
            while nl[0] < m:
                assert nl[0] in have
                p.extend(lops[nl[0]]); nl[0] += 1
        done = 0; nb = 0; fx = [None]; xt = [None]
        def barrier():
            nonlocal nb
            lds_upto(c.lds_cut[nb])
            if nb == 0 and nl[0]: assert nl[0] % 16 == 0; p("s_waitcnt lgkmcnt(0)")
            if 1 <= nb <= 4: assert c.lds_cut[nb] == c.lds_cut[0]
            if nb == c.fx_at: p.wait(xt[0]); self.flag_store(S_FXW, VTAG)
            self.stamp(f"atbar{nb}", sets=(0, 1) if nb == 0 else (1,))
            if nb == 5: p.wait(init[0])
            p("s_barrier")
            if nb == 0:
                if c.prio_xt != c.prio_b2: p(f"s_setprio {c.prio_xt}")
                for i in range(8): p(f"ds_read_b32 v{XD+i}, v{XA+(i>>1)} offset:{i*128}")
                for e in range(2):
                    for j in range(4): p(f"v_perm_b32 v{XO+4*e+j}, v{XD+2*j+1}, v{XD+2*j}, s{S_P1 if e else S_P0}")
                    xt[0] = p.tok(f"buffer_store_dwordx4 {v(XO+4*e,4)}, v{XS}, {s(R_WS,4)}, s{S_XTW} offen sc1")
                    if e == 0: p(f"s_add_u32 s{S_XTW}, s{S_XTW}, 4096")
                if c.prio_xt != c.prio_b2: p(f"s_setprio {c.prio_b2}")
            if nb == 4:
                p(f"ds_write_b32 v{VUZ}, v{VZ}"); init.append(p.tok(f"ds_write_b64 v{VCN}, {v(VZ,2)}"))
                self.stamp("bar4", sets=(0, 3))
            if nb == c.gt_at:
                p(f"s_lshl_b32 s{T}, s{S_MH}, 11\ns_add_u32 s{T}, s{T}, L_gtab-L_pc")
                for h in range(2): p(f"buffer_load_dwordx4 {v(VGT+4*h,4)}, v{VL16}, {s(R_PC,4)}, s{T} offen offset:{1024*h}")
            if nb == c.st_at:
                assert done == total
                p(sloads)
            if nb == c.pf_at:
                p(f"s_lshl2_add_u32 s{T}, s{S_J}, s{S_BW}\ns_mul_i32 s{T}, s{T}, {112*128}\nv_min_u32 v62, 55, v0\nv_lshl_add_u32 v62, v62, 7, s{T}\nv_add_u32 v63, {56*128}, v62")
                p(f"global_load_dword v62, v62, s[0:1]\nglobal_load_dword v63, v63, s[0:1]")
            nb += 1
        init = []
        for cost, fn in units:
            while nb < 6 and done >= cuts[nb]: barrier()
            fn(nb == 0); done += cost
            if nb == 0 and c.fuse0:
                while nl[0] < c.lds_cut[0] and nl[0] in have: lds_upto(nl[0] + 1)
        while nb < 6: barrier()
        if c.prio_b3 != c.prio_b2: p(f"s_setprio {c.prio_b3}")
        XR, XR2 = 2, 52
        fx = self.flag_load("X", S_FXR, 8, VFL)
        if c.prio_at < c.fx_chk: lds_upto(c.prio_at); p(f"s_setprio {c.prio_b4}")
        lds_upto(max(nl[0], c.fx_chk))
        self.flag_check(fx, VT)
        self.stamp("fx", sets=(0, 3))
        p(f"buffer_load_dwordx4 {v(XR,4)}, v{VL16}, {s(R_WS,4)}, s{S_XTR} offen sc1\ns_add_u32 s{S_XTR}, s{S_XTR}, 4096\nbuffer_load_dwordx4 {v(XR2,4)}, v{VL16}, {s(R_WS,4)}, s{S_XTR} offen sc1")
        lds_upto(57)
        p(f"s_mul_i32 s{T}, s{S_CHN}, 6144\ns_add_u32 s{T}, s{T}, {L_RAW}\ns_cmp_eq_u32 s{S_MH}, 0\ns_cselect_b32 s{S_DSK}, s{S_DSK}, 0")
        p(f"v_mov_b32 v{VT}, s{S_DSK}\nv_cmp_eq_u32 vcc, 0, v0\nv_mov_b32 v{VT+1}, s{T}\nv_cndmask_b32 v{VT}, 0, v{VT}, vcc\nv_add_f32 v{KA}, v{KA}, v{VT}")
        p(f"ds_write_b128 v{VRW}, {v(KA,4)}\nv_cmp_gt_u32 vcc, 48, v0\nds_write_b128 v{VRW}, {v(KA+4,4)} offset:1024")
        p.extend(kmfma(2, XF))
        T = S_T
        for k in range(15):
            p(f"v_add_u32_sdwa v{VG+k}, v{VT+1}, v{VGT+(k>>1)} dst_sel:DWORD dst_unused:UNUSED_PAD src0_sel:DWORD src1_sel:WORD_{k&1}")
        p(f"v_cndmask_b32 v{KA+8}, 0, v{KA+8}, vcc\nds_write_b128 v{VRW}, {v(KA+8,4)} offset:2048")
        self.lds_arrive(VCN, VONE, 4)
        self.stamp("kgen", sets=(0, 3))
        if c.prio_b4 != c.prio_b3: p(f"s_setprio {c.prio_b4}")
        self.tagged_check(sloads, [SG + 2 * i + 1 for i in range(8)], VT)
        self.lds_wait(VCN, VT, 4, off=4)
        GV, PK = 96, 128
        for k in range(15): p(f"ds_read2st64_b32 {v(GV+2*k,2)}, v{VG+k} offset0:0 offset1:12")
        for i in range(8):
            p(f"v_and_b32 v{SR+i}, 0xffff0000, v{SG+2*i}\nv_rcp_f32 v{SR+i}, v{SR+i}\nv_lshlrev_b32 v{SR+8+i}, 16, v{SG+2*i}\nv_mul_f32 v{SR+8+i}, -v{SR+8+i}, v{SR+i}")
        for k in range(15): p(f"v_add_f32 v{GV+2*k}, v{GV+2*k}, v{GV+2*k+1}")
        seq = [[0, 0, 0, 1, 2, 2, 2, 2, 2, 2, 3], list(range(4, 15))]
        for task in range(2):
            for cp_ in range(4):
                for j in range(4):
                    p(f"v_cvt_pk_bf16_f32 v{PK+16*task+4*cp_+j}, v{GV+2*seq[task][cp_+2*j]}, v{GV+2*seq[task][cp_+2*j+1]}")
                p(f"ds_write_b128 v{VTW}, {v(PK+16*task+4*cp_,4)} offset:{cp_*4160+task*2048}")
        p(f"s_mov_b64 exec, 0xff\nds_write_b128 v{VTZ}, {v(VZ,4)} offset:4096\ns_mov_b64 exec, -1")
        self.stamp("tables", sets=(0, 3, 4))
        for ch in range(2):
            for j in range(4):
                a = SG + 8 * ch + 2 * j; x = (XR2 if ch else XR) + j
                p(f"v_lshlrev_b32 v{a}, 16, v{x}\nv_and_b32 v{a+1}, 0xffff0000, v{x}\nv_fma_f32 v{a}, v{a}, v{SR+2*j}, v{SR+8+2*j}\nv_fma_f32 v{a+1}, v{a+1}, v{SR+2*j+1}, v{SR+9+2*j}\nv_cvt_pk_bf16_f32 v{x}, v{a}, v{a+1}")
            p(f"ds_write_b128 v{VUW}, {v(XR2 if ch else XR,4)} offset:{4608*ch}")
        self.lds_arrive(VCN, VONE, 4)
        self.lds_wait(VCN, VT, 8, off=4)
        self.stamp("u", sets=(0, 3, 4))
        if c.prio_b5 != c.prio_b4: p(f"s_setprio {c.prio_b5}")
        TF, UF, CA = 96, 160, 224
        def read_tu(ph):
            r = [I(f"ds_read_b128 {v(UF+32*(ph&1),4)}, v{VUA} offset:{2*32*(3-ph)}")]
            for a in range(8):
                for h in range(2):
                    r.append(I(f"ds_read_b64 {v(TF+32*(ph&1)+4*a+2*h,2)}, v{VTA} offset:{2*(256*(7-a)+32*(3-ph))+8*h}"))
            return r + [I(f"ds_read_b128 {v(UF+32*(ph&1)+4*b,4)}, v{VUA} offset:{2*(256*b+32*(3-ph))}") for b in range(1, 8)]
        r0 = read_tu(0)
        p.extend(r0[:13])
        for ph in range(4):
            mm = []
            for b in range(8):
                for a in range(8 - b):
                    acc = v(CA + 4 * (a + b), 4)
                    mm.append(I(f"v_mfma_f32_16x16x32_bf16 {acc}, {v(UF+32*(ph&1)+4*b,4)}, {v(TF+32*(ph&1)+4*a,4)}, {'0' if (ph == 0 and b == 0) else acc}"))
            fill = (r0[13:] if ph == 0 else []) + (read_tu(ph + 1) if ph < 3 else [])
            if ph == 3:
                self.lds_arrive(VCN, VONE, 4)
                p.extend(mm[:26])
                if c.prio_b6 != c.prio_b5: p(f"s_setprio {c.prio_b6}")
                self.lds_wait(VCN, VT, 12, off=4); mm = mm[26:]
                fill = [I(f"ds_write_b128 v{VEXW}, {v(CA+4*cc,4)} offset:{1024*cc}") for cc in range(4)]
                p.extend(interleave(mm, fill, ratio=0.5))
            else: p.extend(interleave(mm, fill, ratio=1.0))
        self.stamp("conv", sets=(0, 2, 3, 4))
        for cc in range(4, 8): p(f"ds_write_b128 v{VEXW}, {v(CA+4*cc,4)} offset:{1024*cc}")
        self.lds_arrive(VCN, VONE, 4)
        VXO, VPA, VSA, XI, RG = 10, 11, 13, 16, 24
        p(f"v_bfe_u32 v{VT}, v0, 2, 2\nv_lshrrev_b32 v{VT+1}, 4, v0\nv_and_b32 v{VT+2}, 3, v0")
        p(f"v_lshl_add_u32 v{VT+3}, v{VT}, 4, v{VT+1}\nv_mul_u32_u24 v{VXO}, 896, v{VT+3}\nv_lshl_add_u32 v{VXO}, v{VT+2}, 4, v{VXO}")
        p(f"v_lshrrev_b32 v{VT+4}, 5, v0\nv_lshlrev_b32 v{VT+4}, 10, v{VT+4}\nv_lshl_add_u32 v{VT+4}, v{VT}, 5, v{VT+4}\nv_and_b32 v{VT+5}, 1, v{VT+1}\nv_lshl_add_u32 v{VT+4}, v{VT+5}, 3, v{VT+4}")
        self.lds_wait(VCN, VT + 6, 16, off=4)
        EXV = 96
        for k in range(2):
            for w in range(4): p(f"ds_read_b128 {v(EXV+16*k+4*w,4)}, v{VEXR} offset:{8192*w+1024*k}")
        for k in range(2):
            b = EXV + 16 * k
            for r in range(4): p(f"v_add_f32 v{b+r}, v{b+r}, v{b+4+r}\nv_add_f32 v{b+8+r}, v{b+8+r}, v{b+12+r}")
            for r in range(4): p(f"v_cvt_pk_bf16_f32 v{b+4+r}, v{b+r}, v{b+8+r}")
            sttok = p.tok(f"buffer_store_dwordx4 {v(b+4,4)}, v{VL16}, {s(R_WS,4)}, s{S_STW} offen offset:{1024*k} sc1")
        self.stamp("st", sets=(0, 2, 3, 4))
        for ps in range(2): p(f"buffer_load_dwordx4 {v(XI+4*ps,4)}, v{VXO}, {s(R_LD,4)}, s{S_XO} offen offset:{ps*4*896}")
        for ps in range(2): p(f"buffer_load_dword v{RG+ps}, v{VT+4}, {s(R_WS,4)}, s{S_STF} offen offset:{ps*2048} sc1")
        p(f"s_lshl3_add_u32 s{T}, s{S_MH}, {L_RING//256}\nv_and_b32 v{VT+4}, 1, v{VT}\nv_lshl_add_u32 v{VT+5}, v{VT+4}, 4, v{VT+1}\nv_add_u32 v{VT+5}, s{T}, v{VT+5}\nv_lshlrev_b32 v{VT+5}, 8, v{VT+5}")
        p(f"v_lshrrev_b32 v{VT+6}, 1, v{VT}\nv_lshl_add_u32 v{VT+5}, v{VT+6}, 15, v{VT+5}")
        p(f"v_xor_b32 v{VT+4}, s{S_CHN}, v{VT+4}\nv_lshlrev_b32 v{VT+4}, 3, v{VT+4}\nv_lshl_add_u32 v{VT+4}, v{VT+2}, 1, v{VT+4}\nv_xor_b32 v{VT+4}, v{VT+4}, v{VT+1}\nv_lshl_add_u32 v{VPA}, v{VT+4}, 4, v{VT+5}")
        VP4 = 28
        for ps in range(2):
            for e in range(2): p(f"v_xor_b32 v{VP4+2*ps+e}, {64*ps+16*e}, v{VPA}")
        p(f"s_mul_i32 s{T}, s{S_BW}, 2176\ns_add_u32 s{T}, s{T}, {L_STR}")
        p(f"v_lshrrev_b32 v{VT+4}, 5, v0\nv_lshl_add_u32 v{VT+4}, v{VT+4}, 5, v{VL16}\nv_add_u32 v{VSA}, s{T}, v{VT+4}")
        p(f"v_mul_u32_u24 v{VT+4}, 544, v{VT+2}\nv_and_b32 v{VT+5}, 60, v0\nv_add3_u32 v{VSA+1}, v{VT+4}, v{VT+5}, s{T}")
        p(f"v_lshrrev_b32 v{VT+4}, 3, v0\nv_lshlrev_b32 v{VT+4}, 13, v{VT+4}\nv_and_b32 v{VT+5}, 7, v0\nv_lshl_add_u32 v{VSA+2}, v{VT+5}, 4, v{VT+4}")
        if "S" not in c.spoll: p(f"v_min_u32 v{VFL}, 15, v0\nv_lshlrev_b32 v{VFL}, 2, v{VFL}")
        p(f"v_lshlrev_b32 v{VT+4}, 7, v0")
        p.wait(sttok)
        p(f"s_mov_b64 exec, 15\nbuffer_store_dword v{VTAG}, v{VT+4}, {s(R_WS,4)}, s{S_FSW} offen sc1\ns_mov_b64 exec, -1")
        self.stamp("flagS")
        fs = self.flag_load("S", S_FSR, 16, VFL)
        XF32, RR, SV, SRF = 128, 2, 64, 144
        for ps in range(2):
            for j in range(4):
                p(f"v_lshlrev_b32 v{XF32+8*ps+2*j}, 16, v{XI+4*ps+j}\nv_and_b32 v{XF32+8*ps+2*j+1}, 0xffff0000, v{XI+4*ps+j}")
            p(f"v_and_b32 v{RG+ps}, 0xffff0000, v{RG+ps}\nv_rcp_f32 v{RG+ps}, v{RG+ps}\nv_mul_f32 v{RR+2*ps}, {LOG2E | 0x80000000}, v{RG+ps}\nv_mul_f32 v{RR+2*ps+1}, {LOG2E | 0x80000000}, v{RG+ps}")
        self.flag_check(fs, VT, sleep=c.fs_sleep)
        self.stamp("fs", sets=(0, 2, 3))
        p(f"buffer_load_dwordx4 {v(SV,4)}, v{VSA+2}, {s(R_WS,4)}, s{S_STR} offen sc1\ns_add_u32 s{S_STR}, s{S_STR}, 65536\nbuffer_load_dwordx4 {v(SV+4,4)}, v{VSA+2}, {s(R_WS,4)}, s{S_STR} offen sc1")
        for j in range(2): p(f"ds_write_b128 v{VSA}, {v(SV+4*j,4)} offset:{1088*j}")
        for ps in range(2):
            for i in range(4): p(f"ds_read_b32 v{SV+8+4*ps+i}, v{VSA+1} offset:{128*i+64*ps}")
        for ps in range(2):
            for i in range(4):
                a = SRF + 8 * ps + 2 * i; x = SV + 8 + 4 * ps + i
                p(f"v_lshlrev_b32 v{a}, 16, v{x}\nv_and_b32 v{a+1}, 0xffff0000, v{x}\nv_mul_f32 v{a}, v{a}, v{RG+ps}\nv_mul_f32 v{a+1}, v{a+1}, v{RG+ps}")
        self.stamp("sready", sets=(0, 2, 3))
        p("s_barrier")
        PV = 160
        for ps in range(2):
            for w in range(4):
                for e in range(2):
                    p(f"ds_read_b128 {v(PV+32*ps+8*w+4*e,4)}, v{VP4+2*ps+e} offset:{8192*w+1024*ps}")
        for ps in range(2):
            b = PV + 32 * ps
            for i in range(0, 8, 2): p(f"v_pk_add_f32 {v(b+i,2)}, {v(b+i,2)}, {v(b+8+i,2)}")
            for i in range(0, 8, 2): p(f"v_pk_add_f32 {v(b+16+i,2)}, {v(b+16+i,2)}, {v(b+24+i,2)}")
            for i in range(0, 8, 2): p(f"v_pk_add_f32 {v(b+i,2)}, {v(b+i,2)}, {v(b+16+i,2)}")
            for i in range(0, 8, 2): p(f"v_pk_mul_f32 {v(b+8+i,2)}, {v(b+i,2)}, {v(RR+2*ps,2)}")
            for i in range(8): p(f"v_exp_f32 v{b+8+i}, v{b+8+i}")
            for i in range(0, 8, 2): p(f"v_pk_mul_f32 {v(b+i,2)}, {v(b+i,2)}, {v(SRF+8*ps+i,2)}")
            for i in range(0, 8, 2): p(f"v_pk_add_f32 {v(b+8+i,2)}, {v(b+8+i,2)}, 1.0 op_sel_hi:[1,0]")
            for i in range(8): p(f"v_rcp_f32 v{b+8+i}, v{b+8+i}")
            for i in range(0, 8, 2): p(f"v_pk_fma_f32 {v(b+i,2)}, {v(b+i,2)}, {v(b+8+i,2)}, {v(XF32+8*ps+i,2)}")
            for i in range(4): p(f"v_cvt_pk_bf16_f32 v{b+16+i}, v{b+2*i}, v{b+2*i+1}")
            p(f"buffer_store_dwordx4 {v(b+16,4)}, v{VXO}, {s(R_2,4)}, s{S_XO} offen offset:{ps*4*896}")
        self.stamp("end", sets=(0, 2, 3, 4))
        self.stamp_flush(1)
        p("s_endpgm")

    def role_h(self):
        p, c = self.p, self.c
        p.label("L_helper")
        self.role_start(); self.stamp_begin("H")
        S_HH, S_X, S_Y, S_ONE, S_LO, S_HI, S_Q, S_CG = 64, 65, 66, 67, 68, 69, 70, 71
        T = S_T
        VT, XD, WD, AC = 1, 16, 48, 80
        p(f"s_lshl_b32 s{S_HH}, s{S_XCD}, 2\ns_add_u32 s{S_HH}, s{S_HH}, s{S_J}\ns_sub_u32 s{S_HH}, s{S_HH}, 28")
        p(f"s_lshl_b32 s{T}, s{S_HH}, 1\ns_and_b32 s{T+1}, s{S_WAVE}, 1\ns_add_u32 s{T}, s{T}, s{T+1}\ns_lshl_b32 s{T}, s{T}, 5\ns_and_b32 s{S_X}, s{S_WAVE}, 6\ns_add_u32 s{T}, s{T}, s{S_X}\ns_mul_i32 s{S_X}, s{T}, 896")
        p(f"v_lshrrev_b32 v{VT}, 4, v0\nv_bfe_u32 v{VT+1}, v0, 3, 1\nv_lshl_add_u32 v{VT}, v{VT}, 3, v{VT+1}\nv_mul_u32_u24 v{VT}, 896, v{VT}\nv_and_b32 v{VT+1}, 7, v0\nv_lshl_add_u32 v{VT}, v{VT+1}, 4, v{VT}")
        srd(p, R_LD, P_U, 2048 * 896)
        for i in range(7): p(f"buffer_load_dwordx4 {v(XD+4*i,4)}, v{VT}, {s(R_LD,4)}, s{S_X} offen offset:{128*i}")
        self.load_epoch(); srd(p, R_2, P_W1, 448 * 3584); srd(p, R_PC, P_W2, 1792 * 896)
        p(f"s_lshr_b32 s{S_Q}, s{S_XCD}, 1\ns_lshl2_add_u32 s{S_Q}, s{S_Q}, s{S_J}\ns_sub_u32 s{S_Q}, s{S_Q}, 28\ns_and_b32 s{S_CG}, s{S_XCD}, 1\ns_mul_i32 s{S_CG}, s{S_CG}, 14\ns_min_u32 s{T}, s{S_Q}, 13\ns_add_u32 s{S_CG}, s{S_CG}, s{T}")
        p(f"s_lshl_b32 s{T}, s{S_CG}, 7\ns_mul_i32 s{S_Y}, s{S_WAVE}, {56*3584}\ns_add_u32 s{S_Y}, s{S_Y}, s{T}")
        p(f"v_lshrrev_b32 v{VT+2}, 3, v0\nv_mul_u32_u24 v{VT+2}, 3584, v{VT+2}\nv_lshl_add_u32 v{VT+2}, v{VT+1}, 4, v{VT+2}")
        for i in range(7):
            p(f"buffer_load_dwordx4 {v(WD+4*i,4)}, v{VT+2}, {s(R_2,4)}, s{S_Y} offen")
            if i < 6: p(f"s_add_u32 s{S_Y}, s{S_Y}, {8*3584}")
        if c.h_early:
            p(f"s_sub_u32 s{T}, s{S_J}, 28\ns_mul_i32 s{T}, s{T}, 7\ns_add_u32 s{T}, s{T}, s{S_WAVE}\ns_lshl3_add_u32 s{T}, s{T}, s{S_XCD}\ns_mul_i32 s{T}, s{T}, {8*896}\ns_cmp_eq_u32 s{S_WAVE}, 7\ns_cselect_b32 s{T}, {1792*896}, s{T}")
            p(f"v_min_u32 v100, 55, v0\nv_lshlrev_b32 v100, 7, v100\nbuffer_load_dword v101, v100, {s(R_PC,4)}, s{T} offen")
        if c.warm_t == 1:
            lk = self.lab("not")
            p(f"s_cmp_lg_u32 s{S_WAVE}, 7\ns_cbranch_scc1 {lk}")
            p.alt_begin(); self.touch_pages(100, 101); p.alt_end(); p.label(lk)
        p(f"s_mov_b32 s{S_ONE}, 0x3f803f80\ns_mov_b32 s{S_LO}, 0x00003f80\ns_mov_b32 s{S_HI}, 0x3f800000")
        p(f"s_lshr_b32 s{T}, s{S_HH}, 3\ns_lshl_b32 s{T}, s{T}, 2\ns_lshr_b32 s{S_X}, s{S_WAVE}, 1\ns_add_u32 s{T}, s{T}, s{S_X}\ns_lshl_b32 s{T}, s{T}, 3\ns_and_b32 s{S_X}, s{S_HH}, 7\ns_add_u32 s{T}, s{T}, s{S_X}")
        p(f"s_lshl_b32 s{T}, s{T}, 1\ns_add_u32 s{T}, s{T}, s{T+1}\ns_lshl_b32 s{T}, s{T}, 6\ns_add_u32 s{S_X}, s{T}, {WS_STAT}")
        self.make_tag()
        self.stamp("issued")
        for i in range(4): p(f"v_mov_b32 v{AC+i}, 0")
        for i in range(28):
            p(f"v_dot2_f32_bf16 v{AC+(i&1)}, v{XD+i}, s{S_ONE}, v{AC+(i&1)}\nv_dot2_f32_bf16 v{AC+2+(i&1)}, v{XD+i}, v{XD+i}, v{AC+2+(i&1)}")
        p(f"v_add_f32 v{AC}, v{AC}, v{AC+1}\nv_add_f32 v{AC+1}, v{AC+2}, v{AC+3}")
        for pat in ("quad_perm:[1,0,3,2]", "quad_perm:[2,3,0,1]", "row_half_mirror"):
            for k in range(2): p(f"v_add_f32_dpp v{AC+k}, v{AC+k}, v{AC+k} {pat} row_mask:0xf bank_mask:0xf")
        inv = 0x3b124925
        p(f"v_mul_f32 v{AC}, {inv}, v{AC}\nv_mul_f32 v{AC+1}, {inv}, v{AC+1}\nv_fma_f32 v{AC+1}, -v{AC}, v{AC}, v{AC+1}\nv_max_f32 v{AC+1}, 0, v{AC+1}")
        p(f"v_cvt_pk_bf16_f32 v{AC+1}, v{AC+1}, v{AC+1}\nv_and_b32 v{AC+1}, 0xffff0000, v{AC+1}\nv_add_f32 v{AC+1}, 0x3727c5ac, v{AC+1}")
        p(f"v_cvt_pk_bf16_f32 v{AC+1}, v{AC+1}, v{AC+1}\nv_and_b32 v{AC+1}, 0xffff0000, v{AC+1}\nv_sqrt_f32 v{AC+1}, v{AC+1}")
        p(f"v_mov_b32 v{AC+3}, s{S_TAG}\nv_cvt_pk_bf16_f32 v{AC+2}, v{AC}, v{AC+1}")
        p(f"s_mov_b32 exec_lo, 0x01010101\ns_mov_b32 exec_hi, 0x01010101\nbuffer_store_dwordx2 {v(AC+2,2)}, v0, {s(R_WS,4)}, s{S_X} offen sc1\ns_mov_b64 exec, -1")
        self.stamp("stats")
        p(f"s_cmp_ge_u32 s{S_Q}, 14\ns_cbranch_scc1 L_hnocs")
        CS = 88
        for k in range(8): p(f"v_mov_b32 v{CS+k}, 0")
        for i in range(7):
            for j in range(4):
                p(f"v_dot2_f32_bf16 v{CS+2*j}, v{WD+4*i+j}, s{S_LO}, v{CS+2*j}\nv_dot2_f32_bf16 v{CS+2*j+1}, v{WD+4*i+j}, s{S_HI}, v{CS+2*j+1}")
        for k in range(8): p(f"v_add_f32_dpp v{CS+k}, v{CS+k}, v{CS+k} row_ror:8 row_mask:0xf bank_mask:0xf")
        p(f"v_and_b32 v{VT+3}, 8, v0\nv_cmp_eq_u32 vcc, 0, v{VT+3}\nv_lshlrev_b32 v{VT+3}, 1, v{VT+3}\nv_lshl_add_u32 v{VT+3}, v{VT+1}, 5, v{VT+3}\nv_lshrrev_b32 v{VT+4}, 4, v0\nv_lshl_add_u32 v{VT+3}, v{VT+4}, 8, v{VT+3}")
        p(f"s_lshl_b32 s{T}, s{S_WAVE}, 10\nv_add_u32 v{VT+3}, s{T}, v{VT+3}")
        for k in range(4): p(f"v_cndmask_b32 v{CS+k}, v{CS+4+k}, v{CS+k}, vcc")
        p(f"ds_write_b128 v{VT+3}, {v(CS,4)}\ns_waitcnt lgkmcnt(0)\ns_barrier")
        p(f"s_cmp_lg_u32 s{S_WAVE}, 0\ns_cbranch_scc1 L_hcsd")
        p.alt_begin()
        p(f"v_lshlrev_b32 v{VT+3}, 2, v0")
        for i in range(16): p(f"ds_read2st64_b32 {v(XD+2*i,2)}, v{VT+3} offset0:{2*i} offset1:{2*i+1}")
        for st in (16, 8, 4, 2):
            for i in range(0, st, 2): p(f"v_pk_add_f32 {v(XD+i,2)}, {v(XD+i,2)}, {v(XD+st+i,2)}")
        p(f"v_add_f32 v{AC+2}, v{XD}, v{XD+1}\nv_lshlrev_b32 v{VT+3}, 3, v0\ns_lshl_b32 s{T}, s{S_CG}, 9\ns_add_u32 s{T}, s{T}, {WS_CS}")
        p(f"buffer_store_dwordx2 {v(AC+2,2)}, v{VT+3}, {s(R_WS,4)}, s{T} offen sc1")
        p.alt_end()
        p.label("L_hcsd")
        if c.h_pf: p("s_barrier")
        p.label("L_hpf")
        self.stamp("cs")
        if c.h_pf:
            p(f"s_cmp_eq_u32 s{S_WAVE}, 7\ns_cbranch_scc1 L_hdone")
            p(f"s_sub_u32 s{T}, s{S_J}, 28\ns_mul_i32 s{T}, s{T}, 7\ns_add_u32 s{T}, s{T}, s{S_WAVE}\ns_mul_i32 s{T}, s{T}, {64*896}\nv_min_u32 v{VT}, 55, v0\nv_lshlrev_b32 v{VT}, 7, v{VT}")
            for k in range(c.h_rot):
                p(f"s_add_u32 s{T+1}, s{S_XCD}, {k}\ns_and_b32 s{T+1}, s{T+1}, 7\ns_mul_i32 s{T+1}, s{T+1}, {8*896}\ns_add_u32 s{T+1}, s{T+1}, s{T}\nbuffer_load_dword v{VT+1}, v{VT}, {s(R_PC,4)}, s{T+1} offen")
            if c.h_rot and c.h_wait: p("s_waitcnt vmcnt(0)")
            for st in c.h_pf:
                if st < 0: continue
                for h in range(2):
                    p(f"s_add_u32 s{T+1}, s{T}, {(16*st+8*h)*896}\nbuffer_load_dword v{VT+1}, v{VT}, {s(R_PC,4)}, s{T+1} offen")
            p("s_waitcnt vmcnt(0)")
        p.label("L_hdone")
        self.stamp("pf")
        self.stamp_flush(1)
        p("s_endpgm")
        p.label("L_hnocs")
        if c.h_pf: p("s_barrier")
        p(f"s_waitcnt vmcnt(0) lgkmcnt(0)\ns_cmp_lg_u32 s{S_HH}, 31\ns_cbranch_scc1 L_hpf\ns_cmp_lg_u32 s{S_WAVE}, 7\ns_cbranch_scc1 L_hpf")
        p.reset()
        p(f"v_lshrrev_b32 v{VT}, 2, v0\nv_min_u32 v{VT}, 13, v{VT}\nv_lshlrev_b32 v{VT}, 9, v{VT}\nv_and_b32 v{VT+1}, 3, v0\nv_lshl_add_u32 v{VT}, v{VT+1}, 4, v{VT}\ns_mov_b32 s{S_X}, {WS_FS}")
        ld = f"s_sleep 8\nbuffer_load_dwordx4 {v(XD,4)}, v{VT}, {s(R_WS,4)}, s{S_X} offen sc1"
        p(ld)
        self.tagged_check(ld, [XD, XD + 1, XD + 2, XD + 3], VT + 2)
        p(f"s_mov_b32 s{S_X}, {WS_EPOCH}")
        self.flag_store(S_X, AC + 3)
        p("s_branch L_hpf")

    def build(self):
        p = self.p
        self.entry()
        self.role_a(); self.role_h()
        p.reset()
        p.label("L_exit")
        p("s_endpgm")
        p(".p2align 7")
        p(".type L_gtab,@object")
        p.label("L_gtab")
        w = self.gather_table()
        for i in range(0, len(w), 8): p(".long " + ", ".join(hex(x) for x in w[i:i+8]))
        p.label("L_end")
        body = p.resolve()
        head = open("recurrent_scan__ssm_conv_s4__dense_activation_mish__prompt.s.ref").read().split("; Override launch")[0]
        txt = head + f"; @launch grid=(256,1,1) block=(512,1,1) lds={LDS_BYTES}\n"
        txt += f'.amdgcn_target "amdgcn-amd-amdhsa--gfx950"\n.text\n.globl {KNAME}\n.p2align 8\n.type {KNAME},@function\n{KNAME}:\n'
        txt += body
        txt += f""".section .rodata,"a"
.p2align 6
.amdhsa_kernel {KNAME}
  .amdhsa_next_free_vgpr 256
  .amdhsa_next_free_sgpr 102
  .amdhsa_accum_offset 256
  .amdhsa_group_segment_fixed_size 0
  .amdhsa_kernarg_size 128
  .amdhsa_user_sgpr_count 2
  .amdhsa_user_sgpr_kernarg_segment_ptr 1
  .amdhsa_system_sgpr_workgroup_id_x 1
.end_amdhsa_kernel
"""
        return txt

def parse_cfg(args):
    kw = {}
    for a in args:
        k, x = a.split("=")
        kw[k] = eval(x)
    return Cfg(**kw)

if __name__ == "__main__":
    out = sys.argv[1]
    g = Gen(parse_cfg(sys.argv[2:]))
    txt = g.build()
    open(out, "w").write(txt)
    import json
    json.dump(g.stamp_names, open(out + ".stamps.json", "w"))
    print(out, g.p.stats)
```

```python
import sys, re
from asmgen import *

KNAME = "recurrent_scan__ssm_conv_s4__dense_activation_mish__prompt_kernel"

class Cfg:
    stamps = False
    sset = 0
    cyc = False
    probe = None
    prefetch_code = True
    align4k = True
    hops = True
    mapP = False
    rot2 = 0
    qperm = False
    g2_mix = True
    act_st = 'sc1'
    act_ld = 'sc1'
    fa_st = 'sc1'
    mish_pk = False
    spoll = 'XASH'
    adepth = 7
    flead = 6
    pre_dma = 32
    nfirst = 12
    a_delay = 0
    a_chunks = 4
    dma_per = (8, 8, 8, 8, 8, 8, 8)
    gran_at = 4
    bw2 = (4, 8, 12, 12)
    w2_mish = 0
    fx_ld = 9
    fx_chk = 29
    u_at = 1
    lds_cut = (0, 0, 0, 0, 0, 0, 0)
    r_early = 4
    r_at = 6
    br0 = -1
    late6 = False
    out_fl = ''
    mish_skip = 0.0
    w2_lead = 18
    w2_rate = 0.0
    w2_gap = 2
    rdepth = 11
    fstages = (3,)
    flag_lag = 2
    gt_at = 3
    b_pre = 1.0
    kg_pre = 9999
    kg_ints = 4
    kg_x = 0.0
    h_w1 = 2
    h_touch = -1
    s_touch = (7, 14, 14, 14, 14)
    h_near = True
    h_align = True
    h_pf = ()
    diag = ''
    h_act = ()
    h_sleep = 4
    rot1 = 0
    fs_sleep = 2
    fs_first = 0
    prio_b = 1
    prio_b2 = 0
    prio_b3 = 1
    prio_b4 = 1
    prio_b5 = 1
    prio_b6 = 0
    prio_b7 = 0
    prio_b8 = 0
    prio_a1 = 2
    prio_a2 = 0
    tail_m = 4
    pre_loop = 'D16 R12 W F D22 L D24 C A7'
    fin2 = True
    def __init__(self, **kw):
        for k, x in kw.items():
            assert hasattr(self, k), k
            setattr(self, k, x)

WS_EPOCH, WS_FX, WS_FA, WS_FS = 0, 0x1000, 0x20000, 0x8000
WS_STAT, WS_CS, WS_XT, WS_ST, WS_ACT, WS_DBG = 0x10000, 0x14000, 0x40000, 0x200000, 0x600000, 0xE00000
WS_SIZE = 0x1000000
TAGC = 0x9E3779B1
SLOT = 32768
L_RING = 2 * SLOT
L_STG = 0
L_TAB = 0
L_EX = 0
L_RAW = SLOT + 1024
L_U = L_RAW + 12288
L_STR = L_RAW + 21504
L_CNT = L_RAW + 30720
LDS_BYTES = 163840
P_U, P_ARE, P_AIM, P_BRE, P_BIM, P_CRE, P_CIM, P_LDT = 4, 6, 8, 10, 12, 14, 16, 18
P_DSK, P_BX, P_W1, P_B1, P_W2, P_OUT, P_DBG, P_WS = 20, 22, 24, 26, 28, 30, 32, 34
R_LD, R_2, R_WS, R_PC = 36, 40, 44, 48
S_TAG, S_TAG2, S_WAVE, S_XCD, S_J, S_RT, S_CT, S_CP = 52, 53, 54, 55, 56, 57, 58, 97
S_SOFF, S_CSTR, S_LDB, S_CW, S_WT, S_WF = range(64, 70)
VD = 1
B_BW, B_LDT, B_DSK, B_STW, B_VP = 70, 71, 72, 73, 10
S_R2, S_C2 = 60, 61
S_T = 62
S_SP = 80
S_JR, S_XF = 3, 59
S_CNT = 96
S_T0 = 98
LOG2E = 0x3fb8aa3b
POLL_MAX = 1 << 17

def srd(p, r, ptr, size):
    p(f"s_mov_b32 s{r}, s{ptr}\ns_mov_b32 s{r+1}, s{ptr+1}\ns_mov_b32 s{r+2}, {size}\ns_mov_b32 s{r+3}, 0x20000")

class Gen:
    def __init__(self, cfg):
        self.c = cfg
        self.p = Prog()
        self.nlab = 0
        self.stamp_names = {}
    def lab(self, base):
        self.nlab += 1
        return f"L_{base}_{self.nlab}"

    def stamp_begin(self, role):
        self.role = role; self.stamp_names[role] = []
    def stamp(self, name, p=None, sets=(0,)):
        if self.c.probe == (self.role, name): (p or self.p)("s_memrealtime s[100:101]")
        if not self.c.stamps or self.c.sset not in sets: return
        p = p or self.p
        n = len(self.stamp_names[self.role]); assert n < 15
        self.stamp_names[self.role].append(name)
        p(f"{'s_memtime' if self.c.cyc else 's_memrealtime'} {s(4+2*n, 2)}")
    def stamp_flush(self, vt):
        if self.c.probe and self.c.probe[0] == self.role:
            l0 = self.lab("probe")
            self.p("s_waitcnt vmcnt(0) lgkmcnt(0)")
            self.p.label(l0)
            self.p(f"s_memrealtime s[98:99]\ns_waitcnt lgkmcnt(0)\ns_sub_u32 s98, s98, s100\ns_cmp_lt_u32 s98, 6000\ns_cbranch_scc1 {l0}")
        if not self.c.stamps: return
        p = self.p
        n = len(self.stamp_names[self.role])
        p("s_waitcnt vmcnt(0) lgkmcnt(0)\ns_mov_b64 exec, 1")
        p(f"s_lshl_b32 s{S_T}, s2, 3\ns_add_u32 s{S_T}, s{S_T}, s{S_WAVE}\ns_lshl_b32 s{S_T}, s{S_T}, 6\ns_add_u32 s{S_T}, s{S_T}, {WS_DBG}")
        p(f"v_mov_b32 v{vt}, s{S_T0}\nbuffer_store_dword v{vt}, off, {s(R_WS,4)}, s{S_T}")
        for i in range(n):
            p(f"v_mov_b32 v{vt+1+(i&1)}, s{4+2*i}\nbuffer_store_dword v{vt+1+(i&1)}, off, {s(R_WS,4)}, s{S_T} offset:{4+4*i}")
        p("s_waitcnt vmcnt(0)")

    def flag_store(self, soff, vt):
        p = self.p
        p(f"s_mov_b64 exec, 1\nbuffer_store_dword v{vt}, off, {s(R_WS,4)}, s{soff} sc1\ns_mov_b64 exec, -1")
    def lds_post(self, vown, vtag, k):
        self.p(f"s_mov_b64 exec, 1\nds_write_b32 v{vown}, v{vtag} offset:{16*k}\ns_mov_b64 exec, -1")
    def lds_wait(self, vaddr, vt, k):
        p = self.p
        l0, l1 = self.lab("spin"), self.lab("spun")
        p(f"s_mov_b32 s{S_CNT}, 0")
        p.label(l0)
        p(f"ds_read_b32 v{vt}, v{vaddr} offset:{16*k}\ns_add_u32 s{S_CNT}, s{S_CNT}, 1\ns_cmp_gt_u32 s{S_CNT}, {POLL_MAX*8}\ns_waitcnt lgkmcnt(0)")
        p(f"v_cmp_ne_u32 vcc, s{S_TAG}, v{vt}\ns_cbranch_scc1 {l1}\ns_cbranch_vccnz {l0}")
        p.label(l1)
    def lds_peek(self, vaddr, vt, k):
        self.p(f"ds_read_b32 v{vt}, v{vaddr} offset:{16*k}")
    def lds_check(self, vaddr, vt, k, fill=None):
        p = self.p
        l1 = self.lab("pass")
        p(f"v_cmp_ne_u32 vcc, s{S_TAG}, v{vt}")
        if fill: fill()
        p(f"s_cbranch_vccz {l1}")
        p.alt_begin(); self.lds_wait(vaddr, vt, k); p.alt_end()
        p.label(l1)
    def tagged_check(self, loads, tagregs, vt, on_miss=None):
        p = self.p
        l0, l1 = self.lab("chk"), self.lab("chkd")
        p(f"s_mov_b32 s{S_CNT}, 0")
        for r in reversed(tagregs): p.items.append(Marker("need", r))
        p.label(l0)
        p(f"v_xor_b32 v{vt}, s{S_TAG}, v{tagregs[0]}")
        for r in tagregs[1:]:
            p(f"v_bitop3_b32 v{vt}, v{r}, s{S_TAG}, v{vt} bitop3:0xbe")
        p(f"v_cmp_ne_u32 vcc, 0, v{vt}\ns_add_u32 s{S_CNT}, s{S_CNT}, 1\ns_cbranch_vccz {l1}")
        p(f"s_cmp_gt_u32 s{S_CNT}, {POLL_MAX}\ns_cbranch_scc1 {l1}")
        p.alt_begin()
        if on_miss:
            l3 = self.lab("again")
            p(f"s_cmp_lg_u32 s{S_CNT}, 1\ns_cbranch_scc1 {l3}")
            p.alt_begin(); on_miss(); p.alt_end()
            p.label(l3)
        p(loads)
        p(f"s_waitcnt vmcnt(0)\ns_branch {l0}")
        p.alt_end()
        p.label(l1)

    def entry(self):
        p, c = self.p, self.c
        T = S_T
        p(f"s_load_dwordx16 s[4:19], s[0:1], 0\ns_load_dwordx16 s[20:35], s[0:1], 64")
        p(f"s_cmp_ge_u32 s2, 256\ns_cbranch_scc1 L_exit")
        if c.stamps: p(f"{'s_memtime' if c.cyc else 's_memrealtime'} {s(S_T0,2)}")
        if c.probe and c.probe[1] == "start": p("s_memrealtime s[100:101]")
        if "k" in c.diag: p("s_waitcnt lgkmcnt(0)\ns_memtime s[100:101]")
        p(f"v_lshrrev_b32 v1, 6, v0\nv_and_b32 v0, 63, v0\nv_readfirstlane_b32 s{S_WAVE}, v1")
        p(f"s_and_b32 s{S_XCD}, s2, 7\ns_lshr_b32 s{S_J}, s2, 3")
        p(f"s_getpc_b64 {s(R_PC,2)}")
        p.label("L_pc")
        p(f"s_mov_b32 s{R_PC+2}, L_end-L_pc\ns_mov_b32 s{R_PC+3}, 0x20000")
        if c.prefetch_code:
            p(f"s_lshl3_add_u32 s{T}, s{S_J}, s{S_WAVE}\ns_lshl_b32 s{T}, s{T}, 7")
            p(f"buffer_load_dword v255, off, {s(R_PC,4)}, s{T}")
        p(f"s_mov_b32 s{R_WS+2}, {WS_SIZE}\ns_mov_b32 s{R_WS+3}, 0x20000")
        p(f"s_cmp_ge_u32 s{S_J}, 28\ns_cbranch_scc1 L_helper")
        p(f"s_mul_i32 s{S_JR}, s{S_J}, 37\ns_lshr_b32 s{S_JR}, s{S_JR}, 8\ns_mul_i32 s{T}, s{S_JR}, 7\ns_sub_u32 s{S_C2}, s{S_J}, s{T}")
        if c.mapP: p(f"s_lshr_b32 s{S_RT}, s{S_JR}, 1\ns_lshl1_add_u32 s{S_RT}, s{S_XCD}, s{S_RT}\ns_and_b32 s{S_XF}, s{S_JR}, 1")
        else: p(f"s_lshr_b32 s{S_RT}, s{S_XCD}, 1\ns_lshl2_add_u32 s{S_RT}, s{S_RT}, s{S_JR}\ns_and_b32 s{S_XF}, s{S_XCD}, 1")
        p(f"s_cmp_lt_u32 s{S_WAVE}, 4\ns_cbranch_scc1 L_common")
        p.alt_begin()
        if c.prio_b: p(f"s_setprio {c.prio_b}")
        p(f"s_sub_u32 s{B_BW}, s{S_WAVE}, 4\ns_mul_i32 s{S_CP}, s{S_XCD}, 28\ns_add_u32 s{S_CP}, s{S_CP}, s{S_J}\ns_lshl_b32 s{T}, s{S_CP}, 2")
        p(f"s_add_u32 s{B_STW}, s{T}, s{B_BW}\ns_lshl_b32 s{B_STW}, s{B_STW}, 8\nv_lshl_add_u32 v50, v0, 2, s{B_STW}")
        p(f"s_load_dword s{B_LDT}, {s(P_LDT,2)}, s{T}")
        for i, ptr in enumerate((P_ARE, P_AIM, P_BRE, P_BIM, P_CRE, P_CIM)):
            p(f"global_load_dword v{B_VP+i}, v50, {s(ptr,2)}")
        p(f"s_load_dword s{B_DSK}, {s(P_DSK,2)}, s{T}")
        if c.prio_b != c.prio_b2: p(f"s_setprio {c.prio_b2}")
        p.alt_end()
        p.label("L_common")
        VT, S_X, S_Y = 24, 78, 79
        p(f"s_and_b32 s{S_WT}, s{S_WAVE}, 1\ns_bfe_u32 s{S_WF}, s{S_WAVE}, 0x10001\ns_mul_i32 s{S_CT}, s{S_XF}, 7\ns_add_u32 s{S_CT}, s{S_CT}, s{S_C2}")
        p(f"s_lshl1_add_u32 s{T}, s{S_RT}, s{S_WF}\ns_mul_i32 s{T}, s{T}, {64*896}")
        p(f"s_mul_i32 s{T+1}, s{S_WF}, {32*14}\ns_add_u32 s{T+1}, s{T+1}, s{S_CT}\ns_lshl_b32 s{T+1}, s{T+1}, 8")
        p(f"s_lshl1_add_u32 s{S_LDB}, s{S_WT}, s{S_WF}\ns_lshl_b32 s{S_LDB}, s{S_LDB}, 13")
        p(f"s_add_u32 s{S_X}, s{S_WT}, 3\nv_lshrrev_b32 v{VT}, s{S_X}, v0\ns_lshl_b32 s{S_X}, s{S_WT}, 1\nv_lshrrev_b32 v{VT+1}, 4, v0\nv_lshlrev_b32 v{VT+1}, s{S_X}, v{VT+1}")
        p(f"s_lshl_b32 s{S_Y}, 896, s{S_X}\nv_xor_b32 v{VT+1}, v0, v{VT+1}\nv_mul_u32_u24 v{VT}, s{S_Y}, v{VT}")
        p(f"s_cmp_eq_u32 s{S_WT}, 0")
        p(f"s_cselect_b32 s{S_SOFF}, s{T}, s{T+1}\ns_cselect_b32 s{S_CSTR}, 1, {64*28}\ns_cselect_b32 s{S_X}, 7, 15\ns_cselect_b32 s{S_Y}, 64, 0\ns_cselect_b32 s{R_LD+2}, 8, 7")
        p(f"v_and_b32 v{VT+1}, s{S_X}, v{VT+1}\nv_lshl_add_u32 v{VD}, v{VT+1}, 4, v{VT}\nv_xor_b32 v{VD+1}, s{S_Y}, v{VD}")
        p(f"s_lshl_b32 s{S_CSTR}, s{S_CSTR}, 7")
        if c.rot1: p(f"s_mul_i32 s{T}, s{S_C2}, s{S_CSTR}\ns_add_u32 s{S_SOFF}, s{S_SOFF}, s{T}\ns_mul_i32 s{S_CW}, s{S_CSTR}, 7")
        p(f"s_mul_i32 s{R_LD+2}, s{R_LD+2}, {256*896}\ns_mov_b32 s{R_LD+3}, 0x20000\ns_lshl_b32 s{S_Y}, 7168, s{S_WT}")
        p(f"s_sub_u32 s{T}, s{S_Y}, 1024\nv_add_u32 v{VD+1}, s{T}, v{VD+1}\ns_lshl_b32 s{T}, s{T}, 1")
        p(f"v_add_u32 v{VD+2}, s{T}, v{VD}\nv_add_u32 v{VD+3}, s{T}, v{VD+1}\ns_lshl_b32 s{T}, s{S_Y}, 2")
        for i in range(4): p(f"v_add_u32 v{VD+4+i}, s{T}, v{VD+i}")
        p(f"s_cmp_ge_u32 s{S_WAVE}, 4\ns_cbranch_scc1 L_roleB")
    def loader_base(self):
        self.p(f"s_cmp_eq_u32 s{S_WT}, 0\ns_cselect_b32 s{R_LD}, s{P_U}, s{P_W1}\ns_cselect_b32 s{R_LD+1}, s{P_U+1}, s{P_W1+1}")
    def dma_chunk(self, n, T, ctok):
        r = []
        for i in range(8):
            q = Prog()
            if i % 4 == 0: q(f"s_add_u32 m0, s{S_LDB}, {(3, 4, 1, 2)[n % 4]*SLOT + (i//4)*4096}")
            ctok[n] = q.tok(f"buffer_load_dwordx4 v{VD+i}, {s(R_LD,4)}, s{S_SOFF} offen offset:{(i%4)*1024} lds")
            if i == 7 and n < 6:
                q(f"s_add_u32 s{S_SOFF}, s{S_SOFF}, s{S_CSTR}")
                if self.c.rot1: q(f"s_cmp_eq_u32 s{S_C2}, {6-n}\ns_cselect_b32 s{T}, s{S_CW}, 0\ns_sub_u32 s{S_SOFF}, s{S_SOFF}, s{T}")
            r.append(q.items)
        return r
    def role_start(self, b=False):
        p = self.p
        p.reset()
        if self.c.prefetch_code: p.items.append(Marker("pending", ("vmem", {"v255"})))
        if b:
            p.items.append(Marker("pending", ("smem", {f"s{B_LDT}", f"s{B_DSK}"})))
            for i in range(6): p.items.append(Marker("pending", ("vmem", {f"v{B_VP+i}"})))
        else:
            p.items.append(Marker("pending", ("smem", {f"s{i}" for i in range(4, 36)})))
    def load_epoch(self):
        self.p(f"s_load_dword s{S_TAG}, {s(P_WS,2)}, {WS_EPOCH}\ns_mov_b32 s{R_WS}, s{P_WS}\ns_mov_b32 s{R_WS+1}, s{P_WS+1}")
    def make_tag(self):
        self.p(f"s_add_u32 s{S_TAG}, s{S_TAG}, {TAGC}\ns_mov_b32 s{S_TAG2}, s{S_TAG}")
    def flag_load(self, which, soff, n, va, q=None):
        if which in self.c.spoll:
            w = 8 if n <= 8 else 16
            txt = f"s_buffer_load_dwordx{w} {s(S_SP,w)}, {s(R_WS,4)}, s{soff} glc"
        else:
            txt = f"buffer_load_dword v{va+1}, v{va}, {s(R_WS,4)}, s{soff} offen sc1"
        (q or self.p)(txt)
        return (which, txt, n, va)
    def flag_check(self, fl, vt, sleep=0, on_miss=None):
        which, txt, n, va = fl
        p = self.p
        if sleep: txt = f"s_sleep {sleep}\n" + txt
        if which not in self.c.spoll:
            return self.tagged_check(txt, [va + 1], vt, on_miss)
        l0, l1, l2 = self.lab("chk"), self.lab("retry"), self.lab("chkd")
        p(f"s_mov_b32 s{S_CNT}, 0")
        p.label(l0)
        p("s_waitcnt lgkmcnt(0)")
        for i in range(0, n - 2, 2): p(f"s_cmp_eq_u64 {s(S_SP+i,2)}, {s(S_TAG,2)}\ns_cbranch_scc0 {l1}")
        if n & 1: p(f"s_cmp_eq_u32 s{S_SP+n-1}, s{S_TAG}\ns_cbranch_scc1 {l2}")
        else: p(f"s_cmp_eq_u64 {s(S_SP+n-2,2)}, {s(S_TAG,2)}\ns_cbranch_scc1 {l2}")
        p.alt_begin()
        p.label(l1)
        if on_miss:
            l3 = self.lab("again")
            p(f"s_cmp_lg_u32 s{S_CNT}, 0\ns_cbranch_scc1 {l3}")
            p.alt_begin(); on_miss(); p.alt_end()
            p.label(l3)
        p(txt)
        p(f"s_add_u32 s{S_CNT}, s{S_CNT}, 1\ns_cmp_le_u32 s{S_CNT}, {POLL_MAX}\ns_cbranch_scc1 {l0}\ns_waitcnt lgkmcnt(0)")
        p.alt_end()
        p.label(l2)

    def role_a(self):
        p, c = self.p, self.c
        self.role_start(); self.stamp_begin("A")
        VXA, VWA, VW2A, VW2D, VL16, VFL, VC1, VT = 9, 13, 15, 19, 21, 22, 2, 24
        ACC, FR, W2R, AB = 32, 96, 96, 192
        S_ACTW, S_FAW, S_FAR, S_RING, S_ACTR, S_W2B, S_Z = range(70, 77)
        R_OUT = 64
        S_X = 78; S_Y = 79
        T = S_T
        if "K" in c.diag: p("s_memtime s[100:101]")
        self.loader_base()
        ctok = {}
        dq = []
        for n in range(c.a_chunks): dq += self.dma_chunk(n, T, ctok)
        self.stamp("dma0", sets=(1,))
        if "k" in c.diag.lower():
            self.stamp("karg", sets=(1,)); p("s_waitcnt lgkmcnt(0)\ns_mov_b32 s6, s100")
        if c.a_delay: p(f"s_waitcnt lgkmcnt(0)"); p("\n".join(["s_nop 15"] * c.a_delay))
        for it in dq[:c.nfirst]: p.extend(it)
        self.load_epoch()
        if c.hops:
            p(f"s_mov_b64 exec, 0\ns_cmp_eq_u32 s{S_WAVE}, 3\ns_cbranch_scc1 L_hop0")
        p("s_branch L_bodyA")
        role = self.role
        if c.h_near: self.head_h()
        self.role_b()
        self.role = role
        p.label("L_bodyA")
        p.reset()
        p.items.append(Marker("pending", ("smem", {f"s{S_TAG}", "s94", "s95"})))
        if c.prefetch_code: p.items.append(Marker("pending", ("vmem", {"v255"})))
        for i in range(c.nfirst): p.items.append(Marker("pending", ("vmem", set(), ctok[i // 8] if i % 8 == 7 else None)))
        if c.hops: p("s_mov_b64 exec, -1")
        p(f"v_and_b32 v{VT}, 31, v0\nv_lshrrev_b32 v{VT+1}, 5, v0\nv_bfe_u32 v{VT+2}, v0, 1, 3\nv_xor_b32 v{VT+1}, v{VT+1}, v{VT+2}\nv_lshlrev_b32 v{VT+1}, 4, v{VT+1}")
        p(f"v_lshl_add_u32 v{VT+1}, v{VT}, 7, v{VT+1}\ns_add_u32 s{S_X}, s{S_WT}, 12\ns_lshl_b32 s{S_X}, s{S_X}, 13\nv_add_u32 v{VXA}, s{S_X}, v{VT+1}")
        for k in range(1, 4): p(f"v_xor_b32 v{VXA+k}, {32*k}, v{VXA}")
        p(f"s_lshl_b32 s{S_RING}, s{S_WAVE}, 13\ns_add_u32 s{S_RING}, s{S_RING}, {L_RING}")
        p(f"v_bfe_u32 v{VT}, v0, 4, 1\nv_lshlrev_b32 v{VT}, 5, v{VT}\nv_and_b32 v{VT+1}, 3, v0\nv_lshl_add_u32 v{VT}, v{VT+1}, 3, v{VT}")
        p(f"v_bfe_u32 v{VT+1}, v0, 2, 2\nv_lshrrev_b32 v{VT+2}, 5, v0")
        p(f"v_lshl_add_u32 v{VT+3}, v{VT+2}, 3, v{VT+1}\nv_lshl_add_u32 v{VT+3}, v{VT+3}, 8, v{VT}")
        p(f"s_lshl1_add_u32 s{S_Y}, s{S_WF}, 0x600\nv_xor_b32 v{VT+4}, s{S_Y}, v{VT+1}\nv_lshl_add_u32 v{VWA}, v{VT+4}, 6, v{VT+3}")
        if c.qperm: p(f"s_lshl1_add_u32 s{S_Z}, s{S_RT}, s{S_WT}\ns_and_b32 s{S_Z}, s{S_Z}, 3\ns_lshl_b32 s{S_Y}, s{S_Z}, 5\nv_xor_b32 v{VWA}, s{S_Y}, v{VWA}\ns_lshl_b32 s{S_Z}, s{S_Z}, 4")
        else: p(f"s_mov_b32 s{S_Z}, 0")
        p(f"v_xor_b32 v{VWA+1}, 64, v{VWA}")
        p(f"v_lshl_add_u32 v{VT+3}, v{VT+2}, 2, v{VT+1}\nv_lshl_add_u32 v{VT+3}, v{VT+3}, 7, v{VT}")
        p(f"v_lshrrev_b32 v{VT+4}, 1, v{VT+1}\nv_lshl_add_u32 v{VT+3}, v{VT+4}, 6, v{VT+3}\nv_add_u32 v{VW2A}, s{S_RING}, v{VT+3}")
        srd(p, R_2, P_W2, 1792 * 896)
        VB1 = 30
        p(f"s_lshl1_add_u32 s{S_Y}, s{S_CT}, s{S_WF}\ns_lshl_b32 s{S_X}, s{S_Y}, 7\nv_xor_b32 v{VB1+1}, s{S_Z}, v0\nv_lshl_add_u32 v{VB1}, v{VB1+1}, 1, s{S_X}\nglobal_load_ushort v{VB1}, v{VB1}, {s(P_B1,2)}")
        self.stamp("setup", sets=(1,))
        for it in dq[c.nfirst:c.pre_dma]: p.extend(it)
        VB1 = 30
        q = p
        VGA = 26
        q(f"v_xor_b32 v{VW2A+1}, 64, v{VW2A}\nv_add_u32 v{VW2A+2}, 0x10000, v{VW2A}\nv_xor_b32 v{VW2A+3}, 64, v{VW2A+2}")
        if c.br0 >= 0: q(f"v_xor_b32 v{VFL}, 0x10000, v{VW2A}\nv_xor_b32 v{VFL+1}, 0x10000, v{VW2A+1}")
        late = Prog(); q = late
        q(f"s_lshl1_add_u32 s{T+1}, s{S_RT}, s{S_WT}\ns_lshl_b32 s{S_X}, s{T+1}, 9\ns_add_u32 s{S_X}, s{S_X}, {WS_STAT}\nv_lshl_add_u32 v{VGA}, v0, 3, s{S_X}")
        q(f"s_lshl1_add_u32 s{S_Y}, s{S_CT}, s{S_WF}\ns_lshl_b32 s{S_X}, s{S_Y}, 9\ns_add_u32 s{S_X}, s{S_X}, {WS_CS}\nv_lshl_add_u32 v{VGA+1}, v{VB1+1}, 3, s{S_X}")
        q(f"s_mul_i32 s{S_ACTW}, s{T+1}, 28\ns_add_u32 s{S_ACTW}, s{S_ACTW}, s{S_Y}\ns_lshl_b32 s{S_ACTW}, s{S_ACTW}, 13\ns_add_u32 s{S_ACTW}, s{S_ACTW}, {WS_ACT}")
        q(f"s_mul_i32 s{S_X}, s{S_Y}, 37\ns_lshr_b32 s{S_X}, s{S_X}, 8\ns_mul_i32 s{S_X}, s{S_X}, 25\ns_add_u32 s{S_X}, s{S_X}, s{S_Y}")
        q(f"s_lshl_b32 s{S_FAW}, s{T+1}, 9\ns_add_u32 s{S_FAW}, s{S_FAW}, s{S_X}\ns_lshl2_add_u32 s{S_FAW}, s{S_FAW}, {WS_FA}")
        q(f"s_lshl2_add_u32 s{S_R2}, s{S_XCD}, s{S_JR}")
        q(f"s_lshl4_add_u32 s{S_FAR}, s{S_R2}, s{S_WAVE}\ns_lshl_b32 s{S_FAR}, s{S_FAR}, 7\ns_add_u32 s{S_FAR}, s{S_FAR}, {WS_FA}")
        q(f"v_lshlrev_b32 v{VL16}, 4, v0")
        if "A" not in c.spoll: q(f"v_min_u32 v{VFL}, 6, v0\nv_lshlrev_b32 v{VFL}, 2, v{VFL}")
        q(f"v_lshrrev_b32 v{VT+4}, 3, v0\nv_mul_u32_u24 v{VT+4}, 896, v{VT+4}\nv_bfe_u32 v{VT+1}, v0, 4, 1\nv_lshlrev_b32 v{VT+1}, 2, v{VT+1}\nv_xor_b32 v{VT+1}, v0, v{VT+1}\nv_and_b32 v{VT+1}, 7, v{VT+1}")
        q(f"v_lshl_add_u32 v{VW2D}, v{VT+1}, 4, v{VT+4}\nv_add_u32 v{VW2D+1}, {7168-1024}, v{VW2D}")
        q(f"s_lshl2_add_u32 s{S_ACTR}, s{S_R2}, s{S_WAVE}\ns_mul_i32 s{S_ACTR}, s{S_ACTR}, {28*2048}\ns_add_u32 s{S_ACTR}, s{S_ACTR}, {WS_ACT}")
        q(f"s_mul_i32 s{S_W2B}, s{S_WAVE}, {448*7}\ns_add_u32 s{S_W2B}, s{S_W2B}, s{S_C2}\ns_lshl_b32 s{S_W2B}, s{S_W2B}, 7")
        q(f"s_lshl2_add_u32 s{S_X}, s{S_WAVE}, {L_CNT}\nv_mov_b32 v{VT+5}, s{S_X}")
        lateg = [[it] for it in late.items]
        S_AO = list(range(88, 95)); S_WO = [34, 35, 48, 49, 50, 51, 77]; S_ROT = 95
        if c.rot2:
            q = Prog()
            if c.rot2 == 1: q(f"s_mov_b32 s{S_ROT}, s{S_C2}")
            else: q(f"s_lshl1_add_u32 s{S_ROT}, s{S_JR}, s{S_C2}\ns_cmp_ge_u32 s{S_ROT}, 7\ns_cselect_b32 s{T+1}, 7, 0\ns_sub_u32 s{S_ROT}, s{S_ROT}, s{T+1}")
            lateg.append(q.items)
            for i in range(7):
                q = Prog()
                q(f"s_cmp_ge_u32 s{S_ROT}, {7-i}\ns_cselect_b32 s{T+1}, {i-7}, {i}\ns_add_u32 s{T+1}, s{T+1}, s{S_ROT}")
                lateg.append(q.items); q = Prog()
                q(f"s_lshl_b32 s{S_AO[i]}, s{T+1}, 13\ns_add_u32 s{S_AO[i]}, s{S_AO[i]}, s{S_ACTR}\ns_mul_i32 s{S_WO[i]}, s{T+1}, {64*896}\ns_add_u32 s{S_WO[i]}, s{S_WO[i]}, s{S_W2B}")
                lateg += [[it] for it in q.items]
        S_Q = [S_ROT, S_W2B, S_ACTR, S_CT]
        if c.qperm:
            assert c.rot2
            q = Prog()
            for i in range(4): q(f"s_xor_b32 s{S_Q[i]}, s{S_JR}, {i}\ns_mul_i32 s{S_Q[i]}, s{S_Q[i]}, {16*896}")
            lateg += [[it] for it in q.items]
        self.make_tag()
        p(f"v_mov_b32 v{VT}, s{S_TAG}")
        GR = AB
        gloads = f"buffer_load_dwordx2 {v(GR,2)}, v{VGA}, {s(R_WS,4)}, 0 offen sc1\nbuffer_load_dwordx2 {v(GR+2,2)}, v{VGA+1}, {s(R_WS,4)}, 0 offen sc1"
        piece = [0, 1, 2, 0, 1, 2, 0]; pred = {3: 0, 4: 1, 5: 2, 6: 3}
        if c.br0 >= 0:
            piece = [-2, 0, 1, 2, 0, 1, 2]; pred = {4: 1, 5: 2, 6: 3}
            assert c.r_early == 4 and "A" in c.spoll
        wtok, rtok = {}, {}
        w2reg = lambda n: W2R + 8 * ((n + 6) % 12)
        def dma_w2(n):
            q = Prog(); gi = n >> 2
            if gi in pred: q.wait(rtok[4 * pred[gi] + (n & 3)])
            q(f"s_add_u32 m0, s{S_RING}, {piece[gi]*SLOT + (n&3)*2048}\n" + (f"s_add_u32 s{S_Z}, s{S_WO[n%7]}, s{S_Q[n//7]}" if c.qperm else f"s_add_u32 s{S_Z}, s{S_WO[n%7]}, {16*(n//7)*896}" if c.rot2 else f"s_add_u32 s{S_Z}, s{S_W2B}, {(64*(n%7) + 16*(n//7))*896}"))
            q(f"buffer_load_dwordx4 v{VW2D}, {s(R_2,4)}, s{S_Z} offen lds")
            q2 = Prog()
            wtok[n] = q2.tok(f"buffer_load_dwordx4 v{VW2D+1}, {s(R_2,4)}, s{S_Z} offen offset:1024 lds")
            return [q.items, q2.items]
        def read_w2(n):
            q = Prog(); pc = piece[n >> 2]
            if n == c.r_early:
                keep, self.p = self.p, q
                self.lds_wait(VT + 5, VT + 1, 4)
                self.p = keep
            if n >= c.bw2[-1]: q.wait(wtok[n])
            for di in range(2):
                for h in range(2):
                    rtok[n] = q.tok(f"ds_read_b64_tr_b16 {v(w2reg(n)+4*di+2*h,2)}, v{(VFL if pc < 0 else VW2A+2*(pc>>1))+di} offset:{(pc&1)*SLOT + (n&3)*2048 + h*1024}")
            return [q.items]
        nw = [c.bw2[-1], 0]
        def w2_ops(k, maxread):
            r = []
            for _ in range(k):
                n = nw[0]
                if n >= 24: break
                for m in (n, n + 1):
                    if (m >> 2) in pred and m < 24:
                        need = 4 * pred[m >> 2] + (m & 3)
                        assert m > n or need < maxread
                        while nw[1] <= need and nw[1] < maxread: r += read_w2(nw[1]); nw[1] += 1
                r += dma_w2(n); nw[0] += 1
            return r
        def reads1(gs):
            n, k = gs >> 2, gs & 3
            base = FR + 16 * (gs % 3); so = (n & 1) * SLOT
            r = []
            for fi in range(2):
                for h in range(2):
                    r.append(I(f"ds_read_b64_tr_b16 {v(base+4*fi+2*h,2)}, v{VWA+fi} offset:{so+16384+k*4096+h*1024}"))
                r.append(I(f"ds_read_b128 {v(base+8+4*fi,4)}, v{VXA+k} offset:{so+fi*4096}"))
            return r
        def mfma1(gs):
            base = FR + 16 * (gs % 3)
            r = []
            for fi, ti in ((0, 0), (0, 1), (1, 0), (1, 1)):
                a = v(ACC + 32 * fi + 16 * ti, 16)
                r.append(I(f"v_mfma_f32_32x32x16_bf16 {a}, {v(base+4*fi,4)}, {v(base+8+4*ti,4)}, {'0' if gs == 0 else a}"))
            return r
        self.stamp("dmapre", sets=(1,))
        if c.hops:
            p("s_mov_b64 exec, 0")
            for w in range(3): p(f"s_cmp_eq_u32 s{S_WAVE}, {w}\ns_cbranch_scc1 L_hop{w+1}")
            p("s_branch L_hop4")
            p.label("L_hopped")
            p("s_mov_b64 exec, -1")
        nd = c.pre_dma
        nl = (len(lateg) + 3) // 4
        for n in range(7):
            if n < c.a_chunks: p.wait(ctok[n])
            if n == 0: self.stamp("c0", sets=(1,))
            p("s_waitcnt lgkmcnt(0)\ns_barrier")
            self.stamp(f"bar{n}", sets=(0, 1) if n in (0, 3, 6) else (1,))
            if n in (2, 4, 6):
                for r in list(range(VXA, VXA + 4)) + [VWA, VWA + 1]: p(f"v_xor_b32 v{r}, 0x10000, v{r}")
            upto = min(len(dq), 8 * (n + 4), max(nd + c.dma_per[n], 8 * (n + 2)))
            fill = dq[nd:upto]; nd = upto
            if n == c.gran_at:
                fill = fill + [[I(x)] for x in gloads.split("\n")]
            if n == c.r_at:
                while nw[1] < c.r_early:
                    fill = fill + [[it] for it in read_w2(nw[1])[0]]; nw[1] += 1
            g0 = 4 * n
            r0, r1, r2, r3 = (reads1(g0 + k) for k in range(4))
            body = []
            if n == 0: body.append(r0 + r1)
            else:
                mm = mfma1(g0 - 1)
                body += [r0, [mm[0]] + r1[:3], [mm[1]] + r1[3:], [mm[2]], [mm[3]]]
            for k, rd in ((0, r2), (1, r3), (2, None)):
                mm = mfma1(g0 + k)
                body += [[mm[0]] + (rd[:3] if rd else []), [mm[1]] + (rd[3:] if rd else []), [mm[2]], [mm[3]]]
            if n == 6: body[-3] = body[-3] + [I("s_waitcnt lgkmcnt(0)"), I("s_barrier")]
            merged = []
            j = 0
            for i, it in enumerate(body):
                grp = list(it)
                nb_ = len(body) - (5 if n == 6 else 0)
                while j < min(len(fill), (i + 1) * len(fill) // nb_): grp += fill[j]; j += 1
                merged.append(grp)
            lt = lateg[nl * n: nl * (n + 1)] if n < 4 else []
            p.extend(interleave(merged, lt))
        mm = mfma1(27)
        p.extend(mm[:1])
        self.tagged_check(gloads, [GR + 1, GR + 3], VT + 1)
        self.stamp("granules", sets=(0, 1, 3))
        FA_, FB_ = AB + 8, AB + 12
        q = Prog()
        q(f"s_mov_b32 s{S_X}, 0x01000100\nv_perm_b32 v{FB_}, v{GR}, v{GR}, s{S_X}\nv_lshrrev_b32 v{FB_+1}, 16, v{GR}\nv_xor_b32 v{FB_}, 0x80008000, v{FB_}")
        q(f"v_cvt_pk_bf16_f32 v{VT+1}, v{GR+2}, v{GR+2}\nv_mov_b32 v{FB_+2}, 0\nv_and_b32 v{VT+1}, 0xffff0000, v{VT+1}\nv_mov_b32 v{FB_+3}, 0\nv_sub_f32 v{VT+1}, v{GR+2}, v{VT+1}")
        q(f"v_mov_b32 v{FA_+1}, v{VB1}\nv_cvt_pk_bf16_f32 v{FA_}, v{GR+2}, v{VT+1}\nv_mov_b32 v{FA_+2}, 0\nv_mov_b32 v{FA_+3}, 0\nv_and_b32 v{VT+1}, 0xffff0000, v{GR}")
        q(f"v_permlane32_swap_b32 v{FB_}, v{FB_+2}\nv_permlane32_swap_b32 v{FB_+1}, v{FB_+3}\nv_permlane32_swap_b32 v{FA_}, v{FA_+2}\nv_permlane32_swap_b32 v{FA_+1}, v{FA_+3}")
        q(f"v_rcp_f32 v{VT+1}, v{VT+1}")
        p.extend(interleave(mm[1:], q.items))
        for fi, ti in ((0, 0), (0, 1), (1, 0), (1, 1)):
            a = v(ACC + 32 * fi + 16 * ti, 16)
            p(f"v_mfma_f32_32x32x8_bf16 {a}, {v(FA_+2*fi,2)}, {v(FB_+2*ti,2)}, {a}")
            if (fi, ti) == (0, 0): p(f"v_mul_f32 v{VC1}, {LOG2E}, v{VT+1}\nv_mul_f32 v{VC1+2}, {LOG2E}, v{VT+1}")
            if (fi, ti) == (0, 1): p(f"v_permlane32_swap_b32 v{VC1}, v{VC1+2}")
            if (fi, ti) == (1, 0) and c.mish_pk: p(f"v_mov_b32 v{VC1+1}, v{VC1}\nv_mov_b32 v{VC1+3}, v{VC1+2}")
        MT, MO = AB + 16, AB + 48
        def mish_group(a, ti, o, tset):
            t = MT + 16 * tset; u = t + 8
            r = []
            if c.mish_pk:
                for i in range(0, 8, 2): r.append(f"v_pk_mul_f32 {v(t+i,2)}, {v(a+i,2)}, {v(VC1+2*ti,2)}")
                for i in range(8): r.append(f"v_exp_f32 v{t+i}, v{t+i}")
                for i in range(0, 8, 2): r.append(f"v_pk_fma_f32 {v(u+i,2)}, {v(t+i,2)}, 0.5, 1.0 op_sel_hi:[1,0,0]")
                for i in range(0, 8, 2): r.append(f"v_pk_fma_f32 {v(u+i,2)}, {v(t+i,2)}, {v(u+i,2)}, 1.0 op_sel_hi:[1,1,0]")
                for i in range(8): r.append(f"v_rcp_f32 v{u+i}, v{u+i}")
                for i in range(0, 8, 2): r.append(f"v_pk_fma_f32 {v(u+i,2)}, {v(a+i,2)}, {v(u+i,2)}, {v(a+i,2)} neg_lo:[1,0,0] neg_hi:[1,0,0]")
            else:
                for i in range(8): r.append(f"v_mul_f32 v{t+i}, v{a+i}, v{VC1+2*ti}")
                for i in range(8): r.append(f"v_exp_f32 v{t+i}, v{t+i}")
                for i in range(8): r.append(f"v_fma_f32 v{u+i}, v{t+i}, 0.5, 1.0")
                for i in range(8): r.append(f"v_fma_f32 v{u+i}, v{t+i}, v{u+i}, 1.0")
                for i in range(8): r.append(f"v_rcp_f32 v{u+i}, v{u+i}")
                for i in range(8): r.append(f"v_fma_f32 v{u+i}, -v{a+i}, v{u+i}, v{a+i}")
            for i in range(4): r.append(f"v_cvt_pk_bf16_f32 v{o+i}, v{u+2*i}, v{u+2*i+1}")
            return [I(x) for x in r]
        stok = {}
        def own_flag(st, q):
            q.wait(stok[st])
            q(f"s_mov_b64 exec, 1\nbuffer_store_dword v{VT}, off, {s(R_WS,4)}, s{S_FAW} offset:{512*st} {c.fa_st}\ns_mov_b64 exec, -1")
        body = []
        gi = 0
        for st in range(4):
            for ti in range(2):
                o = MO + 4 * (gi % 4)
                body += mish_group(ACC + 32 * (st >> 1) + 16 * ti + 8 * (st & 1), ti, o, gi & 1)
                q = Prog()
                stok[st] = q.tok(f"buffer_store_dwordx4 {v(o,4)}, v{VL16}, {s(R_WS,4)}, s{S_ACTW} offen offset:{(st&1)*2048+ti*1024} {c.act_st}")
                if gi == 3: q(f"s_add_u32 s{S_ACTW}, s{S_ACTW}, 4096")
                if ti == 1: self.stamp(f"s{st}", q, sets=(3,))
                if ti == 1 and st - c.flag_lag in c.fstages: own_flag(st - c.flag_lag, q); self.stamp(f"f{st-c.flag_lag}", q, sets=(3,))
                body.append(q.items)
                gi += 1
        k0 = int(len(body) * c.mish_skip)
        p.extend(interleave(body[:k0], [])); p.extend(interleave(body[k0:], w2_ops(c.w2_mish, 12) + [[]]))
        self.stamp("mish", sets=(0, 4))
        rest = [st for st in c.fstages if st >= 4 - c.flag_lag]
        def flags_rest():
            for st in rest: own_flag(st, p)
        if c.prio_a1: p(f"s_setprio {c.prio_a1}")
        p(f"s_load_dwordx2 {s(R_LD,2)}, s[0:1], 0\ns_load_dwordx2 {s(R_OUT,2)}, s[0:1], 104\ns_mov_b32 s{R_LD+2}, {2048*896}\ns_mov_b32 s{R_OUT+2}, {2048*896}\ns_mov_b32 s{R_OUT+3}, 0x20000")
        def load_act(n):
            if "a" in c.diag and n >= 7: return
            assert n // 7 <= seen[0]
            p(f"s_add_u32 s{S_Y}, s{S_AO[n%7]}, {(n//7)*2048}" if c.rot2 else f"s_add_u32 s{S_Y}, s{S_ACTR}, {(4*(n%7) + n//7)*2048}")
            for ti in range(2):
                p(f"buffer_load_dwordx4 {v(AB+8*(n%8)+4*ti,4)}, v{VL16}, {s(R_WS,4)}, s{S_Y} offen offset:{ti*1024} {c.act_ld}")
        seen = [-1, 0]
        def next_flags():
            st = min(x for x in c.fstages if x > seen[0])
            if st != seen[1]: p(f"s_add_u32 s{S_FAR}, s{S_FAR}, {512*(st-seen[1])}"); seen[1] = st
            return self.flag_load("A", S_FAR, 7, VFL)
        def check_flags(f, **kw):
            self.flag_check(f, VT + 1, **kw); seen[0] = seen[1]
            self.stamp(f"act{seen[0]}", sets=(0, 2, 3))
        def reads_upto(m):
            while nw[1] < min(m, 28): p.extend(read_w2(nw[1])[0]); nw[1] += 1
        def dmas_upto(m):
            while nw[0] < min(m, 28):
                if (nw[0] >> 2) in pred: assert nw[1] > nw[0] - 12
                for it in dma_w2(nw[0]): p.extend(it)
                nw[0] += 1
        D = c.adepth
        lead = c.flead
        fl = None
        na = 0
        for op in c.pre_loop.split():
            k = int(op[1:]) if len(op) > 1 else 0
            if op[0] == "R": reads_upto(k)
            elif op[0] == "D": dmas_upto(k)
            elif op[0] == "F":
                if rest: own_flag(rest.pop(0), p)
            elif op[0] == "W": p("s_waitcnt lgkmcnt(0)")
            elif op[0] == "L": fl = next_flags()
            elif op[0] == "C":
                assert not rest or seen[1] < rest[0]
                check_flags(fl, on_miss=flags_rest if rest else None); fl = None
            elif op[0] == "A":
                while na < k: load_act(na); na += 1
            elif op[0] == "V": p("s_waitcnt vmcnt(0)")
            if op[0] not in "L": self.stamp(op + "_" + str(len(self.stamp_names["A"])), sets=(4,))
        assert na == D and nw[1] >= c.rdepth and not rest
        M0 = nw[0]
        if c.prio_a1 != c.prio_a2: p(f"s_setprio {c.prio_a2}")
        self.stamp("flagA", sets=(0, 2, 3))
        assert D <= 7 and c.rdepth <= 11 and c.tail_m <= 7
        main = p
        VXO, VPA, VSA, VSTA, VALL = 9, 10, 12, 13, 14
        XI, RG, RC, RR, XF32, PV, SV, SF = 176, 184, 186, 96, 100, AB, 176, ACC
        S_XO, S_XO1, S_STF = S_ACTW, S_FAW, S_X
        def f15():
            p(f"v_bfe_u32 v{VT+1}, v0, 2, 1\nv_lshrrev_b32 v{VT+2}, 3, v0\nv_and_b32 v{VT+3}, 3, v0\nv_lshl_add_u32 v{VT+4}, v{VT+1}, 4, v{VT+2}")
            p(f"v_mul_u32_u24 v{VXO}, 896, v{VT+4}\nv_lshl_add_u32 v{VXO}, v{VT+3}, 4, v{VXO}")
            p(f"v_xor_b32 v{VPA}, s{S_WF}, v{VT+1}\nv_lshlrev_b32 v{VPA}, 3, v{VPA}\nv_lshl_add_u32 v{VPA}, v{VT+3}, 1, v{VPA}\nv_xor_b32 v{VPA}, v{VPA}, v{VT+2}")
            p(f"s_lshl3_add_u32 s{T}, s{S_WT}, {L_RING//256}\nv_add_u32 v{VT+4}, s{T}, v{VT+4}\nv_lshlrev_b32 v{VT+4}, 8, v{VT+4}\nv_lshl_add_u32 v{VPA}, v{VPA}, 4, v{VT+4}\nv_xor_b32 v{VPA+1}, 16, v{VPA}")
        def f16():
            p(f"s_mul_i32 s{T}, s{S_WAVE}, 2304\ns_add_u32 s{T}, s{T}, {L_STR}\nv_mul_u32_u24 v{VSA}, 288, v{VT+3}\nv_and_b32 v{VT+4}, 60, v0\nv_add3_u32 v{VSA}, v{VSA}, v{VT+4}, s{T}")
            p(f"v_lshl_add_u32 v{VSTA}, v{VT+1}, 4, v{VT+2}\nv_lshlrev_b32 v{VSTA}, 3, v{VSTA}")
            p(f"v_lshlrev_b32 v{VALL}, 2, v{VT+3}\nv_add_u32 v{VALL}, {L_CNT}, v{VALL}")
            p(f"s_lshl3_add_u32 s{S_XO}, s{S_R2}, s{S_WT}\ns_lshl_b32 s{S_STF}, s{S_XO}, 6\ns_add_u32 s{S_STF}, s{S_STF}, {WS_STAT}\ns_mul_i32 s{S_XO}, s{S_XO}, {8*896}\ns_lshl1_add_u32 s{T}, s{S_C2}, s{S_WF}\ns_lshl_b32 s{T}, s{T}, 6\ns_add_u32 s{S_XO}, s{S_XO}, s{T}\ns_add_u32 s{S_XO1}, s{S_XO}, {32*896}")
        def f17():
            p(f"v_and_b32 v{VT+3}, 31, v0\nv_lshrrev_b32 v{VT+1}, 5, v0\nv_and_b32 v{VT+2}, 7, v0\nv_xor_b32 v{VT+1}, v{VT+1}, v{VT+2}\nv_bfe_u32 v{VT+2}, v0, 4, 1\nv_lshl_or_b32 v{VT+1}, v{VT+2}, 3, v{VT+1}")
            p(f"v_lshlrev_b32 v{VT+1}, 4, v{VT+1}\nv_lshl_add_u32 v{VT+1}, v{VT+3}, 8, v{VT+1}\nv_add_u32 v{VD}, s{S_RING}, v{VT+1}")
            for k in range(1, 8): p(f"v_xor_b32 v{VD+k}, {32*k}, v{VD}")
        def f21():
            for ps in range(2): p(f"buffer_load_dwordx4 {v(XI+4*ps,4)}, v{VXO}, {s(R_LD,4)}, s{S_XO1 if ps else S_XO} offen")
        def f22():
            for ps in range(2): p(f"buffer_load_dword v{RG+ps}, v{VSTA}, {s(R_WS,4)}, s{S_STF} offen offset:{ps*256} sc1")
        fin = {15: f15, 16: f16, 17: f17, 21: f21, 22: f22}
        tail = []
        for n in range(28):
            mm = []
            for di, ti in ((0, 0), (1, 0), (0, 1), (1, 1)):
                a = v(ACC + 32 * di + 16 * ti, 16)
                mm.append(I(f"v_mfma_f32_32x32x16_bf16 {a}, {v(w2reg(n)+4*di,4)}, {v(AB+8*(n%8)+4*ti,4)}, {'0' if n == 0 else a}"))
            groups = []
            def grab(fn):
                nonlocal p
                p = self.p = Prog(); fn(); its = p.items; p = self.p = main
                return its
            def split(its):
                cur = []
                for it in its:
                    cur.append(it)
                    if isinstance(it, I) and it.kind in ("vmem", "ds", "valu"): groups.append(cur); cur = []
                if cur: groups.append(cur)
            split(grab(lambda: reads_upto(n + 1 + c.rdepth)))
            if n + D < 28:
                if (n + D) // 7 > seen[0]:
                    groups.append(grab(lambda: check_flags(fl))); fl = None
                split(grab(lambda: load_act(n + D)))
            split(grab(lambda: dmas_upto(min(nw[1] + 12 - c.w2_gap, max(n + 1 + c.w2_lead, M0 + int((n + 1) * c.w2_rate))))))
            if fl is None and min(27, n + D + lead) // 7 > seen[0]:
                def nf():
                    nonlocal fl
                    if "A" in c.spoll: p("s_waitcnt lgkmcnt(0)")
                    fl = next_flags()
                groups.append(grab(nf))
            if n in fin: split(grab(fin[n]))
            if n >= 28 - c.tail_m:
                tail += mm[2:]; mm = mm[:2]
            if c.g2_mix:
                isv = lambda gr: any(isinstance(it, I) and it.kind == "vmem" for it in gr)
                ds = [gr for gr in groups if any(isinstance(it, I) and it.mn.startswith("ds_read_b64_tr") for it in gr)]
                rest = [gr for gr in groups if not any(gr is x for x in ds)]
                nm = len(mm)
                for k in range(nm):
                    p.extend([mm[k]])
                    for gr in ds[k * len(ds) // nm:(k + 1) * len(ds) // nm]: p.extend(gr)
                    for gr in rest[k * len(rest) // nm:(k + 1) * len(rest) // nm]: p.extend(gr)
            else:
                p.extend(mm)
                for gr in groups: p.extend(gr)
            if n in (0, 3, 6, 10, 13, 17, 20): self.stamp(f"n{n}", sets=(0, 2, 4) if n in (0, 13) else (2,))
        pw = lambda ti: [I(f"ds_write_b128 v{VD+4*di+g4}, {v(ACC+32*di+16*ti+4*g4,4)} offset:{ti*SLOT}") for di in range(2) for g4 in range(4)]
        if tail: p.extend(tail[:3]); p.extend(interleave(tail[3:], pw(0)))
        else: p.extend(pw(0))
        self.lds_post(VT + 5, VT, 5)
        self.stamp("gemm2", sets=(0, 2, 3))
        if not c.fin2:
            for ps in range(2):
                p(f"v_and_b32 v{RG+ps}, 0xffff0000, v{RG+ps}\nv_rcp_f32 v{RR+2*ps}, v{RG+ps}\nv_rcp_f32 v{RR+2*ps+1}, v{RG+ps}")
            q = Prog()
            for ps in range(2):
                for j in range(4): q(f"v_lshlrev_b32 v{XF32+8*ps+2*j}, 16, v{XI+4*ps+j}\nv_and_b32 v{XF32+8*ps+2*j+1}, 0xffff0000, v{XI+4*ps+j}")
                q(f"v_mul_f32 v{RC+2*ps}, {LOG2E | 0x80000000}, v{RR+2*ps}\nv_mul_f32 v{RC+2*ps+1}, {LOG2E | 0x80000000}, v{RR+2*ps}")
            p.extend(q.items[:6]); p.extend(interleave(pw(1), q.items[6:]))
            self.lds_post(VT + 5, VT, 6)
            def preads(ps):
                self.lds_wait(VALL, VT + 1, 5 + ps)
                for w in range(4):
                    for e in range(2): p(f"ds_read_b128 {v(PV+32*ps+8*w+4*e,4)}, v{VPA+e} offset:{8192*w+SLOT*ps}")
            def gate(ps):
                b = PV + 32 * ps
                for i in range(0, 8, 2): p(f"v_pk_add_f32 {v(b+i,2)}, {v(b+i,2)}, {v(b+8+i,2)}")
                for i in range(0, 8, 2): p(f"v_pk_add_f32 {v(b+16+i,2)}, {v(b+16+i,2)}, {v(b+24+i,2)}")
                if ps == 0: preads(1)
                for i in range(0, 8, 2): p(f"v_pk_add_f32 {v(b+i,2)}, {v(b+i,2)}, {v(b+16+i,2)}")
                for i in range(0, 8, 2): p(f"v_pk_mul_f32 {v(b+8+i,2)}, {v(b+i,2)}, {v(RC+2*ps,2)}")
                for i in range(8): p(f"v_exp_f32 v{b+8+i}, v{b+8+i}")
                for i in range(0, 8, 2): p(f"v_pk_mul_f32 {v(b+i,2)}, {v(b+i,2)}, {v(RR+2*ps,2)}")
                for i in range(0, 8, 2): p(f"v_pk_add_f32 {v(b+8+i,2)}, {v(b+8+i,2)}, 1.0 op_sel_hi:[1,0]")
                if ps == 1:
                    self.stamp("gate", sets=(0, 2, 3))
                    self.lds_wait(VT + 5, VT + 1, 7)
                    self.stamp("sin", sets=(0, 2, 3))
                    for h in range(2):
                        for i in range(4): p(f"ds_read_b32 v{SV+4*h+i}, v{VSA} offset:{64*i+1152*h}")
                for i in range(8): p(f"v_rcp_f32 v{b+8+i}, v{b+8+i}")
                for i in range(0, 8, 2): p(f"v_pk_mul_f32 {v(b+i,2)}, {v(b+i,2)}, {v(b+8+i,2)}")
            preads(0); gate(0); gate(1)
        else:
            def prd(ps): return [I(f"ds_read_b128 {v(PV+32*ps+8*w+4*e,4)}, v{VPA+e} offset:{8192*w+SLOT*ps}") for w in range(4) for e in range(2)]
            def gate_ops(ps):
                b = PV + 32 * ps; q = Prog()
                for i in range(0, 8, 2): q(f"v_pk_add_f32 {v(b+i,2)}, {v(b+i,2)}, {v(b+8+i,2)}")
                for i in range(0, 8, 2): q(f"v_pk_add_f32 {v(b+16+i,2)}, {v(b+16+i,2)}, {v(b+24+i,2)}")
                for i in range(0, 8, 2): q(f"v_pk_add_f32 {v(b+i,2)}, {v(b+i,2)}, {v(b+16+i,2)}")
                for i in range(0, 8, 2): q(f"v_pk_mul_f32 {v(b+8+i,2)}, {v(b+i,2)}, {v(RC+2*ps,2)}")
                for i in range(8): q(f"v_exp_f32 v{b+8+i}, v{b+8+i}")
                for i in range(0, 8, 2): q(f"v_pk_mul_f32 {v(b+i,2)}, {v(b+i,2)}, {v(RR+2*ps,2)}")
                for i in range(0, 8, 2): q(f"v_pk_add_f32 {v(b+8+i,2)}, {v(b+8+i,2)}, 1.0 op_sel_hi:[1,0]")
                for i in range(8): q(f"v_rcp_f32 v{b+8+i}, v{b+8+i}")
                for i in range(0, 8, 2): q(f"v_pk_mul_f32 {v(b+i,2)}, {v(b+i,2)}, {v(b+8+i,2)}")
                return q.items
            w1_ = pw(1)
            for ps in range(2): p(f"v_and_b32 v{RG+ps}, 0xffff0000, v{RG+ps}\nv_rcp_f32 v{RR+2*ps}, v{RG+ps}\nv_rcp_f32 v{RR+2*ps+1}, v{RG+ps}")
            q = Prog()
            for ps in range(2):
                q(f"v_mul_f32 v{RC+2*ps}, {LOG2E | 0x80000000}, v{RR+2*ps}\nv_mul_f32 v{RC+2*ps+1}, {LOG2E | 0x80000000}, v{RR+2*ps}")
            for ps in range(2):
                for j in range(4): q(f"v_lshlrev_b32 v{XF32+8*ps+2*j}, 16, v{XI+4*ps+j}\nv_and_b32 v{XF32+8*ps+2*j+1}, 0xffff0000, v{XI+4*ps+j}")
            x_ = q.items
            p.extend(x_[:6]); p.extend(w1_[:2]); self.lds_peek(VALL, VT + 1, 5); p.extend(interleave(w1_[2:5], x_[6:15]))
            self.lds_check(VALL, VT + 1, 5, fill=lambda: p.extend(x_[15:]))
            p.extend(prd(0)); p.extend(w1_[5:])
            self.lds_post(VT + 5, VT, 6)
            g0, g1 = gate_ops(0), gate_ops(1)
            p.extend(g0[:12]); self.lds_peek(VALL, VT + 1, 6); self.lds_peek(VT + 5, VT + 2, 7); p.extend(g0[12:24])
            self.lds_check(VALL, VT + 1, 6, fill=lambda: p.extend(g0[24:29]))
            p.extend(prd(1)); p.extend(g0[29:]); p.extend(g1[:24])
            self.stamp("gate", sets=(0, 2, 3))
            self.lds_check(VT + 5, VT + 2, 7, fill=lambda: p.extend(g1[24:29]))
            self.stamp("sin", sets=(0, 2, 3))
            for h in range(2):
                for i in range(4): p(f"ds_read_b32 v{SV+4*h+i}, v{VSA} offset:{64*i+1152*h}")
            p.extend(g1[29:])
        for ps in range(2):
            b = PV + 32 * ps
            for i in range(4): p(f"v_lshlrev_b32 v{SF+8*ps+2*i}, 16, v{SV+4*ps+i}\nv_and_b32 v{SF+8*ps+2*i+1}, 0xffff0000, v{SV+4*ps+i}")
            for i in range(0, 8, 2): p(f"v_pk_fma_f32 {v(b+i,2)}, {v(b+i,2)}, {v(SF+8*ps+i,2)}, {v(XF32+8*ps+i,2)}")
            for i in range(4): p(f"v_cvt_pk_bf16_f32 v{b+16+i}, v{b+2*i}, v{b+2*i+1}")
            p(f"buffer_store_dwordx4 {v(b+16,4)}, v{VXO}, {s(R_OUT,4)}, s{S_XO1 if ps else S_XO} offen {c.out_fl}")
        self.stamp("end", sets=(0, 2, 3, 4, 9))
        self.stamp_flush(1)
        p("s_endpgm")

    def gather_table(self):
        import numpy as np
        def rb(l):
            u = np.array([l], np.float32).view(np.uint32)
            return int((((u + 0x7FFF + ((u >> 16) & 1)) >> 16) << 16).view(np.float32)[0])
        rows = list(range(8)) + list(range(128, 136)) + [256, 258, 260, 262, 384, 386, 388, 390, 512, 516, 640, 644, 768, 772, 896, 900] + [1024 + 128 * k for k in range(9)]
        pos = {}
        for i, a in enumerate(rows):
            tile, row = i >> 4, i & 15
            for col in range(16): pos[a + 8 * col] = tile * 1024 + ((row >> 2) * 16 + col) * 16 + (row & 3) * 4
        zero = 2 * 1024 + 48 * 16
        at = lambda l: zero if l < 0 else pos[rb(l)]
        words = []
        for mh in range(2):
            for half in range(2):
                for lane in range(64):
                    hiA, hiB = 2047 - 8 * (64 * mh + lane), 1023 - 8 * (64 * mh + lane)
                    e = [at(hiA - i) for i in (0, 3, 4, 10)] + [at(hiB - i) for i in range(11)] + [0]
                    e = e[8 * half: 8 * half + 8]
                    words += [e[2 * k] | (e[2 * k + 1] << 16) for k in range(4)]
        return words

    def role_b(self):
        p, c = self.p, self.c
        p.label("L_roleB")
        self.role_start(True); self.stamp_begin("B")
        S_BW, S_LDT, S_DSK, S_STW, S_CHN, S_MH = B_BW, B_LDT, B_DSK, B_STW, S_WF, S_WT
        S_FXR, S_XTR, S_FSW, S_FSR, S_STR, S_XO = 74, 75, 76, 77, 0, 1
        S_X, S_Y = 78, 79
        T = S_T
        VL16, VP, VGT, VG, VSW, VSR, VT = 9, B_VP, 120, 16, 46, 47, 50
        VRW, VTW, VTZ, VTA, VUA, VUW, VCN, VONE, VEXW, VEXR, VTAG, VUZ, VFL = range(32, 45)
        self.load_epoch()
        self.loader_base()
        ctok = {}
        if c.a_chunks < 7:
            if c.rot1: p(f"s_cmp_ge_u32 s{S_C2}, {7-c.a_chunks}\ns_cselect_b32 s{T}, {c.a_chunks-7}, {c.a_chunks}\ns_mul_i32 s{T}, s{T}, s{S_CSTR}\ns_add_u32 s{S_SOFF}, s{S_SOFF}, s{T}")
            else: p(f"s_mul_i32 s{T}, s{S_CSTR}, {c.a_chunks}\ns_add_u32 s{S_SOFF}, s{S_SOFF}, s{T}")
        p(f"v_lshlrev_b32 v{VL16}, 4, v0\ns_lshl3_add_u32 s{S_STW}, s{S_STW}, {WS_ST}")
        srd(p, R_2, P_W2, 1792 * 896)
        late = Prog(); q = late
        q(f"s_lshl2_add_u32 s{S_R2}, s{S_XCD}, s{S_JR}")
        q(f"s_lshr_b32 s{T}, s{S_CP}, 5\ns_lshl2_add_u32 s{S_FXR}, s{T}, s{S_BW}\ns_and_b32 s{T}, s{S_CP}, 3\ns_lshl2_add_u32 s{S_FXR}, s{S_FXR}, s{T}\ns_lshl_b32 s{S_FXR}, s{S_FXR}, 7\ns_add_u32 s{S_FXR}, s{S_FXR}, {WS_FX}\ns_lshr_b32 s{T}, s{S_CP}, 4")
        q(f"s_lshl3_add_u32 s{S_XTR}, s{S_CP}, s{S_BW}\ns_lshl_b32 s{S_XTR}, s{S_XTR}, 10\ns_add_u32 s{S_XTR}, s{S_XTR}, {WS_XT}")
        q(f"s_mul_i32 s{S_FSW}, s{S_BW}, 14\ns_add_u32 s{S_FSW}, s{S_FSW}, s{T}\ns_lshl_b32 s{S_FSW}, s{S_FSW}, 7\ns_and_b32 s{T+1}, s{S_CP}, 15\ns_add_u32 s{S_FSW}, s{S_FSW}, s{T+1}\ns_lshl2_add_u32 s{S_FSW}, s{S_FSW}, {WS_FS}")
        q(f"s_lshl1_add_u32 s{T}, s{S_C2}, s{S_CHN}")
        q(f"s_lshr_b32 s{T+1}, s{S_R2}, 3\ns_mul_i32 s{S_FSR}, s{T+1}, 14\ns_add_u32 s{S_FSR}, s{S_FSR}, s{T}\ns_lshl2_add_u32 s{S_FSR}, s{S_FSR}, s{S_JR}\ns_lshl_b32 s{S_FSR}, s{S_FSR}, 7\ns_add_u32 s{S_FSR}, s{S_FSR}, {WS_FS}")
        q(f"s_lshl_b32 s{S_STR}, s{T}, 9\ns_add_u32 s{S_STR}, s{S_STR}, s{S_R2}\ns_lshl1_add_u32 s{S_STR}, s{S_STR}, s{S_MH}\ns_lshl_b32 s{S_STR}, s{S_STR}, 7\ns_add_u32 s{S_STR}, s{S_STR}, {WS_ST}\ns_add_u32 s{S_XO}, s{S_STR}, {8*8192}")
        q(f"v_and_b32 v{VT}, 15, v0\nv_lshrrev_b32 v{VT+1}, 4, v0")
        q(f"s_mul_i32 s{T}, s{S_BW}, 8448\nv_mul_u32_u24 v{VT+2}, 528, v{VT}\nv_and_b32 v{VT+3}, 256, v{VL16}\nv_add3_u32 v{VT+2}, v{VT+2}, v{VT+3}, s{T}\nv_lshrrev_b32 v{VT+3}, 5, v0\nv_lshl_add_u32 v{VSR}, v{VT+3}, 4, v{VT+2}")
        q(f"s_lshl_b32 s{T}, s{S_BW}, 13\nv_add_u32 v{VEXW}, s{T}, v{VL16}")
        q(f"s_mul_i32 s{T}, s{S_BW}, 3072\ns_add_u32 s{T}, s{T}, {L_RAW}\nv_add_u32 v{VRW}, s{T}, v{VL16}")
        q(f"s_mul_i32 s{T}, s{S_CHN}, 16640\ns_add_u32 s{T}, s{T}, {L_TAB}\ns_lshl_b32 s{T+1}, s{S_MH}, 10\ns_add_u32 s{T+1}, s{T+1}, s{T}\nv_add_u32 v{VTW}, s{T+1}, v{VL16}")
        q(f"v_lshrrev_b32 v{VT+2}, 1, v0\nv_mul_u32_u24 v{VT+2}, 4160, v{VT+2}\nv_and_b32 v{VT+3}, 16, v{VL16}\nv_add3_u32 v{VTZ}, v{VT+2}, v{VT+3}, s{T}")
        q(f"v_sub_u32 v{VT+2}, 3, v{VT}\nv_and_b32 v{VT+2}, 3, v{VT+2}\nv_mul_u32_u24 v{VT+3}, {4160-2}, v{VT+2}\nv_lshl_add_u32 v{VT+3}, v{VT+1}, 4, v{VT+3}\nv_lshlrev_b32 v{VT+2}, 1, v{VT}\nv_sub_u32 v{VT+3}, v{VT+3}, v{VT+2}")
        q(f"s_lshl_b32 s{T+1}, s{S_MH}, 8\ns_sub_u32 s{T}, s{T}, s{T+1}\ns_add_u32 s{T}, s{T}, {2*(2031-1792-96)}\nv_add_u32 v{VTA}, s{T}, v{VT+3}")
        q(f"s_mul_i32 s{S_X}, s{S_CHN}, 4608\ns_sub_u32 s{T}, s{S_X}, s{T+1}\ns_add_u32 s{T}, s{T}, {L_U+2*(240-96)}\nv_lshlrev_b32 v{VT+2}, 5, v{VT}\nv_lshl_add_u32 v{VT+2}, v{VT+1}, 4, v{VT+2}\nv_add_u32 v{VUA}, s{T}, v{VT+2}")
        q(f"s_add_u32 s{S_X}, s{S_X}, s{T+1}\ns_add_u32 s{S_X}, s{S_X}, {L_U}\nv_lshl_add_u32 v{VUZ}, v0, 2, s{S_X}")
        q(f"s_lshl_b32 s{T}, s{S_BW}, 10\ns_add_u32 s{T}, s{T}, {L_U+512}\nv_add_u32 v{VUW}, s{T}, v{VL16}")
        q(f"s_lshl_b32 s{T}, s{S_BW}, 11\ns_add_u32 s{T}, s{T}, {L_EX}\nv_add_u32 v{VEXR}, s{T}, v{VL16}")
        VZ = 56
        for i in range(4): q(f"v_mov_b32 v{VZ+i}, 0")
        q(f"s_lshl2_add_u32 s{T}, s{S_BW}, {L_CNT}\nv_mov_b32 v{VONE}, s{T}\nv_and_b32 v{VCN}, 3, v0\nv_lshlrev_b32 v{VCN}, 2, v{VCN}\nv_add_u32 v{VCN}, {L_CNT}, v{VCN}")
        VW2D = 48; S_WOFF, S_WIDX, S_RING = 88, 89, 91
        q(f"v_lshrrev_b32 v{VT+2}, 3, v0\nv_mul_u32_u24 v{VT+2}, 896, v{VT+2}\nv_bfe_u32 v{VT+3}, v0, 4, 1\nv_lshlrev_b32 v{VT+3}, 2, v{VT+3}\nv_xor_b32 v{VT+3}, v0, v{VT+3}\nv_and_b32 v{VT+3}, 7, v{VT+3}")
        q(f"v_lshl_add_u32 v{VW2D}, v{VT+3}, 4, v{VT+2}\nv_add_u32 v{VW2D+1}, {7168-1024}, v{VW2D}")
        if c.rot2 == 2: q(f"s_lshl1_add_u32 s{S_WIDX}, s{S_JR}, s{S_C2}\ns_cmp_ge_u32 s{S_WIDX}, 7\ns_cselect_b32 s{T}, 7, 0\ns_sub_u32 s{S_WIDX}, s{S_WIDX}, s{T}")
        else: q(f"s_mov_b32 s{S_WIDX}, {'s%d' % S_C2 if c.rot2 else 0}")
        q(f"s_mul_i32 s{S_WOFF}, s{S_BW}, 7\ns_add_u32 s{S_WOFF}, s{S_WOFF}, s{S_WIDX}\ns_mul_i32 s{S_WOFF}, s{S_WOFF}, {64*7}\ns_add_u32 s{S_WOFF}, s{S_WOFF}, s{S_C2}\ns_lshl_b32 s{S_WOFF}, s{S_WOFF}, 7")
        q(f"s_lshl_b32 s{S_RING}, s{S_BW}, 13\ns_add_u32 s{S_RING}, s{S_RING}, {L_RING}")
        assert not c.qperm and c.b_pre == 1.0
        if "X" not in c.spoll: q(f"v_min_u32 v{VFL}, 7, v0\nv_lshlrev_b32 v{VFL}, 2, v{VFL}")
        k = int(len(late.items) * c.b_pre)
        p.extend(late.items[:k]); late.items = late.items[k:]
        T = 90
        S_TCH = 92; nt = [0]
        def touch_upto(m):
            while nt[0] < m:
                p(f"s_buffer_load_dwordx2 s[94:95], {s(R_2,4)}, s{S_TCH}\ns_add_u32 s{S_TCH}, s{S_TCH}, 128"); nt[0] += 1
                p.items.append(Marker("forget", {"s94", "s95"}))
        if c.s_touch: p(f"s_lshl2_add_u32 s{S_TCH}, s{S_CP}, s{S_BW}\ns_mul_i32 s{S_TCH}, s{S_TCH}, {14*128}\ns_add_u32 s{S_TCH}, s{S_TCH}, 60")
        self.make_tag()
        p(f"s_lshl_b32 s{T}, s{S_CHN}, 4\ns_lshr_b32 s{S_LDT}, s{S_LDT}, s{T}\ns_lshl_b32 s{S_LDT}, s{S_LDT}, 16\ns_lshr_b32 s{S_DSK}, s{S_DSK}, s{T}\ns_lshl_b32 s{S_DSK}, s{S_DSK}, 16")
        VDT = 60
        p(f"v_mov_b32 v{VDT}, {LOG2E}\nv_mul_f32 v{VDT}, s{S_LDT}, v{VDT}\nv_exp_f32 v{VDT}, v{VDT}\nv_mov_b32 v{VTAG}, s{S_TAG}\nv_cvt_pk_bf16_f32 v{VDT}, v{VDT}, v{VDT}\nv_and_b32 v{VDT}, 0xffff0000, v{VDT}\nv_mov_b32 v{VDT+1}, v{VDT}")
        if c.s_touch: touch_upto(c.s_touch[0])
        self.stamp("pre", sets=(1,))
        Z1, Z2, Z4, Z8, Z128, XB, XC, XDD, TM = 64, 68, 72, 76, 80, 84, 88, 92, 96
        AL, BE, UB, CV = 108, 110, 112, 120
        YF, XF, KV, KA = 128, 160, 128, 244
        units = []
        def unpack(d, src): p(f"v_lshlrev_b32 v{d}, 16, v{src}\nv_and_b32 v{d+1}, 0xffff0000, v{src}")
        def mul2(d, a, b, pk):
            if pk: p(f"v_pk_mul_f32 {v(d,2)}, {v(a,2)}, {v(b,2)}")
            else: p(f"v_mul_f32 v{d}, v{a}, v{b}\nv_mul_f32 v{d+1}, v{a+1}, v{b+1}")
        def cmul_(d, a, b, pk):
            assert d != b
            mul2(TM, a, b, pk); mul2(TM + 2, a, b + 2, pk)
            if pk:
                p(f"v_pk_fma_f32 {v(d,2)}, {v(a+2,2)}, {v(b+2,2)}, {v(TM,2)} neg_lo:[1,0,0] neg_hi:[1,0,0]")
                p(f"v_pk_fma_f32 {v(d+2,2)}, {v(a+2,2)}, {v(b,2)}, {v(TM+2,2)}")
            else:
                for m in range(2): p(f"v_fma_f32 v{d+m}, -v{a+2+m}, v{b+2+m}, v{TM+m}")
                for m in range(2): p(f"v_fma_f32 v{d+2+m}, v{a+2+m}, v{b+m}, v{TM+2+m}")
        def cmul(d, a, b): units.append((8, lambda pk: cmul_(d, a, b, pk)))
        def put(e, a, conj):
            ng = "-" if conj else ""
            units.append((2, lambda pk: (have.add(e), p(f"v_cvt_pk_bf16_f32 v{KV+2*e}, v{a}, {ng}v{a+2}\nv_cvt_pk_bf16_f32 v{KV+2*e+1}, v{a+1}, {ng}v{a+3}"))))
        have = {0}
        def getfr(base):
            return [I(f"ds_read_b128 {v(base+4*fr,4)}, v{VSR} offset:{fr*32}") for fr in range(8)]
        def kmfma(tile, base):
            a = v(KA + 4 * tile, 4)
            return [I(f"v_mfma_f32_16x16x32_bf16 {a}, {v(base+4*fr,4)}, {v(YF+4*fr,4)}, {'0' if (fr == 0 and tile) else a}") for fr in range(8)]
        def zpow_(d, lg, pk):
            for m in range(2):
                if lg: p(f"v_ldexp_f32 v{TM+m}, v{AL+m}, {lg}\nv_ldexp_f32 v{TM+2+m}, v{BE+m}, {lg}")
                a, b = (TM + m, TM + 2 + m) if lg else (AL + m, BE + m)
                p(f"v_exp_f32 v{TM+m}, v{a}\nv_fract_f32 v{TM+2+m}, v{b}")
            for m in range(2): p(f"v_cos_f32 v{d+m}, v{TM+2+m}\nv_sin_f32 v{d+2+m}, v{TM+2+m}")
            mul2(d, d, TM, pk); mul2(d + 2, d + 2, TM, pk)
        def zpow(d, lg): units.append((22, lambda pk: zpow_(d, lg, pk)))
        p(f"v_mov_b32 v{KV}, 0x3f80\nv_mov_b32 v{KV+1}, 0x3f80")
        unpack(AL, VP); unpack(BE, VP + 1)
        self.stamp("params", sets=(0, 1))
        mul2(AL, AL, VDT, True); mul2(BE, BE, VDT, True)
        for m in range(2): p(f"v_mul_f32 v{AL+m}, {LOG2E}, v{AL+m}\nv_mul_f32 v{BE+m}, 0.15915494, v{BE+m}")
        early_done = [None]
        zpow(Z8, 3)
        put(1, Z8, False)
        prev = Z8
        for r in range(2, 16): cmul(XB, prev, Z8); prev = XB; put(r, XB, False)
        zpow(Z1, 0); zpow(Z128, 7)
        units.append((8, lambda pk: [unpack(UB + 2 * i, VP + 2 + i) for i in range(4)]))
        cmul(XC, UB, UB + 4)
        units.append((4, lambda pk: (mul2(XC, XC, VDT, pk), mul2(XC + 2, XC + 2, VDT, pk))))
        cmul(XB, XC, Z128)
        put(16, XC, True); put(24, XB, True)
        prev = XB
        for r in range(1, 8):
            cmul(XC, XC, Z1); put(16 + r, XC, True)
            cmul(XDD, prev, Z1); prev = XDD; put(24 + r, XDD, True)
        for it in late.items: units.append((1, lambda pk, it=it: p.extend([it])))
        cmul(Z2, Z1, Z1); cmul(Z4, Z2, Z2)
        for k in range(2):
            cmul(XB, XB, Z128); put(32 + 4 * k, XB, True); prev = XB
            for r in range(1, 4): cmul(XC, prev, Z2); prev = XC; put(32 + 4 * k + r, XC, True)
        for k in range(4):
            cmul(XB, XB, Z128); put(40 + 2 * k, XB, True)
            cmul(XC, XB, Z4); put(41 + 2 * k, XC, True)
        for k in range(9): cmul(XB, XB, Z128); put(48 + k, XB, True)
        total = sum(u[0] for u in units)
        cuts = [c.kg_pre] + [c.kg_pre + (total - c.kg_pre) * (i - c.kg_x) / (c.kg_ints - c.kg_x) for i in range(1, 7)]
        X2F = 64
        order = list(range(48, 57)) + list(range(16)) + list(range(32, 48)) + list(range(16, 32))
        lops = []
        for e in order:
            it = [I(f"ds_write_addtid_b32 v{KV+2*e+m} offset:{(e&15)*528+256*m}") for m in range(2)]
            if 36 <= e < 44: it.append(kmfma(2, X2F)[e - 36])
            if e == 46: it += [I(f"v_cndmask_b32 v{KA+8}, 0, v{KA+8}, vcc"), I(f"ds_write_b128 v{VRW}, {v(KA+8,4)} offset:2048")]
            if 20 <= e < 28: it.append(kmfma(1, XF + 32)[e - 20])
            if e == 30: it.append(I(f"ds_write_b128 v{VRW}, {v(KA+4,4)} offset:1024"))
            if e in (15, 31, 47, 56): it += getfr({15: YF, 31: XF, 47: XF + 32, 56: X2F}[e])
            lops.append(it)
        nl = [0]
        def lds_upto(m):
            while nl[0] < m:
                assert order[nl[0]] in have
                p.extend(lops[nl[0]]); nl[0] += 1
        done = 0; nb = 0; fx = [None]; xt = [None]
        def barrier():
            nonlocal nb
            if nb in ctok: p.wait(ctok[nb])
            if nb == c.r_at and c.r_early: p.wait(w2t[c.r_early - 1])
            self.stamp(f"atbar{nb}", sets=(0, 1) if nb == 0 else (1,))
            p("s_barrier")
            if c.a_chunks <= nb + 3 < 7:
                for it in self.dma_chunk(nb + 3, T, ctok): p.extend(it)
            if c.s_touch and nb < 4: touch_upto(c.s_touch[nb + 1])
            if nb == 4: self.stamp("bar4", sets=(0, 3))
            if nb == c.gt_at:
                p(f"s_lshl_b32 s{T}, s{S_MH}, 11\ns_add_u32 s{T}, s{T}, L_gtab-L_pc")
                for h in range(2): p(f"buffer_load_dwordx4 {v(VGT+4*h,4)}, v{VL16}, {s(R_PC,4)}, s{T} offen offset:{1024*h}")
            if nb >= 4 or nb == c.br0:
                while nq[0] < (c.bw2[nb - 4] if nb >= 4 else 4):
                    n = nq[0]; nq[0] += 1
                    pc = (n >> 2) if c.br0 < 0 else (-2 if n < 4 else (n >> 2) - 1)
                    assert pc <= nb - 4 or pc < 0
                    p(f"s_add_u32 m0, s{S_RING}, {pc*SLOT + (n&3)*2048}\ns_cmp_eq_u32 s{S_WIDX}, {(6-n)%7}\nbuffer_load_dwordx4 v{VW2D}, {s(R_2,4)}, s{S_WOFF} offen lds")
                    w2t[n] = p.tok(f"buffer_load_dwordx4 v{VW2D+1}, {s(R_2,4)}, s{S_WOFF} offen offset:1024 lds")
                    p(f"s_cselect_b32 s{T}, {-7*64*896}, 0\ns_add_u32 s{S_WOFF}, s{S_WOFF}, s{T}\ns_add_u32 s{S_WOFF}, s{S_WOFF}, {(64 + (16 if n % 7 == 6 else 0))*896}")
            if nb < 7 and c.lds_cut[nb] > nl[0]:
                assert done == total and c.lds_cut[nb] <= 23 and (c.br0 < 0 or nb > c.r_at)
                p(f"s_mul_i32 m0, s{S_BW}, 8448"); lds_upto(c.lds_cut[nb])
            if nb == 5:
                p(f"s_mul_i32 s{T}, s{S_CHN}, 6144\ns_add_u32 s{T}, s{T}, {L_RAW}\ns_cmp_eq_u32 s{S_MH}, 0\ns_cselect_b32 s{S_DSK}, s{S_DSK}, 0")
                p(f"v_mov_b32 v{VT}, s{S_DSK}\nv_cmp_eq_u32 vcc, 0, v0\nv_mov_b32 v{VT+1}, s{T}\nv_mov_b32 v{KA+1}, 0\nv_cndmask_b32 v{KA}, 0, v{VT}, vcc\nv_mov_b32 v{KA+2}, 0\nv_mov_b32 v{KA+3}, 0\nv_cmp_gt_u32 vcc, 48, v0")
                for k in range(15):
                    p(f"v_add_u32_sdwa v{VG+k}, v{VT+1}, v{VGT+(k>>1)} dst_sel:DWORD dst_unused:UNUSED_PAD src0_sel:DWORD src1_sel:WORD_{k&1}")
            nb += 1
        nq = [0]; w2t = {}
        for cost, fn in units:
            while nb < 8 and done >= cuts[min(nb, 6)]: barrier()
            fn(nb == 0); done += cost
        while nb < 8: barrier()
        self.stamp("bar7", sets=(0, 3))
        p(f"s_mul_i32 m0, s{S_BW}, 8448\nds_write_b32 v{VUZ}, v{VZ}")
        if c.prio_b3 != c.prio_b2: p(f"s_setprio {c.prio_b3}")
        XR, XR2 = 2, 52
        lds_upto(c.fx_ld)
        fx = self.flag_load("X", S_FXR, 8, VFL)
        lds_upto(c.fx_chk)
        self.flag_check(fx, VT)
        p.wait(w2t[nq[0] - 1]); self.lds_post(VONE, VTAG, 4)
        self.stamp("fx", sets=(0, 3))
        p(f"buffer_load_dwordx4 {v(XR,4)}, v{VL16}, {s(R_WS,4)}, s{S_XTR} offen sc1\ns_add_u32 s{S_XTR}, s{S_XTR}, 4096\nbuffer_load_dwordx4 {v(XR2,4)}, v{VL16}, {s(R_WS,4)}, s{S_XTR} offen sc1")
        lds_upto(57)
        p.extend(kmfma(0, XF))
        T = S_T
        uw = lambda: [p(f"ds_write_b128 v{VUW}, {v(XR2 if ch else XR,4)} offset:{4608*ch}") for ch in range(2)]
        if c.u_at == 0: uw()
        p(f"ds_write_b128 v{VRW}, {v(KA,4)}")
        self.lds_post(VONE, VTAG, 0)
        self.stamp("kgen", sets=(0, 3))
        if c.prio_b4 != c.prio_b3: p(f"s_setprio {c.prio_b4}")
        if c.u_at == 1: uw()
        self.lds_wait(VCN, VT, 0)
        GV, PK = 96, 128
        for k in range(15): p(f"ds_read2st64_b32 {v(GV+2*k,2)}, v{VG+k} offset0:0 offset1:12")
        for k in range(15): p(f"v_add_f32 v{GV+2*k}, v{GV+2*k}, v{GV+2*k+1}")
        seq = [[0, 0, 0, 1, 2, 2, 2, 2, 2, 2, 3], list(range(4, 15))]
        for task in range(2):
            for cp_ in range(4):
                for j in range(4):
                    p(f"v_cvt_pk_bf16_f32 v{PK+16*task+4*cp_+j}, v{GV+2*seq[task][cp_+2*j]}, v{GV+2*seq[task][cp_+2*j+1]}")
                p(f"ds_write_b128 v{VTW}, {v(PK+16*task+4*cp_,4)} offset:{cp_*4160+task*2048}")
        p(f"s_mov_b64 exec, 0xff\nds_write_b128 v{VTZ}, {v(VZ,4)} offset:4096\ns_mov_b64 exec, -1")
        self.stamp("tables", sets=(0, 3, 4))
        if c.u_at == 2: uw()
        self.lds_post(VONE, VTAG, 1)
        self.lds_wait(VCN, VT, 1)
        self.stamp("u", sets=(0, 3, 4))
        if c.prio_b5 != c.prio_b4: p(f"s_setprio {c.prio_b5}")
        TF, UF, CA = 96, 160, 224
        def read_tu(ph):
            r = [I(f"ds_read_b128 {v(UF+32*(ph&1),4)}, v{VUA} offset:{2*32*(3-ph)}")]
            for a in range(8):
                for h in range(2):
                    r.append(I(f"ds_read_b64 {v(TF+32*(ph&1)+4*a+2*h,2)}, v{VTA} offset:{2*(256*(7-a)+32*(3-ph))+8*h}"))
            return r + [I(f"ds_read_b128 {v(UF+32*(ph&1)+4*b,4)}, v{VUA} offset:{2*(256*b+32*(3-ph))}") for b in range(1, 8)]
        r0 = read_tu(0)
        p.extend(r0[:13])
        for ph in range(4):
            mm = []
            for b in range(8):
                for a in range(8 - b):
                    acc = v(CA + 4 * (a + b), 4)
                    mm.append(I(f"v_mfma_f32_16x16x32_bf16 {acc}, {v(UF+32*(ph&1)+4*b,4)}, {v(TF+32*(ph&1)+4*a,4)}, {'0' if (ph == 0 and b == 0) else acc}"))
            fill = (r0[13:] if ph == 0 else []) + (read_tu(ph + 1) if ph < 3 else [])
            if ph == 3:
                self.lds_post(VONE, VTAG, 2)
                p.extend(mm[:12]); self.lds_peek(VCN, VT, 2); p.extend(mm[12:21])
                self.lds_check(VCN, VT, 2, fill=lambda: p.extend(mm[21:26])); mm = mm[26:]
                if c.prio_b6 != c.prio_b5 and not c.late6: p(f"s_setprio {c.prio_b6}")
                fill = [I(f"ds_write_b128 v{VEXW}, {v(CA+4*cc,4)} offset:{1024*cc}") for cc in range(4)]
                p.extend(interleave(mm, fill, ratio=0.5))
            else: p.extend(interleave(mm, fill, ratio=1.0))
        if c.prio_b6 != c.prio_b5 and c.late6: p(f"s_setprio {c.prio_b6}")
        self.stamp("conv", sets=(0, 2, 3, 4))
        for cc in range(4, 8): p(f"ds_write_b128 v{VEXW}, {v(CA+4*cc,4)} offset:{1024*cc}")
        self.lds_post(VONE, VTAG, 3)
        EXV, VSA = 96, 10
        if "b" in c.diag:
            p(f"v_lshlrev_b32 v{VT+4}, 7, v0\ns_mov_b64 exec, 15\nbuffer_store_dword v{VTAG}, v{VT+4}, {s(R_WS,4)}, s{S_FSW} offen sc1\ns_mov_b64 exec, -1")
            self.lds_post(VONE, VTAG, 7); p("s_waitcnt lgkmcnt(0)"); self.stamp_flush(1); p("s_endpgm"); return
        self.lds_wait(VCN, VT, 3)
        for k in range(2):
            for w in range(4): p(f"ds_read_b128 {v(EXV+16*k+4*w,4)}, v{VEXR} offset:{8192*w+1024*k}")
        for k in range(2):
            b = EXV + 16 * k
            for r in range(4): p(f"v_add_f32 v{b+r}, v{b+r}, v{b+4+r}\nv_add_f32 v{b+8+r}, v{b+8+r}, v{b+12+r}")
            for r in range(4): p(f"v_cvt_pk_bf16_f32 v{b+4+r}, v{b+r}, v{b+8+r}")
            sttok = p.tok(f"buffer_store_dwordx4 {v(b+4,4)}, v{VL16}, {s(R_WS,4)}, s{S_STW} offen offset:{1024*k} sc1")
        self.stamp("st", sets=(0, 2, 3, 4))
        if "S" not in c.spoll: p(f"v_min_u32 v{VFL}, 15, v0\nv_lshlrev_b32 v{VFL}, 2, v{VFL}")
        p(f"s_mul_i32 s{T}, s{S_BW}, 2304\ns_add_u32 s{T}, s{T}, {L_STR}")
        p(f"v_and_b32 v{VT+4}, 32, v0\nv_lshl_add_u32 v{VT+4}, v0, 3, v{VT+4}\nv_add_u32 v{VSA}, s{T}, v{VT+4}")
        p(f"v_lshrrev_b32 v{VT+4}, 3, v0\nv_lshlrev_b32 v{VT+4}, 13, v{VT+4}\nv_and_b32 v{VT+5}, 7, v0\nv_lshl_add_u32 v{VSA+2}, v{VT+5}, 4, v{VT+4}\nv_lshlrev_b32 v{VT+4}, 7, v0")
        p.wait(sttok)
        p(f"s_mov_b64 exec, 15\nbuffer_store_dword v{VTAG}, v{VT+4}, {s(R_WS,4)}, s{S_FSW} offen sc1\ns_mov_b64 exec, -1")
        self.stamp("flagS")
        if c.prio_b7 != c.prio_b6: p(f"s_setprio {c.prio_b7}")
        if c.fs_first: p(f"s_sleep {c.fs_first}")
        fs = self.flag_load("S", S_FSR, 16, VFL)
        self.flag_check(fs, VT, sleep=c.fs_sleep)
        self.stamp("fs", sets=(0, 2, 3))
        if c.prio_b8 != c.prio_b7: p(f"s_setprio {c.prio_b8}")
        SV = 64
        for j in range(2): p(f"buffer_load_dwordx4 {v(SV+4*j,4)}, v{VSA+2}, {s(R_WS,4)}, s{S_XO if j else S_STR} offen sc1")
        for j in range(2): p(f"ds_write2_b64 v{VSA}, {v(SV+4*j,2)}, {v(SV+4*j+2,2)} offset0:{72*j} offset1:{72*j+144}")
        self.lds_post(VONE, VTAG, 7)
        p("s_waitcnt lgkmcnt(0)")
        self.stamp("sready", sets=(0, 2, 3))
        self.stamp_flush(1)
        p("s_endpgm")

    def head_h(self):
        p, c = self.p, self.c
        p.label("L_helper")
        self.role_start()
        S_HH, S_X, S_Z, VT, XD = 64, 65, 72, 1, 16
        p(f"s_lshl2_add_u32 s{S_HH}, s{S_XCD}, s{S_J}\ns_sub_u32 s{S_HH}, s{S_HH}, 28\ns_lshl3_add_u32 s{S_Z}, s{S_HH}, s{S_WAVE}\ns_mul_i32 s{S_X}, s{S_Z}, {8*896}")
        p(f"v_lshrrev_b32 v{VT+2}, 3, v0\nv_mul_u32_u24 v{VT}, 896, v{VT+2}\nv_and_b32 v{VT+1}, 7, v0\nv_lshl_add_u32 v{VT}, v{VT+1}, 4, v{VT}")
        srd(p, R_LD, P_U, 2048 * 896)
        for i in range(7): p(f"buffer_load_dwordx4 {v(XD+4*i,4)}, v{VT}, {s(R_LD,4)}, s{S_X} offen offset:{128*i}")
        if c.h_near: p("s_branch L_bodyH")
    def role_h(self):
        p, c = self.p, self.c
        S_HH, S_X, S_Y, S_ONE, S_LO, S_HI, S_Q, S_CG, S_Z = range(64, 73)
        T = S_T
        VT, XD, WD, AC, CS, UP = 1, 16, 48, 80, 88, 96
        L_XN = 8192
        if c.h_near:
            if c.h_align: p(".p2align 12")
            p.label("L_bodyH"); p.reset()
            if c.prefetch_code: p.items.append(Marker("pending", ("vmem", {"v255"})))
            for i in range(7): p.items.append(Marker("pending", ("vmem", {f"v{XD+4*i+j}" for j in range(4)})))
        else: self.head_h()
        self.stamp_begin("H")
        self.load_epoch(); srd(p, R_2, P_W1, 448 * 3584); srd(p, R_PC, P_W2, 1792 * 896)
        p(f"s_lshr_b32 s{S_Q}, s{S_XCD}, 1\ns_lshl2_add_u32 s{S_Q}, s{S_Q}, s{S_J}\ns_sub_u32 s{S_Q}, s{S_Q}, 28\ns_and_b32 s{S_CG}, s{S_XCD}, 1\ns_mul_i32 s{S_CG}, s{S_CG}, 14\ns_add_u32 s{S_CG}, s{S_CG}, s{S_Q}")
        p(f"s_lshl_b32 s{T}, s{S_CG}, 7\ns_mul_i32 s{S_Y}, s{S_WAVE}, {56*3584}\ns_add_u32 s{S_Y}, s{S_Y}, s{T}\ns_cmp_ge_u32 s{S_Q}, 14\ns_cselect_b32 s{S_Y}, {448*3584}, s{S_Y}")
        p(f"v_mul_u32_u24 v{VT+3}, 3584, v{VT+2}\nv_lshl_add_u32 v{VT+3}, v{VT+1}, 4, v{VT+3}")
        p(f"s_mov_b32 s{S_ONE}, 0x3f803f80\ns_mov_b32 s{S_LO}, 0x00003f80\ns_mov_b32 s{S_HI}, 0x3f800000")
        p(f"s_lshl_b32 s{S_X}, s{S_Z}, 6\ns_add_u32 s{S_X}, s{S_X}, {WS_STAT}")
        p(f"s_mul_i32 s{T}, s{S_WAVE}, 7232\ns_add_u32 s{T}, s{T}, {L_XN}\nv_add_u32 v{VT}, s{T}, v{VT}")
        for i in range(4): p(f"v_mov_b32 v{AC+i}, 0")
        for k in range(8): p(f"v_mov_b32 v{CS+k}, 0")
        self.make_tag()
        def w1_loads():
            for i in range(7):
                p(f"buffer_load_dwordx4 {v(WD+4*i,4)}, v{VT+3}, {s(R_2,4)}, s{S_Y} offen")
                if i < 6: p(f"s_add_u32 s{S_Y}, s{S_Y}, {8*3584}")
        def touch():
            p(f"s_sub_u32 s{T}, s{S_J}, 28\ns_mul_i32 s{T}, s{T}, 7\ns_add_u32 s{T}, s{T}, s{S_WAVE}\ns_lshl3_add_u32 s{T}, s{T}, s{S_XCD}\ns_mul_i32 s{T}, s{T}, {8*896}\ns_cmp_eq_u32 s{S_WAVE}, 7\ns_cselect_b32 s{T}, {1792*896}, s{T}")
            p(f"v_min_u32 v120, 55, v0\nv_lshlrev_b32 v120, 7, v120\nbuffer_load_dword v121, v120, {s(R_PC,4)}, s{T} offen")
        if c.h_w1 == 0: w1_loads()
        if c.h_w1 == 1: p.items.append(Marker("need", XD + 27)); w1_loads()
        self.stamp("issued")
        for i in range(28):
            p(f"v_dot2_f32_bf16 v{AC+(i&1)}, v{XD+i}, s{S_ONE}, v{AC+(i&1)}\nv_dot2_f32_bf16 v{AC+2+(i&1)}, v{XD+i}, v{XD+i}, v{AC+2+(i&1)}")
        p(f"v_add_f32 v{AC}, v{AC}, v{AC+1}\nv_add_f32 v{AC+1}, v{AC+2}, v{AC+3}")
        for pat in ("quad_perm:[1,0,3,2]", "quad_perm:[2,3,0,1]", "row_half_mirror"):
            for k in range(2): p(f"v_add_f32_dpp v{AC+k}, v{AC+k}, v{AC+k} {pat} row_mask:0xf bank_mask:0xf")
        inv = 0x3b124925
        p(f"v_mul_f32 v{AC}, {inv}, v{AC}\nv_mul_f32 v{AC+1}, {inv}, v{AC+1}\nv_fma_f32 v{AC+1}, -v{AC}, v{AC}, v{AC+1}\nv_max_f32 v{AC+1}, 0, v{AC+1}")
        p(f"v_cvt_pk_bf16_f32 v{AC+1}, v{AC+1}, v{AC+1}\nv_and_b32 v{AC+1}, 0xffff0000, v{AC+1}\nv_add_f32 v{AC+1}, 0x3727c5ac, v{AC+1}")
        p(f"v_cvt_pk_bf16_f32 v{AC+1}, v{AC+1}, v{AC+1}\nv_and_b32 v{AC+1}, 0xffff0000, v{AC+1}\nv_sqrt_f32 v{AC+1}, v{AC+1}")
        p(f"v_mov_b32 v{AC+3}, s{S_TAG}\nv_cvt_pk_bf16_f32 v{AC+2}, v{AC}, v{AC+1}")
        p(f"s_mov_b32 exec_lo, 0x01010101\ns_mov_b32 exec_hi, 0x01010101\nbuffer_store_dwordx2 {v(AC+2,2)}, v0, {s(R_WS,4)}, s{S_X} offen sc1\ns_mov_b64 exec, -1")
        if c.h_w1 == 2: w1_loads()
        if c.h_touch == 0: touch()
        self.stamp("stats")
        p(f"v_and_b32 v{AC+4}, 0xffff0000, v{AC+2}\nv_rcp_f32 v{AC+4}, v{AC+4}\nv_lshlrev_b32 v{AC+6}, 16, v{AC+2}\nv_mov_b32 v{AC+5}, v{AC+4}\nv_mul_f32 v{AC+6}, -v{AC+6}, v{AC+4}\nv_mov_b32 v{AC+7}, v{AC+6}")
        for i in range(7):
            u = UP + 8 * (i & 1)
            for j in range(4): p(f"v_lshlrev_b32 v{u+2*j}, 16, v{XD+4*i+j}\nv_and_b32 v{u+2*j+1}, 0xffff0000, v{XD+4*i+j}")
            for j in range(4): p(f"v_pk_fma_f32 {v(u+2*j,2)}, {v(u+2*j,2)}, {v(AC+4,2)}, {v(AC+6,2)}")
            for j in range(4): p(f"v_cvt_pk_bf16_f32 v{XD+4*i+j}, v{u+2*j}, v{u+2*j+1}")
            p(f"ds_write_b128 v{VT}, {v(XD+4*i,4)} offset:{128*i}")
        if c.h_touch == 1: touch()
        self.stamp("norm")
        for i in range(7):
            for j in range(4):
                p(f"v_dot2_f32_bf16 v{CS+2*j}, v{WD+4*i+j}, s{S_LO}, v{CS+2*j}\nv_dot2_f32_bf16 v{CS+2*j+1}, v{WD+4*i+j}, s{S_HI}, v{CS+2*j+1}")
        for k in range(8): p(f"v_add_f32_dpp v{CS+k}, v{CS+k}, v{CS+k} row_ror:8 row_mask:0xf bank_mask:0xf")
        p(f"v_and_b32 v{VT+3}, 8, v0\nv_cmp_eq_u32 vcc, 0, v{VT+3}\nv_lshlrev_b32 v{VT+3}, 1, v{VT+3}\nv_lshl_add_u32 v{VT+3}, v{VT+1}, 5, v{VT+3}\nv_lshrrev_b32 v{VT+4}, 4, v0\nv_lshl_add_u32 v{VT+3}, v{VT+4}, 8, v{VT+3}")
        p(f"s_lshl_b32 s{T}, s{S_WAVE}, 10\nv_add_u32 v{VT+3}, s{T}, v{VT+3}")
        for k in range(4): p(f"v_cndmask_b32 v{CS+k}, v{CS+4+k}, v{CS+k}, vcc")
        p(f"ds_write_b128 v{VT+3}, {v(CS,4)}")
        p(f"s_lshl_b32 s{T}, s{S_WAVE}, 7\ns_add_u32 s{T}, s{T}, {L_XN}\nv_mul_u32_u24 v{VT}, 7232, v{VT+1}\nv_lshl_add_u32 v{VT}, v{VT+2}, 4, v{VT}\nv_add_u32 v{VT}, s{T}, v{VT}")
        p(f"v_lshlrev_b32 v{VT+2}, 15, v{VT+2}\nv_lshl_add_u32 v{VT+2}, v{VT+1}, 4, v{VT+2}\nv_lshlrev_b32 v{VT+4}, 7, v0")
        p(f"s_lshl_b32 s{S_X}, s{S_WAVE}, 11\ns_add_u32 s{S_X}, s{S_X}, s{S_HH}\ns_lshl_b32 s{S_X}, s{S_X}, 7\ns_add_u32 s{S_X}, s{S_X}, {WS_XT}")
        p(f"s_lshr_b32 s{T}, s{S_HH}, 3\ns_lshl2_add_u32 s{S_Y}, s{S_WAVE}, s{T}\ns_lshl_b32 s{S_Y}, s{S_Y}, 7\ns_and_b32 s{T}, s{S_HH}, 7\ns_add_u32 s{S_Y}, s{S_Y}, s{T}\ns_lshl2_add_u32 s{S_Y}, s{S_Y}, {WS_FX}")
        p(f"s_mov_b32 s{S_LO}, 0x05040100\ns_mov_b32 s{S_HI}, 0x07060302\ns_waitcnt lgkmcnt(0)\ns_barrier")
        self.stamp("bar")
        p(f"s_cmp_eq_u32 s{S_WAVE}, 7\ns_cbranch_scc1 L_h7")
        p.alt_begin()
        for j in range(8): p(f"ds_read_b128 {v(XD+4*j,4)}, v{VT} offset:{896*j}")
        if c.h_touch == 2: touch()
        for e in range(8):
            o = WD + 4 * e
            for j in range(4): p(f"v_perm_b32 v{o+j}, v{XD+4*(2*j+1)+(e>>1)}, v{XD+4*(2*j)+(e>>1)}, s{S_HI if e&1 else S_LO}")
            p(f"buffer_store_dwordx4 {v(o,4)}, v{VT+2}, {s(R_WS,4)}, s{S_X} offen sc1")
            if e < 7: p(f"s_add_u32 s{S_X}, s{S_X}, 4096")
        p(f"s_waitcnt vmcnt(0)\ns_mov_b64 exec, 15\nbuffer_store_dword v{AC+3}, v{VT+4}, {s(R_WS,4)}, s{S_Y} offen sc1\ns_mov_b64 exec, -1")
        p("s_branch L_hdone")
        p.alt_else()
        p.label("L_h7")
        p(f"s_setprio 3\ns_cmp_ge_u32 s{S_Q}, 14\ns_cbranch_scc1 L_hdone\nv_lshlrev_b32 v{VT+3}, 2, v0")
        for i in range(16): p(f"ds_read2st64_b32 {v(XD+2*i,2)}, v{VT+3} offset0:{2*i} offset1:{2*i+1}")
        for st in (16, 8, 4, 2):
            for i in range(0, st, 2): p(f"v_pk_add_f32 {v(XD+i,2)}, {v(XD+i,2)}, {v(XD+st+i,2)}")
        p(f"v_add_f32 v{AC+2}, v{XD}, v{XD+1}\nv_lshlrev_b32 v{VT+3}, 3, v0\ns_lshl_b32 s{T}, s{S_CG}, 9\ns_add_u32 s{T}, s{T}, {WS_CS}")
        p(f"buffer_store_dwordx2 {v(AC+2,2)}, v{VT+3}, {s(R_WS,4)}, s{T} offen sc1")
        p.alt_end()
        p.label("L_hdone")
        p("s_setprio 0\ns_waitcnt lgkmcnt(0)")
        self.stamp("done")
        p(f"v_min_u32 v{VT}, 55, v0\ns_sub_u32 s{S_Z}, s{S_J}, 28")
        if c.h_pf:
            p("s_barrier")
            p(f"s_mul_i32 s{T}, s{S_Z}, 7\ns_add_u32 s{T}, s{T}, s{S_WAVE}\ns_mul_i32 s{T}, s{T}, {64*896}\ns_cmp_eq_u32 s{S_WAVE}, 7\ns_cselect_b32 s{T}, {1792*896}, s{T}\nv_lshlrev_b32 v{VT+1}, 7, v{VT}")
            for st in c.h_pf:
                for h in range(2):
                    p(f"s_add_u32 s{T+1}, s{T}, {(16*st+8*h)*896}\nbuffer_load_dword v{VT+2}, v{VT+1}, {s(R_PC,4)}, s{T+1} offen")
        self.stamp("pfw")
        if c.h_act:
            p(f"s_lshr_b32 s{T}, s{S_WAVE}, 2\ns_mul_i32 s{T}, s{T}, 56\nv_add_u32 v{VT}, s{T}, v{VT}\nv_lshrrev_b32 v{VT+1}, 4, v{VT}\nv_lshlrev_b32 v{VT+1}, 13, v{VT+1}\nv_and_b32 v{VT}, 15, v{VT}\nv_lshl_add_u32 v{VT+1}, v{VT}, 7, v{VT+1}")
            p(f"s_and_b32 s{T}, s{S_WAVE}, 3\ns_lshl2_add_u32 s{S_X}, s{S_HH}, s{T}\ns_mul_i32 s{S_X}, s{S_X}, {28*2048}\ns_add_u32 s{S_X}, s{S_X}, {WS_ACT}")
            p(f"s_lshl4_add_u32 s{S_Y}, s{S_HH}, s{T}\ns_lshl_b32 s{S_Y}, s{S_Y}, 7\ns_add_u32 s{S_Y}, s{S_Y}, {WS_FA}")
            for st in c.h_act:
                p(f"s_add_u32 s{S_LO}, s{S_Y}, {512*st}\ns_add_u32 s{S_HI}, s{S_X}, {2048*st}")
                self.flag_check(self.flag_load("H", S_LO, 7, None), None, sleep=c.h_sleep)
                p(f"buffer_load_dword v{VT+2}, v{VT+1}, {s(R_WS,4)}, s{S_HI} offen sc1")
                self.stamp(f"pa{st}")
        p(f"s_waitcnt vmcnt(0)")
        self.stamp("pfa")
        p(f"s_cmp_lg_u32 s{S_HH}, 31\ns_cbranch_scc1 L_hend\ns_cmp_lg_u32 s{S_WAVE}, 7\ns_cbranch_scc1 L_hend")
        p(f"v_lshrrev_b32 v{VT}, 2, v0\nv_min_u32 v{VT}, 13, v{VT}\nv_lshlrev_b32 v{VT}, 9, v{VT}\nv_and_b32 v{VT+1}, 3, v0\nv_lshl_add_u32 v{VT}, v{VT+1}, 4, v{VT}\ns_mov_b32 s{S_X}, {WS_FS}")
        ld = f"s_sleep 8\nbuffer_load_dwordx4 {v(XD,4)}, v{VT}, {s(R_WS,4)}, s{S_X} offen sc1"
        p(ld)
        self.tagged_check(ld, [XD, XD + 1, XD + 2, XD + 3], VT + 2)
        p(f"s_mov_b32 s{S_X}, {WS_EPOCH}")
        self.flag_store(S_X, AC + 3)
        p.label("L_hend")
        self.stamp_flush(1)
        p("s_endpgm")

    def place_hops(self, body):
        assert self.c.align4k
        lines = body.split("\n")
        sizes = instr_sizes([re.sub(r"L_hop\d", "L_bodyA", l) for l in lines])
        end = lines.index("L_bodyH:") if self.c.h_near else lines.index("L_helper:")
        out, addr, page, k = [], 0, 1, 0
        for i, l in enumerate(lines):
            if sizes[i] and addr >= 4096 * page and i < end:
                out += [f"L_hop{k}:", f"    s_cbranch_execz {'L_bodyA' if k == 0 else 'HOP%d' % (k + 4)}"]; addr += 4; page += 1; k += 1
            out.append(l); addr += sizes[i]
        assert k >= 5
        body = "\n".join(out)
        for j in range(k + 3, 4, -1): body = body.replace(f"HOP{j}", f"L_hop{j}" if j < k else "L_hopped")
        return body
    def build(self):
        p = self.p
        self.entry()
        self.role_a(); self.role_h()
        p.reset()
        p.label("L_exit")
        p("s_endpgm")
        p(".p2align 7")
        p(".type L_gtab,@object")
        p.label("L_gtab")
        w = self.gather_table()
        for i in range(0, len(w), 8): p(".long " + ", ".join(hex(x) for x in w[i:i+8]))
        p.label("L_end")
        body = p.resolve()
        head = open("recurrent_scan__ssm_conv_s4__dense_activation_mish__prompt.s.ref").read().split("; Override launch")[0]
        txt = head + f"; @launch grid=(256,1,1) block=(512,1,1) lds={LDS_BYTES}\n"
        pad = ".p2align 12\n.fill 832, 4, 0xbf810000\n" if self.c.align4k else ""
        txt += f'.amdgcn_target "amdgcn-amd-amdhsa--gfx950"\n.text\n{pad}.globl {KNAME}\n.p2align 8\n.type {KNAME},@function\n{KNAME}:\n'
        if self.c.hops: body = self.place_hops(body)
        txt += body
        txt += f""".section .rodata,"a"
.p2align 6
.amdhsa_kernel {KNAME}
  .amdhsa_next_free_vgpr 256
  .amdhsa_next_free_sgpr 102
  .amdhsa_accum_offset 256
  .amdhsa_group_segment_fixed_size 0
  .amdhsa_kernarg_size 128
  .amdhsa_user_sgpr_count 2
  .amdhsa_user_sgpr_kernarg_segment_ptr 1
  .amdhsa_system_sgpr_workgroup_id_x 1
.end_amdhsa_kernel
"""
        return txt

def parse_cfg(args):
    kw = {}
    for a in args:
        k, x = a.split("=")
        kw[k] = eval(x)
    return Cfg(**kw)

if __name__ == "__main__":
    out = sys.argv[1]
    g = Gen(parse_cfg(sys.argv[2:]))
    txt = g.build()
    open(out, "w").write(txt)
    import json
    json.dump(g.stamp_names, open(out + ".stamps.json", "w"))
    print(out, g.p.stats)
```

```python
import sys, re
from asmgen import *

KNAME = "recurrent_scan__ssm_conv_s4__dense_activation_mish__prompt_kernel"

class Cfg:
    stamps = False
    sset = 0
    cyc = False
    probe = None
    prefetch_code = True
    pf_h = False
    align4k = True
    align8 = 6
    hops = True
    mapP = False
    rot2 = 0
    qperm = False
    g2_mix = True
    act_st = 'sc1'
    act_ld = 'sc1'
    fa_st = 'sc1'
    mish_pk = False
    sflag = 'XAS'
    spoll = 'XASH'
    adepth = 7
    flead = 6
    pre_dma = 32
    nfirst = 8
    a_delay = 0
    a_chunks = 4
    dma_per = (8, 8, 8, 8, 8, 8, 8)
    gran_at = 5
    bw2 = (8, 12, 14, 14)
    w2_mish = 0
    fx_ld = 9
    fx_chk = 29
    u_at = 1
    lds_cut = (0, 0, 0, 0, 0, 0, 0)
    r_early = 4
    r_at = 4
    r2 = 8
    b7_at = -3
    br0 = 0
    late6 = True
    band_at = 3
    out_fl = 'nt'
    mish_skip = 0.0
    w2_lead = 9
    w2_rate = 0.0
    w2_gap = 2
    rdepth = 3
    fstages = (3,)
    flag_lag = 2
    gt_at = 2
    b_pre = 1.0
    kg_pre = 9999
    kg_ints = 4
    kg_x = 0.0
    h_w1 = 2
    h_touch = -1
    s_touch = (7, 14, 14, 14, 14)
    h_near = True
    h_align = True
    h_pf = ()
    diag = ''
    h_act = ()
    h_sleep = 4
    rot1 = 0
    fs_sleep = 6
    fs_first = 0
    prio_b = 1
    prio_b2 = 0
    prio_b3 = 1
    prio_b4 = 1
    prio_b5 = 1
    prio_b6 = 0
    prio_b7 = 0
    prio_b8 = 0
    prio_a1 = 2
    prio_a2 = 0
    tail_m = 5
    pre_loop = 'R12 D18 W F D23 L D24 C A8'
    fin2 = True
    def __init__(self, **kw):
        for k, x in kw.items():
            assert hasattr(self, k), k
            setattr(self, k, x)

WS_EPOCH, WS_FX, WS_FA, WS_FS = 0, 0x1000, 0x20000, 0x8000
WS_STAT, WS_CS, WS_XT, WS_ST, WS_ACT, WS_DBG = 0x10000, 0x14000, 0x40000, 0x200000, 0x600000, 0xE00000
WS_SIZE = 0x1000000
TAGC = 0x9E3779B1
SLOT = 32768
L_RING = 2 * SLOT
L_STG = 0
L_TAB = 512
TCP, TCH = 2240, 9472
L_EX = 0
L_RAW = SLOT + 1024
L_U = L_RAW + 12288
L_STR = L_RAW + 21504
L_CNT = L_RAW + 30720
LDS_BYTES = 163840
P_U, P_ARE, P_AIM, P_BRE, P_BIM, P_CRE, P_CIM, P_LDT = 4, 6, 8, 10, 12, 14, 16, 18
P_DSK, P_BX, P_W1, P_B1, P_W2, P_OUT, P_DBG, P_WS = 20, 22, 24, 26, 28, 30, 32, 34
R_LD, R_2, R_WS, R_PC = 36, 40, 44, 48
S_TAG, S_TAG2, S_WAVE, S_XCD, S_J, S_RT, S_CT, S_CP = 52, 53, 54, 55, 56, 57, 58, 97
S_SOFF, S_CSTR, S_LDB, S_CW, S_WT, S_WF = range(64, 70)
VD = 1
B_BW, B_LDT, B_DSK, B_STW, B_VP = 70, 71, 72, 73, 10
S_R2, S_C2 = 60, 61
S_T = 62
S_SP = 80
S_JR, S_XF = 3, 59
S_CNT = 96
S_T0 = 98
LOG2E = 0x3fb8aa3b
POLL_MAX = 1 << 17

def srd(p, r, ptr, size):
    p(f"s_mov_b32 s{r}, s{ptr}\ns_mov_b32 s{r+1}, s{ptr+1}\ns_mov_b32 s{r+2}, {size}\ns_mov_b32 s{r+3}, 0x20000")

class Gen:
    def __init__(self, cfg):
        self.c = cfg
        self.p = Prog()
        self.nlab = 0
        self.stamp_names = {}
    def lab(self, base):
        self.nlab += 1
        return f"L_{base}_{self.nlab}"

    def stamp_begin(self, role):
        self.role = role; self.stamp_names[role] = []
    def stamp(self, name, p=None, sets=(0,)):
        if self.c.probe == (self.role, name): (p or self.p)("s_memrealtime s[100:101]")
        if not self.c.stamps or self.c.sset not in sets: return
        p = p or self.p
        n = len(self.stamp_names[self.role]); assert n < 15
        self.stamp_names[self.role].append(name)
        p(f"{'s_memtime' if self.c.cyc else 's_memrealtime'} {s(4+2*n, 2)}")
    def stamp_flush(self, vt):
        if self.c.probe and self.c.probe[0] == self.role:
            l0 = self.lab("probe")
            self.p("s_waitcnt vmcnt(0) lgkmcnt(0)")
            self.p.label(l0)
            self.p(f"s_memrealtime s[98:99]\ns_waitcnt lgkmcnt(0)\ns_sub_u32 s98, s98, s100\ns_cmp_lt_u32 s98, 6000\ns_cbranch_scc1 {l0}")
        if not self.c.stamps: return
        p = self.p
        n = len(self.stamp_names[self.role])
        p("s_waitcnt vmcnt(0) lgkmcnt(0)\ns_mov_b64 exec, 1")
        p(f"s_lshl_b32 s{S_T}, s2, 3\ns_add_u32 s{S_T}, s{S_T}, s{S_WAVE}\ns_lshl_b32 s{S_T}, s{S_T}, 6\ns_add_u32 s{S_T}, s{S_T}, {WS_DBG}")
        p(f"v_mov_b32 v{vt}, s{S_T0}\nbuffer_store_dword v{vt}, off, {s(R_WS,4)}, s{S_T}")
        for i in range(n):
            p(f"v_mov_b32 v{vt+1+(i&1)}, s{4+2*i}\nbuffer_store_dword v{vt+1+(i&1)}, off, {s(R_WS,4)}, s{S_T} offset:{4+4*i}")
        p("s_waitcnt vmcnt(0)")

    def flag_store(self, soff, vt):
        p = self.p
        p(f"s_mov_b64 exec, 1\nbuffer_store_dword v{vt}, off, {s(R_WS,4)}, s{soff} sc1\ns_mov_b64 exec, -1")
    def sflags4(self, soff):
        for i in range(4):
            self.p(f"s_atomic_swap s{S_TAG}, {s(R_WS,2)}, s{soff}")
            if i < 3: self.p(f"s_add_u32 s{soff}, s{soff}, 128")
    def lds_post(self, vown, vtag, k):
        self.p(f"s_mov_b64 exec, 1\nds_write_b32 v{vown}, v{vtag} offset:{16*k}\ns_mov_b64 exec, -1")
    def lds_wait(self, vaddr, vt, k):
        p = self.p
        l0, l1 = self.lab("spin"), self.lab("spun")
        p(f"s_mov_b32 s{S_CNT}, 0")
        p.label(l0)
        p(f"ds_read_b32 v{vt}, v{vaddr} offset:{16*k}\ns_add_u32 s{S_CNT}, s{S_CNT}, 1\ns_cmp_gt_u32 s{S_CNT}, {POLL_MAX*8}\ns_waitcnt lgkmcnt(0)")
        p(f"v_cmp_ne_u32 vcc, s{S_TAG}, v{vt}\ns_cbranch_scc1 {l1}\ns_cbranch_vccnz {l0}")
        p.label(l1)
    def lds_peek(self, vaddr, vt, k):
        self.p(f"ds_read_b32 v{vt}, v{vaddr} offset:{16*k}")
    def lds_check(self, vaddr, vt, k, fill=None):
        p = self.p
        l1 = self.lab("pass")
        p(f"v_cmp_ne_u32 vcc, s{S_TAG}, v{vt}")
        if fill: fill()
        p(f"s_cbranch_vccz {l1}")
        p.alt_begin(); self.lds_wait(vaddr, vt, k); p.alt_end()
        p.label(l1)
    def tagged_check(self, loads, tagregs, vt, on_miss=None):
        p = self.p
        l0, l1 = self.lab("chk"), self.lab("chkd")
        p(f"s_mov_b32 s{S_CNT}, 0")
        for r in reversed(tagregs): p.items.append(Marker("need", r))
        p.label(l0)
        p(f"v_xor_b32 v{vt}, s{S_TAG}, v{tagregs[0]}")
        for r in tagregs[1:]:
            p(f"v_bitop3_b32 v{vt}, v{r}, s{S_TAG}, v{vt} bitop3:0xbe")
        p(f"v_cmp_ne_u32 vcc, 0, v{vt}\ns_add_u32 s{S_CNT}, s{S_CNT}, 1\ns_cbranch_vccz {l1}")
        p(f"s_cmp_gt_u32 s{S_CNT}, {POLL_MAX}\ns_cbranch_scc1 {l1}")
        p.alt_begin()
        if on_miss:
            l3 = self.lab("again")
            p(f"s_cmp_lg_u32 s{S_CNT}, 1\ns_cbranch_scc1 {l3}")
            p.alt_begin(); on_miss(); p.alt_end()
            p.label(l3)
        p(loads)
        p(f"s_waitcnt vmcnt(0)\ns_branch {l0}")
        p.alt_end()
        p.label(l1)

    def entry(self):
        p, c = self.p, self.c
        T = S_T
        p(f"s_load_dwordx16 s[4:19], s[0:1], 0\ns_load_dwordx16 s[20:35], s[0:1], 64")
        p(f"s_cmp_ge_u32 s2, 256\ns_cbranch_scc1 L_exit")
        if c.stamps: p(f"{'s_memtime' if c.cyc else 's_memrealtime'} {s(S_T0,2)}")
        if c.probe and c.probe[1] == "start": p("s_memrealtime s[100:101]")
        if "k" in c.diag: p("s_waitcnt lgkmcnt(0)\ns_memtime s[100:101]")
        p(f"v_lshrrev_b32 v1, 6, v0\nv_and_b32 v0, 63, v0\nv_readfirstlane_b32 s{S_WAVE}, v1")
        p(f"s_and_b32 s{S_XCD}, s2, 7\ns_lshr_b32 s{S_J}, s2, 3")
        p(f"s_getpc_b64 {s(R_PC,2)}")
        p.label("L_pc")
        p(f"s_mov_b32 s{R_PC+2}, L_end-L_pc\ns_mov_b32 s{R_PC+3}, 0x20000")
        if c.prefetch_code and not c.pf_h:
            p(f"s_lshl3_add_u32 s{T}, s{S_J}, s{S_WAVE}\ns_lshl_b32 s{T}, s{T}, 7")
            p(f"buffer_load_dword v255, off, {s(R_PC,4)}, s{T}")
        p(f"s_mov_b32 s{R_WS+2}, {WS_SIZE}\ns_mov_b32 s{R_WS+3}, 0x20000")
        p(f"s_cmp_ge_u32 s{S_J}, 28\ns_cbranch_scc1 L_helper")
        p(f"s_mul_i32 s{S_JR}, s{S_J}, 37\ns_lshr_b32 s{S_JR}, s{S_JR}, 8\ns_mul_i32 s{T}, s{S_JR}, 7\ns_sub_u32 s{S_C2}, s{S_J}, s{T}")
        if c.mapP: p(f"s_lshr_b32 s{S_RT}, s{S_JR}, 1\ns_lshl1_add_u32 s{S_RT}, s{S_XCD}, s{S_RT}\ns_and_b32 s{S_XF}, s{S_JR}, 1")
        else: p(f"s_lshr_b32 s{S_RT}, s{S_XCD}, 1\ns_lshl2_add_u32 s{S_RT}, s{S_RT}, s{S_JR}\ns_and_b32 s{S_XF}, s{S_XCD}, 1")
        p(f"s_cmp_lt_u32 s{S_WAVE}, 4\ns_cbranch_scc1 L_common")
        p.alt_begin()
        if c.prio_b: p(f"s_setprio {c.prio_b}")
        p(f"s_sub_u32 s{B_BW}, s{S_WAVE}, 4\ns_mul_i32 s{S_CP}, s{S_XCD}, 28\ns_add_u32 s{S_CP}, s{S_CP}, s{S_J}\ns_lshl_b32 s{T}, s{S_CP}, 2")
        p(f"s_add_u32 s{B_STW}, s{T}, s{B_BW}\ns_lshl_b32 s{B_STW}, s{B_STW}, 8\nv_lshl_add_u32 v50, v0, 2, s{B_STW}")
        p(f"s_load_dword s{B_LDT}, {s(P_LDT,2)}, s{T}")
        for i, ptr in enumerate((P_ARE, P_AIM, P_BRE, P_BIM, P_CRE, P_CIM)):
            p(f"global_load_dword v{B_VP+i}, v50, {s(ptr,2)}")
        p(f"s_load_dword s{B_DSK}, {s(P_DSK,2)}, s{T}")
        if c.prio_b != c.prio_b2: p(f"s_setprio {c.prio_b2}")
        p.alt_end()
        p.label("L_common")
        VT, S_X, S_Y = 24, 78, 79
        p(f"s_and_b32 s{S_WT}, s{S_WAVE}, 1\ns_bfe_u32 s{S_WF}, s{S_WAVE}, 0x10001\ns_mul_i32 s{S_CT}, s{S_XF}, 7\ns_add_u32 s{S_CT}, s{S_CT}, s{S_C2}")
        p(f"s_lshl1_add_u32 s{T}, s{S_RT}, s{S_WF}\ns_mul_i32 s{T}, s{T}, {64*896}")
        p(f"s_mul_i32 s{T+1}, s{S_WF}, {32*14}\ns_add_u32 s{T+1}, s{T+1}, s{S_CT}\ns_lshl_b32 s{T+1}, s{T+1}, 8")
        p(f"s_lshl1_add_u32 s{S_LDB}, s{S_WT}, s{S_WF}\ns_lshl_b32 s{S_LDB}, s{S_LDB}, 13")
        p(f"s_add_u32 s{S_X}, s{S_WT}, 3\nv_lshrrev_b32 v{VT}, s{S_X}, v0\ns_lshl_b32 s{S_X}, s{S_WT}, 1\nv_lshrrev_b32 v{VT+1}, 4, v0\nv_lshlrev_b32 v{VT+1}, s{S_X}, v{VT+1}")
        p(f"s_lshl_b32 s{S_Y}, 896, s{S_X}\nv_xor_b32 v{VT+1}, v0, v{VT+1}\nv_mul_u32_u24 v{VT}, s{S_Y}, v{VT}")
        p(f"s_cmp_eq_u32 s{S_WT}, 0")
        p(f"s_cselect_b32 s{S_SOFF}, s{T}, s{T+1}\ns_cselect_b32 s{S_CSTR}, 1, {64*28}\ns_cselect_b32 s{S_X}, 7, 15\ns_cselect_b32 s{S_Y}, 64, 0\ns_cselect_b32 s{R_LD+2}, 8, 7")
        p(f"v_and_b32 v{VT+1}, s{S_X}, v{VT+1}\nv_lshl_add_u32 v{VD}, v{VT+1}, 4, v{VT}\nv_xor_b32 v{VD+1}, s{S_Y}, v{VD}")
        p(f"s_lshl_b32 s{S_CSTR}, s{S_CSTR}, 7")
        if c.rot1: p(f"s_mul_i32 s{T}, s{S_C2}, s{S_CSTR}\ns_add_u32 s{S_SOFF}, s{S_SOFF}, s{T}\ns_mul_i32 s{S_CW}, s{S_CSTR}, 7")
        p(f"s_mul_i32 s{R_LD+2}, s{R_LD+2}, {256*896}\ns_mov_b32 s{R_LD+3}, 0x20000\ns_lshl_b32 s{S_Y}, 7168, s{S_WT}")
        p(f"s_sub_u32 s{T}, s{S_Y}, 1024\nv_add_u32 v{VD+1}, s{T}, v{VD+1}\ns_lshl_b32 s{T}, s{T}, 1")
        p(f"v_add_u32 v{VD+2}, s{T}, v{VD}\nv_add_u32 v{VD+3}, s{T}, v{VD+1}\ns_lshl_b32 s{T}, s{S_Y}, 2")
        for i in range(4): p(f"v_add_u32 v{VD+4+i}, s{T}, v{VD+i}")
        p(f"s_cmp_ge_u32 s{S_WAVE}, 4\ns_cbranch_scc1 L_roleB")
    def loader_base(self):
        self.p(f"s_cmp_eq_u32 s{S_WT}, 0\ns_cselect_b32 s{R_LD}, s{P_U}, s{P_W1}\ns_cselect_b32 s{R_LD+1}, s{P_U+1}, s{P_W1+1}")
    def dma_chunk(self, n, T, ctok):
        r = []
        for i in range(8):
            q = Prog()
            if i % 4 == 0: q(f"s_add_u32 m0, s{S_LDB}, {(3, 4, 1, 2)[n % 4]*SLOT + (i//4)*4096}")
            ctok[n] = q.tok(f"buffer_load_dwordx4 v{VD+i}, {s(R_LD,4)}, s{S_SOFF} offen offset:{(i%4)*1024} lds")
            if i == 7 and n < 6:
                q(f"s_add_u32 s{S_SOFF}, s{S_SOFF}, s{S_CSTR}")
                if self.c.rot1: q(f"s_cmp_eq_u32 s{S_C2}, {6-n}\ns_cselect_b32 s{T}, s{S_CW}, 0\ns_sub_u32 s{S_SOFF}, s{S_SOFF}, s{T}")
            r.append(q.items)
        return r
    def role_start(self, b=False):
        p = self.p
        p.reset()
        if self.c.prefetch_code and not self.c.pf_h: p.items.append(Marker("pending", ("vmem", {"v255"})))
        if b:
            p.items.append(Marker("pending", ("smem", {f"s{B_LDT}", f"s{B_DSK}"})))
            for i in range(6): p.items.append(Marker("pending", ("vmem", {f"v{B_VP+i}"})))
        else:
            p.items.append(Marker("pending", ("smem", {f"s{i}" for i in range(4, 36)})))
    def load_epoch(self):
        self.p(f"s_load_dword s{S_TAG}, {s(P_WS,2)}, {WS_EPOCH}\ns_mov_b32 s{R_WS}, s{P_WS}\ns_mov_b32 s{R_WS+1}, s{P_WS+1}")
    def make_tag(self):
        self.p(f"s_add_u32 s{S_TAG}, s{S_TAG}, {TAGC}\ns_mov_b32 s{S_TAG2}, s{S_TAG}")
    def flag_load(self, which, soff, n, va, q=None):
        if which in self.c.spoll:
            w = 8 if n <= 8 else 16
            txt = f"s_buffer_load_dwordx{w} {s(S_SP,w)}, {s(R_WS,4)}, s{soff} glc"
        else:
            txt = f"buffer_load_dword v{va+1}, v{va}, {s(R_WS,4)}, s{soff} offen sc1"
        (q or self.p)(txt)
        return (which, txt, n, va)
    def flag_check(self, fl, vt, sleep=0, on_miss=None):
        which, txt, n, va = fl
        p = self.p
        if sleep: txt = f"s_sleep {sleep}\n" + txt
        if which not in self.c.spoll:
            return self.tagged_check(txt, [va + 1], vt, on_miss)
        l0, l1, l2 = self.lab("chk"), self.lab("retry"), self.lab("chkd")
        p(f"s_mov_b32 s{S_CNT}, 0")
        p.label(l0)
        p("s_waitcnt lgkmcnt(0)")
        for i in range(0, n - 2, 2): p(f"s_cmp_eq_u64 {s(S_SP+i,2)}, {s(S_TAG,2)}\ns_cbranch_scc0 {l1}")
        if n & 1: p(f"s_cmp_eq_u32 s{S_SP+n-1}, s{S_TAG}\ns_cbranch_scc1 {l2}")
        else: p(f"s_cmp_eq_u64 {s(S_SP+n-2,2)}, {s(S_TAG,2)}\ns_cbranch_scc1 {l2}")
        p.alt_begin()
        p.label(l1)
        if on_miss:
            l3 = self.lab("again")
            p(f"s_cmp_lg_u32 s{S_CNT}, 0\ns_cbranch_scc1 {l3}")
            p.alt_begin(); on_miss(); p.alt_end()
            p.label(l3)
        p(txt)
        p(f"s_add_u32 s{S_CNT}, s{S_CNT}, 1\ns_cmp_le_u32 s{S_CNT}, {POLL_MAX}\ns_cbranch_scc1 {l0}\ns_waitcnt lgkmcnt(0)")
        p.alt_end()
        p.label(l2)

    def role_a(self):
        p, c = self.p, self.c
        self.role_start(); self.stamp_begin("A")
        VXA, VWA, VW2A, VW2D, VL16, VFL, VC1, VT = 9, 13, 15, 19, 21, 22, 2, 24
        ACC, FR, W2R, AB = 32, 96, 96, 192
        S_ACTW, S_FAW, S_FAR, S_RING, S_ACTR, S_W2B, S_Z = range(70, 77)
        R_OUT = 64
        S_X = 78; S_Y = 79
        T = S_T
        if "K" in c.diag: p("s_memtime s[100:101]")
        self.loader_base()
        ctok = {}
        dq = []
        for n in range(c.a_chunks): dq += self.dma_chunk(n, T, ctok)
        self.stamp("dma0", sets=(1,))
        if "k" in c.diag.lower():
            self.stamp("karg", sets=(1,)); p("s_waitcnt lgkmcnt(0)\ns_mov_b32 s6, s100")
        if c.a_delay: p(f"s_waitcnt lgkmcnt(0)"); p("\n".join(["s_nop 15"] * c.a_delay))
        for it in dq[:c.nfirst]: p.extend(it)
        self.load_epoch()
        if c.hops:
            p(f"s_mov_b64 exec, 0\ns_cmp_eq_u32 s{S_WAVE}, 3\ns_cbranch_scc1 L_hop0")
        p("s_branch L_bodyA")
        role = self.role
        if c.h_near: self.head_h()
        self.role_b()
        self.role = role
        p.label("L_bodyA")
        p.reset()
        p.items.append(Marker("pending", ("smem", {f"s{S_TAG}", "s94", "s95"})))
        if c.prefetch_code and not c.pf_h: p.items.append(Marker("pending", ("vmem", {"v255"})))
        for i in range(c.nfirst): p.items.append(Marker("pending", ("vmem", set(), ctok[i // 8] if i % 8 == 7 else None)))
        if c.hops: p("s_mov_b64 exec, -1")
        p(f"v_and_b32 v{VT}, 31, v0\nv_lshrrev_b32 v{VT+1}, 5, v0\nv_bfe_u32 v{VT+2}, v0, 1, 3\nv_xor_b32 v{VT+1}, v{VT+1}, v{VT+2}\nv_lshlrev_b32 v{VT+1}, 4, v{VT+1}")
        p(f"v_lshl_add_u32 v{VT+1}, v{VT}, 7, v{VT+1}\ns_add_u32 s{S_X}, s{S_WT}, 12\ns_lshl_b32 s{S_X}, s{S_X}, 13\nv_add_u32 v{VXA}, s{S_X}, v{VT+1}")
        for k in range(1, 4): p(f"v_xor_b32 v{VXA+k}, {32*k}, v{VXA}")
        p(f"s_lshl_b32 s{S_RING}, s{S_WAVE}, 13\ns_add_u32 s{S_RING}, s{S_RING}, {L_RING}")
        p(f"v_bfe_u32 v{VT}, v0, 4, 1\nv_lshlrev_b32 v{VT}, 5, v{VT}\nv_and_b32 v{VT+1}, 3, v0\nv_lshl_add_u32 v{VT}, v{VT+1}, 3, v{VT}")
        p(f"v_bfe_u32 v{VT+1}, v0, 2, 2\nv_lshrrev_b32 v{VT+2}, 5, v0")
        p(f"v_lshl_add_u32 v{VT+3}, v{VT+2}, 3, v{VT+1}\nv_lshl_add_u32 v{VT+3}, v{VT+3}, 8, v{VT}")
        p(f"s_lshl1_add_u32 s{S_Y}, s{S_WF}, 0x600\nv_xor_b32 v{VT+4}, s{S_Y}, v{VT+1}\nv_lshl_add_u32 v{VWA}, v{VT+4}, 6, v{VT+3}")
        if c.qperm: p(f"s_lshl1_add_u32 s{S_Z}, s{S_RT}, s{S_WT}\ns_and_b32 s{S_Z}, s{S_Z}, 3\ns_lshl_b32 s{S_Y}, s{S_Z}, 5\nv_xor_b32 v{VWA}, s{S_Y}, v{VWA}\ns_lshl_b32 s{S_Z}, s{S_Z}, 4")
        else: p(f"s_mov_b32 s{S_Z}, 0")
        p(f"v_xor_b32 v{VWA+1}, 64, v{VWA}")
        p(f"v_lshl_add_u32 v{VT+3}, v{VT+2}, 2, v{VT+1}\nv_lshl_add_u32 v{VT+3}, v{VT+3}, 7, v{VT}")
        p(f"v_lshrrev_b32 v{VT+4}, 1, v{VT+1}\nv_lshl_add_u32 v{VT+3}, v{VT+4}, 6, v{VT+3}\nv_add_u32 v{VW2A}, s{S_RING}, v{VT+3}")
        srd(p, R_2, P_W2, 1792 * 896)
        VB1 = 30
        p(f"s_lshl1_add_u32 s{S_Y}, s{S_CT}, s{S_WF}\ns_lshl_b32 s{S_X}, s{S_Y}, 7\nv_xor_b32 v{VB1+1}, s{S_Z}, v0\nv_lshl_add_u32 v{VB1}, v{VB1+1}, 1, s{S_X}\nglobal_load_ushort v{VB1}, v{VB1}, {s(P_B1,2)}")
        self.stamp("setup", sets=(1,))
        for it in dq[c.nfirst:c.pre_dma]: p.extend(it)
        VB1 = 30
        q = p
        VGA = 26
        q(f"v_xor_b32 v{VW2A+1}, 64, v{VW2A}\nv_add_u32 v{VW2A+2}, 0x10000, v{VW2A}\nv_xor_b32 v{VW2A+3}, 64, v{VW2A+2}")
        if c.br0 >= 0: q(f"v_xor_b32 v{VFL}, 0x10000, v{VW2A}\nv_xor_b32 v{VFL+1}, 0x10000, v{VW2A+1}")
        late = Prog(); q = late
        q(f"s_lshl1_add_u32 s{T+1}, s{S_RT}, s{S_WT}\ns_lshl_b32 s{S_X}, s{T+1}, 9\ns_add_u32 s{S_X}, s{S_X}, {WS_STAT}\nv_lshl_add_u32 v{VGA}, v0, 3, s{S_X}")
        q(f"s_lshl1_add_u32 s{S_Y}, s{S_CT}, s{S_WF}\ns_lshl_b32 s{S_X}, s{S_Y}, 9\ns_add_u32 s{S_X}, s{S_X}, {WS_CS}\nv_lshl_add_u32 v{VGA+1}, v{VB1+1}, 3, s{S_X}")
        q(f"s_mul_i32 s{S_ACTW}, s{T+1}, 28\ns_add_u32 s{S_ACTW}, s{S_ACTW}, s{S_Y}\ns_lshl_b32 s{S_ACTW}, s{S_ACTW}, 13\ns_add_u32 s{S_ACTW}, s{S_ACTW}, {WS_ACT}")
        q(f"s_mul_i32 s{S_X}, s{S_Y}, 37\ns_lshr_b32 s{S_X}, s{S_X}, 8\ns_mul_i32 s{S_X}, s{S_X}, 25\ns_add_u32 s{S_X}, s{S_X}, s{S_Y}")
        q(f"s_lshl_b32 s{S_FAW}, s{T+1}, 9\ns_add_u32 s{S_FAW}, s{S_FAW}, s{S_X}\ns_lshl2_add_u32 s{S_FAW}, s{S_FAW}, {WS_FA}")
        q(f"s_lshl2_add_u32 s{S_R2}, s{S_XCD}, s{S_JR}")
        q(f"s_lshl4_add_u32 s{S_FAR}, s{S_R2}, s{S_WAVE}\ns_lshl_b32 s{S_FAR}, s{S_FAR}, 7\ns_add_u32 s{S_FAR}, s{S_FAR}, {WS_FA}")
        q(f"v_lshlrev_b32 v{VL16}, 4, v0")
        if "A" not in c.spoll: q(f"v_min_u32 v{VFL}, 6, v0\nv_lshlrev_b32 v{VFL}, 2, v{VFL}")
        q(f"v_lshrrev_b32 v{VT+4}, 3, v0\nv_mul_u32_u24 v{VT+4}, 896, v{VT+4}\nv_bfe_u32 v{VT+1}, v0, 4, 1\nv_lshlrev_b32 v{VT+1}, 2, v{VT+1}\nv_xor_b32 v{VT+1}, v0, v{VT+1}\nv_and_b32 v{VT+1}, 7, v{VT+1}")
        q(f"v_lshl_add_u32 v{VW2D}, v{VT+1}, 4, v{VT+4}\nv_add_u32 v{VW2D+1}, {7168-1024}, v{VW2D}")
        q(f"s_lshl2_add_u32 s{S_ACTR}, s{S_R2}, s{S_WAVE}\ns_mul_i32 s{S_ACTR}, s{S_ACTR}, {28*2048}\ns_add_u32 s{S_ACTR}, s{S_ACTR}, {WS_ACT}")
        q(f"s_mul_i32 s{S_W2B}, s{S_WAVE}, {448*7}\ns_add_u32 s{S_W2B}, s{S_W2B}, s{S_C2}\ns_lshl_b32 s{S_W2B}, s{S_W2B}, 7")
        q(f"s_lshl2_add_u32 s{S_X}, s{S_WAVE}, {L_CNT}\nv_mov_b32 v{VT+5}, s{S_X}")
        lateg = [[it] for it in late.items]
        S_AO = list(range(88, 95)); S_WO = [34, 35, 48, 49, 50, 51, 77]; S_ROT = 95
        if c.rot2:
            q = Prog()
            if c.rot2 == 1: q(f"s_mov_b32 s{S_ROT}, s{S_C2}")
            else: q(f"s_lshl1_add_u32 s{S_ROT}, s{S_JR}, s{S_C2}\ns_cmp_ge_u32 s{S_ROT}, 7\ns_cselect_b32 s{T+1}, 7, 0\ns_sub_u32 s{S_ROT}, s{S_ROT}, s{T+1}")
            lateg.append(q.items)
            for i in range(7):
                q = Prog()
                q(f"s_cmp_ge_u32 s{S_ROT}, {7-i}\ns_cselect_b32 s{T+1}, {i-7}, {i}\ns_add_u32 s{T+1}, s{T+1}, s{S_ROT}")
                lateg.append(q.items); q = Prog()
                q(f"s_lshl_b32 s{S_AO[i]}, s{T+1}, 13\ns_add_u32 s{S_AO[i]}, s{S_AO[i]}, s{S_ACTR}\ns_mul_i32 s{S_WO[i]}, s{T+1}, {64*896}\ns_add_u32 s{S_WO[i]}, s{S_WO[i]}, s{S_W2B}")
                lateg += [[it] for it in q.items]
        S_Q = [S_ROT, S_W2B, S_ACTR, S_CT]
        if c.qperm:
            assert c.rot2
            q = Prog()
            for i in range(4): q(f"s_xor_b32 s{S_Q[i]}, s{S_JR}, {i}\ns_mul_i32 s{S_Q[i]}, s{S_Q[i]}, {16*896}")
            lateg += [[it] for it in q.items]
        self.make_tag()
        p(f"v_mov_b32 v{VT}, s{S_TAG}")
        GR = AB
        gloads = f"buffer_load_dwordx2 {v(GR,2)}, v{VGA}, {s(R_WS,4)}, 0 offen sc1\nbuffer_load_dwordx2 {v(GR+2,2)}, v{VGA+1}, {s(R_WS,4)}, 0 offen sc1"
        piece = [0, 1, 2, 0, 1, 2, 0]; pred = {3: 0, 4: 1, 5: 2, 6: 3}
        if c.br0 >= 0:
            piece = [-2, 0, 1, 2, 0, 1, 2]; pred = {4: 1, 5: 2, 6: 3}
            assert c.r_early == 4 and "A" in c.spoll
        wtok, rtok = {}, {}
        w2reg = lambda n: W2R + 8 * (6, 7, 8, 9, 10, 11, 2, 3, 4, 5, 0, 1)[n % 12]
        def dma_w2(n):
            q = Prog(); gi = n >> 2
            if gi in pred: q.wait(rtok[4 * pred[gi] + (n & 3)])
            q(f"s_add_u32 m0, s{S_RING}, {piece[gi]*SLOT + (n&3)*2048}\n" + (f"s_add_u32 s{S_Z}, s{S_WO[n%7]}, s{S_Q[n//7]}" if c.qperm else f"s_add_u32 s{S_Z}, s{S_WO[n%7]}, {16*(n//7)*896}" if c.rot2 else f"s_add_u32 s{S_Z}, s{S_W2B}, {(64*(n%7) + 16*(n//7))*896}"))
            if "5" in c.diag and n >= 24: wtok[n] = wtok[23]; return [[], []]
            q(f"buffer_load_dwordx4 v{VW2D}, {s(R_2,4)}, s{S_Z} offen lds")
            q2 = Prog()
            wtok[n] = q2.tok(f"buffer_load_dwordx4 v{VW2D+1}, {s(R_2,4)}, s{S_Z} offen offset:1024 lds")
            return [q.items, q2.items]
        def read_w2(n):
            q = Prog(); pc = piece[n >> 2]
            if n == max(c.r_early, c.r2):
                keep, self.p = self.p, q
                self.lds_wait(VT + 5, VT + 1, 4)
                self.p = keep
            if n >= c.bw2[-1]: q.wait(wtok[n])
            for di in range(2):
                for h in range(2):
                    rtok[n] = q.tok(f"ds_read_b64_tr_b16 {v(w2reg(n)+4*di+2*h,2)}, v{(VFL if pc < 0 else VW2A+2*(pc>>1))+di} offset:{(pc&1)*SLOT + (n&3)*2048 + h*1024}")
            return [q.items]
        nw = [c.bw2[-1], 0]
        def w2_ops(k, maxread):
            r = []
            for _ in range(k):
                n = nw[0]
                if n >= 24: break
                for m in (n, n + 1):
                    if (m >> 2) in pred and m < 24:
                        need = 4 * pred[m >> 2] + (m & 3)
                        assert m > n or need < maxread
                        while nw[1] <= need and nw[1] < maxread: r += read_w2(nw[1]); nw[1] += 1
                r += dma_w2(n); nw[0] += 1
            return r
        def reads1(gs):
            n, k = gs >> 2, gs & 3
            base = FR + 16 * (gs % 3); so = (n & 1) * SLOT
            r = []
            for fi in range(2):
                for h in range(2):
                    r.append(I(f"ds_read_b64_tr_b16 {v(base+4*fi+2*h,2)}, v{VWA+fi} offset:{so+16384+k*4096+h*1024}"))
                r.append(I(f"ds_read_b128 {v(base+8+4*fi,4)}, v{VXA+k} offset:{so+fi*4096}"))
            return r
        def mfma1(gs):
            base = FR + 16 * (gs % 3)
            r = []
            for fi, ti in ((0, 0), (0, 1), (1, 0), (1, 1)):
                a = v(ACC + 32 * fi + 16 * ti, 16)
                r.append(I(f"v_mfma_f32_32x32x16_bf16 {a}, {v(base+4*fi,4)}, {v(base+8+4*ti,4)}, {'0' if gs == 0 else a}"))
            return r
        self.stamp("dmapre", sets=(1,))
        if c.hops:
            p("s_mov_b64 exec, 0")
            for w in range(3): p(f"s_cmp_eq_u32 s{S_WAVE}, {w}\ns_cbranch_scc1 L_hop{w+1}")
            p("s_branch L_hop4")
            p.label("L_hopped")
            p("s_mov_b64 exec, -1")
        nd = c.pre_dma
        nl = (len(lateg) + 3) // 4
        for n in range(7):
            if n < c.a_chunks: p.wait(ctok[n])
            if n == 0: self.stamp("c0", sets=(1,))
            p("s_waitcnt lgkmcnt(0)\ns_barrier")
            self.stamp(f"bar{n}", sets=(0, 1) if n in (0, 3, 6) else (1,))
            if n in (2, 4, 6):
                for r in list(range(VXA, VXA + 4)) + [VWA, VWA + 1]: p(f"v_xor_b32 v{r}, 0x10000, v{r}")
            upto = min(len(dq), 8 * (n + 4), max(nd + c.dma_per[n], 8 * (n + 2)))
            fill = dq[nd:upto]; nd = upto
            if n == c.gran_at:
                fill = fill + [[I(x)] for x in gloads.split("\n")]
            if n == c.r_at:
                while nw[1] < c.r_early:
                    fill = fill + [[it] for it in read_w2(nw[1])[0]]; nw[1] += 1
            last = []
            if n == 6:
                while nw[1] < c.r2:
                    its = read_w2(nw[1])[0]
                    if nw[1] < 6: fill = fill + [[it] for it in its]
                    else: last += its
                    nw[1] += 1
            g0 = 4 * n
            r0, r1, r2, r3 = (reads1(g0 + k) for k in range(4))
            body = []
            if n == 0: body.append(r0 + r1)
            else:
                mm = mfma1(g0 - 1)
                body += [r0, [mm[0]] + r1[:3], [mm[1]] + r1[3:], [mm[2]], [mm[3]]]
            for k, rd in ((0, r2), (1, r3), (2, None)):
                mm = mfma1(g0 + k)
                body += [[mm[0]] + (rd[:3] if rd else []), [mm[1]] + (rd[3:] if rd else []), [mm[2]], [mm[3]]]
            if n == 6:
                body[-5] = body[-5] + last[:4]; body[-4] = body[-4] + last[4:]
                body[c.b7_at] = body[c.b7_at] + [I(f"s_waitcnt lgkmcnt({len(last)})"), I("s_barrier")]
            merged = []
            j = 0
            for i, it in enumerate(body):
                grp = list(it)
                nb_ = len(body) - (5 if n == 6 else 0)
                while j < min(len(fill), (i + 1) * len(fill) // nb_): grp += fill[j]; j += 1
                merged.append(grp)
            lt = lateg[nl * n: nl * (n + 1)] if n < 4 else []
            p.extend(interleave(merged, lt))
        mm = mfma1(27)
        p.extend(mm[:1])
        self.tagged_check(gloads, [GR + 1, GR + 3], VT + 1)
        self.stamp("granules", sets=(0, 1, 3))
        FA_, FB_ = AB + 8, AB + 12
        q = Prog()
        q(f"s_mov_b32 s{S_X}, 0x01000100\nv_perm_b32 v{FB_}, v{GR}, v{GR}, s{S_X}\nv_lshrrev_b32 v{FB_+1}, 16, v{GR}\nv_xor_b32 v{FB_}, 0x80008000, v{FB_}")
        q(f"v_cvt_pk_bf16_f32 v{VT+1}, v{GR+2}, v{GR+2}\nv_mov_b32 v{FB_+2}, 0\nv_and_b32 v{VT+1}, 0xffff0000, v{VT+1}\nv_mov_b32 v{FB_+3}, 0\nv_sub_f32 v{VT+1}, v{GR+2}, v{VT+1}")
        q(f"v_mov_b32 v{FA_+1}, v{VB1}\nv_cvt_pk_bf16_f32 v{FA_}, v{GR+2}, v{VT+1}\nv_mov_b32 v{FA_+2}, 0\nv_mov_b32 v{FA_+3}, 0\nv_and_b32 v{VT+1}, 0xffff0000, v{GR}")
        q(f"v_permlane32_swap_b32 v{FB_}, v{FB_+2}\nv_permlane32_swap_b32 v{FB_+1}, v{FB_+3}\nv_permlane32_swap_b32 v{FA_}, v{FA_+2}\nv_permlane32_swap_b32 v{FA_+1}, v{FA_+3}")
        q(f"v_rcp_f32 v{VT+1}, v{VT+1}")
        p.extend(interleave(mm[1:], q.items))
        for fi, ti in ((0, 0), (0, 1), (1, 0), (1, 1)):
            a = v(ACC + 32 * fi + 16 * ti, 16)
            p(f"v_mfma_f32_32x32x8_bf16 {a}, {v(FA_+2*fi,2)}, {v(FB_+2*ti,2)}, {a}")
            if (fi, ti) == (0, 0): p(f"v_mul_f32 v{VC1}, {LOG2E}, v{VT+1}\nv_mul_f32 v{VC1+2}, {LOG2E}, v{VT+1}")
            if (fi, ti) == (0, 1): p(f"v_permlane32_swap_b32 v{VC1}, v{VC1+2}")
            if (fi, ti) == (1, 0) and c.mish_pk: p(f"v_mov_b32 v{VC1+1}, v{VC1}\nv_mov_b32 v{VC1+3}, v{VC1+2}")
        MT, MO = AB + 16, AB + 48
        def mish_group(a, ti, o, tset):
            t = MT + 16 * tset; u = t + 8
            r = []
            if c.mish_pk:
                for i in range(0, 8, 2): r.append(f"v_pk_mul_f32 {v(t+i,2)}, {v(a+i,2)}, {v(VC1+2*ti,2)}")
                for i in range(8): r.append(f"v_exp_f32 v{t+i}, v{t+i}")
                for i in range(0, 8, 2): r.append(f"v_pk_fma_f32 {v(u+i,2)}, {v(t+i,2)}, 0.5, 1.0 op_sel_hi:[1,0,0]")
                for i in range(0, 8, 2): r.append(f"v_pk_fma_f32 {v(u+i,2)}, {v(t+i,2)}, {v(u+i,2)}, 1.0 op_sel_hi:[1,1,0]")
                for i in range(8): r.append(f"v_rcp_f32 v{u+i}, v{u+i}")
                for i in range(0, 8, 2): r.append(f"v_pk_fma_f32 {v(u+i,2)}, {v(a+i,2)}, {v(u+i,2)}, {v(a+i,2)} neg_lo:[1,0,0] neg_hi:[1,0,0]")
            else:
                for i in range(8): r.append(f"v_mul_f32 v{t+i}, v{a+i}, v{VC1+2*ti}")
                for i in range(8): r.append(f"v_exp_f32 v{t+i}, v{t+i}")
                for i in range(8): r.append(f"v_fma_f32 v{u+i}, v{t+i}, 0.5, 1.0")
                for i in range(8): r.append(f"v_fma_f32 v{u+i}, v{t+i}, v{u+i}, 1.0")
                for i in range(8): r.append(f"v_rcp_f32 v{u+i}, v{u+i}")
                for i in range(8): r.append(f"v_fma_f32 v{u+i}, -v{a+i}, v{u+i}, v{a+i}")
            if "1" in c.diag: r = r[:len(r) // 2]; u = a
            for i in range(4): r.append(f"v_cvt_pk_bf16_f32 v{o+i}, v{u+2*i}, v{u+2*i+1}")
            return [I(x) for x in r]
        stok = {}
        def own_flag(st, q):
            if "A" in c.sflag:
                q(f"s_add_u32 s{T}, s{S_FAW}, {512*st}"); q.wait(stok[st]); q(f"s_atomic_swap s{S_TAG}, {s(R_WS,2)}, s{T}")
                return
            q.wait(stok[st])
            q(f"s_mov_b64 exec, 1\nbuffer_store_dword v{VT}, off, {s(R_WS,4)}, s{S_FAW} offset:{512*st} {c.fa_st}\ns_mov_b64 exec, -1")
        body = []
        gi = 0
        for st in range(4):
            for ti in range(2):
                o = MO + 4 * (gi % 4)
                body += mish_group(ACC + 32 * (st >> 1) + 16 * ti + 8 * (st & 1), ti, o, gi & 1)
                q = Prog()
                stok[st] = q.tok(f"buffer_store_dwordx4 {v(o,4)}, v{VL16}, {s(R_WS,4)}, s{S_ACTW} offen offset:{(st&1)*2048+ti*1024} {c.act_st}")
                if gi == 3: q(f"s_add_u32 s{S_ACTW}, s{S_ACTW}, 4096")
                if ti == 1: self.stamp(f"s{st}", q, sets=(3,))
                if ti == 1 and st - c.flag_lag in c.fstages: own_flag(st - c.flag_lag, q); self.stamp(f"f{st-c.flag_lag}", q, sets=(3,))
                body.append(q.items)
                gi += 1
        k0 = int(len(body) * c.mish_skip)
        p.extend(interleave(body[:k0], [])); p.extend(interleave(body[k0:], w2_ops(c.w2_mish, 12) + [[]]))
        self.stamp("mish", sets=(0, 4))
        rest = [st for st in c.fstages if st >= 4 - c.flag_lag]
        def flags_rest():
            for st in rest: own_flag(st, p)
        if c.prio_a1: p(f"s_setprio {c.prio_a1}")
        p(f"s_load_dwordx2 {s(R_LD,2)}, s[0:1], 0\ns_load_dwordx2 {s(R_OUT,2)}, s[0:1], 104\ns_mov_b32 s{R_LD+2}, {2048*896}\ns_mov_b32 s{R_OUT+2}, {2048*896}\ns_mov_b32 s{R_OUT+3}, 0x20000")
        def load_act(n):
            if "a" in c.diag and n >= 7: return
            assert n // 7 <= seen[0]
            p(f"s_add_u32 s{S_Y}, s{S_AO[n%7]}, {(n//7)*2048}" if c.rot2 else f"s_add_u32 s{S_Y}, s{S_ACTR}, {(4*(n%7) + n//7)*2048}")
            for ti in range(2):
                p(f"buffer_load_dwordx4 {v(AB+8*(n%8)+4*ti,4)}, v{VL16}, {s(R_WS,4)}, s{S_Y} offen offset:{ti*1024} {c.act_ld}")
        seen = [-1, 0]
        def next_flags():
            st = min(x for x in c.fstages if x > seen[0])
            if st != seen[1]: p(f"s_add_u32 s{S_FAR}, s{S_FAR}, {512*(st-seen[1])}"); seen[1] = st
            return self.flag_load("A", S_FAR, 7, VFL)
        def check_flags(f, **kw):
            self.flag_check(f, VT + 1, **kw); seen[0] = seen[1]
            self.stamp(f"act{seen[0]}", sets=(0, 2, 3))
        def reads_upto(m):
            while nw[1] < min(m, 28): p.extend(read_w2(nw[1])[0]); nw[1] += 1
        def dmas_upto(m):
            while nw[0] < min(m, 28):
                if (nw[0] >> 2) in pred: assert nw[1] > nw[0] - 12
                for it in dma_w2(nw[0]): p.extend(it)
                nw[0] += 1
        D = c.adepth
        lead = c.flead
        fl = None
        na = 0
        for op in c.pre_loop.split():
            k = int(op[1:]) if len(op) > 1 else 0
            if op[0] == "R": reads_upto(k)
            elif op[0] == "D": dmas_upto(k)
            elif op[0] == "F":
                if rest: own_flag(rest.pop(0), p)
            elif op[0] == "W": p("s_waitcnt lgkmcnt(0)")
            elif op[0] == "L": fl = next_flags()
            elif op[0] == "C":
                assert not rest or seen[1] < rest[0]
                check_flags(fl, on_miss=flags_rest if rest else None); fl = None
            elif op[0] == "A":
                while na < k: load_act(na); na += 1
            elif op[0] == "V": p("s_waitcnt vmcnt(0)")
            elif op[0] == "T": self.lds_wait(VT + 5, VT + 1, 1)
            elif op[0] == "P": p(f"s_setprio {k}")
            if op[0] not in "L": self.stamp(op + "_" + str(len(self.stamp_names["A"])), sets=(4,))
        assert D <= na <= 8 and nw[1] >= c.rdepth and not rest
        M0 = nw[0]
        if c.prio_a1 != c.prio_a2: p(f"s_setprio {c.prio_a2}")
        self.stamp("flagA", sets=(0, 2, 3))
        assert D <= 7 and c.rdepth <= 11 and c.tail_m <= 7
        main = p
        VXO, VPA, VSA, VSTA, VALL = 9, 10, 12, 13, 14
        XI, RG, RC, RR, XF32, PV, SV, SF = 176, 184, 186, 96, 100, AB, 176, ACC
        S_XO, S_XO1, S_STF = S_ACTW, S_FAW, S_X
        def f15():
            p(f"v_bfe_u32 v{VT+1}, v0, 2, 1\nv_lshrrev_b32 v{VT+2}, 3, v0\nv_and_b32 v{VT+3}, 3, v0\nv_lshl_add_u32 v{VT+4}, v{VT+1}, 4, v{VT+2}")
            p(f"v_mul_u32_u24 v{VXO}, 896, v{VT+4}\nv_lshl_add_u32 v{VXO}, v{VT+3}, 4, v{VXO}")
            p(f"v_xor_b32 v{VPA}, s{S_WF}, v{VT+1}\nv_lshlrev_b32 v{VPA}, 3, v{VPA}\nv_lshl_add_u32 v{VPA}, v{VT+3}, 1, v{VPA}\nv_xor_b32 v{VPA}, v{VPA}, v{VT+2}")
            p(f"s_lshl3_add_u32 s{T}, s{S_WT}, {L_RING//256}\nv_add_u32 v{VT+4}, s{T}, v{VT+4}\nv_lshlrev_b32 v{VT+4}, 8, v{VT+4}\nv_lshl_add_u32 v{VPA}, v{VPA}, 4, v{VT+4}\nv_xor_b32 v{VPA+1}, 16, v{VPA}")
        def f16():
            p(f"s_mul_i32 s{T}, s{S_WAVE}, 2304\ns_add_u32 s{T}, s{T}, {L_STR}\nv_mul_u32_u24 v{VSA}, 288, v{VT+3}\nv_and_b32 v{VT+4}, 60, v0\nv_add3_u32 v{VSA}, v{VSA}, v{VT+4}, s{T}")
            p(f"v_lshl_add_u32 v{VSTA}, v{VT+1}, 4, v{VT+2}\nv_lshlrev_b32 v{VSTA}, 3, v{VSTA}")
            p(f"v_lshlrev_b32 v{VALL}, 2, v{VT+3}\nv_add_u32 v{VALL}, {L_CNT}, v{VALL}")
            p(f"s_lshl3_add_u32 s{S_XO}, s{S_R2}, s{S_WT}\ns_lshl_b32 s{S_STF}, s{S_XO}, 6\ns_add_u32 s{S_STF}, s{S_STF}, {WS_STAT}\ns_mul_i32 s{S_XO}, s{S_XO}, {8*896}\ns_lshl1_add_u32 s{T}, s{S_C2}, s{S_WF}\ns_lshl_b32 s{T}, s{T}, 6\ns_add_u32 s{S_XO}, s{S_XO}, s{T}\ns_add_u32 s{S_XO1}, s{S_XO}, {32*896}")
        def f17():
            p(f"v_and_b32 v{VT+3}, 31, v0\nv_lshrrev_b32 v{VT+1}, 5, v0\nv_and_b32 v{VT+2}, 7, v0\nv_xor_b32 v{VT+1}, v{VT+1}, v{VT+2}\nv_bfe_u32 v{VT+2}, v0, 4, 1\nv_lshl_or_b32 v{VT+1}, v{VT+2}, 3, v{VT+1}")
            p(f"v_lshlrev_b32 v{VT+1}, 4, v{VT+1}\nv_lshl_add_u32 v{VT+1}, v{VT+3}, 8, v{VT+1}\nv_add_u32 v{VD}, s{S_RING}, v{VT+1}")
            for k in range(1, 8): p(f"v_xor_b32 v{VD+k}, {32*k}, v{VD}")
        def f21():
            for ps in range(2): p(f"buffer_load_dwordx4 {v(XI+4*ps,4)}, v{VXO}, {s(R_LD,4)}, s{S_XO1 if ps else S_XO} offen")
        def f22():
            for ps in range(2): p(f"buffer_load_dword v{RG+ps}, v{VSTA}, {s(R_WS,4)}, s{S_STF} offen offset:{ps*256} sc1")
        fin = {15: f15, 16: f16, 17: f17, 21: f21, 22: f22}
        tail = []
        for n in range(28):
            mm = []
            for di, ti in ((0, 0), (1, 0), (0, 1), (1, 1)):
                a = v(ACC + 32 * di + 16 * ti, 16)
                mm.append(I(f"v_mfma_f32_32x32x16_bf16 {a}, {v(w2reg(n)+4*di,4)}, {v(AB+8*(n%8)+4*ti,4)}, {'0' if n == 0 else a}"))
            groups = []
            def grab(fn):
                nonlocal p
                p = self.p = Prog(); fn(); its = p.items; p = self.p = main
                return its
            def split(its):
                cur = []
                for it in its:
                    cur.append(it)
                    if isinstance(it, I) and it.kind in ("vmem", "ds", "valu"): groups.append(cur); cur = []
                if cur: groups.append(cur)
            split(grab(lambda: reads_upto(n + 1 + c.rdepth)))
            if na <= n + D < 28:
                if (n + D) // 7 > seen[0]:
                    groups.append(grab(lambda: check_flags(fl))); fl = None
                split(grab(lambda: load_act(n + D)))
            split(grab(lambda: dmas_upto(min(nw[1] + 12 - c.w2_gap, max(n + 1 + c.w2_lead, M0 + int((n + 1) * c.w2_rate))))))
            if fl is None and min(27, n + D + lead) // 7 > seen[0]:
                def nf():
                    nonlocal fl
                    if "A" in c.spoll: p("s_waitcnt lgkmcnt(0)")
                    fl = next_flags()
                groups.append(grab(nf))
            if n in fin: split(grab(fin[n]))
            if n >= 28 - c.tail_m:
                tail += mm[2:]; mm = mm[:2]
            if c.g2_mix:
                isv = lambda gr: any(isinstance(it, I) and it.kind == "vmem" for it in gr)
                ds = [gr for gr in groups if any(isinstance(it, I) and it.mn.startswith("ds_read_b64_tr") for it in gr)]
                rest = [gr for gr in groups if not any(gr is x for x in ds)]
                nm = len(mm)
                for k in range(nm):
                    p.extend([mm[k]])
                    for gr in ds[k * len(ds) // nm:(k + 1) * len(ds) // nm]: p.extend(gr)
                    for gr in rest[k * len(rest) // nm:(k + 1) * len(rest) // nm]: p.extend(gr)
            else:
                p.extend(mm)
                for gr in groups: p.extend(gr)
            if n in (0, 3, 6, 10, 13, 17, 20): self.stamp(f"n{n}", sets=(0, 2, 4) if n in (0, 13) else (2,))
        pw = lambda ti: [I(f"ds_write_b128 v{VD+4*di+g4}, {v(ACC+32*di+16*ti+4*g4,4)} offset:{ti*SLOT}") for di in range(2) for g4 in range(4)]
        if tail: p.extend(tail[:3]); p.extend(interleave(tail[3:], pw(0)))
        else: p.extend(pw(0))
        self.lds_post(VT + 5, VT, 5)
        self.stamp("gemm2", sets=(0, 2, 3))
        if not c.fin2:
            for ps in range(2):
                p(f"v_and_b32 v{RG+ps}, 0xffff0000, v{RG+ps}\nv_rcp_f32 v{RR+2*ps}, v{RG+ps}\nv_rcp_f32 v{RR+2*ps+1}, v{RG+ps}")
            q = Prog()
            for ps in range(2):
                for j in range(4): q(f"v_lshlrev_b32 v{XF32+8*ps+2*j}, 16, v{XI+4*ps+j}\nv_and_b32 v{XF32+8*ps+2*j+1}, 0xffff0000, v{XI+4*ps+j}")
                q(f"v_mul_f32 v{RC+2*ps}, {LOG2E | 0x80000000}, v{RR+2*ps}\nv_mul_f32 v{RC+2*ps+1}, {LOG2E | 0x80000000}, v{RR+2*ps}")
            p.extend(q.items[:6]); p.extend(interleave(pw(1), q.items[6:]))
            self.lds_post(VT + 5, VT, 6)
            def preads(ps):
                self.lds_wait(VALL, VT + 1, 5 + ps)
                for w in range(4):
                    for e in range(2): p(f"ds_read_b128 {v(PV+32*ps+8*w+4*e,4)}, v{VPA+e} offset:{8192*w+SLOT*ps}")
            def gate(ps):
                b = PV + 32 * ps
                for i in range(0, 8, 2): p(f"v_pk_add_f32 {v(b+i,2)}, {v(b+i,2)}, {v(b+8+i,2)}")
                for i in range(0, 8, 2): p(f"v_pk_add_f32 {v(b+16+i,2)}, {v(b+16+i,2)}, {v(b+24+i,2)}")
                if ps == 0: preads(1)
                for i in range(0, 8, 2): p(f"v_pk_add_f32 {v(b+i,2)}, {v(b+i,2)}, {v(b+16+i,2)}")
                for i in range(0, 8, 2): p(f"v_pk_mul_f32 {v(b+8+i,2)}, {v(b+i,2)}, {v(RC+2*ps,2)}")
                for i in range(8): p(f"v_exp_f32 v{b+8+i}, v{b+8+i}")
                for i in range(0, 8, 2): p(f"v_pk_mul_f32 {v(b+i,2)}, {v(b+i,2)}, {v(RR+2*ps,2)}")
                for i in range(0, 8, 2): p(f"v_pk_add_f32 {v(b+8+i,2)}, {v(b+8+i,2)}, 1.0 op_sel_hi:[1,0]")
                if ps == 1:
                    self.stamp("gate", sets=(0, 2, 3))
                    self.lds_wait(VT + 5, VT + 1, 7)
                    self.stamp("sin", sets=(0, 2, 3))
                    for h in range(2):
                        for i in range(4): p(f"ds_read_b32 v{SV+4*h+i}, v{VSA} offset:{64*i+1152*h}")
                for i in range(8): p(f"v_rcp_f32 v{b+8+i}, v{b+8+i}")
                for i in range(0, 8, 2): p(f"v_pk_mul_f32 {v(b+i,2)}, {v(b+i,2)}, {v(b+8+i,2)}")
            preads(0); gate(0); gate(1)
        else:
            def prd(ps): return [I(f"ds_read_b128 {v(PV+32*ps+8*w+4*e,4)}, v{VPA+e} offset:{8192*w+SLOT*ps}") for w in range(4) for e in range(2)]
            def gate_ops(ps):
                b = PV + 32 * ps; q = Prog()
                for i in range(0, 8, 2): q(f"v_pk_add_f32 {v(b+i,2)}, {v(b+i,2)}, {v(b+8+i,2)}")
                for i in range(0, 8, 2): q(f"v_pk_add_f32 {v(b+16+i,2)}, {v(b+16+i,2)}, {v(b+24+i,2)}")
                for i in range(0, 8, 2): q(f"v_pk_add_f32 {v(b+i,2)}, {v(b+i,2)}, {v(b+16+i,2)}")
                for i in range(0, 8, 2): q(f"v_pk_mul_f32 {v(b+8+i,2)}, {v(b+i,2)}, {v(RC+2*ps,2)}")
                for i in range(8): q(f"v_exp_f32 v{b+8+i}, v{b+8+i}")
                for i in range(0, 8, 2): q(f"v_pk_mul_f32 {v(b+i,2)}, {v(b+i,2)}, {v(RR+2*ps,2)}")
                for i in range(0, 8, 2): q(f"v_pk_add_f32 {v(b+8+i,2)}, {v(b+8+i,2)}, 1.0 op_sel_hi:[1,0]")
                for i in range(8): q(f"v_rcp_f32 v{b+8+i}, v{b+8+i}")
                for i in range(0, 8, 2): q(f"v_pk_mul_f32 {v(b+i,2)}, {v(b+i,2)}, {v(b+8+i,2)}")
                return q.items
            w1_ = pw(1)
            for ps in range(2): p(f"v_and_b32 v{RG+ps}, 0xffff0000, v{RG+ps}\nv_rcp_f32 v{RR+2*ps}, v{RG+ps}\nv_rcp_f32 v{RR+2*ps+1}, v{RG+ps}")
            q = Prog()
            for ps in range(2):
                q(f"v_mul_f32 v{RC+2*ps}, {LOG2E | 0x80000000}, v{RR+2*ps}\nv_mul_f32 v{RC+2*ps+1}, {LOG2E | 0x80000000}, v{RR+2*ps}")
            for ps in range(2):
                for j in range(4): q(f"v_lshlrev_b32 v{XF32+8*ps+2*j}, 16, v{XI+4*ps+j}\nv_and_b32 v{XF32+8*ps+2*j+1}, 0xffff0000, v{XI+4*ps+j}")
            x_ = q.items
            p.extend(x_[:6]); p.extend(w1_[:2]); self.lds_peek(VALL, VT + 1, 5); p.extend(interleave(w1_[2:5], x_[6:15]))
            self.lds_check(VALL, VT + 1, 5, fill=lambda: p.extend(x_[15:]))
            p.extend(prd(0)); p.extend(w1_[5:])
            self.lds_post(VT + 5, VT, 6)
            g0, g1 = gate_ops(0), gate_ops(1)
            if "6" in c.diag: g0 = []
            p.extend(g0[:12]); self.lds_peek(VALL, VT + 1, 6); self.lds_peek(VT + 5, VT + 2, 7); p.extend(g0[12:24])
            self.lds_check(VALL, VT + 1, 6, fill=lambda: p.extend(g0[24:29]))
            p.extend(prd(1)); p.extend(g0[29:]); p.extend(g1[:24])
            self.stamp("gate", sets=(0, 2, 3))
            self.lds_check(VT + 5, VT + 2, 7, fill=lambda: p.extend(g1[24:29]))
            self.stamp("sin", sets=(0, 2, 3))
            for h in range(2):
                for i in range(4): p(f"ds_read_b32 v{SV+4*h+i}, v{VSA} offset:{64*i+1152*h}")
            p.extend(g1[29:])
        for ps in range(2):
            if "6" in c.diag and ps == 0: continue
            b = PV + 32 * ps
            for i in range(4): p(f"v_lshlrev_b32 v{SF+8*ps+2*i}, 16, v{SV+4*ps+i}\nv_and_b32 v{SF+8*ps+2*i+1}, 0xffff0000, v{SV+4*ps+i}")
            for i in range(0, 8, 2): p(f"v_pk_fma_f32 {v(b+i,2)}, {v(b+i,2)}, {v(SF+8*ps+i,2)}, {v(XF32+8*ps+i,2)}")
            for i in range(4): p(f"v_cvt_pk_bf16_f32 v{b+16+i}, v{b+2*i}, v{b+2*i+1}")
            p(f"buffer_store_dwordx4 {v(b+16,4)}, v{VXO}, {s(R_OUT,4)}, s{S_XO1 if ps else S_XO} offen {c.out_fl}")
        self.stamp("end", sets=(0, 2, 3, 4, 9))
        self.stamp_flush(1)
        p("s_endpgm")

    def gather_table(self):
        import numpy as np
        def rb(l):
            u = np.array([l], np.float32).view(np.uint32)
            return int((((u + 0x7FFF + ((u >> 16) & 1)) >> 16) << 16).view(np.float32)[0])
        rows = list(range(8)) + list(range(128, 136)) + [256, 258, 260, 262, 384, 386, 388, 390, 512, 516, 640, 644, 768, 772, 896, 900] + [1024 + 128 * k for k in range(9)]
        pos = {}
        for i, a in enumerate(rows):
            tile, row = i >> 4, i & 15
            for col in range(16): pos[a + 8 * col] = tile * 1024 + ((row >> 2) * 16 + col) * 16 + (row & 3) * 4
        zero = 2 * 1024 + 48 * 16
        at = lambda l: zero if l < 0 else pos[rb(l)]
        at1 = lambda l: zero if l > 1028 else at(l)
        words = []
        for mh in range(2):
            for half in range(2):
                for lane in range(64):
                    hi = 1023 - 8 * (64 * mh + lane)
                    e = [at(hi - i) for i in range(11)]
                    if mh == 0: d = 127 - lane; e += [pos[16 * d + 16], pos[16 * d + 8], zero, zero, zero]
                    elif lane < 16: top = 1055 - 8 * (lane >> 2) - (lane & 3); e += [at1(top - j) for j in (0, 1, 2, 3, 7)]
                    else: e += [zero] * 5
                    e = e[8 * half: 8 * half + 8]
                    words += [e[2 * k] | (e[2 * k + 1] << 16) for k in range(4)]
        return words

    def role_b(self):
        p, c = self.p, self.c
        p.label("L_roleB")
        self.role_start(True); self.stamp_begin("B")
        S_BW, S_LDT, S_DSK, S_STW, S_CHN, S_MH = B_BW, B_LDT, B_DSK, B_STW, S_WF, S_WT
        S_FXR, S_XTR, S_FSW, S_FSR, S_STR, S_XO = 74, 75, 76, 77, 0, 1
        S_X, S_Y = 78, 79
        T = S_T
        VL16, VP, VGT, VG, VSW, VSR, VT = 9, B_VP, 120, 16, 46, 47, 50
        VRW, VTW, VTZ, VTA, VUA, VUW, VCN, VONE, VEXW, VEXR, VTAG, VUZ, VFL = range(32, 45)
        self.load_epoch()
        self.loader_base()
        ctok = {}
        if c.a_chunks < 7:
            if c.rot1: p(f"s_cmp_ge_u32 s{S_C2}, {7-c.a_chunks}\ns_cselect_b32 s{T}, {c.a_chunks-7}, {c.a_chunks}\ns_mul_i32 s{T}, s{T}, s{S_CSTR}\ns_add_u32 s{S_SOFF}, s{S_SOFF}, s{T}")
            else: p(f"s_mul_i32 s{T}, s{S_CSTR}, {c.a_chunks}\ns_add_u32 s{S_SOFF}, s{S_SOFF}, s{T}")
        p(f"v_lshlrev_b32 v{VL16}, 4, v0\ns_lshl3_add_u32 s{S_STW}, s{S_STW}, {WS_ST}")
        srd(p, R_2, P_W2, 1792 * 896)
        late = Prog(); q = late
        q(f"s_lshl2_add_u32 s{S_R2}, s{S_XCD}, s{S_JR}")
        q(f"s_lshr_b32 s{T}, s{S_CP}, 5\ns_lshl2_add_u32 s{S_FXR}, s{T}, s{S_BW}\ns_and_b32 s{T}, s{S_CP}, 3\ns_lshl2_add_u32 s{S_FXR}, s{S_FXR}, s{T}\ns_lshl_b32 s{S_FXR}, s{S_FXR}, 7\ns_add_u32 s{S_FXR}, s{S_FXR}, {WS_FX}\ns_lshr_b32 s{T}, s{S_CP}, 4")
        q(f"s_lshl3_add_u32 s{S_XTR}, s{S_CP}, s{S_BW}\ns_lshl_b32 s{S_XTR}, s{S_XTR}, 10\ns_add_u32 s{S_XTR}, s{S_XTR}, {WS_XT}")
        q(f"s_mul_i32 s{S_FSW}, s{S_BW}, 14\ns_add_u32 s{S_FSW}, s{S_FSW}, s{T}\ns_lshl_b32 s{S_FSW}, s{S_FSW}, 7\ns_and_b32 s{T+1}, s{S_CP}, 15\ns_add_u32 s{S_FSW}, s{S_FSW}, s{T+1}\ns_lshl2_add_u32 s{S_FSW}, s{S_FSW}, {WS_FS}")
        q(f"s_lshl1_add_u32 s{T}, s{S_C2}, s{S_CHN}")
        q(f"s_lshr_b32 s{T+1}, s{S_R2}, 3\ns_mul_i32 s{S_FSR}, s{T+1}, 14\ns_add_u32 s{S_FSR}, s{S_FSR}, s{T}\ns_lshl2_add_u32 s{S_FSR}, s{S_FSR}, s{S_JR}\ns_lshl_b32 s{S_FSR}, s{S_FSR}, 7\ns_add_u32 s{S_FSR}, s{S_FSR}, {WS_FS}")
        q(f"s_lshl_b32 s{S_STR}, s{T}, 9\ns_add_u32 s{S_STR}, s{S_STR}, s{S_R2}\ns_lshl1_add_u32 s{S_STR}, s{S_STR}, s{S_MH}\ns_lshl_b32 s{S_STR}, s{S_STR}, 7\ns_add_u32 s{S_STR}, s{S_STR}, {WS_ST}\ns_add_u32 s{S_XO}, s{S_STR}, {8*8192}")
        q(f"v_and_b32 v{VT}, 15, v0\nv_lshrrev_b32 v{VT+1}, 4, v0")
        q(f"s_mul_i32 s{T}, s{S_BW}, 8448\nv_mul_u32_u24 v{VT+2}, 528, v{VT}\nv_and_b32 v{VT+3}, 256, v{VL16}\nv_add3_u32 v{VT+2}, v{VT+2}, v{VT+3}, s{T}\nv_lshrrev_b32 v{VT+3}, 5, v0\nv_lshl_add_u32 v{VSR}, v{VT+3}, 4, v{VT+2}")
        q(f"s_lshl_b32 s{T}, s{S_BW}, 13\nv_add_u32 v{VEXW}, s{T}, v{VL16}")
        q(f"s_mul_i32 s{T}, s{S_BW}, 3072\ns_add_u32 s{T}, s{T}, {L_RAW}\nv_add_u32 v{VRW}, s{T}, v{VL16}")
        q(f"s_mul_i32 s{T}, s{S_CHN}, {TCH}\ns_add_u32 s{T}, s{T}, {L_TAB}\ns_lshl_b32 s{T+1}, s{S_MH}, 10\ns_add_u32 s{T+1}, s{T+1}, s{T}\nv_add_u32 v{VTW}, s{T+1}, v{VL16}")
        q(f"v_sub_u32 v{VT+2}, 3, v{VT}\nv_and_b32 v{VT+2}, 3, v{VT+2}\nv_mul_u32_u24 v{VT+3}, {TCP-2}, v{VT+2}\nv_lshl_add_u32 v{VT+3}, v{VT+1}, 4, v{VT+3}\nv_lshlrev_b32 v{VT+2}, 1, v{VT}\nv_sub_u32 v{VT+3}, v{VT+3}, v{VT+2}")
        q(f"s_lshl_b32 s{T+1}, s{S_MH}, 8\ns_sub_u32 s{T}, s{T}, s{T+1}\ns_add_u32 s{T}, s{T}, {2*15}\nv_add_u32 v{VTA}, s{T}, v{VT+3}")
        q(f"s_mul_i32 s{S_X}, s{S_CHN}, 4608\ns_sub_u32 s{T}, s{S_X}, s{T+1}\ns_add_u32 s{T}, s{T}, {L_U+2*(240-96)}\nv_lshlrev_b32 v{VT+2}, 5, v{VT}\nv_lshl_add_u32 v{VT+2}, v{VT+1}, 4, v{VT+2}\nv_add_u32 v{VUA}, s{T}, v{VT+2}")
        q(f"s_add_u32 s{S_X}, s{S_X}, s{T+1}\ns_add_u32 s{S_X}, s{S_X}, {L_U}\nv_lshl_add_u32 v{VUZ}, v0, 2, s{S_X}")
        q(f"s_lshl_b32 s{T}, s{S_BW}, 10\ns_add_u32 s{T}, s{T}, {L_U+512}\nv_add_u32 v{VUW}, s{T}, v{VL16}")
        q(f"s_lshl_b32 s{T}, s{S_BW}, 11\ns_add_u32 s{T}, s{T}, {L_EX}\nv_add_u32 v{VEXR}, s{T}, v{VL16}")
        VZ = 56
        for i in range(4): q(f"v_mov_b32 v{VZ+i}, 0")
        q(f"s_lshl2_add_u32 s{T}, s{S_BW}, {L_CNT}\nv_mov_b32 v{VONE}, s{T}\nv_and_b32 v{VCN}, 3, v0\nv_lshlrev_b32 v{VCN}, 2, v{VCN}\nv_add_u32 v{VCN}, {L_CNT}, v{VCN}")
        VW2D = 48; S_WOFF, S_WIDX, S_RING = 88, 89, 91
        q(f"v_lshrrev_b32 v{VT+2}, 3, v0\nv_mul_u32_u24 v{VT+2}, 896, v{VT+2}\nv_bfe_u32 v{VT+3}, v0, 4, 1\nv_lshlrev_b32 v{VT+3}, 2, v{VT+3}\nv_xor_b32 v{VT+3}, v0, v{VT+3}\nv_and_b32 v{VT+3}, 7, v{VT+3}")
        q(f"v_lshl_add_u32 v{VW2D}, v{VT+3}, 4, v{VT+2}\nv_add_u32 v{VW2D+1}, {7168-1024}, v{VW2D}")
        if c.rot2 == 2: q(f"s_lshl1_add_u32 s{S_WIDX}, s{S_JR}, s{S_C2}\ns_cmp_ge_u32 s{S_WIDX}, 7\ns_cselect_b32 s{T}, 7, 0\ns_sub_u32 s{S_WIDX}, s{S_WIDX}, s{T}")
        else: q(f"s_mov_b32 s{S_WIDX}, {'s%d' % S_C2 if c.rot2 else 0}")
        q(f"s_mul_i32 s{S_WOFF}, s{S_BW}, 7\ns_add_u32 s{S_WOFF}, s{S_WOFF}, s{S_WIDX}\ns_mul_i32 s{S_WOFF}, s{S_WOFF}, {64*7}\ns_add_u32 s{S_WOFF}, s{S_WOFF}, s{S_C2}\ns_lshl_b32 s{S_WOFF}, s{S_WOFF}, 7")
        q(f"s_lshl_b32 s{S_RING}, s{S_BW}, 13\ns_add_u32 s{S_RING}, s{S_RING}, {L_RING}")
        assert not c.qperm and c.b_pre == 1.0
        if "X" not in c.spoll: q(f"v_min_u32 v{VFL}, 7, v0\nv_lshlrev_b32 v{VFL}, 2, v{VFL}")
        k = int(len(late.items) * c.b_pre)
        p.extend(late.items[:k]); late.items = late.items[k:]
        T = 90
        S_TCH = 92; nt = [0]
        def touch_upto(m):
            while nt[0] < m:
                p(f"s_buffer_load_dwordx2 s[94:95], {s(R_2,4)}, s{S_TCH}\ns_add_u32 s{S_TCH}, s{S_TCH}, 128"); nt[0] += 1
                p.items.append(Marker("forget", {"s94", "s95"}))
        if c.s_touch: p(f"s_lshl2_add_u32 s{S_TCH}, s{S_CP}, s{S_BW}\ns_mul_i32 s{S_TCH}, s{S_TCH}, {14*128}\ns_add_u32 s{S_TCH}, s{S_TCH}, 60")
        self.make_tag()
        p(f"s_lshl_b32 s{T}, s{S_CHN}, 4\ns_lshr_b32 s{S_LDT}, s{S_LDT}, s{T}\ns_lshl_b32 s{S_LDT}, s{S_LDT}, 16\ns_lshr_b32 s{S_DSK}, s{S_DSK}, s{T}\ns_lshl_b32 s{S_DSK}, s{S_DSK}, 16")
        VDT = 60
        p(f"v_mov_b32 v{VDT}, {LOG2E}\nv_mul_f32 v{VDT}, s{S_LDT}, v{VDT}\nv_exp_f32 v{VDT}, v{VDT}\nv_mov_b32 v{VTAG}, s{S_TAG}\nv_cvt_pk_bf16_f32 v{VDT}, v{VDT}, v{VDT}\nv_and_b32 v{VDT}, 0xffff0000, v{VDT}\nv_mov_b32 v{VDT+1}, v{VDT}")
        if c.s_touch: touch_upto(c.s_touch[0])
        self.stamp("pre", sets=(1,))
        Z1, Z2, Z4, Z8, Z128, XB, XC, XDD, TM = 64, 68, 72, 76, 80, 84, 88, 92, 96
        AL, BE, UB, CV = 108, 110, 112, 120
        YF, XF, KV, KA = 128, 160, 128, 244
        units = []
        def unpack(d, src): p(f"v_lshlrev_b32 v{d}, 16, v{src}\nv_and_b32 v{d+1}, 0xffff0000, v{src}")
        def mul2(d, a, b, pk):
            if pk: p(f"v_pk_mul_f32 {v(d,2)}, {v(a,2)}, {v(b,2)}")
            else: p(f"v_mul_f32 v{d}, v{a}, v{b}\nv_mul_f32 v{d+1}, v{a+1}, v{b+1}")
        def cmul_(d, a, b, pk):
            assert d != b
            mul2(TM, a, b, pk); mul2(TM + 2, a, b + 2, pk)
            if pk:
                p(f"v_pk_fma_f32 {v(d,2)}, {v(a+2,2)}, {v(b+2,2)}, {v(TM,2)} neg_lo:[1,0,0] neg_hi:[1,0,0]")
                p(f"v_pk_fma_f32 {v(d+2,2)}, {v(a+2,2)}, {v(b,2)}, {v(TM+2,2)}")
            else:
                for m in range(2): p(f"v_fma_f32 v{d+m}, -v{a+2+m}, v{b+2+m}, v{TM+m}")
                for m in range(2): p(f"v_fma_f32 v{d+2+m}, v{a+2+m}, v{b+m}, v{TM+2+m}")
        def cmul(d, a, b): units.append((8, lambda pk: cmul_(d, a, b, pk)))
        def put(e, a, conj):
            ng = "-" if conj else ""
            units.append((2, lambda pk: (have.add(e), p(f"v_cvt_pk_bf16_f32 v{KV+2*e}, v{a}, {ng}v{a+2}\nv_cvt_pk_bf16_f32 v{KV+2*e+1}, v{a+1}, {ng}v{a+3}"))))
        have = {0}
        def getfr(base):
            return [I(f"ds_read_b128 {v(base+4*fr,4)}, v{VSR} offset:{fr*32}") for fr in range(8)]
        def kmfma(tile, base):
            a = v(KA + 4 * tile, 4)
            return [I(f"v_mfma_f32_16x16x32_bf16 {a}, {v(base+4*fr,4)}, {v(YF+4*fr,4)}, {'0' if (fr == 0 and tile) else a}") for fr in range(8)]
        def zpow_(d, lg, pk):
            for m in range(2):
                if lg: p(f"v_ldexp_f32 v{TM+m}, v{AL+m}, {lg}\nv_ldexp_f32 v{TM+2+m}, v{BE+m}, {lg}")
                a, b = (TM + m, TM + 2 + m) if lg else (AL + m, BE + m)
                p(f"v_exp_f32 v{TM+m}, v{a}\nv_fract_f32 v{TM+2+m}, v{b}")
            for m in range(2): p(f"v_cos_f32 v{d+m}, v{TM+2+m}\nv_sin_f32 v{d+2+m}, v{TM+2+m}")
            mul2(d, d, TM, pk); mul2(d + 2, d + 2, TM, pk)
        def zpow(d, lg): units.append((22, lambda pk: zpow_(d, lg, pk)))
        p(f"v_mov_b32 v{KV}, 0x3f80\nv_mov_b32 v{KV+1}, 0x3f80")
        unpack(AL, VP); unpack(BE, VP + 1)
        self.stamp("params", sets=(0, 1))
        mul2(AL, AL, VDT, True); mul2(BE, BE, VDT, True)
        for m in range(2): p(f"v_mul_f32 v{AL+m}, {LOG2E}, v{AL+m}\nv_mul_f32 v{BE+m}, 0.15915494, v{BE+m}")
        early_done = [None]
        zpow(Z8, 3)
        put(1, Z8, False)
        prev = Z8
        for r in range(2, 16): cmul(XB, prev, Z8); prev = XB; put(r, XB, False)
        zpow(Z1, 0); zpow(Z128, 7)
        units.append((8, lambda pk: [unpack(UB + 2 * i, VP + 2 + i) for i in range(4)]))
        cmul(XC, UB, UB + 4)
        units.append((4, lambda pk: (mul2(XC, XC, VDT, pk), mul2(XC + 2, XC + 2, VDT, pk))))
        cmul(XB, XC, Z128)
        put(16, XC, True); put(24, XB, True)
        prev = XB
        for r in range(1, 8):
            cmul(XC, XC, Z1); put(16 + r, XC, True)
            cmul(XDD, prev, Z1); prev = XDD; put(24 + r, XDD, True)
        for it in late.items: units.append((1, lambda pk, it=it: p.extend([it])))
        cmul(Z2, Z1, Z1); cmul(Z4, Z2, Z2)
        for k in range(2):
            cmul(XB, XB, Z128); put(32 + 4 * k, XB, True); prev = XB
            for r in range(1, 4): cmul(XC, prev, Z2); prev = XC; put(32 + 4 * k + r, XC, True)
        for k in range(4):
            cmul(XB, XB, Z128); put(40 + 2 * k, XB, True)
            cmul(XC, XB, Z4); put(41 + 2 * k, XC, True)
        for k in range(9): cmul(XB, XB, Z128); put(48 + k, XB, True)
        total = sum(u[0] for u in units)
        cuts = [c.kg_pre] + [c.kg_pre + (total - c.kg_pre) * (i - c.kg_x) / (c.kg_ints - c.kg_x) for i in range(1, 7)]
        X2F = 64
        VCA, VPU, BE9, BO7 = 10, 11, 12, 60
        order = list(range(48, 57)) + list(range(16)) + list(range(32, 48)) + list(range(16, 32))
        lops = []
        for e in order:
            it = [I(f"ds_write_addtid_b32 v{KV+2*e+m} offset:{(e&15)*528+256*m}") for m in range(2)]
            if 36 <= e < 44: it.append(kmfma(2, X2F)[e - 36])
            if e == 46: it += [I(f"v_cndmask_b32 v{KA+8}, 0, v{KA+8}, vcc"), I(f"ds_write_b128 v{VRW}, {v(KA+8,4)} offset:2048")]
            if 20 <= e < 28: it.append(kmfma(1, XF + 32)[e - 20])
            if e == 30: it.append(I(f"ds_write_b128 v{VRW}, {v(KA+4,4)} offset:1024"))
            if e in (15, 31, 47, 56): it += getfr({15: YF, 31: XF, 47: XF + 32, 56: X2F}[e])
            if "2" in c.diag and e < 32 and e % 16 != 15: it = it[2:]
            lops.append(it)
        nl = [0]
        def lds_upto(m):
            while nl[0] < m:
                assert order[nl[0]] in have
                p.extend(lops[nl[0]]); nl[0] += 1
        done = 0; nb = 0; fx = [None]; xt = [None]
        def barrier():
            nonlocal nb
            if nb in ctok: p.wait(ctok[nb])
            if nb == c.r_at and c.r_early: p.wait(w2t[c.r_early - 1])
            if nb == 6 and c.r2: assert c.br0 >= 0 and c.r2 <= 8; p.wait(w2t[c.r2 - 1])
            self.stamp(f"atbar{nb}", sets=(0, 1) if nb == 0 else (1,))
            p("s_barrier")
            if c.a_chunks <= nb + 3 < 7:
                for it in self.dma_chunk(nb + 3, T, ctok): p.extend(it)
            if c.s_touch and nb < 4: touch_upto(c.s_touch[nb + 1])
            if nb == 4: self.stamp("bar4", sets=(0, 3))
            if nb == c.gt_at:
                p(f"s_lshl_b32 s{T}, s{S_MH}, 11\ns_add_u32 s{T}, s{T}, L_gtab-L_pc")
                for h in range(2): p(f"buffer_load_dwordx4 {v(VGT+4*h,4)}, v{VL16}, {s(R_PC,4)}, s{T} offen offset:{1024*h}")
            if nb >= 4 or nb == c.br0:
                while nq[0] < (c.bw2[nb - 4] if nb >= 4 else 4):
                    n = nq[0]; nq[0] += 1
                    pc = (n >> 2) if c.br0 < 0 else (-2 if n < 4 else (n >> 2) - 1)
                    assert pc <= nb - 4 or pc < 0
                    p(f"s_add_u32 m0, s{S_RING}, {pc*SLOT + (n&3)*2048}\ns_cmp_eq_u32 s{S_WIDX}, {(6-n)%7}\nbuffer_load_dwordx4 v{VW2D}, {s(R_2,4)}, s{S_WOFF} offen lds")
                    w2t[n] = p.tok(f"buffer_load_dwordx4 v{VW2D+1}, {s(R_2,4)}, s{S_WOFF} offen offset:1024 lds")
                    p(f"s_cselect_b32 s{T}, {-7*64*896}, 0\ns_add_u32 s{S_WOFF}, s{S_WOFF}, s{T}\ns_add_u32 s{S_WOFF}, s{S_WOFF}, {(64 + (16 if n % 7 == 6 else 0))*896}")
            if nb < 7 and c.lds_cut[nb] > nl[0]:
                assert done == total and c.lds_cut[nb] <= 23 and (c.br0 < 0 or nb > c.r_at)
                p(f"s_mul_i32 m0, s{S_BW}, 8448"); lds_upto(c.lds_cut[nb])
            if nb == c.band_at:
                assert done == total
                p(f"v_and_b32 v{VT}, 15, v0\nv_lshrrev_b32 v{VT+1}, 4, v0\nv_lshlrev_b32 v{VT+2}, 3, v{VT+1}\ns_movk_i32 s{T}, 0x3f80")
                for bd, m in ((BE9, 0x1ff << 4), (BO7, 0x7f << 5)):
                    p(f"v_mov_b32 v{VT+3}, {m}\nv_lshlrev_b32 v{VT+3}, v{VT}, v{VT+3}\nv_lshrrev_b32 v{VT+3}, v{VT+2}, v{VT+3}")
                    for d in range(4):
                        p(f"v_bfe_u32 v{VT+4}, v{VT+3}, {2*d}, 1\nv_bfe_u32 v{VT+5}, v{VT+3}, {2*d+1}, 1\nv_lshl_or_b32 v{VT+4}, v{VT+5}, 16, v{VT+4}\nv_mul_u32_u24 v{bd+d}, s{T}, v{VT+4}")
                p(f"s_mul_i32 s{T}, s{S_MH}, 768\ns_sub_u32 s{T}, 1200, s{T}\nv_add_u32 v{VPU}, s{T}, v{VUA}")
                p(f"s_mul_i32 s{T}, s{S_CHN}, {TCH}\ns_add_u32 s{S_X}, s{T}, {L_TAB+4*TCP+60}\nv_lshlrev_b32 v{VT+3}, 2, v{VT+1}\nv_sub_u32 v{VT+3}, v{VT+3}, v{VT}\nv_lshl_add_u32 v{VCA}, v{VT+3}, 2, s{S_X}")
                p(f"s_add_u32 s{T}, s{T}, {L_TAB}\nv_and_b32 v{VT+3}, 3, v0\nv_mul_u32_u24 v{VT+3}, {TCP}, v{VT+3}\nv_lshrrev_b32 v{VT+4}, 2, v0\nv_lshl_add_u32 v{VT+3}, v{VT+4}, 4, v{VT+3}\nv_lshl_add_u32 v{VT+3}, v{VT+1}, 11, v{VT+3}")
                p(f"v_lshlrev_b32 v{VT+4}, 2, v0\nv_add_u32 v{VT+4}, {4*TCP}, v{VT+4}\ns_cmp_eq_u32 s{S_MH}, 0\ns_cselect_b64 vcc, -1, 0\nv_cndmask_b32 v{VT+3}, v{VT+3}, v{VT+4}, vcc\nv_add_u32 v{VTZ}, s{T}, v{VT+3}")
            if nb == 5:
                p(f"s_mul_i32 s{T}, s{S_CHN}, 6144\ns_add_u32 s{T}, s{T}, {L_RAW}\ns_cmp_eq_u32 s{S_MH}, 0\ns_cselect_b32 s{S_DSK}, s{S_DSK}, 0")
                p(f"v_mov_b32 v{VT}, s{S_DSK}\nv_cmp_eq_u32 vcc, 0, v0\nv_mov_b32 v{VT+1}, s{T}\nv_mov_b32 v{KA+1}, 0\nv_cndmask_b32 v{KA}, 0, v{VT}, vcc\nv_mov_b32 v{KA+2}, 0\nv_mov_b32 v{KA+3}, 0\nv_cmp_gt_u32 vcc, 48, v0")
                for k in range(16):
                    p(f"v_add_u32_sdwa v{VG+k}, v{VT+1}, v{VGT+(k>>1)} dst_sel:DWORD dst_unused:UNUSED_PAD src0_sel:DWORD src1_sel:WORD_{k&1}")
            nb += 1
        nq = [0]; w2t = {}
        for cost, fn in units:
            while nb < 8 and done >= cuts[min(nb, 6)]: barrier()
            fn(nb == 0); done += cost
        while nb < 8: barrier()
        self.stamp("bar7", sets=(0, 3))
        p(f"s_mul_i32 m0, s{S_BW}, 8448\nds_write_b32 v{VUZ}, v{VZ}")
        if c.prio_b3 != c.prio_b2: p(f"s_setprio {c.prio_b3}")
        XR, XR2 = 2, 52
        lds_upto(c.fx_ld)
        fx = self.flag_load("X", S_FXR, 8, VFL)
        lds_upto(c.fx_chk)
        self.flag_check(fx, VT)
        p.wait(w2t[nq[0] - 1]); self.lds_post(VONE, VTAG, 4)
        self.stamp("fx", sets=(0, 3))
        p(f"buffer_load_dwordx4 {v(XR,4)}, v{VL16}, {s(R_WS,4)}, s{S_XTR} offen sc1\ns_add_u32 s{S_XTR}, s{S_XTR}, 4096\nbuffer_load_dwordx4 {v(XR2,4)}, v{VL16}, {s(R_WS,4)}, s{S_XTR} offen sc1")
        lds_upto(57)
        p.extend(kmfma(0, XF))
        T = S_T
        uw = lambda: [p(f"ds_write_b128 v{VUW}, {v(XR2 if ch else XR,4)} offset:{4608*ch}") for ch in range(2)]
        if c.u_at == 0: uw()
        p(f"ds_write_b128 v{VRW}, {v(KA,4)}")
        self.lds_post(VONE, VTAG, 0)
        self.stamp("kgen", sets=(0, 3))
        if c.prio_b4 != c.prio_b3: p(f"s_setprio {c.prio_b4}")
        if c.u_at == 1: uw()
        self.lds_wait(VCN, VT, 0)
        GV, PK = 96, 128
        for k in range(16): p(f"ds_read2st64_b32 {v(GV+2*k,2)}, v{VG+k} offset0:0 offset1:12")
        for k in range(11): p(f"v_add_f32 v{GV+2*k}, v{GV+2*k}, v{GV+2*k+1}")
        for cp_ in range(4):
            for j in range(4): p(f"v_cvt_pk_bf16_f32 v{PK+4*cp_+j}, v{GV+2*(cp_+2*j)}, v{GV+2*(cp_+2*j+1)}")
            p(f"ds_write_b128 v{VTW}, {v(PK+4*cp_,4)} offset:{cp_*TCP+64}")
        for k in range(11, 16): p(f"v_add_f32 v{GV+2*k}, v{GV+2*k}, v{GV+2*k+1}")
        l0, l1 = self.lab("edge"), self.lab("tabd")
        E = lambda k: GV + 2 * (11 + k)
        p(f"v_cvt_pk_bf16_f32 v{PK+16}, v{E(0)}, v{E(1)}\ns_cmp_lg_u32 s{S_MH}, 0\ns_cbranch_scc1 {l0}")
        p.alt_begin()
        p(f"ds_write_b32 v{VTZ}, v{PK+16}\ns_mov_b64 exec, 0xffff\nds_write_b32 v{VTZ}, v{VZ} offset:256\ns_branch {l1}")
        p.alt_else()
        p.label(l0)
        p(f"v_cvt_pk_bf16_f32 v{PK+17}, v{E(2)}, v{E(3)}\nv_cvt_pk_bf16_f32 v{PK+18}, v{E(3)}, v{E(3)}\nv_cvt_pk_bf16_f32 v{PK+19}, v{E(3)}, v{E(4)}")
        p(f"s_mov_b64 exec, 0xffffff\nds_write_b128 v{VTZ}, {v(PK+16,4)}")
        p.alt_end()
        p.label(l1)
        p("s_mov_b64 exec, -1")
        self.stamp("tables", sets=(0, 3, 4))
        if c.u_at == 2: uw()
        self.lds_post(VONE, VTAG, 1)
        self.lds_wait(VCN, VT, 1)
        self.stamp("u", sets=(0, 3, 4))
        if c.prio_b5 != c.prio_b4: p(f"s_setprio {c.prio_b5}")
        TF, UF, CA = 96, 160, 224
        PU, VA, VB, AF, TB = 128, 144, 64, 72, 88
        MF = lambda d, a, b_, z=False: I(f"v_mfma_f32_16x16x32_bf16 {v(d,4)}, {v(a,4)}, {v(b_,4)}, {'0' if z else v(d,4)}")
        def read_tu(ph):
            r = [I(f"ds_read_b128 {v(UF+32*(ph&1),4)}, v{VUA} offset:{2*32*(3-ph)}")]
            for a in range(4):
                for h in range(2):
                    r.append(I(f"ds_read_b64 {v(TF+16*(ph&1)+4*a+2*h,2)}, v{VTA} offset:{2*(160+256*(3-a)+32*(3-ph))+8*h}"))
            return r + [I(f"ds_read_b128 {v(UF+32*(ph&1)+4*b,4)}, v{VUA} offset:{2*(256*b+32*(3-ph))}") for b in range(1, 8)]
        r0 = read_tu(0)
        p.extend(r0[:11])
        for ph in range(4):
            mm = [MF(CA + 4 * (a + b), UF + 32 * (ph & 1) + 4 * b, TF + 16 * (ph & 1) + 4 * a, ph == 0 and (b == 0 or a == 3)) for b in range(8) for a in range(min(4, 8 - b))]
            if ph == 0:
                rp = [I(f"ds_read_b128 {v(PU+8*be+4*o,4)}, v{VPU} offset:{512*be+16*o}") for be in range(2) for o in range(2)]
                ra = [I(f"ds_read2_b32 {v(AF+4*a+2*h,2)}, v{VCA} offset0:{16*(3-a)+2*h} offset1:{16*(3-a)+2*h+1}") for a in range(4) for h in range(2)]
                ra += [I(f"ds_read_b64 {v(TB+2*h,2)}, v{VTA} offset:{8*h}") for h in range(2)]
                mp = [MF(VA + 8 * be + 4 * o, PU + 8 * be + 4 * o, BO7 if o else BE9, True) for be in range(2) for o in range(2)]
                cv = [I(f"v_cvt_pk_bf16_f32 v{VB+4*be+r}, v{VA+8*be+r}, v{VA+8*be+4+r}") for be in range(2) for r in range(4)]
                r1 = read_tu(1)
                p.extend(interleave(mm[:12], r0[11:13] + rp + r0[13:] + ra[:5]))
                p.extend(interleave(mp + mm[12:18], ra[5:] + r1[:8]))
                p.extend(interleave(mm[18:], [[x, y] for x, y in zip(cv, r1[8:])]))
                l0, l1 = self.lab("far1"), self.lab("fard")
                p(f"s_cmp_lg_u32 s{S_MH}, 0\ns_cbranch_scc1 {l0}")
                p.alt_begin()
                p.extend([MF(CA + 4 * (4 + b), UF + 4 * b, TB) for b in range(4)])
                p.extend([MF(CA + 4 * 6, AF, VB), MF(CA + 4 * 7, AF + 4, VB), MF(CA + 4 * 7, AF, VB + 4)])
                p(f"s_branch {l1}")
                p.alt_else()
                p.label(l0)
                p.extend([MF(CA + 4 * (4 + a + be), AF + 4 * a, VB + 4 * be) for be in range(2) for a in range(4 - be)])
                p.alt_end()
                p.label(l1)
            elif ph < 3 and "3" in c.diag: pass
            elif ph < 3: p.extend(interleave(mm, read_tu(ph + 1), ratio=0.8))
            else:
                self.lds_post(VONE, VTAG, 2)
                p.extend(mm[:5]); self.lds_peek(VCN, VT, 2); p.extend(mm[5:11])
                self.lds_check(VCN, VT, 2, fill=lambda: p.extend(mm[11:16])); mm = mm[16:]
                if c.prio_b6 != c.prio_b5 and not c.late6: p(f"s_setprio {c.prio_b6}")
                fill = [I(f"ds_write_b128 v{VEXW}, {v(CA+4*cc,4)} offset:{1024*cc}") for cc in range(4)]
                p.extend(interleave(mm, fill, ratio=0.5))
        if c.prio_b6 != c.prio_b5 and c.late6: p(f"s_setprio {c.prio_b6}")
        self.stamp("conv", sets=(0, 2, 3, 4))
        for cc in range(4, 8): p(f"ds_write_b128 v{VEXW}, {v(CA+4*cc,4)} offset:{1024*cc}")
        self.lds_post(VONE, VTAG, 3)
        EXV, VSA = 96, 10
        if "b" in c.diag:
            p(f"v_lshlrev_b32 v{VT+4}, 7, v0\ns_mov_b64 exec, 15\nbuffer_store_dword v{VTAG}, v{VT+4}, {s(R_WS,4)}, s{S_FSW} offen sc1\ns_mov_b64 exec, -1")
            self.lds_post(VONE, VTAG, 7); p("s_waitcnt lgkmcnt(0)"); self.stamp_flush(1); p("s_endpgm"); return
        self.lds_wait(VCN, VT, 3)
        for k in range(2):
            for w in range(4): p(f"ds_read_b128 {v(EXV+16*k+4*w,4)}, v{VEXR} offset:{8192*w+1024*k}")
        for k in range(2):
            b = EXV + 16 * k
            for r in range(4): p(f"v_add_f32 v{b+r}, v{b+r}, v{b+4+r}\nv_add_f32 v{b+8+r}, v{b+8+r}, v{b+12+r}")
            for r in range(4): p(f"v_cvt_pk_bf16_f32 v{b+4+r}, v{b+r}, v{b+8+r}")
            sttok = p.tok(f"buffer_store_dwordx4 {v(b+4,4)}, v{VL16}, {s(R_WS,4)}, s{S_STW} offen offset:{1024*k} sc1")
        self.stamp("st", sets=(0, 2, 3, 4))
        if "S" not in c.spoll: p(f"v_min_u32 v{VFL}, 15, v0\nv_lshlrev_b32 v{VFL}, 2, v{VFL}")
        p(f"s_mul_i32 s{T}, s{S_BW}, 2304\ns_add_u32 s{T}, s{T}, {L_STR}")
        p(f"v_and_b32 v{VT+4}, 32, v0\nv_lshl_add_u32 v{VT+4}, v0, 3, v{VT+4}\nv_add_u32 v{VSA}, s{T}, v{VT+4}")
        p(f"v_lshrrev_b32 v{VT+4}, 3, v0\nv_lshlrev_b32 v{VT+4}, 13, v{VT+4}\nv_and_b32 v{VT+5}, 7, v0\nv_lshl_add_u32 v{VSA+2}, v{VT+5}, 4, v{VT+4}\nv_lshlrev_b32 v{VT+4}, 7, v0")
        p.wait(sttok)
        if "S" in c.sflag: self.sflags4(S_FSW)
        else: p(f"s_mov_b64 exec, 15\nbuffer_store_dword v{VTAG}, v{VT+4}, {s(R_WS,4)}, s{S_FSW} offen sc1\ns_mov_b64 exec, -1")
        self.stamp("flagS")
        if c.prio_b7 != c.prio_b6: p(f"s_setprio {c.prio_b7}")
        if c.fs_first: p(f"s_sleep {c.fs_first}")
        fs = self.flag_load("S", S_FSR, 16, VFL)
        self.flag_check(fs, VT, sleep=c.fs_sleep)
        self.stamp("fs", sets=(0, 2, 3))
        if c.prio_b8 != c.prio_b7: p(f"s_setprio {c.prio_b8}")
        SV = 64
        for j in range(2): p(f"buffer_load_dwordx4 {v(SV+4*j,4)}, v{VSA+2}, {s(R_WS,4)}, s{S_XO if j else S_STR} offen sc1")
        for j in range(2): p(f"ds_write2_b64 v{VSA}, {v(SV+4*j,2)}, {v(SV+4*j+2,2)} offset0:{72*j} offset1:{72*j+144}")
        self.lds_post(VONE, VTAG, 7)
        p("s_waitcnt lgkmcnt(0)")
        self.stamp("sready", sets=(0, 2, 3))
        self.stamp_flush(1)
        p("s_endpgm")

    def head_h(self):
        p, c = self.p, self.c
        p.label("L_helper")
        self.role_start()
        S_HH, S_X, S_Z, VT, XD = 64, 65, 72, 1, 16
        if c.prefetch_code and c.pf_h:
            p(f"s_sub_u32 s{S_X}, s{S_J}, 28\ns_lshl3_add_u32 s{S_X}, s{S_X}, s{S_WAVE}\ns_lshl_b32 s{S_X}, s{S_X}, 7\nv_lshlrev_b32 v255, 12, v0\ns_mov_b64 exec, 0x1ff")
            p(f"buffer_load_dword v255, v255, {s(R_PC,4)}, s{S_X} offen\ns_mov_b64 exec, -1")
        p(f"s_lshl2_add_u32 s{S_HH}, s{S_XCD}, s{S_J}\ns_sub_u32 s{S_HH}, s{S_HH}, 28\ns_lshl3_add_u32 s{S_Z}, s{S_HH}, s{S_WAVE}\ns_mul_i32 s{S_X}, s{S_Z}, {8*896}")
        p(f"v_lshrrev_b32 v{VT+2}, 3, v0\nv_mul_u32_u24 v{VT}, 896, v{VT+2}\nv_and_b32 v{VT+1}, 7, v0\nv_lshl_add_u32 v{VT}, v{VT+1}, 4, v{VT}")
        srd(p, R_LD, P_U, 2048 * 896)
        for i in range(7): p(f"buffer_load_dwordx4 {v(XD+4*i,4)}, v{VT}, {s(R_LD,4)}, s{S_X} offen offset:{128*i}")
        if c.h_near: p("s_branch L_bodyH")
    def role_h(self):
        p, c = self.p, self.c
        S_HH, S_X, S_Y, S_ONE, S_LO, S_HI, S_Q, S_CG, S_Z = range(64, 73)
        T = S_T
        VT, XD, WD, AC, CS, UP = 1, 16, 48, 80, 88, 96
        L_XN = 8192
        if c.h_near:
            if c.h_align: p(".p2align 12")
            p.label("L_bodyH"); p.reset()
            if c.prefetch_code: p.items.append(Marker("pending", ("vmem", {"v255"})))
            for i in range(7): p.items.append(Marker("pending", ("vmem", {f"v{XD+4*i+j}" for j in range(4)})))
        else: self.head_h()
        self.stamp_begin("H")
        self.load_epoch(); srd(p, R_2, P_W1, 448 * 3584); srd(p, R_PC, P_W2, 1792 * 896)
        p(f"s_lshr_b32 s{S_Q}, s{S_XCD}, 1\ns_lshl2_add_u32 s{S_Q}, s{S_Q}, s{S_J}\ns_sub_u32 s{S_Q}, s{S_Q}, 28\ns_and_b32 s{S_CG}, s{S_XCD}, 1\ns_mul_i32 s{S_CG}, s{S_CG}, 14\ns_add_u32 s{S_CG}, s{S_CG}, s{S_Q}")
        p(f"s_lshl_b32 s{T}, s{S_CG}, 7\ns_mul_i32 s{S_Y}, s{S_WAVE}, {56*3584}\ns_add_u32 s{S_Y}, s{S_Y}, s{T}\ns_cmp_ge_u32 s{S_Q}, 14\ns_cselect_b32 s{S_Y}, {448*3584}, s{S_Y}")
        p(f"v_mul_u32_u24 v{VT+3}, 3584, v{VT+2}\nv_lshl_add_u32 v{VT+3}, v{VT+1}, 4, v{VT+3}")
        p(f"s_mov_b32 s{S_ONE}, 0x3f803f80\ns_mov_b32 s{S_LO}, 0x00003f80\ns_mov_b32 s{S_HI}, 0x3f800000")
        p(f"s_lshl_b32 s{S_X}, s{S_Z}, 6\ns_add_u32 s{S_X}, s{S_X}, {WS_STAT}")
        p(f"s_mul_i32 s{T}, s{S_WAVE}, 7232\ns_add_u32 s{T}, s{T}, {L_XN}\nv_add_u32 v{VT}, s{T}, v{VT}")
        for i in range(4): p(f"v_mov_b32 v{AC+i}, 0")
        for k in range(8): p(f"v_mov_b32 v{CS+k}, 0")
        self.make_tag()
        def w1_loads():
            for i in range(7):
                p(f"buffer_load_dwordx4 {v(WD+4*i,4)}, v{VT+3}, {s(R_2,4)}, s{S_Y} offen")
                if i < 6: p(f"s_add_u32 s{S_Y}, s{S_Y}, {8*3584}")
        def touch():
            p(f"s_sub_u32 s{T}, s{S_J}, 28\ns_mul_i32 s{T}, s{T}, 7\ns_add_u32 s{T}, s{T}, s{S_WAVE}\ns_lshl3_add_u32 s{T}, s{T}, s{S_XCD}\ns_mul_i32 s{T}, s{T}, {8*896}\ns_cmp_eq_u32 s{S_WAVE}, 7\ns_cselect_b32 s{T}, {1792*896}, s{T}")
            p(f"v_min_u32 v120, 55, v0\nv_lshlrev_b32 v120, 7, v120\nbuffer_load_dword v121, v120, {s(R_PC,4)}, s{T} offen")
        if c.h_w1 == 0: w1_loads()
        if c.h_w1 == 1: p.items.append(Marker("need", XD + 27)); w1_loads()
        self.stamp("issued")
        for i in range(28):
            p(f"v_dot2_f32_bf16 v{AC+(i&1)}, v{XD+i}, s{S_ONE}, v{AC+(i&1)}\nv_dot2_f32_bf16 v{AC+2+(i&1)}, v{XD+i}, v{XD+i}, v{AC+2+(i&1)}")
        p(f"v_add_f32 v{AC}, v{AC}, v{AC+1}\nv_add_f32 v{AC+1}, v{AC+2}, v{AC+3}")
        for pat in ("quad_perm:[1,0,3,2]", "quad_perm:[2,3,0,1]", "row_half_mirror"):
            for k in range(2): p(f"v_add_f32_dpp v{AC+k}, v{AC+k}, v{AC+k} {pat} row_mask:0xf bank_mask:0xf")
        inv = 0x3b124925
        p(f"v_mul_f32 v{AC}, {inv}, v{AC}\nv_mul_f32 v{AC+1}, {inv}, v{AC+1}\nv_fma_f32 v{AC+1}, -v{AC}, v{AC}, v{AC+1}\nv_max_f32 v{AC+1}, 0, v{AC+1}")
        p(f"v_cvt_pk_bf16_f32 v{AC+1}, v{AC+1}, v{AC+1}\nv_and_b32 v{AC+1}, 0xffff0000, v{AC+1}\nv_add_f32 v{AC+1}, 0x3727c5ac, v{AC+1}")
        p(f"v_cvt_pk_bf16_f32 v{AC+1}, v{AC+1}, v{AC+1}\nv_and_b32 v{AC+1}, 0xffff0000, v{AC+1}\nv_sqrt_f32 v{AC+1}, v{AC+1}")
        p(f"v_mov_b32 v{AC+3}, s{S_TAG}\nv_cvt_pk_bf16_f32 v{AC+2}, v{AC}, v{AC+1}")
        p(f"s_mov_b32 exec_lo, 0x01010101\ns_mov_b32 exec_hi, 0x01010101\nbuffer_store_dwordx2 {v(AC+2,2)}, v0, {s(R_WS,4)}, s{S_X} offen sc1\ns_mov_b64 exec, -1")
        if c.h_w1 == 2: w1_loads()
        if c.h_touch == 0: touch()
        self.stamp("stats")
        p(f"v_and_b32 v{AC+4}, 0xffff0000, v{AC+2}\nv_rcp_f32 v{AC+4}, v{AC+4}\nv_lshlrev_b32 v{AC+6}, 16, v{AC+2}\nv_mov_b32 v{AC+5}, v{AC+4}\nv_mul_f32 v{AC+6}, -v{AC+6}, v{AC+4}\nv_mov_b32 v{AC+7}, v{AC+6}")
        for i in range(7):
            u = UP + 8 * (i & 1)
            for j in range(4): p(f"v_lshlrev_b32 v{u+2*j}, 16, v{XD+4*i+j}\nv_and_b32 v{u+2*j+1}, 0xffff0000, v{XD+4*i+j}")
            for j in range(4): p(f"v_pk_fma_f32 {v(u+2*j,2)}, {v(u+2*j,2)}, {v(AC+4,2)}, {v(AC+6,2)}")
            for j in range(4): p(f"v_cvt_pk_bf16_f32 v{XD+4*i+j}, v{u+2*j}, v{u+2*j+1}")
            p(f"ds_write_b128 v{VT}, {v(XD+4*i,4)} offset:{128*i}")
        if c.h_touch == 1: touch()
        self.stamp("norm")
        for i in range(7):
            for j in range(4):
                p(f"v_dot2_f32_bf16 v{CS+2*j}, v{WD+4*i+j}, s{S_LO}, v{CS+2*j}\nv_dot2_f32_bf16 v{CS+2*j+1}, v{WD+4*i+j}, s{S_HI}, v{CS+2*j+1}")
        for k in range(8): p(f"v_add_f32_dpp v{CS+k}, v{CS+k}, v{CS+k} row_ror:8 row_mask:0xf bank_mask:0xf")
        p(f"v_and_b32 v{VT+3}, 8, v0\nv_cmp_eq_u32 vcc, 0, v{VT+3}\nv_lshlrev_b32 v{VT+3}, 1, v{VT+3}\nv_lshl_add_u32 v{VT+3}, v{VT+1}, 5, v{VT+3}\nv_lshrrev_b32 v{VT+4}, 4, v0\nv_lshl_add_u32 v{VT+3}, v{VT+4}, 8, v{VT+3}")
        p(f"s_lshl_b32 s{T}, s{S_WAVE}, 10\nv_add_u32 v{VT+3}, s{T}, v{VT+3}")
        for k in range(4): p(f"v_cndmask_b32 v{CS+k}, v{CS+4+k}, v{CS+k}, vcc")
        p(f"ds_write_b128 v{VT+3}, {v(CS,4)}")
        p(f"s_lshl_b32 s{T}, s{S_WAVE}, 7\ns_add_u32 s{T}, s{T}, {L_XN}\nv_mul_u32_u24 v{VT}, 7232, v{VT+1}\nv_lshl_add_u32 v{VT}, v{VT+2}, 4, v{VT}\nv_add_u32 v{VT}, s{T}, v{VT}")
        p(f"v_lshlrev_b32 v{VT+2}, 15, v{VT+2}\nv_lshl_add_u32 v{VT+2}, v{VT+1}, 4, v{VT+2}\nv_lshlrev_b32 v{VT+4}, 7, v0")
        p(f"s_lshl_b32 s{S_X}, s{S_WAVE}, 11\ns_add_u32 s{S_X}, s{S_X}, s{S_HH}\ns_lshl_b32 s{S_X}, s{S_X}, 7\ns_add_u32 s{S_X}, s{S_X}, {WS_XT}")
        p(f"s_lshr_b32 s{T}, s{S_HH}, 3\ns_lshl2_add_u32 s{S_Y}, s{S_WAVE}, s{T}\ns_lshl_b32 s{S_Y}, s{S_Y}, 7\ns_and_b32 s{T}, s{S_HH}, 7\ns_add_u32 s{S_Y}, s{S_Y}, s{T}\ns_lshl2_add_u32 s{S_Y}, s{S_Y}, {WS_FX}")
        p(f"s_mov_b32 s{S_LO}, 0x05040100\ns_mov_b32 s{S_HI}, 0x07060302\ns_waitcnt lgkmcnt(0)\ns_barrier")
        self.stamp("bar")
        p(f"s_cmp_eq_u32 s{S_WAVE}, 7\ns_cbranch_scc1 L_h7")
        p.alt_begin()
        for j in range(8): p(f"ds_read_b128 {v(XD+4*j,4)}, v{VT} offset:{896*j}")
        if c.h_touch == 2: touch()
        for e in range(8):
            o = WD + 4 * e
            for j in range(4): p(f"v_perm_b32 v{o+j}, v{XD+4*(2*j+1)+(e>>1)}, v{XD+4*(2*j)+(e>>1)}, s{S_HI if e&1 else S_LO}")
            p(f"buffer_store_dwordx4 {v(o,4)}, v{VT+2}, {s(R_WS,4)}, s{S_X} offen sc1")
            if e < 7: p(f"s_add_u32 s{S_X}, s{S_X}, 4096")
        p("s_waitcnt vmcnt(0)")
        if "X" in c.sflag: self.sflags4(S_Y)
        else: p(f"s_mov_b64 exec, 15\nbuffer_store_dword v{AC+3}, v{VT+4}, {s(R_WS,4)}, s{S_Y} offen sc1\ns_mov_b64 exec, -1")
        p("s_branch L_hdone")
        p.alt_else()
        p.label("L_h7")
        p(f"s_setprio 3\ns_cmp_ge_u32 s{S_Q}, 14\ns_cbranch_scc1 L_hdone\nv_lshlrev_b32 v{VT+3}, 2, v0")
        for i in range(16): p(f"ds_read2st64_b32 {v(XD+2*i,2)}, v{VT+3} offset0:{2*i} offset1:{2*i+1}")
        for st in (16, 8, 4, 2):
            for i in range(0, st, 2): p(f"v_pk_add_f32 {v(XD+i,2)}, {v(XD+i,2)}, {v(XD+st+i,2)}")
        p(f"v_add_f32 v{AC+2}, v{XD}, v{XD+1}\nv_lshlrev_b32 v{VT+3}, 3, v0\ns_lshl_b32 s{T}, s{S_CG}, 9\ns_add_u32 s{T}, s{T}, {WS_CS}")
        p(f"buffer_store_dwordx2 {v(AC+2,2)}, v{VT+3}, {s(R_WS,4)}, s{T} offen sc1")
        p.alt_end()
        p.label("L_hdone")
        p("s_setprio 0\ns_waitcnt lgkmcnt(0)")
        self.stamp("done")
        p(f"v_min_u32 v{VT}, 55, v0\ns_sub_u32 s{S_Z}, s{S_J}, 28")
        if c.h_pf:
            p("s_barrier")
            p(f"s_mul_i32 s{T}, s{S_Z}, 7\ns_add_u32 s{T}, s{T}, s{S_WAVE}\ns_mul_i32 s{T}, s{T}, {64*896}\ns_cmp_eq_u32 s{S_WAVE}, 7\ns_cselect_b32 s{T}, {1792*896}, s{T}\nv_lshlrev_b32 v{VT+1}, 7, v{VT}")
            for st in c.h_pf:
                for h in range(2):
                    p(f"s_add_u32 s{T+1}, s{T}, {(16*st+8*h)*896}\nbuffer_load_dword v{VT+2}, v{VT+1}, {s(R_PC,4)}, s{T+1} offen")
        self.stamp("pfw")
        if c.h_act:
            p(f"s_lshr_b32 s{T}, s{S_WAVE}, 2\ns_mul_i32 s{T}, s{T}, 56\nv_add_u32 v{VT}, s{T}, v{VT}\nv_lshrrev_b32 v{VT+1}, 4, v{VT}\nv_lshlrev_b32 v{VT+1}, 13, v{VT+1}\nv_and_b32 v{VT}, 15, v{VT}\nv_lshl_add_u32 v{VT+1}, v{VT}, 7, v{VT+1}")
            p(f"s_and_b32 s{T}, s{S_WAVE}, 3\ns_lshl2_add_u32 s{S_X}, s{S_HH}, s{T}\ns_mul_i32 s{S_X}, s{S_X}, {28*2048}\ns_add_u32 s{S_X}, s{S_X}, {WS_ACT}")
            p(f"s_lshl4_add_u32 s{S_Y}, s{S_HH}, s{T}\ns_lshl_b32 s{S_Y}, s{S_Y}, 7\ns_add_u32 s{S_Y}, s{S_Y}, {WS_FA}")
            for st in c.h_act:
                p(f"s_add_u32 s{S_LO}, s{S_Y}, {512*st}\ns_add_u32 s{S_HI}, s{S_X}, {2048*st}")
                self.flag_check(self.flag_load("H", S_LO, 7, None), None, sleep=c.h_sleep)
                p(f"buffer_load_dword v{VT+2}, v{VT+1}, {s(R_WS,4)}, s{S_HI} offen sc1")
                self.stamp(f"pa{st}")
        p(f"s_waitcnt vmcnt(0)")
        self.stamp("pfa")
        p(f"s_cmp_lg_u32 s{S_HH}, 31\ns_cbranch_scc1 L_hend\ns_cmp_lg_u32 s{S_WAVE}, 7\ns_cbranch_scc1 L_hend")
        p(f"v_lshrrev_b32 v{VT}, 2, v0\nv_min_u32 v{VT}, 13, v{VT}\nv_lshlrev_b32 v{VT}, 9, v{VT}\nv_and_b32 v{VT+1}, 3, v0\nv_lshl_add_u32 v{VT}, v{VT+1}, 4, v{VT}\ns_mov_b32 s{S_X}, {WS_FS}")
        ld = f"s_sleep 8\nbuffer_load_dwordx4 {v(XD,4)}, v{VT}, {s(R_WS,4)}, s{S_X} offen sc1"
        p(ld)
        self.tagged_check(ld, [XD, XD + 1, XD + 2, XD + 3], VT + 2)
        p(f"s_mov_b32 s{S_X}, {WS_EPOCH}")
        self.flag_store(S_X, AC + 3)
        p.label("L_hend")
        self.stamp_flush(1)
        p("s_endpgm")

    def layout(self, body):
        c = self.c
        lines = body.split("\n")
        sizes = instr_sizes([re.sub(r"L_hop\d", "L_bodyA", l) for l in lines])
        end = lines.index("L_bodyH:") if c.h_near else lines.index("L_helper:")
        out, addr, page, k = [], 0, 1, 0
        prom = None
        fixed = [0, 0]
        for i, l in enumerate(lines):
            t = l.strip()
            if t.startswith(".p2align"):
                al = 1 << int(t.split()[1]); addr = (addr + al - 1) // al * al; prom = None
            if c.hops and sizes[i] and addr >= 4096 * page and i < end:
                out += [f"L_hop{k}:", f"    s_cbranch_execz {'L_bodyA' if k == 0 else 'HOP%d' % (k + 4)}"]; addr += 4; page += 1; k += 1; prom = None
            if c.align8 and sizes[i] == 8 and addr % 8 == 4:
                run, pend, valu = 0, 0, 0
                for j in range(i, min(len(lines), i + 60)):
                    if sizes[j] == 4: pend ^= 1
                    elif sizes[j] == 8:
                        if pend: break
                        run += 1; valu += lines[j].strip().startswith("v_") and "mfma" not in lines[j]
                if prom is not None and run >= 2:
                    m = re.match(r"(\s*)(v_\w+)(.*)", out[prom]); out[prom] = m.group(1) + m.group(2) + "_e64" + m.group(3); addr += 4; fixed[0] += 1
                elif valu >= c.align8:
                    out.append("    s_nop 0"); addr += 4; fixed[1] += 1
            if sizes[i] == 8: prom = None
            elif sizes[i] == 4 and re.match(r"v_(mov|add|sub|subrev|mul|and|or|xor|lshlrev|lshrrev|exp|rcp|sin|cos|fract|min|max|cvt|sqrt)_", t): prom = len(out)
            out.append(l); addr += sizes[i]
        body = "\n".join(out)
        if c.hops:
            assert c.align4k and k >= 5
            for j in range(k + 3, 4, -1): body = body.replace(f"HOP{j}", f"L_hop{j}" if j < k else "L_hopped")
        self.p.stats["align"] = fixed
        return body
    def build(self):
        p = self.p
        self.entry()
        self.role_a(); self.role_h()
        p.reset()
        p.label("L_exit")
        p("s_endpgm")
        p(".p2align 7")
        p(".type L_gtab,@object")
        p.label("L_gtab")
        w = self.gather_table()
        for i in range(0, len(w), 8): p(".long " + ", ".join(hex(x) for x in w[i:i+8]))
        p.label("L_end")
        body = p.resolve()
        head = open("recurrent_scan__ssm_conv_s4__dense_activation_mish__prompt.s.ref").read().split("; Override launch")[0]
        txt = head + f"; @launch grid=(256,1,1) block=(512,1,1) lds={LDS_BYTES}\n"
        pad = ".p2align 12\n.fill 832, 4, 0xbf810000\n" if self.c.align4k else ""
        txt += f'.amdgcn_target "amdgcn-amd-amdhsa--gfx950"\n.text\n{pad}.globl {KNAME}\n.p2align 8\n.type {KNAME},@function\n{KNAME}:\n'
        if "m" in self.c.diag or "n" in self.c.diag:
            cnt = [0]
            def sub(m):
                cnt[0] += 1
                k = (cnt[0] - 1) // 4
                if ("m" if k < 28 else "n") not in self.c.diag: return m.group(0)
                a = int(m.group(1)) + 8 * (k & 1); z = k % 28 < 2
                return "\n".join(f"    v_mfma_f32_16x16x32_bf16 v[{a+4*i}:{a+4*i+3}], {m.group(2)}, {m.group(3)}, " + ("0" if z else f"v[{a+4*i}:{a+4*i+3}]") for i in range(2))
            body = re.sub(r"    v_mfma_f32_32x32x16_bf16 v\[(\d+):\d+\], (v\[\d+:\d+\]), (v\[\d+:\d+\]), \S+", sub, body)
        body = self.layout(body)
        txt += body
        txt += f""".section .rodata,"a"
.p2align 6
.amdhsa_kernel {KNAME}
  .amdhsa_next_free_vgpr 256
  .amdhsa_next_free_sgpr 102
  .amdhsa_accum_offset 256
  .amdhsa_group_segment_fixed_size 0
  .amdhsa_kernarg_size 128
  .amdhsa_user_sgpr_count 2
  .amdhsa_user_sgpr_kernarg_segment_ptr 1
  .amdhsa_system_sgpr_workgroup_id_x 1
.end_amdhsa_kernel
"""
        return txt

def parse_cfg(args):
    kw = {}
    for a in args:
        k, x = a.split("=")
        kw[k] = eval(x)
    return Cfg(**kw)

if __name__ == "__main__":
    out = sys.argv[1]
    g = Gen(parse_cfg(sys.argv[2:]))
    txt = g.build()
    open(out, "w").write(txt)
    import json
    json.dump(g.stamp_names, open(out + ".stamps.json", "w"))
    print(out, g.p.stats)
```

```python
import sys, re
from asmgen import *

KNAME = "recurrent_scan__ssm_conv_s4__dense_activation_mish__prompt_kernel"

class Cfg:
    stamps = False
    sset = 0
    cyc = False
    probe = None
    prefetch_code = True
    pf_h = False
    align4k = True
    align8 = 6
    hops = True
    mapP = False
    rot2 = 0
    qperm = False
    g2_mix = True
    act_st = 'sc1'
    act_ld = 'sc1'
    fa_st = 'sc1'
    mish_pk = False
    sflag = 'XAS'
    spoll = 'XASH'
    adepth = 7
    flead = 6
    pre_dma = 32
    nfirst = 8
    a_delay = 0
    a_chunks = 4
    dma_per = (8, 8, 8, 8, 8, 8, 8)
    gran_at = 5
    bw2 = (8, 12, 16, 16)
    w2_mish = 0
    fx_ld = 9
    fx_chk = 29
    u_at = 1
    lds_cut = (0, 0, 0, 0, 0, 0, 0)
    r_early = 4
    r_at = 4
    r2 = 8
    nx = 2
    b7_at = -3
    br0 = 0
    late6 = True
    band_at = 3
    out_fl = 'nt'
    mish_skip = 0.0
    w2_lead = 9
    w2_rate = 0.0
    w2_gap = 2
    rdepth = 3
    fstages = (3,)
    cstages = None
    flag_lag = 2
    gt_at = 2
    b_pre = 1.0
    kg_pre = 9999
    kg_ints = 4
    kg_x = 0.0
    h_w1 = 2
    h_touch = -1
    s_touch = (7, 14, 14, 14, 14)
    h_near = True
    h_align = True
    h_pf = ()
    diag = ''
    jitter = 0
    h_act = ()
    h_sleep = 4
    rot1 = 0
    fs_sleep = 3
    b_xat = 0
    prio_b = 1
    prio_b2 = 0
    prio_b3 = 1
    prio_b4 = 1
    prio_b5 = 1
    prio_b6 = 0
    prio_b7 = 0
    prio_b8 = 1
    prio_a1 = 2
    prio_a2 = 0
    tail_m = 5
    tail_ld = True
    tail_k = 3
    tail_r = None
    fin_at = (1, 2, 3, 21)
    prio_b9 = 0
    b5_sleep = 1
    pre_loop = 'R12 D20 W F D26 L C A8'
    dma_fl = ''
    def __init__(self, **kw):
        for k, x in kw.items():
            assert hasattr(self, k), k
            setattr(self, k, x)

WS_EPOCH, WS_FX, WS_FA, WS_FS = 0, 0x1000, 0x20000, 0x8000
WS_STAT, WS_CS, WS_XT, WS_ST, WS_ACT, WS_DBG = 0x10000, 0x14000, 0x40000, 0x200000, 0x600000, 0xE00000
WS_SIZE = 0x1000000
TAGC = 0x9E3779B1
SLOT = 32768
L_RING = 2 * SLOT
L_STG = 0
L_TAB = 512
TCP, TCH = 2240, 9472
L_EX = 0
L_RAW = SLOT + 1024
L_U = L_TAB + 2 * TCH
L_X = L_RAW
L_STR = L_RAW + 21504
L_CNT = L_RAW + 30720
LDS_BYTES = 163840
P_U, P_ARE, P_AIM, P_BRE, P_BIM, P_CRE, P_CIM, P_LDT = 4, 6, 8, 10, 12, 14, 16, 18
P_DSK, P_BX, P_W1, P_B1, P_W2, P_OUT, P_DBG, P_WS = 20, 22, 24, 26, 28, 30, 32, 34
R_LD, R_2, R_WS, R_PC = 36, 40, 44, 48
S_TAG, S_TAG2, S_WAVE, S_XCD, S_J, S_RT, S_CT, S_CP = 52, 53, 54, 55, 56, 57, 58, 97
S_SOFF, S_CSTR, S_LDB, S_CW, S_WT, S_WF = range(64, 70)
VD = 1
B_BW, B_LDT, B_DSK, B_STW, B_VP = 70, 71, 72, 73, 10
S_R2, S_C2 = 60, 61
S_T = 62
S_SP = 80
S_JR, S_XF = 3, 59
S_CNT = 96
S_T0 = 98
LOG2E = 0x3fb8aa3b
POLL_MAX = 1 << 17

DOC = """;
; Hand-offs go through d_ws with write-through stores; flags and tagged words hold a value derived from an epoch word in d_ws,
"""

def srd(p, r, ptr, size):
    p(f"s_mov_b32 s{r}, s{ptr}\ns_mov_b32 s{r+1}, s{ptr+1}\ns_mov_b32 s{r+2}, {size}\ns_mov_b32 s{r+3}, 0x20000")

class Gen:
    def __init__(self, cfg):
        self.c = cfg
        self.p = Prog()
        self.nlab = 0
        self.stamp_names = {}
    def lab(self, base):
        self.nlab += 1
        return f"L_{base}_{self.nlab}"

    def stamp_begin(self, role):
        self.role = role; self.stamp_names[role] = []
    def stamp(self, name, p=None, sets=(0,)):
        if self.c.jitter:
            q = p or self.p; l = self.lab("jit"); k = self.nlab * 40503 + self.c.jitter * 9176
            q(f"s_lshl3_add_u32 s100, s2, s{S_WAVE}\ns_add_u32 s100, s100, {k & 0xffff}\ns_mul_i32 s100, s100, 0x9E3779B1\ns_add_u32 s100, s100, s{S_TAG}\ns_mul_i32 s100, s100, 0x85EBCA6B\ns_lshr_b32 s100, s100, 29\ns_cmp_lg_u32 s100, 0\ns_cbranch_scc1 {l}\ns_sleep {(20, 60, 120)[self.nlab % 3]}")
            q.label(l)
        if self.c.probe == (self.role, name): (p or self.p)("s_memrealtime s[100:101]")
        if not self.c.stamps or self.c.sset not in sets: return
        p = p or self.p
        n = len(self.stamp_names[self.role]); assert n < 15
        self.stamp_names[self.role].append(name)
        p(f"{'s_memtime' if self.c.cyc else 's_memrealtime'} {s(4+2*n, 2)}")
    def stamp_flush(self, vt):
        if self.c.probe and self.c.probe[0] == self.role:
            l0 = self.lab("probe")
            self.p("s_waitcnt vmcnt(0) lgkmcnt(0)")
            self.p.label(l0)
            self.p(f"s_memrealtime s[98:99]\ns_waitcnt lgkmcnt(0)\ns_sub_u32 s98, s98, s100\ns_cmp_lt_u32 s98, 6000\ns_cbranch_scc1 {l0}")
        if not self.c.stamps: return
        p = self.p
        n = len(self.stamp_names[self.role])
        p("s_waitcnt vmcnt(0) lgkmcnt(0)\ns_mov_b64 exec, 1")
        p(f"s_lshl_b32 s{S_T}, s2, 3\ns_add_u32 s{S_T}, s{S_T}, s{S_WAVE}\ns_lshl_b32 s{S_T}, s{S_T}, 6\ns_add_u32 s{S_T}, s{S_T}, {WS_DBG}")
        p(f"v_mov_b32 v{vt}, s{S_T0}\nbuffer_store_dword v{vt}, off, {s(R_WS,4)}, s{S_T}")
        for i in range(n):
            p(f"v_mov_b32 v{vt+1+(i&1)}, s{4+2*i}\nbuffer_store_dword v{vt+1+(i&1)}, off, {s(R_WS,4)}, s{S_T} offset:{4+4*i}")
        p("s_waitcnt vmcnt(0)")

    def flag_store(self, soff, vt):
        p = self.p
        p(f"s_mov_b64 exec, 1\nbuffer_store_dword v{vt}, off, {s(R_WS,4)}, s{soff} sc1\ns_mov_b64 exec, -1")
    def sflags4(self, soff):
        for i in range(4):
            self.p(f"s_atomic_swap s{S_TAG}, {s(R_WS,2)}, s{soff}")
            if i < 3: self.p(f"s_add_u32 s{soff}, s{soff}, 128")
    def lds_post(self, vown, vtag, k):
        self.p(f"s_mov_b64 exec, 1\nds_write_b32 v{vown}, v{vtag} offset:{16*k}\ns_mov_b64 exec, -1")
    def lds_wait(self, vaddr, vt, k, sleep=0):
        p = self.p
        l0, l1 = self.lab("spin"), self.lab("spun")
        p(f"s_mov_b32 s{S_CNT}, 0")
        p.label(l0)
        if sleep: p(f"s_sleep {sleep}")
        p(f"ds_read_b32 v{vt}, v{vaddr} offset:{16*k}\ns_add_u32 s{S_CNT}, s{S_CNT}, 1\ns_cmp_gt_u32 s{S_CNT}, {POLL_MAX*8}\ns_waitcnt lgkmcnt(0)")
        p(f"v_cmp_ne_u32 vcc, s{S_TAG}, v{vt}\ns_cbranch_scc1 {l1}\ns_cbranch_vccnz {l0}")
        p.label(l1)
    def lds_peek(self, vaddr, vt, k):
        self.p(f"ds_read_b32 v{vt}, v{vaddr} offset:{16*k}")
    def lds_check(self, vaddr, vt, k, fill=None):
        p = self.p
        l1 = self.lab("pass")
        p(f"v_cmp_ne_u32 vcc, s{S_TAG}, v{vt}")
        if fill: fill()
        p(f"s_cbranch_vccz {l1}")
        p.alt_begin(); self.lds_wait(vaddr, vt, k); p.alt_end()
        p.label(l1)
    def tagged_check(self, loads, tagregs, vt, on_miss=None):
        p = self.p
        l0, l1 = self.lab("chk"), self.lab("chkd")
        p(f"s_mov_b32 s{S_CNT}, 0")
        for r in reversed(tagregs): p.items.append(Marker("need", r))
        p.label(l0)
        p(f"v_xor_b32 v{vt}, s{S_TAG}, v{tagregs[0]}")
        for r in tagregs[1:]:
            p(f"v_bitop3_b32 v{vt}, v{r}, s{S_TAG}, v{vt} bitop3:0xbe")
        p(f"v_cmp_ne_u32 vcc, 0, v{vt}\ns_add_u32 s{S_CNT}, s{S_CNT}, 1\ns_cbranch_vccz {l1}")
        p(f"s_cmp_gt_u32 s{S_CNT}, {POLL_MAX}\ns_cbranch_scc1 {l1}")
        p.alt_begin()
        if on_miss:
            l3 = self.lab("again")
            p(f"s_cmp_lg_u32 s{S_CNT}, 1\ns_cbranch_scc1 {l3}")
            p.alt_begin(); on_miss(); p.alt_end()
            p.label(l3)
        p(loads)
        p(f"s_waitcnt vmcnt(0)\ns_branch {l0}")
        p.alt_end()
        p.label(l1)

    def entry(self):
        p, c = self.p, self.c
        T = S_T
        p(f"s_load_dwordx16 s[4:19], s[0:1], 0\ns_load_dwordx16 s[20:35], s[0:1], 64")
        p(f"s_cmp_ge_u32 s2, 256\ns_cbranch_scc1 L_exit")
        if c.stamps: p(f"{'s_memtime' if c.cyc else 's_memrealtime'} {s(S_T0,2)}")
        if c.probe and c.probe[1] == "start": p("s_memrealtime s[100:101]")
        if "k" in c.diag: p("s_waitcnt lgkmcnt(0)\ns_memtime s[100:101]")
        p(f"v_lshrrev_b32 v1, 6, v0\nv_and_b32 v0, 63, v0\nv_readfirstlane_b32 s{S_WAVE}, v1")
        p(f"s_and_b32 s{S_XCD}, s2, 7\ns_lshr_b32 s{S_J}, s2, 3")
        p(f"s_getpc_b64 {s(R_PC,2)}")
        p.label("L_pc")
        p(f"s_mov_b32 s{R_PC+2}, L_end-L_pc\ns_mov_b32 s{R_PC+3}, 0x20000")
        if c.prefetch_code and not c.pf_h:
            p(f"s_lshl3_add_u32 s{T}, s{S_J}, s{S_WAVE}\ns_lshl_b32 s{T}, s{T}, 7")
            p(f"buffer_load_dword v255, off, {s(R_PC,4)}, s{T}")
        p(f"s_mov_b32 s{R_WS+2}, {WS_SIZE}\ns_mov_b32 s{R_WS+3}, 0x20000")
        p(f"s_cmp_ge_u32 s{S_J}, 28\ns_cbranch_scc1 L_helper")
        p(f"s_mul_i32 s{S_JR}, s{S_J}, 37\ns_lshr_b32 s{S_JR}, s{S_JR}, 8\ns_mul_i32 s{T}, s{S_JR}, 7\ns_sub_u32 s{S_C2}, s{S_J}, s{T}")
        if c.mapP: p(f"s_lshr_b32 s{S_RT}, s{S_JR}, 1\ns_lshl1_add_u32 s{S_RT}, s{S_XCD}, s{S_RT}\ns_and_b32 s{S_XF}, s{S_JR}, 1")
        else: p(f"s_lshr_b32 s{S_RT}, s{S_XCD}, 1\ns_lshl2_add_u32 s{S_RT}, s{S_RT}, s{S_JR}\ns_and_b32 s{S_XF}, s{S_XCD}, 1")
        p(f"s_cmp_lt_u32 s{S_WAVE}, 4\ns_cbranch_scc1 L_common")
        p.alt_begin()
        if c.prio_b: p(f"s_setprio {c.prio_b}")
        p(f"s_sub_u32 s{B_BW}, s{S_WAVE}, 4\ns_mul_i32 s{S_CP}, s{S_XCD}, 28\ns_add_u32 s{S_CP}, s{S_CP}, s{S_J}\ns_lshl_b32 s{T}, s{S_CP}, 2")
        p(f"s_add_u32 s{B_STW}, s{T}, s{B_BW}\ns_lshl_b32 s{B_STW}, s{B_STW}, 8\nv_lshl_add_u32 v50, v0, 2, s{B_STW}")
        p(f"s_load_dword s{B_LDT}, {s(P_LDT,2)}, s{T}")
        for i, ptr in enumerate((P_ARE, P_AIM, P_BRE, P_BIM, P_CRE, P_CIM)):
            p(f"global_load_dword v{B_VP+i}, v50, {s(ptr,2)}")
        p(f"s_load_dword s{B_DSK}, {s(P_DSK,2)}, s{T}")
        if c.prio_b != c.prio_b2: p(f"s_setprio {c.prio_b2}")
        p.alt_end()
        p.label("L_common")
        VT, S_X, S_Y = 24, 78, 79
        p(f"s_and_b32 s{S_WT}, s{S_WAVE}, 1\ns_bfe_u32 s{S_WF}, s{S_WAVE}, 0x10001\ns_mul_i32 s{S_CT}, s{S_XF}, 7\ns_add_u32 s{S_CT}, s{S_CT}, s{S_C2}")
        p(f"s_lshl1_add_u32 s{T}, s{S_RT}, s{S_WF}\ns_mul_i32 s{T}, s{T}, {64*896}")
        p(f"s_mul_i32 s{T+1}, s{S_WF}, {32*14}\ns_add_u32 s{T+1}, s{T+1}, s{S_CT}\ns_lshl_b32 s{T+1}, s{T+1}, 8")
        p(f"s_lshl1_add_u32 s{S_LDB}, s{S_WT}, s{S_WF}\ns_lshl_b32 s{S_LDB}, s{S_LDB}, 13")
        p(f"s_add_u32 s{S_X}, s{S_WT}, 3\nv_lshrrev_b32 v{VT}, s{S_X}, v0\ns_lshl_b32 s{S_X}, s{S_WT}, 1\nv_lshrrev_b32 v{VT+1}, 4, v0\nv_lshlrev_b32 v{VT+1}, s{S_X}, v{VT+1}")
        p(f"s_lshl_b32 s{S_Y}, 896, s{S_X}\nv_xor_b32 v{VT+1}, v0, v{VT+1}\nv_mul_u32_u24 v{VT}, s{S_Y}, v{VT}")
        p(f"s_cmp_eq_u32 s{S_WT}, 0")
        p(f"s_cselect_b32 s{S_SOFF}, s{T}, s{T+1}\ns_cselect_b32 s{S_CSTR}, 1, {64*28}\ns_cselect_b32 s{S_X}, 7, 15\ns_cselect_b32 s{S_Y}, 64, 0\ns_cselect_b32 s{R_LD+2}, 8, 7")
        p(f"v_and_b32 v{VT+1}, s{S_X}, v{VT+1}\nv_lshl_add_u32 v{VD}, v{VT+1}, 4, v{VT}\nv_xor_b32 v{VD+1}, s{S_Y}, v{VD}")
        p(f"s_lshl_b32 s{S_CSTR}, s{S_CSTR}, 7")
        if c.rot1: p(f"s_mul_i32 s{T}, s{S_C2}, s{S_CSTR}\ns_add_u32 s{S_SOFF}, s{S_SOFF}, s{T}\ns_mul_i32 s{S_CW}, s{S_CSTR}, 7")
        p(f"s_mul_i32 s{R_LD+2}, s{R_LD+2}, {256*896}\ns_mov_b32 s{R_LD+3}, 0x20000\ns_lshl_b32 s{S_Y}, 7168, s{S_WT}")
        p(f"s_sub_u32 s{T}, s{S_Y}, 1024\nv_add_u32 v{VD+1}, s{T}, v{VD+1}\ns_lshl_b32 s{T}, s{T}, 1")
        p(f"v_add_u32 v{VD+2}, s{T}, v{VD}\nv_add_u32 v{VD+3}, s{T}, v{VD+1}\ns_lshl_b32 s{T}, s{S_Y}, 2")
        for i in range(4): p(f"v_add_u32 v{VD+4+i}, s{T}, v{VD+i}")
        p(f"s_cmp_ge_u32 s{S_WAVE}, 4\ns_cbranch_scc1 L_roleB")
    def loader_base(self):
        self.p(f"s_cmp_eq_u32 s{S_WT}, 0\ns_cselect_b32 s{R_LD}, s{P_U}, s{P_W1}\ns_cselect_b32 s{R_LD+1}, s{P_U+1}, s{P_W1+1}")
    def dma_chunk(self, n, T, ctok):
        r = []
        for i in range(8):
            q = Prog()
            if i % 4 == 0: q(f"s_add_u32 m0, s{S_LDB}, {(3, 4, 1, 2)[n % 4]*SLOT + (i//4)*4096}")
            ctok[n] = q.tok(f"buffer_load_dwordx4 v{VD+i}, {s(R_LD,4)}, s{S_SOFF} offen offset:{(i%4)*1024} lds")
            if i == 7 and n < 6:
                q(f"s_add_u32 s{S_SOFF}, s{S_SOFF}, s{S_CSTR}")
                if self.c.rot1: q(f"s_cmp_eq_u32 s{S_C2}, {6-n}\ns_cselect_b32 s{T}, s{S_CW}, 0\ns_sub_u32 s{S_SOFF}, s{S_SOFF}, s{T}")
            r.append(q.items)
        return r
    def role_start(self, b=False):
        p = self.p
        p.reset()
        if self.c.prefetch_code and not self.c.pf_h: p.items.append(Marker("pending", ("vmem", {"v255"})))
        if b:
            p.items.append(Marker("pending", ("smem", {f"s{B_LDT}", f"s{B_DSK}"})))
            for i in range(6): p.items.append(Marker("pending", ("vmem", {f"v{B_VP+i}"})))
        else:
            p.items.append(Marker("pending", ("smem", {f"s{i}" for i in range(4, 36)})))
    def load_epoch(self):
        self.p(f"s_load_dword s{S_TAG}, {s(P_WS,2)}, {WS_EPOCH}\ns_mov_b32 s{R_WS}, s{P_WS}\ns_mov_b32 s{R_WS+1}, s{P_WS+1}")
    def make_tag(self):
        self.p(f"s_add_u32 s{S_TAG}, s{S_TAG}, {TAGC}\ns_mov_b32 s{S_TAG2}, s{S_TAG}")
    def flag_load(self, which, soff, n, va, q=None):
        if which in self.c.spoll:
            w = 8 if n <= 8 else 16
            txt = f"s_buffer_load_dwordx{w} {s(S_SP,w)}, {s(R_WS,4)}, s{soff} glc"
        else:
            txt = f"buffer_load_dword v{va+1}, v{va}, {s(R_WS,4)}, s{soff} offen sc1"
        (q or self.p)(txt)
        return (which, txt, n, va)
    def flag_check(self, fl, vt, sleep=0, on_miss=None):
        which, txt, n, va = fl
        p = self.p
        if sleep: txt = f"s_sleep {sleep}\n" + txt
        if which not in self.c.spoll:
            return self.tagged_check(txt, [va + 1], vt, on_miss)
        l0, l1, l2 = self.lab("chk"), self.lab("retry"), self.lab("chkd")
        p(f"s_mov_b32 s{S_CNT}, 0")
        p.label(l0)
        p("s_waitcnt lgkmcnt(0)")
        for i in range(0, n - 2, 2): p(f"s_cmp_eq_u64 {s(S_SP+i,2)}, {s(S_TAG,2)}\ns_cbranch_scc0 {l1}")
        if n & 1: p(f"s_cmp_eq_u32 s{S_SP+n-1}, s{S_TAG}\ns_cbranch_scc1 {l2}")
        else: p(f"s_cmp_eq_u64 {s(S_SP+n-2,2)}, {s(S_TAG,2)}\ns_cbranch_scc1 {l2}")
        p.alt_begin()
        p.label(l1)
        if on_miss:
            l3 = self.lab("again")
            p(f"s_cmp_lg_u32 s{S_CNT}, 0\ns_cbranch_scc1 {l3}")
            p.alt_begin(); on_miss(); p.alt_end()
            p.label(l3)
        p(txt)
        p(f"s_add_u32 s{S_CNT}, s{S_CNT}, 1\ns_cmp_le_u32 s{S_CNT}, {POLL_MAX}\ns_cbranch_scc1 {l0}\ns_waitcnt lgkmcnt(0)")
        p.alt_end()
        p.label(l2)

    def fin_addr(self, ps, F, part):
        p, VT, T = self.p, F["VT"], S_T
        if part == 0:
            p(f"v_bfe_u32 v{VT+1}, v0, 2, 1\nv_lshrrev_b32 v{VT+2}, 3, v0\nv_and_b32 v{VT+3}, 3, v0\nv_lshl_add_u32 v{VT+4}, v{VT+1}, 4, v{VT+2}")
            p(f"v_mul_u32_u24 v{F['XO']}, 896, v{VT+4}\nv_lshl_add_u32 v{F['XO']}, v{VT+3}, 4, v{F['XO']}\nv_lshlrev_b32 v{F['STA']}, 3, v{VT+4}")
            a = F["PA"]
            p(f"v_xor_b32 v{a}, s{S_WF}, v{VT+1}\nv_lshlrev_b32 v{a}, 3, v{a}\nv_lshl_add_u32 v{a}, v{VT+3}, 1, v{a}\nv_xor_b32 v{a}, v{a}, v{VT+2}")
            p(f"s_lshl3_add_u32 s{T}, s{S_WT}, {(L_RING+ps*SLOT)//256}\nv_add_u32 v{VT+4}, s{T}, v{VT+4}\nv_lshlrev_b32 v{VT+4}, 8, v{VT+4}\nv_lshl_add_u32 v{a}, v{a}, 4, v{VT+4}\nv_xor_b32 v{a+1}, 16, v{a}")
        else:
            p(f"s_mul_i32 s{T}, s{F['w']}, 2304\ns_add_u32 s{T}, s{T}, {L_STR+1152*ps}\nv_mul_u32_u24 v{F['SA']}, 288, v{VT+3}\nv_and_b32 v{VT+4}, 60, v0\nv_add3_u32 v{F['SA']}, v{F['SA']}, v{VT+4}, s{T}")
            x, t = F["sXO"], F["sST"]
            p(f"s_lshl3_add_u32 s{x}, s{S_R2}, s{S_WT}\ns_add_u32 s{x}, s{x}, {4*ps}\ns_lshl_b32 s{t}, s{x}, 6\ns_add_u32 s{t}, s{t}, {WS_STAT}\ns_mul_i32 s{x}, s{x}, {8*896}\ns_lshl1_add_u32 s{T}, s{S_C2}, s{S_WF}\ns_lshl_b32 s{T}, s{T}, 6\ns_add_u32 s{x}, s{x}, s{T}")
    def fin_loads(self, F):
        self.p(f"buffer_load_dword v{F['RG']}, v{F['STA']}, {s(R_WS,4)}, s{F['sST']} offen sc1\nbuffer_load_dwordx4 {v(F['XI'],4)}, v{F['XO']}, {s(R_LD,4)}, s{F['sXO']} offen")
    def fin_prep(self, F):
        q = Prog(); r, c_, x = F["RG"], F["RC"], F["XF"]
        q(f"v_and_b32 v{r}, 0xffff0000, v{r}\nv_rcp_f32 v{r}, v{r}")
        for j in range(4): q(f"v_lshlrev_b32 v{x+2*j}, 16, v{F['XI']+j}\nv_and_b32 v{x+2*j+1}, 0xffff0000, v{F['XI']+j}")
        q(f"v_mul_f32 v{c_}, {LOG2E | 0x80000000}, v{r}\nv_mul_f32 v{c_+1}, {LOG2E | 0x80000000}, v{r}")
        return q.items
    def fin_sread(self, F):
        for i in range(4): self.p(f"ds_read_b32 v{F['SV']+i}, v{F['SA']} offset:{64*i}")
    def fin_sprep(self, F):
        q = Prog(); f = F["SF"]
        for i in range(4): q(f"v_lshlrev_b32 v{f+2*i}, 16, v{F['SV']+i}\nv_and_b32 v{f+2*i+1}, 0xffff0000, v{F['SV']+i}")
        for i in range(8): q(f"v_mul_f32 v{f+i}, v{f+i}, v{F['RG']}")
        return q.items
    def fin_out(self, F, fill=()):
        p, b = self.p, F["PV"]
        for w in range(4):
            for e in range(2): p(f"ds_read_b128 {v(b+8*w+4*e,4)}, v{F['PA']+e} offset:{8192*w}")
        p.extend(list(fill))
        for i in range(0, 8, 2): p(f"v_pk_add_f32 {v(b+i,2)}, {v(b+i,2)}, {v(b+8+i,2)}")
        for i in range(0, 8, 2): p(f"v_pk_add_f32 {v(b+16+i,2)}, {v(b+16+i,2)}, {v(b+24+i,2)}")
        for i in range(0, 8, 2): p(f"v_pk_add_f32 {v(b+i,2)}, {v(b+i,2)}, {v(b+16+i,2)}")
        for i in range(0, 8, 2): p(f"v_pk_mul_f32 {v(b+8+i,2)}, {v(b+i,2)}, {v(F['RC'],2)}")
        for i in range(8): p(f"v_exp_f32 v{b+8+i}, v{b+8+i}")
        for i in range(0, 8, 2): p(f"v_pk_mul_f32 {v(b+i,2)}, {v(b+i,2)}, {v(F['SF']+i,2)}")
        for i in range(0, 8, 2): p(f"v_pk_add_f32 {v(b+8+i,2)}, {v(b+8+i,2)}, 1.0 op_sel_hi:[1,0]")
        for i in range(8): p(f"v_rcp_f32 v{b+8+i}, v{b+8+i}")
        for i in range(0, 8, 2): p(f"v_pk_fma_f32 {v(b+i,2)}, {v(b+i,2)}, {v(b+8+i,2)}, {v(F['XF']+i,2)}")
        for i in range(4): p(f"v_cvt_pk_bf16_f32 v{b+16+i}, v{b+2*i}, v{b+2*i+1}")
        p(f"buffer_store_dwordx4 {v(b+16,4)}, v{F['XO']}, {s(F['OUT'],4)}, s{F['sXO']} offen {self.c.out_fl}")

    def role_a(self):
        p, c = self.p, self.c
        self.role_start(); self.stamp_begin("A")
        VXA, VWA, VW2A, VW2D, VL16, VFL, VC1, VT = 9, 13, 15, 19, 21, 22, 2, 24
        ACC, FR, W2R, AB = 32, 96, 96, 192
        S_ACTW, S_FAW, S_FAR, S_RING, S_ACTR, S_W2B, S_Z = range(70, 77)
        R_OUT = 64
        S_X = 78; S_Y = 79
        T = S_T
        if "K" in c.diag: p("s_memtime s[100:101]")
        self.loader_base()
        ctok = {}
        dq = []
        for n in range(c.a_chunks): dq += self.dma_chunk(n, T, ctok)
        self.stamp("dma0", sets=(1,))
        if "k" in c.diag.lower():
            self.stamp("karg", sets=(1,)); p("s_waitcnt lgkmcnt(0)\ns_mov_b32 s6, s100")
        if c.a_delay: p(f"s_waitcnt lgkmcnt(0)"); p("\n".join(["s_nop 15"] * c.a_delay))
        for it in dq[:c.nfirst]: p.extend(it)
        self.load_epoch()
        if c.hops:
            p(f"s_mov_b64 exec, 0\ns_cmp_eq_u32 s{S_WAVE}, 3\ns_cbranch_scc1 L_hop0")
        p("s_branch L_bodyA")
        role = self.role
        if c.h_near: self.head_h()
        self.role_b()
        self.role = role
        p.label("L_bodyA")
        p.reset()
        p.items.append(Marker("pending", ("smem", {f"s{S_TAG}", "s94", "s95"})))
        if c.prefetch_code and not c.pf_h: p.items.append(Marker("pending", ("vmem", {"v255"})))
        for i in range(c.nfirst): p.items.append(Marker("pending", ("vmem", set(), ctok[i // 8] if i % 8 == 7 else None)))
        if c.hops: p("s_mov_b64 exec, -1")
        p(f"v_and_b32 v{VT}, 31, v0\nv_lshrrev_b32 v{VT+1}, 5, v0\nv_bfe_u32 v{VT+2}, v0, 1, 3\nv_xor_b32 v{VT+1}, v{VT+1}, v{VT+2}\nv_lshlrev_b32 v{VT+1}, 4, v{VT+1}")
        p(f"v_lshl_add_u32 v{VT+1}, v{VT}, 7, v{VT+1}\ns_add_u32 s{S_X}, s{S_WT}, 12\ns_lshl_b32 s{S_X}, s{S_X}, 13\nv_add_u32 v{VXA}, s{S_X}, v{VT+1}")
        for k in range(1, 4): p(f"v_xor_b32 v{VXA+k}, {32*k}, v{VXA}")
        p(f"s_lshl_b32 s{S_RING}, s{S_WAVE}, 13\ns_add_u32 s{S_RING}, s{S_RING}, {L_RING}")
        p(f"v_bfe_u32 v{VT}, v0, 4, 1\nv_lshlrev_b32 v{VT}, 5, v{VT}\nv_and_b32 v{VT+1}, 3, v0\nv_lshl_add_u32 v{VT}, v{VT+1}, 3, v{VT}")
        p(f"v_bfe_u32 v{VT+1}, v0, 2, 2\nv_lshrrev_b32 v{VT+2}, 5, v0")
        p(f"v_lshl_add_u32 v{VT+3}, v{VT+2}, 3, v{VT+1}\nv_lshl_add_u32 v{VT+3}, v{VT+3}, 8, v{VT}")
        p(f"s_lshl1_add_u32 s{S_Y}, s{S_WF}, 0x600\nv_xor_b32 v{VT+4}, s{S_Y}, v{VT+1}\nv_lshl_add_u32 v{VWA}, v{VT+4}, 6, v{VT+3}")
        if c.qperm: p(f"s_lshl1_add_u32 s{S_Z}, s{S_RT}, s{S_WT}\ns_and_b32 s{S_Z}, s{S_Z}, 3\ns_lshl_b32 s{S_Y}, s{S_Z}, 5\nv_xor_b32 v{VWA}, s{S_Y}, v{VWA}\ns_lshl_b32 s{S_Z}, s{S_Z}, 4")
        else: p(f"s_mov_b32 s{S_Z}, 0")
        p(f"v_xor_b32 v{VWA+1}, 64, v{VWA}")
        p(f"v_lshl_add_u32 v{VT+3}, v{VT+2}, 2, v{VT+1}\nv_lshl_add_u32 v{VT+3}, v{VT+3}, 7, v{VT}")
        p(f"v_lshrrev_b32 v{VT+4}, 1, v{VT+1}\nv_lshl_add_u32 v{VT+3}, v{VT+4}, 6, v{VT+3}\nv_add_u32 v{VW2A}, s{S_RING}, v{VT+3}")
        srd(p, R_2, P_W2, 1792 * 896)
        VB1 = 30
        p(f"s_lshl1_add_u32 s{S_Y}, s{S_CT}, s{S_WF}\ns_lshl_b32 s{S_X}, s{S_Y}, 7\nv_xor_b32 v{VB1+1}, s{S_Z}, v0\nv_lshl_add_u32 v{VB1}, v{VB1+1}, 1, s{S_X}\nglobal_load_ushort v{VB1}, v{VB1}, {s(P_B1,2)}")
        self.stamp("setup", sets=(1,))
        for it in dq[c.nfirst:c.pre_dma]: p.extend(it)
        VB1 = 30
        q = p
        VGA = 26
        q(f"v_xor_b32 v{VW2A+1}, 64, v{VW2A}\nv_add_u32 v{VW2A+2}, 0x10000, v{VW2A}\nv_xor_b32 v{VW2A+3}, 64, v{VW2A+2}")
        if c.br0 >= 0: q(f"v_xor_b32 v{VFL}, 0x10000, v{VW2A}\nv_xor_b32 v{VFL+1}, 0x10000, v{VW2A+1}")
        late = Prog(); q = late
        q(f"s_lshl1_add_u32 s{T+1}, s{S_RT}, s{S_WT}\ns_lshl_b32 s{S_X}, s{T+1}, 9\ns_add_u32 s{S_X}, s{S_X}, {WS_STAT}\nv_lshl_add_u32 v{VGA}, v0, 3, s{S_X}")
        q(f"s_lshl1_add_u32 s{S_Y}, s{S_CT}, s{S_WF}\ns_lshl_b32 s{S_X}, s{S_Y}, 9\ns_add_u32 s{S_X}, s{S_X}, {WS_CS}\nv_lshl_add_u32 v{VGA+1}, v{VB1+1}, 3, s{S_X}")
        q(f"s_mul_i32 s{S_ACTW}, s{T+1}, 28\ns_add_u32 s{S_ACTW}, s{S_ACTW}, s{S_Y}\ns_lshl_b32 s{S_ACTW}, s{S_ACTW}, 13\ns_add_u32 s{S_ACTW}, s{S_ACTW}, {WS_ACT}")
        q(f"s_mul_i32 s{S_X}, s{S_Y}, 37\ns_lshr_b32 s{S_X}, s{S_X}, 8\ns_mul_i32 s{S_X}, s{S_X}, 25\ns_add_u32 s{S_X}, s{S_X}, s{S_Y}")
        q(f"s_lshl_b32 s{S_FAW}, s{T+1}, 9\ns_add_u32 s{S_FAW}, s{S_FAW}, s{S_X}\ns_lshl2_add_u32 s{S_FAW}, s{S_FAW}, {WS_FA}")
        q(f"s_lshl2_add_u32 s{S_R2}, s{S_XCD}, s{S_JR}")
        q(f"s_lshl4_add_u32 s{S_FAR}, s{S_R2}, s{S_WAVE}\ns_lshl_b32 s{S_FAR}, s{S_FAR}, 7\ns_add_u32 s{S_FAR}, s{S_FAR}, {WS_FA}")
        q(f"v_lshlrev_b32 v{VL16}, 4, v0")
        if "A" not in c.spoll: q(f"v_min_u32 v{VFL}, 6, v0\nv_lshlrev_b32 v{VFL}, 2, v{VFL}")
        q(f"v_lshrrev_b32 v{VT+4}, 3, v0\nv_mul_u32_u24 v{VT+4}, 896, v{VT+4}\nv_bfe_u32 v{VT+1}, v0, 4, 1\nv_lshlrev_b32 v{VT+1}, 2, v{VT+1}\nv_xor_b32 v{VT+1}, v0, v{VT+1}\nv_and_b32 v{VT+1}, 7, v{VT+1}")
        q(f"v_lshl_add_u32 v{VW2D}, v{VT+1}, 4, v{VT+4}\nv_add_u32 v{VW2D+1}, {7168-1024}, v{VW2D}")
        q(f"s_lshl2_add_u32 s{S_ACTR}, s{S_R2}, s{S_WAVE}\ns_mul_i32 s{S_ACTR}, s{S_ACTR}, {28*2048}\ns_add_u32 s{S_ACTR}, s{S_ACTR}, {WS_ACT}")
        q(f"s_mul_i32 s{S_W2B}, s{S_WAVE}, {448*7}\ns_add_u32 s{S_W2B}, s{S_W2B}, s{S_C2}\ns_lshl_b32 s{S_W2B}, s{S_W2B}, 7")
        q(f"s_lshl2_add_u32 s{S_X}, s{S_WAVE}, {L_CNT}\nv_mov_b32 v{VT+5}, s{S_X}")
        lateg = [[it] for it in late.items]
        S_AO = list(range(88, 95)); S_WO = [34, 35, 48, 49, 50, 51, 77]; S_ROT = 95
        if c.rot2:
            q = Prog()
            if c.rot2 == 1: q(f"s_mov_b32 s{S_ROT}, s{S_C2}")
            else: q(f"s_lshl1_add_u32 s{S_ROT}, s{S_JR}, s{S_C2}\ns_cmp_ge_u32 s{S_ROT}, 7\ns_cselect_b32 s{T+1}, 7, 0\ns_sub_u32 s{S_ROT}, s{S_ROT}, s{T+1}")
            lateg.append(q.items)
            for i in range(7):
                q = Prog()
                q(f"s_cmp_ge_u32 s{S_ROT}, {7-i}\ns_cselect_b32 s{T+1}, {i-7}, {i}\ns_add_u32 s{T+1}, s{T+1}, s{S_ROT}")
                lateg.append(q.items); q = Prog()
                q(f"s_lshl_b32 s{S_AO[i]}, s{T+1}, 13\ns_add_u32 s{S_AO[i]}, s{S_AO[i]}, s{S_ACTR}\ns_mul_i32 s{S_WO[i]}, s{T+1}, {64*896}\ns_add_u32 s{S_WO[i]}, s{S_WO[i]}, s{S_W2B}")
                lateg += [[it] for it in q.items]
        S_Q = [S_ROT, S_W2B, S_ACTR, S_CT]
        if c.qperm:
            assert c.rot2
            q = Prog()
            for i in range(4): q(f"s_xor_b32 s{S_Q[i]}, s{S_JR}, {i}\ns_mul_i32 s{S_Q[i]}, s{S_Q[i]}, {16*896}")
            lateg += [[it] for it in q.items]
        self.make_tag()
        p(f"v_mov_b32 v{VT}, s{S_TAG}")
        GR = AB
        gloads = f"buffer_load_dwordx2 {v(GR,2)}, v{VGA}, {s(R_WS,4)}, 0 offen sc1\nbuffer_load_dwordx2 {v(GR+2,2)}, v{VGA+1}, {s(R_WS,4)}, 0 offen sc1"
        piece = [0, 1, 2, 0, 1, 2, 0]; pred = {3: 0, 4: 1, 5: 2, 6: 3}
        if c.br0 >= 0:
            piece = [-2, 0, 1, 2, 0, 1, 2]; pred = {4: 1, 5: 2, 6: 3}
            assert c.r_early == 4 and "A" in c.spoll
        wtok, rtok = {}, {}
        w2reg = lambda n: W2R + 8 * ((6, 7, 8, 9, 10, 11, 2, 3, 4, 5, 0, 1)[n] if n < 12 else 6 + (n - 12) % 5)
        areg = lambda n: AB + 8 * (n % 8) if n < 22 else W2R + 8 * (n - 22)
        xtra = lambda n: 24 <= n < 24 + c.nx
        def dma_w2(n):
            q = Prog(); gi = n >> 2
            if gi in pred and not xtra(n): q.wait(rtok[4 * pred[gi] + (n & 3)])
            q((f"s_add_u32 m0, s{T+1}, {(n&3)*2048}\n" if xtra(n) else f"s_add_u32 m0, s{S_RING}, {piece[gi]*SLOT + (n&3)*2048}\n") + (f"s_add_u32 s{S_Z}, s{S_WO[n%7]}, s{S_Q[n//7]}" if c.qperm else f"s_add_u32 s{S_Z}, s{S_WO[n%7]}, {16*(n//7)*896}" if c.rot2 else f"s_add_u32 s{S_Z}, s{S_W2B}, {(64*(n%7) + 16*(n//7))*896}"))
            if "5" in c.diag and n >= 24: wtok[n] = wtok[23]; return [[], []]
            q(f"buffer_load_dwordx4 v{VW2D}, {s(R_2,4)}, s{S_Z} offen lds")
            q2 = Prog()
            wtok[n] = q2.tok(f"buffer_load_dwordx4 v{VW2D+1}, {s(R_2,4)}, s{S_Z} offen offset:1024 lds")
            return [q.items, q2.items]
        def read_w2(n):
            q = Prog(); pc = -2 if xtra(n) else piece[n >> 2]
            if n == max(c.r_early, c.r2):
                keep, self.p = self.p, q
                self.lds_wait(VT + 5, VT + 1, 4)
                self.p = keep
            if n >= c.bw2[-1]: q.wait(wtok[n])
            for di in range(2):
                for h in range(2):
                    rtok[n] = q.tok(f"ds_read_b64_tr_b16 {v(w2reg(n)+4*di+2*h,2)}, v{(VFL if pc < 0 else VW2A+2*(pc>>1))+di} offset:{(pc&1)*SLOT + (n&3)*2048 + h*1024}")
            return [q.items]
        nw = [c.bw2[-1], 0]
        def w2_ops(k, maxread):
            r = []
            for _ in range(k):
                n = nw[0]
                if n >= 24: break
                for m in (n, n + 1):
                    if (m >> 2) in pred and m < 24:
                        need = 4 * pred[m >> 2] + (m & 3)
                        assert m > n or need < maxread
                        while nw[1] <= need and nw[1] < maxread: r += read_w2(nw[1]); nw[1] += 1
                r += dma_w2(n); nw[0] += 1
            return r
        def reads1(gs):
            n, k = gs >> 2, gs & 3
            base = FR + 16 * (gs % 3); so = (n & 1) * SLOT
            r = []
            for fi in range(2):
                for h in range(2):
                    r.append(I(f"ds_read_b64_tr_b16 {v(base+4*fi+2*h,2)}, v{VWA+fi} offset:{so+16384+k*4096+h*1024}"))
                r.append(I(f"ds_read_b128 {v(base+8+4*fi,4)}, v{VXA+k} offset:{so+fi*4096}"))
            return r
        def mfma1(gs):
            base = FR + 16 * (gs % 3)
            r = []
            for fi, ti in ((0, 0), (0, 1), (1, 0), (1, 1)):
                a = v(ACC + 32 * fi + 16 * ti, 16)
                r.append(I(f"v_mfma_f32_32x32x16_bf16 {a}, {v(base+4*fi,4)}, {v(base+8+4*ti,4)}, {'0' if gs == 0 else a}"))
            return r
        self.stamp("dmapre", sets=(1,))
        if c.hops:
            p("s_mov_b64 exec, 0")
            for w in range(3): p(f"s_cmp_eq_u32 s{S_WAVE}, {w}\ns_cbranch_scc1 L_hop{w+1}")
            p("s_branch L_hop4")
            p.label("L_hopped")
            p("s_mov_b64 exec, -1")
        nd = c.pre_dma
        nl = (len(lateg) + 3) // 4
        for n in range(7):
            if n < c.a_chunks: p.wait(ctok[n])
            if n == 0: self.stamp("c0", sets=(1,))
            p("s_waitcnt lgkmcnt(0)\ns_barrier")
            self.stamp(f"bar{n}", sets=(0, 1) if n in (0, 3, 6) else (1,))
            if n in (2, 4, 6):
                for r in list(range(VXA, VXA + 4)) + [VWA, VWA + 1]: p(f"v_xor_b32 v{r}, 0x10000, v{r}")
            upto = min(len(dq), 8 * (n + 4), max(nd + c.dma_per[n], 8 * (n + 2)))
            fill = dq[nd:upto]; nd = upto
            if n == c.gran_at:
                fill = fill + [[I(x)] for x in gloads.split("\n")]
            if n == c.r_at:
                while nw[1] < c.r_early:
                    fill = fill + [[it] for it in read_w2(nw[1])[0]]; nw[1] += 1
            last = []
            if n == 6:
                while nw[1] < c.r2:
                    its = read_w2(nw[1])[0]
                    if nw[1] < 6: fill = fill + [[it] for it in its]
                    else: last += its
                    nw[1] += 1
            g0 = 4 * n
            r0, r1, r2, r3 = (reads1(g0 + k) for k in range(4))
            body = []
            if n == 0: body.append(r0 + r1)
            else:
                mm = mfma1(g0 - 1)
                body += [r0, [mm[0]] + r1[:3], [mm[1]] + r1[3:], [mm[2]], [mm[3]]]
            for k, rd in ((0, r2), (1, r3), (2, None)):
                mm = mfma1(g0 + k)
                body += [[mm[0]] + (rd[:3] if rd else []), [mm[1]] + (rd[3:] if rd else []), [mm[2]], [mm[3]]]
            if n == 6:
                body[-5] = body[-5] + last[:4]; body[-4] = body[-4] + last[4:]
                body[c.b7_at] = body[c.b7_at] + [I(f"s_waitcnt lgkmcnt({len(last) if c.bw2[-1] <= 18 else 0})"), I("s_barrier")]
            merged = []
            j = 0
            for i, it in enumerate(body):
                grp = list(it)
                nb_ = len(body) - (5 if n == 6 else 0)
                while j < min(len(fill), (i + 1) * len(fill) // nb_): grp += fill[j]; j += 1
                merged.append(grp)
            lt = lateg[nl * n: nl * (n + 1)] if n < 4 else []
            p.extend(interleave(merged, lt))
        mm = mfma1(27)
        p.extend(mm[:1])
        self.tagged_check(gloads, [GR + 1, GR + 3], VT + 1)
        self.stamp("granules", sets=(0, 1, 3))
        FA_, FB_ = AB + 8, AB + 12
        q = Prog()
        q(f"s_mov_b32 s{S_X}, 0x01000100\nv_perm_b32 v{FB_}, v{GR}, v{GR}, s{S_X}\nv_lshrrev_b32 v{FB_+1}, 16, v{GR}\nv_xor_b32 v{FB_}, 0x80008000, v{FB_}")
        q(f"v_cvt_pk_bf16_f32 v{VT+1}, v{GR+2}, v{GR+2}\nv_mov_b32 v{FB_+2}, 0\nv_and_b32 v{VT+1}, 0xffff0000, v{VT+1}\nv_mov_b32 v{FB_+3}, 0\nv_sub_f32 v{VT+1}, v{GR+2}, v{VT+1}")
        q(f"v_mov_b32 v{FA_+1}, v{VB1}\nv_cvt_pk_bf16_f32 v{FA_}, v{GR+2}, v{VT+1}\nv_mov_b32 v{FA_+2}, 0\nv_mov_b32 v{FA_+3}, 0\nv_and_b32 v{VT+1}, 0xffff0000, v{GR}")
        q(f"v_permlane32_swap_b32 v{FB_}, v{FB_+2}\nv_permlane32_swap_b32 v{FB_+1}, v{FB_+3}\nv_permlane32_swap_b32 v{FA_}, v{FA_+2}\nv_permlane32_swap_b32 v{FA_+1}, v{FA_+3}")
        q(f"v_rcp_f32 v{VT+1}, v{VT+1}")
        p.extend(interleave(mm[1:], q.items))
        for fi, ti in ((0, 0), (0, 1), (1, 0), (1, 1)):
            a = v(ACC + 32 * fi + 16 * ti, 16)
            p(f"v_mfma_f32_32x32x8_bf16 {a}, {v(FA_+2*fi,2)}, {v(FB_+2*ti,2)}, {a}")
            if (fi, ti) == (0, 0): p(f"v_mul_f32 v{VC1}, {LOG2E}, v{VT+1}\nv_mul_f32 v{VC1+2}, {LOG2E}, v{VT+1}")
            if (fi, ti) == (0, 1): p(f"v_permlane32_swap_b32 v{VC1}, v{VC1+2}")
            if (fi, ti) == (1, 0) and c.mish_pk: p(f"v_mov_b32 v{VC1+1}, v{VC1}\nv_mov_b32 v{VC1+3}, v{VC1+2}")
        MT, MO = AB + 16, AB + 48
        def mish_group(a, ti, o, tset):
            t = MT + 16 * tset; u = t + 8
            r = []
            if c.mish_pk:
                for i in range(0, 8, 2): r.append(f"v_pk_mul_f32 {v(t+i,2)}, {v(a+i,2)}, {v(VC1+2*ti,2)}")
                for i in range(8): r.append(f"v_exp_f32 v{t+i}, v{t+i}")
                for i in range(0, 8, 2): r.append(f"v_pk_fma_f32 {v(u+i,2)}, {v(t+i,2)}, 0.5, 1.0 op_sel_hi:[1,0,0]")
                for i in range(0, 8, 2): r.append(f"v_pk_fma_f32 {v(u+i,2)}, {v(t+i,2)}, {v(u+i,2)}, 1.0 op_sel_hi:[1,1,0]")
                for i in range(8): r.append(f"v_rcp_f32 v{u+i}, v{u+i}")
                for i in range(0, 8, 2): r.append(f"v_pk_fma_f32 {v(u+i,2)}, {v(a+i,2)}, {v(u+i,2)}, {v(a+i,2)} neg_lo:[1,0,0] neg_hi:[1,0,0]")
            else:
                for i in range(8): r.append(f"v_mul_f32 v{t+i}, v{a+i}, v{VC1+2*ti}")
                for i in range(8): r.append(f"v_exp_f32 v{t+i}, v{t+i}")
                for i in range(8): r.append(f"v_fma_f32 v{u+i}, v{t+i}, 0.5, 1.0")
                for i in range(8): r.append(f"v_fma_f32 v{u+i}, v{t+i}, v{u+i}, 1.0")
                for i in range(8): r.append(f"v_rcp_f32 v{u+i}, v{u+i}")
                for i in range(8): r.append(f"v_fma_f32 v{u+i}, -v{a+i}, v{u+i}, v{a+i}")
            if "1" in c.diag: r = r[:len(r) // 2]; u = a
            for i in range(4): r.append(f"v_cvt_pk_bf16_f32 v{o+i}, v{u+2*i}, v{u+2*i+1}")
            return [I(x) for x in r]
        stok = {}
        def own_flag(st, q):
            if "A" in c.sflag:
                q(f"s_add_u32 s{T}, s{S_FAW}, {512*st}"); q.wait(stok[st]); q(f"s_atomic_swap s{S_TAG}, {s(R_WS,2)}, s{T}")
                return
            q.wait(stok[st])
            q(f"s_mov_b64 exec, 1\nbuffer_store_dword v{VT}, off, {s(R_WS,4)}, s{S_FAW} offset:{512*st} {c.fa_st}\ns_mov_b64 exec, -1")
        body = []
        gi = 0
        for st in range(4):
            for ti in range(2):
                o = MO + 4 * (gi % 4)
                body += mish_group(ACC + 32 * (st >> 1) + 16 * ti + 8 * (st & 1), ti, o, gi & 1)
                q = Prog()
                stok[st] = q.tok(f"buffer_store_dwordx4 {v(o,4)}, v{VL16}, {s(R_WS,4)}, s{S_ACTW} offen offset:{(st&1)*2048+ti*1024} {c.act_st}")
                if gi == 3: q(f"s_add_u32 s{S_ACTW}, s{S_ACTW}, 4096")
                if ti == 1: self.stamp(f"s{st}", q, sets=(3,))
                if ti == 1 and st - c.flag_lag in c.fstages: own_flag(st - c.flag_lag, q); self.stamp(f"f{st-c.flag_lag}", q, sets=(3,))
                body.append(q.items)
                gi += 1
        k0 = int(len(body) * c.mish_skip)
        p.extend(interleave(body[:k0], [])); p.extend(interleave(body[k0:], w2_ops(c.w2_mish, 12) + [[]]))
        self.stamp("mish", sets=(0, 4))
        rest = [st for st in c.fstages if st >= 4 - c.flag_lag]
        def flags_rest():
            for st in rest: own_flag(st, p)
        if c.prio_a1: p(f"s_setprio {c.prio_a1}")
        p(f"s_load_dwordx2 {s(R_LD,2)}, s[0:1], 0\ns_load_dwordx2 {s(R_OUT,2)}, s[0:1], 104\ns_mov_b32 s{R_LD+2}, {2048*896}\ns_mov_b32 s{R_OUT+2}, {2048*896}\ns_mov_b32 s{R_OUT+3}, 0x20000")
        m0_ = 28 - (c.tail_m if c.tail_ld else 0)
        aord = [(n, ti) for n in range(m0_) for ti in range(2)] + [(n, ti) for ti in range(2) for n in range(m0_, 28)]
        alast = [None]
        def load_act(k):
            for n, ti in aord[2 * k: 2 * k + 2]:
                if "a" in c.diag and n >= 7: continue
                assert n // 7 <= seen[0]
                if alast[0] != n: p(f"s_add_u32 s{S_Y}, s{S_AO[n%7]}, {(n//7)*2048}" if c.rot2 else f"s_add_u32 s{S_Y}, s{S_ACTR}, {(4*(n%7) + n//7)*2048}")
                alast[0] = n
                p(f"buffer_load_dwordx4 {v(areg(n)+4*ti,4)}, v{VL16}, {s(R_WS,4)}, s{S_Y} offen offset:{ti*1024} {c.act_ld}")
        seen = [-1, 0]
        def next_flags():
            st = min(x for x in (c.cstages or c.fstages) if x > seen[0])
            if st != seen[1]: p(f"s_add_u32 s{S_FAR}, s{S_FAR}, {512*(st-seen[1])}"); seen[1] = st
            return self.flag_load("A", S_FAR, 7, VFL)
        def check_flags(f, **kw):
            self.flag_check(f, VT + 1, **kw); seen[0] = seen[1]
            self.stamp(f"act{seen[0]}", sets=(0, 2, 3))
        def reads_upto(m):
            while nw[1] < min(m, 28): p.extend(read_w2(nw[1])[0]); nw[1] += 1
        def dmas_upto(m):
            while nw[0] < min(m, 28):
                if nw[0] == 24 and c.nx:
                    p(f"s_mul_i32 s{T+1}, s{S_WAVE}, {2048*c.nx}\ns_add_u32 s{T+1}, s{T+1}, {L_X}\ns_sub_u32 s{T}, s{T+1}, s{S_RING}\nv_add_u32 v{VFL}, s{T}, v{VW2A}\nv_add_u32 v{VFL+1}, s{T}, v{VW2A+1}")
                    p(f"v_and_b32 v14, 3, v0\nv_lshlrev_b32 v14, 2, v14\nv_add_u32 v14, {L_CNT}, v14")
                    self.lds_wait(14, VT + 1, 1)
                if (nw[0] >> 2) in pred and not xtra(nw[0]): assert nw[1] > nw[0] - 12
                for it in dma_w2(nw[0]): p.extend(it)
                nw[0] += 1
        D = c.adepth
        lead = c.flead
        fl = None
        na = 0
        for op in c.pre_loop.split():
            k = int(op[1:]) if len(op) > 1 else 0
            if op[0] == "R": reads_upto(k)
            elif op[0] == "D": dmas_upto(k)
            elif op[0] == "F":
                if rest: own_flag(rest.pop(0), p)
            elif op[0] == "W": p("s_waitcnt lgkmcnt(0)")
            elif op[0] == "L": fl = next_flags()
            elif op[0] == "C":
                assert not rest or seen[1] < rest[0]
                check_flags(fl, on_miss=flags_rest if rest else None); fl = None
            elif op[0] == "A":
                while na < k: load_act(na); na += 1
            elif op[0] == "V": p("s_waitcnt vmcnt(0)")
            elif op[0] == "T": self.lds_wait(VT + 5, VT + 1, 1)
            elif op[0] == "P": p(f"s_setprio {k}")
            if op[0] not in "L": self.stamp(op + "_" + str(len(self.stamp_names["A"])), sets=(4,))
        assert D <= na <= 8 and nw[1] >= c.rdepth and not rest
        M0 = nw[0]
        if c.prio_a1 != c.prio_a2: p(f"s_setprio {c.prio_a2}")
        self.stamp("flagA", sets=(0, 2, 3))
        assert D <= 7 and c.rdepth <= 4 and c.tail_m <= 5
        main = p
        VALL = 14
        F = dict(VT=VT, XO=9, PA=10, SA=12, STA=13, XI=184, RG=30, RC=116, XF=100, PV=AB, SV=176, SF=108, w=S_WAVE, sXO=S_ACTW, sST=S_X, OUT=R_OUT)
        f15 = lambda: self.fin_addr(1, F, 0)
        def f16():
            self.fin_addr(1, F, 1)
            if not c.nx: p(f"v_lshlrev_b32 v{VALL}, 2, v{VT+3}\nv_add_u32 v{VALL}, {L_CNT}, v{VALL}")
        def f17():
            p(f"v_and_b32 v{VT+3}, 31, v0\nv_lshrrev_b32 v{VT+1}, 5, v0\nv_and_b32 v{VT+2}, 7, v0\nv_xor_b32 v{VT+1}, v{VT+1}, v{VT+2}\nv_bfe_u32 v{VT+2}, v0, 4, 1\nv_lshl_or_b32 v{VT+1}, v{VT+2}, 3, v{VT+1}")
            p(f"v_lshlrev_b32 v{VT+1}, 4, v{VT+1}\nv_lshl_add_u32 v{VT+1}, v{VT+3}, 8, v{VT+1}\nv_add_u32 v{VD}, s{S_RING}, v{VT+1}")
            for k in range(1, 8): p(f"v_xor_b32 v{VD+k}, {32*k}, v{VD}")
        fin = dict(zip(c.fin_at, (f15, f16, f17, lambda: self.fin_loads(F))))
        tail = []
        for n in range(28):
            mm = []
            for di, ti in ((0, 0), (1, 0), (0, 1), (1, 1)):
                a = v(ACC + 32 * di + 16 * ti, 16)
                mm.append(I(f"v_mfma_f32_32x32x16_bf16 {a}, {v(w2reg(n)+4*di,4)}, {v(areg(n)+4*ti,4)}, {'0' if n == 0 else a}"))
            groups = []
            def grab(fn):
                nonlocal p
                p = self.p = Prog(); fn(); its = p.items; p = self.p = main
                return its
            def split(its):
                cur = []
                for it in its:
                    cur.append(it)
                    if isinstance(it, I) and it.kind in ("vmem", "ds", "valu"): groups.append(cur); cur = []
                if cur: groups.append(cur)
            split(grab(lambda: reads_upto(n + 1 + c.rdepth)))
            if na <= n + D < 28:
                if (n + D) // 7 > seen[0]:
                    groups.append(grab(lambda: check_flags(fl))); fl = None
                split(grab(lambda: load_act(n + D)))
            split(grab(lambda: dmas_upto(min(nw[1] + 12 - c.w2_gap, max(n + 1 + c.w2_lead, M0 + int((n + 1) * c.w2_rate))))))
            if fl is None and min(27, n + D + lead) // 7 > seen[0]:
                def nf():
                    nonlocal fl
                    if "A" in c.spoll: p("s_waitcnt lgkmcnt(0)")
                    fl = next_flags()
                groups.append(grab(nf))
            if n in fin: split(grab(fin[n]))
            if n >= 28 - c.tail_m:
                tail += mm[2:]; mm = mm[:2]
            if c.g2_mix:
                isv = lambda gr: any(isinstance(it, I) and it.kind == "vmem" for it in gr)
                ds = [gr for gr in groups if any(isinstance(it, I) and it.mn.startswith("ds_read_b64_tr") for it in gr)]
                rest = [gr for gr in groups if not any(gr is x for x in ds)]
                nm = len(mm)
                for k in range(nm):
                    p.extend([mm[k]])
                    for gr in ds[k * len(ds) // nm:(k + 1) * len(ds) // nm]: p.extend(gr)
                    for gr in rest[k * len(rest) // nm:(k + 1) * len(rest) // nm]: p.extend(gr)
            else:
                p.extend(mm)
                for gr in groups: p.extend(gr)
            if n in (0, 3, 6, 10, 13, 17, 20): self.stamp(f"n{n}", sets=(0, 2, 4) if n in (0, 13) else (2,))
        pw = lambda ti: [I(f"ds_write_b128 v{VD+4*di+g4}, {v(ACC+32*di+16*ti+4*g4,4)} offset:{ti*SLOT}") for di in range(2) for g4 in range(4)]
        if tail: p.extend(tail[:c.tail_k]); p.extend(interleave(tail[c.tail_k:], pw(0), ratio=c.tail_r))
        else: p.extend(pw(0))
        self.lds_post(VT + 5, VT, 5)
        self.stamp("gemm2", sets=(0, 2, 3))
        w1_ = pw(1); x_ = self.fin_prep(F); s_ = self.fin_sprep(F)
        p.extend(w1_[:4]); self.lds_peek(VT + 5, VT + 2, 7); p.extend(w1_[4:])
        self.lds_post(VT + 5, VT, 6)
        self.stamp("gate", sets=(0, 2, 3))
        self.lds_check(VT + 5, VT + 2, 7, fill=lambda: p.extend(x_[:6]))
        self.fin_sread(F); self.lds_peek(VALL, VT + 1, 6); p.extend(x_[6:])
        self.lds_check(VALL, VT + 1, 6, fill=lambda: p.extend(s_[:5]))
        self.stamp("sin", sets=(0, 2, 3))
        self.fin_out(F, s_[5:])
        self.stamp("end", sets=(0, 2, 3, 4, 9))
        self.stamp_flush(1)
        p("s_endpgm")

    def gather_table(self):
        import numpy as np
        def rb(l):
            u = np.array([l], np.float32).view(np.uint32)
            return int((((u + 0x7FFF + ((u >> 16) & 1)) >> 16) << 16).view(np.float32)[0])
        rows = list(range(8)) + list(range(128, 136)) + [256, 258, 260, 262, 384, 386, 388, 390, 512, 516, 640, 644, 768, 772, 896, 900] + [1024 + 128 * k for k in range(9)]
        pos = {}
        for i, a in enumerate(rows):
            tile, row = i >> 4, i & 15
            for col in range(16): pos[a + 8 * col] = tile * 1024 + ((row >> 2) * 16 + col) * 16 + (row & 3) * 4
        zero = 2 * 1024 + 48 * 16
        at = lambda l: zero if l < 0 else pos[rb(l)]
        at1 = lambda l: zero if l > 1028 else at(l)
        words = []
        for mh in range(2):
            for half in range(2):
                for lane in range(64):
                    hi = 1023 - 8 * (64 * mh + lane)
                    e = [at(hi - i) for i in range(11)]
                    if mh == 0: d = 127 - lane; e += [pos[16 * d + 16], pos[16 * d + 8], zero, zero, zero]
                    elif lane < 16: top = 1055 - 8 * (lane >> 2) - (lane & 3); e += [at1(top - j) for j in (0, 1, 2, 3, 7)]
                    else: e += [zero] * 5
                    e = e[8 * half: 8 * half + 8]
                    words += [e[2 * k] | (e[2 * k + 1] << 16) for k in range(4)]
        return words

    def role_b(self):
        p, c = self.p, self.c
        p.label("L_roleB")
        self.role_start(True); self.stamp_begin("B")
        S_BW, S_LDT, S_DSK, S_STW, S_CHN, S_MH = B_BW, B_LDT, B_DSK, B_STW, S_WF, S_WT
        S_FXR, S_XTR, S_FSW, S_FSR, S_STR = 74, 75, 76, 77, S_CT
        S_X, S_Y = 78, 79
        T = S_T
        VL16, VP, VGT, VG, VSW, VSR, VT = 9, B_VP, 120, 16, 46, 47, 50
        VRW, VTW, VTZ, VTA, VUA, VUW, VCN, VONE, VEXW, VEXR, VTAG, VUZ, VFL = range(32, 45)
        self.load_epoch()
        self.loader_base()
        ctok = {}
        if c.a_chunks < 7:
            if c.rot1: p(f"s_cmp_ge_u32 s{S_C2}, {7-c.a_chunks}\ns_cselect_b32 s{T}, {c.a_chunks-7}, {c.a_chunks}\ns_mul_i32 s{T}, s{T}, s{S_CSTR}\ns_add_u32 s{S_SOFF}, s{S_SOFF}, s{T}")
            else: p(f"s_mul_i32 s{T}, s{S_CSTR}, {c.a_chunks}\ns_add_u32 s{S_SOFF}, s{S_SOFF}, s{T}")
        p(f"v_lshlrev_b32 v{VL16}, 4, v0\ns_lshl3_add_u32 s{S_STW}, s{S_STW}, {WS_ST}")
        srd(p, R_2, P_W2, 1792 * 896)
        late = Prog(); q = late
        q(f"s_lshl2_add_u32 s{S_R2}, s{S_XCD}, s{S_JR}")
        q(f"s_lshr_b32 s{T}, s{S_CP}, 5\ns_lshl2_add_u32 s{S_FXR}, s{T}, s{S_BW}\ns_and_b32 s{T}, s{S_CP}, 3\ns_lshl2_add_u32 s{S_FXR}, s{S_FXR}, s{T}\ns_lshl_b32 s{S_FXR}, s{S_FXR}, 7\ns_add_u32 s{S_FXR}, s{S_FXR}, {WS_FX}\ns_lshr_b32 s{T}, s{S_CP}, 4")
        q(f"s_lshl3_add_u32 s{S_XTR}, s{S_CP}, s{S_BW}\ns_lshl_b32 s{S_XTR}, s{S_XTR}, 10\ns_add_u32 s{S_XTR}, s{S_XTR}, {WS_XT}")
        q(f"s_mul_i32 s{S_FSW}, s{S_BW}, 14\ns_add_u32 s{S_FSW}, s{S_FSW}, s{T}\ns_lshl_b32 s{S_FSW}, s{S_FSW}, 7\ns_and_b32 s{T+1}, s{S_CP}, 15\ns_add_u32 s{S_FSW}, s{S_FSW}, s{T+1}\ns_lshl2_add_u32 s{S_FSW}, s{S_FSW}, {WS_FS}")
        q(f"s_lshl1_add_u32 s{T}, s{S_C2}, s{S_CHN}")
        q(f"s_lshr_b32 s{T+1}, s{S_R2}, 3\ns_mul_i32 s{S_FSR}, s{T+1}, 14\ns_add_u32 s{S_FSR}, s{S_FSR}, s{T}\ns_lshl2_add_u32 s{S_FSR}, s{S_FSR}, s{S_JR}\ns_lshl_b32 s{S_FSR}, s{S_FSR}, 7\ns_add_u32 s{S_FSR}, s{S_FSR}, {WS_FS}")
        q(f"s_lshl_b32 s{S_STR}, s{T}, 9\ns_add_u32 s{S_STR}, s{S_STR}, s{S_R2}\ns_lshl1_add_u32 s{S_STR}, s{S_STR}, s{S_MH}\ns_lshl_b32 s{S_STR}, s{S_STR}, 7\ns_add_u32 s{S_STR}, s{S_STR}, {WS_ST}")
        q(f"v_and_b32 v{VT}, 15, v0\nv_lshrrev_b32 v{VT+1}, 4, v0")
        q(f"s_mul_i32 s{T}, s{S_BW}, 8448\nv_mul_u32_u24 v{VT+2}, 528, v{VT}\nv_and_b32 v{VT+3}, 256, v{VL16}\nv_add3_u32 v{VT+2}, v{VT+2}, v{VT+3}, s{T}\nv_lshrrev_b32 v{VT+3}, 5, v0\nv_lshl_add_u32 v{VSR}, v{VT+3}, 4, v{VT+2}")
        q(f"s_lshl_b32 s{T}, s{S_BW}, 13\nv_add_u32 v{VEXW}, s{T}, v{VL16}")
        q(f"s_mul_i32 s{T}, s{S_BW}, 3072\ns_add_u32 s{T}, s{T}, {L_RAW}\nv_add_u32 v{VRW}, s{T}, v{VL16}")
        q(f"s_mul_i32 s{T}, s{S_CHN}, {TCH}\ns_add_u32 s{T}, s{T}, {L_TAB}\ns_lshl_b32 s{T+1}, s{S_MH}, 10\ns_add_u32 s{T+1}, s{T+1}, s{T}\nv_add_u32 v{VTW}, s{T+1}, v{VL16}")
        q(f"v_sub_u32 v{VT+2}, 3, v{VT}\nv_and_b32 v{VT+2}, 3, v{VT+2}\nv_mul_u32_u24 v{VT+3}, {TCP-2}, v{VT+2}\nv_lshl_add_u32 v{VT+3}, v{VT+1}, 4, v{VT+3}\nv_lshlrev_b32 v{VT+2}, 1, v{VT}\nv_sub_u32 v{VT+3}, v{VT+3}, v{VT+2}")
        q(f"s_lshl_b32 s{T+1}, s{S_MH}, 8\ns_sub_u32 s{T}, s{T}, s{T+1}\ns_add_u32 s{T}, s{T}, {2*15}\nv_add_u32 v{VTA}, s{T}, v{VT+3}")
        q(f"s_mul_i32 s{S_X}, s{S_CHN}, 4608\ns_sub_u32 s{T}, s{S_X}, s{T+1}\ns_add_u32 s{T}, s{T}, {L_U+2*(240-96)}\nv_lshlrev_b32 v{VT+2}, 5, v{VT}\nv_lshl_add_u32 v{VT+2}, v{VT+1}, 4, v{VT+2}\nv_add_u32 v{VUA}, s{T}, v{VT+2}")
        q(f"s_add_u32 s{S_X}, s{S_X}, s{T+1}\ns_add_u32 s{S_X}, s{S_X}, {L_U}\nv_lshl_add_u32 v{VUZ}, v0, 2, s{S_X}")
        q(f"s_lshl_b32 s{T}, s{S_BW}, 10\ns_add_u32 s{T}, s{T}, {L_U+512}\nv_add_u32 v{VUW}, s{T}, v{VL16}")
        q(f"s_lshl_b32 s{T}, s{S_BW}, 11\ns_add_u32 s{T}, s{T}, {L_EX}\nv_add_u32 v{VEXR}, s{T}, v{VL16}")
        VZ = 56
        for i in range(4): q(f"v_mov_b32 v{VZ+i}, 0")
        q(f"s_lshl2_add_u32 s{T}, s{S_BW}, {L_CNT}\nv_mov_b32 v{VONE}, s{T}\nv_and_b32 v{VCN}, 3, v0\nv_lshlrev_b32 v{VCN}, 2, v{VCN}\nv_add_u32 v{VCN}, {L_CNT}, v{VCN}")
        VW2D = 48; S_WOFF, S_WIDX, S_RING = 88, 89, 91
        q(f"v_lshrrev_b32 v{VT+2}, 3, v0\nv_mul_u32_u24 v{VT+2}, 896, v{VT+2}\nv_bfe_u32 v{VT+3}, v0, 4, 1\nv_lshlrev_b32 v{VT+3}, 2, v{VT+3}\nv_xor_b32 v{VT+3}, v0, v{VT+3}\nv_and_b32 v{VT+3}, 7, v{VT+3}")
        q(f"v_lshl_add_u32 v{VW2D}, v{VT+3}, 4, v{VT+2}\nv_add_u32 v{VW2D+1}, {7168-1024}, v{VW2D}")
        if c.rot2 == 2: q(f"s_lshl1_add_u32 s{S_WIDX}, s{S_JR}, s{S_C2}\ns_cmp_ge_u32 s{S_WIDX}, 7\ns_cselect_b32 s{T}, 7, 0\ns_sub_u32 s{S_WIDX}, s{S_WIDX}, s{T}")
        else: q(f"s_mov_b32 s{S_WIDX}, {'s%d' % S_C2 if c.rot2 else 0}")
        q(f"s_mul_i32 s{S_WOFF}, s{S_BW}, 7\ns_add_u32 s{S_WOFF}, s{S_WOFF}, s{S_WIDX}\ns_mul_i32 s{S_WOFF}, s{S_WOFF}, {64*7}\ns_add_u32 s{S_WOFF}, s{S_WOFF}, s{S_C2}\ns_lshl_b32 s{S_WOFF}, s{S_WOFF}, 7")
        q(f"s_lshl_b32 s{S_RING}, s{S_BW}, 13\ns_add_u32 s{S_RING}, s{S_RING}, {L_RING}")
        assert not c.qperm and c.b_pre == 1.0
        if "X" not in c.spoll: q(f"v_min_u32 v{VFL}, 7, v0\nv_lshlrev_b32 v{VFL}, 2, v{VFL}")
        k = int(len(late.items) * c.b_pre)
        p.extend(late.items[:k]); late.items = late.items[k:]
        T = 90
        S_TCH = 92; nt = [0]
        def touch_upto(m):
            while nt[0] < m:
                p(f"s_buffer_load_dwordx2 s[94:95], {s(R_2,4)}, s{S_TCH}\ns_add_u32 s{S_TCH}, s{S_TCH}, 128"); nt[0] += 1
                p.items.append(Marker("forget", {"s94", "s95"}))
        if c.s_touch: p(f"s_lshl2_add_u32 s{S_TCH}, s{S_CP}, s{S_BW}\ns_mul_i32 s{S_TCH}, s{S_TCH}, {14*128}\ns_add_u32 s{S_TCH}, s{S_TCH}, 60")
        self.make_tag()
        p(f"s_lshl_b32 s{T}, s{S_CHN}, 4\ns_lshr_b32 s{S_LDT}, s{S_LDT}, s{T}\ns_lshl_b32 s{S_LDT}, s{S_LDT}, 16\ns_lshr_b32 s{S_DSK}, s{S_DSK}, s{T}\ns_lshl_b32 s{S_DSK}, s{S_DSK}, 16")
        VDT = 60
        p(f"v_mov_b32 v{VDT}, {LOG2E}\nv_mul_f32 v{VDT}, s{S_LDT}, v{VDT}\nv_exp_f32 v{VDT}, v{VDT}\nv_mov_b32 v{VTAG}, s{S_TAG}\nv_cvt_pk_bf16_f32 v{VDT}, v{VDT}, v{VDT}\nv_and_b32 v{VDT}, 0xffff0000, v{VDT}\nv_mov_b32 v{VDT+1}, v{VDT}")
        if c.s_touch: touch_upto(c.s_touch[0])
        self.stamp("pre", sets=(1,))
        Z1, Z2, Z4, Z8, Z128, XB, XC, XDD, TM = 64, 68, 72, 76, 80, 84, 88, 92, 96
        AL, BE, UB, CV = 108, 110, 112, 120
        YF, XF, KV, KA = 128, 160, 128, 244
        units = []
        def unpack(d, src): p(f"v_lshlrev_b32 v{d}, 16, v{src}\nv_and_b32 v{d+1}, 0xffff0000, v{src}")
        def mul2(d, a, b, pk):
            if pk: p(f"v_pk_mul_f32 {v(d,2)}, {v(a,2)}, {v(b,2)}")
            else: p(f"v_mul_f32 v{d}, v{a}, v{b}\nv_mul_f32 v{d+1}, v{a+1}, v{b+1}")
        def cmul_(d, a, b, pk):
            assert d != b
            mul2(TM, a, b, pk); mul2(TM + 2, a, b + 2, pk)
            if pk:
                p(f"v_pk_fma_f32 {v(d,2)}, {v(a+2,2)}, {v(b+2,2)}, {v(TM,2)} neg_lo:[1,0,0] neg_hi:[1,0,0]")
                p(f"v_pk_fma_f32 {v(d+2,2)}, {v(a+2,2)}, {v(b,2)}, {v(TM+2,2)}")
            else:
                for m in range(2): p(f"v_fma_f32 v{d+m}, -v{a+2+m}, v{b+2+m}, v{TM+m}")
                for m in range(2): p(f"v_fma_f32 v{d+2+m}, v{a+2+m}, v{b+m}, v{TM+2+m}")
        def cmul(d, a, b): units.append((8, lambda pk: cmul_(d, a, b, pk)))
        def put(e, a, conj):
            ng = "-" if conj else ""
            units.append((2, lambda pk: (have.add(e), p(f"v_cvt_pk_bf16_f32 v{KV+2*e}, v{a}, {ng}v{a+2}\nv_cvt_pk_bf16_f32 v{KV+2*e+1}, v{a+1}, {ng}v{a+3}"))))
        have = {0}
        def getfr(base):
            return [I(f"ds_read_b128 {v(base+4*fr,4)}, v{VSR} offset:{fr*32}") for fr in range(8)]
        def kmfma(tile, base):
            a = v(KA + 4 * tile, 4)
            return [I(f"v_mfma_f32_16x16x32_bf16 {a}, {v(base+4*fr,4)}, {v(YF+4*fr,4)}, {'0' if (fr == 0 and tile) else a}") for fr in range(8)]
        def zpow_(d, lg, pk):
            for m in range(2):
                if lg: p(f"v_ldexp_f32 v{TM+m}, v{AL+m}, {lg}\nv_ldexp_f32 v{TM+2+m}, v{BE+m}, {lg}")
                a, b = (TM + m, TM + 2 + m) if lg else (AL + m, BE + m)
                p(f"v_exp_f32 v{TM+m}, v{a}\nv_fract_f32 v{TM+2+m}, v{b}")
            for m in range(2): p(f"v_cos_f32 v{d+m}, v{TM+2+m}\nv_sin_f32 v{d+2+m}, v{TM+2+m}")
            mul2(d, d, TM, pk); mul2(d + 2, d + 2, TM, pk)
        def zpow(d, lg): units.append((22, lambda pk: zpow_(d, lg, pk)))
        p(f"v_mov_b32 v{KV}, 0x3f80\nv_mov_b32 v{KV+1}, 0x3f80")
        unpack(AL, VP); unpack(BE, VP + 1)
        self.stamp("params", sets=(0, 1))
        mul2(AL, AL, VDT, True); mul2(BE, BE, VDT, True)
        for m in range(2): p(f"v_mul_f32 v{AL+m}, {LOG2E}, v{AL+m}\nv_mul_f32 v{BE+m}, 0.15915494, v{BE+m}")
        early_done = [None]
        zpow(Z8, 3)
        put(1, Z8, False)
        prev = Z8
        for r in range(2, 16): cmul(XB, prev, Z8); prev = XB; put(r, XB, False)
        zpow(Z1, 0); zpow(Z128, 7)
        units.append((8, lambda pk: [unpack(UB + 2 * i, VP + 2 + i) for i in range(4)]))
        cmul(XC, UB, UB + 4)
        units.append((4, lambda pk: (mul2(XC, XC, VDT, pk), mul2(XC + 2, XC + 2, VDT, pk))))
        cmul(XB, XC, Z128)
        put(16, XC, True); put(24, XB, True)
        prev = XB
        for r in range(1, 8):
            cmul(XC, XC, Z1); put(16 + r, XC, True)
            cmul(XDD, prev, Z1); prev = XDD; put(24 + r, XDD, True)
        for it in late.items: units.append((1, lambda pk, it=it: p.extend([it])))
        cmul(Z2, Z1, Z1); cmul(Z4, Z2, Z2)
        for k in range(2):
            cmul(XB, XB, Z128); put(32 + 4 * k, XB, True); prev = XB
            for r in range(1, 4): cmul(XC, prev, Z2); prev = XC; put(32 + 4 * k + r, XC, True)
        for k in range(4):
            cmul(XB, XB, Z128); put(40 + 2 * k, XB, True)
            cmul(XC, XB, Z4); put(41 + 2 * k, XC, True)
        for k in range(9): cmul(XB, XB, Z128); put(48 + k, XB, True)
        total = sum(u[0] for u in units)
        cuts = [c.kg_pre] + [c.kg_pre + (total - c.kg_pre) * (i - c.kg_x) / (c.kg_ints - c.kg_x) for i in range(1, 7)]
        X2F = 64
        VCA, VPU, BE9, BO7 = 10, 11, 12, 60
        order = list(range(48, 57)) + list(range(16)) + list(range(32, 48)) + list(range(16, 32))
        lops = []
        for e in order:
            it = [I(f"ds_write_addtid_b32 v{KV+2*e+m} offset:{(e&15)*528+256*m}") for m in range(2)]
            if 36 <= e < 44: it.append(kmfma(2, X2F)[e - 36])
            if e == 46: it += [I(f"v_cndmask_b32 v{KA+8}, 0, v{KA+8}, vcc"), I(f"ds_write_b128 v{VRW}, {v(KA+8,4)} offset:2048")]
            if 20 <= e < 28: it.append(kmfma(1, XF + 32)[e - 20])
            if e == 30: it.append(I(f"ds_write_b128 v{VRW}, {v(KA+4,4)} offset:1024"))
            if e in (15, 31, 47, 56): it += getfr({15: YF, 31: XF, 47: XF + 32, 56: X2F}[e])
            if "2" in c.diag and e < 32 and e % 16 != 15: it = it[2:]
            lops.append(it)
        nl = [0]
        def lds_upto(m):
            while nl[0] < m:
                assert order[nl[0]] in have
                p.extend(lops[nl[0]]); nl[0] += 1
        done = 0; nb = 0; fx = [None]; xt = [None]
        def barrier():
            nonlocal nb
            if nb in ctok: p.wait(ctok[nb])
            if nb == c.r_at and c.r_early: p.wait(w2t[c.r_early - 1])
            if nb == 6 and c.r2: assert c.br0 >= 0 and c.r2 <= 8; p.wait(w2t[c.r2 - 1])
            self.stamp(f"atbar{nb}", sets=(0, 1) if nb == 0 else (1,))
            p("s_barrier")
            if c.a_chunks <= nb + 3 < 7:
                for it in self.dma_chunk(nb + 3, T, ctok): p.extend(it)
            if c.s_touch and nb < 4: touch_upto(c.s_touch[nb + 1])
            if nb == 4: self.stamp("bar4", sets=(0, 3))
            if nb == c.gt_at:
                p(f"s_lshl_b32 s{T}, s{S_MH}, 11\ns_add_u32 s{T}, s{T}, L_gtab-L_pc")
                for h in range(2): p(f"buffer_load_dwordx4 {v(VGT+4*h,4)}, v{VL16}, {s(R_PC,4)}, s{T} offen offset:{1024*h}")
            if nb >= 4 or nb == c.br0:
                while nq[0] < (c.bw2[nb - 4] if nb >= 4 else 4):
                    n = nq[0]; nq[0] += 1
                    pc = (n >> 2) if c.br0 < 0 else (-2 if n < 4 else (n >> 2) - 1)
                    assert pc <= nb - 4 or pc < 0
                    if pc == 3: assert n - 12 < c.r2; pc = 0
                    p(f"s_add_u32 m0, s{S_RING}, {pc*SLOT + (n&3)*2048}\ns_cmp_eq_u32 s{S_WIDX}, {(6-n)%7}\nbuffer_load_dwordx4 v{VW2D}, {s(R_2,4)}, s{S_WOFF} offen lds")
                    w2t[n] = p.tok(f"buffer_load_dwordx4 v{VW2D+1}, {s(R_2,4)}, s{S_WOFF} offen offset:1024 lds")
                    p(f"s_cselect_b32 s{T}, {-7*64*896}, 0\ns_add_u32 s{S_WOFF}, s{S_WOFF}, s{T}\ns_add_u32 s{S_WOFF}, s{S_WOFF}, {(64 + (16 if n % 7 == 6 else 0))*896}")
            if nb < 7 and c.lds_cut[nb] > nl[0]:
                assert done == total and c.lds_cut[nb] <= 23 and (c.br0 < 0 or nb > c.r_at)
                p(f"s_mul_i32 m0, s{S_BW}, 8448"); lds_upto(c.lds_cut[nb])
            if nb == c.band_at:
                assert done == total
                p(f"v_and_b32 v{VT}, 15, v0\nv_lshrrev_b32 v{VT+1}, 4, v0\nv_lshlrev_b32 v{VT+2}, 3, v{VT+1}\ns_movk_i32 s{T}, 0x3f80")
                for bd, m in ((BE9, 0x1ff << 4), (BO7, 0x7f << 5)):
                    p(f"v_mov_b32 v{VT+3}, {m}\nv_lshlrev_b32 v{VT+3}, v{VT}, v{VT+3}\nv_lshrrev_b32 v{VT+3}, v{VT+2}, v{VT+3}")
                    for d in range(4):
                        p(f"v_bfe_u32 v{VT+4}, v{VT+3}, {2*d}, 1\nv_bfe_u32 v{VT+5}, v{VT+3}, {2*d+1}, 1\nv_lshl_or_b32 v{VT+4}, v{VT+5}, 16, v{VT+4}\nv_mul_u32_u24 v{bd+d}, s{T}, v{VT+4}")
                p(f"s_mul_i32 s{T}, s{S_MH}, 768\ns_sub_u32 s{T}, 1200, s{T}\nv_add_u32 v{VPU}, s{T}, v{VUA}")
                p(f"s_mul_i32 s{T}, s{S_CHN}, {TCH}\ns_add_u32 s{S_X}, s{T}, {L_TAB+4*TCP+60}\nv_lshlrev_b32 v{VT+3}, 2, v{VT+1}\nv_sub_u32 v{VT+3}, v{VT+3}, v{VT}\nv_lshl_add_u32 v{VCA}, v{VT+3}, 2, s{S_X}")
                p(f"s_add_u32 s{T}, s{T}, {L_TAB}\nv_and_b32 v{VT+3}, 3, v0\nv_mul_u32_u24 v{VT+3}, {TCP}, v{VT+3}\nv_lshrrev_b32 v{VT+4}, 2, v0\nv_lshl_add_u32 v{VT+3}, v{VT+4}, 4, v{VT+3}\nv_lshl_add_u32 v{VT+3}, v{VT+1}, 11, v{VT+3}")
                p(f"v_lshlrev_b32 v{VT+4}, 2, v0\nv_add_u32 v{VT+4}, {4*TCP}, v{VT+4}\ns_cmp_eq_u32 s{S_MH}, 0\ns_cselect_b64 vcc, -1, 0\nv_cndmask_b32 v{VT+3}, v{VT+3}, v{VT+4}, vcc\nv_add_u32 v{VTZ}, s{T}, v{VT+3}")
            if nb == 5:
                p(f"s_mul_i32 s{T}, s{S_CHN}, 6144\ns_add_u32 s{T}, s{T}, {L_RAW}\ns_cmp_eq_u32 s{S_MH}, 0\ns_cselect_b32 s{S_DSK}, s{S_DSK}, 0")
                p(f"v_mov_b32 v{VT}, s{S_DSK}\nv_cmp_eq_u32 vcc, 0, v0\nv_mov_b32 v{VT+1}, s{T}\nv_mov_b32 v{KA+1}, 0\nv_cndmask_b32 v{KA}, 0, v{VT}, vcc\nv_mov_b32 v{KA+2}, 0\nv_mov_b32 v{KA+3}, 0\nv_cmp_gt_u32 vcc, 48, v0")
                for k in range(16):
                    p(f"v_add_u32_sdwa v{VG+k}, v{VT+1}, v{VGT+(k>>1)} dst_sel:DWORD dst_unused:UNUSED_PAD src0_sel:DWORD src1_sel:WORD_{k&1}")
            nb += 1
        nq = [0]; w2t = {}
        for cost, fn in units:
            while nb < 8 and done >= cuts[min(nb, 6)]: barrier()
            fn(nb == 0); done += cost
        while nb < 8: barrier()
        self.stamp("bar7", sets=(0, 3))
        p(f"s_mul_i32 m0, s{S_BW}, 8448")
        if c.prio_b3 != c.prio_b2: p(f"s_setprio {c.prio_b3}")
        XR, XR2 = 2, 52
        lds_upto(c.fx_ld)
        fx = self.flag_load("X", S_FXR, 8, VFL)
        lds_upto(c.fx_chk)
        self.flag_check(fx, VT)
        p.wait(w2t[nq[0] - 1]); self.lds_post(VONE, VTAG, 4)
        self.stamp("fx", sets=(3,))
        p(f"buffer_load_dwordx4 {v(XR,4)}, v{VL16}, {s(R_WS,4)}, s{S_XTR} offen sc1\ns_add_u32 s{S_XTR}, s{S_XTR}, 4096\nbuffer_load_dwordx4 {v(XR2,4)}, v{VL16}, {s(R_WS,4)}, s{S_XTR} offen sc1")
        lds_upto(57)
        p.extend(kmfma(0, XF))
        T = S_T
        uw = lambda: [p(f"ds_write_b128 v{VUW}, {v(XR2 if ch else XR,4)} offset:{4608*ch}") for ch in range(2)] + [p(f"ds_write_b32 v{VUZ}, v{VZ}")]
        p(f"ds_write_b128 v{VRW}, {v(KA,4)}")
        self.lds_post(VONE, VTAG, 0)
        self.stamp("kgen", sets=(0, 3))
        if c.prio_b4 != c.prio_b3: p(f"s_setprio {c.prio_b4}")
        self.lds_wait(VCN, VT, 0)
        GV, PK = 96, 128
        for k in range(16): p(f"ds_read2st64_b32 {v(GV+2*k,2)}, v{VG+k} offset0:0 offset1:12")
        if c.u_at == 1: uw()
        for k in range(11): p(f"v_add_f32 v{GV+2*k}, v{GV+2*k}, v{GV+2*k+1}")
        for cp_ in range(4):
            for j in range(4): p(f"v_cvt_pk_bf16_f32 v{PK+4*cp_+j}, v{GV+2*(cp_+2*j)}, v{GV+2*(cp_+2*j+1)}")
            p(f"ds_write_b128 v{VTW}, {v(PK+4*cp_,4)} offset:{cp_*TCP+64}")
        for k in range(11, 16): p(f"v_add_f32 v{GV+2*k}, v{GV+2*k}, v{GV+2*k+1}")
        l0, l1 = self.lab("edge"), self.lab("tabd")
        E = lambda k: GV + 2 * (11 + k)
        p(f"v_cvt_pk_bf16_f32 v{PK+16}, v{E(0)}, v{E(1)}\ns_cmp_lg_u32 s{S_MH}, 0\ns_cbranch_scc1 {l0}")
        p.alt_begin()
        p(f"ds_write_b32 v{VTZ}, v{PK+16}\ns_mov_b64 exec, 0xffff\nds_write_b32 v{VTZ}, v{VZ} offset:256\ns_branch {l1}")
        p.alt_else()
        p.label(l0)
        p(f"v_cvt_pk_bf16_f32 v{PK+17}, v{E(2)}, v{E(3)}\nv_cvt_pk_bf16_f32 v{PK+18}, v{E(3)}, v{E(3)}\nv_cvt_pk_bf16_f32 v{PK+19}, v{E(3)}, v{E(4)}")
        p(f"s_mov_b64 exec, 0xffffff\nds_write_b128 v{VTZ}, {v(PK+16,4)}")
        p.alt_end()
        p.label(l1)
        p("s_mov_b64 exec, -1")
        self.stamp("tables", sets=(0, 3, 4))
        if c.u_at == 2: uw()
        self.lds_post(VONE, VTAG, 1)
        self.lds_wait(VCN, VT, 1)
        self.stamp("u", sets=(0, 3, 4))
        if c.prio_b5 != c.prio_b4: p(f"s_setprio {c.prio_b5}")
        TF, UF, CA = 96, 160, 224
        PU, VA, VB, AF, TB = 128, 144, 64, 72, 88
        MF = lambda d, a, b_, z=False: I(f"v_mfma_f32_16x16x32_bf16 {v(d,4)}, {v(a,4)}, {v(b_,4)}, {'0' if z else v(d,4)}")
        def read_tu(ph):
            r = [I(f"ds_read_b128 {v(UF+32*(ph&1),4)}, v{VUA} offset:{2*32*(3-ph)}")]
            for a in range(4):
                for h in range(2):
                    r.append(I(f"ds_read_b64 {v(TF+16*(ph&1)+4*a+2*h,2)}, v{VTA} offset:{2*(160+256*(3-a)+32*(3-ph))+8*h}"))
            return r + [I(f"ds_read_b128 {v(UF+32*(ph&1)+4*b,4)}, v{VUA} offset:{2*(256*b+32*(3-ph))}") for b in range(1, 8)]
        r0 = read_tu(0)
        p.extend(r0[:11])
        for ph in range(4):
            mm = [MF(CA + 4 * (a + b), UF + 32 * (ph & 1) + 4 * b, TF + 16 * (ph & 1) + 4 * a, ph == 0 and (b == 0 or a == 3)) for b in range(8) for a in range(min(4, 8 - b))]
            if ph == 0:
                rp = [I(f"ds_read_b128 {v(PU+8*be+4*o,4)}, v{VPU} offset:{512*be+16*o}") for be in range(2) for o in range(2)]
                ra = [I(f"ds_read2_b32 {v(AF+4*a+2*h,2)}, v{VCA} offset0:{16*(3-a)+2*h} offset1:{16*(3-a)+2*h+1}") for a in range(4) for h in range(2)]
                ra += [I(f"ds_read_b64 {v(TB+2*h,2)}, v{VTA} offset:{8*h}") for h in range(2)]
                mp = [MF(VA + 8 * be + 4 * o, PU + 8 * be + 4 * o, BO7 if o else BE9, True) for be in range(2) for o in range(2)]
                cv = [I(f"v_cvt_pk_bf16_f32 v{VB+4*be+r}, v{VA+8*be+r}, v{VA+8*be+4+r}") for be in range(2) for r in range(4)]
                r1 = read_tu(1)
                p.extend(interleave(mm[:12], r0[11:13] + rp + r0[13:] + ra[:5]))
                p.extend(interleave(mp + mm[12:18], ra[5:] + r1[:8]))
                p.extend(interleave(mm[18:], [[x, y] for x, y in zip(cv, r1[8:])]))
                l0, l1 = self.lab("far1"), self.lab("fard")
                p(f"s_cmp_lg_u32 s{S_MH}, 0\ns_cbranch_scc1 {l0}")
                p.alt_begin()
                p.extend([MF(CA + 4 * (4 + b), UF + 4 * b, TB) for b in range(4)])
                p.extend([MF(CA + 4 * 6, AF, VB), MF(CA + 4 * 7, AF + 4, VB), MF(CA + 4 * 7, AF, VB + 4)])
                p(f"s_branch {l1}")
                p.alt_else()
                p.label(l0)
                p.extend([MF(CA + 4 * (4 + a + be), AF + 4 * a, VB + 4 * be) for be in range(2) for a in range(4 - be)])
                p.alt_end()
                p.label(l1)
            elif ph < 3 and "3" in c.diag: pass
            elif ph < 3: p.extend(interleave(mm, read_tu(ph + 1), ratio=0.8))
            else:
                self.lds_post(VONE, VTAG, 2)
                p.extend(mm[:5]); self.lds_peek(VCN, VT, 2); p.extend(mm[5:11])
                self.lds_check(VCN, VT, 2, fill=lambda: p.extend(mm[11:16])); mm = mm[16:]
                if c.prio_b6 != c.prio_b5 and not c.late6: p(f"s_setprio {c.prio_b6}")
                fill = [I(f"ds_write_b128 v{VEXW}, {v(CA+4*cc,4)} offset:{1024*cc}") for cc in range(4)]
                p.extend(interleave(mm, fill, ratio=0.5))
        if c.prio_b6 != c.prio_b5 and c.late6: p(f"s_setprio {c.prio_b6}")
        self.stamp("conv", sets=(0, 2, 3, 4))
        for cc in range(4, 8): p(f"ds_write_b128 v{VEXW}, {v(CA+4*cc,4)} offset:{1024*cc}")
        self.lds_post(VONE, VTAG, 3)
        EXV, VSA = 96, 10
        if "b" in c.diag:
            p(f"v_lshlrev_b32 v{VT+4}, 7, v0\ns_mov_b64 exec, 15\nbuffer_store_dword v{VTAG}, v{VT+4}, {s(R_WS,4)}, s{S_FSW} offen sc1\ns_mov_b64 exec, -1")
            self.lds_post(VONE, VTAG, 7); p("s_waitcnt lgkmcnt(0)"); self.stamp_flush(1); p("s_endpgm"); return
        self.lds_wait(VCN, VT, 3)
        for k in range(2):
            for w in range(4): p(f"ds_read_b128 {v(EXV+16*k+4*w,4)}, v{VEXR} offset:{8192*w+1024*k}")
        for k in range(2):
            b = EXV + 16 * k
            for r in range(4): p(f"v_add_f32 v{b+r}, v{b+r}, v{b+4+r}\nv_add_f32 v{b+8+r}, v{b+8+r}, v{b+12+r}")
            for r in range(4): p(f"v_cvt_pk_bf16_f32 v{b+4+r}, v{b+r}, v{b+8+r}")
            sttok = p.tok(f"buffer_store_dwordx4 {v(b+4,4)}, v{VL16}, {s(R_WS,4)}, s{S_STW} offen offset:{1024*k} sc1")
        self.stamp("st", sets=(0, 2, 3, 4))
        F = dict(VT=VT, XO=16, PA=18, SA=17, STA=20, XI=24, RG=21, RC=22, XF=128, PV=160, SV=28, SF=136, w=S_BW, sXO=S_FXR, sST=S_XTR, OUT=R_2)
        S_XO = S_STW
        p(f"s_load_dwordx2 {s(R_LD,2)}, s[0:1], 0\ns_load_dwordx2 {s(R_2,2)}, s[0:1], 104\ns_mov_b32 s{R_LD+2}, {2048*896}\ns_mov_b32 s{R_2+2}, {2048*896}\ns_add_u32 s{S_XO}, s{S_STR}, {8*8192}")
        self.fin_addr(0, F, 0); self.fin_addr(0, F, 1)
        if "S" not in c.spoll: p(f"v_min_u32 v{VFL}, 15, v0\nv_lshlrev_b32 v{VFL}, 2, v{VFL}")
        p(f"s_mul_i32 s{T}, s{S_BW}, 2304\ns_add_u32 s{T}, s{T}, {L_STR}")
        p(f"v_and_b32 v{VT+4}, 32, v0\nv_lshl_add_u32 v{VT+4}, v0, 3, v{VT+4}\nv_add_u32 v{VSA}, s{T}, v{VT+4}")
        p(f"v_lshrrev_b32 v{VT+4}, 3, v0\nv_lshlrev_b32 v{VT+4}, 13, v{VT+4}\nv_and_b32 v{VT+5}, 7, v0\nv_lshl_add_u32 v{VSA+2}, v{VT+5}, 4, v{VT+4}\nv_lshlrev_b32 v{VT+4}, 7, v0")
        p.wait(sttok)
        if "S" in c.sflag: self.sflags4(S_FSW)
        else: p(f"s_mov_b64 exec, 15\nbuffer_store_dword v{VTAG}, v{VT+4}, {s(R_WS,4)}, s{S_FSW} offen sc1\ns_mov_b64 exec, -1")
        self.stamp("flagS")
        if c.prio_b7 != c.prio_b6: p(f"s_setprio {c.prio_b7}")
        if c.b_xat == 0: self.fin_loads(F)
        fs = self.flag_load("S", S_FSR, 16, VFL)
        self.flag_check(fs, VT, sleep=c.fs_sleep)
        self.stamp("fs", sets=(0, 2, 3))
        if c.prio_b8 != c.prio_b7: p(f"s_setprio {c.prio_b8}")
        SV = 64
        for j in range(2): p(f"buffer_load_dwordx4 {v(SV+4*j,4)}, v{VSA+2}, {s(R_WS,4)}, s{S_XO if j else S_STR} offen sc1")
        if c.b_xat == 1: self.fin_loads(F)
        for j in range(2): p(f"ds_write2_b64 v{VSA}, {v(SV+4*j,2)}, {v(SV+4*j+2,2)} offset0:{72*j} offset1:{72*j+144}")
        self.lds_post(VONE, VTAG, 7)
        self.stamp("sready", sets=(0, 2, 3))
        self.fin_sread(F); p.extend(self.fin_prep(F)); p.extend(self.fin_sprep(F))
        self.lds_wait(VCN, VT, 5, sleep=c.b5_sleep)
        if c.prio_b9 != c.prio_b8: p(f"s_setprio {c.prio_b9}")
        self.fin_out(F)
        self.stamp("end", sets=(0, 2, 3, 4, 9))
        self.stamp_flush(1)
        p("s_endpgm")

    def head_h(self):
        p, c = self.p, self.c
        p.label("L_helper")
        self.role_start()
        S_HH, S_X, S_Z, VT, XD = 64, 65, 72, 1, 16
        if c.prefetch_code and c.pf_h:
            p(f"s_sub_u32 s{S_X}, s{S_J}, 28\ns_lshl3_add_u32 s{S_X}, s{S_X}, s{S_WAVE}\ns_lshl_b32 s{S_X}, s{S_X}, 7\nv_lshlrev_b32 v255, 12, v0\ns_mov_b64 exec, 0x1ff")
            p(f"buffer_load_dword v255, v255, {s(R_PC,4)}, s{S_X} offen\ns_mov_b64 exec, -1")
        p(f"s_lshl2_add_u32 s{S_HH}, s{S_XCD}, s{S_J}\ns_sub_u32 s{S_HH}, s{S_HH}, 28\ns_lshl3_add_u32 s{S_Z}, s{S_HH}, s{S_WAVE}\ns_mul_i32 s{S_X}, s{S_Z}, {8*896}")
        p(f"v_lshrrev_b32 v{VT+2}, 3, v0\nv_mul_u32_u24 v{VT}, 896, v{VT+2}\nv_and_b32 v{VT+1}, 7, v0\nv_lshl_add_u32 v{VT}, v{VT+1}, 4, v{VT}")
        srd(p, R_LD, P_U, 2048 * 896)
        for i in range(7): p(f"buffer_load_dwordx4 {v(XD+4*i,4)}, v{VT}, {s(R_LD,4)}, s{S_X} offen offset:{128*i}")
        if c.h_near: p("s_branch L_bodyH")
    def role_h(self):
        p, c = self.p, self.c
        S_HH, S_X, S_Y, S_ONE, S_LO, S_HI, S_Q, S_CG, S_Z = range(64, 73)
        T = S_T
        VT, XD, WD, AC, CS, UP = 1, 16, 48, 80, 88, 96
        L_XN = 8192
        if c.h_near:
            if c.h_align: p(".p2align 12")
            p.label("L_bodyH"); p.reset()
            if c.prefetch_code: p.items.append(Marker("pending", ("vmem", {"v255"})))
            for i in range(7): p.items.append(Marker("pending", ("vmem", {f"v{XD+4*i+j}" for j in range(4)})))
        else: self.head_h()
        self.stamp_begin("H")
        self.load_epoch(); srd(p, R_2, P_W1, 448 * 3584); srd(p, R_PC, P_W2, 1792 * 896)
        p(f"s_lshr_b32 s{S_Q}, s{S_XCD}, 1\ns_lshl2_add_u32 s{S_Q}, s{S_Q}, s{S_J}\ns_sub_u32 s{S_Q}, s{S_Q}, 28\ns_and_b32 s{S_CG}, s{S_XCD}, 1\ns_mul_i32 s{S_CG}, s{S_CG}, 14\ns_add_u32 s{S_CG}, s{S_CG}, s{S_Q}")
        p(f"s_lshl_b32 s{T}, s{S_CG}, 7\ns_mul_i32 s{S_Y}, s{S_WAVE}, {56*3584}\ns_add_u32 s{S_Y}, s{S_Y}, s{T}\ns_cmp_ge_u32 s{S_Q}, 14\ns_cselect_b32 s{S_Y}, {448*3584}, s{S_Y}")
        p(f"v_mul_u32_u24 v{VT+3}, 3584, v{VT+2}\nv_lshl_add_u32 v{VT+3}, v{VT+1}, 4, v{VT+3}")
        p(f"s_mov_b32 s{S_ONE}, 0x3f803f80\ns_mov_b32 s{S_LO}, 0x00003f80\ns_mov_b32 s{S_HI}, 0x3f800000")
        p(f"s_lshl_b32 s{S_X}, s{S_Z}, 6\ns_add_u32 s{S_X}, s{S_X}, {WS_STAT}")
        p(f"s_mul_i32 s{T}, s{S_WAVE}, 7232\ns_add_u32 s{T}, s{T}, {L_XN}\nv_add_u32 v{VT}, s{T}, v{VT}")
        for i in range(4): p(f"v_mov_b32 v{AC+i}, 0")
        for k in range(8): p(f"v_mov_b32 v{CS+k}, 0")
        self.make_tag()
        def w1_loads():
            for i in range(7):
                p(f"buffer_load_dwordx4 {v(WD+4*i,4)}, v{VT+3}, {s(R_2,4)}, s{S_Y} offen")
                if i < 6: p(f"s_add_u32 s{S_Y}, s{S_Y}, {8*3584}")
        def touch():
            p(f"s_sub_u32 s{T}, s{S_J}, 28\ns_mul_i32 s{T}, s{T}, 7\ns_add_u32 s{T}, s{T}, s{S_WAVE}\ns_lshl3_add_u32 s{T}, s{T}, s{S_XCD}\ns_mul_i32 s{T}, s{T}, {8*896}\ns_cmp_eq_u32 s{S_WAVE}, 7\ns_cselect_b32 s{T}, {1792*896}, s{T}")
            p(f"v_min_u32 v120, 55, v0\nv_lshlrev_b32 v120, 7, v120\nbuffer_load_dword v121, v120, {s(R_PC,4)}, s{T} offen")
        if c.h_w1 == 0: w1_loads()
        if c.h_w1 == 1: p.items.append(Marker("need", XD + 27)); w1_loads()
        self.stamp("issued")
        for i in range(28):
            p(f"v_dot2_f32_bf16 v{AC+(i&1)}, v{XD+i}, s{S_ONE}, v{AC+(i&1)}\nv_dot2_f32_bf16 v{AC+2+(i&1)}, v{XD+i}, v{XD+i}, v{AC+2+(i&1)}")
        p(f"v_add_f32 v{AC}, v{AC}, v{AC+1}\nv_add_f32 v{AC+1}, v{AC+2}, v{AC+3}")
        for pat in ("quad_perm:[1,0,3,2]", "quad_perm:[2,3,0,1]", "row_half_mirror"):
            for k in range(2): p(f"v_add_f32_dpp v{AC+k}, v{AC+k}, v{AC+k} {pat} row_mask:0xf bank_mask:0xf")
        inv = 0x3b124925
        p(f"v_mul_f32 v{AC}, {inv}, v{AC}\nv_mul_f32 v{AC+1}, {inv}, v{AC+1}\nv_fma_f32 v{AC+1}, -v{AC}, v{AC}, v{AC+1}\nv_max_f32 v{AC+1}, 0, v{AC+1}")
        p(f"v_cvt_pk_bf16_f32 v{AC+1}, v{AC+1}, v{AC+1}\nv_and_b32 v{AC+1}, 0xffff0000, v{AC+1}\nv_add_f32 v{AC+1}, 0x3727c5ac, v{AC+1}")
        p(f"v_cvt_pk_bf16_f32 v{AC+1}, v{AC+1}, v{AC+1}\nv_and_b32 v{AC+1}, 0xffff0000, v{AC+1}\nv_sqrt_f32 v{AC+1}, v{AC+1}")
        p(f"v_mov_b32 v{AC+3}, s{S_TAG}\nv_cvt_pk_bf16_f32 v{AC+2}, v{AC}, v{AC+1}")
        p(f"s_mov_b32 exec_lo, 0x01010101\ns_mov_b32 exec_hi, 0x01010101\nbuffer_store_dwordx2 {v(AC+2,2)}, v0, {s(R_WS,4)}, s{S_X} offen sc1\ns_mov_b64 exec, -1")
        if c.h_w1 == 2: w1_loads()
        if c.h_touch == 0: touch()
        self.stamp("stats")
        p(f"v_and_b32 v{AC+4}, 0xffff0000, v{AC+2}\nv_rcp_f32 v{AC+4}, v{AC+4}\nv_lshlrev_b32 v{AC+6}, 16, v{AC+2}\nv_mov_b32 v{AC+5}, v{AC+4}\nv_mul_f32 v{AC+6}, -v{AC+6}, v{AC+4}\nv_mov_b32 v{AC+7}, v{AC+6}")
        for i in range(7):
            u = UP + 8 * (i & 1)
            for j in range(4): p(f"v_lshlrev_b32 v{u+2*j}, 16, v{XD+4*i+j}\nv_and_b32 v{u+2*j+1}, 0xffff0000, v{XD+4*i+j}")
            for j in range(4): p(f"v_pk_fma_f32 {v(u+2*j,2)}, {v(u+2*j,2)}, {v(AC+4,2)}, {v(AC+6,2)}")
            for j in range(4): p(f"v_cvt_pk_bf16_f32 v{XD+4*i+j}, v{u+2*j}, v{u+2*j+1}")
            p(f"ds_write_b128 v{VT}, {v(XD+4*i,4)} offset:{128*i}")
        if c.h_touch == 1: touch()
        self.stamp("norm")
        for i in range(7):
            for j in range(4):
                p(f"v_dot2_f32_bf16 v{CS+2*j}, v{WD+4*i+j}, s{S_LO}, v{CS+2*j}\nv_dot2_f32_bf16 v{CS+2*j+1}, v{WD+4*i+j}, s{S_HI}, v{CS+2*j+1}")
        for k in range(8): p(f"v_add_f32_dpp v{CS+k}, v{CS+k}, v{CS+k} row_ror:8 row_mask:0xf bank_mask:0xf")
        p(f"v_and_b32 v{VT+3}, 8, v0\nv_cmp_eq_u32 vcc, 0, v{VT+3}\nv_lshlrev_b32 v{VT+3}, 1, v{VT+3}\nv_lshl_add_u32 v{VT+3}, v{VT+1}, 5, v{VT+3}\nv_lshrrev_b32 v{VT+4}, 4, v0\nv_lshl_add_u32 v{VT+3}, v{VT+4}, 8, v{VT+3}")
        p(f"s_lshl_b32 s{T}, s{S_WAVE}, 10\nv_add_u32 v{VT+3}, s{T}, v{VT+3}")
        for k in range(4): p(f"v_cndmask_b32 v{CS+k}, v{CS+4+k}, v{CS+k}, vcc")
        p(f"ds_write_b128 v{VT+3}, {v(CS,4)}")
        p(f"s_lshl_b32 s{T}, s{S_WAVE}, 7\ns_add_u32 s{T}, s{T}, {L_XN}\nv_mul_u32_u24 v{VT}, 7232, v{VT+1}\nv_lshl_add_u32 v{VT}, v{VT+2}, 4, v{VT}\nv_add_u32 v{VT}, s{T}, v{VT}")
        p(f"v_lshlrev_b32 v{VT+2}, 15, v{VT+2}\nv_lshl_add_u32 v{VT+2}, v{VT+1}, 4, v{VT+2}\nv_lshlrev_b32 v{VT+4}, 7, v0")
        p(f"s_lshl_b32 s{S_X}, s{S_WAVE}, 11\ns_add_u32 s{S_X}, s{S_X}, s{S_HH}\ns_lshl_b32 s{S_X}, s{S_X}, 7\ns_add_u32 s{S_X}, s{S_X}, {WS_XT}")
        p(f"s_lshr_b32 s{T}, s{S_HH}, 3\ns_lshl2_add_u32 s{S_Y}, s{S_WAVE}, s{T}\ns_lshl_b32 s{S_Y}, s{S_Y}, 7\ns_and_b32 s{T}, s{S_HH}, 7\ns_add_u32 s{S_Y}, s{S_Y}, s{T}\ns_lshl2_add_u32 s{S_Y}, s{S_Y}, {WS_FX}")
        p(f"s_mov_b32 s{S_LO}, 0x05040100\ns_mov_b32 s{S_HI}, 0x07060302\ns_waitcnt lgkmcnt(0)\ns_barrier")
        self.stamp("bar")
        p(f"s_cmp_eq_u32 s{S_WAVE}, 7\ns_cbranch_scc1 L_h7")
        p.alt_begin()
        for j in range(8): p(f"ds_read_b128 {v(XD+4*j,4)}, v{VT} offset:{896*j}")
        if c.h_touch == 2: touch()
        for e in range(8):
            o = WD + 4 * e
            for j in range(4): p(f"v_perm_b32 v{o+j}, v{XD+4*(2*j+1)+(e>>1)}, v{XD+4*(2*j)+(e>>1)}, s{S_HI if e&1 else S_LO}")
            p(f"buffer_store_dwordx4 {v(o,4)}, v{VT+2}, {s(R_WS,4)}, s{S_X} offen sc1")
            if e < 7: p(f"s_add_u32 s{S_X}, s{S_X}, 4096")
        p("s_waitcnt vmcnt(0)")
        if "X" in c.sflag: self.sflags4(S_Y)
        else: p(f"s_mov_b64 exec, 15\nbuffer_store_dword v{AC+3}, v{VT+4}, {s(R_WS,4)}, s{S_Y} offen sc1\ns_mov_b64 exec, -1")
        p("s_branch L_hdone")
        p.alt_else()
        p.label("L_h7")
        p(f"s_setprio 3\ns_cmp_ge_u32 s{S_Q}, 14\ns_cbranch_scc1 L_hdone\nv_lshlrev_b32 v{VT+3}, 2, v0")
        for i in range(16): p(f"ds_read2st64_b32 {v(XD+2*i,2)}, v{VT+3} offset0:{2*i} offset1:{2*i+1}")
        for st in (16, 8, 4, 2):
            for i in range(0, st, 2): p(f"v_pk_add_f32 {v(XD+i,2)}, {v(XD+i,2)}, {v(XD+st+i,2)}")
        p(f"v_add_f32 v{AC+2}, v{XD}, v{XD+1}\nv_lshlrev_b32 v{VT+3}, 3, v0\ns_lshl_b32 s{T}, s{S_CG}, 9\ns_add_u32 s{T}, s{T}, {WS_CS}")
        p(f"buffer_store_dwordx2 {v(AC+2,2)}, v{VT+3}, {s(R_WS,4)}, s{T} offen sc1")
        p.alt_end()
        p.label("L_hdone")
        p("s_setprio 0\ns_waitcnt lgkmcnt(0)")
        self.stamp("done")
        p(f"v_min_u32 v{VT}, 55, v0\ns_sub_u32 s{S_Z}, s{S_J}, 28")
        if c.h_pf:
            p("s_barrier")
            p(f"s_mul_i32 s{T}, s{S_Z}, 7\ns_add_u32 s{T}, s{T}, s{S_WAVE}\ns_mul_i32 s{T}, s{T}, {64*896}\ns_cmp_eq_u32 s{S_WAVE}, 7\ns_cselect_b32 s{T}, {1792*896}, s{T}\nv_lshlrev_b32 v{VT+1}, 7, v{VT}")
            for st in c.h_pf:
                for h in range(2):
                    p(f"s_add_u32 s{T+1}, s{T}, {(16*st+8*h)*896}\nbuffer_load_dword v{VT+2}, v{VT+1}, {s(R_PC,4)}, s{T+1} offen")
        self.stamp("pfw")
        if c.h_act:
            p(f"s_lshr_b32 s{T}, s{S_WAVE}, 2\ns_mul_i32 s{T}, s{T}, 56\nv_add_u32 v{VT}, s{T}, v{VT}\nv_lshrrev_b32 v{VT+1}, 4, v{VT}\nv_lshlrev_b32 v{VT+1}, 13, v{VT+1}\nv_and_b32 v{VT}, 15, v{VT}\nv_lshl_add_u32 v{VT+1}, v{VT}, 7, v{VT+1}")
            p(f"s_and_b32 s{T}, s{S_WAVE}, 3\ns_lshl2_add_u32 s{S_X}, s{S_HH}, s{T}\ns_mul_i32 s{S_X}, s{S_X}, {28*2048}\ns_add_u32 s{S_X}, s{S_X}, {WS_ACT}")
            p(f"s_lshl4_add_u32 s{S_Y}, s{S_HH}, s{T}\ns_lshl_b32 s{S_Y}, s{S_Y}, 7\ns_add_u32 s{S_Y}, s{S_Y}, {WS_FA}")
            have = -1
            for st in c.h_act:
                p(f"s_add_u32 s{S_HI}, s{S_X}, {2048*st}")
                if st > have:
                    have = min(x for x in c.fstages if x >= st)
                    p(f"s_add_u32 s{S_LO}, s{S_Y}, {512*have}")
                    self.flag_check(self.flag_load("H", S_LO, 7, None), None, sleep=c.h_sleep)
                p(f"buffer_load_dword v{VT+2}, v{VT+1}, {s(R_WS,4)}, s{S_HI} offen sc1")
                self.stamp(f"pa{st}")
        p(f"s_waitcnt vmcnt(0)")
        self.stamp("pfa")
        p(f"s_cmp_lg_u32 s{S_HH}, 31\ns_cbranch_scc1 L_hend\ns_cmp_lg_u32 s{S_WAVE}, 7\ns_cbranch_scc1 L_hend")
        p(f"v_lshrrev_b32 v{VT}, 2, v0\nv_min_u32 v{VT}, 13, v{VT}\nv_lshlrev_b32 v{VT}, 9, v{VT}\nv_and_b32 v{VT+1}, 3, v0\nv_lshl_add_u32 v{VT}, v{VT+1}, 4, v{VT}\ns_mov_b32 s{S_X}, {WS_FS}")
        ld = f"s_sleep 8\nbuffer_load_dwordx4 {v(XD,4)}, v{VT}, {s(R_WS,4)}, s{S_X} offen sc1"
        p(ld)
        self.tagged_check(ld, [XD, XD + 1, XD + 2, XD + 3], VT + 2)
        p(f"s_mov_b32 s{S_X}, {WS_EPOCH}")
        self.flag_store(S_X, AC + 3)
        p.label("L_hend")
        self.stamp_flush(1)
        p("s_endpgm")

    def layout(self, body):
        c = self.c
        lines = body.split("\n")
        sizes = instr_sizes([re.sub(r"L_hop\d", "L_bodyA", l) for l in lines])
        end = lines.index("L_bodyH:") if c.h_near else lines.index("L_helper:")
        out, addr, page, k = [], 0, 1, 0
        prom = None
        fixed = [0, 0]
        for i, l in enumerate(lines):
            t = l.strip()
            if t.startswith(".p2align"):
                al = 1 << int(t.split()[1]); addr = (addr + al - 1) // al * al; prom = None
            if c.hops and sizes[i] and addr >= 4096 * page and i < end:
                out += [f"L_hop{k}:", f"    s_cbranch_execz {'L_bodyA' if k == 0 else 'HOP%d' % (k + 4)}"]; addr += 4; page += 1; k += 1; prom = None
            if c.align8 and sizes[i] == 8 and addr % 8 == 4:
                run, pend, valu = 0, 0, 0
                for j in range(i, min(len(lines), i + 60)):
                    if sizes[j] == 4: pend ^= 1
                    elif sizes[j] == 8:
                        if pend: break
                        run += 1; valu += lines[j].strip().startswith("v_") and "mfma" not in lines[j]
                if prom is not None and run >= 2:
                    m = re.match(r"(\s*)(v_\w+)(.*)", out[prom]); out[prom] = m.group(1) + m.group(2) + "_e64" + m.group(3); addr += 4; fixed[0] += 1
                elif valu >= c.align8:
                    out.append("    s_nop 0"); addr += 4; fixed[1] += 1
            if sizes[i] == 8: prom = None
            elif sizes[i] == 4 and re.match(r"v_(mov|add|sub|subrev|mul|and|or|xor|lshlrev|lshrrev|exp|rcp|sin|cos|fract|min|max|cvt|sqrt)_", t): prom = len(out)
            out.append(l); addr += sizes[i]
        body = "\n".join(out)
        if c.hops:
            assert c.align4k and k >= 5
            for j in range(k + 3, 4, -1): body = body.replace(f"HOP{j}", f"L_hop{j}" if j < k else "L_hopped")
        self.p.stats["align"] = fixed
        return body
    def build(self):
        p = self.p
        self.entry()
        self.role_a(); self.role_h()
        p.reset()
        p.label("L_exit")
        p("s_endpgm")
        p(".p2align 7")
        p(".type L_gtab,@object")
        p.label("L_gtab")
        w = self.gather_table()
        for i in range(0, len(w), 8): p(".long " + ", ".join(hex(x) for x in w[i:i+8]))
        p.label("L_end")
        body = p.resolve()
        head = open("recurrent_scan__ssm_conv_s4__dense_activation_mish__prompt.s.ref").read().split("; Override launch")[0]
        txt = head + f"; @launch grid=(256,1,1) block=(512,1,1) lds={LDS_BYTES}\n" + DOC + ""
        pad = ".p2align 12\n.fill 832, 4, 0xbf810000\n" if self.c.align4k else ""
        txt += f'.amdgcn_target "amdgcn-amd-amdhsa--gfx950"\n.text\n{pad}.globl {KNAME}\n.p2align 8\n.type {KNAME},@function\n{KNAME}:\n'
        if "m" in self.c.diag or "n" in self.c.diag:
            cnt = [0]
            def sub(m):
                cnt[0] += 1
                k = (cnt[0] - 1) // 4
                if ("m" if k < 28 else "n") not in self.c.diag: return m.group(0)
                a = int(m.group(1)) + 8 * (k & 1); z = k % 28 < 2
                return "\n".join(f"    v_mfma_f32_16x16x32_bf16 v[{a+4*i}:{a+4*i+3}], {m.group(2)}, {m.group(3)}, " + ("0" if z else f"v[{a+4*i}:{a+4*i+3}]") for i in range(2))
            body = re.sub(r"    v_mfma_f32_32x32x16_bf16 v\[(\d+):\d+\], (v\[\d+:\d+\]), (v\[\d+:\d+\]), \S+", sub, body)
        if self.c.dma_fl: body = re.sub(r" lds$", f" {self.c.dma_fl} lds", body, flags=re.M)
        body = self.layout(body)
        txt += body
        txt += f""".section .rodata,"a"
.p2align 6
.amdhsa_kernel {KNAME}
  .amdhsa_next_free_vgpr 256
  .amdhsa_next_free_sgpr 102
  .amdhsa_accum_offset 256
  .amdhsa_group_segment_fixed_size 0
  .amdhsa_kernarg_size 128
  .amdhsa_user_sgpr_count 2
  .amdhsa_user_sgpr_kernarg_segment_ptr 1
  .amdhsa_system_sgpr_workgroup_id_x 1
.end_amdhsa_kernel
"""
        return txt

def parse_cfg(args):
    kw = {}
    for a in args:
        k, x = a.split("=")
        kw[k] = eval(x)
    return Cfg(**kw)

if __name__ == "__main__":
    out = sys.argv[1]
    g = Gen(parse_cfg(sys.argv[2:]))
    txt = g.build()
    open(out, "w").write(txt)
    import json
    json.dump(g.stamp_names, open(out + ".stamps.json", "w"))
    print(out, g.p.stats)
```

```python
import sys, re
from asmgen import *

KNAME = "recurrent_scan__ssm_conv_s4__dense_activation_mish__prompt_kernel"

class Cfg:
    stamps = False
    sset = 0
    cyc = False
    probe2 = None
    probe = None
    prefetch_code = True
    pf_h = False
    align4k = True
    align8 = 6
    hops = True
    mapP = False
    rot2 = 0
    qperm = False
    g2_mix = True
    act_st = 'sc1'
    act_ld = 'sc1'
    fa_st = 'sc1'
    mish_pk = False
    sflag = 'XAS'
    spoll = 'XASH'
    adepth = 7
    flead = 6
    pre_dma = 32
    nfirst = 8
    a_delay = 0
    a_chunks = 4
    dma_per = (8, 8, 8, 8, 8, 8, 8)
    gran_at = 5
    bw2 = (8, 12, 16, 16)
    w2_mish = 0
    fx_ld = 9
    fx_chk = 29
    u_at = 1
    lds_cut = (0, 0, 0, 0, 0, 0, 0)
    r_early = 4
    r_at = 4
    r2 = 8
    nx = 2
    b7_at = -3
    br0 = 0
    late6 = True
    band_at = 3
    out_fl = 'nt'
    mish_skip = 0.0
    w2_lead = 9
    w2_rate = 0.0
    w2_gap = 2
    rdepth = 3
    fstages = (3,)
    cstages = None
    flag_lag = 2
    gt_at = 2
    b_pre = 1.0
    kg_pre = 9999
    kg_ints = 4
    kg_x = 0.0
    h_w1 = 2
    h_touch = -1
    s_touch = (7, 14, 14, 14, 14)
    h_near = True
    h_align = True
    h_pf = ()
    diag = ''
    jitter = 0
    h_act = ()
    h_sleep = 4
    rot1 = 0
    fs_sleep = 3
    b_xat = 0
    prio_b = 1
    prio_b2 = 0
    prio_b3 = 1
    prio_b4 = 1
    prio_b5 = 1
    prio_b6 = 0
    prio_b7 = 0
    prio_b8 = 1
    prio_a1 = 2
    prio_a2 = 0
    tail_m = 5
    tail_ld = True
    tail_k = 3
    tail_r = None
    fin_at = (1, 2, 3, 21)
    prio_b9 = 0
    b5_sleep = 1
    pre_loop = 'R12 D20 W F D26 L C A8'
    dma_fl = ''
    def __init__(self, **kw):
        for k, x in kw.items():
            assert hasattr(self, k), k
            setattr(self, k, x)

WS_EPOCH, WS_FX, WS_FA, WS_FS = 0, 0x1000, 0x20000, 0x8000
WS_STAT, WS_CS, WS_XT, WS_ST, WS_ACT, WS_DBG = 0x10000, 0x14000, 0x40000, 0x200000, 0x600000, 0xE00000
WS_SIZE = 0x1000000
TAGC = 0x9E3779B1
SLOT = 32768
L_RING = 2 * SLOT
L_STG = 0
L_TAB = 512
TCP, TCH = 2240, 9472
L_EX = 0
L_RAW = SLOT + 1024
L_U = L_TAB + 2 * TCH
L_X = L_RAW
L_STR = L_RAW + 21504
L_CNT = L_RAW + 30720
LDS_BYTES = 163840
P_U, P_ARE, P_AIM, P_BRE, P_BIM, P_CRE, P_CIM, P_LDT = 4, 6, 8, 10, 12, 14, 16, 18
P_DSK, P_BX, P_W1, P_B1, P_W2, P_OUT, P_DBG, P_WS = 20, 22, 24, 26, 28, 30, 32, 34
R_LD, R_2, R_WS, R_PC = 36, 40, 44, 48
S_TAG, S_TAG2, S_WAVE, S_XCD, S_J, S_RT, S_CT, S_CP = 52, 53, 54, 55, 56, 57, 58, 97
S_SOFF, S_CSTR, S_LDB, S_CW, S_WT, S_WF = range(64, 70)
VD = 1
B_BW, B_LDT, B_DSK, B_STW, B_VP = 70, 71, 72, 73, 10
S_R2, S_C2 = 60, 61
S_T = 62
S_SP = 80
S_JR, S_XF = 3, 59
S_CNT = 96
S_T0 = 98
LOG2E = 0x3fb8aa3b
POLL_MAX = 1 << 17

DOC = """;
; Hand-offs go through d_ws with write-through stores; flags and tagged words hold a value derived from an epoch word in d_ws,
"""

def srd(p, r, ptr, size):
    p(f"s_mov_b32 s{r}, s{ptr}\ns_mov_b32 s{r+1}, s{ptr+1}\ns_mov_b32 s{r+2}, {size}\ns_mov_b32 s{r+3}, 0x20000")

class Gen:
    def __init__(self, cfg):
        self.c = cfg
        self.p = Prog()
        self.nlab = 0
        self.stamp_names = {}
    def lab(self, base):
        self.nlab += 1
        return f"L_{base}_{self.nlab}"

    def stamp_begin(self, role):
        self.role = role; self.stamp_names[role] = []
    def stamp(self, name, p=None, sets=(0,)):
        if self.c.jitter:
            q = p or self.p; l = self.lab("jit"); k = self.nlab * 40503 + self.c.jitter * 9176
            q(f"s_lshl3_add_u32 s100, s2, s{S_WAVE}\ns_add_u32 s100, s100, {k & 0xffff}\ns_mul_i32 s100, s100, 0x9E3779B1\ns_add_u32 s100, s100, s{S_TAG}\ns_mul_i32 s100, s100, 0x85EBCA6B\ns_lshr_b32 s100, s100, 29\ns_cmp_lg_u32 s100, 0\ns_cbranch_scc1 {l}\ns_sleep {(20, 60, 120)[self.nlab % 3]}")
            q.label(l)
        if self.c.probe2 and self.role == "A":
            if name == self.c.probe2[0]: (p or self.p)("s_memrealtime s[100:101]")
            if name == self.c.probe2[1]: (p or self.p)("s_memrealtime s[32:33]")
        if self.c.probe == (self.role, name): (p or self.p)("s_memrealtime s[100:101]")
        if not self.c.stamps or self.c.sset not in sets: return
        p = p or self.p
        n = len(self.stamp_names[self.role]); assert n < 15
        self.stamp_names[self.role].append(name)
        p(f"{'s_memtime' if self.c.cyc else 's_memrealtime'} {s(4+2*n, 2)}")
    def stamp_flush(self, vt):
        if self.c.probe2 and self.role == "A":
            l0, l1 = self.lab("probe"), self.lab("noprobe")
            self.p(f"s_waitcnt vmcnt(0) lgkmcnt(0)\ns_cmp_lg_u32 s2, {self.c.probe2[2]}\ns_cbranch_scc1 {l1}\ns_cmp_lg_u32 s{S_WAVE}, 1\ns_cbranch_scc1 {l1}")
            self.p("s_sub_u32 s32, s32, s100\ns_mul_i32 s32, s32, 20\ns_add_u32 s32, s32, 3000")
            self.p.label(l0)
            self.p(f"s_memrealtime s[30:31]\ns_waitcnt lgkmcnt(0)\ns_sub_u32 s30, s30, s98\ns_cmp_lt_u32 s30, s32\ns_cbranch_scc1 {l0}")
            self.p.label(l1)
        if self.c.probe and self.c.probe[0] == self.role:
            l0 = self.lab("probe")
            self.p("s_waitcnt vmcnt(0) lgkmcnt(0)")
            self.p.label(l0)
            self.p(f"s_memrealtime s[98:99]\ns_waitcnt lgkmcnt(0)\ns_sub_u32 s98, s98, s100\ns_cmp_lt_u32 s98, 6000\ns_cbranch_scc1 {l0}")
        if not self.c.stamps: return
        p = self.p
        n = len(self.stamp_names[self.role])
        p("s_waitcnt vmcnt(0) lgkmcnt(0)\ns_mov_b64 exec, 1")
        p(f"s_lshl_b32 s{S_T}, s2, 3\ns_add_u32 s{S_T}, s{S_T}, s{S_WAVE}\ns_lshl_b32 s{S_T}, s{S_T}, 6\ns_add_u32 s{S_T}, s{S_T}, {WS_DBG}")
        p(f"v_mov_b32 v{vt}, s{S_T0}\nbuffer_store_dword v{vt}, off, {s(R_WS,4)}, s{S_T}")
        for i in range(n):
            p(f"v_mov_b32 v{vt+1+(i&1)}, s{4+2*i}\nbuffer_store_dword v{vt+1+(i&1)}, off, {s(R_WS,4)}, s{S_T} offset:{4+4*i}")
        p("s_waitcnt vmcnt(0)")

    def flag_store(self, soff, vt):
        p = self.p
        p(f"s_mov_b64 exec, 1\nbuffer_store_dword v{vt}, off, {s(R_WS,4)}, s{soff} sc1\ns_mov_b64 exec, -1")
    def sflags4(self, soff):
        for i in range(4):
            self.p(f"s_atomic_swap s{S_TAG}, {s(R_WS,2)}, s{soff}")
            if i < 3: self.p(f"s_add_u32 s{soff}, s{soff}, 128")
    def lds_post(self, vown, vtag, k):
        self.p(f"s_mov_b64 exec, 1\nds_write_b32 v{vown}, v{vtag} offset:{16*k}\ns_mov_b64 exec, -1")
    def lds_wait(self, vaddr, vt, k, sleep=0):
        p = self.p
        l0, l1 = self.lab("spin"), self.lab("spun")
        p(f"s_mov_b32 s{S_CNT}, 0")
        p.label(l0)
        if sleep: p(f"s_sleep {sleep}")
        p(f"ds_read_b32 v{vt}, v{vaddr} offset:{16*k}\ns_add_u32 s{S_CNT}, s{S_CNT}, 1\ns_cmp_gt_u32 s{S_CNT}, {POLL_MAX*8}\ns_waitcnt lgkmcnt(0)")
        p(f"v_cmp_ne_u32 vcc, s{S_TAG}, v{vt}\ns_cbranch_scc1 {l1}\ns_cbranch_vccnz {l0}")
        p.label(l1)
    def lds_peek(self, vaddr, vt, k):
        self.p(f"ds_read_b32 v{vt}, v{vaddr} offset:{16*k}")
    def lds_check(self, vaddr, vt, k, fill=None):
        p = self.p
        l1 = self.lab("pass")
        p(f"v_cmp_ne_u32 vcc, s{S_TAG}, v{vt}")
        if fill: fill()
        p(f"s_cbranch_vccz {l1}")
        p.alt_begin(); self.lds_wait(vaddr, vt, k); p.alt_end()
        p.label(l1)
    def tagged_check(self, loads, tagregs, vt, on_miss=None):
        p = self.p
        l0, l1 = self.lab("chk"), self.lab("chkd")
        p(f"s_mov_b32 s{S_CNT}, 0")
        for r in reversed(tagregs): p.items.append(Marker("need", r))
        p.label(l0)
        p(f"v_xor_b32 v{vt}, s{S_TAG}, v{tagregs[0]}")
        for r in tagregs[1:]:
            p(f"v_bitop3_b32 v{vt}, v{r}, s{S_TAG}, v{vt} bitop3:0xbe")
        p(f"v_cmp_ne_u32 vcc, 0, v{vt}\ns_add_u32 s{S_CNT}, s{S_CNT}, 1\ns_cbranch_vccz {l1}")
        p(f"s_cmp_gt_u32 s{S_CNT}, {POLL_MAX}\ns_cbranch_scc1 {l1}")
        p.alt_begin()
        if on_miss:
            l3 = self.lab("again")
            p(f"s_cmp_lg_u32 s{S_CNT}, 1\ns_cbranch_scc1 {l3}")
            p.alt_begin(); on_miss(); p.alt_end()
            p.label(l3)
        p(loads)
        p(f"s_waitcnt vmcnt(0)\ns_branch {l0}")
        p.alt_end()
        p.label(l1)

    def entry(self):
        p, c = self.p, self.c
        T = S_T
        p(f"s_load_dwordx16 s[4:19], s[0:1], 0\ns_load_dwordx16 s[20:35], s[0:1], 64")
        p(f"s_cmp_ge_u32 s2, 256\ns_cbranch_scc1 L_exit")
        if c.stamps: p(f"{'s_memtime' if c.cyc else 's_memrealtime'} {s(S_T0,2)}")
        if c.probe and c.probe[1] == "start": p("s_memrealtime s[100:101]")
        if c.probe2: p("s_memrealtime s[98:99]\ns_memrealtime s[100:101]")
        if "k" in c.diag: p("s_waitcnt lgkmcnt(0)\ns_memtime s[100:101]")
        p(f"v_lshrrev_b32 v1, 6, v0\nv_and_b32 v0, 63, v0\nv_readfirstlane_b32 s{S_WAVE}, v1")
        p(f"s_and_b32 s{S_XCD}, s2, 7\ns_lshr_b32 s{S_J}, s2, 3")
        p(f"s_getpc_b64 {s(R_PC,2)}")
        p.label("L_pc")
        p(f"s_mov_b32 s{R_PC+2}, L_end-L_pc\ns_mov_b32 s{R_PC+3}, 0x20000")
        if c.prefetch_code and not c.pf_h:
            p(f"s_lshl3_add_u32 s{T}, s{S_J}, s{S_WAVE}\ns_lshl_b32 s{T}, s{T}, 7")
            p(f"buffer_load_dword v255, off, {s(R_PC,4)}, s{T}")
        p(f"s_mov_b32 s{R_WS+2}, {WS_SIZE}\ns_mov_b32 s{R_WS+3}, 0x20000")
        p(f"s_cmp_ge_u32 s{S_J}, 28\ns_cbranch_scc1 L_helper")
        p(f"s_mul_i32 s{S_JR}, s{S_J}, 37\ns_lshr_b32 s{S_JR}, s{S_JR}, 8\ns_mul_i32 s{T}, s{S_JR}, 7\ns_sub_u32 s{S_C2}, s{S_J}, s{T}")
        if c.mapP: p(f"s_lshr_b32 s{S_RT}, s{S_JR}, 1\ns_lshl1_add_u32 s{S_RT}, s{S_XCD}, s{S_RT}\ns_and_b32 s{S_XF}, s{S_JR}, 1")
        else: p(f"s_lshr_b32 s{S_RT}, s{S_XCD}, 1\ns_lshl2_add_u32 s{S_RT}, s{S_RT}, s{S_JR}\ns_and_b32 s{S_XF}, s{S_XCD}, 1")
        p(f"s_cmp_lt_u32 s{S_WAVE}, 4\ns_cbranch_scc1 L_common")
        p.alt_begin()
        if c.prio_b: p(f"s_setprio {c.prio_b}")
        p(f"s_sub_u32 s{B_BW}, s{S_WAVE}, 4\ns_mul_i32 s{S_CP}, s{S_XCD}, 28\ns_add_u32 s{S_CP}, s{S_CP}, s{S_J}\ns_lshl_b32 s{T}, s{S_CP}, 2")
        p(f"s_add_u32 s{B_STW}, s{T}, s{B_BW}\ns_lshl_b32 s{B_STW}, s{B_STW}, 8\nv_lshl_add_u32 v50, v0, 2, s{B_STW}")
        p(f"s_load_dword s{B_LDT}, {s(P_LDT,2)}, s{T}")
        for i, ptr in enumerate((P_ARE, P_AIM, P_BRE, P_BIM, P_CRE, P_CIM)):
            p(f"global_load_dword v{B_VP+i}, v50, {s(ptr,2)}")
        p(f"s_load_dword s{B_DSK}, {s(P_DSK,2)}, s{T}")
        if c.prio_b != c.prio_b2: p(f"s_setprio {c.prio_b2}")
        p.alt_end()
        p.label("L_common")
        VT, S_X, S_Y = 24, 78, 79
        p(f"s_and_b32 s{S_WT}, s{S_WAVE}, 1\ns_bfe_u32 s{S_WF}, s{S_WAVE}, 0x10001\ns_mul_i32 s{S_CT}, s{S_XF}, 7\ns_add_u32 s{S_CT}, s{S_CT}, s{S_C2}")
        p(f"s_lshl1_add_u32 s{T}, s{S_RT}, s{S_WF}\ns_mul_i32 s{T}, s{T}, {64*896}")
        p(f"s_mul_i32 s{T+1}, s{S_WF}, {32*14}\ns_add_u32 s{T+1}, s{T+1}, s{S_CT}\ns_lshl_b32 s{T+1}, s{T+1}, 8")
        p(f"s_lshl1_add_u32 s{S_LDB}, s{S_WT}, s{S_WF}\ns_lshl_b32 s{S_LDB}, s{S_LDB}, 13")
        p(f"s_add_u32 s{S_X}, s{S_WT}, 3\nv_lshrrev_b32 v{VT}, s{S_X}, v0\ns_lshl_b32 s{S_X}, s{S_WT}, 1\nv_lshrrev_b32 v{VT+1}, 4, v0\nv_lshlrev_b32 v{VT+1}, s{S_X}, v{VT+1}")
        p(f"s_lshl_b32 s{S_Y}, 896, s{S_X}\nv_xor_b32 v{VT+1}, v0, v{VT+1}\nv_mul_u32_u24 v{VT}, s{S_Y}, v{VT}")
        p(f"s_cmp_eq_u32 s{S_WT}, 0")
        p(f"s_cselect_b32 s{S_SOFF}, s{T}, s{T+1}\ns_cselect_b32 s{S_CSTR}, 1, {64*28}\ns_cselect_b32 s{S_X}, 7, 15\ns_cselect_b32 s{S_Y}, 64, 0\ns_cselect_b32 s{R_LD+2}, 8, 7")
        p(f"v_and_b32 v{VT+1}, s{S_X}, v{VT+1}\nv_lshl_add_u32 v{VD}, v{VT+1}, 4, v{VT}\nv_xor_b32 v{VD+1}, s{S_Y}, v{VD}")
        p(f"s_lshl_b32 s{S_CSTR}, s{S_CSTR}, 7")
        if c.rot1: p(f"s_mul_i32 s{T}, s{S_C2}, s{S_CSTR}\ns_add_u32 s{S_SOFF}, s{S_SOFF}, s{T}\ns_mul_i32 s{S_CW}, s{S_CSTR}, 7")
        p(f"s_mul_i32 s{R_LD+2}, s{R_LD+2}, {256*896}\ns_mov_b32 s{R_LD+3}, 0x20000\ns_lshl_b32 s{S_Y}, 7168, s{S_WT}")
        p(f"s_sub_u32 s{T}, s{S_Y}, 1024\nv_add_u32 v{VD+1}, s{T}, v{VD+1}\ns_lshl_b32 s{T}, s{T}, 1")
        p(f"v_add_u32 v{VD+2}, s{T}, v{VD}\nv_add_u32 v{VD+3}, s{T}, v{VD+1}\ns_lshl_b32 s{T}, s{S_Y}, 2")
        for i in range(4): p(f"v_add_u32 v{VD+4+i}, s{T}, v{VD+i}")
        p(f"s_cmp_ge_u32 s{S_WAVE}, 4\ns_cbranch_scc1 L_roleB")
    def loader_base(self):
        self.p(f"s_cmp_eq_u32 s{S_WT}, 0\ns_cselect_b32 s{R_LD}, s{P_U}, s{P_W1}\ns_cselect_b32 s{R_LD+1}, s{P_U+1}, s{P_W1+1}")
    def dma_chunk(self, n, T, ctok):
        r = []
        for i in range(8):
            q = Prog()
            if i % 4 == 0: q(f"s_add_u32 m0, s{S_LDB}, {(3, 4, 1, 2)[n % 4]*SLOT + (i//4)*4096}")
            ctok[n] = q.tok(f"buffer_load_dwordx4 v{VD+i}, {s(R_LD,4)}, s{S_SOFF} offen offset:{(i%4)*1024} lds")
            if i == 7 and n < 6:
                q(f"s_add_u32 s{S_SOFF}, s{S_SOFF}, s{S_CSTR}")
                if self.c.rot1: q(f"s_cmp_eq_u32 s{S_C2}, {6-n}\ns_cselect_b32 s{T}, s{S_CW}, 0\ns_sub_u32 s{S_SOFF}, s{S_SOFF}, s{T}")
            r.append(q.items)
        return r
    def role_start(self, b=False):
        p = self.p
        p.reset()
        if self.c.prefetch_code and not self.c.pf_h: p.items.append(Marker("pending", ("vmem", {"v255"})))
        if b:
            p.items.append(Marker("pending", ("smem", {f"s{B_LDT}", f"s{B_DSK}"})))
            for i in range(6): p.items.append(Marker("pending", ("vmem", {f"v{B_VP+i}"})))
        else:
            p.items.append(Marker("pending", ("smem", {f"s{i}" for i in range(4, 36)})))
    def load_epoch(self):
        self.p(f"s_load_dword s{S_TAG}, {s(P_WS,2)}, {WS_EPOCH}\ns_mov_b32 s{R_WS}, s{P_WS}\ns_mov_b32 s{R_WS+1}, s{P_WS+1}")
    def make_tag(self):
        self.p(f"s_add_u32 s{S_TAG}, s{S_TAG}, {TAGC}\ns_mov_b32 s{S_TAG2}, s{S_TAG}")
    def flag_load(self, which, soff, n, va, q=None):
        if which in self.c.spoll:
            w = 8 if n <= 8 else 16
            txt = f"s_buffer_load_dwordx{w} {s(S_SP,w)}, {s(R_WS,4)}, s{soff} glc"
        else:
            txt = f"buffer_load_dword v{va+1}, v{va}, {s(R_WS,4)}, s{soff} offen sc1"
        (q or self.p)(txt)
        return (which, txt, n, va)
    def flag_check(self, fl, vt, sleep=0, on_miss=None):
        which, txt, n, va = fl
        p = self.p
        if sleep: txt = f"s_sleep {sleep}\n" + txt
        if which not in self.c.spoll:
            return self.tagged_check(txt, [va + 1], vt, on_miss)
        l0, l1, l2 = self.lab("chk"), self.lab("retry"), self.lab("chkd")
        p(f"s_mov_b32 s{S_CNT}, 0")
        p.label(l0)
        p("s_waitcnt lgkmcnt(0)")
        for i in range(0, n - 2, 2): p(f"s_cmp_eq_u64 {s(S_SP+i,2)}, {s(S_TAG,2)}\ns_cbranch_scc0 {l1}")
        if n & 1: p(f"s_cmp_eq_u32 s{S_SP+n-1}, s{S_TAG}\ns_cbranch_scc1 {l2}")
        else: p(f"s_cmp_eq_u64 {s(S_SP+n-2,2)}, {s(S_TAG,2)}\ns_cbranch_scc1 {l2}")
        p.alt_begin()
        p.label(l1)
        if on_miss:
            l3 = self.lab("again")
            p(f"s_cmp_lg_u32 s{S_CNT}, 0\ns_cbranch_scc1 {l3}")
            p.alt_begin(); on_miss(); p.alt_end()
            p.label(l3)
        p(txt)
        p(f"s_add_u32 s{S_CNT}, s{S_CNT}, 1\ns_cmp_le_u32 s{S_CNT}, {POLL_MAX}\ns_cbranch_scc1 {l0}\ns_waitcnt lgkmcnt(0)")
        p.alt_end()
        p.label(l2)

    def fin_addr(self, ps, F, part):
        p, VT, T = self.p, F["VT"], S_T
        if part == 0:
            p(f"v_bfe_u32 v{VT+1}, v0, 2, 1\nv_lshrrev_b32 v{VT+2}, 3, v0\nv_and_b32 v{VT+3}, 3, v0\nv_lshl_add_u32 v{VT+4}, v{VT+1}, 4, v{VT+2}")
            p(f"v_mul_u32_u24 v{F['XO']}, 896, v{VT+4}\nv_lshl_add_u32 v{F['XO']}, v{VT+3}, 4, v{F['XO']}\nv_lshlrev_b32 v{F['STA']}, 3, v{VT+4}")
            a = F["PA"]
            p(f"v_xor_b32 v{a}, s{S_WF}, v{VT+1}\nv_lshlrev_b32 v{a}, 3, v{a}\nv_lshl_add_u32 v{a}, v{VT+3}, 1, v{a}\nv_xor_b32 v{a}, v{a}, v{VT+2}")
            p(f"s_lshl3_add_u32 s{T}, s{S_WT}, {(L_RING+ps*SLOT)//256}\nv_add_u32 v{VT+4}, s{T}, v{VT+4}\nv_lshlrev_b32 v{VT+4}, 8, v{VT+4}\nv_lshl_add_u32 v{a}, v{a}, 4, v{VT+4}\nv_xor_b32 v{a+1}, 16, v{a}")
        else:
            p(f"s_mul_i32 s{T}, s{F['w']}, 2304\ns_add_u32 s{T}, s{T}, {L_STR+1152*ps}\nv_mul_u32_u24 v{F['SA']}, 288, v{VT+3}\nv_and_b32 v{VT+4}, 60, v0\nv_add3_u32 v{F['SA']}, v{F['SA']}, v{VT+4}, s{T}")
            x, t = F["sXO"], F["sST"]
            p(f"s_lshl3_add_u32 s{x}, s{S_R2}, s{S_WT}\ns_add_u32 s{x}, s{x}, {4*ps}\ns_lshl_b32 s{t}, s{x}, 6\ns_add_u32 s{t}, s{t}, {WS_STAT}\ns_mul_i32 s{x}, s{x}, {8*896}\ns_lshl1_add_u32 s{T}, s{S_C2}, s{S_WF}\ns_lshl_b32 s{T}, s{T}, 6\ns_add_u32 s{x}, s{x}, s{T}")
    def fin_loads(self, F):
        self.p(f"buffer_load_dword v{F['RG']}, v{F['STA']}, {s(R_WS,4)}, s{F['sST']} offen sc1\nbuffer_load_dwordx4 {v(F['XI'],4)}, v{F['XO']}, {s(R_LD,4)}, s{F['sXO']} offen")
    def fin_prep(self, F):
        q = Prog(); r, c_, x = F["RG"], F["RC"], F["XF"]
        q(f"v_and_b32 v{r}, 0xffff0000, v{r}\nv_rcp_f32 v{r}, v{r}")
        for j in range(4): q(f"v_lshlrev_b32 v{x+2*j}, 16, v{F['XI']+j}\nv_and_b32 v{x+2*j+1}, 0xffff0000, v{F['XI']+j}")
        q(f"v_mul_f32 v{c_}, {LOG2E | 0x80000000}, v{r}\nv_mul_f32 v{c_+1}, {LOG2E | 0x80000000}, v{r}")
        return q.items
    def fin_sread(self, F):
        for i in range(4): self.p(f"ds_read_b32 v{F['SV']+i}, v{F['SA']} offset:{64*i}")
    def fin_sprep(self, F):
        q = Prog(); f = F["SF"]
        for i in range(4): q(f"v_lshlrev_b32 v{f+2*i}, 16, v{F['SV']+i}\nv_and_b32 v{f+2*i+1}, 0xffff0000, v{F['SV']+i}")
        for i in range(8): q(f"v_mul_f32 v{f+i}, v{f+i}, v{F['RG']}")
        return q.items
    def fin_out(self, F, fill=()):
        p, b = self.p, F["PV"]
        for w in range(4):
            for e in range(2): p(f"ds_read_b128 {v(b+8*w+4*e,4)}, v{F['PA']+e} offset:{8192*w}")
        p.extend(list(fill))
        for i in range(0, 8, 2): p(f"v_pk_add_f32 {v(b+i,2)}, {v(b+i,2)}, {v(b+8+i,2)}")
        for i in range(0, 8, 2): p(f"v_pk_add_f32 {v(b+16+i,2)}, {v(b+16+i,2)}, {v(b+24+i,2)}")
        for i in range(0, 8, 2): p(f"v_pk_add_f32 {v(b+i,2)}, {v(b+i,2)}, {v(b+16+i,2)}")
        for i in range(0, 8, 2): p(f"v_pk_mul_f32 {v(b+8+i,2)}, {v(b+i,2)}, {v(F['RC'],2)}")
        for i in range(8): p(f"v_exp_f32 v{b+8+i}, v{b+8+i}")
        for i in range(0, 8, 2): p(f"v_pk_mul_f32 {v(b+i,2)}, {v(b+i,2)}, {v(F['SF']+i,2)}")
        for i in range(0, 8, 2): p(f"v_pk_add_f32 {v(b+8+i,2)}, {v(b+8+i,2)}, 1.0 op_sel_hi:[1,0]")
        for i in range(8): p(f"v_rcp_f32 v{b+8+i}, v{b+8+i}")
        for i in range(0, 8, 2): p(f"v_pk_fma_f32 {v(b+i,2)}, {v(b+i,2)}, {v(b+8+i,2)}, {v(F['XF']+i,2)}")
        for i in range(4): p(f"v_cvt_pk_bf16_f32 v{b+16+i}, v{b+2*i}, v{b+2*i+1}")
        p(f"buffer_store_dwordx4 {v(b+16,4)}, v{F['XO']}, {s(F['OUT'],4)}, s{F['sXO']} offen {self.c.out_fl}")

    def role_a(self):
        p, c = self.p, self.c
        self.role_start(); self.stamp_begin("A")
        VXA, VWA, VW2A, VW2D, VL16, VFL, VC1, VT = 9, 13, 15, 19, 21, 22, 2, 24
        ACC, FR, W2R, AB = 32, 96, 96, 192
        S_ACTW, S_FAW, S_FAR, S_RING, S_ACTR, S_W2B, S_Z = range(70, 77)
        R_OUT = 64
        S_X = 78; S_Y = 79
        T = S_T
        if "K" in c.diag: p("s_memtime s[100:101]")
        self.loader_base()
        ctok = {}
        dq = []
        for n in range(c.a_chunks): dq += self.dma_chunk(n, T, ctok)
        self.stamp("dma0", sets=(1,))
        if "k" in c.diag.lower():
            self.stamp("karg", sets=(1,)); p("s_waitcnt lgkmcnt(0)\ns_mov_b32 s6, s100")
        if c.a_delay: p(f"s_waitcnt lgkmcnt(0)"); p("\n".join(["s_nop 15"] * c.a_delay))
        for it in dq[:c.nfirst]: p.extend(it)
        self.load_epoch()
        if c.hops:
            p(f"s_mov_b64 exec, 0\ns_cmp_eq_u32 s{S_WAVE}, 3\ns_cbranch_scc1 L_hop0")
        p("s_branch L_bodyA")
        role = self.role
        if c.h_near: self.head_h()
        self.role_b()
        self.role = role
        p.label("L_bodyA")
        p.reset()
        p.items.append(Marker("pending", ("smem", {f"s{S_TAG}", "s94", "s95"})))
        if c.prefetch_code and not c.pf_h: p.items.append(Marker("pending", ("vmem", {"v255"})))
        for i in range(c.nfirst): p.items.append(Marker("pending", ("vmem", set(), ctok[i // 8] if i % 8 == 7 else None)))
        if c.hops: p("s_mov_b64 exec, -1")
        p(f"v_and_b32 v{VT}, 31, v0\nv_lshrrev_b32 v{VT+1}, 5, v0\nv_bfe_u32 v{VT+2}, v0, 1, 3\nv_xor_b32 v{VT+1}, v{VT+1}, v{VT+2}\nv_lshlrev_b32 v{VT+1}, 4, v{VT+1}")
        p(f"v_lshl_add_u32 v{VT+1}, v{VT}, 7, v{VT+1}\ns_add_u32 s{S_X}, s{S_WT}, 12\ns_lshl_b32 s{S_X}, s{S_X}, 13\nv_add_u32 v{VXA}, s{S_X}, v{VT+1}")
        for k in range(1, 4): p(f"v_xor_b32 v{VXA+k}, {32*k}, v{VXA}")
        p(f"s_lshl_b32 s{S_RING}, s{S_WAVE}, 13\ns_add_u32 s{S_RING}, s{S_RING}, {L_RING}")
        p(f"v_bfe_u32 v{VT}, v0, 4, 1\nv_lshlrev_b32 v{VT}, 5, v{VT}\nv_and_b32 v{VT+1}, 3, v0\nv_lshl_add_u32 v{VT}, v{VT+1}, 3, v{VT}")
        p(f"v_bfe_u32 v{VT+1}, v0, 2, 2\nv_lshrrev_b32 v{VT+2}, 5, v0")
        p(f"v_lshl_add_u32 v{VT+3}, v{VT+2}, 3, v{VT+1}\nv_lshl_add_u32 v{VT+3}, v{VT+3}, 8, v{VT}")
        p(f"s_lshl1_add_u32 s{S_Y}, s{S_WF}, 0x600\nv_xor_b32 v{VT+4}, s{S_Y}, v{VT+1}\nv_lshl_add_u32 v{VWA}, v{VT+4}, 6, v{VT+3}")
        if c.qperm: p(f"s_lshl1_add_u32 s{S_Z}, s{S_RT}, s{S_WT}\ns_and_b32 s{S_Z}, s{S_Z}, 3\ns_lshl_b32 s{S_Y}, s{S_Z}, 5\nv_xor_b32 v{VWA}, s{S_Y}, v{VWA}\ns_lshl_b32 s{S_Z}, s{S_Z}, 4")
        else: p(f"s_mov_b32 s{S_Z}, 0")
        p(f"v_xor_b32 v{VWA+1}, 64, v{VWA}")
        p(f"v_lshl_add_u32 v{VT+3}, v{VT+2}, 2, v{VT+1}\nv_lshl_add_u32 v{VT+3}, v{VT+3}, 7, v{VT}")
        p(f"v_lshrrev_b32 v{VT+4}, 1, v{VT+1}\nv_lshl_add_u32 v{VT+3}, v{VT+4}, 6, v{VT+3}\nv_add_u32 v{VW2A}, s{S_RING}, v{VT+3}")
        srd(p, R_2, P_W2, 1792 * 896)
        VB1 = 30
        p(f"s_lshl1_add_u32 s{S_Y}, s{S_CT}, s{S_WF}\ns_lshl_b32 s{S_X}, s{S_Y}, 7\nv_xor_b32 v{VB1+1}, s{S_Z}, v0\nv_lshl_add_u32 v{VB1}, v{VB1+1}, 1, s{S_X}\nglobal_load_ushort v{VB1}, v{VB1}, {s(P_B1,2)}")
        self.stamp("setup", sets=(1,))
        for it in dq[c.nfirst:c.pre_dma]: p.extend(it)
        VB1 = 30
        q = p
        VGA = 26
        q(f"v_xor_b32 v{VW2A+1}, 64, v{VW2A}\nv_add_u32 v{VW2A+2}, 0x10000, v{VW2A}\nv_xor_b32 v{VW2A+3}, 64, v{VW2A+2}")
        if c.br0 >= 0: q(f"v_xor_b32 v{VFL}, 0x10000, v{VW2A}\nv_xor_b32 v{VFL+1}, 0x10000, v{VW2A+1}")
        late = Prog(); q = late
        q(f"s_lshl1_add_u32 s{T+1}, s{S_RT}, s{S_WT}\ns_lshl_b32 s{S_X}, s{T+1}, 9\ns_add_u32 s{S_X}, s{S_X}, {WS_STAT}\nv_lshl_add_u32 v{VGA}, v0, 3, s{S_X}")
        q(f"s_lshl1_add_u32 s{S_Y}, s{S_CT}, s{S_WF}\ns_lshl_b32 s{S_X}, s{S_Y}, 9\ns_add_u32 s{S_X}, s{S_X}, {WS_CS}\nv_lshl_add_u32 v{VGA+1}, v{VB1+1}, 3, s{S_X}")
        q(f"s_mul_i32 s{S_ACTW}, s{T+1}, 28\ns_add_u32 s{S_ACTW}, s{S_ACTW}, s{S_Y}\ns_lshl_b32 s{S_ACTW}, s{S_ACTW}, 13\ns_add_u32 s{S_ACTW}, s{S_ACTW}, {WS_ACT}")
        q(f"s_mul_i32 s{S_X}, s{S_Y}, 37\ns_lshr_b32 s{S_X}, s{S_X}, 8\ns_mul_i32 s{S_X}, s{S_X}, 25\ns_add_u32 s{S_X}, s{S_X}, s{S_Y}")
        q(f"s_lshl_b32 s{S_FAW}, s{T+1}, 9\ns_add_u32 s{S_FAW}, s{S_FAW}, s{S_X}\ns_lshl2_add_u32 s{S_FAW}, s{S_FAW}, {WS_FA}")
        q(f"s_lshl2_add_u32 s{S_R2}, s{S_XCD}, s{S_JR}")
        q(f"s_lshl4_add_u32 s{S_FAR}, s{S_R2}, s{S_WAVE}\ns_lshl_b32 s{S_FAR}, s{S_FAR}, 7\ns_add_u32 s{S_FAR}, s{S_FAR}, {WS_FA}")
        q(f"v_lshlrev_b32 v{VL16}, 4, v0")
        if "A" not in c.spoll: q(f"v_min_u32 v{VFL}, 6, v0\nv_lshlrev_b32 v{VFL}, 2, v{VFL}")
        q(f"v_lshrrev_b32 v{VT+4}, 3, v0\nv_mul_u32_u24 v{VT+4}, 896, v{VT+4}\nv_bfe_u32 v{VT+1}, v0, 4, 1\nv_lshlrev_b32 v{VT+1}, 2, v{VT+1}\nv_xor_b32 v{VT+1}, v0, v{VT+1}\nv_and_b32 v{VT+1}, 7, v{VT+1}")
        q(f"v_lshl_add_u32 v{VW2D}, v{VT+1}, 4, v{VT+4}\nv_add_u32 v{VW2D+1}, {7168-1024}, v{VW2D}")
        q(f"s_lshl2_add_u32 s{S_ACTR}, s{S_R2}, s{S_WAVE}\ns_mul_i32 s{S_ACTR}, s{S_ACTR}, {28*2048}\ns_add_u32 s{S_ACTR}, s{S_ACTR}, {WS_ACT}")
        q(f"s_mul_i32 s{S_W2B}, s{S_WAVE}, {448*7}\ns_add_u32 s{S_W2B}, s{S_W2B}, s{S_C2}\ns_lshl_b32 s{S_W2B}, s{S_W2B}, 7")
        q(f"s_lshl2_add_u32 s{S_X}, s{S_WAVE}, {L_CNT}\nv_mov_b32 v{VT+5}, s{S_X}")
        lateg = [[it] for it in late.items]
        S_AO = list(range(88, 95)); S_WO = [34, 35, 48, 49, 50, 51, 77]; S_ROT = 95
        if c.rot2:
            q = Prog()
            if c.rot2 == 1: q(f"s_mov_b32 s{S_ROT}, s{S_C2}")
            else: q(f"s_lshl1_add_u32 s{S_ROT}, s{S_JR}, s{S_C2}\ns_cmp_ge_u32 s{S_ROT}, 7\ns_cselect_b32 s{T+1}, 7, 0\ns_sub_u32 s{S_ROT}, s{S_ROT}, s{T+1}")
            lateg.append(q.items)
            for i in range(7):
                q = Prog()
                q(f"s_cmp_ge_u32 s{S_ROT}, {7-i}\ns_cselect_b32 s{T+1}, {i-7}, {i}\ns_add_u32 s{T+1}, s{T+1}, s{S_ROT}")
                lateg.append(q.items); q = Prog()
                q(f"s_lshl_b32 s{S_AO[i]}, s{T+1}, 13\ns_add_u32 s{S_AO[i]}, s{S_AO[i]}, s{S_ACTR}\ns_mul_i32 s{S_WO[i]}, s{T+1}, {64*896}\ns_add_u32 s{S_WO[i]}, s{S_WO[i]}, s{S_W2B}")
                lateg += [[it] for it in q.items]
        S_Q = [S_ROT, S_W2B, S_ACTR, S_CT]
        if c.qperm:
            assert c.rot2
            q = Prog()
            for i in range(4): q(f"s_xor_b32 s{S_Q[i]}, s{S_JR}, {i}\ns_mul_i32 s{S_Q[i]}, s{S_Q[i]}, {16*896}")
            lateg += [[it] for it in q.items]
        self.make_tag()
        p(f"v_mov_b32 v{VT}, s{S_TAG}")
        GR = AB
        gloads = f"buffer_load_dwordx2 {v(GR,2)}, v{VGA}, {s(R_WS,4)}, 0 offen sc1\nbuffer_load_dwordx2 {v(GR+2,2)}, v{VGA+1}, {s(R_WS,4)}, 0 offen sc1"
        piece = [0, 1, 2, 0, 1, 2, 0]; pred = {3: 0, 4: 1, 5: 2, 6: 3}
        if c.br0 >= 0:
            piece = [-2, 0, 1, 2, 0, 1, 2]; pred = {4: 1, 5: 2, 6: 3}
            assert c.r_early == 4 and "A" in c.spoll
        wtok, rtok = {}, {}
        w2reg = lambda n: W2R + 8 * ((6, 7, 8, 9, 10, 11, 2, 3, 4, 5, 0, 1)[n] if n < 12 else 6 + (n - 12) % 5)
        areg = lambda n: AB + 8 * (n % 8) if n < 22 else W2R + 8 * (n - 22)
        xtra = lambda n: 24 <= n < 24 + c.nx
        def dma_w2(n):
            q = Prog(); gi = n >> 2
            if gi in pred and not xtra(n): q.wait(rtok[4 * pred[gi] + (n & 3)])
            q((f"s_add_u32 m0, s{T+1}, {(n&3)*2048}\n" if xtra(n) else f"s_add_u32 m0, s{S_RING}, {piece[gi]*SLOT + (n&3)*2048}\n") + (f"s_add_u32 s{S_Z}, s{S_WO[n%7]}, s{S_Q[n//7]}" if c.qperm else f"s_add_u32 s{S_Z}, s{S_WO[n%7]}, {16*(n//7)*896}" if c.rot2 else f"s_add_u32 s{S_Z}, s{S_W2B}, {(64*(n%7) + 16*(n//7))*896}"))
            if "5" in c.diag and n >= 24: wtok[n] = wtok[23]; return [[], []]
            q(f"buffer_load_dwordx4 v{VW2D}, {s(R_2,4)}, s{S_Z} offen lds")
            q2 = Prog()
            wtok[n] = q2.tok(f"buffer_load_dwordx4 v{VW2D+1}, {s(R_2,4)}, s{S_Z} offen offset:1024 lds")
            return [q.items, q2.items]
        def read_w2(n):
            q = Prog(); pc = -2 if xtra(n) else piece[n >> 2]
            if n == max(c.r_early, c.r2):
                keep, self.p = self.p, q
                self.lds_wait(VT + 5, VT + 1, 4)
                self.p = keep
            if n >= c.bw2[-1]: q.wait(wtok[n])
            for di in range(2):
                for h in range(2):
                    rtok[n] = q.tok(f"ds_read_b64_tr_b16 {v(w2reg(n)+4*di+2*h,2)}, v{(VFL if pc < 0 else VW2A+2*(pc>>1))+di} offset:{(pc&1)*SLOT + (n&3)*2048 + h*1024}")
            return [q.items]
        nw = [c.bw2[-1], 0]
        def w2_ops(k, maxread):
            r = []
            for _ in range(k):
                n = nw[0]
                if n >= 24: break
                for m in (n, n + 1):
                    if (m >> 2) in pred and m < 24:
                        need = 4 * pred[m >> 2] + (m & 3)
                        assert m > n or need < maxread
                        while nw[1] <= need and nw[1] < maxread: r += read_w2(nw[1]); nw[1] += 1
                r += dma_w2(n); nw[0] += 1
            return r
        def reads1(gs):
            n, k = gs >> 2, gs & 3
            base = FR + 16 * (gs % 3); so = (n & 1) * SLOT
            r = []
            for fi in range(2):
                for h in range(2):
                    r.append(I(f"ds_read_b64_tr_b16 {v(base+4*fi+2*h,2)}, v{VWA+fi} offset:{so+16384+k*4096+h*1024}"))
                r.append(I(f"ds_read_b128 {v(base+8+4*fi,4)}, v{VXA+k} offset:{so+fi*4096}"))
            return r
        def mfma1(gs):
            base = FR + 16 * (gs % 3)
            r = []
            for fi, ti in ((0, 0), (0, 1), (1, 0), (1, 1)):
                a = v(ACC + 32 * fi + 16 * ti, 16)
                r.append(I(f"v_mfma_f32_32x32x16_bf16 {a}, {v(base+4*fi,4)}, {v(base+8+4*ti,4)}, {'0' if gs == 0 else a}"))
            return r
        self.stamp("dmapre", sets=(1,))
        if c.hops:
            p("s_mov_b64 exec, 0")
            for w in range(3): p(f"s_cmp_eq_u32 s{S_WAVE}, {w}\ns_cbranch_scc1 L_hop{w+1}")
            p("s_branch L_hop4")
            p.label("L_hopped")
            p("s_mov_b64 exec, -1")
        nd = c.pre_dma
        nl = (len(lateg) + 3) // 4
        for n in range(7):
            if n < c.a_chunks: p.wait(ctok[n])
            if n == 0: self.stamp("c0", sets=(1,))
            p("s_waitcnt lgkmcnt(0)\ns_barrier")
            self.stamp(f"bar{n}", sets=(0, 1) if n in (0, 3, 6) else (1,))
            if n in (2, 4, 6):
                for r in list(range(VXA, VXA + 4)) + [VWA, VWA + 1]: p(f"v_xor_b32 v{r}, 0x10000, v{r}")
            upto = min(len(dq), 8 * (n + 4), max(nd + c.dma_per[n], 8 * (n + 2)))
            fill = dq[nd:upto]; nd = upto
            if n == c.gran_at:
                fill = fill + [[I(x)] for x in gloads.split("\n")]
            if n == c.r_at:
                while nw[1] < c.r_early:
                    fill = fill + [[it] for it in read_w2(nw[1])[0]]; nw[1] += 1
            last = []
            if n == 6:
                while nw[1] < c.r2:
                    its = read_w2(nw[1])[0]
                    if nw[1] < 6: fill = fill + [[it] for it in its]
                    else: last += its
                    nw[1] += 1
            g0 = 4 * n
            r0, r1, r2, r3 = (reads1(g0 + k) for k in range(4))
            body = []
            if n == 0: body.append(r0 + r1)
            else:
                mm = mfma1(g0 - 1)
                body += [r0, [mm[0]] + r1[:3], [mm[1]] + r1[3:], [mm[2]], [mm[3]]]
            for k, rd in ((0, r2), (1, r3), (2, None)):
                mm = mfma1(g0 + k)
                body += [[mm[0]] + (rd[:3] if rd else []), [mm[1]] + (rd[3:] if rd else []), [mm[2]], [mm[3]]]
            if n == 6:
                body[-5] = body[-5] + last[:4]; body[-4] = body[-4] + last[4:]
                body[c.b7_at] = body[c.b7_at] + [I(f"s_waitcnt lgkmcnt({len(last) if c.bw2[-1] <= 18 else 0})"), I("s_barrier")]
            merged = []
            j = 0
            for i, it in enumerate(body):
                grp = list(it)
                nb_ = len(body) - (5 if n == 6 else 0)
                while j < min(len(fill), (i + 1) * len(fill) // nb_): grp += fill[j]; j += 1
                merged.append(grp)
            lt = lateg[nl * n: nl * (n + 1)] if n < 4 else []
            p.extend(interleave(merged, lt))
        mm = mfma1(27)
        p.extend(mm[:1])
        self.tagged_check(gloads, [GR + 1, GR + 3], VT + 1)
        self.stamp("granules", sets=(0, 1, 3))
        FA_, FB_ = AB + 8, AB + 12
        q = Prog()
        q(f"s_mov_b32 s{S_X}, 0x01000100\nv_perm_b32 v{FB_}, v{GR}, v{GR}, s{S_X}\nv_lshrrev_b32 v{FB_+1}, 16, v{GR}\nv_xor_b32 v{FB_}, 0x80008000, v{FB_}")
        q(f"v_cvt_pk_bf16_f32 v{VT+1}, v{GR+2}, v{GR+2}\nv_mov_b32 v{FB_+2}, 0\nv_and_b32 v{VT+1}, 0xffff0000, v{VT+1}\nv_mov_b32 v{FB_+3}, 0\nv_sub_f32 v{VT+1}, v{GR+2}, v{VT+1}")
        q(f"v_mov_b32 v{FA_+1}, v{VB1}\nv_cvt_pk_bf16_f32 v{FA_}, v{GR+2}, v{VT+1}\nv_mov_b32 v{FA_+2}, 0\nv_mov_b32 v{FA_+3}, 0\nv_and_b32 v{VT+1}, 0xffff0000, v{GR}")
        q(f"v_permlane32_swap_b32 v{FB_}, v{FB_+2}\nv_permlane32_swap_b32 v{FB_+1}, v{FB_+3}\nv_permlane32_swap_b32 v{FA_}, v{FA_+2}\nv_permlane32_swap_b32 v{FA_+1}, v{FA_+3}")
        q(f"v_rcp_f32 v{VT+1}, v{VT+1}")
        p.extend(interleave(mm[1:], q.items))
        for fi, ti in ((0, 0), (0, 1), (1, 0), (1, 1)):
            a = v(ACC + 32 * fi + 16 * ti, 16)
            p(f"v_mfma_f32_32x32x8_bf16 {a}, {v(FA_+2*fi,2)}, {v(FB_+2*ti,2)}, {a}")
            if (fi, ti) == (0, 0): p(f"v_mul_f32 v{VC1}, {LOG2E}, v{VT+1}\nv_mul_f32 v{VC1+2}, {LOG2E}, v{VT+1}")
            if (fi, ti) == (0, 1): p(f"v_permlane32_swap_b32 v{VC1}, v{VC1+2}")
            if (fi, ti) == (1, 0) and c.mish_pk: p(f"v_mov_b32 v{VC1+1}, v{VC1}\nv_mov_b32 v{VC1+3}, v{VC1+2}")
        MT, MO = AB + 16, AB + 48
        def mish_group(a, ti, o, tset):
            t = MT + 16 * tset; u = t + 8
            r = []
            if c.mish_pk:
                for i in range(0, 8, 2): r.append(f"v_pk_mul_f32 {v(t+i,2)}, {v(a+i,2)}, {v(VC1+2*ti,2)}")
                for i in range(8): r.append(f"v_exp_f32 v{t+i}, v{t+i}")
                for i in range(0, 8, 2): r.append(f"v_pk_fma_f32 {v(u+i,2)}, {v(t+i,2)}, 0.5, 1.0 op_sel_hi:[1,0,0]")
                for i in range(0, 8, 2): r.append(f"v_pk_fma_f32 {v(u+i,2)}, {v(t+i,2)}, {v(u+i,2)}, 1.0 op_sel_hi:[1,1,0]")
                for i in range(8): r.append(f"v_rcp_f32 v{u+i}, v{u+i}")
                for i in range(0, 8, 2): r.append(f"v_pk_fma_f32 {v(u+i,2)}, {v(a+i,2)}, {v(u+i,2)}, {v(a+i,2)} neg_lo:[1,0,0] neg_hi:[1,0,0]")
            else:
                for i in range(8): r.append(f"v_mul_f32 v{t+i}, v{a+i}, v{VC1+2*ti}")
                for i in range(8): r.append(f"v_exp_f32 v{t+i}, v{t+i}")
                for i in range(8): r.append(f"v_fma_f32 v{u+i}, v{t+i}, 0.5, 1.0")
                for i in range(8): r.append(f"v_fma_f32 v{u+i}, v{t+i}, v{u+i}, 1.0")
                for i in range(8): r.append(f"v_rcp_f32 v{u+i}, v{u+i}")
                for i in range(8): r.append(f"v_fma_f32 v{u+i}, -v{a+i}, v{u+i}, v{a+i}")
            if "1" in c.diag: r = r[:len(r) // 2]; u = a
            for i in range(4): r.append(f"v_cvt_pk_bf16_f32 v{o+i}, v{u+2*i}, v{u+2*i+1}")
            return [I(x) for x in r]
        stok = {}
        def own_flag(st, q):
            if "A" in c.sflag:
                q(f"s_add_u32 s{T}, s{S_FAW}, {512*st}"); q.wait(stok[st]); q(f"s_atomic_swap s{S_TAG}, {s(R_WS,2)}, s{T}")
                return
            q.wait(stok[st])
            q(f"s_mov_b64 exec, 1\nbuffer_store_dword v{VT}, off, {s(R_WS,4)}, s{S_FAW} offset:{512*st} {c.fa_st}\ns_mov_b64 exec, -1")
        body = []
        gi = 0
        for st in range(4):
            for ti in range(2):
                o = MO + 4 * (gi % 4)
                body += mish_group(ACC + 32 * (st >> 1) + 16 * ti + 8 * (st & 1), ti, o, gi & 1)
                q = Prog()
                stok[st] = q.tok(f"buffer_store_dwordx4 {v(o,4)}, v{VL16}, {s(R_WS,4)}, s{S_ACTW} offen offset:{(st&1)*2048+ti*1024} {c.act_st}")
                if gi == 3: q(f"s_add_u32 s{S_ACTW}, s{S_ACTW}, 4096")
                if ti == 1: self.stamp(f"s{st}", q, sets=(3,))
                if ti == 1 and st - c.flag_lag in c.fstages: own_flag(st - c.flag_lag, q); self.stamp(f"f{st-c.flag_lag}", q, sets=(3,))
                body.append(q.items)
                gi += 1
        k0 = int(len(body) * c.mish_skip)
        p.extend(interleave(body[:k0], [])); p.extend(interleave(body[k0:], w2_ops(c.w2_mish, 12) + [[]]))
        self.stamp("mish", sets=(0, 4))
        rest = [st for st in c.fstages if st >= 4 - c.flag_lag]
        def flags_rest():
            for st in rest: own_flag(st, p)
        if c.prio_a1: p(f"s_setprio {c.prio_a1}")
        p(f"s_load_dwordx2 {s(R_LD,2)}, s[0:1], 0\ns_load_dwordx2 {s(R_OUT,2)}, s[0:1], 104\ns_mov_b32 s{R_LD+2}, {2048*896}\ns_mov_b32 s{R_OUT+2}, {2048*896}\ns_mov_b32 s{R_OUT+3}, 0x20000")
        m0_ = 28 - (c.tail_m if c.tail_ld else 0)
        aord = [(n, ti) for n in range(m0_) for ti in range(2)] + [(n, ti) for ti in range(2) for n in range(m0_, 28)]
        alast = [None]
        def load_act(k):
            for n, ti in aord[2 * k: 2 * k + 2]:
                if "a" in c.diag and n >= 7: continue
                assert n // 7 <= seen[0]
                if alast[0] != n: p(f"s_add_u32 s{S_Y}, s{S_AO[n%7]}, {(n//7)*2048}" if c.rot2 else f"s_add_u32 s{S_Y}, s{S_ACTR}, {(4*(n%7) + n//7)*2048}")
                alast[0] = n
                p(f"buffer_load_dwordx4 {v(areg(n)+4*ti,4)}, v{VL16}, {s(R_WS,4)}, s{S_Y} offen offset:{ti*1024} {c.act_ld}")
        seen = [-1, 0]
        def next_flags():
            st = min(x for x in (c.cstages or c.fstages) if x > seen[0])
            if st != seen[1]: p(f"s_add_u32 s{S_FAR}, s{S_FAR}, {512*(st-seen[1])}"); seen[1] = st
            return self.flag_load("A", S_FAR, 7, VFL)
        def check_flags(f, **kw):
            self.flag_check(f, VT + 1, **kw); seen[0] = seen[1]
            self.stamp(f"act{seen[0]}", sets=(0, 2, 3))
        def reads_upto(m):
            while nw[1] < min(m, 28): p.extend(read_w2(nw[1])[0]); nw[1] += 1
        def dmas_upto(m):
            while nw[0] < min(m, 28):
                if nw[0] == 24 and c.nx:
                    p(f"s_mul_i32 s{T+1}, s{S_WAVE}, {2048*c.nx}\ns_add_u32 s{T+1}, s{T+1}, {L_X}\ns_sub_u32 s{T}, s{T+1}, s{S_RING}\nv_add_u32 v{VFL}, s{T}, v{VW2A}\nv_add_u32 v{VFL+1}, s{T}, v{VW2A+1}")
                    p(f"v_and_b32 v14, 3, v0\nv_lshlrev_b32 v14, 2, v14\nv_add_u32 v14, {L_CNT}, v14")
                    self.lds_wait(14, VT + 1, 1)
                if (nw[0] >> 2) in pred and not xtra(nw[0]): assert nw[1] > nw[0] - 12
                for it in dma_w2(nw[0]): p.extend(it)
                nw[0] += 1
        D = c.adepth
        lead = c.flead
        fl = None
        na = 0
        for op in c.pre_loop.split():
            k = int(op[1:]) if len(op) > 1 else 0
            if op[0] == "R": reads_upto(k)
            elif op[0] == "D": dmas_upto(k)
            elif op[0] == "F":
                if rest: own_flag(rest.pop(0), p)
            elif op[0] == "W": p("s_waitcnt lgkmcnt(0)")
            elif op[0] == "L": fl = next_flags()
            elif op[0] == "C":
                assert not rest or seen[1] < rest[0]
                check_flags(fl, on_miss=flags_rest if rest else None); fl = None
            elif op[0] == "A":
                while na < k: load_act(na); na += 1
            elif op[0] == "V": p("s_waitcnt vmcnt(0)")
            elif op[0] == "T": self.lds_wait(VT + 5, VT + 1, 1)
            elif op[0] == "P": p(f"s_setprio {k}")
            if op[0] not in "L": self.stamp(op + "_" + str(len(self.stamp_names["A"])), sets=(4,))
        assert D <= na <= 8 and nw[1] >= c.rdepth and not rest
        M0 = nw[0]
        if c.prio_a1 != c.prio_a2: p(f"s_setprio {c.prio_a2}")
        self.stamp("flagA", sets=(0, 2, 3))
        assert D <= 7 and c.rdepth <= 4 and c.tail_m <= 5
        main = p
        VALL = 14
        F = dict(VT=VT, XO=9, PA=10, SA=12, STA=13, XI=184, RG=30, RC=116, XF=100, PV=AB, SV=176, SF=108, w=S_WAVE, sXO=S_ACTW, sST=S_X, OUT=R_OUT)
        f15 = lambda: self.fin_addr(1, F, 0)
        def f16():
            self.fin_addr(1, F, 1)
            if not c.nx: p(f"v_lshlrev_b32 v{VALL}, 2, v{VT+3}\nv_add_u32 v{VALL}, {L_CNT}, v{VALL}")
        def f17():
            p(f"v_and_b32 v{VT+3}, 31, v0\nv_lshrrev_b32 v{VT+1}, 5, v0\nv_and_b32 v{VT+2}, 7, v0\nv_xor_b32 v{VT+1}, v{VT+1}, v{VT+2}\nv_bfe_u32 v{VT+2}, v0, 4, 1\nv_lshl_or_b32 v{VT+1}, v{VT+2}, 3, v{VT+1}")
            p(f"v_lshlrev_b32 v{VT+1}, 4, v{VT+1}\nv_lshl_add_u32 v{VT+1}, v{VT+3}, 8, v{VT+1}\nv_add_u32 v{VD}, s{S_RING}, v{VT+1}")
            for k in range(1, 8): p(f"v_xor_b32 v{VD+k}, {32*k}, v{VD}")
        fin = dict(zip(c.fin_at, (f15, f16, f17, lambda: self.fin_loads(F))))
        tail = []
        for n in range(28):
            mm = []
            for di, ti in ((0, 0), (1, 0), (0, 1), (1, 1)):
                a = v(ACC + 32 * di + 16 * ti, 16)
                mm.append(I(f"v_mfma_f32_32x32x16_bf16 {a}, {v(w2reg(n)+4*di,4)}, {v(areg(n)+4*ti,4)}, {'0' if n == 0 else a}"))
            groups = []
            def grab(fn):
                nonlocal p
                p = self.p = Prog(); fn(); its = p.items; p = self.p = main
                return its
            def split(its):
                cur = []
                for it in its:
                    cur.append(it)
                    if isinstance(it, I) and it.kind in ("vmem", "ds", "valu"): groups.append(cur); cur = []
                if cur: groups.append(cur)
            split(grab(lambda: reads_upto(n + 1 + c.rdepth)))
            if na <= n + D < 28:
                if (n + D) // 7 > seen[0]:
                    groups.append(grab(lambda: check_flags(fl))); fl = None
                split(grab(lambda: load_act(n + D)))
            split(grab(lambda: dmas_upto(min(nw[1] + 12 - c.w2_gap, max(n + 1 + c.w2_lead, M0 + int((n + 1) * c.w2_rate))))))
            if fl is None and min(27, n + D + lead) // 7 > seen[0]:
                def nf():
                    nonlocal fl
                    if "A" in c.spoll: p("s_waitcnt lgkmcnt(0)")
                    fl = next_flags()
                groups.append(grab(nf))
            if n in fin: split(grab(fin[n]))
            if n >= 28 - c.tail_m:
                tail += mm[2:]; mm = mm[:2]
            if c.g2_mix:
                isv = lambda gr: any(isinstance(it, I) and it.kind == "vmem" for it in gr)
                ds = [gr for gr in groups if any(isinstance(it, I) and it.mn.startswith("ds_read_b64_tr") for it in gr)]
                rest = [gr for gr in groups if not any(gr is x for x in ds)]
                nm = len(mm)
                for k in range(nm):
                    p.extend([mm[k]])
                    for gr in ds[k * len(ds) // nm:(k + 1) * len(ds) // nm]: p.extend(gr)
                    for gr in rest[k * len(rest) // nm:(k + 1) * len(rest) // nm]: p.extend(gr)
            else:
                p.extend(mm)
                for gr in groups: p.extend(gr)
            if n in (0, 3, 6, 10, 13, 17, 20): self.stamp(f"n{n}", sets=(0, 2, 4) if n in (0, 13) else (2,))
        pw = lambda ti: [I(f"ds_write_b128 v{VD+4*di+g4}, {v(ACC+32*di+16*ti+4*g4,4)} offset:{ti*SLOT}") for di in range(2) for g4 in range(4)]
        if tail: p.extend(tail[:c.tail_k]); p.extend(interleave(tail[c.tail_k:], pw(0), ratio=c.tail_r))
        else: p.extend(pw(0))
        self.lds_post(VT + 5, VT, 5)
        self.stamp("gemm2", sets=(0, 2, 3))
        w1_ = pw(1); x_ = self.fin_prep(F); s_ = self.fin_sprep(F)
        p.extend(w1_[:4]); self.lds_peek(VT + 5, VT + 2, 7); p.extend(w1_[4:])
        self.lds_post(VT + 5, VT, 6)
        self.stamp("gate", sets=(0, 2, 3))
        self.lds_check(VT + 5, VT + 2, 7, fill=lambda: p.extend(x_[:6]))
        self.fin_sread(F); self.lds_peek(VALL, VT + 1, 6); p.extend(x_[6:])
        self.lds_check(VALL, VT + 1, 6, fill=lambda: p.extend(s_[:5]))
        self.stamp("sin", sets=(0, 2, 3))
        self.fin_out(F, s_[5:])
        self.stamp("end", sets=(0, 2, 3, 4, 9))
        self.stamp_flush(1)
        p("s_endpgm")

    def gather_table(self):
        import numpy as np
        def rb(l):
            u = np.array([l], np.float32).view(np.uint32)
            return int((((u + 0x7FFF + ((u >> 16) & 1)) >> 16) << 16).view(np.float32)[0])
        rows = list(range(8)) + list(range(128, 136)) + [256, 258, 260, 262, 384, 386, 388, 390, 512, 516, 640, 644, 768, 772, 896, 900] + [1024 + 128 * k for k in range(9)]
        pos = {}
        for i, a in enumerate(rows):
            tile, row = i >> 4, i & 15
            for col in range(16): pos[a + 8 * col] = tile * 1024 + ((row >> 2) * 16 + col) * 16 + (row & 3) * 4
        zero = 2 * 1024 + 48 * 16
        at = lambda l: zero if l < 0 else pos[rb(l)]
        at1 = lambda l: zero if l > 1028 else at(l)
        words = []
        for mh in range(2):
            for half in range(2):
                for lane in range(64):
                    hi = 1023 - 8 * (64 * mh + lane)
                    e = [at(hi - i) for i in range(11)]
                    if mh == 0: d = 127 - lane; e += [pos[16 * d + 16], pos[16 * d + 8], zero, zero, zero]
                    elif lane < 16: top = 1055 - 8 * (lane >> 2) - (lane & 3); e += [at1(top - j) for j in (0, 1, 2, 3, 7)]
                    else: e += [zero] * 5
                    e = e[8 * half: 8 * half + 8]
                    words += [e[2 * k] | (e[2 * k + 1] << 16) for k in range(4)]
        return words

    def role_b(self):
        p, c = self.p, self.c
        p.label("L_roleB")
        self.role_start(True); self.stamp_begin("B")
        S_BW, S_LDT, S_DSK, S_STW, S_CHN, S_MH = B_BW, B_LDT, B_DSK, B_STW, S_WF, S_WT
        S_FXR, S_XTR, S_FSW, S_FSR, S_STR = 74, 75, 76, 77, S_CT
        S_X, S_Y = 78, 79
        T = S_T
        VL16, VP, VGT, VG, VSW, VSR, VT = 9, B_VP, 120, 16, 46, 47, 50
        VRW, VTW, VTZ, VTA, VUA, VUW, VCN, VONE, VEXW, VEXR, VTAG, VUZ, VFL = range(32, 45)
        self.load_epoch()
        self.loader_base()
        ctok = {}
        if c.a_chunks < 7:
            if c.rot1: p(f"s_cmp_ge_u32 s{S_C2}, {7-c.a_chunks}\ns_cselect_b32 s{T}, {c.a_chunks-7}, {c.a_chunks}\ns_mul_i32 s{T}, s{T}, s{S_CSTR}\ns_add_u32 s{S_SOFF}, s{S_SOFF}, s{T}")
            else: p(f"s_mul_i32 s{T}, s{S_CSTR}, {c.a_chunks}\ns_add_u32 s{S_SOFF}, s{S_SOFF}, s{T}")
        p(f"v_lshlrev_b32 v{VL16}, 4, v0\ns_lshl3_add_u32 s{S_STW}, s{S_STW}, {WS_ST}")
        srd(p, R_2, P_W2, 1792 * 896)
        late = Prog(); q = late
        q(f"s_lshl2_add_u32 s{S_R2}, s{S_XCD}, s{S_JR}")
        q(f"s_lshr_b32 s{T}, s{S_CP}, 5\ns_lshl2_add_u32 s{S_FXR}, s{T}, s{S_BW}\ns_and_b32 s{T}, s{S_CP}, 3\ns_lshl2_add_u32 s{S_FXR}, s{S_FXR}, s{T}\ns_lshl_b32 s{S_FXR}, s{S_FXR}, 7\ns_add_u32 s{S_FXR}, s{S_FXR}, {WS_FX}\ns_lshr_b32 s{T}, s{S_CP}, 4")
        q(f"s_lshl3_add_u32 s{S_XTR}, s{S_CP}, s{S_BW}\ns_lshl_b32 s{S_XTR}, s{S_XTR}, 10\ns_add_u32 s{S_XTR}, s{S_XTR}, {WS_XT}")
        q(f"s_mul_i32 s{S_FSW}, s{S_BW}, 14\ns_add_u32 s{S_FSW}, s{S_FSW}, s{T}\ns_lshl_b32 s{S_FSW}, s{S_FSW}, 7\ns_and_b32 s{T+1}, s{S_CP}, 15\ns_add_u32 s{S_FSW}, s{S_FSW}, s{T+1}\ns_lshl2_add_u32 s{S_FSW}, s{S_FSW}, {WS_FS}")
        q(f"s_lshl1_add_u32 s{T}, s{S_C2}, s{S_CHN}")
        q(f"s_lshr_b32 s{T+1}, s{S_R2}, 3\ns_mul_i32 s{S_FSR}, s{T+1}, 14\ns_add_u32 s{S_FSR}, s{S_FSR}, s{T}\ns_lshl2_add_u32 s{S_FSR}, s{S_FSR}, s{S_JR}\ns_lshl_b32 s{S_FSR}, s{S_FSR}, 7\ns_add_u32 s{S_FSR}, s{S_FSR}, {WS_FS}")
        q(f"s_lshl_b32 s{S_STR}, s{T}, 9\ns_add_u32 s{S_STR}, s{S_STR}, s{S_R2}\ns_lshl1_add_u32 s{S_STR}, s{S_STR}, s{S_MH}\ns_lshl_b32 s{S_STR}, s{S_STR}, 7\ns_add_u32 s{S_STR}, s{S_STR}, {WS_ST}")
        q(f"v_and_b32 v{VT}, 15, v0\nv_lshrrev_b32 v{VT+1}, 4, v0")
        q(f"s_mul_i32 s{T}, s{S_BW}, 8448\nv_mul_u32_u24 v{VT+2}, 528, v{VT}\nv_and_b32 v{VT+3}, 256, v{VL16}\nv_add3_u32 v{VT+2}, v{VT+2}, v{VT+3}, s{T}\nv_lshrrev_b32 v{VT+3}, 5, v0\nv_lshl_add_u32 v{VSR}, v{VT+3}, 4, v{VT+2}")
        q(f"s_lshl_b32 s{T}, s{S_BW}, 13\nv_add_u32 v{VEXW}, s{T}, v{VL16}")
        q(f"s_mul_i32 s{T}, s{S_BW}, 3072\ns_add_u32 s{T}, s{T}, {L_RAW}\nv_add_u32 v{VRW}, s{T}, v{VL16}")
        q(f"s_mul_i32 s{T}, s{S_CHN}, {TCH}\ns_add_u32 s{T}, s{T}, {L_TAB}\ns_lshl_b32 s{T+1}, s{S_MH}, 10\ns_add_u32 s{T+1}, s{T+1}, s{T}\nv_add_u32 v{VTW}, s{T+1}, v{VL16}")
        q(f"v_sub_u32 v{VT+2}, 3, v{VT}\nv_and_b32 v{VT+2}, 3, v{VT+2}\nv_mul_u32_u24 v{VT+3}, {TCP-2}, v{VT+2}\nv_lshl_add_u32 v{VT+3}, v{VT+1}, 4, v{VT+3}\nv_lshlrev_b32 v{VT+2}, 1, v{VT}\nv_sub_u32 v{VT+3}, v{VT+3}, v{VT+2}")
        q(f"s_lshl_b32 s{T+1}, s{S_MH}, 8\ns_sub_u32 s{T}, s{T}, s{T+1}\ns_add_u32 s{T}, s{T}, {2*15}\nv_add_u32 v{VTA}, s{T}, v{VT+3}")
        q(f"s_mul_i32 s{S_X}, s{S_CHN}, 4608\ns_sub_u32 s{T}, s{S_X}, s{T+1}\ns_add_u32 s{T}, s{T}, {L_U+2*(240-96)}\nv_lshlrev_b32 v{VT+2}, 5, v{VT}\nv_lshl_add_u32 v{VT+2}, v{VT+1}, 4, v{VT+2}\nv_add_u32 v{VUA}, s{T}, v{VT+2}")
        q(f"s_add_u32 s{S_X}, s{S_X}, s{T+1}\ns_add_u32 s{S_X}, s{S_X}, {L_U}\nv_lshl_add_u32 v{VUZ}, v0, 2, s{S_X}")
        q(f"s_lshl_b32 s{T}, s{S_BW}, 10\ns_add_u32 s{T}, s{T}, {L_U+512}\nv_add_u32 v{VUW}, s{T}, v{VL16}")
        q(f"s_lshl_b32 s{T}, s{S_BW}, 11\ns_add_u32 s{T}, s{T}, {L_EX}\nv_add_u32 v{VEXR}, s{T}, v{VL16}")
        VZ = 56
        for i in range(4): q(f"v_mov_b32 v{VZ+i}, 0")
        q(f"s_lshl2_add_u32 s{T}, s{S_BW}, {L_CNT}\nv_mov_b32 v{VONE}, s{T}\nv_and_b32 v{VCN}, 3, v0\nv_lshlrev_b32 v{VCN}, 2, v{VCN}\nv_add_u32 v{VCN}, {L_CNT}, v{VCN}")
        VW2D = 48; S_WOFF, S_WIDX, S_RING = 88, 89, 91
        q(f"v_lshrrev_b32 v{VT+2}, 3, v0\nv_mul_u32_u24 v{VT+2}, 896, v{VT+2}\nv_bfe_u32 v{VT+3}, v0, 4, 1\nv_lshlrev_b32 v{VT+3}, 2, v{VT+3}\nv_xor_b32 v{VT+3}, v0, v{VT+3}\nv_and_b32 v{VT+3}, 7, v{VT+3}")
        q(f"v_lshl_add_u32 v{VW2D}, v{VT+3}, 4, v{VT+2}\nv_add_u32 v{VW2D+1}, {7168-1024}, v{VW2D}")
        if c.rot2 == 2: q(f"s_lshl1_add_u32 s{S_WIDX}, s{S_JR}, s{S_C2}\ns_cmp_ge_u32 s{S_WIDX}, 7\ns_cselect_b32 s{T}, 7, 0\ns_sub_u32 s{S_WIDX}, s{S_WIDX}, s{T}")
        else: q(f"s_mov_b32 s{S_WIDX}, {'s%d' % S_C2 if c.rot2 else 0}")
        q(f"s_mul_i32 s{S_WOFF}, s{S_BW}, 7\ns_add_u32 s{S_WOFF}, s{S_WOFF}, s{S_WIDX}\ns_mul_i32 s{S_WOFF}, s{S_WOFF}, {64*7}\ns_add_u32 s{S_WOFF}, s{S_WOFF}, s{S_C2}\ns_lshl_b32 s{S_WOFF}, s{S_WOFF}, 7")
        q(f"s_lshl_b32 s{S_RING}, s{S_BW}, 13\ns_add_u32 s{S_RING}, s{S_RING}, {L_RING}")
        assert not c.qperm and c.b_pre == 1.0
        if "X" not in c.spoll: q(f"v_min_u32 v{VFL}, 7, v0\nv_lshlrev_b32 v{VFL}, 2, v{VFL}")
        k = int(len(late.items) * c.b_pre)
        p.extend(late.items[:k]); late.items = late.items[k:]
        T = 90
        S_TCH = 92; nt = [0]
        def touch_upto(m):
            while nt[0] < m:
                p(f"s_buffer_load_dwordx2 s[94:95], {s(R_2,4)}, s{S_TCH}\ns_add_u32 s{S_TCH}, s{S_TCH}, 128"); nt[0] += 1
                p.items.append(Marker("forget", {"s94", "s95"}))
        if c.s_touch: p(f"s_lshl2_add_u32 s{S_TCH}, s{S_CP}, s{S_BW}\ns_mul_i32 s{S_TCH}, s{S_TCH}, {14*128}\ns_add_u32 s{S_TCH}, s{S_TCH}, 60")
        self.make_tag()
        p(f"s_lshl_b32 s{T}, s{S_CHN}, 4\ns_lshr_b32 s{S_LDT}, s{S_LDT}, s{T}\ns_lshl_b32 s{S_LDT}, s{S_LDT}, 16\ns_lshr_b32 s{S_DSK}, s{S_DSK}, s{T}\ns_lshl_b32 s{S_DSK}, s{S_DSK}, 16")
        VDT = 60
        p(f"v_mov_b32 v{VDT}, {LOG2E}\nv_mul_f32 v{VDT}, s{S_LDT}, v{VDT}\nv_exp_f32 v{VDT}, v{VDT}\nv_mov_b32 v{VTAG}, s{S_TAG}\nv_cvt_pk_bf16_f32 v{VDT}, v{VDT}, v{VDT}\nv_and_b32 v{VDT}, 0xffff0000, v{VDT}\nv_mov_b32 v{VDT+1}, v{VDT}")
        if c.s_touch: touch_upto(c.s_touch[0])
        self.stamp("pre", sets=(1,))
        Z1, Z2, Z4, Z8, Z128, XB, XC, XDD, TM = 64, 68, 72, 76, 80, 84, 88, 92, 96
        AL, BE, UB, CV = 108, 110, 112, 120
        YF, XF, KV, KA = 128, 160, 128, 244
        units = []
        def unpack(d, src): p(f"v_lshlrev_b32 v{d}, 16, v{src}\nv_and_b32 v{d+1}, 0xffff0000, v{src}")
        def mul2(d, a, b, pk):
            if pk: p(f"v_pk_mul_f32 {v(d,2)}, {v(a,2)}, {v(b,2)}")
            else: p(f"v_mul_f32 v{d}, v{a}, v{b}\nv_mul_f32 v{d+1}, v{a+1}, v{b+1}")
        def cmul_(d, a, b, pk):
            assert d != b
            mul2(TM, a, b, pk); mul2(TM + 2, a, b + 2, pk)
            if pk:
                p(f"v_pk_fma_f32 {v(d,2)}, {v(a+2,2)}, {v(b+2,2)}, {v(TM,2)} neg_lo:[1,0,0] neg_hi:[1,0,0]")
                p(f"v_pk_fma_f32 {v(d+2,2)}, {v(a+2,2)}, {v(b,2)}, {v(TM+2,2)}")
            else:
                for m in range(2): p(f"v_fma_f32 v{d+m}, -v{a+2+m}, v{b+2+m}, v{TM+m}")
                for m in range(2): p(f"v_fma_f32 v{d+2+m}, v{a+2+m}, v{b+m}, v{TM+2+m}")
        def cmul(d, a, b): units.append((8, lambda pk: cmul_(d, a, b, pk)))
        def put(e, a, conj):
            ng = "-" if conj else ""
            units.append((2, lambda pk: (have.add(e), p(f"v_cvt_pk_bf16_f32 v{KV+2*e}, v{a}, {ng}v{a+2}\nv_cvt_pk_bf16_f32 v{KV+2*e+1}, v{a+1}, {ng}v{a+3}"))))
        have = {0}
        def getfr(base):
            return [I(f"ds_read_b128 {v(base+4*fr,4)}, v{VSR} offset:{fr*32}") for fr in range(8)]
        def kmfma(tile, base):
            a = v(KA + 4 * tile, 4)
            return [I(f"v_mfma_f32_16x16x32_bf16 {a}, {v(base+4*fr,4)}, {v(YF+4*fr,4)}, {'0' if (fr == 0 and tile) else a}") for fr in range(8)]
        def zpow_(d, lg, pk):
            for m in range(2):
                if lg: p(f"v_ldexp_f32 v{TM+m}, v{AL+m}, {lg}\nv_ldexp_f32 v{TM+2+m}, v{BE+m}, {lg}")
                a, b = (TM + m, TM + 2 + m) if lg else (AL + m, BE + m)
                p(f"v_exp_f32 v{TM+m}, v{a}\nv_fract_f32 v{TM+2+m}, v{b}")
            for m in range(2): p(f"v_cos_f32 v{d+m}, v{TM+2+m}\nv_sin_f32 v{d+2+m}, v{TM+2+m}")
            mul2(d, d, TM, pk); mul2(d + 2, d + 2, TM, pk)
        def zpow(d, lg): units.append((22, lambda pk: zpow_(d, lg, pk)))
        p(f"v_mov_b32 v{KV}, 0x3f80\nv_mov_b32 v{KV+1}, 0x3f80")
        unpack(AL, VP); unpack(BE, VP + 1)
        self.stamp("params", sets=(0, 1))
        mul2(AL, AL, VDT, True); mul2(BE, BE, VDT, True)
        for m in range(2): p(f"v_mul_f32 v{AL+m}, {LOG2E}, v{AL+m}\nv_mul_f32 v{BE+m}, 0.15915494, v{BE+m}")
        early_done = [None]
        zpow(Z8, 3)
        put(1, Z8, False)
        prev = Z8
        for r in range(2, 16): cmul(XB, prev, Z8); prev = XB; put(r, XB, False)
        zpow(Z1, 0); zpow(Z128, 7)
        units.append((8, lambda pk: [unpack(UB + 2 * i, VP + 2 + i) for i in range(4)]))
        cmul(XC, UB, UB + 4)
        units.append((4, lambda pk: (mul2(XC, XC, VDT, pk), mul2(XC + 2, XC + 2, VDT, pk))))
        cmul(XB, XC, Z128)
        put(16, XC, True); put(24, XB, True)
        prev = XB
        for r in range(1, 8):
            cmul(XC, XC, Z1); put(16 + r, XC, True)
            cmul(XDD, prev, Z1); prev = XDD; put(24 + r, XDD, True)
        for it in late.items: units.append((1, lambda pk, it=it: p.extend([it])))
        cmul(Z2, Z1, Z1); cmul(Z4, Z2, Z2)
        for k in range(2):
            cmul(XB, XB, Z128); put(32 + 4 * k, XB, True); prev = XB
            for r in range(1, 4): cmul(XC, prev, Z2); prev = XC; put(32 + 4 * k + r, XC, True)
        for k in range(4):
            cmul(XB, XB, Z128); put(40 + 2 * k, XB, True)
            cmul(XC, XB, Z4); put(41 + 2 * k, XC, True)
        for k in range(9): cmul(XB, XB, Z128); put(48 + k, XB, True)
        total = sum(u[0] for u in units)
        cuts = [c.kg_pre] + [c.kg_pre + (total - c.kg_pre) * (i - c.kg_x) / (c.kg_ints - c.kg_x) for i in range(1, 7)]
        X2F = 64
        VCA, VPU, BE9, BO7 = 10, 11, 12, 60
        order = list(range(48, 57)) + list(range(16)) + list(range(32, 48)) + list(range(16, 32))
        lops = []
        for e in order:
            it = [I(f"ds_write_addtid_b32 v{KV+2*e+m} offset:{(e&15)*528+256*m}") for m in range(2)]
            if 36 <= e < 44: it.append(kmfma(2, X2F)[e - 36])
            if e == 46: it += [I(f"v_cndmask_b32 v{KA+8}, 0, v{KA+8}, vcc"), I(f"ds_write_b128 v{VRW}, {v(KA+8,4)} offset:2048")]
            if 20 <= e < 28: it.append(kmfma(1, XF + 32)[e - 20])
            if e == 30: it.append(I(f"ds_write_b128 v{VRW}, {v(KA+4,4)} offset:1024"))
            if e in (15, 31, 47, 56): it += getfr({15: YF, 31: XF, 47: XF + 32, 56: X2F}[e])
            if "2" in c.diag and e < 32 and e % 16 != 15: it = it[2:]
            lops.append(it)
        nl = [0]
        def lds_upto(m):
            while nl[0] < m:
                assert order[nl[0]] in have
                p.extend(lops[nl[0]]); nl[0] += 1
        done = 0; nb = 0; fx = [None]; xt = [None]
        def barrier():
            nonlocal nb
            if nb in ctok: p.wait(ctok[nb])
            if nb == c.r_at and c.r_early: p.wait(w2t[c.r_early - 1])
            if nb == 6 and c.r2: assert c.br0 >= 0 and c.r2 <= 8; p.wait(w2t[c.r2 - 1])
            self.stamp(f"atbar{nb}", sets=(0, 1) if nb == 0 else (1,))
            p("s_barrier")
            if c.a_chunks <= nb + 3 < 7:
                for it in self.dma_chunk(nb + 3, T, ctok): p.extend(it)
            if c.s_touch and nb < 4: touch_upto(c.s_touch[nb + 1])
            if nb == 4: self.stamp("bar4", sets=(0, 3))
            if nb == c.gt_at:
                p(f"s_lshl_b32 s{T}, s{S_MH}, 11\ns_add_u32 s{T}, s{T}, L_gtab-L_pc")
                for h in range(2): p(f"buffer_load_dwordx4 {v(VGT+4*h,4)}, v{VL16}, {s(R_PC,4)}, s{T} offen offset:{1024*h}")
            if nb >= 4 or nb == c.br0:
                while nq[0] < (c.bw2[nb - 4] if nb >= 4 else 4):
                    n = nq[0]; nq[0] += 1
                    pc = (n >> 2) if c.br0 < 0 else (-2 if n < 4 else (n >> 2) - 1)
                    assert pc <= nb - 4 or pc < 0
                    if pc == 3: assert n - 12 < c.r2; pc = 0
                    p(f"s_add_u32 m0, s{S_RING}, {pc*SLOT + (n&3)*2048}\ns_cmp_eq_u32 s{S_WIDX}, {(6-n)%7}\nbuffer_load_dwordx4 v{VW2D}, {s(R_2,4)}, s{S_WOFF} offen lds")
                    w2t[n] = p.tok(f"buffer_load_dwordx4 v{VW2D+1}, {s(R_2,4)}, s{S_WOFF} offen offset:1024 lds")
                    p(f"s_cselect_b32 s{T}, {-7*64*896}, 0\ns_add_u32 s{S_WOFF}, s{S_WOFF}, s{T}\ns_add_u32 s{S_WOFF}, s{S_WOFF}, {(64 + (16 if n % 7 == 6 else 0))*896}")
            if nb < 7 and c.lds_cut[nb] > nl[0]:
                assert done == total and c.lds_cut[nb] <= 23 and (c.br0 < 0 or nb > c.r_at)
                p(f"s_mul_i32 m0, s{S_BW}, 8448"); lds_upto(c.lds_cut[nb])
            if nb == c.band_at:
                assert done == total
                p(f"v_and_b32 v{VT}, 15, v0\nv_lshrrev_b32 v{VT+1}, 4, v0\nv_lshlrev_b32 v{VT+2}, 3, v{VT+1}\ns_movk_i32 s{T}, 0x3f80")
                for bd, m in ((BE9, 0x1ff << 4), (BO7, 0x7f << 5)):
                    p(f"v_mov_b32 v{VT+3}, {m}\nv_lshlrev_b32 v{VT+3}, v{VT}, v{VT+3}\nv_lshrrev_b32 v{VT+3}, v{VT+2}, v{VT+3}")
                    for d in range(4):
                        p(f"v_bfe_u32 v{VT+4}, v{VT+3}, {2*d}, 1\nv_bfe_u32 v{VT+5}, v{VT+3}, {2*d+1}, 1\nv_lshl_or_b32 v{VT+4}, v{VT+5}, 16, v{VT+4}\nv_mul_u32_u24 v{bd+d}, s{T}, v{VT+4}")
                p(f"s_mul_i32 s{T}, s{S_MH}, 768\ns_sub_u32 s{T}, 1200, s{T}\nv_add_u32 v{VPU}, s{T}, v{VUA}")
                p(f"s_mul_i32 s{T}, s{S_CHN}, {TCH}\ns_add_u32 s{S_X}, s{T}, {L_TAB+4*TCP+60}\nv_lshlrev_b32 v{VT+3}, 2, v{VT+1}\nv_sub_u32 v{VT+3}, v{VT+3}, v{VT}\nv_lshl_add_u32 v{VCA}, v{VT+3}, 2, s{S_X}")
                p(f"s_add_u32 s{T}, s{T}, {L_TAB}\nv_and_b32 v{VT+3}, 3, v0\nv_mul_u32_u24 v{VT+3}, {TCP}, v{VT+3}\nv_lshrrev_b32 v{VT+4}, 2, v0\nv_lshl_add_u32 v{VT+3}, v{VT+4}, 4, v{VT+3}\nv_lshl_add_u32 v{VT+3}, v{VT+1}, 11, v{VT+3}")
                p(f"v_lshlrev_b32 v{VT+4}, 2, v0\nv_add_u32 v{VT+4}, {4*TCP}, v{VT+4}\ns_cmp_eq_u32 s{S_MH}, 0\ns_cselect_b64 vcc, -1, 0\nv_cndmask_b32 v{VT+3}, v{VT+3}, v{VT+4}, vcc\nv_add_u32 v{VTZ}, s{T}, v{VT+3}")
            if nb == 5:
                p(f"s_mul_i32 s{T}, s{S_CHN}, 6144\ns_add_u32 s{T}, s{T}, {L_RAW}\ns_cmp_eq_u32 s{S_MH}, 0\ns_cselect_b32 s{S_DSK}, s{S_DSK}, 0")
                p(f"v_mov_b32 v{VT}, s{S_DSK}\nv_cmp_eq_u32 vcc, 0, v0\nv_mov_b32 v{VT+1}, s{T}\nv_mov_b32 v{KA+1}, 0\nv_cndmask_b32 v{KA}, 0, v{VT}, vcc\nv_mov_b32 v{KA+2}, 0\nv_mov_b32 v{KA+3}, 0\nv_cmp_gt_u32 vcc, 48, v0")
                for k in range(16):
                    p(f"v_add_u32_sdwa v{VG+k}, v{VT+1}, v{VGT+(k>>1)} dst_sel:DWORD dst_unused:UNUSED_PAD src0_sel:DWORD src1_sel:WORD_{k&1}")
            nb += 1
        nq = [0]; w2t = {}
        for cost, fn in units:
            while nb < 8 and done >= cuts[min(nb, 6)]: barrier()
            fn(nb == 0); done += cost
        while nb < 8: barrier()
        self.stamp("bar7", sets=(0, 3))
        p(f"s_mul_i32 m0, s{S_BW}, 8448")
        if c.prio_b3 != c.prio_b2: p(f"s_setprio {c.prio_b3}")
        XR, XR2 = 2, 52
        lds_upto(c.fx_ld)
        fx = self.flag_load("X", S_FXR, 8, VFL)
        lds_upto(c.fx_chk)
        self.flag_check(fx, VT)
        p.wait(w2t[nq[0] - 1]); self.lds_post(VONE, VTAG, 4)
        self.stamp("fx", sets=(3,))
        p(f"buffer_load_dwordx4 {v(XR,4)}, v{VL16}, {s(R_WS,4)}, s{S_XTR} offen sc1\ns_add_u32 s{S_XTR}, s{S_XTR}, 4096\nbuffer_load_dwordx4 {v(XR2,4)}, v{VL16}, {s(R_WS,4)}, s{S_XTR} offen sc1")
        lds_upto(57)
        p.extend(kmfma(0, XF))
        T = S_T
        uw = lambda: [p(f"ds_write_b128 v{VUW}, {v(XR2 if ch else XR,4)} offset:{4608*ch}") for ch in range(2)] + [p(f"ds_write_b32 v{VUZ}, v{VZ}")]
        p(f"ds_write_b128 v{VRW}, {v(KA,4)}")
        self.lds_post(VONE, VTAG, 0)
        self.stamp("kgen", sets=(0, 3))
        if c.prio_b4 != c.prio_b3: p(f"s_setprio {c.prio_b4}")
        self.lds_wait(VCN, VT, 0)
        GV, PK = 96, 128
        for k in range(16): p(f"ds_read2st64_b32 {v(GV+2*k,2)}, v{VG+k} offset0:0 offset1:12")
        if c.u_at == 1: uw()
        for k in range(11): p(f"v_add_f32 v{GV+2*k}, v{GV+2*k}, v{GV+2*k+1}")
        for cp_ in range(4):
            for j in range(4): p(f"v_cvt_pk_bf16_f32 v{PK+4*cp_+j}, v{GV+2*(cp_+2*j)}, v{GV+2*(cp_+2*j+1)}")
            p(f"ds_write_b128 v{VTW}, {v(PK+4*cp_,4)} offset:{cp_*TCP+64}")
        for k in range(11, 16): p(f"v_add_f32 v{GV+2*k}, v{GV+2*k}, v{GV+2*k+1}")
        l0, l1 = self.lab("edge"), self.lab("tabd")
        E = lambda k: GV + 2 * (11 + k)
        p(f"v_cvt_pk_bf16_f32 v{PK+16}, v{E(0)}, v{E(1)}\ns_cmp_lg_u32 s{S_MH}, 0\ns_cbranch_scc1 {l0}")
        p.alt_begin()
        p(f"ds_write_b32 v{VTZ}, v{PK+16}\ns_mov_b64 exec, 0xffff\nds_write_b32 v{VTZ}, v{VZ} offset:256\ns_branch {l1}")
        p.alt_else()
        p.label(l0)
        p(f"v_cvt_pk_bf16_f32 v{PK+17}, v{E(2)}, v{E(3)}\nv_cvt_pk_bf16_f32 v{PK+18}, v{E(3)}, v{E(3)}\nv_cvt_pk_bf16_f32 v{PK+19}, v{E(3)}, v{E(4)}")
        p(f"s_mov_b64 exec, 0xffffff\nds_write_b128 v{VTZ}, {v(PK+16,4)}")
        p.alt_end()
        p.label(l1)
        p("s_mov_b64 exec, -1")
        self.stamp("tables", sets=(0, 3, 4))
        if c.u_at == 2: uw()
        self.lds_post(VONE, VTAG, 1)
        self.lds_wait(VCN, VT, 1)
        self.stamp("u", sets=(0, 3, 4))
        if c.prio_b5 != c.prio_b4: p(f"s_setprio {c.prio_b5}")
        TF, UF, CA = 96, 160, 224
        PU, VA, VB, AF, TB = 128, 144, 64, 72, 88
        MF = lambda d, a, b_, z=False: I(f"v_mfma_f32_16x16x32_bf16 {v(d,4)}, {v(a,4)}, {v(b_,4)}, {'0' if z else v(d,4)}")
        def read_tu(ph):
            r = [I(f"ds_read_b128 {v(UF+32*(ph&1),4)}, v{VUA} offset:{2*32*(3-ph)}")]
            for a in range(4):
                for h in range(2):
                    r.append(I(f"ds_read_b64 {v(TF+16*(ph&1)+4*a+2*h,2)}, v{VTA} offset:{2*(160+256*(3-a)+32*(3-ph))+8*h}"))
            return r + [I(f"ds_read_b128 {v(UF+32*(ph&1)+4*b,4)}, v{VUA} offset:{2*(256*b+32*(3-ph))}") for b in range(1, 8)]
        r0 = read_tu(0)
        p.extend(r0[:11])
        for ph in range(4):
            mm = [MF(CA + 4 * (a + b), UF + 32 * (ph & 1) + 4 * b, TF + 16 * (ph & 1) + 4 * a, ph == 0 and (b == 0 or a == 3)) for b in range(8) for a in range(min(4, 8 - b))]
            if ph == 0:
                rp = [I(f"ds_read_b128 {v(PU+8*be+4*o,4)}, v{VPU} offset:{512*be+16*o}") for be in range(2) for o in range(2)]
                ra = [I(f"ds_read2_b32 {v(AF+4*a+2*h,2)}, v{VCA} offset0:{16*(3-a)+2*h} offset1:{16*(3-a)+2*h+1}") for a in range(4) for h in range(2)]
                ra += [I(f"ds_read_b64 {v(TB+2*h,2)}, v{VTA} offset:{8*h}") for h in range(2)]
                mp = [MF(VA + 8 * be + 4 * o, PU + 8 * be + 4 * o, BO7 if o else BE9, True) for be in range(2) for o in range(2)]
                cv = [I(f"v_cvt_pk_bf16_f32 v{VB+4*be+r}, v{VA+8*be+r}, v{VA+8*be+4+r}") for be in range(2) for r in range(4)]
                r1 = read_tu(1)
                p.extend(interleave(mm[:12], r0[11:13] + rp + r0[13:] + ra[:5]))
                p.extend(interleave(mp + mm[12:18], ra[5:] + r1[:8]))
                p.extend(interleave(mm[18:], [[x, y] for x, y in zip(cv, r1[8:])]))
                l0, l1 = self.lab("far1"), self.lab("fard")
                p(f"s_cmp_lg_u32 s{S_MH}, 0\ns_cbranch_scc1 {l0}")
                p.alt_begin()
                p.extend([MF(CA + 4 * (4 + b), UF + 4 * b, TB) for b in range(4)])
                p.extend([MF(CA + 4 * 6, AF, VB), MF(CA + 4 * 7, AF + 4, VB), MF(CA + 4 * 7, AF, VB + 4)])
                p(f"s_branch {l1}")
                p.alt_else()
                p.label(l0)
                p.extend([MF(CA + 4 * (4 + a + be), AF + 4 * a, VB + 4 * be) for be in range(2) for a in range(4 - be)])
                p.alt_end()
                p.label(l1)
            elif ph < 3 and "3" in c.diag: pass
            elif ph < 3: p.extend(interleave(mm, read_tu(ph + 1), ratio=0.8))
            else:
                self.lds_post(VONE, VTAG, 2)
                p.extend(mm[:5]); self.lds_peek(VCN, VT, 2); p.extend(mm[5:11])
                self.lds_check(VCN, VT, 2, fill=lambda: p.extend(mm[11:16])); mm = mm[16:]
                if c.prio_b6 != c.prio_b5 and not c.late6: p(f"s_setprio {c.prio_b6}")
                fill = [I(f"ds_write_b128 v{VEXW}, {v(CA+4*cc,4)} offset:{1024*cc}") for cc in range(4)]
                p.extend(interleave(mm, fill, ratio=0.5))
        if c.prio_b6 != c.prio_b5 and c.late6: p(f"s_setprio {c.prio_b6}")
        self.stamp("conv", sets=(0, 2, 3, 4))
        for cc in range(4, 8): p(f"ds_write_b128 v{VEXW}, {v(CA+4*cc,4)} offset:{1024*cc}")
        self.lds_post(VONE, VTAG, 3)
        EXV, VSA = 96, 10
        if "b" in c.diag:
            p(f"v_lshlrev_b32 v{VT+4}, 7, v0\ns_mov_b64 exec, 15\nbuffer_store_dword v{VTAG}, v{VT+4}, {s(R_WS,4)}, s{S_FSW} offen sc1\ns_mov_b64 exec, -1")
            self.lds_post(VONE, VTAG, 7); p("s_waitcnt lgkmcnt(0)"); self.stamp_flush(1); p("s_endpgm"); return
        self.lds_wait(VCN, VT, 3)
        for k in range(2):
            for w in range(4): p(f"ds_read_b128 {v(EXV+16*k+4*w,4)}, v{VEXR} offset:{8192*w+1024*k}")
        for k in range(2):
            b = EXV + 16 * k
            for r in range(4): p(f"v_add_f32 v{b+r}, v{b+r}, v{b+4+r}\nv_add_f32 v{b+8+r}, v{b+8+r}, v{b+12+r}")
            for r in range(4): p(f"v_cvt_pk_bf16_f32 v{b+4+r}, v{b+r}, v{b+8+r}")
            sttok = p.tok(f"buffer_store_dwordx4 {v(b+4,4)}, v{VL16}, {s(R_WS,4)}, s{S_STW} offen offset:{1024*k} sc1")
        self.stamp("st", sets=(0, 2, 3, 4))
        F = dict(VT=VT, XO=16, PA=18, SA=17, STA=20, XI=24, RG=21, RC=22, XF=128, PV=160, SV=28, SF=136, w=S_BW, sXO=S_FXR, sST=S_XTR, OUT=R_2)
        S_XO = S_STW
        p(f"s_load_dwordx2 {s(R_LD,2)}, s[0:1], 0\ns_load_dwordx2 {s(R_2,2)}, s[0:1], 104\ns_mov_b32 s{R_LD+2}, {2048*896}\ns_mov_b32 s{R_2+2}, {2048*896}\ns_add_u32 s{S_XO}, s{S_STR}, {8*8192}")
        self.fin_addr(0, F, 0); self.fin_addr(0, F, 1)
        if "S" not in c.spoll: p(f"v_min_u32 v{VFL}, 15, v0\nv_lshlrev_b32 v{VFL}, 2, v{VFL}")
        p(f"s_mul_i32 s{T}, s{S_BW}, 2304\ns_add_u32 s{T}, s{T}, {L_STR}")
        p(f"v_and_b32 v{VT+4}, 32, v0\nv_lshl_add_u32 v{VT+4}, v0, 3, v{VT+4}\nv_add_u32 v{VSA}, s{T}, v{VT+4}")
        p(f"v_lshrrev_b32 v{VT+4}, 3, v0\nv_lshlrev_b32 v{VT+4}, 13, v{VT+4}\nv_and_b32 v{VT+5}, 7, v0\nv_lshl_add_u32 v{VSA+2}, v{VT+5}, 4, v{VT+4}\nv_lshlrev_b32 v{VT+4}, 7, v0")
        p.wait(sttok)
        if "S" in c.sflag: self.sflags4(S_FSW)
        else: p(f"s_mov_b64 exec, 15\nbuffer_store_dword v{VTAG}, v{VT+4}, {s(R_WS,4)}, s{S_FSW} offen sc1\ns_mov_b64 exec, -1")
        self.stamp("flagS")
        if c.prio_b7 != c.prio_b6: p(f"s_setprio {c.prio_b7}")
        if c.b_xat == 0: self.fin_loads(F)
        fs = self.flag_load("S", S_FSR, 16, VFL)
        self.flag_check(fs, VT, sleep=c.fs_sleep)
        self.stamp("fs", sets=(0, 2, 3))
        if c.prio_b8 != c.prio_b7: p(f"s_setprio {c.prio_b8}")
        SV = 64
        for j in range(2): p(f"buffer_load_dwordx4 {v(SV+4*j,4)}, v{VSA+2}, {s(R_WS,4)}, s{S_XO if j else S_STR} offen sc1")
        if c.b_xat == 1: self.fin_loads(F)
        for j in range(2): p(f"ds_write2_b64 v{VSA}, {v(SV+4*j,2)}, {v(SV+4*j+2,2)} offset0:{72*j} offset1:{72*j+144}")
        self.lds_post(VONE, VTAG, 7)
        self.stamp("sready", sets=(0, 2, 3))
        self.fin_sread(F); p.extend(self.fin_prep(F)); p.extend(self.fin_sprep(F))
        self.lds_wait(VCN, VT, 5, sleep=c.b5_sleep)
        if c.prio_b9 != c.prio_b8: p(f"s_setprio {c.prio_b9}")
        self.fin_out(F)
        self.stamp("end", sets=(0, 2, 3, 4, 9))
        self.stamp_flush(1)
        p("s_endpgm")

    def head_h(self):
        p, c = self.p, self.c
        p.label("L_helper")
        self.role_start()
        S_HH, S_X, S_Z, VT, XD = 64, 65, 72, 1, 16
        if c.prefetch_code and c.pf_h:
            p(f"s_sub_u32 s{S_X}, s{S_J}, 28\ns_lshl3_add_u32 s{S_X}, s{S_X}, s{S_WAVE}\ns_lshl_b32 s{S_X}, s{S_X}, 7\nv_lshlrev_b32 v255, 12, v0\ns_mov_b64 exec, 0x1ff")
            p(f"buffer_load_dword v255, v255, {s(R_PC,4)}, s{S_X} offen\ns_mov_b64 exec, -1")
        p(f"s_lshl2_add_u32 s{S_HH}, s{S_XCD}, s{S_J}\ns_sub_u32 s{S_HH}, s{S_HH}, 28\ns_lshl3_add_u32 s{S_Z}, s{S_HH}, s{S_WAVE}\ns_mul_i32 s{S_X}, s{S_Z}, {8*896}")
        p(f"v_lshrrev_b32 v{VT+2}, 3, v0\nv_mul_u32_u24 v{VT}, 896, v{VT+2}\nv_and_b32 v{VT+1}, 7, v0\nv_lshl_add_u32 v{VT}, v{VT+1}, 4, v{VT}")
        srd(p, R_LD, P_U, 2048 * 896)
        for i in range(7): p(f"buffer_load_dwordx4 {v(XD+4*i,4)}, v{VT}, {s(R_LD,4)}, s{S_X} offen offset:{128*i}")
        if c.h_near: p("s_branch L_bodyH")
    def role_h(self):
        p, c = self.p, self.c
        S_HH, S_X, S_Y, S_ONE, S_LO, S_HI, S_Q, S_CG, S_Z = range(64, 73)
        T = S_T
        VT, XD, WD, AC, CS, UP = 1, 16, 48, 80, 88, 96
        L_XN = 8192
        if c.h_near:
            if c.h_align: p(".p2align 12")
            p.label("L_bodyH"); p.reset()
            if c.prefetch_code: p.items.append(Marker("pending", ("vmem", {"v255"})))
            for i in range(7): p.items.append(Marker("pending", ("vmem", {f"v{XD+4*i+j}" for j in range(4)})))
        else: self.head_h()
        self.stamp_begin("H")
        self.load_epoch(); srd(p, R_2, P_W1, 448 * 3584); srd(p, R_PC, P_W2, 1792 * 896)
        p(f"s_lshr_b32 s{S_Q}, s{S_XCD}, 1\ns_lshl2_add_u32 s{S_Q}, s{S_Q}, s{S_J}\ns_sub_u32 s{S_Q}, s{S_Q}, 28\ns_and_b32 s{S_CG}, s{S_XCD}, 1\ns_mul_i32 s{S_CG}, s{S_CG}, 14\ns_add_u32 s{S_CG}, s{S_CG}, s{S_Q}")
        p(f"s_lshl_b32 s{T}, s{S_CG}, 7\ns_mul_i32 s{S_Y}, s{S_WAVE}, {56*3584}\ns_add_u32 s{S_Y}, s{S_Y}, s{T}\ns_cmp_ge_u32 s{S_Q}, 14\ns_cselect_b32 s{S_Y}, {448*3584}, s{S_Y}")
        p(f"v_mul_u32_u24 v{VT+3}, 3584, v{VT+2}\nv_lshl_add_u32 v{VT+3}, v{VT+1}, 4, v{VT+3}")
        p(f"s_mov_b32 s{S_ONE}, 0x3f803f80\ns_mov_b32 s{S_LO}, 0x00003f80\ns_mov_b32 s{S_HI}, 0x3f800000")
        p(f"s_lshl_b32 s{S_X}, s{S_Z}, 6\ns_add_u32 s{S_X}, s{S_X}, {WS_STAT}")
        p(f"s_mul_i32 s{T}, s{S_WAVE}, 7232\ns_add_u32 s{T}, s{T}, {L_XN}\nv_add_u32 v{VT}, s{T}, v{VT}")
        for i in range(4): p(f"v_mov_b32 v{AC+i}, 0")
        for k in range(8): p(f"v_mov_b32 v{CS+k}, 0")
        self.make_tag()
        def w1_loads():
            for i in range(7):
                p(f"buffer_load_dwordx4 {v(WD+4*i,4)}, v{VT+3}, {s(R_2,4)}, s{S_Y} offen")
                if i < 6: p(f"s_add_u32 s{S_Y}, s{S_Y}, {8*3584}")
        def touch():
            p(f"s_sub_u32 s{T}, s{S_J}, 28\ns_mul_i32 s{T}, s{T}, 7\ns_add_u32 s{T}, s{T}, s{S_WAVE}\ns_lshl3_add_u32 s{T}, s{T}, s{S_XCD}\ns_mul_i32 s{T}, s{T}, {8*896}\ns_cmp_eq_u32 s{S_WAVE}, 7\ns_cselect_b32 s{T}, {1792*896}, s{T}")
            p(f"v_min_u32 v120, 55, v0\nv_lshlrev_b32 v120, 7, v120\nbuffer_load_dword v121, v120, {s(R_PC,4)}, s{T} offen")
        if c.h_w1 == 0: w1_loads()
        if c.h_w1 == 1: p.items.append(Marker("need", XD + 27)); w1_loads()
        self.stamp("issued")
        for i in range(28):
            p(f"v_dot2_f32_bf16 v{AC+(i&1)}, v{XD+i}, s{S_ONE}, v{AC+(i&1)}\nv_dot2_f32_bf16 v{AC+2+(i&1)}, v{XD+i}, v{XD+i}, v{AC+2+(i&1)}")
        p(f"v_add_f32 v{AC}, v{AC}, v{AC+1}\nv_add_f32 v{AC+1}, v{AC+2}, v{AC+3}")
        for pat in ("quad_perm:[1,0,3,2]", "quad_perm:[2,3,0,1]", "row_half_mirror"):
            for k in range(2): p(f"v_add_f32_dpp v{AC+k}, v{AC+k}, v{AC+k} {pat} row_mask:0xf bank_mask:0xf")
        inv = 0x3b124925
        p(f"v_mul_f32 v{AC}, {inv}, v{AC}\nv_mul_f32 v{AC+1}, {inv}, v{AC+1}\nv_fma_f32 v{AC+1}, -v{AC}, v{AC}, v{AC+1}\nv_max_f32 v{AC+1}, 0, v{AC+1}")
        p(f"v_cvt_pk_bf16_f32 v{AC+1}, v{AC+1}, v{AC+1}\nv_and_b32 v{AC+1}, 0xffff0000, v{AC+1}\nv_add_f32 v{AC+1}, 0x3727c5ac, v{AC+1}")
        p(f"v_cvt_pk_bf16_f32 v{AC+1}, v{AC+1}, v{AC+1}\nv_and_b32 v{AC+1}, 0xffff0000, v{AC+1}\nv_sqrt_f32 v{AC+1}, v{AC+1}")
        p(f"v_mov_b32 v{AC+3}, s{S_TAG}\nv_cvt_pk_bf16_f32 v{AC+2}, v{AC}, v{AC+1}")
        p(f"s_mov_b32 exec_lo, 0x01010101\ns_mov_b32 exec_hi, 0x01010101\nbuffer_store_dwordx2 {v(AC+2,2)}, v0, {s(R_WS,4)}, s{S_X} offen sc1\ns_mov_b64 exec, -1")
        if c.h_w1 == 2: w1_loads()
        if c.h_touch == 0: touch()
        self.stamp("stats")
        p(f"v_and_b32 v{AC+4}, 0xffff0000, v{AC+2}\nv_rcp_f32 v{AC+4}, v{AC+4}\nv_lshlrev_b32 v{AC+6}, 16, v{AC+2}\nv_mov_b32 v{AC+5}, v{AC+4}\nv_mul_f32 v{AC+6}, -v{AC+6}, v{AC+4}\nv_mov_b32 v{AC+7}, v{AC+6}")
        for i in range(7):
            u = UP + 8 * (i & 1)
            for j in range(4): p(f"v_lshlrev_b32 v{u+2*j}, 16, v{XD+4*i+j}\nv_and_b32 v{u+2*j+1}, 0xffff0000, v{XD+4*i+j}")
            for j in range(4): p(f"v_pk_fma_f32 {v(u+2*j,2)}, {v(u+2*j,2)}, {v(AC+4,2)}, {v(AC+6,2)}")
            for j in range(4): p(f"v_cvt_pk_bf16_f32 v{XD+4*i+j}, v{u+2*j}, v{u+2*j+1}")
            p(f"ds_write_b128 v{VT}, {v(XD+4*i,4)} offset:{128*i}")
        if c.h_touch == 1: touch()
        self.stamp("norm")
        for i in range(7):
            for j in range(4):
                p(f"v_dot2_f32_bf16 v{CS+2*j}, v{WD+4*i+j}, s{S_LO}, v{CS+2*j}\nv_dot2_f32_bf16 v{CS+2*j+1}, v{WD+4*i+j}, s{S_HI}, v{CS+2*j+1}")
        for k in range(8): p(f"v_add_f32_dpp v{CS+k}, v{CS+k}, v{CS+k} row_ror:8 row_mask:0xf bank_mask:0xf")
        p(f"v_and_b32 v{VT+3}, 8, v0\nv_cmp_eq_u32 vcc, 0, v{VT+3}\nv_lshlrev_b32 v{VT+3}, 1, v{VT+3}\nv_lshl_add_u32 v{VT+3}, v{VT+1}, 5, v{VT+3}\nv_lshrrev_b32 v{VT+4}, 4, v0\nv_lshl_add_u32 v{VT+3}, v{VT+4}, 8, v{VT+3}")
        p(f"s_lshl_b32 s{T}, s{S_WAVE}, 10\nv_add_u32 v{VT+3}, s{T}, v{VT+3}")
        for k in range(4): p(f"v_cndmask_b32 v{CS+k}, v{CS+4+k}, v{CS+k}, vcc")
        p(f"ds_write_b128 v{VT+3}, {v(CS,4)}")
        p(f"s_lshl_b32 s{T}, s{S_WAVE}, 7\ns_add_u32 s{T}, s{T}, {L_XN}\nv_mul_u32_u24 v{VT}, 7232, v{VT+1}\nv_lshl_add_u32 v{VT}, v{VT+2}, 4, v{VT}\nv_add_u32 v{VT}, s{T}, v{VT}")
        p(f"v_lshlrev_b32 v{VT+2}, 15, v{VT+2}\nv_lshl_add_u32 v{VT+2}, v{VT+1}, 4, v{VT+2}\nv_lshlrev_b32 v{VT+4}, 7, v0")
        p(f"s_lshl_b32 s{S_X}, s{S_WAVE}, 11\ns_add_u32 s{S_X}, s{S_X}, s{S_HH}\ns_lshl_b32 s{S_X}, s{S_X}, 7\ns_add_u32 s{S_X}, s{S_X}, {WS_XT}")
        p(f"s_lshr_b32 s{T}, s{S_HH}, 3\ns_lshl2_add_u32 s{S_Y}, s{S_WAVE}, s{T}\ns_lshl_b32 s{S_Y}, s{S_Y}, 7\ns_and_b32 s{T}, s{S_HH}, 7\ns_add_u32 s{S_Y}, s{S_Y}, s{T}\ns_lshl2_add_u32 s{S_Y}, s{S_Y}, {WS_FX}")
        p(f"s_mov_b32 s{S_LO}, 0x05040100\ns_mov_b32 s{S_HI}, 0x07060302\ns_waitcnt lgkmcnt(0)\ns_barrier")
        self.stamp("bar")
        p(f"s_cmp_eq_u32 s{S_WAVE}, 7\ns_cbranch_scc1 L_h7")
        p.alt_begin()
        for j in range(8): p(f"ds_read_b128 {v(XD+4*j,4)}, v{VT} offset:{896*j}")
        if c.h_touch == 2: touch()
        for e in range(8):
            o = WD + 4 * e
            for j in range(4): p(f"v_perm_b32 v{o+j}, v{XD+4*(2*j+1)+(e>>1)}, v{XD+4*(2*j)+(e>>1)}, s{S_HI if e&1 else S_LO}")
            p(f"buffer_store_dwordx4 {v(o,4)}, v{VT+2}, {s(R_WS,4)}, s{S_X} offen sc1")
            if e < 7: p(f"s_add_u32 s{S_X}, s{S_X}, 4096")
        p("s_waitcnt vmcnt(0)")
        if "X" in c.sflag: self.sflags4(S_Y)
        else: p(f"s_mov_b64 exec, 15\nbuffer_store_dword v{AC+3}, v{VT+4}, {s(R_WS,4)}, s{S_Y} offen sc1\ns_mov_b64 exec, -1")
        p("s_branch L_hdone")
        p.alt_else()
        p.label("L_h7")
        p(f"s_setprio 3\ns_cmp_ge_u32 s{S_Q}, 14\ns_cbranch_scc1 L_hdone\nv_lshlrev_b32 v{VT+3}, 2, v0")
        for i in range(16): p(f"ds_read2st64_b32 {v(XD+2*i,2)}, v{VT+3} offset0:{2*i} offset1:{2*i+1}")
        for st in (16, 8, 4, 2):
            for i in range(0, st, 2): p(f"v_pk_add_f32 {v(XD+i,2)}, {v(XD+i,2)}, {v(XD+st+i,2)}")
        p(f"v_add_f32 v{AC+2}, v{XD}, v{XD+1}\nv_lshlrev_b32 v{VT+3}, 3, v0\ns_lshl_b32 s{T}, s{S_CG}, 9\ns_add_u32 s{T}, s{T}, {WS_CS}")
        p(f"buffer_store_dwordx2 {v(AC+2,2)}, v{VT+3}, {s(R_WS,4)}, s{T} offen sc1")
        p.alt_end()
        p.label("L_hdone")
        p("s_setprio 0\ns_waitcnt lgkmcnt(0)")
        self.stamp("done")
        p(f"v_min_u32 v{VT}, 55, v0\ns_sub_u32 s{S_Z}, s{S_J}, 28")
        if c.h_pf:
            p("s_barrier")
            p(f"s_mul_i32 s{T}, s{S_Z}, 7\ns_add_u32 s{T}, s{T}, s{S_WAVE}\ns_mul_i32 s{T}, s{T}, {64*896}\ns_cmp_eq_u32 s{S_WAVE}, 7\ns_cselect_b32 s{T}, {1792*896}, s{T}\nv_lshlrev_b32 v{VT+1}, 7, v{VT}")
            for st in c.h_pf:
                for h in range(2):
                    p(f"s_add_u32 s{T+1}, s{T}, {(16*st+8*h)*896}\nbuffer_load_dword v{VT+2}, v{VT+1}, {s(R_PC,4)}, s{T+1} offen")
        self.stamp("pfw")
        if c.h_act:
            p(f"s_lshr_b32 s{T}, s{S_WAVE}, 2\ns_mul_i32 s{T}, s{T}, 56\nv_add_u32 v{VT}, s{T}, v{VT}\nv_lshrrev_b32 v{VT+1}, 4, v{VT}\nv_lshlrev_b32 v{VT+1}, 13, v{VT+1}\nv_and_b32 v{VT}, 15, v{VT}\nv_lshl_add_u32 v{VT+1}, v{VT}, 7, v{VT+1}")
            p(f"s_and_b32 s{T}, s{S_WAVE}, 3\ns_lshl2_add_u32 s{S_X}, s{S_HH}, s{T}\ns_mul_i32 s{S_X}, s{S_X}, {28*2048}\ns_add_u32 s{S_X}, s{S_X}, {WS_ACT}")
            p(f"s_lshl4_add_u32 s{S_Y}, s{S_HH}, s{T}\ns_lshl_b32 s{S_Y}, s{S_Y}, 7\ns_add_u32 s{S_Y}, s{S_Y}, {WS_FA}")
            have = -1
            for st in c.h_act:
                p(f"s_add_u32 s{S_HI}, s{S_X}, {2048*st}")
                if st > have:
                    have = min(x for x in c.fstages if x >= st)
                    p(f"s_add_u32 s{S_LO}, s{S_Y}, {512*have}")
                    self.flag_check(self.flag_load("H", S_LO, 7, None), None, sleep=c.h_sleep)
                p(f"buffer_load_dword v{VT+2}, v{VT+1}, {s(R_WS,4)}, s{S_HI} offen sc1")
                self.stamp(f"pa{st}")
        p(f"s_waitcnt vmcnt(0)")
        self.stamp("pfa")
        p(f"s_cmp_lg_u32 s{S_HH}, 31\ns_cbranch_scc1 L_hend\ns_cmp_lg_u32 s{S_WAVE}, 7\ns_cbranch_scc1 L_hend")
        p(f"v_lshrrev_b32 v{VT}, 2, v0\nv_min_u32 v{VT}, 13, v{VT}\nv_lshlrev_b32 v{VT}, 9, v{VT}\nv_and_b32 v{VT+1}, 3, v0\nv_lshl_add_u32 v{VT}, v{VT+1}, 4, v{VT}\ns_mov_b32 s{S_X}, {WS_FS}")
        ld = f"s_sleep 8\nbuffer_load_dwordx4 {v(XD,4)}, v{VT}, {s(R_WS,4)}, s{S_X} offen sc1"
        p(ld)
        self.tagged_check(ld, [XD, XD + 1, XD + 2, XD + 3], VT + 2)
        p(f"s_mov_b32 s{S_X}, {WS_EPOCH}")
        self.flag_store(S_X, AC + 3)
        p.label("L_hend")
        self.stamp_flush(1)
        p("s_endpgm")

    def layout(self, body):
        c = self.c
        lines = body.split("\n")
        sizes = instr_sizes([re.sub(r"L_hop\d", "L_bodyA", l) for l in lines])
        end = lines.index("L_bodyH:") if c.h_near else lines.index("L_helper:")
        out, addr, page, k = [], 0, 1, 0
        prom = None
        fixed = [0, 0]
        for i, l in enumerate(lines):
            t = l.strip()
            if t.startswith(".p2align"):
                al = 1 << int(t.split()[1]); addr = (addr + al - 1) // al * al; prom = None
            if c.hops and sizes[i] and addr >= 4096 * page and i < end:
                out += [f"L_hop{k}:", f"    s_cbranch_execz {'L_bodyA' if k == 0 else 'HOP%d' % (k + 4)}"]; addr += 4; page += 1; k += 1; prom = None
            if c.align8 and sizes[i] == 8 and addr % 8 == 4:
                run, pend, valu = 0, 0, 0
                for j in range(i, min(len(lines), i + 60)):
                    if sizes[j] == 4: pend ^= 1
                    elif sizes[j] == 8:
                        if pend: break
                        run += 1; valu += lines[j].strip().startswith("v_") and "mfma" not in lines[j]
                if prom is not None and run >= 2:
                    m = re.match(r"(\s*)(v_\w+)(.*)", out[prom]); out[prom] = m.group(1) + m.group(2) + "_e64" + m.group(3); addr += 4; fixed[0] += 1
                elif valu >= c.align8:
                    out.append("    s_nop 0"); addr += 4; fixed[1] += 1
            if sizes[i] == 8: prom = None
            elif sizes[i] == 4 and re.match(r"v_(mov|add|sub|subrev|mul|and|or|xor|lshlrev|lshrrev|exp|rcp|sin|cos|fract|min|max|cvt|sqrt)_", t): prom = len(out)
            out.append(l); addr += sizes[i]
        body = "\n".join(out)
        if c.hops:
            assert c.align4k and k >= 5
            for j in range(k + 3, 4, -1): body = body.replace(f"HOP{j}", f"L_hop{j}" if j < k else "L_hopped")
        self.p.stats["align"] = fixed
        return body
    def build(self):
        p = self.p
        self.entry()
        self.role_a(); self.role_h()
        p.reset()
        p.label("L_exit")
        p("s_endpgm")
        p(".p2align 7")
        p(".type L_gtab,@object")
        p.label("L_gtab")
        w = self.gather_table()
        for i in range(0, len(w), 8): p(".long " + ", ".join(hex(x) for x in w[i:i+8]))
        p.label("L_end")
        body = p.resolve()
        head = open("recurrent_scan__ssm_conv_s4__dense_activation_mish__prompt.s.ref").read().split("; Override launch")[0]
        txt = head + f"; @launch grid=(256,1,1) block=(512,1,1) lds={LDS_BYTES}\n" + DOC + ""
        pad = ".p2align 12\n.fill 832, 4, 0xbf810000\n" if self.c.align4k else ""
        txt += f'.amdgcn_target "amdgcn-amd-amdhsa--gfx950"\n.text\n{pad}.globl {KNAME}\n.p2align 8\n.type {KNAME},@function\n{KNAME}:\n'
        if "m" in self.c.diag or "n" in self.c.diag:
            cnt = [0]
            def sub(m):
                cnt[0] += 1
                k = (cnt[0] - 1) // 4
                if ("m" if k < 28 else "n") not in self.c.diag: return m.group(0)
                a = int(m.group(1)) + 8 * (k & 1); z = k % 28 < 2
                return "\n".join(f"    v_mfma_f32_16x16x32_bf16 v[{a+4*i}:{a+4*i+3}], {m.group(2)}, {m.group(3)}, " + ("0" if z else f"v[{a+4*i}:{a+4*i+3}]") for i in range(2))
            body = re.sub(r"    v_mfma_f32_32x32x16_bf16 v\[(\d+):\d+\], (v\[\d+:\d+\]), (v\[\d+:\d+\]), \S+", sub, body)
        if self.c.dma_fl: body = re.sub(r" lds$", f" {self.c.dma_fl} lds", body, flags=re.M)
        body = self.layout(body)
        txt += body
        txt += f""".section .rodata,"a"
.p2align 6
.amdhsa_kernel {KNAME}
  .amdhsa_next_free_vgpr 256
  .amdhsa_next_free_sgpr 102
  .amdhsa_accum_offset 256
  .amdhsa_group_segment_fixed_size 0
  .amdhsa_kernarg_size 128
  .amdhsa_user_sgpr_count 2
  .amdhsa_user_sgpr_kernarg_segment_ptr 1
  .amdhsa_system_sgpr_workgroup_id_x 1
.end_amdhsa_kernel
"""
        return txt

def parse_cfg(args):
    kw = {}
    for a in args:
        k, x = a.split("=")
        kw[k] = eval(x)
    return Cfg(**kw)

if __name__ == "__main__":
    out = sys.argv[1]
    g = Gen(parse_cfg(sys.argv[2:]))
    txt = g.build()
    open(out, "w").write(txt)
    import json
    json.dump(g.stamp_names, open(out + ".stamps.json", "w"))
    print(out, g.p.stats)
```

```python
import sys, re
from asmgen import *

KNAME = "recurrent_scan__ssm_conv_s4__dense_activation_mish__prompt_kernel"

class Cfg:
    stamps = False
    sset = 0
    cyc = False
    prole = 'A'
    probe2 = None
    probe = None
    prefetch_code = True
    pf_h = False
    align4k = True
    align8 = 6
    hops = True
    mapP = False
    rot2 = 0
    qperm = False
    g2_mix = True
    act_st = 'sc1'
    act_ld = 'sc1'
    fa_st = 'sc1'
    mish_pk = False
    sflag = 'XAS'
    spoll = 'XASH'
    adepth = 7
    flead = 6
    pre_dma = 32
    nfirst = 8
    a_delay = 0
    a_chunks = 4
    dma_per = (8, 8, 8, 8, 8, 8, 8)
    gran_at = 5
    bw2 = (8, 12, 16, 16)
    w2_mish = 0
    fx_ld = 9
    fx_chk = 29
    u_at = 1
    lds_cut = (0, 0, 0, 0, 0, 0, 0)
    r_early = 4
    r_at = 4
    r2 = 8
    nx = 2
    b7_at = -3
    br0 = 0
    late6 = True
    band_at = 3
    out_fl = 'nt'
    mish_skip = 0.0
    w2_lead = 9
    w2_rate = 0.0
    w2_gap = 2
    rdepth = 3
    fstages = (3,)
    cstages = None
    flag_lag = 2
    gt_at = 2
    b_pre = 1.0
    kg_pre = 9999
    kg_ints = 4
    kg_x = 0.0
    h_w1 = 2
    h_touch = -1
    s_touch = (7, 14, 14, 14, 14)
    h_near = True
    h_align = True
    h_pf = ()
    diag = ''
    jitter = 0
    h_act = ()
    h_sleep = 4
    rot1 = 0
    fs_sleep = 3
    b_xat = 0
    prio_b = 1
    prio_b2 = 0
    prio_b3 = 1
    prio_b4 = 1
    prio_b5 = 1
    prio_b6 = 0
    prio_b7 = 0
    prio_b8 = 1
    prio_a1 = 2
    prio_a2 = 0
    tail_m = 5
    tail_ld = True
    tail_k = 3
    tail_r = None
    fin_at = (1, 2, 3, 21)
    prio_b9 = 0
    b5_sleep = 1
    pre_loop = 'R12 D20 W F D26 L C A8'
    dma_fl = ''
    def __init__(self, **kw):
        for k, x in kw.items():
            assert hasattr(self, k), k
            setattr(self, k, x)

WS_EPOCH, WS_FX, WS_FA, WS_FS = 0, 0x1000, 0x20000, 0x8000
WS_STAT, WS_CS, WS_XT, WS_ST, WS_ACT, WS_DBG = 0x10000, 0x14000, 0x40000, 0x200000, 0x600000, 0xE00000
WS_SIZE = 0x1000000
TAGC = 0x9E3779B1
SLOT = 32768
L_RING = 2 * SLOT
L_STG = 0
L_TAB = 512
TCP, TCH = 2240, 9472
L_EX = 0
L_RAW = SLOT + 1024
L_U = L_TAB + 2 * TCH
L_X = L_RAW
L_STR = L_RAW + 21504
L_CNT = L_RAW + 30720
LDS_BYTES = 163840
P_U, P_ARE, P_AIM, P_BRE, P_BIM, P_CRE, P_CIM, P_LDT = 4, 6, 8, 10, 12, 14, 16, 18
P_DSK, P_BX, P_W1, P_B1, P_W2, P_OUT, P_DBG, P_WS = 20, 22, 24, 26, 28, 30, 32, 34
R_LD, R_2, R_WS, R_PC = 36, 40, 44, 48
S_TAG, S_TAG2, S_WAVE, S_XCD, S_J, S_RT, S_CT, S_CP = 52, 53, 54, 55, 56, 57, 58, 97
S_SOFF, S_CSTR, S_LDB, S_CW, S_WT, S_WF = range(64, 70)
VD = 1
B_BW, B_LDT, B_DSK, B_STW, B_VP = 70, 71, 72, 73, 10
S_R2, S_C2 = 60, 61
S_T = 62
S_SP = 80
S_JR, S_XF = 3, 59
S_CNT = 96
S_T0 = 98
LOG2E = 0x3fb8aa3b
POLL_MAX = 1 << 17

DOC = """;
; Hand-offs go through d_ws with write-through stores; flags and tagged words hold a value derived from an epoch word in d_ws,
"""

def srd(p, r, ptr, size):
    p(f"s_mov_b32 s{r}, s{ptr}\ns_mov_b32 s{r+1}, s{ptr+1}\ns_mov_b32 s{r+2}, {size}\ns_mov_b32 s{r+3}, 0x20000")

class Gen:
    def __init__(self, cfg):
        self.c = cfg
        self.p = Prog()
        self.nlab = 0
        self.stamp_names = {}
    def lab(self, base):
        self.nlab += 1
        return f"L_{base}_{self.nlab}"

    def stamp_begin(self, role):
        self.role = role; self.stamp_names[role] = []
    def stamp(self, name, p=None, sets=(0,)):
        if self.c.jitter:
            q = p or self.p; l = self.lab("jit"); k = self.nlab * 40503 + self.c.jitter * 9176
            q(f"s_lshl3_add_u32 s100, s2, s{S_WAVE}\ns_add_u32 s100, s100, {k & 0xffff}\ns_mul_i32 s100, s100, 0x9E3779B1\ns_add_u32 s100, s100, s{S_TAG}\ns_mul_i32 s100, s100, 0x85EBCA6B\ns_lshr_b32 s100, s100, 29\ns_cmp_lg_u32 s100, 0\ns_cbranch_scc1 {l}\ns_sleep {(20, 60, 120)[self.nlab % 3]}")
            q.label(l)
        if self.c.probe2 and self.role == self.c.prole:
            if name == self.c.probe2[0]: (p or self.p)("s_memrealtime s[100:101]")
            if name == self.c.probe2[1]: (p or self.p)("s_memrealtime s[32:33]")
        if self.c.probe == (self.role, name): (p or self.p)("s_memrealtime s[100:101]")
        if not self.c.stamps or self.c.sset not in sets: return
        p = p or self.p
        n = len(self.stamp_names[self.role]); assert n < 15
        self.stamp_names[self.role].append(name)
        p(f"{'s_memtime' if self.c.cyc else 's_memrealtime'} {s(4+2*n, 2)}")
    def stamp_flush(self, vt):
        if self.c.probe2 and self.role == self.c.prole:
            l0, l1 = self.lab("probe"), self.lab("noprobe")
            self.p(f"s_waitcnt vmcnt(0) lgkmcnt(0)\ns_cmp_lg_u32 s2, {self.c.probe2[2]}\ns_cbranch_scc1 {l1}\ns_cmp_lg_u32 s{S_WAVE}, {5 if self.role == 'B' else 1}\ns_cbranch_scc1 {l1}")
            self.p("s_sub_u32 s32, s32, s100\ns_mul_i32 s32, s32, 20\ns_add_u32 s32, s32, 3000")
            self.p.label(l0)
            self.p(f"s_memrealtime s[30:31]\ns_waitcnt lgkmcnt(0)\ns_sub_u32 s30, s30, s98\ns_cmp_lt_u32 s30, s32\ns_cbranch_scc1 {l0}")
            self.p.label(l1)
        if self.c.probe and self.c.probe[0] == self.role:
            l0 = self.lab("probe")
            self.p("s_waitcnt vmcnt(0) lgkmcnt(0)")
            self.p.label(l0)
            self.p(f"s_memrealtime s[98:99]\ns_waitcnt lgkmcnt(0)\ns_sub_u32 s98, s98, s100\ns_cmp_lt_u32 s98, 6000\ns_cbranch_scc1 {l0}")
        if not self.c.stamps: return
        p = self.p
        n = len(self.stamp_names[self.role])
        p("s_waitcnt vmcnt(0) lgkmcnt(0)\ns_mov_b64 exec, 1")
        p(f"s_lshl_b32 s{S_T}, s2, 3\ns_add_u32 s{S_T}, s{S_T}, s{S_WAVE}\ns_lshl_b32 s{S_T}, s{S_T}, 6\ns_add_u32 s{S_T}, s{S_T}, {WS_DBG}")
        p(f"v_mov_b32 v{vt}, s{S_T0}\nbuffer_store_dword v{vt}, off, {s(R_WS,4)}, s{S_T}")
        for i in range(n):
            p(f"v_mov_b32 v{vt+1+(i&1)}, s{4+2*i}\nbuffer_store_dword v{vt+1+(i&1)}, off, {s(R_WS,4)}, s{S_T} offset:{4+4*i}")
        p("s_waitcnt vmcnt(0)")

    def flag_store(self, soff, vt):
        p = self.p
        p(f"s_mov_b64 exec, 1\nbuffer_store_dword v{vt}, off, {s(R_WS,4)}, s{soff} sc1\ns_mov_b64 exec, -1")
    def sflags4(self, soff):
        for i in range(4):
            self.p(f"s_atomic_swap s{S_TAG}, {s(R_WS,2)}, s{soff}")
            if i < 3: self.p(f"s_add_u32 s{soff}, s{soff}, 128")
    def lds_post(self, vown, vtag, k):
        self.p(f"s_mov_b64 exec, 1\nds_write_b32 v{vown}, v{vtag} offset:{16*k}\ns_mov_b64 exec, -1")
    def lds_wait(self, vaddr, vt, k, sleep=0):
        p = self.p
        l0, l1 = self.lab("spin"), self.lab("spun")
        p(f"s_mov_b32 s{S_CNT}, 0")
        p.label(l0)
        if sleep: p(f"s_sleep {sleep}")
        p(f"ds_read_b32 v{vt}, v{vaddr} offset:{16*k}\ns_add_u32 s{S_CNT}, s{S_CNT}, 1\ns_cmp_gt_u32 s{S_CNT}, {POLL_MAX*8}\ns_waitcnt lgkmcnt(0)")
        p(f"v_cmp_ne_u32 vcc, s{S_TAG}, v{vt}\ns_cbranch_scc1 {l1}\ns_cbranch_vccnz {l0}")
        p.label(l1)
    def lds_peek(self, vaddr, vt, k):
        self.p(f"ds_read_b32 v{vt}, v{vaddr} offset:{16*k}")
    def lds_check(self, vaddr, vt, k, fill=None):
        p = self.p
        l1 = self.lab("pass")
        p(f"v_cmp_ne_u32 vcc, s{S_TAG}, v{vt}")
        if fill: fill()
        p(f"s_cbranch_vccz {l1}")
        p.alt_begin(); self.lds_wait(vaddr, vt, k); p.alt_end()
        p.label(l1)
    def tagged_check(self, loads, tagregs, vt, on_miss=None):
        p = self.p
        l0, l1 = self.lab("chk"), self.lab("chkd")
        p(f"s_mov_b32 s{S_CNT}, 0")
        for r in reversed(tagregs): p.items.append(Marker("need", r))
        p.label(l0)
        p(f"v_xor_b32 v{vt}, s{S_TAG}, v{tagregs[0]}")
        for r in tagregs[1:]:
            p(f"v_bitop3_b32 v{vt}, v{r}, s{S_TAG}, v{vt} bitop3:0xbe")
        p(f"v_cmp_ne_u32 vcc, 0, v{vt}\ns_add_u32 s{S_CNT}, s{S_CNT}, 1\ns_cbranch_vccz {l1}")
        p(f"s_cmp_gt_u32 s{S_CNT}, {POLL_MAX}\ns_cbranch_scc1 {l1}")
        p.alt_begin()
        if on_miss:
            l3 = self.lab("again")
            p(f"s_cmp_lg_u32 s{S_CNT}, 1\ns_cbranch_scc1 {l3}")
            p.alt_begin(); on_miss(); p.alt_end()
            p.label(l3)
        p(loads)
        p(f"s_waitcnt vmcnt(0)\ns_branch {l0}")
        p.alt_end()
        p.label(l1)

    def entry(self):
        p, c = self.p, self.c
        T = S_T
        p(f"s_load_dwordx16 s[4:19], s[0:1], 0\ns_load_dwordx16 s[20:35], s[0:1], 64")
        p(f"s_cmp_ge_u32 s2, 256\ns_cbranch_scc1 L_exit")
        if c.stamps: p(f"{'s_memtime' if c.cyc else 's_memrealtime'} {s(S_T0,2)}")
        if c.probe and c.probe[1] == "start": p("s_memrealtime s[100:101]")
        if c.probe2: p("s_memrealtime s[98:99]\ns_memrealtime s[100:101]")
        if "k" in c.diag: p("s_waitcnt lgkmcnt(0)\ns_memtime s[100:101]")
        p(f"v_lshrrev_b32 v1, 6, v0\nv_and_b32 v0, 63, v0\nv_readfirstlane_b32 s{S_WAVE}, v1")
        p(f"s_and_b32 s{S_XCD}, s2, 7\ns_lshr_b32 s{S_J}, s2, 3")
        p(f"s_getpc_b64 {s(R_PC,2)}")
        p.label("L_pc")
        p(f"s_mov_b32 s{R_PC+2}, L_end-L_pc\ns_mov_b32 s{R_PC+3}, 0x20000")
        if c.prefetch_code and not c.pf_h:
            p(f"s_lshl3_add_u32 s{T}, s{S_J}, s{S_WAVE}\ns_lshl_b32 s{T}, s{T}, 7")
            p(f"buffer_load_dword v255, off, {s(R_PC,4)}, s{T}")
        p(f"s_mov_b32 s{R_WS+2}, {WS_SIZE}\ns_mov_b32 s{R_WS+3}, 0x20000")
        p(f"s_cmp_ge_u32 s{S_J}, 28\ns_cbranch_scc1 L_helper")
        p(f"s_mul_i32 s{S_JR}, s{S_J}, 37\ns_lshr_b32 s{S_JR}, s{S_JR}, 8\ns_mul_i32 s{T}, s{S_JR}, 7\ns_sub_u32 s{S_C2}, s{S_J}, s{T}")
        if c.mapP: p(f"s_lshr_b32 s{S_RT}, s{S_JR}, 1\ns_lshl1_add_u32 s{S_RT}, s{S_XCD}, s{S_RT}\ns_and_b32 s{S_XF}, s{S_JR}, 1")
        else: p(f"s_lshr_b32 s{S_RT}, s{S_XCD}, 1\ns_lshl2_add_u32 s{S_RT}, s{S_RT}, s{S_JR}\ns_and_b32 s{S_XF}, s{S_XCD}, 1")
        p(f"s_cmp_lt_u32 s{S_WAVE}, 4\ns_cbranch_scc1 L_common")
        p.alt_begin()
        if c.prio_b: p(f"s_setprio {c.prio_b}")
        p(f"s_sub_u32 s{B_BW}, s{S_WAVE}, 4\ns_mul_i32 s{S_CP}, s{S_XCD}, 28\ns_add_u32 s{S_CP}, s{S_CP}, s{S_J}\ns_lshl_b32 s{T}, s{S_CP}, 2")
        p(f"s_add_u32 s{B_STW}, s{T}, s{B_BW}\ns_lshl_b32 s{B_STW}, s{B_STW}, 8\nv_lshl_add_u32 v50, v0, 2, s{B_STW}")
        p(f"s_load_dword s{B_LDT}, {s(P_LDT,2)}, s{T}")
        for i, ptr in enumerate((P_ARE, P_AIM, P_BRE, P_BIM, P_CRE, P_CIM)):
            p(f"global_load_dword v{B_VP+i}, v50, {s(ptr,2)}")
        p(f"s_load_dword s{B_DSK}, {s(P_DSK,2)}, s{T}")
        if c.prio_b != c.prio_b2: p(f"s_setprio {c.prio_b2}")
        p.alt_end()
        p.label("L_common")
        VT, S_X, S_Y = 24, 78, 79
        p(f"s_and_b32 s{S_WT}, s{S_WAVE}, 1\ns_bfe_u32 s{S_WF}, s{S_WAVE}, 0x10001\ns_mul_i32 s{S_CT}, s{S_XF}, 7\ns_add_u32 s{S_CT}, s{S_CT}, s{S_C2}")
        p(f"s_lshl1_add_u32 s{T}, s{S_RT}, s{S_WF}\ns_mul_i32 s{T}, s{T}, {64*896}")
        p(f"s_mul_i32 s{T+1}, s{S_WF}, {32*14}\ns_add_u32 s{T+1}, s{T+1}, s{S_CT}\ns_lshl_b32 s{T+1}, s{T+1}, 8")
        p(f"s_lshl1_add_u32 s{S_LDB}, s{S_WT}, s{S_WF}\ns_lshl_b32 s{S_LDB}, s{S_LDB}, 13")
        p(f"s_add_u32 s{S_X}, s{S_WT}, 3\nv_lshrrev_b32 v{VT}, s{S_X}, v0\ns_lshl_b32 s{S_X}, s{S_WT}, 1\nv_lshrrev_b32 v{VT+1}, 4, v0\nv_lshlrev_b32 v{VT+1}, s{S_X}, v{VT+1}")
        p(f"s_lshl_b32 s{S_Y}, 896, s{S_X}\nv_xor_b32 v{VT+1}, v0, v{VT+1}\nv_mul_u32_u24 v{VT}, s{S_Y}, v{VT}")
        p(f"s_cmp_eq_u32 s{S_WT}, 0")
        p(f"s_cselect_b32 s{S_SOFF}, s{T}, s{T+1}\ns_cselect_b32 s{S_CSTR}, 1, {64*28}\ns_cselect_b32 s{S_X}, 7, 15\ns_cselect_b32 s{S_Y}, 64, 0\ns_cselect_b32 s{R_LD+2}, 8, 7")
        p(f"v_and_b32 v{VT+1}, s{S_X}, v{VT+1}\nv_lshl_add_u32 v{VD}, v{VT+1}, 4, v{VT}\nv_xor_b32 v{VD+1}, s{S_Y}, v{VD}")
        p(f"s_lshl_b32 s{S_CSTR}, s{S_CSTR}, 7")
        if c.rot1: p(f"s_mul_i32 s{T}, s{S_C2}, s{S_CSTR}\ns_add_u32 s{S_SOFF}, s{S_SOFF}, s{T}\ns_mul_i32 s{S_CW}, s{S_CSTR}, 7")
        p(f"s_mul_i32 s{R_LD+2}, s{R_LD+2}, {256*896}\ns_mov_b32 s{R_LD+3}, 0x20000\ns_lshl_b32 s{S_Y}, 7168, s{S_WT}")
        p(f"s_sub_u32 s{T}, s{S_Y}, 1024\nv_add_u32 v{VD+1}, s{T}, v{VD+1}\ns_lshl_b32 s{T}, s{T}, 1")
        p(f"v_add_u32 v{VD+2}, s{T}, v{VD}\nv_add_u32 v{VD+3}, s{T}, v{VD+1}\ns_lshl_b32 s{T}, s{S_Y}, 2")
        for i in range(4): p(f"v_add_u32 v{VD+4+i}, s{T}, v{VD+i}")
        p(f"s_cmp_ge_u32 s{S_WAVE}, 4\ns_cbranch_scc1 L_roleB")
    def loader_base(self):
        self.p(f"s_cmp_eq_u32 s{S_WT}, 0\ns_cselect_b32 s{R_LD}, s{P_U}, s{P_W1}\ns_cselect_b32 s{R_LD+1}, s{P_U+1}, s{P_W1+1}")
    def dma_chunk(self, n, T, ctok):
        r = []
        for i in range(8):
            q = Prog()
            if i % 4 == 0: q(f"s_add_u32 m0, s{S_LDB}, {(3, 4, 1, 2)[n % 4]*SLOT + (i//4)*4096}")
            ctok[n] = q.tok(f"buffer_load_dwordx4 v{VD+i}, {s(R_LD,4)}, s{S_SOFF} offen offset:{(i%4)*1024} lds")
            if i == 7 and n < 6:
                q(f"s_add_u32 s{S_SOFF}, s{S_SOFF}, s{S_CSTR}")
                if self.c.rot1: q(f"s_cmp_eq_u32 s{S_C2}, {6-n}\ns_cselect_b32 s{T}, s{S_CW}, 0\ns_sub_u32 s{S_SOFF}, s{S_SOFF}, s{T}")
            r.append(q.items)
        return r
    def role_start(self, b=False):
        p = self.p
        p.reset()
        if self.c.prefetch_code and not self.c.pf_h: p.items.append(Marker("pending", ("vmem", {"v255"})))
        if b:
            p.items.append(Marker("pending", ("smem", {f"s{B_LDT}", f"s{B_DSK}"})))
            for i in range(6): p.items.append(Marker("pending", ("vmem", {f"v{B_VP+i}"})))
        else:
            p.items.append(Marker("pending", ("smem", {f"s{i}" for i in range(4, 36)})))
    def load_epoch(self):
        self.p(f"s_load_dword s{S_TAG}, {s(P_WS,2)}, {WS_EPOCH}\ns_mov_b32 s{R_WS}, s{P_WS}\ns_mov_b32 s{R_WS+1}, s{P_WS+1}")
    def make_tag(self):
        self.p(f"s_add_u32 s{S_TAG}, s{S_TAG}, {TAGC}\ns_mov_b32 s{S_TAG2}, s{S_TAG}")
    def flag_load(self, which, soff, n, va, q=None):
        if which in self.c.spoll:
            w = 8 if n <= 8 else 16
            txt = f"s_buffer_load_dwordx{w} {s(S_SP,w)}, {s(R_WS,4)}, s{soff} glc"
        else:
            txt = f"buffer_load_dword v{va+1}, v{va}, {s(R_WS,4)}, s{soff} offen sc1"
        (q or self.p)(txt)
        return (which, txt, n, va)
    def flag_check(self, fl, vt, sleep=0, on_miss=None):
        which, txt, n, va = fl
        p = self.p
        if sleep: txt = f"s_sleep {sleep}\n" + txt
        if which not in self.c.spoll:
            return self.tagged_check(txt, [va + 1], vt, on_miss)
        l0, l1, l2 = self.lab("chk"), self.lab("retry"), self.lab("chkd")
        p(f"s_mov_b32 s{S_CNT}, 0")
        p.label(l0)
        p("s_waitcnt lgkmcnt(0)")
        for i in range(0, n - 2, 2): p(f"s_cmp_eq_u64 {s(S_SP+i,2)}, {s(S_TAG,2)}\ns_cbranch_scc0 {l1}")
        if n & 1: p(f"s_cmp_eq_u32 s{S_SP+n-1}, s{S_TAG}\ns_cbranch_scc1 {l2}")
        else: p(f"s_cmp_eq_u64 {s(S_SP+n-2,2)}, {s(S_TAG,2)}\ns_cbranch_scc1 {l2}")
        p.alt_begin()
        p.label(l1)
        if on_miss:
            l3 = self.lab("again")
            p(f"s_cmp_lg_u32 s{S_CNT}, 0\ns_cbranch_scc1 {l3}")
            p.alt_begin(); on_miss(); p.alt_end()
            p.label(l3)
        p(txt)
        p(f"s_add_u32 s{S_CNT}, s{S_CNT}, 1\ns_cmp_le_u32 s{S_CNT}, {POLL_MAX}\ns_cbranch_scc1 {l0}\ns_waitcnt lgkmcnt(0)")
        p.alt_end()
        p.label(l2)

    def fin_addr(self, ps, F, part):
        p, VT, T = self.p, F["VT"], S_T
        if part == 0:
            p(f"v_bfe_u32 v{VT+1}, v0, 2, 1\nv_lshrrev_b32 v{VT+2}, 3, v0\nv_and_b32 v{VT+3}, 3, v0\nv_lshl_add_u32 v{VT+4}, v{VT+1}, 4, v{VT+2}")
            p(f"v_mul_u32_u24 v{F['XO']}, 896, v{VT+4}\nv_lshl_add_u32 v{F['XO']}, v{VT+3}, 4, v{F['XO']}\nv_lshlrev_b32 v{F['STA']}, 3, v{VT+4}")
            a = F["PA"]
            p(f"v_xor_b32 v{a}, s{S_WF}, v{VT+1}\nv_lshlrev_b32 v{a}, 3, v{a}\nv_lshl_add_u32 v{a}, v{VT+3}, 1, v{a}\nv_xor_b32 v{a}, v{a}, v{VT+2}")
            p(f"s_lshl3_add_u32 s{T}, s{S_WT}, {(L_RING+ps*SLOT)//256}\nv_add_u32 v{VT+4}, s{T}, v{VT+4}\nv_lshlrev_b32 v{VT+4}, 8, v{VT+4}\nv_lshl_add_u32 v{a}, v{a}, 4, v{VT+4}\nv_xor_b32 v{a+1}, 16, v{a}")
        else:
            p(f"s_mul_i32 s{T}, s{F['w']}, 2304\ns_add_u32 s{T}, s{T}, {L_STR+1152*ps}\nv_mul_u32_u24 v{F['SA']}, 288, v{VT+3}\nv_and_b32 v{VT+4}, 60, v0\nv_add3_u32 v{F['SA']}, v{F['SA']}, v{VT+4}, s{T}")
            x, t = F["sXO"], F["sST"]
            p(f"s_lshl3_add_u32 s{x}, s{S_R2}, s{S_WT}\ns_add_u32 s{x}, s{x}, {4*ps}\ns_lshl_b32 s{t}, s{x}, 6\ns_add_u32 s{t}, s{t}, {WS_STAT}\ns_mul_i32 s{x}, s{x}, {8*896}\ns_lshl1_add_u32 s{T}, s{S_C2}, s{S_WF}\ns_lshl_b32 s{T}, s{T}, 6\ns_add_u32 s{x}, s{x}, s{T}")
    def fin_loads(self, F):
        self.p(f"buffer_load_dword v{F['RG']}, v{F['STA']}, {s(R_WS,4)}, s{F['sST']} offen sc1\nbuffer_load_dwordx4 {v(F['XI'],4)}, v{F['XO']}, {s(R_LD,4)}, s{F['sXO']} offen")
    def fin_prep(self, F):
        q = Prog(); r, c_, x = F["RG"], F["RC"], F["XF"]
        q(f"v_and_b32 v{r}, 0xffff0000, v{r}\nv_rcp_f32 v{r}, v{r}")
        for j in range(4): q(f"v_lshlrev_b32 v{x+2*j}, 16, v{F['XI']+j}\nv_and_b32 v{x+2*j+1}, 0xffff0000, v{F['XI']+j}")
        q(f"v_mul_f32 v{c_}, {LOG2E | 0x80000000}, v{r}\nv_mul_f32 v{c_+1}, {LOG2E | 0x80000000}, v{r}")
        return q.items
    def fin_sread(self, F):
        for i in range(4): self.p(f"ds_read_b32 v{F['SV']+i}, v{F['SA']} offset:{64*i}")
    def fin_sprep(self, F):
        q = Prog(); f = F["SF"]
        for i in range(4): q(f"v_lshlrev_b32 v{f+2*i}, 16, v{F['SV']+i}\nv_and_b32 v{f+2*i+1}, 0xffff0000, v{F['SV']+i}")
        for i in range(8): q(f"v_mul_f32 v{f+i}, v{f+i}, v{F['RG']}")
        return q.items
    def fin_out(self, F, fill=()):
        p, b = self.p, F["PV"]
        for w in range(4):
            for e in range(2): p(f"ds_read_b128 {v(b+8*w+4*e,4)}, v{F['PA']+e} offset:{8192*w}")
        p.extend(list(fill))
        for i in range(0, 8, 2): p(f"v_pk_add_f32 {v(b+i,2)}, {v(b+i,2)}, {v(b+8+i,2)}")
        for i in range(0, 8, 2): p(f"v_pk_add_f32 {v(b+16+i,2)}, {v(b+16+i,2)}, {v(b+24+i,2)}")
        for i in range(0, 8, 2): p(f"v_pk_add_f32 {v(b+i,2)}, {v(b+i,2)}, {v(b+16+i,2)}")
        for i in range(0, 8, 2): p(f"v_pk_mul_f32 {v(b+8+i,2)}, {v(b+i,2)}, {v(F['RC'],2)}")
        for i in range(8): p(f"v_exp_f32 v{b+8+i}, v{b+8+i}")
        for i in range(0, 8, 2): p(f"v_pk_mul_f32 {v(b+i,2)}, {v(b+i,2)}, {v(F['SF']+i,2)}")
        for i in range(0, 8, 2): p(f"v_pk_add_f32 {v(b+8+i,2)}, {v(b+8+i,2)}, 1.0 op_sel_hi:[1,0]")
        for i in range(8): p(f"v_rcp_f32 v{b+8+i}, v{b+8+i}")
        for i in range(0, 8, 2): p(f"v_pk_fma_f32 {v(b+i,2)}, {v(b+i,2)}, {v(b+8+i,2)}, {v(F['XF']+i,2)}")
        for i in range(4): p(f"v_cvt_pk_bf16_f32 v{b+16+i}, v{b+2*i}, v{b+2*i+1}")
        p(f"buffer_store_dwordx4 {v(b+16,4)}, v{F['XO']}, {s(F['OUT'],4)}, s{F['sXO']} offen {self.c.out_fl}")

    def role_a(self):
        p, c = self.p, self.c
        self.role_start(); self.stamp_begin("A")
        VXA, VWA, VW2A, VW2D, VL16, VFL, VC1, VT = 9, 13, 15, 19, 21, 22, 2, 24
        ACC, FR, W2R, AB = 32, 96, 96, 192
        S_ACTW, S_FAW, S_FAR, S_RING, S_ACTR, S_W2B, S_Z = range(70, 77)
        R_OUT = 64
        S_X = 78; S_Y = 79
        T = S_T
        if "K" in c.diag: p("s_memtime s[100:101]")
        self.loader_base()
        ctok = {}
        dq = []
        for n in range(c.a_chunks): dq += self.dma_chunk(n, T, ctok)
        self.stamp("dma0", sets=(1,))
        if "k" in c.diag.lower():
            self.stamp("karg", sets=(1,)); p("s_waitcnt lgkmcnt(0)\ns_mov_b32 s6, s100")
        if c.a_delay: p(f"s_waitcnt lgkmcnt(0)"); p("\n".join(["s_nop 15"] * c.a_delay))
        for it in dq[:c.nfirst]: p.extend(it)
        self.load_epoch()
        if c.hops:
            p(f"s_mov_b64 exec, 0\ns_cmp_eq_u32 s{S_WAVE}, 3\ns_cbranch_scc1 L_hop0")
        p("s_branch L_bodyA")
        role = self.role
        if c.h_near: self.head_h()
        self.role_b()
        self.role = role
        p.label("L_bodyA")
        p.reset()
        p.items.append(Marker("pending", ("smem", {f"s{S_TAG}", "s94", "s95"})))
        if c.prefetch_code and not c.pf_h: p.items.append(Marker("pending", ("vmem", {"v255"})))
        for i in range(c.nfirst): p.items.append(Marker("pending", ("vmem", set(), ctok[i // 8] if i % 8 == 7 else None)))
        if c.hops: p("s_mov_b64 exec, -1")
        p(f"v_and_b32 v{VT}, 31, v0\nv_lshrrev_b32 v{VT+1}, 5, v0\nv_bfe_u32 v{VT+2}, v0, 1, 3\nv_xor_b32 v{VT+1}, v{VT+1}, v{VT+2}\nv_lshlrev_b32 v{VT+1}, 4, v{VT+1}")
        p(f"v_lshl_add_u32 v{VT+1}, v{VT}, 7, v{VT+1}\ns_add_u32 s{S_X}, s{S_WT}, 12\ns_lshl_b32 s{S_X}, s{S_X}, 13\nv_add_u32 v{VXA}, s{S_X}, v{VT+1}")
        for k in range(1, 4): p(f"v_xor_b32 v{VXA+k}, {32*k}, v{VXA}")
        p(f"s_lshl_b32 s{S_RING}, s{S_WAVE}, 13\ns_add_u32 s{S_RING}, s{S_RING}, {L_RING}")
        p(f"v_bfe_u32 v{VT}, v0, 4, 1\nv_lshlrev_b32 v{VT}, 5, v{VT}\nv_and_b32 v{VT+1}, 3, v0\nv_lshl_add_u32 v{VT}, v{VT+1}, 3, v{VT}")
        p(f"v_bfe_u32 v{VT+1}, v0, 2, 2\nv_lshrrev_b32 v{VT+2}, 5, v0")
        p(f"v_lshl_add_u32 v{VT+3}, v{VT+2}, 3, v{VT+1}\nv_lshl_add_u32 v{VT+3}, v{VT+3}, 8, v{VT}")
        p(f"s_lshl1_add_u32 s{S_Y}, s{S_WF}, 0x600\nv_xor_b32 v{VT+4}, s{S_Y}, v{VT+1}\nv_lshl_add_u32 v{VWA}, v{VT+4}, 6, v{VT+3}")
        if c.qperm: p(f"s_lshl1_add_u32 s{S_Z}, s{S_RT}, s{S_WT}\ns_and_b32 s{S_Z}, s{S_Z}, 3\ns_lshl_b32 s{S_Y}, s{S_Z}, 5\nv_xor_b32 v{VWA}, s{S_Y}, v{VWA}\ns_lshl_b32 s{S_Z}, s{S_Z}, 4")
        else: p(f"s_mov_b32 s{S_Z}, 0")
        p(f"v_xor_b32 v{VWA+1}, 64, v{VWA}")
        p(f"v_lshl_add_u32 v{VT+3}, v{VT+2}, 2, v{VT+1}\nv_lshl_add_u32 v{VT+3}, v{VT+3}, 7, v{VT}")
        p(f"v_lshrrev_b32 v{VT+4}, 1, v{VT+1}\nv_lshl_add_u32 v{VT+3}, v{VT+4}, 6, v{VT+3}\nv_add_u32 v{VW2A}, s{S_RING}, v{VT+3}")
        srd(p, R_2, P_W2, 1792 * 896)
        VB1 = 30
        p(f"s_lshl1_add_u32 s{S_Y}, s{S_CT}, s{S_WF}\ns_lshl_b32 s{S_X}, s{S_Y}, 7\nv_xor_b32 v{VB1+1}, s{S_Z}, v0\nv_lshl_add_u32 v{VB1}, v{VB1+1}, 1, s{S_X}\nglobal_load_ushort v{VB1}, v{VB1}, {s(P_B1,2)}")
        self.stamp("setup", sets=(1,))
        for it in dq[c.nfirst:c.pre_dma]: p.extend(it)
        VB1 = 30
        q = p
        VGA = 26
        q(f"v_xor_b32 v{VW2A+1}, 64, v{VW2A}\nv_add_u32 v{VW2A+2}, 0x10000, v{VW2A}\nv_xor_b32 v{VW2A+3}, 64, v{VW2A+2}")
        if c.br0 >= 0: q(f"v_xor_b32 v{VFL}, 0x10000, v{VW2A}\nv_xor_b32 v{VFL+1}, 0x10000, v{VW2A+1}")
        late = Prog(); q = late
        q(f"s_lshl1_add_u32 s{T+1}, s{S_RT}, s{S_WT}\ns_lshl_b32 s{S_X}, s{T+1}, 9\ns_add_u32 s{S_X}, s{S_X}, {WS_STAT}\nv_lshl_add_u32 v{VGA}, v0, 3, s{S_X}")
        q(f"s_lshl1_add_u32 s{S_Y}, s{S_CT}, s{S_WF}\ns_lshl_b32 s{S_X}, s{S_Y}, 9\ns_add_u32 s{S_X}, s{S_X}, {WS_CS}\nv_lshl_add_u32 v{VGA+1}, v{VB1+1}, 3, s{S_X}")
        q(f"s_mul_i32 s{S_ACTW}, s{T+1}, 28\ns_add_u32 s{S_ACTW}, s{S_ACTW}, s{S_Y}\ns_lshl_b32 s{S_ACTW}, s{S_ACTW}, 13\ns_add_u32 s{S_ACTW}, s{S_ACTW}, {WS_ACT}")
        q(f"s_mul_i32 s{S_X}, s{S_Y}, 37\ns_lshr_b32 s{S_X}, s{S_X}, 8\ns_mul_i32 s{S_X}, s{S_X}, 25\ns_add_u32 s{S_X}, s{S_X}, s{S_Y}")
        q(f"s_lshl_b32 s{S_FAW}, s{T+1}, 9\ns_add_u32 s{S_FAW}, s{S_FAW}, s{S_X}\ns_lshl2_add_u32 s{S_FAW}, s{S_FAW}, {WS_FA}")
        q(f"s_lshl2_add_u32 s{S_R2}, s{S_XCD}, s{S_JR}")
        q(f"s_lshl4_add_u32 s{S_FAR}, s{S_R2}, s{S_WAVE}\ns_lshl_b32 s{S_FAR}, s{S_FAR}, 7\ns_add_u32 s{S_FAR}, s{S_FAR}, {WS_FA}")
        q(f"v_lshlrev_b32 v{VL16}, 4, v0")
        if "A" not in c.spoll: q(f"v_min_u32 v{VFL}, 6, v0\nv_lshlrev_b32 v{VFL}, 2, v{VFL}")
        q(f"v_lshrrev_b32 v{VT+4}, 3, v0\nv_mul_u32_u24 v{VT+4}, 896, v{VT+4}\nv_bfe_u32 v{VT+1}, v0, 4, 1\nv_lshlrev_b32 v{VT+1}, 2, v{VT+1}\nv_xor_b32 v{VT+1}, v0, v{VT+1}\nv_and_b32 v{VT+1}, 7, v{VT+1}")
        q(f"v_lshl_add_u32 v{VW2D}, v{VT+1}, 4, v{VT+4}\nv_add_u32 v{VW2D+1}, {7168-1024}, v{VW2D}")
        q(f"s_lshl2_add_u32 s{S_ACTR}, s{S_R2}, s{S_WAVE}\ns_mul_i32 s{S_ACTR}, s{S_ACTR}, {28*2048}\ns_add_u32 s{S_ACTR}, s{S_ACTR}, {WS_ACT}")
        q(f"s_mul_i32 s{S_W2B}, s{S_WAVE}, {448*7}\ns_add_u32 s{S_W2B}, s{S_W2B}, s{S_C2}\ns_lshl_b32 s{S_W2B}, s{S_W2B}, 7")
        q(f"s_lshl2_add_u32 s{S_X}, s{S_WAVE}, {L_CNT}\nv_mov_b32 v{VT+5}, s{S_X}")
        lateg = [[it] for it in late.items]
        S_AO = list(range(88, 95)); S_WO = [34, 35, 48, 49, 50, 51, 77]; S_ROT = 95
        if c.rot2:
            q = Prog()
            if c.rot2 == 1: q(f"s_mov_b32 s{S_ROT}, s{S_C2}")
            else: q(f"s_lshl1_add_u32 s{S_ROT}, s{S_JR}, s{S_C2}\ns_cmp_ge_u32 s{S_ROT}, 7\ns_cselect_b32 s{T+1}, 7, 0\ns_sub_u32 s{S_ROT}, s{S_ROT}, s{T+1}")
            lateg.append(q.items)
            for i in range(7):
                q = Prog()
                q(f"s_cmp_ge_u32 s{S_ROT}, {7-i}\ns_cselect_b32 s{T+1}, {i-7}, {i}\ns_add_u32 s{T+1}, s{T+1}, s{S_ROT}")
                lateg.append(q.items); q = Prog()
                q(f"s_lshl_b32 s{S_AO[i]}, s{T+1}, 13\ns_add_u32 s{S_AO[i]}, s{S_AO[i]}, s{S_ACTR}\ns_mul_i32 s{S_WO[i]}, s{T+1}, {64*896}\ns_add_u32 s{S_WO[i]}, s{S_WO[i]}, s{S_W2B}")
                lateg += [[it] for it in q.items]
        S_Q = [S_ROT, S_W2B, S_ACTR, S_CT]
        if c.qperm:
            assert c.rot2
            q = Prog()
            for i in range(4): q(f"s_xor_b32 s{S_Q[i]}, s{S_JR}, {i}\ns_mul_i32 s{S_Q[i]}, s{S_Q[i]}, {16*896}")
            lateg += [[it] for it in q.items]
        self.make_tag()
        p(f"v_mov_b32 v{VT}, s{S_TAG}")
        GR = AB
        gloads = f"buffer_load_dwordx2 {v(GR,2)}, v{VGA}, {s(R_WS,4)}, 0 offen sc1\nbuffer_load_dwordx2 {v(GR+2,2)}, v{VGA+1}, {s(R_WS,4)}, 0 offen sc1"
        piece = [0, 1, 2, 0, 1, 2, 0]; pred = {3: 0, 4: 1, 5: 2, 6: 3}
        if c.br0 >= 0:
            piece = [-2, 0, 1, 2, 0, 1, 2]; pred = {4: 1, 5: 2, 6: 3}
            assert c.r_early == 4 and "A" in c.spoll
        wtok, rtok = {}, {}
        w2reg = lambda n: W2R + 8 * ((6, 7, 8, 9, 10, 11, 2, 3, 4, 5, 0, 1)[n] if n < 12 else 6 + (n - 12) % 5)
        areg = lambda n: AB + 8 * (n % 8) if n < 22 else W2R + 8 * (n - 22)
        xtra = lambda n: 24 <= n < 24 + c.nx
        def dma_w2(n):
            q = Prog(); gi = n >> 2
            if gi in pred and not xtra(n): q.wait(rtok[4 * pred[gi] + (n & 3)])
            q((f"s_add_u32 m0, s{T+1}, {(n&3)*2048}\n" if xtra(n) else f"s_add_u32 m0, s{S_RING}, {piece[gi]*SLOT + (n&3)*2048}\n") + (f"s_add_u32 s{S_Z}, s{S_WO[n%7]}, s{S_Q[n//7]}" if c.qperm else f"s_add_u32 s{S_Z}, s{S_WO[n%7]}, {16*(n//7)*896}" if c.rot2 else f"s_add_u32 s{S_Z}, s{S_W2B}, {(64*(n%7) + 16*(n//7))*896}"))
            if "5" in c.diag and n >= 24: wtok[n] = wtok[23]; return [[], []]
            q(f"buffer_load_dwordx4 v{VW2D}, {s(R_2,4)}, s{S_Z} offen lds")
            q2 = Prog()
            wtok[n] = q2.tok(f"buffer_load_dwordx4 v{VW2D+1}, {s(R_2,4)}, s{S_Z} offen offset:1024 lds")
            return [q.items, q2.items]
        def read_w2(n):
            q = Prog(); pc = -2 if xtra(n) else piece[n >> 2]
            if n == max(c.r_early, c.r2):
                keep, self.p = self.p, q
                self.lds_wait(VT + 5, VT + 1, 4)
                self.p = keep
            if n >= c.bw2[-1]: q.wait(wtok[n])
            for di in range(2):
                for h in range(2):
                    rtok[n] = q.tok(f"ds_read_b64_tr_b16 {v(w2reg(n)+4*di+2*h,2)}, v{(VFL if pc < 0 else VW2A+2*(pc>>1))+di} offset:{(pc&1)*SLOT + (n&3)*2048 + h*1024}")
            return [q.items]
        nw = [c.bw2[-1], 0]
        def w2_ops(k, maxread):
            r = []
            for _ in range(k):
                n = nw[0]
                if n >= 24: break
                for m in (n, n + 1):
                    if (m >> 2) in pred and m < 24:
                        need = 4 * pred[m >> 2] + (m & 3)
                        assert m > n or need < maxread
                        while nw[1] <= need and nw[1] < maxread: r += read_w2(nw[1]); nw[1] += 1
                r += dma_w2(n); nw[0] += 1
            return r
        def reads1(gs):
            n, k = gs >> 2, gs & 3
            base = FR + 16 * (gs % 3); so = (n & 1) * SLOT
            r = []
            for fi in range(2):
                for h in range(2):
                    r.append(I(f"ds_read_b64_tr_b16 {v(base+4*fi+2*h,2)}, v{VWA+fi} offset:{so+16384+k*4096+h*1024}"))
                r.append(I(f"ds_read_b128 {v(base+8+4*fi,4)}, v{VXA+k} offset:{so+fi*4096}"))
            return r
        def mfma1(gs):
            base = FR + 16 * (gs % 3)
            r = []
            for fi, ti in ((0, 0), (0, 1), (1, 0), (1, 1)):
                a = v(ACC + 32 * fi + 16 * ti, 16)
                r.append(I(f"v_mfma_f32_32x32x16_bf16 {a}, {v(base+4*fi,4)}, {v(base+8+4*ti,4)}, {'0' if gs == 0 else a}"))
            return r
        self.stamp("dmapre", sets=(1,))
        if c.hops:
            p("s_mov_b64 exec, 0")
            for w in range(3): p(f"s_cmp_eq_u32 s{S_WAVE}, {w}\ns_cbranch_scc1 L_hop{w+1}")
            p("s_branch L_hop4")
            p.label("L_hopped")
            p("s_mov_b64 exec, -1")
        nd = c.pre_dma
        nl = (len(lateg) + 3) // 4
        for n in range(7):
            if n < c.a_chunks: p.wait(ctok[n])
            if n == 0: self.stamp("c0", sets=(1,))
            p("s_waitcnt lgkmcnt(0)\ns_barrier")
            self.stamp(f"bar{n}", sets=(0, 1) if n in (0, 3, 6) else (1,))
            if n in (2, 4, 6):
                for r in list(range(VXA, VXA + 4)) + [VWA, VWA + 1]: p(f"v_xor_b32 v{r}, 0x10000, v{r}")
            upto = min(len(dq), 8 * (n + 4), max(nd + c.dma_per[n], 8 * (n + 2)))
            fill = dq[nd:upto]; nd = upto
            if n == c.gran_at:
                fill = fill + [[I(x)] for x in gloads.split("\n")]
            if n == c.r_at:
                while nw[1] < c.r_early:
                    fill = fill + [[it] for it in read_w2(nw[1])[0]]; nw[1] += 1
            last = []
            if n == 6:
                while nw[1] < c.r2:
                    its = read_w2(nw[1])[0]
                    if nw[1] < 6: fill = fill + [[it] for it in its]
                    else: last += its
                    nw[1] += 1
            g0 = 4 * n
            r0, r1, r2, r3 = (reads1(g0 + k) for k in range(4))
            body = []
            if n == 0: body.append(r0 + r1)
            else:
                mm = mfma1(g0 - 1)
                body += [r0, [mm[0]] + r1[:3], [mm[1]] + r1[3:], [mm[2]], [mm[3]]]
            for k, rd in ((0, r2), (1, r3), (2, None)):
                mm = mfma1(g0 + k)
                body += [[mm[0]] + (rd[:3] if rd else []), [mm[1]] + (rd[3:] if rd else []), [mm[2]], [mm[3]]]
            if n == 6:
                body[-5] = body[-5] + last[:4]; body[-4] = body[-4] + last[4:]
                body[c.b7_at] = body[c.b7_at] + [I(f"s_waitcnt lgkmcnt({len(last) if c.bw2[-1] <= 18 else 0})"), I("s_barrier")]
            merged = []
            j = 0
            for i, it in enumerate(body):
                grp = list(it)
                nb_ = len(body) - (5 if n == 6 else 0)
                while j < min(len(fill), (i + 1) * len(fill) // nb_): grp += fill[j]; j += 1
                merged.append(grp)
            lt = lateg[nl * n: nl * (n + 1)] if n < 4 else []
            p.extend(interleave(merged, lt))
        mm = mfma1(27)
        p.extend(mm[:1])
        self.tagged_check(gloads, [GR + 1, GR + 3], VT + 1)
        self.stamp("granules", sets=(0, 1, 3))
        FA_, FB_ = AB + 8, AB + 12
        q = Prog()
        q(f"s_mov_b32 s{S_X}, 0x01000100\nv_perm_b32 v{FB_}, v{GR}, v{GR}, s{S_X}\nv_lshrrev_b32 v{FB_+1}, 16, v{GR}\nv_xor_b32 v{FB_}, 0x80008000, v{FB_}")
        q(f"v_cvt_pk_bf16_f32 v{VT+1}, v{GR+2}, v{GR+2}\nv_mov_b32 v{FB_+2}, 0\nv_and_b32 v{VT+1}, 0xffff0000, v{VT+1}\nv_mov_b32 v{FB_+3}, 0\nv_sub_f32 v{VT+1}, v{GR+2}, v{VT+1}")
        q(f"v_mov_b32 v{FA_+1}, v{VB1}\nv_cvt_pk_bf16_f32 v{FA_}, v{GR+2}, v{VT+1}\nv_mov_b32 v{FA_+2}, 0\nv_mov_b32 v{FA_+3}, 0\nv_and_b32 v{VT+1}, 0xffff0000, v{GR}")
        q(f"v_permlane32_swap_b32 v{FB_}, v{FB_+2}\nv_permlane32_swap_b32 v{FB_+1}, v{FB_+3}\nv_permlane32_swap_b32 v{FA_}, v{FA_+2}\nv_permlane32_swap_b32 v{FA_+1}, v{FA_+3}")
        q(f"v_rcp_f32 v{VT+1}, v{VT+1}")
        p.extend(interleave(mm[1:], q.items))
        for fi, ti in ((0, 0), (0, 1), (1, 0), (1, 1)):
            a = v(ACC + 32 * fi + 16 * ti, 16)
            p(f"v_mfma_f32_32x32x8_bf16 {a}, {v(FA_+2*fi,2)}, {v(FB_+2*ti,2)}, {a}")
            if (fi, ti) == (0, 0): p(f"v_mul_f32 v{VC1}, {LOG2E}, v{VT+1}\nv_mul_f32 v{VC1+2}, {LOG2E}, v{VT+1}")
            if (fi, ti) == (0, 1): p(f"v_permlane32_swap_b32 v{VC1}, v{VC1+2}")
            if (fi, ti) == (1, 0) and c.mish_pk: p(f"v_mov_b32 v{VC1+1}, v{VC1}\nv_mov_b32 v{VC1+3}, v{VC1+2}")
        MT, MO = AB + 16, AB + 48
        def mish_group(a, ti, o, tset):
            t = MT + 16 * tset; u = t + 8
            r = []
            if c.mish_pk:
                for i in range(0, 8, 2): r.append(f"v_pk_mul_f32 {v(t+i,2)}, {v(a+i,2)}, {v(VC1+2*ti,2)}")
                for i in range(8): r.append(f"v_exp_f32 v{t+i}, v{t+i}")
                for i in range(0, 8, 2): r.append(f"v_pk_fma_f32 {v(u+i,2)}, {v(t+i,2)}, 0.5, 1.0 op_sel_hi:[1,0,0]")
                for i in range(0, 8, 2): r.append(f"v_pk_fma_f32 {v(u+i,2)}, {v(t+i,2)}, {v(u+i,2)}, 1.0 op_sel_hi:[1,1,0]")
                for i in range(8): r.append(f"v_rcp_f32 v{u+i}, v{u+i}")
                for i in range(0, 8, 2): r.append(f"v_pk_fma_f32 {v(u+i,2)}, {v(a+i,2)}, {v(u+i,2)}, {v(a+i,2)} neg_lo:[1,0,0] neg_hi:[1,0,0]")
            else:
                for i in range(8): r.append(f"v_mul_f32 v{t+i}, v{a+i}, v{VC1+2*ti}")
                for i in range(8): r.append(f"v_exp_f32 v{t+i}, v{t+i}")
                for i in range(8): r.append(f"v_fma_f32 v{u+i}, v{t+i}, 0.5, 1.0")
                for i in range(8): r.append(f"v_fma_f32 v{u+i}, v{t+i}, v{u+i}, 1.0")
                for i in range(8): r.append(f"v_rcp_f32 v{u+i}, v{u+i}")
                for i in range(8): r.append(f"v_fma_f32 v{u+i}, -v{a+i}, v{u+i}, v{a+i}")
            if "1" in c.diag: r = r[:len(r) // 2]; u = a
            for i in range(4): r.append(f"v_cvt_pk_bf16_f32 v{o+i}, v{u+2*i}, v{u+2*i+1}")
            return [I(x) for x in r]
        stok = {}
        def own_flag(st, q):
            if "A" in c.sflag:
                q(f"s_add_u32 s{T}, s{S_FAW}, {512*st}"); q.wait(stok[st]); q(f"s_atomic_swap s{S_TAG}, {s(R_WS,2)}, s{T}")
                return
            q.wait(stok[st])
            q(f"s_mov_b64 exec, 1\nbuffer_store_dword v{VT}, off, {s(R_WS,4)}, s{S_FAW} offset:{512*st} {c.fa_st}\ns_mov_b64 exec, -1")
        body = []
        gi = 0
        for st in range(4):
            for ti in range(2):
                o = MO + 4 * (gi % 4)
                body += mish_group(ACC + 32 * (st >> 1) + 16 * ti + 8 * (st & 1), ti, o, gi & 1)
                q = Prog()
                stok[st] = q.tok(f"buffer_store_dwordx4 {v(o,4)}, v{VL16}, {s(R_WS,4)}, s{S_ACTW} offen offset:{(st&1)*2048+ti*1024} {c.act_st}")
                if gi == 3: q(f"s_add_u32 s{S_ACTW}, s{S_ACTW}, 4096")
                if ti == 1: self.stamp(f"s{st}", q, sets=(3,))
                if ti == 1 and st - c.flag_lag in c.fstages: own_flag(st - c.flag_lag, q); self.stamp(f"f{st-c.flag_lag}", q, sets=(3,))
                body.append(q.items)
                gi += 1
        k0 = int(len(body) * c.mish_skip)
        p.extend(interleave(body[:k0], [])); p.extend(interleave(body[k0:], w2_ops(c.w2_mish, 12) + [[]]))
        self.stamp("mish", sets=(0, 4))
        rest = [st for st in c.fstages if st >= 4 - c.flag_lag]
        def flags_rest():
            for st in rest: own_flag(st, p)
        if c.prio_a1: p(f"s_setprio {c.prio_a1}")
        p(f"s_load_dwordx2 {s(R_LD,2)}, s[0:1], 0\ns_load_dwordx2 {s(R_OUT,2)}, s[0:1], 104\ns_mov_b32 s{R_LD+2}, {2048*896}\ns_mov_b32 s{R_OUT+2}, {2048*896}\ns_mov_b32 s{R_OUT+3}, 0x20000")
        m0_ = 28 - (c.tail_m if c.tail_ld else 0)
        aord = [(n, ti) for n in range(m0_) for ti in range(2)] + [(n, ti) for ti in range(2) for n in range(m0_, 28)]
        alast = [None]
        def load_act(k):
            for n, ti in aord[2 * k: 2 * k + 2]:
                if "a" in c.diag and n >= 7: continue
                assert n // 7 <= seen[0]
                if alast[0] != n: p(f"s_add_u32 s{S_Y}, s{S_AO[n%7]}, {(n//7)*2048}" if c.rot2 else f"s_add_u32 s{S_Y}, s{S_ACTR}, {(4*(n%7) + n//7)*2048}")
                alast[0] = n
                p(f"buffer_load_dwordx4 {v(areg(n)+4*ti,4)}, v{VL16}, {s(R_WS,4)}, s{S_Y} offen offset:{ti*1024} {c.act_ld}")
        seen = [-1, 0]
        def next_flags():
            st = min(x for x in (c.cstages or c.fstages) if x > seen[0])
            if st != seen[1]: p(f"s_add_u32 s{S_FAR}, s{S_FAR}, {512*(st-seen[1])}"); seen[1] = st
            return self.flag_load("A", S_FAR, 7, VFL)
        def check_flags(f, **kw):
            self.flag_check(f, VT + 1, **kw); seen[0] = seen[1]
            self.stamp(f"act{seen[0]}", sets=(0, 2, 3))
        def reads_upto(m):
            while nw[1] < min(m, 28): p.extend(read_w2(nw[1])[0]); nw[1] += 1
        def dmas_upto(m):
            while nw[0] < min(m, 28):
                if nw[0] == 24 and c.nx:
                    p(f"s_mul_i32 s{T+1}, s{S_WAVE}, {2048*c.nx}\ns_add_u32 s{T+1}, s{T+1}, {L_X}\ns_sub_u32 s{T}, s{T+1}, s{S_RING}\nv_add_u32 v{VFL}, s{T}, v{VW2A}\nv_add_u32 v{VFL+1}, s{T}, v{VW2A+1}")
                    p(f"v_and_b32 v14, 3, v0\nv_lshlrev_b32 v14, 2, v14\nv_add_u32 v14, {L_CNT}, v14")
                    self.lds_wait(14, VT + 1, 1)
                if (nw[0] >> 2) in pred and not xtra(nw[0]): assert nw[1] > nw[0] - 12
                for it in dma_w2(nw[0]): p.extend(it)
                nw[0] += 1
        D = c.adepth
        lead = c.flead
        fl = None
        na = 0
        for op in c.pre_loop.split():
            k = int(op[1:]) if len(op) > 1 else 0
            if op[0] == "R": reads_upto(k)
            elif op[0] == "D": dmas_upto(k)
            elif op[0] == "F":
                if rest: own_flag(rest.pop(0), p)
            elif op[0] == "W": p("s_waitcnt lgkmcnt(0)")
            elif op[0] == "L": fl = next_flags()
            elif op[0] == "C":
                assert not rest or seen[1] < rest[0]
                check_flags(fl, on_miss=flags_rest if rest else None); fl = None
            elif op[0] == "A":
                while na < k: load_act(na); na += 1
            elif op[0] == "V": p("s_waitcnt vmcnt(0)")
            elif op[0] == "T": self.lds_wait(VT + 5, VT + 1, 1)
            elif op[0] == "P": p(f"s_setprio {k}")
            if op[0] not in "L": self.stamp(op + "_" + str(len(self.stamp_names["A"])), sets=(4,))
        assert D <= na <= 8 and nw[1] >= c.rdepth and not rest
        M0 = nw[0]
        if c.prio_a1 != c.prio_a2: p(f"s_setprio {c.prio_a2}")
        self.stamp("flagA", sets=(0, 2, 3))
        assert D <= 7 and c.rdepth <= 4 and c.tail_m <= 5
        main = p
        VALL = 14
        F = dict(VT=VT, XO=9, PA=10, SA=12, STA=13, XI=184, RG=30, RC=116, XF=100, PV=AB, SV=176, SF=108, w=S_WAVE, sXO=S_ACTW, sST=S_X, OUT=R_OUT)
        f15 = lambda: self.fin_addr(1, F, 0)
        def f16():
            self.fin_addr(1, F, 1)
            if not c.nx: p(f"v_lshlrev_b32 v{VALL}, 2, v{VT+3}\nv_add_u32 v{VALL}, {L_CNT}, v{VALL}")
        def f17():
            p(f"v_and_b32 v{VT+3}, 31, v0\nv_lshrrev_b32 v{VT+1}, 5, v0\nv_and_b32 v{VT+2}, 7, v0\nv_xor_b32 v{VT+1}, v{VT+1}, v{VT+2}\nv_bfe_u32 v{VT+2}, v0, 4, 1\nv_lshl_or_b32 v{VT+1}, v{VT+2}, 3, v{VT+1}")
            p(f"v_lshlrev_b32 v{VT+1}, 4, v{VT+1}\nv_lshl_add_u32 v{VT+1}, v{VT+3}, 8, v{VT+1}\nv_add_u32 v{VD}, s{S_RING}, v{VT+1}")
            for k in range(1, 8): p(f"v_xor_b32 v{VD+k}, {32*k}, v{VD}")
        fin = dict(zip(c.fin_at, (f15, f16, f17, lambda: self.fin_loads(F))))
        tail = []
        for n in range(28):
            mm = []
            for di, ti in ((0, 0), (1, 0), (0, 1), (1, 1)):
                a = v(ACC + 32 * di + 16 * ti, 16)
                mm.append(I(f"v_mfma_f32_32x32x16_bf16 {a}, {v(w2reg(n)+4*di,4)}, {v(areg(n)+4*ti,4)}, {'0' if n == 0 else a}"))
            groups = []
            def grab(fn):
                nonlocal p
                p = self.p = Prog(); fn(); its = p.items; p = self.p = main
                return its
            def split(its):
                cur = []
                for it in its:
                    cur.append(it)
                    if isinstance(it, I) and it.kind in ("vmem", "ds", "valu"): groups.append(cur); cur = []
                if cur: groups.append(cur)
            split(grab(lambda: reads_upto(n + 1 + c.rdepth)))
            if na <= n + D < 28:
                if (n + D) // 7 > seen[0]:
                    groups.append(grab(lambda: check_flags(fl))); fl = None
                split(grab(lambda: load_act(n + D)))
            split(grab(lambda: dmas_upto(min(nw[1] + 12 - c.w2_gap, max(n + 1 + c.w2_lead, M0 + int((n + 1) * c.w2_rate))))))
            if fl is None and min(27, n + D + lead) // 7 > seen[0]:
                def nf():
                    nonlocal fl
                    if "A" in c.spoll: p("s_waitcnt lgkmcnt(0)")
                    fl = next_flags()
                groups.append(grab(nf))
            if n in fin: split(grab(fin[n]))
            if n >= 28 - c.tail_m:
                tail += mm[2:]; mm = mm[:2]
            if c.g2_mix:
                isv = lambda gr: any(isinstance(it, I) and it.kind == "vmem" for it in gr)
                ds = [gr for gr in groups if any(isinstance(it, I) and it.mn.startswith("ds_read_b64_tr") for it in gr)]
                rest = [gr for gr in groups if not any(gr is x for x in ds)]
                nm = len(mm)
                for k in range(nm):
                    p.extend([mm[k]])
                    for gr in ds[k * len(ds) // nm:(k + 1) * len(ds) // nm]: p.extend(gr)
                    for gr in rest[k * len(rest) // nm:(k + 1) * len(rest) // nm]: p.extend(gr)
            else:
                p.extend(mm)
                for gr in groups: p.extend(gr)
            if n in (0, 3, 6, 10, 13, 17, 20): self.stamp(f"n{n}", sets=(0, 2, 4) if n in (0, 13) else (2,))
        pw = lambda ti: [I(f"ds_write_b128 v{VD+4*di+g4}, {v(ACC+32*di+16*ti+4*g4,4)} offset:{ti*SLOT}") for di in range(2) for g4 in range(4)]
        if tail: p.extend(tail[:c.tail_k]); p.extend(interleave(tail[c.tail_k:], pw(0), ratio=c.tail_r))
        else: p.extend(pw(0))
        self.lds_post(VT + 5, VT, 5)
        self.stamp("gemm2", sets=(0, 2, 3))
        w1_ = pw(1); x_ = self.fin_prep(F); s_ = self.fin_sprep(F)
        p.extend(w1_[:4]); self.lds_peek(VT + 5, VT + 2, 7); p.extend(w1_[4:])
        self.lds_post(VT + 5, VT, 6)
        self.stamp("gate", sets=(0, 2, 3))
        self.lds_check(VT + 5, VT + 2, 7, fill=lambda: p.extend(x_[:6]))
        self.fin_sread(F); self.lds_peek(VALL, VT + 1, 6); p.extend(x_[6:])
        self.lds_check(VALL, VT + 1, 6, fill=lambda: p.extend(s_[:5]))
        self.stamp("sin", sets=(0, 2, 3))
        self.fin_out(F, s_[5:])
        self.stamp("end", sets=(0, 2, 3, 4, 9))
        self.stamp_flush(1)
        p("s_endpgm")

    def gather_table(self):
        import numpy as np
        def rb(l):
            u = np.array([l], np.float32).view(np.uint32)
            return int((((u + 0x7FFF + ((u >> 16) & 1)) >> 16) << 16).view(np.float32)[0])
        rows = list(range(8)) + list(range(128, 136)) + [256, 258, 260, 262, 384, 386, 388, 390, 512, 516, 640, 644, 768, 772, 896, 900] + [1024 + 128 * k for k in range(9)]
        pos = {}
        for i, a in enumerate(rows):
            tile, row = i >> 4, i & 15
            for col in range(16): pos[a + 8 * col] = tile * 1024 + ((row >> 2) * 16 + col) * 16 + (row & 3) * 4
        zero = 2 * 1024 + 48 * 16
        at = lambda l: zero if l < 0 else pos[rb(l)]
        at1 = lambda l: zero if l > 1028 else at(l)
        words = []
        for mh in range(2):
            for half in range(2):
                for lane in range(64):
                    hi = 1023 - 8 * (64 * mh + lane)
                    e = [at(hi - i) for i in range(11)]
                    if mh == 0: d = 127 - lane; e += [pos[16 * d + 16], pos[16 * d + 8], zero, zero, zero]
                    elif lane < 16: top = 1055 - 8 * (lane >> 2) - (lane & 3); e += [at1(top - j) for j in (0, 1, 2, 3, 7)]
                    else: e += [zero] * 5
                    e = e[8 * half: 8 * half + 8]
                    words += [e[2 * k] | (e[2 * k + 1] << 16) for k in range(4)]
        return words

    def role_b(self):
        p, c = self.p, self.c
        p.label("L_roleB")
        self.role_start(True); self.stamp_begin("B")
        S_BW, S_LDT, S_DSK, S_STW, S_CHN, S_MH = B_BW, B_LDT, B_DSK, B_STW, S_WF, S_WT
        S_FXR, S_XTR, S_FSW, S_FSR, S_STR = 74, 75, 76, 77, S_CT
        S_X, S_Y = 78, 79
        T = S_T
        VL16, VP, VGT, VG, VSW, VSR, VT = 9, B_VP, 120, 16, 46, 47, 50
        VRW, VTW, VTZ, VTA, VUA, VUW, VCN, VONE, VEXW, VEXR, VTAG, VUZ, VFL = range(32, 45)
        self.load_epoch()
        self.loader_base()
        ctok = {}
        if c.a_chunks < 7:
            if c.rot1: p(f"s_cmp_ge_u32 s{S_C2}, {7-c.a_chunks}\ns_cselect_b32 s{T}, {c.a_chunks-7}, {c.a_chunks}\ns_mul_i32 s{T}, s{T}, s{S_CSTR}\ns_add_u32 s{S_SOFF}, s{S_SOFF}, s{T}")
            else: p(f"s_mul_i32 s{T}, s{S_CSTR}, {c.a_chunks}\ns_add_u32 s{S_SOFF}, s{S_SOFF}, s{T}")
        p(f"v_lshlrev_b32 v{VL16}, 4, v0\ns_lshl3_add_u32 s{S_STW}, s{S_STW}, {WS_ST}")
        srd(p, R_2, P_W2, 1792 * 896)
        late = Prog(); q = late
        q(f"s_lshl2_add_u32 s{S_R2}, s{S_XCD}, s{S_JR}")
        q(f"s_lshr_b32 s{T}, s{S_CP}, 5\ns_lshl2_add_u32 s{S_FXR}, s{T}, s{S_BW}\ns_and_b32 s{T}, s{S_CP}, 3\ns_lshl2_add_u32 s{S_FXR}, s{S_FXR}, s{T}\ns_lshl_b32 s{S_FXR}, s{S_FXR}, 7\ns_add_u32 s{S_FXR}, s{S_FXR}, {WS_FX}\ns_lshr_b32 s{T}, s{S_CP}, 4")
        q(f"s_lshl3_add_u32 s{S_XTR}, s{S_CP}, s{S_BW}\ns_lshl_b32 s{S_XTR}, s{S_XTR}, 10\ns_add_u32 s{S_XTR}, s{S_XTR}, {WS_XT}")
        q(f"s_mul_i32 s{S_FSW}, s{S_BW}, 14\ns_add_u32 s{S_FSW}, s{S_FSW}, s{T}\ns_lshl_b32 s{S_FSW}, s{S_FSW}, 7\ns_and_b32 s{T+1}, s{S_CP}, 15\ns_add_u32 s{S_FSW}, s{S_FSW}, s{T+1}\ns_lshl2_add_u32 s{S_FSW}, s{S_FSW}, {WS_FS}")
        q(f"s_lshl1_add_u32 s{T}, s{S_C2}, s{S_CHN}")
        q(f"s_lshr_b32 s{T+1}, s{S_R2}, 3\ns_mul_i32 s{S_FSR}, s{T+1}, 14\ns_add_u32 s{S_FSR}, s{S_FSR}, s{T}\ns_lshl2_add_u32 s{S_FSR}, s{S_FSR}, s{S_JR}\ns_lshl_b32 s{S_FSR}, s{S_FSR}, 7\ns_add_u32 s{S_FSR}, s{S_FSR}, {WS_FS}")
        q(f"s_lshl_b32 s{S_STR}, s{T}, 9\ns_add_u32 s{S_STR}, s{S_STR}, s{S_R2}\ns_lshl1_add_u32 s{S_STR}, s{S_STR}, s{S_MH}\ns_lshl_b32 s{S_STR}, s{S_STR}, 7\ns_add_u32 s{S_STR}, s{S_STR}, {WS_ST}")
        q(f"v_and_b32 v{VT}, 15, v0\nv_lshrrev_b32 v{VT+1}, 4, v0")
        q(f"s_mul_i32 s{T}, s{S_BW}, 8448\nv_mul_u32_u24 v{VT+2}, 528, v{VT}\nv_and_b32 v{VT+3}, 256, v{VL16}\nv_add3_u32 v{VT+2}, v{VT+2}, v{VT+3}, s{T}\nv_lshrrev_b32 v{VT+3}, 5, v0\nv_lshl_add_u32 v{VSR}, v{VT+3}, 4, v{VT+2}")
        q(f"s_lshl_b32 s{T}, s{S_BW}, 13\nv_add_u32 v{VEXW}, s{T}, v{VL16}")
        q(f"s_mul_i32 s{T}, s{S_BW}, 3072\ns_add_u32 s{T}, s{T}, {L_RAW}\nv_add_u32 v{VRW}, s{T}, v{VL16}")
        q(f"s_mul_i32 s{T}, s{S_CHN}, {TCH}\ns_add_u32 s{T}, s{T}, {L_TAB}\ns_lshl_b32 s{T+1}, s{S_MH}, 10\ns_add_u32 s{T+1}, s{T+1}, s{T}\nv_add_u32 v{VTW}, s{T+1}, v{VL16}")
        q(f"v_sub_u32 v{VT+2}, 3, v{VT}\nv_and_b32 v{VT+2}, 3, v{VT+2}\nv_mul_u32_u24 v{VT+3}, {TCP-2}, v{VT+2}\nv_lshl_add_u32 v{VT+3}, v{VT+1}, 4, v{VT+3}\nv_lshlrev_b32 v{VT+2}, 1, v{VT}\nv_sub_u32 v{VT+3}, v{VT+3}, v{VT+2}")
        q(f"s_lshl_b32 s{T+1}, s{S_MH}, 8\ns_sub_u32 s{T}, s{T}, s{T+1}\ns_add_u32 s{T}, s{T}, {2*15}\nv_add_u32 v{VTA}, s{T}, v{VT+3}")
        q(f"s_mul_i32 s{S_X}, s{S_CHN}, 4608\ns_sub_u32 s{T}, s{S_X}, s{T+1}\ns_add_u32 s{T}, s{T}, {L_U+2*(240-96)}\nv_lshlrev_b32 v{VT+2}, 5, v{VT}\nv_lshl_add_u32 v{VT+2}, v{VT+1}, 4, v{VT+2}\nv_add_u32 v{VUA}, s{T}, v{VT+2}")
        q(f"s_add_u32 s{S_X}, s{S_X}, s{T+1}\ns_add_u32 s{S_X}, s{S_X}, {L_U}\nv_lshl_add_u32 v{VUZ}, v0, 2, s{S_X}")
        q(f"s_lshl_b32 s{T}, s{S_BW}, 10\ns_add_u32 s{T}, s{T}, {L_U+512}\nv_add_u32 v{VUW}, s{T}, v{VL16}")
        q(f"s_lshl_b32 s{T}, s{S_BW}, 11\ns_add_u32 s{T}, s{T}, {L_EX}\nv_add_u32 v{VEXR}, s{T}, v{VL16}")
        VZ = 56
        for i in range(4): q(f"v_mov_b32 v{VZ+i}, 0")
        q(f"s_lshl2_add_u32 s{T}, s{S_BW}, {L_CNT}\nv_mov_b32 v{VONE}, s{T}\nv_and_b32 v{VCN}, 3, v0\nv_lshlrev_b32 v{VCN}, 2, v{VCN}\nv_add_u32 v{VCN}, {L_CNT}, v{VCN}")
        VW2D = 48; S_WOFF, S_WIDX, S_RING = 88, 89, 91
        q(f"v_lshrrev_b32 v{VT+2}, 3, v0\nv_mul_u32_u24 v{VT+2}, 896, v{VT+2}\nv_bfe_u32 v{VT+3}, v0, 4, 1\nv_lshlrev_b32 v{VT+3}, 2, v{VT+3}\nv_xor_b32 v{VT+3}, v0, v{VT+3}\nv_and_b32 v{VT+3}, 7, v{VT+3}")
        q(f"v_lshl_add_u32 v{VW2D}, v{VT+3}, 4, v{VT+2}\nv_add_u32 v{VW2D+1}, {7168-1024}, v{VW2D}")
        if c.rot2 == 2: q(f"s_lshl1_add_u32 s{S_WIDX}, s{S_JR}, s{S_C2}\ns_cmp_ge_u32 s{S_WIDX}, 7\ns_cselect_b32 s{T}, 7, 0\ns_sub_u32 s{S_WIDX}, s{S_WIDX}, s{T}")
        else: q(f"s_mov_b32 s{S_WIDX}, {'s%d' % S_C2 if c.rot2 else 0}")
        q(f"s_mul_i32 s{S_WOFF}, s{S_BW}, 7\ns_add_u32 s{S_WOFF}, s{S_WOFF}, s{S_WIDX}\ns_mul_i32 s{S_WOFF}, s{S_WOFF}, {64*7}\ns_add_u32 s{S_WOFF}, s{S_WOFF}, s{S_C2}\ns_lshl_b32 s{S_WOFF}, s{S_WOFF}, 7")
        q(f"s_lshl_b32 s{S_RING}, s{S_BW}, 13\ns_add_u32 s{S_RING}, s{S_RING}, {L_RING}")
        assert not c.qperm and c.b_pre == 1.0
        if "X" not in c.spoll: q(f"v_min_u32 v{VFL}, 7, v0\nv_lshlrev_b32 v{VFL}, 2, v{VFL}")
        k = int(len(late.items) * c.b_pre)
        p.extend(late.items[:k]); late.items = late.items[k:]
        T = 90
        S_TCH = 92; nt = [0]
        def touch_upto(m):
            while nt[0] < m:
                p(f"s_buffer_load_dwordx2 s[94:95], {s(R_2,4)}, s{S_TCH}\ns_add_u32 s{S_TCH}, s{S_TCH}, 128"); nt[0] += 1
                p.items.append(Marker("forget", {"s94", "s95"}))
        if c.s_touch: p(f"s_lshl2_add_u32 s{S_TCH}, s{S_CP}, s{S_BW}\ns_mul_i32 s{S_TCH}, s{S_TCH}, {14*128}\ns_add_u32 s{S_TCH}, s{S_TCH}, 60")
        self.make_tag()
        p(f"s_lshl_b32 s{T}, s{S_CHN}, 4\ns_lshr_b32 s{S_LDT}, s{S_LDT}, s{T}\ns_lshl_b32 s{S_LDT}, s{S_LDT}, 16\ns_lshr_b32 s{S_DSK}, s{S_DSK}, s{T}\ns_lshl_b32 s{S_DSK}, s{S_DSK}, 16")
        VDT = 60
        p(f"v_mov_b32 v{VDT}, {LOG2E}\nv_mul_f32 v{VDT}, s{S_LDT}, v{VDT}\nv_exp_f32 v{VDT}, v{VDT}\nv_mov_b32 v{VTAG}, s{S_TAG}\nv_cvt_pk_bf16_f32 v{VDT}, v{VDT}, v{VDT}\nv_and_b32 v{VDT}, 0xffff0000, v{VDT}\nv_mov_b32 v{VDT+1}, v{VDT}")
        if c.s_touch: touch_upto(c.s_touch[0])
        self.stamp("pre", sets=(1,))
        Z1, Z2, Z4, Z8, Z128, XB, XC, XDD, TM = 64, 68, 72, 76, 80, 84, 88, 92, 96
        AL, BE, UB, CV = 108, 110, 112, 120
        YF, XF, KV, KA = 128, 160, 128, 244
        units = []
        def unpack(d, src): p(f"v_lshlrev_b32 v{d}, 16, v{src}\nv_and_b32 v{d+1}, 0xffff0000, v{src}")
        def mul2(d, a, b, pk):
            if pk: p(f"v_pk_mul_f32 {v(d,2)}, {v(a,2)}, {v(b,2)}")
            else: p(f"v_mul_f32 v{d}, v{a}, v{b}\nv_mul_f32 v{d+1}, v{a+1}, v{b+1}")
        def cmul_(d, a, b, pk):
            assert d != b
            mul2(TM, a, b, pk); mul2(TM + 2, a, b + 2, pk)
            if pk:
                p(f"v_pk_fma_f32 {v(d,2)}, {v(a+2,2)}, {v(b+2,2)}, {v(TM,2)} neg_lo:[1,0,0] neg_hi:[1,0,0]")
                p(f"v_pk_fma_f32 {v(d+2,2)}, {v(a+2,2)}, {v(b,2)}, {v(TM+2,2)}")
            else:
                for m in range(2): p(f"v_fma_f32 v{d+m}, -v{a+2+m}, v{b+2+m}, v{TM+m}")
                for m in range(2): p(f"v_fma_f32 v{d+2+m}, v{a+2+m}, v{b+m}, v{TM+2+m}")
        def cmul(d, a, b): units.append((8, lambda pk: cmul_(d, a, b, pk)))
        def put(e, a, conj):
            ng = "-" if conj else ""
            units.append((2, lambda pk: (have.add(e), p(f"v_cvt_pk_bf16_f32 v{KV+2*e}, v{a}, {ng}v{a+2}\nv_cvt_pk_bf16_f32 v{KV+2*e+1}, v{a+1}, {ng}v{a+3}"))))
        have = {0}
        def getfr(base):
            return [I(f"ds_read_b128 {v(base+4*fr,4)}, v{VSR} offset:{fr*32}") for fr in range(8)]
        def kmfma(tile, base):
            a = v(KA + 4 * tile, 4)
            return [I(f"v_mfma_f32_16x16x32_bf16 {a}, {v(base+4*fr,4)}, {v(YF+4*fr,4)}, {'0' if (fr == 0 and tile) else a}") for fr in range(8)]
        def zpow_(d, lg, pk):
            for m in range(2):
                if lg: p(f"v_ldexp_f32 v{TM+m}, v{AL+m}, {lg}\nv_ldexp_f32 v{TM+2+m}, v{BE+m}, {lg}")
                a, b = (TM + m, TM + 2 + m) if lg else (AL + m, BE + m)
                p(f"v_exp_f32 v{TM+m}, v{a}\nv_fract_f32 v{TM+2+m}, v{b}")
            for m in range(2): p(f"v_cos_f32 v{d+m}, v{TM+2+m}\nv_sin_f32 v{d+2+m}, v{TM+2+m}")
            mul2(d, d, TM, pk); mul2(d + 2, d + 2, TM, pk)
        def zpow(d, lg): units.append((22, lambda pk: zpow_(d, lg, pk)))
        p(f"v_mov_b32 v{KV}, 0x3f80\nv_mov_b32 v{KV+1}, 0x3f80")
        unpack(AL, VP); unpack(BE, VP + 1)
        self.stamp("params", sets=(0, 1))
        mul2(AL, AL, VDT, True); mul2(BE, BE, VDT, True)
        for m in range(2): p(f"v_mul_f32 v{AL+m}, {LOG2E}, v{AL+m}\nv_mul_f32 v{BE+m}, 0.15915494, v{BE+m}")
        early_done = [None]
        zpow(Z8, 3)
        put(1, Z8, False)
        prev = Z8
        for r in range(2, 16): cmul(XB, prev, Z8); prev = XB; put(r, XB, False)
        zpow(Z1, 0); zpow(Z128, 7)
        units.append((8, lambda pk: [unpack(UB + 2 * i, VP + 2 + i) for i in range(4)]))
        cmul(XC, UB, UB + 4)
        units.append((4, lambda pk: (mul2(XC, XC, VDT, pk), mul2(XC + 2, XC + 2, VDT, pk))))
        cmul(XB, XC, Z128)
        put(16, XC, True); put(24, XB, True)
        prev = XB
        for r in range(1, 8):
            cmul(XC, XC, Z1); put(16 + r, XC, True)
            cmul(XDD, prev, Z1); prev = XDD; put(24 + r, XDD, True)
        for it in late.items: units.append((1, lambda pk, it=it: p.extend([it])))
        cmul(Z2, Z1, Z1); cmul(Z4, Z2, Z2)
        for k in range(2):
            cmul(XB, XB, Z128); put(32 + 4 * k, XB, True); prev = XB
            for r in range(1, 4): cmul(XC, prev, Z2); prev = XC; put(32 + 4 * k + r, XC, True)
        for k in range(4):
            cmul(XB, XB, Z128); put(40 + 2 * k, XB, True)
            cmul(XC, XB, Z4); put(41 + 2 * k, XC, True)
        for k in range(9): cmul(XB, XB, Z128); put(48 + k, XB, True)
        total = sum(u[0] for u in units)
        cuts = [c.kg_pre] + [c.kg_pre + (total - c.kg_pre) * (i - c.kg_x) / (c.kg_ints - c.kg_x) for i in range(1, 7)]
        X2F = 64
        VCA, VPU, BE9, BO7 = 10, 11, 12, 60
        order = list(range(48, 57)) + list(range(16)) + list(range(32, 48)) + list(range(16, 32))
        lops = []
        for e in order:
            it = [I(f"ds_write_addtid_b32 v{KV+2*e+m} offset:{(e&15)*528+256*m}") for m in range(2)]
            if 36 <= e < 44: it.append(kmfma(2, X2F)[e - 36])
            if e == 46: it += [I(f"v_cndmask_b32 v{KA+8}, 0, v{KA+8}, vcc"), I(f"ds_write_b128 v{VRW}, {v(KA+8,4)} offset:2048")]
            if 20 <= e < 28: it.append(kmfma(1, XF + 32)[e - 20])
            if e == 30: it.append(I(f"ds_write_b128 v{VRW}, {v(KA+4,4)} offset:1024"))
            if e in (15, 31, 47, 56): it += getfr({15: YF, 31: XF, 47: XF + 32, 56: X2F}[e])
            if "2" in c.diag and e < 32 and e % 16 != 15: it = it[2:]
            lops.append(it)
        nl = [0]
        def lds_upto(m):
            while nl[0] < m:
                assert order[nl[0]] in have
                p.extend(lops[nl[0]]); nl[0] += 1
        done = 0; nb = 0; fx = [None]; xt = [None]
        def barrier():
            nonlocal nb
            if nb in ctok: p.wait(ctok[nb])
            if nb == c.r_at and c.r_early: p.wait(w2t[c.r_early - 1])
            if nb == 6 and c.r2: assert c.br0 >= 0 and c.r2 <= 8; p.wait(w2t[c.r2 - 1])
            self.stamp(f"atbar{nb}", sets=(0, 1) if nb == 0 else (1,))
            p("s_barrier")
            if c.a_chunks <= nb + 3 < 7:
                for it in self.dma_chunk(nb + 3, T, ctok): p.extend(it)
            if c.s_touch and nb < 4: touch_upto(c.s_touch[nb + 1])
            if nb == 4: self.stamp("bar4", sets=(0, 3))
            if nb == c.gt_at:
                p(f"s_lshl_b32 s{T}, s{S_MH}, 11\ns_add_u32 s{T}, s{T}, L_gtab-L_pc")
                for h in range(2): p(f"buffer_load_dwordx4 {v(VGT+4*h,4)}, v{VL16}, {s(R_PC,4)}, s{T} offen offset:{1024*h}")
            if nb >= 4 or nb == c.br0:
                while nq[0] < (c.bw2[nb - 4] if nb >= 4 else 4):
                    n = nq[0]; nq[0] += 1
                    pc = (n >> 2) if c.br0 < 0 else (-2 if n < 4 else (n >> 2) - 1)
                    assert pc <= nb - 4 or pc < 0
                    if pc == 3: assert n - 12 < c.r2; pc = 0
                    p(f"s_add_u32 m0, s{S_RING}, {pc*SLOT + (n&3)*2048}\ns_cmp_eq_u32 s{S_WIDX}, {(6-n)%7}\nbuffer_load_dwordx4 v{VW2D}, {s(R_2,4)}, s{S_WOFF} offen lds")
                    w2t[n] = p.tok(f"buffer_load_dwordx4 v{VW2D+1}, {s(R_2,4)}, s{S_WOFF} offen offset:1024 lds")
                    p(f"s_cselect_b32 s{T}, {-7*64*896}, 0\ns_add_u32 s{S_WOFF}, s{S_WOFF}, s{T}\ns_add_u32 s{S_WOFF}, s{S_WOFF}, {(64 + (16 if n % 7 == 6 else 0))*896}")
            if nb < 7 and c.lds_cut[nb] > nl[0]:
                assert done == total and c.lds_cut[nb] <= 23 and (c.br0 < 0 or nb > c.r_at)
                p(f"s_mul_i32 m0, s{S_BW}, 8448"); lds_upto(c.lds_cut[nb])
            if nb == c.band_at:
                assert done == total
                p(f"v_and_b32 v{VT}, 15, v0\nv_lshrrev_b32 v{VT+1}, 4, v0\nv_lshlrev_b32 v{VT+2}, 3, v{VT+1}\ns_movk_i32 s{T}, 0x3f80")
                for bd, m in ((BE9, 0x1ff << 4), (BO7, 0x7f << 5)):
                    p(f"v_mov_b32 v{VT+3}, {m}\nv_lshlrev_b32 v{VT+3}, v{VT}, v{VT+3}\nv_lshrrev_b32 v{VT+3}, v{VT+2}, v{VT+3}")
                    for d in range(4):
                        p(f"v_bfe_u32 v{VT+4}, v{VT+3}, {2*d}, 1\nv_bfe_u32 v{VT+5}, v{VT+3}, {2*d+1}, 1\nv_lshl_or_b32 v{VT+4}, v{VT+5}, 16, v{VT+4}\nv_mul_u32_u24 v{bd+d}, s{T}, v{VT+4}")
                p(f"s_mul_i32 s{T}, s{S_MH}, 768\ns_sub_u32 s{T}, 1200, s{T}\nv_add_u32 v{VPU}, s{T}, v{VUA}")
                p(f"s_mul_i32 s{T}, s{S_CHN}, {TCH}\ns_add_u32 s{S_X}, s{T}, {L_TAB+4*TCP+60}\nv_lshlrev_b32 v{VT+3}, 2, v{VT+1}\nv_sub_u32 v{VT+3}, v{VT+3}, v{VT}\nv_lshl_add_u32 v{VCA}, v{VT+3}, 2, s{S_X}")
                p(f"s_add_u32 s{T}, s{T}, {L_TAB}\nv_and_b32 v{VT+3}, 3, v0\nv_mul_u32_u24 v{VT+3}, {TCP}, v{VT+3}\nv_lshrrev_b32 v{VT+4}, 2, v0\nv_lshl_add_u32 v{VT+3}, v{VT+4}, 4, v{VT+3}\nv_lshl_add_u32 v{VT+3}, v{VT+1}, 11, v{VT+3}")
                p(f"v_lshlrev_b32 v{VT+4}, 2, v0\nv_add_u32 v{VT+4}, {4*TCP}, v{VT+4}\ns_cmp_eq_u32 s{S_MH}, 0\ns_cselect_b64 vcc, -1, 0\nv_cndmask_b32 v{VT+3}, v{VT+3}, v{VT+4}, vcc\nv_add_u32 v{VTZ}, s{T}, v{VT+3}")
            if nb == 5:
                p(f"s_mul_i32 s{T}, s{S_CHN}, 6144\ns_add_u32 s{T}, s{T}, {L_RAW}\ns_cmp_eq_u32 s{S_MH}, 0\ns_cselect_b32 s{S_DSK}, s{S_DSK}, 0")
                p(f"v_mov_b32 v{VT}, s{S_DSK}\nv_cmp_eq_u32 vcc, 0, v0\nv_mov_b32 v{VT+1}, s{T}\nv_mov_b32 v{KA+1}, 0\nv_cndmask_b32 v{KA}, 0, v{VT}, vcc\nv_mov_b32 v{KA+2}, 0\nv_mov_b32 v{KA+3}, 0\nv_cmp_gt_u32 vcc, 48, v0")
                for k in range(16):
                    p(f"v_add_u32_sdwa v{VG+k}, v{VT+1}, v{VGT+(k>>1)} dst_sel:DWORD dst_unused:UNUSED_PAD src0_sel:DWORD src1_sel:WORD_{k&1}")
            nb += 1
        nq = [0]; w2t = {}
        for cost, fn in units:
            while nb < 8 and done >= cuts[min(nb, 6)]: barrier()
            fn(nb == 0); done += cost
        while nb < 8: barrier()
        self.stamp("bar7", sets=(0, 3))
        p(f"s_mul_i32 m0, s{S_BW}, 8448")
        if c.prio_b3 != c.prio_b2: p(f"s_setprio {c.prio_b3}")
        XR, XR2 = 2, 52
        lds_upto(c.fx_ld)
        fx = self.flag_load("X", S_FXR, 8, VFL)
        lds_upto(c.fx_chk)
        self.flag_check(fx, VT)
        p.wait(w2t[nq[0] - 1]); self.lds_post(VONE, VTAG, 4)
        self.stamp("fx", sets=(3,))
        p(f"buffer_load_dwordx4 {v(XR,4)}, v{VL16}, {s(R_WS,4)}, s{S_XTR} offen sc1\ns_add_u32 s{S_XTR}, s{S_XTR}, 4096\nbuffer_load_dwordx4 {v(XR2,4)}, v{VL16}, {s(R_WS,4)}, s{S_XTR} offen sc1")
        lds_upto(57)
        p.extend(kmfma(0, XF))
        T = S_T
        uw = lambda: [p(f"ds_write_b128 v{VUW}, {v(XR2 if ch else XR,4)} offset:{4608*ch}") for ch in range(2)] + [p(f"ds_write_b32 v{VUZ}, v{VZ}")]
        p(f"ds_write_b128 v{VRW}, {v(KA,4)}")
        self.lds_post(VONE, VTAG, 0)
        self.stamp("kgen", sets=(0, 3))
        if c.prio_b4 != c.prio_b3: p(f"s_setprio {c.prio_b4}")
        self.lds_wait(VCN, VT, 0)
        GV, PK = 96, 128
        for k in range(16): p(f"ds_read2st64_b32 {v(GV+2*k,2)}, v{VG+k} offset0:0 offset1:12")
        if c.u_at == 1: uw()
        for k in range(11): p(f"v_add_f32 v{GV+2*k}, v{GV+2*k}, v{GV+2*k+1}")
        for cp_ in range(4):
            for j in range(4): p(f"v_cvt_pk_bf16_f32 v{PK+4*cp_+j}, v{GV+2*(cp_+2*j)}, v{GV+2*(cp_+2*j+1)}")
            p(f"ds_write_b128 v{VTW}, {v(PK+4*cp_,4)} offset:{cp_*TCP+64}")
        for k in range(11, 16): p(f"v_add_f32 v{GV+2*k}, v{GV+2*k}, v{GV+2*k+1}")
        l0, l1 = self.lab("edge"), self.lab("tabd")
        E = lambda k: GV + 2 * (11 + k)
        p(f"v_cvt_pk_bf16_f32 v{PK+16}, v{E(0)}, v{E(1)}\ns_cmp_lg_u32 s{S_MH}, 0\ns_cbranch_scc1 {l0}")
        p.alt_begin()
        p(f"ds_write_b32 v{VTZ}, v{PK+16}\ns_mov_b64 exec, 0xffff\nds_write_b32 v{VTZ}, v{VZ} offset:256\ns_branch {l1}")
        p.alt_else()
        p.label(l0)
        p(f"v_cvt_pk_bf16_f32 v{PK+17}, v{E(2)}, v{E(3)}\nv_cvt_pk_bf16_f32 v{PK+18}, v{E(3)}, v{E(3)}\nv_cvt_pk_bf16_f32 v{PK+19}, v{E(3)}, v{E(4)}")
        p(f"s_mov_b64 exec, 0xffffff\nds_write_b128 v{VTZ}, {v(PK+16,4)}")
        p.alt_end()
        p.label(l1)
        p("s_mov_b64 exec, -1")
        self.stamp("tables", sets=(0, 3, 4))
        if c.u_at == 2: uw()
        self.lds_post(VONE, VTAG, 1)
        self.lds_wait(VCN, VT, 1)
        self.stamp("u", sets=(0, 3, 4))
        if c.prio_b5 != c.prio_b4: p(f"s_setprio {c.prio_b5}")
        TF, UF, CA = 96, 160, 224
        PU, VA, VB, AF, TB = 128, 144, 64, 72, 88
        MF = lambda d, a, b_, z=False: I(f"v_mfma_f32_16x16x32_bf16 {v(d,4)}, {v(a,4)}, {v(b_,4)}, {'0' if z else v(d,4)}")
        def read_tu(ph):
            r = [I(f"ds_read_b128 {v(UF+32*(ph&1),4)}, v{VUA} offset:{2*32*(3-ph)}")]
            for a in range(4):
                for h in range(2):
                    r.append(I(f"ds_read_b64 {v(TF+16*(ph&1)+4*a+2*h,2)}, v{VTA} offset:{2*(160+256*(3-a)+32*(3-ph))+8*h}"))
            return r + [I(f"ds_read_b128 {v(UF+32*(ph&1)+4*b,4)}, v{VUA} offset:{2*(256*b+32*(3-ph))}") for b in range(1, 8)]
        r0 = read_tu(0)
        p.extend(r0[:11])
        for ph in range(4):
            mm = [MF(CA + 4 * (a + b), UF + 32 * (ph & 1) + 4 * b, TF + 16 * (ph & 1) + 4 * a, ph == 0 and (b == 0 or a == 3)) for b in range(8) for a in range(min(4, 8 - b))]
            if ph == 0:
                rp = [I(f"ds_read_b128 {v(PU+8*be+4*o,4)}, v{VPU} offset:{512*be+16*o}") for be in range(2) for o in range(2)]
                ra = [I(f"ds_read2_b32 {v(AF+4*a+2*h,2)}, v{VCA} offset0:{16*(3-a)+2*h} offset1:{16*(3-a)+2*h+1}") for a in range(4) for h in range(2)]
                ra += [I(f"ds_read_b64 {v(TB+2*h,2)}, v{VTA} offset:{8*h}") for h in range(2)]
                mp = [MF(VA + 8 * be + 4 * o, PU + 8 * be + 4 * o, BO7 if o else BE9, True) for be in range(2) for o in range(2)]
                cv = [I(f"v_cvt_pk_bf16_f32 v{VB+4*be+r}, v{VA+8*be+r}, v{VA+8*be+4+r}") for be in range(2) for r in range(4)]
                r1 = read_tu(1)
                p.extend(interleave(mm[:12], r0[11:13] + rp + r0[13:] + ra[:5]))
                p.extend(interleave(mp + mm[12:18], ra[5:] + r1[:8]))
                p.extend(interleave(mm[18:], [[x, y] for x, y in zip(cv, r1[8:])]))
                l0, l1 = self.lab("far1"), self.lab("fard")
                p(f"s_cmp_lg_u32 s{S_MH}, 0\ns_cbranch_scc1 {l0}")
                p.alt_begin()
                p.extend([MF(CA + 4 * (4 + b), UF + 4 * b, TB) for b in range(4)])
                p.extend([MF(CA + 4 * 6, AF, VB), MF(CA + 4 * 7, AF + 4, VB), MF(CA + 4 * 7, AF, VB + 4)])
                p(f"s_branch {l1}")
                p.alt_else()
                p.label(l0)
                p.extend([MF(CA + 4 * (4 + a + be), AF + 4 * a, VB + 4 * be) for be in range(2) for a in range(4 - be)])
                p.alt_end()
                p.label(l1)
            elif ph < 3 and "3" in c.diag: pass
            elif ph < 3: p.extend(interleave(mm, read_tu(ph + 1), ratio=0.8))
            else:
                self.lds_post(VONE, VTAG, 2)
                p.extend(mm[:5]); self.lds_peek(VCN, VT, 2); p.extend(mm[5:11])
                self.lds_check(VCN, VT, 2, fill=lambda: p.extend(mm[11:16])); mm = mm[16:]
                if c.prio_b6 != c.prio_b5 and not c.late6: p(f"s_setprio {c.prio_b6}")
                fill = [I(f"ds_write_b128 v{VEXW}, {v(CA+4*cc,4)} offset:{1024*cc}") for cc in range(4)]
                p.extend(interleave(mm, fill, ratio=0.5))
        if c.prio_b6 != c.prio_b5 and c.late6: p(f"s_setprio {c.prio_b6}")
        self.stamp("conv", sets=(0, 2, 3, 4))
        for cc in range(4, 8): p(f"ds_write_b128 v{VEXW}, {v(CA+4*cc,4)} offset:{1024*cc}")
        self.lds_post(VONE, VTAG, 3)
        EXV, VSA = 96, 10
        if "b" in c.diag:
            p(f"v_lshlrev_b32 v{VT+4}, 7, v0\ns_mov_b64 exec, 15\nbuffer_store_dword v{VTAG}, v{VT+4}, {s(R_WS,4)}, s{S_FSW} offen sc1\ns_mov_b64 exec, -1")
            self.lds_post(VONE, VTAG, 7); p("s_waitcnt lgkmcnt(0)"); self.stamp_flush(1); p("s_endpgm"); return
        self.lds_wait(VCN, VT, 3)
        for k in range(2):
            for w in range(4): p(f"ds_read_b128 {v(EXV+16*k+4*w,4)}, v{VEXR} offset:{8192*w+1024*k}")
        for k in range(2):
            b = EXV + 16 * k
            for r in range(4): p(f"v_add_f32 v{b+r}, v{b+r}, v{b+4+r}\nv_add_f32 v{b+8+r}, v{b+8+r}, v{b+12+r}")
            for r in range(4): p(f"v_cvt_pk_bf16_f32 v{b+4+r}, v{b+r}, v{b+8+r}")
            sttok = p.tok(f"buffer_store_dwordx4 {v(b+4,4)}, v{VL16}, {s(R_WS,4)}, s{S_STW} offen offset:{1024*k} sc1")
        self.stamp("st", sets=(0, 2, 3, 4))
        F = dict(VT=VT, XO=16, PA=18, SA=17, STA=20, XI=24, RG=21, RC=22, XF=128, PV=160, SV=28, SF=136, w=S_BW, sXO=S_FXR, sST=S_XTR, OUT=R_2)
        S_XO = S_STW
        p(f"s_load_dwordx2 {s(R_LD,2)}, s[0:1], 0\ns_load_dwordx2 {s(R_2,2)}, s[0:1], 104\ns_mov_b32 s{R_LD+2}, {2048*896}\ns_mov_b32 s{R_2+2}, {2048*896}\ns_add_u32 s{S_XO}, s{S_STR}, {8*8192}")
        self.fin_addr(0, F, 0); self.fin_addr(0, F, 1)
        if "S" not in c.spoll: p(f"v_min_u32 v{VFL}, 15, v0\nv_lshlrev_b32 v{VFL}, 2, v{VFL}")
        p(f"s_mul_i32 s{T}, s{S_BW}, 2304\ns_add_u32 s{T}, s{T}, {L_STR}")
        p(f"v_and_b32 v{VT+4}, 32, v0\nv_lshl_add_u32 v{VT+4}, v0, 3, v{VT+4}\nv_add_u32 v{VSA}, s{T}, v{VT+4}")
        p(f"v_lshrrev_b32 v{VT+4}, 3, v0\nv_lshlrev_b32 v{VT+4}, 13, v{VT+4}\nv_and_b32 v{VT+5}, 7, v0\nv_lshl_add_u32 v{VSA+2}, v{VT+5}, 4, v{VT+4}\nv_lshlrev_b32 v{VT+4}, 7, v0")
        p.wait(sttok)
        if "S" in c.sflag: self.sflags4(S_FSW)
        else: p(f"s_mov_b64 exec, 15\nbuffer_store_dword v{VTAG}, v{VT+4}, {s(R_WS,4)}, s{S_FSW} offen sc1\ns_mov_b64 exec, -1")
        self.stamp("flagS")
        if c.prio_b7 != c.prio_b6: p(f"s_setprio {c.prio_b7}")
        if c.b_xat == 0: self.fin_loads(F)
        fs = self.flag_load("S", S_FSR, 16, VFL)
        self.flag_check(fs, VT, sleep=c.fs_sleep)
        self.stamp("fs", sets=(0, 2, 3))
        if c.prio_b8 != c.prio_b7: p(f"s_setprio {c.prio_b8}")
        SV = 64
        for j in range(2): p(f"buffer_load_dwordx4 {v(SV+4*j,4)}, v{VSA+2}, {s(R_WS,4)}, s{S_XO if j else S_STR} offen sc1")
        if c.b_xat == 1: self.fin_loads(F)
        for j in range(2): p(f"ds_write2_b64 v{VSA}, {v(SV+4*j,2)}, {v(SV+4*j+2,2)} offset0:{72*j} offset1:{72*j+144}")
        self.lds_post(VONE, VTAG, 7)
        self.stamp("sready", sets=(0, 2, 3))
        self.fin_sread(F); p.extend(self.fin_prep(F)); p.extend(self.fin_sprep(F))
        self.lds_wait(VCN, VT, 5, sleep=c.b5_sleep)
        if c.prio_b9 != c.prio_b8: p(f"s_setprio {c.prio_b9}")
        self.fin_out(F)
        self.stamp("end", sets=(0, 2, 3, 4, 9))
        self.stamp_flush(1)
        p("s_endpgm")

    def head_h(self):
        p, c = self.p, self.c
        p.label("L_helper")
        self.role_start()
        S_HH, S_X, S_Z, VT, XD = 64, 65, 72, 1, 16
        if c.prefetch_code and c.pf_h:
            p(f"s_sub_u32 s{S_X}, s{S_J}, 28\ns_lshl3_add_u32 s{S_X}, s{S_X}, s{S_WAVE}\ns_lshl_b32 s{S_X}, s{S_X}, 7\nv_lshlrev_b32 v255, 12, v0\ns_mov_b64 exec, 0x1ff")
            p(f"buffer_load_dword v255, v255, {s(R_PC,4)}, s{S_X} offen\ns_mov_b64 exec, -1")
        p(f"s_lshl2_add_u32 s{S_HH}, s{S_XCD}, s{S_J}\ns_sub_u32 s{S_HH}, s{S_HH}, 28\ns_lshl3_add_u32 s{S_Z}, s{S_HH}, s{S_WAVE}\ns_mul_i32 s{S_X}, s{S_Z}, {8*896}")
        p(f"v_lshrrev_b32 v{VT+2}, 3, v0\nv_mul_u32_u24 v{VT}, 896, v{VT+2}\nv_and_b32 v{VT+1}, 7, v0\nv_lshl_add_u32 v{VT}, v{VT+1}, 4, v{VT}")
        srd(p, R_LD, P_U, 2048 * 896)
        for i in range(7): p(f"buffer_load_dwordx4 {v(XD+4*i,4)}, v{VT}, {s(R_LD,4)}, s{S_X} offen offset:{128*i}")
        if c.h_near: p("s_branch L_bodyH")
    def role_h(self):
        p, c = self.p, self.c
        S_HH, S_X, S_Y, S_ONE, S_LO, S_HI, S_Q, S_CG, S_Z = range(64, 73)
        T = S_T
        VT, XD, WD, AC, CS, UP = 1, 16, 48, 80, 88, 96
        L_XN = 8192
        if c.h_near:
            if c.h_align: p(".p2align 12")
            p.label("L_bodyH"); p.reset()
            if c.prefetch_code: p.items.append(Marker("pending", ("vmem", {"v255"})))
            for i in range(7): p.items.append(Marker("pending", ("vmem", {f"v{XD+4*i+j}" for j in range(4)})))
        else: self.head_h()
        self.stamp_begin("H")
        self.load_epoch(); srd(p, R_2, P_W1, 448 * 3584); srd(p, R_PC, P_W2, 1792 * 896)
        p(f"s_lshr_b32 s{S_Q}, s{S_XCD}, 1\ns_lshl2_add_u32 s{S_Q}, s{S_Q}, s{S_J}\ns_sub_u32 s{S_Q}, s{S_Q}, 28\ns_and_b32 s{S_CG}, s{S_XCD}, 1\ns_mul_i32 s{S_CG}, s{S_CG}, 14\ns_add_u32 s{S_CG}, s{S_CG}, s{S_Q}")
        p(f"s_lshl_b32 s{T}, s{S_CG}, 7\ns_mul_i32 s{S_Y}, s{S_WAVE}, {56*3584}\ns_add_u32 s{S_Y}, s{S_Y}, s{T}\ns_cmp_ge_u32 s{S_Q}, 14\ns_cselect_b32 s{S_Y}, {448*3584}, s{S_Y}")
        p(f"v_mul_u32_u24 v{VT+3}, 3584, v{VT+2}\nv_lshl_add_u32 v{VT+3}, v{VT+1}, 4, v{VT+3}")
        p(f"s_mov_b32 s{S_ONE}, 0x3f803f80\ns_mov_b32 s{S_LO}, 0x00003f80\ns_mov_b32 s{S_HI}, 0x3f800000")
        p(f"s_lshl_b32 s{S_X}, s{S_Z}, 6\ns_add_u32 s{S_X}, s{S_X}, {WS_STAT}")
        p(f"s_mul_i32 s{T}, s{S_WAVE}, 7232\ns_add_u32 s{T}, s{T}, {L_XN}\nv_add_u32 v{VT}, s{T}, v{VT}")
        for i in range(4): p(f"v_mov_b32 v{AC+i}, 0")
        for k in range(8): p(f"v_mov_b32 v{CS+k}, 0")
        self.make_tag()
        def w1_loads():
            for i in range(7):
                p(f"buffer_load_dwordx4 {v(WD+4*i,4)}, v{VT+3}, {s(R_2,4)}, s{S_Y} offen")
                if i < 6: p(f"s_add_u32 s{S_Y}, s{S_Y}, {8*3584}")
        def touch():
            p(f"s_sub_u32 s{T}, s{S_J}, 28\ns_mul_i32 s{T}, s{T}, 7\ns_add_u32 s{T}, s{T}, s{S_WAVE}\ns_lshl3_add_u32 s{T}, s{T}, s{S_XCD}\ns_mul_i32 s{T}, s{T}, {8*896}\ns_cmp_eq_u32 s{S_WAVE}, 7\ns_cselect_b32 s{T}, {1792*896}, s{T}")
            p(f"v_min_u32 v120, 55, v0\nv_lshlrev_b32 v120, 7, v120\nbuffer_load_dword v121, v120, {s(R_PC,4)}, s{T} offen")
        if c.h_w1 == 0: w1_loads()
        if c.h_w1 == 1: p.items.append(Marker("need", XD + 27)); w1_loads()
        self.stamp("issued")
        for i in range(28):
            p(f"v_dot2_f32_bf16 v{AC+(i&1)}, v{XD+i}, s{S_ONE}, v{AC+(i&1)}\nv_dot2_f32_bf16 v{AC+2+(i&1)}, v{XD+i}, v{XD+i}, v{AC+2+(i&1)}")
        p(f"v_add_f32 v{AC}, v{AC}, v{AC+1}\nv_add_f32 v{AC+1}, v{AC+2}, v{AC+3}")
        for pat in ("quad_perm:[1,0,3,2]", "quad_perm:[2,3,0,1]", "row_half_mirror"):
            for k in range(2): p(f"v_add_f32_dpp v{AC+k}, v{AC+k}, v{AC+k} {pat} row_mask:0xf bank_mask:0xf")
        inv = 0x3b124925
        p(f"v_mul_f32 v{AC}, {inv}, v{AC}\nv_mul_f32 v{AC+1}, {inv}, v{AC+1}\nv_fma_f32 v{AC+1}, -v{AC}, v{AC}, v{AC+1}\nv_max_f32 v{AC+1}, 0, v{AC+1}")
        p(f"v_cvt_pk_bf16_f32 v{AC+1}, v{AC+1}, v{AC+1}\nv_and_b32 v{AC+1}, 0xffff0000, v{AC+1}\nv_add_f32 v{AC+1}, 0x3727c5ac, v{AC+1}")
        p(f"v_cvt_pk_bf16_f32 v{AC+1}, v{AC+1}, v{AC+1}\nv_and_b32 v{AC+1}, 0xffff0000, v{AC+1}\nv_sqrt_f32 v{AC+1}, v{AC+1}")
        p(f"v_mov_b32 v{AC+3}, s{S_TAG}\nv_cvt_pk_bf16_f32 v{AC+2}, v{AC}, v{AC+1}")
        p(f"s_mov_b32 exec_lo, 0x01010101\ns_mov_b32 exec_hi, 0x01010101\nbuffer_store_dwordx2 {v(AC+2,2)}, v0, {s(R_WS,4)}, s{S_X} offen sc1\ns_mov_b64 exec, -1")
        if c.h_w1 == 2: w1_loads()
        if c.h_touch == 0: touch()
        self.stamp("stats")
        p(f"v_and_b32 v{AC+4}, 0xffff0000, v{AC+2}\nv_rcp_f32 v{AC+4}, v{AC+4}\nv_lshlrev_b32 v{AC+6}, 16, v{AC+2}\nv_mov_b32 v{AC+5}, v{AC+4}\nv_mul_f32 v{AC+6}, -v{AC+6}, v{AC+4}\nv_mov_b32 v{AC+7}, v{AC+6}")
        for i in range(7):
            u = UP + 8 * (i & 1)
            for j in range(4): p(f"v_lshlrev_b32 v{u+2*j}, 16, v{XD+4*i+j}\nv_and_b32 v{u+2*j+1}, 0xffff0000, v{XD+4*i+j}")
            for j in range(4): p(f"v_pk_fma_f32 {v(u+2*j,2)}, {v(u+2*j,2)}, {v(AC+4,2)}, {v(AC+6,2)}")
            for j in range(4): p(f"v_cvt_pk_bf16_f32 v{XD+4*i+j}, v{u+2*j}, v{u+2*j+1}")
            p(f"ds_write_b128 v{VT}, {v(XD+4*i,4)} offset:{128*i}")
        if c.h_touch == 1: touch()
        self.stamp("norm")
        for i in range(7):
            for j in range(4):
                p(f"v_dot2_f32_bf16 v{CS+2*j}, v{WD+4*i+j}, s{S_LO}, v{CS+2*j}\nv_dot2_f32_bf16 v{CS+2*j+1}, v{WD+4*i+j}, s{S_HI}, v{CS+2*j+1}")
        for k in range(8): p(f"v_add_f32_dpp v{CS+k}, v{CS+k}, v{CS+k} row_ror:8 row_mask:0xf bank_mask:0xf")
        p(f"v_and_b32 v{VT+3}, 8, v0\nv_cmp_eq_u32 vcc, 0, v{VT+3}\nv_lshlrev_b32 v{VT+3}, 1, v{VT+3}\nv_lshl_add_u32 v{VT+3}, v{VT+1}, 5, v{VT+3}\nv_lshrrev_b32 v{VT+4}, 4, v0\nv_lshl_add_u32 v{VT+3}, v{VT+4}, 8, v{VT+3}")
        p(f"s_lshl_b32 s{T}, s{S_WAVE}, 10\nv_add_u32 v{VT+3}, s{T}, v{VT+3}")
        for k in range(4): p(f"v_cndmask_b32 v{CS+k}, v{CS+4+k}, v{CS+k}, vcc")
        p(f"ds_write_b128 v{VT+3}, {v(CS,4)}")
        p(f"s_lshl_b32 s{T}, s{S_WAVE}, 7\ns_add_u32 s{T}, s{T}, {L_XN}\nv_mul_u32_u24 v{VT}, 7232, v{VT+1}\nv_lshl_add_u32 v{VT}, v{VT+2}, 4, v{VT}\nv_add_u32 v{VT}, s{T}, v{VT}")
        p(f"v_lshlrev_b32 v{VT+2}, 15, v{VT+2}\nv_lshl_add_u32 v{VT+2}, v{VT+1}, 4, v{VT+2}\nv_lshlrev_b32 v{VT+4}, 7, v0")
        p(f"s_lshl_b32 s{S_X}, s{S_WAVE}, 11\ns_add_u32 s{S_X}, s{S_X}, s{S_HH}\ns_lshl_b32 s{S_X}, s{S_X}, 7\ns_add_u32 s{S_X}, s{S_X}, {WS_XT}")
        p(f"s_lshr_b32 s{T}, s{S_HH}, 3\ns_lshl2_add_u32 s{S_Y}, s{S_WAVE}, s{T}\ns_lshl_b32 s{S_Y}, s{S_Y}, 7\ns_and_b32 s{T}, s{S_HH}, 7\ns_add_u32 s{S_Y}, s{S_Y}, s{T}\ns_lshl2_add_u32 s{S_Y}, s{S_Y}, {WS_FX}")
        p(f"s_mov_b32 s{S_LO}, 0x05040100\ns_mov_b32 s{S_HI}, 0x07060302\ns_waitcnt lgkmcnt(0)\ns_barrier")
        self.stamp("bar")
        p(f"s_cmp_eq_u32 s{S_WAVE}, 7\ns_cbranch_scc1 L_h7")
        p.alt_begin()
        for j in range(8): p(f"ds_read_b128 {v(XD+4*j,4)}, v{VT} offset:{896*j}")
        if c.h_touch == 2: touch()
        for e in range(8):
            o = WD + 4 * e
            for j in range(4): p(f"v_perm_b32 v{o+j}, v{XD+4*(2*j+1)+(e>>1)}, v{XD+4*(2*j)+(e>>1)}, s{S_HI if e&1 else S_LO}")
            p(f"buffer_store_dwordx4 {v(o,4)}, v{VT+2}, {s(R_WS,4)}, s{S_X} offen sc1")
            if e < 7: p(f"s_add_u32 s{S_X}, s{S_X}, 4096")
        p("s_waitcnt vmcnt(0)")
        if "X" in c.sflag: self.sflags4(S_Y)
        else: p(f"s_mov_b64 exec, 15\nbuffer_store_dword v{AC+3}, v{VT+4}, {s(R_WS,4)}, s{S_Y} offen sc1\ns_mov_b64 exec, -1")
        p("s_branch L_hdone")
        p.alt_else()
        p.label("L_h7")
        p(f"s_setprio 3\ns_cmp_ge_u32 s{S_Q}, 14\ns_cbranch_scc1 L_hdone\nv_lshlrev_b32 v{VT+3}, 2, v0")
        for i in range(16): p(f"ds_read2st64_b32 {v(XD+2*i,2)}, v{VT+3} offset0:{2*i} offset1:{2*i+1}")
        for st in (16, 8, 4, 2):
            for i in range(0, st, 2): p(f"v_pk_add_f32 {v(XD+i,2)}, {v(XD+i,2)}, {v(XD+st+i,2)}")
        p(f"v_add_f32 v{AC+2}, v{XD}, v{XD+1}\nv_lshlrev_b32 v{VT+3}, 3, v0\ns_lshl_b32 s{T}, s{S_CG}, 9\ns_add_u32 s{T}, s{T}, {WS_CS}")
        p(f"buffer_store_dwordx2 {v(AC+2,2)}, v{VT+3}, {s(R_WS,4)}, s{T} offen sc1")
        p.alt_end()
        p.label("L_hdone")
        p("s_setprio 0\ns_waitcnt lgkmcnt(0)")
        self.stamp("done")
        p(f"v_min_u32 v{VT}, 55, v0\ns_sub_u32 s{S_Z}, s{S_J}, 28")
        if c.h_pf:
            p("s_barrier")
            p(f"s_mul_i32 s{T}, s{S_Z}, 7\ns_add_u32 s{T}, s{T}, s{S_WAVE}\ns_mul_i32 s{T}, s{T}, {64*896}\ns_cmp_eq_u32 s{S_WAVE}, 7\ns_cselect_b32 s{T}, {1792*896}, s{T}\nv_lshlrev_b32 v{VT+1}, 7, v{VT}")
            for st in c.h_pf:
                for h in range(2):
                    p(f"s_add_u32 s{T+1}, s{T}, {(16*st+8*h)*896}\nbuffer_load_dword v{VT+2}, v{VT+1}, {s(R_PC,4)}, s{T+1} offen")
        self.stamp("pfw")
        if c.h_act:
            p(f"s_lshr_b32 s{T}, s{S_WAVE}, 2\ns_mul_i32 s{T}, s{T}, 56\nv_add_u32 v{VT}, s{T}, v{VT}\nv_lshrrev_b32 v{VT+1}, 4, v{VT}\nv_lshlrev_b32 v{VT+1}, 13, v{VT+1}\nv_and_b32 v{VT}, 15, v{VT}\nv_lshl_add_u32 v{VT+1}, v{VT}, 7, v{VT+1}")
            p(f"s_and_b32 s{T}, s{S_WAVE}, 3\ns_lshl2_add_u32 s{S_X}, s{S_HH}, s{T}\ns_mul_i32 s{S_X}, s{S_X}, {28*2048}\ns_add_u32 s{S_X}, s{S_X}, {WS_ACT}")
            p(f"s_lshl4_add_u32 s{S_Y}, s{S_HH}, s{T}\ns_lshl_b32 s{S_Y}, s{S_Y}, 7\ns_add_u32 s{S_Y}, s{S_Y}, {WS_FA}")
            have = -1
            for st in c.h_act:
                p(f"s_add_u32 s{S_HI}, s{S_X}, {2048*st}")
                if st > have:
                    have = min(x for x in c.fstages if x >= st)
                    p(f"s_add_u32 s{S_LO}, s{S_Y}, {512*have}")
                    self.flag_check(self.flag_load("H", S_LO, 7, None), None, sleep=c.h_sleep)
                p(f"buffer_load_dword v{VT+2}, v{VT+1}, {s(R_WS,4)}, s{S_HI} offen sc1")
                self.stamp(f"pa{st}")
        p(f"s_waitcnt vmcnt(0)")
        self.stamp("pfa")
        p(f"s_cmp_lg_u32 s{S_HH}, 31\ns_cbranch_scc1 L_hend\ns_cmp_lg_u32 s{S_WAVE}, 7\ns_cbranch_scc1 L_hend")
        p(f"v_lshrrev_b32 v{VT}, 2, v0\nv_min_u32 v{VT}, 13, v{VT}\nv_lshlrev_b32 v{VT}, 9, v{VT}\nv_and_b32 v{VT+1}, 3, v0\nv_lshl_add_u32 v{VT}, v{VT+1}, 4, v{VT}\ns_mov_b32 s{S_X}, {WS_FS}")
        ld = f"s_sleep 8\nbuffer_load_dwordx4 {v(XD,4)}, v{VT}, {s(R_WS,4)}, s{S_X} offen sc1"
        p(ld)
        self.tagged_check(ld, [XD, XD + 1, XD + 2, XD + 3], VT + 2)
        p(f"s_mov_b32 s{S_X}, {WS_EPOCH}")
        self.flag_store(S_X, AC + 3)
        p.label("L_hend")
        self.stamp_flush(1)
        p("s_endpgm")

    def layout(self, body):
        c = self.c
        lines = body.split("\n")
        sizes = instr_sizes([re.sub(r"L_hop\d", "L_bodyA", l) for l in lines])
        end = lines.index("L_bodyH:") if c.h_near else lines.index("L_helper:")
        out, addr, page, k = [], 0, 1, 0
        prom = None
        fixed = [0, 0]
        for i, l in enumerate(lines):
            t = l.strip()
            if t.startswith(".p2align"):
                al = 1 << int(t.split()[1]); addr = (addr + al - 1) // al * al; prom = None
            if c.hops and sizes[i] and addr >= 4096 * page and i < end:
                out += [f"L_hop{k}:", f"    s_cbranch_execz {'L_bodyA' if k == 0 else 'HOP%d' % (k + 4)}"]; addr += 4; page += 1; k += 1; prom = None
            if c.align8 and sizes[i] == 8 and addr % 8 == 4:
                run, pend, valu = 0, 0, 0
                for j in range(i, min(len(lines), i + 60)):
                    if sizes[j] == 4: pend ^= 1
                    elif sizes[j] == 8:
                        if pend: break
                        run += 1; valu += lines[j].strip().startswith("v_") and "mfma" not in lines[j]
                if prom is not None and run >= 2:
                    m = re.match(r"(\s*)(v_\w+)(.*)", out[prom]); out[prom] = m.group(1) + m.group(2) + "_e64" + m.group(3); addr += 4; fixed[0] += 1
                elif valu >= c.align8:
                    out.append("    s_nop 0"); addr += 4; fixed[1] += 1
            if sizes[i] == 8: prom = None
            elif sizes[i] == 4 and re.match(r"v_(mov|add|sub|subrev|mul|and|or|xor|lshlrev|lshrrev|exp|rcp|sin|cos|fract|min|max|cvt|sqrt)_", t): prom = len(out)
            out.append(l); addr += sizes[i]
        body = "\n".join(out)
        if c.hops:
            assert c.align4k and k >= 5
            for j in range(k + 3, 4, -1): body = body.replace(f"HOP{j}", f"L_hop{j}" if j < k else "L_hopped")
        self.p.stats["align"] = fixed
        return body
    def build(self):
        p = self.p
        self.entry()
        self.role_a(); self.role_h()
        p.reset()
        p.label("L_exit")
        p("s_endpgm")
        p(".p2align 7")
        p(".type L_gtab,@object")
        p.label("L_gtab")
        w = self.gather_table()
        for i in range(0, len(w), 8): p(".long " + ", ".join(hex(x) for x in w[i:i+8]))
        p.label("L_end")
        body = p.resolve()
        head = open("recurrent_scan__ssm_conv_s4__dense_activation_mish__prompt.s.ref").read().split("; Override launch")[0]
        txt = head + f"; @launch grid=(256,1,1) block=(512,1,1) lds={LDS_BYTES}\n" + DOC + ""
        pad = ".p2align 12\n.fill 832, 4, 0xbf810000\n" if self.c.align4k else ""
        txt += f'.amdgcn_target "amdgcn-amd-amdhsa--gfx950"\n.text\n{pad}.globl {KNAME}\n.p2align 8\n.type {KNAME},@function\n{KNAME}:\n'
        if "m" in self.c.diag or "n" in self.c.diag:
            cnt = [0]
            def sub(m):
                cnt[0] += 1
                k = (cnt[0] - 1) // 4
                if ("m" if k < 28 else "n") not in self.c.diag: return m.group(0)
                a = int(m.group(1)) + 8 * (k & 1); z = k % 28 < 2
                return "\n".join(f"    v_mfma_f32_16x16x32_bf16 v[{a+4*i}:{a+4*i+3}], {m.group(2)}, {m.group(3)}, " + ("0" if z else f"v[{a+4*i}:{a+4*i+3}]") for i in range(2))
            body = re.sub(r"    v_mfma_f32_32x32x16_bf16 v\[(\d+):\d+\], (v\[\d+:\d+\]), (v\[\d+:\d+\]), \S+", sub, body)
        if self.c.dma_fl: body = re.sub(r" lds$", f" {self.c.dma_fl} lds", body, flags=re.M)
        body = self.layout(body)
        txt += body
        txt += f""".section .rodata,"a"
.p2align 6
.amdhsa_kernel {KNAME}
  .amdhsa_next_free_vgpr 256
  .amdhsa_next_free_sgpr 102
  .amdhsa_accum_offset 256
  .amdhsa_group_segment_fixed_size 0
  .amdhsa_kernarg_size 128
  .amdhsa_user_sgpr_count 2
  .amdhsa_user_sgpr_kernarg_segment_ptr 1
  .amdhsa_system_sgpr_workgroup_id_x 1
.end_amdhsa_kernel
"""
        return txt

def parse_cfg(args):
    kw = {}
    for a in args:
        k, x = a.split("=")
        kw[k] = eval(x)
    return Cfg(**kw)

if __name__ == "__main__":
    out = sys.argv[1]
    g = Gen(parse_cfg(sys.argv[2:]))
    txt = g.build()
    open(out, "w").write(txt)
    import json
    json.dump(g.stamp_names, open(out + ".stamps.json", "w"))
    print(out, g.p.stats)
```

```python
import sys, re
from asmgen import *

KNAME = "recurrent_scan__ssm_conv_s4__dense_activation_mish__prompt_kernel"

class Cfg:
    stamps = False
    sset = 0
    cyc = False
    prole = 'A'
    probe2 = None
    probe = None
    prefetch_code = True
    pf_h = False
    align4k = True
    align8 = 6
    hops = True
    mapP = False
    rot2 = 0
    qperm = False
    g2_mix = True
    act_st = 'sc1'
    act_ld = 'sc1'
    fa_st = 'sc1'
    mish_pk = False
    sflag = 'XAS'
    spoll = 'XASH'
    adepth = 7
    flead = 6
    pre_dma = 32
    nfirst = 8
    a_delay = 0
    a_chunks = 4
    dma_per = (8, 8, 8, 8, 8, 8, 8)
    gran_at = 5
    bw2 = (8, 12, 16, 16)
    w2_mish = 0
    fx_ld = 9
    fx_chk = 29
    u_at = 1
    lds_cut = (0, 0, 0, 0, 0, 0, 0)
    r_early = 4
    r_at = 4
    r2 = 8
    nx = 2
    b7_at = -3
    br0 = 0
    late6 = True
    side_at = (0, 6)
    side_first = True
    touch_first = True
    out_fl = 'nt'
    mish_skip = 0.0
    w2_lead = 9
    w2_rate = 0.0
    w2_gap = 2
    rdepth = 3
    fstages = (3,)
    cstages = None
    flag_lag = 2
    gt_at = 2
    b_pre = 1.0
    kg_pre = 9999
    kg_ints = 4
    kg_x = 0.0
    h_w1 = 2
    h_touch = -1
    s_touch = (7, 14, 14, 14, 14)
    h_near = True
    h_align = True
    h_pf = ()
    diag = ''
    jitter = 0
    h_act = ()
    h_sleep = 4
    rot1 = 3
    fs_sleep = 3
    b_xat = 0
    prio_b = 1
    prio_b2 = 0
    prio_b3 = 1
    prio_b4 = 1
    prio_b5 = 1
    prio_b6 = 0
    prio_b7 = 0
    prio_b8 = 1
    prio_a1 = 2
    prio_a2 = 0
    tail_m = 5
    tail_ld = True
    tail_k = 3
    tail_r = None
    fin_at = (1, 2, 3, 21)
    prio_b9 = 0
    b5_sleep = 1
    pre_loop = 'R12 D20 W F D26 L C A8'
    dma_fl = ''
    def __init__(self, **kw):
        for k, x in kw.items():
            assert hasattr(self, k), k
            setattr(self, k, x)

WS_EPOCH, WS_FX, WS_FA, WS_FS = 0, 0x1000, 0x20000, 0x8000
WS_STAT, WS_CS, WS_XT, WS_ST, WS_ACT, WS_DBG = 0x10000, 0x14000, 0x40000, 0x200000, 0x600000, 0xE00000
WS_SIZE = 0x1000000
TAGC = 0x9E3779B1
SLOT = 32768
L_RING = 2 * SLOT
L_STG = 0
L_TAB = 512
TCP, TCH = 2240, 9472
L_EX = 0
L_RAW = SLOT + 1024
L_U = L_TAB + 2 * TCH
L_X = L_RAW
L_STR = L_RAW + 21504
L_CNT = L_RAW + 30720
LDS_BYTES = 163840
P_U, P_ARE, P_AIM, P_BRE, P_BIM, P_CRE, P_CIM, P_LDT = 4, 6, 8, 10, 12, 14, 16, 18
P_DSK, P_BX, P_W1, P_B1, P_W2, P_OUT, P_DBG, P_WS = 20, 22, 24, 26, 28, 30, 32, 34
R_LD, R_2, R_WS, R_PC = 36, 40, 44, 48
S_TAG, S_TAG2, S_WAVE, S_XCD, S_J, S_RT, S_CT, S_CP = 52, 53, 54, 55, 56, 57, 58, 97
S_SOFF, S_CSTR, S_LDB, S_CW, S_WT, S_WF = range(64, 70)
VD = 1
B_BW, B_LDT, B_DSK, B_STW, B_VP = 70, 71, 72, 73, 10
S_R2, S_C2 = 60, 61
S_T = 62
S_SP = 80
S_JR, S_XF = 3, 59
S_CNT = 96
S_T0 = 98
LOG2E = 0x3fb8aa3b
POLL_MAX = 1 << 17

DOC = """;
; Hand-offs go through d_ws with write-through stores; flags and tagged words hold a value derived from an epoch word in d_ws,
"""

def srd(p, r, ptr, size):
    p(f"s_mov_b32 s{r}, s{ptr}\ns_mov_b32 s{r+1}, s{ptr+1}\ns_mov_b32 s{r+2}, {size}\ns_mov_b32 s{r+3}, 0x20000")

class Gen:
    def __init__(self, cfg):
        self.c = cfg
        self.p = Prog()
        self.nlab = 0
        self.stamp_names = {}
    def lab(self, base):
        self.nlab += 1
        return f"L_{base}_{self.nlab}"

    def stamp_begin(self, role):
        self.role = role; self.stamp_names[role] = []
    def stamp(self, name, p=None, sets=(0,)):
        if self.c.jitter:
            q = p or self.p; l = self.lab("jit"); k = self.nlab * 40503 + self.c.jitter * 9176
            q(f"s_lshl3_add_u32 s100, s2, s{S_WAVE}\ns_add_u32 s100, s100, {k & 0xffff}\ns_mul_i32 s100, s100, 0x9E3779B1\ns_add_u32 s100, s100, s{S_TAG}\ns_mul_i32 s100, s100, 0x85EBCA6B\ns_lshr_b32 s100, s100, 29\ns_cmp_lg_u32 s100, 0\ns_cbranch_scc1 {l}\ns_sleep {(20, 60, 120)[self.nlab % 3]}")
            q.label(l)
        if self.c.probe2 and self.role == self.c.prole:
            if name == self.c.probe2[0]: (p or self.p)("s_memrealtime s[100:101]")
            if name == self.c.probe2[1]: (p or self.p)("s_memrealtime s[32:33]")
        if self.c.probe == (self.role, name): (p or self.p)("s_memrealtime s[100:101]")
        if not self.c.stamps or self.c.sset not in sets: return
        p = p or self.p
        n = len(self.stamp_names[self.role]); assert n < 15
        self.stamp_names[self.role].append(name)
        p(f"{'s_memtime' if self.c.cyc else 's_memrealtime'} {s(4+2*n, 2)}")
    def stamp_flush(self, vt):
        if self.c.probe2 and self.role == self.c.prole:
            l0, l1 = self.lab("probe"), self.lab("noprobe")
            if self.c.probe2[2] < 0: self.p("s_waitcnt vmcnt(0) lgkmcnt(0)")
            else: self.p(f"s_waitcnt vmcnt(0) lgkmcnt(0)\ns_cmp_lg_u32 s2, {self.c.probe2[2]}\ns_cbranch_scc1 {l1}\ns_cmp_lg_u32 s{S_WAVE}, {5 if self.role == 'B' else 1}\ns_cbranch_scc1 {l1}")
            self.p("s_sub_u32 s32, s32, s100\ns_mul_i32 s32, s32, 20\ns_add_u32 s32, s32, 3000")
            self.p.label(l0)
            self.p(f"s_memrealtime s[30:31]\ns_waitcnt lgkmcnt(0)\ns_sub_u32 s30, s30, s98\ns_cmp_lt_u32 s30, s32\ns_cbranch_scc1 {l0}")
            self.p.label(l1)
        if self.c.probe and self.c.probe[0] == self.role:
            l0 = self.lab("probe")
            self.p("s_waitcnt vmcnt(0) lgkmcnt(0)")
            self.p.label(l0)
            self.p(f"s_memrealtime s[98:99]\ns_waitcnt lgkmcnt(0)\ns_sub_u32 s98, s98, s100\ns_cmp_lt_u32 s98, 6000\ns_cbranch_scc1 {l0}")
        if not self.c.stamps: return
        p = self.p
        n = len(self.stamp_names[self.role])
        p("s_waitcnt vmcnt(0) lgkmcnt(0)\ns_mov_b64 exec, 1")
        p(f"s_lshl_b32 s{S_T}, s2, 3\ns_add_u32 s{S_T}, s{S_T}, s{S_WAVE}\ns_lshl_b32 s{S_T}, s{S_T}, 6\ns_add_u32 s{S_T}, s{S_T}, {WS_DBG}")
        p(f"v_mov_b32 v{vt}, s{S_T0}\nbuffer_store_dword v{vt}, off, {s(R_WS,4)}, s{S_T}")
        for i in range(n):
            p(f"v_mov_b32 v{vt+1+(i&1)}, s{4+2*i}\nbuffer_store_dword v{vt+1+(i&1)}, off, {s(R_WS,4)}, s{S_T} offset:{4+4*i}")
        p("s_waitcnt vmcnt(0)")

    def flag_store(self, soff, vt):
        p = self.p
        p(f"s_mov_b64 exec, 1\nbuffer_store_dword v{vt}, off, {s(R_WS,4)}, s{soff} sc1\ns_mov_b64 exec, -1")
    def sflags4(self, soff):
        for i in range(4):
            self.p(f"s_atomic_swap s{S_TAG}, {s(R_WS,2)}, s{soff}")
            if i < 3: self.p(f"s_add_u32 s{soff}, s{soff}, 128")
    def lds_post(self, vown, vtag, k):
        self.p(f"s_mov_b64 exec, 1\nds_write_b32 v{vown}, v{vtag} offset:{16*k}\ns_mov_b64 exec, -1")
    def lds_wait(self, vaddr, vt, k, sleep=0):
        p = self.p
        l0, l1 = self.lab("spin"), self.lab("spun")
        p(f"s_mov_b32 s{S_CNT}, 0")
        p.label(l0)
        if sleep: p(f"s_sleep {sleep}")
        p(f"ds_read_b32 v{vt}, v{vaddr} offset:{16*k}\ns_add_u32 s{S_CNT}, s{S_CNT}, 1\ns_cmp_gt_u32 s{S_CNT}, {POLL_MAX*8}\ns_waitcnt lgkmcnt(0)")
        p(f"v_cmp_ne_u32 vcc, s{S_TAG}, v{vt}\ns_cbranch_scc1 {l1}\ns_cbranch_vccnz {l0}")
        p.label(l1)
    def lds_peek(self, vaddr, vt, k):
        self.p(f"ds_read_b32 v{vt}, v{vaddr} offset:{16*k}")
    def lds_check(self, vaddr, vt, k, fill=None):
        p = self.p
        l1 = self.lab("pass")
        p(f"v_cmp_ne_u32 vcc, s{S_TAG}, v{vt}")
        if fill: fill()
        p(f"s_cbranch_vccz {l1}")
        p.alt_begin(); self.lds_wait(vaddr, vt, k); p.alt_end()
        p.label(l1)
    def tagged_check(self, loads, tagregs, vt, on_miss=None):
        p = self.p
        l0, l1 = self.lab("chk"), self.lab("chkd")
        p(f"s_mov_b32 s{S_CNT}, 0")
        for r in reversed(tagregs): p.items.append(Marker("need", r))
        p.label(l0)
        p(f"v_xor_b32 v{vt}, s{S_TAG}, v{tagregs[0]}")
        for r in tagregs[1:]:
            p(f"v_bitop3_b32 v{vt}, v{r}, s{S_TAG}, v{vt} bitop3:0xbe")
        p(f"v_cmp_ne_u32 vcc, 0, v{vt}\ns_add_u32 s{S_CNT}, s{S_CNT}, 1\ns_cbranch_vccz {l1}")
        p(f"s_cmp_gt_u32 s{S_CNT}, {POLL_MAX}\ns_cbranch_scc1 {l1}")
        p.alt_begin()
        if on_miss:
            l3 = self.lab("again")
            p(f"s_cmp_lg_u32 s{S_CNT}, 1\ns_cbranch_scc1 {l3}")
            p.alt_begin(); on_miss(); p.alt_end()
            p.label(l3)
        p(loads)
        p(f"s_waitcnt vmcnt(0)\ns_branch {l0}")
        p.alt_end()
        p.label(l1)

    def entry(self):
        p, c = self.p, self.c
        T = S_T
        p(f"s_load_dwordx16 s[4:19], s[0:1], 0\ns_load_dwordx16 s[20:35], s[0:1], 64")
        p(f"s_cmp_ge_u32 s2, 256\ns_cbranch_scc1 L_exit")
        if c.stamps: p(f"{'s_memtime' if c.cyc else 's_memrealtime'} {s(S_T0,2)}")
        if c.probe and c.probe[1] == "start": p("s_memrealtime s[100:101]")
        if c.probe2: p("s_memrealtime s[98:99]\ns_memrealtime s[100:101]")
        if "k" in c.diag: p("s_waitcnt lgkmcnt(0)\ns_memtime s[100:101]")
        p(f"v_lshrrev_b32 v1, 6, v0\nv_and_b32 v0, 63, v0\nv_readfirstlane_b32 s{S_WAVE}, v1")
        p(f"s_and_b32 s{S_XCD}, s2, 7\ns_lshr_b32 s{S_J}, s2, 3")
        p(f"s_getpc_b64 {s(R_PC,2)}")
        p.label("L_pc")
        p(f"s_mov_b32 s{R_PC+2}, L_end-L_pc\ns_mov_b32 s{R_PC+3}, 0x20000")
        if c.prefetch_code and not c.pf_h:
            p(f"s_lshl3_add_u32 s{T}, s{S_J}, s{S_WAVE}\ns_lshl_b32 s{T}, s{T}, 7")
            p(f"buffer_load_dword v255, off, {s(R_PC,4)}, s{T}")
        p(f"s_mov_b32 s{R_WS+2}, {WS_SIZE}\ns_mov_b32 s{R_WS+3}, 0x20000")
        p(f"s_cmp_ge_u32 s{S_J}, 28\ns_cbranch_scc1 L_helper")
        p(f"s_mul_i32 s{S_JR}, s{S_J}, 37\ns_lshr_b32 s{S_JR}, s{S_JR}, 8\ns_mul_i32 s{T}, s{S_JR}, 7\ns_sub_u32 s{S_C2}, s{S_J}, s{T}")
        if c.mapP: p(f"s_lshr_b32 s{S_RT}, s{S_JR}, 1\ns_lshl1_add_u32 s{S_RT}, s{S_XCD}, s{S_RT}\ns_and_b32 s{S_XF}, s{S_JR}, 1")
        else: p(f"s_lshr_b32 s{S_RT}, s{S_XCD}, 1\ns_lshl2_add_u32 s{S_RT}, s{S_RT}, s{S_JR}\ns_and_b32 s{S_XF}, s{S_XCD}, 1")
        p(f"s_cmp_lt_u32 s{S_WAVE}, 4\ns_cbranch_scc1 L_common")
        p.alt_begin()
        if c.prio_b: p(f"s_setprio {c.prio_b}")
        p(f"s_sub_u32 s{B_BW}, s{S_WAVE}, 4\ns_mul_i32 s{S_CP}, s{S_XCD}, 28\ns_add_u32 s{S_CP}, s{S_CP}, s{S_J}\ns_lshl_b32 s{T}, s{S_CP}, 2")
        p(f"s_add_u32 s{B_STW}, s{T}, s{B_BW}\ns_lshl_b32 s{B_STW}, s{B_STW}, 8\nv_lshl_add_u32 v50, v0, 2, s{B_STW}")
        p(f"s_load_dword s{B_LDT}, {s(P_LDT,2)}, s{T}")
        for i, ptr in enumerate((P_ARE, P_AIM, P_BRE, P_BIM, P_CRE, P_CIM)):
            p(f"global_load_dword v{B_VP+i}, v50, {s(ptr,2)}")
        p(f"s_load_dword s{B_DSK}, {s(P_DSK,2)}, s{T}")
        if c.prio_b != c.prio_b2: p(f"s_setprio {c.prio_b2}")
        p.alt_end()
        p.label("L_common")
        VT, S_X, S_Y = 24, 78, 79
        p(f"s_and_b32 s{S_WT}, s{S_WAVE}, 1\ns_bfe_u32 s{S_WF}, s{S_WAVE}, 0x10001\ns_mul_i32 s{S_CT}, s{S_XF}, 7\ns_add_u32 s{S_CT}, s{S_CT}, s{S_C2}")
        p(f"s_lshl1_add_u32 s{T}, s{S_RT}, s{S_WF}\ns_mul_i32 s{T}, s{T}, {64*896}")
        p(f"s_mul_i32 s{T+1}, s{S_WF}, {32*14}\ns_add_u32 s{T+1}, s{T+1}, s{S_CT}\ns_lshl_b32 s{T+1}, s{T+1}, 8")
        p(f"s_lshl1_add_u32 s{S_LDB}, s{S_WT}, s{S_WF}\ns_lshl_b32 s{S_LDB}, s{S_LDB}, 13")
        p(f"s_add_u32 s{S_X}, s{S_WT}, 3\nv_lshrrev_b32 v{VT}, s{S_X}, v0\ns_lshl_b32 s{S_X}, s{S_WT}, 1\nv_lshrrev_b32 v{VT+1}, 4, v0\nv_lshlrev_b32 v{VT+1}, s{S_X}, v{VT+1}")
        p(f"s_lshl_b32 s{S_Y}, 896, s{S_X}\nv_xor_b32 v{VT+1}, v0, v{VT+1}\nv_mul_u32_u24 v{VT}, s{S_Y}, v{VT}")
        p(f"s_cmp_eq_u32 s{S_WT}, 0")
        p(f"s_cselect_b32 s{S_SOFF}, s{T}, s{T+1}\ns_cselect_b32 s{S_CSTR}, 1, {64*28}\ns_cselect_b32 s{S_X}, 7, 15\ns_cselect_b32 s{S_Y}, 64, 0\ns_cselect_b32 s{R_LD+2}, 8, 7")
        p(f"v_and_b32 v{VT+1}, s{S_X}, v{VT+1}\nv_lshl_add_u32 v{VD}, v{VT+1}, 4, v{VT}\nv_xor_b32 v{VD+1}, s{S_Y}, v{VD}")
        p(f"s_lshl_b32 s{S_CSTR}, s{S_CSTR}, 7")
        if c.rot1 == 1: p(f"s_mov_b32 s{S_J}, s{S_C2}")
        if c.rot1 == 3: p(f"s_and_b32 s{S_J}, s{S_XCD}, 6")
        if c.rot1 == 4: p(f"s_lshr_b32 s{S_J}, s{S_XCD}, 1\ns_and_b32 s{S_J}, s{S_J}, 1\ns_mul_i32 s{S_J}, s{S_J}, 3")
        if c.rot1 == 5: p(f"s_min_u32 s{S_J}, s{S_XCD}, 6")
        if c.rot1: p(f"s_mul_i32 s{T}, s{S_J}, s{S_CSTR}\ns_add_u32 s{S_SOFF}, s{S_SOFF}, s{T}\ns_mul_i32 s{S_CW}, s{S_CSTR}, 7")
        p(f"s_mul_i32 s{R_LD+2}, s{R_LD+2}, {256*896}\ns_mov_b32 s{R_LD+3}, 0x20000\ns_lshl_b32 s{S_Y}, 7168, s{S_WT}")
        p(f"s_sub_u32 s{T}, s{S_Y}, 1024\nv_add_u32 v{VD+1}, s{T}, v{VD+1}\ns_lshl_b32 s{T}, s{T}, 1")
        p(f"v_add_u32 v{VD+2}, s{T}, v{VD}\nv_add_u32 v{VD+3}, s{T}, v{VD+1}\ns_lshl_b32 s{T}, s{S_Y}, 2")
        for i in range(4): p(f"v_add_u32 v{VD+4+i}, s{T}, v{VD+i}")
        p(f"s_cmp_ge_u32 s{S_WAVE}, 4\ns_cbranch_scc1 L_roleB")
    def loader_base(self):
        self.p(f"s_cmp_eq_u32 s{S_WT}, 0\ns_cselect_b32 s{R_LD}, s{P_U}, s{P_W1}\ns_cselect_b32 s{R_LD+1}, s{P_U+1}, s{P_W1+1}")
    def dma_chunk(self, n, T, ctok):
        r = []
        for i in range(8):
            q = Prog()
            if i % 4 == 0: q(f"s_add_u32 m0, s{S_LDB}, {(3, 4, 1, 2)[n % 4]*SLOT + (i//4)*4096}")
            ctok[n] = q.tok(f"buffer_load_dwordx4 v{VD+i}, {s(R_LD,4)}, s{S_SOFF} offen offset:{(i%4)*1024} lds")
            if i == 7 and n < 6:
                q(f"s_add_u32 s{S_SOFF}, s{S_SOFF}, s{S_CSTR}")
                if self.c.rot1: q(f"s_cmp_eq_u32 s{S_J}, {6-n}\ns_cselect_b32 s{T}, s{S_CW}, 0\ns_sub_u32 s{S_SOFF}, s{S_SOFF}, s{T}")
            r.append(q.items)
        return r
    def role_start(self, b=False):
        p = self.p
        p.reset()
        if self.c.prefetch_code and not self.c.pf_h: p.items.append(Marker("pending", ("vmem", {"v255"})))
        if b:
            p.items.append(Marker("pending", ("smem", {f"s{B_LDT}", f"s{B_DSK}"})))
            for i in range(6): p.items.append(Marker("pending", ("vmem", {f"v{B_VP+i}"})))
        else:
            p.items.append(Marker("pending", ("smem", {f"s{i}" for i in range(4, 36)})))
    def load_epoch(self):
        self.p(f"s_load_dword s{S_TAG}, {s(P_WS,2)}, {WS_EPOCH}\ns_mov_b32 s{R_WS}, s{P_WS}\ns_mov_b32 s{R_WS+1}, s{P_WS+1}")
    def make_tag(self):
        self.p(f"s_add_u32 s{S_TAG}, s{S_TAG}, {TAGC}\ns_mov_b32 s{S_TAG2}, s{S_TAG}")
    def flag_load(self, which, soff, n, va, q=None):
        if which in self.c.spoll:
            w = 8 if n <= 8 else 16
            txt = f"s_buffer_load_dwordx{w} {s(S_SP,w)}, {s(R_WS,4)}, s{soff} glc"
        else:
            txt = f"buffer_load_dword v{va+1}, v{va}, {s(R_WS,4)}, s{soff} offen sc1"
        (q or self.p)(txt)
        return (which, txt, n, va)
    def flag_check(self, fl, vt, sleep=0, on_miss=None):
        which, txt, n, va = fl
        p = self.p
        if sleep: txt = f"s_sleep {sleep}\n" + txt
        if which not in self.c.spoll:
            return self.tagged_check(txt, [va + 1], vt, on_miss)
        l0, l1, l2 = self.lab("chk"), self.lab("retry"), self.lab("chkd")
        p(f"s_mov_b32 s{S_CNT}, 0")
        p.label(l0)
        p("s_waitcnt lgkmcnt(0)")
        for i in range(0, n - 2, 2): p(f"s_cmp_eq_u64 {s(S_SP+i,2)}, {s(S_TAG,2)}\ns_cbranch_scc0 {l1}")
        if n & 1: p(f"s_cmp_eq_u32 s{S_SP+n-1}, s{S_TAG}\ns_cbranch_scc1 {l2}")
        else: p(f"s_cmp_eq_u64 {s(S_SP+n-2,2)}, {s(S_TAG,2)}\ns_cbranch_scc1 {l2}")
        p.alt_begin()
        p.label(l1)
        if on_miss:
            l3 = self.lab("again")
            p(f"s_cmp_lg_u32 s{S_CNT}, 0\ns_cbranch_scc1 {l3}")
            p.alt_begin(); on_miss(); p.alt_end()
            p.label(l3)
        p(txt)
        p(f"s_add_u32 s{S_CNT}, s{S_CNT}, 1\ns_cmp_le_u32 s{S_CNT}, {POLL_MAX}\ns_cbranch_scc1 {l0}\ns_waitcnt lgkmcnt(0)")
        p.alt_end()
        p.label(l2)

    def fin_addr(self, ps, F, part):
        p, VT, T = self.p, F["VT"], S_T
        if part == 0:
            p(f"v_bfe_u32 v{VT+1}, v0, 2, 1\nv_lshrrev_b32 v{VT+2}, 3, v0\nv_and_b32 v{VT+3}, 3, v0\nv_lshl_add_u32 v{VT+4}, v{VT+1}, 4, v{VT+2}")
            p(f"v_mul_u32_u24 v{F['XO']}, 896, v{VT+4}\nv_lshl_add_u32 v{F['XO']}, v{VT+3}, 4, v{F['XO']}\nv_lshlrev_b32 v{F['STA']}, 3, v{VT+4}")
            a = F["PA"]
            p(f"v_xor_b32 v{a}, s{S_WF}, v{VT+1}\nv_lshlrev_b32 v{a}, 3, v{a}\nv_lshl_add_u32 v{a}, v{VT+3}, 1, v{a}\nv_xor_b32 v{a}, v{a}, v{VT+2}")
            p(f"s_lshl3_add_u32 s{T}, s{S_WT}, {(L_RING+ps*SLOT)//256}\nv_add_u32 v{VT+4}, s{T}, v{VT+4}\nv_lshlrev_b32 v{VT+4}, 8, v{VT+4}\nv_lshl_add_u32 v{a}, v{a}, 4, v{VT+4}\nv_xor_b32 v{a+1}, 16, v{a}")
        else:
            p(f"s_mul_i32 s{T}, s{F['w']}, 2304\ns_add_u32 s{T}, s{T}, {L_STR+1152*ps}\nv_mul_u32_u24 v{F['SA']}, 288, v{VT+3}\nv_and_b32 v{VT+4}, 60, v0\nv_add3_u32 v{F['SA']}, v{F['SA']}, v{VT+4}, s{T}")
            x, t = F["sXO"], F["sST"]
            p(f"s_lshl3_add_u32 s{x}, s{S_R2}, s{S_WT}\ns_add_u32 s{x}, s{x}, {4*ps}\ns_lshl_b32 s{t}, s{x}, 6\ns_add_u32 s{t}, s{t}, {WS_STAT}\ns_mul_i32 s{x}, s{x}, {8*896}\ns_lshl1_add_u32 s{T}, s{S_C2}, s{S_WF}\ns_lshl_b32 s{T}, s{T}, 6\ns_add_u32 s{x}, s{x}, s{T}")
    def fin_loads(self, F):
        self.p(f"buffer_load_dword v{F['RG']}, v{F['STA']}, {s(R_WS,4)}, s{F['sST']} offen sc1\nbuffer_load_dwordx4 {v(F['XI'],4)}, v{F['XO']}, {s(R_LD,4)}, s{F['sXO']} offen")
    def fin_prep(self, F):
        q = Prog(); r, c_, x = F["RG"], F["RC"], F["XF"]
        q(f"v_and_b32 v{r}, 0xffff0000, v{r}\nv_rcp_f32 v{r}, v{r}")
        for j in range(4): q(f"v_lshlrev_b32 v{x+2*j}, 16, v{F['XI']+j}\nv_and_b32 v{x+2*j+1}, 0xffff0000, v{F['XI']+j}")
        q(f"v_mul_f32 v{c_}, {LOG2E | 0x80000000}, v{r}\nv_mul_f32 v{c_+1}, {LOG2E | 0x80000000}, v{r}")
        return q.items
    def fin_sread(self, F):
        for i in range(4): self.p(f"ds_read_b32 v{F['SV']+i}, v{F['SA']} offset:{64*i}")
    def fin_sprep(self, F):
        q = Prog(); f = F["SF"]
        for i in range(4): q(f"v_lshlrev_b32 v{f+2*i}, 16, v{F['SV']+i}\nv_and_b32 v{f+2*i+1}, 0xffff0000, v{F['SV']+i}")
        for i in range(8): q(f"v_mul_f32 v{f+i}, v{f+i}, v{F['RG']}")
        return q.items
    def fin_out(self, F, fill=()):
        p, b = self.p, F["PV"]
        for w in range(4):
            for e in range(2): p(f"ds_read_b128 {v(b+8*w+4*e,4)}, v{F['PA']+e} offset:{8192*w}")
        p.extend(list(fill))
        for i in range(0, 8, 2): p(f"v_pk_add_f32 {v(b+i,2)}, {v(b+i,2)}, {v(b+8+i,2)}")
        for i in range(0, 8, 2): p(f"v_pk_add_f32 {v(b+16+i,2)}, {v(b+16+i,2)}, {v(b+24+i,2)}")
        for i in range(0, 8, 2): p(f"v_pk_add_f32 {v(b+i,2)}, {v(b+i,2)}, {v(b+16+i,2)}")
        for i in range(0, 8, 2): p(f"v_pk_mul_f32 {v(b+8+i,2)}, {v(b+i,2)}, {v(F['RC'],2)}")
        for i in range(8): p(f"v_exp_f32 v{b+8+i}, v{b+8+i}")
        for i in range(0, 8, 2): p(f"v_pk_mul_f32 {v(b+i,2)}, {v(b+i,2)}, {v(F['SF']+i,2)}")
        for i in range(0, 8, 2): p(f"v_pk_add_f32 {v(b+8+i,2)}, {v(b+8+i,2)}, 1.0 op_sel_hi:[1,0]")
        for i in range(8): p(f"v_rcp_f32 v{b+8+i}, v{b+8+i}")
        for i in range(0, 8, 2): p(f"v_pk_fma_f32 {v(b+i,2)}, {v(b+i,2)}, {v(b+8+i,2)}, {v(F['XF']+i,2)}")
        for i in range(4): p(f"v_cvt_pk_bf16_f32 v{b+16+i}, v{b+2*i}, v{b+2*i+1}")
        p(f"buffer_store_dwordx4 {v(b+16,4)}, v{F['XO']}, {s(F['OUT'],4)}, s{F['sXO']} offen {self.c.out_fl}")

    def role_a(self):
        p, c = self.p, self.c
        self.role_start(); self.stamp_begin("A")
        VXA, VWA, VW2A, VW2D, VL16, VFL, VC1, VT = 9, 13, 15, 19, 21, 22, 2, 24
        ACC, FR, W2R, AB = 32, 96, 96, 192
        S_ACTW, S_FAW, S_FAR, S_RING, S_ACTR, S_W2B, S_Z = range(70, 77)
        R_OUT = 64
        S_X = 78; S_Y = 79
        T = S_T
        if "K" in c.diag: p("s_memtime s[100:101]")
        self.loader_base()
        ctok = {}
        dq = []
        for n in range(c.a_chunks): dq += self.dma_chunk(n, T, ctok)
        self.stamp("dma0", sets=(1,))
        if "k" in c.diag.lower():
            self.stamp("karg", sets=(1,)); p("s_waitcnt lgkmcnt(0)\ns_mov_b32 s6, s100")
        if c.a_delay: p(f"s_waitcnt lgkmcnt(0)"); p("\n".join(["s_nop 15"] * c.a_delay))
        for it in dq[:c.nfirst]: p.extend(it)
        self.load_epoch()
        if c.hops:
            p(f"s_mov_b64 exec, 0\ns_cmp_eq_u32 s{S_WAVE}, 3\ns_cbranch_scc1 L_hop0")
        p("s_branch L_bodyA")
        role = self.role
        if c.h_near: self.head_h()
        self.role_b()
        self.role = role
        p.label("L_bodyA")
        p.reset()
        p.items.append(Marker("pending", ("smem", {f"s{S_TAG}", "s94", "s95"})))
        if c.prefetch_code and not c.pf_h: p.items.append(Marker("pending", ("vmem", {"v255"})))
        for i in range(c.nfirst): p.items.append(Marker("pending", ("vmem", set(), ctok[i // 8] if i % 8 == 7 else None)))
        if c.hops: p("s_mov_b64 exec, -1")
        p(f"v_and_b32 v{VT}, 31, v0\nv_lshrrev_b32 v{VT+1}, 5, v0\nv_bfe_u32 v{VT+2}, v0, 1, 3\nv_xor_b32 v{VT+1}, v{VT+1}, v{VT+2}\nv_lshlrev_b32 v{VT+1}, 4, v{VT+1}")
        p(f"v_lshl_add_u32 v{VT+1}, v{VT}, 7, v{VT+1}\ns_add_u32 s{S_X}, s{S_WT}, 12\ns_lshl_b32 s{S_X}, s{S_X}, 13\nv_add_u32 v{VXA}, s{S_X}, v{VT+1}")
        for k in range(1, 4): p(f"v_xor_b32 v{VXA+k}, {32*k}, v{VXA}")
        p(f"s_lshl_b32 s{S_RING}, s{S_WAVE}, 13\ns_add_u32 s{S_RING}, s{S_RING}, {L_RING}")
        p(f"v_bfe_u32 v{VT}, v0, 4, 1\nv_lshlrev_b32 v{VT}, 5, v{VT}\nv_and_b32 v{VT+1}, 3, v0\nv_lshl_add_u32 v{VT}, v{VT+1}, 3, v{VT}")
        p(f"v_bfe_u32 v{VT+1}, v0, 2, 2\nv_lshrrev_b32 v{VT+2}, 5, v0")
        p(f"v_lshl_add_u32 v{VT+3}, v{VT+2}, 3, v{VT+1}\nv_lshl_add_u32 v{VT+3}, v{VT+3}, 8, v{VT}")
        p(f"s_lshl1_add_u32 s{S_Y}, s{S_WF}, 0x600\nv_xor_b32 v{VT+4}, s{S_Y}, v{VT+1}\nv_lshl_add_u32 v{VWA}, v{VT+4}, 6, v{VT+3}")
        if c.qperm: p(f"s_lshl1_add_u32 s{S_Z}, s{S_RT}, s{S_WT}\ns_and_b32 s{S_Z}, s{S_Z}, 3\ns_lshl_b32 s{S_Y}, s{S_Z}, 5\nv_xor_b32 v{VWA}, s{S_Y}, v{VWA}\ns_lshl_b32 s{S_Z}, s{S_Z}, 4")
        else: p(f"s_mov_b32 s{S_Z}, 0")
        p(f"v_xor_b32 v{VWA+1}, 64, v{VWA}")
        p(f"v_lshl_add_u32 v{VT+3}, v{VT+2}, 2, v{VT+1}\nv_lshl_add_u32 v{VT+3}, v{VT+3}, 7, v{VT}")
        p(f"v_lshrrev_b32 v{VT+4}, 1, v{VT+1}\nv_lshl_add_u32 v{VT+3}, v{VT+4}, 6, v{VT+3}\nv_add_u32 v{VW2A}, s{S_RING}, v{VT+3}")
        srd(p, R_2, P_W2, 1792 * 896)
        VB1 = 30
        p(f"s_lshl1_add_u32 s{S_Y}, s{S_CT}, s{S_WF}\ns_lshl_b32 s{S_X}, s{S_Y}, 7\nv_xor_b32 v{VB1+1}, s{S_Z}, v0\nv_lshl_add_u32 v{VB1}, v{VB1+1}, 1, s{S_X}\nglobal_load_ushort v{VB1}, v{VB1}, {s(P_B1,2)}")
        self.stamp("setup", sets=(1,))
        for it in dq[c.nfirst:c.pre_dma]: p.extend(it)
        VB1 = 30
        q = p
        VGA = 26
        q(f"v_xor_b32 v{VW2A+1}, 64, v{VW2A}\nv_add_u32 v{VW2A+2}, 0x10000, v{VW2A}\nv_xor_b32 v{VW2A+3}, 64, v{VW2A+2}")
        if c.br0 >= 0: q(f"v_xor_b32 v{VFL}, 0x10000, v{VW2A}\nv_xor_b32 v{VFL+1}, 0x10000, v{VW2A+1}")
        late = Prog(); q = late
        q(f"s_lshl1_add_u32 s{T+1}, s{S_RT}, s{S_WT}\ns_lshl_b32 s{S_X}, s{T+1}, 9\ns_add_u32 s{S_X}, s{S_X}, {WS_STAT}\nv_lshl_add_u32 v{VGA}, v0, 3, s{S_X}")
        q(f"s_lshl1_add_u32 s{S_Y}, s{S_CT}, s{S_WF}\ns_lshl_b32 s{S_X}, s{S_Y}, 9\ns_add_u32 s{S_X}, s{S_X}, {WS_CS}\nv_lshl_add_u32 v{VGA+1}, v{VB1+1}, 3, s{S_X}")
        q(f"s_mul_i32 s{S_ACTW}, s{T+1}, 28\ns_add_u32 s{S_ACTW}, s{S_ACTW}, s{S_Y}\ns_lshl_b32 s{S_ACTW}, s{S_ACTW}, 13\ns_add_u32 s{S_ACTW}, s{S_ACTW}, {WS_ACT}")
        q(f"s_mul_i32 s{S_X}, s{S_Y}, 37\ns_lshr_b32 s{S_X}, s{S_X}, 8\ns_mul_i32 s{S_X}, s{S_X}, 25\ns_add_u32 s{S_X}, s{S_X}, s{S_Y}")
        q(f"s_lshl_b32 s{S_FAW}, s{T+1}, 9\ns_add_u32 s{S_FAW}, s{S_FAW}, s{S_X}\ns_lshl2_add_u32 s{S_FAW}, s{S_FAW}, {WS_FA}")
        q(f"s_lshl2_add_u32 s{S_R2}, s{S_XCD}, s{S_JR}")
        q(f"s_lshl4_add_u32 s{S_FAR}, s{S_R2}, s{S_WAVE}\ns_lshl_b32 s{S_FAR}, s{S_FAR}, 7\ns_add_u32 s{S_FAR}, s{S_FAR}, {WS_FA}")
        q(f"v_lshlrev_b32 v{VL16}, 4, v0")
        if "A" not in c.spoll: q(f"v_min_u32 v{VFL}, 6, v0\nv_lshlrev_b32 v{VFL}, 2, v{VFL}")
        q(f"v_lshrrev_b32 v{VT+4}, 3, v0\nv_mul_u32_u24 v{VT+4}, 896, v{VT+4}\nv_bfe_u32 v{VT+1}, v0, 4, 1\nv_lshlrev_b32 v{VT+1}, 2, v{VT+1}\nv_xor_b32 v{VT+1}, v0, v{VT+1}\nv_and_b32 v{VT+1}, 7, v{VT+1}")
        q(f"v_lshl_add_u32 v{VW2D}, v{VT+1}, 4, v{VT+4}\nv_add_u32 v{VW2D+1}, {7168-1024}, v{VW2D}")
        q(f"s_lshl2_add_u32 s{S_ACTR}, s{S_R2}, s{S_WAVE}\ns_mul_i32 s{S_ACTR}, s{S_ACTR}, {28*2048}\ns_add_u32 s{S_ACTR}, s{S_ACTR}, {WS_ACT}")
        q(f"s_mul_i32 s{S_W2B}, s{S_WAVE}, {448*7}\ns_add_u32 s{S_W2B}, s{S_W2B}, s{S_C2}\ns_lshl_b32 s{S_W2B}, s{S_W2B}, 7")
        q(f"s_lshl2_add_u32 s{S_X}, s{S_WAVE}, {L_CNT}\nv_mov_b32 v{VT+5}, s{S_X}")
        lateg = [[it] for it in late.items]
        S_AO = list(range(88, 95)); S_WO = [34, 35, 48, 49, 50, 51, 77]; S_ROT = 95
        if c.rot2:
            q = Prog()
            if c.rot2 == 1: q(f"s_mov_b32 s{S_ROT}, s{S_C2}")
            else: q(f"s_lshl1_add_u32 s{S_ROT}, s{S_JR}, s{S_C2}\ns_cmp_ge_u32 s{S_ROT}, 7\ns_cselect_b32 s{T+1}, 7, 0\ns_sub_u32 s{S_ROT}, s{S_ROT}, s{T+1}")
            lateg.append(q.items)
            for i in range(7):
                q = Prog()
                q(f"s_cmp_ge_u32 s{S_ROT}, {7-i}\ns_cselect_b32 s{T+1}, {i-7}, {i}\ns_add_u32 s{T+1}, s{T+1}, s{S_ROT}")
                lateg.append(q.items); q = Prog()
                q(f"s_lshl_b32 s{S_AO[i]}, s{T+1}, 13\ns_add_u32 s{S_AO[i]}, s{S_AO[i]}, s{S_ACTR}\ns_mul_i32 s{S_WO[i]}, s{T+1}, {64*896}\ns_add_u32 s{S_WO[i]}, s{S_WO[i]}, s{S_W2B}")
                lateg += [[it] for it in q.items]
        S_Q = [S_ROT, S_W2B, S_ACTR, S_CT]
        if c.qperm:
            assert c.rot2
            q = Prog()
            for i in range(4): q(f"s_xor_b32 s{S_Q[i]}, s{S_JR}, {i}\ns_mul_i32 s{S_Q[i]}, s{S_Q[i]}, {16*896}")
            lateg += [[it] for it in q.items]
        self.make_tag()
        p(f"v_mov_b32 v{VT}, s{S_TAG}")
        GR = AB
        gloads = f"buffer_load_dwordx2 {v(GR,2)}, v{VGA}, {s(R_WS,4)}, 0 offen sc1\nbuffer_load_dwordx2 {v(GR+2,2)}, v{VGA+1}, {s(R_WS,4)}, 0 offen sc1"
        piece = [0, 1, 2, 0, 1, 2, 0]; pred = {3: 0, 4: 1, 5: 2, 6: 3}
        if c.br0 >= 0:
            piece = [-2, 0, 1, 2, 0, 1, 2]; pred = {4: 1, 5: 2, 6: 3}
            assert c.r_early == 4 and "A" in c.spoll
        wtok, rtok = {}, {}
        w2reg = lambda n: W2R + 8 * ((6, 7, 8, 9, 10, 11, 2, 3, 4, 5, 0, 1)[n] if n < 12 else 6 + (n - 12) % 5)
        areg = lambda n: AB + 8 * (n % 8) if n < 22 else W2R + 8 * (n - 22)
        xtra = lambda n: 24 <= n < 24 + c.nx
        def dma_w2(n):
            q = Prog(); gi = n >> 2
            if gi in pred and not xtra(n): q.wait(rtok[4 * pred[gi] + (n & 3)])
            q((f"s_add_u32 m0, s{T+1}, {(n&3)*2048}\n" if xtra(n) else f"s_add_u32 m0, s{S_RING}, {piece[gi]*SLOT + (n&3)*2048}\n") + (f"s_add_u32 s{S_Z}, s{S_WO[n%7]}, s{S_Q[n//7]}" if c.qperm else f"s_add_u32 s{S_Z}, s{S_WO[n%7]}, {16*(n//7)*896}" if c.rot2 else f"s_add_u32 s{S_Z}, s{S_W2B}, {(64*(n%7) + 16*(n//7))*896}"))
            if "5" in c.diag and n >= 24: wtok[n] = wtok[23]; return [[], []]
            q(f"buffer_load_dwordx4 v{VW2D}, {s(R_2,4)}, s{S_Z} offen lds")
            q2 = Prog()
            wtok[n] = q2.tok(f"buffer_load_dwordx4 v{VW2D+1}, {s(R_2,4)}, s{S_Z} offen offset:1024 lds")
            return [q.items, q2.items]
        def read_w2(n):
            q = Prog(); pc = -2 if xtra(n) else piece[n >> 2]
            if n == max(c.r_early, c.r2):
                keep, self.p = self.p, q
                self.lds_wait(VT + 5, VT + 1, 4)
                self.p = keep
            if n >= c.bw2[-1]: q.wait(wtok[n])
            for di in range(2):
                for h in range(2):
                    rtok[n] = q.tok(f"ds_read_b64_tr_b16 {v(w2reg(n)+4*di+2*h,2)}, v{(VFL if pc < 0 else VW2A+2*(pc>>1))+di} offset:{(pc&1)*SLOT + (n&3)*2048 + h*1024}")
            return [q.items]
        nw = [c.bw2[-1], 0]
        def w2_ops(k, maxread):
            r = []
            for _ in range(k):
                n = nw[0]
                if n >= 24: break
                for m in (n, n + 1):
                    if (m >> 2) in pred and m < 24:
                        need = 4 * pred[m >> 2] + (m & 3)
                        assert m > n or need < maxread
                        while nw[1] <= need and nw[1] < maxread: r += read_w2(nw[1]); nw[1] += 1
                r += dma_w2(n); nw[0] += 1
            return r
        def reads1(gs):
            n, k = gs >> 2, gs & 3
            base = FR + 16 * (gs % 3); so = (n & 1) * SLOT
            r = []
            for fi in range(2):
                for h in range(2):
                    r.append(I(f"ds_read_b64_tr_b16 {v(base+4*fi+2*h,2)}, v{VWA+fi} offset:{so+16384+k*4096+h*1024}"))
                r.append(I(f"ds_read_b128 {v(base+8+4*fi,4)}, v{VXA+k} offset:{so+fi*4096}"))
            return r
        def mfma1(gs):
            base = FR + 16 * (gs % 3)
            r = []
            for fi, ti in ((0, 0), (0, 1), (1, 0), (1, 1)):
                a = v(ACC + 32 * fi + 16 * ti, 16)
                r.append(I(f"v_mfma_f32_32x32x16_bf16 {a}, {v(base+4*fi,4)}, {v(base+8+4*ti,4)}, {'0' if gs == 0 else a}"))
            return r
        self.stamp("dmapre", sets=(1,))
        if c.hops:
            p("s_mov_b64 exec, 0")
            for w in range(3): p(f"s_cmp_eq_u32 s{S_WAVE}, {w}\ns_cbranch_scc1 L_hop{w+1}")
            p("s_branch L_hop4")
            p.label("L_hopped")
            p("s_mov_b64 exec, -1")
        nd = c.pre_dma
        nl = (len(lateg) + 3) // 4
        for n in range(7):
            if n < c.a_chunks: p.wait(ctok[n])
            if n == 0: self.stamp("c0", sets=(1,))
            p("s_waitcnt lgkmcnt(0)\ns_barrier")
            self.stamp(f"bar{n}", sets=(0, 1) if n in (0, 3, 6) else (1,))
            if n in (2, 4, 6):
                for r in list(range(VXA, VXA + 4)) + [VWA, VWA + 1]: p(f"v_xor_b32 v{r}, 0x10000, v{r}")
            upto = min(len(dq), 8 * (n + 4), max(nd + c.dma_per[n], 8 * (n + 2)))
            fill = dq[nd:upto]; nd = upto
            if n == c.gran_at:
                fill = fill + [[I(x)] for x in gloads.split("\n")]
            if n == c.r_at:
                while nw[1] < c.r_early:
                    fill = fill + [[it] for it in read_w2(nw[1])[0]]; nw[1] += 1
            last = []
            if n == 6:
                while nw[1] < c.r2:
                    its = read_w2(nw[1])[0]
                    if nw[1] < 6: fill = fill + [[it] for it in its]
                    else: last += its
                    nw[1] += 1
            g0 = 4 * n
            r0, r1, r2, r3 = (reads1(g0 + k) for k in range(4))
            body = []
            if n == 0: body.append(r0 + r1)
            else:
                mm = mfma1(g0 - 1)
                body += [r0, [mm[0]] + r1[:3], [mm[1]] + r1[3:], [mm[2]], [mm[3]]]
            for k, rd in ((0, r2), (1, r3), (2, None)):
                mm = mfma1(g0 + k)
                body += [[mm[0]] + (rd[:3] if rd else []), [mm[1]] + (rd[3:] if rd else []), [mm[2]], [mm[3]]]
            if n == 6:
                body[-5] = body[-5] + last[:4]; body[-4] = body[-4] + last[4:]
                body[c.b7_at] = body[c.b7_at] + [I(f"s_waitcnt lgkmcnt({len(last) if c.bw2[-1] <= 18 else 0})"), I("s_barrier")]
            merged = []
            j = 0
            for i, it in enumerate(body):
                grp = list(it)
                nb_ = len(body) - (5 if n == 6 else 0)
                while j < min(len(fill), (i + 1) * len(fill) // nb_): grp += fill[j]; j += 1
                merged.append(grp)
            lt = lateg[nl * n: nl * (n + 1)] if n < 4 else []
            p.extend(interleave(merged, lt))
        mm = mfma1(27)
        p.extend(mm[:1])
        self.tagged_check(gloads, [GR + 1, GR + 3], VT + 1)
        self.stamp("granules", sets=(0, 1, 3))
        FA_, FB_ = AB + 8, AB + 12
        q = Prog()
        q(f"s_mov_b32 s{S_X}, 0x01000100\nv_perm_b32 v{FB_}, v{GR}, v{GR}, s{S_X}\nv_lshrrev_b32 v{FB_+1}, 16, v{GR}\nv_xor_b32 v{FB_}, 0x80008000, v{FB_}")
        q(f"v_cvt_pk_bf16_f32 v{VT+1}, v{GR+2}, v{GR+2}\nv_mov_b32 v{FB_+2}, 0\nv_and_b32 v{VT+1}, 0xffff0000, v{VT+1}\nv_mov_b32 v{FB_+3}, 0\nv_sub_f32 v{VT+1}, v{GR+2}, v{VT+1}")
        q(f"v_mov_b32 v{FA_+1}, v{VB1}\nv_cvt_pk_bf16_f32 v{FA_}, v{GR+2}, v{VT+1}\nv_mov_b32 v{FA_+2}, 0\nv_mov_b32 v{FA_+3}, 0\nv_and_b32 v{VT+1}, 0xffff0000, v{GR}")
        q(f"v_permlane32_swap_b32 v{FB_}, v{FB_+2}\nv_permlane32_swap_b32 v{FB_+1}, v{FB_+3}\nv_permlane32_swap_b32 v{FA_}, v{FA_+2}\nv_permlane32_swap_b32 v{FA_+1}, v{FA_+3}")
        q(f"v_rcp_f32 v{VT+1}, v{VT+1}")
        p.extend(interleave(mm[1:], q.items))
        for fi, ti in ((0, 0), (0, 1), (1, 0), (1, 1)):
            a = v(ACC + 32 * fi + 16 * ti, 16)
            p(f"v_mfma_f32_32x32x8_bf16 {a}, {v(FA_+2*fi,2)}, {v(FB_+2*ti,2)}, {a}")
            if (fi, ti) == (0, 0): p(f"v_mul_f32 v{VC1}, {LOG2E}, v{VT+1}\nv_mul_f32 v{VC1+2}, {LOG2E}, v{VT+1}")
            if (fi, ti) == (0, 1): p(f"v_permlane32_swap_b32 v{VC1}, v{VC1+2}")
            if (fi, ti) == (1, 0) and c.mish_pk: p(f"v_mov_b32 v{VC1+1}, v{VC1}\nv_mov_b32 v{VC1+3}, v{VC1+2}")
        MT, MO = AB + 16, AB + 48
        def mish_group(a, ti, o, tset):
            t = MT + 16 * tset; u = t + 8
            r = []
            if c.mish_pk:
                for i in range(0, 8, 2): r.append(f"v_pk_mul_f32 {v(t+i,2)}, {v(a+i,2)}, {v(VC1+2*ti,2)}")
                for i in range(8): r.append(f"v_exp_f32 v{t+i}, v{t+i}")
                for i in range(0, 8, 2): r.append(f"v_pk_fma_f32 {v(u+i,2)}, {v(t+i,2)}, 0.5, 1.0 op_sel_hi:[1,0,0]")
                for i in range(0, 8, 2): r.append(f"v_pk_fma_f32 {v(u+i,2)}, {v(t+i,2)}, {v(u+i,2)}, 1.0 op_sel_hi:[1,1,0]")
                for i in range(8): r.append(f"v_rcp_f32 v{u+i}, v{u+i}")
                for i in range(0, 8, 2): r.append(f"v_pk_fma_f32 {v(u+i,2)}, {v(a+i,2)}, {v(u+i,2)}, {v(a+i,2)} neg_lo:[1,0,0] neg_hi:[1,0,0]")
            else:
                for i in range(8): r.append(f"v_mul_f32 v{t+i}, v{a+i}, v{VC1+2*ti}")
                for i in range(8): r.append(f"v_exp_f32 v{t+i}, v{t+i}")
                for i in range(8): r.append(f"v_fma_f32 v{u+i}, v{t+i}, 0.5, 1.0")
                for i in range(8): r.append(f"v_fma_f32 v{u+i}, v{t+i}, v{u+i}, 1.0")
                for i in range(8): r.append(f"v_rcp_f32 v{u+i}, v{u+i}")
                for i in range(8): r.append(f"v_fma_f32 v{u+i}, -v{a+i}, v{u+i}, v{a+i}")
            if "1" in c.diag: r = r[:len(r) // 2]; u = a
            for i in range(4): r.append(f"v_cvt_pk_bf16_f32 v{o+i}, v{u+2*i}, v{u+2*i+1}")
            return [I(x) for x in r]
        stok = {}
        def own_flag(st, q):
            if "A" in c.sflag:
                q(f"s_add_u32 s{T}, s{S_FAW}, {512*st}"); q.wait(stok[st]); q(f"s_atomic_swap s{S_TAG}, {s(R_WS,2)}, s{T}")
                return
            q.wait(stok[st])
            q(f"s_mov_b64 exec, 1\nbuffer_store_dword v{VT}, off, {s(R_WS,4)}, s{S_FAW} offset:{512*st} {c.fa_st}\ns_mov_b64 exec, -1")
        body = []
        gi = 0
        for st in range(4):
            for ti in range(2):
                o = MO + 4 * (gi % 4)
                body += mish_group(ACC + 32 * (st >> 1) + 16 * ti + 8 * (st & 1), ti, o, gi & 1)
                q = Prog()
                stok[st] = q.tok(f"buffer_store_dwordx4 {v(o,4)}, v{VL16}, {s(R_WS,4)}, s{S_ACTW} offen offset:{(st&1)*2048+ti*1024} {c.act_st}")
                if gi == 3: q(f"s_add_u32 s{S_ACTW}, s{S_ACTW}, 4096")
                if ti == 1: self.stamp(f"s{st}", q, sets=(3,))
                if ti == 1 and st - c.flag_lag in c.fstages: own_flag(st - c.flag_lag, q); self.stamp(f"f{st-c.flag_lag}", q, sets=(3,))
                body.append(q.items)
                gi += 1
        k0 = int(len(body) * c.mish_skip)
        p.extend(interleave(body[:k0], [])); p.extend(interleave(body[k0:], w2_ops(c.w2_mish, 12) + [[]]))
        self.stamp("mish", sets=(0, 4))
        rest = [st for st in c.fstages if st >= 4 - c.flag_lag]
        def flags_rest():
            for st in rest: own_flag(st, p)
        if c.prio_a1: p(f"s_setprio {c.prio_a1}")
        p(f"s_load_dwordx2 {s(R_LD,2)}, s[0:1], 0\ns_load_dwordx2 {s(R_OUT,2)}, s[0:1], 104\ns_mov_b32 s{R_LD+2}, {2048*896}\ns_mov_b32 s{R_OUT+2}, {2048*896}\ns_mov_b32 s{R_OUT+3}, 0x20000")
        m0_ = 28 - (c.tail_m if c.tail_ld else 0)
        aord = [(n, ti) for n in range(m0_) for ti in range(2)] + [(n, ti) for ti in range(2) for n in range(m0_, 28)]
        alast = [None]
        def load_act(k):
            for n, ti in aord[2 * k: 2 * k + 2]:
                if "a" in c.diag and n >= 7: continue
                assert n // 7 <= seen[0]
                if alast[0] != n: p(f"s_add_u32 s{S_Y}, s{S_AO[n%7]}, {(n//7)*2048}" if c.rot2 else f"s_add_u32 s{S_Y}, s{S_ACTR}, {(4*(n%7) + n//7)*2048}")
                alast[0] = n
                p(f"buffer_load_dwordx4 {v(areg(n)+4*ti,4)}, v{VL16}, {s(R_WS,4)}, s{S_Y} offen offset:{ti*1024} {c.act_ld}")
        seen = [-1, 0]
        def next_flags():
            st = min(x for x in (c.cstages or c.fstages) if x > seen[0])
            if st != seen[1]: p(f"s_add_u32 s{S_FAR}, s{S_FAR}, {512*(st-seen[1])}"); seen[1] = st
            return self.flag_load("A", S_FAR, 7, VFL)
        def check_flags(f, **kw):
            self.flag_check(f, VT + 1, **kw); seen[0] = seen[1]
            self.stamp(f"act{seen[0]}", sets=(0, 2, 3))
        def reads_upto(m):
            while nw[1] < min(m, 28): p.extend(read_w2(nw[1])[0]); nw[1] += 1
        def dmas_upto(m):
            while nw[0] < min(m, 28):
                if nw[0] == 24 and c.nx:
                    p(f"s_mul_i32 s{T+1}, s{S_WAVE}, {2048*c.nx}\ns_add_u32 s{T+1}, s{T+1}, {L_X}\ns_sub_u32 s{T}, s{T+1}, s{S_RING}\nv_add_u32 v{VFL}, s{T}, v{VW2A}\nv_add_u32 v{VFL+1}, s{T}, v{VW2A+1}")
                    p(f"v_and_b32 v14, 3, v0\nv_lshlrev_b32 v14, 2, v14\nv_add_u32 v14, {L_CNT}, v14")
                    self.lds_wait(14, VT + 1, 1)
                if (nw[0] >> 2) in pred and not xtra(nw[0]): assert nw[1] > nw[0] - 12
                for it in dma_w2(nw[0]): p.extend(it)
                nw[0] += 1
        D = c.adepth
        lead = c.flead
        fl = None
        na = 0
        for op in c.pre_loop.split():
            k = int(op[1:]) if len(op) > 1 else 0
            if op[0] == "R": reads_upto(k)
            elif op[0] == "D": dmas_upto(k)
            elif op[0] == "F":
                if rest: own_flag(rest.pop(0), p)
            elif op[0] == "W": p("s_waitcnt lgkmcnt(0)")
            elif op[0] == "L": fl = next_flags()
            elif op[0] == "C":
                assert not rest or seen[1] < rest[0]
                check_flags(fl, on_miss=flags_rest if rest else None); fl = None
            elif op[0] == "A":
                while na < k: load_act(na); na += 1
            elif op[0] == "V": p("s_waitcnt vmcnt(0)")
            elif op[0] == "T": self.lds_wait(VT + 5, VT + 1, 1)
            elif op[0] == "P": p(f"s_setprio {k}")
            if op[0] not in "L": self.stamp(op + "_" + str(len(self.stamp_names["A"])), sets=(4,))
        assert D <= na <= 8 and nw[1] >= c.rdepth and not rest
        M0 = nw[0]
        if c.prio_a1 != c.prio_a2: p(f"s_setprio {c.prio_a2}")
        self.stamp("flagA", sets=(0, 2, 3))
        assert D <= 7 and c.rdepth <= 4 and c.tail_m <= 5
        main = p
        VALL = 14
        F = dict(VT=VT, XO=9, PA=10, SA=12, STA=13, XI=184, RG=30, RC=116, XF=100, PV=AB, SV=176, SF=108, w=S_WAVE, sXO=S_ACTW, sST=S_X, OUT=R_OUT)
        f15 = lambda: self.fin_addr(1, F, 0)
        def f16():
            self.fin_addr(1, F, 1)
            if not c.nx: p(f"v_lshlrev_b32 v{VALL}, 2, v{VT+3}\nv_add_u32 v{VALL}, {L_CNT}, v{VALL}")
        def f17():
            p(f"v_and_b32 v{VT+3}, 31, v0\nv_lshrrev_b32 v{VT+1}, 5, v0\nv_and_b32 v{VT+2}, 7, v0\nv_xor_b32 v{VT+1}, v{VT+1}, v{VT+2}\nv_bfe_u32 v{VT+2}, v0, 4, 1\nv_lshl_or_b32 v{VT+1}, v{VT+2}, 3, v{VT+1}")
            p(f"v_lshlrev_b32 v{VT+1}, 4, v{VT+1}\nv_lshl_add_u32 v{VT+1}, v{VT+3}, 8, v{VT+1}\nv_add_u32 v{VD}, s{S_RING}, v{VT+1}")
            for k in range(1, 8): p(f"v_xor_b32 v{VD+k}, {32*k}, v{VD}")
        fin = dict(zip(c.fin_at, (f15, f16, f17, lambda: self.fin_loads(F))))
        tail = []
        for n in range(28):
            mm = []
            for di, ti in ((0, 0), (1, 0), (0, 1), (1, 1)):
                a = v(ACC + 32 * di + 16 * ti, 16)
                mm.append(I(f"v_mfma_f32_32x32x16_bf16 {a}, {v(w2reg(n)+4*di,4)}, {v(areg(n)+4*ti,4)}, {'0' if n == 0 else a}"))
            groups = []
            def grab(fn):
                nonlocal p
                p = self.p = Prog(); fn(); its = p.items; p = self.p = main
                return its
            def split(its):
                cur = []
                for it in its:
                    cur.append(it)
                    if isinstance(it, I) and it.kind in ("vmem", "ds", "valu"): groups.append(cur); cur = []
                if cur: groups.append(cur)
            split(grab(lambda: reads_upto(n + 1 + c.rdepth)))
            if na <= n + D < 28:
                if (n + D) // 7 > seen[0]:
                    groups.append(grab(lambda: check_flags(fl))); fl = None
                split(grab(lambda: load_act(n + D)))
            split(grab(lambda: dmas_upto(min(nw[1] + 12 - c.w2_gap, max(n + 1 + c.w2_lead, M0 + int((n + 1) * c.w2_rate))))))
            if fl is None and min(27, n + D + lead) // 7 > seen[0]:
                def nf():
                    nonlocal fl
                    if "A" in c.spoll: p("s_waitcnt lgkmcnt(0)")
                    fl = next_flags()
                groups.append(grab(nf))
            if n in fin: split(grab(fin[n]))
            if n >= 28 - c.tail_m:
                tail += mm[2:]; mm = mm[:2]
            if c.g2_mix:
                isv = lambda gr: any(isinstance(it, I) and it.kind == "vmem" for it in gr)
                ds = [gr for gr in groups if any(isinstance(it, I) and it.mn.startswith("ds_read_b64_tr") for it in gr)]
                rest = [gr for gr in groups if not any(gr is x for x in ds)]
                nm = len(mm)
                for k in range(nm):
                    p.extend([mm[k]])
                    for gr in ds[k * len(ds) // nm:(k + 1) * len(ds) // nm]: p.extend(gr)
                    for gr in rest[k * len(rest) // nm:(k + 1) * len(rest) // nm]: p.extend(gr)
            else:
                p.extend(mm)
                for gr in groups: p.extend(gr)
            if n in (0, 3, 6, 10, 13, 17, 20): self.stamp(f"n{n}", sets=(0, 2, 4) if n in (0, 13) else (2,))
        pw = lambda ti: [I(f"ds_write_b128 v{VD+4*di+g4}, {v(ACC+32*di+16*ti+4*g4,4)} offset:{ti*SLOT}") for di in range(2) for g4 in range(4)]
        if tail: p.extend(tail[:c.tail_k]); p.extend(interleave(tail[c.tail_k:], pw(0), ratio=c.tail_r))
        else: p.extend(pw(0))
        self.lds_post(VT + 5, VT, 5)
        self.stamp("gemm2", sets=(0, 2, 3))
        w1_ = pw(1); x_ = self.fin_prep(F); s_ = self.fin_sprep(F)
        p.extend(w1_[:4]); self.lds_peek(VT + 5, VT + 2, 7); p.extend(w1_[4:])
        self.lds_post(VT + 5, VT, 6)
        self.stamp("gate", sets=(0, 2, 3))
        self.lds_check(VT + 5, VT + 2, 7, fill=lambda: p.extend(x_[:6]))
        self.fin_sread(F); self.lds_peek(VALL, VT + 1, 6); p.extend(x_[6:])
        self.lds_check(VALL, VT + 1, 6, fill=lambda: p.extend(s_[:5]))
        self.stamp("sin", sets=(0, 2, 3))
        self.fin_out(F, s_[5:])
        self.stamp("end", sets=(0, 2, 3, 4, 9))
        self.stamp_flush(1)
        p("s_endpgm")

    def gather_table(self):
        import numpy as np
        def rb(l):
            u = np.array([l], np.float32).view(np.uint32)
            return int((((u + 0x7FFF + ((u >> 16) & 1)) >> 16) << 16).view(np.float32)[0])
        rows = list(range(8)) + list(range(128, 136)) + [256, 258, 260, 262, 384, 386, 388, 390, 512, 516, 640, 644, 768, 772, 896, 900] + [1024 + 128 * k for k in range(9)]
        pos = {}
        for i, a in enumerate(rows):
            tile, row = i >> 4, i & 15
            for col in range(16): pos[a + 8 * col] = tile * 1024 + ((row >> 2) * 16 + col) * 16 + (row & 3) * 4
        zero = 2 * 1024 + 48 * 16
        at = lambda l: zero if l < 0 else pos[rb(l)]
        at1 = lambda l: zero if l > 1028 else at(l)
        words = []
        for mh in range(2):
            for half in range(2):
                for lane in range(64):
                    hi = 1023 - 8 * (64 * mh + lane)
                    e = [at(hi - i) for i in range(11)]
                    if mh == 0: d = 127 - lane; e += [pos[16 * d + 16], pos[16 * d + 8], zero, zero, zero]
                    elif lane < 16: top = 1055 - 8 * (lane >> 2) - (lane & 3); e += [at1(top - j) for j in (0, 1, 2, 3, 7)]
                    else: e += [zero] * 5
                    e = e[8 * half: 8 * half + 8]
                    words += [e[2 * k] | (e[2 * k + 1] << 16) for k in range(4)]
        return words

    def role_b(self):
        p, c = self.p, self.c
        p.label("L_roleB")
        self.role_start(True); self.stamp_begin("B")
        S_BW, S_LDT, S_DSK, S_STW, S_CHN, S_MH = B_BW, B_LDT, B_DSK, B_STW, S_WF, S_WT
        S_FXR, S_XTR, S_FSW, S_FSR, S_STR = 74, 75, 76, 77, S_CT
        S_X, S_Y = 78, 79
        T = S_T
        VL16, VP, VGT, VG, VSW, VSR, VT = 9, B_VP, 120, 16, 46, 47, 50
        VRW, VTW, VTZ, VTA, VUA, VUW, VCN, VONE, VEXW, VEXR, VTAG, VUZ, VFL = range(32, 45)
        self.load_epoch()
        self.loader_base()
        ctok = {}
        if c.a_chunks < 7:
            if c.rot1: p(f"s_cmp_ge_u32 s{S_J}, {7-c.a_chunks}\ns_cselect_b32 s{T}, {c.a_chunks-7}, {c.a_chunks}\ns_mul_i32 s{T}, s{T}, s{S_CSTR}\ns_add_u32 s{S_SOFF}, s{S_SOFF}, s{T}")
            else: p(f"s_mul_i32 s{T}, s{S_CSTR}, {c.a_chunks}\ns_add_u32 s{S_SOFF}, s{S_SOFF}, s{T}")
        p(f"v_lshlrev_b32 v{VL16}, 4, v0\ns_lshl3_add_u32 s{S_STW}, s{S_STW}, {WS_ST}")
        srd(p, R_2, P_W2, 1792 * 896)
        late = Prog(); q = late
        q(f"s_lshl2_add_u32 s{S_R2}, s{S_XCD}, s{S_JR}")
        q(f"s_lshr_b32 s{T}, s{S_CP}, 5\ns_lshl2_add_u32 s{S_FXR}, s{T}, s{S_BW}\ns_and_b32 s{T}, s{S_CP}, 3\ns_lshl2_add_u32 s{S_FXR}, s{S_FXR}, s{T}\ns_lshl_b32 s{S_FXR}, s{S_FXR}, 7\ns_add_u32 s{S_FXR}, s{S_FXR}, {WS_FX}\ns_lshr_b32 s{T}, s{S_CP}, 4")
        q(f"s_lshl3_add_u32 s{S_XTR}, s{S_CP}, s{S_BW}\ns_lshl_b32 s{S_XTR}, s{S_XTR}, 10\ns_add_u32 s{S_XTR}, s{S_XTR}, {WS_XT}")
        q(f"s_mul_i32 s{S_FSW}, s{S_BW}, 14\ns_add_u32 s{S_FSW}, s{S_FSW}, s{T}\ns_lshl_b32 s{S_FSW}, s{S_FSW}, 7\ns_and_b32 s{T+1}, s{S_CP}, 15\ns_add_u32 s{S_FSW}, s{S_FSW}, s{T+1}\ns_lshl2_add_u32 s{S_FSW}, s{S_FSW}, {WS_FS}")
        q(f"s_lshl1_add_u32 s{T}, s{S_C2}, s{S_CHN}")
        q(f"s_lshr_b32 s{T+1}, s{S_R2}, 3\ns_mul_i32 s{S_FSR}, s{T+1}, 14\ns_add_u32 s{S_FSR}, s{S_FSR}, s{T}\ns_lshl2_add_u32 s{S_FSR}, s{S_FSR}, s{S_JR}\ns_lshl_b32 s{S_FSR}, s{S_FSR}, 7\ns_add_u32 s{S_FSR}, s{S_FSR}, {WS_FS}")
        q(f"s_lshl_b32 s{S_STR}, s{T}, 9\ns_add_u32 s{S_STR}, s{S_STR}, s{S_R2}\ns_lshl1_add_u32 s{S_STR}, s{S_STR}, s{S_MH}\ns_lshl_b32 s{S_STR}, s{S_STR}, 7\ns_add_u32 s{S_STR}, s{S_STR}, {WS_ST}")
        q(f"v_and_b32 v{VT}, 15, v0\nv_lshrrev_b32 v{VT+1}, 4, v0")
        q(f"s_mul_i32 s{T}, s{S_BW}, 8448\nv_mul_u32_u24 v{VT+2}, 528, v{VT}\nv_and_b32 v{VT+3}, 256, v{VL16}\nv_add3_u32 v{VT+2}, v{VT+2}, v{VT+3}, s{T}\nv_lshrrev_b32 v{VT+3}, 5, v0\nv_lshl_add_u32 v{VSR}, v{VT+3}, 4, v{VT+2}")
        q(f"s_lshl_b32 s{T}, s{S_BW}, 13\nv_add_u32 v{VEXW}, s{T}, v{VL16}")
        q(f"s_mul_i32 s{T}, s{S_BW}, 3072\ns_add_u32 s{T}, s{T}, {L_RAW}\nv_add_u32 v{VRW}, s{T}, v{VL16}")
        q(f"s_mul_i32 s{T}, s{S_CHN}, {TCH}\ns_add_u32 s{T}, s{T}, {L_TAB}\ns_lshl_b32 s{T+1}, s{S_MH}, 10\ns_add_u32 s{T+1}, s{T+1}, s{T}\nv_add_u32 v{VTW}, s{T+1}, v{VL16}")
        q(f"v_sub_u32 v{VT+2}, 3, v{VT}\nv_and_b32 v{VT+2}, 3, v{VT+2}\nv_mul_u32_u24 v{VT+3}, {TCP-2}, v{VT+2}\nv_lshl_add_u32 v{VT+3}, v{VT+1}, 4, v{VT+3}\nv_lshlrev_b32 v{VT+2}, 1, v{VT}\nv_sub_u32 v{VT+3}, v{VT+3}, v{VT+2}")
        q(f"s_lshl_b32 s{T+1}, s{S_MH}, 8\ns_sub_u32 s{T}, s{T}, s{T+1}\ns_add_u32 s{T}, s{T}, {2*15}\nv_add_u32 v{VTA}, s{T}, v{VT+3}")
        q(f"s_mul_i32 s{S_X}, s{S_CHN}, 4608\ns_sub_u32 s{T}, s{S_X}, s{T+1}\ns_add_u32 s{T}, s{T}, {L_U+2*(240-96)}\nv_lshlrev_b32 v{VT+2}, 5, v{VT}\nv_lshl_add_u32 v{VT+2}, v{VT+1}, 4, v{VT+2}\nv_add_u32 v{VUA}, s{T}, v{VT+2}")
        q(f"s_add_u32 s{S_X}, s{S_X}, s{T+1}\ns_add_u32 s{S_X}, s{S_X}, {L_U}\nv_lshl_add_u32 v{VUZ}, v0, 2, s{S_X}")
        q(f"s_lshl_b32 s{T}, s{S_BW}, 10\ns_add_u32 s{T}, s{T}, {L_U+512}\nv_add_u32 v{VUW}, s{T}, v{VL16}")
        q(f"s_lshl_b32 s{T}, s{S_BW}, 11\ns_add_u32 s{T}, s{T}, {L_EX}\nv_add_u32 v{VEXR}, s{T}, v{VL16}")
        VZ = 56
        for i in range(4): q(f"v_mov_b32 v{VZ+i}, 0")
        q(f"s_lshl2_add_u32 s{T}, s{S_BW}, {L_CNT}\nv_mov_b32 v{VONE}, s{T}\nv_and_b32 v{VCN}, 3, v0\nv_lshlrev_b32 v{VCN}, 2, v{VCN}\nv_add_u32 v{VCN}, {L_CNT}, v{VCN}")
        VW2D = 48; S_WOFF, S_WIDX, S_RING = 88, 89, 91
        q(f"v_lshrrev_b32 v{VT+2}, 3, v0\nv_mul_u32_u24 v{VT+2}, 896, v{VT+2}\nv_bfe_u32 v{VT+3}, v0, 4, 1\nv_lshlrev_b32 v{VT+3}, 2, v{VT+3}\nv_xor_b32 v{VT+3}, v0, v{VT+3}\nv_and_b32 v{VT+3}, 7, v{VT+3}")
        q(f"v_lshl_add_u32 v{VW2D}, v{VT+3}, 4, v{VT+2}\nv_add_u32 v{VW2D+1}, {7168-1024}, v{VW2D}")
        if c.rot2 == 2: q(f"s_lshl1_add_u32 s{S_WIDX}, s{S_JR}, s{S_C2}\ns_cmp_ge_u32 s{S_WIDX}, 7\ns_cselect_b32 s{T}, 7, 0\ns_sub_u32 s{S_WIDX}, s{S_WIDX}, s{T}")
        else: q(f"s_mov_b32 s{S_WIDX}, {'s%d' % S_C2 if c.rot2 else 0}")
        q(f"s_mul_i32 s{S_WOFF}, s{S_BW}, 7\ns_add_u32 s{S_WOFF}, s{S_WOFF}, s{S_WIDX}\ns_mul_i32 s{S_WOFF}, s{S_WOFF}, {64*7}\ns_add_u32 s{S_WOFF}, s{S_WOFF}, s{S_C2}\ns_lshl_b32 s{S_WOFF}, s{S_WOFF}, 7")
        q(f"s_lshl_b32 s{S_RING}, s{S_BW}, 13\ns_add_u32 s{S_RING}, s{S_RING}, {L_RING}")
        assert not c.qperm and c.b_pre == 1.0
        if "X" not in c.spoll: q(f"v_min_u32 v{VFL}, 7, v0\nv_lshlrev_b32 v{VFL}, 2, v{VFL}")
        k = int(len(late.items) * c.b_pre)
        p.extend(late.items[:k]); late.items = late.items[k:]
        T = 90
        S_TCH = 92; nt = [0]
        def touch_upto(m):
            while nt[0] < m:
                p(f"s_buffer_load_dwordx2 s[94:95], {s(R_2,4)}, s{S_TCH}\ns_add_u32 s{S_TCH}, s{S_TCH}, 128"); nt[0] += 1
                p.items.append(Marker("forget", {"s94", "s95"}))
        if c.s_touch: p(f"s_lshl2_add_u32 s{S_TCH}, s{S_CP}, s{S_BW}\ns_mul_i32 s{S_TCH}, s{S_TCH}, {14*128}\ns_add_u32 s{S_TCH}, s{S_TCH}, 60")
        self.make_tag()
        p(f"s_lshl_b32 s{T}, s{S_CHN}, 4\ns_lshr_b32 s{S_LDT}, s{S_LDT}, s{T}\ns_lshl_b32 s{S_LDT}, s{S_LDT}, 16\ns_lshr_b32 s{S_DSK}, s{S_DSK}, s{T}\ns_lshl_b32 s{S_DSK}, s{S_DSK}, 16")
        VDT = 60
        p(f"v_mov_b32 v{VDT}, {LOG2E}\nv_mul_f32 v{VDT}, s{S_LDT}, v{VDT}\nv_exp_f32 v{VDT}, v{VDT}\nv_mov_b32 v{VTAG}, s{S_TAG}\nv_cvt_pk_bf16_f32 v{VDT}, v{VDT}, v{VDT}\nv_and_b32 v{VDT}, 0xffff0000, v{VDT}\nv_mov_b32 v{VDT+1}, v{VDT}")
        if c.s_touch: touch_upto(c.s_touch[0])
        self.stamp("pre", sets=(1,))
        Z1, Z2, Z4, Z8, Z128, XB, XC, XDD, TM = 64, 68, 72, 76, 80, 84, 88, 92, 96
        AL, BE, UB, CV = 108, 110, 112, 120
        YF, XF, KV, KA = 128, 160, 128, 244
        units = []
        def unpack(d, src): p(f"v_lshlrev_b32 v{d}, 16, v{src}\nv_and_b32 v{d+1}, 0xffff0000, v{src}")
        def mul2(d, a, b, pk):
            if pk: p(f"v_pk_mul_f32 {v(d,2)}, {v(a,2)}, {v(b,2)}")
            else: p(f"v_mul_f32 v{d}, v{a}, v{b}\nv_mul_f32 v{d+1}, v{a+1}, v{b+1}")
        def cmul_(d, a, b, pk):
            assert d != b
            mul2(TM, a, b, pk); mul2(TM + 2, a, b + 2, pk)
            if pk:
                p(f"v_pk_fma_f32 {v(d,2)}, {v(a+2,2)}, {v(b+2,2)}, {v(TM,2)} neg_lo:[1,0,0] neg_hi:[1,0,0]")
                p(f"v_pk_fma_f32 {v(d+2,2)}, {v(a+2,2)}, {v(b,2)}, {v(TM+2,2)}")
            else:
                for m in range(2): p(f"v_fma_f32 v{d+m}, -v{a+2+m}, v{b+2+m}, v{TM+m}")
                for m in range(2): p(f"v_fma_f32 v{d+2+m}, v{a+2+m}, v{b+m}, v{TM+2+m}")
        def cmul(d, a, b): units.append((8, lambda pk: cmul_(d, a, b, pk)))
        def put(e, a, conj):
            ng = "-" if conj else ""
            units.append((2, lambda pk: (have.add(e), p(f"v_cvt_pk_bf16_f32 v{KV+2*e}, v{a}, {ng}v{a+2}\nv_cvt_pk_bf16_f32 v{KV+2*e+1}, v{a+1}, {ng}v{a+3}"))))
        have = {0}
        def getfr(base):
            return [I(f"ds_read_b128 {v(base+4*fr,4)}, v{VSR} offset:{fr*32}") for fr in range(8)]
        def kmfma(tile, base):
            a = v(KA + 4 * tile, 4)
            return [I(f"v_mfma_f32_16x16x32_bf16 {a}, {v(base+4*fr,4)}, {v(YF+4*fr,4)}, {'0' if (fr == 0 and tile) else a}") for fr in range(8)]
        def zpow_(d, lg, pk):
            for m in range(2):
                if lg: p(f"v_ldexp_f32 v{TM+m}, v{AL+m}, {lg}\nv_ldexp_f32 v{TM+2+m}, v{BE+m}, {lg}")
                a, b = (TM + m, TM + 2 + m) if lg else (AL + m, BE + m)
                p(f"v_exp_f32 v{TM+m}, v{a}\nv_fract_f32 v{TM+2+m}, v{b}")
            for m in range(2): p(f"v_cos_f32 v{d+m}, v{TM+2+m}\nv_sin_f32 v{d+2+m}, v{TM+2+m}")
            mul2(d, d, TM, pk); mul2(d + 2, d + 2, TM, pk)
        def zpow(d, lg): units.append((22, lambda pk: zpow_(d, lg, pk)))
        p(f"v_mov_b32 v{KV}, 0x3f80\nv_mov_b32 v{KV+1}, 0x3f80")
        unpack(AL, VP); unpack(BE, VP + 1)
        self.stamp("params", sets=(0, 1))
        mul2(AL, AL, VDT, True); mul2(BE, BE, VDT, True)
        for m in range(2): p(f"v_mul_f32 v{AL+m}, {LOG2E}, v{AL+m}\nv_mul_f32 v{BE+m}, 0.15915494, v{BE+m}")
        early_done = [None]
        zpow(Z8, 3)
        put(1, Z8, False)
        prev = Z8
        for r in range(2, 16): cmul(XB, prev, Z8); prev = XB; put(r, XB, False)
        zpow(Z1, 0); zpow(Z128, 7)
        units.append((8, lambda pk: [unpack(UB + 2 * i, VP + 2 + i) for i in range(4)]))
        cmul(XC, UB, UB + 4)
        units.append((4, lambda pk: (mul2(XC, XC, VDT, pk), mul2(XC + 2, XC + 2, VDT, pk))))
        cmul(XB, XC, Z128)
        put(16, XC, True); put(24, XB, True)
        prev = XB
        for r in range(1, 8):
            cmul(XC, XC, Z1); put(16 + r, XC, True)
            cmul(XDD, prev, Z1); prev = XDD; put(24 + r, XDD, True)
        for it in late.items: units.append((1, lambda pk, it=it: p.extend([it])))
        cmul(Z2, Z1, Z1); cmul(Z4, Z2, Z2)
        for k in range(2):
            cmul(XB, XB, Z128); put(32 + 4 * k, XB, True); prev = XB
            for r in range(1, 4): cmul(XC, prev, Z2); prev = XC; put(32 + 4 * k + r, XC, True)
        for k in range(4):
            cmul(XB, XB, Z128); put(40 + 2 * k, XB, True)
            cmul(XC, XB, Z4); put(41 + 2 * k, XC, True)
        for k in range(9): cmul(XB, XB, Z128); put(48 + k, XB, True)
        total = sum(u[0] for u in units)
        cuts = [c.kg_pre] + [c.kg_pre + (total - c.kg_pre) * (i - c.kg_x) / (c.kg_ints - c.kg_x) for i in range(1, 7)]
        X2F = 64
        VCA, VPU, BE9, BO7 = 10, 11, 12, 60
        order = list(range(48, 57)) + list(range(16)) + list(range(32, 48)) + list(range(16, 32))
        lops = []
        for e in order:
            it = [I(f"ds_write_addtid_b32 v{KV+2*e+m} offset:{(e&15)*528+256*m}") for m in range(2)]
            if 36 <= e < 44: it.append(kmfma(2, X2F)[e - 36])
            if e == 46: it += [I(f"v_cndmask_b32 v{KA+8}, 0, v{KA+8}, vcc"), I(f"ds_write_b128 v{VRW}, {v(KA+8,4)} offset:2048")]
            if 20 <= e < 28: it.append(kmfma(1, XF + 32)[e - 20])
            if e == 30: it.append(I(f"ds_write_b128 v{VRW}, {v(KA+4,4)} offset:1024"))
            if e in (15, 31, 47, 56): it += getfr({15: YF, 31: XF, 47: XF + 32, 56: X2F}[e])
            if "2" in c.diag and e < 32 and e % 16 != 15: it = it[2:]
            lops.append(it)
        nl = [0]
        def lds_upto(m):
            while nl[0] < m:
                assert order[nl[0]] in have
                p.extend(lops[nl[0]]); nl[0] += 1
        done = 0; nb = 0; fx = [None]; xt = [None]
        side = []
        def sd(txt, atomic=False):
            q = Prog(); q(txt)
            if atomic: side.append(q.items)
            else: side.extend([it] for it in q.items)
        sd(f"v_and_b32 v{VT}, 15, v0\nv_lshrrev_b32 v{VT+1}, 4, v0\nv_lshlrev_b32 v{VT+2}, 3, v{VT+1}\ns_movk_i32 s{S_Y}, 0x3f80")
        for bd, m in ((BE9, 0x1ff << 4), (BO7, 0x7f << 5)):
            sd(f"v_mov_b32 v{VT+3}, {m}\nv_lshlrev_b32 v{VT+3}, v{VT}, v{VT+3}\nv_lshrrev_b32 v{VT+3}, v{VT+2}, v{VT+3}")
            for d in range(4):
                sd(f"v_bfe_u32 v{VT+4}, v{VT+3}, {2*d}, 1\nv_bfe_u32 v{VT+5}, v{VT+3}, {2*d+1}, 1\nv_lshl_or_b32 v{VT+4}, v{VT+5}, 16, v{VT+4}\nv_mul_u32_u24 v{bd+d}, s{S_Y}, v{VT+4}")
        sd(f"s_mul_i32 s{S_Y}, s{S_MH}, 768\ns_sub_u32 s{S_Y}, 1200, s{S_Y}\nv_add_u32 v{VPU}, s{S_Y}, v{VUA}")
        sd(f"s_mul_i32 s{S_Y}, s{S_CHN}, {TCH}\ns_add_u32 s{S_X}, s{S_Y}, {L_TAB+4*TCP+60}\nv_lshlrev_b32 v{VT+3}, 2, v{VT+1}\nv_sub_u32 v{VT+3}, v{VT+3}, v{VT}\nv_lshl_add_u32 v{VCA}, v{VT+3}, 2, s{S_X}")
        sd(f"s_add_u32 s{S_Y}, s{S_Y}, {L_TAB}\nv_and_b32 v{VT+3}, 3, v0\nv_mul_u32_u24 v{VT+3}, {TCP}, v{VT+3}\nv_lshrrev_b32 v{VT+4}, 2, v0\nv_lshl_add_u32 v{VT+3}, v{VT+4}, 4, v{VT+3}\nv_lshl_add_u32 v{VT+3}, v{VT+1}, 11, v{VT+3}")
        sd(f"v_lshlrev_b32 v{VT+4}, 2, v0\nv_add_u32 v{VT+4}, {4*TCP}, v{VT+4}")
        sd(f"s_cmp_eq_u32 s{S_MH}, 0\ns_cselect_b64 vcc, -1, 0\ns_cselect_b32 s{S_DSK}, s{S_DSK}, 0", True)
        sd(f"v_cndmask_b32 v{VT+3}, v{VT+3}, v{VT+4}, vcc\nv_add_u32 v{VTZ}, s{S_Y}, v{VT+3}")
        sd(f"s_mul_i32 s{S_Y}, s{S_CHN}, 6144\ns_add_u32 s{S_Y}, s{S_Y}, {L_RAW}")
        sd(f"v_mov_b32 v{VT}, s{S_DSK}\nv_cmp_eq_u32 vcc, 0, v0\nv_mov_b32 v{VT+1}, s{S_Y}\nv_mov_b32 v{KA+1}, 0\nv_cndmask_b32 v{KA}, 0, v{VT}, vcc\nv_mov_b32 v{KA+2}, 0\nv_mov_b32 v{KA+3}, 0\nv_cmp_gt_u32 vcc, 48, v0")
        for k in range(16):
            sd(f"v_add_u32_sdwa v{VG+k}, v{VT+1}, v{VGT+(k>>1)} dst_sel:DWORD dst_unused:UNUSED_PAD src0_sel:DWORD src1_sel:WORD_{k&1}")
        def barrier():
            nonlocal nb
            if nb in ctok: p.wait(ctok[nb])
            if nb == c.r_at and c.r_early: p.wait(w2t[c.r_early - 1])
            if nb == 6 and c.r2: assert c.br0 >= 0 and c.r2 <= 8; p.wait(w2t[c.r2 - 1])
            self.stamp(f"atbar{nb}", sets=(0, 1) if nb == 0 else (1,))
            p("s_barrier")
            if nb == 4: self.stamp("bar4", sets=(0, 3))
            if c.s_touch and nb < 4 and c.touch_first: touch_upto(c.s_touch[nb + 1])
            mem = []
            if c.a_chunks <= nb + 3 < 7: mem += self.dma_chunk(nb + 3, T, ctok)
            if nb == c.gt_at:
                q = Prog(); q(f"s_lshl_b32 s{T}, s{S_MH}, 11\ns_add_u32 s{T}, s{T}, L_gtab-L_pc")
                for h in range(2): q(f"buffer_load_dwordx4 {v(VGT+4*h,4)}, v{VL16}, {s(R_PC,4)}, s{T} offen offset:{1024*h}")
                mem.append(q.items)
            if nb >= 4 or nb == c.br0:
                while nq[0] < (c.bw2[nb - 4] if nb >= 4 else 4):
                    n = nq[0]; nq[0] += 1
                    pc = (n >> 2) if c.br0 < 0 else (-2 if n < 4 else (n >> 2) - 1)
                    assert pc <= nb - 4 or pc < 0
                    if pc == 3: assert n - 12 < c.r2; pc = 0
                    q = Prog(); q(f"s_add_u32 m0, s{S_RING}, {pc*SLOT + (n&3)*2048}\nbuffer_load_dwordx4 v{VW2D}, {s(R_2,4)}, s{S_WOFF} offen lds")
                    mem.append(q.items); q = Prog()
                    w2t[n] = q.tok(f"buffer_load_dwordx4 v{VW2D+1}, {s(R_2,4)}, s{S_WOFF} offen offset:1024 lds")
                    if c.rot2: q(f"s_cmp_eq_u32 s{S_WIDX}, {(6-n)%7}\ns_cselect_b32 s{T}, {-7*64*896}, 0\ns_add_u32 s{S_WOFF}, s{S_WOFF}, s{T}\ns_add_u32 s{S_WOFF}, s{S_WOFF}, {(64 + (16 if n % 7 == 6 else 0))*896}")
                    else: q(f"s_add_u32 s{S_WOFF}, s{S_WOFF}, {(16 - 6*64 if n % 7 == 6 else 64)*896}")
                    mem.append(q.items)
            s0, s1 = c.side_at
            part = side[(nb - s0) * len(side) // (s1 - s0):(nb + 1 - s0) * len(side) // (s1 - s0)] if s0 <= nb < s1 else []
            if part: assert done == total
            p.extend(interleave(part, mem) if (part and c.side_first) else interleave(mem, part) if mem else interleave(part, []))
            if c.s_touch and nb < 4 and not c.touch_first: touch_upto(c.s_touch[nb + 1])
            if nb < 7 and c.lds_cut[nb] > nl[0]:
                assert done == total and c.lds_cut[nb] <= 23 and (c.br0 < 0 or nb > c.r_at)
                p(f"s_mul_i32 m0, s{S_BW}, 8448"); lds_upto(c.lds_cut[nb])
            nb += 1
        nq = [0]; w2t = {}
        for cost, fn in units:
            while nb < 8 and done >= cuts[min(nb, 6)]: barrier()
            fn(nb == 0); done += cost
        while nb < 8: barrier()
        self.stamp("bar7", sets=(0, 3))
        p(f"s_mul_i32 m0, s{S_BW}, 8448")
        if c.prio_b3 != c.prio_b2: p(f"s_setprio {c.prio_b3}")
        XR, XR2 = 2, 52
        lds_upto(c.fx_ld)
        fx = self.flag_load("X", S_FXR, 8, VFL)
        lds_upto(c.fx_chk)
        self.flag_check(fx, VT)
        p.wait(w2t[nq[0] - 1]); self.lds_post(VONE, VTAG, 4)
        self.stamp("fx", sets=(3,))
        p(f"buffer_load_dwordx4 {v(XR,4)}, v{VL16}, {s(R_WS,4)}, s{S_XTR} offen sc1\ns_add_u32 s{S_XTR}, s{S_XTR}, 4096\nbuffer_load_dwordx4 {v(XR2,4)}, v{VL16}, {s(R_WS,4)}, s{S_XTR} offen sc1")
        lds_upto(57)
        p.extend(kmfma(0, XF))
        T = S_T
        uw = lambda: [p(f"ds_write_b128 v{VUW}, {v(XR2 if ch else XR,4)} offset:{4608*ch}") for ch in range(2)] + [p(f"ds_write_b32 v{VUZ}, v{VZ}")]
        p(f"ds_write_b128 v{VRW}, {v(KA,4)}")
        self.lds_post(VONE, VTAG, 0)
        self.stamp("kgen", sets=(0, 3))
        if c.prio_b4 != c.prio_b3: p(f"s_setprio {c.prio_b4}")
        self.lds_wait(VCN, VT, 0)
        GV, PK = 96, 128
        for k in range(16): p(f"ds_read2st64_b32 {v(GV+2*k,2)}, v{VG+k} offset0:0 offset1:12")
        if c.u_at == 1: uw()
        for k in range(11): p(f"v_add_f32 v{GV+2*k}, v{GV+2*k}, v{GV+2*k+1}")
        for cp_ in range(4):
            for j in range(4): p(f"v_cvt_pk_bf16_f32 v{PK+4*cp_+j}, v{GV+2*(cp_+2*j)}, v{GV+2*(cp_+2*j+1)}")
            p(f"ds_write_b128 v{VTW}, {v(PK+4*cp_,4)} offset:{cp_*TCP+64}")
        for k in range(11, 16): p(f"v_add_f32 v{GV+2*k}, v{GV+2*k}, v{GV+2*k+1}")
        l0, l1 = self.lab("edge"), self.lab("tabd")
        E = lambda k: GV + 2 * (11 + k)
        p(f"v_cvt_pk_bf16_f32 v{PK+16}, v{E(0)}, v{E(1)}\ns_cmp_lg_u32 s{S_MH}, 0\ns_cbranch_scc1 {l0}")
        p.alt_begin()
        p(f"ds_write_b32 v{VTZ}, v{PK+16}\ns_mov_b64 exec, 0xffff\nds_write_b32 v{VTZ}, v{VZ} offset:256\ns_branch {l1}")
        p.alt_else()
        p.label(l0)
        p(f"v_cvt_pk_bf16_f32 v{PK+17}, v{E(2)}, v{E(3)}\nv_cvt_pk_bf16_f32 v{PK+18}, v{E(3)}, v{E(3)}\nv_cvt_pk_bf16_f32 v{PK+19}, v{E(3)}, v{E(4)}")
        p(f"s_mov_b64 exec, 0xffffff\nds_write_b128 v{VTZ}, {v(PK+16,4)}")
        p.alt_end()
        p.label(l1)
        p("s_mov_b64 exec, -1")
        self.stamp("tables", sets=(0, 3, 4))
        if c.u_at == 2: uw()
        self.lds_post(VONE, VTAG, 1)
        self.lds_wait(VCN, VT, 1)
        self.stamp("u", sets=(0, 3, 4))
        if c.prio_b5 != c.prio_b4: p(f"s_setprio {c.prio_b5}")
        TF, UF, CA = 96, 160, 224
        PU, VA, VB, AF, TB = 128, 144, 64, 72, 88
        MF = lambda d, a, b_, z=False: I(f"v_mfma_f32_16x16x32_bf16 {v(d,4)}, {v(a,4)}, {v(b_,4)}, {'0' if z else v(d,4)}")
        def read_tu(ph):
            r = [I(f"ds_read_b128 {v(UF+32*(ph&1),4)}, v{VUA} offset:{2*32*(3-ph)}")]
            for a in range(4):
                for h in range(2):
                    r.append(I(f"ds_read_b64 {v(TF+16*(ph&1)+4*a+2*h,2)}, v{VTA} offset:{2*(160+256*(3-a)+32*(3-ph))+8*h}"))
            return r + [I(f"ds_read_b128 {v(UF+32*(ph&1)+4*b,4)}, v{VUA} offset:{2*(256*b+32*(3-ph))}") for b in range(1, 8)]
        r0 = read_tu(0)
        p.extend(r0[:11])
        for ph in range(4):
            mm = [MF(CA + 4 * (a + b), UF + 32 * (ph & 1) + 4 * b, TF + 16 * (ph & 1) + 4 * a, ph == 0 and (b == 0 or a == 3)) for b in range(8) for a in range(min(4, 8 - b))]
            if ph == 0:
                rp = [I(f"ds_read_b128 {v(PU+8*be+4*o,4)}, v{VPU} offset:{512*be+16*o}") for be in range(2) for o in range(2)]
                ra = [I(f"ds_read2_b32 {v(AF+4*a+2*h,2)}, v{VCA} offset0:{16*(3-a)+2*h} offset1:{16*(3-a)+2*h+1}") for a in range(4) for h in range(2)]
                ra += [I(f"ds_read_b64 {v(TB+2*h,2)}, v{VTA} offset:{8*h}") for h in range(2)]
                mp = [MF(VA + 8 * be + 4 * o, PU + 8 * be + 4 * o, BO7 if o else BE9, True) for be in range(2) for o in range(2)]
                cv = [I(f"v_cvt_pk_bf16_f32 v{VB+4*be+r}, v{VA+8*be+r}, v{VA+8*be+4+r}") for be in range(2) for r in range(4)]
                r1 = read_tu(1)
                p.extend(interleave(mm[:12], r0[11:13] + rp + r0[13:] + ra[:5]))
                p.extend(interleave(mp + mm[12:18], ra[5:] + r1[:8]))
                p.extend(interleave(mm[18:], [[x, y] for x, y in zip(cv, r1[8:])]))
                l0, l1 = self.lab("far1"), self.lab("fard")
                p(f"s_cmp_lg_u32 s{S_MH}, 0\ns_cbranch_scc1 {l0}")
                p.alt_begin()
                p.extend([MF(CA + 4 * (4 + b), UF + 4 * b, TB) for b in range(4)])
                p.extend([MF(CA + 4 * 6, AF, VB), MF(CA + 4 * 7, AF + 4, VB), MF(CA + 4 * 7, AF, VB + 4)])
                p(f"s_branch {l1}")
                p.alt_else()
                p.label(l0)
                p.extend([MF(CA + 4 * (4 + a + be), AF + 4 * a, VB + 4 * be) for be in range(2) for a in range(4 - be)])
                p.alt_end()
                p.label(l1)
            elif ph < 3 and "3" in c.diag: pass
            elif ph < 3: p.extend(interleave(mm, read_tu(ph + 1), ratio=0.8))
            else:
                self.lds_post(VONE, VTAG, 2)
                p.extend(mm[:5]); self.lds_peek(VCN, VT, 2); p.extend(mm[5:11])
                self.lds_check(VCN, VT, 2, fill=lambda: p.extend(mm[11:16])); mm = mm[16:]
                if c.prio_b6 != c.prio_b5 and not c.late6: p(f"s_setprio {c.prio_b6}")
                fill = [I(f"ds_write_b128 v{VEXW}, {v(CA+4*cc,4)} offset:{1024*cc}") for cc in range(4)]
                p.extend(interleave(mm, fill, ratio=0.5))
        if c.prio_b6 != c.prio_b5 and c.late6: p(f"s_setprio {c.prio_b6}")
        self.stamp("conv", sets=(0, 2, 3, 4))
        for cc in range(4, 8): p(f"ds_write_b128 v{VEXW}, {v(CA+4*cc,4)} offset:{1024*cc}")
        self.lds_post(VONE, VTAG, 3)
        EXV, VSA = 96, 10
        if "b" in c.diag:
            p(f"v_lshlrev_b32 v{VT+4}, 7, v0\ns_mov_b64 exec, 15\nbuffer_store_dword v{VTAG}, v{VT+4}, {s(R_WS,4)}, s{S_FSW} offen sc1\ns_mov_b64 exec, -1")
            self.lds_post(VONE, VTAG, 7); p("s_waitcnt lgkmcnt(0)"); self.stamp_flush(1); p("s_endpgm"); return
        self.lds_wait(VCN, VT, 3)
        for k in range(2):
            for w in range(4): p(f"ds_read_b128 {v(EXV+16*k+4*w,4)}, v{VEXR} offset:{8192*w+1024*k}")
        for k in range(2):
            b = EXV + 16 * k
            for r in range(4): p(f"v_add_f32 v{b+r}, v{b+r}, v{b+4+r}\nv_add_f32 v{b+8+r}, v{b+8+r}, v{b+12+r}")
            for r in range(4): p(f"v_cvt_pk_bf16_f32 v{b+4+r}, v{b+r}, v{b+8+r}")
            sttok = p.tok(f"buffer_store_dwordx4 {v(b+4,4)}, v{VL16}, {s(R_WS,4)}, s{S_STW} offen offset:{1024*k} sc1")
        self.stamp("st", sets=(0, 2, 3, 4))
        F = dict(VT=VT, XO=16, PA=18, SA=17, STA=20, XI=24, RG=21, RC=22, XF=128, PV=160, SV=28, SF=136, w=S_BW, sXO=S_FXR, sST=S_XTR, OUT=R_2)
        S_XO = S_STW
        p(f"s_load_dwordx2 {s(R_LD,2)}, s[0:1], 0\ns_load_dwordx2 {s(R_2,2)}, s[0:1], 104\ns_mov_b32 s{R_LD+2}, {2048*896}\ns_mov_b32 s{R_2+2}, {2048*896}\ns_add_u32 s{S_XO}, s{S_STR}, {8*8192}")
        self.fin_addr(0, F, 0); self.fin_addr(0, F, 1)
        if "S" not in c.spoll: p(f"v_min_u32 v{VFL}, 15, v0\nv_lshlrev_b32 v{VFL}, 2, v{VFL}")
        p(f"s_mul_i32 s{T}, s{S_BW}, 2304\ns_add_u32 s{T}, s{T}, {L_STR}")
        p(f"v_and_b32 v{VT+4}, 32, v0\nv_lshl_add_u32 v{VT+4}, v0, 3, v{VT+4}\nv_add_u32 v{VSA}, s{T}, v{VT+4}")
        p(f"v_lshrrev_b32 v{VT+4}, 3, v0\nv_lshlrev_b32 v{VT+4}, 13, v{VT+4}\nv_and_b32 v{VT+5}, 7, v0\nv_lshl_add_u32 v{VSA+2}, v{VT+5}, 4, v{VT+4}\nv_lshlrev_b32 v{VT+4}, 7, v0")
        p.wait(sttok)
        if "S" in c.sflag: self.sflags4(S_FSW)
        else: p(f"s_mov_b64 exec, 15\nbuffer_store_dword v{VTAG}, v{VT+4}, {s(R_WS,4)}, s{S_FSW} offen sc1\ns_mov_b64 exec, -1")
        self.stamp("flagS")
        if c.prio_b7 != c.prio_b6: p(f"s_setprio {c.prio_b7}")
        if c.b_xat == 0: self.fin_loads(F)
        fs = self.flag_load("S", S_FSR, 16, VFL)
        self.flag_check(fs, VT, sleep=c.fs_sleep)
        self.stamp("fs", sets=(0, 2, 3))
        if c.prio_b8 != c.prio_b7: p(f"s_setprio {c.prio_b8}")
        SV = 64
        for j in range(2): p(f"buffer_load_dwordx4 {v(SV+4*j,4)}, v{VSA+2}, {s(R_WS,4)}, s{S_XO if j else S_STR} offen sc1")
        if c.b_xat == 1: self.fin_loads(F)
        for j in range(2): p(f"ds_write2_b64 v{VSA}, {v(SV+4*j,2)}, {v(SV+4*j+2,2)} offset0:{72*j} offset1:{72*j+144}")
        self.lds_post(VONE, VTAG, 7)
        self.stamp("sready", sets=(0, 2, 3))
        self.fin_sread(F); p.extend(self.fin_prep(F)); p.extend(self.fin_sprep(F))
        self.lds_wait(VCN, VT, 5, sleep=c.b5_sleep)
        if c.prio_b9 != c.prio_b8: p(f"s_setprio {c.prio_b9}")
        self.fin_out(F)
        self.stamp("end", sets=(0, 2, 3, 4, 9))
        self.stamp_flush(1)
        p("s_endpgm")

    def head_h(self):
        p, c = self.p, self.c
        p.label("L_helper")
        self.role_start()
        S_HH, S_X, S_Z, VT, XD = 64, 65, 72, 1, 16
        if c.prefetch_code and c.pf_h:
            p(f"s_sub_u32 s{S_X}, s{S_J}, 28\ns_lshl3_add_u32 s{S_X}, s{S_X}, s{S_WAVE}\ns_lshl_b32 s{S_X}, s{S_X}, 7\nv_lshlrev_b32 v255, 12, v0\ns_mov_b64 exec, 0x1ff")
            p(f"buffer_load_dword v255, v255, {s(R_PC,4)}, s{S_X} offen\ns_mov_b64 exec, -1")
        p(f"s_lshl2_add_u32 s{S_HH}, s{S_XCD}, s{S_J}\ns_sub_u32 s{S_HH}, s{S_HH}, 28\ns_lshl3_add_u32 s{S_Z}, s{S_HH}, s{S_WAVE}\ns_mul_i32 s{S_X}, s{S_Z}, {8*896}")
        p(f"v_lshrrev_b32 v{VT+2}, 3, v0\nv_mul_u32_u24 v{VT}, 896, v{VT+2}\nv_and_b32 v{VT+1}, 7, v0\nv_lshl_add_u32 v{VT}, v{VT+1}, 4, v{VT}")
        srd(p, R_LD, P_U, 2048 * 896)
        for i in range(7): p(f"buffer_load_dwordx4 {v(XD+4*i,4)}, v{VT}, {s(R_LD,4)}, s{S_X} offen offset:{128*i}")
        if c.h_near: p("s_branch L_bodyH")
    def role_h(self):
        p, c = self.p, self.c
        S_HH, S_X, S_Y, S_ONE, S_LO, S_HI, S_Q, S_CG, S_Z = range(64, 73)
        T = S_T
        VT, XD, WD, AC, CS, UP = 1, 16, 48, 80, 88, 96
        L_XN = 8192
        if c.h_near:
            if c.h_align: p(".p2align 12")
            p.label("L_bodyH"); p.reset()
            if c.prefetch_code: p.items.append(Marker("pending", ("vmem", {"v255"})))
            for i in range(7): p.items.append(Marker("pending", ("vmem", {f"v{XD+4*i+j}" for j in range(4)})))
        else: self.head_h()
        self.stamp_begin("H")
        self.load_epoch(); srd(p, R_2, P_W1, 448 * 3584); srd(p, R_PC, P_W2, 1792 * 896)
        p(f"s_lshr_b32 s{S_Q}, s{S_XCD}, 1\ns_lshl2_add_u32 s{S_Q}, s{S_Q}, s{S_J}\ns_sub_u32 s{S_Q}, s{S_Q}, 28\ns_and_b32 s{S_CG}, s{S_XCD}, 1\ns_mul_i32 s{S_CG}, s{S_CG}, 14\ns_add_u32 s{S_CG}, s{S_CG}, s{S_Q}")
        p(f"s_lshl_b32 s{T}, s{S_CG}, 7\ns_mul_i32 s{S_Y}, s{S_WAVE}, {56*3584}\ns_add_u32 s{S_Y}, s{S_Y}, s{T}\ns_cmp_ge_u32 s{S_Q}, 14\ns_cselect_b32 s{S_Y}, {448*3584}, s{S_Y}")
        p(f"v_mul_u32_u24 v{VT+3}, 3584, v{VT+2}\nv_lshl_add_u32 v{VT+3}, v{VT+1}, 4, v{VT+3}")
        p(f"s_mov_b32 s{S_ONE}, 0x3f803f80\ns_mov_b32 s{S_LO}, 0x00003f80\ns_mov_b32 s{S_HI}, 0x3f800000")
        p(f"s_lshl_b32 s{S_X}, s{S_Z}, 6\ns_add_u32 s{S_X}, s{S_X}, {WS_STAT}")
        p(f"s_mul_i32 s{T}, s{S_WAVE}, 7232\ns_add_u32 s{T}, s{T}, {L_XN}\nv_add_u32 v{VT}, s{T}, v{VT}")
        for i in range(4): p(f"v_mov_b32 v{AC+i}, 0")
        for k in range(8): p(f"v_mov_b32 v{CS+k}, 0")
        self.make_tag()
        def w1_loads():
            for i in range(7):
                p(f"buffer_load_dwordx4 {v(WD+4*i,4)}, v{VT+3}, {s(R_2,4)}, s{S_Y} offen")
                if i < 6: p(f"s_add_u32 s{S_Y}, s{S_Y}, {8*3584}")
        def touch():
            p(f"s_sub_u32 s{T}, s{S_J}, 28\ns_mul_i32 s{T}, s{T}, 7\ns_add_u32 s{T}, s{T}, s{S_WAVE}\ns_lshl3_add_u32 s{T}, s{T}, s{S_XCD}\ns_mul_i32 s{T}, s{T}, {8*896}\ns_cmp_eq_u32 s{S_WAVE}, 7\ns_cselect_b32 s{T}, {1792*896}, s{T}")
            p(f"v_min_u32 v120, 55, v0\nv_lshlrev_b32 v120, 7, v120\nbuffer_load_dword v121, v120, {s(R_PC,4)}, s{T} offen")
        if c.h_w1 == 0: w1_loads()
        if c.h_w1 == 1: p.items.append(Marker("need", XD + 27)); w1_loads()
        self.stamp("issued")
        for i in range(28):
            p(f"v_dot2_f32_bf16 v{AC+(i&1)}, v{XD+i}, s{S_ONE}, v{AC+(i&1)}\nv_dot2_f32_bf16 v{AC+2+(i&1)}, v{XD+i}, v{XD+i}, v{AC+2+(i&1)}")
        p(f"v_add_f32 v{AC}, v{AC}, v{AC+1}\nv_add_f32 v{AC+1}, v{AC+2}, v{AC+3}")
        for pat in ("quad_perm:[1,0,3,2]", "quad_perm:[2,3,0,1]", "row_half_mirror"):
            for k in range(2): p(f"v_add_f32_dpp v{AC+k}, v{AC+k}, v{AC+k} {pat} row_mask:0xf bank_mask:0xf")
        inv = 0x3b124925
        p(f"v_mul_f32 v{AC}, {inv}, v{AC}\nv_mul_f32 v{AC+1}, {inv}, v{AC+1}\nv_fma_f32 v{AC+1}, -v{AC}, v{AC}, v{AC+1}\nv_max_f32 v{AC+1}, 0, v{AC+1}")
        p(f"v_cvt_pk_bf16_f32 v{AC+1}, v{AC+1}, v{AC+1}\nv_and_b32 v{AC+1}, 0xffff0000, v{AC+1}\nv_add_f32 v{AC+1}, 0x3727c5ac, v{AC+1}")
        p(f"v_cvt_pk_bf16_f32 v{AC+1}, v{AC+1}, v{AC+1}\nv_and_b32 v{AC+1}, 0xffff0000, v{AC+1}\nv_sqrt_f32 v{AC+1}, v{AC+1}")
        p(f"v_mov_b32 v{AC+3}, s{S_TAG}\nv_cvt_pk_bf16_f32 v{AC+2}, v{AC}, v{AC+1}")
        p(f"s_mov_b32 exec_lo, 0x01010101\ns_mov_b32 exec_hi, 0x01010101\nbuffer_store_dwordx2 {v(AC+2,2)}, v0, {s(R_WS,4)}, s{S_X} offen sc1\ns_mov_b64 exec, -1")
        if c.h_w1 == 2: w1_loads()
        if c.h_touch == 0: touch()
        self.stamp("stats")
        p(f"v_and_b32 v{AC+4}, 0xffff0000, v{AC+2}\nv_rcp_f32 v{AC+4}, v{AC+4}\nv_lshlrev_b32 v{AC+6}, 16, v{AC+2}\nv_mov_b32 v{AC+5}, v{AC+4}\nv_mul_f32 v{AC+6}, -v{AC+6}, v{AC+4}\nv_mov_b32 v{AC+7}, v{AC+6}")
        for i in range(7):
            u = UP + 8 * (i & 1)
            for j in range(4): p(f"v_lshlrev_b32 v{u+2*j}, 16, v{XD+4*i+j}\nv_and_b32 v{u+2*j+1}, 0xffff0000, v{XD+4*i+j}")
            for j in range(4): p(f"v_pk_fma_f32 {v(u+2*j,2)}, {v(u+2*j,2)}, {v(AC+4,2)}, {v(AC+6,2)}")
            for j in range(4): p(f"v_cvt_pk_bf16_f32 v{XD+4*i+j}, v{u+2*j}, v{u+2*j+1}")
            p(f"ds_write_b128 v{VT}, {v(XD+4*i,4)} offset:{128*i}")
        if c.h_touch == 1: touch()
        self.stamp("norm")
        for i in range(7):
            for j in range(4):
                p(f"v_dot2_f32_bf16 v{CS+2*j}, v{WD+4*i+j}, s{S_LO}, v{CS+2*j}\nv_dot2_f32_bf16 v{CS+2*j+1}, v{WD+4*i+j}, s{S_HI}, v{CS+2*j+1}")
        for k in range(8): p(f"v_add_f32_dpp v{CS+k}, v{CS+k}, v{CS+k} row_ror:8 row_mask:0xf bank_mask:0xf")
        p(f"v_and_b32 v{VT+3}, 8, v0\nv_cmp_eq_u32 vcc, 0, v{VT+3}\nv_lshlrev_b32 v{VT+3}, 1, v{VT+3}\nv_lshl_add_u32 v{VT+3}, v{VT+1}, 5, v{VT+3}\nv_lshrrev_b32 v{VT+4}, 4, v0\nv_lshl_add_u32 v{VT+3}, v{VT+4}, 8, v{VT+3}")
        p(f"s_lshl_b32 s{T}, s{S_WAVE}, 10\nv_add_u32 v{VT+3}, s{T}, v{VT+3}")
        for k in range(4): p(f"v_cndmask_b32 v{CS+k}, v{CS+4+k}, v{CS+k}, vcc")
        p(f"ds_write_b128 v{VT+3}, {v(CS,4)}")
        p(f"s_lshl_b32 s{T}, s{S_WAVE}, 7\ns_add_u32 s{T}, s{T}, {L_XN}\nv_mul_u32_u24 v{VT}, 7232, v{VT+1}\nv_lshl_add_u32 v{VT}, v{VT+2}, 4, v{VT}\nv_add_u32 v{VT}, s{T}, v{VT}")
        p(f"v_lshlrev_b32 v{VT+2}, 15, v{VT+2}\nv_lshl_add_u32 v{VT+2}, v{VT+1}, 4, v{VT+2}\nv_lshlrev_b32 v{VT+4}, 7, v0")
        p(f"s_lshl_b32 s{S_X}, s{S_WAVE}, 11\ns_add_u32 s{S_X}, s{S_X}, s{S_HH}\ns_lshl_b32 s{S_X}, s{S_X}, 7\ns_add_u32 s{S_X}, s{S_X}, {WS_XT}")
        p(f"s_lshr_b32 s{T}, s{S_HH}, 3\ns_lshl2_add_u32 s{S_Y}, s{S_WAVE}, s{T}\ns_lshl_b32 s{S_Y}, s{S_Y}, 7\ns_and_b32 s{T}, s{S_HH}, 7\ns_add_u32 s{S_Y}, s{S_Y}, s{T}\ns_lshl2_add_u32 s{S_Y}, s{S_Y}, {WS_FX}")
        p(f"s_mov_b32 s{S_LO}, 0x05040100\ns_mov_b32 s{S_HI}, 0x07060302\ns_waitcnt lgkmcnt(0)\ns_barrier")
        self.stamp("bar")
        p(f"s_cmp_eq_u32 s{S_WAVE}, 7\ns_cbranch_scc1 L_h7")
        p.alt_begin()
        for j in range(8): p(f"ds_read_b128 {v(XD+4*j,4)}, v{VT} offset:{896*j}")
        if c.h_touch == 2: touch()
        for e in range(8):
            o = WD + 4 * e
            for j in range(4): p(f"v_perm_b32 v{o+j}, v{XD+4*(2*j+1)+(e>>1)}, v{XD+4*(2*j)+(e>>1)}, s{S_HI if e&1 else S_LO}")
            p(f"buffer_store_dwordx4 {v(o,4)}, v{VT+2}, {s(R_WS,4)}, s{S_X} offen sc1")
            if e < 7: p(f"s_add_u32 s{S_X}, s{S_X}, 4096")
        p("s_waitcnt vmcnt(0)")
        if "X" in c.sflag: self.sflags4(S_Y)
        else: p(f"s_mov_b64 exec, 15\nbuffer_store_dword v{AC+3}, v{VT+4}, {s(R_WS,4)}, s{S_Y} offen sc1\ns_mov_b64 exec, -1")
        p("s_branch L_hdone")
        p.alt_else()
        p.label("L_h7")
        p(f"s_setprio 3\ns_cmp_ge_u32 s{S_Q}, 14\ns_cbranch_scc1 L_hdone\nv_lshlrev_b32 v{VT+3}, 2, v0")
        for i in range(16): p(f"ds_read2st64_b32 {v(XD+2*i,2)}, v{VT+3} offset0:{2*i} offset1:{2*i+1}")
        for st in (16, 8, 4, 2):
            for i in range(0, st, 2): p(f"v_pk_add_f32 {v(XD+i,2)}, {v(XD+i,2)}, {v(XD+st+i,2)}")
        p(f"v_add_f32 v{AC+2}, v{XD}, v{XD+1}\nv_lshlrev_b32 v{VT+3}, 3, v0\ns_lshl_b32 s{T}, s{S_CG}, 9\ns_add_u32 s{T}, s{T}, {WS_CS}")
        p(f"buffer_store_dwordx2 {v(AC+2,2)}, v{VT+3}, {s(R_WS,4)}, s{T} offen sc1")
        p.alt_end()
        p.label("L_hdone")
        p("s_setprio 0\ns_waitcnt lgkmcnt(0)")
        self.stamp("done")
        p(f"v_min_u32 v{VT}, 55, v0\ns_sub_u32 s{S_Z}, s{S_J}, 28")
        if c.h_pf:
            p("s_barrier")
            p(f"s_mul_i32 s{T}, s{S_Z}, 7\ns_add_u32 s{T}, s{T}, s{S_WAVE}\ns_mul_i32 s{T}, s{T}, {64*896}\ns_cmp_eq_u32 s{S_WAVE}, 7\ns_cselect_b32 s{T}, {1792*896}, s{T}\nv_lshlrev_b32 v{VT+1}, 7, v{VT}")
            for st in c.h_pf:
                for h in range(2):
                    p(f"s_add_u32 s{T+1}, s{T}, {(16*st+8*h)*896}\nbuffer_load_dword v{VT+2}, v{VT+1}, {s(R_PC,4)}, s{T+1} offen")
        self.stamp("pfw")
        if c.h_act:
            p(f"s_lshr_b32 s{T}, s{S_WAVE}, 2\ns_mul_i32 s{T}, s{T}, 56\nv_add_u32 v{VT}, s{T}, v{VT}\nv_lshrrev_b32 v{VT+1}, 4, v{VT}\nv_lshlrev_b32 v{VT+1}, 13, v{VT+1}\nv_and_b32 v{VT}, 15, v{VT}\nv_lshl_add_u32 v{VT+1}, v{VT}, 7, v{VT+1}")
            p(f"s_and_b32 s{T}, s{S_WAVE}, 3\ns_lshl2_add_u32 s{S_X}, s{S_HH}, s{T}\ns_mul_i32 s{S_X}, s{S_X}, {28*2048}\ns_add_u32 s{S_X}, s{S_X}, {WS_ACT}")
            p(f"s_lshl4_add_u32 s{S_Y}, s{S_HH}, s{T}\ns_lshl_b32 s{S_Y}, s{S_Y}, 7\ns_add_u32 s{S_Y}, s{S_Y}, {WS_FA}")
            have = -1
            for st in c.h_act:
                p(f"s_add_u32 s{S_HI}, s{S_X}, {2048*st}")
                if st > have:
                    have = min(x for x in c.fstages if x >= st)
                    p(f"s_add_u32 s{S_LO}, s{S_Y}, {512*have}")
                    self.flag_check(self.flag_load("H", S_LO, 7, None), None, sleep=c.h_sleep)
                p(f"buffer_load_dword v{VT+2}, v{VT+1}, {s(R_WS,4)}, s{S_HI} offen sc1")
                self.stamp(f"pa{st}")
        p(f"s_waitcnt vmcnt(0)")
        self.stamp("pfa")
        p(f"s_cmp_lg_u32 s{S_HH}, 31\ns_cbranch_scc1 L_hend\ns_cmp_lg_u32 s{S_WAVE}, 7\ns_cbranch_scc1 L_hend")
        p(f"v_lshrrev_b32 v{VT}, 2, v0\nv_min_u32 v{VT}, 13, v{VT}\nv_lshlrev_b32 v{VT}, 9, v{VT}\nv_and_b32 v{VT+1}, 3, v0\nv_lshl_add_u32 v{VT}, v{VT+1}, 4, v{VT}\ns_mov_b32 s{S_X}, {WS_FS}")
        ld = f"s_sleep 8\nbuffer_load_dwordx4 {v(XD,4)}, v{VT}, {s(R_WS,4)}, s{S_X} offen sc1"
        p(ld)
        self.tagged_check(ld, [XD, XD + 1, XD + 2, XD + 3], VT + 2)
        p(f"s_mov_b32 s{S_X}, {WS_EPOCH}")
        self.flag_store(S_X, AC + 3)
        p.label("L_hend")
        self.stamp_flush(1)
        p("s_endpgm")

    def layout(self, body):
        c = self.c
        lines = body.split("\n")
        sizes = instr_sizes([re.sub(r"L_hop\d", "L_bodyA", l) for l in lines])
        end = lines.index("L_bodyH:") if c.h_near else lines.index("L_helper:")
        out, addr, page, k = [], 0, 1, 0
        prom = None
        fixed = [0, 0]
        for i, l in enumerate(lines):
            t = l.strip()
            if t.startswith(".p2align"):
                al = 1 << int(t.split()[1]); addr = (addr + al - 1) // al * al; prom = None
            if c.hops and sizes[i] and addr >= 4096 * page and i < end:
                out += [f"L_hop{k}:", f"    s_cbranch_execz {'L_bodyA' if k == 0 else 'HOP%d' % (k + 4)}"]; addr += 4; page += 1; k += 1; prom = None
            if c.align8 and sizes[i] == 8 and addr % 8 == 4:
                run, pend, valu = 0, 0, 0
                for j in range(i, min(len(lines), i + 60)):
                    if sizes[j] == 4: pend ^= 1
                    elif sizes[j] == 8:
                        if pend: break
                        run += 1; valu += lines[j].strip().startswith("v_") and "mfma" not in lines[j]
                if prom is not None and run >= 2:
                    m = re.match(r"(\s*)(v_\w+)(.*)", out[prom]); out[prom] = m.group(1) + m.group(2) + "_e64" + m.group(3); addr += 4; fixed[0] += 1
                elif valu >= c.align8:
                    out.append("    s_nop 0"); addr += 4; fixed[1] += 1
            if sizes[i] == 8: prom = None
            elif sizes[i] == 4 and re.match(r"v_(mov|add|sub|subrev|mul|and|or|xor|lshlrev|lshrrev|exp|rcp|sin|cos|fract|min|max|cvt|sqrt)_", t): prom = len(out)
            out.append(l); addr += sizes[i]
        body = "\n".join(out)
        if c.hops:
            assert c.align4k and k >= 5
            for j in range(k + 3, 4, -1): body = body.replace(f"HOP{j}", f"L_hop{j}" if j < k else "L_hopped")
        self.p.stats["align"] = fixed
        return body
    def build(self):
        p = self.p
        self.entry()
        self.role_a(); self.role_h()
        p.reset()
        p.label("L_exit")
        p("s_endpgm")
        p(".p2align 7")
        p(".type L_gtab,@object")
        p.label("L_gtab")
        w = self.gather_table()
        for i in range(0, len(w), 8): p(".long " + ", ".join(hex(x) for x in w[i:i+8]))
        p.label("L_end")
        body = p.resolve()
        head = open("recurrent_scan__ssm_conv_s4__dense_activation_mish__prompt.s.ref").read().split("; Override launch")[0]
        txt = head + f"; @launch grid=(256,1,1) block=(512,1,1) lds={LDS_BYTES}\n" + DOC + ""
        pad = ".p2align 12\n.fill 832, 4, 0xbf810000\n" if self.c.align4k else ""
        txt += f'.amdgcn_target "amdgcn-amd-amdhsa--gfx950"\n.text\n{pad}.globl {KNAME}\n.p2align 8\n.type {KNAME},@function\n{KNAME}:\n'
        if "m" in self.c.diag or "n" in self.c.diag:
            cnt = [0]
            def sub(m):
                cnt[0] += 1
                k = (cnt[0] - 1) // 4
                if ("m" if k < 28 else "n") not in self.c.diag: return m.group(0)
                a = int(m.group(1)) + 8 * (k & 1); z = k % 28 < 2
                return "\n".join(f"    v_mfma_f32_16x16x32_bf16 v[{a+4*i}:{a+4*i+3}], {m.group(2)}, {m.group(3)}, " + ("0" if z else f"v[{a+4*i}:{a+4*i+3}]") for i in range(2))
            body = re.sub(r"    v_mfma_f32_32x32x16_bf16 v\[(\d+):\d+\], (v\[\d+:\d+\]), (v\[\d+:\d+\]), \S+", sub, body)
        if self.c.dma_fl: body = re.sub(r" lds$", f" {self.c.dma_fl} lds", body, flags=re.M)
        body = self.layout(body)
        txt += body
        txt += f""".section .rodata,"a"
.p2align 6
.amdhsa_kernel {KNAME}
  .amdhsa_next_free_vgpr 256
  .amdhsa_next_free_sgpr 102
  .amdhsa_accum_offset 256
  .amdhsa_group_segment_fixed_size 0
  .amdhsa_kernarg_size 128
  .amdhsa_user_sgpr_count 2
  .amdhsa_user_sgpr_kernarg_segment_ptr 1
  .amdhsa_system_sgpr_workgroup_id_x 1
.end_amdhsa_kernel
"""
        return txt

def parse_cfg(args):
    kw = {}
    for a in args:
        k, x = a.split("=")
        kw[k] = eval(x)
    return Cfg(**kw)

if __name__ == "__main__":
    out = sys.argv[1]
    g = Gen(parse_cfg(sys.argv[2:]))
    txt = g.build()
    open(out, "w").write(txt)
    import json
    json.dump(g.stamp_names, open(out + ".stamps.json", "w"))
    print(out, g.p.stats)
```

```python
import sys, re
from asmgen import *

KNAME = "recurrent_scan__ssm_conv_s4__dense_activation_mish__prompt_kernel"

class Cfg:
    stamps = False
    sset = 0
    cyc = False
    prole = 'A'
    probe2 = None
    probe = None
    prefetch_code = True
    pf_h = False
    align4k = True
    align8 = 6
    hops = True
    mapP = False
    rot2 = 0
    qperm = False
    g2_mix = True
    alay = 1
    xts = 4096 + 512
    act_st = 'sc1'
    act_ld = 'sc1'
    fa_st = 'sc1'
    mish_pk = False
    sflag = 'XAS'
    spoll = 'XASH'
    adepth = 7
    flead = 6
    pre_dma = 32
    nfirst = 12
    a_delay = 0
    a_chunks = 4
    dma_per = (8, 8, 8, 8, 8, 8, 8)
    gran_at = 5
    bw2 = (8, 12, 16, 16)
    w2_mish = 0
    fx_ld = 9
    fx_chk = 29
    u_at = 1
    lds_cut = (0, 0, 0, 0, 0, 0, 0)
    r_early = 4
    r_at = 4
    r2 = 8
    nx = 2
    b7_at = -3
    br0 = 0
    late6 = True
    cmajor = True
    ex_n = 0
    side_at = (0, 6)
    side_first = True
    touch_first = True
    out_fl = 'nt'
    mish_skip = 0.0
    w2_lead = 9
    w2_rate = 0.0
    w2_gap = 2
    rdepth = 3
    fstages = (3,)
    cstages = None
    flag_lag = 2
    gt_at = 2
    b_pre = 1.0
    kg_pre = 9999
    kg_ints = 4
    kg_x = 0.0
    h_w1 = 2
    h_touch = -1
    s_touch = (7, 14, 14, 14, 14)
    h_near = True
    h_align = True
    h_pf = ()
    diag = ''
    jitter = 0
    h_act = ()
    h_sleep = 4
    rot1 = 3
    fs_sleep = 3
    b_xat = 0
    prio_b = 1
    prio_b2 = 0
    prio_b3 = 1
    prio_b4 = 1
    prio_b5 = 1
    prio_b6 = 0
    prio_b7 = 0
    prio_b8 = 1
    prio_a1 = 2
    prio_a2 = 0
    tail_m = 5
    tail_ld = True
    tail_k = 3
    tail_r = None
    fin_at = (1, 2, 3, 21)
    prio_b9 = 0
    b5_sleep = 1
    pre_loop = 'R12 D20 W F D26 L C A8'
    dma_fl = ''
    def __init__(self, **kw):
        for k, x in kw.items():
            assert hasattr(self, k), k
            setattr(self, k, x)

WS_EPOCH, WS_FX, WS_FA, WS_FS = 0, 0x1000, 0x20000, 0x8000
WS_STAT, WS_CS, WS_XT, WS_ST, WS_ACT, WS_DBG = 0x10000, 0x14000, 0x40000, 0x300000, 0x600000, 0xE00000
ALAY = ((8192, 2048, 1024), (2048, 896 * 2048, 1024), (1024, 896 * 2048, 896 * 1024))
WS_SIZE = 0x1000000
TAGC = 0x9E3779B1
SLOT = 32768
L_RING = 2 * SLOT
L_STG = 0
L_TAB = 512
TCP, TCH = 2240, 9472
L_EX = 0
L_RAW = SLOT + 1024
L_U = L_TAB + 2 * TCH
L_X = L_RAW
L_STR = L_RAW + 21504
L_CNT = L_RAW + 30720
LDS_BYTES = 163840
P_U, P_ARE, P_AIM, P_BRE, P_BIM, P_CRE, P_CIM, P_LDT = 4, 6, 8, 10, 12, 14, 16, 18
P_DSK, P_BX, P_W1, P_B1, P_W2, P_OUT, P_DBG, P_WS = 20, 22, 24, 26, 28, 30, 32, 34
R_LD, R_2, R_WS, R_PC = 36, 40, 44, 48
S_TAG, S_TAG2, S_WAVE, S_XCD, S_J, S_RT, S_CT, S_CP = 52, 53, 54, 55, 56, 57, 58, 97
S_SOFF, S_CSTR, S_LDB, S_CW, S_WT, S_WF = range(64, 70)
VD = 1
B_BW, B_LDT, B_DSK, B_STW, B_VP = 70, 71, 72, 73, 10
S_R2, S_C2 = 60, 61
S_T = 62
S_SP = 80
S_JR, S_XF = 3, 59
S_CNT = 96
S_T0 = 98
LOG2E = 0x3fb8aa3b
POLL_MAX = 1 << 17

DOC = """;
; Hand-offs go through d_ws with write-through stores; flags and tagged words hold a value derived from an epoch word in d_ws,
"""

def srd(p, r, ptr, size):
    p(f"s_mov_b32 s{r}, s{ptr}\ns_mov_b32 s{r+1}, s{ptr+1}\ns_mov_b32 s{r+2}, {size}\ns_mov_b32 s{r+3}, 0x20000")

class Gen:
    def __init__(self, cfg):
        self.c = cfg
        self.p = Prog()
        self.nlab = 0
        self.stamp_names = {}
    def lab(self, base):
        self.nlab += 1
        return f"L_{base}_{self.nlab}"

    def stamp_begin(self, role):
        self.role = role; self.stamp_names[role] = []
    def stamp(self, name, p=None, sets=(0,)):
        if self.c.jitter:
            q = p or self.p; l = self.lab("jit"); k = self.nlab * 40503 + self.c.jitter * 9176
            q(f"s_lshl3_add_u32 s100, s2, s{S_WAVE}\ns_add_u32 s100, s100, {k & 0xffff}\ns_mul_i32 s100, s100, 0x9E3779B1\ns_add_u32 s100, s100, s{S_TAG}\ns_mul_i32 s100, s100, 0x85EBCA6B\ns_lshr_b32 s100, s100, 29\ns_cmp_lg_u32 s100, 0\ns_cbranch_scc1 {l}\ns_sleep {(20, 60, 120)[self.nlab % 3]}")
            q.label(l)
        if self.c.probe2 and self.role == self.c.prole:
            if name == self.c.probe2[0]: (p or self.p)("s_memrealtime s[100:101]")
            if name == self.c.probe2[1]: (p or self.p)("s_memrealtime s[32:33]")
        if self.c.probe == (self.role, name): (p or self.p)("s_memrealtime s[100:101]")
        if not self.c.stamps or self.c.sset not in sets: return
        p = p or self.p
        n = len(self.stamp_names[self.role]); assert n < 15
        self.stamp_names[self.role].append(name)
        p(f"{'s_memtime' if self.c.cyc else 's_memrealtime'} {s(4+2*n, 2)}")
    def stamp_flush(self, vt):
        if self.c.probe2 and self.role == self.c.prole:
            l0, l1 = self.lab("probe"), self.lab("noprobe")
            if self.c.probe2[2] < 0: self.p("s_waitcnt vmcnt(0) lgkmcnt(0)")
            else: self.p(f"s_waitcnt vmcnt(0) lgkmcnt(0)\ns_cmp_lg_u32 s2, {self.c.probe2[2]}\ns_cbranch_scc1 {l1}\ns_cmp_lg_u32 s{S_WAVE}, {5 if self.role == 'B' else 1}\ns_cbranch_scc1 {l1}")
            self.p("s_sub_u32 s32, s32, s100\ns_mul_i32 s32, s32, 20\ns_add_u32 s32, s32, 3000")
            self.p.label(l0)
            self.p(f"s_memrealtime s[30:31]\ns_waitcnt lgkmcnt(0)\ns_sub_u32 s30, s30, s98\ns_cmp_lt_u32 s30, s32\ns_cbranch_scc1 {l0}")
            self.p.label(l1)
        if self.c.probe and self.c.probe[0] == self.role:
            l0 = self.lab("probe")
            self.p("s_waitcnt vmcnt(0) lgkmcnt(0)")
            self.p.label(l0)
            self.p(f"s_memrealtime s[98:99]\ns_waitcnt lgkmcnt(0)\ns_sub_u32 s98, s98, s100\ns_cmp_lt_u32 s98, 6000\ns_cbranch_scc1 {l0}")
        if not self.c.stamps: return
        p = self.p
        n = len(self.stamp_names[self.role])
        p("s_waitcnt vmcnt(0) lgkmcnt(0)\ns_mov_b64 exec, 1")
        p(f"s_lshl_b32 s{S_T}, s2, 3\ns_add_u32 s{S_T}, s{S_T}, s{S_WAVE}\ns_lshl_b32 s{S_T}, s{S_T}, 6\ns_add_u32 s{S_T}, s{S_T}, {WS_DBG}")
        p(f"v_mov_b32 v{vt}, s{S_T0}\nbuffer_store_dword v{vt}, off, {s(R_WS,4)}, s{S_T}")
        for i in range(n):
            p(f"v_mov_b32 v{vt+1+(i&1)}, s{4+2*i}\nbuffer_store_dword v{vt+1+(i&1)}, off, {s(R_WS,4)}, s{S_T} offset:{4+4*i}")
        p("s_waitcnt vmcnt(0)")

    def flag_store(self, soff, vt):
        p = self.p
        p(f"s_mov_b64 exec, 1\nbuffer_store_dword v{vt}, off, {s(R_WS,4)}, s{soff} sc1\ns_mov_b64 exec, -1")
    def sflags4(self, soff):
        for i in range(4):
            self.p(f"s_atomic_swap s{S_TAG}, {s(R_WS,2)}, s{soff}")
            if i < 3: self.p(f"s_add_u32 s{soff}, s{soff}, 128")
    def lds_post(self, vown, vtag, k):
        self.p(f"s_mov_b64 exec, 1\nds_write_b32 v{vown}, v{vtag} offset:{16*k}\ns_mov_b64 exec, -1")
    def lds_wait(self, vaddr, vt, k, sleep=0):
        p = self.p
        l0, l1 = self.lab("spin"), self.lab("spun")
        p(f"s_mov_b32 s{S_CNT}, 0")
        p.label(l0)
        if sleep: p(f"s_sleep {sleep}")
        p(f"ds_read_b32 v{vt}, v{vaddr} offset:{16*k}\ns_add_u32 s{S_CNT}, s{S_CNT}, 1\ns_cmp_gt_u32 s{S_CNT}, {POLL_MAX*8}\ns_waitcnt lgkmcnt(0)")
        p(f"v_cmp_ne_u32 vcc, s{S_TAG}, v{vt}\ns_cbranch_scc1 {l1}\ns_cbranch_vccnz {l0}")
        p.label(l1)
    def lds_peek(self, vaddr, vt, k):
        self.p(f"ds_read_b32 v{vt}, v{vaddr} offset:{16*k}")
    def lds_check(self, vaddr, vt, k, fill=None):
        p = self.p
        l1 = self.lab("pass")
        p(f"v_cmp_ne_u32 vcc, s{S_TAG}, v{vt}")
        if fill: fill()
        p(f"s_cbranch_vccz {l1}")
        p.alt_begin(); self.lds_wait(vaddr, vt, k); p.alt_end()
        p.label(l1)
    def tagged_check(self, loads, tagregs, vt, on_miss=None):
        p = self.p
        l0, l1 = self.lab("chk"), self.lab("chkd")
        p(f"s_mov_b32 s{S_CNT}, 0")
        for r in reversed(tagregs): p.items.append(Marker("need", r))
        p.label(l0)
        p(f"v_xor_b32 v{vt}, s{S_TAG}, v{tagregs[0]}")
        for r in tagregs[1:]:
            p(f"v_bitop3_b32 v{vt}, v{r}, s{S_TAG}, v{vt} bitop3:0xbe")
        p(f"v_cmp_ne_u32 vcc, 0, v{vt}\ns_add_u32 s{S_CNT}, s{S_CNT}, 1\ns_cbranch_vccz {l1}")
        p(f"s_cmp_gt_u32 s{S_CNT}, {POLL_MAX}\ns_cbranch_scc1 {l1}")
        p.alt_begin()
        if on_miss:
            l3 = self.lab("again")
            p(f"s_cmp_lg_u32 s{S_CNT}, 1\ns_cbranch_scc1 {l3}")
            p.alt_begin(); on_miss(); p.alt_end()
            p.label(l3)
        p(loads)
        p(f"s_waitcnt vmcnt(0)\ns_branch {l0}")
        p.alt_end()
        p.label(l1)

    def entry(self):
        p, c = self.p, self.c
        T = S_T
        p(f"s_load_dwordx16 s[4:19], s[0:1], 0\ns_load_dwordx16 s[20:35], s[0:1], 64")
        p(f"s_cmp_ge_u32 s2, 256\ns_cbranch_scc1 L_exit")
        if c.stamps: p(f"{'s_memtime' if c.cyc else 's_memrealtime'} {s(S_T0,2)}")
        if c.probe and c.probe[1] == "start": p("s_memrealtime s[100:101]")
        if c.probe2: p("s_memrealtime s[98:99]\ns_memrealtime s[100:101]")
        if "k" in c.diag: p("s_waitcnt lgkmcnt(0)\ns_memtime s[100:101]")
        p(f"v_lshrrev_b32 v1, 6, v0\nv_and_b32 v0, 63, v0\nv_readfirstlane_b32 s{S_WAVE}, v1")
        p(f"s_and_b32 s{S_XCD}, s2, 7\ns_lshr_b32 s{S_J}, s2, 3")
        p(f"s_getpc_b64 {s(R_PC,2)}")
        p.label("L_pc")
        p(f"s_mov_b32 s{R_PC+2}, L_end-L_pc\ns_mov_b32 s{R_PC+3}, 0x20000")
        if c.prefetch_code and not c.pf_h:
            p(f"s_lshl3_add_u32 s{T}, s{S_J}, s{S_WAVE}\ns_lshl_b32 s{T}, s{T}, 7")
            p(f"buffer_load_dword v255, off, {s(R_PC,4)}, s{T}")
        p(f"s_mov_b32 s{R_WS+2}, {WS_SIZE}\ns_mov_b32 s{R_WS+3}, 0x20000")
        p(f"s_cmp_ge_u32 s{S_J}, 28\ns_cbranch_scc1 L_helper")
        p(f"s_mul_i32 s{S_JR}, s{S_J}, 37\ns_lshr_b32 s{S_JR}, s{S_JR}, 8\ns_mul_i32 s{T}, s{S_JR}, 7\ns_sub_u32 s{S_C2}, s{S_J}, s{T}")
        if c.mapP: p(f"s_lshr_b32 s{S_RT}, s{S_JR}, 1\ns_lshl1_add_u32 s{S_RT}, s{S_XCD}, s{S_RT}\ns_and_b32 s{S_XF}, s{S_JR}, 1")
        else: p(f"s_lshr_b32 s{S_RT}, s{S_XCD}, 1\ns_lshl2_add_u32 s{S_RT}, s{S_RT}, s{S_JR}\ns_and_b32 s{S_XF}, s{S_XCD}, 1")
        p(f"s_cmp_lt_u32 s{S_WAVE}, 4\ns_cbranch_scc1 L_common")
        p.alt_begin()
        if c.prio_b: p(f"s_setprio {c.prio_b}")
        p(f"s_sub_u32 s{B_BW}, s{S_WAVE}, 4\ns_mul_i32 s{S_CP}, s{S_XCD}, 28\ns_add_u32 s{S_CP}, s{S_CP}, s{S_J}\ns_lshl_b32 s{T}, s{S_CP}, 2")
        p(f"s_add_u32 s{B_STW}, s{T}, s{B_BW}\ns_lshl_b32 s{B_STW}, s{B_STW}, 8\nv_lshl_add_u32 v50, v0, 2, s{B_STW}")
        p(f"s_load_dword s{B_LDT}, {s(P_LDT,2)}, s{T}")
        for i, ptr in enumerate((P_ARE, P_AIM, P_BRE, P_BIM, P_CRE, P_CIM)):
            p(f"global_load_dword v{B_VP+i}, v50, {s(ptr,2)}")
        p(f"s_load_dword s{B_DSK}, {s(P_DSK,2)}, s{T}")
        if c.prio_b != c.prio_b2: p(f"s_setprio {c.prio_b2}")
        p.alt_end()
        p.label("L_common")
        VT, S_X, S_Y = 24, 78, 79
        p(f"s_and_b32 s{S_WT}, s{S_WAVE}, 1\ns_bfe_u32 s{S_WF}, s{S_WAVE}, 0x10001\ns_mul_i32 s{S_CT}, s{S_XF}, 7\ns_add_u32 s{S_CT}, s{S_CT}, s{S_C2}")
        p(f"s_lshl1_add_u32 s{T}, s{S_RT}, s{S_WF}\ns_mul_i32 s{T}, s{T}, {64*896}")
        p(f"s_mul_i32 s{T+1}, s{S_WF}, {32*14}\ns_add_u32 s{T+1}, s{T+1}, s{S_CT}\ns_lshl_b32 s{T+1}, s{T+1}, 8")
        p(f"s_lshl1_add_u32 s{S_LDB}, s{S_WT}, s{S_WF}\ns_lshl_b32 s{S_LDB}, s{S_LDB}, 13")
        p(f"s_add_u32 s{S_X}, s{S_WT}, 3\nv_lshrrev_b32 v{VT}, s{S_X}, v0\ns_lshl_b32 s{S_X}, s{S_WT}, 1\nv_lshrrev_b32 v{VT+1}, 4, v0\nv_lshlrev_b32 v{VT+1}, s{S_X}, v{VT+1}")
        p(f"s_lshl_b32 s{S_Y}, 896, s{S_X}\nv_xor_b32 v{VT+1}, v0, v{VT+1}\nv_mul_u32_u24 v{VT}, s{S_Y}, v{VT}")
        p(f"s_cmp_eq_u32 s{S_WT}, 0")
        p(f"s_cselect_b32 s{S_SOFF}, s{T}, s{T+1}\ns_cselect_b32 s{S_CSTR}, 1, {64*28}\ns_cselect_b32 s{S_X}, 7, 15\ns_cselect_b32 s{S_Y}, 64, 0\ns_cselect_b32 s{R_LD+2}, 8, 7")
        p(f"v_and_b32 v{VT+1}, s{S_X}, v{VT+1}\nv_lshl_add_u32 v{VD}, v{VT+1}, 4, v{VT}\nv_xor_b32 v{VD+1}, s{S_Y}, v{VD}")
        p(f"s_lshl_b32 s{S_CSTR}, s{S_CSTR}, 7")
        if c.rot1 == 1: p(f"s_mov_b32 s{S_J}, s{S_C2}")
        if c.rot1 == 3: p(f"s_and_b32 s{S_J}, s{S_XCD}, 6")
        if c.rot1 == 4: p(f"s_lshr_b32 s{S_J}, s{S_XCD}, 1\ns_and_b32 s{S_J}, s{S_J}, 1\ns_mul_i32 s{S_J}, s{S_J}, 3")
        if c.rot1 == 5: p(f"s_min_u32 s{S_J}, s{S_XCD}, 6")
        if c.rot1: p(f"s_mul_i32 s{T}, s{S_J}, s{S_CSTR}\ns_add_u32 s{S_SOFF}, s{S_SOFF}, s{T}\ns_mul_i32 s{S_CW}, s{S_CSTR}, 7")
        p(f"s_mul_i32 s{R_LD+2}, s{R_LD+2}, {256*896}\ns_mov_b32 s{R_LD+3}, 0x20000\ns_lshl_b32 s{S_Y}, 7168, s{S_WT}")
        p(f"s_sub_u32 s{T}, s{S_Y}, 1024\nv_add_u32 v{VD+1}, s{T}, v{VD+1}\ns_lshl_b32 s{T}, s{T}, 1")
        p(f"v_add_u32 v{VD+2}, s{T}, v{VD}\nv_add_u32 v{VD+3}, s{T}, v{VD+1}\ns_lshl_b32 s{T}, s{S_Y}, 2")
        for i in range(4): p(f"v_add_u32 v{VD+4+i}, s{T}, v{VD+i}")
        p(f"s_cmp_ge_u32 s{S_WAVE}, 4\ns_cbranch_scc1 L_roleB")
    def loader_base(self):
        self.p(f"s_cmp_eq_u32 s{S_WT}, 0\ns_cselect_b32 s{R_LD}, s{P_U}, s{P_W1}\ns_cselect_b32 s{R_LD+1}, s{P_U+1}, s{P_W1+1}")
    def dma_chunk(self, n, T, ctok):
        r = []
        for i in range(8):
            q = Prog()
            if i % 4 == 0: q(f"s_add_u32 m0, s{S_LDB}, {(3, 4, 1, 2)[n % 4]*SLOT + (i//4)*4096}")
            ctok[n] = q.tok(f"buffer_load_dwordx4 v{VD+i}, {s(R_LD,4)}, s{S_SOFF} offen offset:{(i%4)*1024} lds")
            if i == 7 and n < 6:
                q(f"s_add_u32 s{S_SOFF}, s{S_SOFF}, s{S_CSTR}")
                if self.c.rot1: q(f"s_cmp_eq_u32 s{S_J}, {6-n}\ns_cselect_b32 s{T}, s{S_CW}, 0\ns_sub_u32 s{S_SOFF}, s{S_SOFF}, s{T}")
            r.append(q.items)
        return r
    def role_start(self, b=False):
        p = self.p
        p.reset()
        if self.c.prefetch_code and not self.c.pf_h: p.items.append(Marker("pending", ("vmem", {"v255"})))
        if b:
            p.items.append(Marker("pending", ("smem", {f"s{B_LDT}", f"s{B_DSK}"})))
            for i in range(6): p.items.append(Marker("pending", ("vmem", {f"v{B_VP+i}"})))
        else:
            p.items.append(Marker("pending", ("smem", {f"s{i}" for i in range(4, 36)})))
    def load_epoch(self):
        self.p(f"s_load_dword s{S_TAG}, {s(P_WS,2)}, {WS_EPOCH}\ns_mov_b32 s{R_WS}, s{P_WS}\ns_mov_b32 s{R_WS+1}, s{P_WS+1}")
    def make_tag(self):
        self.p(f"s_add_u32 s{S_TAG}, s{S_TAG}, {TAGC}\ns_mov_b32 s{S_TAG2}, s{S_TAG}")
    def flag_load(self, which, soff, n, va, q=None):
        if which in self.c.spoll:
            w = 8 if n <= 8 else 16
            txt = f"s_buffer_load_dwordx{w} {s(S_SP,w)}, {s(R_WS,4)}, s{soff} glc"
        else:
            txt = f"buffer_load_dword v{va+1}, v{va}, {s(R_WS,4)}, s{soff} offen sc1"
        (q or self.p)(txt)
        return (which, txt, n, va)
    def flag_check(self, fl, vt, sleep=0, on_miss=None):
        which, txt, n, va = fl
        p = self.p
        if sleep: txt = f"s_sleep {sleep}\n" + txt
        if which not in self.c.spoll:
            return self.tagged_check(txt, [va + 1], vt, on_miss)
        l0, l1, l2 = self.lab("chk"), self.lab("retry"), self.lab("chkd")
        p(f"s_mov_b32 s{S_CNT}, 0")
        p.label(l0)
        p("s_waitcnt lgkmcnt(0)")
        for i in range(0, n - 2, 2): p(f"s_cmp_eq_u64 {s(S_SP+i,2)}, {s(S_TAG,2)}\ns_cbranch_scc0 {l1}")
        if n & 1: p(f"s_cmp_eq_u32 s{S_SP+n-1}, s{S_TAG}\ns_cbranch_scc1 {l2}")
        else: p(f"s_cmp_eq_u64 {s(S_SP+n-2,2)}, {s(S_TAG,2)}\ns_cbranch_scc1 {l2}")
        p.alt_begin()
        p.label(l1)
        if on_miss:
            l3 = self.lab("again")
            p(f"s_cmp_lg_u32 s{S_CNT}, 0\ns_cbranch_scc1 {l3}")
            p.alt_begin(); on_miss(); p.alt_end()
            p.label(l3)
        p(txt)
        p(f"s_add_u32 s{S_CNT}, s{S_CNT}, 1\ns_cmp_le_u32 s{S_CNT}, {POLL_MAX}\ns_cbranch_scc1 {l0}\ns_waitcnt lgkmcnt(0)")
        p.alt_end()
        p.label(l2)

    def fin_addr(self, ps, F, part):
        p, VT, T = self.p, F["VT"], S_T
        if part == 0:
            p(f"v_bfe_u32 v{VT+1}, v0, 2, 1\nv_lshrrev_b32 v{VT+2}, 3, v0\nv_and_b32 v{VT+3}, 3, v0\nv_lshl_add_u32 v{VT+4}, v{VT+1}, 4, v{VT+2}")
            p(f"v_mul_u32_u24 v{F['XO']}, 896, v{VT+4}\nv_lshl_add_u32 v{F['XO']}, v{VT+3}, 4, v{F['XO']}\nv_lshlrev_b32 v{F['STA']}, 3, v{VT+4}")
            a = F["PA"]
            p(f"v_xor_b32 v{a}, s{S_WF}, v{VT+1}\nv_lshlrev_b32 v{a}, 3, v{a}\nv_lshl_add_u32 v{a}, v{VT+3}, 1, v{a}\nv_xor_b32 v{a}, v{a}, v{VT+2}")
            p(f"s_lshl3_add_u32 s{T}, s{S_WT}, {(L_RING+ps*SLOT)//256}\nv_add_u32 v{VT+4}, s{T}, v{VT+4}\nv_lshlrev_b32 v{VT+4}, 8, v{VT+4}\nv_lshl_add_u32 v{a}, v{a}, 4, v{VT+4}\nv_xor_b32 v{a+1}, 16, v{a}")
        else:
            p(f"s_mul_i32 s{T}, s{F['w']}, 2304\ns_add_u32 s{T}, s{T}, {L_STR+1152*ps}\nv_mul_u32_u24 v{F['SA']}, 288, v{VT+3}\nv_and_b32 v{VT+4}, 60, v0\nv_add3_u32 v{F['SA']}, v{F['SA']}, v{VT+4}, s{T}")
            x, t = F["sXO"], F["sST"]
            p(f"s_lshl3_add_u32 s{x}, s{S_R2}, s{S_WT}\ns_add_u32 s{x}, s{x}, {4*ps}\ns_lshl_b32 s{t}, s{x}, 6\ns_add_u32 s{t}, s{t}, {WS_STAT}\ns_mul_i32 s{x}, s{x}, {8*896}\ns_lshl1_add_u32 s{T}, s{S_C2}, s{S_WF}\ns_lshl_b32 s{T}, s{T}, 6\ns_add_u32 s{x}, s{x}, s{T}")
    def fin_loads(self, F):
        self.p(f"buffer_load_dword v{F['RG']}, v{F['STA']}, {s(R_WS,4)}, s{F['sST']} offen sc1\nbuffer_load_dwordx4 {v(F['XI'],4)}, v{F['XO']}, {s(R_LD,4)}, s{F['sXO']} offen")
    def fin_prep(self, F):
        q = Prog(); r, c_, x = F["RG"], F["RC"], F["XF"]
        q(f"v_and_b32 v{r}, 0xffff0000, v{r}\nv_rcp_f32 v{r}, v{r}")
        for j in range(4): q(f"v_lshlrev_b32 v{x+2*j}, 16, v{F['XI']+j}\nv_and_b32 v{x+2*j+1}, 0xffff0000, v{F['XI']+j}")
        q(f"v_mul_f32 v{c_}, {LOG2E | 0x80000000}, v{r}\nv_mul_f32 v{c_+1}, {LOG2E | 0x80000000}, v{r}")
        return q.items
    def fin_sread(self, F):
        for i in range(4): self.p(f"ds_read_b32 v{F['SV']+i}, v{F['SA']} offset:{64*i}")
    def fin_sprep(self, F):
        q = Prog(); f = F["SF"]
        for i in range(4): q(f"v_lshlrev_b32 v{f+2*i}, 16, v{F['SV']+i}\nv_and_b32 v{f+2*i+1}, 0xffff0000, v{F['SV']+i}")
        for i in range(8): q(f"v_mul_f32 v{f+i}, v{f+i}, v{F['RG']}")
        return q.items
    def fin_out(self, F, fill=()):
        p, b = self.p, F["PV"]
        for w in range(4):
            for e in range(2): p(f"ds_read_b128 {v(b+8*w+4*e,4)}, v{F['PA']+e} offset:{8192*w}")
        p.extend(list(fill))
        for i in range(0, 8, 2): p(f"v_pk_add_f32 {v(b+i,2)}, {v(b+i,2)}, {v(b+8+i,2)}")
        for i in range(0, 8, 2): p(f"v_pk_add_f32 {v(b+16+i,2)}, {v(b+16+i,2)}, {v(b+24+i,2)}")
        for i in range(0, 8, 2): p(f"v_pk_add_f32 {v(b+i,2)}, {v(b+i,2)}, {v(b+16+i,2)}")
        for i in range(0, 8, 2): p(f"v_pk_mul_f32 {v(b+8+i,2)}, {v(b+i,2)}, {v(F['RC'],2)}")
        for i in range(8): p(f"v_exp_f32 v{b+8+i}, v{b+8+i}")
        for i in range(0, 8, 2): p(f"v_pk_mul_f32 {v(b+i,2)}, {v(b+i,2)}, {v(F['SF']+i,2)}")
        for i in range(0, 8, 2): p(f"v_pk_add_f32 {v(b+8+i,2)}, {v(b+8+i,2)}, 1.0 op_sel_hi:[1,0]")
        for i in range(8): p(f"v_rcp_f32 v{b+8+i}, v{b+8+i}")
        for i in range(0, 8, 2): p(f"v_pk_fma_f32 {v(b+i,2)}, {v(b+i,2)}, {v(b+8+i,2)}, {v(F['XF']+i,2)}")
        for i in range(4): p(f"v_cvt_pk_bf16_f32 v{b+16+i}, v{b+2*i}, v{b+2*i+1}")
        p(f"buffer_store_dwordx4 {v(b+16,4)}, v{F['XO']}, {s(F['OUT'],4)}, s{F['sXO']} offen {self.c.out_fl}")

    def role_a(self):
        p, c = self.p, self.c
        self.role_start(); self.stamp_begin("A")
        VXA, VWA, VW2A, VW2D, VL16, VFL, VC1, VT = 9, 13, 15, 19, 21, 22, 2, 24
        ACC, FR, W2R, AB = 32, 96, 96, 192
        S_ACTW, S_FAW, S_FAR, S_RING, S_ACTR, S_W2B, S_Z = range(70, 77)
        R_OUT = 64
        PS, SS, TS = ALAY[c.alay]
        S_X = 78; S_Y = 79
        T = S_T
        if "K" in c.diag: p("s_memtime s[100:101]")
        self.loader_base()
        ctok = {}
        dq = []
        for n in range(c.a_chunks): dq += self.dma_chunk(n, T, ctok)
        self.stamp("dma0", sets=(1,))
        if "k" in c.diag.lower():
            self.stamp("karg", sets=(1,)); p("s_waitcnt lgkmcnt(0)\ns_mov_b32 s6, s100")
        if c.a_delay: p(f"s_waitcnt lgkmcnt(0)"); p("\n".join(["s_nop 15"] * c.a_delay))
        for it in dq[:c.nfirst]: p.extend(it)
        self.load_epoch()
        if c.hops:
            p(f"s_mov_b64 exec, 0\ns_cmp_eq_u32 s{S_WAVE}, 3\ns_cbranch_scc1 L_hop0")
        p("s_branch L_bodyA")
        role = self.role
        if c.h_near: self.head_h()
        self.role_b()
        self.role = role
        p.label("L_bodyA")
        p.reset()
        p.items.append(Marker("pending", ("smem", {f"s{S_TAG}", "s94", "s95"})))
        if c.prefetch_code and not c.pf_h: p.items.append(Marker("pending", ("vmem", {"v255"})))
        for i in range(c.nfirst): p.items.append(Marker("pending", ("vmem", set(), ctok[i // 8] if i % 8 == 7 else None)))
        if c.hops: p("s_mov_b64 exec, -1")
        p(f"v_and_b32 v{VT}, 31, v0\nv_lshrrev_b32 v{VT+1}, 5, v0\nv_bfe_u32 v{VT+2}, v0, 1, 3\nv_xor_b32 v{VT+1}, v{VT+1}, v{VT+2}\nv_lshlrev_b32 v{VT+1}, 4, v{VT+1}")
        p(f"v_lshl_add_u32 v{VT+1}, v{VT}, 7, v{VT+1}\ns_add_u32 s{S_X}, s{S_WT}, 12\ns_lshl_b32 s{S_X}, s{S_X}, 13\nv_add_u32 v{VXA}, s{S_X}, v{VT+1}")
        for k in range(1, 4): p(f"v_xor_b32 v{VXA+k}, {32*k}, v{VXA}")
        p(f"s_lshl_b32 s{S_RING}, s{S_WAVE}, 13\ns_add_u32 s{S_RING}, s{S_RING}, {L_RING}")
        p(f"v_bfe_u32 v{VT}, v0, 4, 1\nv_lshlrev_b32 v{VT}, 5, v{VT}\nv_and_b32 v{VT+1}, 3, v0\nv_lshl_add_u32 v{VT}, v{VT+1}, 3, v{VT}")
        p(f"v_bfe_u32 v{VT+1}, v0, 2, 2\nv_lshrrev_b32 v{VT+2}, 5, v0")
        p(f"v_lshl_add_u32 v{VT+3}, v{VT+2}, 3, v{VT+1}\nv_lshl_add_u32 v{VT+3}, v{VT+3}, 8, v{VT}")
        p(f"s_lshl1_add_u32 s{S_Y}, s{S_WF}, 0x600\nv_xor_b32 v{VT+4}, s{S_Y}, v{VT+1}\nv_lshl_add_u32 v{VWA}, v{VT+4}, 6, v{VT+3}")
        if c.qperm: p(f"s_lshl1_add_u32 s{S_Z}, s{S_RT}, s{S_WT}\ns_and_b32 s{S_Z}, s{S_Z}, 3\ns_lshl_b32 s{S_Y}, s{S_Z}, 5\nv_xor_b32 v{VWA}, s{S_Y}, v{VWA}\ns_lshl_b32 s{S_Z}, s{S_Z}, 4")
        else: p(f"s_mov_b32 s{S_Z}, 0")
        p(f"v_xor_b32 v{VWA+1}, 64, v{VWA}")
        p(f"v_lshl_add_u32 v{VT+3}, v{VT+2}, 2, v{VT+1}\nv_lshl_add_u32 v{VT+3}, v{VT+3}, 7, v{VT}")
        p(f"v_lshrrev_b32 v{VT+4}, 1, v{VT+1}\nv_lshl_add_u32 v{VT+3}, v{VT+4}, 6, v{VT+3}\nv_add_u32 v{VW2A}, s{S_RING}, v{VT+3}")
        srd(p, R_2, P_W2, 1792 * 896)
        VB1 = 30
        p(f"s_lshl1_add_u32 s{S_Y}, s{S_CT}, s{S_WF}\ns_lshl_b32 s{S_X}, s{S_Y}, 7\nv_xor_b32 v{VB1+1}, s{S_Z}, v0\nv_lshl_add_u32 v{VB1}, v{VB1+1}, 1, s{S_X}\nglobal_load_ushort v{VB1}, v{VB1}, {s(P_B1,2)}")
        self.stamp("setup", sets=(1,))
        for it in dq[c.nfirst:c.pre_dma]: p.extend(it)
        VB1 = 30
        q = p
        VGA = 26
        q(f"v_xor_b32 v{VW2A+1}, 64, v{VW2A}\nv_add_u32 v{VW2A+2}, 0x10000, v{VW2A}\nv_xor_b32 v{VW2A+3}, 64, v{VW2A+2}")
        if c.br0 >= 0: q(f"v_xor_b32 v{VFL}, 0x10000, v{VW2A}\nv_xor_b32 v{VFL+1}, 0x10000, v{VW2A+1}")
        late = Prog(); q = late
        q(f"s_lshl1_add_u32 s{T+1}, s{S_RT}, s{S_WT}\ns_lshl_b32 s{S_X}, s{T+1}, 9\ns_add_u32 s{S_X}, s{S_X}, {WS_STAT}\nv_lshl_add_u32 v{VGA}, v0, 3, s{S_X}")
        q(f"s_lshl1_add_u32 s{S_Y}, s{S_CT}, s{S_WF}\ns_lshl_b32 s{S_X}, s{S_Y}, 9\ns_add_u32 s{S_X}, s{S_X}, {WS_CS}\nv_lshl_add_u32 v{VGA+1}, v{VB1+1}, 3, s{S_X}")
        q(f"s_mul_i32 s{S_ACTW}, s{T+1}, 28\ns_add_u32 s{S_ACTW}, s{S_ACTW}, s{S_Y}\ns_mul_i32 s{S_ACTW}, s{S_ACTW}, {PS}\ns_add_u32 s{S_ACTW}, s{S_ACTW}, {WS_ACT}")
        q(f"s_mul_i32 s{S_X}, s{S_Y}, 37\ns_lshr_b32 s{S_X}, s{S_X}, 8\ns_mul_i32 s{S_X}, s{S_X}, 25\ns_add_u32 s{S_X}, s{S_X}, s{S_Y}")
        q(f"s_lshl_b32 s{S_FAW}, s{T+1}, 9\ns_add_u32 s{S_FAW}, s{S_FAW}, s{S_X}\ns_lshl2_add_u32 s{S_FAW}, s{S_FAW}, {WS_FA}")
        q(f"s_lshl2_add_u32 s{S_R2}, s{S_XCD}, s{S_JR}")
        q(f"s_lshl4_add_u32 s{S_FAR}, s{S_R2}, s{S_WAVE}\ns_lshl_b32 s{S_FAR}, s{S_FAR}, 7\ns_add_u32 s{S_FAR}, s{S_FAR}, {WS_FA}")
        q(f"v_lshlrev_b32 v{VL16}, 4, v0")
        if "A" not in c.spoll: q(f"v_min_u32 v{VFL}, 6, v0\nv_lshlrev_b32 v{VFL}, 2, v{VFL}")
        q(f"v_lshrrev_b32 v{VT+4}, 3, v0\nv_mul_u32_u24 v{VT+4}, 896, v{VT+4}\nv_bfe_u32 v{VT+1}, v0, 4, 1\nv_lshlrev_b32 v{VT+1}, 2, v{VT+1}\nv_xor_b32 v{VT+1}, v0, v{VT+1}\nv_and_b32 v{VT+1}, 7, v{VT+1}")
        q(f"v_lshl_add_u32 v{VW2D}, v{VT+1}, 4, v{VT+4}\nv_add_u32 v{VW2D+1}, {7168-1024}, v{VW2D}")
        q(f"s_lshl2_add_u32 s{S_ACTR}, s{S_R2}, s{S_WAVE}\ns_mul_i32 s{S_ACTR}, s{S_ACTR}, {7*PS}\ns_add_u32 s{S_ACTR}, s{S_ACTR}, {WS_ACT}")
        q(f"s_mul_i32 s{S_W2B}, s{S_WAVE}, {448*7}\ns_add_u32 s{S_W2B}, s{S_W2B}, s{S_C2}\ns_lshl_b32 s{S_W2B}, s{S_W2B}, 7")
        q(f"s_lshl2_add_u32 s{S_X}, s{S_WAVE}, {L_CNT}\nv_mov_b32 v{VT+5}, s{S_X}")
        lateg = [[it] for it in late.items]
        S_AO = list(range(88, 95)); S_WO = [34, 35, 48, 49, 50, 51, 77]; S_ROT = 95
        if c.rot2:
            q = Prog()
            if c.rot2 == 1: q(f"s_mov_b32 s{S_ROT}, s{S_C2}")
            else: q(f"s_lshl1_add_u32 s{S_ROT}, s{S_JR}, s{S_C2}\ns_cmp_ge_u32 s{S_ROT}, 7\ns_cselect_b32 s{T+1}, 7, 0\ns_sub_u32 s{S_ROT}, s{S_ROT}, s{T+1}")
            lateg.append(q.items)
            for i in range(7):
                q = Prog()
                q(f"s_cmp_ge_u32 s{S_ROT}, {7-i}\ns_cselect_b32 s{T+1}, {i-7}, {i}\ns_add_u32 s{T+1}, s{T+1}, s{S_ROT}")
                lateg.append(q.items); q = Prog()
                q(f"s_mul_i32 s{S_AO[i]}, s{T+1}, {PS}\ns_add_u32 s{S_AO[i]}, s{S_AO[i]}, s{S_ACTR}\ns_mul_i32 s{S_WO[i]}, s{T+1}, {64*896}\ns_add_u32 s{S_WO[i]}, s{S_WO[i]}, s{S_W2B}")
                lateg += [[it] for it in q.items]
        S_Q = [S_ROT, S_W2B, S_ACTR, S_CT]
        if c.qperm:
            assert c.rot2
            q = Prog()
            for i in range(4): q(f"s_xor_b32 s{S_Q[i]}, s{S_JR}, {i}\ns_mul_i32 s{S_Q[i]}, s{S_Q[i]}, {16*896}")
            lateg += [[it] for it in q.items]
        self.make_tag()
        p(f"v_mov_b32 v{VT}, s{S_TAG}")
        GR = AB
        gloads = f"buffer_load_dwordx2 {v(GR,2)}, v{VGA}, {s(R_WS,4)}, 0 offen sc1\nbuffer_load_dwordx2 {v(GR+2,2)}, v{VGA+1}, {s(R_WS,4)}, 0 offen sc1"
        piece = [0, 1, 2, 0, 1, 2, 0]; pred = {3: 0, 4: 1, 5: 2, 6: 3}
        if c.br0 >= 0:
            piece = [-2, 0, 1, 2, 0, 1, 2]; pred = {4: 1, 5: 2, 6: 3}
            assert c.r_early == 4 and "A" in c.spoll
        wtok, rtok = {}, {}
        w2reg = lambda n: W2R + 8 * ((6, 7, 8, 9, 10, 11, 2, 3, 4, 5, 0, 1)[n] if n < 12 else 6 + (n - 12) % 5)
        areg = lambda n: AB + 8 * (n % 8) if n < 22 else W2R + 8 * (n - 22)
        xtra = lambda n: 24 <= n < 24 + c.nx
        def dma_w2(n):
            q = Prog(); gi = n >> 2
            if gi in pred and not xtra(n): q.wait(rtok[4 * pred[gi] + (n & 3)])
            q((f"s_add_u32 m0, s{T+1}, {(n&3)*2048}\n" if xtra(n) else f"s_add_u32 m0, s{S_RING}, {piece[gi]*SLOT + (n&3)*2048}\n") + (f"s_add_u32 s{S_Z}, s{S_WO[n%7]}, s{S_Q[n//7]}" if c.qperm else f"s_add_u32 s{S_Z}, s{S_WO[n%7]}, {16*(n//7)*896}" if c.rot2 else f"s_add_u32 s{S_Z}, s{S_W2B}, {(64*(n%7) + 16*(n//7))*896}"))
            if "5" in c.diag and n >= 24: wtok[n] = wtok[23]; return [[], []]
            q(f"buffer_load_dwordx4 v{VW2D}, {s(R_2,4)}, s{S_Z} offen lds")
            q2 = Prog()
            wtok[n] = q2.tok(f"buffer_load_dwordx4 v{VW2D+1}, {s(R_2,4)}, s{S_Z} offen offset:1024 lds")
            return [q.items, q2.items]
        def read_w2(n):
            q = Prog(); pc = -2 if xtra(n) else piece[n >> 2]
            if n == max(c.r_early, c.r2):
                keep, self.p = self.p, q
                self.lds_wait(VT + 5, VT + 1, 4)
                self.p = keep
            if n >= c.bw2[-1]: q.wait(wtok[n])
            for di in range(2):
                for h in range(2):
                    rtok[n] = q.tok(f"ds_read_b64_tr_b16 {v(w2reg(n)+4*di+2*h,2)}, v{(VFL if pc < 0 else VW2A+2*(pc>>1))+di} offset:{(pc&1)*SLOT + (n&3)*2048 + h*1024}")
            return [q.items]
        nw = [c.bw2[-1], 0]
        def w2_ops(k, maxread):
            r = []
            for _ in range(k):
                n = nw[0]
                if n >= 24: break
                for m in (n, n + 1):
                    if (m >> 2) in pred and m < 24:
                        need = 4 * pred[m >> 2] + (m & 3)
                        assert m > n or need < maxread
                        while nw[1] <= need and nw[1] < maxread: r += read_w2(nw[1]); nw[1] += 1
                r += dma_w2(n); nw[0] += 1
            return r
        def reads1(gs):
            n, k = gs >> 2, gs & 3
            base = FR + 16 * (gs % 3); so = (n & 1) * SLOT
            r = []
            for fi in range(2):
                for h in range(2):
                    r.append(I(f"ds_read_b64_tr_b16 {v(base+4*fi+2*h,2)}, v{VWA+fi} offset:{so+16384+k*4096+h*1024}"))
                r.append(I(f"ds_read_b128 {v(base+8+4*fi,4)}, v{VXA+k} offset:{so+fi*4096}"))
            return r
        def mfma1(gs):
            base = FR + 16 * (gs % 3)
            r = []
            for fi, ti in ((0, 0), (0, 1), (1, 0), (1, 1)):
                a = v(ACC + 32 * fi + 16 * ti, 16)
                r.append(I(f"v_mfma_f32_32x32x16_bf16 {a}, {v(base+4*fi,4)}, {v(base+8+4*ti,4)}, {'0' if gs == 0 else a}"))
            return r
        self.stamp("dmapre", sets=(1,))
        if c.hops:
            p("s_mov_b64 exec, 0")
            for w in range(3): p(f"s_cmp_eq_u32 s{S_WAVE}, {w}\ns_cbranch_scc1 L_hop{w+1}")
            p("s_branch L_hop4")
            p.label("L_hopped")
            p("s_mov_b64 exec, -1")
        nd = c.pre_dma
        nl = (len(lateg) + 3) // 4
        for n in range(7):
            if n < c.a_chunks: p.wait(ctok[n])
            if n == 0: self.stamp("c0", sets=(1,))
            p("s_waitcnt lgkmcnt(0)\ns_barrier")
            self.stamp(f"bar{n}", sets=(0, 1) if n in (0, 3, 6) else (1,))
            if n in (2, 4, 6):
                for r in list(range(VXA, VXA + 4)) + [VWA, VWA + 1]: p(f"v_xor_b32 v{r}, 0x10000, v{r}")
            upto = min(len(dq), 8 * (n + 4), max(nd + c.dma_per[n], 8 * (n + 2)))
            fill = dq[nd:upto]; nd = upto
            if n == c.gran_at:
                fill = fill + [[I(x)] for x in gloads.split("\n")]
            if n == c.r_at:
                while nw[1] < c.r_early:
                    fill = fill + [[it] for it in read_w2(nw[1])[0]]; nw[1] += 1
            last = []
            if n == 6:
                while nw[1] < c.r2:
                    its = read_w2(nw[1])[0]
                    if nw[1] < 6: fill = fill + [[it] for it in its]
                    else: last += its
                    nw[1] += 1
            g0 = 4 * n
            r0, r1, r2, r3 = (reads1(g0 + k) for k in range(4))
            body = []
            if n == 0: body.append(r0 + r1)
            else:
                mm = mfma1(g0 - 1)
                body += [r0, [mm[0]] + r1[:3], [mm[1]] + r1[3:], [mm[2]], [mm[3]]]
            for k, rd in ((0, r2), (1, r3), (2, None)):
                mm = mfma1(g0 + k)
                body += [[mm[0]] + (rd[:3] if rd else []), [mm[1]] + (rd[3:] if rd else []), [mm[2]], [mm[3]]]
            if n == 6:
                body[-5] = body[-5] + last[:4]; body[-4] = body[-4] + last[4:]
                body[c.b7_at] = body[c.b7_at] + [I(f"s_waitcnt lgkmcnt({len(last) if c.bw2[-1] <= 18 else 0})"), I("s_barrier")]
            merged = []
            j = 0
            for i, it in enumerate(body):
                grp = list(it)
                nb_ = len(body) - (5 if n == 6 else 0)
                while j < min(len(fill), (i + 1) * len(fill) // nb_): grp += fill[j]; j += 1
                merged.append(grp)
            lt = lateg[nl * n: nl * (n + 1)] if n < 4 else []
            p.extend(interleave(merged, lt))
        mm = mfma1(27)
        p.extend(mm[:1])
        self.tagged_check(gloads, [GR + 1, GR + 3], VT + 1)
        self.stamp("granules", sets=(0, 1, 3))
        FA_, FB_ = AB + 8, AB + 12
        q = Prog()
        q(f"s_mov_b32 s{S_X}, 0x01000100\nv_perm_b32 v{FB_}, v{GR}, v{GR}, s{S_X}\nv_lshrrev_b32 v{FB_+1}, 16, v{GR}\nv_xor_b32 v{FB_}, 0x80008000, v{FB_}")
        q(f"v_cvt_pk_bf16_f32 v{VT+1}, v{GR+2}, v{GR+2}\nv_mov_b32 v{FB_+2}, 0\nv_and_b32 v{VT+1}, 0xffff0000, v{VT+1}\nv_mov_b32 v{FB_+3}, 0\nv_sub_f32 v{VT+1}, v{GR+2}, v{VT+1}")
        q(f"v_mov_b32 v{FA_+1}, v{VB1}\nv_cvt_pk_bf16_f32 v{FA_}, v{GR+2}, v{VT+1}\nv_mov_b32 v{FA_+2}, 0\nv_mov_b32 v{FA_+3}, 0\nv_and_b32 v{VT+1}, 0xffff0000, v{GR}")
        q(f"v_permlane32_swap_b32 v{FB_}, v{FB_+2}\nv_permlane32_swap_b32 v{FB_+1}, v{FB_+3}\nv_permlane32_swap_b32 v{FA_}, v{FA_+2}\nv_permlane32_swap_b32 v{FA_+1}, v{FA_+3}")
        q(f"v_rcp_f32 v{VT+1}, v{VT+1}")
        p.extend(interleave(mm[1:], q.items))
        for fi, ti in ((0, 0), (0, 1), (1, 0), (1, 1)):
            a = v(ACC + 32 * fi + 16 * ti, 16)
            p(f"v_mfma_f32_32x32x8_bf16 {a}, {v(FA_+2*fi,2)}, {v(FB_+2*ti,2)}, {a}")
            if (fi, ti) == (0, 0): p(f"v_mul_f32 v{VC1}, {LOG2E}, v{VT+1}\nv_mul_f32 v{VC1+2}, {LOG2E}, v{VT+1}")
            if (fi, ti) == (0, 1): p(f"v_permlane32_swap_b32 v{VC1}, v{VC1+2}")
            if (fi, ti) == (1, 0) and c.mish_pk: p(f"v_mov_b32 v{VC1+1}, v{VC1}\nv_mov_b32 v{VC1+3}, v{VC1+2}")
        MT, MO = AB + 16, AB + 48
        def mish_group(a, ti, o, tset):
            t = MT + 16 * tset; u = t + 8
            r = []
            if c.mish_pk:
                for i in range(0, 8, 2): r.append(f"v_pk_mul_f32 {v(t+i,2)}, {v(a+i,2)}, {v(VC1+2*ti,2)}")
                for i in range(8): r.append(f"v_exp_f32 v{t+i}, v{t+i}")
                for i in range(0, 8, 2): r.append(f"v_pk_fma_f32 {v(u+i,2)}, {v(t+i,2)}, 0.5, 1.0 op_sel_hi:[1,0,0]")
                for i in range(0, 8, 2): r.append(f"v_pk_fma_f32 {v(u+i,2)}, {v(t+i,2)}, {v(u+i,2)}, 1.0 op_sel_hi:[1,1,0]")
                for i in range(8): r.append(f"v_rcp_f32 v{u+i}, v{u+i}")
                for i in range(0, 8, 2): r.append(f"v_pk_fma_f32 {v(u+i,2)}, {v(a+i,2)}, {v(u+i,2)}, {v(a+i,2)} neg_lo:[1,0,0] neg_hi:[1,0,0]")
            else:
                for i in range(8): r.append(f"v_mul_f32 v{t+i}, v{a+i}, v{VC1+2*ti}")
                for i in range(8): r.append(f"v_exp_f32 v{t+i}, v{t+i}")
                for i in range(8): r.append(f"v_fma_f32 v{u+i}, v{t+i}, 0.5, 1.0")
                for i in range(8): r.append(f"v_fma_f32 v{u+i}, v{t+i}, v{u+i}, 1.0")
                for i in range(8): r.append(f"v_rcp_f32 v{u+i}, v{u+i}")
                for i in range(8): r.append(f"v_fma_f32 v{u+i}, -v{a+i}, v{u+i}, v{a+i}")
            if "1" in c.diag: r = r[:len(r) // 2]; u = a
            for i in range(4): r.append(f"v_cvt_pk_bf16_f32 v{o+i}, v{u+2*i}, v{u+2*i+1}")
            return [I(x) for x in r]
        stok = {}
        def own_flag(st, q):
            if "A" in c.sflag:
                q(f"s_add_u32 s{T}, s{S_FAW}, {512*st}"); q.wait(stok[st]); q(f"s_atomic_swap s{S_TAG}, {s(R_WS,2)}, s{T}")
                return
            q.wait(stok[st])
            q(f"s_mov_b64 exec, 1\nbuffer_store_dword v{VT}, off, {s(R_WS,4)}, s{S_FAW} offset:{512*st} {c.fa_st}\ns_mov_b64 exec, -1")
        body = []
        gi = 0
        for st in range(4):
            for ti in range(2):
                o = MO + 4 * (gi % 4)
                body += mish_group(ACC + 32 * (st >> 1) + 16 * ti + 8 * (st & 1), ti, o, gi & 1)
                q = Prog()
                stok[st] = q.tok(f"buffer_store_dwordx4 {v(o,4)}, v{VL16}, {s(R_WS,4)}, s{S_ACTW} offen offset:{ti*TS if TS < 4096 else 0} {c.act_st}")
                if gi < 7 and TS >= 4096: q(f"s_add_u32 s{S_ACTW}, s{S_ACTW}, {TS if ti == 0 else SS - TS}")
                elif gi < 7 and ti == 1: q(f"s_add_u32 s{S_ACTW}, s{S_ACTW}, {SS}")
                if ti == 1: self.stamp(f"s{st}", q, sets=(3,))
                if ti == 1 and st - c.flag_lag in c.fstages: own_flag(st - c.flag_lag, q); self.stamp(f"f{st-c.flag_lag}", q, sets=(3,))
                body.append(q.items)
                gi += 1
        k0 = int(len(body) * c.mish_skip)
        p.extend(interleave(body[:k0], [])); p.extend(interleave(body[k0:], w2_ops(c.w2_mish, 12) + [[]]))
        self.stamp("mish", sets=(0, 4))
        rest = [st for st in c.fstages if st >= 4 - c.flag_lag]
        def flags_rest():
            for st in rest: own_flag(st, p)
        if c.prio_a1: p(f"s_setprio {c.prio_a1}")
        p(f"s_load_dwordx2 {s(R_LD,2)}, s[0:1], 0\ns_load_dwordx2 {s(R_OUT,2)}, s[0:1], 104\ns_mov_b32 s{R_LD+2}, {2048*896}\ns_mov_b32 s{R_OUT+2}, {2048*896}\ns_mov_b32 s{R_OUT+3}, 0x20000")
        m0_ = 28 - (c.tail_m if c.tail_ld else 0)
        aord = [(n, ti) for n in range(m0_) for ti in range(2)] + [(n, ti) for ti in range(2) for n in range(m0_, 28)]
        alast = [None]
        def load_act(k):
            for n, ti in aord[2 * k: 2 * k + 2]:
                if "a" in c.diag and n >= 7: continue
                assert n // 7 <= seen[0]
                far = ti * TS if TS >= 4096 else 0
                if alast[0] != n or TS >= 4096: p(f"s_add_u32 s{S_Y}, s{S_AO[n%7]}, {(n//7)*SS+far}" if c.rot2 else f"s_add_u32 s{S_Y}, s{S_ACTR}, {(n%7)*PS + (n//7)*SS+far}")
                alast[0] = n
                p(f"buffer_load_dwordx4 {v(areg(n)+4*ti,4)}, v{VL16}, {s(R_WS,4)}, s{S_Y} offen offset:{ti*TS-far} {c.act_ld}")
        seen = [-1, 0]
        def next_flags():
            st = min(x for x in (c.cstages or c.fstages) if x > seen[0])
            if st != seen[1]: p(f"s_add_u32 s{S_FAR}, s{S_FAR}, {512*(st-seen[1])}"); seen[1] = st
            return self.flag_load("A", S_FAR, 7, VFL)
        def check_flags(f, **kw):
            self.flag_check(f, VT + 1, **kw); seen[0] = seen[1]
            self.stamp(f"act{seen[0]}", sets=(0, 2, 3))
        def reads_upto(m):
            while nw[1] < min(m, 28): p.extend(read_w2(nw[1])[0]); nw[1] += 1
        def dmas_upto(m):
            while nw[0] < min(m, 28):
                if nw[0] == 24 and c.nx:
                    p(f"s_mul_i32 s{T+1}, s{S_WAVE}, {2048*c.nx}\ns_add_u32 s{T+1}, s{T+1}, {L_X}\ns_sub_u32 s{T}, s{T+1}, s{S_RING}\nv_add_u32 v{VFL}, s{T}, v{VW2A}\nv_add_u32 v{VFL+1}, s{T}, v{VW2A+1}")
                    p(f"v_and_b32 v14, 3, v0\nv_lshlrev_b32 v14, 2, v14\nv_add_u32 v14, {L_CNT}, v14")
                    self.lds_wait(14, VT + 1, 1)
                if (nw[0] >> 2) in pred and not xtra(nw[0]): assert nw[1] > nw[0] - 12
                for it in dma_w2(nw[0]): p.extend(it)
                nw[0] += 1
        D = c.adepth
        lead = c.flead
        fl = None
        na = 0
        for op in c.pre_loop.split():
            k = int(op[1:]) if len(op) > 1 else 0
            if op[0] == "R": reads_upto(k)
            elif op[0] == "D": dmas_upto(k)
            elif op[0] == "F":
                if rest: own_flag(rest.pop(0), p)
            elif op[0] == "W": p("s_waitcnt lgkmcnt(0)")
            elif op[0] == "L": fl = next_flags()
            elif op[0] == "C":
                assert not rest or seen[1] < rest[0]
                check_flags(fl, on_miss=flags_rest if rest else None); fl = None
            elif op[0] == "A":
                while na < k: load_act(na); na += 1
            elif op[0] == "V": p("s_waitcnt vmcnt(0)")
            elif op[0] == "T": self.lds_wait(VT + 5, VT + 1, 1)
            elif op[0] == "P": p(f"s_setprio {k}")
            if op[0] not in "L": self.stamp(op + "_" + str(len(self.stamp_names["A"])), sets=(4,))
        assert D <= na <= 8 and nw[1] >= c.rdepth and not rest
        M0 = nw[0]
        if c.prio_a1 != c.prio_a2: p(f"s_setprio {c.prio_a2}")
        self.stamp("flagA", sets=(0, 2, 3))
        assert D <= 7 and c.rdepth <= 4 and c.tail_m <= 5
        main = p
        VALL = 14
        F = dict(VT=VT, XO=9, PA=10, SA=12, STA=13, XI=184, RG=30, RC=116, XF=100, PV=AB, SV=176, SF=108, w=S_WAVE, sXO=S_ACTW, sST=S_X, OUT=R_OUT)
        f15 = lambda: self.fin_addr(1, F, 0)
        def f16():
            self.fin_addr(1, F, 1)
            if not c.nx: p(f"v_lshlrev_b32 v{VALL}, 2, v{VT+3}\nv_add_u32 v{VALL}, {L_CNT}, v{VALL}")
        def f17():
            p(f"v_and_b32 v{VT+3}, 31, v0\nv_lshrrev_b32 v{VT+1}, 5, v0\nv_and_b32 v{VT+2}, 7, v0\nv_xor_b32 v{VT+1}, v{VT+1}, v{VT+2}\nv_bfe_u32 v{VT+2}, v0, 4, 1\nv_lshl_or_b32 v{VT+1}, v{VT+2}, 3, v{VT+1}")
            p(f"v_lshlrev_b32 v{VT+1}, 4, v{VT+1}\nv_lshl_add_u32 v{VT+1}, v{VT+3}, 8, v{VT+1}\nv_add_u32 v{VD}, s{S_RING}, v{VT+1}")
            for k in range(1, 8): p(f"v_xor_b32 v{VD+k}, {32*k}, v{VD}")
        fin = dict(zip(c.fin_at, (f15, f16, f17, lambda: self.fin_loads(F))))
        tail = []
        for n in range(28):
            mm = []
            for di, ti in ((0, 0), (1, 0), (0, 1), (1, 1)):
                a = v(ACC + 32 * di + 16 * ti, 16)
                mm.append(I(f"v_mfma_f32_32x32x16_bf16 {a}, {v(w2reg(n)+4*di,4)}, {v(areg(n)+4*ti,4)}, {'0' if n == 0 else a}"))
            groups = []
            def grab(fn):
                nonlocal p
                p = self.p = Prog(); fn(); its = p.items; p = self.p = main
                return its
            def split(its):
                cur = []
                for it in its:
                    cur.append(it)
                    if isinstance(it, I) and it.kind in ("vmem", "ds", "valu"): groups.append(cur); cur = []
                if cur: groups.append(cur)
            split(grab(lambda: reads_upto(n + 1 + c.rdepth)))
            if na <= n + D < 28:
                if (n + D) // 7 > seen[0]:
                    groups.append(grab(lambda: check_flags(fl))); fl = None
                split(grab(lambda: load_act(n + D)))
            split(grab(lambda: dmas_upto(min(nw[1] + 12 - c.w2_gap, max(n + 1 + c.w2_lead, M0 + int((n + 1) * c.w2_rate))))))
            if fl is None and min(27, n + D + lead) // 7 > seen[0]:
                def nf():
                    nonlocal fl
                    if "A" in c.spoll: p("s_waitcnt lgkmcnt(0)")
                    fl = next_flags()
                groups.append(grab(nf))
            if n in fin: split(grab(fin[n]))
            if n >= 28 - c.tail_m:
                tail += mm[2:]; mm = mm[:2]
            if c.g2_mix:
                isv = lambda gr: any(isinstance(it, I) and it.kind == "vmem" for it in gr)
                ds = [gr for gr in groups if any(isinstance(it, I) and it.mn.startswith("ds_read_b64_tr") for it in gr)]
                rest = [gr for gr in groups if not any(gr is x for x in ds)]
                nm = len(mm)
                for k in range(nm):
                    p.extend([mm[k]])
                    for gr in ds[k * len(ds) // nm:(k + 1) * len(ds) // nm]: p.extend(gr)
                    for gr in rest[k * len(rest) // nm:(k + 1) * len(rest) // nm]: p.extend(gr)
            else:
                p.extend(mm)
                for gr in groups: p.extend(gr)
            if n in (0, 3, 6, 10, 13, 17, 20): self.stamp(f"n{n}", sets=(0, 2, 4) if n in (0, 13) else (2,))
        pw = lambda ti: [I(f"ds_write_b128 v{VD+4*di+g4}, {v(ACC+32*di+16*ti+4*g4,4)} offset:{ti*SLOT}") for di in range(2) for g4 in range(4)]
        if tail: p.extend(tail[:c.tail_k]); p.extend(interleave(tail[c.tail_k:], pw(0), ratio=c.tail_r))
        else: p.extend(pw(0))
        self.lds_post(VT + 5, VT, 5)
        self.stamp("gemm2", sets=(0, 2, 3))
        w1_ = pw(1); x_ = self.fin_prep(F); s_ = self.fin_sprep(F)
        p.extend(w1_[:4]); self.lds_peek(VT + 5, VT + 2, 7); p.extend(w1_[4:])
        self.lds_post(VT + 5, VT, 6)
        self.stamp("gate", sets=(0, 2, 3))
        self.lds_check(VT + 5, VT + 2, 7, fill=lambda: p.extend(x_[:6]))
        self.fin_sread(F); self.lds_peek(VALL, VT + 1, 6); p.extend(x_[6:])
        self.lds_check(VALL, VT + 1, 6, fill=lambda: p.extend(s_[:5]))
        self.stamp("sin", sets=(0, 2, 3))
        self.fin_out(F, s_[5:])
        self.stamp("end", sets=(0, 2, 3, 4, 9))
        self.stamp_flush(1)
        p("s_endpgm")

    def gather_table(self):
        import numpy as np
        def rb(l):
            u = np.array([l], np.float32).view(np.uint32)
            return int((((u + 0x7FFF + ((u >> 16) & 1)) >> 16) << 16).view(np.float32)[0])
        rows = list(range(8)) + list(range(128, 136)) + [256, 258, 260, 262, 384, 386, 388, 390, 512, 516, 640, 644, 768, 772, 896, 900] + [1024 + 128 * k for k in range(9)]
        pos = {}
        for i, a in enumerate(rows):
            tile, row = i >> 4, i & 15
            for col in range(16): pos[a + 8 * col] = tile * 1024 + ((row >> 2) * 16 + col) * 16 + (row & 3) * 4
        zero = 2 * 1024 + 48 * 16
        at = lambda l: zero if l < 0 else pos[rb(l)]
        at1 = lambda l: zero if l > 1028 else at(l)
        words = []
        for mh in range(2):
            for half in range(2):
                for lane in range(64):
                    hi = 1023 - 8 * (64 * mh + lane)
                    e = [at(hi - i) for i in range(11)]
                    if mh == 0: d = 127 - lane; e += [pos[16 * d + 16], pos[16 * d + 8], zero, zero, zero]
                    elif lane < 16: top = 1055 - 8 * (lane >> 2) - (lane & 3); e += [at1(top - j) for j in (0, 1, 2, 3, 7)]
                    else: e += [zero] * 5
                    e = e[8 * half: 8 * half + 8]
                    words += [e[2 * k] | (e[2 * k + 1] << 16) for k in range(4)]
        return words

    def role_b(self):
        p, c = self.p, self.c
        p.label("L_roleB")
        self.role_start(True); self.stamp_begin("B")
        S_BW, S_LDT, S_DSK, S_STW, S_CHN, S_MH = B_BW, B_LDT, B_DSK, B_STW, S_WF, S_WT
        S_FXR, S_XTR, S_FSW, S_FSR, S_STR = 74, 75, 76, 77, S_CT
        S_X, S_Y = 78, 79
        T = S_T
        VL16, VP, VGT, VG, VSW, VSR, VT = 9, B_VP, 120, 16, 46, 47, 50
        VRW, VTW, VTZ, VTA, VUA, VUW, VCN, VONE, VEXW, VEXR, VTAG, VUZ, VFL = range(32, 45)
        self.load_epoch()
        self.loader_base()
        ctok = {}
        if c.a_chunks < 7:
            if c.rot1: p(f"s_cmp_ge_u32 s{S_J}, {7-c.a_chunks}\ns_cselect_b32 s{T}, {c.a_chunks-7}, {c.a_chunks}\ns_mul_i32 s{T}, s{T}, s{S_CSTR}\ns_add_u32 s{S_SOFF}, s{S_SOFF}, s{T}")
            else: p(f"s_mul_i32 s{T}, s{S_CSTR}, {c.a_chunks}\ns_add_u32 s{S_SOFF}, s{S_SOFF}, s{T}")
        p(f"v_lshlrev_b32 v{VL16}, 4, v0\ns_lshl3_add_u32 s{S_STW}, s{S_STW}, {WS_ST}")
        srd(p, R_2, P_W2, 1792 * 896)
        late = Prog(); q = late
        q(f"s_lshl2_add_u32 s{S_R2}, s{S_XCD}, s{S_JR}")
        q(f"s_lshr_b32 s{T}, s{S_CP}, 5\ns_lshl2_add_u32 s{S_FXR}, s{T}, s{S_BW}\ns_and_b32 s{T}, s{S_CP}, 3\ns_lshl2_add_u32 s{S_FXR}, s{S_FXR}, s{T}\ns_lshl_b32 s{S_FXR}, s{S_FXR}, 7\ns_add_u32 s{S_FXR}, s{S_FXR}, {WS_FX}\ns_lshr_b32 s{T}, s{S_CP}, 4")
        q(f"s_mul_i32 s{S_XTR}, s{S_CP}, {2*c.xts}\ns_lshl_b32 s{T+1}, s{S_BW}, 10\ns_add_u32 s{S_XTR}, s{S_XTR}, s{T+1}\ns_add_u32 s{S_XTR}, s{S_XTR}, {WS_XT}")
        q(f"s_mul_i32 s{S_FSW}, s{S_BW}, 14\ns_add_u32 s{S_FSW}, s{S_FSW}, s{T}\ns_lshl_b32 s{S_FSW}, s{S_FSW}, 7\ns_and_b32 s{T+1}, s{S_CP}, 15\ns_add_u32 s{S_FSW}, s{S_FSW}, s{T+1}\ns_lshl2_add_u32 s{S_FSW}, s{S_FSW}, {WS_FS}")
        q(f"s_lshl1_add_u32 s{T}, s{S_C2}, s{S_CHN}")
        q(f"s_lshr_b32 s{T+1}, s{S_R2}, 3\ns_mul_i32 s{S_FSR}, s{T+1}, 14\ns_add_u32 s{S_FSR}, s{S_FSR}, s{T}\ns_lshl2_add_u32 s{S_FSR}, s{S_FSR}, s{S_JR}\ns_lshl_b32 s{S_FSR}, s{S_FSR}, 7\ns_add_u32 s{S_FSR}, s{S_FSR}, {WS_FS}")
        q(f"s_lshl_b32 s{S_STR}, s{T}, 9\ns_add_u32 s{S_STR}, s{S_STR}, s{S_R2}\ns_lshl1_add_u32 s{S_STR}, s{S_STR}, s{S_MH}\ns_lshl_b32 s{S_STR}, s{S_STR}, 7\ns_add_u32 s{S_STR}, s{S_STR}, {WS_ST}")
        q(f"v_and_b32 v{VT}, 15, v0\nv_lshrrev_b32 v{VT+1}, 4, v0")
        q(f"s_mul_i32 s{T}, s{S_BW}, 8448\nv_mul_u32_u24 v{VT+2}, 528, v{VT}\nv_and_b32 v{VT+3}, 256, v{VL16}\nv_add3_u32 v{VT+2}, v{VT+2}, v{VT+3}, s{T}\nv_lshrrev_b32 v{VT+3}, 5, v0\nv_lshl_add_u32 v{VSR}, v{VT+3}, 4, v{VT+2}")
        q(f"s_lshl_b32 s{T}, s{S_BW}, 13\nv_add_u32 v{VEXW}, s{T}, v{VL16}")
        q(f"s_mul_i32 s{T}, s{S_BW}, 3072\ns_add_u32 s{T}, s{T}, {L_RAW}\nv_add_u32 v{VRW}, s{T}, v{VL16}")
        q(f"s_mul_i32 s{T}, s{S_CHN}, {TCH}\ns_add_u32 s{T}, s{T}, {L_TAB}\ns_lshl_b32 s{T+1}, s{S_MH}, 10\ns_add_u32 s{T+1}, s{T+1}, s{T}\nv_add_u32 v{VTW}, s{T+1}, v{VL16}")
        q(f"v_sub_u32 v{VT+2}, 3, v{VT}\nv_and_b32 v{VT+2}, 3, v{VT+2}\nv_mul_u32_u24 v{VT+3}, {TCP-2}, v{VT+2}\nv_lshl_add_u32 v{VT+3}, v{VT+1}, 4, v{VT+3}\nv_lshlrev_b32 v{VT+2}, 1, v{VT}\nv_sub_u32 v{VT+3}, v{VT+3}, v{VT+2}")
        q(f"s_lshl_b32 s{T+1}, s{S_MH}, 8\ns_sub_u32 s{T}, s{T}, s{T+1}\ns_add_u32 s{T}, s{T}, {2*15}\nv_add_u32 v{VTA}, s{T}, v{VT+3}")
        q(f"s_mul_i32 s{S_X}, s{S_CHN}, 4608\ns_sub_u32 s{T}, s{S_X}, s{T+1}\ns_add_u32 s{T}, s{T}, {L_U+2*(240-96)}\nv_lshlrev_b32 v{VT+2}, 5, v{VT}\nv_lshl_add_u32 v{VT+2}, v{VT+1}, 4, v{VT+2}\nv_add_u32 v{VUA}, s{T}, v{VT+2}")
        q(f"s_add_u32 s{S_X}, s{S_X}, s{T+1}\ns_add_u32 s{S_X}, s{S_X}, {L_U}\nv_lshl_add_u32 v{VUZ}, v0, 2, s{S_X}")
        q(f"s_lshl_b32 s{T}, s{S_BW}, 10\ns_add_u32 s{T}, s{T}, {L_U+512}\nv_add_u32 v{VUW}, s{T}, v{VL16}")
        q(f"s_lshl_b32 s{T}, s{S_BW}, 11\ns_add_u32 s{T}, s{T}, {L_EX}\nv_add_u32 v{VEXR}, s{T}, v{VL16}")
        VZ = 56
        for i in range(4): q(f"v_mov_b32 v{VZ+i}, 0")
        q(f"s_lshl2_add_u32 s{T}, s{S_BW}, {L_CNT}\nv_mov_b32 v{VONE}, s{T}\nv_and_b32 v{VCN}, 3, v0\nv_lshlrev_b32 v{VCN}, 2, v{VCN}\nv_add_u32 v{VCN}, {L_CNT}, v{VCN}")
        VW2D = 48; S_WOFF, S_WIDX, S_RING = 88, 89, 91
        q(f"v_lshrrev_b32 v{VT+2}, 3, v0\nv_mul_u32_u24 v{VT+2}, 896, v{VT+2}\nv_bfe_u32 v{VT+3}, v0, 4, 1\nv_lshlrev_b32 v{VT+3}, 2, v{VT+3}\nv_xor_b32 v{VT+3}, v0, v{VT+3}\nv_and_b32 v{VT+3}, 7, v{VT+3}")
        q(f"v_lshl_add_u32 v{VW2D}, v{VT+3}, 4, v{VT+2}\nv_add_u32 v{VW2D+1}, {7168-1024}, v{VW2D}")
        if c.rot2 == 2: q(f"s_lshl1_add_u32 s{S_WIDX}, s{S_JR}, s{S_C2}\ns_cmp_ge_u32 s{S_WIDX}, 7\ns_cselect_b32 s{T}, 7, 0\ns_sub_u32 s{S_WIDX}, s{S_WIDX}, s{T}")
        else: q(f"s_mov_b32 s{S_WIDX}, {'s%d' % S_C2 if c.rot2 else 0}")
        q(f"s_mul_i32 s{S_WOFF}, s{S_BW}, 7\ns_add_u32 s{S_WOFF}, s{S_WOFF}, s{S_WIDX}\ns_mul_i32 s{S_WOFF}, s{S_WOFF}, {64*7}\ns_add_u32 s{S_WOFF}, s{S_WOFF}, s{S_C2}\ns_lshl_b32 s{S_WOFF}, s{S_WOFF}, 7")
        q(f"s_lshl_b32 s{S_RING}, s{S_BW}, 13\ns_add_u32 s{S_RING}, s{S_RING}, {L_RING}")
        assert not c.qperm and c.b_pre == 1.0
        if "X" not in c.spoll: q(f"v_min_u32 v{VFL}, 7, v0\nv_lshlrev_b32 v{VFL}, 2, v{VFL}")
        k = int(len(late.items) * c.b_pre)
        p.extend(late.items[:k]); late.items = late.items[k:]
        T = 90
        S_TCH = 92; nt = [0]
        def touch_upto(m):
            while nt[0] < m:
                p(f"s_buffer_load_dwordx2 s[94:95], {s(R_2,4)}, s{S_TCH}\ns_add_u32 s{S_TCH}, s{S_TCH}, 128"); nt[0] += 1
                p.items.append(Marker("forget", {"s94", "s95"}))
        if c.s_touch: p(f"s_lshl2_add_u32 s{S_TCH}, s{S_CP}, s{S_BW}\ns_mul_i32 s{S_TCH}, s{S_TCH}, {14*128}\ns_add_u32 s{S_TCH}, s{S_TCH}, 60")
        self.make_tag()
        p(f"s_lshl_b32 s{T}, s{S_CHN}, 4\ns_lshr_b32 s{S_LDT}, s{S_LDT}, s{T}\ns_lshl_b32 s{S_LDT}, s{S_LDT}, 16\ns_lshr_b32 s{S_DSK}, s{S_DSK}, s{T}\ns_lshl_b32 s{S_DSK}, s{S_DSK}, 16")
        VDT = 60
        p(f"v_mov_b32 v{VDT}, {LOG2E}\nv_mul_f32 v{VDT}, s{S_LDT}, v{VDT}\nv_exp_f32 v{VDT}, v{VDT}\nv_mov_b32 v{VTAG}, s{S_TAG}\nv_cvt_pk_bf16_f32 v{VDT}, v{VDT}, v{VDT}\nv_and_b32 v{VDT}, 0xffff0000, v{VDT}\nv_mov_b32 v{VDT+1}, v{VDT}")
        if c.s_touch: touch_upto(c.s_touch[0])
        self.stamp("pre", sets=(1,))
        Z1, Z2, Z4, Z8, Z128, XB, XC, XDD, TM = 64, 68, 72, 76, 80, 84, 88, 92, 96
        AL, BE, UB, CV = 108, 110, 112, 120
        YF, XF, KV, KA = 128, 160, 128, 244
        units = []
        def unpack(d, src): p(f"v_lshlrev_b32 v{d}, 16, v{src}\nv_and_b32 v{d+1}, 0xffff0000, v{src}")
        def mul2(d, a, b, pk):
            if pk: p(f"v_pk_mul_f32 {v(d,2)}, {v(a,2)}, {v(b,2)}")
            else: p(f"v_mul_f32 v{d}, v{a}, v{b}\nv_mul_f32 v{d+1}, v{a+1}, v{b+1}")
        def cmul_(d, a, b, pk):
            assert d != b
            mul2(TM, a, b, pk); mul2(TM + 2, a, b + 2, pk)
            if pk:
                p(f"v_pk_fma_f32 {v(d,2)}, {v(a+2,2)}, {v(b+2,2)}, {v(TM,2)} neg_lo:[1,0,0] neg_hi:[1,0,0]")
                p(f"v_pk_fma_f32 {v(d+2,2)}, {v(a+2,2)}, {v(b,2)}, {v(TM+2,2)}")
            else:
                for m in range(2): p(f"v_fma_f32 v{d+m}, -v{a+2+m}, v{b+2+m}, v{TM+m}")
                for m in range(2): p(f"v_fma_f32 v{d+2+m}, v{a+2+m}, v{b+m}, v{TM+2+m}")
        def cmul(d, a, b): units.append((8, lambda pk: cmul_(d, a, b, pk)))
        def put(e, a, conj):
            ng = "-" if conj else ""
            units.append((2, lambda pk: (have.add(e), p(f"v_cvt_pk_bf16_f32 v{KV+2*e}, v{a}, {ng}v{a+2}\nv_cvt_pk_bf16_f32 v{KV+2*e+1}, v{a+1}, {ng}v{a+3}"))))
        have = {0}
        def getfr(base):
            return [I(f"ds_read_b128 {v(base+4*fr,4)}, v{VSR} offset:{fr*32}") for fr in range(8)]
        def kmfma(tile, base):
            a = v(KA + 4 * tile, 4)
            return [I(f"v_mfma_f32_16x16x32_bf16 {a}, {v(base+4*fr,4)}, {v(YF+4*fr,4)}, {'0' if (fr == 0 and tile) else a}") for fr in range(8)]
        def zpow_(d, lg, pk):
            for m in range(2):
                if lg: p(f"v_ldexp_f32 v{TM+m}, v{AL+m}, {lg}\nv_ldexp_f32 v{TM+2+m}, v{BE+m}, {lg}")
                a, b = (TM + m, TM + 2 + m) if lg else (AL + m, BE + m)
                p(f"v_exp_f32 v{TM+m}, v{a}\nv_fract_f32 v{TM+2+m}, v{b}")
            for m in range(2): p(f"v_cos_f32 v{d+m}, v{TM+2+m}\nv_sin_f32 v{d+2+m}, v{TM+2+m}")
            mul2(d, d, TM, pk); mul2(d + 2, d + 2, TM, pk)
        def zpow(d, lg): units.append((22, lambda pk: zpow_(d, lg, pk)))
        p(f"v_mov_b32 v{KV}, 0x3f80\nv_mov_b32 v{KV+1}, 0x3f80")
        unpack(AL, VP); unpack(BE, VP + 1)
        self.stamp("params", sets=(0, 1))
        mul2(AL, AL, VDT, True); mul2(BE, BE, VDT, True)
        for m in range(2): p(f"v_mul_f32 v{AL+m}, {LOG2E}, v{AL+m}\nv_mul_f32 v{BE+m}, 0.15915494, v{BE+m}")
        early_done = [None]
        zpow(Z8, 3)
        put(1, Z8, False)
        prev = Z8
        for r in range(2, 16): cmul(XB, prev, Z8); prev = XB; put(r, XB, False)
        zpow(Z1, 0); zpow(Z128, 7)
        units.append((8, lambda pk: [unpack(UB + 2 * i, VP + 2 + i) for i in range(4)]))
        cmul(XC, UB, UB + 4)
        units.append((4, lambda pk: (mul2(XC, XC, VDT, pk), mul2(XC + 2, XC + 2, VDT, pk))))
        cmul(XB, XC, Z128)
        put(16, XC, True); put(24, XB, True)
        prev = XB
        for r in range(1, 8):
            cmul(XC, XC, Z1); put(16 + r, XC, True)
            cmul(XDD, prev, Z1); prev = XDD; put(24 + r, XDD, True)
        for it in late.items: units.append((1, lambda pk, it=it: p.extend([it])))
        cmul(Z2, Z1, Z1); cmul(Z4, Z2, Z2)
        for k in range(2):
            cmul(XB, XB, Z128); put(32 + 4 * k, XB, True); prev = XB
            for r in range(1, 4): cmul(XC, prev, Z2); prev = XC; put(32 + 4 * k + r, XC, True)
        for k in range(4):
            cmul(XB, XB, Z128); put(40 + 2 * k, XB, True)
            cmul(XC, XB, Z4); put(41 + 2 * k, XC, True)
        for k in range(9): cmul(XB, XB, Z128); put(48 + k, XB, True)
        total = sum(u[0] for u in units)
        cuts = [c.kg_pre] + [c.kg_pre + (total - c.kg_pre) * (i - c.kg_x) / (c.kg_ints - c.kg_x) for i in range(1, 7)]
        X2F = 64
        VCA, VPU, BE9, BO7 = 10, 11, 12, 60
        order = list(range(48, 57)) + list(range(16)) + list(range(32, 48)) + list(range(16, 32))
        lops = []
        for e in order:
            it = [I(f"ds_write_addtid_b32 v{KV+2*e+m} offset:{(e&15)*528+256*m}") for m in range(2)]
            if 36 <= e < 44: it.append(kmfma(2, X2F)[e - 36])
            if e == 46: it += [I(f"v_cndmask_b32 v{KA+8}, 0, v{KA+8}, vcc"), I(f"ds_write_b128 v{VRW}, {v(KA+8,4)} offset:2048")]
            if 20 <= e < 28: it.append(kmfma(1, XF + 32)[e - 20])
            if e == 30: it.append(I(f"ds_write_b128 v{VRW}, {v(KA+4,4)} offset:1024"))
            if e in (15, 31, 47, 56): it += getfr({15: YF, 31: XF, 47: XF + 32, 56: X2F}[e])
            if "2" in c.diag and e < 32 and e % 16 != 15: it = it[2:]
            lops.append(it)
        nl = [0]
        def lds_upto(m):
            while nl[0] < m:
                assert order[nl[0]] in have
                p.extend(lops[nl[0]]); nl[0] += 1
        done = 0; nb = 0; fx = [None]; xt = [None]
        side = []
        def sd(txt, atomic=False):
            q = Prog(); q(txt)
            if atomic: side.append(q.items)
            else: side.extend([it] for it in q.items)
        sd(f"v_and_b32 v{VT}, 15, v0\nv_lshrrev_b32 v{VT+1}, 4, v0\nv_lshlrev_b32 v{VT+2}, 3, v{VT+1}\ns_movk_i32 s{S_Y}, 0x3f80")
        for bd, m in ((BE9, 0x1ff << 4), (BO7, 0x7f << 5)):
            sd(f"v_mov_b32 v{VT+3}, {m}\nv_lshlrev_b32 v{VT+3}, v{VT}, v{VT+3}\nv_lshrrev_b32 v{VT+3}, v{VT+2}, v{VT+3}")
            for d in range(4):
                sd(f"v_bfe_u32 v{VT+4}, v{VT+3}, {2*d}, 1\nv_bfe_u32 v{VT+5}, v{VT+3}, {2*d+1}, 1\nv_lshl_or_b32 v{VT+4}, v{VT+5}, 16, v{VT+4}\nv_mul_u32_u24 v{bd+d}, s{S_Y}, v{VT+4}")
        sd(f"s_mul_i32 s{S_Y}, s{S_MH}, 768\ns_sub_u32 s{S_Y}, 1200, s{S_Y}\nv_add_u32 v{VPU}, s{S_Y}, v{VUA}")
        sd(f"s_mul_i32 s{S_Y}, s{S_CHN}, {TCH}\ns_add_u32 s{S_X}, s{S_Y}, {L_TAB+4*TCP+60}\nv_lshlrev_b32 v{VT+3}, 2, v{VT+1}\nv_sub_u32 v{VT+3}, v{VT+3}, v{VT}\nv_lshl_add_u32 v{VCA}, v{VT+3}, 2, s{S_X}")
        sd(f"s_add_u32 s{S_Y}, s{S_Y}, {L_TAB}\nv_and_b32 v{VT+3}, 3, v0\nv_mul_u32_u24 v{VT+3}, {TCP}, v{VT+3}\nv_lshrrev_b32 v{VT+4}, 2, v0\nv_lshl_add_u32 v{VT+3}, v{VT+4}, 4, v{VT+3}\nv_lshl_add_u32 v{VT+3}, v{VT+1}, 11, v{VT+3}")
        sd(f"v_lshlrev_b32 v{VT+4}, 2, v0\nv_add_u32 v{VT+4}, {4*TCP}, v{VT+4}")
        sd(f"s_cmp_eq_u32 s{S_MH}, 0\ns_cselect_b64 vcc, -1, 0\ns_cselect_b32 s{S_DSK}, s{S_DSK}, 0", True)
        sd(f"v_cndmask_b32 v{VT+3}, v{VT+3}, v{VT+4}, vcc\nv_add_u32 v{VTZ}, s{S_Y}, v{VT+3}")
        sd(f"s_mul_i32 s{S_Y}, s{S_CHN}, 6144\ns_add_u32 s{S_Y}, s{S_Y}, {L_RAW}")
        sd(f"v_mov_b32 v{VT}, s{S_DSK}\nv_cmp_eq_u32 vcc, 0, v0\nv_mov_b32 v{VT+1}, s{S_Y}\nv_mov_b32 v{KA+1}, 0\nv_cndmask_b32 v{KA}, 0, v{VT}, vcc\nv_mov_b32 v{KA+2}, 0\nv_mov_b32 v{KA+3}, 0\nv_cmp_gt_u32 vcc, 48, v0")
        for k in range(16):
            sd(f"v_add_u32_sdwa v{VG+k}, v{VT+1}, v{VGT+(k>>1)} dst_sel:DWORD dst_unused:UNUSED_PAD src0_sel:DWORD src1_sel:WORD_{k&1}")
        def barrier():
            nonlocal nb
            if nb in ctok: p.wait(ctok[nb])
            if nb == c.r_at and c.r_early: p.wait(w2t[c.r_early - 1])
            if nb == 6 and c.r2: assert c.br0 >= 0 and c.r2 <= 8; p.wait(w2t[c.r2 - 1])
            self.stamp(f"atbar{nb}", sets=(0, 1) if nb == 0 else (1,))
            p("s_barrier")
            if nb == 4: self.stamp("bar4", sets=(0, 3))
            if c.s_touch and nb < 4 and c.touch_first: touch_upto(c.s_touch[nb + 1])
            mem = []
            if c.a_chunks <= nb + 3 < 7: mem += self.dma_chunk(nb + 3, T, ctok)
            if nb == c.gt_at:
                q = Prog(); q(f"s_lshl_b32 s{T}, s{S_MH}, 11\ns_add_u32 s{T}, s{T}, L_gtab-L_pc")
                for h in range(2): q(f"buffer_load_dwordx4 {v(VGT+4*h,4)}, v{VL16}, {s(R_PC,4)}, s{T} offen offset:{1024*h}")
                mem.append(q.items)
            if nb >= 4 or nb == c.br0:
                while nq[0] < (c.bw2[nb - 4] if nb >= 4 else 4):
                    n = nq[0]; nq[0] += 1
                    pc = (n >> 2) if c.br0 < 0 else (-2 if n < 4 else (n >> 2) - 1)
                    assert pc <= nb - 4 or pc < 0
                    if pc == 3: assert n - 12 < c.r2; pc = 0
                    q = Prog(); q(f"s_add_u32 m0, s{S_RING}, {pc*SLOT + (n&3)*2048}\nbuffer_load_dwordx4 v{VW2D}, {s(R_2,4)}, s{S_WOFF} offen lds")
                    mem.append(q.items); q = Prog()
                    w2t[n] = q.tok(f"buffer_load_dwordx4 v{VW2D+1}, {s(R_2,4)}, s{S_WOFF} offen offset:1024 lds")
                    if c.rot2: q(f"s_cmp_eq_u32 s{S_WIDX}, {(6-n)%7}\ns_cselect_b32 s{T}, {-7*64*896}, 0\ns_add_u32 s{S_WOFF}, s{S_WOFF}, s{T}\ns_add_u32 s{S_WOFF}, s{S_WOFF}, {(64 + (16 if n % 7 == 6 else 0))*896}")
                    else: q(f"s_add_u32 s{S_WOFF}, s{S_WOFF}, {(16 - 6*64 if n % 7 == 6 else 64)*896}")
                    mem.append(q.items)
            s0, s1 = c.side_at
            part = side[(nb - s0) * len(side) // (s1 - s0):(nb + 1 - s0) * len(side) // (s1 - s0)] if s0 <= nb < s1 else []
            if part: assert done == total
            p.extend(interleave(part, mem) if (part and c.side_first) else interleave(mem, part) if mem else interleave(part, []))
            if c.s_touch and nb < 4 and not c.touch_first: touch_upto(c.s_touch[nb + 1])
            if nb < 7 and c.lds_cut[nb] > nl[0]:
                assert done == total and c.lds_cut[nb] <= 23 and (c.br0 < 0 or nb > c.r_at)
                p(f"s_mul_i32 m0, s{S_BW}, 8448"); lds_upto(c.lds_cut[nb])
            nb += 1
        nq = [0]; w2t = {}
        for cost, fn in units:
            while nb < 8 and done >= cuts[min(nb, 6)]: barrier()
            fn(nb == 0); done += cost
        while nb < 8: barrier()
        self.stamp("bar7", sets=(0, 3))
        p(f"s_mul_i32 m0, s{S_BW}, 8448")
        if c.prio_b3 != c.prio_b2: p(f"s_setprio {c.prio_b3}")
        XR, XR2 = 2, 52
        lds_upto(c.fx_ld)
        fx = self.flag_load("X", S_FXR, 8, VFL)
        lds_upto(c.fx_chk)
        self.flag_check(fx, VT)
        p.wait(w2t[nq[0] - 1]); self.lds_post(VONE, VTAG, 4)
        self.stamp("fx", sets=(3,))
        p(f"buffer_load_dwordx4 {v(XR,4)}, v{VL16}, {s(R_WS,4)}, s{S_XTR} offen sc1\ns_add_u32 s{S_XTR}, s{S_XTR}, {c.xts}\nbuffer_load_dwordx4 {v(XR2,4)}, v{VL16}, {s(R_WS,4)}, s{S_XTR} offen sc1")
        lds_upto(57)
        p.extend(kmfma(0, XF))
        T = S_T
        uw = lambda: [p(f"ds_write_b128 v{VUW}, {v(XR2 if ch else XR,4)} offset:{4608*ch}") for ch in range(2)] + [p(f"ds_write_b32 v{VUZ}, v{VZ}")]
        p(f"ds_write_b128 v{VRW}, {v(KA,4)}")
        self.lds_post(VONE, VTAG, 0)
        self.stamp("kgen", sets=(0, 3))
        if c.prio_b4 != c.prio_b3: p(f"s_setprio {c.prio_b4}")
        self.lds_wait(VCN, VT, 0)
        GV, PK = 96, 128
        for k in range(16): p(f"ds_read2st64_b32 {v(GV+2*k,2)}, v{VG+k} offset0:0 offset1:12")
        if c.u_at == 1: uw()
        for k in range(11): p(f"v_add_f32 v{GV+2*k}, v{GV+2*k}, v{GV+2*k+1}")
        for cp_ in range(4):
            for j in range(4): p(f"v_cvt_pk_bf16_f32 v{PK+4*cp_+j}, v{GV+2*(cp_+2*j)}, v{GV+2*(cp_+2*j+1)}")
            p(f"ds_write_b128 v{VTW}, {v(PK+4*cp_,4)} offset:{cp_*TCP+64}")
        for k in range(11, 16): p(f"v_add_f32 v{GV+2*k}, v{GV+2*k}, v{GV+2*k+1}")
        l0, l1 = self.lab("edge"), self.lab("tabd")
        E = lambda k: GV + 2 * (11 + k)
        p(f"v_cvt_pk_bf16_f32 v{PK+16}, v{E(0)}, v{E(1)}\ns_cmp_lg_u32 s{S_MH}, 0\ns_cbranch_scc1 {l0}")
        p.alt_begin()
        p(f"ds_write_b32 v{VTZ}, v{PK+16}\ns_mov_b64 exec, 0xffff\nds_write_b32 v{VTZ}, v{VZ} offset:256\ns_branch {l1}")
        p.alt_else()
        p.label(l0)
        p(f"v_cvt_pk_bf16_f32 v{PK+17}, v{E(2)}, v{E(3)}\nv_cvt_pk_bf16_f32 v{PK+18}, v{E(3)}, v{E(3)}\nv_cvt_pk_bf16_f32 v{PK+19}, v{E(3)}, v{E(4)}")
        p(f"s_mov_b64 exec, 0xffffff\nds_write_b128 v{VTZ}, {v(PK+16,4)}")
        p.alt_end()
        p.label(l1)
        p("s_mov_b64 exec, -1")
        self.stamp("tables", sets=(0, 3, 4))
        if c.u_at == 2: uw()
        self.lds_post(VONE, VTAG, 1)
        self.lds_wait(VCN, VT, 1)
        self.stamp("u", sets=(0, 3, 4))
        if c.prio_b5 != c.prio_b4: p(f"s_setprio {c.prio_b5}")
        TF, UF, CA = 96, 160, 224
        PU, VA, VB, AF, TB = 128, 144, 64, 72, 88
        MF = lambda d, a, b_, z=False: I(f"v_mfma_f32_16x16x32_bf16 {v(d,4)}, {v(a,4)}, {v(b_,4)}, {'0' if z else v(d,4)}")
        def read_tu(ph):
            r = [I(f"ds_read_b128 {v(UF+32*(ph&1),4)}, v{VUA} offset:{2*32*(3-ph)}")]
            for a in range(4):
                for h in range(2):
                    r.append(I(f"ds_read_b64 {v(TF+16*(ph&1)+4*a+2*h,2)}, v{VTA} offset:{2*(160+256*(3-a)+32*(3-ph))+8*h}"))
            r += [I(f"ds_read_b128 {v(UF+32*(ph&1)+4*b,4)}, v{VUA} offset:{2*(256*b+32*(3-ph))}") for b in range(1, 8)]
            if c.cmajor: r = [r[i] for i in (0, 1, 2, 3, 4, 9, 5, 6, 10, 7, 8, 11, 12, 13, 14, 15)]
            return r
        r0 = read_tu(0)
        p.extend(r0[:11])
        for ph in range(4):
            prs = [(a, b) for b in range(8) for a in range(min(4, 8 - b))]
            if c.cmajor: prs.sort(key=lambda x: (x[0] + x[1], x[1]))
            mm = [MF(CA + 4 * (a + b), UF + 32 * (ph & 1) + 4 * b, TF + 16 * (ph & 1) + 4 * a, ph == 0 and (b == 0 or a == 3)) for a, b in prs]
            if ph == 0:
                rp = [I(f"ds_read_b128 {v(PU+8*be+4*o,4)}, v{VPU} offset:{512*be+16*o}") for be in range(2) for o in range(2)]
                ra = [I(f"ds_read2_b32 {v(AF+4*a+2*h,2)}, v{VCA} offset0:{16*(3-a)+2*h} offset1:{16*(3-a)+2*h+1}") for a in range(4) for h in range(2)]
                ra += [I(f"ds_read_b64 {v(TB+2*h,2)}, v{VTA} offset:{8*h}") for h in range(2)]
                mp = [MF(VA + 8 * be + 4 * o, PU + 8 * be + 4 * o, BO7 if o else BE9, True) for be in range(2) for o in range(2)]
                cv = [I(f"v_cvt_pk_bf16_f32 v{VB+4*be+r}, v{VA+8*be+r}, v{VA+8*be+4+r}") for be in range(2) for r in range(4)]
                r1 = read_tu(1)
                p.extend(interleave(mm[:12], r0[11:13] + rp + r0[13:] + ra[:5]))
                p.extend(interleave(mp + mm[12:18], ra[5:] + r1[:8]))
                p.extend(interleave(mm[18:], [[x, y] for x, y in zip(cv, r1[8:])]))
                l0, l1 = self.lab("far1"), self.lab("fard")
                p(f"s_cmp_lg_u32 s{S_MH}, 0\ns_cbranch_scc1 {l0}")
                p.alt_begin()
                p.extend([MF(CA + 4 * (4 + b), UF + 4 * b, TB) for b in range(4)])
                p.extend([MF(CA + 4 * 6, AF, VB), MF(CA + 4 * 7, AF + 4, VB), MF(CA + 4 * 7, AF, VB + 4)])
                p(f"s_branch {l1}")
                p.alt_else()
                p.label(l0)
                p.extend([MF(CA + 4 * (4 + a + be), AF + 4 * a, VB + 4 * be) for be in range(2) for a in range(4 - be)])
                p.alt_end()
                p.label(l1)
            elif ph < 3 and "3" in c.diag: pass
            elif ph < 3: p.extend(interleave(mm, read_tu(ph + 1), ratio=0.8))
            else:
                self.lds_post(VONE, VTAG, 2)
                p.extend(mm[:5]); self.lds_peek(VCN, VT, 2); p.extend(mm[5:11])
                self.lds_check(VCN, VT, 2, fill=lambda: p.extend(mm[11:16])); mm = mm[16:]
                if c.prio_b6 != c.prio_b5 and not c.late6: p(f"s_setprio {c.prio_b6}")
                fill = [I(f"ds_write_b128 v{VEXW}, {v(CA+4*cc,4)} offset:{1024*cc}") for cc in range(c.ex_n)]
                assert c.ex_n <= (6 if c.cmajor else 4)
                p.extend(interleave(mm, fill, ratio=c.ex_n / 9))
        if c.prio_b6 != c.prio_b5 and c.late6: p(f"s_setprio {c.prio_b6}")
        self.stamp("conv", sets=(0, 2, 3, 4))
        for cc in range(c.ex_n, 8): p(f"ds_write_b128 v{VEXW}, {v(CA+4*cc,4)} offset:{1024*cc}")
        self.lds_post(VONE, VTAG, 3)
        EXV, VSA = 96, 10
        if "b" in c.diag:
            p(f"v_lshlrev_b32 v{VT+4}, 7, v0\ns_mov_b64 exec, 15\nbuffer_store_dword v{VTAG}, v{VT+4}, {s(R_WS,4)}, s{S_FSW} offen sc1\ns_mov_b64 exec, -1")
            self.lds_post(VONE, VTAG, 7); p("s_waitcnt lgkmcnt(0)"); self.stamp_flush(1); p("s_endpgm"); return
        self.lds_wait(VCN, VT, 3)
        for k in range(2):
            for w in range(4): p(f"ds_read_b128 {v(EXV+16*k+4*w,4)}, v{VEXR} offset:{8192*w+1024*k}")
        for k in range(2):
            b = EXV + 16 * k
            for r in range(4): p(f"v_add_f32 v{b+r}, v{b+r}, v{b+4+r}\nv_add_f32 v{b+8+r}, v{b+8+r}, v{b+12+r}")
            for r in range(4): p(f"v_cvt_pk_bf16_f32 v{b+4+r}, v{b+r}, v{b+8+r}")
            sttok = p.tok(f"buffer_store_dwordx4 {v(b+4,4)}, v{VL16}, {s(R_WS,4)}, s{S_STW} offen offset:{1024*k} sc1")
        self.stamp("st", sets=(0, 2, 3, 4))
        F = dict(VT=VT, XO=16, PA=18, SA=17, STA=20, XI=24, RG=21, RC=22, XF=128, PV=160, SV=28, SF=136, w=S_BW, sXO=S_FXR, sST=S_XTR, OUT=R_2)
        S_XO = S_STW
        p(f"s_load_dwordx2 {s(R_LD,2)}, s[0:1], 0\ns_load_dwordx2 {s(R_2,2)}, s[0:1], 104\ns_mov_b32 s{R_LD+2}, {2048*896}\ns_mov_b32 s{R_2+2}, {2048*896}\ns_add_u32 s{S_XO}, s{S_STR}, {8*8192}")
        self.fin_addr(0, F, 0); self.fin_addr(0, F, 1)
        if "S" not in c.spoll: p(f"v_min_u32 v{VFL}, 15, v0\nv_lshlrev_b32 v{VFL}, 2, v{VFL}")
        p(f"s_mul_i32 s{T}, s{S_BW}, 2304\ns_add_u32 s{T}, s{T}, {L_STR}")
        p(f"v_and_b32 v{VT+4}, 32, v0\nv_lshl_add_u32 v{VT+4}, v0, 3, v{VT+4}\nv_add_u32 v{VSA}, s{T}, v{VT+4}")
        p(f"v_lshrrev_b32 v{VT+4}, 3, v0\nv_lshlrev_b32 v{VT+4}, 13, v{VT+4}\nv_and_b32 v{VT+5}, 7, v0\nv_lshl_add_u32 v{VSA+2}, v{VT+5}, 4, v{VT+4}\nv_lshlrev_b32 v{VT+4}, 7, v0")
        p.wait(sttok)
        if "S" in c.sflag: self.sflags4(S_FSW)
        else: p(f"s_mov_b64 exec, 15\nbuffer_store_dword v{VTAG}, v{VT+4}, {s(R_WS,4)}, s{S_FSW} offen sc1\ns_mov_b64 exec, -1")
        self.stamp("flagS")
        if c.prio_b7 != c.prio_b6: p(f"s_setprio {c.prio_b7}")
        if c.b_xat == 0: self.fin_loads(F)
        fs = self.flag_load("S", S_FSR, 16, VFL)
        self.flag_check(fs, VT, sleep=c.fs_sleep)
        self.stamp("fs", sets=(0, 2, 3))
        if c.prio_b8 != c.prio_b7: p(f"s_setprio {c.prio_b8}")
        SV = 64
        for j in range(2): p(f"buffer_load_dwordx4 {v(SV+4*j,4)}, v{VSA+2}, {s(R_WS,4)}, s{S_XO if j else S_STR} offen sc1")
        if c.b_xat == 1: self.fin_loads(F)
        for j in range(2): p(f"ds_write2_b64 v{VSA}, {v(SV+4*j,2)}, {v(SV+4*j+2,2)} offset0:{72*j} offset1:{72*j+144}")
        self.lds_post(VONE, VTAG, 7)
        self.stamp("sready", sets=(0, 2, 3))
        self.fin_sread(F); p.extend(self.fin_prep(F)); p.extend(self.fin_sprep(F))
        self.lds_wait(VCN, VT, 5, sleep=c.b5_sleep)
        if c.prio_b9 != c.prio_b8: p(f"s_setprio {c.prio_b9}")
        self.fin_out(F)
        self.stamp("end", sets=(0, 2, 3, 4, 9))
        self.stamp_flush(1)
        p("s_endpgm")

    def head_h(self):
        p, c = self.p, self.c
        p.label("L_helper")
        self.role_start()
        S_HH, S_X, S_Z, VT, XD = 64, 65, 72, 1, 16
        if c.prefetch_code and c.pf_h:
            p(f"s_sub_u32 s{S_X}, s{S_J}, 28\ns_lshl3_add_u32 s{S_X}, s{S_X}, s{S_WAVE}\ns_lshl_b32 s{S_X}, s{S_X}, 7\nv_lshlrev_b32 v255, 12, v0\ns_mov_b64 exec, 0x1ff")
            p(f"buffer_load_dword v255, v255, {s(R_PC,4)}, s{S_X} offen\ns_mov_b64 exec, -1")
        p(f"s_lshl2_add_u32 s{S_HH}, s{S_XCD}, s{S_J}\ns_sub_u32 s{S_HH}, s{S_HH}, 28\ns_lshl3_add_u32 s{S_Z}, s{S_HH}, s{S_WAVE}\ns_mul_i32 s{S_X}, s{S_Z}, {8*896}")
        p(f"v_lshrrev_b32 v{VT+2}, 3, v0\nv_mul_u32_u24 v{VT}, 896, v{VT+2}\nv_and_b32 v{VT+1}, 7, v0\nv_lshl_add_u32 v{VT}, v{VT+1}, 4, v{VT}")
        srd(p, R_LD, P_U, 2048 * 896)
        for i in range(7): p(f"buffer_load_dwordx4 {v(XD+4*i,4)}, v{VT}, {s(R_LD,4)}, s{S_X} offen offset:{128*i}")
        if c.h_near: p("s_branch L_bodyH")
    def role_h(self):
        p, c = self.p, self.c
        S_HH, S_X, S_Y, S_ONE, S_LO, S_HI, S_Q, S_CG, S_Z = range(64, 73)
        T = S_T
        VT, XD, WD, AC, CS, UP = 1, 16, 48, 80, 88, 96
        L_XN = 8192
        if c.h_near:
            if c.h_align: p(".p2align 12")
            p.label("L_bodyH"); p.reset()
            if c.prefetch_code: p.items.append(Marker("pending", ("vmem", {"v255"})))
            for i in range(7): p.items.append(Marker("pending", ("vmem", {f"v{XD+4*i+j}" for j in range(4)})))
        else: self.head_h()
        self.stamp_begin("H")
        self.load_epoch(); srd(p, R_2, P_W1, 448 * 3584); srd(p, R_PC, P_W2, 1792 * 896)
        p(f"s_lshr_b32 s{S_Q}, s{S_XCD}, 1\ns_lshl2_add_u32 s{S_Q}, s{S_Q}, s{S_J}\ns_sub_u32 s{S_Q}, s{S_Q}, 28\ns_and_b32 s{S_CG}, s{S_XCD}, 1\ns_mul_i32 s{S_CG}, s{S_CG}, 14\ns_add_u32 s{S_CG}, s{S_CG}, s{S_Q}")
        p(f"s_lshl_b32 s{T}, s{S_CG}, 7\ns_mul_i32 s{S_Y}, s{S_WAVE}, {56*3584}\ns_add_u32 s{S_Y}, s{S_Y}, s{T}\ns_cmp_ge_u32 s{S_Q}, 14\ns_cselect_b32 s{S_Y}, {448*3584}, s{S_Y}")
        p(f"v_mul_u32_u24 v{VT+3}, 3584, v{VT+2}\nv_lshl_add_u32 v{VT+3}, v{VT+1}, 4, v{VT+3}")
        p(f"s_mov_b32 s{S_ONE}, 0x3f803f80\ns_mov_b32 s{S_LO}, 0x00003f80\ns_mov_b32 s{S_HI}, 0x3f800000")
        p(f"s_lshl_b32 s{S_X}, s{S_Z}, 6\ns_add_u32 s{S_X}, s{S_X}, {WS_STAT}")
        p(f"s_mul_i32 s{T}, s{S_WAVE}, 7232\ns_add_u32 s{T}, s{T}, {L_XN}\nv_add_u32 v{VT}, s{T}, v{VT}")
        for i in range(4): p(f"v_mov_b32 v{AC+i}, 0")
        for k in range(8): p(f"v_mov_b32 v{CS+k}, 0")
        self.make_tag()
        def w1_loads():
            for i in range(7):
                p(f"buffer_load_dwordx4 {v(WD+4*i,4)}, v{VT+3}, {s(R_2,4)}, s{S_Y} offen")
                if i < 6: p(f"s_add_u32 s{S_Y}, s{S_Y}, {8*3584}")
        def touch():
            p(f"s_sub_u32 s{T}, s{S_J}, 28\ns_mul_i32 s{T}, s{T}, 7\ns_add_u32 s{T}, s{T}, s{S_WAVE}\ns_lshl3_add_u32 s{T}, s{T}, s{S_XCD}\ns_mul_i32 s{T}, s{T}, {8*896}\ns_cmp_eq_u32 s{S_WAVE}, 7\ns_cselect_b32 s{T}, {1792*896}, s{T}")
            p(f"v_min_u32 v120, 55, v0\nv_lshlrev_b32 v120, 7, v120\nbuffer_load_dword v121, v120, {s(R_PC,4)}, s{T} offen")
        if c.h_w1 == 0: w1_loads()
        if c.h_w1 == 1: p.items.append(Marker("need", XD + 27)); w1_loads()
        self.stamp("issued")
        for i in range(28):
            p(f"v_dot2_f32_bf16 v{AC+(i&1)}, v{XD+i}, s{S_ONE}, v{AC+(i&1)}\nv_dot2_f32_bf16 v{AC+2+(i&1)}, v{XD+i}, v{XD+i}, v{AC+2+(i&1)}")
        p(f"v_add_f32 v{AC}, v{AC}, v{AC+1}\nv_add_f32 v{AC+1}, v{AC+2}, v{AC+3}")
        for pat in ("quad_perm:[1,0,3,2]", "quad_perm:[2,3,0,1]", "row_half_mirror"):
            for k in range(2): p(f"v_add_f32_dpp v{AC+k}, v{AC+k}, v{AC+k} {pat} row_mask:0xf bank_mask:0xf")
        inv = 0x3b124925
        p(f"v_mul_f32 v{AC}, {inv}, v{AC}\nv_mul_f32 v{AC+1}, {inv}, v{AC+1}\nv_fma_f32 v{AC+1}, -v{AC}, v{AC}, v{AC+1}\nv_max_f32 v{AC+1}, 0, v{AC+1}")
        p(f"v_cvt_pk_bf16_f32 v{AC+1}, v{AC+1}, v{AC+1}\nv_and_b32 v{AC+1}, 0xffff0000, v{AC+1}\nv_add_f32 v{AC+1}, 0x3727c5ac, v{AC+1}")
        p(f"v_cvt_pk_bf16_f32 v{AC+1}, v{AC+1}, v{AC+1}\nv_and_b32 v{AC+1}, 0xffff0000, v{AC+1}\nv_sqrt_f32 v{AC+1}, v{AC+1}")
        p(f"v_mov_b32 v{AC+3}, s{S_TAG}\nv_cvt_pk_bf16_f32 v{AC+2}, v{AC}, v{AC+1}")
        p(f"s_mov_b32 exec_lo, 0x01010101\ns_mov_b32 exec_hi, 0x01010101\nbuffer_store_dwordx2 {v(AC+2,2)}, v0, {s(R_WS,4)}, s{S_X} offen sc1\ns_mov_b64 exec, -1")
        if c.h_w1 == 2: w1_loads()
        if c.h_touch == 0: touch()
        self.stamp("stats")
        p(f"v_and_b32 v{AC+4}, 0xffff0000, v{AC+2}\nv_rcp_f32 v{AC+4}, v{AC+4}\nv_lshlrev_b32 v{AC+6}, 16, v{AC+2}\nv_mov_b32 v{AC+5}, v{AC+4}\nv_mul_f32 v{AC+6}, -v{AC+6}, v{AC+4}\nv_mov_b32 v{AC+7}, v{AC+6}")
        for i in range(7):
            u = UP + 8 * (i & 1)
            for j in range(4): p(f"v_lshlrev_b32 v{u+2*j}, 16, v{XD+4*i+j}\nv_and_b32 v{u+2*j+1}, 0xffff0000, v{XD+4*i+j}")
            for j in range(4): p(f"v_pk_fma_f32 {v(u+2*j,2)}, {v(u+2*j,2)}, {v(AC+4,2)}, {v(AC+6,2)}")
            for j in range(4): p(f"v_cvt_pk_bf16_f32 v{XD+4*i+j}, v{u+2*j}, v{u+2*j+1}")
            p(f"ds_write_b128 v{VT}, {v(XD+4*i,4)} offset:{128*i}")
        if c.h_touch == 1: touch()
        self.stamp("norm")
        for i in range(7):
            for j in range(4):
                p(f"v_dot2_f32_bf16 v{CS+2*j}, v{WD+4*i+j}, s{S_LO}, v{CS+2*j}\nv_dot2_f32_bf16 v{CS+2*j+1}, v{WD+4*i+j}, s{S_HI}, v{CS+2*j+1}")
        for k in range(8): p(f"v_add_f32_dpp v{CS+k}, v{CS+k}, v{CS+k} row_ror:8 row_mask:0xf bank_mask:0xf")
        p(f"v_and_b32 v{VT+3}, 8, v0\nv_cmp_eq_u32 vcc, 0, v{VT+3}\nv_lshlrev_b32 v{VT+3}, 1, v{VT+3}\nv_lshl_add_u32 v{VT+3}, v{VT+1}, 5, v{VT+3}\nv_lshrrev_b32 v{VT+4}, 4, v0\nv_lshl_add_u32 v{VT+3}, v{VT+4}, 8, v{VT+3}")
        p(f"s_lshl_b32 s{T}, s{S_WAVE}, 10\nv_add_u32 v{VT+3}, s{T}, v{VT+3}")
        for k in range(4): p(f"v_cndmask_b32 v{CS+k}, v{CS+4+k}, v{CS+k}, vcc")
        p(f"ds_write_b128 v{VT+3}, {v(CS,4)}")
        p(f"s_lshl_b32 s{T}, s{S_WAVE}, 7\ns_add_u32 s{T}, s{T}, {L_XN}\nv_mul_u32_u24 v{VT}, 7232, v{VT+1}\nv_lshl_add_u32 v{VT}, v{VT+2}, 4, v{VT}\nv_add_u32 v{VT}, s{T}, v{VT}")
        p(f"v_mul_u32_u24 v{VT+2}, {8*c.xts}, v{VT+2}\nv_lshl_add_u32 v{VT+2}, v{VT+1}, 4, v{VT+2}\nv_lshlrev_b32 v{VT+4}, 7, v0")
        p(f"s_mul_i32 s{S_X}, s{S_WAVE}, {c.xts//2}\ns_add_u32 s{S_X}, s{S_X}, s{S_HH}\ns_lshl_b32 s{S_X}, s{S_X}, 7\ns_add_u32 s{S_X}, s{S_X}, {WS_XT}")
        p(f"s_lshr_b32 s{T}, s{S_HH}, 3\ns_lshl2_add_u32 s{S_Y}, s{S_WAVE}, s{T}\ns_lshl_b32 s{S_Y}, s{S_Y}, 7\ns_and_b32 s{T}, s{S_HH}, 7\ns_add_u32 s{S_Y}, s{S_Y}, s{T}\ns_lshl2_add_u32 s{S_Y}, s{S_Y}, {WS_FX}")
        p(f"s_mov_b32 s{S_LO}, 0x05040100\ns_mov_b32 s{S_HI}, 0x07060302\ns_waitcnt lgkmcnt(0)\ns_barrier")
        self.stamp("bar")
        p(f"s_cmp_eq_u32 s{S_WAVE}, 7\ns_cbranch_scc1 L_h7")
        p.alt_begin()
        for j in range(8): p(f"ds_read_b128 {v(XD+4*j,4)}, v{VT} offset:{896*j}")
        if c.h_touch == 2: touch()
        for e in range(8):
            o = WD + 4 * e
            for j in range(4): p(f"v_perm_b32 v{o+j}, v{XD+4*(2*j+1)+(e>>1)}, v{XD+4*(2*j)+(e>>1)}, s{S_HI if e&1 else S_LO}")
            p(f"buffer_store_dwordx4 {v(o,4)}, v{VT+2}, {s(R_WS,4)}, s{S_X} offen sc1")
            if e < 7: p(f"s_add_u32 s{S_X}, s{S_X}, {c.xts}")
        p("s_waitcnt vmcnt(0)")
        if "X" in c.sflag: self.sflags4(S_Y)
        else: p(f"s_mov_b64 exec, 15\nbuffer_store_dword v{AC+3}, v{VT+4}, {s(R_WS,4)}, s{S_Y} offen sc1\ns_mov_b64 exec, -1")
        p("s_branch L_hdone")
        p.alt_else()
        p.label("L_h7")
        p(f"s_setprio 3\ns_cmp_ge_u32 s{S_Q}, 14\ns_cbranch_scc1 L_hdone\nv_lshlrev_b32 v{VT+3}, 2, v0")
        for i in range(16): p(f"ds_read2st64_b32 {v(XD+2*i,2)}, v{VT+3} offset0:{2*i} offset1:{2*i+1}")
        for st in (16, 8, 4, 2):
            for i in range(0, st, 2): p(f"v_pk_add_f32 {v(XD+i,2)}, {v(XD+i,2)}, {v(XD+st+i,2)}")
        p(f"v_add_f32 v{AC+2}, v{XD}, v{XD+1}\nv_lshlrev_b32 v{VT+3}, 3, v0\ns_lshl_b32 s{T}, s{S_CG}, 9\ns_add_u32 s{T}, s{T}, {WS_CS}")
        p(f"buffer_store_dwordx2 {v(AC+2,2)}, v{VT+3}, {s(R_WS,4)}, s{T} offen sc1")
        p.alt_end()
        p.label("L_hdone")
        p("s_setprio 0\ns_waitcnt lgkmcnt(0)")
        self.stamp("done")
        p(f"v_min_u32 v{VT}, 55, v0\ns_sub_u32 s{S_Z}, s{S_J}, 28")
        if c.h_pf:
            p("s_barrier")
            p(f"s_mul_i32 s{T}, s{S_Z}, 7\ns_add_u32 s{T}, s{T}, s{S_WAVE}\ns_mul_i32 s{T}, s{T}, {64*896}\ns_cmp_eq_u32 s{S_WAVE}, 7\ns_cselect_b32 s{T}, {1792*896}, s{T}\nv_lshlrev_b32 v{VT+1}, 7, v{VT}")
            for st in c.h_pf:
                for h in range(2):
                    p(f"s_add_u32 s{T+1}, s{T}, {(16*st+8*h)*896}\nbuffer_load_dword v{VT+2}, v{VT+1}, {s(R_PC,4)}, s{T+1} offen")
        self.stamp("pfw")
        if c.h_act:
            assert c.alay == 0
            p(f"s_lshr_b32 s{T}, s{S_WAVE}, 2\ns_mul_i32 s{T}, s{T}, 56\nv_add_u32 v{VT}, s{T}, v{VT}\nv_lshrrev_b32 v{VT+1}, 4, v{VT}\nv_lshlrev_b32 v{VT+1}, 13, v{VT+1}\nv_and_b32 v{VT}, 15, v{VT}\nv_lshl_add_u32 v{VT+1}, v{VT}, 7, v{VT+1}")
            p(f"s_and_b32 s{T}, s{S_WAVE}, 3\ns_lshl2_add_u32 s{S_X}, s{S_HH}, s{T}\ns_mul_i32 s{S_X}, s{S_X}, {28*2048}\ns_add_u32 s{S_X}, s{S_X}, {WS_ACT}")
            p(f"s_lshl4_add_u32 s{S_Y}, s{S_HH}, s{T}\ns_lshl_b32 s{S_Y}, s{S_Y}, 7\ns_add_u32 s{S_Y}, s{S_Y}, {WS_FA}")
            have = -1
            for st in c.h_act:
                p(f"s_add_u32 s{S_HI}, s{S_X}, {2048*st}")
                if st > have:
                    have = min(x for x in c.fstages if x >= st)
                    p(f"s_add_u32 s{S_LO}, s{S_Y}, {512*have}")
                    self.flag_check(self.flag_load("H", S_LO, 7, None), None, sleep=c.h_sleep)
                p(f"buffer_load_dword v{VT+2}, v{VT+1}, {s(R_WS,4)}, s{S_HI} offen sc1")
                self.stamp(f"pa{st}")
        p(f"s_waitcnt vmcnt(0)")
        self.stamp("pfa")
        p(f"s_cmp_lg_u32 s{S_HH}, 31\ns_cbranch_scc1 L_hend\ns_cmp_lg_u32 s{S_WAVE}, 7\ns_cbranch_scc1 L_hend")
        p(f"v_lshrrev_b32 v{VT}, 2, v0\nv_min_u32 v{VT}, 13, v{VT}\nv_lshlrev_b32 v{VT}, 9, v{VT}\nv_and_b32 v{VT+1}, 3, v0\nv_lshl_add_u32 v{VT}, v{VT+1}, 4, v{VT}\ns_mov_b32 s{S_X}, {WS_FS}")
        ld = f"s_sleep 8\nbuffer_load_dwordx4 {v(XD,4)}, v{VT}, {s(R_WS,4)}, s{S_X} offen sc1"
        p(ld)
        self.tagged_check(ld, [XD, XD + 1, XD + 2, XD + 3], VT + 2)
        p(f"s_mov_b32 s{S_X}, {WS_EPOCH}")
        self.flag_store(S_X, AC + 3)
        p.label("L_hend")
        self.stamp_flush(1)
        p("s_endpgm")

    def layout(self, body):
        c = self.c
        lines = body.split("\n")
        sizes = instr_sizes([re.sub(r"L_hop\d", "L_bodyA", l) for l in lines])
        end = lines.index("L_bodyH:") if c.h_near else lines.index("L_helper:")
        out, addr, page, k = [], 0, 1, 0
        prom = None
        fixed = [0, 0]
        for i, l in enumerate(lines):
            t = l.strip()
            if t.startswith(".p2align"):
                al = 1 << int(t.split()[1]); addr = (addr + al - 1) // al * al; prom = None
            if c.hops and sizes[i] and addr >= 4096 * page and i < end:
                out += [f"L_hop{k}:", f"    s_cbranch_execz {'L_bodyA' if k == 0 else 'HOP%d' % (k + 4)}"]; addr += 4; page += 1; k += 1; prom = None
            if c.align8 and sizes[i] == 8 and addr % 8 == 4:
                run, pend, valu = 0, 0, 0
                for j in range(i, min(len(lines), i + 60)):
                    if sizes[j] == 4: pend ^= 1
                    elif sizes[j] == 8:
                        if pend: break
                        run += 1; valu += lines[j].strip().startswith("v_") and "mfma" not in lines[j]
                if prom is not None and run >= 2:
                    m = re.match(r"(\s*)(v_\w+)(.*)", out[prom]); out[prom] = m.group(1) + m.group(2) + "_e64" + m.group(3); addr += 4; fixed[0] += 1
                elif valu >= c.align8:
                    out.append("    s_nop 0"); addr += 4; fixed[1] += 1
            if sizes[i] == 8: prom = None
            elif sizes[i] == 4 and re.match(r"v_(mov|add|sub|subrev|mul|and|or|xor|lshlrev|lshrrev|exp|rcp|sin|cos|fract|min|max|cvt|sqrt)_", t): prom = len(out)
            out.append(l); addr += sizes[i]
        body = "\n".join(out)
        if c.hops:
            assert c.align4k and k >= 5
            for j in range(k + 3, 4, -1): body = body.replace(f"HOP{j}", f"L_hop{j}" if j < k else "L_hopped")
        self.p.stats["align"] = fixed
        return body
    def build(self):
        p = self.p
        self.entry()
        self.role_a(); self.role_h()
        p.reset()
        p.label("L_exit")
        p("s_endpgm")
        p(".p2align 7")
        p(".type L_gtab,@object")
        p.label("L_gtab")
        w = self.gather_table()
        for i in range(0, len(w), 8): p(".long " + ", ".join(hex(x) for x in w[i:i+8]))
        p.label("L_end")
        body = p.resolve()
        head = open("recurrent_scan__ssm_conv_s4__dense_activation_mish__prompt.s.ref").read().split("; Override launch")[0]
        txt = head + f"; @launch grid=(256,1,1) block=(512,1,1) lds={LDS_BYTES}\n" + DOC + ""
        pad = ".p2align 12\n.fill 832, 4, 0xbf810000\n" if self.c.align4k else ""
        txt += f'.amdgcn_target "amdgcn-amd-amdhsa--gfx950"\n.text\n{pad}.globl {KNAME}\n.p2align 8\n.type {KNAME},@function\n{KNAME}:\n'
        if "m" in self.c.diag or "n" in self.c.diag:
            L = body.split("\n"); out = []; cnt = 0; i = 0
            while i < len(L):
                m = re.match(r"    v_mfma_f32_32x32x16_bf16 v\[(\d+):\d+\], (v\[\d+:\d+\]), (v\[\d+:\d+\]), \S+", L[i])
                if m: cnt += 1
                k = (cnt - 1) // 4
                if not m or ("m" if k < 28 else "n") not in self.c.diag: out.append(L[i]); i += 1; continue
                j = i + 1
                while j < len(L) and re.match(r"\s+(ds_read|buffer_load|s_add|s_nop 0|v_[a-l]|v_mul|v_mov|v_x|s_l|s_m)", L[j]): j += 1
                F = L[i + 1:j]; h = (len(F) + 1) // 2
                a_ = int(m.group(1)) + 4 * (k & 3); r = f"v[{a_}:{a_+3}]"
                out += [f"    v_mfma_f32_16x16x32_bf16 {r}, {m.group(2)}, {m.group(3)}, " + ("0" if k % 28 < 4 else r)] + F[:h]
                out += [f"    v_mfma_f32_16x16x32_bf16 {r}, {m.group(3)}, {m.group(2)}, {r}"] + F[h:]
                i = j
            body = "\n".join(out)
        if self.c.dma_fl: body = re.sub(r" lds$", f" {self.c.dma_fl} lds", body, flags=re.M)
        body = self.layout(body)
        txt += body
        txt += f""".section .rodata,"a"
.p2align 6
.amdhsa_kernel {KNAME}
  .amdhsa_next_free_vgpr 256
  .amdhsa_next_free_sgpr 102
  .amdhsa_accum_offset 256
  .amdhsa_group_segment_fixed_size 0
  .amdhsa_kernarg_size 128
  .amdhsa_user_sgpr_count 2
  .amdhsa_user_sgpr_kernarg_segment_ptr 1
  .amdhsa_system_sgpr_workgroup_id_x 1
.end_amdhsa_kernel
"""
        return txt

def parse_cfg(args):
    kw = {}
    for a in args:
        k, x = a.split("=")
        kw[k] = eval(x)
    return Cfg(**kw)

if __name__ == "__main__":
    out = sys.argv[1]
    g = Gen(parse_cfg(sys.argv[2:]))
    txt = g.build()
    open(out, "w").write(txt)
    import json
    json.dump(g.stamp_names, open(out + ".stamps.json", "w"))
    print(out, g.p.stats)
```

```python
import sys, re
from asmgen import *

KNAME = "recurrent_scan__ssm_conv_s4__dense_activation_mish__prompt_kernel"

class Cfg:
    stamps = False
    sset = 0
    cyc = False
    prole = 'A'
    probe2 = None
    probe = None
    prefetch_code = True
    pf_h = False
    align4k = True
    align8 = 6
    hops = True
    mapP = False
    rot2 = 0
    qperm = False
    g2_mix = True
    g16 = True
    tail16 = 3
    alay = 1
    xts = 4096 + 512
    act_st = 'sc1'
    act_ld = 'sc1'
    fa_st = 'sc1'
    mish_pk = False
    sflag = 'XAS'
    spoll = 'XASH'
    adepth = 7
    flead = 6
    pre_dma = 32
    nfirst = 12
    a_delay = 0
    a_chunks = 4
    dma_per = (8, 8, 8, 8, 8, 8, 8)
    gran_at = 5
    bw2 = (8, 12, 16, 16)
    w2_mish = 0
    fx_ld = 9
    fx_chk = 29
    u_at = 1
    lds_cut = (0, 0, 0, 0, 0, 0, 0)
    r_early = 4
    r_at = 4
    r2 = 8
    nx = 2
    b7_at = -3
    br0 = 0
    late6 = True
    cmajor = True
    ex_n = 0
    side_at = (0, 6)
    side_first = True
    touch_first = True
    out_fl = 'nt'
    mish_skip = 0.0
    w2_lead = 11
    mix_sh = 1
    w2_rate = 0.0
    w2_gap = 2
    rdepth = 4
    fstages = (3,)
    cstages = None
    flag_lag = 2
    gt_at = 2
    b_pre = 1.0
    kg_pre = 9999
    kg_ints = 4
    kg_x = 0.0
    h_w1 = 2
    h_touch = -1
    s_touch = (7, 14, 14, 14, 14)
    h_near = True
    h_align = True
    h_pf = ()
    diag = ''
    tlb_at = -1
    tlb_v = False
    jitter = 0
    h_act = ()
    h_sleep = 4
    rot1 = 3
    fs_sleep = 3
    b_xat = 0
    prio_b = 1
    prio_b2 = 0
    prio_b3 = 1
    prio_b4 = 1
    prio_b5 = 1
    prio_b6 = 0
    prio_b7 = 0
    prio_b8 = 1
    prio_a1 = 2
    prio_a2 = 0
    tail_m = 5
    tail_ld = True
    tail_k = 3
    tail_r = None
    fin_at = (1, 2, 3, 21)
    prio_b9 = 0
    b5_sleep = 1
    pre_loop = 'R12 D20 W F D26 L C A8'
    dma_fl = ''
    def __init__(self, **kw):
        for k, x in kw.items():
            assert hasattr(self, k), k
            setattr(self, k, x)

WS_EPOCH, WS_FX, WS_FA, WS_FS = 0, 0x1000, 0x20000, 0x8000
WS_STAT, WS_CS, WS_XT, WS_ST, WS_ACT, WS_DBG = 0x10000, 0x14000, 0x40000, 0x300000, 0x600000, 0xE00000
ALAY = ((8192, 2048, 1024), (2048, 896 * 2048, 1024), (1024, 896 * 2048, 896 * 1024))
WS_SIZE = 0x1000000
TAGC = 0x9E3779B1
SLOT = 32768
L_RING = 2 * SLOT
L_STG = 0
L_TAB = 512
TCP, TCH = 2240, 9472
L_EX = 0
L_RAW = SLOT + 1024
L_U = L_TAB + 2 * TCH
L_X = L_RAW
L_STR = L_RAW + 21504
L_CNT = L_RAW + 30720
LDS_BYTES = 163840
P_U, P_ARE, P_AIM, P_BRE, P_BIM, P_CRE, P_CIM, P_LDT = 4, 6, 8, 10, 12, 14, 16, 18
P_DSK, P_BX, P_W1, P_B1, P_W2, P_OUT, P_DBG, P_WS = 20, 22, 24, 26, 28, 30, 32, 34
R_LD, R_2, R_WS, R_PC = 36, 40, 44, 48
S_TAG, S_TAG2, S_WAVE, S_XCD, S_J, S_RT, S_CT, S_CP = 52, 53, 54, 55, 56, 57, 58, 97
S_SOFF, S_CSTR, S_LDB, S_CW, S_WT, S_WF = range(64, 70)
VD = 1
B_BW, B_LDT, B_DSK, B_STW, B_VP = 70, 71, 72, 73, 10
S_R2, S_C2 = 60, 61
S_T = 62
S_SP = 80
S_JR, S_XF = 3, 59
S_CNT = 96
S_T0 = 98
LOG2E = 0x3fb8aa3b
POLL_MAX = 1 << 17

DOC = """;
; Hand-offs go through d_ws with write-through stores; flags and tagged words hold a value derived from an epoch word in d_ws,
"""

def srd(p, r, ptr, size):
    p(f"s_mov_b32 s{r}, s{ptr}\ns_mov_b32 s{r+1}, s{ptr+1}\ns_mov_b32 s{r+2}, {size}\ns_mov_b32 s{r+3}, 0x20000")

class Gen:
    def __init__(self, cfg):
        self.c = cfg
        self.p = Prog()
        self.nlab = 0
        self.stamp_names = {}
    def lab(self, base):
        self.nlab += 1
        return f"L_{base}_{self.nlab}"

    def stamp_begin(self, role):
        self.role = role; self.stamp_names[role] = []
    def stamp(self, name, p=None, sets=(0,)):
        if self.c.jitter:
            q = p or self.p; l = self.lab("jit"); k = self.nlab * 40503 + self.c.jitter * 9176
            q(f"s_lshl3_add_u32 s100, s2, s{S_WAVE}\ns_add_u32 s100, s100, {k & 0xffff}\ns_mul_i32 s100, s100, 0x9E3779B1\ns_add_u32 s100, s100, s{S_TAG}\ns_mul_i32 s100, s100, 0x85EBCA6B\ns_lshr_b32 s100, s100, 29\ns_cmp_lg_u32 s100, 0\ns_cbranch_scc1 {l}\ns_sleep {(20, 60, 120)[self.nlab % 3]}")
            q.label(l)
        if self.c.probe2 and self.role == self.c.prole:
            if name == self.c.probe2[0]: (p or self.p)("s_memrealtime s[100:101]")
            if name == self.c.probe2[1]: (p or self.p)("s_memrealtime s[32:33]")
        if self.c.probe == (self.role, name): (p or self.p)("s_memrealtime s[100:101]")
        if not self.c.stamps or self.c.sset not in sets: return
        p = p or self.p
        n = len(self.stamp_names[self.role]); assert n < 15
        self.stamp_names[self.role].append(name)
        p(f"{'s_memtime' if self.c.cyc else 's_memrealtime'} {s(4+2*n, 2)}")
    def stamp_flush(self, vt):
        if self.c.probe2 and self.role == self.c.prole:
            l0, l1 = self.lab("probe"), self.lab("noprobe")
            if self.c.probe2[2] < 0: self.p("s_waitcnt vmcnt(0) lgkmcnt(0)")
            else: self.p(f"s_waitcnt vmcnt(0) lgkmcnt(0)\ns_cmp_lg_u32 s2, {self.c.probe2[2]}\ns_cbranch_scc1 {l1}\ns_cmp_lg_u32 s{S_WAVE}, {5 if self.role == 'B' else 1}\ns_cbranch_scc1 {l1}")
            self.p("s_sub_u32 s32, s32, s100\ns_mul_i32 s32, s32, 20\ns_add_u32 s32, s32, 3000")
            self.p.label(l0)
            self.p(f"s_memrealtime s[30:31]\ns_waitcnt lgkmcnt(0)\ns_sub_u32 s30, s30, s98\ns_cmp_lt_u32 s30, s32\ns_cbranch_scc1 {l0}")
            self.p.label(l1)
        if self.c.probe and self.c.probe[0] == self.role:
            l0 = self.lab("probe")
            self.p("s_waitcnt vmcnt(0) lgkmcnt(0)")
            self.p.label(l0)
            self.p(f"s_memrealtime s[98:99]\ns_waitcnt lgkmcnt(0)\ns_sub_u32 s98, s98, s100\ns_cmp_lt_u32 s98, 6000\ns_cbranch_scc1 {l0}")
        if not self.c.stamps: return
        p = self.p
        n = len(self.stamp_names[self.role])
        p("s_waitcnt vmcnt(0) lgkmcnt(0)\ns_mov_b64 exec, 1")
        p(f"s_lshl_b32 s{S_T}, s2, 3\ns_add_u32 s{S_T}, s{S_T}, s{S_WAVE}\ns_lshl_b32 s{S_T}, s{S_T}, 6\ns_add_u32 s{S_T}, s{S_T}, {WS_DBG}")
        p(f"v_mov_b32 v{vt}, s{S_T0}\nbuffer_store_dword v{vt}, off, {s(R_WS,4)}, s{S_T}")
        for i in range(n):
            p(f"v_mov_b32 v{vt+1+(i&1)}, s{4+2*i}\nbuffer_store_dword v{vt+1+(i&1)}, off, {s(R_WS,4)}, s{S_T} offset:{4+4*i}")
        p("s_waitcnt vmcnt(0)")

    def flag_store(self, soff, vt):
        p = self.p
        p(f"s_mov_b64 exec, 1\nbuffer_store_dword v{vt}, off, {s(R_WS,4)}, s{soff} sc1\ns_mov_b64 exec, -1")
    def sflags4(self, soff):
        for i in range(4):
            self.p(f"s_atomic_swap s{S_TAG}, {s(R_WS,2)}, s{soff}")
            if i < 3: self.p(f"s_add_u32 s{soff}, s{soff}, 128")
    def lds_post(self, vown, vtag, k):
        self.p(f"s_mov_b64 exec, 1\nds_write_b32 v{vown}, v{vtag} offset:{16*k}\ns_mov_b64 exec, -1")
    def lds_wait(self, vaddr, vt, k, sleep=0):
        p = self.p
        l0, l1 = self.lab("spin"), self.lab("spun")
        p(f"s_mov_b32 s{S_CNT}, 0")
        p.label(l0)
        if sleep: p(f"s_sleep {sleep}")
        p(f"ds_read_b32 v{vt}, v{vaddr} offset:{16*k}\ns_add_u32 s{S_CNT}, s{S_CNT}, 1\ns_cmp_gt_u32 s{S_CNT}, {POLL_MAX*8}\ns_waitcnt lgkmcnt(0)")
        p(f"v_cmp_ne_u32 vcc, s{S_TAG}, v{vt}\ns_cbranch_scc1 {l1}\ns_cbranch_vccnz {l0}")
        p.label(l1)
    def lds_peek(self, vaddr, vt, k):
        self.p(f"ds_read_b32 v{vt}, v{vaddr} offset:{16*k}")
    def lds_check(self, vaddr, vt, k, fill=None):
        p = self.p
        l1 = self.lab("pass")
        p(f"v_cmp_ne_u32 vcc, s{S_TAG}, v{vt}")
        if fill: fill()
        p(f"s_cbranch_vccz {l1}")
        p.alt_begin(); self.lds_wait(vaddr, vt, k); p.alt_end()
        p.label(l1)
    def tagged_check(self, loads, tagregs, vt, on_miss=None):
        p = self.p
        l0, l1 = self.lab("chk"), self.lab("chkd")
        p(f"s_mov_b32 s{S_CNT}, 0")
        for r in reversed(tagregs): p.items.append(Marker("need", r))
        p.label(l0)
        p(f"v_xor_b32 v{vt}, s{S_TAG}, v{tagregs[0]}")
        for r in tagregs[1:]:
            p(f"v_bitop3_b32 v{vt}, v{r}, s{S_TAG}, v{vt} bitop3:0xbe")
        p(f"v_cmp_ne_u32 vcc, 0, v{vt}\ns_add_u32 s{S_CNT}, s{S_CNT}, 1\ns_cbranch_vccz {l1}")
        p(f"s_cmp_gt_u32 s{S_CNT}, {POLL_MAX}\ns_cbranch_scc1 {l1}")
        p.alt_begin()
        if on_miss:
            l3 = self.lab("again")
            p(f"s_cmp_lg_u32 s{S_CNT}, 1\ns_cbranch_scc1 {l3}")
            p.alt_begin(); on_miss(); p.alt_end()
            p.label(l3)
        p(loads)
        p(f"s_waitcnt vmcnt(0)\ns_branch {l0}")
        p.alt_end()
        p.label(l1)

    def entry(self):
        p, c = self.p, self.c
        T = S_T
        p(f"s_load_dwordx16 s[4:19], s[0:1], 0\ns_load_dwordx16 s[20:35], s[0:1], 64")
        p(f"s_cmp_ge_u32 s2, 256\ns_cbranch_scc1 L_exit")
        if c.stamps: p(f"{'s_memtime' if c.cyc else 's_memrealtime'} {s(S_T0,2)}")
        if c.probe and c.probe[1] == "start": p("s_memrealtime s[100:101]")
        if c.probe2: p("s_memrealtime s[98:99]\ns_memrealtime s[100:101]")
        if "k" in c.diag: p("s_waitcnt lgkmcnt(0)\ns_memtime s[100:101]")
        p(f"v_lshrrev_b32 v1, 6, v0\nv_and_b32 v0, 63, v0\nv_readfirstlane_b32 s{S_WAVE}, v1")
        p(f"s_and_b32 s{S_XCD}, s2, 7\ns_lshr_b32 s{S_J}, s2, 3")
        p(f"s_getpc_b64 {s(R_PC,2)}")
        p.label("L_pc")
        p(f"s_mov_b32 s{R_PC+2}, L_end-L_pc\ns_mov_b32 s{R_PC+3}, 0x20000")
        if c.prefetch_code and not c.pf_h:
            p(f"s_lshl3_add_u32 s{T}, s{S_J}, s{S_WAVE}\ns_lshl_b32 s{T}, s{T}, 7")
            p(f"buffer_load_dword v255, off, {s(R_PC,4)}, s{T}")
        p(f"s_mov_b32 s{R_WS+2}, {WS_SIZE}\ns_mov_b32 s{R_WS+3}, 0x20000")
        p(f"s_cmp_ge_u32 s{S_J}, 28\ns_cbranch_scc1 L_helper")
        p(f"s_mul_i32 s{S_JR}, s{S_J}, 37\ns_lshr_b32 s{S_JR}, s{S_JR}, 8\ns_mul_i32 s{T}, s{S_JR}, 7\ns_sub_u32 s{S_C2}, s{S_J}, s{T}")
        if c.mapP: p(f"s_lshr_b32 s{S_RT}, s{S_JR}, 1\ns_lshl1_add_u32 s{S_RT}, s{S_XCD}, s{S_RT}\ns_and_b32 s{S_XF}, s{S_JR}, 1")
        else: p(f"s_lshr_b32 s{S_RT}, s{S_XCD}, 1\ns_lshl2_add_u32 s{S_RT}, s{S_RT}, s{S_JR}\ns_and_b32 s{S_XF}, s{S_XCD}, 1")
        p(f"s_cmp_lt_u32 s{S_WAVE}, 4\ns_cbranch_scc1 L_common")
        p.alt_begin()
        if c.prio_b: p(f"s_setprio {c.prio_b}")
        p(f"s_sub_u32 s{B_BW}, s{S_WAVE}, 4\ns_mul_i32 s{S_CP}, s{S_XCD}, 28\ns_add_u32 s{S_CP}, s{S_CP}, s{S_J}\ns_lshl_b32 s{T}, s{S_CP}, 2")
        p(f"s_add_u32 s{B_STW}, s{T}, s{B_BW}\ns_lshl_b32 s{B_STW}, s{B_STW}, 8\nv_lshl_add_u32 v50, v0, 2, s{B_STW}")
        p(f"s_load_dword s{B_LDT}, {s(P_LDT,2)}, s{T}")
        for i, ptr in enumerate((P_ARE, P_AIM, P_BRE, P_BIM, P_CRE, P_CIM)):
            p(f"global_load_dword v{B_VP+i}, v50, {s(ptr,2)}")
        p(f"s_load_dword s{B_DSK}, {s(P_DSK,2)}, s{T}")
        if c.prio_b != c.prio_b2: p(f"s_setprio {c.prio_b2}")
        p.alt_end()
        p.label("L_common")
        VT, S_X, S_Y = 24, 78, 79
        p(f"s_and_b32 s{S_WT}, s{S_WAVE}, 1\ns_bfe_u32 s{S_WF}, s{S_WAVE}, 0x10001\ns_mul_i32 s{S_CT}, s{S_XF}, 7\ns_add_u32 s{S_CT}, s{S_CT}, s{S_C2}")
        p(f"s_lshl1_add_u32 s{T}, s{S_RT}, s{S_WF}\ns_mul_i32 s{T}, s{T}, {64*896}")
        p(f"s_mul_i32 s{T+1}, s{S_WF}, {32*14}\ns_add_u32 s{T+1}, s{T+1}, s{S_CT}\ns_lshl_b32 s{T+1}, s{T+1}, 8")
        p(f"s_lshl1_add_u32 s{S_LDB}, s{S_WT}, s{S_WF}\ns_lshl_b32 s{S_LDB}, s{S_LDB}, 13")
        p(f"s_add_u32 s{S_X}, s{S_WT}, 3\nv_lshrrev_b32 v{VT}, s{S_X}, v0\ns_lshl_b32 s{S_X}, s{S_WT}, 1\nv_lshrrev_b32 v{VT+1}, 4, v0\nv_lshlrev_b32 v{VT+1}, s{S_X}, v{VT+1}")
        p(f"s_lshl_b32 s{S_Y}, 896, s{S_X}\nv_xor_b32 v{VT+1}, v0, v{VT+1}\nv_mul_u32_u24 v{VT}, s{S_Y}, v{VT}")
        p(f"s_cmp_eq_u32 s{S_WT}, 0")
        p(f"s_cselect_b32 s{S_SOFF}, s{T}, s{T+1}\ns_cselect_b32 s{S_CSTR}, 1, {64*28}\ns_cselect_b32 s{S_X}, 7, 15\ns_cselect_b32 s{S_Y}, 64, 0\ns_cselect_b32 s{R_LD+2}, 8, 7")
        p(f"v_and_b32 v{VT+1}, s{S_X}, v{VT+1}\nv_lshl_add_u32 v{VD}, v{VT+1}, 4, v{VT}\nv_xor_b32 v{VD+1}, s{S_Y}, v{VD}")
        p(f"s_lshl_b32 s{S_CSTR}, s{S_CSTR}, 7")
        if c.rot1 == 1: p(f"s_mov_b32 s{S_J}, s{S_C2}")
        if c.rot1 == 3: p(f"s_and_b32 s{S_J}, s{S_XCD}, 6")
        if c.rot1 == 4: p(f"s_lshr_b32 s{S_J}, s{S_XCD}, 1\ns_and_b32 s{S_J}, s{S_J}, 1\ns_mul_i32 s{S_J}, s{S_J}, 3")
        if c.rot1 == 5: p(f"s_min_u32 s{S_J}, s{S_XCD}, 6")
        if c.rot1: p(f"s_mul_i32 s{T}, s{S_J}, s{S_CSTR}\ns_add_u32 s{S_SOFF}, s{S_SOFF}, s{T}\ns_mul_i32 s{S_CW}, s{S_CSTR}, 7")
        p(f"s_mul_i32 s{R_LD+2}, s{R_LD+2}, {256*896}\ns_mov_b32 s{R_LD+3}, 0x20000\ns_lshl_b32 s{S_Y}, 7168, s{S_WT}")
        p(f"s_sub_u32 s{T}, s{S_Y}, 1024\nv_add_u32 v{VD+1}, s{T}, v{VD+1}\ns_lshl_b32 s{T}, s{T}, 1")
        p(f"v_add_u32 v{VD+2}, s{T}, v{VD}\nv_add_u32 v{VD+3}, s{T}, v{VD+1}\ns_lshl_b32 s{T}, s{S_Y}, 2")
        for i in range(4): p(f"v_add_u32 v{VD+4+i}, s{T}, v{VD+i}")
        p(f"s_cmp_ge_u32 s{S_WAVE}, 4\ns_cbranch_scc1 L_roleB")
    def loader_base(self):
        self.p(f"s_cmp_eq_u32 s{S_WT}, 0\ns_cselect_b32 s{R_LD}, s{P_U}, s{P_W1}\ns_cselect_b32 s{R_LD+1}, s{P_U+1}, s{P_W1+1}")
    def dma_chunk(self, n, T, ctok):
        r = []
        for i in range(8):
            q = Prog()
            if i % 4 == 0: q(f"s_add_u32 m0, s{S_LDB}, {(3, 4, 1, 2)[n % 4]*SLOT + (i//4)*4096}")
            ctok[n] = q.tok(f"buffer_load_dwordx4 v{VD+i}, {s(R_LD,4)}, s{S_SOFF} offen offset:{(i%4)*1024} lds")
            if i == 7 and n < 6:
                q(f"s_add_u32 s{S_SOFF}, s{S_SOFF}, s{S_CSTR}")
                if self.c.rot1: q(f"s_cmp_eq_u32 s{S_J}, {6-n}\ns_cselect_b32 s{T}, s{S_CW}, 0\ns_sub_u32 s{S_SOFF}, s{S_SOFF}, s{T}")
            r.append(q.items)
        return r
    def role_start(self, b=False):
        p = self.p
        p.reset()
        if self.c.prefetch_code and not self.c.pf_h: p.items.append(Marker("pending", ("vmem", {"v255"})))
        if b:
            p.items.append(Marker("pending", ("smem", {f"s{B_LDT}", f"s{B_DSK}"})))
            for i in range(6): p.items.append(Marker("pending", ("vmem", {f"v{B_VP+i}"})))
        else:
            p.items.append(Marker("pending", ("smem", {f"s{i}" for i in range(4, 36)})))
    def load_epoch(self):
        self.p(f"s_load_dword s{S_TAG}, {s(P_WS,2)}, {WS_EPOCH}\ns_mov_b32 s{R_WS}, s{P_WS}\ns_mov_b32 s{R_WS+1}, s{P_WS+1}")
    def make_tag(self):
        self.p(f"s_add_u32 s{S_TAG}, s{S_TAG}, {TAGC}\ns_mov_b32 s{S_TAG2}, s{S_TAG}")
    def flag_load(self, which, soff, n, va, q=None):
        if which in self.c.spoll:
            w = 8 if n <= 8 else 16
            txt = f"s_buffer_load_dwordx{w} {s(S_SP,w)}, {s(R_WS,4)}, s{soff} glc"
        else:
            txt = f"buffer_load_dword v{va+1}, v{va}, {s(R_WS,4)}, s{soff} offen sc1"
        (q or self.p)(txt)
        return (which, txt, n, va)
    def flag_check(self, fl, vt, sleep=0, on_miss=None):
        which, txt, n, va = fl
        p = self.p
        if sleep: txt = f"s_sleep {sleep}\n" + txt
        if which not in self.c.spoll:
            return self.tagged_check(txt, [va + 1], vt, on_miss)
        l0, l1, l2 = self.lab("chk"), self.lab("retry"), self.lab("chkd")
        p(f"s_mov_b32 s{S_CNT}, 0")
        p.label(l0)
        p("s_waitcnt lgkmcnt(0)")
        for i in range(0, n - 2, 2): p(f"s_cmp_eq_u64 {s(S_SP+i,2)}, {s(S_TAG,2)}\ns_cbranch_scc0 {l1}")
        if n & 1: p(f"s_cmp_eq_u32 s{S_SP+n-1}, s{S_TAG}\ns_cbranch_scc1 {l2}")
        else: p(f"s_cmp_eq_u64 {s(S_SP+n-2,2)}, {s(S_TAG,2)}\ns_cbranch_scc1 {l2}")
        p.alt_begin()
        p.label(l1)
        if on_miss:
            l3 = self.lab("again")
            p(f"s_cmp_lg_u32 s{S_CNT}, 0\ns_cbranch_scc1 {l3}")
            p.alt_begin(); on_miss(); p.alt_end()
            p.label(l3)
        p(txt)
        p(f"s_add_u32 s{S_CNT}, s{S_CNT}, 1\ns_cmp_le_u32 s{S_CNT}, {POLL_MAX}\ns_cbranch_scc1 {l0}\ns_waitcnt lgkmcnt(0)")
        p.alt_end()
        p.label(l2)

    def fin_addr(self, ps, F, part):
        p, VT, T = self.p, F["VT"], S_T
        if part == 0:
            p(f"v_bfe_u32 v{VT+1}, v0, 2, 1\nv_lshrrev_b32 v{VT+2}, 3, v0\nv_and_b32 v{VT+3}, 3, v0\nv_lshl_add_u32 v{VT+4}, v{VT+1}, 4, v{VT+2}")
            p(f"v_mul_u32_u24 v{F['XO']}, 896, v{VT+4}\nv_lshl_add_u32 v{F['XO']}, v{VT+3}, 4, v{F['XO']}\nv_lshlrev_b32 v{F['STA']}, 3, v{VT+4}")
            a = F["PA"]
            p(f"v_xor_b32 v{a}, s{S_WF}, v{VT+1}\nv_lshlrev_b32 v{a}, 3, v{a}\nv_lshl_add_u32 v{a}, v{VT+3}, 1, v{a}\nv_xor_b32 v{a}, v{a}, v{VT+2}")
            p(f"s_lshl3_add_u32 s{T}, s{S_WT}, {(L_RING+ps*SLOT)//256}\nv_add_u32 v{VT+4}, s{T}, v{VT+4}\nv_lshlrev_b32 v{VT+4}, 8, v{VT+4}\nv_lshl_add_u32 v{a}, v{a}, 4, v{VT+4}\nv_xor_b32 v{a+1}, 16, v{a}")
        else:
            p(f"s_mul_i32 s{T}, s{F['w']}, 2304\ns_add_u32 s{T}, s{T}, {L_STR+1152*ps}\nv_mul_u32_u24 v{F['SA']}, 288, v{VT+3}\nv_and_b32 v{VT+4}, 60, v0\nv_add3_u32 v{F['SA']}, v{F['SA']}, v{VT+4}, s{T}")
            x, t = F["sXO"], F["sST"]
            p(f"s_lshl3_add_u32 s{x}, s{S_R2}, s{S_WT}\ns_add_u32 s{x}, s{x}, {4*ps}\ns_lshl_b32 s{t}, s{x}, 6\ns_add_u32 s{t}, s{t}, {WS_STAT}\ns_mul_i32 s{x}, s{x}, {8*896}\ns_lshl1_add_u32 s{T}, s{S_C2}, s{S_WF}\ns_lshl_b32 s{T}, s{T}, 6\ns_add_u32 s{x}, s{x}, s{T}")
    def fin_loads(self, F):
        self.p(f"buffer_load_dword v{F['RG']}, v{F['STA']}, {s(R_WS,4)}, s{F['sST']} offen sc1\nbuffer_load_dwordx4 {v(F['XI'],4)}, v{F['XO']}, {s(R_LD,4)}, s{F['sXO']} offen")
    def fin_prep(self, F):
        q = Prog(); r, c_, x = F["RG"], F["RC"], F["XF"]
        q(f"v_and_b32 v{r}, 0xffff0000, v{r}\nv_rcp_f32 v{r}, v{r}")
        for j in range(4): q(f"v_lshlrev_b32 v{x+2*j}, 16, v{F['XI']+j}\nv_and_b32 v{x+2*j+1}, 0xffff0000, v{F['XI']+j}")
        q(f"v_mul_f32 v{c_}, {LOG2E | 0x80000000}, v{r}\nv_mul_f32 v{c_+1}, {LOG2E | 0x80000000}, v{r}")
        return q.items
    def fin_sread(self, F):
        for i in range(4): self.p(f"ds_read_b32 v{F['SV']+i}, v{F['SA']} offset:{64*i}")
    def fin_sprep(self, F):
        q = Prog(); f = F["SF"]
        for i in range(4): q(f"v_lshlrev_b32 v{f+2*i}, 16, v{F['SV']+i}\nv_and_b32 v{f+2*i+1}, 0xffff0000, v{F['SV']+i}")
        for i in range(8): q(f"v_mul_f32 v{f+i}, v{f+i}, v{F['RG']}")
        return q.items
    def fin_out(self, F, fill=()):
        p, b = self.p, F["PV"]
        for w in range(4):
            for e in range(2): p(f"ds_read_b128 {v(b+8*w+4*e,4)}, v{F['PA']+e} offset:{8192*w}")
        p.extend(list(fill))
        for i in range(0, 8, 2): p(f"v_pk_add_f32 {v(b+i,2)}, {v(b+i,2)}, {v(b+8+i,2)}")
        for i in range(0, 8, 2): p(f"v_pk_add_f32 {v(b+16+i,2)}, {v(b+16+i,2)}, {v(b+24+i,2)}")
        for i in range(0, 8, 2): p(f"v_pk_add_f32 {v(b+i,2)}, {v(b+i,2)}, {v(b+16+i,2)}")
        for i in range(0, 8, 2): p(f"v_pk_mul_f32 {v(b+8+i,2)}, {v(b+i,2)}, {v(F['RC'],2)}")
        for i in range(8): p(f"v_exp_f32 v{b+8+i}, v{b+8+i}")
        for i in range(0, 8, 2): p(f"v_pk_mul_f32 {v(b+i,2)}, {v(b+i,2)}, {v(F['SF']+i,2)}")
        for i in range(0, 8, 2): p(f"v_pk_add_f32 {v(b+8+i,2)}, {v(b+8+i,2)}, 1.0 op_sel_hi:[1,0]")
        for i in range(8): p(f"v_rcp_f32 v{b+8+i}, v{b+8+i}")
        for i in range(0, 8, 2): p(f"v_pk_fma_f32 {v(b+i,2)}, {v(b+i,2)}, {v(b+8+i,2)}, {v(F['XF']+i,2)}")
        for i in range(4): p(f"v_cvt_pk_bf16_f32 v{b+16+i}, v{b+2*i}, v{b+2*i+1}")
        p(f"buffer_store_dwordx4 {v(b+16,4)}, v{F['XO']}, {s(F['OUT'],4)}, s{F['sXO']} offen {self.c.out_fl}")

    def role_a(self):
        p, c = self.p, self.c
        self.role_start(); self.stamp_begin("A")
        VXA, VWA, VW2A, VW2D, VL16, VFL, VC1, VT = 9, 13, 15, 19, 21, 22, 2, 24
        ACC, FR, W2R, AB = 32, 96, 96, 192
        S_ACTW, S_FAW, S_FAR, S_RING, S_ACTR, S_W2B, S_Z = range(70, 77)
        R_OUT = 64
        PS, SS, TS = ALAY[c.alay]
        if c.g16: PS, SS = 4096, 896 * 4096
        S_X = 78; S_Y = 79
        T = S_T
        if "K" in c.diag: p("s_memtime s[100:101]")
        self.loader_base()
        ctok = {}
        dq = []
        for n in range(c.a_chunks): dq += self.dma_chunk(n, T, ctok)
        self.stamp("dma0", sets=(1,))
        if "k" in c.diag.lower():
            self.stamp("karg", sets=(1,)); p("s_waitcnt lgkmcnt(0)\ns_mov_b32 s6, s100")
        if c.a_delay: p(f"s_waitcnt lgkmcnt(0)"); p("\n".join(["s_nop 15"] * c.a_delay))
        for it in dq[:c.nfirst]: p.extend(it)
        self.load_epoch()
        if c.hops:
            p(f"s_mov_b64 exec, 0\ns_cmp_eq_u32 s{S_WAVE}, 3\ns_cbranch_scc1 L_hop0")
        p("s_branch L_bodyA")
        role = self.role
        if c.h_near: self.head_h()
        self.role_b()
        self.role = role
        p.label("L_bodyA")
        p.reset()
        p.items.append(Marker("pending", ("smem", {f"s{S_TAG}", "s94", "s95"})))
        if c.prefetch_code and not c.pf_h: p.items.append(Marker("pending", ("vmem", {"v255"})))
        for i in range(c.nfirst): p.items.append(Marker("pending", ("vmem", set(), ctok[i // 8] if i % 8 == 7 else None)))
        if c.hops: p("s_mov_b64 exec, -1")
        p(f"v_and_b32 v{VT}, 31, v0\nv_lshrrev_b32 v{VT+1}, 5, v0\nv_bfe_u32 v{VT+2}, v0, 1, 3\nv_xor_b32 v{VT+1}, v{VT+1}, v{VT+2}\nv_lshlrev_b32 v{VT+1}, 4, v{VT+1}")
        p(f"v_lshl_add_u32 v{VT+1}, v{VT}, 7, v{VT+1}\ns_add_u32 s{S_X}, s{S_WT}, 12\ns_lshl_b32 s{S_X}, s{S_X}, 13\nv_add_u32 v{VXA}, s{S_X}, v{VT+1}")
        for k in range(1, 4): p(f"v_xor_b32 v{VXA+k}, {32*k}, v{VXA}")
        p(f"s_lshl_b32 s{S_RING}, s{S_WAVE}, 13\ns_add_u32 s{S_RING}, s{S_RING}, {L_RING}")
        p(f"v_bfe_u32 v{VT}, v0, 4, 1\nv_lshlrev_b32 v{VT}, 5, v{VT}\nv_and_b32 v{VT+1}, 3, v0\nv_lshl_add_u32 v{VT}, v{VT+1}, 3, v{VT}")
        p(f"v_bfe_u32 v{VT+1}, v0, 2, 2\nv_lshrrev_b32 v{VT+2}, 5, v0")
        p(f"v_lshl_add_u32 v{VT+3}, v{VT+2}, 3, v{VT+1}\nv_lshl_add_u32 v{VT+3}, v{VT+3}, 8, v{VT}")
        p(f"s_lshl1_add_u32 s{S_Y}, s{S_WF}, 0x600\nv_xor_b32 v{VT+4}, s{S_Y}, v{VT+1}\nv_lshl_add_u32 v{VWA}, v{VT+4}, 6, v{VT+3}")
        if c.qperm: p(f"s_lshl1_add_u32 s{S_Z}, s{S_RT}, s{S_WT}\ns_and_b32 s{S_Z}, s{S_Z}, 3\ns_lshl_b32 s{S_Y}, s{S_Z}, 5\nv_xor_b32 v{VWA}, s{S_Y}, v{VWA}\ns_lshl_b32 s{S_Z}, s{S_Z}, 4")
        else: p(f"s_mov_b32 s{S_Z}, 0")
        p(f"v_xor_b32 v{VWA+1}, 64, v{VWA}")
        if c.g16:
            assert c.br0 >= 0 and not c.rot2 and c.nx == 2 and c.fstages == (3,) and not c.w2_mish
            p(f"v_lshrrev_b32 v{VT+3}, 2, v0\nv_bfe_u32 v{VT+4}, v0, 3, 2\nv_lshl_add_u32 v{VT+3}, v{VT+3}, 2, v{VT+4}\nv_and_b32 v{VT+4}, 3, v0\nv_lshl_add_u32 v{VT+3}, v{VT+3}, 2, v{VT+4}")
            p(f"s_lshl_b32 s{S_X}, s{S_WAVE}, 13\nv_lshl_add_u32 v{VW2A}, v{VT+3}, 3, s{S_X}")
        else:
            p(f"v_lshl_add_u32 v{VT+3}, v{VT+2}, 2, v{VT+1}\nv_lshl_add_u32 v{VT+3}, v{VT+3}, 7, v{VT}")
            p(f"v_lshrrev_b32 v{VT+4}, 1, v{VT+1}\nv_lshl_add_u32 v{VT+3}, v{VT+4}, 6, v{VT+3}\nv_add_u32 v{VW2A}, s{S_RING}, v{VT+3}")
        srd(p, R_2, P_W2, 1792 * 896)
        VB1 = 30
        p(f"s_lshl1_add_u32 s{S_Y}, s{S_CT}, s{S_WF}\ns_lshl_b32 s{S_X}, s{S_Y}, 7\nv_xor_b32 v{VB1+1}, s{S_Z}, v0\nv_lshl_add_u32 v{VB1}, v{VB1+1}, 1, s{S_X}\nglobal_load_ushort v{VB1}, v{VB1}, {s(P_B1,2)}")
        self.stamp("setup", sets=(1,))
        for it in dq[c.nfirst:c.pre_dma]: p.extend(it)
        VB1 = 30
        q = p
        VGA = 26
        if c.g16: q("\n".join(f"v_xor_b32 v{VW2A+k}, {32*k}, v{VW2A}" for k in range(1, 4)))
        else: q(f"v_xor_b32 v{VW2A+1}, 64, v{VW2A}\nv_add_u32 v{VW2A+2}, 0x10000, v{VW2A}\nv_xor_b32 v{VW2A+3}, 64, v{VW2A+2}")
        if c.br0 >= 0 and not c.g16: q(f"v_xor_b32 v{VFL}, 0x10000, v{VW2A}\nv_xor_b32 v{VFL+1}, 0x10000, v{VW2A+1}")
        late = Prog(); q = late
        q(f"s_lshl1_add_u32 s{T+1}, s{S_RT}, s{S_WT}\ns_lshl_b32 s{S_X}, s{T+1}, 9\ns_add_u32 s{S_X}, s{S_X}, {WS_STAT}\nv_lshl_add_u32 v{VGA}, v0, 3, s{S_X}")
        q(f"s_lshl1_add_u32 s{S_Y}, s{S_CT}, s{S_WF}\ns_lshl_b32 s{S_X}, s{S_Y}, 9\ns_add_u32 s{S_X}, s{S_X}, {WS_CS}\nv_lshl_add_u32 v{VGA+1}, v{VB1+1}, 3, s{S_X}")
        q(f"s_mul_i32 s{S_ACTW}, s{T+1}, 28\ns_add_u32 s{S_ACTW}, s{S_ACTW}, s{S_Y}\ns_mul_i32 s{S_ACTW}, s{S_ACTW}, {PS}\ns_add_u32 s{S_ACTW}, s{S_ACTW}, {WS_ACT}")
        q(f"s_mul_i32 s{S_X}, s{S_Y}, 37\ns_lshr_b32 s{S_X}, s{S_X}, 8\ns_mul_i32 s{S_X}, s{S_X}, 25\ns_add_u32 s{S_X}, s{S_X}, s{S_Y}")
        q(f"s_lshl_b32 s{S_FAW}, s{T+1}, 9\ns_add_u32 s{S_FAW}, s{S_FAW}, s{S_X}\ns_lshl2_add_u32 s{S_FAW}, s{S_FAW}, {WS_FA}")
        q(f"s_lshl2_add_u32 s{S_R2}, s{S_XCD}, s{S_JR}")
        q(f"s_lshl4_add_u32 s{S_FAR}, s{S_R2}, s{S_WAVE}\ns_lshl_b32 s{S_FAR}, s{S_FAR}, 7\ns_add_u32 s{S_FAR}, s{S_FAR}, {WS_FA}")
        q(f"v_lshlrev_b32 v{VL16}, 4, v0")
        VST = VFL
        if c.g16: q(f"v_and_b32 v{VST}, 0xf0, v{VL16}\nv_lshrrev_b32 v{VT+4}, 5, v0\nv_lshl_add_u32 v{VST}, v{VT+4}, 8, v{VST}\nv_bfe_u32 v{VT+4}, v0, 4, 1\nv_lshl_add_u32 v{VST}, v{VT+4}, 10, v{VST}")
        if "A" not in c.spoll: q(f"v_min_u32 v{VFL}, 6, v0\nv_lshlrev_b32 v{VFL}, 2, v{VFL}")
        q(f"v_lshrrev_b32 v{VT+4}, 3, v0\nv_mul_u32_u24 v{VT+4}, 896, v{VT+4}\nv_bfe_u32 v{VT+1}, v0, 4, {2 if c.g16 else 1}\nv_lshlrev_b32 v{VT+1}, {1 if c.g16 else 2}, v{VT+1}\nv_xor_b32 v{VT+1}, v0, v{VT+1}\nv_and_b32 v{VT+1}, 7, v{VT+1}")
        q(f"v_lshl_add_u32 v{VW2D}, v{VT+1}, 4, v{VT+4}\nv_add_u32 v{VW2D+1}, {(14336 if c.g16 else 7168)-1024}, v{VW2D}")
        q(f"s_lshl2_add_u32 s{S_ACTR}, s{S_R2}, s{S_WAVE}\ns_mul_i32 s{S_ACTR}, s{S_ACTR}, {7*PS}\ns_add_u32 s{S_ACTR}, s{S_ACTR}, {WS_ACT}")
        q(f"s_mul_i32 s{S_W2B}, s{S_WAVE}, {448*7}\ns_add_u32 s{S_W2B}, s{S_W2B}, s{S_C2}\ns_lshl_b32 s{S_W2B}, s{S_W2B}, 7")
        q(f"s_lshl2_add_u32 s{S_X}, s{S_WAVE}, {L_CNT}\nv_mov_b32 v{VT+5}, s{S_X}")
        lateg = [[it] for it in late.items]
        S_AO = list(range(88, 95)); S_WO = [34, 35, 48, 49, 50, 51, 77]; S_ROT = 95
        if c.rot2:
            q = Prog()
            if c.rot2 == 1: q(f"s_mov_b32 s{S_ROT}, s{S_C2}")
            else: q(f"s_lshl1_add_u32 s{S_ROT}, s{S_JR}, s{S_C2}\ns_cmp_ge_u32 s{S_ROT}, 7\ns_cselect_b32 s{T+1}, 7, 0\ns_sub_u32 s{S_ROT}, s{S_ROT}, s{T+1}")
            lateg.append(q.items)
            for i in range(7):
                q = Prog()
                q(f"s_cmp_ge_u32 s{S_ROT}, {7-i}\ns_cselect_b32 s{T+1}, {i-7}, {i}\ns_add_u32 s{T+1}, s{T+1}, s{S_ROT}")
                lateg.append(q.items); q = Prog()
                q(f"s_mul_i32 s{S_AO[i]}, s{T+1}, {PS}\ns_add_u32 s{S_AO[i]}, s{S_AO[i]}, s{S_ACTR}\ns_mul_i32 s{S_WO[i]}, s{T+1}, {64*896}\ns_add_u32 s{S_WO[i]}, s{S_WO[i]}, s{S_W2B}")
                lateg += [[it] for it in q.items]
        S_Q = [S_ROT, S_W2B, S_ACTR, S_CT]
        if c.qperm:
            assert c.rot2
            q = Prog()
            for i in range(4): q(f"s_xor_b32 s{S_Q[i]}, s{S_JR}, {i}\ns_mul_i32 s{S_Q[i]}, s{S_Q[i]}, {16*896}")
            lateg += [[it] for it in q.items]
        self.make_tag()
        p(f"v_mov_b32 v{VT}, s{S_TAG}")
        GR = AB
        gloads = f"buffer_load_dwordx2 {v(GR,2)}, v{VGA}, {s(R_WS,4)}, 0 offen sc1\nbuffer_load_dwordx2 {v(GR+2,2)}, v{VGA+1}, {s(R_WS,4)}, 0 offen sc1"
        piece = [0, 1, 2, 0, 1, 2, 0]; pred = {3: 0, 4: 1, 5: 2, 6: 3}
        if c.br0 >= 0:
            piece = [-2, 0, 1, 2, 0, 1, 2]; pred = {4: 1, 5: 2, 6: 3}
            assert c.r_early == 4 and "A" in c.spoll
        wtok, rtok = {}, {}
        w2reg = lambda n: W2R + 8 * ((6, 7, 8, 9, 10, 11, 2, 3, 4, 5, 0, 1)[n] if n < 12 else 6 + (n - 12) % 5)
        areg = lambda n: AB + 8 * (n % 8) if n < 22 else W2R + 8 * (n - 22)
        xtra = lambda n: 24 <= n < 24 + c.nx
        wpair = lambda m: W2R + 16 * ((3, 4, 5, 1, 2, 0)[m] if m < 6 else 3 + m % 3)
        S_D0, S_D1 = 88, 89
        def dma_w2(n):
            q = Prog(); gi = n >> 2
            if gi in pred and not xtra(n): q.wait(rtok[4 * pred[gi] + (n & 3)])
            q((f"s_add_u32 m0, s{T+1}, {(n&3)*2048}\n" if xtra(n) else f"s_add_u32 m0, s{S_RING}, {piece[gi]*SLOT + (n&3)*2048}\n") + (f"s_add_u32 s{S_Z}, s{S_WO[n%7]}, s{S_Q[n//7]}" if c.qperm else f"s_add_u32 s{S_Z}, s{S_WO[n%7]}, {16*(n//7)*896}" if c.rot2 else f"s_add_u32 s{S_Z}, s{S_W2B}, {(32*(n>>1) + 8*(n&1) if c.g16 else 64*(n%7) + 16*(n//7))*896}"))
            if "5" in c.diag and n >= 24: wtok[n] = wtok[23]; return [[], []]
            q(f"buffer_load_dwordx4 v{VW2D}, {s(R_2,4)}, s{S_Z} offen lds")
            q2 = Prog()
            wtok[n] = q2.tok(f"buffer_load_dwordx4 v{VW2D+1}, {s(R_2,4)}, s{S_Z} offen offset:1024 lds")
            return [q.items, q2.items]
        def read_w2(n):
            q = Prog(); pc = -2 if xtra(n) else piece[n >> 2]
            if n == max(c.r_early, c.r2):
                keep, self.p = self.p, q
                self.lds_wait(VT + 5, VT + 1, 4)
                self.p = keep
            if c.g16:
                d = {4: L_RING, 12: 2 * SLOT, 16: -2 * SLOT, 24: f"s{S_D0}", 26: f"s{S_D1}"}.get(n)
                if d is not None:
                    for k in range(4): q(f"v_add_u32 v{VW2A+k}, {d}, v{VW2A+k}")
                if n >= c.bw2[-1]: q.wait(wtok[n])
                for di in range(4):
                    rtok[n] = q.tok(f"ds_read_b64_tr_b16 {v(wpair(n>>1)+4*di+2*(n&1),2)}, v{VW2A+di} offset:{(pc&1)*SLOT + (n&3)*2048}")
                return [q.items]
            if n >= c.bw2[-1]: q.wait(wtok[n])
            for di in range(2):
                for h in range(2):
                    rtok[n] = q.tok(f"ds_read_b64_tr_b16 {v(w2reg(n)+4*di+2*h,2)}, v{(VFL if pc < 0 else VW2A+2*(pc>>1))+di} offset:{(pc&1)*SLOT + (n&3)*2048 + h*1024}")
            return [q.items]
        nw = [c.bw2[-1], 0]
        def w2_ops(k, maxread):
            r = []
            for _ in range(k):
                n = nw[0]
                if n >= 24: break
                for m in (n, n + 1):
                    if (m >> 2) in pred and m < 24:
                        need = 4 * pred[m >> 2] + (m & 3)
                        assert m > n or need < maxread
                        while nw[1] <= need and nw[1] < maxread: r += read_w2(nw[1]); nw[1] += 1
                r += dma_w2(n); nw[0] += 1
            return r
        def reads1(gs):
            n, k = gs >> 2, gs & 3
            base = FR + 16 * (gs % 3); so = (n & 1) * SLOT
            r = []
            for fi in range(2):
                for h in range(2):
                    r.append(I(f"ds_read_b64_tr_b16 {v(base+4*fi+2*h,2)}, v{VWA+fi} offset:{so+16384+k*4096+h*1024}"))
                r.append(I(f"ds_read_b128 {v(base+8+4*fi,4)}, v{VXA+k} offset:{so+fi*4096}"))
            return r
        def mfma1(gs):
            base = FR + 16 * (gs % 3)
            r = []
            for fi, ti in ((0, 0), (0, 1), (1, 0), (1, 1)):
                a = v(ACC + 32 * fi + 16 * ti, 16)
                r.append(I(f"v_mfma_f32_32x32x16_bf16 {a}, {v(base+4*fi,4)}, {v(base+8+4*ti,4)}, {'0' if gs == 0 else a}"))
            return r
        self.stamp("dmapre", sets=(1,))
        if c.hops:
            p("s_mov_b64 exec, 0")
            for w in range(3): p(f"s_cmp_eq_u32 s{S_WAVE}, {w}\ns_cbranch_scc1 L_hop{w+1}")
            p("s_branch L_hop4")
            p.label("L_hopped")
            p("s_mov_b64 exec, -1")
        nd = c.pre_dma
        nl = (len(lateg) + 3) // 4
        for n in range(7):
            if n < c.a_chunks: p.wait(ctok[n])
            if n == 0: self.stamp("c0", sets=(1,))
            p("s_waitcnt lgkmcnt(0)\ns_barrier")
            self.stamp(f"bar{n}", sets=(0, 1) if n in (0, 3, 6) else (1,))
            if n in (2, 4, 6):
                for r in list(range(VXA, VXA + 4)) + [VWA, VWA + 1]: p(f"v_xor_b32 v{r}, 0x10000, v{r}")
            upto = min(len(dq), 8 * (n + 4), max(nd + c.dma_per[n], 8 * (n + 2)))
            fill = dq[nd:upto]; nd = upto
            if n == c.gran_at:
                fill = fill + [[I(x)] for x in gloads.split("\n")]
            if n == c.r_at:
                while nw[1] < c.r_early:
                    fill = fill + [[it] for it in read_w2(nw[1])[0]]; nw[1] += 1
            last = []
            if n == 6:
                while nw[1] < c.r2:
                    its = read_w2(nw[1])[0]
                    if nw[1] < 6: fill = fill + [[it] for it in its]
                    else: last += its
                    nw[1] += 1
            g0 = 4 * n
            r0, r1, r2, r3 = (reads1(g0 + k) for k in range(4))
            body = []
            if n == 0: body.append(r0 + r1)
            else:
                mm = mfma1(g0 - 1)
                body += [r0, [mm[0]] + r1[:3], [mm[1]] + r1[3:], [mm[2]], [mm[3]]]
            for k, rd in ((0, r2), (1, r3), (2, None)):
                mm = mfma1(g0 + k)
                body += [[mm[0]] + (rd[:3] if rd else []), [mm[1]] + (rd[3:] if rd else []), [mm[2]], [mm[3]]]
            if n == 6:
                body[-5] = body[-5] + last[:4]; body[-4] = body[-4] + last[4:]
                body[c.b7_at] = body[c.b7_at] + [I(f"s_waitcnt lgkmcnt({len(last) if c.bw2[-1] <= 18 else 0})"), I("s_barrier")]
            merged = []
            j = 0
            for i, it in enumerate(body):
                grp = list(it)
                nb_ = len(body) - (5 if n == 6 else 0)
                while j < min(len(fill), (i + 1) * len(fill) // nb_): grp += fill[j]; j += 1
                merged.append(grp)
            lt = lateg[nl * n: nl * (n + 1)] if n < 4 else []
            p.extend(interleave(merged, lt))
        mm = mfma1(27)
        p.extend(mm[:1])
        self.tagged_check(gloads, [GR + 1, GR + 3], VT + 1)
        self.stamp("granules", sets=(0, 1, 3))
        FA_, FB_ = AB + 8, AB + 12
        q = Prog()
        q(f"s_mov_b32 s{S_X}, 0x01000100\nv_perm_b32 v{FB_}, v{GR}, v{GR}, s{S_X}\nv_lshrrev_b32 v{FB_+1}, 16, v{GR}\nv_xor_b32 v{FB_}, 0x80008000, v{FB_}")
        q(f"v_cvt_pk_bf16_f32 v{VT+1}, v{GR+2}, v{GR+2}\nv_mov_b32 v{FB_+2}, 0\nv_and_b32 v{VT+1}, 0xffff0000, v{VT+1}\nv_mov_b32 v{FB_+3}, 0\nv_sub_f32 v{VT+1}, v{GR+2}, v{VT+1}")
        q(f"v_mov_b32 v{FA_+1}, v{VB1}\nv_cvt_pk_bf16_f32 v{FA_}, v{GR+2}, v{VT+1}\nv_mov_b32 v{FA_+2}, 0\nv_mov_b32 v{FA_+3}, 0\nv_and_b32 v{VT+1}, 0xffff0000, v{GR}")
        q(f"v_permlane32_swap_b32 v{FB_}, v{FB_+2}\nv_permlane32_swap_b32 v{FB_+1}, v{FB_+3}\nv_permlane32_swap_b32 v{FA_}, v{FA_+2}\nv_permlane32_swap_b32 v{FA_+1}, v{FA_+3}")
        q(f"v_rcp_f32 v{VT+1}, v{VT+1}")
        p.extend(interleave(mm[1:], q.items))
        for fi, ti in ((0, 0), (0, 1), (1, 0), (1, 1)):
            a = v(ACC + 32 * fi + 16 * ti, 16)
            p(f"v_mfma_f32_32x32x8_bf16 {a}, {v(FA_+2*fi,2)}, {v(FB_+2*ti,2)}, {a}")
            if (fi, ti) == (0, 0): p(f"v_mul_f32 v{VC1}, {LOG2E}, v{VT+1}\nv_mul_f32 v{VC1+2}, {LOG2E}, v{VT+1}")
            if (fi, ti) == (0, 1): p(f"v_permlane32_swap_b32 v{VC1}, v{VC1+2}")
            if (fi, ti) == (1, 0) and c.mish_pk: p(f"v_mov_b32 v{VC1+1}, v{VC1}\nv_mov_b32 v{VC1+3}, v{VC1+2}")
        MT, MO = AB + 16, AB + 48
        def mish_group(a, ti, o, tset):
            t = MT + 16 * tset; u = t + 8
            r = []
            if c.mish_pk:
                for i in range(0, 8, 2): r.append(f"v_pk_mul_f32 {v(t+i,2)}, {v(a+i,2)}, {v(VC1+2*ti,2)}")
                for i in range(8): r.append(f"v_exp_f32 v{t+i}, v{t+i}")
                for i in range(0, 8, 2): r.append(f"v_pk_fma_f32 {v(u+i,2)}, {v(t+i,2)}, 0.5, 1.0 op_sel_hi:[1,0,0]")
                for i in range(0, 8, 2): r.append(f"v_pk_fma_f32 {v(u+i,2)}, {v(t+i,2)}, {v(u+i,2)}, 1.0 op_sel_hi:[1,1,0]")
                for i in range(8): r.append(f"v_rcp_f32 v{u+i}, v{u+i}")
                for i in range(0, 8, 2): r.append(f"v_pk_fma_f32 {v(u+i,2)}, {v(a+i,2)}, {v(u+i,2)}, {v(a+i,2)} neg_lo:[1,0,0] neg_hi:[1,0,0]")
            else:
                for i in range(8): r.append(f"v_mul_f32 v{t+i}, v{a+i}, v{VC1+2*ti}")
                for i in range(8): r.append(f"v_exp_f32 v{t+i}, v{t+i}")
                for i in range(8): r.append(f"v_fma_f32 v{u+i}, v{t+i}, 0.5, 1.0")
                for i in range(8): r.append(f"v_fma_f32 v{u+i}, v{t+i}, v{u+i}, 1.0")
                for i in range(8): r.append(f"v_rcp_f32 v{u+i}, v{u+i}")
                for i in range(8): r.append(f"v_fma_f32 v{u+i}, -v{a+i}, v{u+i}, v{a+i}")
            if "1" in c.diag: r = r[:len(r) // 2]; u = a
            for i in range(4): r.append(f"v_cvt_pk_bf16_f32 v{o+i}, v{u+2*i}, v{u+2*i+1}")
            return [I(x) for x in r]
        stok = {}
        def own_flag(st, q):
            if "A" in c.sflag:
                q(f"s_add_u32 s{T}, s{S_FAW}, {512*st}"); q.wait(stok[st]); q(f"s_atomic_swap s{S_TAG}, {s(R_WS,2)}, s{T}")
                return
            q.wait(stok[st])
            q(f"s_mov_b64 exec, 1\nbuffer_store_dword v{VT}, off, {s(R_WS,4)}, s{S_FAW} offset:{512*st} {c.fa_st}\ns_mov_b64 exec, -1")
        body = []
        gi = 0
        for st in range(4):
            for ti in range(2):
                o = MO + 4 * (gi % 4)
                body += mish_group(ACC + 32 * (st >> 1) + 16 * ti + 8 * (st & 1), ti, o, gi & 1)
                q = Prog()
                if c.g16: stok[st] = q.tok(f"buffer_store_dwordx4 {v(o,4)}, v{VST}, {s(R_WS,4)}, s{S_ACTW} offen offset:{ti*2048+(st&1)*512} {c.act_st}")
                else: stok[st] = q.tok(f"buffer_store_dwordx4 {v(o,4)}, v{VL16}, {s(R_WS,4)}, s{S_ACTW} offen offset:{ti*TS if TS < 4096 else 0} {c.act_st}")
                if c.g16:
                    if gi == 3: q(f"s_add_u32 s{S_ACTW}, s{S_ACTW}, {SS}")
                elif gi < 7 and TS >= 4096: q(f"s_add_u32 s{S_ACTW}, s{S_ACTW}, {TS if ti == 0 else SS - TS}")
                elif gi < 7 and ti == 1: q(f"s_add_u32 s{S_ACTW}, s{S_ACTW}, {SS}")
                if ti == 1: self.stamp(f"s{st}", q, sets=(3,))
                if ti == 1 and st - c.flag_lag in c.fstages: own_flag(st - c.flag_lag, q); self.stamp(f"f{st-c.flag_lag}", q, sets=(3,))
                body.append(q.items)
                gi += 1
        k0 = int(len(body) * c.mish_skip)
        p.extend(interleave(body[:k0], [])); p.extend(interleave(body[k0:], w2_ops(c.w2_mish, 12) + [[]]))
        self.stamp("mish", sets=(0, 4))
        rest = [st for st in c.fstages if st >= 4 - c.flag_lag]
        def flags_rest():
            for st in rest: own_flag(st, p)
        if c.prio_a1: p(f"s_setprio {c.prio_a1}")
        p(f"s_load_dwordx2 {s(R_LD,2)}, s[0:1], 0\ns_load_dwordx2 {s(R_OUT,2)}, s[0:1], 104\ns_mov_b32 s{R_LD+2}, {2048*896}\ns_mov_b32 s{R_OUT+2}, {2048*896}\ns_mov_b32 s{R_OUT+3}, 0x20000")
        m0_ = 28 - (c.tail_m if c.tail_ld else 0)
        aord = [(n, ti) for n in range(m0_) for ti in range(2)] + [(n, ti) for ti in range(2) for n in range(m0_, 28)]
        alast = [None]
        t0_ = 28 - 2 * c.tail16
        seq = list(range(t0_)) + list(range(t0_, 28, 2)) + list(range(t0_ + 1, 28, 2))
        def load_act(k):
            if c.g16:
                n = seq[k]; m = n >> 1
                if alast[0] != m: p(f"s_add_u32 s{S_Y}, s{S_ACTR}, {(m>>1)*PS + (m&1)*SS}")
                alast[0] = m
                for j in range(2): p(f"buffer_load_dwordx4 {v(areg(n)+4*j,4)}, v{VL16}, {s(R_WS,4)}, s{S_Y} offen offset:{(n&1)*2048+j*1024} {c.act_ld}")
                return
            for n, ti in aord[2 * k: 2 * k + 2]:
                if "a" in c.diag and n >= 7: continue
                assert n // 7 <= seen[0]
                far = ti * TS if TS >= 4096 else 0
                if alast[0] != n or TS >= 4096: p(f"s_add_u32 s{S_Y}, s{S_AO[n%7]}, {(n//7)*SS+far}" if c.rot2 else f"s_add_u32 s{S_Y}, s{S_ACTR}, {(n%7)*PS + (n//7)*SS+far}")
                alast[0] = n
                p(f"buffer_load_dwordx4 {v(areg(n)+4*ti,4)}, v{VL16}, {s(R_WS,4)}, s{S_Y} offen offset:{ti*TS-far} {c.act_ld}")
        seen = [-1, 0]
        def next_flags():
            st = min(x for x in (c.cstages or c.fstages) if x > seen[0])
            if st != seen[1]: p(f"s_add_u32 s{S_FAR}, s{S_FAR}, {512*(st-seen[1])}"); seen[1] = st
            return self.flag_load("A", S_FAR, 7, VFL)
        def check_flags(f, **kw):
            self.flag_check(f, VT + 1, **kw); seen[0] = seen[1]
            self.stamp(f"act{seen[0]}", sets=(0, 2, 3))
        def reads_upto(m):
            while nw[1] < min(m, 28): p.extend(read_w2(nw[1])[0]); nw[1] += 1
        def dmas_upto(m):
            while nw[0] < min(m, 28):
                if nw[0] == 24 and c.nx:
                    p(f"s_mul_i32 s{T+1}, s{S_WAVE}, {2048*c.nx}\ns_add_u32 s{T+1}, s{T+1}, {L_X}\ns_sub_u32 s{S_D0}, s{T+1}, s{S_RING}")
                    if c.g16: p(f"s_sub_u32 s{S_D1}, {2*SLOT}, s{S_D0}")
                    else: p(f"v_add_u32 v{VFL}, s{S_D0}, v{VW2A}\nv_add_u32 v{VFL+1}, s{S_D0}, v{VW2A+1}")
                    p(f"v_and_b32 v14, 3, v0\nv_lshlrev_b32 v14, 2, v14\nv_add_u32 v14, {L_CNT}, v14")
                    self.lds_wait(14, VT + 1, 1)
                if (nw[0] >> 2) in pred and not xtra(nw[0]): assert nw[1] > nw[0] - 12
                for it in dma_w2(nw[0]): p.extend(it)
                nw[0] += 1
        D = c.adepth
        lead = c.flead
        fl = None
        na = 0
        for op in c.pre_loop.split():
            k = int(op[1:]) if len(op) > 1 else 0
            if op[0] == "R": reads_upto(k)
            elif op[0] == "D": dmas_upto(k)
            elif op[0] == "F":
                if rest: own_flag(rest.pop(0), p)
            elif op[0] == "W": p("s_waitcnt lgkmcnt(0)")
            elif op[0] == "L": fl = next_flags()
            elif op[0] == "C":
                assert not rest or seen[1] < rest[0]
                check_flags(fl, on_miss=flags_rest if rest else None); fl = None
            elif op[0] == "A":
                while na < k: load_act(na); na += 1
            elif op[0] == "V": p("s_waitcnt vmcnt(0)")
            elif op[0] == "T": self.lds_wait(VT + 5, VT + 1, 1)
            elif op[0] == "P": p(f"s_setprio {k}")
            if op[0] not in "L": self.stamp(op + "_" + str(len(self.stamp_names["A"])), sets=(4,))
        assert D <= na <= 8 and nw[1] >= c.rdepth and not rest
        M0 = nw[0]
        if c.prio_a1 != c.prio_a2: p(f"s_setprio {c.prio_a2}")
        self.stamp("flagA", sets=(0, 2, 3))
        assert D <= 7 and c.rdepth <= 4 and c.tail_m <= 5
        main = p
        VALL = 14
        F = dict(VT=VT, XO=9, PA=10, SA=12, STA=13, XI=184, RG=30, RC=116, XF=100, PV=AB, SV=176, SF=108, w=S_WAVE, sXO=S_ACTW, sST=S_X, OUT=R_OUT)
        if c.g16: F.update(XO=5, XI=6)
        f15 = lambda: self.fin_addr(1, F, 0)
        def f16():
            self.fin_addr(1, F, 1)
            if not c.nx: p(f"v_lshlrev_b32 v{VALL}, 2, v{VT+3}\nv_add_u32 v{VALL}, {L_CNT}, v{VALL}")
        def f17():
            if c.g16:
                p(f"v_lshrrev_b32 v{VT+1}, 4, v0\nv_and_b32 v{VT+2}, 7, v0\nv_xor_b32 v{VT+1}, v{VT+1}, v{VT+2}\nv_and_b32 v{VT+2}, 15, v0\nv_lshl_add_u32 v{VT+1}, v{VT+2}, 4, v{VT+1}\nv_lshl_add_u32 v{VD}, v{VT+1}, 4, s{S_RING}")
                for k in range(1, 4): p(f"v_xor_b32 v{VD+k}, {64*k}, v{VD}")
                return
            p(f"v_and_b32 v{VT+3}, 31, v0\nv_lshrrev_b32 v{VT+1}, 5, v0\nv_and_b32 v{VT+2}, 7, v0\nv_xor_b32 v{VT+1}, v{VT+1}, v{VT+2}\nv_bfe_u32 v{VT+2}, v0, 4, 1\nv_lshl_or_b32 v{VT+1}, v{VT+2}, 3, v{VT+1}")
            p(f"v_lshlrev_b32 v{VT+1}, 4, v{VT+1}\nv_lshl_add_u32 v{VT+1}, v{VT+3}, 8, v{VT+1}\nv_add_u32 v{VD}, s{S_RING}, v{VT+1}")
            for k in range(1, 8): p(f"v_xor_b32 v{VD+k}, {32*k}, v{VD}")
        fin = dict(zip(c.fin_at, (f15, f16, f17, lambda: self.fin_loads(F))))
        tail = []
        for n in range(28):
            mm = []
            for di, ti in ((0, 0), (1, 0), (0, 1), (1, 1)):
                a = v(ACC + 32 * di + 16 * ti, 16)
                mm.append(I(f"v_mfma_f32_32x32x16_bf16 {a}, {v(w2reg(n)+4*di,4)}, {v(areg(n)+4*ti,4)}, {'0' if n == 0 else a}"))
            rd_to, dm_to = n + 1 + c.rdepth, n + 1 + c.w2_lead
            if c.g16:
                sn = seq[n]; mm = []
                for j in range(2):
                    for di in range(4):
                        a = v(ACC + 16 * (2 * (sn & 1) + j) + 4 * di, 4)
                        mm.append(I(f"v_mfma_f32_16x16x32_bf16 {a}, {v(wpair(sn>>1)+4*di,4)}, {v(areg(sn)+4*j,4)}, {'0' if sn < 2 else a}"))
                donep = min(seq[n:]) >> 1
                rd_to = max(rd_to, 2 * (max(seq[n:n + 3]) >> 1) + 2)
                rd_to = min(rd_to, max(12, 2 * (donep + 3)))
                assert nw[1] >= 2 * (sn >> 1) + 2
            groups = []
            def grab(fn):
                nonlocal p
                p = self.p = Prog(); fn(); its = p.items; p = self.p = main
                return its
            def split(its):
                cur = []
                for it in its:
                    cur.append(it)
                    if isinstance(it, I) and it.kind in ("vmem", "ds", "valu"): groups.append(cur); cur = []
                if cur: groups.append(cur)
            cur = []
            for it in grab(lambda: reads_upto(rd_to)):
                cur.append(it)
                if isinstance(it, I) and it.kind == "ds": groups.append(cur); cur = []
            if na <= n + D < 28:
                if (n + D) // 7 > seen[0]:
                    groups.append(grab(lambda: check_flags(fl))); fl = None
                split(grab(lambda: load_act(n + D)))
            split(grab(lambda: dmas_upto(min(nw[1] + 12 - c.w2_gap, max(dm_to, M0 + int((n + 1) * c.w2_rate))))))
            if fl is None and min(27, n + D + lead) // 7 > seen[0]:
                def nf():
                    nonlocal fl
                    if "A" in c.spoll: p("s_waitcnt lgkmcnt(0)")
                    fl = next_flags()
                groups.append(grab(nf))
            if n in fin: split(grab(fin[n]))
            if c.g16:
                if n >= 28 - c.tail16: assert not groups; tail += mm; continue
            elif n >= 28 - c.tail_m:
                tail += mm[2:]; mm = mm[:2]
            if c.g2_mix:
                isv = lambda gr: any(isinstance(it, I) and it.kind == "vmem" for it in gr)
                ds = [gr for gr in groups if any(isinstance(it, I) and it.mn.startswith("ds_read_b64_tr") for it in gr)]
                rest = [gr for gr in groups if not any(gr is x for x in ds)]
                nm = len(mm)
                for k in range(nm):
                    p.extend([mm[k]])
                    for gr in ds[k * len(ds) // nm:(k + 1) * len(ds) // nm]: p.extend(gr)
                    cut = lambda x: 0 if x == 0 else min(len(rest), (x + c.mix_sh) * len(rest) // nm)
                    for gr in rest[cut(k):cut(k + 1)]: p.extend(gr)
            else:
                p.extend(mm)
                for gr in groups: p.extend(gr)
            if n in (0, 3, 6, 10, 13, 17, 20): self.stamp(f"n{n}", sets=(0, 2, 4) if n in (0, 13) else (2,))
        pw = lambda ti: [I(f"ds_write_b128 v{VD+4*di+g4}, {v(ACC+32*di+16*ti+4*g4,4)} offset:{ti*SLOT}") for di in range(2) for g4 in range(4)]
        if c.g16: pw = lambda ti: [I(f"ds_write_b128 v{VD+(di^(2*j))}, {v(ACC+16*(2*ti+j)+4*di,4)} offset:{ti*SLOT+j*4096}") for j in range(2) for di in range(4)]
        if tail: p.extend(tail[:c.tail_k]); p.extend(interleave(tail[c.tail_k:], pw(0), ratio=c.tail_r))
        else: p.extend(pw(0))
        self.lds_post(VT + 5, VT, 5)
        self.stamp("gemm2", sets=(0, 2, 3))
        w1_ = pw(1); x_ = self.fin_prep(F); s_ = self.fin_sprep(F)
        p.extend(w1_[:4]); self.lds_peek(VT + 5, VT + 2, 7); p.extend(w1_[4:])
        self.lds_post(VT + 5, VT, 6)
        self.stamp("gate", sets=(0, 2, 3))
        self.lds_check(VT + 5, VT + 2, 7, fill=lambda: p.extend(x_[:6]))
        self.fin_sread(F); self.lds_peek(VALL, VT + 1, 6); p.extend(x_[6:])
        self.lds_check(VALL, VT + 1, 6, fill=lambda: p.extend(s_[:5]))
        self.stamp("sin", sets=(0, 2, 3))
        self.fin_out(F, s_[5:])
        self.stamp("end", sets=(0, 2, 3, 4, 9))
        self.stamp_flush(1)
        p("s_endpgm")

    def gather_table(self):
        import numpy as np
        def rb(l):
            u = np.array([l], np.float32).view(np.uint32)
            return int((((u + 0x7FFF + ((u >> 16) & 1)) >> 16) << 16).view(np.float32)[0])
        rows = list(range(8)) + list(range(128, 136)) + [256, 258, 260, 262, 384, 386, 388, 390, 512, 516, 640, 644, 768, 772, 896, 900] + [1024 + 128 * k for k in range(9)]
        pos = {}
        for i, a in enumerate(rows):
            tile, row = i >> 4, i & 15
            for col in range(16): pos[a + 8 * col] = tile * 1024 + ((row >> 2) * 16 + col) * 16 + (row & 3) * 4
        zero = 2 * 1024 + 48 * 16
        at = lambda l: zero if l < 0 else pos[rb(l)]
        at1 = lambda l: zero if l > 1028 else at(l)
        words = []
        for mh in range(2):
            for half in range(2):
                for lane in range(64):
                    hi = 1023 - 8 * (64 * mh + lane)
                    e = [at(hi - i) for i in range(11)]
                    if mh == 0: d = 127 - lane; e += [pos[16 * d + 16], pos[16 * d + 8], zero, zero, zero]
                    elif lane < 16: top = 1055 - 8 * (lane >> 2) - (lane & 3); e += [at1(top - j) for j in (0, 1, 2, 3, 7)]
                    else: e += [zero] * 5
                    e = e[8 * half: 8 * half + 8]
                    words += [e[2 * k] | (e[2 * k + 1] << 16) for k in range(4)]
        return words

    def role_b(self):
        p, c = self.p, self.c
        p.label("L_roleB")
        self.role_start(True); self.stamp_begin("B")
        S_BW, S_LDT, S_DSK, S_STW, S_CHN, S_MH = B_BW, B_LDT, B_DSK, B_STW, S_WF, S_WT
        S_FXR, S_XTR, S_FSW, S_FSR, S_STR = 74, 75, 76, 77, S_CT
        S_X, S_Y = 78, 79
        T = S_T
        VL16, VP, VGT, VG, VSW, VSR, VT = 9, B_VP, 120, 16, 46, 47, 50
        VRW, VTW, VTZ, VTA, VUA, VUW, VCN, VONE, VEXW, VEXR, VTAG, VUZ, VFL = range(32, 45)
        self.load_epoch()
        self.loader_base()
        ctok = {}
        if c.a_chunks < 7:
            if c.rot1: p(f"s_cmp_ge_u32 s{S_J}, {7-c.a_chunks}\ns_cselect_b32 s{T}, {c.a_chunks-7}, {c.a_chunks}\ns_mul_i32 s{T}, s{T}, s{S_CSTR}\ns_add_u32 s{S_SOFF}, s{S_SOFF}, s{T}")
            else: p(f"s_mul_i32 s{T}, s{S_CSTR}, {c.a_chunks}\ns_add_u32 s{S_SOFF}, s{S_SOFF}, s{T}")
        p(f"v_lshlrev_b32 v{VL16}, 4, v0\ns_lshl3_add_u32 s{S_STW}, s{S_STW}, {WS_ST}")
        if c.tlb_at >= 0:
            p(f"s_lshl1_add_u32 s93, s{S_RT}, s{S_WT}\ns_mul_i32 s93, s93, 14\ns_add_u32 s93, s93, s{S_CT}\ns_lshl1_add_u32 s93, s93, s{S_WF}\ns_lshl_b32 s93, s93, 12\ns_add_u32 s93, s93, {WS_ACT}")
        srd(p, R_2, P_W2, 1792 * 896)
        late = Prog(); q = late
        q(f"s_lshl2_add_u32 s{S_R2}, s{S_XCD}, s{S_JR}")
        q(f"s_lshr_b32 s{T}, s{S_CP}, 5\ns_lshl2_add_u32 s{S_FXR}, s{T}, s{S_BW}\ns_and_b32 s{T}, s{S_CP}, 3\ns_lshl2_add_u32 s{S_FXR}, s{S_FXR}, s{T}\ns_lshl_b32 s{S_FXR}, s{S_FXR}, 7\ns_add_u32 s{S_FXR}, s{S_FXR}, {WS_FX}\ns_lshr_b32 s{T}, s{S_CP}, 4")
        q(f"s_mul_i32 s{S_XTR}, s{S_CP}, {2*c.xts}\ns_lshl_b32 s{T+1}, s{S_BW}, 10\ns_add_u32 s{S_XTR}, s{S_XTR}, s{T+1}\ns_add_u32 s{S_XTR}, s{S_XTR}, {WS_XT}")
        q(f"s_mul_i32 s{S_FSW}, s{S_BW}, 14\ns_add_u32 s{S_FSW}, s{S_FSW}, s{T}\ns_lshl_b32 s{S_FSW}, s{S_FSW}, 7\ns_and_b32 s{T+1}, s{S_CP}, 15\ns_add_u32 s{S_FSW}, s{S_FSW}, s{T+1}\ns_lshl2_add_u32 s{S_FSW}, s{S_FSW}, {WS_FS}")
        q(f"s_lshl1_add_u32 s{T}, s{S_C2}, s{S_CHN}")
        q(f"s_lshr_b32 s{T+1}, s{S_R2}, 3\ns_mul_i32 s{S_FSR}, s{T+1}, 14\ns_add_u32 s{S_FSR}, s{S_FSR}, s{T}\ns_lshl2_add_u32 s{S_FSR}, s{S_FSR}, s{S_JR}\ns_lshl_b32 s{S_FSR}, s{S_FSR}, 7\ns_add_u32 s{S_FSR}, s{S_FSR}, {WS_FS}")
        q(f"s_lshl_b32 s{S_STR}, s{T}, 9\ns_add_u32 s{S_STR}, s{S_STR}, s{S_R2}\ns_lshl1_add_u32 s{S_STR}, s{S_STR}, s{S_MH}\ns_lshl_b32 s{S_STR}, s{S_STR}, 7\ns_add_u32 s{S_STR}, s{S_STR}, {WS_ST}")
        q(f"v_and_b32 v{VT}, 15, v0\nv_lshrrev_b32 v{VT+1}, 4, v0")
        q(f"s_mul_i32 s{T}, s{S_BW}, 8448\nv_mul_u32_u24 v{VT+2}, 528, v{VT}\nv_and_b32 v{VT+3}, 256, v{VL16}\nv_add3_u32 v{VT+2}, v{VT+2}, v{VT+3}, s{T}\nv_lshrrev_b32 v{VT+3}, 5, v0\nv_lshl_add_u32 v{VSR}, v{VT+3}, 4, v{VT+2}")
        q(f"s_lshl_b32 s{T}, s{S_BW}, 13\nv_add_u32 v{VEXW}, s{T}, v{VL16}")
        q(f"s_mul_i32 s{T}, s{S_BW}, 3072\ns_add_u32 s{T}, s{T}, {L_RAW}\nv_add_u32 v{VRW}, s{T}, v{VL16}")
        q(f"s_mul_i32 s{T}, s{S_CHN}, {TCH}\ns_add_u32 s{T}, s{T}, {L_TAB}\ns_lshl_b32 s{T+1}, s{S_MH}, 10\ns_add_u32 s{T+1}, s{T+1}, s{T}\nv_add_u32 v{VTW}, s{T+1}, v{VL16}")
        q(f"v_sub_u32 v{VT+2}, 3, v{VT}\nv_and_b32 v{VT+2}, 3, v{VT+2}\nv_mul_u32_u24 v{VT+3}, {TCP-2}, v{VT+2}\nv_lshl_add_u32 v{VT+3}, v{VT+1}, 4, v{VT+3}\nv_lshlrev_b32 v{VT+2}, 1, v{VT}\nv_sub_u32 v{VT+3}, v{VT+3}, v{VT+2}")
        q(f"s_lshl_b32 s{T+1}, s{S_MH}, 8\ns_sub_u32 s{T}, s{T}, s{T+1}\ns_add_u32 s{T}, s{T}, {2*15}\nv_add_u32 v{VTA}, s{T}, v{VT+3}")
        q(f"s_mul_i32 s{S_X}, s{S_CHN}, 4608\ns_sub_u32 s{T}, s{S_X}, s{T+1}\ns_add_u32 s{T}, s{T}, {L_U+2*(240-96)}\nv_lshlrev_b32 v{VT+2}, 5, v{VT}\nv_lshl_add_u32 v{VT+2}, v{VT+1}, 4, v{VT+2}\nv_add_u32 v{VUA}, s{T}, v{VT+2}")
        q(f"s_add_u32 s{S_X}, s{S_X}, s{T+1}\ns_add_u32 s{S_X}, s{S_X}, {L_U}\nv_lshl_add_u32 v{VUZ}, v0, 2, s{S_X}")
        q(f"s_lshl_b32 s{T}, s{S_BW}, 10\ns_add_u32 s{T}, s{T}, {L_U+512}\nv_add_u32 v{VUW}, s{T}, v{VL16}")
        q(f"s_lshl_b32 s{T}, s{S_BW}, 11\ns_add_u32 s{T}, s{T}, {L_EX}\nv_add_u32 v{VEXR}, s{T}, v{VL16}")
        VZ = 56
        for i in range(4): q(f"v_mov_b32 v{VZ+i}, 0")
        q(f"s_lshl2_add_u32 s{T}, s{S_BW}, {L_CNT}\nv_mov_b32 v{VONE}, s{T}\nv_and_b32 v{VCN}, 3, v0\nv_lshlrev_b32 v{VCN}, 2, v{VCN}\nv_add_u32 v{VCN}, {L_CNT}, v{VCN}")
        VW2D = 48; S_WOFF, S_WIDX, S_RING = 88, 89, 91
        q(f"v_lshrrev_b32 v{VT+2}, 3, v0\nv_mul_u32_u24 v{VT+2}, 896, v{VT+2}\nv_bfe_u32 v{VT+3}, v0, 4, {2 if c.g16 else 1}\nv_lshlrev_b32 v{VT+3}, {1 if c.g16 else 2}, v{VT+3}\nv_xor_b32 v{VT+3}, v0, v{VT+3}\nv_and_b32 v{VT+3}, 7, v{VT+3}")
        q(f"v_lshl_add_u32 v{VW2D}, v{VT+3}, 4, v{VT+2}\nv_add_u32 v{VW2D+1}, {(14336 if c.g16 else 7168)-1024}, v{VW2D}")
        if c.rot2 == 2: q(f"s_lshl1_add_u32 s{S_WIDX}, s{S_JR}, s{S_C2}\ns_cmp_ge_u32 s{S_WIDX}, 7\ns_cselect_b32 s{T}, 7, 0\ns_sub_u32 s{S_WIDX}, s{S_WIDX}, s{T}")
        else: q(f"s_mov_b32 s{S_WIDX}, {'s%d' % S_C2 if c.rot2 else 0}")
        q(f"s_mul_i32 s{S_WOFF}, s{S_BW}, 7\ns_add_u32 s{S_WOFF}, s{S_WOFF}, s{S_WIDX}\ns_mul_i32 s{S_WOFF}, s{S_WOFF}, {64*7}\ns_add_u32 s{S_WOFF}, s{S_WOFF}, s{S_C2}\ns_lshl_b32 s{S_WOFF}, s{S_WOFF}, 7")
        q(f"s_lshl_b32 s{S_RING}, s{S_BW}, 13\ns_add_u32 s{S_RING}, s{S_RING}, {L_RING}")
        assert not c.qperm and c.b_pre == 1.0
        if "X" not in c.spoll: q(f"v_min_u32 v{VFL}, 7, v0\nv_lshlrev_b32 v{VFL}, 2, v{VFL}")
        k = int(len(late.items) * c.b_pre)
        p.extend(late.items[:k]); late.items = late.items[k:]
        T = 90
        S_TCH = 92; nt = [0]
        def touch_upto(m):
            while nt[0] < m:
                p(f"s_buffer_load_dwordx2 s[94:95], {s(R_2,4)}, s{S_TCH}\ns_add_u32 s{S_TCH}, s{S_TCH}, 128"); nt[0] += 1
                p.items.append(Marker("forget", {"s94", "s95"}))
        if c.s_touch: p(f"s_lshl2_add_u32 s{S_TCH}, s{S_CP}, s{S_BW}\ns_mul_i32 s{S_TCH}, s{S_TCH}, {14*128}\ns_add_u32 s{S_TCH}, s{S_TCH}, 60")
        self.make_tag()
        p(f"s_lshl_b32 s{T}, s{S_CHN}, 4\ns_lshr_b32 s{S_LDT}, s{S_LDT}, s{T}\ns_lshl_b32 s{S_LDT}, s{S_LDT}, 16\ns_lshr_b32 s{S_DSK}, s{S_DSK}, s{T}\ns_lshl_b32 s{S_DSK}, s{S_DSK}, 16")
        VDT = 60
        p(f"v_mov_b32 v{VDT}, {LOG2E}\nv_mul_f32 v{VDT}, s{S_LDT}, v{VDT}\nv_exp_f32 v{VDT}, v{VDT}\nv_mov_b32 v{VTAG}, s{S_TAG}\nv_cvt_pk_bf16_f32 v{VDT}, v{VDT}, v{VDT}\nv_and_b32 v{VDT}, 0xffff0000, v{VDT}\nv_mov_b32 v{VDT+1}, v{VDT}")
        if c.s_touch: touch_upto(c.s_touch[0])
        self.stamp("pre", sets=(1,))
        Z1, Z2, Z4, Z8, Z128, XB, XC, XDD, TM = 64, 68, 72, 76, 80, 84, 88, 92, 96
        AL, BE, UB, CV = 108, 110, 112, 120
        YF, XF, KV, KA = 128, 160, 128, 244
        units = []
        def unpack(d, src): p(f"v_lshlrev_b32 v{d}, 16, v{src}\nv_and_b32 v{d+1}, 0xffff0000, v{src}")
        def mul2(d, a, b, pk):
            if pk: p(f"v_pk_mul_f32 {v(d,2)}, {v(a,2)}, {v(b,2)}")
            else: p(f"v_mul_f32 v{d}, v{a}, v{b}\nv_mul_f32 v{d+1}, v{a+1}, v{b+1}")
        def cmul_(d, a, b, pk):
            assert d != b
            mul2(TM, a, b, pk); mul2(TM + 2, a, b + 2, pk)
            if pk:
                p(f"v_pk_fma_f32 {v(d,2)}, {v(a+2,2)}, {v(b+2,2)}, {v(TM,2)} neg_lo:[1,0,0] neg_hi:[1,0,0]")
                p(f"v_pk_fma_f32 {v(d+2,2)}, {v(a+2,2)}, {v(b,2)}, {v(TM+2,2)}")
            else:
                for m in range(2): p(f"v_fma_f32 v{d+m}, -v{a+2+m}, v{b+2+m}, v{TM+m}")
                for m in range(2): p(f"v_fma_f32 v{d+2+m}, v{a+2+m}, v{b+m}, v{TM+2+m}")
        def cmul(d, a, b): units.append((8, lambda pk: cmul_(d, a, b, pk)))
        def put(e, a, conj):
            ng = "-" if conj else ""
            units.append((2, lambda pk: (have.add(e), p(f"v_cvt_pk_bf16_f32 v{KV+2*e}, v{a}, {ng}v{a+2}\nv_cvt_pk_bf16_f32 v{KV+2*e+1}, v{a+1}, {ng}v{a+3}"))))
        have = {0}
        def getfr(base):
            return [I(f"ds_read_b128 {v(base+4*fr,4)}, v{VSR} offset:{fr*32}") for fr in range(8)]
        def kmfma(tile, base):
            a = v(KA + 4 * tile, 4)
            return [I(f"v_mfma_f32_16x16x32_bf16 {a}, {v(base+4*fr,4)}, {v(YF+4*fr,4)}, {'0' if (fr == 0 and tile) else a}") for fr in range(8)]
        def zpow_(d, lg, pk):
            for m in range(2):
                if lg: p(f"v_ldexp_f32 v{TM+m}, v{AL+m}, {lg}\nv_ldexp_f32 v{TM+2+m}, v{BE+m}, {lg}")
                a, b = (TM + m, TM + 2 + m) if lg else (AL + m, BE + m)
                p(f"v_exp_f32 v{TM+m}, v{a}\nv_fract_f32 v{TM+2+m}, v{b}")
            for m in range(2): p(f"v_cos_f32 v{d+m}, v{TM+2+m}\nv_sin_f32 v{d+2+m}, v{TM+2+m}")
            mul2(d, d, TM, pk); mul2(d + 2, d + 2, TM, pk)
        def zpow(d, lg): units.append((22, lambda pk: zpow_(d, lg, pk)))
        p(f"v_mov_b32 v{KV}, 0x3f80\nv_mov_b32 v{KV+1}, 0x3f80")
        unpack(AL, VP); unpack(BE, VP + 1)
        self.stamp("params", sets=(0, 1))
        mul2(AL, AL, VDT, True); mul2(BE, BE, VDT, True)
        for m in range(2): p(f"v_mul_f32 v{AL+m}, {LOG2E}, v{AL+m}\nv_mul_f32 v{BE+m}, 0.15915494, v{BE+m}")
        early_done = [None]
        zpow(Z8, 3)
        put(1, Z8, False)
        prev = Z8
        for r in range(2, 16): cmul(XB, prev, Z8); prev = XB; put(r, XB, False)
        zpow(Z1, 0); zpow(Z128, 7)
        units.append((8, lambda pk: [unpack(UB + 2 * i, VP + 2 + i) for i in range(4)]))
        cmul(XC, UB, UB + 4)
        units.append((4, lambda pk: (mul2(XC, XC, VDT, pk), mul2(XC + 2, XC + 2, VDT, pk))))
        cmul(XB, XC, Z128)
        put(16, XC, True); put(24, XB, True)
        prev = XB
        for r in range(1, 8):
            cmul(XC, XC, Z1); put(16 + r, XC, True)
            cmul(XDD, prev, Z1); prev = XDD; put(24 + r, XDD, True)
        for it in late.items: units.append((1, lambda pk, it=it: p.extend([it])))
        cmul(Z2, Z1, Z1); cmul(Z4, Z2, Z2)
        for k in range(2):
            cmul(XB, XB, Z128); put(32 + 4 * k, XB, True); prev = XB
            for r in range(1, 4): cmul(XC, prev, Z2); prev = XC; put(32 + 4 * k + r, XC, True)
        for k in range(4):
            cmul(XB, XB, Z128); put(40 + 2 * k, XB, True)
            cmul(XC, XB, Z4); put(41 + 2 * k, XC, True)
        for k in range(9): cmul(XB, XB, Z128); put(48 + k, XB, True)
        total = sum(u[0] for u in units)
        cuts = [c.kg_pre] + [c.kg_pre + (total - c.kg_pre) * (i - c.kg_x) / (c.kg_ints - c.kg_x) for i in range(1, 7)]
        X2F = 64
        VCA, VPU, BE9, BO7 = 10, 11, 12, 60
        order = list(range(48, 57)) + list(range(16)) + list(range(32, 48)) + list(range(16, 32))
        lops = []
        for e in order:
            it = [I(f"ds_write_addtid_b32 v{KV+2*e+m} offset:{(e&15)*528+256*m}") for m in range(2)]
            if 36 <= e < 44: it.append(kmfma(2, X2F)[e - 36])
            if e == 46: it += [I(f"v_cndmask_b32 v{KA+8}, 0, v{KA+8}, vcc"), I(f"ds_write_b128 v{VRW}, {v(KA+8,4)} offset:2048")]
            if 20 <= e < 28: it.append(kmfma(1, XF + 32)[e - 20])
            if e == 30: it.append(I(f"ds_write_b128 v{VRW}, {v(KA+4,4)} offset:1024"))
            if e in (15, 31, 47, 56): it += getfr({15: YF, 31: XF, 47: XF + 32, 56: X2F}[e])
            if "2" in c.diag and e < 32 and e % 16 != 15: it = it[2:]
            lops.append(it)
        nl = [0]
        def lds_upto(m):
            while nl[0] < m:
                assert order[nl[0]] in have
                p.extend(lops[nl[0]]); nl[0] += 1
        done = 0; nb = 0; fx = [None]; xt = [None]
        side = []
        def sd(txt, atomic=False):
            q = Prog(); q(txt)
            if atomic: side.append(q.items)
            else: side.extend([it] for it in q.items)
        sd(f"v_and_b32 v{VT}, 15, v0\nv_lshrrev_b32 v{VT+1}, 4, v0\nv_lshlrev_b32 v{VT+2}, 3, v{VT+1}\ns_movk_i32 s{S_Y}, 0x3f80")
        for bd, m in ((BE9, 0x1ff << 4), (BO7, 0x7f << 5)):
            sd(f"v_mov_b32 v{VT+3}, {m}\nv_lshlrev_b32 v{VT+3}, v{VT}, v{VT+3}\nv_lshrrev_b32 v{VT+3}, v{VT+2}, v{VT+3}")
            for d in range(4):
                sd(f"v_bfe_u32 v{VT+4}, v{VT+3}, {2*d}, 1\nv_bfe_u32 v{VT+5}, v{VT+3}, {2*d+1}, 1\nv_lshl_or_b32 v{VT+4}, v{VT+5}, 16, v{VT+4}\nv_mul_u32_u24 v{bd+d}, s{S_Y}, v{VT+4}")
        sd(f"s_mul_i32 s{S_Y}, s{S_MH}, 768\ns_sub_u32 s{S_Y}, 1200, s{S_Y}\nv_add_u32 v{VPU}, s{S_Y}, v{VUA}")
        sd(f"s_mul_i32 s{S_Y}, s{S_CHN}, {TCH}\ns_add_u32 s{S_X}, s{S_Y}, {L_TAB+4*TCP+60}\nv_lshlrev_b32 v{VT+3}, 2, v{VT+1}\nv_sub_u32 v{VT+3}, v{VT+3}, v{VT}\nv_lshl_add_u32 v{VCA}, v{VT+3}, 2, s{S_X}")
        sd(f"s_add_u32 s{S_Y}, s{S_Y}, {L_TAB}\nv_and_b32 v{VT+3}, 3, v0\nv_mul_u32_u24 v{VT+3}, {TCP}, v{VT+3}\nv_lshrrev_b32 v{VT+4}, 2, v0\nv_lshl_add_u32 v{VT+3}, v{VT+4}, 4, v{VT+3}\nv_lshl_add_u32 v{VT+3}, v{VT+1}, 11, v{VT+3}")
        sd(f"v_lshlrev_b32 v{VT+4}, 2, v0\nv_add_u32 v{VT+4}, {4*TCP}, v{VT+4}")
        sd(f"s_cmp_eq_u32 s{S_MH}, 0\ns_cselect_b64 vcc, -1, 0\ns_cselect_b32 s{S_DSK}, s{S_DSK}, 0", True)
        sd(f"v_cndmask_b32 v{VT+3}, v{VT+3}, v{VT+4}, vcc\nv_add_u32 v{VTZ}, s{S_Y}, v{VT+3}")
        sd(f"s_mul_i32 s{S_Y}, s{S_CHN}, 6144\ns_add_u32 s{S_Y}, s{S_Y}, {L_RAW}")
        sd(f"v_mov_b32 v{VT}, s{S_DSK}\nv_cmp_eq_u32 vcc, 0, v0\nv_mov_b32 v{VT+1}, s{S_Y}\nv_mov_b32 v{KA+1}, 0\nv_cndmask_b32 v{KA}, 0, v{VT}, vcc\nv_mov_b32 v{KA+2}, 0\nv_mov_b32 v{KA+3}, 0\nv_cmp_gt_u32 vcc, 48, v0")
        for k in range(16):
            sd(f"v_add_u32_sdwa v{VG+k}, v{VT+1}, v{VGT+(k>>1)} dst_sel:DWORD dst_unused:UNUSED_PAD src0_sel:DWORD src1_sel:WORD_{k&1}")
        def barrier():
            nonlocal nb
            if nb in ctok: p.wait(ctok[nb])
            if nb == c.r_at and c.r_early: p.wait(w2t[c.r_early - 1])
            if nb == 6 and c.r2: assert c.br0 >= 0 and c.r2 <= 8; p.wait(w2t[c.r2 - 1])
            self.stamp(f"atbar{nb}", sets=(0, 1) if nb == 0 else (1,))
            p("s_barrier")
            if nb == 4: self.stamp("bar4", sets=(0, 3))
            if c.s_touch and nb < 4 and c.touch_first: touch_upto(c.s_touch[nb + 1])
            if nb == c.tlb_at:
                for a_ in (93, 93, S_STW):
                    if c.tlb_v: p(f"buffer_load_dword v243, off, {s(R_WS,4)}, s{a_} sc1")
                    else: p(f"s_buffer_load_dword s94, {s(R_WS,4)}, s{a_}"); p.items.append(Marker("forget", {"s94"}))
                    p(f"s_add_u32 s93, s93, {896*4096}")
            mem = []
            if c.a_chunks <= nb + 3 < 7: mem += self.dma_chunk(nb + 3, T, ctok)
            if nb == c.gt_at:
                q = Prog(); q(f"s_lshl_b32 s{T}, s{S_MH}, 11\ns_add_u32 s{T}, s{T}, L_gtab-L_pc")
                for h in range(2): q(f"buffer_load_dwordx4 {v(VGT+4*h,4)}, v{VL16}, {s(R_PC,4)}, s{T} offen offset:{1024*h}")
                mem.append(q.items)
            if nb >= 4 or nb == c.br0:
                while nq[0] < (c.bw2[nb - 4] if nb >= 4 else 4):
                    n = nq[0]; nq[0] += 1
                    pc = (n >> 2) if c.br0 < 0 else (-2 if n < 4 else (n >> 2) - 1)
                    assert pc <= nb - 4 or pc < 0
                    if pc == 3: assert n - 12 < c.r2; pc = 0
                    q = Prog(); q(f"s_add_u32 m0, s{S_RING}, {pc*SLOT + (n&3)*2048}\nbuffer_load_dwordx4 v{VW2D}, {s(R_2,4)}, s{S_WOFF} offen lds")
                    mem.append(q.items); q = Prog()
                    w2t[n] = q.tok(f"buffer_load_dwordx4 v{VW2D+1}, {s(R_2,4)}, s{S_WOFF} offen offset:1024 lds")
                    if c.rot2: q(f"s_cmp_eq_u32 s{S_WIDX}, {(6-n)%7}\ns_cselect_b32 s{T}, {-7*64*896}, 0\ns_add_u32 s{S_WOFF}, s{S_WOFF}, s{T}\ns_add_u32 s{S_WOFF}, s{S_WOFF}, {(64 + (16 if n % 7 == 6 else 0))*896}")
                    elif c.g16: q(f"s_add_u32 s{S_WOFF}, s{S_WOFF}, {(24 if n & 1 else 8)*896}")
                    else: q(f"s_add_u32 s{S_WOFF}, s{S_WOFF}, {(16 - 6*64 if n % 7 == 6 else 64)*896}")
                    mem.append(q.items)
            s0, s1 = c.side_at
            part = side[(nb - s0) * len(side) // (s1 - s0):(nb + 1 - s0) * len(side) // (s1 - s0)] if s0 <= nb < s1 else []
            if part: assert done == total
            p.extend(interleave(part, mem) if (part and c.side_first) else interleave(mem, part) if mem else interleave(part, []))
            if c.s_touch and nb < 4 and not c.touch_first: touch_upto(c.s_touch[nb + 1])
            if nb < 7 and c.lds_cut[nb] > nl[0]:
                assert done == total and c.lds_cut[nb] <= 23 and (c.br0 < 0 or nb > c.r_at)
                p(f"s_mul_i32 m0, s{S_BW}, 8448"); lds_upto(c.lds_cut[nb])
            nb += 1
        nq = [0]; w2t = {}
        for cost, fn in units:
            while nb < 8 and done >= cuts[min(nb, 6)]: barrier()
            fn(nb == 0); done += cost
        while nb < 8: barrier()
        self.stamp("bar7", sets=(0, 3))
        p(f"s_mul_i32 m0, s{S_BW}, 8448")
        if c.prio_b3 != c.prio_b2: p(f"s_setprio {c.prio_b3}")
        XR, XR2 = 2, 52
        lds_upto(c.fx_ld)
        fx = self.flag_load("X", S_FXR, 8, VFL)
        lds_upto(c.fx_chk)
        self.flag_check(fx, VT)
        p.wait(w2t[nq[0] - 1]); self.lds_post(VONE, VTAG, 4)
        self.stamp("fx", sets=(3,))
        p(f"buffer_load_dwordx4 {v(XR,4)}, v{VL16}, {s(R_WS,4)}, s{S_XTR} offen sc1\ns_add_u32 s{S_XTR}, s{S_XTR}, {c.xts}\nbuffer_load_dwordx4 {v(XR2,4)}, v{VL16}, {s(R_WS,4)}, s{S_XTR} offen sc1")
        lds_upto(57)
        p.extend(kmfma(0, XF))
        T = S_T
        uw = lambda: [p(f"ds_write_b128 v{VUW}, {v(XR2 if ch else XR,4)} offset:{4608*ch}") for ch in range(2)] + [p(f"ds_write_b32 v{VUZ}, v{VZ}")]
        p(f"ds_write_b128 v{VRW}, {v(KA,4)}")
        self.lds_post(VONE, VTAG, 0)
        self.stamp("kgen", sets=(0, 3))
        if c.prio_b4 != c.prio_b3: p(f"s_setprio {c.prio_b4}")
        self.lds_wait(VCN, VT, 0)
        GV, PK = 96, 128
        for k in range(16): p(f"ds_read2st64_b32 {v(GV+2*k,2)}, v{VG+k} offset0:0 offset1:12")
        if c.u_at == 1: uw()
        for k in range(11): p(f"v_add_f32 v{GV+2*k}, v{GV+2*k}, v{GV+2*k+1}")
        for cp_ in range(4):
            for j in range(4): p(f"v_cvt_pk_bf16_f32 v{PK+4*cp_+j}, v{GV+2*(cp_+2*j)}, v{GV+2*(cp_+2*j+1)}")
            p(f"ds_write_b128 v{VTW}, {v(PK+4*cp_,4)} offset:{cp_*TCP+64}")
        for k in range(11, 16): p(f"v_add_f32 v{GV+2*k}, v{GV+2*k}, v{GV+2*k+1}")
        l0, l1 = self.lab("edge"), self.lab("tabd")
        E = lambda k: GV + 2 * (11 + k)
        p(f"v_cvt_pk_bf16_f32 v{PK+16}, v{E(0)}, v{E(1)}\ns_cmp_lg_u32 s{S_MH}, 0\ns_cbranch_scc1 {l0}")
        p.alt_begin()
        p(f"ds_write_b32 v{VTZ}, v{PK+16}\ns_mov_b64 exec, 0xffff\nds_write_b32 v{VTZ}, v{VZ} offset:256\ns_branch {l1}")
        p.alt_else()
        p.label(l0)
        p(f"v_cvt_pk_bf16_f32 v{PK+17}, v{E(2)}, v{E(3)}\nv_cvt_pk_bf16_f32 v{PK+18}, v{E(3)}, v{E(3)}\nv_cvt_pk_bf16_f32 v{PK+19}, v{E(3)}, v{E(4)}")
        p(f"s_mov_b64 exec, 0xffffff\nds_write_b128 v{VTZ}, {v(PK+16,4)}")
        p.alt_end()
        p.label(l1)
        p("s_mov_b64 exec, -1")
        self.stamp("tables", sets=(0, 3, 4))
        if c.u_at == 2: uw()
        self.lds_post(VONE, VTAG, 1)
        self.lds_wait(VCN, VT, 1)
        self.stamp("u", sets=(0, 3, 4))
        if c.prio_b5 != c.prio_b4: p(f"s_setprio {c.prio_b5}")
        TF, UF, CA = 96, 160, 224
        PU, VA, VB, AF, TB = 128, 144, 64, 72, 88
        MF = lambda d, a, b_, z=False: I(f"v_mfma_f32_16x16x32_bf16 {v(d,4)}, {v(a,4)}, {v(b_,4)}, {'0' if z else v(d,4)}")
        def read_tu(ph):
            r = [I(f"ds_read_b128 {v(UF+32*(ph&1),4)}, v{VUA} offset:{2*32*(3-ph)}")]
            for a in range(4):
                for h in range(2):
                    r.append(I(f"ds_read_b64 {v(TF+16*(ph&1)+4*a+2*h,2)}, v{VTA} offset:{2*(160+256*(3-a)+32*(3-ph))+8*h}"))
            r += [I(f"ds_read_b128 {v(UF+32*(ph&1)+4*b,4)}, v{VUA} offset:{2*(256*b+32*(3-ph))}") for b in range(1, 8)]
            if c.cmajor: r = [r[i] for i in (0, 1, 2, 3, 4, 9, 5, 6, 10, 7, 8, 11, 12, 13, 14, 15)]
            return r
        r0 = read_tu(0)
        p.extend(r0[:11])
        for ph in range(4):
            prs = [(a, b) for b in range(8) for a in range(min(4, 8 - b))]
            if c.cmajor: prs.sort(key=lambda x: (x[0] + x[1], x[1]))
            mm = [MF(CA + 4 * (a + b), UF + 32 * (ph & 1) + 4 * b, TF + 16 * (ph & 1) + 4 * a, ph == 0 and (b == 0 or a == 3)) for a, b in prs]
            if ph == 0:
                rp = [I(f"ds_read_b128 {v(PU+8*be+4*o,4)}, v{VPU} offset:{512*be+16*o}") for be in range(2) for o in range(2)]
                ra = [I(f"ds_read2_b32 {v(AF+4*a+2*h,2)}, v{VCA} offset0:{16*(3-a)+2*h} offset1:{16*(3-a)+2*h+1}") for a in range(4) for h in range(2)]
                ra += [I(f"ds_read_b64 {v(TB+2*h,2)}, v{VTA} offset:{8*h}") for h in range(2)]
                mp = [MF(VA + 8 * be + 4 * o, PU + 8 * be + 4 * o, BO7 if o else BE9, True) for be in range(2) for o in range(2)]
                cv = [I(f"v_cvt_pk_bf16_f32 v{VB+4*be+r}, v{VA+8*be+r}, v{VA+8*be+4+r}") for be in range(2) for r in range(4)]
                r1 = read_tu(1)
                p.extend(interleave(mm[:12], r0[11:13] + rp + r0[13:] + ra[:5]))
                p.extend(interleave(mp + mm[12:18], ra[5:] + r1[:8]))
                p.extend(interleave(mm[18:], [[x, y] for x, y in zip(cv, r1[8:])]))
                l0, l1 = self.lab("far1"), self.lab("fard")
                p(f"s_cmp_lg_u32 s{S_MH}, 0\ns_cbranch_scc1 {l0}")
                p.alt_begin()
                p.extend([MF(CA + 4 * (4 + b), UF + 4 * b, TB) for b in range(4)])
                p.extend([MF(CA + 4 * 6, AF, VB), MF(CA + 4 * 7, AF + 4, VB), MF(CA + 4 * 7, AF, VB + 4)])
                p(f"s_branch {l1}")
                p.alt_else()
                p.label(l0)
                p.extend([MF(CA + 4 * (4 + a + be), AF + 4 * a, VB + 4 * be) for be in range(2) for a in range(4 - be)])
                p.alt_end()
                p.label(l1)
            elif ph < 3 and "3" in c.diag: pass
            elif ph < 3: p.extend(interleave(mm, read_tu(ph + 1), ratio=0.8))
            else:
                self.lds_post(VONE, VTAG, 2)
                p.extend(mm[:5]); self.lds_peek(VCN, VT, 2); p.extend(mm[5:11])
                self.lds_check(VCN, VT, 2, fill=lambda: p.extend(mm[11:16])); mm = mm[16:]
                if c.prio_b6 != c.prio_b5 and not c.late6: p(f"s_setprio {c.prio_b6}")
                fill = [I(f"ds_write_b128 v{VEXW}, {v(CA+4*cc,4)} offset:{1024*cc}") for cc in range(c.ex_n)]
                assert c.ex_n <= (6 if c.cmajor else 4)
                p.extend(interleave(mm, fill, ratio=c.ex_n / 9))
        if c.prio_b6 != c.prio_b5 and c.late6: p(f"s_setprio {c.prio_b6}")
        self.stamp("conv", sets=(0, 2, 3, 4))
        for cc in range(c.ex_n, 8): p(f"ds_write_b128 v{VEXW}, {v(CA+4*cc,4)} offset:{1024*cc}")
        self.lds_post(VONE, VTAG, 3)
        EXV, VSA = 96, 10
        if "b" in c.diag:
            p(f"v_lshlrev_b32 v{VT+4}, 7, v0\ns_mov_b64 exec, 15\nbuffer_store_dword v{VTAG}, v{VT+4}, {s(R_WS,4)}, s{S_FSW} offen sc1\ns_mov_b64 exec, -1")
            self.lds_post(VONE, VTAG, 7); p("s_waitcnt lgkmcnt(0)"); self.stamp_flush(1); p("s_endpgm"); return
        self.lds_wait(VCN, VT, 3)
        for k in range(2):
            for w in range(4): p(f"ds_read_b128 {v(EXV+16*k+4*w,4)}, v{VEXR} offset:{8192*w+1024*k}")
        for k in range(2):
            b = EXV + 16 * k
            for r in range(4): p(f"v_add_f32 v{b+r}, v{b+r}, v{b+4+r}\nv_add_f32 v{b+8+r}, v{b+8+r}, v{b+12+r}")
            for r in range(4): p(f"v_cvt_pk_bf16_f32 v{b+4+r}, v{b+r}, v{b+8+r}")
            sttok = p.tok(f"buffer_store_dwordx4 {v(b+4,4)}, v{VL16}, {s(R_WS,4)}, s{S_STW} offen offset:{1024*k} sc1")
        self.stamp("st", sets=(0, 2, 3, 4))
        F = dict(VT=VT, XO=16, PA=18, SA=17, STA=20, XI=24, RG=21, RC=22, XF=128, PV=160, SV=28, SF=136, w=S_BW, sXO=S_FXR, sST=S_XTR, OUT=R_2)
        S_XO = S_STW
        p(f"s_load_dwordx2 {s(R_LD,2)}, s[0:1], 0\ns_load_dwordx2 {s(R_2,2)}, s[0:1], 104\ns_mov_b32 s{R_LD+2}, {2048*896}\ns_mov_b32 s{R_2+2}, {2048*896}\ns_add_u32 s{S_XO}, s{S_STR}, {8*8192}")
        self.fin_addr(0, F, 0); self.fin_addr(0, F, 1)
        if "S" not in c.spoll: p(f"v_min_u32 v{VFL}, 15, v0\nv_lshlrev_b32 v{VFL}, 2, v{VFL}")
        p(f"s_mul_i32 s{T}, s{S_BW}, 2304\ns_add_u32 s{T}, s{T}, {L_STR}")
        p(f"v_and_b32 v{VT+4}, 32, v0\nv_lshl_add_u32 v{VT+4}, v0, 3, v{VT+4}\nv_add_u32 v{VSA}, s{T}, v{VT+4}")
        p(f"v_lshrrev_b32 v{VT+4}, 3, v0\nv_lshlrev_b32 v{VT+4}, 13, v{VT+4}\nv_and_b32 v{VT+5}, 7, v0\nv_lshl_add_u32 v{VSA+2}, v{VT+5}, 4, v{VT+4}\nv_lshlrev_b32 v{VT+4}, 7, v0")
        p.wait(sttok)
        if "S" in c.sflag: self.sflags4(S_FSW)
        else: p(f"s_mov_b64 exec, 15\nbuffer_store_dword v{VTAG}, v{VT+4}, {s(R_WS,4)}, s{S_FSW} offen sc1\ns_mov_b64 exec, -1")
        self.stamp("flagS")
        if c.prio_b7 != c.prio_b6: p(f"s_setprio {c.prio_b7}")
        if c.b_xat == 0: self.fin_loads(F)
        fs = self.flag_load("S", S_FSR, 16, VFL)
        self.flag_check(fs, VT, sleep=c.fs_sleep)
        self.stamp("fs", sets=(0, 2, 3))
        if c.prio_b8 != c.prio_b7: p(f"s_setprio {c.prio_b8}")
        SV = 64
        for j in range(2): p(f"buffer_load_dwordx4 {v(SV+4*j,4)}, v{VSA+2}, {s(R_WS,4)}, s{S_XO if j else S_STR} offen sc1")
        if c.b_xat == 1: self.fin_loads(F)
        for j in range(2): p(f"ds_write2_b64 v{VSA}, {v(SV+4*j,2)}, {v(SV+4*j+2,2)} offset0:{72*j} offset1:{72*j+144}")
        self.lds_post(VONE, VTAG, 7)
        self.stamp("sready", sets=(0, 2, 3))
        self.fin_sread(F); p.extend(self.fin_prep(F)); p.extend(self.fin_sprep(F))
        self.lds_wait(VCN, VT, 5, sleep=c.b5_sleep)
        if c.prio_b9 != c.prio_b8: p(f"s_setprio {c.prio_b9}")
        self.fin_out(F)
        self.stamp("end", sets=(0, 2, 3, 4, 9))
        self.stamp_flush(1)
        p("s_endpgm")

    def head_h(self):
        p, c = self.p, self.c
        p.label("L_helper")
        self.role_start()
        S_HH, S_X, S_Z, VT, XD = 64, 65, 72, 1, 16
        if c.prefetch_code and c.pf_h:
            p(f"s_sub_u32 s{S_X}, s{S_J}, 28\ns_lshl3_add_u32 s{S_X}, s{S_X}, s{S_WAVE}\ns_lshl_b32 s{S_X}, s{S_X}, 7\nv_lshlrev_b32 v255, 12, v0\ns_mov_b64 exec, 0x1ff")
            p(f"buffer_load_dword v255, v255, {s(R_PC,4)}, s{S_X} offen\ns_mov_b64 exec, -1")
        p(f"s_lshl2_add_u32 s{S_HH}, s{S_XCD}, s{S_J}\ns_sub_u32 s{S_HH}, s{S_HH}, 28\ns_lshl3_add_u32 s{S_Z}, s{S_HH}, s{S_WAVE}\ns_mul_i32 s{S_X}, s{S_Z}, {8*896}")
        p(f"v_lshrrev_b32 v{VT+2}, 3, v0\nv_mul_u32_u24 v{VT}, 896, v{VT+2}\nv_and_b32 v{VT+1}, 7, v0\nv_lshl_add_u32 v{VT}, v{VT+1}, 4, v{VT}")
        srd(p, R_LD, P_U, 2048 * 896)
        for i in range(7): p(f"buffer_load_dwordx4 {v(XD+4*i,4)}, v{VT}, {s(R_LD,4)}, s{S_X} offen offset:{128*i}")
        if c.h_near: p("s_branch L_bodyH")
    def role_h(self):
        p, c = self.p, self.c
        S_HH, S_X, S_Y, S_ONE, S_LO, S_HI, S_Q, S_CG, S_Z = range(64, 73)
        T = S_T
        VT, XD, WD, AC, CS, UP = 1, 16, 48, 80, 88, 96
        L_XN = 8192
        if c.h_near:
            if c.h_align: p(".p2align 12")
            p.label("L_bodyH"); p.reset()
            if c.prefetch_code: p.items.append(Marker("pending", ("vmem", {"v255"})))
            for i in range(7): p.items.append(Marker("pending", ("vmem", {f"v{XD+4*i+j}" for j in range(4)})))
        else: self.head_h()
        self.stamp_begin("H")
        self.load_epoch(); srd(p, R_2, P_W1, 448 * 3584); srd(p, R_PC, P_W2, 1792 * 896)
        p(f"s_lshr_b32 s{S_Q}, s{S_XCD}, 1\ns_lshl2_add_u32 s{S_Q}, s{S_Q}, s{S_J}\ns_sub_u32 s{S_Q}, s{S_Q}, 28\ns_and_b32 s{S_CG}, s{S_XCD}, 1\ns_mul_i32 s{S_CG}, s{S_CG}, 14\ns_add_u32 s{S_CG}, s{S_CG}, s{S_Q}")
        p(f"s_lshl_b32 s{T}, s{S_CG}, 7\ns_mul_i32 s{S_Y}, s{S_WAVE}, {56*3584}\ns_add_u32 s{S_Y}, s{S_Y}, s{T}\ns_cmp_ge_u32 s{S_Q}, 14\ns_cselect_b32 s{S_Y}, {448*3584}, s{S_Y}")
        p(f"v_mul_u32_u24 v{VT+3}, 3584, v{VT+2}\nv_lshl_add_u32 v{VT+3}, v{VT+1}, 4, v{VT+3}")
        p(f"s_mov_b32 s{S_ONE}, 0x3f803f80\ns_mov_b32 s{S_LO}, 0x00003f80\ns_mov_b32 s{S_HI}, 0x3f800000")
        p(f"s_lshl_b32 s{S_X}, s{S_Z}, 6\ns_add_u32 s{S_X}, s{S_X}, {WS_STAT}")
        p(f"s_mul_i32 s{T}, s{S_WAVE}, 7232\ns_add_u32 s{T}, s{T}, {L_XN}\nv_add_u32 v{VT}, s{T}, v{VT}")
        for i in range(4): p(f"v_mov_b32 v{AC+i}, 0")
        for k in range(8): p(f"v_mov_b32 v{CS+k}, 0")
        self.make_tag()
        def w1_loads():
            for i in range(7):
                p(f"buffer_load_dwordx4 {v(WD+4*i,4)}, v{VT+3}, {s(R_2,4)}, s{S_Y} offen")
                if i < 6: p(f"s_add_u32 s{S_Y}, s{S_Y}, {8*3584}")
        def touch():
            p(f"s_sub_u32 s{T}, s{S_J}, 28\ns_mul_i32 s{T}, s{T}, 7\ns_add_u32 s{T}, s{T}, s{S_WAVE}\ns_lshl3_add_u32 s{T}, s{T}, s{S_XCD}\ns_mul_i32 s{T}, s{T}, {8*896}\ns_cmp_eq_u32 s{S_WAVE}, 7\ns_cselect_b32 s{T}, {1792*896}, s{T}")
            p(f"v_min_u32 v120, 55, v0\nv_lshlrev_b32 v120, 7, v120\nbuffer_load_dword v121, v120, {s(R_PC,4)}, s{T} offen")
        if c.h_w1 == 0: w1_loads()
        if c.h_w1 == 1: p.items.append(Marker("need", XD + 27)); w1_loads()
        self.stamp("issued")
        for i in range(28):
            p(f"v_dot2_f32_bf16 v{AC+(i&1)}, v{XD+i}, s{S_ONE}, v{AC+(i&1)}\nv_dot2_f32_bf16 v{AC+2+(i&1)}, v{XD+i}, v{XD+i}, v{AC+2+(i&1)}")
        p(f"v_add_f32 v{AC}, v{AC}, v{AC+1}\nv_add_f32 v{AC+1}, v{AC+2}, v{AC+3}")
        for pat in ("quad_perm:[1,0,3,2]", "quad_perm:[2,3,0,1]", "row_half_mirror"):
            for k in range(2): p(f"v_add_f32_dpp v{AC+k}, v{AC+k}, v{AC+k} {pat} row_mask:0xf bank_mask:0xf")
        inv = 0x3b124925
        p(f"v_mul_f32 v{AC}, {inv}, v{AC}\nv_mul_f32 v{AC+1}, {inv}, v{AC+1}\nv_fma_f32 v{AC+1}, -v{AC}, v{AC}, v{AC+1}\nv_max_f32 v{AC+1}, 0, v{AC+1}")
        p(f"v_cvt_pk_bf16_f32 v{AC+1}, v{AC+1}, v{AC+1}\nv_and_b32 v{AC+1}, 0xffff0000, v{AC+1}\nv_add_f32 v{AC+1}, 0x3727c5ac, v{AC+1}")
        p(f"v_cvt_pk_bf16_f32 v{AC+1}, v{AC+1}, v{AC+1}\nv_and_b32 v{AC+1}, 0xffff0000, v{AC+1}\nv_sqrt_f32 v{AC+1}, v{AC+1}")
        p(f"v_mov_b32 v{AC+3}, s{S_TAG}\nv_cvt_pk_bf16_f32 v{AC+2}, v{AC}, v{AC+1}")
        p(f"s_mov_b32 exec_lo, 0x01010101\ns_mov_b32 exec_hi, 0x01010101\nbuffer_store_dwordx2 {v(AC+2,2)}, v0, {s(R_WS,4)}, s{S_X} offen sc1\ns_mov_b64 exec, -1")
        if c.h_w1 == 2: w1_loads()
        if c.h_touch == 0: touch()
        self.stamp("stats")
        p(f"v_and_b32 v{AC+4}, 0xffff0000, v{AC+2}\nv_rcp_f32 v{AC+4}, v{AC+4}\nv_lshlrev_b32 v{AC+6}, 16, v{AC+2}\nv_mov_b32 v{AC+5}, v{AC+4}\nv_mul_f32 v{AC+6}, -v{AC+6}, v{AC+4}\nv_mov_b32 v{AC+7}, v{AC+6}")
        for i in range(7):
            u = UP + 8 * (i & 1)
            for j in range(4): p(f"v_lshlrev_b32 v{u+2*j}, 16, v{XD+4*i+j}\nv_and_b32 v{u+2*j+1}, 0xffff0000, v{XD+4*i+j}")
            for j in range(4): p(f"v_pk_fma_f32 {v(u+2*j,2)}, {v(u+2*j,2)}, {v(AC+4,2)}, {v(AC+6,2)}")
            for j in range(4): p(f"v_cvt_pk_bf16_f32 v{XD+4*i+j}, v{u+2*j}, v{u+2*j+1}")
            p(f"ds_write_b128 v{VT}, {v(XD+4*i,4)} offset:{128*i}")
        if c.h_touch == 1: touch()
        self.stamp("norm")
        for i in range(7):
            for j in range(4):
                p(f"v_dot2_f32_bf16 v{CS+2*j}, v{WD+4*i+j}, s{S_LO}, v{CS+2*j}\nv_dot2_f32_bf16 v{CS+2*j+1}, v{WD+4*i+j}, s{S_HI}, v{CS+2*j+1}")
        for k in range(8): p(f"v_add_f32_dpp v{CS+k}, v{CS+k}, v{CS+k} row_ror:8 row_mask:0xf bank_mask:0xf")
        p(f"v_and_b32 v{VT+3}, 8, v0\nv_cmp_eq_u32 vcc, 0, v{VT+3}\nv_lshlrev_b32 v{VT+3}, 1, v{VT+3}\nv_lshl_add_u32 v{VT+3}, v{VT+1}, 5, v{VT+3}\nv_lshrrev_b32 v{VT+4}, 4, v0\nv_lshl_add_u32 v{VT+3}, v{VT+4}, 8, v{VT+3}")
        p(f"s_lshl_b32 s{T}, s{S_WAVE}, 10\nv_add_u32 v{VT+3}, s{T}, v{VT+3}")
        for k in range(4): p(f"v_cndmask_b32 v{CS+k}, v{CS+4+k}, v{CS+k}, vcc")
        p(f"ds_write_b128 v{VT+3}, {v(CS,4)}")
        p(f"s_lshl_b32 s{T}, s{S_WAVE}, 7\ns_add_u32 s{T}, s{T}, {L_XN}\nv_mul_u32_u24 v{VT}, 7232, v{VT+1}\nv_lshl_add_u32 v{VT}, v{VT+2}, 4, v{VT}\nv_add_u32 v{VT}, s{T}, v{VT}")
        p(f"v_mul_u32_u24 v{VT+2}, {8*c.xts}, v{VT+2}\nv_lshl_add_u32 v{VT+2}, v{VT+1}, 4, v{VT+2}\nv_lshlrev_b32 v{VT+4}, 7, v0")
        p(f"s_mul_i32 s{S_X}, s{S_WAVE}, {c.xts//2}\ns_add_u32 s{S_X}, s{S_X}, s{S_HH}\ns_lshl_b32 s{S_X}, s{S_X}, 7\ns_add_u32 s{S_X}, s{S_X}, {WS_XT}")
        p(f"s_lshr_b32 s{T}, s{S_HH}, 3\ns_lshl2_add_u32 s{S_Y}, s{S_WAVE}, s{T}\ns_lshl_b32 s{S_Y}, s{S_Y}, 7\ns_and_b32 s{T}, s{S_HH}, 7\ns_add_u32 s{S_Y}, s{S_Y}, s{T}\ns_lshl2_add_u32 s{S_Y}, s{S_Y}, {WS_FX}")
        p(f"s_mov_b32 s{S_LO}, 0x05040100\ns_mov_b32 s{S_HI}, 0x07060302\ns_waitcnt lgkmcnt(0)\ns_barrier")
        self.stamp("bar")
        p(f"s_cmp_eq_u32 s{S_WAVE}, 7\ns_cbranch_scc1 L_h7")
        p.alt_begin()
        for j in range(8): p(f"ds_read_b128 {v(XD+4*j,4)}, v{VT} offset:{896*j}")
        if c.h_touch == 2: touch()
        for e in range(8):
            o = WD + 4 * e
            for j in range(4): p(f"v_perm_b32 v{o+j}, v{XD+4*(2*j+1)+(e>>1)}, v{XD+4*(2*j)+(e>>1)}, s{S_HI if e&1 else S_LO}")
            p(f"buffer_store_dwordx4 {v(o,4)}, v{VT+2}, {s(R_WS,4)}, s{S_X} offen sc1")
            if e < 7: p(f"s_add_u32 s{S_X}, s{S_X}, {c.xts}")
        p("s_waitcnt vmcnt(0)")
        if "X" in c.sflag: self.sflags4(S_Y)
        else: p(f"s_mov_b64 exec, 15\nbuffer_store_dword v{AC+3}, v{VT+4}, {s(R_WS,4)}, s{S_Y} offen sc1\ns_mov_b64 exec, -1")
        p("s_branch L_hdone")
        p.alt_else()
        p.label("L_h7")
        p(f"s_setprio 3\ns_cmp_ge_u32 s{S_Q}, 14\ns_cbranch_scc1 L_hdone\nv_lshlrev_b32 v{VT+3}, 2, v0")
        for i in range(16): p(f"ds_read2st64_b32 {v(XD+2*i,2)}, v{VT+3} offset0:{2*i} offset1:{2*i+1}")
        for st in (16, 8, 4, 2):
            for i in range(0, st, 2): p(f"v_pk_add_f32 {v(XD+i,2)}, {v(XD+i,2)}, {v(XD+st+i,2)}")
        p(f"v_add_f32 v{AC+2}, v{XD}, v{XD+1}\nv_lshlrev_b32 v{VT+3}, 3, v0\ns_lshl_b32 s{T}, s{S_CG}, 9\ns_add_u32 s{T}, s{T}, {WS_CS}")
        p(f"buffer_store_dwordx2 {v(AC+2,2)}, v{VT+3}, {s(R_WS,4)}, s{T} offen sc1")
        p.alt_end()
        p.label("L_hdone")
        p("s_setprio 0\ns_waitcnt lgkmcnt(0)")
        self.stamp("done")
        p(f"v_min_u32 v{VT}, 55, v0\ns_sub_u32 s{S_Z}, s{S_J}, 28")
        if c.h_pf:
            p("s_barrier")
            p(f"s_mul_i32 s{T}, s{S_Z}, 7\ns_add_u32 s{T}, s{T}, s{S_WAVE}\ns_mul_i32 s{T}, s{T}, {64*896}\ns_cmp_eq_u32 s{S_WAVE}, 7\ns_cselect_b32 s{T}, {1792*896}, s{T}\nv_lshlrev_b32 v{VT+1}, 7, v{VT}")
            for st in c.h_pf:
                for h in range(2):
                    p(f"s_add_u32 s{T+1}, s{T}, {(16*st+8*h)*896}\nbuffer_load_dword v{VT+2}, v{VT+1}, {s(R_PC,4)}, s{T+1} offen")
        self.stamp("pfw")
        if c.h_act:
            assert c.alay == 0
            p(f"s_lshr_b32 s{T}, s{S_WAVE}, 2\ns_mul_i32 s{T}, s{T}, 56\nv_add_u32 v{VT}, s{T}, v{VT}\nv_lshrrev_b32 v{VT+1}, 4, v{VT}\nv_lshlrev_b32 v{VT+1}, 13, v{VT+1}\nv_and_b32 v{VT}, 15, v{VT}\nv_lshl_add_u32 v{VT+1}, v{VT}, 7, v{VT+1}")
            p(f"s_and_b32 s{T}, s{S_WAVE}, 3\ns_lshl2_add_u32 s{S_X}, s{S_HH}, s{T}\ns_mul_i32 s{S_X}, s{S_X}, {28*2048}\ns_add_u32 s{S_X}, s{S_X}, {WS_ACT}")
            p(f"s_lshl4_add_u32 s{S_Y}, s{S_HH}, s{T}\ns_lshl_b32 s{S_Y}, s{S_Y}, 7\ns_add_u32 s{S_Y}, s{S_Y}, {WS_FA}")
            have = -1
            for st in c.h_act:
                p(f"s_add_u32 s{S_HI}, s{S_X}, {2048*st}")
                if st > have:
                    have = min(x for x in c.fstages if x >= st)
                    p(f"s_add_u32 s{S_LO}, s{S_Y}, {512*have}")
                    self.flag_check(self.flag_load("H", S_LO, 7, None), None, sleep=c.h_sleep)
                p(f"buffer_load_dword v{VT+2}, v{VT+1}, {s(R_WS,4)}, s{S_HI} offen sc1")
                self.stamp(f"pa{st}")
        p(f"s_waitcnt vmcnt(0)")
        self.stamp("pfa")
        p(f"s_cmp_lg_u32 s{S_HH}, 31\ns_cbranch_scc1 L_hend\ns_cmp_lg_u32 s{S_WAVE}, 7\ns_cbranch_scc1 L_hend")
        p(f"v_lshrrev_b32 v{VT}, 2, v0\nv_min_u32 v{VT}, 13, v{VT}\nv_lshlrev_b32 v{VT}, 9, v{VT}\nv_and_b32 v{VT+1}, 3, v0\nv_lshl_add_u32 v{VT}, v{VT+1}, 4, v{VT}\ns_mov_b32 s{S_X}, {WS_FS}")
        ld = f"s_sleep 8\nbuffer_load_dwordx4 {v(XD,4)}, v{VT}, {s(R_WS,4)}, s{S_X} offen sc1"
        p(ld)
        self.tagged_check(ld, [XD, XD + 1, XD + 2, XD + 3], VT + 2)
        p(f"s_mov_b32 s{S_X}, {WS_EPOCH}")
        self.flag_store(S_X, AC + 3)
        p.label("L_hend")
        self.stamp_flush(1)
        p("s_endpgm")

    def layout(self, body):
        c = self.c
        lines = body.split("\n")
        sizes = instr_sizes([re.sub(r"L_hop\d", "L_bodyA", l) for l in lines])
        end = lines.index("L_bodyH:") if c.h_near else lines.index("L_helper:")
        out, addr, page, k = [], 0, 1, 0
        prom = None
        fixed = [0, 0]
        for i, l in enumerate(lines):
            t = l.strip()
            if t.startswith(".p2align"):
                al = 1 << int(t.split()[1]); addr = (addr + al - 1) // al * al; prom = None
            if c.hops and sizes[i] and addr >= 4096 * page and i < end:
                out += [f"L_hop{k}:", f"    s_cbranch_execz {'L_bodyA' if k == 0 else 'HOP%d' % (k + 4)}"]; addr += 4; page += 1; k += 1; prom = None
            if c.align8 and sizes[i] == 8 and addr % 8 == 4:
                run, pend, valu = 0, 0, 0
                for j in range(i, min(len(lines), i + 60)):
                    if sizes[j] == 4: pend ^= 1
                    elif sizes[j] == 8:
                        if pend: break
                        run += 1; valu += lines[j].strip().startswith("v_") and "mfma" not in lines[j]
                if prom is not None and run >= 2:
                    m = re.match(r"(\s*)(v_\w+)(.*)", out[prom]); out[prom] = m.group(1) + m.group(2) + "_e64" + m.group(3); addr += 4; fixed[0] += 1
                elif valu >= c.align8:
                    out.append("    s_nop 0"); addr += 4; fixed[1] += 1
            if sizes[i] == 8: prom = None
            elif sizes[i] == 4 and re.match(r"v_(mov|add|sub|subrev|mul|and|or|xor|lshlrev|lshrrev|exp|rcp|sin|cos|fract|min|max|cvt|sqrt)_", t): prom = len(out)
            out.append(l); addr += sizes[i]
        body = "\n".join(out)
        if c.hops:
            assert c.align4k and k >= 5
            for j in range(k + 3, 4, -1): body = body.replace(f"HOP{j}", f"L_hop{j}" if j < k else "L_hopped")
        self.p.stats["align"] = fixed
        return body
    def build(self):
        p = self.p
        self.entry()
        self.role_a(); self.role_h()
        p.reset()
        p.label("L_exit")
        p("s_endpgm")
        p(".p2align 7")
        p(".type L_gtab,@object")
        p.label("L_gtab")
        w = self.gather_table()
        for i in range(0, len(w), 8): p(".long " + ", ".join(hex(x) for x in w[i:i+8]))
        p.label("L_end")
        body = p.resolve()
        head = open("recurrent_scan__ssm_conv_s4__dense_activation_mish__prompt.s.ref").read().split("; Override launch")[0]
        txt = head + f"; @launch grid=(256,1,1) block=(512,1,1) lds={LDS_BYTES}\n" + DOC + ""
        pad = ".p2align 12\n.fill 832, 4, 0xbf810000\n" if self.c.align4k else ""
        txt += f'.amdgcn_target "amdgcn-amd-amdhsa--gfx950"\n.text\n{pad}.globl {KNAME}\n.p2align 8\n.type {KNAME},@function\n{KNAME}:\n'
        if "m" in self.c.diag or "n" in self.c.diag:
            L = body.split("\n"); out = []; cnt = 0; i = 0
            while i < len(L):
                m = re.match(r"    v_mfma_f32_32x32x16_bf16 v\[(\d+):\d+\], (v\[\d+:\d+\]), (v\[\d+:\d+\]), \S+", L[i])
                if m: cnt += 1
                k = (cnt - 1) // 4
                if not m or ("m" if k < 28 else "n") not in self.c.diag: out.append(L[i]); i += 1; continue
                j = i + 1
                while j < len(L) and re.match(r"\s+(ds_read|buffer_load|s_add|s_nop 0|v_[a-l]|v_mul|v_mov|v_x|s_l|s_m)", L[j]): j += 1
                F = L[i + 1:j]; h = (len(F) + 1) // 2
                a_ = int(m.group(1)) + 4 * (k & 3); r = f"v[{a_}:{a_+3}]"
                out += [f"    v_mfma_f32_16x16x32_bf16 {r}, {m.group(2)}, {m.group(3)}, " + ("0" if k % 28 < 4 else r)] + F[:h]
                out += [f"    v_mfma_f32_16x16x32_bf16 {r}, {m.group(3)}, {m.group(2)}, {r}"] + F[h:]
                i = j
            body = "\n".join(out)
        if self.c.dma_fl: body = re.sub(r" lds$", f" {self.c.dma_fl} lds", body, flags=re.M)
        body = self.layout(body)
        txt += body
        txt += f""".section .rodata,"a"
.p2align 6
.amdhsa_kernel {KNAME}
  .amdhsa_next_free_vgpr 256
  .amdhsa_next_free_sgpr 102
  .amdhsa_accum_offset 256
  .amdhsa_group_segment_fixed_size 0
  .amdhsa_kernarg_size 128
  .amdhsa_user_sgpr_count 2
  .amdhsa_user_sgpr_kernarg_segment_ptr 1
  .amdhsa_system_sgpr_workgroup_id_x 1
.end_amdhsa_kernel
"""
        return txt

def parse_cfg(args):
    kw = {}
    for a in args:
        k, x = a.split("=")
        kw[k] = eval(x)
    return Cfg(**kw)

if __name__ == "__main__":
    out = sys.argv[1]
    g = Gen(parse_cfg(sys.argv[2:]))
    txt = g.build()
    open(out, "w").write(txt)
    import json
    json.dump(g.stamp_names, open(out + ".stamps.json", "w"))
    print(out, g.p.stats)
```

```python
import sys, re
from asmgen import *

KNAME = "recurrent_scan__ssm_conv_s4__dense_activation_mish__prompt_kernel"

class Cfg:
    stamps = False
    sset = 0
    cyc = False
    prole = 'A'
    probe2 = None
    probe = None
    prefetch_code = True
    pf_h = False
    align4k = True
    align8 = 6
    hops = True
    mapP = False
    rot2 = 0
    qperm = False
    g2_mix = True
    h16 = True
    b7_16 = 21
    fix0 = 4
    g16 = True
    tail16 = 3
    alay = 1
    xts = 4096 + 512
    act_st = 'sc1'
    act_ld = 'sc1'
    fa_st = 'sc1'
    mish_pk = False
    sflag = 'XAS'
    spoll = 'XASH'
    adepth = 7
    flead = 6
    pre_dma = 32
    nfirst = 12
    a_delay = 0
    a_chunks = 4
    dma_per = (8, 8, 8, 8, 8, 8, 8)
    gran_at = 5
    bw2 = (8, 12, 16, 16)
    w2_mish = 0
    fx_ld = 9
    fx_chk = 29
    u_at = 1
    lds_cut = (0, 0, 0, 0, 0, 0, 0)
    r_early = 4
    r_at = 4
    r2 = 8
    nx = 2
    b7_at = -3
    br0 = 0
    late6 = True
    cmajor = True
    ex_n = 0
    side_at = (0, 6)
    side_first = True
    touch_first = True
    out_fl = 'nt'
    mish_skip = 0.0
    w2_lead = 11
    mix_sh = 1
    w2_rate = 0.0
    w2_gap = 2
    rdepth = 4
    fstages = (3,)
    cstages = None
    flag_lag = 2
    gt_at = 2
    b_pre = 1.0
    kg_pre = 9999
    kg_ints = 4
    kg_x = 0.0
    h_w1 = 2
    h_touch = -1
    s_touch = (7, 14, 14, 14, 14)
    h_near = True
    h_align = False
    a_align = True
    pf_off = 8
    h_pf = ()
    diag = ''
    tlb_at = -1
    tlb_v = False
    jitter = 0
    h_act = ()
    h_sleep = 4
    rot1 = 3
    fs_sleep = 3
    b_xat = 0
    prio_b = 1
    prio_b2 = 0
    prio_b3 = 1
    prio_b4 = 1
    prio_b5 = 1
    prio_b6 = 0
    prio_b7 = 0
    prio_b8 = 1
    prio_a1 = 2
    prio_a2 = 0
    tail_m = 5
    tail_ld = True
    tail_k = 3
    tail_r = None
    fin_at = (1, 2, 3, 21)
    prio_b9 = 0
    b5_sleep = 1
    pre_loop = 'R12 D20 W F D26 L C A8'
    dma_fl = ''
    def __init__(self, **kw):
        for k, x in kw.items():
            assert hasattr(self, k), k
            setattr(self, k, x)

WS_EPOCH, WS_FX, WS_FA, WS_FS = 0, 0x1000, 0x20000, 0x8000
WS_STAT, WS_CS, WS_XT, WS_ST, WS_ACT, WS_DBG = 0x10000, 0x14000, 0x40000, 0x300000, 0x600000, 0xE00000
ALAY = ((8192, 2048, 1024), (2048, 896 * 2048, 1024), (1024, 896 * 2048, 896 * 1024))
WS_SIZE = 0x1000000
TAGC = 0x9E3779B1
SLOT = 32768
L_RING = 2 * SLOT
L_STG = 0
L_TAB = 512
TCP, TCH = 2240, 9472
L_EX = 0
L_RAW = SLOT + 1024
L_U = L_TAB + 2 * TCH
L_X = L_RAW
L_STR = L_RAW + 21504
L_CNT = L_RAW + 30720
LDS_BYTES = 163840
P_U, P_ARE, P_AIM, P_BRE, P_BIM, P_CRE, P_CIM, P_LDT = 4, 6, 8, 10, 12, 14, 16, 18
P_DSK, P_BX, P_W1, P_B1, P_W2, P_OUT, P_DBG, P_WS = 20, 22, 24, 26, 28, 30, 32, 34
R_LD, R_2, R_WS, R_PC = 36, 40, 44, 48
S_TAG, S_TAG2, S_WAVE, S_XCD, S_J, S_RT, S_CT, S_CP = 52, 53, 54, 55, 56, 57, 58, 97
S_SOFF, S_CSTR, S_LDB, S_CW, S_WT, S_WF = range(64, 70)
VD = 1
B_BW, B_LDT, B_DSK, B_STW, B_VP = 70, 71, 72, 73, 10
S_R2, S_C2 = 60, 61
S_T = 62
S_SP = 80
S_JR, S_XF = 3, 59
S_CNT = 96
S_T0 = 98
LOG2E = 0x3fb8aa3b
POLL_MAX = 1 << 17

DOC = """;
; Hand-offs go through d_ws with write-through stores; flags and tagged words hold a value derived from an epoch word in d_ws,
"""

def srd(p, r, ptr, size):
    p(f"s_mov_b32 s{r}, s{ptr}\ns_mov_b32 s{r+1}, s{ptr+1}\ns_mov_b32 s{r+2}, {size}\ns_mov_b32 s{r+3}, 0x20000")

class Gen:
    def __init__(self, cfg):
        self.c = cfg
        self.p = Prog()
        self.nlab = 0
        self.stamp_names = {}
    def lab(self, base):
        self.nlab += 1
        return f"L_{base}_{self.nlab}"

    def stamp_begin(self, role):
        self.role = role; self.stamp_names[role] = []
    def stamp(self, name, p=None, sets=(0,)):
        if self.c.jitter:
            q = p or self.p; l = self.lab("jit"); k = self.nlab * 40503 + self.c.jitter * 9176
            q(f"s_lshl3_add_u32 s100, s2, s{S_WAVE}\ns_add_u32 s100, s100, {k & 0xffff}\ns_mul_i32 s100, s100, 0x9E3779B1\ns_add_u32 s100, s100, s{S_TAG}\ns_mul_i32 s100, s100, 0x85EBCA6B\ns_lshr_b32 s100, s100, 29\ns_cmp_lg_u32 s100, 0\ns_cbranch_scc1 {l}\ns_sleep {(20, 60, 120)[self.nlab % 3]}")
            q.label(l)
        if self.c.probe2 and self.role == self.c.prole:
            if name == self.c.probe2[0]: (p or self.p)("s_memrealtime s[100:101]")
            if name == self.c.probe2[1]: (p or self.p)("s_memrealtime s[32:33]")
        if self.c.probe == (self.role, name): (p or self.p)("s_memrealtime s[100:101]")
        if not self.c.stamps or self.c.sset not in sets: return
        p = p or self.p
        n = len(self.stamp_names[self.role]); assert n < 15
        self.stamp_names[self.role].append(name)
        p(f"{'s_memtime' if self.c.cyc else 's_memrealtime'} {s(4+2*n, 2)}")
    def stamp_flush(self, vt):
        if self.c.probe2 and self.role == self.c.prole:
            l0, l1 = self.lab("probe"), self.lab("noprobe")
            if self.c.probe2[2] < 0: self.p("s_waitcnt vmcnt(0) lgkmcnt(0)")
            else: self.p(f"s_waitcnt vmcnt(0) lgkmcnt(0)\ns_cmp_lg_u32 s2, {self.c.probe2[2]}\ns_cbranch_scc1 {l1}\ns_cmp_lg_u32 s{S_WAVE}, {5 if self.role == 'B' else 1}\ns_cbranch_scc1 {l1}")
            self.p("s_sub_u32 s32, s32, s100\ns_mul_i32 s32, s32, 20\ns_add_u32 s32, s32, 3000")
            self.p.label(l0)
            self.p(f"s_memrealtime s[30:31]\ns_waitcnt lgkmcnt(0)\ns_sub_u32 s30, s30, s98\ns_cmp_lt_u32 s30, s32\ns_cbranch_scc1 {l0}")
            self.p.label(l1)
        if self.c.probe and self.c.probe[0] == self.role:
            l0 = self.lab("probe")
            self.p("s_waitcnt vmcnt(0) lgkmcnt(0)")
            self.p.label(l0)
            self.p(f"s_memrealtime s[98:99]\ns_waitcnt lgkmcnt(0)\ns_sub_u32 s98, s98, s100\ns_cmp_lt_u32 s98, 6000\ns_cbranch_scc1 {l0}")
        if not self.c.stamps: return
        p = self.p
        n = len(self.stamp_names[self.role])
        p("s_waitcnt vmcnt(0) lgkmcnt(0)\ns_mov_b64 exec, 1")
        p(f"s_lshl_b32 s{S_T}, s2, 3\ns_add_u32 s{S_T}, s{S_T}, s{S_WAVE}\ns_lshl_b32 s{S_T}, s{S_T}, 6\ns_add_u32 s{S_T}, s{S_T}, {WS_DBG}")
        p(f"v_mov_b32 v{vt}, s{S_T0}\nbuffer_store_dword v{vt}, off, {s(R_WS,4)}, s{S_T}")
        for i in range(n):
            p(f"v_mov_b32 v{vt+1+(i&1)}, s{4+2*i}\nbuffer_store_dword v{vt+1+(i&1)}, off, {s(R_WS,4)}, s{S_T} offset:{4+4*i}")
        p("s_waitcnt vmcnt(0)")

    def flag_store(self, soff, vt):
        p = self.p
        p(f"s_mov_b64 exec, 1\nbuffer_store_dword v{vt}, off, {s(R_WS,4)}, s{soff} sc1\ns_mov_b64 exec, -1")
    def sflags4(self, soff):
        for i in range(4):
            self.p(f"s_atomic_swap s{S_TAG}, {s(R_WS,2)}, s{soff}")
            if i < 3: self.p(f"s_add_u32 s{soff}, s{soff}, 128")
    def lds_post(self, vown, vtag, k):
        self.p(f"s_mov_b64 exec, 1\nds_write_b32 v{vown}, v{vtag} offset:{16*k}\ns_mov_b64 exec, -1")
    def lds_wait(self, vaddr, vt, k, sleep=0):
        p = self.p
        l0, l1 = self.lab("spin"), self.lab("spun")
        p(f"s_mov_b32 s{S_CNT}, 0")
        p.label(l0)
        if sleep: p(f"s_sleep {sleep}")
        p(f"ds_read_b32 v{vt}, v{vaddr} offset:{16*k}\ns_add_u32 s{S_CNT}, s{S_CNT}, 1\ns_cmp_gt_u32 s{S_CNT}, {POLL_MAX*8}\ns_waitcnt lgkmcnt(0)")
        p(f"v_cmp_ne_u32 vcc, s{S_TAG}, v{vt}\ns_cbranch_scc1 {l1}\ns_cbranch_vccnz {l0}")
        p.label(l1)
    def lds_peek(self, vaddr, vt, k):
        self.p(f"ds_read_b32 v{vt}, v{vaddr} offset:{16*k}")
    def lds_check(self, vaddr, vt, k, fill=None):
        p = self.p
        l1 = self.lab("pass")
        p(f"v_cmp_ne_u32 vcc, s{S_TAG}, v{vt}")
        if fill: fill()
        p(f"s_cbranch_vccz {l1}")
        p.alt_begin(); self.lds_wait(vaddr, vt, k); p.alt_end()
        p.label(l1)
    def tagged_check(self, loads, tagregs, vt, on_miss=None):
        p = self.p
        l0, l1 = self.lab("chk"), self.lab("chkd")
        p(f"s_mov_b32 s{S_CNT}, 0")
        for r in reversed(tagregs): p.items.append(Marker("need", r))
        p.label(l0)
        p(f"v_xor_b32 v{vt}, s{S_TAG}, v{tagregs[0]}")
        for r in tagregs[1:]:
            p(f"v_bitop3_b32 v{vt}, v{r}, s{S_TAG}, v{vt} bitop3:0xbe")
        p(f"v_cmp_ne_u32 vcc, 0, v{vt}\ns_add_u32 s{S_CNT}, s{S_CNT}, 1\ns_cbranch_vccz {l1}")
        p(f"s_cmp_gt_u32 s{S_CNT}, {POLL_MAX}\ns_cbranch_scc1 {l1}")
        p.alt_begin()
        if on_miss:
            l3 = self.lab("again")
            p(f"s_cmp_lg_u32 s{S_CNT}, 1\ns_cbranch_scc1 {l3}")
            p.alt_begin(); on_miss(); p.alt_end()
            p.label(l3)
        p(loads)
        p(f"s_waitcnt vmcnt(0)\ns_branch {l0}")
        p.alt_end()
        p.label(l1)

    def entry(self):
        p, c = self.p, self.c
        T = S_T
        p(f"s_load_dwordx16 s[4:19], s[0:1], 0\ns_load_dwordx16 s[20:35], s[0:1], 64")
        p(f"s_cmp_ge_u32 s2, 256\ns_cbranch_scc1 L_exit")
        if c.stamps: p(f"{'s_memtime' if c.cyc else 's_memrealtime'} {s(S_T0,2)}")
        if c.probe and c.probe[1] == "start": p("s_memrealtime s[100:101]")
        if c.probe2: p("s_memrealtime s[98:99]\ns_memrealtime s[100:101]")
        if "k" in c.diag: p("s_waitcnt lgkmcnt(0)\ns_memtime s[100:101]")
        p(f"v_lshrrev_b32 v1, 6, v0\nv_and_b32 v0, 63, v0\nv_readfirstlane_b32 s{S_WAVE}, v1")
        p(f"s_and_b32 s{S_XCD}, s2, 7\ns_lshr_b32 s{S_J}, s2, 3")
        p(f"s_getpc_b64 {s(R_PC,2)}")
        p.label("L_pc")
        p(f"s_mov_b32 s{R_PC+2}, L_end-L_pc\ns_mov_b32 s{R_PC+3}, 0x20000")
        if c.prefetch_code and not c.pf_h:
            p(f"s_lshl3_add_u32 s{T}, s{S_J}, s{S_WAVE}\ns_lshl_b32 s{T}, s{T}, 7")
            p(f"buffer_load_dword v255, off, {s(R_PC,4)}, s{T} offset:{128*c.pf_off}")
        p(f"s_mov_b32 s{R_WS+2}, {WS_SIZE}\ns_mov_b32 s{R_WS+3}, 0x20000")
        p(f"s_cmp_ge_u32 s{S_J}, 28\ns_cbranch_scc1 L_helper")
        p(f"s_mul_i32 s{S_JR}, s{S_J}, 37\ns_lshr_b32 s{S_JR}, s{S_JR}, 8\ns_mul_i32 s{T}, s{S_JR}, 7\ns_sub_u32 s{S_C2}, s{S_J}, s{T}")
        if c.mapP: p(f"s_lshr_b32 s{S_RT}, s{S_JR}, 1\ns_lshl1_add_u32 s{S_RT}, s{S_XCD}, s{S_RT}\ns_and_b32 s{S_XF}, s{S_JR}, 1")
        else: p(f"s_lshr_b32 s{S_RT}, s{S_XCD}, 1\ns_lshl2_add_u32 s{S_RT}, s{S_RT}, s{S_JR}\ns_and_b32 s{S_XF}, s{S_XCD}, 1")
        p(f"s_cmp_lt_u32 s{S_WAVE}, 4\ns_cbranch_scc1 L_common")
        p.alt_begin()
        if c.prio_b: p(f"s_setprio {c.prio_b}")
        p(f"s_sub_u32 s{B_BW}, s{S_WAVE}, 4\ns_mul_i32 s{S_CP}, s{S_XCD}, 28\ns_add_u32 s{S_CP}, s{S_CP}, s{S_J}\ns_lshl_b32 s{T}, s{S_CP}, 2")
        p(f"s_add_u32 s{B_STW}, s{T}, s{B_BW}\ns_lshl_b32 s{B_STW}, s{B_STW}, 8\nv_lshl_add_u32 v50, v0, 2, s{B_STW}")
        p(f"s_load_dword s{B_LDT}, {s(P_LDT,2)}, s{T}")
        for i, ptr in enumerate((P_ARE, P_AIM, P_BRE, P_BIM, P_CRE, P_CIM)):
            p(f"global_load_dword v{B_VP+i}, v50, {s(ptr,2)}")
        p(f"s_load_dword s{B_DSK}, {s(P_DSK,2)}, s{T}")
        if c.prio_b != c.prio_b2: p(f"s_setprio {c.prio_b2}")
        p.alt_end()
        p.label("L_common")
        VT, S_X, S_Y = 24, 78, 79
        p(f"s_and_b32 s{S_WT}, s{S_WAVE}, 1\ns_bfe_u32 s{S_WF}, s{S_WAVE}, 0x10001\ns_mul_i32 s{S_CT}, s{S_XF}, 7\ns_add_u32 s{S_CT}, s{S_CT}, s{S_C2}")
        p(f"s_lshl1_add_u32 s{T}, s{S_RT}, s{S_WF}\ns_mul_i32 s{T}, s{T}, {64*896}")
        p(f"s_mul_i32 s{T+1}, s{S_WF}, {32*14}\ns_add_u32 s{T+1}, s{T+1}, s{S_CT}\ns_lshl_b32 s{T+1}, s{T+1}, 8")
        p(f"s_lshl1_add_u32 s{S_LDB}, s{S_WT}, s{S_WF}\ns_lshl_b32 s{S_LDB}, s{S_LDB}, 13")
        p(f"s_add_u32 s{S_X}, s{S_WT}, 3\nv_lshrrev_b32 v{VT}, s{S_X}, v0\ns_lshl_b32 s{S_X}, s{S_WT}, 1\nv_lshrrev_b32 v{VT+1}, 4, v0\nv_lshlrev_b32 v{VT+1}, s{S_X}, v{VT+1}")
        p(f"s_lshl_b32 s{S_Y}, 896, s{S_X}\nv_xor_b32 v{VT+1}, v0, v{VT+1}\nv_mul_u32_u24 v{VT}, s{S_Y}, v{VT}")
        p(f"s_cmp_eq_u32 s{S_WT}, 0")
        p(f"s_cselect_b32 s{S_SOFF}, s{T}, s{T+1}\ns_cselect_b32 s{S_CSTR}, 1, {64*28}\ns_cselect_b32 s{S_X}, 7, 15\ns_cselect_b32 s{S_Y}, 64, 0\ns_cselect_b32 s{R_LD+2}, 8, 7")
        p(f"v_and_b32 v{VT+1}, s{S_X}, v{VT+1}\nv_lshl_add_u32 v{VD}, v{VT+1}, 4, v{VT}\nv_xor_b32 v{VD+1}, s{S_Y}, v{VD}")
        p(f"s_lshl_b32 s{S_CSTR}, s{S_CSTR}, 7")
        if c.rot1 == 1: p(f"s_mov_b32 s{S_J}, s{S_C2}")
        if c.rot1 == 3: p(f"s_and_b32 s{S_J}, s{S_XCD}, 6")
        if c.rot1 == 4: p(f"s_lshr_b32 s{S_J}, s{S_XCD}, 1\ns_and_b32 s{S_J}, s{S_J}, 1\ns_mul_i32 s{S_J}, s{S_J}, 3")
        if c.rot1 == 5: p(f"s_min_u32 s{S_J}, s{S_XCD}, 6")
        if c.rot1: p(f"s_mul_i32 s{T}, s{S_J}, s{S_CSTR}\ns_add_u32 s{S_SOFF}, s{S_SOFF}, s{T}\ns_mul_i32 s{S_CW}, s{S_CSTR}, 7")
        p(f"s_mul_i32 s{R_LD+2}, s{R_LD+2}, {256*896}\ns_mov_b32 s{R_LD+3}, 0x20000\ns_lshl_b32 s{S_Y}, 7168, s{S_WT}")
        p(f"s_sub_u32 s{T}, s{S_Y}, 1024\nv_add_u32 v{VD+1}, s{T}, v{VD+1}\ns_lshl_b32 s{T}, s{T}, 1")
        p(f"v_add_u32 v{VD+2}, s{T}, v{VD}\nv_add_u32 v{VD+3}, s{T}, v{VD+1}\ns_lshl_b32 s{T}, s{S_Y}, 2")
        if c.h16: p(f"s_lshl_b32 s{S_X}, s{S_WT}, 5\nv_xor_b32 v{VD+2}, s{S_X}, v{VD+2}\nv_xor_b32 v{VD+3}, s{S_X}, v{VD+3}")
        for i in range(4): p(f"v_add_u32 v{VD+4+i}, s{T}, v{VD+i}")
        p(f"s_cmp_ge_u32 s{S_WAVE}, 4\ns_cbranch_scc1 L_roleB")
    def loader_base(self):
        self.p(f"s_cmp_eq_u32 s{S_WT}, 0\ns_cselect_b32 s{R_LD}, s{P_U}, s{P_W1}\ns_cselect_b32 s{R_LD+1}, s{P_U+1}, s{P_W1+1}")
    def dma_chunk(self, n, T, ctok):
        r = []
        for i in range(8):
            q = Prog()
            if i % 4 == 0: q(f"s_add_u32 m0, s{S_LDB}, {(3, 4, 1, 2)[n % 4]*SLOT + (i//4)*4096}")
            ctok[n] = q.tok(f"buffer_load_dwordx4 v{VD+i}, {s(R_LD,4)}, s{S_SOFF} offen offset:{(i%4)*1024} lds")
            if i == 7 and n < 6:
                q(f"s_add_u32 s{S_SOFF}, s{S_SOFF}, s{S_CSTR}")
                if self.c.rot1: q(f"s_cmp_eq_u32 s{S_J}, {6-n}\ns_cselect_b32 s{T}, s{S_CW}, 0\ns_sub_u32 s{S_SOFF}, s{S_SOFF}, s{T}")
            r.append(q.items)
        return r
    def role_start(self, b=False):
        p = self.p
        p.reset()
        if self.c.prefetch_code and not self.c.pf_h: p.items.append(Marker("pending", ("vmem", {"v255"})))
        if b:
            p.items.append(Marker("pending", ("smem", {f"s{B_LDT}", f"s{B_DSK}"})))
            for i in range(6): p.items.append(Marker("pending", ("vmem", {f"v{B_VP+i}"})))
        else:
            p.items.append(Marker("pending", ("smem", {f"s{i}" for i in range(4, 36)})))
    def load_epoch(self):
        self.p(f"s_load_dword s{S_TAG}, {s(P_WS,2)}, {WS_EPOCH}\ns_mov_b32 s{R_WS}, s{P_WS}\ns_mov_b32 s{R_WS+1}, s{P_WS+1}")
    def make_tag(self):
        self.p(f"s_add_u32 s{S_TAG}, s{S_TAG}, {TAGC}\ns_mov_b32 s{S_TAG2}, s{S_TAG}")
    def flag_load(self, which, soff, n, va, q=None):
        if which in self.c.spoll:
            w = 8 if n <= 8 else 16
            txt = f"s_buffer_load_dwordx{w} {s(S_SP,w)}, {s(R_WS,4)}, s{soff} glc"
        else:
            txt = f"buffer_load_dword v{va+1}, v{va}, {s(R_WS,4)}, s{soff} offen sc1"
        (q or self.p)(txt)
        return (which, txt, n, va)
    def flag_check(self, fl, vt, sleep=0, on_miss=None):
        which, txt, n, va = fl
        p = self.p
        if sleep: txt = f"s_sleep {sleep}\n" + txt
        if which not in self.c.spoll:
            return self.tagged_check(txt, [va + 1], vt, on_miss)
        l0, l1, l2 = self.lab("chk"), self.lab("retry"), self.lab("chkd")
        p(f"s_mov_b32 s{S_CNT}, 0")
        p.label(l0)
        p("s_waitcnt lgkmcnt(0)")
        for i in range(0, n - 2, 2): p(f"s_cmp_eq_u64 {s(S_SP+i,2)}, {s(S_TAG,2)}\ns_cbranch_scc0 {l1}")
        if n & 1: p(f"s_cmp_eq_u32 s{S_SP+n-1}, s{S_TAG}\ns_cbranch_scc1 {l2}")
        else: p(f"s_cmp_eq_u64 {s(S_SP+n-2,2)}, {s(S_TAG,2)}\ns_cbranch_scc1 {l2}")
        p.alt_begin()
        p.label(l1)
        if on_miss:
            l3 = self.lab("again")
            p(f"s_cmp_lg_u32 s{S_CNT}, 0\ns_cbranch_scc1 {l3}")
            p.alt_begin(); on_miss(); p.alt_end()
            p.label(l3)
        p(txt)
        p(f"s_add_u32 s{S_CNT}, s{S_CNT}, 1\ns_cmp_le_u32 s{S_CNT}, {POLL_MAX}\ns_cbranch_scc1 {l0}\ns_waitcnt lgkmcnt(0)")
        p.alt_end()
        p.label(l2)

    def fin_addr(self, ps, F, part):
        p, VT, T = self.p, F["VT"], S_T
        if part == 0:
            p(f"v_bfe_u32 v{VT+1}, v0, 2, 1\nv_lshrrev_b32 v{VT+2}, 3, v0\nv_and_b32 v{VT+3}, 3, v0\nv_lshl_add_u32 v{VT+4}, v{VT+1}, 4, v{VT+2}")
            p(f"v_mul_u32_u24 v{F['XO']}, 896, v{VT+4}\nv_lshl_add_u32 v{F['XO']}, v{VT+3}, 4, v{F['XO']}\nv_lshlrev_b32 v{F['STA']}, 3, v{VT+4}")
            a = F["PA"]
            p(f"v_xor_b32 v{a}, s{S_WF}, v{VT+1}\nv_lshlrev_b32 v{a}, 3, v{a}\nv_lshl_add_u32 v{a}, v{VT+3}, 1, v{a}\nv_xor_b32 v{a}, v{a}, v{VT+2}")
            p(f"s_lshl3_add_u32 s{T}, s{S_WT}, {(L_RING+ps*SLOT)//256}\nv_add_u32 v{VT+4}, s{T}, v{VT+4}\nv_lshlrev_b32 v{VT+4}, 8, v{VT+4}\nv_lshl_add_u32 v{a}, v{a}, 4, v{VT+4}\nv_xor_b32 v{a+1}, 16, v{a}")
        else:
            p(f"s_mul_i32 s{T}, s{F['w']}, 2304\ns_add_u32 s{T}, s{T}, {L_STR+1152*ps}\nv_mul_u32_u24 v{F['SA']}, 288, v{VT+3}\nv_and_b32 v{VT+4}, 60, v0\nv_add3_u32 v{F['SA']}, v{F['SA']}, v{VT+4}, s{T}")
            x, t = F["sXO"], F["sST"]
            p(f"s_lshl3_add_u32 s{x}, s{S_R2}, s{S_WT}\ns_add_u32 s{x}, s{x}, {4*ps}\ns_lshl_b32 s{t}, s{x}, 6\ns_add_u32 s{t}, s{t}, {WS_STAT}\ns_mul_i32 s{x}, s{x}, {8*896}\ns_lshl1_add_u32 s{T}, s{S_C2}, s{S_WF}\ns_lshl_b32 s{T}, s{T}, 6\ns_add_u32 s{x}, s{x}, s{T}")
    def fin_loads(self, F):
        self.p(f"buffer_load_dword v{F['RG']}, v{F['STA']}, {s(R_WS,4)}, s{F['sST']} offen sc1\nbuffer_load_dwordx4 {v(F['XI'],4)}, v{F['XO']}, {s(R_LD,4)}, s{F['sXO']} offen")
    def fin_prep(self, F):
        q = Prog(); r, c_, x = F["RG"], F["RC"], F["XF"]
        q(f"v_and_b32 v{r}, 0xffff0000, v{r}\nv_rcp_f32 v{r}, v{r}")
        for j in range(4): q(f"v_lshlrev_b32 v{x+2*j}, 16, v{F['XI']+j}\nv_and_b32 v{x+2*j+1}, 0xffff0000, v{F['XI']+j}")
        q(f"v_mul_f32 v{c_}, {LOG2E | 0x80000000}, v{r}\nv_mul_f32 v{c_+1}, {LOG2E | 0x80000000}, v{r}")
        return q.items
    def fin_sread(self, F):
        for i in range(4): self.p(f"ds_read_b32 v{F['SV']+i}, v{F['SA']} offset:{64*i}")
    def fin_sprep(self, F):
        q = Prog(); f = F["SF"]
        for i in range(4): q(f"v_lshlrev_b32 v{f+2*i}, 16, v{F['SV']+i}\nv_and_b32 v{f+2*i+1}, 0xffff0000, v{F['SV']+i}")
        for i in range(8): q(f"v_mul_f32 v{f+i}, v{f+i}, v{F['RG']}")
        return q.items
    def fin_out(self, F, fill=()):
        p, b = self.p, F["PV"]
        for w in range(4):
            for e in range(2): p(f"ds_read_b128 {v(b+8*w+4*e,4)}, v{F['PA']+e} offset:{8192*w}")
        p.extend(list(fill))
        for i in range(0, 8, 2): p(f"v_pk_add_f32 {v(b+i,2)}, {v(b+i,2)}, {v(b+8+i,2)}")
        for i in range(0, 8, 2): p(f"v_pk_add_f32 {v(b+16+i,2)}, {v(b+16+i,2)}, {v(b+24+i,2)}")
        for i in range(0, 8, 2): p(f"v_pk_add_f32 {v(b+i,2)}, {v(b+i,2)}, {v(b+16+i,2)}")
        for i in range(0, 8, 2): p(f"v_pk_mul_f32 {v(b+8+i,2)}, {v(b+i,2)}, {v(F['RC'],2)}")
        for i in range(8): p(f"v_exp_f32 v{b+8+i}, v{b+8+i}")
        for i in range(0, 8, 2): p(f"v_pk_mul_f32 {v(b+i,2)}, {v(b+i,2)}, {v(F['SF']+i,2)}")
        for i in range(0, 8, 2): p(f"v_pk_add_f32 {v(b+8+i,2)}, {v(b+8+i,2)}, 1.0 op_sel_hi:[1,0]")
        for i in range(8): p(f"v_rcp_f32 v{b+8+i}, v{b+8+i}")
        for i in range(0, 8, 2): p(f"v_pk_fma_f32 {v(b+i,2)}, {v(b+i,2)}, {v(b+8+i,2)}, {v(F['XF']+i,2)}")
        for i in range(4): p(f"v_cvt_pk_bf16_f32 v{b+16+i}, v{b+2*i}, v{b+2*i+1}")
        p(f"buffer_store_dwordx4 {v(b+16,4)}, v{F['XO']}, {s(F['OUT'],4)}, s{F['sXO']} offen {self.c.out_fl}")

    def role_a(self):
        p, c = self.p, self.c
        self.role_start(); self.stamp_begin("A")
        VXA, VWA, VW2A, VW2D, VL16, VFL, VC1, VT = 9, 13, 15, 19, 21, 22, 2, 24
        ACC, FR, W2R, AB = 32, 96, 96, 192
        S_ACTW, S_FAW, S_FAR, S_RING, S_ACTR, S_W2B, S_Z = range(70, 77)
        R_OUT = 64
        PS, SS, TS = ALAY[c.alay]
        if c.g16: PS, SS = 4096, 896 * 4096
        S_X = 78; S_Y = 79
        T = S_T
        if "K" in c.diag: p("s_memtime s[100:101]")
        self.loader_base()
        ctok = {}
        dq = []
        for n in range(c.a_chunks): dq += self.dma_chunk(n, T, ctok)
        self.stamp("dma0", sets=(1,))
        if "k" in c.diag.lower():
            self.stamp("karg", sets=(1,)); p("s_waitcnt lgkmcnt(0)\ns_mov_b32 s6, s100")
        if c.a_delay: p(f"s_waitcnt lgkmcnt(0)"); p("\n".join(["s_nop 15"] * c.a_delay))
        for it in dq[:c.nfirst]: p.extend(it)
        self.load_epoch()
        if c.hops:
            p(f"s_mov_b64 exec, 0\ns_cmp_eq_u32 s{S_WAVE}, 3\ns_cbranch_scc1 L_hop0")
        p("s_branch L_bodyA")
        role = self.role
        if c.h_near: self.head_h()
        self.role_b()
        self.role = role
        p.label("L_bodyA")
        p.reset()
        p.items.append(Marker("pending", ("smem", {f"s{S_TAG}", "s94", "s95"})))
        if c.prefetch_code and not c.pf_h: p.items.append(Marker("pending", ("vmem", {"v255"})))
        for i in range(c.nfirst): p.items.append(Marker("pending", ("vmem", set(), ctok[i // 8] if i % 8 == 7 else None)))
        if c.hops: p("s_mov_b64 exec, -1")
        if c.h16:
            assert c.g16 and not c.mish_pk and not c.qperm
            VWA = VXA + 2
            p(f"v_and_b32 v{VT}, 15, v0\nv_lshrrev_b32 v{VT+1}, 4, v0\nv_bfe_u32 v{VT+2}, v0, 1, 3\nv_xor_b32 v{VT+2}, v{VT+1}, v{VT+2}\nv_lshl_add_u32 v{VT+2}, v{VT}, 3, v{VT+2}")
            p(f"s_add_u32 s{S_X}, s{S_WT}, 12\ns_lshl_b32 s{S_X}, s{S_X}, 13\nv_lshl_add_u32 v{VXA}, v{VT+2}, 4, s{S_X}\nv_xor_b32 v{VXA+1}, 64, v{VXA}")
            p(f"s_lshl_b32 s{S_RING}, s{S_WAVE}, 13\ns_add_u32 s{S_RING}, s{S_RING}, {L_RING}\ns_mov_b32 s{S_Z}, 0")
            p(f"v_bfe_u32 v{VT+2}, v0, 2, 2\nv_lshl_add_u32 v{VT+3}, v{VT+1}, 3, v{VT+2}\nv_and_b32 v{VT+1}, 1, v{VT+1}\nv_lshl_add_u32 v{VT+1}, v{VT+2}, 1, v{VT+1}")
            p(f"s_lshl2_add_u32 s{S_Y}, s{S_WF}, {3*SLOT//32}\nv_xor_b32 v{VT+1}, s{S_Y}, v{VT+1}\nv_lshl_add_u32 v{VT+1}, v{VT+3}, 3, v{VT+1}\nv_and_b32 v{VT+2}, 3, v0\nv_lshl_add_u32 v{VT+1}, v{VT+1}, 2, v{VT+2}\nv_lshlrev_b32 v{VWA}, 3, v{VT+1}")
            for k in range(1, 4): p(f"v_xor_b32 v{VWA+k}, {32*k}, v{VWA}")
        else:
            p(f"v_and_b32 v{VT}, 31, v0\nv_lshrrev_b32 v{VT+1}, 5, v0\nv_bfe_u32 v{VT+2}, v0, 1, 3\nv_xor_b32 v{VT+1}, v{VT+1}, v{VT+2}\nv_lshlrev_b32 v{VT+1}, 4, v{VT+1}")
            p(f"v_lshl_add_u32 v{VT+1}, v{VT}, 7, v{VT+1}\ns_add_u32 s{S_X}, s{S_WT}, 12\ns_lshl_b32 s{S_X}, s{S_X}, 13\nv_add_u32 v{VXA}, s{S_X}, v{VT+1}")
            for k in range(1, 4): p(f"v_xor_b32 v{VXA+k}, {32*k}, v{VXA}")
            p(f"s_lshl_b32 s{S_RING}, s{S_WAVE}, 13\ns_add_u32 s{S_RING}, s{S_RING}, {L_RING}")
            p(f"v_bfe_u32 v{VT}, v0, 4, 1\nv_lshlrev_b32 v{VT}, 5, v{VT}\nv_and_b32 v{VT+1}, 3, v0\nv_lshl_add_u32 v{VT}, v{VT+1}, 3, v{VT}")
            p(f"v_bfe_u32 v{VT+1}, v0, 2, 2\nv_lshrrev_b32 v{VT+2}, 5, v0")
            p(f"v_lshl_add_u32 v{VT+3}, v{VT+2}, 3, v{VT+1}\nv_lshl_add_u32 v{VT+3}, v{VT+3}, 8, v{VT}")
            p(f"s_lshl1_add_u32 s{S_Y}, s{S_WF}, 0x600\nv_xor_b32 v{VT+4}, s{S_Y}, v{VT+1}\nv_lshl_add_u32 v{VWA}, v{VT+4}, 6, v{VT+3}")
            if c.qperm: p(f"s_lshl1_add_u32 s{S_Z}, s{S_RT}, s{S_WT}\ns_and_b32 s{S_Z}, s{S_Z}, 3\ns_lshl_b32 s{S_Y}, s{S_Z}, 5\nv_xor_b32 v{VWA}, s{S_Y}, v{VWA}\ns_lshl_b32 s{S_Z}, s{S_Z}, 4")
            else: p(f"s_mov_b32 s{S_Z}, 0")
            p(f"v_xor_b32 v{VWA+1}, 64, v{VWA}")
        if c.g16:
            assert c.br0 >= 0 and not c.rot2 and c.nx == 2 and c.fstages == (3,) and not c.w2_mish
            p(f"v_lshrrev_b32 v{VT+3}, 2, v0\nv_bfe_u32 v{VT+4}, v0, 3, 2\nv_lshl_add_u32 v{VT+3}, v{VT+3}, 2, v{VT+4}\nv_and_b32 v{VT+4}, 3, v0\nv_lshl_add_u32 v{VT+3}, v{VT+3}, 2, v{VT+4}")
            p(f"s_lshl_b32 s{S_X}, s{S_WAVE}, 13\nv_lshl_add_u32 v{VW2A}, v{VT+3}, 3, s{S_X}")
        else:
            p(f"v_lshl_add_u32 v{VT+3}, v{VT+2}, 2, v{VT+1}\nv_lshl_add_u32 v{VT+3}, v{VT+3}, 7, v{VT}")
            p(f"v_lshrrev_b32 v{VT+4}, 1, v{VT+1}\nv_lshl_add_u32 v{VT+3}, v{VT+4}, 6, v{VT+3}\nv_add_u32 v{VW2A}, s{S_RING}, v{VT+3}")
        srd(p, R_2, P_W2, 1792 * 896)
        VB1 = 30
        p(f"s_lshl1_add_u32 s{S_Y}, s{S_CT}, s{S_WF}\ns_lshl_b32 s{S_X}, s{S_Y}, 7\nv_xor_b32 v{VB1+1}, s{S_Z}, v0\nv_lshl_add_u32 v{VB1}, v{VB1+1}, 1, s{S_X}\nglobal_load_ushort v{VB1}, v{VB1}, {s(P_B1,2)}")
        self.stamp("setup", sets=(1,))
        for it in dq[c.nfirst:c.pre_dma]: p.extend(it)
        VB1 = 30
        q = p
        VGA = 26
        if c.g16: q("\n".join(f"v_xor_b32 v{VW2A+k}, {32*k}, v{VW2A}" for k in range(1, 4)))
        else: q(f"v_xor_b32 v{VW2A+1}, 64, v{VW2A}\nv_add_u32 v{VW2A+2}, 0x10000, v{VW2A}\nv_xor_b32 v{VW2A+3}, 64, v{VW2A+2}")
        if c.br0 >= 0 and not c.g16: q(f"v_xor_b32 v{VFL}, 0x10000, v{VW2A}\nv_xor_b32 v{VFL+1}, 0x10000, v{VW2A+1}")
        late = Prog(); q = late
        q(f"s_lshl1_add_u32 s{T+1}, s{S_RT}, s{S_WT}\ns_lshl_b32 s{S_X}, s{T+1}, 9\ns_add_u32 s{S_X}, s{S_X}, {WS_STAT}\nv_lshl_add_u32 v{VGA}, v0, 3, s{S_X}")
        q(f"s_lshl1_add_u32 s{S_Y}, s{S_CT}, s{S_WF}\ns_lshl_b32 s{S_X}, s{S_Y}, 9\ns_add_u32 s{S_X}, s{S_X}, {WS_CS}\nv_lshl_add_u32 v{VGA+1}, v{VB1+1}, 3, s{S_X}")
        q(f"s_mul_i32 s{S_ACTW}, s{T+1}, 28\ns_add_u32 s{S_ACTW}, s{S_ACTW}, s{S_Y}\ns_mul_i32 s{S_ACTW}, s{S_ACTW}, {PS}\ns_add_u32 s{S_ACTW}, s{S_ACTW}, {WS_ACT}")
        q(f"s_mul_i32 s{S_X}, s{S_Y}, 37\ns_lshr_b32 s{S_X}, s{S_X}, 8\ns_mul_i32 s{S_X}, s{S_X}, 25\ns_add_u32 s{S_X}, s{S_X}, s{S_Y}")
        q(f"s_lshl_b32 s{S_FAW}, s{T+1}, 9\ns_add_u32 s{S_FAW}, s{S_FAW}, s{S_X}\ns_lshl2_add_u32 s{S_FAW}, s{S_FAW}, {WS_FA}")
        q(f"s_lshl2_add_u32 s{S_R2}, s{S_XCD}, s{S_JR}")
        q(f"s_lshl4_add_u32 s{S_FAR}, s{S_R2}, s{S_WAVE}\ns_lshl_b32 s{S_FAR}, s{S_FAR}, 7\ns_add_u32 s{S_FAR}, s{S_FAR}, {WS_FA}")
        q(f"v_lshlrev_b32 v{VL16}, 4, v0")
        VST = VFL
        if c.h16: VST = VL16
        elif c.g16: q(f"v_and_b32 v{VST}, 0xf0, v{VL16}\nv_lshrrev_b32 v{VT+4}, 5, v0\nv_lshl_add_u32 v{VST}, v{VT+4}, 8, v{VST}\nv_bfe_u32 v{VT+4}, v0, 4, 1\nv_lshl_add_u32 v{VST}, v{VT+4}, 10, v{VST}")
        if "A" not in c.spoll: q(f"v_min_u32 v{VFL}, 6, v0\nv_lshlrev_b32 v{VFL}, 2, v{VFL}")
        q(f"v_lshrrev_b32 v{VT+4}, 3, v0\nv_mul_u32_u24 v{VT+4}, 896, v{VT+4}\nv_bfe_u32 v{VT+1}, v0, 4, {2 if c.g16 else 1}\nv_lshlrev_b32 v{VT+1}, {1 if c.g16 else 2}, v{VT+1}\nv_xor_b32 v{VT+1}, v0, v{VT+1}\nv_and_b32 v{VT+1}, 7, v{VT+1}")
        q(f"v_lshl_add_u32 v{VW2D}, v{VT+1}, 4, v{VT+4}\nv_add_u32 v{VW2D+1}, {(14336 if c.g16 and not c.h16 else 7168)-1024}, v{VW2D}")
        q(f"s_lshl2_add_u32 s{S_ACTR}, s{S_R2}, s{S_WAVE}\ns_mul_i32 s{S_ACTR}, s{S_ACTR}, {7*PS}\ns_add_u32 s{S_ACTR}, s{S_ACTR}, {WS_ACT}")
        q(f"s_mul_i32 s{S_W2B}, s{S_WAVE}, {448*7}\ns_add_u32 s{S_W2B}, s{S_W2B}, s{S_C2}\ns_lshl_b32 s{S_W2B}, s{S_W2B}, 7")
        q(f"s_lshl2_add_u32 s{S_X}, s{S_WAVE}, {L_CNT}\nv_mov_b32 v{VT+5}, s{S_X}")
        lateg = [[it] for it in late.items]
        S_AO = list(range(88, 95)); S_WO = [34, 35, 48, 49, 50, 51, 77]; S_ROT = 95
        if c.rot2:
            q = Prog()
            if c.rot2 == 1: q(f"s_mov_b32 s{S_ROT}, s{S_C2}")
            else: q(f"s_lshl1_add_u32 s{S_ROT}, s{S_JR}, s{S_C2}\ns_cmp_ge_u32 s{S_ROT}, 7\ns_cselect_b32 s{T+1}, 7, 0\ns_sub_u32 s{S_ROT}, s{S_ROT}, s{T+1}")
            lateg.append(q.items)
            for i in range(7):
                q = Prog()
                q(f"s_cmp_ge_u32 s{S_ROT}, {7-i}\ns_cselect_b32 s{T+1}, {i-7}, {i}\ns_add_u32 s{T+1}, s{T+1}, s{S_ROT}")
                lateg.append(q.items); q = Prog()
                q(f"s_mul_i32 s{S_AO[i]}, s{T+1}, {PS}\ns_add_u32 s{S_AO[i]}, s{S_AO[i]}, s{S_ACTR}\ns_mul_i32 s{S_WO[i]}, s{T+1}, {64*896}\ns_add_u32 s{S_WO[i]}, s{S_WO[i]}, s{S_W2B}")
                lateg += [[it] for it in q.items]
        S_Q = [S_ROT, S_W2B, S_ACTR, S_CT]
        if c.qperm:
            assert c.rot2
            q = Prog()
            for i in range(4): q(f"s_xor_b32 s{S_Q[i]}, s{S_JR}, {i}\ns_mul_i32 s{S_Q[i]}, s{S_Q[i]}, {16*896}")
            lateg += [[it] for it in q.items]
        self.make_tag()
        p(f"v_mov_b32 v{VT}, s{S_TAG}")
        GR = 216 if c.h16 else AB
        gloads = f"buffer_load_dwordx2 {v(GR,2)}, v{VGA}, {s(R_WS,4)}, 0 offen sc1\nbuffer_load_dwordx2 {v(GR+2,2)}, v{VGA+1}, {s(R_WS,4)}, 0 offen sc1"
        piece = [0, 1, 2, 0, 1, 2, 0]; pred = {3: 0, 4: 1, 5: 2, 6: 3}
        if c.br0 >= 0:
            piece = [-2, 0, 1, 2, 0, 1, 2]; pred = {4: 1, 5: 2, 6: 3}
            assert c.r_early == 4 and "A" in c.spoll
        wtok, rtok = {}, {}
        w2reg = lambda n: W2R + 8 * ((6, 7, 8, 9, 10, 11, 2, 3, 4, 5, 0, 1)[n] if n < 12 else 6 + (n - 12) % 5)
        areg = lambda n: AB + 8 * (n % 8) if n < 22 else W2R + 8 * (n - 22)
        xtra = lambda n: 24 <= n < 24 + c.nx
        wpair = lambda m: W2R + 16 * ((3, 4, 5, 1, 2, 0)[m] if m < 6 else 3 + m % 3)
        S_D0, S_D1 = 88, 89
        def dma_w2(n):
            q = Prog(); gi = n >> 2
            if gi in pred and not xtra(n): q.wait(rtok[4 * pred[gi] + (n & 3)])
            q((f"s_add_u32 m0, s{T+1}, {(n&3)*2048}\n" if xtra(n) else f"s_add_u32 m0, s{S_RING}, {piece[gi]*SLOT + (n&3)*2048}\n") + (f"s_add_u32 s{S_Z}, s{S_WO[n%7]}, s{S_Q[n//7]}" if c.qperm else f"s_add_u32 s{S_Z}, s{S_WO[n%7]}, {16*(n//7)*896}" if c.rot2 else f"s_add_u32 s{S_Z}, s{S_W2B}, {(16*n if c.h16 else 32*(n>>1) + 8*(n&1) if c.g16 else 64*(n%7) + 16*(n//7))*896}"))
            if "5" in c.diag and n >= 24: wtok[n] = wtok[23]; return [[], []]
            if "9" in c.diag and n > 16: wtok[n] = wtok[16]; return [[], []]
            q(f"buffer_load_dwordx4 v{VW2D}, {s(R_2,4)}, s{S_Z} offen lds")
            q2 = Prog()
            wtok[n] = q2.tok(f"buffer_load_dwordx4 v{VW2D+1}, {s(R_2,4)}, s{S_Z} offen offset:1024 lds")
            return [q.items, q2.items]
        def read_w2(n):
            q = Prog(); pc = -2 if xtra(n) else piece[n >> 2]
            if n == max(c.r_early, c.r2):
                keep, self.p = self.p, q
                self.lds_wait(VT + 5, VT + 1, 4)
                self.p = keep
            if c.g16:
                d = {4: L_RING, 12: 2 * SLOT, 16: -2 * SLOT, 24: f"s{S_D0}", 26: f"s{S_D1}"}.get(n)
                if d is not None:
                    for k in range(4): q(f"v_add_u32 v{VW2A+k}, {d}, v{VW2A+k}")
                if n >= c.bw2[-1]: q.wait(wtok[n])
                for di in range(4):
                    rtok[n] = q.tok(f"ds_read_b64_tr_b16 {v(wpair(n>>1)+4*di+2*(n&1),2)}, v{VW2A+di} offset:{(pc&1)*SLOT + (n&3)*2048}")
                return [q.items]
            if n >= c.bw2[-1]: q.wait(wtok[n])
            for di in range(2):
                for h in range(2):
                    rtok[n] = q.tok(f"ds_read_b64_tr_b16 {v(w2reg(n)+4*di+2*h,2)}, v{(VFL if pc < 0 else VW2A+2*(pc>>1))+di} offset:{(pc&1)*SLOT + (n&3)*2048 + h*1024}")
            return [q.items]
        nw = [c.bw2[-1], 0]
        def w2_ops(k, maxread):
            r = []
            for _ in range(k):
                n = nw[0]
                if n >= 24: break
                for m in (n, n + 1):
                    if (m >> 2) in pred and m < 24:
                        need = 4 * pred[m >> 2] + (m & 3)
                        assert m > n or need < maxread
                        while nw[1] <= need and nw[1] < maxread: r += read_w2(nw[1]); nw[1] += 1
                r += dma_w2(n); nw[0] += 1
            return r
        def reads1(gs):
            n, k = gs >> 2, gs & 3
            base = FR + 16 * (gs % 3); so = (n & 1) * SLOT
            r = []
            for fi in range(2):
                for h in range(2):
                    r.append(I(f"ds_read_b64_tr_b16 {v(base+4*fi+2*h,2)}, v{VWA+fi} offset:{so+16384+k*4096+h*1024}"))
                r.append(I(f"ds_read_b128 {v(base+8+4*fi,4)}, v{VXA+k} offset:{so+fi*4096}"))
            return r
        def mfma1(gs):
            base = FR + 16 * (gs % 3)
            r = []
            for fi, ti in ((0, 0), (0, 1), (1, 0), (1, 1)):
                a = v(ACC + 32 * fi + 16 * ti, 16)
                r.append(I(f"v_mfma_f32_32x32x16_bf16 {a}, {v(base+4*fi,4)}, {v(base+8+4*ti,4)}, {'0' if gs == 0 else a}"))
            return r
        wset = lambda n: 112 if n & 1 else 224
        xslot = lambda n, t: 128 + 8 * (t - 2) if (n == 6 and t >= 2) else FR + 8 * (t & 1)
        acc16 = lambda f, t: ACC + 32 * (f >> 1) + 8 * t + 4 * (f & 1)
        rdx = lambda n, t: [I(f"ds_read_b128 {v(xslot(n,t)+4*k,4)}, v{VXA+k} offset:{(n&1)*SLOT+t*2048}") for k in range(2)]
        rdw = lambda n: [I(f"ds_read_b64_tr_b16 {v(wset(n)+8*f+4*k+2*h,2)}, v{VWA+f} offset:{(n&1)*SLOT+16384+k*8192+h*1024}") for f in range(4) for k in range(2) for h in range(2)]
        grp16 = lambda n, t: [I(f"v_mfma_f32_16x16x32_bf16 {v(acc16(f,t),4)}, {v(wset(n)+8*f+4*k,4)}, {v(xslot(n,t)+4*k,4)}, {'0' if n == 0 and k == 0 else v(acc16(f,t),4)}") for f in range(4) for k in range(2)]
        FA_, FB_ = (200, 192) if c.h16 else (AB + 8, AB + 12)
        def spread(r):
            return f"v_permlane32_swap_b32 v{r}, v{r+4}\nv_permlane16_swap_b32 v{r}, v{r+2}\nv_permlane16_swap_b32 v{r+4}, v{r+6}"
        if c.h16:
            q = Prog()
            for r in (FA_, FB_):
                for k in range(2, 8): q(f"v_mov_b32 v{r+k}, 0")
            q(f"v_mov_b32 v{FA_+1}, v{VB1}\n" + spread(FA_ + 1))
            lateg += [[it] for it in q.items]
        self.stamp("dmapre", sets=(1,))
        if c.hops:
            p("s_mov_b64 exec, 0")
            for w in range(3): p(f"s_cmp_eq_u32 s{S_WAVE}, {w}\ns_cbranch_scc1 L_hop{w+1}")
            p("s_branch L_hop4")
            p.label("L_hopped")
            p("s_mov_b64 exec, -1")
        nd = c.pre_dma
        nl = (len(lateg) + 3) // 4
        for n in range(7):
            if n < c.a_chunks: p.wait(ctok[n])
            if n == 0: self.stamp("c0", sets=(1,))
            p("s_waitcnt lgkmcnt(0)\ns_barrier")
            self.stamp(f"bar{n}", sets=(0, 1) if n in (0, 3, 6) else (1,))
            if n in (2, 4, 6):
                for r in range(VXA, VXA + 6): p(f"v_xor_b32 v{r}, 0x10000, v{r}")
            upto = min(len(dq), 8 * (n + 4), max(nd + c.dma_per[n], 8 * (n + 2)))
            fill = dq[nd:upto]; nd = upto
            if n == c.gran_at:
                fill = fill + [[I(x)] for x in gloads.split("\n")]
            if n == c.r_at:
                while nw[1] < c.r_early:
                    fill = fill + [[it] for it in read_w2(nw[1])[0]]; nw[1] += 1
            last = []
            if n == 6:
                while nw[1] < c.r2:
                    its = read_w2(nw[1])[0]
                    if nw[1] < 6: fill = fill + [[it] for it in its]
                    else: last += its
                    nw[1] += 1
            if c.h16:
                x0, w = rdx(n, 0), rdw(n)
                rd = w[:2] + x0[:1] + w[2:4] + x0[1:] + w[4:]
                if n == 0: body = [rd]
                else:
                    body = [rd[:3]] + [[m] + rd[3 + 2 * i:5 + 2 * i] for i, m in enumerate(grp16(n - 1, 3))]
                for t in range(3):
                    ex = rdx(n, t + 1) if n < 6 else (rdx(6, 1) + rdx(6, 2) + rdx(6, 3) + last if t == 0 else [])
                    k = 2 if n == 6 else 1
                    body += [[m] + ex[k * i:k * i + k] for i, m in enumerate(grp16(n, t))]
                if n == 6:
                    body[c.b7_16] = body[c.b7_16] + [I("s_waitcnt lgkmcnt(0)"), I("s_barrier")]
                    after7 = body[c.b7_16 + 1:]; body = body[:c.b7_16 + 1]
            else:
                g0 = 4 * n
                r0, r1, r2, r3 = (reads1(g0 + k) for k in range(4))
                body = []
                if n == 0: body.append(r0 + r1)
                else:
                    mm = mfma1(g0 - 1)
                    body += [r0, [mm[0]] + r1[:3], [mm[1]] + r1[3:], [mm[2]], [mm[3]]]
                for k, rd in ((0, r2), (1, r3), (2, None)):
                    mm = mfma1(g0 + k)
                    body += [[mm[0]] + (rd[:3] if rd else []), [mm[1]] + (rd[3:] if rd else []), [mm[2]], [mm[3]]]
                if n == 6:
                    body[-5] = body[-5] + last[:4]; body[-4] = body[-4] + last[4:]
                    body[c.b7_at] = body[c.b7_at] + [I(f"s_waitcnt lgkmcnt({len(last) if c.bw2[-1] <= 18 else 0})"), I("s_barrier")]
            merged = []
            j = 0
            for i, it in enumerate(body):
                grp = list(it)
                nb_ = len(body) - (5 if n == 6 else 0)
                while j < min(len(fill), (i + 1) * len(fill) // nb_): grp += fill[j]; j += 1
                merged.append(grp)
            lt = lateg[nl * n: nl * (n + 1)] if n < 4 else []
            p.extend(interleave(merged, lt))
        fixm = []
        if c.h16:
            mm = [x[0] for x in after7] + grp16(6, 3)
            p.extend(mm[:2])
            self.tagged_check(gloads, [GR + 1, GR + 3], VT + 1)
            self.stamp("granules", sets=(0, 1, 3))
            q = Prog()
            q(f"s_mov_b32 s{S_X}, 0x01000100\nv_perm_b32 v{FB_}, v{GR}, v{GR}, s{S_X}\nv_lshrrev_b32 v{FB_+1}, 16, v{GR}\nv_xor_b32 v{FB_}, 0x80008000, v{FB_}")
            q(f"v_cvt_pk_bf16_f32 v{VT+1}, v{GR+2}, v{GR+2}\nv_and_b32 v{VT+4}, 0xffff0000, v{GR}\nv_and_b32 v{VT+1}, 0xffff0000, v{VT+1}\nv_rcp_f32 v{VT+4}, v{VT+4}\nv_sub_f32 v{VT+1}, v{GR+2}, v{VT+1}\nv_cvt_pk_bf16_f32 v{FA_}, v{GR+2}, v{VT+1}")
            sp = [spread(r).split("\n") for r in (FB_, FB_ + 1, FA_)]
            q(f"v_mul_f32 v{VC1}, {LOG2E}, v{VT+4}\nv_mul_f32 v{VC1+4}, {LOG2E}, v{VT+4}")
            for x in sp: q(x[0])
            q(f"v_permlane32_swap_b32 v{VC1}, v{VC1+4}")
            for x in sp: q(x[1])
            q(f"v_mov_b32 v{VC1+2}, v{VC1}\nv_mov_b32 v{VC1+6}, v{VC1+4}")
            for x in sp: q(x[2])
            q(f"v_permlane16_swap_b32 v{VC1}, v{VC1+2}\nv_permlane16_swap_b32 v{VC1+4}, v{VC1+6}")
            p.extend(interleave(mm[2:], q.items))
            fixm = [I(f"v_mfma_f32_16x16x16_bf16 {v(acc16(f,t),4)}, {v(FA_+2*f,2)}, {v(FB_+2*t,2)}, {v(acc16(f,t),4)}") for F_ in range(2) for t in range(4) for f in (2 * F_, 2 * F_ + 1)]
            p.extend(fixm[:c.fix0]); fixm = fixm[c.fix0:]
        else:
            mm = mfma1(27)
            p.extend(mm[:1])
            self.tagged_check(gloads, [GR + 1, GR + 3], VT + 1)
            self.stamp("granules", sets=(0, 1, 3))
            q = Prog()
            q(f"s_mov_b32 s{S_X}, 0x01000100\nv_perm_b32 v{FB_}, v{GR}, v{GR}, s{S_X}\nv_lshrrev_b32 v{FB_+1}, 16, v{GR}\nv_xor_b32 v{FB_}, 0x80008000, v{FB_}")
            q(f"v_cvt_pk_bf16_f32 v{VT+1}, v{GR+2}, v{GR+2}\nv_mov_b32 v{FB_+2}, 0\nv_and_b32 v{VT+1}, 0xffff0000, v{VT+1}\nv_mov_b32 v{FB_+3}, 0\nv_sub_f32 v{VT+1}, v{GR+2}, v{VT+1}")
            q(f"v_mov_b32 v{FA_+1}, v{VB1}\nv_cvt_pk_bf16_f32 v{FA_}, v{GR+2}, v{VT+1}\nv_mov_b32 v{FA_+2}, 0\nv_mov_b32 v{FA_+3}, 0\nv_and_b32 v{VT+1}, 0xffff0000, v{GR}")
            q(f"v_permlane32_swap_b32 v{FB_}, v{FB_+2}\nv_permlane32_swap_b32 v{FB_+1}, v{FB_+3}\nv_permlane32_swap_b32 v{FA_}, v{FA_+2}\nv_permlane32_swap_b32 v{FA_+1}, v{FA_+3}")
            q(f"v_rcp_f32 v{VT+1}, v{VT+1}")
            p.extend(interleave(mm[1:], q.items))
            for fi, ti in ((0, 0), (0, 1), (1, 0), (1, 1)):
                a = v(ACC + 32 * fi + 16 * ti, 16)
                p(f"v_mfma_f32_32x32x8_bf16 {a}, {v(FA_+2*fi,2)}, {v(FB_+2*ti,2)}, {a}")
                if (fi, ti) == (0, 0): p(f"v_mul_f32 v{VC1}, {LOG2E}, v{VT+1}\nv_mul_f32 v{VC1+2}, {LOG2E}, v{VT+1}")
                if (fi, ti) == (0, 1): p(f"v_permlane32_swap_b32 v{VC1}, v{VC1+2}")
                if (fi, ti) == (1, 0) and c.mish_pk: p(f"v_mov_b32 v{VC1+1}, v{VC1}\nv_mov_b32 v{VC1+3}, v{VC1+2}")
        MT, MO = AB + 16, AB + 48
        def mish_group(a, ti, o, tset):
            t = MT + 16 * tset; u = t + 8
            r = []
            if c.mish_pk:
                for i in range(0, 8, 2): r.append(f"v_pk_mul_f32 {v(t+i,2)}, {v(a+i,2)}, {v(VC1+2*ti,2)}")
                for i in range(8): r.append(f"v_exp_f32 v{t+i}, v{t+i}")
                for i in range(0, 8, 2): r.append(f"v_pk_fma_f32 {v(u+i,2)}, {v(t+i,2)}, 0.5, 1.0 op_sel_hi:[1,0,0]")
                for i in range(0, 8, 2): r.append(f"v_pk_fma_f32 {v(u+i,2)}, {v(t+i,2)}, {v(u+i,2)}, 1.0 op_sel_hi:[1,1,0]")
                for i in range(8): r.append(f"v_rcp_f32 v{u+i}, v{u+i}")
                for i in range(0, 8, 2): r.append(f"v_pk_fma_f32 {v(u+i,2)}, {v(a+i,2)}, {v(u+i,2)}, {v(a+i,2)} neg_lo:[1,0,0] neg_hi:[1,0,0]")
            else:
                for i in range(8): r.append(f"v_mul_f32 v{t+i}, v{a+i}, v{VC1+2*ti}")
                for i in range(8): r.append(f"v_exp_f32 v{t+i}, v{t+i}")
                for i in range(8): r.append(f"v_fma_f32 v{u+i}, v{t+i}, 0.5, 1.0")
                for i in range(8): r.append(f"v_fma_f32 v{u+i}, v{t+i}, v{u+i}, 1.0")
                for i in range(8): r.append(f"v_rcp_f32 v{u+i}, v{u+i}")
                for i in range(8): r.append(f"v_fma_f32 v{u+i}, -v{a+i}, v{u+i}, v{a+i}")
            if "1" in c.diag: r = r[:len(r) // 2]; u = a
            for i in range(4): r.append(f"v_cvt_pk_bf16_f32 v{o+i}, v{u+2*i}, v{u+2*i+1}")
            return [I(x) for x in r]
        stok = {}
        def own_flag(st, q):
            if "A" in c.sflag:
                q(f"s_add_u32 s{T}, s{S_FAW}, {512*st}"); q.wait(stok[st]); q(f"s_atomic_swap s{S_TAG}, {s(R_WS,2)}, s{T}")
                return
            q.wait(stok[st])
            q(f"s_mov_b64 exec, 1\nbuffer_store_dword v{VT}, off, {s(R_WS,4)}, s{S_FAW} offset:{512*st} {c.fa_st}\ns_mov_b64 exec, -1")
        body = []
        gi = 0
        for st in range(4):
            for ti in range(2):
                o = MO + 4 * (gi % 4)
                if c.h16:
                    mg = mish_group(ACC + 8 * gi, gi & 3, o, gi & 1)
                    body += interleave(mg, fixm, ratio=0.3) if gi == 0 else mg
                else: body += mish_group(ACC + 32 * (st >> 1) + 16 * ti + 8 * (st & 1), ti, o, gi & 1)
                q = Prog()
                if ("7" in c.diag and gi < 7) or ("8" in c.diag and gi % 2 == 0): pass
                elif c.g16: stok[st] = q.tok(f"buffer_store_dwordx4 {v(o,4)}, v{VST}, {s(R_WS,4)}, s{S_ACTW} offen offset:{(gi&3)*1024 if c.h16 else ti*2048+(st&1)*512} {c.act_st}")
                else: stok[st] = q.tok(f"buffer_store_dwordx4 {v(o,4)}, v{VL16}, {s(R_WS,4)}, s{S_ACTW} offen offset:{ti*TS if TS < 4096 else 0} {c.act_st}")
                if c.g16:
                    if gi == 3: q(f"s_add_u32 s{S_ACTW}, s{S_ACTW}, {SS}")
                elif gi < 7 and TS >= 4096: q(f"s_add_u32 s{S_ACTW}, s{S_ACTW}, {TS if ti == 0 else SS - TS}")
                elif gi < 7 and ti == 1: q(f"s_add_u32 s{S_ACTW}, s{S_ACTW}, {SS}")
                if ti == 1: self.stamp(f"s{st}", q, sets=(3,))
                if ti == 1 and st - c.flag_lag in c.fstages: own_flag(st - c.flag_lag, q); self.stamp(f"f{st-c.flag_lag}", q, sets=(3,))
                body.append(q.items)
                gi += 1
        k0 = int(len(body) * c.mish_skip)
        p.extend(interleave(body[:k0], [])); p.extend(interleave(body[k0:], w2_ops(c.w2_mish, 12) + [[]]))
        self.stamp("mish", sets=(0, 4))
        rest = [st for st in c.fstages if st >= 4 - c.flag_lag]
        def flags_rest():
            for st in rest: own_flag(st, p)
        if c.prio_a1: p(f"s_setprio {c.prio_a1}")
        p(f"s_load_dwordx2 {s(R_LD,2)}, s[0:1], 0\ns_load_dwordx2 {s(R_OUT,2)}, s[0:1], 104\ns_mov_b32 s{R_LD+2}, {2048*896}\ns_mov_b32 s{R_OUT+2}, {2048*896}\ns_mov_b32 s{R_OUT+3}, 0x20000")
        m0_ = 28 - (c.tail_m if c.tail_ld else 0)
        aord = [(n, ti) for n in range(m0_) for ti in range(2)] + [(n, ti) for ti in range(2) for n in range(m0_, 28)]
        alast = [None]
        t0_ = 28 - 2 * c.tail16
        seq = list(range(t0_)) + list(range(t0_, 28, 2)) + list(range(t0_ + 1, 28, 2))
        def load_act(k):
            if c.g16:
                n = seq[k]; m = n >> 1
                if alast[0] != m: p(f"s_add_u32 s{S_Y}, s{S_ACTR}, {(m>>1)*PS + (m&1)*SS}")
                alast[0] = m
                for j in range(2): p(f"buffer_load_dwordx4 {v(areg(n)+4*j,4)}, v{VL16}, {s(R_WS,4)}, s{S_Y} offen offset:{(n&1)*2048+j*1024} {c.act_ld}")
                return
            for n, ti in aord[2 * k: 2 * k + 2]:
                if "a" in c.diag and n >= 7: continue
                assert n // 7 <= seen[0]
                far = ti * TS if TS >= 4096 else 0
                if alast[0] != n or TS >= 4096: p(f"s_add_u32 s{S_Y}, s{S_AO[n%7]}, {(n//7)*SS+far}" if c.rot2 else f"s_add_u32 s{S_Y}, s{S_ACTR}, {(n%7)*PS + (n//7)*SS+far}")
                alast[0] = n
                p(f"buffer_load_dwordx4 {v(areg(n)+4*ti,4)}, v{VL16}, {s(R_WS,4)}, s{S_Y} offen offset:{ti*TS-far} {c.act_ld}")
        seen = [-1, 0]
        def next_flags():
            st = min(x for x in (c.cstages or c.fstages) if x > seen[0])
            if st != seen[1]: p(f"s_add_u32 s{S_FAR}, s{S_FAR}, {512*(st-seen[1])}"); seen[1] = st
            return self.flag_load("A", S_FAR, 7, VFL)
        def check_flags(f, **kw):
            self.flag_check(f, VT + 1, **kw); seen[0] = seen[1]
            self.stamp(f"act{seen[0]}", sets=(0, 2, 3))
        def reads_upto(m):
            while nw[1] < min(m, 28): p.extend(read_w2(nw[1])[0]); nw[1] += 1
        def dmas_upto(m):
            while nw[0] < min(m, 28):
                if nw[0] == 24 and c.nx:
                    p(f"s_mul_i32 s{T+1}, s{S_WAVE}, {2048*c.nx}\ns_add_u32 s{T+1}, s{T+1}, {L_X}\ns_sub_u32 s{S_D0}, s{T+1}, s{S_RING}")
                    if c.g16: p(f"s_sub_u32 s{S_D1}, {2*SLOT}, s{S_D0}")
                    else: p(f"v_add_u32 v{VFL}, s{S_D0}, v{VW2A}\nv_add_u32 v{VFL+1}, s{S_D0}, v{VW2A+1}")
                    p(f"v_and_b32 v14, 3, v0\nv_lshlrev_b32 v14, 2, v14\nv_add_u32 v14, {L_CNT}, v14")
                    self.lds_wait(14, VT + 1, 1)
                if (nw[0] >> 2) in pred and not xtra(nw[0]): assert nw[1] > nw[0] - 12
                for it in dma_w2(nw[0]): p.extend(it)
                nw[0] += 1
        D = c.adepth
        lead = c.flead
        fl = None
        na = 0
        for op in c.pre_loop.split():
            k = int(op[1:]) if len(op) > 1 else 0
            if op[0] == "R": reads_upto(k)
            elif op[0] == "D": dmas_upto(k)
            elif op[0] == "F":
                if rest: own_flag(rest.pop(0), p)
            elif op[0] == "W": p("s_waitcnt lgkmcnt(0)")
            elif op[0] == "L": fl = next_flags()
            elif op[0] == "C":
                assert not rest or seen[1] < rest[0]
                check_flags(fl, on_miss=flags_rest if rest else None); fl = None
            elif op[0] == "A":
                while na < k: load_act(na); na += 1
            elif op[0] == "V": p("s_waitcnt vmcnt(0)")
            elif op[0] == "T": self.lds_wait(VT + 5, VT + 1, 1)
            elif op[0] == "P": p(f"s_setprio {k}")
            if op[0] not in "L": self.stamp(op + "_" + str(len(self.stamp_names["A"])), sets=(4,))
        assert D <= na <= 8 and nw[1] >= c.rdepth and not rest
        M0 = nw[0]
        if c.prio_a1 != c.prio_a2: p(f"s_setprio {c.prio_a2}")
        self.stamp("flagA", sets=(0, 2, 3))
        assert D <= 7 and c.rdepth <= 4 and c.tail_m <= 5
        main = p
        VALL = 14
        F = dict(VT=VT, XO=9, PA=10, SA=12, STA=13, XI=184, RG=30, RC=116, XF=100, PV=AB, SV=176, SF=108, w=S_WAVE, sXO=S_ACTW, sST=S_X, OUT=R_OUT)
        if c.g16: F.update(XO=5, XI=6)
        f15 = lambda: self.fin_addr(1, F, 0)
        def f16():
            self.fin_addr(1, F, 1)
            if not c.nx: p(f"v_lshlrev_b32 v{VALL}, 2, v{VT+3}\nv_add_u32 v{VALL}, {L_CNT}, v{VALL}")
        def f17():
            if c.g16:
                p(f"v_lshrrev_b32 v{VT+1}, 4, v0\nv_and_b32 v{VT+2}, 7, v0\nv_xor_b32 v{VT+1}, v{VT+1}, v{VT+2}\nv_and_b32 v{VT+2}, 15, v0\nv_lshl_add_u32 v{VT+1}, v{VT+2}, 4, v{VT+1}\nv_lshl_add_u32 v{VD}, v{VT+1}, 4, s{S_RING}")
                for k in range(1, 4): p(f"v_xor_b32 v{VD+k}, {64*k}, v{VD}")
                return
            p(f"v_and_b32 v{VT+3}, 31, v0\nv_lshrrev_b32 v{VT+1}, 5, v0\nv_and_b32 v{VT+2}, 7, v0\nv_xor_b32 v{VT+1}, v{VT+1}, v{VT+2}\nv_bfe_u32 v{VT+2}, v0, 4, 1\nv_lshl_or_b32 v{VT+1}, v{VT+2}, 3, v{VT+1}")
            p(f"v_lshlrev_b32 v{VT+1}, 4, v{VT+1}\nv_lshl_add_u32 v{VT+1}, v{VT+3}, 8, v{VT+1}\nv_add_u32 v{VD}, s{S_RING}, v{VT+1}")
            for k in range(1, 8): p(f"v_xor_b32 v{VD+k}, {32*k}, v{VD}")
        fin = dict(zip(c.fin_at, (f15, f16, f17, lambda: self.fin_loads(F))))
        tail = []
        for n in range(28):
            mm = []
            for di, ti in ((0, 0), (1, 0), (0, 1), (1, 1)):
                a = v(ACC + 32 * di + 16 * ti, 16)
                mm.append(I(f"v_mfma_f32_32x32x16_bf16 {a}, {v(w2reg(n)+4*di,4)}, {v(areg(n)+4*ti,4)}, {'0' if n == 0 else a}"))
            rd_to, dm_to = n + 1 + c.rdepth, n + 1 + c.w2_lead
            if c.g16:
                sn = seq[n]; mm = []
                for j in range(2):
                    for di in range(4):
                        a = v(ACC + 16 * (2 * (sn & 1) + j) + 4 * di, 4)
                        mm.append(I(f"v_mfma_f32_16x16x32_bf16 {a}, {v(wpair(sn>>1)+4*di,4)}, {v(areg(sn)+4*j,4)}, {'0' if sn < 2 else a}"))
                donep = min(seq[n:]) >> 1
                rd_to = max(rd_to, 2 * (max(seq[n:n + 3]) >> 1) + 2)
                rd_to = min(rd_to, max(12, 2 * (donep + 3)))
                assert nw[1] >= 2 * (sn >> 1) + 2
            groups = []
            def grab(fn):
                nonlocal p
                p = self.p = Prog(); fn(); its = p.items; p = self.p = main
                return its
            def split(its):
                cur = []
                for it in its:
                    cur.append(it)
                    if isinstance(it, I) and it.kind in ("vmem", "ds", "valu"): groups.append(cur); cur = []
                if cur: groups.append(cur)
            cur = []
            for it in grab(lambda: reads_upto(rd_to)):
                cur.append(it)
                if isinstance(it, I) and it.kind == "ds": groups.append(cur); cur = []
            if na <= n + D < 28:
                if (n + D) // 7 > seen[0]:
                    groups.append(grab(lambda: check_flags(fl))); fl = None
                split(grab(lambda: load_act(n + D)))
            split(grab(lambda: dmas_upto(min(nw[1] + 12 - c.w2_gap, max(dm_to, M0 + int((n + 1) * c.w2_rate))))))
            if fl is None and min(27, n + D + lead) // 7 > seen[0]:
                def nf():
                    nonlocal fl
                    if "A" in c.spoll: p("s_waitcnt lgkmcnt(0)")
                    fl = next_flags()
                groups.append(grab(nf))
            if n in fin: split(grab(fin[n]))
            if c.g16:
                if n >= 28 - c.tail16: assert not groups; tail += mm; continue
            elif n >= 28 - c.tail_m:
                tail += mm[2:]; mm = mm[:2]
            if c.g2_mix:
                isv = lambda gr: any(isinstance(it, I) and it.kind == "vmem" for it in gr)
                ds = [gr for gr in groups if any(isinstance(it, I) and it.mn.startswith("ds_read_b64_tr") for it in gr)]
                rest = [gr for gr in groups if not any(gr is x for x in ds)]
                nm = len(mm)
                for k in range(nm):
                    p.extend([mm[k]])
                    for gr in ds[k * len(ds) // nm:(k + 1) * len(ds) // nm]: p.extend(gr)
                    cut = lambda x: 0 if x == 0 else min(len(rest), (x + c.mix_sh) * len(rest) // nm)
                    for gr in rest[cut(k):cut(k + 1)]: p.extend(gr)
            else:
                p.extend(mm)
                for gr in groups: p.extend(gr)
            if n in (0, 3, 6, 10, 13, 17, 20): self.stamp(f"n{n}", sets=(0, 2, 4) if n in (0, 13) else (2,))
        pw = lambda ti: [I(f"ds_write_b128 v{VD+4*di+g4}, {v(ACC+32*di+16*ti+4*g4,4)} offset:{ti*SLOT}") for di in range(2) for g4 in range(4)]
        if c.g16: pw = lambda ti: [I(f"ds_write_b128 v{VD+(di^(2*j))}, {v(ACC+16*(2*ti+j)+4*di,4)} offset:{ti*SLOT+j*4096}") for j in range(2) for di in range(4)]
        if tail: p.extend(tail[:c.tail_k]); p.extend(interleave(tail[c.tail_k:], pw(0), ratio=c.tail_r))
        else: p.extend(pw(0))
        self.lds_post(VT + 5, VT, 5)
        self.stamp("gemm2", sets=(0, 2, 3))
        w1_ = pw(1); x_ = self.fin_prep(F); s_ = self.fin_sprep(F)
        p.extend(w1_[:4]); self.lds_peek(VT + 5, VT + 2, 7); p.extend(w1_[4:])
        self.lds_post(VT + 5, VT, 6)
        self.stamp("gate", sets=(0, 2, 3))
        self.lds_check(VT + 5, VT + 2, 7, fill=lambda: p.extend(x_[:6]))
        self.fin_sread(F); self.lds_peek(VALL, VT + 1, 6); p.extend(x_[6:])
        self.lds_check(VALL, VT + 1, 6, fill=lambda: p.extend(s_[:5]))
        self.stamp("sin", sets=(0, 2, 3))
        self.fin_out(F, s_[5:])
        self.stamp("end", sets=(0, 2, 3, 4, 9))
        self.stamp_flush(1)
        p("s_endpgm")

    def gather_table(self):
        import numpy as np
        def rb(l):
            u = np.array([l], np.float32).view(np.uint32)
            return int((((u + 0x7FFF + ((u >> 16) & 1)) >> 16) << 16).view(np.float32)[0])
        rows = list(range(8)) + list(range(128, 136)) + [256, 258, 260, 262, 384, 386, 388, 390, 512, 516, 640, 644, 768, 772, 896, 900] + [1024 + 128 * k for k in range(9)]
        pos = {}
        for i, a in enumerate(rows):
            tile, row = i >> 4, i & 15
            for col in range(16): pos[a + 8 * col] = tile * 1024 + ((row >> 2) * 16 + col) * 16 + (row & 3) * 4
        zero = 2 * 1024 + 48 * 16
        at = lambda l: zero if l < 0 else pos[rb(l)]
        at1 = lambda l: zero if l > 1028 else at(l)
        words = []
        for mh in range(2):
            for half in range(2):
                for lane in range(64):
                    hi = 1023 - 8 * (64 * mh + lane)
                    e = [at(hi - i) for i in range(11)]
                    if mh == 0: d = 127 - lane; e += [pos[16 * d + 16], pos[16 * d + 8], zero, zero, zero]
                    elif lane < 16: top = 1055 - 8 * (lane >> 2) - (lane & 3); e += [at1(top - j) for j in (0, 1, 2, 3, 7)]
                    else: e += [zero] * 5
                    e = e[8 * half: 8 * half + 8]
                    words += [e[2 * k] | (e[2 * k + 1] << 16) for k in range(4)]
        return words

    def role_b(self):
        p, c = self.p, self.c
        p.label("L_roleB")
        self.role_start(True); self.stamp_begin("B")
        S_BW, S_LDT, S_DSK, S_STW, S_CHN, S_MH = B_BW, B_LDT, B_DSK, B_STW, S_WF, S_WT
        S_FXR, S_XTR, S_FSW, S_FSR, S_STR = 74, 75, 76, 77, S_CT
        S_X, S_Y = 78, 79
        T = S_T
        VL16, VP, VGT, VG, VSW, VSR, VT = 9, B_VP, 120, 16, 46, 47, 50
        VRW, VTW, VTZ, VTA, VUA, VUW, VCN, VONE, VEXW, VEXR, VTAG, VUZ, VFL = range(32, 45)
        self.load_epoch()
        self.loader_base()
        ctok = {}
        if c.a_chunks < 7:
            if c.rot1: p(f"s_cmp_ge_u32 s{S_J}, {7-c.a_chunks}\ns_cselect_b32 s{T}, {c.a_chunks-7}, {c.a_chunks}\ns_mul_i32 s{T}, s{T}, s{S_CSTR}\ns_add_u32 s{S_SOFF}, s{S_SOFF}, s{T}")
            else: p(f"s_mul_i32 s{T}, s{S_CSTR}, {c.a_chunks}\ns_add_u32 s{S_SOFF}, s{S_SOFF}, s{T}")
        p(f"v_lshlrev_b32 v{VL16}, 4, v0\ns_lshl3_add_u32 s{S_STW}, s{S_STW}, {WS_ST}")
        if c.tlb_at >= 0:
            p(f"s_lshl1_add_u32 s93, s{S_RT}, s{S_WT}\ns_mul_i32 s93, s93, 14\ns_add_u32 s93, s93, s{S_CT}\ns_lshl1_add_u32 s93, s93, s{S_WF}\ns_lshl_b32 s93, s93, 12\ns_add_u32 s93, s93, {WS_ACT}")
        srd(p, R_2, P_W2, 1792 * 896)
        late = Prog(); q = late
        q(f"s_lshl2_add_u32 s{S_R2}, s{S_XCD}, s{S_JR}")
        q(f"s_lshr_b32 s{T}, s{S_CP}, 5\ns_lshl2_add_u32 s{S_FXR}, s{T}, s{S_BW}\ns_and_b32 s{T}, s{S_CP}, 3\ns_lshl2_add_u32 s{S_FXR}, s{S_FXR}, s{T}\ns_lshl_b32 s{S_FXR}, s{S_FXR}, 7\ns_add_u32 s{S_FXR}, s{S_FXR}, {WS_FX}\ns_lshr_b32 s{T}, s{S_CP}, 4")
        q(f"s_mul_i32 s{S_XTR}, s{S_CP}, {2*c.xts}\ns_lshl_b32 s{T+1}, s{S_BW}, 10\ns_add_u32 s{S_XTR}, s{S_XTR}, s{T+1}\ns_add_u32 s{S_XTR}, s{S_XTR}, {WS_XT}")
        q(f"s_mul_i32 s{S_FSW}, s{S_BW}, 14\ns_add_u32 s{S_FSW}, s{S_FSW}, s{T}\ns_lshl_b32 s{S_FSW}, s{S_FSW}, 7\ns_and_b32 s{T+1}, s{S_CP}, 15\ns_add_u32 s{S_FSW}, s{S_FSW}, s{T+1}\ns_lshl2_add_u32 s{S_FSW}, s{S_FSW}, {WS_FS}")
        q(f"s_lshl1_add_u32 s{T}, s{S_C2}, s{S_CHN}")
        q(f"s_lshr_b32 s{T+1}, s{S_R2}, 3\ns_mul_i32 s{S_FSR}, s{T+1}, 14\ns_add_u32 s{S_FSR}, s{S_FSR}, s{T}\ns_lshl2_add_u32 s{S_FSR}, s{S_FSR}, s{S_JR}\ns_lshl_b32 s{S_FSR}, s{S_FSR}, 7\ns_add_u32 s{S_FSR}, s{S_FSR}, {WS_FS}")
        q(f"s_lshl_b32 s{S_STR}, s{T}, 9\ns_add_u32 s{S_STR}, s{S_STR}, s{S_R2}\ns_lshl1_add_u32 s{S_STR}, s{S_STR}, s{S_MH}\ns_lshl_b32 s{S_STR}, s{S_STR}, 7\ns_add_u32 s{S_STR}, s{S_STR}, {WS_ST}")
        q(f"v_and_b32 v{VT}, 15, v0\nv_lshrrev_b32 v{VT+1}, 4, v0")
        q(f"s_mul_i32 s{T}, s{S_BW}, 8448\nv_mul_u32_u24 v{VT+2}, 528, v{VT}\nv_and_b32 v{VT+3}, 256, v{VL16}\nv_add3_u32 v{VT+2}, v{VT+2}, v{VT+3}, s{T}\nv_lshrrev_b32 v{VT+3}, 5, v0\nv_lshl_add_u32 v{VSR}, v{VT+3}, 4, v{VT+2}")
        q(f"s_lshl_b32 s{T}, s{S_BW}, 13\nv_add_u32 v{VEXW}, s{T}, v{VL16}")
        q(f"s_mul_i32 s{T}, s{S_BW}, 3072\ns_add_u32 s{T}, s{T}, {L_RAW}\nv_add_u32 v{VRW}, s{T}, v{VL16}")
        q(f"s_mul_i32 s{T}, s{S_CHN}, {TCH}\ns_add_u32 s{T}, s{T}, {L_TAB}\ns_lshl_b32 s{T+1}, s{S_MH}, 10\ns_add_u32 s{T+1}, s{T+1}, s{T}\nv_add_u32 v{VTW}, s{T+1}, v{VL16}")
        q(f"v_sub_u32 v{VT+2}, 3, v{VT}\nv_and_b32 v{VT+2}, 3, v{VT+2}\nv_mul_u32_u24 v{VT+3}, {TCP-2}, v{VT+2}\nv_lshl_add_u32 v{VT+3}, v{VT+1}, 4, v{VT+3}\nv_lshlrev_b32 v{VT+2}, 1, v{VT}\nv_sub_u32 v{VT+3}, v{VT+3}, v{VT+2}")
        q(f"s_lshl_b32 s{T+1}, s{S_MH}, 8\ns_sub_u32 s{T}, s{T}, s{T+1}\ns_add_u32 s{T}, s{T}, {2*15}\nv_add_u32 v{VTA}, s{T}, v{VT+3}")
        q(f"s_mul_i32 s{S_X}, s{S_CHN}, 4608\ns_sub_u32 s{T}, s{S_X}, s{T+1}\ns_add_u32 s{T}, s{T}, {L_U+2*(240-96)}\nv_lshlrev_b32 v{VT+2}, 5, v{VT}\nv_lshl_add_u32 v{VT+2}, v{VT+1}, 4, v{VT+2}\nv_add_u32 v{VUA}, s{T}, v{VT+2}")
        q(f"s_add_u32 s{S_X}, s{S_X}, s{T+1}\ns_add_u32 s{S_X}, s{S_X}, {L_U}\nv_lshl_add_u32 v{VUZ}, v0, 2, s{S_X}")
        q(f"s_lshl_b32 s{T}, s{S_BW}, 10\ns_add_u32 s{T}, s{T}, {L_U+512}\nv_add_u32 v{VUW}, s{T}, v{VL16}")
        q(f"s_lshl_b32 s{T}, s{S_BW}, 11\ns_add_u32 s{T}, s{T}, {L_EX}\nv_add_u32 v{VEXR}, s{T}, v{VL16}")
        VZ = 56
        for i in range(4): q(f"v_mov_b32 v{VZ+i}, 0")
        q(f"s_lshl2_add_u32 s{T}, s{S_BW}, {L_CNT}\nv_mov_b32 v{VONE}, s{T}\nv_and_b32 v{VCN}, 3, v0\nv_lshlrev_b32 v{VCN}, 2, v{VCN}\nv_add_u32 v{VCN}, {L_CNT}, v{VCN}")
        VW2D = 48; S_WOFF, S_WIDX, S_RING = 88, 89, 91
        q(f"v_lshrrev_b32 v{VT+2}, 3, v0\nv_mul_u32_u24 v{VT+2}, 896, v{VT+2}\nv_bfe_u32 v{VT+3}, v0, 4, {2 if c.g16 else 1}\nv_lshlrev_b32 v{VT+3}, {1 if c.g16 else 2}, v{VT+3}\nv_xor_b32 v{VT+3}, v0, v{VT+3}\nv_and_b32 v{VT+3}, 7, v{VT+3}")
        q(f"v_lshl_add_u32 v{VW2D}, v{VT+3}, 4, v{VT+2}\nv_add_u32 v{VW2D+1}, {(14336 if c.g16 and not c.h16 else 7168)-1024}, v{VW2D}")
        if c.rot2 == 2: q(f"s_lshl1_add_u32 s{S_WIDX}, s{S_JR}, s{S_C2}\ns_cmp_ge_u32 s{S_WIDX}, 7\ns_cselect_b32 s{T}, 7, 0\ns_sub_u32 s{S_WIDX}, s{S_WIDX}, s{T}")
        else: q(f"s_mov_b32 s{S_WIDX}, {'s%d' % S_C2 if c.rot2 else 0}")
        q(f"s_mul_i32 s{S_WOFF}, s{S_BW}, 7\ns_add_u32 s{S_WOFF}, s{S_WOFF}, s{S_WIDX}\ns_mul_i32 s{S_WOFF}, s{S_WOFF}, {64*7}\ns_add_u32 s{S_WOFF}, s{S_WOFF}, s{S_C2}\ns_lshl_b32 s{S_WOFF}, s{S_WOFF}, 7")
        q(f"s_lshl_b32 s{S_RING}, s{S_BW}, 13\ns_add_u32 s{S_RING}, s{S_RING}, {L_RING}")
        assert not c.qperm and c.b_pre == 1.0
        if "X" not in c.spoll: q(f"v_min_u32 v{VFL}, 7, v0\nv_lshlrev_b32 v{VFL}, 2, v{VFL}")
        k = int(len(late.items) * c.b_pre)
        p.extend(late.items[:k]); late.items = late.items[k:]
        T = 90
        S_TCH = 92; nt = [0]
        def touch_upto(m):
            while nt[0] < m:
                p(f"s_buffer_load_dwordx2 s[94:95], {s(R_2,4)}, s{S_TCH}\ns_add_u32 s{S_TCH}, s{S_TCH}, 128"); nt[0] += 1
                p.items.append(Marker("forget", {"s94", "s95"}))
        if c.s_touch: p(f"s_lshl2_add_u32 s{S_TCH}, s{S_CP}, s{S_BW}\ns_mul_i32 s{S_TCH}, s{S_TCH}, {14*128}\ns_add_u32 s{S_TCH}, s{S_TCH}, 60")
        self.make_tag()
        p(f"s_lshl_b32 s{T}, s{S_CHN}, 4\ns_lshr_b32 s{S_LDT}, s{S_LDT}, s{T}\ns_lshl_b32 s{S_LDT}, s{S_LDT}, 16\ns_lshr_b32 s{S_DSK}, s{S_DSK}, s{T}\ns_lshl_b32 s{S_DSK}, s{S_DSK}, 16")
        VDT = 60
        p(f"v_mov_b32 v{VDT}, {LOG2E}\nv_mul_f32 v{VDT}, s{S_LDT}, v{VDT}\nv_exp_f32 v{VDT}, v{VDT}\nv_mov_b32 v{VTAG}, s{S_TAG}\nv_cvt_pk_bf16_f32 v{VDT}, v{VDT}, v{VDT}\nv_and_b32 v{VDT}, 0xffff0000, v{VDT}\nv_mov_b32 v{VDT+1}, v{VDT}")
        if c.s_touch: touch_upto(c.s_touch[0])
        self.stamp("pre", sets=(1,))
        Z1, Z2, Z4, Z8, Z128, XB, XC, XDD, TM = 64, 68, 72, 76, 80, 84, 88, 92, 96
        AL, BE, UB, CV = 108, 110, 112, 120
        YF, XF, KV, KA = 128, 160, 128, 244
        units = []
        def unpack(d, src): p(f"v_lshlrev_b32 v{d}, 16, v{src}\nv_and_b32 v{d+1}, 0xffff0000, v{src}")
        def mul2(d, a, b, pk):
            if pk: p(f"v_pk_mul_f32 {v(d,2)}, {v(a,2)}, {v(b,2)}")
            else: p(f"v_mul_f32 v{d}, v{a}, v{b}\nv_mul_f32 v{d+1}, v{a+1}, v{b+1}")
        def cmul_(d, a, b, pk):
            assert d != b
            mul2(TM, a, b, pk); mul2(TM + 2, a, b + 2, pk)
            if pk:
                p(f"v_pk_fma_f32 {v(d,2)}, {v(a+2,2)}, {v(b+2,2)}, {v(TM,2)} neg_lo:[1,0,0] neg_hi:[1,0,0]")
                p(f"v_pk_fma_f32 {v(d+2,2)}, {v(a+2,2)}, {v(b,2)}, {v(TM+2,2)}")
            else:
                for m in range(2): p(f"v_fma_f32 v{d+m}, -v{a+2+m}, v{b+2+m}, v{TM+m}")
                for m in range(2): p(f"v_fma_f32 v{d+2+m}, v{a+2+m}, v{b+m}, v{TM+2+m}")
        def cmul(d, a, b): units.append((8, lambda pk: cmul_(d, a, b, pk)))
        def put(e, a, conj):
            ng = "-" if conj else ""
            units.append((2, lambda pk: (have.add(e), p(f"v_cvt_pk_bf16_f32 v{KV+2*e}, v{a}, {ng}v{a+2}\nv_cvt_pk_bf16_f32 v{KV+2*e+1}, v{a+1}, {ng}v{a+3}"))))
        have = {0}
        def getfr(base):
            return [I(f"ds_read_b128 {v(base+4*fr,4)}, v{VSR} offset:{fr*32}") for fr in range(8)]
        def kmfma(tile, base):
            a = v(KA + 4 * tile, 4)
            return [I(f"v_mfma_f32_16x16x32_bf16 {a}, {v(base+4*fr,4)}, {v(YF+4*fr,4)}, {'0' if (fr == 0 and tile) else a}") for fr in range(8)]
        def zpow_(d, lg, pk):
            for m in range(2):
                if lg: p(f"v_ldexp_f32 v{TM+m}, v{AL+m}, {lg}\nv_ldexp_f32 v{TM+2+m}, v{BE+m}, {lg}")
                a, b = (TM + m, TM + 2 + m) if lg else (AL + m, BE + m)
                p(f"v_exp_f32 v{TM+m}, v{a}\nv_fract_f32 v{TM+2+m}, v{b}")
            for m in range(2): p(f"v_cos_f32 v{d+m}, v{TM+2+m}\nv_sin_f32 v{d+2+m}, v{TM+2+m}")
            mul2(d, d, TM, pk); mul2(d + 2, d + 2, TM, pk)
        def zpow(d, lg): units.append((22, lambda pk: zpow_(d, lg, pk)))
        p(f"v_mov_b32 v{KV}, 0x3f80\nv_mov_b32 v{KV+1}, 0x3f80")
        unpack(AL, VP); unpack(BE, VP + 1)
        self.stamp("params", sets=(0, 1))
        mul2(AL, AL, VDT, True); mul2(BE, BE, VDT, True)
        for m in range(2): p(f"v_mul_f32 v{AL+m}, {LOG2E}, v{AL+m}\nv_mul_f32 v{BE+m}, 0.15915494, v{BE+m}")
        early_done = [None]
        zpow(Z8, 3)
        put(1, Z8, False)
        prev = Z8
        for r in range(2, 16): cmul(XB, prev, Z8); prev = XB; put(r, XB, False)
        zpow(Z1, 0); zpow(Z128, 7)
        units.append((8, lambda pk: [unpack(UB + 2 * i, VP + 2 + i) for i in range(4)]))
        cmul(XC, UB, UB + 4)
        units.append((4, lambda pk: (mul2(XC, XC, VDT, pk), mul2(XC + 2, XC + 2, VDT, pk))))
        cmul(XB, XC, Z128)
        put(16, XC, True); put(24, XB, True)
        prev = XB
        for r in range(1, 8):
            cmul(XC, XC, Z1); put(16 + r, XC, True)
            cmul(XDD, prev, Z1); prev = XDD; put(24 + r, XDD, True)
        for it in late.items: units.append((1, lambda pk, it=it: p.extend([it])))
        cmul(Z2, Z1, Z1); cmul(Z4, Z2, Z2)
        for k in range(2):
            cmul(XB, XB, Z128); put(32 + 4 * k, XB, True); prev = XB
            for r in range(1, 4): cmul(XC, prev, Z2); prev = XC; put(32 + 4 * k + r, XC, True)
        for k in range(4):
            cmul(XB, XB, Z128); put(40 + 2 * k, XB, True)
            cmul(XC, XB, Z4); put(41 + 2 * k, XC, True)
        for k in range(9): cmul(XB, XB, Z128); put(48 + k, XB, True)
        total = sum(u[0] for u in units)
        cuts = [c.kg_pre] + [c.kg_pre + (total - c.kg_pre) * (i - c.kg_x) / (c.kg_ints - c.kg_x) for i in range(1, 7)]
        X2F = 64
        VCA, VPU, BE9, BO7 = 10, 11, 12, 60
        order = list(range(48, 57)) + list(range(16)) + list(range(32, 48)) + list(range(16, 32))
        lops = []
        for e in order:
            it = [I(f"ds_write_addtid_b32 v{KV+2*e+m} offset:{(e&15)*528+256*m}") for m in range(2)]
            if 36 <= e < 44: it.append(kmfma(2, X2F)[e - 36])
            if e == 46: it += [I(f"v_cndmask_b32 v{KA+8}, 0, v{KA+8}, vcc"), I(f"ds_write_b128 v{VRW}, {v(KA+8,4)} offset:2048")]
            if 20 <= e < 28: it.append(kmfma(1, XF + 32)[e - 20])
            if e == 30: it.append(I(f"ds_write_b128 v{VRW}, {v(KA+4,4)} offset:1024"))
            if e in (15, 31, 47, 56): it += getfr({15: YF, 31: XF, 47: XF + 32, 56: X2F}[e])
            if "2" in c.diag and e < 32 and e % 16 != 15: it = it[2:]
            lops.append(it)
        nl = [0]
        def lds_upto(m):
            while nl[0] < m:
                assert order[nl[0]] in have
                p.extend(lops[nl[0]]); nl[0] += 1
        done = 0; nb = 0; fx = [None]; xt = [None]
        side = []
        def sd(txt, atomic=False):
            q = Prog(); q(txt)
            if atomic: side.append(q.items)
            else: side.extend([it] for it in q.items)
        sd(f"v_and_b32 v{VT}, 15, v0\nv_lshrrev_b32 v{VT+1}, 4, v0\nv_lshlrev_b32 v{VT+2}, 3, v{VT+1}\ns_movk_i32 s{S_Y}, 0x3f80")
        for bd, m in ((BE9, 0x1ff << 4), (BO7, 0x7f << 5)):
            sd(f"v_mov_b32 v{VT+3}, {m}\nv_lshlrev_b32 v{VT+3}, v{VT}, v{VT+3}\nv_lshrrev_b32 v{VT+3}, v{VT+2}, v{VT+3}")
            for d in range(4):
                sd(f"v_bfe_u32 v{VT+4}, v{VT+3}, {2*d}, 1\nv_bfe_u32 v{VT+5}, v{VT+3}, {2*d+1}, 1\nv_lshl_or_b32 v{VT+4}, v{VT+5}, 16, v{VT+4}\nv_mul_u32_u24 v{bd+d}, s{S_Y}, v{VT+4}")
        sd(f"s_mul_i32 s{S_Y}, s{S_MH}, 768\ns_sub_u32 s{S_Y}, 1200, s{S_Y}\nv_add_u32 v{VPU}, s{S_Y}, v{VUA}")
        sd(f"s_mul_i32 s{S_Y}, s{S_CHN}, {TCH}\ns_add_u32 s{S_X}, s{S_Y}, {L_TAB+4*TCP+60}\nv_lshlrev_b32 v{VT+3}, 2, v{VT+1}\nv_sub_u32 v{VT+3}, v{VT+3}, v{VT}\nv_lshl_add_u32 v{VCA}, v{VT+3}, 2, s{S_X}")
        sd(f"s_add_u32 s{S_Y}, s{S_Y}, {L_TAB}\nv_and_b32 v{VT+3}, 3, v0\nv_mul_u32_u24 v{VT+3}, {TCP}, v{VT+3}\nv_lshrrev_b32 v{VT+4}, 2, v0\nv_lshl_add_u32 v{VT+3}, v{VT+4}, 4, v{VT+3}\nv_lshl_add_u32 v{VT+3}, v{VT+1}, 11, v{VT+3}")
        sd(f"v_lshlrev_b32 v{VT+4}, 2, v0\nv_add_u32 v{VT+4}, {4*TCP}, v{VT+4}")
        sd(f"s_cmp_eq_u32 s{S_MH}, 0\ns_cselect_b64 vcc, -1, 0\ns_cselect_b32 s{S_DSK}, s{S_DSK}, 0", True)
        sd(f"v_cndmask_b32 v{VT+3}, v{VT+3}, v{VT+4}, vcc\nv_add_u32 v{VTZ}, s{S_Y}, v{VT+3}")
        sd(f"s_mul_i32 s{S_Y}, s{S_CHN}, 6144\ns_add_u32 s{S_Y}, s{S_Y}, {L_RAW}")
        sd(f"v_mov_b32 v{VT}, s{S_DSK}\nv_cmp_eq_u32 vcc, 0, v0\nv_mov_b32 v{VT+1}, s{S_Y}\nv_mov_b32 v{KA+1}, 0\nv_cndmask_b32 v{KA}, 0, v{VT}, vcc\nv_mov_b32 v{KA+2}, 0\nv_mov_b32 v{KA+3}, 0\nv_cmp_gt_u32 vcc, 48, v0")
        for k in range(16):
            sd(f"v_add_u32_sdwa v{VG+k}, v{VT+1}, v{VGT+(k>>1)} dst_sel:DWORD dst_unused:UNUSED_PAD src0_sel:DWORD src1_sel:WORD_{k&1}")
        def barrier():
            nonlocal nb
            if nb in ctok: p.wait(ctok[nb])
            if nb == c.r_at and c.r_early: p.wait(w2t[c.r_early - 1])
            if nb == 6 and c.r2: assert c.br0 >= 0 and c.r2 <= 8; p.wait(w2t[c.r2 - 1])
            self.stamp(f"atbar{nb}", sets=(0, 1) if nb == 0 else (1,))
            p("s_barrier")
            if nb == 4: self.stamp("bar4", sets=(0, 3))
            if c.s_touch and nb < 4 and c.touch_first: touch_upto(c.s_touch[nb + 1])
            if nb == c.tlb_at:
                for a_ in (93, 93, S_STW):
                    if c.tlb_v: p(f"buffer_load_dword v243, off, {s(R_WS,4)}, s{a_} sc1")
                    else: p(f"s_buffer_load_dword s94, {s(R_WS,4)}, s{a_}"); p.items.append(Marker("forget", {"s94"}))
                    p(f"s_add_u32 s93, s93, {896*4096}")
            mem = []
            if c.a_chunks <= nb + 3 < 7: mem += self.dma_chunk(nb + 3, T, ctok)
            if nb == c.gt_at:
                q = Prog(); q(f"s_lshl_b32 s{T}, s{S_MH}, 11\ns_add_u32 s{T}, s{T}, L_gtab-L_pc")
                for h in range(2): q(f"buffer_load_dwordx4 {v(VGT+4*h,4)}, v{VL16}, {s(R_PC,4)}, s{T} offen offset:{1024*h}")
                mem.append(q.items)
            if nb >= 4 or nb == c.br0:
                while nq[0] < (c.bw2[nb - 4] if nb >= 4 else 4):
                    n = nq[0]; nq[0] += 1
                    pc = (n >> 2) if c.br0 < 0 else (-2 if n < 4 else (n >> 2) - 1)
                    assert pc <= nb - 4 or pc < 0
                    if pc == 3: assert n - 12 < c.r2; pc = 0
                    q = Prog(); q(f"s_add_u32 m0, s{S_RING}, {pc*SLOT + (n&3)*2048}\nbuffer_load_dwordx4 v{VW2D}, {s(R_2,4)}, s{S_WOFF} offen lds")
                    mem.append(q.items); q = Prog()
                    w2t[n] = q.tok(f"buffer_load_dwordx4 v{VW2D+1}, {s(R_2,4)}, s{S_WOFF} offen offset:1024 lds")
                    if c.rot2: q(f"s_cmp_eq_u32 s{S_WIDX}, {(6-n)%7}\ns_cselect_b32 s{T}, {-7*64*896}, 0\ns_add_u32 s{S_WOFF}, s{S_WOFF}, s{T}\ns_add_u32 s{S_WOFF}, s{S_WOFF}, {(64 + (16 if n % 7 == 6 else 0))*896}")
                    elif c.g16: q(f"s_add_u32 s{S_WOFF}, s{S_WOFF}, {(16 if c.h16 else 24 if n & 1 else 8)*896}")
                    else: q(f"s_add_u32 s{S_WOFF}, s{S_WOFF}, {(16 - 6*64 if n % 7 == 6 else 64)*896}")
                    mem.append(q.items)
            s0, s1 = c.side_at
            part = side[(nb - s0) * len(side) // (s1 - s0):(nb + 1 - s0) * len(side) // (s1 - s0)] if s0 <= nb < s1 else []
            if part: assert done == total
            p.extend(interleave(part, mem) if (part and c.side_first) else interleave(mem, part) if mem else interleave(part, []))
            if c.s_touch and nb < 4 and not c.touch_first: touch_upto(c.s_touch[nb + 1])
            if nb < 7 and c.lds_cut[nb] > nl[0]:
                assert done == total and c.lds_cut[nb] <= 23 and (c.br0 < 0 or nb > c.r_at)
                p(f"s_mul_i32 m0, s{S_BW}, 8448"); lds_upto(c.lds_cut[nb])
            nb += 1
        nq = [0]; w2t = {}
        for cost, fn in units:
            while nb < 8 and done >= cuts[min(nb, 6)]: barrier()
            fn(nb == 0); done += cost
        while nb < 8: barrier()
        self.stamp("bar7", sets=(0, 3))
        p(f"s_mul_i32 m0, s{S_BW}, 8448")
        if c.prio_b3 != c.prio_b2: p(f"s_setprio {c.prio_b3}")
        XR, XR2 = 2, 52
        lds_upto(c.fx_ld)
        fx = self.flag_load("X", S_FXR, 8, VFL)
        lds_upto(c.fx_chk)
        self.flag_check(fx, VT)
        p.wait(w2t[nq[0] - 1]); self.lds_post(VONE, VTAG, 4)
        self.stamp("fx", sets=(3,))
        p(f"buffer_load_dwordx4 {v(XR,4)}, v{VL16}, {s(R_WS,4)}, s{S_XTR} offen sc1\ns_add_u32 s{S_XTR}, s{S_XTR}, {c.xts}\nbuffer_load_dwordx4 {v(XR2,4)}, v{VL16}, {s(R_WS,4)}, s{S_XTR} offen sc1")
        lds_upto(57)
        p.extend(kmfma(0, XF))
        T = S_T
        uw = lambda: [p(f"ds_write_b128 v{VUW}, {v(XR2 if ch else XR,4)} offset:{4608*ch}") for ch in range(2)] + [p(f"ds_write_b32 v{VUZ}, v{VZ}")]
        p(f"ds_write_b128 v{VRW}, {v(KA,4)}")
        self.lds_post(VONE, VTAG, 0)
        self.stamp("kgen", sets=(0, 3))
        if c.prio_b4 != c.prio_b3: p(f"s_setprio {c.prio_b4}")
        self.lds_wait(VCN, VT, 0)
        GV, PK = 96, 128
        for k in range(16): p(f"ds_read2st64_b32 {v(GV+2*k,2)}, v{VG+k} offset0:0 offset1:12")
        if c.u_at == 1: uw()
        for k in range(11): p(f"v_add_f32 v{GV+2*k}, v{GV+2*k}, v{GV+2*k+1}")
        for cp_ in range(4):
            for j in range(4): p(f"v_cvt_pk_bf16_f32 v{PK+4*cp_+j}, v{GV+2*(cp_+2*j)}, v{GV+2*(cp_+2*j+1)}")
            p(f"ds_write_b128 v{VTW}, {v(PK+4*cp_,4)} offset:{cp_*TCP+64}")
        for k in range(11, 16): p(f"v_add_f32 v{GV+2*k}, v{GV+2*k}, v{GV+2*k+1}")
        l0, l1 = self.lab("edge"), self.lab("tabd")
        E = lambda k: GV + 2 * (11 + k)
        p(f"v_cvt_pk_bf16_f32 v{PK+16}, v{E(0)}, v{E(1)}\ns_cmp_lg_u32 s{S_MH}, 0\ns_cbranch_scc1 {l0}")
        p.alt_begin()
        p(f"ds_write_b32 v{VTZ}, v{PK+16}\ns_mov_b64 exec, 0xffff\nds_write_b32 v{VTZ}, v{VZ} offset:256\ns_branch {l1}")
        p.alt_else()
        p.label(l0)
        p(f"v_cvt_pk_bf16_f32 v{PK+17}, v{E(2)}, v{E(3)}\nv_cvt_pk_bf16_f32 v{PK+18}, v{E(3)}, v{E(3)}\nv_cvt_pk_bf16_f32 v{PK+19}, v{E(3)}, v{E(4)}")
        p(f"s_mov_b64 exec, 0xffffff\nds_write_b128 v{VTZ}, {v(PK+16,4)}")
        p.alt_end()
        p.label(l1)
        p("s_mov_b64 exec, -1")
        self.stamp("tables", sets=(0, 3, 4))
        if c.u_at == 2: uw()
        self.lds_post(VONE, VTAG, 1)
        self.lds_wait(VCN, VT, 1)
        self.stamp("u", sets=(0, 3, 4))
        if c.prio_b5 != c.prio_b4: p(f"s_setprio {c.prio_b5}")
        TF, UF, CA = 96, 160, 224
        PU, VA, VB, AF, TB = 128, 144, 64, 72, 88
        MF = lambda d, a, b_, z=False: I(f"v_mfma_f32_16x16x32_bf16 {v(d,4)}, {v(a,4)}, {v(b_,4)}, {'0' if z else v(d,4)}")
        def read_tu(ph):
            r = [I(f"ds_read_b128 {v(UF+32*(ph&1),4)}, v{VUA} offset:{2*32*(3-ph)}")]
            for a in range(4):
                for h in range(2):
                    r.append(I(f"ds_read_b64 {v(TF+16*(ph&1)+4*a+2*h,2)}, v{VTA} offset:{2*(160+256*(3-a)+32*(3-ph))+8*h}"))
            r += [I(f"ds_read_b128 {v(UF+32*(ph&1)+4*b,4)}, v{VUA} offset:{2*(256*b+32*(3-ph))}") for b in range(1, 8)]
            if c.cmajor: r = [r[i] for i in (0, 1, 2, 3, 4, 9, 5, 6, 10, 7, 8, 11, 12, 13, 14, 15)]
            return r
        r0 = read_tu(0)
        p.extend(r0[:11])
        for ph in range(4):
            prs = [(a, b) for b in range(8) for a in range(min(4, 8 - b))]
            if c.cmajor: prs.sort(key=lambda x: (x[0] + x[1], x[1]))
            mm = [MF(CA + 4 * (a + b), UF + 32 * (ph & 1) + 4 * b, TF + 16 * (ph & 1) + 4 * a, ph == 0 and (b == 0 or a == 3)) for a, b in prs]
            if ph == 0:
                rp = [I(f"ds_read_b128 {v(PU+8*be+4*o,4)}, v{VPU} offset:{512*be+16*o}") for be in range(2) for o in range(2)]
                ra = [I(f"ds_read2_b32 {v(AF+4*a+2*h,2)}, v{VCA} offset0:{16*(3-a)+2*h} offset1:{16*(3-a)+2*h+1}") for a in range(4) for h in range(2)]
                ra += [I(f"ds_read_b64 {v(TB+2*h,2)}, v{VTA} offset:{8*h}") for h in range(2)]
                mp = [MF(VA + 8 * be + 4 * o, PU + 8 * be + 4 * o, BO7 if o else BE9, True) for be in range(2) for o in range(2)]
                cv = [I(f"v_cvt_pk_bf16_f32 v{VB+4*be+r}, v{VA+8*be+r}, v{VA+8*be+4+r}") for be in range(2) for r in range(4)]
                r1 = read_tu(1)
                p.extend(interleave(mm[:12], r0[11:13] + rp + r0[13:] + ra[:5]))
                p.extend(interleave(mp + mm[12:18], ra[5:] + r1[:8]))
                p.extend(interleave(mm[18:], [[x, y] for x, y in zip(cv, r1[8:])]))
                l0, l1 = self.lab("far1"), self.lab("fard")
                p(f"s_cmp_lg_u32 s{S_MH}, 0\ns_cbranch_scc1 {l0}")
                p.alt_begin()
                p.extend([MF(CA + 4 * (4 + b), UF + 4 * b, TB) for b in range(4)])
                p.extend([MF(CA + 4 * 6, AF, VB), MF(CA + 4 * 7, AF + 4, VB), MF(CA + 4 * 7, AF, VB + 4)])
                p(f"s_branch {l1}")
                p.alt_else()
                p.label(l0)
                p.extend([MF(CA + 4 * (4 + a + be), AF + 4 * a, VB + 4 * be) for be in range(2) for a in range(4 - be)])
                p.alt_end()
                p.label(l1)
            elif ph < 3 and "3" in c.diag: pass
            elif ph < 3: p.extend(interleave(mm, read_tu(ph + 1), ratio=0.8))
            else:
                self.lds_post(VONE, VTAG, 2)
                p.extend(mm[:5]); self.lds_peek(VCN, VT, 2); p.extend(mm[5:11])
                self.lds_check(VCN, VT, 2, fill=lambda: p.extend(mm[11:16])); mm = mm[16:]
                if c.prio_b6 != c.prio_b5 and not c.late6: p(f"s_setprio {c.prio_b6}")
                fill = [I(f"ds_write_b128 v{VEXW}, {v(CA+4*cc,4)} offset:{1024*cc}") for cc in range(c.ex_n)]
                assert c.ex_n <= (6 if c.cmajor else 4)
                p.extend(interleave(mm, fill, ratio=c.ex_n / 9))
        if c.prio_b6 != c.prio_b5 and c.late6: p(f"s_setprio {c.prio_b6}")
        self.stamp("conv", sets=(0, 2, 3, 4))
        for cc in range(c.ex_n, 8): p(f"ds_write_b128 v{VEXW}, {v(CA+4*cc,4)} offset:{1024*cc}")
        self.lds_post(VONE, VTAG, 3)
        EXV, VSA = 96, 10
        if "b" in c.diag:
            p(f"v_lshlrev_b32 v{VT+4}, 7, v0\ns_mov_b64 exec, 15\nbuffer_store_dword v{VTAG}, v{VT+4}, {s(R_WS,4)}, s{S_FSW} offen sc1\ns_mov_b64 exec, -1")
            self.lds_post(VONE, VTAG, 7); p("s_waitcnt lgkmcnt(0)"); self.stamp_flush(1); p("s_endpgm"); return
        self.lds_wait(VCN, VT, 3)
        for k in range(2):
            for w in range(4): p(f"ds_read_b128 {v(EXV+16*k+4*w,4)}, v{VEXR} offset:{8192*w+1024*k}")
        for k in range(2):
            b = EXV + 16 * k
            for r in range(4): p(f"v_add_f32 v{b+r}, v{b+r}, v{b+4+r}\nv_add_f32 v{b+8+r}, v{b+8+r}, v{b+12+r}")
            for r in range(4): p(f"v_cvt_pk_bf16_f32 v{b+4+r}, v{b+r}, v{b+8+r}")
            sttok = p.tok(f"buffer_store_dwordx4 {v(b+4,4)}, v{VL16}, {s(R_WS,4)}, s{S_STW} offen offset:{1024*k} sc1")
        self.stamp("st", sets=(0, 2, 3, 4))
        F = dict(VT=VT, XO=16, PA=18, SA=17, STA=20, XI=24, RG=21, RC=22, XF=128, PV=160, SV=28, SF=136, w=S_BW, sXO=S_FXR, sST=S_XTR, OUT=R_2)
        S_XO = S_STW
        p(f"s_load_dwordx2 {s(R_LD,2)}, s[0:1], 0\ns_load_dwordx2 {s(R_2,2)}, s[0:1], 104\ns_mov_b32 s{R_LD+2}, {2048*896}\ns_mov_b32 s{R_2+2}, {2048*896}\ns_add_u32 s{S_XO}, s{S_STR}, {8*8192}")
        self.fin_addr(0, F, 0); self.fin_addr(0, F, 1)
        if "S" not in c.spoll: p(f"v_min_u32 v{VFL}, 15, v0\nv_lshlrev_b32 v{VFL}, 2, v{VFL}")
        p(f"s_mul_i32 s{T}, s{S_BW}, 2304\ns_add_u32 s{T}, s{T}, {L_STR}")
        p(f"v_and_b32 v{VT+4}, 32, v0\nv_lshl_add_u32 v{VT+4}, v0, 3, v{VT+4}\nv_add_u32 v{VSA}, s{T}, v{VT+4}")
        p(f"v_lshrrev_b32 v{VT+4}, 3, v0\nv_lshlrev_b32 v{VT+4}, 13, v{VT+4}\nv_and_b32 v{VT+5}, 7, v0\nv_lshl_add_u32 v{VSA+2}, v{VT+5}, 4, v{VT+4}\nv_lshlrev_b32 v{VT+4}, 7, v0")
        p.wait(sttok)
        if "S" in c.sflag: self.sflags4(S_FSW)
        else: p(f"s_mov_b64 exec, 15\nbuffer_store_dword v{VTAG}, v{VT+4}, {s(R_WS,4)}, s{S_FSW} offen sc1\ns_mov_b64 exec, -1")
        self.stamp("flagS")
        if c.prio_b7 != c.prio_b6: p(f"s_setprio {c.prio_b7}")
        if c.b_xat == 0: self.fin_loads(F)
        fs = self.flag_load("S", S_FSR, 16, VFL)
        self.flag_check(fs, VT, sleep=c.fs_sleep)
        self.stamp("fs", sets=(0, 2, 3))
        if c.prio_b8 != c.prio_b7: p(f"s_setprio {c.prio_b8}")
        SV = 64
        for j in range(2): p(f"buffer_load_dwordx4 {v(SV+4*j,4)}, v{VSA+2}, {s(R_WS,4)}, s{S_XO if j else S_STR} offen sc1")
        if c.b_xat == 1: self.fin_loads(F)
        for j in range(2): p(f"ds_write2_b64 v{VSA}, {v(SV+4*j,2)}, {v(SV+4*j+2,2)} offset0:{72*j} offset1:{72*j+144}")
        self.lds_post(VONE, VTAG, 7)
        self.stamp("sready", sets=(0, 2, 3))
        self.fin_sread(F); p.extend(self.fin_prep(F)); p.extend(self.fin_sprep(F))
        self.lds_wait(VCN, VT, 5, sleep=c.b5_sleep)
        if c.prio_b9 != c.prio_b8: p(f"s_setprio {c.prio_b9}")
        self.fin_out(F)
        self.stamp("end", sets=(0, 2, 3, 4, 9))
        self.stamp_flush(1)
        p("s_endpgm")

    def head_h(self):
        p, c = self.p, self.c
        p.label("L_helper")
        self.role_start()
        S_HH, S_X, S_Z, VT, XD = 64, 65, 72, 1, 16
        if c.prefetch_code and c.pf_h:
            p(f"s_sub_u32 s{S_X}, s{S_J}, 28\ns_lshl3_add_u32 s{S_X}, s{S_X}, s{S_WAVE}\ns_lshl_b32 s{S_X}, s{S_X}, 7\nv_lshlrev_b32 v255, 12, v0\ns_mov_b64 exec, 0x1ff")
            p(f"buffer_load_dword v255, v255, {s(R_PC,4)}, s{S_X} offen\ns_mov_b64 exec, -1")
        p(f"s_lshl2_add_u32 s{S_HH}, s{S_XCD}, s{S_J}\ns_sub_u32 s{S_HH}, s{S_HH}, 28\ns_lshl3_add_u32 s{S_Z}, s{S_HH}, s{S_WAVE}\ns_mul_i32 s{S_X}, s{S_Z}, {8*896}")
        p(f"v_lshrrev_b32 v{VT+2}, 3, v0\nv_mul_u32_u24 v{VT}, 896, v{VT+2}\nv_and_b32 v{VT+1}, 7, v0\nv_lshl_add_u32 v{VT}, v{VT+1}, 4, v{VT}")
        srd(p, R_LD, P_U, 2048 * 896)
        for i in range(7): p(f"buffer_load_dwordx4 {v(XD+4*i,4)}, v{VT}, {s(R_LD,4)}, s{S_X} offen offset:{128*i}")
        if c.h_near: p("s_branch L_bodyH")
    def role_h(self):
        p, c = self.p, self.c
        S_HH, S_X, S_Y, S_ONE, S_LO, S_HI, S_Q, S_CG, S_Z = range(64, 73)
        T = S_T
        VT, XD, WD, AC, CS, UP = 1, 16, 48, 80, 88, 96
        L_XN = 8192
        if c.h_near:
            if c.h_align: p(".p2align 12")
            p.label("L_bodyH"); p.reset()
            if c.prefetch_code: p.items.append(Marker("pending", ("vmem", {"v255"})))
            for i in range(7): p.items.append(Marker("pending", ("vmem", {f"v{XD+4*i+j}" for j in range(4)})))
        else: self.head_h()
        self.stamp_begin("H")
        self.load_epoch(); srd(p, R_2, P_W1, 448 * 3584); srd(p, R_PC, P_W2, 1792 * 896)
        p(f"s_lshr_b32 s{S_Q}, s{S_XCD}, 1\ns_lshl2_add_u32 s{S_Q}, s{S_Q}, s{S_J}\ns_sub_u32 s{S_Q}, s{S_Q}, 28\ns_and_b32 s{S_CG}, s{S_XCD}, 1\ns_mul_i32 s{S_CG}, s{S_CG}, 14\ns_add_u32 s{S_CG}, s{S_CG}, s{S_Q}")
        p(f"s_lshl_b32 s{T}, s{S_CG}, 7\ns_mul_i32 s{S_Y}, s{S_WAVE}, {56*3584}\ns_add_u32 s{S_Y}, s{S_Y}, s{T}\ns_cmp_ge_u32 s{S_Q}, 14\ns_cselect_b32 s{S_Y}, {448*3584}, s{S_Y}")
        p(f"v_mul_u32_u24 v{VT+3}, 3584, v{VT+2}\nv_lshl_add_u32 v{VT+3}, v{VT+1}, 4, v{VT+3}")
        p(f"s_mov_b32 s{S_ONE}, 0x3f803f80\ns_mov_b32 s{S_LO}, 0x00003f80\ns_mov_b32 s{S_HI}, 0x3f800000")
        p(f"s_lshl_b32 s{S_X}, s{S_Z}, 6\ns_add_u32 s{S_X}, s{S_X}, {WS_STAT}")
        p(f"s_mul_i32 s{T}, s{S_WAVE}, 7232\ns_add_u32 s{T}, s{T}, {L_XN}\nv_add_u32 v{VT}, s{T}, v{VT}")
        for i in range(4): p(f"v_mov_b32 v{AC+i}, 0")
        for k in range(8): p(f"v_mov_b32 v{CS+k}, 0")
        self.make_tag()
        def w1_loads():
            for i in range(7):
                p(f"buffer_load_dwordx4 {v(WD+4*i,4)}, v{VT+3}, {s(R_2,4)}, s{S_Y} offen")
                if i < 6: p(f"s_add_u32 s{S_Y}, s{S_Y}, {8*3584}")
        def touch():
            p(f"s_sub_u32 s{T}, s{S_J}, 28\ns_mul_i32 s{T}, s{T}, 7\ns_add_u32 s{T}, s{T}, s{S_WAVE}\ns_lshl3_add_u32 s{T}, s{T}, s{S_XCD}\ns_mul_i32 s{T}, s{T}, {8*896}\ns_cmp_eq_u32 s{S_WAVE}, 7\ns_cselect_b32 s{T}, {1792*896}, s{T}")
            p(f"v_min_u32 v120, 55, v0\nv_lshlrev_b32 v120, 7, v120\nbuffer_load_dword v121, v120, {s(R_PC,4)}, s{T} offen")
        if c.h_w1 == 0: w1_loads()
        if c.h_w1 == 1: p.items.append(Marker("need", XD + 27)); w1_loads()
        self.stamp("issued")
        for i in range(28):
            p(f"v_dot2_f32_bf16 v{AC+(i&1)}, v{XD+i}, s{S_ONE}, v{AC+(i&1)}\nv_dot2_f32_bf16 v{AC+2+(i&1)}, v{XD+i}, v{XD+i}, v{AC+2+(i&1)}")
        p(f"v_add_f32 v{AC}, v{AC}, v{AC+1}\nv_add_f32 v{AC+1}, v{AC+2}, v{AC+3}")
        for pat in ("quad_perm:[1,0,3,2]", "quad_perm:[2,3,0,1]", "row_half_mirror"):
            for k in range(2): p(f"v_add_f32_dpp v{AC+k}, v{AC+k}, v{AC+k} {pat} row_mask:0xf bank_mask:0xf")
        inv = 0x3b124925
        p(f"v_mul_f32 v{AC}, {inv}, v{AC}\nv_mul_f32 v{AC+1}, {inv}, v{AC+1}\nv_fma_f32 v{AC+1}, -v{AC}, v{AC}, v{AC+1}\nv_max_f32 v{AC+1}, 0, v{AC+1}")
        p(f"v_cvt_pk_bf16_f32 v{AC+1}, v{AC+1}, v{AC+1}\nv_and_b32 v{AC+1}, 0xffff0000, v{AC+1}\nv_add_f32 v{AC+1}, 0x3727c5ac, v{AC+1}")
        p(f"v_cvt_pk_bf16_f32 v{AC+1}, v{AC+1}, v{AC+1}\nv_and_b32 v{AC+1}, 0xffff0000, v{AC+1}\nv_sqrt_f32 v{AC+1}, v{AC+1}")
        p(f"v_mov_b32 v{AC+3}, s{S_TAG}\nv_cvt_pk_bf16_f32 v{AC+2}, v{AC}, v{AC+1}")
        p(f"s_mov_b32 exec_lo, 0x01010101\ns_mov_b32 exec_hi, 0x01010101\nbuffer_store_dwordx2 {v(AC+2,2)}, v0, {s(R_WS,4)}, s{S_X} offen sc1\ns_mov_b64 exec, -1")
        if c.h_w1 == 2: w1_loads()
        if c.h_touch == 0: touch()
        self.stamp("stats")
        p(f"v_and_b32 v{AC+4}, 0xffff0000, v{AC+2}\nv_rcp_f32 v{AC+4}, v{AC+4}\nv_lshlrev_b32 v{AC+6}, 16, v{AC+2}\nv_mov_b32 v{AC+5}, v{AC+4}\nv_mul_f32 v{AC+6}, -v{AC+6}, v{AC+4}\nv_mov_b32 v{AC+7}, v{AC+6}")
        for i in range(7):
            u = UP + 8 * (i & 1)
            for j in range(4): p(f"v_lshlrev_b32 v{u+2*j}, 16, v{XD+4*i+j}\nv_and_b32 v{u+2*j+1}, 0xffff0000, v{XD+4*i+j}")
            for j in range(4): p(f"v_pk_fma_f32 {v(u+2*j,2)}, {v(u+2*j,2)}, {v(AC+4,2)}, {v(AC+6,2)}")
            for j in range(4): p(f"v_cvt_pk_bf16_f32 v{XD+4*i+j}, v{u+2*j}, v{u+2*j+1}")
            p(f"ds_write_b128 v{VT}, {v(XD+4*i,4)} offset:{128*i}")
        if c.h_touch == 1: touch()
        self.stamp("norm")
        for i in range(7):
            for j in range(4):
                p(f"v_dot2_f32_bf16 v{CS+2*j}, v{WD+4*i+j}, s{S_LO}, v{CS+2*j}\nv_dot2_f32_bf16 v{CS+2*j+1}, v{WD+4*i+j}, s{S_HI}, v{CS+2*j+1}")
        for k in range(8): p(f"v_add_f32_dpp v{CS+k}, v{CS+k}, v{CS+k} row_ror:8 row_mask:0xf bank_mask:0xf")
        p(f"v_and_b32 v{VT+3}, 8, v0\nv_cmp_eq_u32 vcc, 0, v{VT+3}\nv_lshlrev_b32 v{VT+3}, 1, v{VT+3}\nv_lshl_add_u32 v{VT+3}, v{VT+1}, 5, v{VT+3}\nv_lshrrev_b32 v{VT+4}, 4, v0\nv_lshl_add_u32 v{VT+3}, v{VT+4}, 8, v{VT+3}")
        p(f"s_lshl_b32 s{T}, s{S_WAVE}, 10\nv_add_u32 v{VT+3}, s{T}, v{VT+3}")
        for k in range(4): p(f"v_cndmask_b32 v{CS+k}, v{CS+4+k}, v{CS+k}, vcc")
        p(f"ds_write_b128 v{VT+3}, {v(CS,4)}")
        p(f"s_lshl_b32 s{T}, s{S_WAVE}, 7\ns_add_u32 s{T}, s{T}, {L_XN}\nv_mul_u32_u24 v{VT}, 7232, v{VT+1}\nv_lshl_add_u32 v{VT}, v{VT+2}, 4, v{VT}\nv_add_u32 v{VT}, s{T}, v{VT}")
        p(f"v_mul_u32_u24 v{VT+2}, {8*c.xts}, v{VT+2}\nv_lshl_add_u32 v{VT+2}, v{VT+1}, 4, v{VT+2}\nv_lshlrev_b32 v{VT+4}, 7, v0")
        p(f"s_mul_i32 s{S_X}, s{S_WAVE}, {c.xts//2}\ns_add_u32 s{S_X}, s{S_X}, s{S_HH}\ns_lshl_b32 s{S_X}, s{S_X}, 7\ns_add_u32 s{S_X}, s{S_X}, {WS_XT}")
        p(f"s_lshr_b32 s{T}, s{S_HH}, 3\ns_lshl2_add_u32 s{S_Y}, s{S_WAVE}, s{T}\ns_lshl_b32 s{S_Y}, s{S_Y}, 7\ns_and_b32 s{T}, s{S_HH}, 7\ns_add_u32 s{S_Y}, s{S_Y}, s{T}\ns_lshl2_add_u32 s{S_Y}, s{S_Y}, {WS_FX}")
        p(f"s_mov_b32 s{S_LO}, 0x05040100\ns_mov_b32 s{S_HI}, 0x07060302\ns_waitcnt lgkmcnt(0)\ns_barrier")
        self.stamp("bar")
        p(f"s_cmp_eq_u32 s{S_WAVE}, 7\ns_cbranch_scc1 L_h7")
        p.alt_begin()
        for j in range(8): p(f"ds_read_b128 {v(XD+4*j,4)}, v{VT} offset:{896*j}")
        if c.h_touch == 2: touch()
        for e in range(8):
            o = WD + 4 * e
            for j in range(4): p(f"v_perm_b32 v{o+j}, v{XD+4*(2*j+1)+(e>>1)}, v{XD+4*(2*j)+(e>>1)}, s{S_HI if e&1 else S_LO}")
            if "x" not in c.diag: p(f"buffer_store_dwordx4 {v(o,4)}, v{VT+2}, {s(R_WS,4)}, s{S_X} offen sc1")
            if e < 7: p(f"s_add_u32 s{S_X}, s{S_X}, {c.xts}")
        p("s_waitcnt vmcnt(0)")
        if "X" in c.sflag: self.sflags4(S_Y)
        else: p(f"s_mov_b64 exec, 15\nbuffer_store_dword v{AC+3}, v{VT+4}, {s(R_WS,4)}, s{S_Y} offen sc1\ns_mov_b64 exec, -1")
        p("s_branch L_hdone")
        p.alt_else()
        p.label("L_h7")
        p(f"s_setprio 3\ns_cmp_ge_u32 s{S_Q}, 14\ns_cbranch_scc1 L_hdone\nv_lshlrev_b32 v{VT+3}, 2, v0")
        for i in range(16): p(f"ds_read2st64_b32 {v(XD+2*i,2)}, v{VT+3} offset0:{2*i} offset1:{2*i+1}")
        for st in (16, 8, 4, 2):
            for i in range(0, st, 2): p(f"v_pk_add_f32 {v(XD+i,2)}, {v(XD+i,2)}, {v(XD+st+i,2)}")
        p(f"v_add_f32 v{AC+2}, v{XD}, v{XD+1}\nv_lshlrev_b32 v{VT+3}, 3, v0\ns_lshl_b32 s{T}, s{S_CG}, 9\ns_add_u32 s{T}, s{T}, {WS_CS}")
        p(f"buffer_store_dwordx2 {v(AC+2,2)}, v{VT+3}, {s(R_WS,4)}, s{T} offen sc1")
        p.alt_end()
        p.label("L_hdone")
        p("s_setprio 0\ns_waitcnt lgkmcnt(0)")
        self.stamp("done")
        p(f"v_min_u32 v{VT}, 55, v0\ns_sub_u32 s{S_Z}, s{S_J}, 28")
        if c.h_pf:
            p("s_barrier")
            p(f"s_mul_i32 s{T}, s{S_Z}, 7\ns_add_u32 s{T}, s{T}, s{S_WAVE}\ns_mul_i32 s{T}, s{T}, {64*896}\ns_cmp_eq_u32 s{S_WAVE}, 7\ns_cselect_b32 s{T}, {1792*896}, s{T}\nv_lshlrev_b32 v{VT+1}, 7, v{VT}")
            for st in c.h_pf:
                for h in range(2):
                    p(f"s_add_u32 s{T+1}, s{T}, {(16*st+8*h)*896}\nbuffer_load_dword v{VT+2}, v{VT+1}, {s(R_PC,4)}, s{T+1} offen")
        self.stamp("pfw")
        if c.h_act:
            assert c.alay == 0
            p(f"s_lshr_b32 s{T}, s{S_WAVE}, 2\ns_mul_i32 s{T}, s{T}, 56\nv_add_u32 v{VT}, s{T}, v{VT}\nv_lshrrev_b32 v{VT+1}, 4, v{VT}\nv_lshlrev_b32 v{VT+1}, 13, v{VT+1}\nv_and_b32 v{VT}, 15, v{VT}\nv_lshl_add_u32 v{VT+1}, v{VT}, 7, v{VT+1}")
            p(f"s_and_b32 s{T}, s{S_WAVE}, 3\ns_lshl2_add_u32 s{S_X}, s{S_HH}, s{T}\ns_mul_i32 s{S_X}, s{S_X}, {28*2048}\ns_add_u32 s{S_X}, s{S_X}, {WS_ACT}")
            p(f"s_lshl4_add_u32 s{S_Y}, s{S_HH}, s{T}\ns_lshl_b32 s{S_Y}, s{S_Y}, 7\ns_add_u32 s{S_Y}, s{S_Y}, {WS_FA}")
            have = -1
            for st in c.h_act:
                p(f"s_add_u32 s{S_HI}, s{S_X}, {2048*st}")
                if st > have:
                    have = min(x for x in c.fstages if x >= st)
                    p(f"s_add_u32 s{S_LO}, s{S_Y}, {512*have}")
                    self.flag_check(self.flag_load("H", S_LO, 7, None), None, sleep=c.h_sleep)
                p(f"buffer_load_dword v{VT+2}, v{VT+1}, {s(R_WS,4)}, s{S_HI} offen sc1")
                self.stamp(f"pa{st}")
        p(f"s_waitcnt vmcnt(0)")
        self.stamp("pfa")
        p(f"s_cmp_lg_u32 s{S_HH}, 31\ns_cbranch_scc1 L_hend\ns_cmp_lg_u32 s{S_WAVE}, 7\ns_cbranch_scc1 L_hend")
        p(f"v_lshrrev_b32 v{VT}, 2, v0\nv_min_u32 v{VT}, 13, v{VT}\nv_lshlrev_b32 v{VT}, 9, v{VT}\nv_and_b32 v{VT+1}, 3, v0\nv_lshl_add_u32 v{VT}, v{VT+1}, 4, v{VT}\ns_mov_b32 s{S_X}, {WS_FS}")
        ld = f"s_sleep 8\nbuffer_load_dwordx4 {v(XD,4)}, v{VT}, {s(R_WS,4)}, s{S_X} offen sc1"
        p(ld)
        self.tagged_check(ld, [XD, XD + 1, XD + 2, XD + 3], VT + 2)
        p(f"s_mov_b32 s{S_X}, {WS_EPOCH}")
        self.flag_store(S_X, AC + 3)
        p.label("L_hend")
        self.stamp_flush(1)
        p("s_endpgm")

    def layout(self, body):
        c = self.c
        lines = body.split("\n")
        sizes = instr_sizes([re.sub(r"L_hop\d", "L_bodyA", l) for l in lines])
        end = lines.index("L_bodyH:") if c.h_near else lines.index("L_helper:")
        out, addr, page, k = [], 0, 1, 0
        prom = None
        fixed = [0, 0]
        for i, l in enumerate(lines):
            t = l.strip()
            if t.startswith(".p2align"):
                al = 1 << int(t.split()[1]); addr = (addr + al - 1) // al * al; prom = None
            if t == "L_bodyA:" and c.align4k and c.a_align and -addr % 4096 < 768:
                out.append(".p2align 12"); addr += -addr % 4096; prom = None
            if lines[i - 1].strip() == "L_bodyA:" and addr >= 4096 * page: page += 1
            if c.hops and sizes[i] and addr >= 4096 * page and i < end:
                out += [f"L_hop{k}:", f"    s_cbranch_execz {'L_bodyA' if k == 0 else 'HOP%d' % (k + 4)}"]; addr += 4; page += 1; k += 1; prom = None
            if c.align8 and sizes[i] == 8 and addr % 8 == 4:
                run, pend, valu = 0, 0, 0
                for j in range(i, min(len(lines), i + 60)):
                    if sizes[j] == 4: pend ^= 1
                    elif sizes[j] == 8:
                        if pend: break
                        run += 1; valu += lines[j].strip().startswith("v_") and "mfma" not in lines[j]
                if prom is not None and run >= 2:
                    m = re.match(r"(\s*)(v_\w+)(.*)", out[prom]); out[prom] = m.group(1) + m.group(2) + "_e64" + m.group(3); addr += 4; fixed[0] += 1
                elif valu >= c.align8:
                    out.append("    s_nop 0"); addr += 4; fixed[1] += 1
            if sizes[i] == 8: prom = None
            elif sizes[i] == 4 and re.match(r"v_(mov|add|sub|subrev|mul|and|or|xor|lshlrev|lshrrev|exp|rcp|sin|cos|fract|min|max|cvt|sqrt)_", t): prom = len(out)
            out.append(l); addr += sizes[i]
        body = "\n".join(out)
        if c.hops:
            assert c.align4k and k >= 5
            for j in range(k + 3, 4, -1): body = body.replace(f"HOP{j}", f"L_hop{j}" if j < k else "L_hopped")
        self.p.stats["align"] = fixed
        return body
    def build(self):
        p = self.p
        self.entry()
        self.role_a(); self.role_h()
        p.reset()
        p.label("L_exit")
        p("s_endpgm")
        p(".p2align 7")
        p(".type L_gtab,@object")
        p.label("L_gtab")
        w = self.gather_table()
        for i in range(0, len(w), 8): p(".long " + ", ".join(hex(x) for x in w[i:i+8]))
        p.label("L_end")
        body = p.resolve()
        head = open("recurrent_scan__ssm_conv_s4__dense_activation_mish__prompt.s.ref").read().split("; Override launch")[0]
        txt = head + f"; @launch grid=(256,1,1) block=(512,1,1) lds={LDS_BYTES}\n" + DOC + ""
        pad = ".p2align 12\n.fill 832, 4, 0xbf810000\n" if self.c.align4k else ""
        txt += f'.amdgcn_target "amdgcn-amd-amdhsa--gfx950"\n.text\n{pad}.globl {KNAME}\n.p2align 8\n.type {KNAME},@function\n{KNAME}:\n'
        if "m" in self.c.diag or "n" in self.c.diag:
            L = body.split("\n"); out = []; cnt = 0; i = 0
            while i < len(L):
                m = re.match(r"    v_mfma_f32_32x32x16_bf16 v\[(\d+):\d+\], (v\[\d+:\d+\]), (v\[\d+:\d+\]), \S+", L[i])
                if m: cnt += 1
                k = (cnt - 1) // 4
                if not m or ("m" if k < 28 else "n") not in self.c.diag: out.append(L[i]); i += 1; continue
                j = i + 1
                while j < len(L) and re.match(r"\s+(ds_read|buffer_load|s_add|s_nop 0|v_[a-l]|v_mul|v_mov|v_x|s_l|s_m)", L[j]): j += 1
                F = L[i + 1:j]; h = (len(F) + 1) // 2
                a_ = int(m.group(1)) + 4 * (k & 3); r = f"v[{a_}:{a_+3}]"
                out += [f"    v_mfma_f32_16x16x32_bf16 {r}, {m.group(2)}, {m.group(3)}, " + ("0" if k % 28 < 4 else r)] + F[:h]
                out += [f"    v_mfma_f32_16x16x32_bf16 {r}, {m.group(3)}, {m.group(2)}, {r}"] + F[h:]
                i = j
            body = "\n".join(out)
        if self.c.dma_fl: body = re.sub(r" lds$", f" {self.c.dma_fl} lds", body, flags=re.M)
        body = self.layout(body)
        txt += body
        txt += f""".section .rodata,"a"
.p2align 6
.amdhsa_kernel {KNAME}
  .amdhsa_next_free_vgpr 256
  .amdhsa_next_free_sgpr 102
  .amdhsa_accum_offset 256
  .amdhsa_group_segment_fixed_size 0
  .amdhsa_kernarg_size 128
  .amdhsa_user_sgpr_count 2
  .amdhsa_user_sgpr_kernarg_segment_ptr 1
  .amdhsa_system_sgpr_workgroup_id_x 1
.end_amdhsa_kernel
"""
        return txt

def parse_cfg(args):
    kw = {}
    for a in args:
        k, x = a.split("=")
        kw[k] = eval(x)
    return Cfg(**kw)

if __name__ == "__main__":
    out = sys.argv[1]
    g = Gen(parse_cfg(sys.argv[2:]))
    txt = g.build()
    open(out, "w").write(txt)
    import json
    json.dump(g.stamp_names, open(out + ".stamps.json", "w"))
    print(out, g.p.stats)
```
